```python
import torch

def _softmax(x, axis=-1):
    return torch.softmax(x, dim=axis)
def _gelu(x):
    return torch.nn.functional.gelu(x, approximate="tanh")
def _silu(x):
    return torch.nn.functional.silu(x)
def _sigmoid(x):
    return torch.sigmoid(x)
def _layernorm(x, axis=-1, eps=1e-5):
    m = x.mean(dim=axis, keepdim=True)
    v = x.var(dim=axis, keepdim=True, unbiased=False)
    return (x - m) / torch.sqrt(v + eps)
def _scatter_add(tgt, idx, src, axis=0):
    return tgt.clone().index_add_(axis, idx, src)
def _segment_sum(src, seg, n):
    out = torch.zeros((n,) + src.shape[1:], dtype=src.dtype)
    return out.index_add_(0, seg, src)
def _pad(x, pw):
    flat = tuple(v for pair in reversed(pw) for v in pair)
    return torch.nn.functional.pad(x, flat)

kernel_name = 'recurrent_scan__compressed_kv_cla__dense_activation_squared_relu__prompt'

def setup_inputs():

    _w = (lambda a: (lambda t: t.to(torch.bfloat16) if t.is_floating_point() else t)(torch.as_tensor(a)))
    def _A_setup():
        B, H, Sq, Sk, D, M = 1, 16, 2048, 2048, 256, 448
        Dc = 4 * D
        return {
            "x": _w((lambda *s: torch.randn(*s, dtype=torch.bfloat16) * 0.05)(B, Sq, M)),
            "c_kv": _w((lambda *s: torch.randn(*s, dtype=torch.bfloat16) * 0.2)(B, Sk, Dc)),
            "w_q": _w((lambda *s: torch.randn(*s, dtype=torch.bfloat16) * 3.2)(M, H, D) * (M ** -0.5)),
            "w_uk": _w((lambda *s: torch.randn(*s, dtype=torch.bfloat16) * 3.2)(Dc, H, D) * (Dc ** -0.5)),
            "w_uv": _w((lambda *s: torch.randn(*s, dtype=torch.bfloat16) * 0.2)(Dc, H, D) * (Dc ** -0.5)),
            "w_o": _w((lambda *s: torch.randn(*s, dtype=torch.bfloat16) * 0.2)(H, D, M) * ((H * D) ** -0.5)),
        }
    _A_in = _A_setup()

    def _B_setup():
        B, S, D, F = 1, 2048, 448, 1792
        return {
            "x": _w((lambda *s: torch.randn(*s, dtype=torch.bfloat16) * 0.05)(B, S, D)),
            "w1": _w((lambda *s: torch.randn(*s, dtype=torch.bfloat16) * 0.1)(D, F)),
            "b1": _w((lambda *s: torch.randn(*s, dtype=torch.bfloat16) * 0.8)(F)),
            "w2": _w((lambda *s: torch.randn(*s, dtype=torch.bfloat16) * 0.1)(F, D)),
            "b2": _w((lambda *s: torch.randn(*s, dtype=torch.bfloat16) * 6.4)(D)),
        }
    _B_in = _B_setup()

    return {
        "A_x": _A_in["x"],
        "A_c_kv": _A_in["c_kv"],
        "A_w_q": _A_in["w_q"],
        "A_w_uk": _A_in["w_uk"],
        "A_w_uv": _A_in["w_uv"],
        "A_w_o": _A_in["w_o"],
        "B_x": _B_in["x"],
        "B_w1": _B_in["w1"],
        "B_b1": _B_in["b1"],
        "B_w2": _B_in["w2"],
        "B_b2": _B_in["b2"],
    }

def reference(A_x, A_c_kv, A_w_q, A_w_uk, A_w_uv, A_w_o, B_x, B_w1, B_b1, B_w2, B_b2):
    def _A_ref(x, c_kv, w_q, w_uk, w_uv, w_o):
        B, Sq, M = x.shape[0], x.shape[1], x.shape[2]
        Sk = c_kv.shape[1]
        H, D = w_q.shape[1], w_q.shape[2]
        q = torch.einsum("bqm,mhd->bhqd", x, w_q)
        k = torch.einsum("bkc,chd->bhkd", c_kv, w_uk)
        v = torch.einsum("bkc,chd->bhkd", c_kv, w_uv)
        scores = torch.einsum("bhqd,bhkd->bhqk", q, k) * (D ** -0.5)
        off = Sk - Sq
        qi = torch.arange(Sq)[:, None]
        kj = torch.arange(Sk)[None, :]
        cmask = kj <= (qi + off)
        scores = torch.where(cmask[None, None], scores, -1e9)
        p = _softmax(scores, axis=-1)
        ctx = torch.einsum("bhqk,bhkd->bhqd", p, v)
        return torch.einsum("bhqd,hdm->bqm", ctx, w_o)

    def _B_ref(x, w1, b1, w2, b2):
        h = torch.einsum("bsd,df->bsf", x, w1) + b1
        zero = torch.zeros_like(h)
        r = torch.where(h > zero, h, zero)
        h = r * r
        out = torch.einsum("bsf,fd->bsd", h, w2) + b2
        return out

    x = A_x
    xn = _layernorm(x, axis=-1)
    s = _A_ref(xn, A_c_kv, A_w_q, A_w_uk, A_w_uv, A_w_o)
    g = _silu(_B_ref(xn, B_w1, B_b1, B_w2, B_b2))
    return x + s * g
```

```python
class Asm:
    def __init__(self):
        self.lines = []
    def __call__(self, s):
        for l in s.strip("\n").split("\n"):
            self.lines.append("    " + l.strip())
    def label(self, name):
        self.lines.append(name + ":")
    def raw(self, s):
        self.lines.append(s)
    def comment(self, s):
        self.lines.append("    ; " + s)
    def text(self):
        return "\n".join(self.lines) + "\n"

def vr(base, n=1):
    return f"v{base}" if n == 1 else f"v[{base}:{base+n-1}]"
def ar(base, n=1):
    return f"a{base}" if n == 1 else f"a[{base}:{base+n-1}]"
def sr(base, n=1):
    return f"s{base}" if n == 1 else f"s[{base}:{base+n-1}]"

def interleave(mfmas, fillers):
    out = []
    out += fillers.get(-1, [])
    for i, m in enumerate(mfmas):
        if m is not None: out.append(m)
        out += fillers.get(i, [])
    return out

def kernel_header(name):
    return f""".globl {name}
.p2align 8
.type {name},@function
{name}:
"""

def kernel_desc(name, vgpr, accum, sgpr=102):
    return f""".amdhsa_kernel {name}
  .amdhsa_next_free_vgpr {vgpr}
  .amdhsa_next_free_sgpr {sgpr}
  .amdhsa_accum_offset {accum}
  .amdhsa_group_segment_fixed_size 0
  .amdhsa_kernarg_size 112
  .amdhsa_user_sgpr_count 2
  .amdhsa_user_sgpr_kernarg_segment_ptr 1
  .amdhsa_system_sgpr_workgroup_id_x 1
  .amdhsa_float_denorm_mode_32 3
  .amdhsa_float_denorm_mode_16_64 3
.end_amdhsa_kernel
"""
```

```python
import struct
from asmlib import *
from layout import *

def f2u(x):
    return struct.unpack("<I", struct.pack("<f", x))[0]

O0 = 128
def O(dt, qt): return O0 + (dt*2+qt)*4
def S(b, kt, qt): return 64 + b*16 + (kt*2+qt)*4
def P(b, qt): return 96 + b*8 + qt*4
def NEGM(qt): return 112 + qt*4
vL = [120, 121]
vSUM = [[122, 123], [124, 125]]
vBIG = 126
vRD = 127
vLANE = 1
vDMA = 2
vTE, vTO = 3, 4
vL16 = 5
vT = 8
def Q(qt, u): return (qt*8+u)*4
def FR(f): return 64 + (f % 16)*4
def X(qt, u): return 128 + (qt*14+u)*4

sWS = 8
sDBG = 12
sB1 = 16
sWAVE, sHEAD, sJ, sQI = 20, 21, 22, 23
sTAU = 24
sM0 = 25
sOFFA, sOFFB = 26, 27
sRDD = 28
sRDS = 29
sXOFF = 30
sN = 31
sND = 32
sCNT = 33
sCLAMP = 34
sFIRST = 35
sRET = 36
sRET2 = 38
sMASK = 40
sT = 48
sC32K, sCWRAP = 60, 61
sTHR = 62
sPHASE = 63
sU1, sU2 = 64, 65
sPAIR = 66
sROWB = 67
sSTAMP = 70

MF = "v_mfma_f32_16x16x32_bf16"

def cls(ins):
    if ins.endswith(":"): return "L"
    if ins.startswith("s_"): return "S"
    if ins.startswith("ds_"): return "M"
    if ins.startswith("buffer_"): return "D"
    if ins.startswith(("v_exp", "v_rcp", "v_log", "v_rsq", "v_readlane")): return "E"
    return "V"

class Stage:
    def __init__(self):
        self.mf = []
        self.fill = {}
        self.post = {}
    def put(self, g, ins):
        self.fill.setdefault(g, []).append(ins)
    def put_post(self, g, ins):
        self.post.setdefault(g, []).append(ins)
    def free(self, g):
        n = 2; ns = 0
        for i in self.fill.get(g, []) + self.post.get(g, []):
            c = cls(i)
            if c == "S": ns += 1
            elif c == "D": n -= 3
            elif c == "E": n -= 2
            elif c in "MV": n -= 1
        return n - max(0, ns - 1)
    def emit(self, a):
        order = {"S": 0, "L": 0, "M": 1, "D": 1, "V": 2, "E": 2}
        f = {}
        for g in set(self.fill) | set(self.post):
            f[g] = sorted(self.fill.get(g, []), key=lambda i: order[cls(i)]) + self.post.get(g, [])
        for l in interleave(self.mf, f): a(l)
    def overload(self):
        return [(g, self.free(g)) for g in range(64) if self.free(g) < 0 and not (self.free(g) == -1 and [cls(i) for i in self.fill.get(g, [])] == ["D"])]

OPT = dict(snake=False, nodma=False, nobar=False, nosm=False, early=[5, 13, 21, 29], late=[41, 47, 53, 59], nords=False)

def common_fill(st, vm=20):
    for G in range(8):
        g0 = G*8
        Gn = (G+3) % 8
        for i in range(4):
            f = Gn*4+i
            if not OPT["nords"]: st.put(g0+2*i, f"ds_read_b128 {ar(FR(f),4)}, v{vRD} offset:{f*1024}")
        if G == 4:
            st.put(g0+6, f"s_waitcnt vmcnt({vm}) lgkmcnt(7)")
            if not OPT["nobar"]:
                st.put(g0+7, "s_barrier")
                st.put(g0+7, "s_nop 0" if False else f"v_add_u32 v{vRD}, s{sRDD}, v{vRD}")
            else:
                st.put(g0+7, f"v_add_u32 v{vRD}, s{sRDD}, v{vRD}")
        else:
            st.put(g0+6, "s_waitcnt lgkmcnt(7)")
    st.put(24, f"s_add_u32 s{sRDS}, s{sRDS}, 1")
    st.put(25, f"s_cmp_eq_u32 s{sRDS}, 5")
    st.put(26, f"s_cselect_b32 s{sRDD}, s{sCWRAP}, s{sC32K}")
    st.put(27, f"s_cselect_b32 s{sRDS}, 0, s{sRDS}")
    for i, g in enumerate(OPT["early"]):
        if not OPT["nodma"]: st.put(g, f"buffer_load_dwordx4 v{vDMA}, s[{sWS}:{sWS+3}], s{sOFFB} offen offset:{i*1024} lds")
    st.put(33, f"v_readlane_b32 s{sOFFA}, v{vTO}, s{sTAU}")
    st.put(34, f"s_add_u32 m0, s{sM0}, 16384")
    st.put(35, f"s_add_u32 s{sTAU}, s{sTAU}, 1")
    for i, g in enumerate(OPT["late"]):
        if not OPT["nodma"]: st.put(g, f"buffer_load_dwordx4 v{vDMA}, s[{sWS}:{sWS+3}], s{sOFFA} offen offset:{i*1024} lds")
    st.put(57, f"v_readlane_b32 s{sOFFB}, v{vTE}, s{sTAU}")
    st.put(48, f"s_add_u32 s{sM0}, s{sM0}, 32768")
    st.put(49, f"s_cmp_ge_u32 s{sM0}, 163840")
    st.put(50, f"s_cselect_b32 s{sT}, 163840, 0")
    st.put(51, f"s_sub_u32 s{sM0}, s{sM0}, s{sT}")
    st.put(60, f"s_mov_b32 m0, s{sM0}")

def mf_pv(half, pb):
    out = []
    for dt in range(16):
        for qt in ((1, 0) if (OPT["snake"] and dt & 1) else (0, 1)):
            out.append(f"{MF} {vr(O(dt,qt),4)}, {ar(FR(half*16+dt),4)}, {vr(P(pb,qt),4)}, {vr(O(dt,qt),4)}")
    return out
def mf_qk(half, sb):
    out = []
    for kt in range(2):
        for u in range(8):
            for qt in range(2):
                c = vr(NEGM(qt),4) if u == 0 else vr(S(sb,kt,qt),4)
                out.append(f"{MF} {vr(S(sb,kt,qt),4)}, {ar(FR(half*16+kt*8+u),4)}, {ar(Q(qt,u),4)}, {c}")
    return out
def mf_proj(half, u):
    out = []
    for nt in range(16):
        for qt in ((1, 0) if (OPT["snake"] and nt & 1) else (0, 1)):
            out.append(f"{MF} {vr(O(nt,qt),4)}, {ar(FR(half*16+nt),4)}, {ar(X(qt,u),4)}, {vr(O(nt,qt),4)}")
    return out

def sm_ops(b):
    ops = []
    seq = [(kt, qt, rp) for kt in range(2) for qt in range(2) for rp in range(2)]
    pend = []
    for i, (kt, qt, rp) in enumerate(seq):
        t0 = vT + (i % 4)*2
        s0 = S(b,kt,qt) + rp*2
        ops.append(f"v_exp_f32 v{t0}, v{s0}")
        ops += pend[:1]
        ops.append(f"v_exp_f32 v{t0+1}, v{s0+1}")
        ops += pend[1:]
        acc = vSUM[qt][rp]
        if kt == 0:
            pend = [f"v_add_f32 v{acc}, v{t0}, v{t0+1}"]
        else:
            pend = [f"v_add_f32 v{acc}, v{acc}, v{t0}", f"v_add_f32 v{acc}, v{acc}, v{t0+1}"]
        pend.append(f"v_cvt_pk_bf16_f32 v{P(b,qt)+kt*2+rp}, v{t0}, v{t0+1}")
    ops.append("s_nop 0")
    ops += pend
    ops += [f"v_add_f32 v{vSUM[0][0]}, v{vSUM[0][0]}, v{vSUM[0][1]}", f"v_add_f32 v{vSUM[1][0]}, v{vSUM[1][0]}, v{vSUM[1][1]}"]
    return ops
def place_sm(st, b, g_end, tag, ladd=True):
    st.put(-1, f"s_cmp_ge_u32 s{sN}, s{sND}")
    st.put(0, f"s_cbranch_scc1 L_domask_{tag}")
    st.put(0, f"L_nomask_{tag}:")
    STUBS.append((f"L_domask_{tag}", f"L_mask{b}", f"L_nomask_{tag}"))
    st.put(1, f"s_add_u32 s{sN}, s{sN}, 1")
    ops = []
    def add(ins, deps=(), early=0):
        ops.append((ins, list(deps), early)); return len(ops)-1
    la = []
    if ladd:
        la = [add(f"v_add_f32 v{vL[q]}, v{vL[q]}, v{vSUM[q][0]}") for q in range(2)]
    seq = [(kt, qt, rp) for kt in range(2) for qt in range(2) for rp in range(2)]
    users = {}
    lastacc = {}
    NT = 6
    for i, (kt, qt, rp) in enumerate(seq):
        t0 = vT + (i % NT)*2
        s0 = S(b,kt,qt) + rp*2
        war = users.get(i - NT, [])
        e0 = add(f"v_exp_f32 v{t0}, v{s0}", war, 1 if kt == 0 else 5)
        e1 = add(f"v_exp_f32 v{t0+1}, v{s0+1}", war, 1 if kt == 0 else 5)
        acc = vSUM[qt][rp]
        if kt == 0:
            a0 = add(f"v_add_f32 v{acc}, v{t0}, v{t0+1}", [e0, e1] + la)
            u = [a0]; lastacc[(qt,rp)] = a0
        else:
            a0 = add(f"v_add_f32 v{acc}, v{acc}, v{t0}", [e0, lastacc[(qt,rp)]])
            a1 = add(f"v_add_f32 v{acc}, v{acc}, v{t0+1}", [e1, a0])
            u = [a0, a1]; lastacc[(qt,rp)] = a1
        c = add(f"v_cvt_pk_bf16_f32 v{P(b,qt)+kt*2+rp}, v{t0}, v{t0+1}", [e0, e1])
        users[i] = u + [c]
    f0 = add(f"v_add_f32 v{vSUM[0][0]}, v{vSUM[0][0]}, v{vSUM[0][1]}", [lastacc[(0,0)], lastacc[(0,1)]])
    f1 = add(f"v_add_f32 v{vSUM[1][0]}, v{vSUM[1][0]}, v{vSUM[1][1]}", [lastacc[(1,0)], lastacc[(1,1)]])
    mx = add(f"v_max_f32 v{vT+14}, v{vSUM[0][0]}, v{vSUM[1][0]}", [f0, f1])
    add(f"v_cmp_nle_f32 vcc, v{vT+14}, v{vTHRV}", [mx])
    if OPT["nosm"]: ops = [(f"v_cmp_nle_f32 vcc, v{vTHRV}, v{vTHRV}", [], 0)]
    for over in (0, 1, 2, 3, 4):
        placed = {}
        used = {}
        for g in range(0, g_end+1):
            cap = st.free(g) + (over if st.free(g) >= 0 else 0)
            progress = True
            while progress:
                progress = False
                cand = [i for i, (ins, deps, early) in enumerate(ops) if i not in placed and g >= early and
                        all(d in placed and (placed[d] < g or (placed[d] == g and cls(ops[d][0]) == "V")) for d in deps)]
                cand.sort(key=lambda i: (0 if cls(ops[i][0]) == "E" else 1, i))
                for i in cand:
                    c = 2 if cls(ops[i][0]) == "E" else 1
                    if c <= cap:
                        placed[i] = g; cap -= c; used.setdefault(g, []).append(i); progress = True
                        break
        if len(placed) == len(ops): break
    assert len(placed) == len(ops)
    for g in sorted(used):
        for i in used[g]: st.put(g, ops[i][0])
vTHRV = 6
STUBS = []

def xlane(a, op, v, t1, t2):
    a(f"v_mov_b32 v{t1}, v{v}")
    a("s_nop 1")
    a(f"v_permlane16_swap_b32 v{v}, v{t1}")
    a("s_nop 0")
    a(f"{op} v{v}, v{v}, v{t1}")
    a(f"v_mov_b32 v{t1}, v{v}")
    a("s_nop 1")
    a(f"v_permlane32_swap_b32 v{v}, v{t1}")
    a("s_nop 0")
    a(f"{op} v{v}, v{v}, v{t1}")

def gen_attn(name="attn_kernel", stamps=False):
    a = Asm()
    STUBS.clear()
    a.raw(kernel_header(name))
    a("s_cmp_ge_u32 s2, 256")
    a("s_cbranch_scc1 L_at_end")
    def stamp(i):
        if stamps:
            a(f"s_memtime s[{sSTAMP+2*i}:{sSTAMP+2*i+1}]")
            a(f"s_memrealtime s[{sSTAMP+10+2*i}:{sSTAMP+10+2*i+1}]")
    stamp(0)
    a(f"""
    s_load_dwordx2 s[4:5], s[0:1], 64
    s_load_dwordx4 s[{sT}:{sT+3}], s[0:1], 96
    v_and_b32 v{vLANE}, 63, v0
    v_lshrrev_b32 v{vT}, 6, v0
    v_lshlrev_b32 v{vL16}, 4, v{vLANE}
    v_readfirstlane_b32 s{sWAVE}, v{vT}
    s_and_b32 s{sT+4}, s2, 7
    s_lshr_b32 s{sT+5}, s2, 3
    s_and_b32 s{sHEAD}, s{sT+5}, 1
    s_lshl_b32 s{sT+4}, s{sT+4}, 1
    s_add_u32 s{sHEAD}, s{sHEAD}, s{sT+4}
    s_lshr_b32 s{sJ}, s{sT+5}, 1
    s_or_b32 s{sQI}, s{sJ}, 8
    s_lshl_b32 s{sM0}, s{sWAVE}, 12
    v_add_u32 v{vDMA}, s{sM0}, v{vL16}
    v_mov_b32 v{vRD}, v{vL16}
    s_lshl_b32 s{sPAIR}, s{sHEAD}, 3
    s_and_b32 s{sT+4}, s{sJ}, 7
    s_add_u32 s{sPAIR}, s{sPAIR}, s{sT+4}
    s_mov_b32 s{sC32K}, 32768
    s_mov_b32 s{sCWRAP}, {-131072}
    s_mov_b32 s{sRDS}, 0
    s_waitcnt lgkmcnt(0)
    s_mov_b32 s{sWS}, s{sT+2}
    s_mov_b32 s{sWS+1}, s{sT+3}
    s_mov_b32 s{sWS+2}, {WS_SIZE}
    s_mov_b32 s{sWS+3}, 0x20000
    s_mov_b32 s{sDBG}, s{sT}
    s_mov_b32 s{sDBG+1}, s{sT+1}
    s_mov_b32 s{sDBG+2}, 256
    s_mov_b32 s{sDBG+3}, 0x20000
    s_mov_b32 s{sB1}, s4
    s_mov_b32 s{sB1+1}, s5
    s_mov_b32 s{sB1+2}, 3584
    s_mov_b32 s{sB1+3}, 0x20000
    """)
    WQ, W1B, XR1, XR2 = sT, sT+1, sT+2, sT+3
    ST_P2, ST_A1, N0_1, ST_A2 = sT+4, sT+5, sT+6, sT+7
    a(f"""
    s_mul_i32 s{WQ}, s{sHEAD}, {14*16*1024}
    s_add_u32 s{WQ}, s{WQ}, {WS_WQF}
    s_cmp_ge_u32 s{sJ}, 8
    s_cbranch_scc1 L_typeA
    ; ---- B type
    s_mov_b32 s{sPHASE}, 2
    s_mov_b32 s{W1B}, s{WQ}
    s_mov_b32 s{XR1}, s{sQI}
    s_sub_u32 s{XR2}, 15, s{sQI}
    s_lshl_b32 s{sU1}, s{sQI}, 2
    s_sub_u32 s{sU1}, s{sU1}, 30
    s_sub_u32 s{sU2}, 34, s{sU1}
    s_add_u32 s{ST_P2}, s{sU1}, 7
    s_mov_b32 s{ST_A1}, 7
    s_mov_b32 s{N0_1}, 34
    s_add_u32 s{ST_A2}, s{sU1}, 14
    s_branch L_typedone
    """)
    a.label("L_typeA")
    a(f"""
    s_mov_b32 s{sU1}, 34
    s_mov_b32 s{sU2}, 2
    s_mov_b32 s{N0_1}, 0
    s_mov_b32 s{ST_A2}, 100
    s_cmp_eq_u32 s{sJ}, 15
    s_cbranch_scc1 L_typeA15
    s_mov_b32 s{sPHASE}, 0
    s_sub_u32 s{W1B}, s{sJ}, 8
    s_mul_i32 s{W1B}, s{W1B}, {14*16*1024}
    s_add_u32 s{W1B}, s{W1B}, {WS_W1F}
    s_mov_b32 s{XR1}, s{sHEAD}
    s_mov_b32 s{XR2}, s{sQI}
    s_mov_b32 s{ST_P2}, 7
    s_mov_b32 s{ST_A1}, 14
    s_branch L_typedone
    """)
    a.label("L_typeA15")
    a(f"""
    s_mov_b32 s{sPHASE}, 1
    s_mov_b32 s{W1B}, s{WQ}
    s_mov_b32 s{XR1}, s{sQI}
    s_mov_b32 s{XR2}, s{sQI}
    s_mov_b32 s{ST_P2}, 100
    s_mov_b32 s{ST_A1}, 7
    """)
    a.label("L_typedone")
    def dma_unit(y):
        a(f"s_add_u32 m0, s{sM0}, {y*16384}")
        a(f"s_add_u32 s{sOFFA}, s{W1B}, {y*16384}")
        for i in range(4):
            a(f"buffer_load_dwordx4 v{vDMA}, s[{sWS}:{sWS+3}], s{sOFFA} offen offset:{i*1024} lds")
    dma_unit(0); dma_unit(1)
    def xbase(dst, rb):
        a(f"s_lshl_b32 s{dst}, s{rb}, 3")
        a(f"s_lshl_b32 s{sT+8}, s{sWAVE}, 1")
        a(f"s_add_u32 s{dst}, s{dst}, s{sT+8}")
        a(f"s_mul_i32 s{dst}, s{dst}, 14336")
        if WS_XF: a(f"s_add_u32 s{dst}, s{dst}, {WS_XF}")
    xbase(sXOFF, XR1)
    for k in range(7):
        a(f"s_add_u32 s{sT+9}, s{sXOFF}, {k*4096}")
        for i in range(4):
            a(f"buffer_load_dwordx4 {ar(128+(k*4+i)*4,4)}, v{vL16}, s[{sWS}:{sWS+3}], s{sT+9} offen offset:{i*1024}")
    a(f"""
    v_lshrrev_b32 v{vT+40}, 4, v{vLANE}
    v_lshlrev_b32 v{vT+40}, 3, v{vT+40}
    s_and_b32 s{sT+9}, s{sJ}, 7
    s_lshl_b32 s{sT+9}, s{sT+9}, 9
    """)
    for nt in range(16):
        a(f"buffer_load_dwordx2 {vr(vT+2*nt,2)}, v{vT+40}, s[{sB1}:{sB1+3}], s{sT+9} offen offset:{nt*32}")
    for y in range(2, 8): dma_unit(y)
    xbase(sXOFF, XR2)
    a(f"s_add_u32 s{sM0}, s{sM0}, {8*16384}")
    a(f"s_mov_b32 m0, s{sM0}")
    a(f"s_add_u32 s{sOFFB}, s{W1B}, {8*16384}")
    a(f"s_mov_b32 s{sTAU}, 4")
    tA, tB, tC, tD = vT+44, vT+45, vT+46, vT+47
    KB, VB = sT+8, sT+9
    a(f"""
    s_lshl_b32 s{KB}, s{sHEAD}, 20
    s_add_u32 s{VB}, s{KB}, {WS_VF}
    s_add_u32 s{KB}, s{KB}, {WS_KF}
    v_mov_b32 v{vTO}, {OOB}
    v_mov_b32 v{vTE}, {OOB}
    """)
    def seg_proj(start, base):
        for tab, sh, add in ((vTO, 0, 16384), (vTE, 0, 0)):
            if start is None: a(f"v_add_u32 v{tA}, {sh}, v{vLANE}")
            else:
                a(f"v_subrev_u32 v{tA}, s{start}, v{vLANE}")
                if sh: a(f"v_add_u32 v{tA}, {sh}, v{tA}")
            a(f"v_cmp_gt_u32 vcc, 7, v{tA}")
            a(f"v_lshlrev_b32 v{tB}, 15, v{tA}")
            a(f"v_add_u32 v{tB}, s{base}, v{tB}")
            if add: a(f"v_add_u32 v{tB}, {add}, v{tB}")
            a(f"v_cndmask_b32 v{tab}, v{tab}, v{tB}, vcc")
    def seg_att(start, n0, U):
        for tab, sh in ((vTO, 0), (vTE, 0)):
            a(f"v_subrev_u32 v{tA}, s{start}, v{vLANE}")
            if sh: a(f"v_add_u32 v{tA}, {sh}, v{tA}")
            if n0 is not None: a(f"v_add_u32 v{tB}, s{n0}, v{tA}")
            else: a(f"v_mov_b32 v{tB}, v{tA}")
            a(f"v_lshlrev_b32 v{tB}, 14, v{tB}")
            if tab == vTO:
                a(f"s_sub_u32 s{sT+10}, s{U}, 1")
                a(f"v_cmp_eq_u32 vcc, s{sT+10}, v{tA}")
                a(f"v_add_u32 v{tC}, s{KB}, v{tB}")
                a(f"v_add_u32 v{tC}, 16384, v{tC}")
                a(f"v_add_u32 v{tD}, s{VB}, v{tB}")
                a(f"v_cndmask_b32 v{tC}, v{tC}, v{tD}, vcc")
            else:
                a(f"v_cmp_eq_u32 vcc, 0, v{tA}")
                a(f"v_add_u32 v{tC}, s{VB}, v{tB}")
                a(f"v_subrev_u32 v{tC}, 16384, v{tC}")
                a(f"v_add_u32 v{tD}, s{KB}, v{tB}")
                a(f"v_cndmask_b32 v{tC}, v{tC}, v{tD}, vcc")
            a(f"v_cmp_gt_u32 vcc, s{U}, v{tA}")
            a("s_nop 1")
            a(f"v_cndmask_b32 v{tab}, v{tab}, v{tC}, vcc")
    seg_proj(None, W1B)
    seg_proj(ST_P2, WQ)
    seg_att(ST_A1, N0_1, sU1)
    seg_att(ST_A2, None, sU2)
    a(f"""
    v_lshrrev_b32 v{tA}, 4, v{vLANE}
    v_lshlrev_b32 v{tA}, 2, v{tA}
    v_and_b32 v{tB}, 15, v{vLANE}
    v_sub_u32 v{tA}, v{tB}, v{tA}
    """)
    for r in range(4):
        a(f"v_cmp_gt_i32 s[{sMASK+2*r}:{sMASK+2*r+1}], {r}, v{tA}")
    a(f"v_mov_b32 v{vBIG}, {f2u(-1e30):#x}")
    a(f"v_mov_b32 v{vTHRV}, {f2u(1024.0):#x}")
    a(f"s_mov_b32 s{sN}, s{N0_1}")
    a(f"s_waitcnt vmcnt(24)")
    a(f"s_cmp_eq_u32 s{sPHASE}, 0")
    a("s_cbranch_scc0 L_zinit")
    for nt in range(16):
        for h in range(2):
            src = vT + 2*nt + h
            a(f"v_lshlrev_b32 v{O(nt,0)+2*h}, 16, v{src}")
            a(f"v_and_b32 v{O(nt,0)+2*h+1}, 0xffff0000, v{src}")
        a(f"v_mov_b64 {vr(O(nt,1),2)}, {vr(O(nt,0),2)}")
        a(f"v_mov_b64 {vr(O(nt,1)+2,2)}, {vr(O(nt,0)+2,2)}")
    a("s_branch L_first")
    a.label("L_zinit")
    for i in range(64):
        a(f"v_mov_b64 {vr(O0+2*i,2)}, 0")
    a.label("L_first")
    a("s_barrier")
    for f in range(12):
        a(f"ds_read_b128 {ar(FR(f),4)}, v{vRD} offset:{f*1024}")
    stamp(1)
    a("s_waitcnt lgkmcnt(8)")
    a.raw(".p2align 6")
    a.label("L_proj")
    for s in range(7):
        st = Stage()
        st.mf = mf_proj(0, 2*s) + mf_proj(1, 2*s+1)
        common_fill(st, vm=20)
        if s >= 1:
            u0 = 2*(s-1)
            st.put(1, f"s_add_u32 s{sT+1}, s{sXOFF}, {u0*1024}")
            st.put(2, f"s_add_u32 s{sT+2}, s{sXOFF}, {(14+u0)*1024}")
            st.put(9, f"buffer_load_dwordx4 {ar(X(0,u0),4)}, v{vL16}, s[{sWS}:{sWS+3}], s{sT+1} offen")
            st.put(17, f"buffer_load_dwordx4 {ar(X(0,u0+1),4)}, v{vL16}, s[{sWS}:{sWS+3}], s{sT+1} offen offset:1024")
            st.put(23, f"buffer_load_dwordx4 {ar(X(1,u0),4)}, v{vL16}, s[{sWS}:{sWS+3}], s{sT+2} offen")
            st.put(31, f"buffer_load_dwordx4 {ar(X(1,u0+1),4)}, v{vL16}, s[{sWS}:{sWS+3}], s{sT+2} offen offset:1024")
        st.emit(a)
    a(f"""
    s_add_u32 s{sT+1}, s{sXOFF}, {12*1024}
    s_add_u32 s{sT+2}, s{sXOFF}, {26*1024}
    buffer_load_dwordx4 {ar(X(0,12),4)}, v{vL16}, s[{sWS}:{sWS+3}], s{sT+1} offen
    buffer_load_dwordx4 {ar(X(0,13),4)}, v{vL16}, s[{sWS}:{sWS+3}], s{sT+1} offen offset:1024
    buffer_load_dwordx4 {ar(X(1,12),4)}, v{vL16}, s[{sWS}:{sWS+3}], s{sT+2} offen
    buffer_load_dwordx4 {ar(X(1,13),4)}, v{vL16}, s[{sWS}:{sWS+3}], s{sT+2} offen offset:1024
    s_mov_b32 s{sXOFF}, {OOB}
    s_nop 3
    s_cmp_eq_u32 s{sPHASE}, 0
    s_cbranch_scc0 L_qepi
    """)
    a(f"""
    s_lshl_b32 s{sT+1}, s{sHEAD}, 3
    s_lshl_b32 s{sT+2}, s{sWAVE}, 1
    s_add_u32 s{sT+1}, s{sT+1}, s{sT+2}
    s_mul_i32 s{sT+1}, s{sT+1}, {AF_RB}
    s_and_b32 s{sT+2}, s{sJ}, 7
    s_lshl_b32 s{sT+2}, s{sT+2}, 13
    s_add_u32 s{sT+1}, s{sT+1}, s{sT+2}
    s_add_u32 s{sT+1}, s{sT+1}, {WS_AF}
    """)
    cnt = 0
    for qt in range(2):
        for ud in range(8):
            p0 = vT + (cnt % 8)*4
            regs = [O(2*ud,qt)+i for i in range(4)] + [O(2*ud+1,qt)+i for i in range(4)]
            for r in regs: a(f"v_max_f32 v{r}, 0, v{r}")
            for r in regs: a(f"v_mul_f32 v{r}, v{r}, v{r}")
            for i in range(4): a(f"v_cvt_pk_bf16_f32 v{p0+i}, v{regs[2*i]}, v{regs[2*i+1]}")
            if ud % 4 == 0:
                a(f"s_add_u32 s{sT+2}, s{sT+1}, {qt*AF_RB + ud*1024}")
            a(f"buffer_store_dwordx4 {vr(p0,4)}, v{vL16}, s[{sWS}:{sWS+3}], s{sT+2} offen offset:{(ud%4)*1024}")
            for i in range(0, 8, 2): a(f"v_mov_b64 {vr(regs[i],2)}, 0")
            cnt += 1
    a(f"s_mov_b32 s{sPHASE}, 1")
    a("s_branch L_proj")
    a.label("L_qepi")
    a(f"s_mov_b32 s{sT+1}, {f2u(QSCALE):#x}")
    cnt = 0
    for qt in range(2):
        for u in range(8):
            p0 = vT + (cnt % 4)*4
            regs = [O(2*u,qt)+i for i in range(4)] + [O(2*u+1,qt)+i for i in range(4)]
            for r in regs: a(f"v_mul_f32 v{r}, s{sT+1}, v{r}")
            for i in range(4): a(f"v_cvt_pk_bf16_f32 v{p0+i}, v{regs[2*i]}, v{regs[2*i+1]}")
            for i in range(4): a(f"v_accvgpr_write_b32 a{Q(qt,u)+i}, v{p0+i}")
            cnt += 1
    a(f"""
    s_sub_u32 s{sT+1}, 15, s{sQI}
    s_cmp_eq_u32 s{sPHASE}, 3
    s_cselect_b32 s{sT+1}, s{sT+1}, s{sQI}
    s_cselect_b32 s{sCNT}, s{sU2}, s{sU1}
    s_lshl_b32 s{sND}, s{sT+1}, 2
    s_add_u32 s{sND}, s{sND}, s{sWAVE}
    s_lshl_b32 s{sROWB}, s{sND}, 1
    s_lshr_b32 s{sCNT}, s{sCNT}, 1
    s_sub_u32 s{sCNT}, s{sCNT}, 1
    s_mov_b32 s{sFIRST}, 1
    s_mov_b32 s{sCLAMP}, {f2u(-3e38):#x}
    v_mov_b64 {vr(NEGM(0),2)}, 0
    v_mov_b64 {vr(NEGM(0)+2,2)}, 0
    v_mov_b64 {vr(NEGM(1),2)}, 0
    v_mov_b64 {vr(NEGM(1)+2,2)}, 0
    v_mov_b64 {vr(vL[0],2)}, 0
    """)
    stamp(2)
    st = Stage()
    st.mf = mf_qk(0, 0) + mf_qk(1, 1)
    common_fill(st)
    i = 0
    for g in range(64):
        while st.free(g) > 0 and i < 64:
            st.put(g, f"v_mov_b64 {vr(O0+2*i,2)}, 0"); i += 1
    assert i == 64
    st.emit(a)
    a(f"s_cmp_ge_u32 s{sN}, s{sND}")
    a("s_cbranch_scc0 L_nomask_f")
    a(f"s_call_b64 s[{sRET}:{sRET+1}], L_mask0")
    a.label("L_nomask_f")
    a(f"s_add_u32 s{sN}, s{sN}, 1")
    a(f"s_call_b64 s[{sRET}:{sRET+1}], L_rare0")
    a(f"s_mov_b32 s{sFIRST}, 0")
    a(f"s_mov_b32 s{sCLAMP}, 0")
    a(f"s_cmp_eq_u32 s{sCNT}, 0")
    a("s_cbranch_scc1 L_last")
    a.raw(".p2align 6")
    a.label("L_steady")
    for b in (1, 0):
        st = Stage()
        st.mf = mf_pv(0, b^1) + mf_qk(1, b^1)
        common_fill(st)
        if b == 0:
            st.put(56, f"s_sub_u32 s{sCNT}, s{sCNT}, 1")
            st.put(58, f"s_cmp_lg_u32 s{sCNT}, 0")
        place_sm(st, b, 62, f"s{b}")
        st.emit(a)
        a(f"s_cbranch_vccnz L_dorare_s{b}")
        a.label(f"L_norare_s{b}")
        STUBS.append((f"L_dorare_s{b}", f"L_rare{b}", f"L_norare_s{b}"))
    a("s_cbranch_scc1 L_steady")
    a.label("L_last")
    st = Stage()
    st.mf = mf_pv(0, 0) + mf_pv(1, 1)
    common_fill(st)
    place_sm(st, 1, 30, "l")
    st.put_post(31, "s_cbranch_vccnz L_dorare_l")
    st.put_post(31, "L_norare_l:")
    STUBS.append(("L_dorare_l", "L_rare1", "L_norare_l"))
    st.put(36, f"v_add_f32 v{vL[0]}, v{vL[0]}, v{vSUM[0][0]}")
    st.put(37, f"v_add_f32 v{vL[1]}, v{vL[1]}, v{vSUM[1][0]}")
    st.emit(a)
    stamp(3)
    for qt in range(2):
        xlane(a, "v_add_f32", vL[qt], vT, vT+1)
    a(f"""
    s_mul_i32 s{sT+1}, s{sPAIR}, {4*PART_WSTRIDE}
    s_mul_i32 s{sT+2}, s{sWAVE}, {PART_WSTRIDE}
    s_add_u32 s{sT+1}, s{sT+1}, s{sT+2}
    s_add_u32 s{sT+1}, s{sT+1}, {WS_PART}
    s_lshr_b32 s{sT+3}, s{sPAIR}, 1
    s_lshl_b32 s{sT+3}, s{sT+3}, 2
    s_and_b32 s{sT+4}, s{sPAIR}, 1
    s_lshl_b32 s{sT+4}, s{sT+4}, 4
    s_add_u32 s{sT+4}, s{sT+4}, s{sWAVE}
    s_lshl_b32 s{sT+4}, 1, s{sT+4}
    s_cmp_eq_u32 s{sPHASE}, 2
    s_cbranch_scc0 L_notpart
    """)
    for i in range(32):
        if i % 4 == 0: a(f"s_add_u32 s{sT+2}, s{sT+1}, {i*1024}")
        a(f"buffer_store_dwordx4 {vr(O0+4*i,4)}, v{vL16}, s[{sWS}:{sWS+3}], s{sT+2} offen offset:{(i%4)*1024} sc1")
    a(f"""
    v_mov_b32 v{vT}, v{NEGM(0)}
    v_mov_b32 v{vT+1}, v{NEGM(1)}
    v_mov_b32 v{vT+2}, v{vL[0]}
    v_mov_b32 v{vT+3}, v{vL[1]}
    s_add_u32 s{sT+2}, s{sT+1}, {32*1024}
    buffer_store_dwordx4 {vr(vT,4)}, v{vL16}, s[{sWS}:{sWS+3}], s{sT+2} offen sc1
    v_mov_b32 v{vT+4}, s{sT+4}
    v_mov_b32 v{vT+5}, 0
    s_waitcnt vmcnt(0)
    s_mov_b64 exec, 1
    buffer_atomic_or v{vT+4}, v{vT+5}, s[{sDBG}:{sDBG+3}], s{sT+3} offen sc1
    s_mov_b64 exec, -1
    s_mov_b32 s{sPHASE}, 3
    s_mov_b32 s{sN}, 0
    """)
    for i in range(64):
        a(f"v_mov_b64 {vr(O0+2*i,2)}, 0")
    a("s_branch L_proj")
    a.label("L_notpart")
    wA, wB = [vT+8, vT+9], [vT+10, vT+11]
    a(f"s_cmp_eq_u32 s{sPHASE}, 3")
    a("s_cbranch_scc1 L_plain")
    a(f"v_mov_b32 v{vT+5}, 0")
    a(f"s_mov_b32 s{sT+6}, 0")
    a.label("L_poll")
    a(f"""
    buffer_load_dword v{vT+4}, v{vT+5}, s[{sDBG}:{sDBG+3}], s{sT+3} offen sc1
    s_waitcnt vmcnt(0)
    v_readfirstlane_b32 s{sT+5}, v{vT+4}
    s_add_u32 s{sT+6}, s{sT+6}, 1
    s_and_b32 s{sT+5}, s{sT+5}, s{sT+4}
    s_cbranch_scc1 L_got
    s_sleep 8
    s_cmp_lt_u32 s{sT+6}, 0x40000
    s_cbranch_scc1 L_poll
    """)
    a.label("L_got")
    a(f"s_add_u32 s{sT+2}, s{sT+1}, {32*1024}")
    a(f"buffer_load_dwordx4 {vr(vT,4)}, v{vL16}, s[{sWS}:{sWS+3}], s{sT+2} offen sc1")
    for i in range(32):
        if i % 4 == 0: a(f"s_add_u32 s{sT+2}, s{sT+1}, {i*1024}")
        a(f"buffer_load_dwordx4 {ar(128+4*i,4)}, v{vL16}, s[{sWS}:{sWS+3}], s{sT+2} offen offset:{(i%4)*1024} sc1")
    a("s_waitcnt vmcnt(32)")
    for qt in range(2):
        a(f"""
        v_min_f32 v{vT+6}, v{NEGM(qt)}, v{vT+qt}
        v_sub_f32 v{wA[qt]}, v{vT+6}, v{NEGM(qt)}
        v_sub_f32 v{wB[qt]}, v{vT+6}, v{vT+qt}
        v_exp_f32 v{wA[qt]}, v{wA[qt]}
        v_exp_f32 v{wB[qt]}, v{wB[qt]}
        s_nop 0
        v_mul_f32 v{vT+6}, v{wA[qt]}, v{vL[qt]}
        v_fma_f32 v{vT+6}, v{wB[qt]}, v{vT+2+qt}, v{vT+6}
        v_rcp_f32 v{vT+6}, v{vT+6}
        s_nop 0
        v_mul_f32 v{wA[qt]}, v{wA[qt]}, v{vT+6}
        v_mul_f32 v{wB[qt]}, v{wB[qt]}, v{vT+6}
        """)
    for i in range(32):
        qt = i & 1
        a(f"s_waitcnt vmcnt({31-i})")
        for k in range(4): a(f"v_accvgpr_read_b32 v{vT+12+k}, a{128+4*i+k}")
        for k in range(4): a(f"v_mul_f32 v{O0+4*i+k}, v{wA[qt]}, v{O0+4*i+k}")
        for k in range(4): a(f"v_fma_f32 v{O0+4*i+k}, v{wB[qt]}, v{vT+12+k}, v{O0+4*i+k}")
    a(f"v_mov_b32 v{wA[0]}, 1.0")
    a(f"v_mov_b32 v{wA[1]}, 1.0")
    a("s_branch L_ctx")
    a.label("L_plain")
    a(f"v_rcp_f32 v{wA[0]}, v{vL[0]}")
    a(f"v_rcp_f32 v{wA[1]}, v{vL[1]}")
    a.label("L_ctx")
    a(f"""
    s_mul_i32 s{sT+1}, s{sROWB}, {AF_RB}
    s_lshl_b32 s{sT+2}, s{sHEAD}, 13
    s_add_u32 s{sT+1}, s{sT+1}, s{sT+2}
    s_add_u32 s{sT+1}, s{sT+1}, {WS_AF + 56*1024}
    """)
    cnt = 0
    for qt in range(2):
        for ud in range(8):
            p0 = vT + 16 + (cnt % 8)*4
            regs = [O(2*ud,qt)+i for i in range(4)] + [O(2*ud+1,qt)+i for i in range(4)]
            for r in regs: a(f"v_mul_f32 v{r}, v{wA[qt]}, v{r}")
            for i in range(4): a(f"v_cvt_pk_bf16_f32 v{p0+i}, v{regs[2*i]}, v{regs[2*i+1]}")
            if ud % 4 == 0:
                a(f"s_add_u32 s{sT+2}, s{sT+1}, {qt*AF_RB + ud*1024}")
            a(f"buffer_store_dwordx4 {vr(p0,4)}, v{vL16}, s[{sWS}:{sWS+3}], s{sT+2} offen offset:{(ud%4)*1024}")
            cnt += 1
    if stamps:
        a("s_waitcnt vmcnt(0)")
        stamp(4)
        a("s_waitcnt lgkmcnt(0)")
        for i in range(10): a(f"v_mov_b32 v{vT+i}, s{sSTAMP+2*i}")
        a(f"""
        s_lshl_b32 s{sT+1}, s2, 2
        s_add_u32 s{sT+1}, s{sT+1}, s{sWAVE}
        s_lshl_b32 s{sT+1}, s{sT+1}, 6
        s_add_u32 s{sT+1}, s{sT+1}, {WS_STAMP}
        v_mov_b32 v{vT+12}, 0
        s_mov_b64 exec, 1
        buffer_store_dwordx4 {vr(vT,4)}, v{vT+12}, s[{sWS}:{sWS+3}], s{sT+1} offen
        buffer_store_dwordx4 {vr(vT+4,4)}, v{vT+12}, s[{sWS}:{sWS+3}], s{sT+1} offen offset:16
        buffer_store_dwordx2 {vr(vT+8,2)}, v{vT+12}, s[{sWS}:{sWS+3}], s{sT+1} offen offset:32
        """)
    a.label("L_at_end")
    a("s_endpgm")
    for (lab, sub, back) in STUBS:
        a.label(lab)
        a(f"s_call_b64 s[{sRET}:{sRET+1}], {sub}")
        a(f"s_branch {back}")
    for b in range(2):
        a.label(f"L_mask{b}")
        a("s_nop 7")
        a(f"s_cmp_eq_u32 s{sN}, s{sND}")
        a(f"s_cbranch_scc0 L_maskall{b}")
        for r in range(4):
            a(f"v_cndmask_b32 v{S(b,0,0)+r}, v{S(b,0,0)+r}, v{vBIG}, s[{sMASK+2*r}:{sMASK+2*r+1}]")
            a(f"v_cndmask_b32 v{S(b,1,1)+r}, v{S(b,1,1)+r}, v{vBIG}, s[{sMASK+2*r}:{sMASK+2*r+1}]")
            a(f"v_mov_b32 v{S(b,1,0)+r}, v{vBIG}")
        a(f"s_setpc_b64 s[{sRET}:{sRET+1}]")
        a.label(f"L_maskall{b}")
        for i in range(16):
            a(f"v_mov_b32 v{S(b,0,0)+i}, v{vBIG}")
        a(f"s_setpc_b64 s[{sRET}:{sRET+1}]")
    for b in range(2):
        a.label(f"L_rare{b}")
        a("s_nop 7")
        D = [vT+8, vT+9]; F = [vT+10, vT+11]
        for qt in range(2):
            r0, r1 = S(b,0,qt), S(b,1,qt)
            a(f"v_max3_f32 v{D[qt]}, v{r0}, v{r0+1}, v{r0+2}")
            a(f"v_max3_f32 v{D[qt]}, v{D[qt]}, v{r0+3}, v{r1}")
            a(f"v_max3_f32 v{D[qt]}, v{D[qt]}, v{r1+1}, v{r1+2}")
            a(f"v_max_f32 v{D[qt]}, v{D[qt]}, v{r1+3}")
            xlane(a, "v_max_f32", D[qt], vT, vT+1)
            a(f"v_max_f32 v{D[qt]}, s{sCLAMP}, v{D[qt]}")
            a(f"v_max_f32 v{F[qt]}, 0, v{D[qt]}")
            a(f"v_exp_f32 v{F[qt]}, -v{F[qt]}")
            for i in range(4): a(f"v_sub_f32 v{NEGM(qt)+i}, v{NEGM(qt)+i}, v{D[qt]}")
            for bb in range(2):
                for kt in range(2):
                    for i in range(4):
                        a(f"v_sub_f32 v{S(bb,kt,qt)+i}, v{S(bb,kt,qt)+i}, v{D[qt]}")
            a(f"v_mul_f32 v{vL[qt]}, v{F[qt]}, v{vL[qt]}")
        for o in sm_ops(b): a(o)
        a(f"s_cmp_eq_u32 s{sFIRST}, 1")
        a(f"s_cbranch_scc1 L_rare_ret{b}")
        for dt in range(16):
            for qt in range(2):
                for i in range(4): a(f"v_mul_f32 v{O(dt,qt)+i}, v{F[qt]}, v{O(dt,qt)+i}")
        a.label(f"L_rare_ret{b}")
        a(f"s_cmp_lg_u32 s{sCNT}, 0")
        a("s_nop 0")
        a(f"s_setpc_b64 s[{sRET}:{sRET+1}]")
    return a.text(), kernel_desc(name, 512, 256)

if __name__ == "__main__":
    import sys, ast
    for x in sys.argv[2:]:
        k, v = x.split("=")
        OPT[k] = ast.literal_eval(v)
    body, desc = gen_attn(stamps=True)
    hdr = "; @launch kernel=attn_kernel grid=(256,1,1) block=(256,1,1) lds=163840\n.amdgcn_target \"amdgcn-amd-amdhsa--gfx950\"\n.text\n"
    open(sys.argv[1], "w").write(hdr + body + '.section .rodata,"a"\n.p2align 6\n' + desc)
```

```python
import struct
from asmlib import *
from layout import *
MF = "v_mfma_f32_16x16x32_bf16"
def f2u(x): return struct.unpack("<I", struct.pack("<f", x))[0]

def gen_final(name="final_kernel", stamps=False, RING=8, PF=7):
    a = Asm()
    a.raw(kernel_header(name))
    def ACC(which, nt, rb): return 128 + which*64 + (nt*4+rb)*4
    def RW(slot, nt): return slot*32 + nt*4
    def RA(slot, rb): return slot*32 + 16 + rb*4
    sWS, sX, sB2, sOUT = 8, 12, 16, 20
    sWAVE, sRB, sNB = 24, 25, 26
    sW, sA = 27, 28
    sT = 40
    a("s_cmp_ge_u32 s2, 224")
    a("s_cbranch_scc1 L_fin_end")
    if stamps:
        a("s_memtime s[70:71]"); a("s_memrealtime s[80:81]")
    a(f"""
    s_load_dwordx2 s[4:5], s[0:1], 0
    s_load_dwordx4 s[{sT}:{sT+3}], s[0:1], 80
    s_load_dwordx2 s[6:7], s[0:1], 104
    v_and_b32 v1, 63, v0
    v_lshrrev_b32 v2, 6, v0
    v_lshlrev_b32 v5, 4, v1
    v_readfirstlane_b32 s{sWAVE}, v2
    s_and_b32 s{sT+4}, s2, 7
    s_lshr_b32 s{sT+5}, s2, 3
    s_mul_i32 s{sT+6}, s{sT+5}, 9363
    s_lshr_b32 s{sT+6}, s{sT+6}, 16
    s_mul_i32 s{sT+7}, s{sT+6}, 7
    s_sub_u32 s{sNB}, s{sT+5}, s{sT+7}
    s_lshl_b32 s{sRB}, s{sT+4}, 2
    s_add_u32 s{sRB}, s{sRB}, s{sT+6}
    s_waitcnt lgkmcnt(0)
    s_mov_b32 s{sWS}, s6
    s_mov_b32 s{sWS+1}, s7
    s_mov_b32 s{sWS+2}, {WS_SIZE}
    s_mov_b32 s{sWS+3}, 0x20000
    s_mov_b32 s{sX}, s4
    s_mov_b32 s{sX+1}, s5
    s_mov_b32 s{sX+2}, {2048*448*2}
    s_mov_b32 s{sX+3}, 0x20000
    s_mov_b32 s{sB2}, s{sT}
    s_mov_b32 s{sB2+1}, s{sT+1}
    s_mov_b32 s{sB2+2}, 896
    s_mov_b32 s{sB2+3}, 0x20000
    s_mov_b32 s{sOUT}, s{sT+2}
    s_mov_b32 s{sOUT+1}, s{sT+3}
    s_mov_b32 s{sOUT+2}, {2048*448*2}
    s_mov_b32 s{sOUT+3}, 0x20000
    """)
    a(f"""
    s_mul_i32 s{sT+4}, s{sNB}, {184*4096}
    s_add_u32 s{sT+4}, s{sT+4}, {WS_WFF}
    v_add_u32 v6, s{sT+4}, v5
    s_mul_i32 s{sT+4}, s{sRB}, {4*AF_RB}
    s_add_u32 s{sT+4}, s{sT+4}, {WS_AF}
    v_add_u32 v8, s{sT+4}, v5
    v_add_u32 v9, {AF_RB}, v8
    v_add_u32 v10, {AF_RB}, v9
    v_add_u32 v11, {AF_RB}, v10
    s_mul_i32 s{sT+8}, s{sWAVE}, 14
    s_lshl_b32 s{sT+9}, s{sWAVE}, 5
    s_add_u32 s{sT+9}, s{sT+9}, 56
    s_lshl_b32 s30, s{sT+8}, 12
    s_lshl_b32 s31, s{sT+8}, 10
    s_lshl_b32 s32, s{sT+9}, 12
    s_lshl_b32 s33, s{sT+9}, 10
    """)
    steps = [(0, i) for i in range(14)] + [(1, i) for i in range(32)]
    def loads(k):
        which, i = steps[k]
        slot = k % RING
        out = [f"s_add_u32 s{sW}, s{30+2*which}, {i*4096}"]
        if i % 4 == 0:
            out.append(f"s_add_u32 s{sA}, s{31+2*which}, {i*1024}")
        for j in range(4):
            out.append(f"buffer_load_dwordx4 {ar(RW(slot,j),4)}, v6, s[{sWS}:{sWS+3}], s{sW} offen offset:{j*1024}")
            out.append(f"buffer_load_dwordx4 {ar(RA(slot,j),4)}, v{8+j}, s[{sWS}:{sWS+3}], s{sA} offen offset:{(i%4)*1024}")
        return out
    for k in range(PF):
        for l in loads(k): a(l)
    N = len(steps)
    for k in range(N):
        which, i = steps[k]
        slot = k % RING
        rem = min(PF-1, N-1-k)
        a(f"s_waitcnt vmcnt({8*rem})")
        ld = loads(k+PF) if k+PF < N else []
        mf = []
        for nt in range(4):
            for rb in range(4):
                c = "0" if i == 0 else vr(ACC(which,nt,rb),4)
                mf.append(f"{MF} {vr(ACC(which,nt,rb),4)}, {ar(RW(slot,nt),4)}, {ar(RA(slot,rb),4)}, {c}")
        fill = {}
        g = 0
        for l in ld:
            fill.setdefault(g, []).append(l)
            if l.startswith("buffer"): g += 2
        for l in interleave(mf, fill): a(l)
    if stamps:
        a("s_memtime s[72:73]"); a("s_memrealtime s[82:83]")
    a(f"""
    v_and_b32 v2, 15, v1
    v_lshrrev_b32 v3, 4, v1
    s_lshl_b32 s{sT+4}, s{sRB}, 6
    s_lshl_b32 s{sT+5}, s{sWAVE}, 4
    s_add_u32 s{sT+4}, s{sT+4}, s{sT+5}
    v_add_u32 v2, s{sT+4}, v2
    v_mul_u32_u24 v2, 896, v2
    v_lshlrev_b32 v3, 3, v3
    s_lshl_b32 s{sT+5}, s{sNB}, 7
    v_add_u32 v3, s{sT+5}, v3
    v_add_u32 v2, v2, v3
    """)
    for nt in range(4):
        a(f"buffer_load_dwordx2 {vr(16+2*nt,2)}, v2, s[{sX}:{sX+3}], 0 offen offset:{nt*32}")
        a(f"buffer_load_dwordx2 {vr(24+2*nt,2)}, v3, s[{sB2}:{sB2+3}], 0 offen offset:{nt*32}")
    a(f"s_lshl_b32 s{sT+4}, s{sWAVE}, 13")
    a(f"v_add_u32 v4, s{sT+4}, v5")
    a(f"v_add_u32 v7, 65536, v4")
    for rb in range(4):
        for which in range(2):
            for nt in range(4):
                off = (rb & 1)*32768 + (which*4+nt)*1024
                a(f"ds_write_b128 v{4 if rb < 2 else 7}, {vr(ACC(which,nt,rb),4)} offset:{off}")
    a(f"s_lshl_b32 s{sT+4}, s{sWAVE}, 15")
    a(f"v_add_u32 v4, s{sT+4}, v5")
    a("s_waitcnt lgkmcnt(0)")
    a("s_barrier")
    for src in range(4):
        for t in range(8):
            a(f"ds_read_b128 {vr(128+(src*8+t)*4,4)}, v4 offset:{src*8192+t*1024}")
    a("s_waitcnt lgkmcnt(0)")
    for i in range(32):
        a(f"v_add_f32 v{128+i}, v{128+i}, v{160+i}")
        a(f"v_add_f32 v{192+i}, v{192+i}, v{224+i}")
    for i in range(32):
        a(f"v_add_f32 v{128+i}, v{128+i}, v{192+i}")
    a("s_waitcnt vmcnt(0)")
    a(f"s_mov_b32 s{sT+4}, 0xffff0000")
    a(f"s_mov_b32 s{sT+5}, {f2u(-1.4426950408889634):#x}")
    def rnd_pair(r0, r1, t):
        a(f"v_cvt_pk_bf16_f32 v{t}, v{r0}, v{r1}")
        a(f"v_lshlrev_b32 v{r0}, 16, v{t}")
        a(f"v_and_b32 v{r1}, s{sT+4}, v{t}")
    for nt in range(4):
        for h in range(2):
            g0, g1 = 128+nt*4+2*h, 128+nt*4+2*h+1
            s0, s1 = 144+nt*4+2*h, 144+nt*4+2*h+1
            xb, bb = 16+2*nt+h, 24+2*nt+h
            rnd_pair(g0, g1, 32)
            rnd_pair(s0, s1, 33)
            a(f"v_lshlrev_b32 v34, 16, v{bb}")
            a(f"v_and_b32 v35, s{sT+4}, v{bb}")
            a(f"v_add_f32 v{g0}, v{g0}, v34")
            a(f"v_add_f32 v{g1}, v{g1}, v35")
            rnd_pair(g0, g1, 32)
            a(f"v_mul_f32 v34, s{sT+5}, v{g0}")
            a(f"v_mul_f32 v35, s{sT+5}, v{g1}")
            a("v_exp_f32 v34, v34")
            a("v_exp_f32 v35, v35")
            a("s_nop 0")
            a("v_add_f32 v34, 1.0, v34")
            a("v_add_f32 v35, 1.0, v35")
            a("v_rcp_f32 v34, v34")
            a("v_rcp_f32 v35, v35")
            a("s_nop 0")
            a(f"v_mul_f32 v{g0}, v{g0}, v34")
            a(f"v_mul_f32 v{g1}, v{g1}, v35")
            rnd_pair(g0, g1, 32)
            a(f"v_mul_f32 v{g0}, v{g0}, v{s0}")
            a(f"v_mul_f32 v{g1}, v{g1}, v{s1}")
            rnd_pair(g0, g1, 32)
            a(f"v_lshlrev_b32 v34, 16, v{xb}")
            a(f"v_and_b32 v35, s{sT+4}, v{xb}")
            a(f"v_add_f32 v{g0}, v{g0}, v34")
            a(f"v_add_f32 v{g1}, v{g1}, v35")
            a(f"v_cvt_pk_bf16_f32 v{40+2*nt+h}, v{g0}, v{g1}")
        a(f"buffer_store_dwordx2 {vr(40+2*nt,2)}, v2, s[{sOUT}:{sOUT+3}], 0 offen offset:{nt*32}")
    if stamps:
        a("s_waitcnt vmcnt(0)")
        a("s_memtime s[74:75]"); a("s_memrealtime s[84:85]")
        a("s_waitcnt lgkmcnt(0)")
        for i, sg in enumerate((70, 72, 74, 80, 82, 84)): a(f"v_mov_b32 v{16+i}, s{sg}")
        a(f"""
        s_lshl_b32 s{sT+1}, s2, 2
        s_add_u32 s{sT+1}, s{sT+1}, s{sWAVE}
        s_lshl_b32 s{sT+1}, s{sT+1}, 6
        s_add_u32 s{sT+1}, s{sT+1}, {WS_STAMP + 0x200000}
        v_mov_b32 v24, 0
        s_mov_b64 exec, 1
        buffer_store_dwordx4 v[16:19], v24, s[{sWS}:{sWS+3}], s{sT+1} offen
        buffer_store_dwordx2 v[20:21], v24, s[{sWS}:{sWS+3}], s{sT+1} offen offset:16
        """)
    a.label("L_fin_end")
    a("s_endpgm")
    return a.text(), kernel_desc(name, 512, 256)
```

```python
import sys, struct
from asmlib import *
from layout import *
def f2u(x): return struct.unpack("<I", struct.pack("<f", x))[0]

def gen_kv(name="kv_kernel", stamps=False, rd_stride=2, dma_start=1, dma_stride=6):
    a = Asm()
    MI = 8; NI = 8; NM = 64; DPG = 4
    FA = [[16 + b*32 + m*4 for m in range(MI)] for b in range(2)]
    FB = [[80 + b*32 + n*4 for n in range(NI)] for b in range(2)]
    DA = [144 + i for i in range(DPG)]
    DB = [148 + i for i in range(DPG)]
    RA = [152, 153]
    RB = [154, 155, 156, 157]
    ST = 160
    SL = 168
    SX = SL + 48
    SA = 224
    NV = 256
    strideA, strideB = 2048, 8192
    S = 16
    a.raw(kernel_header(name))
    a("s_cmp_ge_u32 s2, 256")
    a("s_cbranch_scc1 L_kv_end")
    if stamps:
        a("s_memtime s[60:61]")
        a("s_memrealtime s[68:69]")
    a("""
    s_load_dwordx8 s[76:83], s[0:1], 0
    s_load_dwordx4 s[84:87], s[0:1], 32
    s_load_dwordx2 s[88:89], s[0:1], 56
    s_load_dwordx2 s[90:91], s[0:1], 72
    s_load_dwordx2 s[6:7], s[0:1], 104
    v_and_b32 v1, 63, v0
    v_lshrrev_b32 v2, 6, v0
    s_nop 0
    v_readfirstlane_b32 s24, v2
    s_and_b32 s25, s2, 7
    s_lshr_b32 s26, s2, 3
    s_and_b32 s27, s26, 1
    s_lshr_b32 s28, s26, 1
    s_and_b32 s28, s28, 1
    s_lshl_b32 s29, s25, 1
    s_add_u32 s28, s28, s29
    s_lshr_b32 s29, s26, 2
    s_and_b32 s30, s24, 1
    s_lshr_b32 s31, s24, 1
    s_waitcnt lgkmcnt(0)
    """)
    a(f"""
    s_sub_u32 s8, s78, 4096
    s_subb_u32 s9, s79, 0
    s_mov_b32 s10, {4194304+4096}
    s_mov_b32 s11, 0x20000
    s_cmp_eq_u32 s27, 0
    s_cselect_b32 s12, s82, s84
    s_cselect_b32 s13, s83, s85
    s_sub_u32 s12, s12, 4096
    s_subb_u32 s13, s13, 0
    s_mov_b32 s14, {8388608+4096}
    s_mov_b32 s15, 0x20000
    s_mov_b32 s16, s6
    s_mov_b32 s17, s7
    s_mov_b32 s18, 0x10000000
    s_mov_b32 s19, 0x20000
    """)
    a(f"""
    v_lshrrev_b32 v2, 3, v1
    s_lshl_b32 s32, s29, 8
    s_mul_i32 s33, s24, {16*DPG}
    s_add_u32 s32, s32, s33
    v_add_u32 v2, s32, v2
    v_lshlrev_b32 v2, 11, v2
    v_and_b32 v3, 7, v1
    v_lshrrev_b32 v4, 4, v1
    v_xor_b32 v5, v3, v4
    v_lshl_add_u32 v5, v5, 4, v2
    v_xor_b32 v6, 4, v4
    v_xor_b32 v6, v3, v6
    v_lshl_add_u32 v6, v6, 4, v2
    """)
    for jl in range(DPG):
        src = 5 if (jl & 1) == 0 else 6
        a(f"v_add_u32 v{DA[jl]}, {4096 + jl*8*strideA - jl*1024}, v{src}")
    a(f"""
    v_bfe_u32 v2, v1, 3, 2
    v_lshlrev_b32 v3, 13, v2
    v_lshrrev_b32 v4, 5, v1
    v_lshl_add_u32 v3, v4, 7, v3
    v_lshrrev_b32 v4, 1, v2
    v_lshlrev_b32 v4, 2, v4
    v_and_b32 v5, 7, v1
    v_xor_b32 v4, v4, v5
    s_lshl_b32 s32, s30, 1
    v_xor_b32 v4, s32, v4
    v_lshl_add_u32 v3, v4, 4, v3
    s_lshl_b32 s32, s28, 9
    s_mul_i32 s33, s24, {(DPG//2)*4*strideB}
    s_add_u32 s32, s32, s33
    v_add_u32 v3, s32, v3
    """)
    for jl in range(DPG):
        a(f"v_add_u32 v{DB[jl]}, {4096 + (jl>>1)*4*strideB + (jl&1)*256 - jl*1024}, v3")
    a(f"""
    s_mov_b32 s34, 0
    s_mov_b32 s35, {8*DPG*strideA}
    s_mov_b32 s36, 0
    s_mov_b32 s37, {32*strideB}
    s_mul_i32 s38, s24, {2*DPG*1024}
    s_add_u32 s38, s38, 65536
    s_mul_i32 s39, s24, {DPG*1024}
    s_mov_b32 s40, 0
    s_mov_b32 s42, 0
    s_mov_b32 s44, -65536
    s_mov_b32 s45, 32768
    """)
    def dma_group(kind):
        if kind == "Aa":
            m0 = "s_mov_b32 m0, s38"; regs, srd, so = DA, "s[8:11]", "s34"
        elif kind == "Ab":
            m0 = f"s_add_u32 m0, s38, {DPG*1024}"; regs, srd, so = DA, "s[8:11]", "s35"
        elif kind == "B0":
            m0 = "s_mov_b32 m0, s39"; regs, srd, so = DB, "s[12:15]", "s36"
        else:
            m0 = "s_add_u32 m0, s39, 16384"; regs, srd, so = DB, "s[12:15]", "s37"
        ins = [f"buffer_load_dwordx4 v{regs[jl]}, {srd}, {so} offen offset:{jl*1024} lds" for jl in range(DPG)]
        return m0, ins
    advA = ["s_add_u32 s34, s34, 128", "s_add_u32 s35, s35, 128",
            "s_add_u32 s38, s38, 32768", "s_cmp_ge_u32 s38, 163840", "s_cselect_b32 s43, 98304, 0", "s_sub_u32 s38, s38, s43"]
    advB = [f"s_add_u32 s36, s36, {64*strideB}", f"s_add_u32 s37, s37, {64*strideB}", "s_xor_b32 s39, s39, 32768"]
    def emit_grp(kind):
        m0, ins = dma_group(kind)
        a(m0); a("s_nop 0")
        for i in ins: a(i)
    emit_grp("Aa"); emit_grp("B0"); emit_grp("Ab")
    for i in advA: a(i)
    sWID, sT0, sT1, sT2, sT3 = 46, 47, 48, 49, 50
    sD = [51, 52, 53]
    a(f"""
    s_lshl_b32 s{sWID}, s2, 2
    s_add_u32 s{sWID}, s{sWID}, s24
    v_and_b32 v2, 15, v1
    v_lshrrev_b32 v3, 4, v1
    v_lshlrev_b32 v4, 3, v2
    """)
    def wround(rnd, ptr, nbytes, rowb, perm):
        a(f"s_mov_b32 s92, s{ptr}")
        a(f"s_mov_b32 s93, s{ptr+1}")
        a(f"s_mov_b32 s94, {nbytes}" if isinstance(nbytes, int) else f"s_mov_b32 s94, {nbytes}")
        a("s_mov_b32 s95, 0x20000")
    a(f"""
    s_mov_b32 s92, s80
    s_mov_b32 s93, s81
    s_mov_b32 s94, {448*8192}
    s_mov_b32 s95, 0x20000
    s_lshr_b32 s{sT0}, s{sWID}, 6
    s_and_b32 s{sT1}, s{sWID}, 63
    s_lshl_b32 s{sT2}, s{sT0}, 18
    s_lshl_b32 s{sT3}, s{sT1}, 7
    s_add_u32 s{sT2}, s{sT2}, s{sT3}
    v_lshl_add_u32 v{SA}, v3, 16, v4
    v_add_u32 v{SA+1}, 32768, v{SA}
    """)
    for e in range(8):
        if e % 4 == 0 and e: pass
        a(f"s_add_u32 s{sT3}, s{sT2}, {(e%4)*8192}")
        a(f"buffer_load_dwordx2 {vr(SL+2*e,2)}, v{SA+(e>>2)}, s[92:95], s{sT3} offen")
    a(f"""
    s_lshr_b32 s{sT2}, s{sT1}, 2
    s_mul_i32 s{sT2}, s{sT2}, {14*16*1024}
    s_lshl_b32 s{sT3}, s{sT0}, 14
    s_add_u32 s{sT2}, s{sT2}, s{sT3}
    s_and_b32 s{sT3}, s{sT1}, 3
    s_lshl_b32 s{sT3}, s{sT3}, 12
    s_add_u32 s{sT2}, s{sT2}, s{sT3}
    s_add_u32 s{sD[0]}, s{sT2}, {WS_WQF}
    s_cmp_lt_u32 s{sWID}, 896
    s_cselect_b32 s{sD[0]}, s{sD[0]}, {OOB}
    """)
    a(f"""
    s_mov_b32 s92, s86
    s_mov_b32 s93, s87
    s_mov_b32 s94, {4096*896}
    s_mul_i32 s{sT0}, s{sWID}, 9363
    s_lshr_b32 s{sT0}, s{sT0}, 16
    s_mul_i32 s{sT1}, s{sT0}, 7
    s_sub_u32 s{sT1}, s{sWID}, s{sT1}
    s_mul_i32 s{sT2}, s{sT0}, {32*896}
    s_lshl_b32 s{sT3}, s{sT1}, 7
    s_add_u32 s{sT2}, s{sT2}, s{sT3}
    s_add_u32 s{sT3}, s{sT2}, {16*896}
    v_mul_u32_u24 v{SA+2}, {4*896}, v3
    v_add_u32 v{SA+2}, v{SA+2}, v4
    """)
    for e in range(8):
        a(f"buffer_load_dwordx2 {vr(SL+16+2*e,2)}, v{SA+2}, s[92:95], s{sT2 if e < 4 else sT3} offen offset:{(e&3)*896}")
    a(f"""
    s_mul_i32 s{sT2}, s{sT1}, {184*4096}
    s_lshl_b32 s{sT3}, s{sT0}, 12
    s_add_u32 s{sT2}, s{sT2}, s{sT3}
    s_add_u32 s{sD[1]}, s{sT2}, {WS_WFF + 56*4096}
    s_cmp_lt_u32 s{sWID}, 896
    s_cselect_b32 s{sD[1]}, s{sD[1]}, {OOB}
    s_cmp_lt_u32 s{sWID}, 392
    s_cbranch_scc0 L_kv_w2
    """)
    a(f"""
    s_mov_b32 s92, s88
    s_mov_b32 s93, s89
    s_mov_b32 s94, {448*3584}
    s_lshr_b32 s{sT0}, s{sWID}, 2
    s_mul_i32 s{sT0}, s{sT0}, 9363
    s_lshr_b32 s{sT0}, s{sT0}, 16
    s_mul_i32 s{sT1}, s{sT0}, 28
    s_sub_u32 s{sT1}, s{sWID}, s{sT1}
    s_mul_i32 s{sT2}, s{sT0}, {32*3584}
    s_lshl_b32 s{sT3}, s{sT1}, 7
    s_add_u32 s{sT2}, s{sT2}, s{sT3}
    v_mul_u32_u24 v{SA+3}, {8*3584}, v3
    v_add_u32 v{SA+3}, v{SA+3}, v4
    """)
    for e in range(8):
        if e: a(f"s_add_u32 s{sT2}, s{sT2}, 3584")
        a(f"buffer_load_dwordx2 {vr(SL+32+2*e,2)}, v{SA+3}, s[92:95], s{sT2} offen")
    a(f"""
    s_lshr_b32 s{sT2}, s{sT1}, 2
    s_mul_i32 s{sT2}, s{sT2}, {14*16*1024}
    s_lshl_b32 s{sT3}, s{sT0}, 14
    s_add_u32 s{sT2}, s{sT2}, s{sT3}
    s_and_b32 s{sT3}, s{sT1}, 3
    s_lshl_b32 s{sT3}, s{sT3}, 12
    s_add_u32 s{sT2}, s{sT2}, s{sT3}
    s_add_u32 s{sD[2]}, s{sT2}, {WS_W1F}
    s_branch L_kv_w2done
    """)
    a.label("L_kv_w2")
    a(f"""
    s_mov_b32 s92, s90
    s_mov_b32 s93, s91
    s_mov_b32 s94, {1792*896}
    s_sub_u32 s{sD[2]}, s{sWID}, 392
    s_mul_i32 s{sT0}, s{sD[2]}, 9363
    s_lshr_b32 s{sT0}, s{sT0}, 16
    s_mul_i32 s{sT1}, s{sT0}, 7
    s_sub_u32 s{sT1}, s{sD[2]}, s{sT1}
    s_mul_i32 s{sT2}, s{sT0}, {32*896}
    s_lshl_b32 s{sT3}, s{sT1}, 7
    s_add_u32 s{sT2}, s{sT2}, s{sT3}
    s_add_u32 s{sT3}, s{sT2}, {16*896}
    """)
    for e in range(8):
        a(f"buffer_load_dwordx2 {vr(SL+32+2*e,2)}, v{SA+2}, s[92:95], s{sT2 if e < 4 else sT3} offen offset:{(e&3)*896}")
    a(f"""
    s_mul_i32 s{sT2}, s{sT1}, {184*4096}
    s_lshl_b32 s{sT3}, s{sT0}, 12
    s_add_u32 s{sT2}, s{sT2}, s{sT3}
    s_add_u32 s{sD[2]}, s{sT2}, {WS_WFF}
    s_cmp_lt_u32 s{sWID}, 784
    s_cselect_b32 s{sD[2]}, s{sD[2]}, {OOB}
    """)
    a.label("L_kv_w2done")
    a(f"""
    s_mov_b32 s92, s76
    s_mov_b32 s93, s77
    s_mov_b32 s94, {2048*896}
    v_lshrrev_b32 v5, 5, v1
    v_and_b32 v6, 31, v1
    v_mul_u32_u24 v7, 896, v5
    v_lshl_add_u32 v7, v6, 4, v7
    v_cmp_gt_u32 s[54:55], 28, v6
    v_mov_b32 v8, {OOB}
    s_mul_i32 s{sT2}, s{sWID}, 1792
    v_cndmask_b32 v7, v8, v7, s[54:55]
    buffer_load_dwordx4 {vr(SX,4)}, v7, s[92:95], s{sT2} offen
    buffer_load_dwordx4 {vr(SX+4,4)}, v7, s[92:95], s{sT2} offen offset:448
    """)
    emit_grp("B1"); emit_grp("Aa")
    for i in advB: a(i)
    emit_grp("B0"); emit_grp("Ab")
    for i in advA: a(i)
    emit_grp("B1"); emit_grp("Aa")
    for i in advB: a(i)
    a(f"""
    v_lshrrev_b32 v9, 2, v6
    v_lshlrev_b32 v9, 10, v9
    v_and_b32 v10, 3, v6
    v_lshl_add_u32 v9, v10, 8, v9
    v_lshl_add_u32 v9, v5, 4, v9
    v_cndmask_b32 v{SA+4}, v8, v9, s[54:55]
    s_lshr_b32 s{sT2}, s{sWID}, 3
    s_mul_i32 s{sT2}, s{sT2}, 14336
    s_and_b32 s{sT3}, s{sWID}, 7
    s_lshl_b32 s{sT3}, s{sT3}, 5
    s_add_u32 s56, s{sT2}, s{sT3}
    s_add_u32 s57, s56, {7*1024}
    v_lshrrev_b32 v9, 2, v2
    v_lshlrev_b32 v9, 10, v9
    v_lshl_add_u32 v9, v3, 8, v9
    v_and_b32 v10, 3, v2
    v_lshl_add_u32 v{SA+5}, v10, 6, v9
    """)
    assert WS_XF == 0
    a(f"""
    v_and_b32 v2, 15, v1
    v_lshrrev_b32 v3, 4, v1
    v_bfe_u32 v4, v1, 1, 3
    s_lshl_b32 s32, s30, 14
    s_add_u32 s32, s32, 65536
    v_lshlrev_b32 v2, 7, v2
    v_add_u32 v2, s32, v2
    """)
    for kk in range(2):
        a(f"v_or_b32 v5, {4*kk}, v3")
        a(f"v_xor_b32 v5, v5, v4")
        a(f"v_lshl_add_u32 v{RA[kk]}, v5, 4, v2")
    a(f"""
    v_lshlrev_b32 v2, 12, v3
    v_bfe_u32 v4, v1, 2, 2
    v_lshl_add_u32 v2, v4, 7, v2
    v_and_b32 v5, 3, v1
    v_lshl_add_u32 v2, v5, 3, v2
    s_lshl_b32 s32, s31, 10
    v_add_u32 v2, s32, v2
    v_lshrrev_b32 v4, 1, v4
    v_lshlrev_b32 v4, 6, v4
    v_and_b32 v5, 1, v3
    v_lshlrev_b32 v5, 5, v5
    v_or_b32 v4, v4, v5
    """)
    for q in range(4):
        a(f"v_xor_b32 v5, {(q>>1)*64 + (q&1)*32}, v4")
        a(f"v_add_u32 v{RB[q]}, v5, v2")
    for i in range(256):
        a(f"v_accvgpr_write_b32 a{i}, 0")
    a("s_mov_b32 s58, 0x05040100")
    a("s_mov_b32 s59, 0x07060302")
    a("s_waitcnt vmcnt(24)")
    T = 16
    for rnd in range(3):
        L = SL + 16*rnd
        for j in range(4):
            o = T + (rnd*4 + j)*4
            for p in range(4):
                lo, hi = L + 2*(2*p) + (j >> 1), L + 2*(2*p+1) + (j >> 1)
                a(f"v_perm_b32 v{o+p}, v{hi}, v{lo}, s{58 + (j & 1)}")
            a(f"buffer_store_dwordx4 {vr(o,4)}, v{SA+5}, s[16:19], s{sD[rnd]} offen offset:{j*16}")
    U = 80
    for i in range(8):
        a(f"v_lshlrev_b32 v{U+2*i}, 16, v{SX+i}")
        a(f"v_and_b32 v{U+2*i+1}, 0xffff0000, v{SX+i}")
    def red(v, t):
        for sh in (8, 4, 2, 1):
            a("s_nop 1")
            a(f"v_add_f32_dpp v{v}, v{v}, v{v} row_ror:{sh} row_mask:0xf bank_mask:0xf")
        a(f"v_mov_b32 v{t}, v{v}")
        a("s_nop 1")
        a(f"v_permlane16_swap_b32 v{v}, v{t}")
        a("s_nop 0")
        a(f"v_add_f32 v{v}, v{v}, v{t}")
    a(f"v_add_f32 v96, v{U}, v{U+1}")
    a(f"v_add_f32 v97, v{U+2}, v{U+3}")
    for i in range(4, 16, 2):
        a(f"v_add_f32 v96, v96, v{U+i}")
        a(f"v_add_f32 v97, v97, v{U+i+1}")
    a("v_add_f32 v96, v96, v97")
    red(96, 97)
    a(f"v_mul_f32 v96, {f2u(1.0/448):#x}, v96")
    a(f"v_sub_f32 v98, v{U}, v96")
    a(f"v_mul_f32 v99, v98, v98")
    for i in range(1, 16):
        a(f"v_sub_f32 v98, v{U+i}, v96")
        a(f"v_fma_f32 v99, v98, v98, v99")
    a("v_cndmask_b32 v99, 0, v99, s[54:55]")
    red(99, 97)
    a(f"v_mul_f32 v99, {f2u(1.0/448):#x}, v99")
    a("v_cvt_pk_bf16_f32 v98, v96, v99")
    a("v_lshlrev_b32 v96, 16, v98")
    a("v_and_b32 v99, 0xffff0000, v98")
    a(f"v_add_f32 v99, {f2u(1e-5):#x}, v99")
    a("v_cvt_pk_bf16_f32 v99, v99, v99")
    a("v_lshlrev_b32 v99, 16, v99")
    a("v_sqrt_f32 v99, v99")
    a("s_nop 0")
    a("v_cvt_pk_bf16_f32 v99, v99, v99")
    a("v_lshlrev_b32 v99, 16, v99")
    a("v_rcp_f32 v99, v99")
    for i in range(16):
        a(f"v_sub_f32 v{U+i}, v{U+i}, v96")
    for i in range(8):
        a(f"v_cvt_pk_bf16_f32 v98, v{U+2*i}, v{U+2*i+1}")
        a(f"v_lshlrev_b32 v{U+2*i}, 16, v98")
        a(f"v_and_b32 v{U+2*i+1}, 0xffff0000, v98")
        a(f"v_mul_f32 v{U+2*i}, v{U+2*i}, v99")
        a(f"v_mul_f32 v{U+2*i+1}, v{U+2*i+1}, v99")
        a(f"v_cvt_pk_bf16_f32 v{100+i}, v{U+2*i}, v{U+2*i+1}")
    a(f"buffer_store_dwordx4 v[100:103], v{SA+4}, s[16:19], s56 offen")
    a(f"buffer_store_dwordx4 v[104:107], v{SA+4}, s[16:19], s57 offen")
    def reads(kk, buf):
        ra = [f"ds_read_b128 {vr(FA[buf][m],4)}, v{RA[kk]} offset:{m*2048}" for m in range(MI)]
        rb = []
        for n in range(NI):
            for sec in range(2):
                rb.append(f"ds_read_b64_tr_b16 {vr(FB[buf][n]+2*sec,2)}, v{RB[n&3]} offset:{kk*16384+sec*2048+(n>>2)*512}")
        out = []
        for i in range(8):
            out += [ra[i], rb[2*i], rb[2*i+1]]
        return out
    a("s_waitcnt vmcnt(0)")
    a("s_barrier")
    for r in reads(0, 0): a(r)
    if stamps:
        a("s_memtime s[62:63]")
    a("s_cmp_eq_u32 s27, 0")
    a("s_cbranch_scc0 L_kv_loopV")
    for typ in ("K", "V"):
        a.raw(".p2align 6")
        a.label(f"L_kv_loop{typ}")
        for kk in range(2):
            buf = kk
            mf = []
            for m in range(8):
                for n in range(8):
                    acc = ar((m*NI+n)*4, 4)
                    if typ == "K":
                        mf.append(f"v_mfma_f32_16x16x32_bf16 {acc}, {vr(FB[buf][n],4)}, {vr(FA[buf][m],4)}, {acc}")
                    else:
                        mf.append(f"v_mfma_f32_16x16x32_bf16 {acc}, {vr(FA[buf][m],4)}, {vr(FB[buf][n],4)}, {acc}")
            fill = {}
            def put(g, ins):
                fill.setdefault(g, []).append(ins)
            put(-1, f"s_waitcnt vmcnt({20 if kk == 0 else 16}) lgkmcnt(0)")
            put(-1, "s_barrier")
            rd = reads(kk ^ 1, buf ^ 1)
            g = dma_start
            for kind in (("B0", "Ab") if kk == 0 else ("B1", "Aa")):
                m0, ins = dma_group(kind)
                put(g-1, m0)
                for i in ins:
                    put(g, i); g += dma_stride
            for i, r in enumerate(rd): put(i*rd_stride, r)
            tail = []
            if kk == 0:
                tail += advA + [f"s_cmp_ge_u32 s40, {S-3}", "s_cselect_b32 s10, 0, s10"]
                tail += ["s_add_u32 s42, s42, 1", "s_cmp_eq_u32 s42, 3", "s_cselect_b32 s41, s44, s45", "s_cselect_b32 s42, 0, s42",
                         f"v_add_u32 v{RA[0]}, s41, v{RA[0]}", f"v_add_u32 v{RA[1]}, s41, v{RA[1]}"]
                tail += [f"v_xor_b32 v{r}, 0x8000, v{r}" for r in RB]
            else:
                tail += advB + ["s_add_u32 s40, s40, 1", f"s_cmp_ge_u32 s40, {S-2}", "s_cselect_b32 s14, 0, s14", f"s_cmp_lt_u32 s40, {S}"]
            g0 = max(g - dma_stride, (len(rd)-1)*rd_stride) + 1
            assert g0 + (len(tail)+1)//2 <= NM, (g0, len(tail))
            per = 1 if g0 + len(tail) <= NM else 2
            for i, x in enumerate(tail):
                put(g0 + i // per, x)
            for l in interleave(mf, fill): a(l)
        a(f"s_cbranch_scc1 L_kv_loop{typ}")
        a(f"s_branch L_kv_epi{typ}")
    for typ in ("K", "V"):
        a.label(f"L_kv_epi{typ}")
        if stamps:
            a("s_memtime s[64:65]")
        a("s_nop 7"); a("s_nop 7")
        wnmul = 4096 if typ == "K" else 8192
        a(f"""
        v_lshlrev_b32 v2, 4, v1
        s_lshl_b32 s32, s30, 16
        s_mul_i32 s33, s31, {wnmul}
        s_add_u32 s32, s32, s33
        v_add_u32 v2, s32, v2
        s_lshl_b32 s32, s28, 20
        s_lshl_b32 s33, s29, 17
        s_add_u32 s32, s32, s33
        s_add_u32 s32, s32, {WS_KF if typ == "K" else WS_VF}
        """)
        cnt = 0
        for o in range(8 if typ == "K" else 4):
            for i in range(4 if typ == "K" else 8):
                t0 = 16 + (cnt & 3) * 8
                p0 = 48 + cnt * 4
                if typ == "K":
                    b0, b1 = (o*8 + 2*i)*4, (o*8 + 2*i + 1)*4
                    off = o*8192 + i*1024
                else:
                    b0, b1 = ((2*o)*8 + i)*4, ((2*o+1)*8 + i)*4
                    off = o*16384 + i*1024
                for j in range(4):
                    a(f"v_accvgpr_read_b32 v{t0+j}, a{b0+j}")
                for j in range(4):
                    a(f"v_accvgpr_read_b32 v{t0+4+j}, a{b1+j}")
                for j in range(4):
                    a(f"v_cvt_pk_bf16_f32 v{p0+j}, v{t0+2*j}, v{t0+2*j+1}")
                if off % 4096 == 0:
                    a(f"s_add_u32 s33, s32, {off}")
                a(f"buffer_store_dwordx4 {vr(p0,4)}, v2, s[16:19], s33 offen offset:{off % 4096}")
                cnt += 1
        if typ == "K":
            a("s_branch L_kv_fin")
    a.label("L_kv_fin")
    if stamps:
        a("s_waitcnt vmcnt(0)")
        a("s_memtime s[66:67]")
        a("s_memrealtime s[70:71]")
        a("s_waitcnt lgkmcnt(0)")
        a(f"""
        v_mov_b32 v4, s60
        v_mov_b32 v5, s62
        v_mov_b32 v6, s64
        v_mov_b32 v7, s66
        s_lshl_b32 s32, s2, 2
        s_add_u32 s32, s32, s24
        s_lshl_b32 s32, s32, 6
        s_add_u32 s32, s32, {WS_STAMP + 0x100000}
        v_mov_b32 v2, 0
        v_mov_b32 v8, s68
        v_mov_b32 v9, s70
        s_mov_b64 exec, 1
        buffer_store_dwordx4 v[4:7], v2, s[16:19], s32 offen
        buffer_store_dwordx2 v[8:9], v2, s[16:19], s32 offen offset:16
        """)
    a.label("L_kv_end")
    a("s_endpgm")
    return a.text(), kernel_desc(name, 512, 256)
```

```python
WS_XF   = 0x0000000
WS_WQF  = 0x0200000
WS_W1F  = 0x0600000
WS_WFF  = 0x0800000
WS_KF   = 0x1000000
WS_VF   = 0x2000000
WS_AF   = 0x3000000
AF_RB   = 184*1024
WS_PART = 0x4800000
PART_WSTRIDE = 0x9000
WS_STAMP = 0xF000000
WS_SIZE = 0x10000000
OOB = 0x7F000000
QSCALE = 1.4426950408889634 / 16.0
```

```python
import sys
from kv import gen_kv
from attn import gen_attn
from final import gen_final
stamps = len(sys.argv) > 2 and sys.argv[2] == "stamps"
ref = open("recurrent_scan__compressed_kv_cla__dense_activation_squared_relu__prompt.s.ref").read().split("\n")
hdr = [l for l in ref if l.startswith(";") and "launch" not in l and "grid=" not in l]
hdr += ["; @launch kernel=kv_kernel grid=(256,1,1) block=(256,1,1) lds=163840",
        "; @launch kernel=attn_kernel grid=(256,1,1) block=(256,1,1) lds=163840",
        "; @launch kernel=final_kernel grid=(224,1,1) block=(256,1,1) lds=131072",
        '.amdgcn_target "amdgcn-amd-amdhsa--gfx950"', ".text"]
ks = [gen_kv(stamps=stamps), gen_attn(stamps=stamps), gen_final(stamps=stamps)]
txt = "\n".join(hdr) + "\n" + "".join(k[0] for k in ks) + '.section .rodata,"a"\n' + "".join(".p2align 6\n" + k[1] for k in ks)
open(sys.argv[1], "w").write(txt)
print(len(txt), "bytes")
```

```python
import re, struct
from asmlib import *
MF = "v_mfma_f32_16x16x32_bf16"
def f2u(x): return struct.unpack("<I", struct.pack("<f", x))[0]

def cls(ins):
    if ins.endswith(":"): return "L"
    if ins.startswith("s_"): return "S"
    if ins.startswith("ds_"): return "M"
    if ins.startswith("buffer_"): return "D"
    if ins.startswith(("v_exp", "v_rcp", "v_log", "v_rsq", "v_sqrt", "v_readlane", "v_readfirstlane")): return "E"
    return "V"
COST = {"S": 0, "L": 0, "M": 1, "V": 1, "E": 2, "D": 2}

class Stage:
    def __init__(self, mf=None):
        self.mf = mf or []
        self.fill = {}
        self.post = {}
        self.ops = []
        self.scc_busy = set()
        self.tail = []
    def put(self, g, ins):
        self.fill.setdefault(g, []).append(ins)
    def put_post(self, g, ins):
        self.post.setdefault(g, []).append(ins)
    def free(self, g):
        n = 2; ns = 0; nd = 0
        for i in self.fill.get(g, []) + self.post.get(g, []):
            c = cls(i)
            if c == "S": ns += 1
            elif c == "D": nd += 1; n -= 2
            else: n -= COST[c]
        if nd: n -= ns
        else: n -= max(0, ns - 1)
        return n
    def nS(self, g):
        return sum(1 for i in self.fill.get(g, []) + self.post.get(g, []) if cls(i) == "S")
    def hasD(self, g):
        return any(cls(i) == "D" for i in self.fill.get(g, []) + self.post.get(g, []))
    def add(self, ins, deps=(), early=0, late=None, dist=None):
        self.ops.append((ins, [d for d in deps if d is not None], early, late, dist)); return len(self.ops)-1
    def schedule(self, g_end=None, maxover=6, allow_tail=True):
        n = len(self.mf)
        g_end = n-1 if g_end is None else g_end
        ops = self.ops
        for over in range(0, maxover+1):
            placed = {}; used = {}
            for g in range(0, g_end+1):
                fr = self.free(g)
                cap = fr + (over if fr >= 0 and not self.hasD(g) else 0)
                ns = self.nS(g); hasd = self.hasD(g)
                while True:
                    cand = []
                    for i, (ins, deps, early, late, dist) in enumerate(ops):
                        if i in placed or g < early: continue
                        ok = True
                        for d in deps:
                            if d not in placed: ok = False; break
                            if dist is not None:
                                if g - placed[d] < dist: ok = False; break
                            elif placed[d] == g:
                                cd, ci = cls(ops[d][0]), cls(ins)
                                if not ((cd == "V" and ci in "VE") or (cd == "S" and ci != "D") or (cd == "M" and ci in "MVE")):
                                    ok = False; break
                        if ok: cand.append(i)
                    cand.sort(key=lambda i: (ops[i][3] if ops[i][3] is not None else 999, 0 if cls(ops[i][0]) in "ED" else 1, i))
                    got = None
                    for i in cand:
                        c = cls(ops[i][0])
                        must = ops[i][3] is not None
                        mycap = cap if must or not allow_tail else min(cap, fr)
                        if c == "S":
                            if hasd or g in self.scc_busy: continue
                            cost = 0 if ns == 0 else 1
                        elif c == "D":
                            if hasd or (fr < 2 or ns or used.get(g)) and not (must and over >= 2 and mycap >= 2): continue
                            cost = 2
                        else:
                            if hasd: continue
                            cost = COST[c]
                        if cost <= mycap:
                            got = i; break
                    if got is None: break
                    c = cls(ops[got][0])
                    placed[got] = g; cap -= cost; fr -= cost; used.setdefault(g, []).append(got)
                    if c == "S": ns += 1
                    if c == "D": hasd = True
            bad = [i for i, o in enumerate(ops) if (o[3] is not None and placed.get(i, 10**6) > o[3]) or (not allow_tail and i not in placed)]
            if not bad: break
        assert not bad, [ops[i] for i in bad[:5]]
        self.over = over
        for g in sorted(used):
            for i in used[g]: self.put(g, ops[i][0])
        self.tail += [o[0] for i, o in enumerate(ops) if i not in placed]
        self.ops = []
    def emit(self, a, tailpad=None):
        order = {"S": 0, "L": 0, "M": 1, "D": 1, "V": 2, "E": 2}
        f = {}
        for g in set(self.fill) | set(self.post):
            f[g] = sorted(self.fill.get(g, []), key=lambda i: order[cls(i)]) + self.post.get(g, [])
        for l in interleave(self.mf, f): a(l)
        if self.tail and tailpad: a(tailpad)
        for l in self.tail: a(l)

def resolve_vm(lines):
    out = list(lines)
    for i, l in enumerate(lines):
        m = re.search(r"vmcnt\(@(dma|since):(\w+)\)", l)
        if not m: continue
        kind, arg = m.groups()
        cnt = 0; nd = 0; val = None
        for j in range(i-1, -1, -1):
            s = lines[j].strip()
            if "@merge" in s:
                assert kind == "dma", ("tag not found before merge", l)
                val = cnt + (int(arg) - nd); break
            if s.startswith("buffer_"):
                isd = " lds" in s
                if kind == "dma":
                    if isd:
                        if nd == int(arg): val = cnt; break
                        nd += 1
                else:
                    if ("@" + arg) in s.split(): val = cnt; break
                cnt += 1
        assert val is not None, l
        out[i] = l.replace(m.group(0), f"vmcnt({min(val, 63)})")
    return out

def regs_of(tok):
    tok = tok.strip().lstrip("-").strip("|")
    m = re.fullmatch(r"([vas])\[(\d+):(\d+)\]", tok)
    if m: return {(m.group(1), r) for r in range(int(m.group(2)), int(m.group(3))+1)}
    m = re.fullmatch(r"([vas])(\d+)", tok)
    if m: return {(m.group(1), int(m.group(2)))}
    if tok in ("vcc", "m0", "exec"): return {(tok, 0)}
    return set()
def parse(ins):
    ins = ins.split(";")[0].strip()
    op, _, rest = ins.partition(" ")
    toks = [t.strip() for t in rest.split(",")] if rest else []
    if toks: toks[-1:] = toks[-1].split()
    return op, toks
def check_hazards(lines, margin=1):
    t = 0; lastmf = -100
    mfD = {}; mfC = {}; vw = {}; tw = {}; vsw = {}; m0w = -100; stw = {}; dlw = {}
    errs = []
    for ln, raw in enumerate(lines):
        s = raw.split(";")[0].strip()
        if not s or s.endswith(":") or s.startswith("."): continue
        op, toks = parse(s)
        if op == "s_nop":
            t += int(toks[0]) + 1; continue
        if op in ("s_branch", "s_setpc_b64", "s_endpgm"):
            t += 100; continue
        def need(tab, regs, n, what):
            for r in regs:
                if r in tab and t - tab[r] - 1 < n:
                    errs.append((ln, what, raw.strip(), r, t - tab[r] - 1)); return
        R = [regs_of(x) for x in toks]
        if op.startswith("v_mfma"):
            t = max(t, lastmf + 4); lastmf = t
            D, A, B, C = R[0], R[1], R[2], R[3]
            need(vw, A | B | C, 2, "valu->mfma")
            need(dlw, A | B | C, 3, "dot->mfma")
            need(mfD, A | B, 8 + margin, "mfmaD->AB")
            if C != D or True:
                for r in C:
                    if r in mfD and mfD[r][1] != frozenset(C) if False else False: pass
            for r in D: mfD[r] = t
            for r in C: mfC[r] = t
        elif op.startswith("v_"):
            if op.startswith("v_cmp"):
                dst = R[0]; src = set().union(*R[1:]); vd = set()
            elif op.startswith(("v_readlane", "v_readfirstlane")):
                dst = R[0]; src = set().union(*R[1:]); vd = set()
                need(vw, R[1], 1, "valu->readlane")
                if len(R) > 2: need(vsw, R[2], 4, "vsgpr->lanesel")
            else:
                dst = set(); vd = set(R[0]); src = set().union(*R[1:]) if len(R) > 1 else set()
                if op.startswith("v_permlane"): vd |= R[1]; src |= R[0]; need(vw, src, 2, "valu->permlane")
                if op.startswith(("v_fmac", "v_dot2c")): src |= R[0]
                if op.startswith("v_cndmask") and len(toks) == 3: src |= {("vcc", 0)}
                if "dpp" in op: need(vw, src, 2, "valu->dpp")
            need(mfD, src | vd, 8 + margin, "mfmaD->valu")
            need(mfC, vd, 3, "mfmaC->valuW")
            need(tw, src, 1, "trans->valu")
            need(vsw, {r for r in src if r[0] in ("s", "vcc")}, 2, "vsgpr->valu")
            need(stw, vd, 2, "store->valuW")
            if not op.startswith("v_dot"): need(dlw, src | vd, 3, "dot->other")
            for r in vd:
                vw[r] = t
                if cls(op) == "E": tw[r] = t
                if op.startswith("v_dot"): dlw[r] = t
            for r in dst: vsw[r] = t
        elif op.startswith(("buffer_", "ds_")):
            allr = set().union(*R) if R else set()
            need(mfD, allr, 8 + margin, "mfmaD->mem")
            need(vsw, {r for r in allr if r[0] == "s"}, 5, "vsgpr->vmem")
            need(dlw, allr, 3, "dot->mem")
            if "lds" in toks and t - m0w - 1 < 1: errs.append((ln, "m0->dma", raw.strip()))
            if op.startswith("buffer_store") and ("x4" in op or "x3" in op):
                for r in R[0]: stw[r] = t
            elif op.startswith(("buffer_load", "ds_read")) and "lds" not in toks:
                need(stw, R[0], 1, "store->loadW")
        elif op.startswith("s_"):
            if toks and toks[0] == "m0": m0w = t
        t += 1
    return errs

def check_scc(lines):
    errs = []; last = None
    nowr = ("s_mov", "s_mul_i32", "s_waitcnt", "s_nop", "s_barrier", "s_cbranch", "s_branch", "s_cselect", "s_load", "s_memrealtime", "s_sleep", "s_call", "s_setpc", "s_endpgm", "s_setprio", "s_movk")
    for ln, raw in enumerate(lines):
        s = raw.split(";")[0].strip()
        if not s.startswith("s_"): continue
        op = s.split()[0]
        if op.startswith(("s_cbranch_scc", "s_cselect", "s_addc", "s_subb")):
            ok = last and (last.startswith(("s_cmp", "s_bitcmp", "s_or_b64", "s_and_b32")) or (op.startswith("s_subb") and last.startswith("s_sub_u32")) or (op.startswith("s_addc") and last.startswith("s_add_u32")))
            if not ok: errs.append((ln, "scc", s, last))
        if not op.startswith(nowr): last = op
    return errs
```

```python
WS_XF   = 0x0000000
WS_WQF  = 0x0200000
WS_W1F  = 0x0600000
WS_WFF  = 0x0800000
WS_FLG  = 0x0E00000
FL_PREP = 4096
FL_TK = 6144
FL_S2 = 32768
FL_S3 = 0x40000
FL_KV, FL_Q, FL_P, FL_S = 0, 16384, 16384+64, 8192
WS_KF   = 0x1000000
WS_VF   = 0x2202000
WS_QF   = 0x3400000
WS_PT   = 0x3D00000
PT_W    = 19*1024
import os
US = int(os.environ.get('US', 17408))
HS = 64*US + int(os.environ.get('HP', 1024))
Q_W = 17*1024
WS_PS   = 0x4800000
PS_SRC  = int(os.environ.get("PSS", 113))*1024
PS_R    = 23*PS_SRC
WS_STAMP = 0xF000000
WS_SIZE = 0x10000000
OOB = 0x7F000000
QSCALE = 1.4426950408889634 / 16.0
```

```python
import sys
from fw import *
from layout2 import *

OPT = dict(fine=False, touch=False, sc1ld=" sc1", stamps=False, early=[5, 13, 21, 29], late=[37, 45, 53, 61], cap=7, capb=8, capq=9, kvstep=16, a15=38, fsleep=2, fdelay=96, qstep=7, wideloop=False, thr=40, kvsc=" sc1", sidesc=" sc1")

vLANE, vDMA, vTE, vTO, vL16, vRD, vPOLL, vFLG, vONE, vL4, vKV = range(1, 12)
DA = [12, 13, 14, 15]; DB = [16, 17, 18, 19]; RA = [20, 21]; RB = [22, 23, 24, 25]
vSW, vSF, vSX, vG1 = 26, 27, 28, 29
GT = 30
vT = 12
BIAS = 12
O0 = 128
def O(dt, qt): return O0 + (dt*2+qt)*4
def S(b, kt, qt): return 64 + b*16 + (kt*2+qt)*4
def P(b, qt): return 96 + b*8 + qt*4
def NEGM(qt): return 112 + qt*4
vL = [120, 121]
vSUM = [[122, 123], [124, 125]]
vBIG = 126
vSTAT = 44
vSEL = 48
vRINV = [54, 55]
vSTB = 56
def accreg(pos): return vr(48+4*pos, 4) if pos < 52 else ar(208+4*(pos-52), 4)
NE = 6
def PK(c): return 48+4*c if c < 20 else (48+4*(c-20) if c < 20+NE else 48+4*(20+c))
def Q(qb, qt, u): return qb + (qt*8+u)*4
def FR(f): return 64 + (f % 16)*4
def X(qt, u): return 128 + (u*2+qt)*4
def FA(b, m): return (64 if b == 0 else 0) + m*4
def FB(b, n): return (64 if b == 0 else 0) + 32 + n*4
SLD = 128

sWS, sSA, sSB, sG, sDBG = 4, 8, 12, 16, 20
_n = [24]
def sal(n=1, al=1):
    _n[0] = (_n[0] + al - 1)//al*al
    r = _n[0]; _n[0] += n; return r
sWAVE, sHEAD, sJ, sQI, sWHICH = [sal() for _ in range(5)]
gA0, gA1, gB0, gB1, gMA, gMB, gIT, gD, gCNT, gFL = [sal() for _ in range(10)]
sTAU, sM0, sOFFA, sOFFB, sRDD, sRDS, sXOFF, sXOF2, sN, sND = gA0, gA1, gB0, gB1, gD, gCNT, sal(), sal(), sal(), sal()
sCNT, sEV, sCLAMP, sFIRST = sal(), sal(), sal(), sal()
sRET = sal(2, 2)
sMASK = sal(8, 2)
sTYPE, sU1, sU2, sW0 = sal(), sal(), sal(), sal()
sKVB, sKVI = sal(), sal()
sQST, sPT, sPSG, sPSS = sal(), sal(), sal(), sal()
sFKV, sFKVP, sFQ, sFSG, sFSS = [sal() for _ in range(5)]
sT = sal(8, 4)
sLN = sal(2, 2)
sFS = sal(2, 2); sW4K = 3
sSTAMP = sal(0, 2)
NSTAMP = (102 - sSTAMP)//2
print("sgpr used", sSTAMP, "stamps", NSTAMP, file=sys.stderr)
WS = sr(sWS, 4)

STUBS = []
def ld(): return OPT["sc1ld"]

XG = [1, 9, 17, 25, 33, 41, 49, 57]
def common_fill(st, dma=True, nd=None, last=False):
    if nd is None: nd = 16 + len(OPT["early"]) + sum(1 for g in OPT["late"] if g < 38)
    for G in range(8):
        g0 = G*8
        Gn = (G+3) % 8
        for i in range(4):
            f = Gn*4+i
            if not (last and G > 4): st.put(g0+2*i, f"ds_read_b128 {ar(FR(f),4)}, v{vRD} offset:{f*1024}")
        if last and G >= 4:
            if G < 7: st.put(g0+6, f"s_waitcnt lgkmcnt({(7, 4, 0)[G-4]})")
        elif G == 4:
            st.put(g0+6, f"s_waitcnt vmcnt(@dma:{nd}) lgkmcnt(7)")
            st.put(g0+7, "s_barrier")
            st.put(g0+7, f"v_add_u32 v{vRD}, s{sRDD}, v{vRD}")
        else:
            st.put(g0+6, "s_waitcnt lgkmcnt(7)")
    for i, g in enumerate(OPT["early"] if dma else []):
        st.put(g, f"buffer_load_dwordx4 v{vDMA}, {WS}, s{sOFFB} offen offset:{i*1024}{ld()} lds")
    if dma: st.put(31, f"v_readlane_b32 s{sOFFA}, v{vTO}, s{sTAU}")
    st.put(31, f"s_add_u32 m0, s{sM0}, 16384")
    st.put(34, f"s_add_u32 s{sM0}, s{sM0}, s{sRDD}")
    st.put(36, f"s_cmp_ge_u32 s{sM0}, 131072")
    st.put(38, f"s_cselect_b32 s{sRDD}, s{gMA}, s{gMB}")
    st.put(44, f"s_add_u32 s{sTAU}, s{sTAU}, 1")
    for i, g in enumerate(OPT["late"] if dma else []):
        st.put(g, f"buffer_load_dwordx4 v{vDMA}, {WS}, s{sOFFA} offen offset:{i*1024}{ld()} lds")
    if dma: st.put(55, f"v_readlane_b32 s{sOFFB}, v{vTE}, s{sTAU}")
    st.put(63, f"s_mov_b32 m0, s{sM0}")
    st.scc_busy |= {36, 37}
    if OPT["fine"]:
        st.put(4, f"s_memrealtime s[{sFS}:{sFS+1}]")
        st.put(6, f"v_mov_b32_dpp v{vKV}, v{vKV} wave_shr:1 row_mask:0xf bank_mask:0xf")
        st.put(62, f"v_writelane_b32 v{vKV}, s{sFS}, 0")

class Jobs:
    def __init__(self): self.jobs = []; self.at = {}
    def add(self, key, pre, ins, early, late): self.jobs.append((late, len(self.jobs), early, pre, ins, key))
    def place(self, st, s, cap=6, grid=None):
        slots = [g for g in (grid or XG) if not st.hasD(g) and st.free(g) == 2 and st.nS(g) == 0]
        n = 0
        avail = len([j for j in self.jobs if j[2] <= s*64+63])
        k = min(cap, avail, len(slots))
        use = [slots[(i*len(slots))//k] for i in range(k)] if k else []
        for g in slots:
            t = s*64+g
            c = sorted(j for j in self.jobs if j[2] <= t)
            if not c: continue
            j = c[0]
            nxt = [x for x in slots if x > g]
            urgent = j[0] < (s*64+nxt[0] if nxt else (s+1)*64+1)
            if not (urgent or (n < cap and (g in use or len(nxt) < k-n))): continue
            assert t <= j[0] + (24 if j[5][0] == "x" else 0) or j[5] in ("qs", "kvf", "qf") or (j[5] == "kv" and j[2] >= 64), ("job late", j, t)
            if j[3]:
                assert g-1 not in st.scc_busy
                st.put(g-1, j[3])
            st.put(g, j[4]); self.jobs.remove(j); self.at[j[5]] = t; n += 1

def mf_pv(half, pb, czero=False):
    return [f"{MF} {vr(O(dt,qt),4)}, {ar(FR(half*16+dt),4)}, {vr(P(pb,qt),4)}, {'0' if czero else vr(O(dt,qt),4)}"
            for dt in range(16) for qt in range(2)]
def mf_qk(half, sb, qb, czero=False):
    out = []
    for kt in range(2):
        for u in range(8):
            for qt in range(2):
                c = ('0' if czero else vr(NEGM(qt),4)) if u == 0 else vr(S(sb,kt,qt),4)
                out.append(f"{MF} {vr(S(sb,kt,qt),4)}, {ar(FR(half*16+kt*8+u),4)}, {ar(Q(qb,qt,u),4)}, {c}")
    return out
def mf_proj(s, init=None):
    out = []
    for f in range(32):
        nt, uu = f >> 1, f & 1
        for qt in range(2):
            c = vr(O(nt,qt),4)
            if uu == 0 and init == "zero": c = "0"
            if uu == 0 and init == "bias": c = vr(O(nt,1),4)
            out.append(f"{MF} {vr(O(nt,qt),4)}, {ar(FR(f),4)}, {ar(X(qt,2*s+uu),4)}, {c}")
    return out
def PA(b, nt, qt): return 64 + (nt*2+qt)*4 if b == 0 else O(2*nt+1, qt)
def mf_post(s):
    out = []
    for f in range(32):
        u, nt = f >> 2, f & 3
        for qt in range(2):
            d = vr(PA(s & 1, nt, qt), 4)
            out.append(f"{MF} {d}, {ar(FR(f),4)}, {vr(O(2*u,qt),4)}, {'0' if u == 0 else d}")
    return out

def sm_ops(b):
    ops = []
    seq = [(kt, qt, rp) for kt in range(2) for qt in range(2) for rp in range(2)]
    pend = []
    for i, (kt, qt, rp) in enumerate(seq):
        t0 = vT + (i % 4)*2
        s0 = S(b,kt,qt) + rp*2
        ops.append(f"v_exp_f32 v{t0}, v{s0}")
        ops += pend[:1]
        ops.append(f"v_exp_f32 v{t0+1}, v{s0+1}")
        ops += pend[1:]
        acc = vSUM[qt][rp]
        if kt == 0: pend = [f"v_add_f32 v{acc}, v{t0}, v{t0+1}"]
        else: pend = [f"v_add_f32 v{acc}, v{acc}, v{t0}", f"v_add_f32 v{acc}, v{acc}, v{t0+1}"]
        pend.append(f"v_cvt_pk_bf16_f32 v{P(b,qt)+kt*2+rp}, v{t0}, v{t0+1}")
    ops.append("s_nop 0")
    ops += pend
    ops += [f"v_add_f32 v{vSUM[0][0]}, v{vSUM[0][0]}, v{vSUM[0][1]}", f"v_add_f32 v{vSUM[1][0]}, v{vSUM[1][0]}, v{vSUM[1][1]}"]
    return ops

def place_sm(st, b, g0, g_end, tag, ladd=True, first=False):
    st.put(g0-1, f"s_cmp_ge_u32 s{sN}, s{sND}")
    st.put(g0, f"s_cbranch_scc1 L_domask_{tag}")
    st.put(g0, f"L_nomask_{tag}:")
    STUBS.append((f"L_domask_{tag}", f"L_mask{b}", f"L_nomask_{tag}"))
    st.put(g0+2 if g0 == 0 else 42, f"s_add_u32 s{sN}, s{sN}, 1")
    st.scc_busy |= {g0-1}
    def add(ins, deps=(), early=0): return st.add(ins, deps, max(early, g0), g_end)
    la = [add(f"v_add_f32 v{vL[q]}, v{vL[q]}, v{vSUM[q][0]}") for q in range(2)] if ladd else []
    seq = [(kt, qt, rp) for kt in range(2) for qt in range(2) for rp in range(2)]
    users = {}; lastacc = {}; NT = 6
    for i, (kt, qt, rp) in enumerate(seq):
        t0 = vT + (i % NT)*2
        s0 = S(b,kt,qt) + rp*2
        war = users.get(i - NT, [])
        e = g0 + (1 if kt == 0 else 3)
        e0 = add(f"v_exp_f32 v{t0}, v{s0}", war, e)
        e1 = add(f"v_exp_f32 v{t0+1}, v{s0+1}", war, e)
        acc = vSUM[qt][rp]
        if kt == 0:
            a0 = add(f"v_add_f32 v{acc}, v{t0}, v{t0+1}", [e0, e1] + la)
            u = [a0]; lastacc[(qt,rp)] = a0
        else:
            a0 = add(f"v_add_f32 v{acc}, v{acc}, v{t0}", [e0, lastacc[(qt,rp)]])
            a1 = add(f"v_add_f32 v{acc}, v{acc}, v{t0+1}", [e1, a0])
            u = [a0, a1]; lastacc[(qt,rp)] = a1
        c = st.add(f"v_cvt_pk_bf16_f32 v{P(b,qt)+kt*2+rp}, v{t0}, v{t0+1}", [e0, e1], g0, g_end-1)
        users[i] = u + [c]
    f0 = add(f"v_add_f32 v{vSUM[0][0]}, v{vSUM[0][0]}, v{vSUM[0][1]}", [lastacc[(0,0)], lastacc[(0,1)]])
    f1 = add(f"v_add_f32 v{vSUM[1][0]}, v{vSUM[1][0]}, v{vSUM[1][1]}", [lastacc[(1,0)], lastacc[(1,1)]])
    hi = f2u(2.0**OPT["thr"])
    if not first:
        mx = add(f"v_max_f32 v{vT+14}, v{vSUM[0][0]}, v{vSUM[1][0]}", [f0, f1])
        add(f"v_cmp_nge_f32 vcc, {hi:#x}, v{vT+14}", [mx])
    else:
        lo = f2u(2.0**-OPT["thr"])
        m0 = add(f"v_subrev_u32 v{vT+14}, {lo:#x}, v{vSUM[0][0]}", [f0])
        m1 = add(f"v_subrev_u32 v{vT+15}, {lo:#x}, v{vSUM[1][0]}", [f1])
        mx = add(f"v_max_u32 v{vT+14}, v{vT+14}, v{vT+15}", [m0, m1])
        add(f"v_cmp_lt_u32 vcc, {hi-lo:#x}, v{vT+14}", [mx])

def xlane_ops(op, v, t1):
    return [(f"v_mov_b32 v{t1}, v{v}", 0), (f"v_permlane16_swap_b32 v{v}, v{t1}", 2), (f"{op} v{v}, v{v}, v{t1}", 1),
            (f"v_mov_b32 v{t1}, v{v}", 0), (f"v_permlane32_swap_b32 v{v}, v{t1}", 2), (f"{op} v{v}, v{v}, v{t1}", 1)]
def xlane(a, op, v, t1):
    for ins, d in xlane_ops(op, v, t1):
        if d: a(f"s_nop {d-1}")
        a(ins)

class Chain:
    def __init__(self, items, grid=None): self.items = list(items); self.lastg = -10; self.grid = grid
    def fill(self, st, g0=0, g1=63):
        g = g0; lastg = -10
        while self.items and g <= g1:
            ins, dist = self.items[0][:2]
            early = self.items[0][2] if len(self.items[0]) > 2 else 0
            c = cls(ins)
            ok = g - lastg >= dist and g >= early and not st.hasD(g)
            if ok and g == lastg and not (c in "VE" and cls(self.last) in "VM"): ok = False
            if ok:
                if c == "S": ok = (st.nS(g) == 0 or st.free(g) >= 1) and not (g in st.scc_busy and not ins.startswith(("s_mov", "s_mul", "s_wait", "s_nop")))
                elif c == "D": ok = st.free(g) == 2 and st.nS(g) == 0 and (self.grid is None or g in self.grid)
                else: ok = st.free(g) >= COST[c]
            if ok:
                st.put(g, ins); self.items.pop(0); lastg = g; self.last = ins
            else:
                g += 1
    def flush(self, a):
        for it in self.items:
            if it[1]: a(f"s_nop {it[1]-1}")
            a(it[0])
        self.items = []

def gen(name="mega_kernel"):
    a = Asm()
    STUBS.clear()
    stamps = OPT["stamps"]
    nst = [0]
    def stamp_ins():
        i = nst[0]; nst[0] += 1
        assert i < NSTAMP
        return f"s_memrealtime s[{sSTAMP+2*i}:{sSTAMP+2*i+1}]"
    def streg(i): return sSTAMP+2*i if i < NSTAMP else sMASK+2*(i-NSTAMP)
    def stamp(i):
        if stamps: a(f"s_memrealtime s[{streg(i)}:{streg(i)+1}]")
    def merge(lbl, align=False):
        if align: a.raw(".p2align 6")
        a.label(lbl); a.comment("@merge")
    strideA, strideB = 2048, 8192
    a.raw(kernel_header(name))
    a("s_cmp_ge_u32 s2, 256")
    a("s_cbranch_scc1 L_end")
    stamp(0)
    KP = sMASK
    gHEAD, gMT, gWM, gWN = sCNT, sEV, sCLAMP, sFIRST
    a(f"""
    s_load_dwordx2 s[{sSA}:{sSA+1}], s[0:1], 8
    s_load_dwordx4 s[{sT}:{sT+3}], s[0:1], 24
    s_load_dwordx4 s[{sT+4}:{sT+7}], s[0:1], 96
    v_and_b32 v{vLANE}, 63, v0
    v_lshrrev_b32 v{GT}, 6, v0
    v_lshlrev_b32 v{vL16}, 4, v{vLANE}
    v_readfirstlane_b32 s{sWAVE}, v{GT}
    s_and_b32 s3, s2, 7
    s_lshl_b32 s3, s3, 1
    s_lshr_b32 s{sJ}, s2, 4
    s_bfe_u32 s{sWHICH}, s2, 0x10003
    s_add_u32 s{sHEAD}, s3, s{sWHICH}
    s_and_b32 s{gHEAD}, s{sJ}, 1
    s_add_u32 s{gHEAD}, s{gHEAD}, s3
    s_lshr_b32 s{gMT}, s2, 5
    s_and_b32 s{gWM}, s{sWAVE}, 1
    s_lshr_b32 s{gWN}, s{sWAVE}, 1
    """)
    t2, t3, t4, t5, t6 = GT, GT+1, GT+2, GT+3, GT+4
    a(f"""
    v_lshrrev_b32 v{t2}, 3, v{vLANE}
    s_lshl_b32 s{gA0}, s{gMT}, 8
    s_lshl_b32 s{gA1}, s{sWAVE}, 6
    s_add_u32 s{gA0}, s{gA0}, s{gA1}
    v_add_u32 v{t2}, s{gA0}, v{t2}
    v_lshlrev_b32 v{t2}, 11, v{t2}
    v_and_b32 v{t3}, 7, v{vLANE}
    v_lshrrev_b32 v{t4}, 4, v{vLANE}
    v_xor_b32 v{t5}, v{t3}, v{t4}
    v_lshl_add_u32 v{t5}, v{t5}, 4, v{t2}
    v_xor_b32 v{t6}, 4, v{t4}
    v_xor_b32 v{t6}, v{t3}, v{t6}
    v_lshl_add_u32 v{t6}, v{t6}, 4, v{t2}
    """)
    for jl in range(4):
        a(f"v_add_u32 v{DA[jl]}, {4096 + jl*8*strideA - jl*1024}, v{t5 if (jl & 1) == 0 else t6}")
    a(f"""
    v_bfe_u32 v{t2}, v{vLANE}, 3, 2
    v_lshlrev_b32 v{t3}, 13, v{t2}
    v_lshrrev_b32 v{t4}, 5, v{vLANE}
    v_lshl_add_u32 v{t3}, v{t4}, 7, v{t3}
    v_lshrrev_b32 v{t4}, 1, v{t2}
    v_lshlrev_b32 v{t4}, 2, v{t4}
    v_and_b32 v{t5}, 7, v{vLANE}
    v_xor_b32 v{t4}, v{t4}, v{t5}
    s_lshl_b32 s{gA0}, s{gWM}, 1
    v_xor_b32 v{t4}, s{gA0}, v{t4}
    v_lshl_add_u32 v{t3}, v{t4}, 4, v{t3}
    s_lshl_b32 s{gA0}, s{gHEAD}, 9
    s_lshl_b32 s{gA1}, s{sWAVE}, 16
    s_add_u32 s{gA0}, s{gA0}, s{gA1}
    v_add_u32 v{t3}, s{gA0}, v{t3}
    """)
    for jl in range(4):
        a(f"v_add_u32 v{DB[jl]}, {4096 + (jl>>1)*4*strideB + (jl&1)*256 - jl*1024}, v{t3}")
    a(f"""
    s_mov_b32 s{gA0}, 0
    s_mov_b32 s{gA1}, {32*strideA}
    s_mov_b32 s{gB0}, 0
    s_mov_b32 s{gB1}, {32*strideB}
    s_lshl_b32 s{gMA}, s{sWAVE}, 13
    s_add_u32 s{gMA}, s{gMA}, 131072
    s_lshl_b32 s{gMB}, s{sWAVE}, 12
    s_add_u32 s{gMB}, s{gMB}, 32768
    s_mov_b32 s{sSA+2}, {4194304+4096}
    s_mov_b32 s{sSA+3}, 0x20000
    s_mov_b32 s{sSB+2}, {8388608+4096}
    s_mov_b32 s{sSB+3}, 0x20000
    s_waitcnt lgkmcnt(0)
    s_sub_u32 s{sSA}, s{sSA}, 4096
    s_subb_u32 s{sSA+1}, s{sSA+1}, 0
    s_cmp_eq_u32 s{sWHICH}, 0
    s_cselect_b32 s{sSB}, s{sT}, s{sT+2}
    s_cselect_b32 s{sSB+1}, s{sT+1}, s{sT+3}
    s_sub_u32 s{sSB}, s{sSB}, 4096
    s_subb_u32 s{sSB+1}, s{sSB+1}, 0
    """)
    def dma_group(kind):
        if kind == "Aa": m0 = f"s_mov_b32 m0, s{gMA}"; regs, srd, so = DA, sSA, gA0
        elif kind == "Ab": m0 = f"s_add_u32 m0, s{gMA}, 4096"; regs, srd, so = DA, sSA, gA1
        elif kind == "B0": m0 = f"s_mov_b32 m0, s{gMB}"; regs, srd, so = DB, sSB, gB0
        elif kind == "B1": m0 = f"s_add_u32 m0, s{gMB}, 16384"; regs, srd, so = DB, sSB, gB1
        else:
            y = kind
            return [f"s_add_u32 m0, s{sW4K}, {y*16384}", f"s_add_u32 s{sT+6+(y&1)}, s{sW0}, {y*16384}"], \
                   [f"buffer_load_dwordx4 v{vDMA}, {WS}, s{sT+6+(y&1)} offen offset:{i*1024}{ld()} lds" for i in range(4)]
        return [m0], [f"buffer_load_dwordx4 v{regs[jl]}, {sr(srd,4)}, s{so} offen offset:{jl*1024} lds" for jl in range(4)]
    advA = [f"s_add_u32 s{gA0}, s{gA0}, 128", f"s_add_u32 s{gA1}, s{gA1}, 128",
            f"s_add_u32 s{gMA}, s{gMA}, 65536", f"s_cmp_ge_u32 s{gMA}, 196608", f"s_cselect_b32 s{sT}, 196608, 0", f"s_sub_u32 s{gMA}, s{gMA}, s{sT}"]
    advB = [f"s_add_u32 s{gB0}, s{gB0}, {64*strideB}", f"s_add_u32 s{gB1}, s{gB1}, {64*strideB}", f"s_xor_b32 s{gMB}, s{gMB}, 65536"]
    def emit_grp(kind):
        m0, ins = dma_group(kind)
        a(m0[0]); a("s_nop 0")
        for i in ins: a(i)
    emit_grp("Aa"); emit_grp("B0"); emit_grp("Ab")
    a(f"""
    s_mov_b32 s{sWS}, s{sT+6}
    s_mov_b32 s{sWS+1}, s{sT+7}
    s_mov_b32 s{sWS+2}, {WS_SIZE}
    s_mov_b32 s{sWS+3}, 0x20000
    s_mov_b32 s{sDBG}, s{sT+4}
    s_mov_b32 s{sDBG+1}, s{sT+5}
    s_mov_b32 s{sDBG+2}, 256
    s_mov_b32 s{sDBG+3}, 0x20000
    s_load_dwordx2 s[{KP}:{KP+1}], s[0:1], 16
    s_load_dwordx2 s[{KP+2}:{KP+3}], s[0:1], 40
    s_load_dwordx2 s[{KP+4}:{KP+5}], s[0:1], 56
    s_load_dwordx2 s[{KP+6}:{KP+7}], s[0:1], 72
    s_load_dwordx2 s[{sRET}:{sRET+1}], s[0:1], 0
    """)
    for i in advA: a(i)
    emit_grp("B1"); emit_grp("Aa")
    for i in advB: a(i)
    emit_grp("B0"); emit_grp("Ab")
    for i in advA: a(i)
    emit_grp("B1"); emit_grp("Aa")
    for i in advB: a(i)
    sWID, u_, nb_, o_, o2_ = sXOFF, sT+1, sT+2, sT+3, sT+4
    sD = [sQST, sPT, sPSG]; sXS = sPSS; sQO = sFSG; sSTR = sFSS
    G = sr(sG, 4)
    r_, g_, r8 = GT, GT+1, GT+2
    a(f"""
    s_lshl_b32 s{sWID}, s2, 2
    s_add_u32 s{sWID}, s{sWID}, s{sWAVE}
    v_and_b32 v{r_}, 15, v{vLANE}
    v_lshrrev_b32 v{g_}, 4, v{vLANE}
    v_lshlrev_b32 v{r8}, 3, v{r_}
    s_mov_b32 s{sG+3}, 0x20000
    s_waitcnt lgkmcnt(0)
    """)
    def natdest(dst, base):
        a(f"""
        s_lshr_b32 s{o_}, s{nb_}, 2
        s_mul_i32 s{o_}, s{o_}, {7*32768}
        s_lshr_b32 s{o2_}, s{u_}, 1
        s_lshl_b32 s{o2_}, s{o2_}, 15
        s_add_u32 s{o_}, s{o_}, s{o2_}
        s_and_b32 s{o2_}, s{nb_}, 3
        s_lshl_b32 s{o2_}, s{o2_}, 13
        s_add_u32 s{o_}, s{o_}, s{o2_}
        s_and_b32 s{o2_}, s{u_}, 1
        s_lshl_b32 s{o2_}, s{o2_}, 10
        s_add_u32 s{o_}, s{o_}, s{o2_}
        s_add_u32 s{dst}, s{o_}, {base}
        """)
    def div7(idx):
        a(f"""
        s_mul_i32 s{u_}, s{idx}, 9363
        s_lshr_b32 s{u_}, s{u_}, 16
        s_mul_i32 s{nb_}, s{u_}, 7
        s_sub_u32 s{nb_}, s{idx}, s{nb_}
        """)
    def ffdest(dst, base, lim):
        a(f"""
        s_mul_i32 s{o_}, s{nb_}, {184*4096}
        s_lshl_b32 s{o2_}, s{u_}, 12
        s_add_u32 s{o_}, s{o_}, s{o2_}
        s_add_u32 s{dst}, s{o_}, {base}
        s_cmp_lt_u32 s{sWID}, {lim}
        s_cselect_b32 s{dst}, s{dst}, {OOB}
        """)
    a(f"""
    s_mov_b32 s{sG}, s{KP+2}
    s_mov_b32 s{sG+1}, s{KP+3}
    s_mov_b32 s{sG+2}, {4096*896}
    v_mul_u32_u24 v{GT+4}, {4*896}, v{g_}
    v_add_u32 v{GT+4}, v{GT+4}, v{r8}
    """)
    div7(sWID)
    a(f"""
    s_mul_i32 s{o_}, s{u_}, {32*896}
    s_lshl_b32 s{o2_}, s{nb_}, 7
    s_add_u32 s{o_}, s{o_}, s{o2_}
    s_add_u32 s{o2_}, s{o_}, {16*896}
    """)
    for e in range(8):
        a(f"buffer_load_dwordx2 {ar(SLD+16+2*e,2)}, v{GT+4}, {G}, s{o_ if e < 4 else o2_} offen offset:{(e&3)*896}")
    ffdest(sD[1], WS_WFF + 56*4096, 896)
    a(f"""
    s_cmp_lt_u32 s{sWID}, 392
    s_cbranch_scc0 L_w2
    s_mov_b32 s{sG}, s{KP+4}
    s_mov_b32 s{sG+1}, s{KP+5}
    s_mov_b32 s{sG+2}, {448*3584}
    s_lshr_b32 s{u_}, s{sWID}, 2
    s_mul_i32 s{u_}, s{u_}, 9363
    s_lshr_b32 s{u_}, s{u_}, 16
    s_mul_i32 s{nb_}, s{u_}, 28
    s_sub_u32 s{nb_}, s{sWID}, s{nb_}
    s_mul_i32 s{o_}, s{u_}, {32*3584}
    s_lshl_b32 s{o2_}, s{nb_}, 7
    s_add_u32 s{o_}, s{o_}, s{o2_}
    v_mul_u32_u24 v{GT+5}, {8*3584}, v{g_}
    v_add_u32 v{GT+5}, v{GT+5}, v{r8}
    s_mov_b32 s{sSTR}, 2048
    """)
    for e in range(8):
        if e: a(f"s_add_u32 s{o_}, s{o_}, 3584")
        a(f"buffer_load_dwordx2 {ar(SLD+32+2*e,2)}, v{GT+5}, {G}, s{o_} offen")
    natdest(sD[2], WS_W1F)
    a("s_branch L_w2done")
    a.label("L_w2")
    a(f"""
    s_mov_b32 s{sG}, s{KP+6}
    s_mov_b32 s{sG+1}, s{KP+7}
    s_mov_b32 s{sG+2}, {1792*896}
    s_sub_u32 s{sT+5}, s{sWID}, 392
    s_mov_b32 s{sSTR}, 1024
    v_mul_u32_u24 v{GT+5}, {16*896}, v{g_}
    v_add_u32 v{GT+5}, v{GT+5}, v{r8}
    """)
    div7(sT+5)
    a(f"""
    s_lshr_b32 s{o_}, s{u_}, 1
    s_mul_i32 s{o_}, s{o_}, {64*896}
    s_and_b32 s{o2_}, s{u_}, 1
    s_mul_i32 s{o2_}, s{o2_}, {2*896}
    s_add_u32 s{o_}, s{o_}, s{o2_}
    s_lshl_b32 s{o2_}, s{nb_}, 7
    s_add_u32 s{o_}, s{o_}, s{o2_}
    """)
    for e3 in range(4):
        if e3: a(f"s_add_u32 s{o_}, s{o_}, {4*896}")
        for eh in range(2):
            a(f"@@buffer_load_dwordx2 {ar(SLD+32+2*(eh*4+e3),2)}, v{GT+5}, {G}, s{o_} offen offset:{eh*896}")
    ffdest(sD[2], WS_WFF, 784)
    a.label("L_w2done")
    h_, i_ = GT+5, GT+6
    a(f"""
    s_mov_b32 s{sG}, s{sRET}
    s_mov_b32 s{sG+1}, s{sRET+1}
    s_mov_b32 s{sG+2}, {2048*896}
    v_and_b32 v{h_}, 1, v{vLANE}
    v_lshrrev_b32 v{i_}, 1, v{vLANE}
    v_mul_u32_u24 v{GT+7}, 896, v{h_}
    v_lshl_add_u32 v{GT+7}, v{i_}, 4, v{GT+7}
    v_cmp_gt_u32 s[{sLN}:{sLN+1}], 28, v{i_}
    v_mov_b32 v{GT+8}, {OOB}
    s_mul_i32 s{o_}, s{sWID}, 1792
    v_cndmask_b32 v{GT+7}, v{GT+8}, v{GT+7}, s[{sLN}:{sLN+1}]
    buffer_load_dwordx4 {ar(SLD+48,4)}, v{GT+7}, {G}, s{o_} offen
    buffer_load_dwordx4 {ar(SLD+52,4)}, v{GT+7}, {G}, s{o_} offen offset:448
    v_lshrrev_b32 v{GT+9}, 2, v{i_}
    v_lshlrev_b32 v{GT+9}, 10, v{GT+9}
    v_and_b32 v{GT+10}, 3, v{i_}
    v_lshl_add_u32 v{GT+9}, v{GT+10}, 8, v{GT+9}
    v_lshl_add_u32 v{GT+9}, v{h_}, 4, v{GT+9}
    v_cndmask_b32 v{vSX}, v{GT+8}, v{GT+9}, s[{sLN}:{sLN+1}]
    s_lshr_b32 s{o_}, s{sWID}, 3
    s_mul_i32 s{o_}, s{o_}, 14336
    s_and_b32 s{o2_}, s{sWID}, 7
    s_lshl_b32 s{o2_}, s{o2_}, 5
    s_add_u32 s{sXS}, s{o_}, s{o2_}
    s_lshl_b32 s{sFQ}, s{sWID}, 10
    s_add_u32 s{sFQ}, s{sFQ}, {WS_FLG}
    s_cmp_lt_u32 s{sWID}, 16
    s_cselect_b32 s{sFQ}, s{sFQ}, {OOB}
    v_cmp_eq_u32 vcc, 0, v{vLANE}
    v_mov_b32 v{vONE}, 1
    v_lshlrev_b32 v{vL4}, 2, v{vLANE}
    v_cndmask_b32 v{vFLG}, v{GT+8}, v{vLANE}, vcc
    s_mov_b32 s{sG}, s{KP}
    s_mov_b32 s{sG+1}, s{KP+1}
    s_mov_b32 s{sG+2}, {448*8192}
    s_lshr_b32 s{u_}, s{sWID}, 6
    s_and_b32 s{nb_}, s{sWID}, 63
    s_lshl_b32 s{sQO}, s{u_}, 18
    s_lshl_b32 s{o2_}, s{nb_}, 7
    s_add_u32 s{sQO}, s{sQO}, s{o2_}
    v_lshlrev_b32 v{vSW}, 1, v{r_}
    v_lshl_add_u32 v{vSW}, v{g_}, 16, v{vSW}
    v_mov_b32 v{vSF}, v{vL16}
    """)
    natdest(sD[0], WS_WQF)
    a(f"s_cmp_lt_u32 s{sWID}, 896")
    a(f"s_cselect_b32 s{sD[0]}, s{sD[0]}, {OOB}")
    assert WS_XF == 0
    a(f"""
    v_bfe_u32 v{t4}, v{vLANE}, 1, 3
    s_lshl_b32 s{o_}, s{gWM}, 14
    s_add_u32 s{o_}, s{o_}, 131072
    v_lshlrev_b32 v{r_}, 7, v{r_}
    v_add_u32 v{r_}, s{o_}, v{r_}
    """)
    for kk in range(2):
        a(f"v_or_b32 v{t5}, {4*kk}, v{g_}")
        a(f"v_xor_b32 v{t5}, v{t5}, v{t4}")
        a(f"v_lshl_add_u32 v{RA[kk]}, v{t5}, 4, v{r_}")
    a(f"""
    v_lshlrev_b32 v{t2}, 12, v{g_}
    v_bfe_u32 v{t4}, v{vLANE}, 2, 2
    v_lshl_add_u32 v{t2}, v{t4}, 7, v{t2}
    v_and_b32 v{t5}, 3, v{vLANE}
    v_lshl_add_u32 v{t2}, v{t5}, 3, v{t2}
    s_lshl_b32 s{o_}, s{gWN}, 10
    s_add_u32 s{o_}, s{o_}, 32768
    v_add_u32 v{t2}, s{o_}, v{t2}
    v_lshrrev_b32 v{t4}, 1, v{t4}
    v_lshlrev_b32 v{t4}, 6, v{t4}
    v_and_b32 v{t5}, 1, v{g_}
    v_lshlrev_b32 v{t5}, 5, v{t5}
    v_or_b32 v{t4}, v{t4}, v{t5}
    """)
    for q in range(4):
        a(f"v_xor_b32 v{t5}, {(q>>1)*64 + (q&1)*32}, v{t4}")
        a(f"v_add_u32 v{RB[q]}, v{t5}, v{t2}")
    a(f"""
    s_mul_i32 s{sKVB}, s{gHEAD}, {HS}
    s_mul_i32 s{o_}, s{gMT}, {8*US}
    s_add_u32 s{sKVB}, s{sKVB}, s{o_}
    s_mul_i32 s{o_}, s{gWM}, {4*US}
    s_add_u32 s{sKVB}, s{sKVB}, s{o_}
    s_add_u32 s{o2_}, s{sWHICH}, 12
    s_lshl_b32 s{o_}, s{gWN}, s{o2_}
    s_add_u32 s{sKVB}, s{sKVB}, s{o_}
    s_mul_i32 s{o_}, s{sWHICH}, {WS_VF - WS_KF}
    s_add_u32 s{sKVB}, s{sKVB}, s{o_}
    s_add_u32 s{sKVB}, s{sKVB}, {WS_KF}
    s_lshr_b32 s{sKVI}, 8192, s{sWHICH}
    s_add_u32 s{sKVI}, s{sKVI}, s{sKVB}
    s_lshl_b32 s{sFKV}, s{gHEAD}, 8
    s_lshl_b32 s{o_}, s{gMT}, 5
    s_add_u32 s{sFKV}, s{sFKV}, s{o_}
    s_lshl_b32 s{o_}, s{sWHICH}, 4
    s_add_u32 s{sFKV}, s{sFKV}, s{o_}
    s_lshl_b32 s{o_}, s{sWAVE}, 2
    s_add_u32 s{sFKV}, s{sFKV}, s{o_}
    s_add_u32 s{sFKV}, s{sFKV}, {WS_FLG + FL_KV}
    s_lshl_b32 s{sFKVP}, s{sHEAD}, 8
    s_add_u32 s{sFKVP}, s{sFKVP}, {WS_FLG + FL_KV}
    s_mov_b32 s{gCNT}, 2
    s_cmp_eq_u32 s{sWAVE}, 0
    s_cselect_b32 s{gFL}, 7, 99
    """)
    WQ, B1, ST1, N0, STA2, XR1, XR2 = sT+1, sT+2, sT+3, sN, sT+4, sND, sXOF2
    a(f"""
    s_or_b32 s{sQI}, s{sJ}, 8
    s_lshl_b32 s{sT}, s{sWAVE}, 12
    v_add_u32 v{vDMA}, s{sT}, v{vL16}
    v_mov_b32 v{vRD}, v{vL16}
    s_mul_i32 s{WQ}, s{sHEAD}, {7*32768}
    s_add_u32 s{WQ}, s{WQ}, {WS_WQF}
    s_mov_b32 s{sW0}, s{WQ}
    s_mov_b32 s{XR1}, s{sQI}
    s_mov_b32 s{ST1}, 32768
    s_cmp_eq_u32 s{sQI}, 15
    s_cselect_b32 s{N0}, {OPT['a15']}, 34
    s_cmp_ge_u32 s{sJ}, 8
    s_cbranch_scc1 L_typeA
    s_mov_b32 s{sTYPE}, 2
    s_mov_b32 s{B1}, s{WQ}
    s_sub_u32 s{XR2}, 15, s{sQI}
    s_lshl_b32 s{sU1}, s{sQI}, 2
    s_sub_u32 s{sU2}, 64, s{sU1}
    s_add_u32 s{sU1}, s{sU1}, 4
    s_sub_u32 s{sU1}, s{sU1}, s{N0}
    s_add_u32 s{STA2}, s{sU1}, 14
    s_add_u32 s{sT+7}, s{STA2}, s{sU2}
    s_branch L_typedone
    """)
    a.label("L_typeA")
    a(f"""
    s_mov_b32 s{sU1}, s{N0}
    s_add_u32 s{sT+7}, s{N0}, 14
    s_mov_b32 s{sU2}, 2
    s_mov_b32 s{N0}, 0
    s_mov_b32 s{STA2}, 100
    s_mov_b32 s{XR2}, 0x4000
    s_mov_b32 s{sTYPE}, 1
    s_mov_b32 s{B1}, {OOB}
    s_cmp_eq_u32 s{sJ}, 15
    s_cbranch_scc1 L_typedone
    s_mov_b32 s{sTYPE}, 0
    s_sub_u32 s{sT}, s{sJ}, 8
    s_mul_i32 s{sW0}, s{sT}, {7*32768}
    s_add_u32 s{sW0}, s{sW0}, {WS_W1F}
    s_lshl_b32 s{B1}, s{sT}, 15
    s_add_u32 s{B1}, s{B1}, {WS_WFF}
    s_mov_b32 s{ST1}, {184*4096}
    s_mov_b32 s{XR1}, s{sHEAD}
    """)
    a.label("L_typedone")
    tA, tB, tC, tD = GT, GT+1, GT+2, GT+3
    KB, VB = sT+5, sT+6
    a(f"""
    s_mul_i32 s{KB}, s{sHEAD}, {HS}
    s_add_u32 s{VB}, s{KB}, {WS_VF}
    s_add_u32 s{KB}, s{KB}, {WS_KF}
    v_mov_b32 v{vTE}, {OOB}
    """)
    def seg_lin(start, base, stride):
        a(f"v_subrev_u32 v{tA}, {start}, v{vLANE}")
        a(f"v_cmp_gt_u32 vcc, 7, v{tA}")
        a(f"v_mul_u32_u24 v{tB}, {stride}, v{tA}")
        a(f"v_add_u32 v{tB}, s{base}, v{tB}")
        a(f"v_cndmask_b32 v{vTE}, v{vTE}, v{tB}, vcc")
    seg_lin(0, sW0, 32768)
    seg_lin(7, B1, f"s{ST1}")
    a(f"s_lshl_b32 s{sT}, s{sHEAD}, 15")
    a(f"s_add_u32 s{sT}, s{sT}, {WS_WFF + 56*4096}")
    seg_lin(f"s{sT+7}", sT, 184*4096)
    a(f"v_add_u32 v{vTO}, 16384, v{vTE}")
    def seg_att(start, n0, U):
        for tab in (vTO, vTE):
            a(f"v_subrev_u32 v{tA}, {start}, v{vLANE}")
            if n0 is not None: a(f"v_add_u32 v{tB}, s{n0}, v{tA}")
            else: a(f"v_mov_b32 v{tB}, v{tA}")
            a(f"v_mul_u32_u24 v{tB}, {US}, v{tB}")
            if tab == vTO:
                a(f"s_sub_u32 s{sT}, s{U}, 1")
                a(f"v_cmp_eq_u32 vcc, s{sT}, v{tA}")
                a(f"v_add_u32 v{tC}, s{KB}, v{tB}")
                a(f"v_add_u32 v{tC}, {US}, v{tC}")
                a(f"v_add_u32 v{tD}, s{VB}, v{tB}")
            else:
                a(f"v_cmp_eq_u32 vcc, 0, v{tA}")
                a(f"v_add_u32 v{tC}, s{VB}, v{tB}")
                a(f"v_subrev_u32 v{tC}, {US}, v{tC}")
                a(f"v_add_u32 v{tD}, s{KB}, v{tB}")
            a(f"v_cndmask_b32 v{tC}, v{tC}, v{tD}, vcc")
            a(f"v_cmp_gt_u32 vcc, s{U}, v{tA}")
            a("s_nop 1")
            a(f"v_cndmask_b32 v{tab}, v{tab}, v{tC}, vcc")
    seg_att(14, N0, sU1)
    seg_att(f"s{STA2}", None, sU2)
    a(f"""
    v_lshrrev_b32 v{tA}, 4, v{vLANE}
    v_lshlrev_b32 v{tA}, 2, v{tA}
    v_and_b32 v{tB}, 15, v{vLANE}
    v_sub_u32 v{tA}, v{tB}, v{tA}
    """)
    for r in range(4):
        a(f"v_cmp_gt_i32 s[{sMASK+2*r}:{sMASK+2*r+1}], {r}, v{tA}")
    XO1, XO2 = sXOFF, sXOF2
    a(f"""
    s_lshl_b32 s{sT}, s{sWAVE}, 1
    s_lshl_b32 s{XO1}, s{XR1}, 3
    s_add_u32 s{XO1}, s{XO1}, s{sT}
    s_mul_i32 s{XO1}, s{XO1}, 14336
    s_lshl_b32 s{XO2}, s{XR2}, 3
    s_add_u32 s{XO2}, s{XO2}, s{sT}
    s_mul_i32 s{XO2}, s{XO2}, 14336
    s_lshl_b32 s{sW4K}, s{sWAVE}, 12
    s_mov_b32 s{sCLAMP}, 0x05040100
    s_mov_b32 s{sFIRST}, 0x07060302
    s_mov_b32 s{gIT}, 4
    """)
    def side_chain():
        c = []
        z = GT+8
        c += [(f"v_mov_b64 {vr(z,2)}, 0", 0), (f"v_mov_b64 {vr(z+2,2)}, 0", 0), (f"buffer_store_dwordx4 {vr(z,4)}, v{vL16}, {WS}, s{sFQ} offen sc1", 1)]
        for rnd in (1, 2):
            for h in range(2):
                for e in range(8):
                    c.append((f"v_accvgpr_read_b32 v{GT+e}, a{SLD+16*rnd+2*e+h}", 0))
                for jj in range(2):
                    o = GT+8+4*jj
                    for p in range(4):
                        c.append((f"v_perm_b32 v{o+p}, v{GT+2*p+1}, v{GT+2*p}, s{(sCLAMP, sFIRST)[jj]}", 0))
                    if rnd == 1: c.append((f"buffer_store_dwordx4 {vr(o,4)}, v{vL16}, {WS}, s{sD[rnd]} offen offset:{(2*h+jj)*1024} sc1", 1))
                    else:
                        c.append((f"buffer_store_dwordx4 {vr(o,4)}, v{vSF}, {WS}, s{sD[rnd]} offen sc1", 1))
                        c.append((f"v_add_u32 v{vSF}, s{sSTR}, v{vSF}", 1))
        U = GT; m_, v_, t_, t2_ = GT+16, GT+17, vG1, vPOLL
        for i in range(8):
            c.append((f"v_accvgpr_read_b32 v{t_}, a{SLD+48+i}", 2 if i == 0 else 0))
            c.append((f"v_lshlrev_b32 v{U+2*i}, 16, v{t_}", 0))
            c.append((f"v_and_b32 v{U+2*i+1}, 0xffff0000, v{t_}", 0))
        def red(v):
            r = [(f"v_add_f32_dpp v{v}, v{v}, v{v} row_ror:{sh} row_mask:0xf bank_mask:0xf", 2) for sh in (8, 4, 2)]
            return r + xlane_ops("v_add_f32", v, t2_)
        c.append((f"v_add_f32 v{m_}, v{U}, v{U+1}", 0)); c.append((f"v_add_f32 v{v_}, v{U+2}, v{U+3}", 0))
        for i in range(4, 16, 2):
            c.append((f"v_add_f32 v{m_}, v{m_}, v{U+i}", 0)); c.append((f"v_add_f32 v{v_}, v{v_}, v{U+i+1}", 0))
        c.append((f"v_add_f32 v{m_}, v{m_}, v{v_}", 0))
        c += red(m_)
        c.append((f"v_mul_f32 v{m_}, {f2u(1.0/448):#x}, v{m_}", 0))
        for i in range(16):
            c.append((f"v_sub_f32 v{t_}, v{U+i}, v{m_}", 0))
            c.append((f"v_mul_f32 v{v_}, v{t_}, v{t_}" if i == 0 else f"v_fma_f32 v{v_}, v{t_}, v{t_}, v{v_}", 0))
        c.append((f"v_cndmask_b32 v{v_}, 0, v{v_}, s[{sLN}:{sLN+1}]", 0))
        c += red(v_)
        for x in (f"v_mul_f32 v{v_}, {f2u(1.0/448):#x}, v{v_}", f"v_cvt_pk_bf16_f32 v{t_}, v{m_}, v{v_}", f"v_lshlrev_b32 v{m_}, 16, v{t_}",
                  f"v_and_b32 v{v_}, 0xffff0000, v{t_}", f"v_add_f32 v{v_}, {f2u(1e-5):#x}, v{v_}", f"v_cvt_pk_bf16_f32 v{v_}, v{v_}, v{v_}",
                  f"v_lshlrev_b32 v{v_}, 16, v{v_}", f"v_sqrt_f32 v{v_}, v{v_}"):
            c.append((x, 0))
        c.append((f"v_cvt_pk_bf16_f32 v{v_}, v{v_}, v{v_}", 1))
        c.append((f"v_lshlrev_b32 v{v_}, 16, v{v_}", 0))
        c.append((f"v_rcp_f32 v{v_}, v{v_}", 0))
        for i in range(16): c.append((f"v_sub_f32 v{U+i}, v{U+i}, v{m_}", 1 if i == 0 else 0))
        for i in range(8):
            for x in (f"v_cvt_pk_bf16_f32 v{t_}, v{U+2*i}, v{U+2*i+1}", f"v_lshlrev_b32 v{U+2*i}, 16, v{t_}", f"v_and_b32 v{U+2*i+1}, 0xffff0000, v{t_}",
                      f"v_mul_f32 v{U+2*i}, v{U+2*i}, v{v_}", f"v_mul_f32 v{U+2*i+1}, v{U+2*i+1}, v{v_}", f"v_cvt_pk_bf16_f32 v{U+i}, v{U+2*i}, v{U+2*i+1}"):
                c.append((x, 0))
        c.append((f"buffer_store_dwordx4 {vr(U,4)}, v{vSX}, {WS}, s{sXS} offen sc1", 1))
        c.append((f"v_add_u32 v{vSX}, {7*1024}, v{vSX}", 1))
        c.append((f"buffer_store_dwordx4 {vr(U+4,4)}, v{vSX}, {WS}, s{sXS} offen sc1", 1))
        for nt in range(4):
            o = GT+8+4*(nt & 1)
            for i in range(4):
                c.append((f"v_accvgpr_read_b32 v{o+i}, a{SLD+nt*4+i}", 0)); c.append((f"v_accvgpr_read_b32 v{t_}, a{SLD+56+nt*4+i}", 0))
                c.append((f"v_or_b32 v{o+i}, v{o+i}, v{t_}", 0))
            if nt == 2: c.append((f"s_add_u32 s{sD[0]}, s{sD[0]}, 4096", 1))
            c.append((f"buffer_store_dwordx4 {vr(o,4)}, v{vL16}, {WS}, s{sD[0]} offen offset:{(nt&1)*2048} sc1", 1))
        return Chain(c, XG + [3, 11, 19, 27, 35, 43, 51, 59])
    def reads(kk, buf):
        ra = [f"ds_read_b128 {ar(FA(buf,m),4)}, v{RA[kk]} offset:{m*2048}" for m in range(8)]
        rb = [f"ds_read_b64_tr_b16 {ar(FB(buf,n)+2*sec,2)}, v{RB[n&3]} offset:{kk*16384+sec*2048+(n>>2)*512}" for n in range(8) for sec in range(2)]
        out = []
        for i in range(8): out += [ra[i], rb[2*i], rb[2*i+1]]
        return out
    a("s_waitcnt vmcnt(@dma:24)")
    a("s_barrier")
    for r in reads(0, 0): a(r)
    stamp(1)
    a(f"s_cmp_eq_u32 s{sWHICH}, 0")
    a("s_cbranch_scc0 L_gemmV")
    pre_lines = len(a.lines)
    sJT = sT+2
    def xjob(J, key, i, base, early, late):
        u, qt = i >> 1, i & 1
        J.add(key, f"s_add_u32 s{sJT}, s{base}, {qt*14336+u*1024}", f"buffer_load_dwordx4 {ar(X(qt,u),4)}, v{vL16}, {WS}, s{sJT} offen{ld()} ; @{key}", early, late - (3 - (i & 3))*8)
    def kvjob(J, c, early, late):
        blk = c >> 2
        J.add("kv", f"s_add_u32 s{sJT}, s{sKVI if blk & 1 else sKVB}, {(blk>>1)*US+(c&3)*1024}",
              f"buffer_store_dwordx4 {vr(PK(c),4)}, v{vL16}, {WS}, s{sJT} offen{OPT['kvsc']} ; @kv", early, late)
    pw, t6, t7 = sEV, sCNT, sND
    setup = f"""
    s_lshl_b32 s{pw}, s{sHEAD}, 3
    s_and_b32 s{t6}, s{sJ}, 7
    s_add_u32 s{pw}, s{pw}, s{t6}
    s_lshl_b32 s{pw}, s{pw}, 2
    s_add_u32 s{pw}, s{pw}, s{sWAVE}
    s_mul_i32 s{sQST}, s{pw}, {Q_W}
    s_add_u32 s{sQST}, s{sQST}, {WS_QF}
    s_mul_i32 s{sPT}, s{pw}, {PT_W}
    s_add_u32 s{sPT}, s{sPT}, {WS_PT}
    s_lshl_b32 s{sFQ}, s{pw}, 2
    s_add_u32 s{sFQ}, s{sFQ}, {WS_FLG + FL_Q}
    s_mul_i32 s{t7}, s{sWAVE}, {28*1024}
    s_add_u32 s{t7}, s{t7}, {WS_PS}
    s_mul_i32 s{sPSG}, s{sHEAD}, {PS_R}
    s_add_u32 s{sPSG}, s{sPSG}, s{t7}
    s_mul_i32 s{pw}, s{t6}, {PS_SRC}
    s_add_u32 s{sPSG}, s{sPSG}, s{pw}
    s_add_u32 s{sPSG}, s{sPSG}, {16*PS_SRC}
    s_lshl_b32 s{sFSG}, s{sHEAD}, 9
    s_lshl_b32 s{pw}, s{t6}, 2
    s_add_u32 s{sFSG}, s{sFSG}, s{pw}
    s_lshl_b32 s{pw}, s{sWAVE}, 7
    s_add_u32 s{pw}, s{pw}, {WS_FLG + FL_S}
    s_add_u32 s{sFSG}, s{sFSG}, s{pw}
    s_add_u32 s{sFSG}, s{sFSG}, 64
    s_lshr_b32 s{t6}, s{sJ}, 3
    s_mul_i32 s{t6}, s{t6}, 7
    s_xor_b32 s{t6}, s{t6}, 7
    s_xor_b32 s{t6}, s{t6}, s{sJ}
    s_mul_i32 s{sPSS}, s{t6}, {PS_R}
    s_add_u32 s{sPSS}, s{sPSS}, s{t7}
    s_mul_i32 s{t7}, s{sHEAD}, {PS_SRC}
    s_add_u32 s{sPSS}, s{sPSS}, s{t7}
    s_lshl_b32 s{sFSS}, s{t6}, 9
    s_add_u32 s{sFSS}, s{sFSS}, s{pw}
    s_lshl_b32 s{t7}, s{sHEAD}, 2
    s_add_u32 s{sFSS}, s{sFSS}, s{t7}
    s_lshl_b32 s{sND}, s{sQI}, 2
    s_add_u32 s{sND}, s{sND}, s{sWAVE}
    s_lshr_b32 s{sCNT}, s{sU1}, 1
    s_sub_u32 s{sCNT}, s{sCNT}, 1
    s_lshr_b32 s{sEV}, s{sJ}, 3
    s_sub_u32 s{sT+3}, s{sJ}, 8
    s_lshl_b32 s{sT+3}, s{sT+3}, 9
    s_and_b32 s{sT+3}, s{sT+3}, 0xffffff
    """.strip().split("\n")
    setup = [(x.strip(), 1) for x in setup]
    setup.append((f"s_cmp_eq_u32 s{sTYPE}, 1\ns_cselect_b32 s{sQST}, {OOB}, s{sQST}\ns_cselect_b32 s{sFSG}, {OOB}, s{sFSG}", 1))
    setup2 = [(x, 1) for x in (f"s_mov_b32 s{sTAU}, 4", f"s_add_u32 s{sM0}, s{sW4K}, {8*16384}", f"s_add_u32 s{sOFFB}, s{sW0}, {8*16384}",
              f"s_mov_b32 s{sRDD}, {-131072}", f"s_mov_b32 s{gMA}, {-131072}", f"s_mov_b32 s{gMB}, 32768", f"s_mov_b32 m0, s{sM0}",
              f"s_mov_b32 s{sT+7}, {f2u(QSCALE):#x}")]
    for typ in ("K", "V"):
        if typ == "V":
            a.label("L_gemmV")
            for l in a.lines[:pre_lines]:
                if l.strip().startswith("buffer_") or "@merge" in l: a.raw("@ghost " + l.strip())
        def pos(m, n): return m*8+n if typ == "K" else (m >> 1)*16 + n*2 + (m & 1)
        def substep(it, kk, groups, loop=False):
            buf = kk
            mf = []
            for m in range(8):
                for n in range(8):
                    acc = accreg(pos(m, n))
                    c = "0" if (it == 0 and kk == 0) else acc
                    x, y = ar(FB(buf,n),4), ar(FA(buf,m),4)
                    if typ == "V": x, y = y, x
                    mf.append(f"{MF} {acc}, {x}, {y}, {c}")
            st = Stage(mf)
            st.put(-1, f"s_waitcnt vmcnt(@dma:{20 if kk == 0 else 16}) lgkmcnt(0)")
            st.put(-1, "s_barrier")
            last = (it == 15 and kk == 1)
            g, dg = (1, 6) if (loop and not OPT["wideloop"]) else (5, 8)
            for kind in groups:
                m0, ins = dma_group(kind)
                st.put(g-1, m0[0])
                if len(m0) > 1: st.put(g-3, m0[1])
                for i in ins:
                    st.put(g, i); g += dg
            rd = reads(kk ^ 1, buf ^ 1) if not last else [f"ds_read_b128 {ar(FR(f),4)}, v{vRD} offset:{f*1024}" for f in range(12)]
            for i, r in enumerate(rd): st.put(i*2, r)
            if kk == 0:
                if it < 15:
                    for g, x in zip((10, 14, 15, 16, 18), [f"s_add_u32 s{gCNT}, s{gCNT}, 1", f"s_cmp_eq_u32 s{gCNT}, 3", f"s_cselect_b32 s{gD}, 2, -1",
                             f"s_cselect_b32 s{gCNT}, 0, s{gCNT}", f"s_lshl_b32 s{gD}, s{gD}, 16"]): st.put(g, x)
                    st.scc_busy |= {14, 15}
                    for i, x in enumerate([f"v_subrev_u32 v{RA[0]}, s{gD}, v{RA[0]}", f"v_subrev_u32 v{RA[1]}, s{gD}, v{RA[1]}"] + [f"v_xor_b32 v{r}, 0x10000, v{r}" for r in RB]):
                        st.put(48 + 2*(i >> 1), x)
            else:
                if it < 13:
                    for g, x in zip((6, 10, 11, 14, 15, 18), advA): st.put(g, x)
                    st.scc_busy |= {14}
                    for g, x in zip((30, 34, 38), advB): st.put(g, x)
                if loop:
                    for g, x in zip((46, 47, 49, 50, 51, 52, 57, 58, 60),
                            [f"s_cmp_eq_u32 s{gIT}, s{gFL}", f"s_cselect_b32 s{sT+1}, 0, {OOB}",
                             f"buffer_atomic_add v{vONE}, v{vFLG}, {sr(sDBG,4)}, s{sT+1} offen sc1",
                             f"s_sub_u32 s{sT+1}, s{gIT}, 5", f"s_cmp_eq_u32 s{sT+1}, s{gFL}", f"s_cselect_b32 s{sT+1}, 0, {OOB}",
                             f"buffer_load_dword v{vPOLL}, v{vFLG}, {sr(sDBG,4)}, s{sT+1} offen sc1 ; @prep",
                             f"s_add_u32 s{gIT}, s{gIT}, 1", f"s_cmp_lt_u32 s{gIT}, 13"]): st.put(g, x)
            if OPT["fine"]:
                st.put(2, f"s_memrealtime s[{sFS}:{sFS+1}]")
                st.put(4, f"v_mov_b32_dpp v0, v0 wave_shr:1 row_mask:0xf bank_mask:0xf")
                st.put(46, f"v_writelane_b32 v0, s{sFS}, 0")
            return st
        ch = side_chain()
        wq = []
        for e in range(8):
            wq.append((f"s_add_u32 s{sJT}, s{sQO}, {e*8192}", 1))
            wq += [(f"buffer_load_short_d16{'_hi' if e & 1 else ''} a{(SLD+56 if e & 1 else SLD)+nt*4+(e>>1)}, v{vSW}, {G}, s{sJT} offen offset:{nt*32}", 1) for nt in range(4)]
        wq = Chain(wq)
        for it in range(4):
            for kk in range(2):
                st = substep(it, kk, ("B0", "Ab") if kk == 0 else ("B1", "Aa"))
                wq.fill(st)
                if (it, kk) == (1, 0):
                    assert not wq.items
                    st.put(62, f"s_load_dwordx2 s[{sG}:{sG+1}], s[0:1], 64")
                    st.put(63, f"s_mov_b32 s{sG+2}, 3584")
                if (it, kk) >= (1, 1): ch.fill(st)
                st.emit(a)
        assert not ch.items, len(ch.items)
        merge(f"L_loop{typ}", True)
        for kk in range(2):
            substep(5, kk, ("B0", "Ab") if kk == 0 else ("B1", "Aa"), loop=True).emit(a)
        a(f"s_cbranch_scc1 L_loop{typ}")
        J = Jobs()
        for i in range(20): xjob(J, "x1", i, XO1, 64, 5*64)
        for b in range(8):
            J.add("bias", None, f"buffer_load_dwordx4 {vr(BIAS+4*b,4)}, v{GT+16}, {G}, s{sT+3} offen offset:{(b>>1)*128+(b&1)*16} ; @bias", 5*64 if b in (2, 3) else 3*64, 5*64+20)
        su = Chain(setup)
        st = substep(13, 0, ("B0", "Ab"))
        st.put(54, "s_waitcnt vmcnt(@since:prep)")
        st.put(54, f"v_readfirstlane_b32 s{sT+1}, v{vPOLL}")
        st.put(56, f"s_lshl_b32 s{sT+4}, s{sWAVE}, 8")
        st.put(58, f"s_add_u32 s{sT+1}, s{sT+1}, s{sT+4}")
        st.put(59, f"s_cmp_lt_u32 s{sT+1}, 256")
        st.put(60, f"s_cbranch_scc1 L_prepwait{typ}")
        st.put(60, f"L_prepok{typ}:")
        st.put(56, f"v_lshrrev_b32 v{GT+16}, 4, v{vLANE}")
        st.put(56, f"v_lshlrev_b32 v{GT+16}, 5, v{GT+16}")
        su.fill(st, 0, 52); st.emit(a)
        for n, (it, kk, grp) in enumerate([(13, 1, ("B1", 0)), (14, 0, (1, 2)), (14, 1, (3, 4)), (15, 0, (5, 6))]):
            st = substep(it, kk, grp); J.place(st, n+1, 7); su.fill(st); st.emit(a)
            if n == 1: assert not su.items
        st = substep(15, 1, (7,))
        J.place(st, 5, 2, [1, 9]); assert not J.jobs
        SG = [25, 33, 41, 49, 57, 61]
        for c in range(NE): kvjob(J, c, SG[c], SG[c])
        J.place(st, 0, 8, SG); assert not J.jobs
        su = Chain(setup2); su.fill(st, 30); assert not su.items
        slot_of = {pos(m, n): m*8+n for m in range(8) for n in range(8)}
        pk = []
        for c in range(32):
            e = max(slot_of[2*c], slot_of[2*c+1]) + 3
            if 20 <= c < 20+NE: e = max(e, SG[c-20]+2)
            src = []
            for h in range(2):
                p = 2*c+h
                if p < 52: src += [48+4*p+i for i in range(4)]
                else:
                    for i in range(4):
                        pk.append((f"v_accvgpr_read_b32 v{128+(p-52)*4+i}, a{208+4*(p-52)+i}", 0, e)); src.append(128+(p-52)*4+i)
            for i in range(4): pk.append((f"v_cvt_pk_bf16_f32 v{PK(c)+i}, v{src[2*i]}, v{src[2*i+1]}", 0, e))
        pk = Chain(pk); pk.fill(st)
        for c in range(NE):
            w = [g for g, v in st.fill.items() if any(x.startswith(f"v_cvt_pk_bf16_f32 v{PK(c)+3},") for x in v)]
            assert min(w) < SG[c], (c, w)
        st.emit(a)
        a("s_nop 3")
        print("pack tail", len(pk.items), file=sys.stderr)
        pk.flush(a)
        a("s_waitcnt vmcnt(@since:bias) lgkmcnt(8)")
        a(f"s_cmp_eq_u32 s{sTYPE}, 0")
        a("s_cbranch_scc0 L_P1B")
        if typ == "K": a("s_branch L_P1A")
    def unpack(nt):
        o = []
        for r in range(4):
            x = 4*r + (nt & 3); src = BIAS + (nt >> 2)*8 + (x >> 1)
            o.append(f"v_and_b32 v{O(nt,1)+r}, 0xffff0000, v{src}" if x & 1 else f"v_lshlrev_b32 v{O(nt,1)+r}, 16, v{src}")
        return o
    def p1_jobs():
        J = Jobs()
        for c in range(20+NE, 32): kvjob(J, c, 0, XG[c-20-NE])
        for k, c in enumerate(range(NE, 20+NE)): kvjob(J, c, 64+k*OPT["kvstep"], 72+k*OPT["kvstep"])
        for i in range(20, 28): xjob(J, f"x1{i>>2}", i, XO1, (i >> 2)*64 - 134, (i >> 2)*64 - 70)
        return J
    def xwait(st, key): st.put(62, f"s_waitcnt vmcnt(@since:{key})")
    def flagjob(J, key, after, soff, delay):
        if key in J.at or any(j[5] in (after, key) for j in J.jobs): return
        t = J.at[after] + delay
        J.add(key, f"s_waitcnt vmcnt(@since:{after})", f"buffer_store_dword v{vONE}, v{vFLG}, {WS}, s{soff} offen sc1", t, t+8)
    def split_chain(items, st_prev, mk_next, late_of):
        ch = Chain(items); ch.fill(st_prev)
        rest = ch.items
        for k in range(len(rest)+1):
            st = mk_next()
            c2 = Chain([(x[0], x[1]) for x in rest[k:]])
            before = {gg: len(v) for gg, v in st.fill.items()}
            c2.fill(st)
            if c2.items: continue
            where = {}
            for gg, v in st.fill.items():
                for ins in v[before.get(gg, 0):]: where[ins] = gg
            if all(where[x[0]] <= late_of(x[3]) for x in rest[k:]):
                return rest[:k], st
        raise AssertionError
    def emit_mid(mid):
        if mid: a("s_nop 3")
        Chain(mid).flush(a)
        if mid: a("s_nop 1")
    def post_groups(s, scale):
        out = []
        for qt in range(2):
            for p in range(2):
                t = vT + 16 + (qt*2+p)*4
                regs = [PA(s & 1, nt, qt) + 2*p + rr for rr in range(2) for nt in range(4)]
                ops = [f"v_mul_f32 v{r}, v{vRINV[qt]}, v{r}" for r in regs] if scale else []
                ops += [f"v_cvt_pk_bf16_f32 v{t+i}, v{regs[2*i]}, v{regs[2*i+1]}" for i in range(4)]
                out.append((ops, t))
        return out
    def post_store(s, k, t, base):
        return f"s_add_u32 s{sJT}, s{base}, {s*4096+k*1024}", f"buffer_store_dwordx4 {vr(t,4)}, v{vL16}, {WS}, s{sJT} offen sc1 ; @ps"
    def post_place(st, s, scale, base, gaps):
        for k, (ops, t) in enumerate(post_groups(s, scale)):
            pre, ins = post_store(s, k, t, base)
            st.put(gaps[k]-1, pre); st.put(gaps[k], ins)
    def post_sched(st, s, scale, gaps):
        for k, (ops, t) in enumerate(post_groups(s, scale)):
            prev = None
            for x in ops: prev = st.add(x, [prev], 2, gaps[k]-1)
        st.schedule()
    def post_flush(s, scale, base):
        a("s_nop 5")
        for k, (ops, t) in enumerate(post_groups(s, scale)):
            for x in ops: a(x)
            for x in post_store(s, k, t, base): a(x)
    def mk_post(s):
        st = Stage(mf_post(s)); common_fill(st); return st
    def poll_issue(st, g, voff, soff, tag):
        st.put(g, f"buffer_load_dword v{vPOLL}, v{voff}, {WS}, s{soff} offen sc1 ; @{tag}")
    POLLS = []
    def poll_check(st, g, voff, soff, tag, lane0):
        st.put(g, f"s_waitcnt vmcnt(@since:{tag})")
        st.put(g, f"v_cmp_{'eq' if lane0 else 'ne'}_u32 vcc, 1, v{vPOLL}")
        st.put(g+2, f"s_cbranch_vcc{'z' if lane0 else 'nz'} L_pw_{tag}")
        st.put(g+2, f"L_po_{tag}:")
        POLLS.append((tag, voff, soff, lane0))
    XG2 = sorted(XG + [3, 11, 19, 27, 43, 51, 59])
    merge("L_P1A")
    stamp(2)
    for x in unpack(0): a(x)
    a("s_nop 1")
    J = p1_jobs()
    for s in range(6):
        st = Stage(mf_proj(s, "bias" if s == 0 else None)); common_fill(st)
        flagjob(J, "kvf", "kv", sFKV, OPT["fdelay"])
        J.place(st, s, OPT["cap"])
        if s == 0:
            for nt in range(1, 16):
                e = XG[2*(nt-13)+1]+2 if nt >= 13 else 0
                for x in unpack(nt): st.add(x, [], e, 4*nt-3)
            st.schedule()
        if s >= 4: xwait(st, f"x1{s+1}")
        st.emit(a)
    st = Stage(mf_proj(6)); common_fill(st)
    flagjob(J, "kvf", "kv", sFKV, OPT["fdelay"]); J.place(st, 6, OPT["cap"])
    items = []
    for ud in range(8):
        for qt in range(2):
            regs = [O(2*ud,qt)+i for i in range(4)] + [O(2*ud+1,qt)+i for i in range(4)]
            e = 8*ud+7+3
            for r in regs: items.append((f"v_mul_f32 v{r}, |v{r}|, v{r}", 0, e, ud))
            for i in range(4): items.append((f"v_cvt_pk_bf16_f32 v{regs[i]}, v{regs[2*i]}, v{regs[2*i+1]}", 0, e, ud))
            for i in range(4): items.append((f"v_pk_max_i16 v{regs[i]}, v{regs[i]}, 0", 0, e, ud))
    import copy
    def mk0():
        st = mk_post(0); J2 = copy.deepcopy(J); J2.place(st, 7, OPT["cap"]); assert not J2.jobs; return st
    mid, st0 = split_chain(items, st, mk0, lambda ud: 8*ud-3)
    print("H mid", len(mid), "kv last", J.at["kv"], file=sys.stderr)
    st.emit(a); emit_mid(mid)
    stamp(3)
    J = Jobs()
    for i in range(16):
        J.add("ql", f"s_add_u32 s{sJT}, s{sQST}, {i*1024}", f"buffer_load_dwordx4 {ar(4*i,4)}, v{vL16}, {WS}, s{sJT} offen sc1 ; @ql", 4*64+46, 6*64+36-(15-i)*4)
    for s in range(7):
        st = st0 if s == 0 else mk_post(s)
        if s == 2: poll_issue(st, 3, vL4, sFKVP, "kva"); poll_check(st, 58, vL4, sFKVP, "kva", False)
        if s == 3: poll_issue(st, 51, vFLG, sFQ, "qa")
        if s == 4: poll_check(st, 42, vFLG, sFQ, "qa", True)
        gaps = [9, 25, 41, 57] if s < 6 else [41, 49, 57, 59]
        if s >= 1: post_place(st, s-1, False, sPSG, gaps)
        J.place(st, s, 7, XG2)
        if s >= 1: post_sched(st, s-1, False, gaps)
        st.emit(a)
    assert not J.jobs
    def mk_F(qb, tag, pre=None):
        st = Stage(mf_qk(0, 0, qb, True) + mf_qk(1, 1, qb, True)); common_fill(st)
        if pre: pre(st)
        place_sm(st, 0, 35, 62, tag, ladd=False, first=True)
        st.schedule()
        return st
    def finit():
        return [(f"v_mov_b64 {vr(NEGM(0)+2*i,2)}, 0", 0) for i in range(4)] + [(f"v_mov_b64 {vr(vL[0],2)}, 0", 0),
                (f"v_mov_b32 v{vBIG}, {f2u(-1e30):#x}", 0), (f"s_mov_b32 s{sFIRST}, 1", 1), (f"s_mov_b32 s{sCLAMP}, {f2u(-3e38):#x}", 1)]
    def f_end(tag, nxt, endl):
        a(f"s_cbranch_vccnz L_fchk_{tag}")
        a.label(f"L_fok_{tag}")
        STUBS.append((f"L_fchk_{tag}", "L_fchk", f"L_fok_{tag}"))
        a(f"s_mov_b32 s{sFIRST}, 0")
        a(f"s_mov_b32 s{sCLAMP}, 0")
        a(f"s_cmp_eq_u32 s{sCNT}, 0")
        a(f"s_cbranch_scc1 {endl}")
        if nxt: a(f"s_branch {nxt}")
    a("s_nop 5")
    for ops, t in post_groups(6, False):
        for x in ops: a(x)
    a("s_waitcnt vmcnt(@since:ql)")
    stamp(4)
    st = mk_F(0, "fa1", lambda st: post_place(st, 6, False, sPSG, [1, 9, 17, 25]))
    c = Chain(finit()); c.fill(st, 0, 30); assert not c.items
    st.emit(a)
    f_end("fa1", "L_s1z0", "L_u2")
    merge("L_P1B")
    stamp(2)
    J = p1_jobs()
    for i in range(28):
        p = i >> 2
        xjob(J, f"x2{p}", i, XO2, (p+1)*64, (7+p)*64 - 70)
    for i in range(16):
        qt, ud = i & 1, i >> 1
        J.add("qs", f"s_add_u32 s{sJT}, s{sQST}, {(qt*8+ud)*1024}", f"buffer_store_dwordx4 {ar(Q(0,qt,ud),4)}, v{vL16}, {WS}, s{sJT} offen{OPT['kvsc']} ; @qs",
              7*64 if ud < 5 else 8*64, 7*64+20+i*OPT["qstep"])
    def bstage(gs):
        s = gs % 7
        st = Stage(mf_proj(s, "zero" if s == 0 else None)); common_fill(st)
        if gs == 9: poll_issue(st, 3, vL4, sFKVP, "kvb"); poll_check(st, 58, vL4, sFKVP, "kvb", False)
        flagjob(J, "kvf", "kv", sFKV, OPT["fdelay"]); flagjob(J, "qf", "qs", sFQ, 72)
        if gs in (7, 8): J.place(st, gs, OPT["capq"], XG2)
        else: J.place(st, gs, OPT["capb"])
        if gs in (4, 5): xwait(st, f"x1{gs+1}")
        if 6 <= gs < 13: xwait(st, f"x2{gs-6}")
        return st
    for gs in range(6): bstage(gs).emit(a)
    def q_items(qb):
        items = []; cnt = 0
        for ud in range(8):
            for qt in range(2):
                regs = [O(2*ud,qt)+i for i in range(4)] + [O(2*ud+1,qt)+i for i in range(4)]
                e = 8*ud+7+3
                t = vT + 16 + (cnt % 4)*4; cnt += 1
                for r in regs: items.append((f"v_mul_f32 v{r}, s{sT+7}, v{r}", 0, e, ud))
                for i in range(4): items.append((f"v_cvt_pk_bf16_f32 v{t+i}, v{regs[2*i]}, v{regs[2*i+1]}", 0, e, ud))
                for i in range(4): items.append((f"v_accvgpr_write_b32 a{Q(qb,qt,ud)+i}, v{t+i}", 0, e, 99 if ud >= 5 else -1))
        return items
    st = bstage(6); st7 = bstage(7)
    mid, st0 = split_chain(q_items(0), st, lambda: copy.deepcopy(st7), lambda ud: 8*ud-1)
    print("E1 mid", len(mid), file=sys.stderr)
    st.emit(a); emit_mid(mid)
    stamp(3)
    st0.emit(a)
    for gs in range(8, 13): bstage(gs).emit(a)
    st = bstage(13)
    assert not J.jobs
    print("B jobs", {k: (v >> 6, v & 63) for k, v in J.at.items()}, file=sys.stderr)
    def mk_fa2():
        STUBS[:] = [x for x in STUBS if "fa2" not in x[0]]
        st = mk_F(0, "fa2"); c = Chain(finit()); c.fill(st, 0, 30); return st
    mid, st0 = split_chain(q_items(128), st, mk_fa2, lambda ud: 60)
    print("E2 mid", len(mid), file=sys.stderr)
    st.emit(a); emit_mid(mid)
    stamp(4)
    st0.emit(a)
    f_end("fa2", None, "L_u2")
    def steady(b, qb, tag, czero=False):
        st = Stage(mf_pv(0, b^1, czero) + mf_qk(1, b^1, qb)); common_fill(st)
        if b == 0:
            st.put(56, f"s_sub_u32 s{sCNT}, s{sCNT}, 1")
            st.put(58, f"s_cmp_lg_u32 s{sCNT}, s{sEV}")
            st.scc_busy |= set(range(58, 64))
        place_sm(st, b, 0, 62, tag); st.schedule()
        st.emit(a)
        a(f"s_cbranch_vccnz L_dorare_{tag}")
        a.label(f"L_norare_{tag}")
        STUBS.append((f"L_dorare_{tag}", f"L_rare{b}", f"L_norare_{tag}"))
    def loop(qb, n):
        merge(f"L_s1z{n}")
        steady(1, qb, f"z{n}", True)
        a(f"s_branch L_mid{n}")
        merge(f"L_steady{n}", True)
        steady(1, qb, f"s1{n}")
        merge(f"L_mid{n}")
        steady(0, qb, f"s0{n}")
        a(f"s_cbranch_scc1 L_steady{n}")
    loop(0, 0)
    a(f"s_cmp_eq_u32 s{sCNT}, 0")
    a("s_cbranch_scc1 L_end0")
    a(f"""
    s_add_u32 s{sFQ}, s{sFQ}, {FL_P - FL_Q}
    buffer_store_dword v{vONE}, v{vFLG}, {WS}, s{sFSG} offen sc1
    buffer_load_dword v{vPOLL}, v{vFLG}, {WS}, s{sFQ} offen sc1
    s_mov_b32 s{sEV}, 0
    s_branch L_steady0
    """)
    a.label("L_u2")
    for i in range(64): a(f"v_mov_b64 {vr(O0+2*i,2)}, 0")
    merge("L_end0")
    a(f"s_cmp_eq_u32 s{sTYPE}, 2")
    a("s_cbranch_scc1 L_lpack")
    a(f"""
    s_waitcnt vmcnt(16)
    v_cmp_ne_u32 vcc, 1, v{vPOLL}
    s_add_u32 s{sT+3}, s{sPT}, 16384
    s_nop 0
    s_bitcmp1_b32 vcc_lo, 0
    s_cbranch_scc1 L_pw_pt
    """)
    a.label("L_po_pt")
    POLLS.append(("pt", vFLG, sFQ, True))
    a(f"buffer_load_dwordx4 {vr(vSTB,4)}, v{vL16}, {WS}, s{sT+3} offen sc1")
    for i in range(16):
        if i % 4 == 0: a(f"s_add_u32 s{sT+3}, s{sPT}, {i*1024}")
        a(f"buffer_load_dwordx4 {ar(128+4*i,4)}, v{vL16}, {WS}, s{sT+3} offen offset:{(i&3)*1024} sc1 ; @ptl")
    def pack_items(e0, step):
        items = []
        for ud in range(8):
            for qt in range(2):
                regs = [O(2*ud,qt)+i for i in range(4)] + [O(2*ud+1,qt)+i for i in range(4)]
                for i in range(4): items.append((f"v_cvt_pk_bf16_f32 v{regs[i]}, v{regs[2*i]}, v{regs[2*i+1]}", 0, e0+step*ud, ud))
        return items
    def mk_L(tag):
        st = Stage(mf_pv(0, 0) + mf_pv(1, 1)); common_fill(st)
        place_sm(st, 1, 0, 30, tag); st.schedule()
        st.put_post(31, f"s_cbranch_vccnz L_dorare_{tag}")
        st.put_post(31, f"L_norare_{tag}:")
        STUBS.append((f"L_dorare_{tag}", "L_rare1", f"L_norare_{tag}"))
        st.put(32, f"v_add_f32 v{vL[0]}, v{vL[0]}, v{vSUM[0][0]}")
        st.put(34, f"v_add_f32 v{vL[1]}, v{vL[1]}, v{vSUM[1][0]}")
        return st
    st = mk_L("ln")
    c = [(f"v_bfe_u32 v{vT+20}, v{vLANE}, 2, 2", 0), (f"v_lshrrev_b32 v{vT+21}, 4, v{vLANE}", 0), (f"v_cmp_eq_u32 s[{sT+4}:{sT+5}], v{vT+20}, v{vT+21}", 0),
         (f"v_and_b32 v{vT+20}, 3, v{vLANE}", 0), (f"v_lshlrev_b32 v{vT+20}, 4, v{vT+20}", 0), (f"v_mov_b32 v{vT+22}, 0x3f80", 0), (f"v_mov_b32 v{vT+23}, 0", 0),
         (f"v_cndmask_b32 v{vT+22}, 0, v{vT+22}, s[{sT+4}:{sT+5}]", 1), (f"v_lshlrev_b64 {vr(vSEL+2,2)}, v{vT+20}, {vr(vT+22,2)}", 0),
         (f"v_mov_b64 {vr(vSEL,2)}, 0", 0), (f"v_mov_b64 {vr(vSEL+4,2)}, 0", 0),
         ("s_waitcnt vmcnt(@since:ptl)", 1, 55),
         (f"v_cmp_neq_f32 vcc, v{NEGM(0)}, v{vSTB}", 1), (f"v_cmp_neq_f32 s[{sT+4}:{sT+5}], v{NEGM(1)}, v{vSTB+1}", 0)]
    c = Chain(c); c.fill(st, 35); assert not c.items
    st.emit(a)
    a(f"s_or_b64 vcc, vcc, s[{sT+4}:{sT+5}]")
    a("s_cbranch_scc1 L_slowcomb")
    a.label("L_comb")
    stamp(5)
    mf = []
    for ud in range(8):
        for h in range(2):
            for qt in range(2):
                d = vr(O(2*ud+h,qt),4)
                mf.append(f"{MF} {d}, {vr(vSEL+2-2*h,4)}, {ar(128+(ud*2+qt)*4,4)}, {d}")
    st = Stage(mf)
    st.put(0, f"v_add_f32 v{vL[0]}, v{vL[0]}, v{vSTB+2}")
    st.put(0, f"v_add_f32 v{vL[1]}, v{vL[1]}, v{vSTB+3}")
    c = Chain(pack_items(6, 4)); c.fill(st, 0, 31)
    st.emit(a)
    a("s_nop 5")
    c.flush(a)
    a("s_branch L_post2")
    merge("L_lpack")
    st = mk_L("lp")
    c = Chain([(f"v_mov_b32 v{vSTAT}, v{NEGM(0)}", 0), (f"v_mov_b32 v{vSTAT+1}, v{NEGM(1)}", 0), (f"v_mov_b64 {vr(vSTAT+2,2)}, {vr(vL[0],2)}", 0)] + pack_items(38, 4))
    c.fill(st, 35)
    st.put(62, f"s_cmp_eq_u32 s{sTYPE}, 2")
    st.emit(a)
    a("s_nop 5")
    print("Lpack tail", len(c.items), file=sys.stderr)
    c.flush(a)
    a("s_cbranch_scc0 L_post2b")
    stamp(5)
    a(f"""
    s_mov_b32 s{sTYPE}, 3
    s_mov_b32 s{sN}, 0
    s_sub_u32 s{sND}, 15, s{sQI}
    s_lshl_b32 s{sND}, s{sND}, 2
    s_add_u32 s{sND}, s{sND}, s{sWAVE}
    s_lshr_b32 s{sCNT}, s{sU2}, 1
    s_sub_u32 s{sCNT}, s{sCNT}, 1
    s_sub_u32 s{sEV}, s{sCNT}, 1
    s_add_u32 s{sFQ}, s{sFQ}, {FL_P - FL_Q}
    s_add_u32 s{sT+3}, s{sPT}, 16384
    buffer_store_dwordx4 {vr(vSTAT,4)}, v{vL16}, {WS}, s{sT+3} offen sc1
    """)
    st = mk_F(128, "fb")
    c = []
    for i in range(16):
        if i % 4 == 0: c.append((f"s_add_u32 s{sT+3}, s{sPT}, {i*1024}", 1))
        c.append((f"buffer_store_dwordx4 {vr(O(2*(i>>1),i&1),4)}, v{vL16}, {WS}, s{sT+3} offen offset:{(i&3)*1024}{OPT['kvsc']}", 1))
    c = Chain(c); c.fill(st)
    c2 = Chain(finit()); c2.fill(st, 0, 30); assert not c2.items
    print("Fb leftover", len(c.items), file=sys.stderr)
    st.emit(a)
    c.flush(a)
    f_end("fb", None, "L_end")
    loop(128, 1)
    a(f"""
    s_cmp_eq_u32 s{sTYPE}, 3
    s_cbranch_scc0 L_lpack
    s_waitcnt vmcnt(16)
    buffer_store_dword v{vONE}, v{vFLG}, {WS}, s{sFQ} offen sc1
    s_mov_b32 s{sTYPE}, 4
    s_mov_b32 s{sEV}, 0
    s_cmp_eq_u32 s{sCNT}, 0
    s_cbranch_scc1 L_lpack
    s_branch L_steady1
    """)
    a.label("L_post2b")
    merge("L_post2")
    stamp(6)
    a("s_nop 1")
    C0, CO, FP = sU1, sU2, sW0
    XO = [sCNT, sEV]; BO = [sN, sND]
    vXO, vBO, vC1, vFG, vFS = 44, 45, 46, 47, 48
    fs = f"""
    s_load_dwordx2 s[{sSA}:{sSA+1}], s[0:1], 0
    s_load_dwordx2 s[{sG}:{sG+1}], s[0:1], 80
    s_load_dwordx2 s[{sSB}:{sSB+1}], s[0:1], 88
    s_mov_b32 s{sSA+2}, {2048*896}
    s_mov_b32 s{sSB+2}, {2048*896}
    s_mov_b32 s{sG+2}, 896
    s_and_b32 s{C0}, s2, 3
    s_mul_i32 s{C0}, s{C0}, 7
    s_lshl_b32 s{sT}, s{sWAVE}, 1
    s_add_u32 s{C0}, s{C0}, s{sT}
    s_lshr_b32 s{sT}, s2, 4
    s_mul_i32 s{CO}, s{sT}, {PS_R}
    s_bfe_u32 s{sT+4}, s2, 0x20002
    s_mul_i32 s{sT+5}, s{sT+4}, {28*1024}
    s_add_u32 s{CO}, s{CO}, s{sT+5}
    s_lshl_b32 s{sT+5}, s{C0}, 10
    s_add_u32 s{CO}, s{CO}, s{sT+5}
    s_add_u32 s{CO}, s{CO}, {WS_PS}
    s_lshr_b32 s{FP}, s2, 2
    s_lshl_b32 s{FP}, s{FP}, 7
    s_add_u32 s{FP}, s{FP}, {WS_FLG + FL_S}
    v_min_u32 v{vFG}, 6, v{vLANE}
    v_lshl_add_u32 v{vFG}, v{vFG}, 2, 64
    v_and_b32 v{vXO}, 15, v{vLANE}
    v_lshlrev_b32 v{vFS}, 2, v{vXO}
    s_lshr_b32 s{sT+5}, s2, 2
    s_lshl_b32 s{sT+5}, s{sT+5}, 5
    v_add_u32 v{vXO}, s{sT+5}, v{vXO}
    v_mul_u32_u24 v{vXO}, 896, v{vXO}
    v_and_b32 v{vBO}, 48, v{vLANE}
    v_lshlrev_b32 v{vBO}, 1, v{vBO}
    v_add_u32 v{vXO}, v{vXO}, v{vBO}
    """
    for k in range(2):
        fs += f"""
        s_add_u32 s{sT}, s{C0}, {k}
        s_lshr_b32 s{sT+4}, s{sT}, 2
        s_lshl_b32 s{BO[k]}, s{sT+4}, 7
        s_and_b32 s{sT+4}, s{sT}, 1
        s_lshl_b32 s{sT+4}, s{sT+4}, 4
        s_add_u32 s{BO[k]}, s{BO[k]}, s{sT+4}
        s_bfe_u32 s{sT+4}, s{sT}, 0x10001
        s_mul_i32 s{XO[k]}, s{sT+4}, {16*896}
        s_add_u32 s{XO[k]}, s{XO[k]}, s{BO[k]}
        """
    fs = [(x.strip(), 1) for x in fs.split("\n") if x.strip()]
    fs.append((f"s_cmp_eq_u32 s{sWAVE}, 3\ns_cselect_b32 s{XO[1]}, {OOB}, s{XO[1]}\ns_cselect_b32 s{sT+4}, {OOB}, 0", 1))
    fs.append((f"v_add_u32 v{vC1}, s{sT+4}, v{vL16}", 1))
    fs = Chain(fs)
    J = Jobs()
    GL = 128
    for k in range(2):
        J.add("gl", None, f"buffer_load_dwordx4 {ar(GL+56+4*k,4)}, v{vXO}, {sr(sSA,4)}, s{XO[k]} offen", 3*64, 7*64)
        J.add("gl", None, f"buffer_load_dwordx4 {ar(GL+64+4*k,4)}, v{vBO}, {G}, s{BO[k]} offen", 3*64, 7*64)
    for n in range(7):
        for k in range(2):
            J.add("gl", f"s_add_u32 s{sJT}, s{CO}, {(16+n)*PS_SRC}", f"buffer_load_dwordx4 {ar(GL+n*8+4*k,4)}, v{(vL16, vC1)[k]}, {WS}, s{sJT} offen offset:{k*1024} sc1 ; @gl", 4*64, 7*64)
    for s in range(7):
        st = Stage(mf_post(s)); common_fill(st, dma=(s < 3), nd=(None, None, None, 16, 8, 0, 0)[s], last=(s == 6))
        if s == 0:
            c = xlane_ops("v_add_f32", vL[0], vT) + xlane_ops("v_add_f32", vL[1], vT) + [(f"v_rcp_f32 v{vRINV[0]}, v{vL[0]}", 0), (f"v_rcp_f32 v{vRINV[1]}, v{vL[1]}", 1)]
            c = Chain(c); c.fill(st); assert not c.items
            fs.fill(st)
        else:
            gaps = [17, 33, 49, 57]
            post_place(st, s-1, True, sPSS, gaps)
            if s == 2: st.put(60, "s_waitcnt lgkmcnt(0)")
            if s == 2: poll_issue(st, 41, vFG, FP, "gf")
            if s == 3: poll_check(st, 58, vFG, FP, "gf", False)
            J.place(st, s, 7, [1, 9, 13, 25, 29, 41, 45, 61])
            post_sched(st, s-1, True, gaps)
            fs.fill(st)
            if s == 1: assert not fs.items
        st.emit(a)
    assert not J.jobs
    post_flush(6, True, sPSS)
    stamp(7)
    a(f"s_mov_b32 s{sT+4}, 0x00003f80")
    a(f"s_mov_b32 s{sT+5}, 0x3f800000")
    a(f"s_mov_b32 s{sT+6}, 0xffff0000")
    a(f"s_mov_b32 s{sT+7}, {f2u(-1.4426950408889634):#x}")
    LB = 128; TB = 64
    XB, BB = TB+56, 52
    GA, SA_ = 12, 28
    a("s_waitcnt vmcnt(@since:gl)")
    for i in range(64): a(f"v_accvgpr_read_b32 v{TB+i}, a{GL+i}")
    for i in range(8): a(f"v_accvgpr_read_b32 v{BB+i}, a{GL+64+i}")
    def accum(base, acc, first):
        for i in range(8):
            r = base+i
            if first:
                a(f"v_lshlrev_b32 v{acc+2*i}, 16, v{r}"); a(f"v_and_b32 v{acc+2*i+1}, s{sT+6}, v{r}")
            else:
                a(f"v_dot2_f32_bf16 v{acc+2*i}, v{r}, s{sT+4}, v{acc+2*i}"); a(f"v_dot2_f32_bf16 v{acc+2*i+1}, v{r}, s{sT+5}, v{acc+2*i+1}")
    def rnd_pair(r0, r1, t):
        a(f"v_cvt_pk_bf16_f32 v{t}, v{r0}, v{r1}")
        a(f"v_lshlrev_b32 v{r0}, 16, v{t}")
        a(f"v_and_b32 v{r1}, s{sT+6}, v{t}")
    for n in range(7): accum(TB+n*8, GA, n == 0)
    a("s_waitcnt vmcnt(0)")
    a(f"buffer_store_dword v{vONE}, v{vFLG}, {WS}, s{sFSS} offen sc1")
    a("s_nop 0")
    T1, T2, T3 = 2, 3, 4
    for i in range(8):
        g0, g1 = GA+2*i, GA+2*i+1
        rnd_pair(g0, g1, T1)
        a(f"v_lshlrev_b32 v{T2}, 16, v{BB+i}")
        a(f"v_and_b32 v{T3}, s{sT+6}, v{BB+i}")
        a(f"v_add_f32 v{g0}, v{g0}, v{T2}")
        a(f"v_add_f32 v{g1}, v{g1}, v{T3}")
        rnd_pair(g0, g1, T1)
        a(f"v_mul_f32 v{T2}, s{sT+7}, v{g0}")
        a(f"v_mul_f32 v{T3}, s{sT+7}, v{g1}")
        a(f"v_exp_f32 v{T2}, v{T2}")
        a(f"v_exp_f32 v{T3}, v{T3}")
        a("s_nop 0")
        a(f"v_add_f32 v{T2}, 1.0, v{T2}")
        a(f"v_add_f32 v{T3}, 1.0, v{T3}")
        a(f"v_rcp_f32 v{T2}, v{T2}")
        a(f"v_rcp_f32 v{T3}, v{T3}")
        a("s_nop 0")
        a(f"v_mul_f32 v{g0}, v{g0}, v{T2}")
        a(f"v_mul_f32 v{g1}, v{g1}, v{T3}")
        rnd_pair(g0, g1, T1)
    a(f"s_mov_b32 s{sT+1}, 0")
    a(f"s_cmp_lg_u32 s{sWAVE}, 0")
    a("s_cbranch_scc1 L_fgo")
    a.label("L_fpoll")
    a(f"""
    buffer_load_dword v{vPOLL}, v{vFS}, {WS}, s{FP} offen sc1
    s_add_u32 s{sT+1}, s{sT+1}, 1
    s_waitcnt vmcnt(0)
    v_cmp_ne_u32 vcc, 1, v{vPOLL}
    s_cmp_lt_u32 s{sT+1}, 0x10000
    s_cbranch_vccz L_fgo
    s_sleep {OPT['fsleep']}
    s_cbranch_scc1 L_fpoll
    """)
    a.label("L_fgo")
    a("s_barrier")
    stamp(8)
    for n in range(16):
        a(f"s_add_u32 s{sT}, s{CO}, {n*PS_SRC}")
        a(f"buffer_load_dwordx4 {vr(LB+n*8,4)}, v{vL16}, {WS}, s{sT} offen sc1")
        a(f"buffer_load_dwordx4 {vr(LB+n*8+4,4)}, v{vC1}, {WS}, s{sT} offen offset:1024 sc1")
    for n in range(16):
        a(f"s_waitcnt vmcnt({2*(15-n)})")
        accum(LB+n*8, SA_, n == 0)
    a("s_nop 2")
    for i in range(8):
        g0, g1, s0, s1 = GA+2*i, GA+2*i+1, SA_+2*i, SA_+2*i+1
        rnd_pair(s0, s1, T1)
        a(f"v_mul_f32 v{g0}, v{g0}, v{s0}")
        a(f"v_mul_f32 v{g1}, v{g1}, v{s1}")
        rnd_pair(g0, g1, T1)
        a(f"v_lshlrev_b32 v{T2}, 16, v{XB+i}")
        a(f"v_and_b32 v{T3}, s{sT+6}, v{XB+i}")
        a(f"v_add_f32 v{g0}, v{g0}, v{T2}")
        a(f"v_add_f32 v{g1}, v{g1}, v{T3}")
        a(f"v_cvt_pk_bf16_f32 v{LB+i}, v{g0}, v{g1}")
        if i % 4 == 3: a(f"buffer_store_dwordx4 {vr(LB+i-3,4)}, v{vXO}, {sr(sSB,4)}, s{XO[i>>2]} offen")
    if stamps:
        a("s_waitcnt vmcnt(0)")
        stamp(9)
        a("s_waitcnt lgkmcnt(0)")
        for i in range(12): a(f"v_mov_b32 v{16+i}, s{streg(min(i,9))}")
        a(f"""
        s_lshl_b32 s{sT+1}, s2, 2
        s_add_u32 s{sT+1}, s{sT+1}, s{sWAVE}
        s_lshl_b32 s{sT+1}, s{sT+1}, 6
        s_add_u32 s{sT+1}, s{sT+1}, {WS_STAMP}
        buffer_store_dwordx4 v[16:19], v{vFLG}, {WS}, s{sT+1} offen
        buffer_store_dwordx4 v[20:23], v{vFLG}, {WS}, s{sT+1} offen offset:16
        buffer_store_dwordx4 v[24:27], v{vFLG}, {WS}, s{sT+1} offen offset:32
        s_sub_u32 s{sT+1}, s{sT+1}, {WS_STAMP}
        s_lshl_b32 s{sT+1}, s{sT+1}, 3
        s_add_u32 s{sT+1}, s{sT+1}, {WS_STAMP + 0x100000}
        v_lshlrev_b32 v2, 2, v{vLANE}
        buffer_store_dword v0, v2, {WS}, s{sT+1} offen
        buffer_store_dword v{vKV}, v2, {WS}, s{sT+1} offen offset:256
        """)
    a.label("L_end")
    a("s_endpgm")
    for typ in ("K", "V"):
        a.label(f"L_prepwait{typ}")
        a(f"s_mov_b32 s{sT+2}, 0")
        a.label(f"L_prepw2{typ}")
        a(f"""
        s_sleep 4
        buffer_load_dword v{vPOLL}, v{vFLG}, {sr(sDBG,4)}, 0 offen sc1
        s_add_u32 s{sT+2}, s{sT+2}, 1
        s_waitcnt vmcnt(0)
        v_readfirstlane_b32 s{sT+1}, v{vPOLL}
        s_cmp_ge_u32 s{sT+2}, 0x10000
        s_cbranch_scc1 L_prepok{typ}
        s_cmp_lt_u32 s{sT+1}, 256
        s_cbranch_scc1 L_prepw2{typ}
        s_branch L_prepok{typ}
        """)
    for (tag, voff, soff, lane0) in POLLS:
        a.label(f"L_pw_{tag}")
        a(f"s_mov_b32 s{sT+1}, 0")
        a.label(f"L_pw2_{tag}")
        a(f"""
        buffer_load_dword v{vPOLL}, v{voff}, {WS}, s{soff} offen sc1
        s_add_u32 s{sT+1}, s{sT+1}, 1
        s_waitcnt vmcnt(0)
        v_cmp_ne_u32 vcc, 1, v{vPOLL}
        s_cmp_ge_u32 s{sT+1}, 0x10000
        s_cbranch_scc1 L_po_{tag}
        """)
        if lane0:
            a("s_bitcmp1_b32 vcc_lo, 0")
            a(f"s_cbranch_scc1 L_pw2_{tag}")
        else:
            a(f"s_cbranch_vccnz L_pw2_{tag}")
        a(f"s_branch L_po_{tag}")
    for (lab, sub, back) in STUBS:
        a.label(lab)
        a(f"s_call_b64 s[{sRET}:{sRET+1}], {sub}")
        a(f"s_branch {back}")
    for b in range(2):
        a.label(f"L_mask{b}")
        a("s_nop 7")
        a(f"s_cmp_eq_u32 s{sN}, s{sND}")
        a(f"s_cbranch_scc0 L_maskall{b}")
        for r in range(4):
            a(f"v_cndmask_b32 v{S(b,0,0)+r}, v{S(b,0,0)+r}, v{vBIG}, s[{sMASK+2*r}:{sMASK+2*r+1}]")
            a(f"v_cndmask_b32 v{S(b,1,1)+r}, v{S(b,1,1)+r}, v{vBIG}, s[{sMASK+2*r}:{sMASK+2*r+1}]")
            a(f"v_mov_b32 v{S(b,1,0)+r}, v{vBIG}")
        a(f"s_setpc_b64 s[{sRET}:{sRET+1}]")
        a.label(f"L_maskall{b}")
        for i in range(16): a(f"v_mov_b32 v{S(b,0,0)+i}, v{vBIG}")
        a(f"s_setpc_b64 s[{sRET}:{sRET+1}]")
    a.label("L_fchk")
    hi, lo = f2u(2.0**OPT["thr"]), f2u(2.0**-OPT["thr"])
    a(f"s_add_u32 s{sT+1}, s{sND}, 1")
    a(f"s_cmp_gt_u32 s{sN}, s{sT+1}")
    a("s_cbranch_scc1 L_fret")
    for qt in range(2):
        a(f"v_mov_b32 v{vT+8+qt}, v{vSUM[qt][0]}")
        xlane(a, "v_add_f32", vT+8+qt, vT)
        a(f"v_subrev_u32 v{vT+8+qt}, {lo:#x}, v{vT+8+qt}")
    a(f"v_max_u32 v{vT+8}, v{vT+8}, v{vT+9}")
    a(f"v_cmp_lt_u32 vcc, {hi-lo:#x}, v{vT+8}")
    a("s_nop 4")
    a("s_cbranch_vccnz L_rare0")
    a.label("L_fret")
    a(f"s_setpc_b64 s[{sRET}:{sRET+1}]")
    for b in range(2):
        a.label(f"L_rare{b}")
        a("s_nop 7")
        D = [vT+8, vT+9]; F = [vT+10, vT+11]
        for qt in range(2):
            r0, r1 = S(b,0,qt), S(b,1,qt)
            a(f"v_max3_f32 v{D[qt]}, v{r0}, v{r0+1}, v{r0+2}")
            a(f"v_max3_f32 v{D[qt]}, v{D[qt]}, v{r0+3}, v{r1}")
            a(f"v_max3_f32 v{D[qt]}, v{D[qt]}, v{r1+1}, v{r1+2}")
            a(f"v_max_f32 v{D[qt]}, v{D[qt]}, v{r1+3}")
            xlane(a, "v_max_f32", D[qt], vT)
            a(f"v_max_f32 v{D[qt]}, s{sCLAMP}, v{D[qt]}")
            a(f"v_max_f32 v{F[qt]}, 0, v{D[qt]}")
            a(f"v_exp_f32 v{F[qt]}, -v{F[qt]}")
            for i in range(4): a(f"v_sub_f32 v{NEGM(qt)+i}, v{NEGM(qt)+i}, v{D[qt]}")
            for bb in range(2):
                for kt in range(2):
                    for i in range(4): a(f"v_sub_f32 v{S(bb,kt,qt)+i}, v{S(bb,kt,qt)+i}, v{D[qt]}")
            a(f"v_mul_f32 v{vL[qt]}, v{F[qt]}, v{vL[qt]}")
        for o in sm_ops(b): a(o)
        a(f"s_cmp_eq_u32 s{sFIRST}, 1")
        a(f"s_cbranch_scc1 L_rare_ret{b}")
        for dt in range(16):
            for qt in range(2):
                for i in range(4): a(f"v_mul_f32 v{O(dt,qt)+i}, v{F[qt]}, v{O(dt,qt)+i}")
        a.label(f"L_rare_ret{b}")
        a(f"s_cmp_lg_u32 s{sCNT}, s{sEV}")
        a("s_nop 0")
        a(f"s_setpc_b64 s[{sRET}:{sRET+1}]")
    a.label("L_slowcomb")
    a("s_nop 7")
    wA, wB = [vT+8, vT+9], [vT+10, vT+11]
    for qt in range(2):
        a(f"""
        v_min_f32 v{vT+6}, v{NEGM(qt)}, v{vSTB+qt}
        v_sub_f32 v{wA[qt]}, v{vT+6}, v{NEGM(qt)}
        v_sub_f32 v{wB[qt]}, v{vT+6}, v{vSTB+qt}
        v_exp_f32 v{wA[qt]}, v{wA[qt]}
        v_exp_f32 v{wB[qt]}, v{wB[qt]}
        s_nop 0
        v_mul_f32 v{vL[qt]}, v{wA[qt]}, v{vL[qt]}
        v_mul_f32 v{vSTB+2+qt}, v{wB[qt]}, v{vSTB+2+qt}
        """)
    for dt in range(16):
        for qt in range(2):
            for i in range(4): a(f"v_mul_f32 v{O(dt,qt)+i}, v{wA[qt]}, v{O(dt,qt)+i}")
    for i in range(64):
        qt = (i >> 2) & 1
        a(f"""
        v_accvgpr_read_b32 v{vT}, a{128+i}
        v_lshlrev_b32 v{vT+1}, 16, v{vT}
        v_and_b32 v{vT}, 0xffff0000, v{vT}
        v_mul_f32 v{vT+1}, v{wB[qt]}, v{vT+1}
        v_mul_f32 v{vT}, v{wB[qt]}, v{vT}
        v_cvt_pk_bf16_f32 v{vT}, v{vT+1}, v{vT}
        v_accvgpr_write_b32 a{128+i}, v{vT}
        """)
    a("s_nop 1")
    a("s_branch L_comb")
    lines = []
    for l in a.lines: lines += l.split("\n")
    ghost = [l.startswith("@ghost ") for l in lines]
    lines = [l[7:] if g else l for l, g in zip(lines, ghost)]
    lines = resolve_vm(lines)
    lines = [l.replace("@@buffer", "buffer") for l, g in zip(lines, ghost) if not g]
    errs = check_hazards(lines) + check_scc(lines)
    for e in errs[:30]: print("HAZARD", e, file=sys.stderr)
    lines = [re.sub(r"\s*; @\w+", "", l) for l in lines]
    lines = [l.strip() for l in lines if l.strip()]
    return "\n".join(lines) + "\n", kernel_desc(name, 512, 256)

if __name__ == "__main__":
    import ast
    for x in sys.argv[2:]:
        k, v = x.split("=")
        OPT[k] = ast.literal_eval(v)
    NAME = "recurrent_scan__compressed_kv_cla__dense_activation_squared_relu__prompt_kernel"
    body, desc = gen(NAME)
    ref = open("recurrent_scan__compressed_kv_cla__dense_activation_squared_relu__prompt.s.ref").read().split("\n")
    hdr = [l for l in ref if l.startswith(";") and "launch" not in l and "grid=" not in l]
    hdr += ["; @launch grid=(256,1,1) block=(256,1,1) lds=163840", '.amdgcn_target "amdgcn-amd-amdhsa--gfx950"', ".text"]
    txt = "\n".join(hdr) + "\n" + body + '.section .rodata,"a"\n.p2align 6\n' + desc
    open(sys.argv[1], "w").write(txt)
    print(len(txt), "bytes", file=sys.stderr)
```

```python
import sys
from fw import *
from layout2 import *

OPT = dict(pfk=0, pfd=2, pfo=[0, 128, 256, 384], smin=0, voff=0, dbgside=0, tlb=0, tlbm=0, tlbs=16, flit=7, npeel=5, slt=[64, 128, 192], slstep=12, sld=150, map2=False, kvb0=192, kvstepb=20, psleep=1, prep=1, pst=False, cpf=True, fine=False, touch=False, sc1ld=" sc1", stamps=False, early=[5, 13, 21, 29], late=[37, 45, 53, 61], cap=7, capb=8, capq=9, capn=12, kvstep=16, a15=38, fsleep=2, fdelay=96, qstep=7, wideloop=False, thr=40, kvsc=" sc1", sidesc=" sc1")

vLANE, vDMA, vTE, vTO, vL16, vRD, vPOLL, vFLG, vONE, vL4, vKV = range(1, 12)
DA = [12, 13, 14, 15]; DB = [16, 17, 18, 19]; RA = [20, 21]; RB = [22, 23, 24, 25]
vSW, vSF, vSX, vG1 = 26, 27, 28, 29
GT = 30
vT = 12
BIAS = 12
O0 = 128
def O(dt, qt): return O0 + (dt*2+qt)*4
def S(b, kt, qt): return 64 + b*16 + (kt*2+qt)*4
def P(b, qt): return 96 + b*8 + qt*4
def NEGM(qt): return 112 + qt*4
vL = [120, 121]
vSUM = [[122, 123], [124, 125]]
vBIG = 126
vSTAT = 44
vSEL = 48
vRINV = [54, 55]
vSTB = 56
def accreg(pos): return vr(48+4*pos, 4) if pos < 52 else ar(208+4*(pos-52), 4)
NE = 6
def PK(c): return 48+4*c if c < 20 else (48+4*(c-20) if c < 20+NE else 48+4*(20+c))
def Q(qb, qt, u): return qb + (qt*8+u)*4
def FR(f): return 64 + (f % 16)*4
def X(qt, u): return 128 + (u*2+qt)*4
def FA(b, m): return (64 if b == 0 else 0) + m*4
def FB(b, n): return (64 if b == 0 else 0) + 32 + n*4
SLD = 128

sWS, sSA, sSB, sG, sDBG = 4, 8, 12, 16, 20
_n = [24]
def sal(n=1, al=1):
    _n[0] = (_n[0] + al - 1)//al*al
    r = _n[0]; _n[0] += n; return r
sWAVE, sHEAD, sJ, sQI, sWHICH = [sal() for _ in range(5)]
gA0, gA1, gB0, gB1, gMA, gMB, gIT, gD, gCNT, gFL = [sal() for _ in range(10)]
sTAU, sM0, sOFFA, sOFFB, sRDD, sRDS, sXOFF, sXOF2, sN, sND = gA0, gA1, gB0, gB1, gD, gCNT, sal(), sal(), sal(), sal()
sCNT, sEV, sCLAMP, sFIRST = sal(), sal(), sal(), sal()
sRET = sal(2, 2)
sMASK = sal(8, 4)
sTYPE, sU1, sU2, sW0 = sal(), sal(), sal(), sal()
sKVB, sKVI = sal(), sal()
sQST, sPT, sPSG, sPSS = sal(), sal(), sal(), sal()
sFKV, sFKVP, sFQ, sFSG, sFSS = [sal() for _ in range(5)]
sT = sal(8, 4)
sLN = sal(2, 2)
sFS = sal(2, 2); sW4K = 3
sPF = sRET; sPD = sT+5
sSTAMP = sal(0, 2)
NSTAMP = (102 - sSTAMP)//2
print("sgpr used", sSTAMP, "stamps", NSTAMP, file=sys.stderr)
WS = sr(sWS, 4)

STUBS = []
def ld(): return OPT["sc1ld"]

XG = [1, 9, 17, 25, 33, 41, 49, 57]
XG4 = list(range(1, 64, 4))
def common_fill(st, dma=True, nd=None, last=False, novm=False, rdl=False):
    if nd is None: nd = 16 + len(OPT["early"]) + sum(1 for g in OPT["late"] if g < 38)
    for G in range(8):
        g0 = G*8
        Gn = (G+3) % 8
        for i in range(4):
            f = Gn*4+i
            if not (last and G > 4): st.put(g0+2*i, f"ds_read_b128 {ar(FR(f),4)}, v{vRD} offset:{f*1024}")
        if last and G >= 4:
            if G < 7: st.put(g0+6, f"s_waitcnt lgkmcnt({(7, 4, 0)[G-4]})")
        elif G == 4:
            st.put(g0+6, "s_waitcnt lgkmcnt(7)" if novm else f"s_waitcnt vmcnt(@dma:{nd}) lgkmcnt(7)")
            st.put(g0+7, "s_barrier")
            st.put(g0+7, f"v_add_u32 v{vRD}, s{sRDD}, v{vRD}")
        else:
            st.put(g0+6, "s_waitcnt lgkmcnt(7)")
    for i, g in enumerate(OPT["early"] if dma else []):
        st.put(g, f"buffer_load_dwordx4 v{vDMA}, {WS}, s{sOFFB} offen offset:{i*1024}{ld()} lds")
    if dma: st.put(31, f"v_readlane_b32 s{sOFFA}, v{vTO}, s{sTAU}")
    st.put(31, f"s_add_u32 m0, s{sM0}, 16384")
    st.put(34, f"s_add_u32 s{sM0}, s{sM0}, s{sRDD}")
    st.put(36, f"s_cmp_ge_u32 s{sM0}, 131072")
    st.put(38, f"s_cselect_b32 s{sRDD}, s{gMA}, s{gMB}")
    st.put(44, f"s_add_u32 s{sTAU}, s{sTAU}, 1")
    for i, g in enumerate(OPT["late"] if dma else []):
        st.put(g, f"buffer_load_dwordx4 v{vDMA}, {WS}, s{sOFFA} offen offset:{i*1024}{ld()} lds")
    if dma or rdl: st.put(55, f"v_readlane_b32 s{sOFFB}, v{vTE}, s{sTAU}")
    st.put(63, f"s_mov_b32 m0, s{sM0}")
    st.scc_busy |= {36, 37}
    if OPT["fine"]:
        st.put(4, f"s_memrealtime s[{sFS}:{sFS+1}]")
        st.put(6, f"v_mov_b32_dpp v{vKV}, v{vKV} wave_shr:1 row_mask:0xf bank_mask:0xf")
        st.put(62, f"v_writelane_b32 v{vKV}, s{sFS}, 0")

class Jobs:
    def __init__(self): self.jobs = []; self.at = {}
    def add(self, key, pre, ins, early, late): self.jobs.append((late, len(self.jobs), early, pre, ins, key))
    def place(self, st, s, cap=6, grid=None):
        slots = [g for g in (grid or XG) if not st.hasD(g) and st.free(g) == 2 and st.nS(g) == 0]
        n = 0
        avail = len([j for j in self.jobs if j[2] <= s*64+63])
        k = min(cap, avail, len(slots))
        use = [slots[(i*len(slots))//k] for i in range(k)] if k else []
        for g in slots:
            t = s*64+g
            c = sorted(j for j in self.jobs if j[2] <= t)
            if not c: continue
            j = c[0]
            nxt = [x for x in slots if x > g]
            urgent = j[0] < (s*64+nxt[0] if nxt else (s+1)*64+1)
            if not (urgent or (n < cap and (g in use or len(nxt) < k-n))): continue
            assert t <= j[0] + (24 if j[5][0] == "x" else 0) or j[5] in ("qs", "kvf", "qf") or (j[5] == "kv" and j[2] >= 64), ("job late", j, t)
            if j[3]:
                assert g-1 not in st.scc_busy
                st.put(g-1, j[3])
            st.put(g, j[4]); self.jobs.remove(j); self.at[j[5]] = t; n += 1

def mf_pv(half, pb, czero=False):
    return [f"{MF} {vr(O(dt,qt),4)}, {ar(FR(half*16+dt),4)}, {vr(P(pb,qt),4)}, {'0' if czero else vr(O(dt,qt),4)}"
            for dt in range(16) for qt in range(2)]
def mf_qk(half, sb, qb, czero=False):
    out = []
    for kt in range(2):
        for u in range(8):
            for qt in range(2):
                c = ('0' if czero else vr(NEGM(qt),4)) if u == 0 else vr(S(sb,kt,qt),4)
                out.append(f"{MF} {vr(S(sb,kt,qt),4)}, {ar(FR(half*16+kt*8+u),4)}, {ar(Q(qb,qt,u),4)}, {c}")
    return out
def mf_proj(s, init=None):
    out = []
    for f in range(32):
        nt, uu = f >> 1, f & 1
        for qt in range(2):
            c = vr(O(nt,qt),4)
            if uu == 0 and init == "zero": c = "0"
            if uu == 0 and init == "bias": c = vr(O(nt,1),4)
            out.append(f"{MF} {vr(O(nt,qt),4)}, {ar(FR(f),4)}, {ar(X(qt,2*s+uu),4)}, {c}")
    return out
def PA(b, nt, qt): return 64 + (nt*2+qt)*4 if b == 0 else O(2*nt+1, qt)
def mf_post(s):
    out = []
    for f in range(32):
        u, nt = f >> 2, f & 3
        for qt in range(2):
            d = vr(PA(s & 1, nt, qt), 4)
            out.append(f"{MF} {d}, {ar(FR(f),4)}, {vr(O(2*u,qt),4)}, {'0' if u == 0 else d}")
    return out

def sm_ops(b):
    ops = []
    seq = [(kt, qt, rp) for kt in range(2) for qt in range(2) for rp in range(2)]
    pend = []
    for i, (kt, qt, rp) in enumerate(seq):
        t0 = vT + (i % 4)*2
        s0 = S(b,kt,qt) + rp*2
        ops.append(f"v_exp_f32 v{t0}, v{s0}")
        ops += pend[:1]
        ops.append(f"v_exp_f32 v{t0+1}, v{s0+1}")
        ops += pend[1:]
        acc = vSUM[qt][rp]
        if kt == 0: pend = [f"v_add_f32 v{acc}, v{t0}, v{t0+1}"]
        else: pend = [f"v_add_f32 v{acc}, v{acc}, v{t0}", f"v_add_f32 v{acc}, v{acc}, v{t0+1}"]
        pend.append(f"v_cvt_pk_bf16_f32 v{P(b,qt)+kt*2+rp}, v{t0}, v{t0+1}")
    ops.append("s_nop 0")
    ops += pend
    ops += [f"v_add_f32 v{vSUM[0][0]}, v{vSUM[0][0]}, v{vSUM[0][1]}", f"v_add_f32 v{vSUM[1][0]}, v{vSUM[1][0]}, v{vSUM[1][1]}"]
    return ops

def place_sm(st, b, g0, g_end, tag, ladd=True, first=False):
    st.put(g0-1, f"s_cmp_ge_u32 s{sN}, s{sND}")
    st.put(g0, f"s_cbranch_scc1 L_domask_{tag}")
    st.put(g0, f"L_nomask_{tag}:")
    STUBS.append((f"L_domask_{tag}", f"L_mask{b}", f"L_nomask_{tag}"))
    st.put(g0+2 if g0 == 0 else 42, f"s_add_u32 s{sN}, s{sN}, 1")
    st.scc_busy |= {g0-1}
    def add(ins, deps=(), early=0): return st.add(ins, deps, max(early, g0), g_end)
    la = [add(f"v_add_f32 v{vL[q]}, v{vL[q]}, v{vSUM[q][0]}") for q in range(2)] if ladd else []
    seq = [(kt, qt, rp) for kt in range(2) for qt in range(2) for rp in range(2)]
    users = {}; lastacc = {}; NT = 6
    for i, (kt, qt, rp) in enumerate(seq):
        t0 = vT + (i % NT)*2
        s0 = S(b,kt,qt) + rp*2
        war = users.get(i - NT, [])
        e = g0 + (1 if kt == 0 else 3)
        e0 = add(f"v_exp_f32 v{t0}, v{s0}", war, e)
        e1 = add(f"v_exp_f32 v{t0+1}, v{s0+1}", war, e)
        acc = vSUM[qt][rp]
        if kt == 0:
            a0 = add(f"v_add_f32 v{acc}, v{t0}, v{t0+1}", [e0, e1] + la)
            u = [a0]; lastacc[(qt,rp)] = a0
        else:
            a0 = add(f"v_add_f32 v{acc}, v{acc}, v{t0}", [e0, lastacc[(qt,rp)]])
            a1 = add(f"v_add_f32 v{acc}, v{acc}, v{t0+1}", [e1, a0])
            u = [a0, a1]; lastacc[(qt,rp)] = a1
        c = st.add(f"v_cvt_pk_bf16_f32 v{P(b,qt)+kt*2+rp}, v{t0}, v{t0+1}", [e0, e1], g0, g_end-1)
        users[i] = u + [c]
    f0 = add(f"v_add_f32 v{vSUM[0][0]}, v{vSUM[0][0]}, v{vSUM[0][1]}", [lastacc[(0,0)], lastacc[(0,1)]])
    f1 = add(f"v_add_f32 v{vSUM[1][0]}, v{vSUM[1][0]}, v{vSUM[1][1]}", [lastacc[(1,0)], lastacc[(1,1)]])
    hi = f2u(2.0**OPT["thr"])
    if not first:
        mx = add(f"v_max_f32 v{vT+14}, v{vSUM[0][0]}, v{vSUM[1][0]}", [f0, f1])
        add(f"v_cmp_nge_f32 vcc, {hi:#x}, v{vT+14}", [mx])
    else:
        lo = f2u(2.0**-OPT["thr"])
        m0 = add(f"v_subrev_u32 v{vT+14}, {lo:#x}, v{vSUM[0][0]}", [f0])
        m1 = add(f"v_subrev_u32 v{vT+15}, {lo:#x}, v{vSUM[1][0]}", [f1])
        mx = add(f"v_max_u32 v{vT+14}, v{vT+14}, v{vT+15}", [m0, m1])
        add(f"v_cmp_lt_u32 vcc, {hi-lo:#x}, v{vT+14}", [mx])

def xlane_ops(op, v, t1):
    return [(f"v_mov_b32 v{t1}, v{v}", 0), (f"v_permlane16_swap_b32 v{v}, v{t1}", 2), (f"{op} v{v}, v{v}, v{t1}", 1),
            (f"v_mov_b32 v{t1}, v{v}", 0), (f"v_permlane32_swap_b32 v{v}, v{t1}", 2), (f"{op} v{v}, v{v}, v{t1}", 1)]
def xlane(a, op, v, t1):
    for ins, d in xlane_ops(op, v, t1):
        if d: a(f"s_nop {d-1}")
        a(ins)

class Chain:
    def __init__(self, items, grid=None): self.items = list(items); self.lastg = -10; self.grid = grid; self.base = 0; self.lastD = -999; self.minD = 0
    def fill(self, st, g0=0, g1=63):
        g = g0; lastg = -10
        while self.items and g <= g1:
            ins, dist = self.items[0][:2]
            early = self.items[0][2] if len(self.items[0]) > 2 else 0
            c = cls(ins)
            ok = g - lastg >= dist and g >= early and not st.hasD(g)
            if ok and g == lastg and not (c in "VE" and cls(self.last) in "VM"): ok = False
            if ok:
                if c == "S": ok = (st.nS(g) == 0 or st.free(g) >= 1) and not (g in st.scc_busy and not ins.startswith(("s_mov", "s_mul", "s_wait", "s_nop")))
                elif c == "D": ok = st.free(g) == 2 and st.nS(g) == 0 and (self.grid is None or g in self.grid) and self.base + g - self.lastD >= self.minD
                else: ok = st.free(g) >= COST[c]
            if ok:
                st.put(g, ins); self.items.pop(0); lastg = g; self.last = ins
                if c == "D": self.lastD = self.base + g
            else:
                g += 1
    def flush(self, a):
        for it in self.items:
            if it[1]: a(f"s_nop {it[1]-1}")
            a(it[0])
        self.items = []

def gen(name="mega_kernel"):
    a = Asm()
    STUBS.clear()
    stamps = OPT["stamps"]
    nst = [0]
    def stamp_ins():
        i = nst[0]; nst[0] += 1
        assert i < NSTAMP
        return f"s_memrealtime s[{sSTAMP+2*i}:{sSTAMP+2*i+1}]"
    def streg(i): return sSTAMP+2*i if i < NSTAMP else sMASK+2*(i-NSTAMP)
    def stamp(i, p=False):
        if OPT["pst"] and 2 <= i <= 6 and not p: return
        if p and not OPT["pst"]: return
        if stamps: a(f"s_memrealtime s[{streg(i)}:{streg(i)+1}]")
    def merge(lbl, align=False):
        if align: a.raw(".p2align 6")
        a.label(lbl); a.comment("@merge")
    strideA, strideB = 2048, 8192
    a.raw(kernel_header(name))
    a("s_cmp_ge_u32 s2, 256")
    a("s_cbranch_scc1 L_end")
    stamp(0)
    sW12, sX = sMASK, sMASK+4
    gHEAD, gMT, gWM, gWN = sCNT, sEV, sCLAMP, sFIRST
    a(f"""
    s_load_dwordx2 s[{sSA}:{sSA+1}], s[0:1], 8
    s_load_dwordx4 s[{sT}:{sT+3}], s[0:1], 24
    s_load_dwordx2 s[{sWS}:{sWS+1}], s[0:1], 104
    s_load_dwordx2 s[{sX}:{sX+1}], s[0:1], 0
    s_load_dwordx2 s[{sDBG}:{sDBG+1}], s[0:1], 40
    s_load_dwordx2 s[{sW12}:{sW12+1}], s[0:1], 56
    s_load_dwordx2 s[{sRET}:{sRET+1}], s[0:1], 72
    s_load_dwordx2 s[{sT+6}:{sT+7}], s[0:1], 16
    v_and_b32 v{vLANE}, 63, v0
    v_lshrrev_b32 v{GT}, 6, v0
    v_lshlrev_b32 v{vL16}, 4, v{vLANE}
    v_readfirstlane_b32 s{sWAVE}, v{GT}
    s_and_b32 s3, s2, 7
    s_lshl_b32 s3, s3, 1
    s_lshr_b32 s{sJ}, s2, 4
    s_bfe_u32 s{sWHICH}, s2, 0x10003
    s_add_u32 s{sHEAD}, s3, s{sWHICH}
    s_and_b32 s{gHEAD}, s{sJ}, 1
    s_add_u32 s{gHEAD}, s{gHEAD}, s3
    s_bfe_u32 s{gMT}, s2, 0x10005
    s_lshl_b32 s{gMT}, s{gMT}, 2
    s_lshr_b32 s{gWM}, s2, 6
    s_xor_b32 s{gWM}, s{gWM}, 2
    s_or_b32 s{gMT}, s{gMT}, s{gWM}
    """)
    if OPT["map2"]:
        a(f"""
        s_bfe_u32 s{gHEAD}, s2, 0x10005
        s_add_u32 s{gHEAD}, s{gHEAD}, s3
        s_lshl_b32 s{gMT}, s{sWHICH}, 2
        s_bfe_u32 s{gWM}, s2, 0x10004
        s_or_b32 s{gMT}, s{gMT}, s{gWM}
        s_bfe_u32 s{gWM}, s2, 0x10007
        s_xor_b32 s{gWM}, s{gWM}, 1
        s_lshl_b32 s{gWM}, s{gWM}, 1
        s_or_b32 s{gMT}, s{gMT}, s{gWM}
        s_bfe_u32 s{sWHICH}, s2, 0x10006
        """)
    a(f"""
    s_and_b32 s{gWM}, s{sWAVE}, 1
    s_lshr_b32 s{gWN}, s{sWAVE}, 1
    """)
    t2, t3, t4, t5, t6 = GT, GT+1, GT+2, GT+3, GT+4
    a(f"""
    v_lshrrev_b32 v{t2}, 3, v{vLANE}
    s_lshl_b32 s{gA0}, s{gMT}, 8
    s_lshl_b32 s{gA1}, s{sWAVE}, 6
    s_add_u32 s{gA0}, s{gA0}, s{gA1}
    v_add_u32 v{t2}, s{gA0}, v{t2}
    v_lshlrev_b32 v{t2}, 11, v{t2}
    v_and_b32 v{t3}, 7, v{vLANE}
    v_lshrrev_b32 v{t4}, 4, v{vLANE}
    v_xor_b32 v{t5}, v{t3}, v{t4}
    v_lshl_add_u32 v{t5}, v{t5}, 4, v{t2}
    v_xor_b32 v{t6}, 4, v{t4}
    v_xor_b32 v{t6}, v{t3}, v{t6}
    v_lshl_add_u32 v{t6}, v{t6}, 4, v{t2}
    """)
    for jl in range(4):
        a(f"v_add_u32 v{DA[jl]}, {4096 + jl*8*strideA - jl*1024}, v{t5 if (jl & 1) == 0 else t6}")
    a(f"""
    v_bfe_u32 v{t2}, v{vLANE}, 3, 2
    v_lshlrev_b32 v{t3}, 13, v{t2}
    v_lshrrev_b32 v{t4}, 5, v{vLANE}
    v_lshl_add_u32 v{t3}, v{t4}, 7, v{t3}
    v_lshrrev_b32 v{t4}, 1, v{t2}
    v_lshlrev_b32 v{t4}, 2, v{t4}
    v_and_b32 v{t5}, 7, v{vLANE}
    v_xor_b32 v{t4}, v{t4}, v{t5}
    s_lshl_b32 s{gA0}, s{gWM}, 1
    v_xor_b32 v{t4}, s{gA0}, v{t4}
    v_lshl_add_u32 v{t3}, v{t4}, 4, v{t3}
    s_lshl_b32 s{gA0}, s{gHEAD}, 9
    s_lshl_b32 s{gA1}, s{sWAVE}, 16
    s_add_u32 s{gA0}, s{gA0}, s{gA1}
    v_add_u32 v{t3}, s{gA0}, v{t3}
    """)
    for jl in range(4):
        a(f"v_add_u32 v{DB[jl]}, {4096 + (jl>>1)*4*strideB + (jl&1)*256 - jl*1024}, v{t3}")
    a(f"""
    s_lshl_b32 s{gMA}, s{sWAVE}, 13
    s_add_u32 s{gMA}, s{gMA}, 131072
    s_lshl_b32 s{gMB}, s{sWAVE}, 12
    s_add_u32 s{gMB}, s{gMB}, 32768
    s_mov_b32 s{sSA+2}, {4194304+4096}
    s_mov_b32 s{sSA+3}, 0x20000
    s_mov_b32 s{sSB+2}, {8388608+4096}
    s_mov_b32 s{sSB+3}, 0x20000
    @PST2
    s_waitcnt lgkmcnt(0)
    @PST3
    s_sub_u32 s{sSA}, s{sSA}, 4096
    s_subb_u32 s{sSA+1}, s{sSA+1}, 0
    s_cmp_eq_u32 s{sWHICH}, 0
    s_cselect_b32 s{sSB}, s{sT}, s{sT+2}
    s_cselect_b32 s{sSB+1}, s{sT+1}, s{sT+3}
    s_sub_u32 s{sSB}, s{sSB}, 4096
    s_subb_u32 s{sSB+1}, s{sSB+1}, 0
    """)
    for i in (2, 3):
        k = [n for n, l in enumerate(a.lines) if f"@PST{i}" in l][0]
        a.lines[k] = f"s_memrealtime s[{streg(i)}:{streg(i)+1}]" if OPT["pst"] else ""
    def dma_group(kind):
        if kind == "Aa": m0 = f"s_mov_b32 m0, s{gMA}"; regs, srd, so = DA, sSA, gA0
        elif kind == "Ab": m0 = f"s_add_u32 m0, s{gMA}, 4096"; regs, srd, so = DA, sSA, gA1
        elif kind == "B0": m0 = f"s_mov_b32 m0, s{gMB}"; regs, srd, so = DB, sSB, gB0
        elif kind == "B1": m0 = f"s_add_u32 m0, s{gMB}, 16384"; regs, srd, so = DB, sSB, gB1
        else:
            y = kind
            return [f"s_add_u32 m0, s{sW4K}, {y*16384}", f"s_add_u32 s{sT+6+(y&1)}, s{sW0}, {y*16384}"], \
                   [f"buffer_load_dwordx4 v{vDMA}, {WS}, s{sT+6+(y&1)} offen offset:{i*1024}{ld()} lds" for i in range(4)]
        return [m0], [f"buffer_load_dwordx4 v{regs[jl]}, {sr(srd,4)}, s{so} offen offset:{jl*1024} lds" for jl in range(4)]
    advA = [f"s_add_u32 s{gA0}, s{gA0}, 128", f"s_add_u32 s{gA1}, s{gA1}, 128",
            f"s_add_u32 s{gMA}, s{gMA}, 65536", f"s_cmp_ge_u32 s{gMA}, 196608", f"s_cselect_b32 s{sT}, 196608, 0", f"s_sub_u32 s{gMA}, s{gMA}, s{sT}"]
    advB = [f"s_add_u32 s{gB0}, s{gB0}, {64*strideB}", f"s_add_u32 s{gB1}, s{gB1}, {64*strideB}", f"s_xor_b32 s{gMB}, s{gMB}, 65536"]
    main = a; a = Asm()
    sWID, u_, nb_, o_, o2_ = sXOFF, sT+1, sT+2, sT+3, sT+4
    sD = [sQST, sPT, sPSG]; sXS = sPSS; sHI = sFSG; sSTR = sFSS
    vWO, vW12 = vRD, vDMA
    G = sr(sG, 4)
    r_, g_, r8 = GT, GT+1, GT+2
    h_, i_ = GT+5, GT+6
    a(f"""
    s_lshl_b32 s{sWID}, s2, 2
    s_add_u32 s{sWID}, s{sWID}, s{sWAVE}
    s_mov_b32 s{sX+2}, {2048*896}
    s_mov_b32 s{sX+3}, 0x20000
    v_and_b32 v{h_}, 1, v{vLANE}
    v_lshrrev_b32 v{i_}, 1, v{vLANE}
    v_mul_u32_u24 v{GT+7}, 896, v{h_}
    v_lshl_add_u32 v{GT+7}, v{i_}, 4, v{GT+7}
    v_cmp_gt_u32 s[{sLN}:{sLN+1}], 28, v{i_}
    v_mov_b32 v{GT+8}, {OOB}
    s_mul_i32 s{gB1}, s{sWID}, 1792
    v_cndmask_b32 v{GT+11}, v{GT+8}, v{GT+7}, s[{sLN}:{sLN+1}]
    s_getpc_b64 s[{sG}:{sG+1}]
    L_pc:
    s_mov_b32 s{sG+2}, L_codeend - L_pc
    s_mov_b32 s{sG+3}, 0x20000
    s_lshr_b32 s{gB0}, s2, 3
    s_lshl_b32 s{gB0}, s{gB0}, 2
    s_add_u32 s{gB0}, s{gB0}, s{sWAVE}
    s_lshl_b32 s{gB0}, s{gB0}, 10
    s_mov_b32 s{sWS+2}, {WS_SIZE}
    s_mov_b32 s{sWS+3}, 0x20000
    s_lshl_b32 s{gA1}, s{gB0}, 10
    v_and_b32 v{GT+12}, {OPT["tlbm"]}, v{vLANE}
    v_lshlrev_b32 v{GT+12}, {OPT["tlbs"]}, v{GT+12}
    v_and_b32 v{GT+13}, 3, v{vLANE}
    v_lshlrev_b32 v{GT+13}, 21, v{GT+13}
    v_and_b32 v{r_}, 15, v{vLANE}
    v_lshrrev_b32 v{g_}, 4, v{vLANE}
    v_lshlrev_b32 v{r8}, 3, v{r_}
    """)
    def natdest(dst, base):
        a(f"""
        s_lshr_b32 s{o_}, s{nb_}, 2
        s_mul_i32 s{o_}, s{o_}, {7*32768}
        s_lshr_b32 s{o2_}, s{u_}, 1
        s_lshl_b32 s{o2_}, s{o2_}, 15
        s_add_u32 s{o_}, s{o_}, s{o2_}
        s_and_b32 s{o2_}, s{nb_}, 3
        s_lshl_b32 s{o2_}, s{o2_}, 13
        s_add_u32 s{o_}, s{o_}, s{o2_}
        s_and_b32 s{o2_}, s{u_}, 1
        s_lshl_b32 s{o2_}, s{o2_}, 10
        s_add_u32 s{o_}, s{o_}, s{o2_}
        s_add_u32 s{dst}, s{o_}, {base}
        """)
    def div7(idx):
        a(f"""
        s_mul_i32 s{u_}, s{idx}, 9363
        s_lshr_b32 s{u_}, s{u_}, 16
        s_mul_i32 s{nb_}, s{u_}, 7
        s_sub_u32 s{nb_}, s{idx}, s{nb_}
        """)
    def ffdest(dst, base, lim):
        a(f"""
        s_mul_i32 s{o_}, s{nb_}, {184*4096}
        s_lshl_b32 s{o2_}, s{u_}, 12
        s_add_u32 s{o_}, s{o_}, s{o2_}
        s_add_u32 s{dst}, s{o_}, {base}
        s_cmp_lt_u32 s{sWID}, {lim}
        s_cselect_b32 s{dst}, s{dst}, {OOB}
        """)
    a(f"""
    s_mov_b32 s{sDBG+2}, {4096*896}
    s_mov_b32 s{sDBG+3}, 0x20000
    v_mul_u32_u24 v{vWO}, {4*896}, v{g_}
    v_add_u32 v{vWO}, v{vWO}, v{r8}
    """)
    div7(sWID)
    a(f"""
    s_mul_i32 s{o_}, s{u_}, {32*896}
    s_lshl_b32 s{o2_}, s{nb_}, 7
    s_add_u32 s{o_}, s{o_}, s{o2_}
    v_add_u32 v{vWO}, s{o_}, v{vWO}
    """)
    ffdest(sD[1], WS_WFF + 56*4096, 896)
    a(f"""
    s_lshr_b32 s{u_}, s{sWID}, 2
    s_mul_i32 s{u_}, s{u_}, 9363
    s_lshr_b32 s{u_}, s{u_}, 16
    s_mul_i32 s{nb_}, s{u_}, 28
    s_sub_u32 s{nb_}, s{sWID}, s{nb_}
    s_mul_i32 s{sHI}, s{u_}, {32*3584}
    s_lshl_b32 s{o2_}, s{nb_}, 7
    s_add_u32 s{sHI}, s{sHI}, s{o2_}
    """)
    natdest(sSTR, WS_W1F)
    a(f"s_sub_u32 s{sT+5}, s{sWID}, 392")
    a(f"s_and_b32 s{sT+5}, s{sT+5}, 1023")
    div7(sT+5)
    ffdest(sD[2], WS_WFF, 784)
    a(f"""
    s_lshr_b32 s{o_}, s{u_}, 1
    s_mul_i32 s{o_}, s{o_}, {64*896}
    s_and_b32 s{o2_}, s{u_}, 1
    s_mul_i32 s{o2_}, s{o2_}, {2*896}
    s_add_u32 s{o_}, s{o_}, s{o2_}
    s_lshl_b32 s{o2_}, s{nb_}, 7
    s_add_u32 s{o_}, s{o_}, s{o2_}
    s_mov_b32 s{sW12+2}, {448*3584}
    s_mov_b32 s{sW12+3}, 0x20000
    s_cmp_lt_u32 s{sWID}, 392
    s_cselect_b32 s{sW12}, s{sW12}, s{sRET}
    s_cselect_b32 s{sW12+1}, s{sW12+1}, s{sRET+1}
    s_cselect_b32 s{o_}, s{sHI}, s{o_}
    s_cselect_b32 s{sD[2]}, s{sSTR}, s{sD[2]}
    s_cselect_b32 s{sHI}, 16, 1
    s_cselect_b32 s{sSTR}, 2, 1
    s_mul_i32 s{sHI}, s{sHI}, 896
    s_mul_i32 s{o2_}, s{sSTR}, {16*896}
    s_lshl_b32 s{sSTR}, s{sSTR}, 10
    v_mul_u32_u24 v{vW12}, s{o2_}, v{g_}
    v_add3_u32 v{vW12}, v{vW12}, v{r8}, s{o_}
    v_lshrrev_b32 v{GT+9}, 2, v{i_}
    v_lshlrev_b32 v{GT+9}, 10, v{GT+9}
    v_and_b32 v{GT+10}, 3, v{i_}
    v_lshl_add_u32 v{GT+9}, v{GT+10}, 8, v{GT+9}
    v_lshl_add_u32 v{GT+9}, v{h_}, 4, v{GT+9}
    v_cndmask_b32 v{vSX}, v{GT+8}, v{GT+9}, s[{sLN}:{sLN+1}]
    s_lshr_b32 s{o_}, s{sWID}, 3
    s_mul_i32 s{o_}, s{o_}, 14336
    s_and_b32 s{o2_}, s{sWID}, 7
    s_lshl_b32 s{o2_}, s{o2_}, 5
    s_add_u32 s{sXS}, s{o_}, s{o2_}
    s_lshl_b32 s{sFQ}, s{sWID}, 10
    s_add_u32 s{sFQ}, s{sFQ}, {WS_FLG}
    s_cmp_lt_u32 s{sWID}, 16
    s_cselect_b32 s{sFQ}, s{sFQ}, {OOB}
    v_cmp_eq_u32 vcc, 0, v{vLANE}
    v_mov_b32 v{vONE}, 1
    v_lshlrev_b32 v{vL4}, 2, v{vLANE}
    v_cndmask_b32 v{vFLG}, v{GT+8}, v{vLANE}, vcc
    s_mov_b32 s{sRET}, s{sT+6}
    s_mov_b32 s{sRET+1}, s{sT+7}
    s_lshr_b32 s{u_}, s{sWID}, 6
    s_and_b32 s{nb_}, s{sWID}, 63
    s_lshl_b32 s{o_}, s{u_}, 18
    s_lshl_b32 s{o2_}, s{nb_}, 7
    s_add_u32 s{o_}, s{o_}, s{o2_}
    v_and_b32 v{vSW}, 3, v{vLANE}
    v_lshlrev_b32 v{vSW}, 5, v{vSW}
    v_bfe_u32 v{GT+9}, v{vLANE}, 2, 2
    v_lshl_add_u32 v{vSW}, v{GT+9}, 3, v{vSW}
    v_lshl_add_u32 v{vSW}, v{g_}, 16, v{vSW}
    v_add_u32 v{vSW}, s{o_}, v{vSW}
    v_mov_b32 v{vSF}, v{vL16}
    """)
    natdest(sD[0], WS_WQF)
    a(f"s_cmp_lt_u32 s{sWID}, 896")
    a(f"s_cselect_b32 s{sD[0]}, s{sD[0]}, {OOB}")
    assert WS_XF == 0
    a(f"""
    v_bfe_u32 v{t4}, v{vLANE}, 1, 3
    s_lshl_b32 s{o_}, s{gWM}, 14
    s_add_u32 s{o_}, s{o_}, 131072
    v_lshlrev_b32 v{r_}, 7, v{r_}
    v_add_u32 v{r_}, s{o_}, v{r_}
    """)
    for kk in range(2):
        a(f"v_or_b32 v{t5}, {4*kk}, v{g_}")
        a(f"v_xor_b32 v{t5}, v{t5}, v{t4}")
        a(f"v_lshl_add_u32 v{RA[kk]}, v{t5}, 4, v{r_}")
    a(f"""
    v_lshlrev_b32 v{t2}, 12, v{g_}
    v_bfe_u32 v{t4}, v{vLANE}, 2, 2
    v_lshl_add_u32 v{t2}, v{t4}, 7, v{t2}
    v_and_b32 v{t5}, 3, v{vLANE}
    v_lshl_add_u32 v{t2}, v{t5}, 3, v{t2}
    s_lshl_b32 s{o_}, s{gWN}, 10
    s_add_u32 s{o_}, s{o_}, 32768
    v_add_u32 v{t2}, s{o_}, v{t2}
    v_lshrrev_b32 v{t4}, 1, v{t4}
    v_lshlrev_b32 v{t4}, 6, v{t4}
    v_and_b32 v{t5}, 1, v{g_}
    v_lshlrev_b32 v{t5}, 5, v{t5}
    v_or_b32 v{t4}, v{t4}, v{t5}
    """)
    for q in range(4):
        a(f"v_xor_b32 v{t5}, {(q>>1)*64 + (q&1)*32}, v{t4}")
        a(f"v_add_u32 v{RB[q]}, v{t5}, v{t2}")
    a(f"""
    s_mul_i32 s{sKVB}, s{gHEAD}, {HS}
    s_mul_i32 s{o_}, s{gMT}, {8*US}
    s_add_u32 s{sKVB}, s{sKVB}, s{o_}
    s_mul_i32 s{o_}, s{gWM}, {4*US}
    s_add_u32 s{sKVB}, s{sKVB}, s{o_}
    s_add_u32 s{o2_}, s{sWHICH}, 12
    s_lshl_b32 s{o_}, s{gWN}, s{o2_}
    s_add_u32 s{sKVB}, s{sKVB}, s{o_}
    s_mul_i32 s{o_}, s{sWHICH}, {WS_VF - WS_KF}
    s_add_u32 s{sKVB}, s{sKVB}, s{o_}
    s_add_u32 s{sKVB}, s{sKVB}, {WS_KF}
    s_lshr_b32 s{sKVI}, 8192, s{sWHICH}
    s_add_u32 s{sKVI}, s{sKVI}, s{sKVB}
    s_lshl_b32 s{sFKV}, s{gHEAD}, 8
    s_lshr_b32 s{o_}, s{gMT}, 2
    s_and_b32 s{o2_}, s{gMT}, 3
    s_lshl_b32 s{o2_}, s{o2_}, 1
    s_or_b32 s{o_}, s{o_}, s{o2_}
    s_lshl_b32 s{o_}, s{o_}, 5
    s_add_u32 s{sFKV}, s{sFKV}, s{o_}
    s_lshl_b32 s{o_}, s{sWHICH}, 4
    s_add_u32 s{sFKV}, s{sFKV}, s{o_}
    s_lshl_b32 s{o_}, s{sWAVE}, 2
    s_add_u32 s{sFKV}, s{sFKV}, s{o_}
    s_add_u32 s{sFKV}, s{sFKV}, {WS_FLG + FL_KV}
    s_lshl_b32 s{sFKVP}, s{sHEAD}, 8
    s_add_u32 s{sFKVP}, s{sFKVP}, {WS_FLG + FL_KV}
    s_mov_b32 s{gCNT}, 2
    s_lshl_b32 s{gD}, s{gMT}, 2
    s_add_u32 s{gD}, s{gD}, s{sWAVE}
    s_lshl_b32 s{gD}, s{gD}, 14
    s_lshl_b32 s{o_}, s{gHEAD}, 9
    s_add_u32 s{gD}, s{gD}, s{o_}
    s_add_u32 s{gD}, s{gD}, {4096 + (2+OPT["pfd"])*64*8192}
    s_cmp_eq_u32 s{sWAVE}, 0
    s_cselect_b32 s{gFL}, {OPT["flit"] if OPT["prep"] else 99}, 99
    """)
    WQ, B1, ST1, N0, STA2, XR1, XR2 = sT+1, sT+2, sT+3, sN, sT+4, sND, sXOF2
    a(f"""
    s_or_b32 s{sQI}, s{sJ}, 8
    s_mul_i32 s{WQ}, s{sHEAD}, {7*32768}
    s_add_u32 s{WQ}, s{WQ}, {WS_WQF}
    s_mov_b32 s{sW0}, s{WQ}
    s_mov_b32 s{XR1}, s{sQI}
    s_mov_b32 s{ST1}, 32768
    s_cmp_eq_u32 s{sQI}, 15
    s_cselect_b32 s{N0}, {OPT['a15']}, 34
    @atomic
    s_cmp_ge_u32 s{sJ}, 8
    s_cbranch_scc1 L_typeA
    s_mov_b32 s{sTYPE}, 2
    s_sub_u32 s{B1}, s{WQ}, {5*32768}
    s_sub_u32 s{XR2}, 15, s{sQI}
    s_lshl_b32 s{sU1}, s{sQI}, 2
    s_sub_u32 s{sU2}, 64, s{sU1}
    s_add_u32 s{sU1}, s{sU1}, 4
    s_sub_u32 s{sU1}, s{sU1}, s{N0}
    s_add_u32 s{STA2}, s{sU1}, 14
    s_add_u32 s{sT+7}, s{STA2}, s{sU2}
    s_branch L_typedone
    """)
    a.label("L_typeA")
    a(f"""
    s_mov_b32 s{sU1}, s{N0}
    s_add_u32 s{sT+7}, s{N0}, 14
    s_mov_b32 s{sU2}, 2
    s_mov_b32 s{N0}, 0
    s_mov_b32 s{STA2}, 100
    s_mov_b32 s{XR2}, 0x4000
    s_mov_b32 s{sTYPE}, 1
    s_mov_b32 s{B1}, {OOB}
    s_cmp_eq_u32 s{sJ}, 15
    s_cbranch_scc1 L_typedone
    s_mov_b32 s{sTYPE}, 0
    s_mul_i32 s{XR1}, s{sHEAD}, 7
    s_add_u32 s{XR1}, s{XR1}, s{sJ}
    s_sub_u32 s{XR1}, s{XR1}, 8
    s_lshr_b32 s{sT}, s{XR1}, 4
    s_and_b32 s{XR1}, s{XR1}, 15
    s_mul_i32 s{sW0}, s{sT}, {7*32768}
    s_add_u32 s{sW0}, s{sW0}, {WS_W1F}
    s_lshl_b32 s{B1}, s{sT}, 15
    s_add_u32 s{B1}, s{B1}, {WS_WFF}
    s_mov_b32 s{ST1}, {184*4096}
    """)
    a.label("L_typedone")
    a("@end")
    tA, tB, tC, tD = GT, GT+1, GT+2, GT+3
    KB, VB = sT+5, sT+6
    a(f"""
    s_mul_i32 s{KB}, s{sHEAD}, {HS}
    s_add_u32 s{VB}, s{KB}, {WS_VF}
    s_add_u32 s{KB}, s{KB}, {WS_KF}
    v_mov_b32 v{vTE}, {OOB}
    """)
    def seg_lin(start, base, stride):
        a(f"v_subrev_u32 v{tA}, {start}, v{vLANE}")
        a(f"v_cmp_gt_u32 vcc, 7, v{tA}")
        a(f"v_mul_u32_u24 v{tB}, {stride}, v{tA}")
        a(f"v_add_u32 v{tB}, s{base}, v{tB}")
        a(f"v_cndmask_b32 v{vTE}, v{vTE}, v{tB}, vcc")
    seg_lin(0, sW0, 32768)
    seg_lin(7, B1, f"s{ST1}")
    a(f"s_lshl_b32 s{sT}, s{sHEAD}, 15")
    a(f"s_add_u32 s{sT}, s{sT}, {WS_WFF + 56*4096}")
    seg_lin(f"s{sT+7}", sT, 184*4096)
    a(f"v_add_u32 v{vTO}, 16384, v{vTE}")
    def seg_att(start, n0, U):
        for tab in (vTO, vTE):
            a(f"v_subrev_u32 v{tA}, {start}, v{vLANE}")
            if n0 is not None: a(f"v_add_u32 v{tB}, s{n0}, v{tA}")
            else: a(f"v_mov_b32 v{tB}, v{tA}")
            a(f"v_mul_u32_u24 v{tB}, {US}, v{tB}")
            if tab == vTO:
                a(f"s_sub_u32 s{sT}, s{U}, 1")
                a(f"v_cmp_eq_u32 vcc, s{sT}, v{tA}")
                a(f"v_add_u32 v{tC}, s{KB}, v{tB}")
                a(f"v_add_u32 v{tC}, {US}, v{tC}")
                a(f"v_add_u32 v{tD}, s{VB}, v{tB}")
            else:
                a(f"v_cmp_eq_u32 vcc, 0, v{tA}")
                a(f"v_add_u32 v{tC}, s{VB}, v{tB}")
                a(f"v_subrev_u32 v{tC}, {US}, v{tC}")
                a(f"v_add_u32 v{tD}, s{KB}, v{tB}")
            a(f"v_cndmask_b32 v{tC}, v{tC}, v{tD}, vcc")
            a(f"v_cmp_gt_u32 vcc, s{U}, v{tA}")
            a("s_nop 1")
            a(f"v_cndmask_b32 v{tab}, v{tab}, v{tC}, vcc")
    seg_att(14, N0, sU1)
    seg_att(f"s{STA2}", None, sU2)
    XO1, XO2 = sXOFF, sXOF2
    a(f"""
    s_lshl_b32 s{sT}, s{sWAVE}, 1
    s_lshl_b32 s{XO1}, s{XR1}, 3
    s_add_u32 s{XO1}, s{XO1}, s{sT}
    s_mul_i32 s{XO1}, s{XO1}, 14336
    s_lshl_b32 s{XO2}, s{XR2}, 3
    s_add_u32 s{XO2}, s{XO2}, s{sT}
    s_mul_i32 s{XO2}, s{XO2}, 14336
    s_lshl_b32 s{sW4K}, s{sWAVE}, 12
    s_mov_b32 s{sCLAMP}, 0x05040100
    s_mov_b32 s{sFIRST}, 0x07060302
    s_mov_b32 s{gIT}, {OPT["npeel"]}
    """)
    setup_l = [l.strip() for l in a.lines if l.strip()]
    a = main
    def pgrp(regs, srd, base, dm, so):
        return [[f"s_add_u32 m0, s{base}, {dm}", f"s_mov_b32 s{gA0}, {so}", f"buffer_load_dwordx4 v{regs[0]}, {sr(srd,4)}, s{gA0} offen lds"]] + \
               [[f"buffer_load_dwordx4 v{regs[jl]}, {sr(srd,4)}, s{gA0} offen offset:{jl*1024} lds"] for jl in range(1, 4)]
    def pA(it, h): return pgrp(DA, sSA, gMA, (0, -131072, -65536)[it] + h*4096, h*32*strideA + it*128)
    def pB(it, h): return pgrp(DB, sSB, gMB, it*65536 + h*16384, (it*64 + h*32)*strideB)
    seq = pA(0, 0) + pB(0, 0) + pA(0, 1) + pB(0, 1)
    if OPT["tlb"] & 1: seq += [[f"buffer_load_dword a204, v{GT+12}, {WS}, s{gA1} offen"]]
    if OPT["tlb"] & 2: seq += [[f"buffer_load_dword a205, v{GT+13}, {sr(sSB,4)}, 0 offen offset:4092"]]
    seq += pA(1, 0) + pA(1, 1) + pB(1, 0)
    seq += [[f"buffer_load_dwordx4 {ar(SLD+48,4)}, v{GT+11}, {sr(sX,4)}, s{gB1} offen"], [f"buffer_load_dwordx4 {ar(SLD+52,4)}, v{GT+11}, {sr(sX,4)}, s{gB1} offen offset:448 ; @sx"]]
    seq += pB(1, 1) + pA(2, 0) + pA(2, 1)
    if OPT["cpf"]: seq += [[f"buffer_load_dwordx4 a[200:203], v{vL16}, {G}, s{gB0} offen"]]
    nowr = ("s_mov", "s_mul_i32", "s_nop", "s_cselect", "s_getpc", "s_cbranch", "s_branch")
    def scc_live(k):
        for l in setup_l[k:]:
            if l.startswith(("s_cselect", "s_cbranch_scc")): return True
            if l.startswith("s_") and not l.startswith(nowr): return False
        return False
    step = len(setup_l) / (len(seq) - 0.5)
    atomic = False; nxt = 0.0
    for k, l in enumerate(setup_l):
        if seq and k >= nxt and not atomic and not scc_live(k) and not l.endswith(":"):
            for x in seq.pop(0): a(x)
            nxt += step
        if l == "@atomic": atomic = True
        elif l == "@end": atomic = False
        else: a(l)
    for g in seq:
        for x in g: a(x)
    print("setup instrs", len(setup_l), "left", len(seq), file=sys.stderr)
    a(f"""
    s_mov_b32 s{gA0}, 256
    s_mov_b32 s{gA1}, {32*strideA+256}
    s_mov_b32 s{gB0}, {128*strideB}
    s_mov_b32 s{gB1}, {160*strideB}
    s_sub_u32 s{gMA}, s{gMA}, 65536
    s_mov_b32 s{sG}, s{sRET}
    s_mov_b32 s{sG+1}, s{sRET+1}
    s_mov_b32 s{sG+2}, {448*8192}
    s_add_u32 s{sPF}, s{sSB}, s{gD}
    s_addc_u32 s{sPF+1}, s{sSB+1}, 0
    """)
    if OPT["dbgside"] & 1:
        for r in sD: a(f"s_mov_b32 s{r}, {OOB}")
    if OPT["dbgside"] & 2: a(f"s_mov_b32 s{sXS}, {OOB}")
    if OPT["dbgside"] & 4:
        for r in (vWO, vW12, vSW): a(f"v_mov_b32 v{r}, {OOB}")
    def side_chain():
        c = []
        z = GT+8
        c += [(f"v_mov_b64 {vr(z,2)}, 0", 0), (f"v_mov_b64 {vr(z+2,2)}, 0", 0), (f"buffer_store_dwordx4 {vr(z,4)}, v{vL16}, {WS}, s{sFQ} offen sc1", 1)]
        c.append(("s_waitcnt vmcnt(@since:sx)", 1))
        U = GT; m_, v_, t_, t2_ = GT+16, GT+17, vG1, vPOLL
        for i in range(8):
            c.append((f"v_accvgpr_read_b32 v{t_}, a{SLD+48+i}", 2 if i == 0 else 0))
            c.append((f"v_lshlrev_b32 v{U+2*i}, 16, v{t_}", 0))
            c.append((f"v_and_b32 v{U+2*i+1}, 0xffff0000, v{t_}", 0))
        def red(v):
            r = [(f"v_add_f32_dpp v{v}, v{v}, v{v} row_ror:{sh} row_mask:0xf bank_mask:0xf", 2) for sh in (8, 4, 2)]
            return r + xlane_ops("v_add_f32", v, t2_)
        c.append((f"v_add_f32 v{m_}, v{U}, v{U+1}", 0)); c.append((f"v_add_f32 v{v_}, v{U+2}, v{U+3}", 0))
        for i in range(4, 16, 2):
            c.append((f"v_add_f32 v{m_}, v{m_}, v{U+i}", 0)); c.append((f"v_add_f32 v{v_}, v{v_}, v{U+i+1}", 0))
        c.append((f"v_add_f32 v{m_}, v{m_}, v{v_}", 0))
        c += red(m_)
        c.append((f"v_mul_f32 v{m_}, {f2u(1.0/448):#x}, v{m_}", 0))
        for i in range(16):
            c.append((f"v_sub_f32 v{t_}, v{U+i}, v{m_}", 0))
            c.append((f"v_mul_f32 v{v_}, v{t_}, v{t_}" if i == 0 else f"v_fma_f32 v{v_}, v{t_}, v{t_}, v{v_}", 0))
        c.append((f"v_cndmask_b32 v{v_}, 0, v{v_}, s[{sLN}:{sLN+1}]", 0))
        c += red(v_)
        for x in (f"v_mul_f32 v{v_}, {f2u(1.0/448):#x}, v{v_}", f"v_cvt_pk_bf16_f32 v{t_}, v{m_}, v{v_}", f"v_lshlrev_b32 v{m_}, 16, v{t_}",
                  f"v_and_b32 v{v_}, 0xffff0000, v{t_}", f"v_add_f32 v{v_}, {f2u(1e-5):#x}, v{v_}", f"v_cvt_pk_bf16_f32 v{v_}, v{v_}, v{v_}",
                  f"v_lshlrev_b32 v{v_}, 16, v{v_}", f"v_sqrt_f32 v{v_}, v{v_}"):
            c.append((x, 0))
        c.append((f"v_cvt_pk_bf16_f32 v{v_}, v{v_}, v{v_}", 1))
        c.append((f"v_lshlrev_b32 v{v_}, 16, v{v_}", 0))
        c.append((f"v_rcp_f32 v{v_}, v{v_}", 0))
        for i in range(16): c.append((f"v_sub_f32 v{U+i}, v{U+i}, v{m_}", 1 if i == 0 else 0))
        for i in range(8):
            for x in (f"v_cvt_pk_bf16_f32 v{t_}, v{U+2*i}, v{U+2*i+1}", f"v_lshlrev_b32 v{U+2*i}, 16, v{t_}", f"v_and_b32 v{U+2*i+1}, 0xffff0000, v{t_}",
                      f"v_mul_f32 v{U+2*i}, v{U+2*i}, v{v_}", f"v_mul_f32 v{U+2*i+1}, v{U+2*i+1}, v{v_}", f"v_cvt_pk_bf16_f32 v{U+i}, v{U+2*i}, v{U+2*i+1}"):
                c.append((x, 0))
        c.append((f"buffer_store_dwordx4 {vr(U,4)}, v{vSX}, {WS}, s{sXS} offen sc1", 1))
        c.append((f"v_add_u32 v{vSX}, {7*1024}, v{vSX}", 1))
        c.append((f"buffer_store_dwordx4 {vr(U+4,4)}, v{vSX}, {WS}, s{sXS} offen sc1", 1))
        for rnd in (1, 2):
            c.append((f"s_waitcnt vmcnt(@since:sl{rnd})", 1, 0, rnd))
            for h in range(2):
                for e in range(8):
                    c.append((f"v_accvgpr_read_b32 v{GT+e}, a{SLD+16*rnd+2*e+h}", 2 if e == 0 else 0))
                for jj in range(2):
                    o = GT+8+4*jj
                    for p in range(4):
                        c.append((f"v_perm_b32 v{o+p}, v{GT+2*p+1}, v{GT+2*p}, s{(sCLAMP, sFIRST)[jj]}", 0))
                    if rnd == 1: c.append((f"buffer_store_dwordx4 {vr(o,4)}, v{vL16}, {WS}, s{sD[rnd]} offen offset:{(2*h+jj)*1024} sc1", 1))
                    else:
                        c.append((f"buffer_store_dwordx4 {vr(o,4)}, v{vSF}, {WS}, s{sD[rnd]} offen sc1", 1))
                        c.append((f"v_add_u32 v{vSF}, s{sSTR}, v{vSF}", 1))
        c.append((f"s_waitcnt vmcnt(@since:sl0)", 1, 0, 0))
        c.append((f"s_mov_b32 s{sHI}, {f2u(QSCALE):#x}", 1))
        for h in range(2):
            for p in range(4):
                t = GT + (p & 1)*4
                c += [(x, 0) for x in (f"v_accvgpr_read_b32 v{t}, a{SLD+4*p+h}", f"v_accvgpr_read_b32 v{t+1}, a{SLD+4*p+2+h}",
                      f"v_lshlrev_b32 v{t+2}, 16, v{t}", f"v_lshlrev_b32 v{t+3}, 16, v{t+1}", f"v_and_b32 v{t}, 0xffff0000, v{t}", f"v_and_b32 v{t+1}, 0xffff0000, v{t+1}")]
                c += [(f"v_mul_f32 v{t+i}, s{sHI}, v{t+i}", 0) for i in range(4)]
                c += [(f"v_cvt_pk_bf16_f32 v{GT+8+p}, v{t+2}, v{t+3}", 0), (f"v_cvt_pk_bf16_f32 v{GT+12+p}, v{t}, v{t+1}", 0)]
            if h == 1: c.append((f"s_add_u32 s{sD[0]}, s{sD[0]}, 4096", 1))
            for jj in range(2):
                c.append((f"buffer_store_dwordx4 {vr(GT+8+4*jj,4)}, v{vL16}, {WS}, s{sD[0]} offen offset:{jj*2048} sc1", 1))
        c += [(x, 0) for x in (f"v_add_u32 v{vDMA}, s{sW4K}, v{vL16}", f"v_mov_b32 v{vRD}, v{vL16}", f"v_lshrrev_b32 v{GT}, 4, v{vLANE}",
              f"v_lshlrev_b32 v{GT}, 2, v{GT}", f"v_and_b32 v{GT+1}, 15, v{vLANE}", f"v_sub_u32 v{GT}, v{GT+1}, v{GT}")]
        c += [(f"v_cmp_gt_i32 s[{sMASK+2*r}:{sMASK+2*r+1}], {r}, v{GT}", 0) for r in range(4)]
        return Chain(c, XG4)
    def reads(kk, buf):
        ra = [f"ds_read_b128 {ar(FA(buf,m),4)}, v{RA[kk]} offset:{m*2048}" for m in range(8)]
        rb = [f"ds_read_b64_tr_b16 {ar(FB(buf,n)+2*sec,2)}, v{RB[n&3]} offset:{kk*16384+sec*2048+(n>>2)*512}" for n in range(8) for sec in range(2)]
        out = []
        for i in range(8): out += [ra[i], rb[2*i], rb[2*i+1]]
        return out
    stamp(6, True)
    a("s_waitcnt vmcnt(@dma:28)")
    a("s_barrier")
    for r in reads(0, 0): a(r)
    stamp(1)
    a(f"s_cmp_eq_u32 s{sWHICH}, 0")
    a("s_cbranch_scc0 L_gemmV")
    pre_lines = len(a.lines)
    sJT = sT+2
    def xjob(J, key, i, base, early, late, rot=0):
        u, qt = i >> 1, i & 1
        J.add(key, f"s_add_u32 s{sJT}, s{base}, {qt*14336+((u+rot)%14)*1024}", f"buffer_load_dwordx4 {ar(X(qt,u),4)}, v{vL16}, {WS}, s{sJT} offen{ld()} ; @{key}", early, late - (3 - (i & 3))*8)
    def kvjob(J, c, early, late):
        blk = c >> 2
        J.add("kv", f"s_add_u32 s{sJT}, s{sKVI if blk & 1 else sKVB}, {(blk>>1)*US+(c&3)*1024}",
              f"buffer_store_dwordx4 {vr(PK(c),4)}, v{vL16}, {WS}, s{sJT} offen{OPT['kvsc']} ; @kv", early, late)
    pw, t6, t7 = sEV, sCNT, sND
    setup = f"""
    s_lshl_b32 s{pw}, s{sHEAD}, 3
    s_and_b32 s{t6}, s{sJ}, 7
    s_add_u32 s{pw}, s{pw}, s{t6}
    s_lshl_b32 s{pw}, s{pw}, 2
    s_add_u32 s{pw}, s{pw}, s{sWAVE}
    s_mul_i32 s{sQST}, s{pw}, {Q_W}
    s_add_u32 s{sQST}, s{sQST}, {WS_QF}
    s_mul_i32 s{sPT}, s{pw}, {PT_W}
    s_add_u32 s{sPT}, s{sPT}, {WS_PT}
    s_lshl_b32 s{sFQ}, s{pw}, 2
    s_add_u32 s{sFQ}, s{sFQ}, {WS_FLG + FL_Q}
    s_mul_i32 s{t7}, s{sWAVE}, {28*1024}
    s_add_u32 s{t7}, s{t7}, {WS_PS}
    s_mul_i32 s{pw}, s{sHEAD}, 7
    s_add_u32 s{pw}, s{pw}, s{t6}
    s_lshr_b32 s{t6}, s{pw}, 4
    s_and_b32 s{sFSG}, s{pw}, 15
    s_lshl_b32 s{sT+3}, s{t6}, 9
    s_mul_i32 s{sPSG}, s{sFSG}, {PS_R}
    s_add_u32 s{sPSG}, s{sPSG}, s{t7}
    s_mul_i32 s{pw}, s{t6}, {PS_SRC}
    s_add_u32 s{sPSG}, s{sPSG}, s{pw}
    s_add_u32 s{sPSG}, s{sPSG}, {16*PS_SRC}
    s_lshl_b32 s{sFSG}, s{sFSG}, 9
    s_lshl_b32 s{pw}, s{t6}, 2
    s_add_u32 s{sFSG}, s{sFSG}, s{pw}
    s_lshl_b32 s{pw}, s{sWAVE}, 7
    s_add_u32 s{pw}, s{pw}, {WS_FLG + FL_S}
    s_add_u32 s{sFSG}, s{sFSG}, s{pw}
    s_add_u32 s{sFSG}, s{sFSG}, 64
    s_lshr_b32 s{t6}, s{sJ}, 3
    s_mul_i32 s{t6}, s{t6}, 7
    s_xor_b32 s{t6}, s{t6}, 7
    s_xor_b32 s{t6}, s{t6}, s{sJ}
    s_mul_i32 s{sPSS}, s{t6}, {PS_R}
    s_add_u32 s{sPSS}, s{sPSS}, s{t7}
    s_mul_i32 s{t7}, s{sHEAD}, {PS_SRC}
    s_add_u32 s{sPSS}, s{sPSS}, s{t7}
    s_lshl_b32 s{sFSS}, s{t6}, 9
    s_add_u32 s{sFSS}, s{sFSS}, s{pw}
    s_lshl_b32 s{t7}, s{sHEAD}, 2
    s_add_u32 s{sFSS}, s{sFSS}, s{t7}
    s_lshl_b32 s{sND}, s{sQI}, 2
    s_add_u32 s{sND}, s{sND}, s{sWAVE}
    s_lshr_b32 s{sCNT}, s{sU1}, 1
    s_sub_u32 s{sCNT}, s{sCNT}, 1
    s_lshr_b32 s{sEV}, s{sJ}, 3
    """.strip().split("\n")
    setup = [(x.strip(), 1) for x in setup]
    setup.append((f"s_cmp_eq_u32 s{sTYPE}, 1\ns_cselect_b32 s{sQST}, {OOB}, s{sQST}\ns_cselect_b32 s{sFSG}, {OOB}, s{sFSG}", 1))
    setup2 = [(x, 1) for x in (f"s_mov_b32 s{sTAU}, 4", f"s_add_u32 s{sM0}, s{sW4K}, {8*16384}", f"s_add_u32 s{sOFFB}, s{sW0}, {8*16384}",
              f"s_mov_b32 s{sRDD}, {-131072}", f"s_mov_b32 s{gMA}, {-131072}", f"s_mov_b32 s{gMB}, 32768", f"s_mov_b32 m0, s{sM0}")]
    for typ in ("K", "V"):
        if typ == "V":
            a.label("L_gemmV")
            for l in a.lines[:pre_lines]:
                if l.strip().startswith("buffer_") or "@merge" in l: a.raw("@ghost " + l.strip())
        def pos(m, n): return m*8+n if typ == "K" else (m >> 1)*16 + n*2 + (m & 1)
        def substep(it, kk, groups, loop=False, lg0=False):
            buf = kk
            mf = []
            for m in range(8):
                for n in range(8):
                    acc = accreg(pos(m, n))
                    c = "0" if (it == 0 and kk == 0) else acc
                    x, y = ar(FB(buf,n),4), ar(FA(buf,m),4)
                    if typ == "V": x, y = y, x
                    mf.append(f"{MF} {acc}, {x}, {y}, {c}")
            st = Stage(mf)
            K = OPT["pfk"]; n = it*2+kk
            st.put(-1, f"s_waitcnt vmcnt(@dma:{24 if kk == 0 else 16}) lgkmcnt({0 if (lg0 or n == 0 or n > 27) else K})")
            if K and n < 27:
                for i in range(K): st.put(48 + 2*(i//2) + (6 if kk == 0 else 0) if i < (10 if kk == 0 else 16) else 63, f"ds_read_b32 a206, v{vL16}")
            if K and (loop or it + 2 + OPT["pfd"] <= 15):
                for g, o in zip((3, 7, 11, 19, 23, 35, 47, 51), OPT["pfo"]): st.put(g, f"s_load_dword s{sPD}, s[{sPF}:{sPF+1}], {kk*8192+o}")
                if kk == 1:
                    if loop: st.put(54, f"s_cmp_lt_u32 s{gIT}, {13-OPT['pfd']}\ns_cselect_b32 s{sT+1}, {64*8192}, 0"); st.put(55, f"s_add_u32 s{sPF}, s{sPF}, s{sT+1}\ns_addc_u32 s{sPF+1}, s{sPF+1}, 0")
                    else: st.put(55, f"s_add_u32 s{sPF}, s{sPF}, {64*8192}\ns_addc_u32 s{sPF+1}, s{sPF+1}, 0")
            st.put(-1, "s_barrier")
            last = (it == 15 and kk == 1)
            g, dg = 1, 4
            for kind in groups:
                m0, ins = dma_group(kind)
                st.put(g-1, m0[0])
                if len(m0) > 1: st.put(g-2, m0[1])
                for i in ins:
                    st.put(g, i); g += dg
            rd = reads(kk ^ 1, buf ^ 1) if not last else [f"ds_read_b128 {ar(FR(f),4)}, v{vRD} offset:{f*1024}" for f in range(12)]
            for i, r in enumerate(rd): st.put(i*2, r)
            if kk == 0:
                if it < 15:
                    for g, x in zip((10, 14, 15, 16, 18), [f"s_add_u32 s{gCNT}, s{gCNT}, 1", f"s_cmp_eq_u32 s{gCNT}, 3", f"s_cselect_b32 s{gD}, 2, -1",
                             f"s_cselect_b32 s{gCNT}, 0, s{gCNT}", f"s_lshl_b32 s{gD}, s{gD}, 16"]): st.put(g, x)
                    st.scc_busy |= {14, 15}
                    for i, x in enumerate([f"v_subrev_u32 v{RA[0]}, s{gD}, v{RA[0]}", f"v_subrev_u32 v{RA[1]}, s{gD}, v{RA[1]}"] + [f"v_xor_b32 v{r}, 0x10000, v{r}" for r in RB]):
                        st.put(48 + 2*(i >> 1), x)
                if it < 13:
                    for g, x in zip((22, 26, 27, 30, 31, 34), advA): st.put(g, x)
                    st.scc_busy |= {30}
                if loop:
                    for g, x in zip((38, 39, 41, 42, 43, 44, 49),
                            [f"s_cmp_eq_u32 s{gIT}, s{gFL}", f"s_cselect_b32 s{sT+1}, 0, {OOB}",
                             f"buffer_atomic_add v{vONE}, v{vFLG}, {sr(sDBG,4)}, s{sT+1} offen sc1",
                             f"s_sub_u32 s{sT+1}, s{gIT}, {12-OPT['flit']}", f"s_cmp_eq_u32 s{sT+1}, s{gFL}", f"s_cselect_b32 s{sT+1}, 0, {OOB}",
                             f"buffer_load_dword v{vPOLL}, v{vFLG}, {sr(sDBG,4)}, s{sT+1} offen sc1 ; @prep"]): st.put(g, x)
            else:
                if it < 13:
                    for g, x in zip((18, 22, 26), advB): st.put(g, x)
                if loop:
                    for g, x in zip((58, 60), [f"s_add_u32 s{gIT}, s{gIT}, 1", f"s_cmp_lt_u32 s{gIT}, 13"]): st.put(g, x)
            if OPT["fine"]:
                st.put(2, f"s_memrealtime s[{sFS}:{sFS+1}]")
                st.put(4, f"v_mov_b32_dpp v0, v0 wave_shr:1 row_mask:0xf bank_mask:0xf")
                st.put(46, f"v_writelane_b32 v0, s{sFS}, 0")
            return st
        ch = side_chain()
        J = Jobs()
        for e in range(8):
            t = [x + e*OPT["slstep"] + (OPT["voff"] if typ == "V" else 0) for x in OPT["slt"]]
            J.add("sl1", f"s_mov_b32 s{sJT}, {(e>>2)*16*896}", f"buffer_load_dwordx2 {ar(SLD+16+2*e,2)}, v{vWO}, {sr(sDBG,4)}, s{sJT} offen offset:{(e&3)*896} ; @sl1", t[0], t[0]+64)
            J.add("sl2", f"s_add_u32 s{sJT}, s{sHI}, {(e&3)*3584}" if e >> 2 else f"s_mov_b32 s{sJT}, {e*3584}",
                  f"buffer_load_dwordx2 {ar(SLD+32+2*e,2)}, v{vW12}, {sr(sW12,4)}, s{sJT} offen ; @sl2", t[1], t[1]+64)
            J.add("sl0", f"s_mov_b32 s{sJT}, {e*8192}", f"buffer_load_dwordx2 {ar(SLD+2*e,2)}, v{vSW}, {G}, s{sJT} offen ; @sl0", t[2], t[2]+64)
        for n in range(2*OPT["npeel"]):
            it, kk = n >> 1, n & 1
            st = substep(it, kk, ("B0",) if kk == 0 else ("B1", "Aa", "Ab"), lg0=(n == 2*OPT["npeel"]-1))
            J.place(st, n, 8, XG4)
            if n == 2*OPT["npeel"]-2:
                assert not J.jobs
                st.put(60, f"s_load_dwordx2 s[{sDBG}:{sDBG+1}], s[0:1], 96")
                st.put(59, f"s_mov_b32 s{sDBG+2}, 256")
                st.put(62, f"s_load_dwordx2 s[{sG}:{sG+1}], s[0:1], 64")
                st.put(63, f"s_mov_b32 s{sG+2}, 3584")
            if n >= 1:
                full = ch.items
                for k, x in enumerate(full):
                    if len(x) > 3:
                        key = f"sl{x[3]}"
                        if any(j[5] == key for j in J.jobs) or J.at[key] + OPT["sld"] > n*64+63:
                            ch.items = full[:k]; break
                        full[k] = (x[0], x[1], max(0, J.at[key] + OPT["sld"] - n*64), x[3])
                rest = full[len(ch.items):] if ch.items is not full else []
                ch.base = n*64; ch.minD = OPT["smin"]
                ch.fill(st, OPT["voff"] if (typ == "V" and n == 1) else 0)
                ch.items = ch.items + rest
                if typ == "K": print("substep", n, "chain left", len(ch.items), file=sys.stderr)
            st.emit(a)
        assert not ch.items, len(ch.items)
        assert (ch.lastD >> 6) + 4 <= 2*OPT["flit"] and OPT["flit"] >= OPT["npeel"], ch.lastD
        merge(f"L_loop{typ}", True)
        for kk in range(2):
            substep(5, kk, ("B0",) if kk == 0 else ("B1", "Aa", "Ab"), loop=True).emit(a)
        a(f"s_cbranch_scc1 L_loop{typ}")
        J = Jobs()
        for i in range(20): xjob(J, "x1", i, XO1, 64, 5*64)
        for b in range(8):
            J.add("bias", None, f"buffer_load_dwordx4 {vr(BIAS+4*b,4)}, v{GT+16}, {G}, s{sT+3} offen offset:{(b>>1)*128+(b&1)*16} ; @bias", 5*64 if b in (2, 3) else 3*64, 5*64+24)
        su = Chain(setup)
        st = substep(13, 0, ("B0",))
        st.put(54, "s_waitcnt vmcnt(@since:prep)")
        st.put(54, f"v_readfirstlane_b32 s{sT+1}, v{vPOLL}")
        st.put(56, f"s_lshl_b32 s{sT+4}, s{sWAVE}, 8")
        st.put(58, f"s_add_u32 s{sT+1}, s{sT+1}, s{sT+4}")
        st.put(59, f"s_cmp_lt_u32 s{sT+1}, {256 if OPT['prep'] else 0}")
        st.put(60, f"s_cbranch_scc1 L_prepwait{typ}")
        st.put(60, f"L_prepok{typ}:")
        st.put(56, f"v_lshrrev_b32 v{GT+16}, 4, v{vLANE}")
        st.put(56, f"v_lshlrev_b32 v{GT+16}, 5, v{GT+16}")
        su.fill(st, 0, 52); st.emit(a)
        for n, (it, kk, grp) in enumerate([(13, 1, ("B1", 0, 1)), (14, 0, (2,)), (14, 1, (3, 4, 5)), (15, 0, (6,))]):
            st = substep(it, kk, grp); J.place(st, n+1, 10, XG4); su.fill(st); st.emit(a)
            if n == 1: assert not su.items
        st = substep(15, 1, (7,))
        J.place(st, 5, 2, [17, 21]); assert not J.jobs
        SG = [25, 33, 41, 49, 57, 61]
        for c in range(NE): kvjob(J, c, SG[c], SG[c])
        J.place(st, 0, 8, SG); assert not J.jobs
        su = Chain(setup2); su.fill(st, 30); assert not su.items
        slot_of = {pos(m, n): m*8+n for m in range(8) for n in range(8)}
        pk = []
        for c in range(32):
            e = max(slot_of[2*c], slot_of[2*c+1]) + 3
            if 20 <= c < 20+NE: e = max(e, SG[c-20]+2)
            src = []
            for h in range(2):
                p = 2*c+h
                if p < 52: src += [48+4*p+i for i in range(4)]
                else:
                    for i in range(4):
                        pk.append((f"v_accvgpr_read_b32 v{128+(p-52)*4+i}, a{208+4*(p-52)+i}", 0, e)); src.append(128+(p-52)*4+i)
            for i in range(4): pk.append((f"v_cvt_pk_bf16_f32 v{PK(c)+i}, v{src[2*i]}, v{src[2*i+1]}", 0, e))
        pk = Chain(pk); pk.fill(st)
        for c in range(NE):
            w = [g for g, v in st.fill.items() if any(x.startswith(f"v_cvt_pk_bf16_f32 v{PK(c)+3},") for x in v)]
            assert min(w) < SG[c], (c, w)
        st.emit(a)
        a("s_nop 3")
        print("pack tail", len(pk.items), file=sys.stderr)
        pk.flush(a)
        a("s_waitcnt vmcnt(@since:bias) lgkmcnt(8)")
        a(f"s_cmp_eq_u32 s{sTYPE}, 0")
        a("s_cbranch_scc0 L_P1B")
        if typ == "K": a("s_branch L_P1A")
    def unpack(nt):
        o = []
        for r in range(4):
            x = 4*r + (nt & 3); src = BIAS + (nt >> 2)*8 + (x >> 1)
            o.append(f"v_and_b32 v{O(nt,1)+r}, 0xffff0000, v{src}" if x & 1 else f"v_lshlrev_b32 v{O(nt,1)+r}, 16, v{src}")
        return o
    def p1_jobs(t0, step, slack=8):
        J = Jobs()
        for c in range(20+NE, 32): kvjob(J, c, 0, XG[c-20-NE])
        for k, c in enumerate(range(NE, 20+NE)): kvjob(J, c, t0+k*step, t0+slack+k*step)
        for i in range(20, 28): xjob(J, f"x1{i>>2}", i, XO1, (i >> 2)*64 - 134, (i >> 2)*64 - 70)
        return J
    def xwait(st, key): st.put(62, f"s_waitcnt vmcnt(@since:{key})")
    def flagjob(J, key, after, soff, delay):
        if key in J.at or any(j[5] in (after, key) for j in J.jobs): return
        t = J.at[after] + delay
        J.add(key, f"s_waitcnt vmcnt(@since:{after})", f"buffer_store_dword v{vONE}, v{vFLG}, {WS}, s{soff} offen sc1", t, t+8)
    def split_chain(items, st_prev, mk_next, late_of):
        ch = Chain(items); ch.fill(st_prev)
        rest = ch.items
        for k in range(len(rest)+1):
            st = mk_next()
            c2 = Chain([(x[0], x[1]) for x in rest[k:]])
            before = {gg: len(v) for gg, v in st.fill.items()}
            c2.fill(st)
            if c2.items: continue
            where = {}
            for gg, v in st.fill.items():
                for ins in v[before.get(gg, 0):]: where[ins] = gg
            if all(where[x[0]] <= late_of(x[3]) for x in rest[k:]):
                return rest[:k], st
        raise AssertionError
    def emit_mid(mid):
        if mid: a("s_nop 3")
        Chain(mid).flush(a)
        if mid: a("s_nop 1")
    def post_groups(s, scale):
        out = []
        for qt in range(2):
            for p in range(2):
                t = vT + 16 + (qt*2+p)*4
                regs = [PA(s & 1, nt, qt) + 2*p + rr for rr in range(2) for nt in range(4)]
                ops = [f"v_mul_f32 v{r}, v{vRINV[qt]}, v{r}" for r in regs] if scale else []
                ops += [f"v_cvt_pk_bf16_f32 v{t+i}, v{regs[2*i]}, v{regs[2*i+1]}" for i in range(4)]
                out.append((ops, t))
        return out
    def post_store(s, k, t, base):
        return f"s_add_u32 s{sJT}, s{base}, {s*4096+k*1024}", f"buffer_store_dwordx4 {vr(t,4)}, v{vL16}, {WS}, s{sJT} offen sc1 ; @ps"
    def post_place(st, s, scale, base, gaps):
        for k, (ops, t) in enumerate(post_groups(s, scale)):
            pre, ins = post_store(s, k, t, base)
            st.put(gaps[k]-1, pre); st.put(gaps[k], ins)
    def post_sched(st, s, scale, gaps):
        for k, (ops, t) in enumerate(post_groups(s, scale)):
            prev = None
            for x in ops: prev = st.add(x, [prev], 2, gaps[k]-1)
        st.schedule()
    def post_flush(s, scale, base):
        a("s_nop 5")
        for k, (ops, t) in enumerate(post_groups(s, scale)):
            for x in ops: a(x)
            for x in post_store(s, k, t, base): a(x)
    def mk_post(s):
        st = Stage(mf_post(s)); common_fill(st); return st
    def poll_issue(st, g, voff, soff, tag):
        st.put(g, f"buffer_load_dword v{vPOLL}, v{voff}, {WS}, s{soff} offen sc1 ; @{tag}")
    POLLS = []
    def poll_check(st, g, voff, soff, tag, lane0):
        st.put(g, f"s_waitcnt vmcnt(@since:{tag})")
        if lane0 == "lo16":
            st.put(g, f"v_cmp_ne_u32 vcc, 1, v{vPOLL}")
            st.put(g+2, f"s_and_b32 s{sT+1}, vcc_lo, 0xffff\ns_cbranch_scc1 L_pw_{tag}")
            assert not ({g+1, g+2} & st.scc_busy)
        elif lane0 == "sg":
            st.put(g, f"v_cmp_ne_u32 s[{sT+4}:{sT+5}], 1, v{vPOLL}")
            st.put(g+2, f"s_cmp_lg_u64 s[{sT+4}:{sT+5}], 0\ns_cbranch_scc1 L_pw_{tag}")
            assert not ({g+1, g+2} & st.scc_busy)
        else:
            st.put(g, f"v_cmp_{'eq' if lane0 else 'ne'}_u32 vcc, 1, v{vPOLL}")
            st.put(g+2, f"s_cbranch_vcc{'z' if lane0 else 'nz'} L_pw_{tag}")
        st.put(g+2, f"L_po_{tag}:")
        POLLS.append((tag, voff, soff, lane0))
    XG2 = sorted(XG + [3, 11, 19, 27, 43, 51, 59])
    XG3 = sorted(XG + [5, 13, 21, 29, 45, 53, 61])
    merge("L_P1A")
    stamp(2)
    for x in unpack(0): a(x)
    a("s_nop 1")
    J = p1_jobs(64, OPT["kvstep"])
    for s in range(6):
        st = Stage(mf_proj(s, "bias" if s == 0 else None)); common_fill(st)
        flagjob(J, "kvf", "kv", sFKV, OPT["fdelay"])
        J.place(st, s, OPT["cap"])
        if s == 0:
            for nt in range(1, 16):
                e = XG[2*(nt-13)+1]+2 if nt >= 13 else 0
                for x in unpack(nt): st.add(x, [], e, 4*nt-3)
            st.schedule()
        if s >= 4: xwait(st, f"x1{s+1}")
        st.emit(a)
    st = Stage(mf_proj(6)); common_fill(st)
    flagjob(J, "kvf", "kv", sFKV, OPT["fdelay"]); J.place(st, 6, OPT["cap"])
    items = []
    for ud in range(8):
        for qt in range(2):
            regs = [O(2*ud,qt)+i for i in range(4)] + [O(2*ud+1,qt)+i for i in range(4)]
            e = 8*ud+7+3
            for r in regs: items.append((f"v_mul_f32 v{r}, |v{r}|, v{r}", 0, e, ud))
            for i in range(4): items.append((f"v_cvt_pk_bf16_f32 v{regs[i]}, v{regs[2*i]}, v{regs[2*i+1]}", 0, e, ud))
            for i in range(4): items.append((f"v_pk_max_i16 v{regs[i]}, v{regs[i]}, 0", 0, e, ud))
    import copy
    def mk0():
        st = mk_post(0); J2 = copy.deepcopy(J); J2.place(st, 7, OPT["cap"]); assert not J2.jobs; return st
    mid, st0 = split_chain(items, st, mk0, lambda ud: 8*ud-3)
    print("H mid", len(mid), "kv last", J.at["kv"], file=sys.stderr)
    st.emit(a); emit_mid(mid)
    stamp(3)
    J = Jobs()
    for i in range(16):
        J.add("ql", f"s_add_u32 s{sJT}, s{sQST}, {i*1024}", f"buffer_load_dwordx4 {ar(4*i,4)}, v{vL16}, {WS}, s{sJT} offen sc1 ; @ql", 4*64+46, 6*64+36-(15-i)*4)
    for s in range(7):
        st = st0 if s == 0 else mk_post(s)
        if s == 2: poll_issue(st, 3, vL4, sFKVP, "kva"); poll_check(st, 58, vL4, sFKVP, "kva", "lo16")
        if s == 3: poll_issue(st, 51, vFLG, sFQ, "qa")
        if s == 4: poll_check(st, 42, vFLG, sFQ, "qa", True)
        gaps = [9, 25, 41, 57] if s < 6 else [41, 49, 57, 59]
        if s >= 1: post_place(st, s-1, False, sPSG, gaps)
        J.place(st, s, 7, XG2)
        if s >= 1: post_sched(st, s-1, False, gaps)
        st.emit(a)
    assert not J.jobs
    def mk_F(qb, tag, pre=None):
        st = Stage(mf_qk(0, 0, qb, True) + mf_qk(1, 1, qb, True)); common_fill(st)
        if pre: pre(st)
        place_sm(st, 0, 35, 62, tag, ladd=False, first=True)
        st.schedule()
        return st
    def finit():
        return [(f"v_mov_b64 {vr(NEGM(0)+2*i,2)}, 0", 0) for i in range(4)] + [(f"v_mov_b64 {vr(vL[0],2)}, 0", 0),
                (f"v_mov_b32 v{vBIG}, {f2u(-1e30):#x}", 0), (f"s_mov_b32 s{sFIRST}, 1", 1), (f"s_mov_b32 s{sCLAMP}, {f2u(-3e38):#x}", 1)]
    def f_end(tag, nxt, endl):
        a(f"s_cbranch_vccnz L_fchk_{tag}")
        a.label(f"L_fok_{tag}")
        STUBS.append((f"L_fchk_{tag}", "L_fchk", f"L_fok_{tag}"))
        a(f"s_mov_b32 s{sFIRST}, 0")
        a(f"s_mov_b32 s{sCLAMP}, 0")
        a(f"s_cmp_eq_u32 s{sCNT}, 0")
        a(f"s_cbranch_scc1 {endl}")
        if nxt: a(f"s_branch {nxt}")
    a("s_nop 5")
    for ops, t in post_groups(6, False):
        for x in ops: a(x)
    a("s_waitcnt vmcnt(@since:ql)")
    stamp(4)
    def pre_fa1(st):
        post_place(st, 6, False, sPSG, [9, 17, 25, 33])
        poll_issue(st, 1, vL4, sFKVP, "kv2a"); poll_check(st, 58, vL4, sFKVP, "kv2a", "sg")
    st = mk_F(0, "fa1", pre_fa1)
    c = Chain(finit()); c.fill(st, 0, 30); assert not c.items
    st.emit(a)
    f_end("fa1", "L_s1z0", "L_u2")
    merge("L_P1B")
    stamp(2)
    J = p1_jobs(OPT["kvb0"], OPT["kvstepb"], 200)
    for i in range(28):
        p = i >> 2
        xjob(J, f"x2{p}", i, XO2, max(p+1, 3)*64, (7+p)*64 - 134, 4)
    for i in range(16):
        qt, ud = i & 1, i >> 1
        J.add("qs", f"s_add_u32 s{sJT}, s{sQST}, {(qt*8+ud)*1024}", f"buffer_store_dwordx4 {ar(Q(0,qt,ud),4)}, v{vL16}, {WS}, s{sJT} offen{OPT['kvsc']} ; @qs",
              7*64 if ud < 5 else 8*64, 7*64+20+i*OPT["qstep"])
    def bstage(gs):
        s = gs % 7
        st = Stage(mf_proj(s, "zero" if gs % 7 == 0 else None))
        nod = 3 <= gs <= 7
        common_fill(st, dma=not nod, nd={3: 16, 4: 8, 5: 0}.get(gs), novm=(6 <= gs <= 10), rdl=(gs == 7))
        if gs == 9: poll_issue(st, 3, vL4, sFKVP, "kvb"); poll_check(st, 58, vL4, sFKVP, "kvb", "lo16")
        flagjob(J, "kvf", "kv", sFKV, OPT["fdelay"]); flagjob(J, "qf", "qs", sFQ, 72)
        if nod: J.place(st, gs, OPT["capn"], XG3)
        elif gs == 8: J.place(st, gs, OPT["capq"], XG2)
        else: J.place(st, gs, OPT["capb"])
        if gs in (4, 5): xwait(st, f"x1{gs+1}")
        if 6 <= gs < 13: xwait(st, f"x2{gs-6}")
        return st
    for gs in range(6): bstage(gs).emit(a)
    def q_items(qb):
        items = []; cnt = 0
        for ud in range(8):
            blk = ud >> 1
            for qt in range(2):
                e = 16*blk+15+3
                t = vT + 16 + (cnt % 4)*4; cnt += 1
                for i in range(4):
                    jp = 2*(ud & 1) + (i >> 1); tl = 4*blk + 2*(i & 1)
                    items.append((f"v_cvt_pk_bf16_f32 v{t+i}, v{O(tl,qt)+jp}, v{O(tl+1,qt)+jp}", 0, e, 2*blk))
                for i in range(4): items.append((f"v_accvgpr_write_b32 a{Q(qb,qt,ud)+i}, v{t+i}", 0, e, 99 if ud >= 5 else -1))
        return items
    st = bstage(6); st7 = bstage(7)
    mid, st0 = split_chain(q_items(0), st, lambda: copy.deepcopy(st7), lambda ud: 8*ud-1)
    print("E1 mid", len(mid), file=sys.stderr)
    st.emit(a); emit_mid(mid)
    stamp(3)
    st0.emit(a)
    for gs in range(8, 13): bstage(gs).emit(a)
    st = bstage(13)
    assert not J.jobs
    print("B jobs", {k: (v >> 6, v & 63) for k, v in J.at.items()}, file=sys.stderr)
    def mk_fa2():
        STUBS[:] = [x for x in STUBS if "fa2" not in x[0]]
        POLLS[:] = [x for x in POLLS if x[0] != "kv2b"]
        def pre(st): poll_issue(st, 1, vL4, sFKVP, "kv2b"); poll_check(st, 58, vL4, sFKVP, "kv2b", "sg")
        st = mk_F(0, "fa2", pre); c = Chain(finit()); c.fill(st, 0, 30); return st
    mid, st0 = split_chain(q_items(128), st, mk_fa2, lambda ud: 60)
    print("E2 mid", len(mid), file=sys.stderr)
    st.emit(a); emit_mid(mid)
    stamp(4)
    st0.emit(a)
    f_end("fa2", None, "L_u2")
    def steady(b, qb, tag, czero=False):
        st = Stage(mf_pv(0, b^1, czero) + mf_qk(1, b^1, qb)); common_fill(st)
        if b == 0:
            st.put(56, f"s_sub_u32 s{sCNT}, s{sCNT}, 1")
            st.put(58, f"s_cmp_lg_u32 s{sCNT}, s{sEV}")
            st.scc_busy |= set(range(58, 64))
        place_sm(st, b, 0, 62, tag); st.schedule()
        st.emit(a)
        a(f"s_cbranch_vccnz L_dorare_{tag}")
        a.label(f"L_norare_{tag}")
        STUBS.append((f"L_dorare_{tag}", f"L_rare{b}", f"L_norare_{tag}"))
    def loop(qb, n):
        merge(f"L_s1z{n}")
        steady(1, qb, f"z{n}", True)
        a(f"s_branch L_mid{n}")
        merge(f"L_steady{n}", True)
        steady(1, qb, f"s1{n}")
        merge(f"L_mid{n}")
        steady(0, qb, f"s0{n}")
        a(f"s_cbranch_scc1 L_steady{n}")
    loop(0, 0)
    a(f"s_cmp_eq_u32 s{sCNT}, 0")
    a("s_cbranch_scc1 L_end0")
    a(f"""
    s_add_u32 s{sFQ}, s{sFQ}, {FL_P - FL_Q}
    buffer_store_dword v{vONE}, v{vFLG}, {WS}, s{sFSG} offen sc1
    buffer_load_dword v{vPOLL}, v{vFLG}, {WS}, s{sFQ} offen sc1
    s_mov_b32 s{sEV}, 0
    s_branch L_steady0
    """)
    a.label("L_u2")
    for i in range(64): a(f"v_mov_b64 {vr(O0+2*i,2)}, 0")
    merge("L_end0")
    a(f"s_cmp_eq_u32 s{sTYPE}, 2")
    a("s_cbranch_scc1 L_lpack")
    a(f"""
    s_waitcnt vmcnt(16)
    v_cmp_ne_u32 vcc, 1, v{vPOLL}
    s_add_u32 s{sT+3}, s{sPT}, 16384
    s_nop 0
    s_bitcmp1_b32 vcc_lo, 0
    s_cbranch_scc1 L_pw_pt
    """)
    a.label("L_po_pt")
    POLLS.append(("pt", vFLG, sFQ, True))
    a(f"buffer_load_dwordx4 {vr(vSTB,4)}, v{vL16}, {WS}, s{sT+3} offen sc1")
    for i in range(16):
        if i % 4 == 0: a(f"s_add_u32 s{sT+3}, s{sPT}, {i*1024}")
        a(f"buffer_load_dwordx4 {ar(128+4*i,4)}, v{vL16}, {WS}, s{sT+3} offen offset:{(i&3)*1024} sc1 ; @ptl")
    def pack_items(e0, step):
        items = []
        for ud in range(8):
            for qt in range(2):
                regs = [O(2*ud,qt)+i for i in range(4)] + [O(2*ud+1,qt)+i for i in range(4)]
                for i in range(4): items.append((f"v_cvt_pk_bf16_f32 v{regs[i]}, v{regs[2*i]}, v{regs[2*i+1]}", 0, e0+step*ud, ud))
        return items
    def mk_L(tag):
        st = Stage(mf_pv(0, 0) + mf_pv(1, 1)); common_fill(st)
        place_sm(st, 1, 0, 30, tag); st.schedule()
        st.put_post(31, f"s_cbranch_vccnz L_dorare_{tag}")
        st.put_post(31, f"L_norare_{tag}:")
        STUBS.append((f"L_dorare_{tag}", "L_rare1", f"L_norare_{tag}"))
        st.put(32, f"v_add_f32 v{vL[0]}, v{vL[0]}, v{vSUM[0][0]}")
        st.put(34, f"v_add_f32 v{vL[1]}, v{vL[1]}, v{vSUM[1][0]}")
        return st
    st = mk_L("ln")
    c = [(f"v_bfe_u32 v{vT+20}, v{vLANE}, 2, 2", 0), (f"v_lshrrev_b32 v{vT+21}, 4, v{vLANE}", 0), (f"v_cmp_eq_u32 s[{sT+4}:{sT+5}], v{vT+20}, v{vT+21}", 0),
         (f"v_and_b32 v{vT+20}, 3, v{vLANE}", 0), (f"v_lshlrev_b32 v{vT+20}, 4, v{vT+20}", 0), (f"v_mov_b32 v{vT+22}, 0x3f80", 0), (f"v_mov_b32 v{vT+23}, 0", 0),
         (f"v_cndmask_b32 v{vT+22}, 0, v{vT+22}, s[{sT+4}:{sT+5}]", 1), (f"v_lshlrev_b64 {vr(vSEL+2,2)}, v{vT+20}, {vr(vT+22,2)}", 0),
         (f"v_mov_b64 {vr(vSEL,2)}, 0", 0), (f"v_mov_b64 {vr(vSEL+4,2)}, 0", 0),
         ("s_waitcnt vmcnt(@since:ptl)", 1, 55),
         (f"v_cmp_neq_f32 vcc, v{NEGM(0)}, v{vSTB}", 1), (f"v_cmp_neq_f32 s[{sT+4}:{sT+5}], v{NEGM(1)}, v{vSTB+1}", 0)]
    c = Chain(c); c.fill(st, 35); assert not c.items
    st.emit(a)
    a(f"s_or_b64 vcc, vcc, s[{sT+4}:{sT+5}]")
    a("s_cbranch_scc1 L_slowcomb")
    a.label("L_comb")
    stamp(5)
    mf = []
    for ud in range(8):
        for h in range(2):
            for qt in range(2):
                d = vr(O(2*ud+h,qt),4)
                mf.append(f"{MF} {d}, {vr(vSEL+2-2*h,4)}, {ar(128+(ud*2+qt)*4,4)}, {d}")
    st = Stage(mf)
    st.put(0, f"v_add_f32 v{vL[0]}, v{vL[0]}, v{vSTB+2}")
    st.put(0, f"v_add_f32 v{vL[1]}, v{vL[1]}, v{vSTB+3}")
    c = Chain(pack_items(6, 4)); c.fill(st, 0, 31)
    st.emit(a)
    a("s_nop 5")
    c.flush(a)
    a("s_branch L_post2")
    merge("L_lpack")
    st = mk_L("lp")
    c = Chain([(f"v_mov_b32 v{vSTAT}, v{NEGM(0)}", 0), (f"v_mov_b32 v{vSTAT+1}, v{NEGM(1)}", 0), (f"v_mov_b64 {vr(vSTAT+2,2)}, {vr(vL[0],2)}", 0)] + pack_items(38, 4))
    c.fill(st, 35)
    st.put(62, f"s_cmp_eq_u32 s{sTYPE}, 2")
    st.emit(a)
    a("s_nop 5")
    print("Lpack tail", len(c.items), file=sys.stderr)
    c.flush(a)
    a("s_cbranch_scc0 L_post2b")
    stamp(5)
    a(f"""
    s_mov_b32 s{sTYPE}, 3
    s_mov_b32 s{sN}, 0
    s_sub_u32 s{sND}, 15, s{sQI}
    s_lshl_b32 s{sND}, s{sND}, 2
    s_add_u32 s{sND}, s{sND}, s{sWAVE}
    s_lshr_b32 s{sCNT}, s{sU2}, 1
    s_sub_u32 s{sCNT}, s{sCNT}, 1
    s_sub_u32 s{sEV}, s{sCNT}, 1
    s_add_u32 s{sFQ}, s{sFQ}, {FL_P - FL_Q}
    s_add_u32 s{sT+3}, s{sPT}, 16384
    buffer_store_dwordx4 {vr(vSTAT,4)}, v{vL16}, {WS}, s{sT+3} offen sc1
    """)
    st = mk_F(128, "fb")
    c = []
    for i in range(16):
        if i % 4 == 0: c.append((f"s_add_u32 s{sT+3}, s{sPT}, {i*1024}", 1))
        c.append((f"buffer_store_dwordx4 {vr(O(2*(i>>1),i&1),4)}, v{vL16}, {WS}, s{sT+3} offen offset:{(i&3)*1024}{OPT['kvsc']}", 1))
    c = Chain(c); c.fill(st)
    c2 = Chain(finit()); c2.fill(st, 0, 30); assert not c2.items
    print("Fb leftover", len(c.items), file=sys.stderr)
    st.emit(a)
    c.flush(a)
    f_end("fb", None, "L_end")
    loop(128, 1)
    a(f"""
    s_cmp_eq_u32 s{sTYPE}, 3
    s_cbranch_scc0 L_lpack
    s_waitcnt vmcnt(16)
    buffer_store_dword v{vONE}, v{vFLG}, {WS}, s{sFQ} offen sc1
    s_mov_b32 s{sTYPE}, 4
    s_mov_b32 s{sEV}, 0
    s_cmp_eq_u32 s{sCNT}, 0
    s_cbranch_scc1 L_lpack
    s_branch L_steady1
    """)
    a.label("L_post2b")
    merge("L_post2")
    stamp(6)
    a("s_nop 1")
    C0, CO, FP = sU1, sU2, sW0
    XO = [sCNT, sEV]; BO = [sN, sND]
    vXO, vBO, vC1, vFG, vFS = 44, 45, 46, 47, 48
    fs = f"""
    s_load_dwordx2 s[{sSA}:{sSA+1}], s[0:1], 0
    s_load_dwordx2 s[{sG}:{sG+1}], s[0:1], 80
    s_load_dwordx2 s[{sSB}:{sSB+1}], s[0:1], 88
    s_mov_b32 s{sSA+2}, {2048*896}
    s_mov_b32 s{sSB+2}, {2048*896}
    s_mov_b32 s{sG+2}, 896
    s_and_b32 s{C0}, s2, 3
    s_mul_i32 s{C0}, s{C0}, 7
    s_lshl_b32 s{sT}, s{sWAVE}, 1
    s_add_u32 s{C0}, s{C0}, s{sT}
    s_lshr_b32 s{sT}, s2, 4
    s_mul_i32 s{CO}, s{sT}, {PS_R}
    s_bfe_u32 s{sT+4}, s2, 0x20002
    s_mul_i32 s{sT+5}, s{sT+4}, {28*1024}
    s_add_u32 s{CO}, s{CO}, s{sT+5}
    s_lshl_b32 s{sT+5}, s{C0}, 10
    s_add_u32 s{CO}, s{CO}, s{sT+5}
    s_add_u32 s{CO}, s{CO}, {WS_PS}
    s_lshr_b32 s{FP}, s2, 2
    s_lshl_b32 s{FP}, s{FP}, 7
    s_add_u32 s{FP}, s{FP}, {WS_FLG + FL_S}
    v_min_u32 v{vFG}, 6, v{vLANE}
    v_lshl_add_u32 v{vFG}, v{vFG}, 2, 64
    v_and_b32 v{vXO}, 15, v{vLANE}
    v_lshlrev_b32 v{vFS}, 2, v{vXO}
    s_lshr_b32 s{sT+5}, s2, 2
    s_lshl_b32 s{sT+5}, s{sT+5}, 5
    v_add_u32 v{vXO}, s{sT+5}, v{vXO}
    v_mul_u32_u24 v{vXO}, 896, v{vXO}
    v_and_b32 v{vBO}, 48, v{vLANE}
    v_lshlrev_b32 v{vBO}, 1, v{vBO}
    v_add_u32 v{vXO}, v{vXO}, v{vBO}
    """
    for k in range(2):
        fs += f"""
        s_add_u32 s{sT}, s{C0}, {k}
        s_lshr_b32 s{sT+4}, s{sT}, 2
        s_lshl_b32 s{BO[k]}, s{sT+4}, 7
        s_and_b32 s{sT+4}, s{sT}, 1
        s_lshl_b32 s{sT+4}, s{sT+4}, 4
        s_add_u32 s{BO[k]}, s{BO[k]}, s{sT+4}
        s_bfe_u32 s{sT+4}, s{sT}, 0x10001
        s_mul_i32 s{XO[k]}, s{sT+4}, {16*896}
        s_add_u32 s{XO[k]}, s{XO[k]}, s{BO[k]}
        """
    fs = [(x.strip(), 1) for x in fs.split("\n") if x.strip()]
    fs.append((f"s_cmp_eq_u32 s{sWAVE}, 3\ns_cselect_b32 s{XO[1]}, {OOB}, s{XO[1]}\ns_cselect_b32 s{sT+4}, {OOB}, 0", 1))
    fs.append((f"v_add_u32 v{vC1}, s{sT+4}, v{vL16}", 1))
    fs = Chain(fs)
    J = Jobs()
    GL = 128
    for k in range(2):
        J.add("gl", None, f"buffer_load_dwordx4 {ar(GL+56+4*k,4)}, v{vXO}, {sr(sSA,4)}, s{XO[k]} offen", 3*64, 7*64)
        J.add("gl", None, f"buffer_load_dwordx4 {ar(GL+64+4*k,4)}, v{vBO}, {G}, s{BO[k]} offen", 3*64, 7*64)
    for n in range(7):
        for k in range(2):
            J.add("gl", f"s_add_u32 s{sJT}, s{CO}, {(16+n)*PS_SRC}", f"buffer_load_dwordx4 {ar(GL+n*8+4*k,4)}, v{(vL16, vC1)[k]}, {WS}, s{sJT} offen offset:{k*1024} sc1 ; @gl", 4*64, 7*64)
    for s in range(7):
        st = Stage(mf_post(s)); common_fill(st, dma=(s < 3), nd=(None, None, None, 16, 8, 0, 0)[s], last=(s == 6))
        if s == 0:
            c = xlane_ops("v_add_f32", vL[0], vT) + xlane_ops("v_add_f32", vL[1], vT) + [(f"v_rcp_f32 v{vRINV[0]}, v{vL[0]}", 0), (f"v_rcp_f32 v{vRINV[1]}, v{vL[1]}", 1)]
            c = Chain(c); c.fill(st); assert not c.items
            fs.fill(st)
        else:
            gaps = [17, 33, 49, 57]
            post_place(st, s-1, True, sPSS, gaps)
            if s == 2: st.put(60, "s_waitcnt lgkmcnt(0)")
            if s == 2: poll_issue(st, 41, vFG, FP, "gf")
            if s == 3: poll_check(st, 58, vFG, FP, "gf", False)
            J.place(st, s, 7, [1, 9, 13, 25, 29, 41, 45, 61])
            post_sched(st, s-1, True, gaps)
            fs.fill(st)
            if s == 1: assert not fs.items
        st.emit(a)
    assert not J.jobs
    post_flush(6, True, sPSS)
    stamp(7)
    a(f"s_mov_b32 s{sT+4}, 0x00003f80")
    a(f"s_mov_b32 s{sT+5}, 0x3f800000")
    a(f"s_mov_b32 s{sT+6}, 0xffff0000")
    a(f"s_mov_b32 s{sT+7}, {f2u(-1.4426950408889634):#x}")
    LB = 128; TB = 64
    XB, BB = TB+56, 52
    GA, SA_ = 12, 28
    a("s_waitcnt vmcnt(@since:gl)")
    for i in range(64): a(f"v_accvgpr_read_b32 v{TB+i}, a{GL+i}")
    for i in range(8): a(f"v_accvgpr_read_b32 v{BB+i}, a{GL+64+i}")
    def accum(base, acc, first):
        for i in range(8):
            r = base+i
            if first:
                a(f"v_lshlrev_b32 v{acc+2*i}, 16, v{r}"); a(f"v_and_b32 v{acc+2*i+1}, s{sT+6}, v{r}")
            else:
                a(f"v_dot2_f32_bf16 v{acc+2*i}, v{r}, s{sT+4}, v{acc+2*i}"); a(f"v_dot2_f32_bf16 v{acc+2*i+1}, v{r}, s{sT+5}, v{acc+2*i+1}")
    def rnd_pair(r0, r1, t):
        a(f"v_cvt_pk_bf16_f32 v{t}, v{r0}, v{r1}")
        a(f"v_lshlrev_b32 v{r0}, 16, v{t}")
        a(f"v_and_b32 v{r1}, s{sT+6}, v{t}")
    for n in range(7): accum(TB+n*8, GA, n == 0)
    a("s_waitcnt vmcnt(0)")
    a(f"buffer_store_dword v{vONE}, v{vFLG}, {WS}, s{sFSS} offen sc1")
    a("s_nop 0")
    T1, T2, T3 = 2, 3, 4
    for i in range(8):
        g0, g1 = GA+2*i, GA+2*i+1
        rnd_pair(g0, g1, T1)
        a(f"v_lshlrev_b32 v{T2}, 16, v{BB+i}")
        a(f"v_and_b32 v{T3}, s{sT+6}, v{BB+i}")
        a(f"v_add_f32 v{g0}, v{g0}, v{T2}")
        a(f"v_add_f32 v{g1}, v{g1}, v{T3}")
        rnd_pair(g0, g1, T1)
        a(f"v_mul_f32 v{T2}, s{sT+7}, v{g0}")
        a(f"v_mul_f32 v{T3}, s{sT+7}, v{g1}")
        a(f"v_exp_f32 v{T2}, v{T2}")
        a(f"v_exp_f32 v{T3}, v{T3}")
        a("s_nop 0")
        a(f"v_add_f32 v{T2}, 1.0, v{T2}")
        a(f"v_add_f32 v{T3}, 1.0, v{T3}")
        a(f"v_rcp_f32 v{T2}, v{T2}")
        a(f"v_rcp_f32 v{T3}, v{T3}")
        a("s_nop 0")
        a(f"v_mul_f32 v{g0}, v{g0}, v{T2}")
        a(f"v_mul_f32 v{g1}, v{g1}, v{T3}")
        rnd_pair(g0, g1, T1)
    a(f"s_mov_b32 s{sT+1}, 0")
    a(f"s_cmp_lg_u32 s{sWAVE}, 0")
    a("s_cbranch_scc1 L_fgo")
    a.label("L_fpoll")
    a(f"""
    buffer_load_dword v{vPOLL}, v{vFS}, {WS}, s{FP} offen sc1
    s_add_u32 s{sT+1}, s{sT+1}, 1
    s_waitcnt vmcnt(0)
    v_cmp_ne_u32 vcc, 1, v{vPOLL}
    s_cmp_lt_u32 s{sT+1}, 0x10000
    s_cbranch_vccz L_fgo
    s_sleep {OPT['fsleep']}
    s_cbranch_scc1 L_fpoll
    """)
    a.label("L_fgo")
    a("s_barrier")
    stamp(8)
    for n in range(16):
        a(f"s_add_u32 s{sT}, s{CO}, {n*PS_SRC}")
        a(f"buffer_load_dwordx4 {vr(LB+n*8,4)}, v{vL16}, {WS}, s{sT} offen sc1")
        a(f"buffer_load_dwordx4 {vr(LB+n*8+4,4)}, v{vC1}, {WS}, s{sT} offen offset:1024 sc1")
    for n in range(16):
        a(f"s_waitcnt vmcnt({2*(15-n)})")
        accum(LB+n*8, SA_, n == 0)
    a("s_nop 2")
    for i in range(8):
        g0, g1, s0, s1 = GA+2*i, GA+2*i+1, SA_+2*i, SA_+2*i+1
        rnd_pair(s0, s1, T1)
        a(f"v_mul_f32 v{g0}, v{g0}, v{s0}")
        a(f"v_mul_f32 v{g1}, v{g1}, v{s1}")
        rnd_pair(g0, g1, T1)
        a(f"v_lshlrev_b32 v{T2}, 16, v{XB+i}")
        a(f"v_and_b32 v{T3}, s{sT+6}, v{XB+i}")
        a(f"v_add_f32 v{g0}, v{g0}, v{T2}")
        a(f"v_add_f32 v{g1}, v{g1}, v{T3}")
        a(f"v_cvt_pk_bf16_f32 v{LB+i}, v{g0}, v{g1}")
        if i % 4 == 3: a(f"buffer_store_dwordx4 {vr(LB+i-3,4)}, v{vXO}, {sr(sSB,4)}, s{XO[i>>2]} offen")
    if stamps:
        a("s_waitcnt vmcnt(0)")
        stamp(9)
        a("s_waitcnt lgkmcnt(0)")
        for i in range(12): a(f"v_mov_b32 v{16+i}, s{streg(min(i,9))}")
        a(f"""
        s_lshl_b32 s{sT+1}, s2, 2
        s_add_u32 s{sT+1}, s{sT+1}, s{sWAVE}
        s_lshl_b32 s{sT+1}, s{sT+1}, 6
        s_add_u32 s{sT+1}, s{sT+1}, {WS_STAMP}
        buffer_store_dwordx4 v[16:19], v{vFLG}, {WS}, s{sT+1} offen
        buffer_store_dwordx4 v[20:23], v{vFLG}, {WS}, s{sT+1} offen offset:16
        buffer_store_dwordx4 v[24:27], v{vFLG}, {WS}, s{sT+1} offen offset:32
        s_sub_u32 s{sT+1}, s{sT+1}, {WS_STAMP}
        s_lshl_b32 s{sT+1}, s{sT+1}, 3
        s_add_u32 s{sT+1}, s{sT+1}, {WS_STAMP + 0x100000}
        v_lshlrev_b32 v2, 2, v{vLANE}
        buffer_store_dword v0, v2, {WS}, s{sT+1} offen
        buffer_store_dword v{vKV}, v2, {WS}, s{sT+1} offen offset:256
        """)
    a.label("L_end")
    a("s_endpgm")
    for typ in ("K", "V"):
        a.label(f"L_prepwait{typ}")
        a(f"s_mov_b32 s{sT+2}, 0")
        a.label(f"L_prepw2{typ}")
        a(f"""
        s_sleep 4
        buffer_load_dword v{vPOLL}, v{vFLG}, {sr(sDBG,4)}, 0 offen sc1
        s_add_u32 s{sT+2}, s{sT+2}, 1
        s_waitcnt vmcnt(0)
        v_readfirstlane_b32 s{sT+1}, v{vPOLL}
        s_cmp_ge_u32 s{sT+2}, 0x10000
        s_cbranch_scc1 L_prepok{typ}
        s_cmp_lt_u32 s{sT+1}, 256
        s_cbranch_scc1 L_prepw2{typ}
        s_branch L_prepok{typ}
        """)
    for (tag, voff, soff, lane0) in POLLS:
        a.label(f"L_pw_{tag}")
        a(f"s_mov_b32 s{sT+1}, 0")
        a.label(f"L_pw2_{tag}")
        a(f"""
        buffer_load_dword v{vPOLL}, v{voff}, {WS}, s{soff} offen sc1
        s_add_u32 s{sT+1}, s{sT+1}, 1
        s_waitcnt vmcnt(0)
        v_cmp_ne_u32 s[{sT+4}:{sT+5}], 1, v{vPOLL}
        s_cmp_ge_u32 s{sT+1}, 0x10000
        s_cbranch_scc1 L_po_{tag}
        s_sleep {OPT['psleep']}
        """)
        if lane0 == "lo16": a(f"s_and_b32 s{sT+4}, s{sT+4}, 0xffff")
        elif lane0 is True: a(f"s_bitcmp1_b32 s{sT+4}, 0")
        else: a(f"s_cmp_lg_u64 s[{sT+4}:{sT+5}], 0")
        a(f"s_cbranch_scc1 L_pw2_{tag}")
        a(f"s_branch L_po_{tag}")
    for (lab, sub, back) in STUBS:
        a.label(lab)
        a(f"s_call_b64 s[{sRET}:{sRET+1}], {sub}")
        a(f"s_branch {back}")
    for b in range(2):
        a.label(f"L_mask{b}")
        a("s_nop 7")
        a(f"s_cmp_eq_u32 s{sN}, s{sND}")
        a(f"s_cbranch_scc0 L_maskall{b}")
        for r in range(4):
            a(f"v_cndmask_b32 v{S(b,0,0)+r}, v{S(b,0,0)+r}, v{vBIG}, s[{sMASK+2*r}:{sMASK+2*r+1}]")
            a(f"v_cndmask_b32 v{S(b,1,1)+r}, v{S(b,1,1)+r}, v{vBIG}, s[{sMASK+2*r}:{sMASK+2*r+1}]")
            a(f"v_mov_b32 v{S(b,1,0)+r}, v{vBIG}")
        a(f"s_setpc_b64 s[{sRET}:{sRET+1}]")
        a.label(f"L_maskall{b}")
        for i in range(16): a(f"v_mov_b32 v{S(b,0,0)+i}, v{vBIG}")
        a(f"s_setpc_b64 s[{sRET}:{sRET+1}]")
    a.label("L_fchk")
    hi, lo = f2u(2.0**OPT["thr"]), f2u(2.0**-OPT["thr"])
    a(f"s_add_u32 s{sT+1}, s{sND}, 1")
    a(f"s_cmp_gt_u32 s{sN}, s{sT+1}")
    a("s_cbranch_scc1 L_fret")
    for qt in range(2):
        a(f"v_mov_b32 v{vT+8+qt}, v{vSUM[qt][0]}")
        xlane(a, "v_add_f32", vT+8+qt, vT)
        a(f"v_subrev_u32 v{vT+8+qt}, {lo:#x}, v{vT+8+qt}")
    a(f"v_max_u32 v{vT+8}, v{vT+8}, v{vT+9}")
    a(f"v_cmp_lt_u32 vcc, {hi-lo:#x}, v{vT+8}")
    a("s_nop 4")
    a("s_cbranch_vccnz L_rare0")
    a.label("L_fret")
    a(f"s_setpc_b64 s[{sRET}:{sRET+1}]")
    for b in range(2):
        a.label(f"L_rare{b}")
        a("s_nop 7")
        D = [vT+8, vT+9]; F = [vT+10, vT+11]
        for qt in range(2):
            r0, r1 = S(b,0,qt), S(b,1,qt)
            a(f"v_max3_f32 v{D[qt]}, v{r0}, v{r0+1}, v{r0+2}")
            a(f"v_max3_f32 v{D[qt]}, v{D[qt]}, v{r0+3}, v{r1}")
            a(f"v_max3_f32 v{D[qt]}, v{D[qt]}, v{r1+1}, v{r1+2}")
            a(f"v_max_f32 v{D[qt]}, v{D[qt]}, v{r1+3}")
            xlane(a, "v_max_f32", D[qt], vT)
            a(f"v_max_f32 v{D[qt]}, s{sCLAMP}, v{D[qt]}")
            a(f"v_max_f32 v{F[qt]}, 0, v{D[qt]}")
            a(f"v_exp_f32 v{F[qt]}, -v{F[qt]}")
            for i in range(4): a(f"v_sub_f32 v{NEGM(qt)+i}, v{NEGM(qt)+i}, v{D[qt]}")
            for bb in range(2):
                for kt in range(2):
                    for i in range(4): a(f"v_sub_f32 v{S(bb,kt,qt)+i}, v{S(bb,kt,qt)+i}, v{D[qt]}")
            a(f"v_mul_f32 v{vL[qt]}, v{F[qt]}, v{vL[qt]}")
        for o in sm_ops(b): a(o)
        a(f"s_cmp_eq_u32 s{sFIRST}, 1")
        a(f"s_cbranch_scc1 L_rare_ret{b}")
        for dt in range(16):
            for qt in range(2):
                for i in range(4): a(f"v_mul_f32 v{O(dt,qt)+i}, v{F[qt]}, v{O(dt,qt)+i}")
        a.label(f"L_rare_ret{b}")
        a(f"s_cmp_lg_u32 s{sCNT}, s{sEV}")
        a("s_nop 0")
        a(f"s_setpc_b64 s[{sRET}:{sRET+1}]")
    a.label("L_slowcomb")
    a("s_nop 7")
    wA, wB = [vT+8, vT+9], [vT+10, vT+11]
    for qt in range(2):
        a(f"""
        v_min_f32 v{vT+6}, v{NEGM(qt)}, v{vSTB+qt}
        v_sub_f32 v{wA[qt]}, v{vT+6}, v{NEGM(qt)}
        v_sub_f32 v{wB[qt]}, v{vT+6}, v{vSTB+qt}
        v_exp_f32 v{wA[qt]}, v{wA[qt]}
        v_exp_f32 v{wB[qt]}, v{wB[qt]}
        s_nop 0
        v_mul_f32 v{vL[qt]}, v{wA[qt]}, v{vL[qt]}
        v_mul_f32 v{vSTB+2+qt}, v{wB[qt]}, v{vSTB+2+qt}
        """)
    for dt in range(16):
        for qt in range(2):
            for i in range(4): a(f"v_mul_f32 v{O(dt,qt)+i}, v{wA[qt]}, v{O(dt,qt)+i}")
    for i in range(64):
        qt = (i >> 2) & 1
        a(f"""
        v_accvgpr_read_b32 v{vT}, a{128+i}
        v_lshlrev_b32 v{vT+1}, 16, v{vT}
        v_and_b32 v{vT}, 0xffff0000, v{vT}
        v_mul_f32 v{vT+1}, v{wB[qt]}, v{vT+1}
        v_mul_f32 v{vT}, v{wB[qt]}, v{vT}
        v_cvt_pk_bf16_f32 v{vT}, v{vT+1}, v{vT}
        v_accvgpr_write_b32 a{128+i}, v{vT}
        """)
    a("s_nop 1")
    a("s_branch L_comb")
    a.label("L_codeend")
    lines = []
    for l in a.lines: lines += l.split("\n")
    ghost = [l.startswith("@ghost ") for l in lines]
    lines = [l[7:] if g else l for l, g in zip(lines, ghost)]
    lines = resolve_vm(lines)
    lines = [l.replace("@@buffer", "buffer") for l, g in zip(lines, ghost) if not g]
    errs = check_hazards(lines) + check_scc(lines)
    for e in errs[:30]: print("HAZARD", e, file=sys.stderr)
    lines = [re.sub(r"\s*; @\w+", "", l) for l in lines]
    lines = [l.strip() for l in lines if l.strip()]
    return "\n".join(lines) + "\n", kernel_desc(name, 512, 256)

if __name__ == "__main__":
    import ast
    for x in sys.argv[2:]:
        k, v = x.split("=")
        OPT[k] = ast.literal_eval(v)
    NAME = "recurrent_scan__compressed_kv_cla__dense_activation_squared_relu__prompt_kernel"
    body, desc = gen(NAME)
    ref = open("recurrent_scan__compressed_kv_cla__dense_activation_squared_relu__prompt.s.ref").read().split("\n")
    hdr = [l for l in ref if l.startswith(";") and "launch" not in l and "grid=" not in l]
    hdr += ["; @launch grid=(256,1,1) block=(256,1,1) lds=163840", '.amdgcn_target "amdgcn-amd-amdhsa--gfx950"', ".text"]
    txt = "\n".join(hdr) + "\n" + body + '.section .rodata,"a"\n.p2align 6\n' + desc
    open(sys.argv[1], "w").write(txt)
    print(len(txt), "bytes", file=sys.stderr)
```

```python
import re, struct
from asmlib import *
MF = "v_mfma_f32_16x16x32_bf16"
def f2u(x): return struct.unpack("<I", struct.pack("<f", x))[0]

def cls(ins):
    if ins.endswith(":"): return "L"
    if ins.startswith("s_"): return "S"
    if ins.startswith("ds_"): return "M"
    if ins.startswith("buffer_"): return "D"
    if ins.startswith(("v_exp", "v_rcp", "v_log", "v_rsq", "v_sqrt", "v_readlane", "v_readfirstlane")): return "E"
    return "V"
COST = {"S": 0, "L": 0, "M": 1, "V": 1, "E": 2, "D": 2}

class Stage:
    def __init__(self, mf=None):
        self.mf = mf or []
        self.fill = {}
        self.post = {}
        self.ops = []
        self.scc_busy = set()
        self.tail = []
    def put(self, g, ins):
        self.fill.setdefault(g, []).append(ins)
    def put_post(self, g, ins):
        self.post.setdefault(g, []).append(ins)
    def free(self, g):
        n = 2; ns = 0; nd = 0
        for i in self.fill.get(g, []) + self.post.get(g, []):
            c = cls(i)
            if c == "S": ns += 1
            elif c == "D": nd += 1; n -= 2
            else: n -= COST[c]
        if nd: n -= ns
        else: n -= max(0, ns - 1)
        return n
    def nS(self, g):
        return sum(1 for i in self.fill.get(g, []) + self.post.get(g, []) if cls(i) == "S")
    def hasD(self, g):
        return any(cls(i) == "D" for i in self.fill.get(g, []) + self.post.get(g, []))
    def add(self, ins, deps=(), early=0, late=None, dist=None):
        self.ops.append((ins, [d for d in deps if d is not None], early, late, dist)); return len(self.ops)-1
    def schedule(self, g_end=None, maxover=6, allow_tail=True):
        n = len(self.mf)
        g_end = n-1 if g_end is None else g_end
        ops = self.ops
        for over in range(0, maxover+1):
            placed = {}; used = {}
            for g in range(0, g_end+1):
                fr = self.free(g)
                cap = fr + (over if fr >= 0 and not self.hasD(g) else 0)
                ns = self.nS(g); hasd = self.hasD(g)
                while True:
                    cand = []
                    for i, (ins, deps, early, late, dist) in enumerate(ops):
                        if i in placed or g < early: continue
                        ok = True
                        for d in deps:
                            if d not in placed: ok = False; break
                            if dist is not None:
                                if g - placed[d] < dist: ok = False; break
                            elif placed[d] == g:
                                cd, ci = cls(ops[d][0]), cls(ins)
                                if not ((cd == "V" and ci in "VE") or (cd == "S" and ci != "D") or (cd == "M" and ci in "MVE")):
                                    ok = False; break
                        if ok: cand.append(i)
                    cand.sort(key=lambda i: (ops[i][3] if ops[i][3] is not None else 999, 0 if cls(ops[i][0]) in "ED" else 1, i))
                    got = None
                    for i in cand:
                        c = cls(ops[i][0])
                        must = ops[i][3] is not None
                        mycap = cap if must or not allow_tail else min(cap, fr)
                        if c == "S":
                            if hasd or g in self.scc_busy: continue
                            cost = 0 if ns == 0 else 1
                        elif c == "D":
                            if hasd or (fr < 2 or ns or used.get(g)) and not (must and over >= 2 and mycap >= 2): continue
                            cost = 2
                        else:
                            if hasd: continue
                            cost = COST[c]
                        if cost <= mycap:
                            got = i; break
                    if got is None: break
                    c = cls(ops[got][0])
                    placed[got] = g; cap -= cost; fr -= cost; used.setdefault(g, []).append(got)
                    if c == "S": ns += 1
                    if c == "D": hasd = True
            bad = [i for i, o in enumerate(ops) if (o[3] is not None and placed.get(i, 10**6) > o[3]) or (not allow_tail and i not in placed)]
            if not bad: break
        assert not bad, [ops[i] for i in bad[:5]]
        self.over = over
        for g in sorted(used):
            for i in used[g]: self.put(g, ops[i][0])
        self.tail += [o[0] for i, o in enumerate(ops) if i not in placed]
        self.ops = []
    def emit(self, a, tailpad=None):
        order = {"S": 0, "L": 0, "M": 1, "D": 1, "V": 2, "E": 2}
        f = {}
        for g in set(self.fill) | set(self.post):
            f[g] = sorted(self.fill.get(g, []), key=lambda i: order[cls(i)]) + self.post.get(g, [])
        for l in interleave(self.mf, f): a(l)
        if self.tail and tailpad: a(tailpad)
        for l in self.tail: a(l)

def resolve_vm(lines):
    out = list(lines)
    for i, l in enumerate(lines):
        m = re.search(r"vmcnt\(@(dma|since):(\w+)\)", l)
        if not m: continue
        kind, arg = m.groups()
        cnt = 0; nd = 0; val = None
        for j in range(i-1, -1, -1):
            s = lines[j].strip()
            if "@merge" in s:
                assert kind == "dma", ("tag not found before merge", l)
                val = cnt + (int(arg) - nd); break
            if s.startswith("buffer_"):
                isd = " lds" in s
                if kind == "dma":
                    if isd:
                        if nd == int(arg): val = cnt; break
                        nd += 1
                else:
                    if ("@" + arg) in s.split(): val = cnt; break
                cnt += 1
        assert val is not None, l
        out[i] = l.replace(m.group(0), f"vmcnt({min(val, 63)})")
    return out

def regs_of(tok):
    tok = tok.strip().lstrip("-").strip("|")
    m = re.fullmatch(r"([vas])\[(\d+):(\d+)\]", tok)
    if m: return {(m.group(1), r) for r in range(int(m.group(2)), int(m.group(3))+1)}
    m = re.fullmatch(r"([vas])(\d+)", tok)
    if m: return {(m.group(1), int(m.group(2)))}
    if tok in ("vcc", "m0", "exec"): return {(tok, 0)}
    return set()
def parse(ins):
    ins = ins.split(";")[0].strip()
    op, _, rest = ins.partition(" ")
    toks = [t.strip() for t in rest.split(",")] if rest else []
    if toks: toks[-1:] = toks[-1].split()
    return op, toks
def check_hazards(lines, margin=1):
    t = 0; lastmf = -100
    mfD = {}; mfC = {}; vw = {}; tw = {}; vsw = {}; m0w = -100; stw = {}; dlw = {}
    errs = []
    for ln, raw in enumerate(lines):
        s = raw.split(";")[0].strip()
        if not s or s.endswith(":") or s.startswith("."): continue
        op, toks = parse(s)
        if op == "s_nop":
            t += int(toks[0]) + 1; continue
        if op in ("s_branch", "s_setpc_b64", "s_endpgm"):
            t += 100; continue
        def need(tab, regs, n, what):
            for r in regs:
                if r in tab and t - tab[r] - 1 < n:
                    errs.append((ln, what, raw.strip(), r, t - tab[r] - 1)); return
        R = [regs_of(x) for x in toks]
        if op.startswith("v_mfma"):
            t = max(t, lastmf + 4); lastmf = t
            D, A, B, C = R[0], R[1], R[2], R[3]
            need(vw, A | B | C, 2, "valu->mfma")
            need(dlw, A | B | C, 3, "dot->mfma")
            need(mfD, A | B, 8 + margin, "mfmaD->AB")
            if C != D or True:
                for r in C:
                    if r in mfD and mfD[r][1] != frozenset(C) if False else False: pass
            for r in D: mfD[r] = t
            for r in C: mfC[r] = t
        elif op.startswith("v_"):
            if op.startswith("v_cmp"):
                dst = R[0]; src = set().union(*R[1:]); vd = set()
            elif op.startswith(("v_readlane", "v_readfirstlane")):
                dst = R[0]; src = set().union(*R[1:]); vd = set()
                need(vw, R[1], 1, "valu->readlane")
                if len(R) > 2: need(vsw, R[2], 4, "vsgpr->lanesel")
            else:
                dst = set(); vd = set(R[0]); src = set().union(*R[1:]) if len(R) > 1 else set()
                if op.startswith("v_permlane"): vd |= R[1]; src |= R[0]; need(vw, src, 2, "valu->permlane")
                if op.startswith(("v_fmac", "v_dot2c")): src |= R[0]
                if op.startswith("v_cndmask") and len(toks) == 3: src |= {("vcc", 0)}
                if "dpp" in op: need(vw, src, 2, "valu->dpp")
            need(mfD, src | vd, 8 + margin, "mfmaD->valu")
            need(mfC, vd, 3, "mfmaC->valuW")
            need(tw, src, 1, "trans->valu")
            need(vsw, {r for r in src if r[0] in ("s", "vcc")}, 2, "vsgpr->valu")
            need(stw, vd, 2, "store->valuW")
            if not op.startswith("v_dot"): need(dlw, src | vd, 3, "dot->other")
            for r in vd:
                vw[r] = t
                if cls(op) == "E": tw[r] = t
                if op.startswith("v_dot"): dlw[r] = t
            for r in dst: vsw[r] = t
        elif op.startswith(("buffer_", "ds_")):
            allr = set().union(*R) if R else set()
            need(mfD, allr, 8 + margin, "mfmaD->mem")
            need(vsw, {r for r in allr if r[0] == "s"}, 5, "vsgpr->vmem")
            need(dlw, allr, 3, "dot->mem")
            if "lds" in toks and t - m0w - 1 < 1: errs.append((ln, "m0->dma", raw.strip()))
            if op.startswith("buffer_store") and ("x4" in op or "x3" in op):
                for r in R[0]: stw[r] = t
            elif op.startswith(("buffer_load", "ds_read")) and "lds" not in toks:
                need(stw, R[0], 1, "store->loadW")
        elif op.startswith("s_"):
            if toks and toks[0] == "m0": m0w = t
        t += 1
    return errs

def check_scc(lines):
    errs = []; last = None
    nowr = ("s_mov", "s_mul_i32", "s_waitcnt", "s_nop", "s_barrier", "s_cbranch", "s_branch", "s_cselect", "s_load", "s_memrealtime", "s_memtime", "s_sleep", "s_call", "s_setpc", "s_endpgm", "s_setprio", "s_movk")
    for ln, raw in enumerate(lines):
        s = raw.split(";")[0].strip()
        if not s.startswith("s_"): continue
        op = s.split()[0]
        if op.startswith(("s_cbranch_scc", "s_cselect", "s_addc", "s_subb")):
            ok = last and (last.startswith(("s_cmp", "s_bitcmp", "s_or_b64", "s_and_b32")) or (op.startswith("s_subb") and last.startswith("s_sub_u32")) or (op.startswith("s_addc") and last.startswith("s_add_u32")))
            if not ok: errs.append((ln, "scc", s, last))
        if not op.startswith(nowr): last = op
    return errs

def compact(lines):
    macros = {}; out = []
    R = r"([va])\[(\d+):\d+\]"
    for l in lines:
        m = re.fullmatch(MF + rf" {R}, {R}, {R}, (0|{R})", l)
        if m:
            dt, d, at, a_, bt, b, c, ct, cn = m.groups()
            if c == "0": nm, args, cs = f"Z{dt}{at}{bt}", (d, a_, b), "0"
            elif (ct, cn) == (dt, d): nm, args, cs = f"M{dt}{at}{bt}", (d, a_, b), f"{dt}[\\d:\\d+3]"
            else: nm, args, cs = f"N{dt}{at}{bt}", (d, a_, b, cn), f"{ct}[\\c:\\c+3]"
            macros[nm] = f".macro {nm} d, a, b{', c' if len(args) == 4 else ''}\n{MF} {dt}[\\d:\\d+3], {at}[\\a:\\a+3], {bt}[\\b:\\b+3], {cs}\n.endm"
            out.append(f"{nm} {','.join(args)}"); continue
        m = re.fullmatch(r"ds_read_b128 a\[(\d+):\d+\], v(\d+) offset:(\d+)", l)
        if m:
            macros["RD"] = ".macro RD d, v, o\nds_read_b128 a[\\d:\\d+3], v\\v offset:\\o\n.endm"
            out.append("RD " + ",".join(m.groups())); continue
        m = re.fullmatch(r"ds_read_b64_tr_b16 a\[(\d+):\d+\], v(\d+) offset:(\d+)", l)
        if m:
            macros["RT"] = ".macro RT d, v, o\nds_read_b64_tr_b16 a[\\d:\\d+1], v\\v offset:\\o\n.endm"
            out.append("RT " + ",".join(m.groups())); continue
        out.append(l)
    return list(macros.values()) + out
```

```python
import sys
from fw import *
from layout2 import *

OPT = dict(npro=6, gcap=[4, 4, 3], dg2=8, xpos=3, rotm=1, rot=0, sync=[6, 10, 12, 15, 20, 22], xstep=20, wbl2=0, pfk=0, pfd=4, pfo=[0], pfn=2, smin=0, voff=0, dbgside=0, tlb=0, tlbm=0, tlbs=16, flit=9, npeel=7, slt=[100, 260, 780], slstep=16, sld=180, map2=False, kvb0=256, kvstepb=16, psleep=4, prep=1, pst=False, cpf=True, fine=False, touch=False, sc1ld=" sc1", stamps=False, early=[5, 13, 21, 29], late=[37, 45, 53, 61], cap=7, capb=8, capq=9, capn=12, kvstep=9, a15=38, fsleep=2, fdelay=96, qstep=7, wideloop=False, thr=40, kvsc=" sc1", sidesc=" sc1")

vLANE, vDMA, vTE, vTO, vL16, vRD, vPOLL, vFLG, vONE, vL4, vKV = range(1, 12)
DA = [12, 13, 14, 15]; DB = [16, 17, 18, 19]; RA = [20, 21]; RB = [22, 23, 24, 25]
vSW, vSF, vSX, vG1 = 26, 27, 28, 29
GT = 30
vT = 12
BIAS = 12
O0 = 128
def O(dt, qt): return O0 + (dt*2+qt)*4
def S(b, kt, qt): return 64 + b*16 + (kt*2+qt)*4
def P(b, qt): return 96 + b*8 + qt*4
def NEGM(qt): return 112 + qt*4
vL = [120, 121]
vSUM = [[122, 123], [124, 125]]
vBIG = 126
vSTAT = 44
vSEL = 48
vRINV = [54, 55]
vSTB = 56
def accreg(pos): return vr(48+4*pos, 4) if pos < 52 else ar(208+4*(pos-52), 4)
NE = 6
def PK(c): return 48+4*c if c < 20 else (48+4*(c-20) if c < 20+NE else 48+4*(20+c))
def Q(qb, qt, u): return qb + (qt*8+u)*4
def FR(f): return 64 + (f % 16)*4
def X(qt, u): return 128 + (u*2+qt)*4
def FA(b, m): return (64 if b == 0 else 0) + m*4
def FB(b, n): return (64 if b == 0 else 0) + 32 + n*4
WOL = 192
SLD = 128

sWS, sSA, sSB, sG, sDBG = 4, 8, 12, 16, 20
_n = [24]
def sal(n=1, al=1):
    _n[0] = (_n[0] + al - 1)//al*al
    r = _n[0]; _n[0] += n; return r
sWAVE, sHEAD, sJ, sQI, sWHICH = [sal() for _ in range(5)]
gA0, gA1, gB0, gB1, gMA, gMB, gIT, gD, gCNT, gFL = [sal() for _ in range(10)]
sTAU, sM0, sOFFA, sOFFB, sRDD, sRDS, sXOFF, sXOF2, sN, sND = gA0, gA1, gB0, gB1, gD, gCNT, sal(), sal(), sal(), sal()
sCNT, sEV, sCLAMP, sFIRST = sal(), sal(), sal(), sal()
sRET = sal(2, 2)
sMASK = sal(8, 4)
sTYPE, sU1, sU2, sW0 = sal(), sal(), sal(), sal()
sKVB, sKVI = sal(), sal()
sQST, sPT, sPSG, sPSS = sal(), sal(), sal(), sal()
sFKV, sFKVP, sFQ, sFSG, sFSS = [sal() for _ in range(5)]
sT = sal(8, 4)
sLN = sal(2, 2)
sFS = sal(2, 2); sW4K = 3
sPF = sRET; sPD = sT+5; sEXP = gFL
sSTAMP = sal(0, 2)
NSTAMP = (102 - sSTAMP)//2
print("sgpr used", sSTAMP, "stamps", NSTAMP, file=sys.stderr)
WS = sr(sWS, 4)

STUBS = []
def ld(): return OPT["sc1ld"]

XG = [1, 9, 17, 25, 33, 41, 49, 57]
XG4 = list(range(1, 64, 4))
def common_fill(st, dma=True, nd=None, last=False, novm=False, rdl=False):
    if nd is None: nd = 16 + len(OPT["early"]) + sum(1 for g in OPT["late"] if g < 38)
    for G in range(8):
        g0 = G*8
        Gn = (G+3) % 8
        for i in range(4):
            f = Gn*4+i
            if not (last and G > 4): st.put(g0+2*i, f"ds_read_b128 {ar(FR(f),4)}, v{vRD} offset:{f*1024}")
        if last and G >= 4:
            if G < 7: st.put(g0+6, f"s_waitcnt lgkmcnt({(7, 4, 0)[G-4]})")
        elif G == 4:
            st.put(g0+6, "s_waitcnt lgkmcnt(7)" if novm else f"s_waitcnt vmcnt(@dma:{nd}) lgkmcnt(7)")
            st.put(g0+7, "s_barrier")
            st.put(g0+7, f"v_add_u32 v{vRD}, s{sRDD}, v{vRD}")
        else:
            st.put(g0+6, "s_waitcnt lgkmcnt(7)")
    for i, g in enumerate(OPT["early"] if dma else []):
        st.put(g, f"buffer_load_dwordx4 v{vDMA}, {WS}, s{sOFFB} offen offset:{i*1024}{ld()} lds")
    if dma: st.put(31, f"v_readlane_b32 s{sOFFA}, v{vTO}, s{sTAU}")
    st.put(31, f"s_add_u32 m0, s{sM0}, 16384")
    st.put(34, f"s_add_u32 s{sM0}, s{sM0}, s{sRDD}")
    st.put(36, f"s_cmp_ge_u32 s{sM0}, 131072")
    st.put(38, f"s_cselect_b32 s{sRDD}, s{gMA}, s{gMB}")
    st.put(44, f"s_add_u32 s{sTAU}, s{sTAU}, 1")
    for i, g in enumerate(OPT["late"] if dma else []):
        st.put(g, f"buffer_load_dwordx4 v{vDMA}, {WS}, s{sOFFA} offen offset:{i*1024}{ld()} lds")
    if dma or rdl: st.put(55, f"v_readlane_b32 s{sOFFB}, v{vTE}, s{sTAU}")
    st.put(63, f"s_mov_b32 m0, s{sM0}")
    st.scc_busy |= {36, 37}
    if OPT["fine"]:
        st.put(4, f"s_memrealtime s[{sFS}:{sFS+1}]")
        st.put(6, f"v_mov_b32_dpp v{vKV}, v{vKV} wave_shr:1 row_mask:0xf bank_mask:0xf")
        st.put(62, f"v_writelane_b32 v{vKV}, s{sFS}, 0")

class Jobs:
    def __init__(self): self.jobs = []; self.at = {}
    def add(self, key, pre, ins, early, late): self.jobs.append((late, len(self.jobs), early, pre, ins, key))
    def place(self, st, s, cap=6, grid=None):
        slots = [g for g in (grid or XG) if not st.hasD(g) and st.free(g) == 2 and st.nS(g) == 0]
        n = 0
        avail = len([j for j in self.jobs if j[2] <= s*64+63])
        k = min(cap, avail, len(slots))
        use = [slots[(i*len(slots))//k] for i in range(k)] if k else []
        for g in slots:
            t = s*64+g
            c = sorted(j for j in self.jobs if j[2] <= t)
            if not c: continue
            j = c[0]
            nxt = [x for x in slots if x > g]
            urgent = j[0] < (s*64+nxt[0] if nxt else (s+1)*64+1)
            if not (urgent or (n < cap and (g in use or len(nxt) < k-n))): continue
            assert t <= j[0] + (24 if j[5][0] == "x" else 0) or j[5] in ("qs", "kvf", "qf") or (j[5] == "kv" and j[2] >= 64), ("job late", j, t)
            if j[3]:
                assert g-1 not in st.scc_busy
                st.put(g-1, j[3])
            st.put(g, j[4]); self.jobs.remove(j); self.at[j[5]] = t; n += 1

def mf_pv(half, pb, czero=False):
    return [f"{MF} {vr(O(dt,qt),4)}, {ar(FR(half*16+dt),4)}, {vr(P(pb,qt),4)}, {'0' if czero else vr(O(dt,qt),4)}"
            for dt in range(16) for qt in range(2)]
def mf_qk(half, sb, qb, czero=False):
    out = []
    for kt in range(2):
        for u in range(8):
            for qt in range(2):
                c = ('0' if czero else vr(NEGM(qt),4)) if u == 0 else vr(S(sb,kt,qt),4)
                out.append(f"{MF} {vr(S(sb,kt,qt),4)}, {ar(FR(half*16+kt*8+u),4)}, {ar(Q(qb,qt,u),4)}, {c}")
    return out
def mf_proj(s, init=None):
    out = []
    for f in range(32):
        nt, uu = f >> 1, f & 1
        for qt in range(2):
            c = vr(O(nt,qt),4)
            if uu == 0 and init == "zero": c = "0"
            if uu == 0 and init == "bias": c = vr(O(nt,1),4)
            out.append(f"{MF} {vr(O(nt,qt),4)}, {ar(FR(f),4)}, {ar(X(qt,2*s+uu),4)}, {c}")
    return out
def PA(b, nt, qt): return 64 + (nt*2+qt)*4 if b == 0 else O(2*nt+1, qt)
def mf_post(s):
    out = []
    for f in range(32):
        u, nt = f >> 2, f & 3
        for qt in range(2):
            d = vr(PA(s & 1, nt, qt), 4)
            out.append(f"{MF} {d}, {ar(FR(f),4)}, {vr(O(2*u,qt),4)}, {'0' if u == 0 else d}")
    return out

def sm_ops(b):
    ops = []
    seq = [(kt, qt, rp) for kt in range(2) for qt in range(2) for rp in range(2)]
    pend = []
    for i, (kt, qt, rp) in enumerate(seq):
        t0 = vT + (i % 4)*2
        s0 = S(b,kt,qt) + rp*2
        ops.append(f"v_exp_f32 v{t0}, v{s0}")
        ops += pend[:1]
        ops.append(f"v_exp_f32 v{t0+1}, v{s0+1}")
        ops += pend[1:]
        acc = vSUM[qt][rp]
        if kt == 0: pend = [f"v_add_f32 v{acc}, v{t0}, v{t0+1}"]
        else: pend = [f"v_add_f32 v{acc}, v{acc}, v{t0}", f"v_add_f32 v{acc}, v{acc}, v{t0+1}"]
        pend.append(f"v_cvt_pk_bf16_f32 v{P(b,qt)+kt*2+rp}, v{t0}, v{t0+1}")
    ops.append("s_nop 0")
    ops += pend
    ops += [f"v_add_f32 v{vSUM[0][0]}, v{vSUM[0][0]}, v{vSUM[0][1]}", f"v_add_f32 v{vSUM[1][0]}, v{vSUM[1][0]}, v{vSUM[1][1]}"]
    return ops

def place_sm(st, b, g0, g_end, tag, ladd=True, first=False):
    st.put(g0-1, f"s_cmp_ge_u32 s{sN}, s{sND}")
    st.put(g0, f"s_cbranch_scc1 L_domask_{tag}")
    st.put(g0, f"L_nomask_{tag}:")
    STUBS.append((f"L_domask_{tag}", f"L_mask{b}", f"L_nomask_{tag}"))
    st.put(g0+2 if g0 == 0 else 42, f"s_add_u32 s{sN}, s{sN}, 1")
    st.scc_busy |= {g0-1}
    def add(ins, deps=(), early=0): return st.add(ins, deps, max(early, g0), g_end)
    la = [add(f"v_add_f32 v{vL[q]}, v{vL[q]}, v{vSUM[q][0]}") for q in range(2)] if ladd else []
    seq = [(kt, qt, rp) for kt in range(2) for qt in range(2) for rp in range(2)]
    users = {}; lastacc = {}; NT = 6
    for i, (kt, qt, rp) in enumerate(seq):
        t0 = vT + (i % NT)*2
        s0 = S(b,kt,qt) + rp*2
        war = users.get(i - NT, [])
        e = g0 + (1 if kt == 0 else 3)
        e0 = add(f"v_exp_f32 v{t0}, v{s0}", war, e)
        e1 = add(f"v_exp_f32 v{t0+1}, v{s0+1}", war, e)
        acc = vSUM[qt][rp]
        if kt == 0:
            a0 = add(f"v_add_f32 v{acc}, v{t0}, v{t0+1}", [e0, e1] + la)
            u = [a0]; lastacc[(qt,rp)] = a0
        else:
            a0 = add(f"v_add_f32 v{acc}, v{acc}, v{t0}", [e0, lastacc[(qt,rp)]])
            a1 = add(f"v_add_f32 v{acc}, v{acc}, v{t0+1}", [e1, a0])
            u = [a0, a1]; lastacc[(qt,rp)] = a1
        c = st.add(f"v_cvt_pk_bf16_f32 v{P(b,qt)+kt*2+rp}, v{t0}, v{t0+1}", [e0, e1], g0, g_end-1)
        users[i] = u + [c]
    f0 = add(f"v_add_f32 v{vSUM[0][0]}, v{vSUM[0][0]}, v{vSUM[0][1]}", [lastacc[(0,0)], lastacc[(0,1)]])
    f1 = add(f"v_add_f32 v{vSUM[1][0]}, v{vSUM[1][0]}, v{vSUM[1][1]}", [lastacc[(1,0)], lastacc[(1,1)]])
    hi = f2u(2.0**OPT["thr"])
    if not first:
        mx = add(f"v_max_f32 v{vT+14}, v{vSUM[0][0]}, v{vSUM[1][0]}", [f0, f1])
        add(f"v_cmp_nge_f32 vcc, {hi:#x}, v{vT+14}", [mx])
    else:
        lo = f2u(2.0**-OPT["thr"])
        m0 = add(f"v_subrev_u32 v{vT+14}, {lo:#x}, v{vSUM[0][0]}", [f0])
        m1 = add(f"v_subrev_u32 v{vT+15}, {lo:#x}, v{vSUM[1][0]}", [f1])
        mx = add(f"v_max_u32 v{vT+14}, v{vT+14}, v{vT+15}", [m0, m1])
        add(f"v_cmp_lt_u32 vcc, {hi-lo:#x}, v{vT+14}", [mx])

def xlane_ops(op, v, t1):
    return [(f"v_mov_b32 v{t1}, v{v}", 0), (f"v_permlane16_swap_b32 v{v}, v{t1}", 2), (f"{op} v{v}, v{v}, v{t1}", 1),
            (f"v_mov_b32 v{t1}, v{v}", 0), (f"v_permlane32_swap_b32 v{v}, v{t1}", 2), (f"{op} v{v}, v{v}, v{t1}", 1)]
def xlane(a, op, v, t1):
    for ins, d in xlane_ops(op, v, t1):
        if d: a(f"s_nop {d-1}")
        a(ins)

class Chain:
    def __init__(self, items, grid=None): self.items = list(items); self.lastg = -10; self.grid = grid; self.base = 0; self.lastD = -999; self.minD = 0
    def fill(self, st, g0=0, g1=63):
        g = g0; lastg = -10
        while self.items and g <= g1:
            ins, dist = self.items[0][:2]
            early = self.items[0][2] if len(self.items[0]) > 2 else 0
            c = cls(ins)
            ok = g - lastg >= dist and g >= early and not st.hasD(g)
            if ok and g == lastg and not (c in "VE" and cls(self.last) in "VM"): ok = False
            if ok:
                if c == "S": ok = (st.nS(g) == 0 or st.free(g) >= 1) and not (g in st.scc_busy and not ins.startswith(("s_mov", "s_mul", "s_wait", "s_nop")))
                elif c == "D": ok = st.free(g) == 2 and st.nS(g) == 0 and (self.grid is None or g in self.grid) and self.base + g - self.lastD >= self.minD
                else: ok = st.free(g) >= COST[c]
            if ok:
                st.put(g, ins); self.items.pop(0); lastg = g; self.last = ins
                if c == "D": self.lastD = self.base + g
            else:
                g += 1
    def flush(self, a):
        for it in self.items:
            if it[1]: a(f"s_nop {it[1]-1}")
            a(it[0])
        self.items = []

def gen(name="mega_kernel"):
    a = Asm()
    STUBS.clear()
    stamps = OPT["stamps"]
    nst = [0]
    def stamp_ins():
        i = nst[0]; nst[0] += 1
        assert i < NSTAMP
        return f"s_memrealtime s[{sSTAMP+2*i}:{sSTAMP+2*i+1}]"
    def streg(i): return sSTAMP+2*i if i < NSTAMP else sMASK+2*(i-NSTAMP)
    def stamp(i, p=False):
        if OPT["pst"] and 2 <= i <= 6 and not p: return
        if p and not OPT["pst"]: return
        if stamps: a(f"s_memrealtime s[{streg(i)}:{streg(i)+1}]")
    def merge(lbl, align=False):
        if align: a.raw(".p2align 6")
        a.label(lbl); a.comment("@merge")
    strideA, strideB = 2048, 8192
    a.raw(kernel_header(name))
    a("s_cmp_ge_u32 s2, 256")
    a("s_cbranch_scc0 L_go")
    a("s_endpgm")
    a.label("L_go")
    stamp(0)
    sW12, sX = sMASK, sMASK+4
    gHEAD, gMT, gWM, gWN = sCNT, sEV, sCLAMP, sFIRST
    a(f"""
    s_load_dwordx2 s[{sSA}:{sSA+1}], s[0:1], 8
    s_load_dwordx4 s[{sT}:{sT+3}], s[0:1], 24
    s_load_dwordx2 s[{sWS}:{sWS+1}], s[0:1], 104
    s_load_dwordx2 s[{sX}:{sX+1}], s[0:1], 0
    s_load_dwordx2 s[{sDBG}:{sDBG+1}], s[0:1], 96
    s_load_dwordx2 s[{sW12}:{sW12+1}], s[0:1], 56
    s_load_dwordx2 s[{sRET}:{sRET+1}], s[0:1], 72
    s_load_dwordx2 s[{sT+6}:{sT+7}], s[0:1], 16
    v_and_b32 v{vLANE}, 63, v0
    v_lshrrev_b32 v{GT}, 6, v0
    v_lshlrev_b32 v{vL16}, 4, v{vLANE}
    v_readfirstlane_b32 s{sWAVE}, v{GT}
    s_and_b32 s3, s2, 7
    s_lshl_b32 s3, s3, 1
    s_lshr_b32 s{sJ}, s2, 4
    s_bfe_u32 s{sWHICH}, s2, 0x10003
    s_add_u32 s{sHEAD}, s3, s{sWHICH}
    s_and_b32 s{gHEAD}, s{sJ}, 1
    s_add_u32 s{gHEAD}, s{gHEAD}, s3
    s_bfe_u32 s{gMT}, s2, 0x10005
    s_lshl_b32 s{gMT}, s{gMT}, 2
    s_lshr_b32 s{gWM}, s2, 6
    s_xor_b32 s{gWM}, s{gWM}, 2
    s_or_b32 s{gMT}, s{gMT}, s{gWM}
    """)
    if OPT["map2"]:
        a(f"""
        s_bfe_u32 s{gHEAD}, s2, 0x10005
        s_add_u32 s{gHEAD}, s{gHEAD}, s3
        s_lshl_b32 s{gMT}, s{sWHICH}, 2
        s_bfe_u32 s{gWM}, s2, 0x10004
        s_or_b32 s{gMT}, s{gMT}, s{gWM}
        s_bfe_u32 s{gWM}, s2, 0x10007
        s_xor_b32 s{gWM}, s{gWM}, 1
        s_lshl_b32 s{gWM}, s{gWM}, 1
        s_or_b32 s{gMT}, s{gMT}, s{gWM}
        s_bfe_u32 s{sWHICH}, s2, 0x10006
        """)
    a(f"""
    s_and_b32 s{gWM}, s{sWAVE}, 1
    s_lshr_b32 s{gWN}, s{sWAVE}, 1
    """)
    t2, t3, t4, t5, t6 = GT, GT+1, GT+2, GT+3, GT+4
    a(f"""
    v_lshrrev_b32 v{t2}, 3, v{vLANE}
    s_lshl_b32 s{gA0}, s{gMT}, 8
    s_lshl_b32 s{gA1}, s{sWAVE}, 6
    s_add_u32 s{gA0}, s{gA0}, s{gA1}
    v_add_u32 v{t2}, s{gA0}, v{t2}
    v_lshlrev_b32 v{t2}, 11, v{t2}
    v_and_b32 v{t3}, 7, v{vLANE}
    v_lshrrev_b32 v{t4}, 4, v{vLANE}
    v_xor_b32 v{t5}, v{t3}, v{t4}
    v_lshl_add_u32 v{t5}, v{t5}, 4, v{t2}
    v_xor_b32 v{t6}, 4, v{t4}
    v_xor_b32 v{t6}, v{t3}, v{t6}
    v_lshl_add_u32 v{t6}, v{t6}, 4, v{t2}
    """)
    for jl in range(4):
        a(f"v_add_u32 v{DA[jl]}, {4096 + jl*8*strideA - jl*1024}, v{t5 if (jl & 1) == 0 else t6}")
    a(f"""
    v_bfe_u32 v{t2}, v{vLANE}, 3, 2
    v_lshlrev_b32 v{t3}, 13, v{t2}
    v_lshrrev_b32 v{t4}, 5, v{vLANE}
    v_lshl_add_u32 v{t3}, v{t4}, 7, v{t3}
    v_lshrrev_b32 v{t4}, 1, v{t2}
    v_lshlrev_b32 v{t4}, 2, v{t4}
    v_and_b32 v{t5}, 7, v{vLANE}
    v_xor_b32 v{t4}, v{t4}, v{t5}
    s_lshl_b32 s{gA0}, s{gWM}, 1
    v_xor_b32 v{t4}, s{gA0}, v{t4}
    v_lshl_add_u32 v{t3}, v{t4}, 4, v{t3}
    s_lshl_b32 s{gA0}, s{gHEAD}, 9
    s_lshl_b32 s{gA1}, s{sWAVE}, 16
    s_add_u32 s{gA0}, s{gA0}, s{gA1}
    v_add_u32 v{t3}, s{gA0}, v{t3}
    """)
    for jl in range(4):
        a(f"v_add_u32 v{DB[jl]}, {4096 + (jl>>1)*4*strideB + (jl&1)*256 - jl*1024}, v{t3}")
    a(f"""
    s_mul_i32 s{gA1}, s3, {OPT["rot"]*64}
    s_mul_i32 s{gA0}, s{gMT}, {OPT["rotm"]*128}
    s_add_u32 s{gA1}, s{gA1}, s{gA0}
    s_and_b32 s{gA1}, s{gA1}, 0x7ff
    s_lshl_b32 s{gMA}, s{sWAVE}, 13
    s_lshl_b32 s{gMB}, s{sWAVE}, 12
    s_mov_b32 s{sSA+2}, {4194304+4096}
    s_mov_b32 s{sSA+3}, 0x20000
    s_mov_b32 s{sSB+2}, {8388608+4096}
    s_mov_b32 s{sSB+3}, 0x20000
    @PST2
    s_waitcnt lgkmcnt(0)
    @PST3
    s_sub_u32 s{sSA}, s{sSA}, 4096
    s_subb_u32 s{sSA+1}, s{sSA+1}, 0
    s_cmp_eq_u32 s{sWHICH}, 0
    s_cselect_b32 s{sSB}, s{sT}, s{sT+2}
    s_cselect_b32 s{sSB+1}, s{sT+1}, s{sT+3}
    s_sub_u32 s{sSB}, s{sSB}, 4096
    s_subb_u32 s{sSB+1}, s{sSB+1}, 0
    """)
    for i in (2, 3):
        k = [n for n, l in enumerate(a.lines) if f"@PST{i}" in l][0]
        a.lines[k] = f"s_memrealtime s[{streg(i)}:{streg(i)+1}]" if OPT["pst"] else ""
    MA, MB = 0x107ff, 0x7fffff
    gRA, gRB, gTS = gA1, gCNT, (gA0, sT)
    a(f"s_lshl_b32 s{gRB}, s{gRA}, 12")
    def dma_group(kind, par):
        t = gTS[par & 1]
        if kind[0] == "A":
            _, it, h = kind
            m0 = f"s_add_u32 m0, s{gMA}, {(131072, 0, 65536)[it % 3] + h*4096}"; regs, srd = DA, sSA
            so = f"s_add_u32 s{t}, s{gRA}, {h*32*strideA + it*128}\ns_and_b32 s{t}, s{t}, {MA}"
        elif kind[0] == "B":
            _, it, h = kind
            m0 = f"s_add_u32 m0, s{gMB}, {32768 + (it & 1)*65536 + h*16384}"; regs, srd = DB, sSB
            so = f"s_add_u32 s{t}, s{gRB}, {(it*64 + h*32)*strideB}\ns_and_b32 s{t}, s{t}, {MB}"
        else:
            y = kind[1]
            return f"s_add_u32 m0, s{gMB}, {y*16384}", f"s_add_u32 s{t}, s{sW0}, {y*16384}", \
                   [f"buffer_load_dwordx4 v{vDMA}, {WS}, s{t} offen offset:{i*1024}{ld()} lds ; @gU{y}" for i in range(4)]
        return m0, so, [f"buffer_load_dwordx4 v{regs[jl]}, {sr(srd,4)}, s{t} offen offset:{jl*1024} lds ; @g{kind[0]}{it}_{h}" for jl in range(4)]
    todo = []
    for it in range(16):
        todo += [(2*it-1, 2*(it-3)+1, ("A", it, 0)), (2*it-1, 2*(it-2), ("B", it, 0)), (2*it-1, 2*(it-3)+1, ("A", it, 1)), (2*it, 2*(it-2)+1, ("B", it, 1))]
    todo += [(31+y, av, ("U", y)) for y, av in enumerate((27, 27, 28, 29, 29, 29, 30, 31))]
    GS = {}; order = []
    for n in range(-1, 32):
        cap = OPT["npro"] if n < 0 else OPT["gcap"][min(n, len(OPT["gcap"])-1)]
        c = sorted([x for x in todo if x[1] <= n], key=lambda x: x[0])[:cap]
        for x in c: todo.remove(x); assert x[0] > n or n < 0, (x, n)
        GS[n] = [x[2] for x in c]; order += GS[n]
    assert not todo
    print("GS", {n: len(v) for n, v in GS.items()}, file=sys.stderr)
    def gtag(k): return f"gU{k[1]}" if k[0] == "U" else f"g{k[0]}{k[1]}_{k[2]}"
    def gwait(n):
        it, kk = (n+1) >> 1, (n+1) & 1
        need = [("U", 0), ("U", 1)] if n == 31 else [("B", it, 1)] if kk else [("A", it, 0), ("A", it, 1), ("B", it, 0)]
        return f"vmcnt(@since:{gtag(max(need, key=order.index))})"
    main = a; a = Asm()
    sWID, u_, nb_, o_, o2_ = sXOFF, sT+1, sT+2, sT+3, sT+4
    sD = [sQST, sPT, sPSG]; sXS = sPSS; sHI = sFSG; sSTR = sFSS
    vWO, vW12 = vRD, vDMA
    G = sr(sG, 4)
    r_, g_, r8 = GT, GT+1, GT+2
    h_, i_ = GT+5, GT+6
    a(f"""
    s_lshl_b32 s{sWID}, s2, 2
    s_add_u32 s{sWID}, s{sWID}, s{sWAVE}
    s_mov_b32 s{sX+2}, {2048*896}
    s_mov_b32 s{sX+3}, 0x20000
    v_and_b32 v{h_}, 1, v{vLANE}
    v_lshrrev_b32 v{i_}, 1, v{vLANE}
    v_mul_u32_u24 v{GT+7}, 896, v{h_}
    v_lshl_add_u32 v{GT+7}, v{i_}, 4, v{GT+7}
    v_cmp_gt_u32 s[{sLN}:{sLN+1}], 28, v{i_}
    v_mov_b32 v{GT+8}, {OOB}
    s_mul_i32 s{gB1}, s{sWID}, 1792
    v_cndmask_b32 v{GT+11}, v{GT+8}, v{GT+7}, s[{sLN}:{sLN+1}]
    s_getpc_b64 s[{sG}:{sG+1}]
    L_pc:
    s_sub_u32 s{sG}, s{sG}, L_pc - L_gemmV
    s_subb_u32 s{sG+1}, s{sG+1}, 0
    s_mov_b32 s{sG+2}, L_codeend - L_gemmV
    s_mov_b32 s{sG+3}, 0x20000
    s_lshr_b32 s{gB0}, s2, 3
    s_lshl_b32 s{gB0}, s{gB0}, 2
    s_add_u32 s{gB0}, s{gB0}, s{sWAVE}
    s_lshl_b32 s{gB0}, s{gB0}, 10
    s_mov_b32 s{sWS+2}, {WS_SIZE}
    s_mov_b32 s{sWS+3}, 0x20000
    v_and_b32 v{r_}, 15, v{vLANE}
    v_lshrrev_b32 v{g_}, 4, v{vLANE}
    v_lshlrev_b32 v{r8}, 3, v{r_}
    """)
    def natdest(dst, base):
        a(f"""
        s_lshr_b32 s{o_}, s{nb_}, 2
        s_mul_i32 s{o_}, s{o_}, {7*32768}
        s_lshr_b32 s{o2_}, s{u_}, 1
        s_lshl_b32 s{o2_}, s{o2_}, 15
        s_add_u32 s{o_}, s{o_}, s{o2_}
        s_and_b32 s{o2_}, s{nb_}, 3
        s_lshl_b32 s{o2_}, s{o2_}, 13
        s_add_u32 s{o_}, s{o_}, s{o2_}
        s_and_b32 s{o2_}, s{u_}, 1
        s_lshl_b32 s{o2_}, s{o2_}, 10
        s_add_u32 s{o_}, s{o_}, s{o2_}
        s_add_u32 s{dst}, s{o_}, {base}
        """)
    def div7(idx):
        a(f"""
        s_mul_i32 s{u_}, s{idx}, 9363
        s_lshr_b32 s{u_}, s{u_}, 16
        s_mul_i32 s{nb_}, s{u_}, 7
        s_sub_u32 s{nb_}, s{idx}, s{nb_}
        """)
    def ffdest(dst, base, lim, idx=sWID):
        a(f"""
        s_mul_i32 s{o_}, s{nb_}, {184*4096}
        s_lshl_b32 s{o2_}, s{u_}, 12
        s_add_u32 s{o_}, s{o_}, s{o2_}
        s_add_u32 s{dst}, s{o_}, {base}
        s_cmp_lt_u32 s{idx}, {lim}
        s_cselect_b32 s{dst}, s{dst}, {OOB}
        """)
    a(f"""
    s_mov_b32 s{sDBG+2}, 16
    s_mov_b32 s{sDBG+3}, 0x20000
    v_mul_u32_u24 v{vWO}, {4*896}, v{g_}
    v_add_u32 v{vWO}, v{vWO}, v{r8}
    s_lshl_b32 s{gD}, s{gMT}, 1
    s_add_u32 s{gD}, s{gD}, s{sWHICH}
    s_lshl_b32 s{gD}, s{gD}, 2
    s_add_u32 s{gD}, s{gD}, s{sWAVE}
    """)
    div7(gD)
    a(f"""
    s_lshl_b32 s{o_}, s{gHEAD}, 3
    s_add_u32 s{u_}, s{u_}, s{o_}
    s_mul_i32 s{o_}, s{u_}, {32*896}
    s_lshl_b32 s{o2_}, s{nb_}, 7
    s_add_u32 s{o_}, s{o_}, s{o2_}
    s_cmp_lt_u32 s{gD}, 56
    s_cselect_b32 s{o_}, s{o_}, {OOB}
    v_add_u32 v{vWO}, s{o_}, v{vWO}
    """)
    ffdest(sD[1], WS_WFF + 56*4096, 56, gD)
    a(f"""
    s_lshr_b32 s{u_}, s{sWID}, 2
    s_mul_i32 s{u_}, s{u_}, 9363
    s_lshr_b32 s{u_}, s{u_}, 16
    s_mul_i32 s{nb_}, s{u_}, 28
    s_sub_u32 s{nb_}, s{sWID}, s{nb_}
    s_mul_i32 s{sHI}, s{u_}, {32*3584}
    s_lshl_b32 s{o2_}, s{nb_}, 7
    s_add_u32 s{sHI}, s{sHI}, s{o2_}
    """)
    natdest(sSTR, WS_W1F)
    a(f"s_sub_u32 s{sT+5}, s{sWID}, 392")
    a(f"s_and_b32 s{sT+5}, s{sT+5}, 1023")
    div7(sT+5)
    ffdest(sD[2], WS_WFF, 784)
    a(f"""
    s_lshr_b32 s{o_}, s{u_}, 1
    s_mul_i32 s{o_}, s{o_}, {64*896}
    s_and_b32 s{o2_}, s{u_}, 1
    s_mul_i32 s{o2_}, s{o2_}, {2*896}
    s_add_u32 s{o_}, s{o_}, s{o2_}
    s_lshl_b32 s{o2_}, s{nb_}, 7
    s_add_u32 s{o_}, s{o_}, s{o2_}
    s_mov_b32 s{sW12+2}, {448*3584}
    s_mov_b32 s{sW12+3}, 0x20000
    s_cmp_lt_u32 s{sWID}, 392
    s_cselect_b32 s{sW12}, s{sW12}, s{sRET}
    s_cselect_b32 s{sW12+1}, s{sW12+1}, s{sRET+1}
    s_cselect_b32 s{o_}, s{sHI}, s{o_}
    s_cselect_b32 s{sD[2]}, s{sSTR}, s{sD[2]}
    s_cselect_b32 s{sHI}, 16, 1
    s_cselect_b32 s{sSTR}, 2, 1
    s_mul_i32 s{sHI}, s{sHI}, 896
    s_mul_i32 s{o2_}, s{sSTR}, {16*896}
    s_lshl_b32 s{sSTR}, s{sSTR}, 10
    v_mul_u32_u24 v{vW12}, s{o2_}, v{g_}
    v_add3_u32 v{vW12}, v{vW12}, v{r8}, s{o_}
    v_lshrrev_b32 v{GT+9}, 2, v{i_}
    v_lshlrev_b32 v{GT+9}, 10, v{GT+9}
    v_and_b32 v{GT+10}, 3, v{i_}
    v_lshl_add_u32 v{GT+9}, v{GT+10}, 8, v{GT+9}
    v_lshl_add_u32 v{GT+9}, v{h_}, 4, v{GT+9}
    v_cndmask_b32 v{vSX}, v{GT+8}, v{GT+9}, s[{sLN}:{sLN+1}]
    s_lshr_b32 s{o_}, s{sWID}, 3
    s_mul_i32 s{o_}, s{o_}, 14336
    s_and_b32 s{o2_}, s{sWID}, 7
    s_lshl_b32 s{o2_}, s{o2_}, 5
    s_add_u32 s{sXS}, s{o_}, s{o2_}
    s_lshl_b32 s{sFQ}, s{sWID}, 10
    s_add_u32 s{sFQ}, s{sFQ}, {WS_FLG}
    s_cmp_lt_u32 s{sWID}, 32
    s_cselect_b32 s{sFQ}, s{sFQ}, {OOB}
    v_cmp_eq_u32 vcc, 0, v{vLANE}
    v_mov_b32 v{vONE}, 1
    v_and_b32 v{vL4}, 3, v{vLANE}
    v_lshlrev_b32 v{vL4}, 2, v{vL4}
    v_cndmask_b32 v{vFLG}, v{GT+8}, v{vLANE}, vcc
    s_mov_b32 s{sRET}, s{sT+6}
    s_mov_b32 s{sRET+1}, s{sT+7}
    s_lshr_b32 s{u_}, s{gD}, 2
    s_lshl_b32 s{nb_}, s{gHEAD}, 2
    s_add_u32 s{nb_}, s{nb_}, s{sWAVE}
    s_lshl_b32 s{o_}, s{u_}, 18
    s_lshl_b32 s{o2_}, s{nb_}, 7
    s_add_u32 s{o_}, s{o_}, s{o2_}
    v_and_b32 v{vSW}, 3, v{vLANE}
    v_lshlrev_b32 v{vSW}, 5, v{vSW}
    v_bfe_u32 v{GT+9}, v{vLANE}, 2, 2
    v_lshl_add_u32 v{vSW}, v{GT+9}, 3, v{vSW}
    v_lshl_add_u32 v{vSW}, v{g_}, 16, v{vSW}
    v_add_u32 v{vSW}, s{o_}, v{vSW}
    v_mov_b32 v{vSF}, v{vL16}
    """)
    natdest(sD[0], WS_WQF)
    a(f"s_cmp_lt_u32 s{gD}, 56")
    a(f"s_cselect_b32 s{sD[0]}, s{sD[0]}, {OOB}")
    assert WS_XF == 0
    a(f"""
    v_bfe_u32 v{t4}, v{vLANE}, 1, 3
    s_lshl_b32 s{o_}, s{gWM}, 14
    s_add_u32 s{o_}, s{o_}, 131072
    v_lshlrev_b32 v{r_}, 7, v{r_}
    v_add_u32 v{r_}, s{o_}, v{r_}
    """)
    for kk in range(2):
        a(f"v_or_b32 v{t5}, {4*kk}, v{g_}")
        a(f"v_xor_b32 v{t5}, v{t5}, v{t4}")
        a(f"v_lshl_add_u32 v{RA[kk]}, v{t5}, 4, v{r_}")
    a(f"""
    v_lshlrev_b32 v{t2}, 12, v{g_}
    v_bfe_u32 v{t4}, v{vLANE}, 2, 2
    v_lshl_add_u32 v{t2}, v{t4}, 7, v{t2}
    v_and_b32 v{t5}, 3, v{vLANE}
    v_lshl_add_u32 v{t2}, v{t5}, 3, v{t2}
    s_lshl_b32 s{o_}, s{gWN}, 10
    s_add_u32 s{o_}, s{o_}, 32768
    v_add_u32 v{t2}, s{o_}, v{t2}
    v_lshrrev_b32 v{t4}, 1, v{t4}
    v_lshlrev_b32 v{t4}, 6, v{t4}
    v_and_b32 v{t5}, 1, v{g_}
    v_lshlrev_b32 v{t5}, 5, v{t5}
    v_or_b32 v{t4}, v{t4}, v{t5}
    """)
    for q in range(4):
        a(f"v_xor_b32 v{t5}, {(q>>1)*64 + (q&1)*32}, v{t4}")
        a(f"v_add_u32 v{RB[q]}, v{t5}, v{t2}")
    a(f"""
    s_mul_i32 s{sKVB}, s{gHEAD}, {HS}
    s_mul_i32 s{o_}, s{gMT}, {8*US}
    s_add_u32 s{sKVB}, s{sKVB}, s{o_}
    s_mul_i32 s{o_}, s{gWM}, {4*US}
    s_add_u32 s{sKVB}, s{sKVB}, s{o_}
    s_add_u32 s{o2_}, s{sWHICH}, 12
    s_lshl_b32 s{o_}, s{gWN}, s{o2_}
    s_add_u32 s{sKVB}, s{sKVB}, s{o_}
    s_mul_i32 s{o_}, s{sWHICH}, {WS_VF - WS_KF}
    s_add_u32 s{sKVB}, s{sKVB}, s{o_}
    s_add_u32 s{sKVB}, s{sKVB}, {WS_KF}
    s_lshr_b32 s{sKVI}, 8192, s{sWHICH}
    s_add_u32 s{sKVI}, s{sKVI}, s{sKVB}
    s_lshl_b32 s{sFKV}, s{gHEAD}, 8
    s_lshr_b32 s{o_}, s{gMT}, 2
    s_and_b32 s{o2_}, s{gMT}, 3
    s_lshl_b32 s{o2_}, s{o2_}, 1
    s_or_b32 s{o_}, s{o_}, s{o2_}
    s_cmp_ge_u32 s{o_}, 2
    s_cselect_b32 s{o2_}, 112, 0
    s_add_u32 s{sFKV}, s{sFKV}, s{o2_}
    s_lshl_b32 s{o_}, s{o_}, 3
    s_add_u32 s{sFKV}, s{sFKV}, s{o_}
    s_lshl_b32 s{o_}, s{sWHICH}, 2
    s_add_u32 s{sFKV}, s{sFKV}, s{o_}
    s_add_u32 s{sFKV}, s{sFKV}, {WS_FLG + FL_KV}
    s_lshl_b32 s{sFKVP}, s{sHEAD}, 8
    s_add_u32 s{sFKVP}, s{sFKVP}, {WS_FLG + FL_KV}
    s_cmp_eq_u32 s{sWAVE}, 0
    s_cselect_b32 s{sFKV}, s{sFKV}, {OOB}
    s_cselect_b32 s{sFKVP}, s{sFKVP}, {OOB}
    s_cselect_b32 s{gFL}, s2, {OOB}
    s_cselect_b32 s{gIT}, 0, {OOB}
    """)
    WQ, B1, ST1, N0, STA2, XR1, XR2 = sT+1, sT+2, sT+3, sN, sT+4, sND, sXOF2
    a(f"""
    s_or_b32 s{sQI}, s{sJ}, 8
    s_mul_i32 s{WQ}, s{sHEAD}, {7*32768}
    s_add_u32 s{WQ}, s{WQ}, {WS_WQF}
    s_mov_b32 s{sW0}, s{WQ}
    s_mov_b32 s{XR1}, s{sQI}
    s_mov_b32 s{ST1}, 32768
    s_cmp_eq_u32 s{sQI}, 15
    s_cselect_b32 s{N0}, {OPT['a15']}, 34
    @atomic
    s_cmp_ge_u32 s{sJ}, 8
    s_cbranch_scc1 L_typeA
    s_mov_b32 s{sTYPE}, 2
    s_sub_u32 s{B1}, s{WQ}, {5*32768}
    s_sub_u32 s{XR2}, 15, s{sQI}
    s_lshl_b32 s{sU1}, s{sQI}, 2
    s_sub_u32 s{sU2}, 64, s{sU1}
    s_add_u32 s{sU1}, s{sU1}, 4
    s_sub_u32 s{sU1}, s{sU1}, s{N0}
    s_add_u32 s{STA2}, s{sU1}, 14
    s_add_u32 s{sT+7}, s{STA2}, s{sU2}
    s_branch L_typedone
    """)
    a.label("L_typeA")
    a(f"""
    s_mov_b32 s{sU1}, s{N0}
    s_add_u32 s{sT+7}, s{N0}, 14
    s_mov_b32 s{sU2}, 2
    s_mov_b32 s{N0}, 0
    s_mov_b32 s{STA2}, 100
    s_mov_b32 s{XR2}, 0x4000
    s_mov_b32 s{sTYPE}, 1
    s_mov_b32 s{B1}, {OOB}
    s_cmp_eq_u32 s{sJ}, 15
    s_cbranch_scc1 L_typedone
    s_mov_b32 s{sTYPE}, 0
    s_mul_i32 s{XR1}, s{sHEAD}, 7
    s_add_u32 s{XR1}, s{XR1}, s{sJ}
    s_sub_u32 s{XR1}, s{XR1}, 8
    s_lshr_b32 s{sT}, s{XR1}, 4
    s_and_b32 s{XR1}, s{XR1}, 15
    s_mul_i32 s{sW0}, s{sT}, {7*32768}
    s_add_u32 s{sW0}, s{sW0}, {WS_W1F}
    s_lshl_b32 s{B1}, s{sT}, 15
    s_add_u32 s{B1}, s{B1}, {WS_WFF}
    s_mov_b32 s{ST1}, {184*4096}
    """)
    a.label("L_typedone")
    a("@end")
    tA, tB, tC, tD = GT, GT+1, GT+2, GT+3
    KB, VB = sT+5, sT+6
    a(f"""
    s_mul_i32 s{KB}, s{sHEAD}, {HS}
    s_add_u32 s{VB}, s{KB}, {WS_VF}
    s_add_u32 s{KB}, s{KB}, {WS_KF}
    v_mov_b32 v{vTE}, {OOB}
    """)
    def seg_lin(start, base, stride):
        a(f"v_subrev_u32 v{tA}, {start}, v{vLANE}")
        a(f"v_cmp_gt_u32 vcc, 7, v{tA}")
        a(f"v_mul_u32_u24 v{tB}, {stride}, v{tA}")
        a(f"v_add_u32 v{tB}, s{base}, v{tB}")
        a(f"v_cndmask_b32 v{vTE}, v{vTE}, v{tB}, vcc")
    seg_lin(0, sW0, 32768)
    seg_lin(7, B1, f"s{ST1}")
    a(f"s_lshl_b32 s{sT}, s{sHEAD}, 15")
    a(f"s_add_u32 s{sT}, s{sT}, {WS_WFF + 56*4096}")
    seg_lin(f"s{sT+7}", sT, 184*4096)
    a(f"v_add_u32 v{vTO}, 16384, v{vTE}")
    def seg_att(start, n0, U):
        for tab in (vTO, vTE):
            a(f"v_subrev_u32 v{tA}, {start}, v{vLANE}")
            if n0 is not None: a(f"v_add_u32 v{tB}, s{n0}, v{tA}")
            else: a(f"v_mov_b32 v{tB}, v{tA}")
            a(f"v_mul_u32_u24 v{tB}, {US}, v{tB}")
            if tab == vTO:
                a(f"s_sub_u32 s{sT}, s{U}, 1")
                a(f"v_cmp_eq_u32 vcc, s{sT}, v{tA}")
                a(f"v_add_u32 v{tC}, s{KB}, v{tB}")
                a(f"v_add_u32 v{tC}, {US}, v{tC}")
                a(f"v_add_u32 v{tD}, s{VB}, v{tB}")
            else:
                a(f"v_cmp_eq_u32 vcc, 0, v{tA}")
                a(f"v_add_u32 v{tC}, s{VB}, v{tB}")
                a(f"v_subrev_u32 v{tC}, {US}, v{tC}")
                a(f"v_add_u32 v{tD}, s{KB}, v{tB}")
            a(f"v_cndmask_b32 v{tC}, v{tC}, v{tD}, vcc")
            a(f"v_cmp_gt_u32 vcc, s{U}, v{tA}")
            a("s_nop 1")
            a(f"v_cndmask_b32 v{tab}, v{tab}, v{tC}, vcc")
    seg_att(14, N0, sU1)
    seg_att(f"s{STA2}", None, sU2)
    XO1, XO2 = sXOFF, sXOF2
    a(f"""
    s_lshl_b32 s{sT}, s{sWAVE}, 1
    s_lshl_b32 s{XO1}, s{XR1}, 3
    s_add_u32 s{XO1}, s{XO1}, s{sT}
    s_mul_i32 s{XO1}, s{XO1}, 14336
    s_lshl_b32 s{XO2}, s{XR2}, 3
    s_add_u32 s{XO2}, s{XO2}, s{sT}
    s_mul_i32 s{XO2}, s{XO2}, 14336
    s_lshl_b32 s{sW4K}, s{sWAVE}, 12
    s_mov_b32 s{sCLAMP}, 0x05040100
    s_mov_b32 s{sFIRST}, 0x07060302
    """)
    setup_l = [l.strip() for l in a.lines if l.strip()]
    a = main
    seq = []
    for k, kind in enumerate(GS[-1]):
        m0, so, ins = dma_group(kind, 0)
        seq += [[m0, so, ins[0]]] + [[x] for x in ins[1:]]
        if k == OPT["xpos"]:
            seq += [[f"buffer_load_dwordx4 {ar(SLD+48,4)}, v{GT+11}, {sr(sX,4)}, s{gB1} offen"], [f"buffer_load_dwordx4 {ar(SLD+52,4)}, v{GT+11}, {sr(sX,4)}, s{gB1} offen offset:448 ; @sx"]]
    if OPT["cpf"]: seq += [[f"buffer_load_dwordx4 a[200:203], v{vL16}, {G}, s{gB0} offen"], [f"s_add_u32 s{gB0}, s{gB0}, 131072", f"buffer_load_dwordx4 a[204:207], v{vL16}, {G}, s{gB0} offen"]]
    nowr = ("s_mov", "s_mul_i32", "s_nop", "s_cselect", "s_getpc", "s_cbranch", "s_branch")
    def scc_live(k):
        for l in setup_l[k:]:
            if l.startswith(("s_cselect", "s_cbranch_scc", "s_subb")): return True
            if l.startswith("s_") and not l.startswith(nowr): return False
        return False
    step = len(setup_l) / (len(seq) - 0.5)
    atomic = False; nxt = 0.0
    for k, l in enumerate(setup_l):
        if seq and k >= nxt and not atomic and not scc_live(k) and not l.endswith(":"):
            for x in seq.pop(0): a(x)
            nxt += step
        if l == "@atomic": atomic = True
        elif l == "@end": atomic = False
        else: a(l)
    for g in seq:
        for x in g: a(x)
    print("setup instrs", len(setup_l), "left", len(seq), file=sys.stderr)
    a(f"""
    s_mov_b32 s{sG}, s{sRET}
    s_mov_b32 s{sG+1}, s{sRET+1}
    s_mov_b32 s{sG+2}, {448*8192}
    """)
    if OPT["dbgside"] & 1:
        for r in sD: a(f"s_mov_b32 s{r}, {OOB}")
    if OPT["dbgside"] & 2: a(f"s_mov_b32 s{sXS}, {OOB}")
    if OPT["dbgside"] & 4:
        for r in (vWO, vW12, vSW): a(f"v_mov_b32 v{r}, {OOB}")
    def side_chain():
        c = []
        z = GT+8
        c += [(f"v_mov_b64 {vr(z,2)}, 0", 0), (f"v_mov_b64 {vr(z+2,2)}, 0", 0), (f"buffer_store_dwordx4 {vr(z,4)}, v{vL16}, {WS}, s{sFQ} offen sc1 ; @zst", 1)]
        c.append(("s_waitcnt vmcnt(@since:sx)", 1))
        U = GT; m_, v_, t_, t2_ = GT+16, GT+17, vG1, vPOLL
        for i in range(8):
            c.append((f"v_accvgpr_read_b32 v{t_}, a{SLD+48+i}", 2 if i == 0 else 0))
            c.append((f"v_lshlrev_b32 v{U+2*i}, 16, v{t_}", 0))
            c.append((f"v_and_b32 v{U+2*i+1}, 0xffff0000, v{t_}", 0))
        def red(v):
            r = [(f"v_add_f32_dpp v{v}, v{v}, v{v} row_ror:{sh} row_mask:0xf bank_mask:0xf", 2) for sh in (8, 4, 2)]
            return r + xlane_ops("v_add_f32", v, t2_)
        c.append((f"v_add_f32 v{m_}, v{U}, v{U+1}", 0)); c.append((f"v_add_f32 v{v_}, v{U+2}, v{U+3}", 0))
        for i in range(4, 16, 2):
            c.append((f"v_add_f32 v{m_}, v{m_}, v{U+i}", 0)); c.append((f"v_add_f32 v{v_}, v{v_}, v{U+i+1}", 0))
        c.append((f"v_add_f32 v{m_}, v{m_}, v{v_}", 0))
        c += red(m_)
        c.append((f"v_mul_f32 v{m_}, {f2u(1.0/448):#x}, v{m_}", 0))
        for i in range(16):
            c.append((f"v_sub_f32 v{t_}, v{U+i}, v{m_}", 0))
            c.append((f"v_mul_f32 v{v_}, v{t_}, v{t_}" if i == 0 else f"v_fma_f32 v{v_}, v{t_}, v{t_}, v{v_}", 0))
        c.append((f"v_cndmask_b32 v{v_}, 0, v{v_}, s[{sLN}:{sLN+1}]", 0))
        c += red(v_)
        for x in (f"v_mul_f32 v{v_}, {f2u(1.0/448):#x}, v{v_}", f"v_cvt_pk_bf16_f32 v{t_}, v{m_}, v{v_}", f"v_lshlrev_b32 v{m_}, 16, v{t_}",
                  f"v_and_b32 v{v_}, 0xffff0000, v{t_}", f"v_add_f32 v{v_}, {f2u(1e-5):#x}, v{v_}", f"v_cvt_pk_bf16_f32 v{v_}, v{v_}, v{v_}",
                  f"v_lshlrev_b32 v{v_}, 16, v{v_}", f"v_sqrt_f32 v{v_}, v{v_}"):
            c.append((x, 0))
        c.append((f"v_cvt_pk_bf16_f32 v{v_}, v{v_}, v{v_}", 1))
        c.append((f"v_lshlrev_b32 v{v_}, 16, v{v_}", 0))
        c.append((f"v_rcp_f32 v{v_}, v{v_}", 0))
        for i in range(16): c.append((f"v_sub_f32 v{U+i}, v{U+i}, v{m_}", 1 if i == 0 else 0))
        for i in range(8):
            for x in (f"v_cvt_pk_bf16_f32 v{t_}, v{U+2*i}, v{U+2*i+1}", f"v_lshlrev_b32 v{U+2*i}, 16, v{t_}", f"v_and_b32 v{U+2*i+1}, 0xffff0000, v{t_}",
                      f"v_mul_f32 v{U+2*i}, v{U+2*i}, v{v_}", f"v_mul_f32 v{U+2*i+1}, v{U+2*i+1}, v{v_}", f"v_cvt_pk_bf16_f32 v{U+i}, v{U+2*i}, v{U+2*i+1}"):
                c.append((x, 0))
        c.append((f"buffer_store_dwordx4 {vr(U,4)}, v{vSX}, {WS}, s{sXS} offen sc1", 1))
        c.append((f"v_add_u32 v{vSX}, {7*1024}, v{vSX}", 1))
        c.append((f"buffer_store_dwordx4 {vr(U+4,4)}, v{vSX}, {WS}, s{sXS} offen sc1", 1))
        def relay(rnd, land):
            c.append((f"s_waitcnt vmcnt(@since:sl{rnd})", 1, 0, rnd))
            for h in range(2):
                for e in range(8):
                    c.append((f"v_accvgpr_read_b32 v{GT+e}, a{land+2*e+h}", 2 if e == 0 else 0))
                for jj in range(2):
                    o = GT+8+4*jj
                    for p in range(4):
                        c.append((f"v_perm_b32 v{o+p}, v{GT+2*p+1}, v{GT+2*p}, s{(sCLAMP, sFIRST)[jj]}", 0))
                    if rnd == 1: c.append((f"buffer_store_dwordx4 {vr(o,4)}, v{vL16}, {WS}, s{sD[rnd]} offen offset:{(2*h+jj)*1024} sc1", 1))
                    else:
                        c.append((f"buffer_store_dwordx4 {vr(o,4)}, v{vSF}, {WS}, s{sD[rnd]} offen sc1", 1))
                        c.append((f"v_add_u32 v{vSF}, s{sSTR}, v{vSF}", 1))
        relay(2, SLD+32)
        c.append((f"s_waitcnt vmcnt(@since:sl0)", 1, 0, 0))
        c.append((f"s_mov_b32 s{sHI}, {f2u(QSCALE):#x}", 1))
        for h in range(2):
            for p in range(4):
                t = GT + (p & 1)*4
                c += [(x, 0) for x in (f"v_accvgpr_read_b32 v{t}, a{SLD+4*p+h}", f"v_accvgpr_read_b32 v{t+1}, a{SLD+4*p+2+h}",
                      f"v_lshlrev_b32 v{t+2}, 16, v{t}", f"v_lshlrev_b32 v{t+3}, 16, v{t+1}", f"v_and_b32 v{t}, 0xffff0000, v{t}", f"v_and_b32 v{t+1}, 0xffff0000, v{t+1}")]
                c += [(f"v_mul_f32 v{t+i}, s{sHI}, v{t+i}", 0) for i in range(4)]
                c += [(f"v_cvt_pk_bf16_f32 v{GT+8+p}, v{t+2}, v{t+3}", 0), (f"v_cvt_pk_bf16_f32 v{GT+12+p}, v{t}, v{t+1}", 0)]
            if h == 1: c.append((f"s_add_u32 s{sD[0]}, s{sD[0]}, 4096", 1))
            for jj in range(2):
                c.append((f"buffer_store_dwordx4 {vr(GT+8+4*jj,4)}, v{vL16}, {WS}, s{sD[0]} offen offset:{jj*2048} sc1 ; @sst", 1))
        relay(1, WOL)
        c += [(x, 0) for x in (f"v_add_u32 v{vDMA}, s{sW4K}, v{vL16}", f"v_mov_b32 v{vRD}, v{vL16}",  f"v_lshrrev_b32 v{GT}, 4, v{vLANE}",
              f"v_lshlrev_b32 v{GT}, 2, v{GT}", f"v_and_b32 v{GT+1}, 15, v{vLANE}", f"v_sub_u32 v{GT}, v{GT+1}, v{GT}")]
        c += [(f"v_cmp_gt_i32 s[{sMASK+2*r}:{sMASK+2*r+1}], {r}, v{GT}", 0) for r in range(4)]
        c = [((x[0].replace(" sc1", OPT["sidesc"]),) + tuple(x[1:]) if x[0].startswith("buffer_store") else x) for x in c]
        if OPT["wbl2"]: c.append(("s_waitcnt vmcnt(4)", 30)); c.append(("buffer_wbl2 sc1", 1))
        return Chain(c, XG4)
    def reads(kk, buf):
        ra = [f"ds_read_b128 {ar(FA(buf,m),4)}, v{RA[kk]} offset:{m*2048}" for m in range(8)]
        rb = [f"ds_read_b64_tr_b16 {ar(FB(buf,n)+2*sec,2)}, v{RB[n&3]} offset:{kk*16384+sec*2048+(n>>2)*512}" for n in range(8) for sec in range(2)]
        out = []
        for i in range(8): out += [ra[i], rb[2*i], rb[2*i+1]]
        return out
    stamp(6, True)
    a(f"s_waitcnt {gwait(-1)}")
    a("s_barrier")
    for r in reads(0, 0): a(r)
    stamp(1)
    a(f"s_cmp_eq_u32 s{sWHICH}, 0")
    a("s_cbranch_scc0 L_gemmV")
    pre_lines = len(a.lines)
    sJT = sT+2
    def xjob(J, key, i, base, early, late, rot=0):
        u, qt = i >> 1, i & 1
        J.add(key, f"s_add_u32 s{sJT}, s{base}, {qt*14336+((u+rot)%14)*1024}", f"buffer_load_dwordx4 {ar(X(qt,u),4)}, v{vL16}, {WS}, s{sJT} offen{ld()} ; @{key}", early, late - (3 - (i & 3))*8)
    def kvjob(J, c, early, late):
        blk = c >> 2
        J.add("kv", f"s_add_u32 s{sJT}, s{sKVI if blk & 1 else sKVB}, {(blk>>1)*US+(c&3)*1024}",
              f"buffer_store_dwordx4 {vr(PK(c),4)}, v{vL16}, {WS}, s{sJT} offen{OPT['kvsc']} ; @kv", early, late)
    pw, t6, t7 = sEV, sCNT, sND
    setup = f"""
    s_lshl_b32 s{pw}, s{sHEAD}, 3
    s_and_b32 s{t6}, s{sJ}, 7
    s_add_u32 s{pw}, s{pw}, s{t6}
    s_lshl_b32 s{pw}, s{pw}, 2
    s_add_u32 s{pw}, s{pw}, s{sWAVE}
    s_mul_i32 s{sQST}, s{pw}, {Q_W}
    s_add_u32 s{sQST}, s{sQST}, {WS_QF}
    s_mul_i32 s{sPT}, s{pw}, {PT_W}
    s_add_u32 s{sPT}, s{sPT}, {WS_PT}
    s_lshl_b32 s{sFQ}, s{pw}, 5
    s_add_u32 s{sFQ}, s{sFQ}, {WS_FLG + FL_Q}
    s_mul_i32 s{t7}, s{sWAVE}, {28*1024}
    s_add_u32 s{t7}, s{t7}, {WS_PS}
    s_mul_i32 s{pw}, s{sHEAD}, 7
    s_add_u32 s{pw}, s{pw}, s{t6}
    s_lshr_b32 s{t6}, s{pw}, 4
    s_and_b32 s{sFSG}, s{pw}, 15
    s_lshl_b32 s{sT+3}, s{t6}, 9
    s_mul_i32 s{sPSG}, s{sFSG}, {PS_R}
    s_add_u32 s{sPSG}, s{sPSG}, s{t7}
    s_mul_i32 s{pw}, s{t6}, {PS_SRC}
    s_add_u32 s{sPSG}, s{sPSG}, s{pw}
    s_add_u32 s{sPSG}, s{sPSG}, {16*PS_SRC}
    s_lshl_b32 s{sFSG}, s{sFSG}, 9
    s_lshl_b32 s{pw}, s{t6}, 2
    s_add_u32 s{sFSG}, s{sFSG}, s{pw}
    s_lshl_b32 s{pw}, s{sWAVE}, 7
    s_add_u32 s{pw}, s{pw}, {WS_FLG + FL_S}
    s_add_u32 s{sFSG}, s{sFSG}, s{pw}
    s_add_u32 s{sFSG}, s{sFSG}, 64
    s_lshr_b32 s{t6}, s{sJ}, 3
    s_mul_i32 s{t6}, s{t6}, 7
    s_xor_b32 s{t6}, s{t6}, 7
    s_xor_b32 s{t6}, s{t6}, s{sJ}
    s_mul_i32 s{sPSS}, s{t6}, {PS_R}
    s_add_u32 s{sPSS}, s{sPSS}, s{t7}
    s_mul_i32 s{t7}, s{sHEAD}, {PS_SRC}
    s_add_u32 s{sPSS}, s{sPSS}, s{t7}
    s_lshl_b32 s{sFSS}, s{t6}, 9
    s_add_u32 s{sFSS}, s{sFSS}, s{pw}
    s_lshl_b32 s{t7}, s{sHEAD}, 2
    s_add_u32 s{sFSS}, s{sFSS}, s{t7}
    s_lshl_b32 s{sND}, s{sQI}, 2
    s_add_u32 s{sND}, s{sND}, s{sWAVE}
    s_lshr_b32 s{sCNT}, s{sU1}, 1
    s_sub_u32 s{sCNT}, s{sCNT}, 1
    s_lshr_b32 s{sEV}, s{sJ}, 3
    """.strip().split("\n")
    setup = [(x.strip(), 1) for x in setup]
    setup.append((f"s_cmp_eq_u32 s{sTYPE}, 1\ns_cselect_b32 s{sQST}, {OOB}, s{sQST}", 1))
    setup.append((f"s_cmp_eq_u32 s{sTYPE}, 0\ns_cselect_b32 s{sFSG}, s{sFSG}, {OOB}", 1))
    setup.append((f"s_cmp_eq_u32 s{sWAVE}, 0\ns_cselect_b32 s{sFQ}, s{sFQ}, {OOB}\ns_cselect_b32 s{sEXP}, 1, 0", 1))
    setup2 = [(x, 1) for x in (f"s_mov_b32 s{sTAU}, 4", f"s_add_u32 s{sM0}, s{sW4K}, {8*16384}", f"s_add_u32 s{sOFFB}, s{sW0}, {8*16384}",
              f"s_mov_b32 s{sRDD}, {-131072}", f"s_mov_b32 s{gMA}, {-131072}", f"s_mov_b32 s{gMB}, 32768", f"s_mov_b32 m0, s{sM0}")]
    for typ in ("K", "V"):
        if typ == "V":
            a.label("L_gemmV")
            for l in a.lines[:pre_lines]:
                if l.strip().startswith("buffer_") or "@merge" in l: a.raw("@ghost " + l.strip())
        def pos(m, n): return m*8+n if typ == "K" else (m >> 1)*16 + n*2 + (m & 1)
        def substep(it, kk):
            groups = GS[2*it+kk]
            buf = kk
            mf = []
            for m in range(8):
                for n in range(8):
                    acc = accreg(pos(m, n))
                    c = "0" if (it == 0 and kk == 0) else acc
                    x, y = ar(FB(buf,n),4), ar(FA(buf,m),4)
                    if typ == "V": x, y = y, x
                    mf.append(f"{MF} {acc}, {x}, {y}, {c}")
            st = Stage(mf)
            st.put(-1, f"s_waitcnt {gwait(2*it+kk)} lgkmcnt(0)")
            st.put(-1, "s_barrier")
            last = (it == 15 and kk == 1)
            g, dg = 1, (OPT["dg2"] if len(groups) == 2 else 4)
            for k, kind in enumerate(groups):
                m0, so, ins = dma_group(kind, k)
                st.put(g-1, m0)
                st.put(g-2, so)
                for i in ins:
                    st.put(g, i); g += dg
            rd = reads(kk ^ 1, buf ^ 1) if not last else [f"ds_read_b128 {ar(FR(f),4)}, v{vRD} offset:{f*1024}" for f in range(12)]
            for i, r in enumerate(rd): st.put(i*2, r)
            if kk == 0 and it < 15:
                d = -131072 if it % 3 == 0 else 65536
                for i, x in enumerate([f"v_add_u32 v{RA[0]}, {d}, v{RA[0]}", f"v_add_u32 v{RA[1]}, {d}, v{RA[1]}"] + [f"v_xor_b32 v{r}, 0x10000, v{r}" for r in RB]):
                    st.put(48 + 2*(i >> 1), x)
            if OPT["fine"]:
                st.put(2, f"s_memrealtime s[{sFS}:{sFS+1}]")
                st.put(4, f"v_mov_b32_dpp v0, v0 wave_shr:1 row_mask:0xf bank_mask:0xf")
                st.put(46, f"v_writelane_b32 v0, s{sFS}, 0")
            return st
        ch = side_chain()
        J = Jobs()
        for e in range(8):
            t = [x + e*OPT["slstep"] for x in OPT["slt"]]
            J.add("sl1", f"s_mov_b32 s{sJT}, {(e>>2)*16*896}", f"buffer_load_dwordx2 {ar(WOL+2*e,2)}, v{vWO}, {sr(sX,4)}, s{sJT} offen offset:{(e&3)*896} ; @sl1", t[2], t[2]+64)
            J.add("sl2", f"s_add_u32 s{sJT}, s{sHI}, {(e&3)*3584}" if e >> 2 else f"s_mov_b32 s{sJT}, {e*3584}",
                  f"buffer_load_dwordx2 {ar(SLD+32+2*e,2)}, v{vW12}, {sr(sW12,4)}, s{sJT} offen ; @sl2", t[0], t[0]+64)
            J.add("sl0", f"s_mov_b32 s{sJT}, {e*8192}", f"buffer_load_dwordx2 {ar(SLD+2*e,2)}, v{vSW}, {G}, s{sJT} offen ; @sl0", t[1], t[1]+64)
        NZ, NZP, NZC, NF, NP, NC = OPT["sync"]
        for i in range(20): xjob(J, "x1", i, XO1, (NC+1)*64 + i*OPT["xstep"], 31*64)
        for b in range(8):
            J.add("bias", None, f"buffer_load_dwordx4 {vr(BIAS+4*b,4)}, v{GT+16}, {G}, s{sT+3} offen offset:{(b>>1)*128+(b&1)*16} ; @bias", 31*64 if b in (2, 3) else 29*64, 31*64+24)
        su = Chain(setup)
        PV = GT+8
        for n in range(31):
            it, kk = n >> 1, n & 1
            st = substep(it, kk)
            if n == 0:
                st.put(62, f"s_load_dwordx2 s[{sX}:{sX+1}], s[0:1], 40")
                st.put(63, f"s_mov_b32 s{sX+2}, {4096*896}")
            if n == NZ-1: st.put(63, "s_waitcnt vmcnt(@since:zst)")
            if n == NZ: st.put(61, f"buffer_store_byte v{vONE}, v{vFLG}, {sr(sDBG,4)}, s{gFL} offen sc1")
            if n == NZP: st.put(61, f"buffer_load_dword v{vPOLL}, v{vL4}, {sr(sDBG,4)}, s{gIT} offen sc1 ; @zp")
            if n == NZC:
                st.put(54, "s_waitcnt vmcnt(@since:zp)")
                st.put(55, f"s_cmp_eq_u32 s{sWAVE}, 0\ns_cselect_b32 s{sT+1}, 0x01010101, 0")
                st.put(56, f"v_cmp_ne_u32 vcc, s{sT+1}, v{vPOLL}")
                st.put(60, f"s_cbranch_vccnz L_zwait{typ}")
                st.put(60, f"L_zok{typ}:")
            if n == NF-1:
                assert not any("@sst" in x[0] for x in ch.items) and NZC < NF
                st.put(63, "s_waitcnt vmcnt(@since:sst)")
                st.put(62, f"s_load_dwordx2 s[{sG}:{sG+1}], s[0:1], 64")
                st.put(59, f"s_mov_b32 s{sG+2}, 3584")
            if n == NF:
                st.put(55, f"s_add_u32 s{gIT}, s{gIT}, {WS_FLG+FL_PREP}")
                st.put(58, f"s_lshl2_add_u32 s{sT+1}, s2, s{gIT}")
                st.put(59+2*kk, f"buffer_store_dword v{vONE}, v{vFLG}, {WS}, s{sT+1} offen sc1")
            if n == NP:
                assert not ch.items
                st.put(61, f"buffer_load_dwordx4 {vr(PV,4)}, v{vL16}, {WS}, s{gIT} offen sc1 ; @prep")
            if n == NC:
                st.put(50, "s_waitcnt vmcnt(@since:prep)")
                st.put(51, f"s_cmp_eq_u32 s{sWAVE}, 0\ns_cselect_b32 s{sT+1}, 1, 0")
                st.put(54, f"v_and_b32 v{PV}, v{PV}, v{PV+1}")
                st.put(54, f"v_and_b32 v{PV+2}, v{PV+2}, v{PV+3}")
                st.put(55, f"v_and_b32 v{PV}, v{PV}, v{PV+2}")
                st.put(55, f"v_cmp_ne_u32 vcc, s{sT+1}, v{PV}")
                st.put(60, f"s_cbranch_vccnz L_prepwait{typ}")
                st.put(60, f"L_prepok{typ}:")
                st.put(56, f"v_lshrrev_b32 v{GT+16}, 4, v{vLANE}")
                st.put(56, f"v_lshlrev_b32 v{GT+16}, 5, v{GT+16}")
            J.place(st, n, 10, XG4)
            if n >= 1 and ch.items:
                full = ch.items
                for k, x in enumerate(full):
                    if len(x) > 3:
                        key = f"sl{x[3]}"
                        if any(j[5] == key for j in J.jobs) or J.at[key] + OPT["sld"] > n*64+63:
                            ch.items = full[:k]; break
                        full[k] = (x[0], x[1], max(0, J.at[key] + OPT["sld"] - n*64), x[3])
                rest = full[len(ch.items):] if ch.items is not full else []
                ch.base = n*64; ch.minD = OPT["smin"]
                ch.fill(st)
                ch.items = ch.items + rest
                if typ == "K": print("substep", n, "chain left", len(ch.items), file=sys.stderr)
            elif n > NC: su.fill(st)
            if n == 28: assert not su.items
            st.emit(a)
        st = substep(15, 1)
        J.place(st, 31, 2, [17, 21]); assert not J.jobs
        SG = [25, 33, 41, 49, 57, 61]
        for c in range(NE): kvjob(J, c, SG[c], SG[c])
        J.place(st, 0, 8, SG); assert not J.jobs
        su = Chain(setup2); su.fill(st, 30); assert not su.items
        slot_of = {pos(m, n): m*8+n for m in range(8) for n in range(8)}
        pk = []
        for c in range(32):
            e = max(slot_of[2*c], slot_of[2*c+1]) + 3
            if 20 <= c < 20+NE: e = max(e, SG[c-20]+2)
            src = []
            for h in range(2):
                p = 2*c+h
                if p < 52: src += [48+4*p+i for i in range(4)]
                else:
                    for i in range(4):
                        pk.append((f"v_accvgpr_read_b32 v{128+(p-52)*4+i}, a{208+4*(p-52)+i}", 0, e)); src.append(128+(p-52)*4+i)
            for i in range(4): pk.append((f"v_cvt_pk_bf16_f32 v{PK(c)+i}, v{src[2*i]}, v{src[2*i+1]}", 0, e))
        pk = Chain(pk); pk.fill(st)
        for c in range(NE):
            w = [g for g, v in st.fill.items() if any(x.startswith(f"v_cvt_pk_bf16_f32 v{PK(c)+3},") for x in v)]
            assert min(w) < SG[c], (c, w)
        st.emit(a)
        a("s_nop 3")
        print("pack tail", len(pk.items), file=sys.stderr)
        pk.flush(a)
        a("s_waitcnt vmcnt(@since:bias) lgkmcnt(8)")
        a(f"s_cmp_eq_u32 s{sTYPE}, 0")
        a("s_cbranch_scc0 L_P1B")
        a("s_branch L_P1A")
    def unpack(nt):
        o = []
        for r in range(4):
            x = 4*r + (nt & 3); src = BIAS + (nt >> 2)*8 + (x >> 1)
            o.append(f"v_and_b32 v{O(nt,1)+r}, 0xffff0000, v{src}" if x & 1 else f"v_lshlrev_b32 v{O(nt,1)+r}, 16, v{src}")
        return o
    def p1_jobs(t0, step, slack=8):
        J = Jobs()
        for c in range(20+NE, 32): kvjob(J, c, 0, XG[c-20-NE])
        for k, c in enumerate(range(NE, 20+NE)): kvjob(J, c, t0+k*step, t0+slack+k*step)
        for i in range(20, 28): xjob(J, f"x1{i>>2}", i, XO1, (i >> 2)*64 - 134, (i >> 2)*64 - 70)
        return J
    def xwait(st, key): st.put(62, f"s_waitcnt vmcnt(@since:{key})")
    def flagjob(J, key, after, soff, delay):
        if key in J.at or any(j[5] in (after, key) for j in J.jobs): return
        t = J.at[after] + delay
        J.add(key, f"s_waitcnt vmcnt(@since:{after})\ns_barrier", f"buffer_store_dword v{vONE}, v{vFLG}, {WS}, s{soff} offen sc1", t, t+8)
    def split_chain(items, st_prev, mk_next, late_of):
        ch = Chain(items); ch.fill(st_prev)
        rest = ch.items
        for k in range(len(rest)+1):
            st = mk_next()
            c2 = Chain([(x[0], x[1]) for x in rest[k:]])
            before = {gg: len(v) for gg, v in st.fill.items()}
            c2.fill(st)
            if c2.items: continue
            where = {}
            for gg, v in st.fill.items():
                for ins in v[before.get(gg, 0):]: where[ins] = gg
            if all(where[x[0]] <= late_of(x[3]) for x in rest[k:]):
                return rest[:k], st
        raise AssertionError
    def emit_mid(mid):
        if mid: a("s_nop 3")
        Chain(mid).flush(a)
        if mid: a("s_nop 1")
    def post_groups(s, scale):
        out = []
        for qt in range(2):
            for p in range(2):
                t = vT + 16 + (qt*2+p)*4
                regs = [PA(s & 1, nt, qt) + 2*p + rr for rr in range(2) for nt in range(4)]
                ops = [f"v_mul_f32 v{r}, v{vRINV[qt]}, v{r}" for r in regs] if scale else []
                ops += [f"v_cvt_pk_bf16_f32 v{t+i}, v{regs[2*i]}, v{regs[2*i+1]}" for i in range(4)]
                out.append((ops, t))
        return out
    def post_store(s, k, t, base):
        return f"s_add_u32 s{sJT}, s{base}, {s*4096+k*1024}", f"buffer_store_dwordx4 {vr(t,4)}, v{vL16}, {WS}, s{sJT} offen sc1 ; @ps"
    def post_place(st, s, scale, base, gaps):
        for k, (ops, t) in enumerate(post_groups(s, scale)):
            pre, ins = post_store(s, k, t, base)
            st.put(gaps[k]-1, pre); st.put(gaps[k], ins)
    def post_sched(st, s, scale, gaps):
        for k, (ops, t) in enumerate(post_groups(s, scale)):
            prev = None
            for x in ops: prev = st.add(x, [prev], 2, gaps[k]-1)
        st.schedule()
    def post_flush(s, scale, base):
        a("s_nop 5")
        for k, (ops, t) in enumerate(post_groups(s, scale)):
            for x in ops: a(x)
            for x in post_store(s, k, t, base): a(x)
    def mk_post(s):
        st = Stage(mf_post(s)); common_fill(st); return st
    def poll_issue(st, g, voff, soff, tag):
        st.put(g, f"buffer_load_dword v{vPOLL}, v{voff}, {WS}, s{soff} offen sc1 ; @{tag}")
    POLLS = []
    def poll_check(st, g, voff, soff, tag, lane0):
        st.put(g, f"s_waitcnt vmcnt(@since:{tag})")
        st.put(g, f"v_cmp_{'eq' if lane0 else 'ne'}_u32 s[{sT+4}:{sT+5}], s{sEXP}, v{vPOLL}")
        st.put(g+2, f"s_cmp_{'eq' if lane0 else 'lg'}_u64 s[{sT+4}:{sT+5}], 0\ns_cbranch_scc1 L_pw_{tag}")
        assert not ({g+1, g+2} & st.scc_busy)
        st.put(g+2, f"L_po_{tag}:")
        st.put(g+2, "s_barrier")
        POLLS.append((tag, voff, soff, lane0))
    def kv2addr(st):
        st.put(2, f"v_min_u32 v{vL4}, 11, v{vLANE}"); st.put(4, f"v_lshlrev_b32 v{vL4}, 2, v{vL4}"); st.put(8, f"v_add_u32 v{vL4}, 128, v{vL4}")
    XG2 = sorted(XG + [3, 11, 19, 27, 43, 51, 59])
    XG3 = sorted(XG + [5, 13, 21, 29, 45, 53, 61])
    merge("L_P1A")
    stamp(2)
    for x in unpack(0): a(x)
    a("s_nop 1")
    J = p1_jobs(64, OPT["kvstep"])
    for s in range(6):
        st = Stage(mf_proj(s, "bias" if s == 0 else None)); common_fill(st)
        flagjob(J, "kvf", "kv", sFKV, OPT["fdelay"])
        J.place(st, s, OPT["cap"])
        if s == 0:
            for nt in range(1, 16):
                e = XG[2*(nt-13)+1]+2 if nt >= 13 else 0
                for x in unpack(nt): st.add(x, [], e, 4*nt-3)
            st.schedule()
        if s >= 4: xwait(st, f"x1{s+1}")
        st.emit(a)
    st = Stage(mf_proj(6)); common_fill(st)
    flagjob(J, "kvf", "kv", sFKV, OPT["fdelay"]); J.place(st, 6, OPT["cap"])
    items = []
    for ud in range(8):
        for qt in range(2):
            regs = [O(2*ud,qt)+i for i in range(4)] + [O(2*ud+1,qt)+i for i in range(4)]
            e = 8*ud+7+3
            for r in regs: items.append((f"v_mul_f32 v{r}, |v{r}|, v{r}", 0, e, ud))
            for i in range(4): items.append((f"v_cvt_pk_bf16_f32 v{regs[i]}, v{regs[2*i]}, v{regs[2*i+1]}", 0, e, ud))
            for i in range(4): items.append((f"v_pk_max_i16 v{regs[i]}, v{regs[i]}, 0", 0, e, ud))
    import copy
    def mk0():
        st = mk_post(0); J2 = copy.deepcopy(J); J2.place(st, 7, OPT["cap"]); assert not J2.jobs; return st
    mid, st0 = split_chain(items, st, mk0, lambda ud: 8*ud-3)
    print("H mid", len(mid), "kv last", J.at["kv"], file=sys.stderr)
    st.emit(a); emit_mid(mid)
    stamp(3)
    J = Jobs()
    for i in range(16):
        J.add("ql", f"s_add_u32 s{sJT}, s{sQST}, {i*1024}", f"buffer_load_dwordx4 {ar(4*i,4)}, v{vL16}, {WS}, s{sJT} offen sc1 ; @ql", 4*64+46, 6*64+36-(15-i)*4)
    for s in range(7):
        st = st0 if s == 0 else mk_post(s)
        if s == 2: poll_issue(st, 3, vL4, sFKVP, "kva"); poll_check(st, 58, vL4, sFKVP, "kva", False)
        if s == 3: poll_issue(st, 51, vFLG, sFQ, "qa"); kv2addr(st)
        if s == 4: poll_check(st, 42, vFLG, sFQ, "qa", True)
        gaps = [9, 25, 41, 57] if s < 6 else [41, 49, 57, 59]
        if s >= 1: post_place(st, s-1, False, sPSG, gaps)
        J.place(st, s, 7, XG2)
        if s >= 1: post_sched(st, s-1, False, gaps)
        st.emit(a)
    assert not J.jobs
    def mk_F(qb, tag, pre=None):
        st = Stage(mf_qk(0, 0, qb, True) + mf_qk(1, 1, qb, True)); common_fill(st)
        if pre: pre(st)
        place_sm(st, 0, 35, 62, tag, ladd=False, first=True)
        st.schedule()
        return st
    def finit():
        return [(f"v_mov_b64 {vr(NEGM(0)+2*i,2)}, 0", 0) for i in range(4)] + [(f"v_mov_b64 {vr(vL[0],2)}, 0", 0),
                (f"v_mov_b32 v{vBIG}, {f2u(-1e30):#x}", 0), (f"s_mov_b32 s{sFIRST}, 1", 1), (f"s_mov_b32 s{sCLAMP}, {f2u(-3e38):#x}", 1)]
    def f_end(tag, nxt, endl):
        a(f"s_cbranch_vccnz L_fchk_{tag}")
        a.label(f"L_fok_{tag}")
        STUBS.append((f"L_fchk_{tag}", "L_fchk", f"L_fok_{tag}"))
        a(f"s_mov_b32 s{sFIRST}, 0")
        a(f"s_mov_b32 s{sCLAMP}, 0")
        a(f"s_cmp_eq_u32 s{sCNT}, 0")
        a(f"s_cbranch_scc1 {endl}")
        if nxt: a(f"s_branch {nxt}")
    a("s_nop 5")
    for ops, t in post_groups(6, False):
        for x in ops: a(x)
    a("s_waitcnt vmcnt(@since:ql)")
    stamp(4)
    def pre_fa1(st):
        post_place(st, 6, False, sPSG, [9, 17, 25, 33])
        poll_issue(st, 1, vL4, sFKVP, "kv2a"); poll_check(st, 58, vL4, sFKVP, "kv2a", False)
    st = mk_F(0, "fa1", pre_fa1)
    c = Chain(finit()); c.fill(st, 0, 30); assert not c.items
    st.emit(a)
    f_end("fa1", "L_s1z0", "L_u2")
    merge("L_P1B")
    stamp(2)
    J = p1_jobs(OPT["kvb0"], OPT["kvstepb"], 200)
    for i in range(28):
        p = i >> 2
        xjob(J, f"x2{p}", i, XO2, max(p+1, 3)*64, (7+p)*64 - 134, 4)
    for i in range(16):
        qt, ud = i & 1, i >> 1
        J.add("qs", f"s_add_u32 s{sJT}, s{sQST}, {(qt*8+ud)*1024}", f"buffer_store_dwordx4 {ar(Q(0,qt,ud),4)}, v{vL16}, {WS}, s{sJT} offen{OPT['kvsc']} ; @qs",
              7*64 if ud < 5 else 8*64, 7*64+20+i*OPT["qstep"])
    def bstage(gs):
        s = gs % 7
        st = Stage(mf_proj(s, "zero" if gs % 7 == 0 else None))
        nod = 3 <= gs <= 7
        common_fill(st, dma=not nod, nd={3: 16, 4: 8, 5: 0}.get(gs), novm=(6 <= gs <= 10), rdl=(gs == 7))
        if gs == 9: poll_issue(st, 3, vL4, sFKVP, "kvb"); poll_check(st, 58, vL4, sFKVP, "kvb", False)
        if gs == 10: kv2addr(st)
        flagjob(J, "kvf", "kv", sFKV, OPT["fdelay"]); flagjob(J, "qf", "qs", sFQ, 72)
        if nod: J.place(st, gs, OPT["capn"], XG3)
        elif gs == 8: J.place(st, gs, OPT["capq"], XG2)
        else: J.place(st, gs, OPT["capb"])
        if gs in (4, 5): xwait(st, f"x1{gs+1}")
        if 6 <= gs < 13: xwait(st, f"x2{gs-6}")
        return st
    for gs in range(6): bstage(gs).emit(a)
    def q_items(qb):
        items = []; cnt = 0
        for ud in range(8):
            blk = ud >> 1
            for qt in range(2):
                e = 16*blk+15+3
                t = vT + 16 + (cnt % 4)*4; cnt += 1
                for i in range(4):
                    jp = 2*(ud & 1) + (i >> 1); tl = 4*blk + 2*(i & 1)
                    items.append((f"v_cvt_pk_bf16_f32 v{t+i}, v{O(tl,qt)+jp}, v{O(tl+1,qt)+jp}", 0, e, 2*blk))
                for i in range(4): items.append((f"v_accvgpr_write_b32 a{Q(qb,qt,ud)+i}, v{t+i}", 0, e, 99 if ud >= 5 else -1))
        return items
    st = bstage(6); st7 = bstage(7)
    mid, st0 = split_chain(q_items(0), st, lambda: copy.deepcopy(st7), lambda ud: 8*ud-1)
    print("E1 mid", len(mid), file=sys.stderr)
    st.emit(a); emit_mid(mid)
    stamp(3)
    st0.emit(a)
    for gs in range(8, 13): bstage(gs).emit(a)
    st = bstage(13)
    assert not J.jobs
    print("B jobs", {k: (v >> 6, v & 63) for k, v in J.at.items()}, file=sys.stderr)
    def mk_fa2():
        STUBS[:] = [x for x in STUBS if "fa2" not in x[0]]
        POLLS[:] = [x for x in POLLS if x[0] != "kv2b"]
        def pre(st): poll_issue(st, 1, vL4, sFKVP, "kv2b"); poll_check(st, 58, vL4, sFKVP, "kv2b", False)
        st = mk_F(0, "fa2", pre); c = Chain(finit()); c.fill(st, 0, 30); return st
    mid, st0 = split_chain(q_items(128), st, mk_fa2, lambda ud: 60)
    print("E2 mid", len(mid), file=sys.stderr)
    st.emit(a); emit_mid(mid)
    stamp(4)
    st0.emit(a)
    f_end("fa2", None, "L_u2")
    def steady(b, qb, tag, czero=False):
        st = Stage(mf_pv(0, b^1, czero) + mf_qk(1, b^1, qb)); common_fill(st)
        if b == 0:
            st.put(56, f"s_sub_u32 s{sCNT}, s{sCNT}, 1")
            st.put(58, f"s_cmp_lg_u32 s{sCNT}, s{sEV}")
            st.scc_busy |= set(range(58, 64))
        if tag == "z0":
            st.put(56, "s_waitcnt vmcnt(11)")
            st.put(57, f"buffer_store_dword v{vONE}, v{vFLG}, {WS}, s{sFSG} offen sc1")
        place_sm(st, b, 0, 62, tag); st.schedule()
        st.emit(a)
        a(f"s_cbranch_vccnz L_dorare_{tag}")
        a.label(f"L_norare_{tag}")
        STUBS.append((f"L_dorare_{tag}", f"L_rare{b}", f"L_norare_{tag}"))
    def loop(qb, n):
        merge(f"L_s1z{n}")
        steady(1, qb, f"z{n}", True)
        a(f"s_branch L_mid{n}")
        merge(f"L_steady{n}", True)
        steady(1, qb, f"s1{n}")
        merge(f"L_mid{n}")
        steady(0, qb, f"s0{n}")
        a(f"s_cbranch_scc1 L_steady{n}")
    loop(0, 0)
    a(f"s_cmp_eq_u32 s{sCNT}, 0")
    a("s_cbranch_scc1 L_end0")
    a(f"""
    s_add_u32 s{sFQ}, s{sFQ}, {FL_P - FL_Q}
    s_nop 0
    buffer_load_dword v{vPOLL}, v{vFLG}, {WS}, s{sFQ} offen sc1
    s_mov_b32 s{sEV}, 0
    s_branch L_steady0
    """)
    a.label("L_u2")
    for i in range(64): a(f"v_mov_b64 {vr(O0+2*i,2)}, 0")
    merge("L_end0")
    a(f"s_cmp_eq_u32 s{sTYPE}, 2")
    a("s_cbranch_scc1 L_lpack")
    a(f"""
    s_waitcnt vmcnt(16)
    v_cmp_ne_u32 vcc, s{sEXP}, v{vPOLL}
    s_add_u32 s{sT+3}, s{sPT}, 16384
    s_nop 0
    s_bitcmp1_b32 vcc_lo, 0
    s_cbranch_scc1 L_pw_pt
    """)
    a.label("L_po_pt")
    a("s_barrier")
    POLLS.append(("pt", vFLG, sFQ, True))
    a(f"buffer_load_dwordx4 {vr(vSTB,4)}, v{vL16}, {WS}, s{sT+3} offen sc1")
    for i in range(16):
        if i % 4 == 0: a(f"s_add_u32 s{sT+3}, s{sPT}, {i*1024}")
        a(f"buffer_load_dwordx4 {ar(128+4*i,4)}, v{vL16}, {WS}, s{sT+3} offen offset:{(i&3)*1024} sc1 ; @ptl")
    def pack_items(e0, step):
        items = []
        for ud in range(8):
            for qt in range(2):
                regs = [O(2*ud,qt)+i for i in range(4)] + [O(2*ud+1,qt)+i for i in range(4)]
                for i in range(4): items.append((f"v_cvt_pk_bf16_f32 v{regs[i]}, v{regs[2*i]}, v{regs[2*i+1]}", 0, e0+step*ud, ud))
        return items
    def mk_L(tag):
        st = Stage(mf_pv(0, 0) + mf_pv(1, 1)); common_fill(st)
        place_sm(st, 1, 0, 30, tag); st.schedule()
        st.put_post(31, f"s_cbranch_vccnz L_dorare_{tag}")
        st.put_post(31, f"L_norare_{tag}:")
        STUBS.append((f"L_dorare_{tag}", "L_rare1", f"L_norare_{tag}"))
        st.put(32, f"v_add_f32 v{vL[0]}, v{vL[0]}, v{vSUM[0][0]}")
        st.put(34, f"v_add_f32 v{vL[1]}, v{vL[1]}, v{vSUM[1][0]}")
        return st
    st = mk_L("ln")
    c = [(f"v_bfe_u32 v{vT+20}, v{vLANE}, 2, 2", 0), (f"v_lshrrev_b32 v{vT+21}, 4, v{vLANE}", 0), (f"v_cmp_eq_u32 s[{sT+4}:{sT+5}], v{vT+20}, v{vT+21}", 0),
         (f"v_and_b32 v{vT+20}, 3, v{vLANE}", 0), (f"v_lshlrev_b32 v{vT+20}, 4, v{vT+20}", 0), (f"v_mov_b32 v{vT+22}, 0x3f80", 0), (f"v_mov_b32 v{vT+23}, 0", 0),
         (f"v_cndmask_b32 v{vT+22}, 0, v{vT+22}, s[{sT+4}:{sT+5}]", 1), (f"v_lshlrev_b64 {vr(vSEL+2,2)}, v{vT+20}, {vr(vT+22,2)}", 0),
         (f"v_mov_b64 {vr(vSEL,2)}, 0", 0), (f"v_mov_b64 {vr(vSEL+4,2)}, 0", 0),
         ("s_waitcnt vmcnt(@since:ptl)", 1, 55),
         (f"v_cmp_neq_f32 vcc, v{NEGM(0)}, v{vSTB}", 1), (f"v_cmp_neq_f32 s[{sT+4}:{sT+5}], v{NEGM(1)}, v{vSTB+1}", 0)]
    c = Chain(c); c.fill(st, 35); assert not c.items
    st.emit(a)
    a(f"s_or_b64 vcc, vcc, s[{sT+4}:{sT+5}]")
    a("s_cbranch_scc1 L_slowcomb")
    a.label("L_comb")
    stamp(5)
    mf = []
    for ud in range(8):
        for h in range(2):
            for qt in range(2):
                d = vr(O(2*ud+h,qt),4)
                mf.append(f"{MF} {d}, {vr(vSEL+2-2*h,4)}, {ar(128+(ud*2+qt)*4,4)}, {d}")
    st = Stage(mf)
    st.put(0, f"v_add_f32 v{vL[0]}, v{vL[0]}, v{vSTB+2}")
    st.put(0, f"v_add_f32 v{vL[1]}, v{vL[1]}, v{vSTB+3}")
    c = Chain(pack_items(6, 4)); c.fill(st, 0, 31)
    st.emit(a)
    a("s_nop 5")
    c.flush(a)
    a("s_branch L_post2")
    merge("L_lpack")
    st = mk_L("lp")
    c = Chain([(f"v_mov_b32 v{vSTAT}, v{NEGM(0)}", 0), (f"v_mov_b32 v{vSTAT+1}, v{NEGM(1)}", 0), (f"v_mov_b64 {vr(vSTAT+2,2)}, {vr(vL[0],2)}", 0)] + pack_items(38, 4))
    c.fill(st, 35)
    st.put(62, f"s_cmp_eq_u32 s{sTYPE}, 2")
    st.emit(a)
    a("s_nop 5")
    print("Lpack tail", len(c.items), file=sys.stderr)
    c.flush(a)
    a("s_cbranch_scc0 L_post2b")
    stamp(5)
    a(f"""
    s_mov_b32 s{sTYPE}, 3
    s_mov_b32 s{sN}, 0
    s_sub_u32 s{sND}, 15, s{sQI}
    s_lshl_b32 s{sND}, s{sND}, 2
    s_add_u32 s{sND}, s{sND}, s{sWAVE}
    s_lshr_b32 s{sCNT}, s{sU2}, 1
    s_sub_u32 s{sCNT}, s{sCNT}, 1
    s_sub_u32 s{sEV}, s{sCNT}, 1
    s_add_u32 s{sFQ}, s{sFQ}, {FL_P - FL_Q}
    s_add_u32 s{sT+3}, s{sPT}, 16384
    buffer_store_dwordx4 {vr(vSTAT,4)}, v{vL16}, {WS}, s{sT+3} offen sc1
    """)
    st = mk_F(128, "fb")
    c = []
    for i in range(16):
        if i % 4 == 0: c.append((f"s_add_u32 s{sT+3}, s{sPT}, {i*1024}", 1))
        c.append((f"buffer_store_dwordx4 {vr(O(2*(i>>1),i&1),4)}, v{vL16}, {WS}, s{sT+3} offen offset:{(i&3)*1024}{OPT['kvsc']}", 1))
    c = Chain(c); c.fill(st)
    c2 = Chain(finit()); c2.fill(st, 0, 30); assert not c2.items
    print("Fb leftover", len(c.items), file=sys.stderr)
    st.emit(a)
    c.flush(a)
    f_end("fb", None, "L_end")
    loop(128, 1)
    a(f"""
    s_cmp_eq_u32 s{sTYPE}, 3
    s_cbranch_scc0 L_lpack
    s_waitcnt vmcnt(16)
    s_barrier
    buffer_store_dword v{vONE}, v{vFLG}, {WS}, s{sFQ} offen sc1
    s_mov_b32 s{sTYPE}, 4
    s_mov_b32 s{sEV}, 0
    s_cmp_eq_u32 s{sCNT}, 0
    s_cbranch_scc1 L_lpack
    s_branch L_steady1
    """)
    a.label("L_post2b")
    merge("L_post2")
    stamp(6)
    a("s_nop 1")
    C0, CO, FP = sU1, sU2, sW0
    XO = [sCNT, sEV]; BO = [sN, sND]
    vXO, vBO, vC1, vFG, vFS = 44, 45, 46, 47, 48
    fs = f"""
    s_load_dwordx2 s[{sSA}:{sSA+1}], s[0:1], 0
    s_load_dwordx2 s[{sG}:{sG+1}], s[0:1], 80
    s_load_dwordx2 s[{sSB}:{sSB+1}], s[0:1], 88
    s_mov_b32 s{sSA+2}, {2048*896}
    s_mov_b32 s{sSB+2}, {2048*896}
    s_mov_b32 s{sG+2}, 896
    s_and_b32 s{C0}, s2, 3
    s_mul_i32 s{C0}, s{C0}, 7
    s_lshl_b32 s{sT}, s{sWAVE}, 1
    s_add_u32 s{C0}, s{C0}, s{sT}
    s_lshr_b32 s{sT}, s2, 4
    s_mul_i32 s{CO}, s{sT}, {PS_R}
    s_bfe_u32 s{sT+4}, s2, 0x20002
    s_mul_i32 s{sT+5}, s{sT+4}, {28*1024}
    s_add_u32 s{CO}, s{CO}, s{sT+5}
    s_lshl_b32 s{sT+5}, s{C0}, 10
    s_add_u32 s{CO}, s{CO}, s{sT+5}
    s_add_u32 s{CO}, s{CO}, {WS_PS}
    s_lshr_b32 s{FP}, s2, 2
    s_lshl_b32 s{FP}, s{FP}, 7
    s_add_u32 s{FP}, s{FP}, {WS_FLG + FL_S}
    v_min_u32 v{vFG}, 6, v{vLANE}
    v_lshl_add_u32 v{vFG}, v{vFG}, 2, 64
    v_and_b32 v{vXO}, 15, v{vLANE}
    v_lshlrev_b32 v{vFS}, 2, v{vXO}
    s_lshr_b32 s{sT+5}, s2, 2
    s_lshl_b32 s{sT+5}, s{sT+5}, 5
    v_add_u32 v{vXO}, s{sT+5}, v{vXO}
    v_mul_u32_u24 v{vXO}, 896, v{vXO}
    v_and_b32 v{vBO}, 48, v{vLANE}
    v_lshlrev_b32 v{vBO}, 1, v{vBO}
    v_add_u32 v{vXO}, v{vXO}, v{vBO}
    """
    for k in range(2):
        fs += f"""
        s_add_u32 s{sT}, s{C0}, {k}
        s_lshr_b32 s{sT+4}, s{sT}, 2
        s_lshl_b32 s{BO[k]}, s{sT+4}, 7
        s_and_b32 s{sT+4}, s{sT}, 1
        s_lshl_b32 s{sT+4}, s{sT+4}, 4
        s_add_u32 s{BO[k]}, s{BO[k]}, s{sT+4}
        s_bfe_u32 s{sT+4}, s{sT}, 0x10001
        s_mul_i32 s{XO[k]}, s{sT+4}, {16*896}
        s_add_u32 s{XO[k]}, s{XO[k]}, s{BO[k]}
        """
    fs = [(x.strip(), 1) for x in fs.split("\n") if x.strip()]
    fs.append((f"s_cmp_eq_u32 s{sWAVE}, 3\ns_cselect_b32 s{XO[1]}, {OOB}, s{XO[1]}\ns_cselect_b32 s{sT+4}, {OOB}, 0", 1))
    fs.append((f"v_add_u32 v{vC1}, s{sT+4}, v{vL16}", 1))
    fs.append((f"s_cmp_eq_u32 s{sWAVE}, 0\ns_cselect_b32 s{FP}, s{FP}, {OOB}", 1))
    fs = Chain(fs)
    J = Jobs()
    GL = 128
    for k in range(2):
        J.add("gl", None, f"buffer_load_dwordx4 {ar(GL+56+4*k,4)}, v{vXO}, {sr(sSA,4)}, s{XO[k]} offen", 3*64, 7*64)
        J.add("gl", None, f"buffer_load_dwordx4 {ar(GL+64+4*k,4)}, v{vBO}, {G}, s{BO[k]} offen", 3*64, 7*64)
    for n in range(7):
        for k in range(2):
            J.add("gl", f"s_add_u32 s{sJT}, s{CO}, {(16+n)*PS_SRC}", f"buffer_load_dwordx4 {ar(GL+n*8+4*k,4)}, v{(vL16, vC1)[k]}, {WS}, s{sJT} offen offset:{k*1024} sc1 ; @gl", 4*64, 7*64)
    for s in range(7):
        st = Stage(mf_post(s)); common_fill(st, dma=(s < 3), nd=(None, None, None, 16, 8, 0, 0)[s], last=(s == 6))
        if s == 0:
            c = xlane_ops("v_add_f32", vL[0], vT) + xlane_ops("v_add_f32", vL[1], vT) + [(f"v_rcp_f32 v{vRINV[0]}, v{vL[0]}", 0), (f"v_rcp_f32 v{vRINV[1]}, v{vL[1]}", 1)]
            c = Chain(c); c.fill(st); assert not c.items
            fs.fill(st)
        else:
            gaps = [17, 33, 49, 57]
            post_place(st, s-1, True, sPSS, gaps)
            if s == 2: st.put(60, "s_waitcnt lgkmcnt(0)")
            if s == 2: poll_issue(st, 41, vFG, FP, "gf")
            if s == 3: poll_check(st, 58, vFG, FP, "gf", False)
            J.place(st, s, 7, [1, 9, 13, 25, 29, 41, 45, 61])
            post_sched(st, s-1, True, gaps)
            fs.fill(st)
            if s == 1: assert not fs.items
        st.emit(a)
    assert not J.jobs
    post_flush(6, True, sPSS)
    stamp(7)
    a(f"s_mov_b32 s{sT+4}, 0x00003f80")
    a(f"s_mov_b32 s{sT+5}, 0x3f800000")
    a(f"s_mov_b32 s{sT+6}, 0xffff0000")
    a(f"s_mov_b32 s{sT+7}, {f2u(-1.4426950408889634):#x}")
    LB = 128; TB = 64
    XB, BB = TB+56, 52
    GA, SA_ = 12, 28
    a("s_waitcnt vmcnt(@since:gl)")
    for i in range(64): a(f"v_accvgpr_read_b32 v{TB+i}, a{GL+i}")
    for i in range(8): a(f"v_accvgpr_read_b32 v{BB+i}, a{GL+64+i}")
    def accum(base, acc, first):
        for i in range(8):
            r = base+i
            if first:
                a(f"v_lshlrev_b32 v{acc+2*i}, 16, v{r}"); a(f"v_and_b32 v{acc+2*i+1}, s{sT+6}, v{r}")
            else:
                a(f"v_dot2_f32_bf16 v{acc+2*i}, v{r}, s{sT+4}, v{acc+2*i}"); a(f"v_dot2_f32_bf16 v{acc+2*i+1}, v{r}, s{sT+5}, v{acc+2*i+1}")
    def rnd_pair(r0, r1, t):
        a(f"v_cvt_pk_bf16_f32 v{t}, v{r0}, v{r1}")
        a(f"v_lshlrev_b32 v{r0}, 16, v{t}")
        a(f"v_and_b32 v{r1}, s{sT+6}, v{t}")
    for n in range(7): accum(TB+n*8, GA, n == 0)
    a("s_waitcnt vmcnt(0)")
    a(f"buffer_store_dword v{vONE}, v{vFLG}, {WS}, s{sFSS} offen sc1")
    a("s_nop 0")
    T1, T2, T3 = 2, 3, 4
    for i in range(8):
        g0, g1 = GA+2*i, GA+2*i+1
        rnd_pair(g0, g1, T1)
        a(f"v_lshlrev_b32 v{T2}, 16, v{BB+i}")
        a(f"v_and_b32 v{T3}, s{sT+6}, v{BB+i}")
        a(f"v_add_f32 v{g0}, v{g0}, v{T2}")
        a(f"v_add_f32 v{g1}, v{g1}, v{T3}")
        rnd_pair(g0, g1, T1)
        a(f"v_mul_f32 v{T2}, s{sT+7}, v{g0}")
        a(f"v_mul_f32 v{T3}, s{sT+7}, v{g1}")
        a(f"v_exp_f32 v{T2}, v{T2}")
        a(f"v_exp_f32 v{T3}, v{T3}")
        a("s_nop 0")
        a(f"v_add_f32 v{T2}, 1.0, v{T2}")
        a(f"v_add_f32 v{T3}, 1.0, v{T3}")
        a(f"v_rcp_f32 v{T2}, v{T2}")
        a(f"v_rcp_f32 v{T3}, v{T3}")
        a("s_nop 0")
        a(f"v_mul_f32 v{g0}, v{g0}, v{T2}")
        a(f"v_mul_f32 v{g1}, v{g1}, v{T3}")
        rnd_pair(g0, g1, T1)
    a(f"s_mov_b32 s{sT+1}, 0")
    a(f"s_cmp_lg_u32 s{sWAVE}, 0")
    a("s_cbranch_scc1 L_fgo")
    a.label("L_fpoll")
    a(f"""
    buffer_load_dword v{vPOLL}, v{vFS}, {WS}, s{FP} offen sc1
    s_add_u32 s{sT+1}, s{sT+1}, 1
    s_waitcnt vmcnt(0)
    v_cmp_ne_u32 vcc, 1, v{vPOLL}
    s_cmp_lt_u32 s{sT+1}, 0x10000
    s_cbranch_vccz L_fgo
    s_sleep {OPT['fsleep']}
    s_cbranch_scc1 L_fpoll
    """)
    a.label("L_fgo")
    a("s_barrier")
    stamp(8)
    for n in range(16):
        a(f"s_add_u32 s{sT}, s{CO}, {n*PS_SRC}")
        a(f"buffer_load_dwordx4 {vr(LB+n*8,4)}, v{vL16}, {WS}, s{sT} offen sc1")
        a(f"buffer_load_dwordx4 {vr(LB+n*8+4,4)}, v{vC1}, {WS}, s{sT} offen offset:1024 sc1")
    for n in range(16):
        a(f"s_waitcnt vmcnt({2*(15-n)})")
        accum(LB+n*8, SA_, n == 0)
    a("s_nop 2")
    for i in range(8):
        g0, g1, s0, s1 = GA+2*i, GA+2*i+1, SA_+2*i, SA_+2*i+1
        rnd_pair(s0, s1, T1)
        a(f"v_mul_f32 v{g0}, v{g0}, v{s0}")
        a(f"v_mul_f32 v{g1}, v{g1}, v{s1}")
        rnd_pair(g0, g1, T1)
        a(f"v_lshlrev_b32 v{T2}, 16, v{XB+i}")
        a(f"v_and_b32 v{T3}, s{sT+6}, v{XB+i}")
        a(f"v_add_f32 v{g0}, v{g0}, v{T2}")
        a(f"v_add_f32 v{g1}, v{g1}, v{T3}")
        a(f"v_cvt_pk_bf16_f32 v{LB+i}, v{g0}, v{g1}")
        if i % 4 == 3: a(f"buffer_store_dwordx4 {vr(LB+i-3,4)}, v{vXO}, {sr(sSB,4)}, s{XO[i>>2]} offen")
    if stamps:
        a("s_waitcnt vmcnt(0)")
        stamp(9)
        a("s_waitcnt lgkmcnt(0)")
        for i in range(12): a(f"v_mov_b32 v{16+i}, s{streg(min(i,9))}")
        a(f"""
        s_lshl_b32 s{sT+1}, s2, 2
        s_add_u32 s{sT+1}, s{sT+1}, s{sWAVE}
        s_lshl_b32 s{sT+1}, s{sT+1}, 6
        s_add_u32 s{sT+1}, s{sT+1}, {WS_STAMP}
        buffer_store_dwordx4 v[16:19], v{vFLG}, {WS}, s{sT+1} offen
        buffer_store_dwordx4 v[20:23], v{vFLG}, {WS}, s{sT+1} offen offset:16
        buffer_store_dwordx4 v[24:27], v{vFLG}, {WS}, s{sT+1} offen offset:32
        s_sub_u32 s{sT+1}, s{sT+1}, {WS_STAMP}
        s_lshl_b32 s{sT+1}, s{sT+1}, 3
        s_add_u32 s{sT+1}, s{sT+1}, {WS_STAMP + 0x100000}
        v_lshlrev_b32 v2, 2, v{vLANE}
        buffer_store_dword v0, v2, {WS}, s{sT+1} offen
        buffer_store_dword v{vKV}, v2, {WS}, s{sT+1} offen offset:256
        """)
    a.label("L_end")
    a("s_endpgm")
    for typ in ("K", "V"):
        for nm, ok, ldi, red, reg in (("zwait", "zok", f"buffer_load_dword v{vPOLL}, v{vL4}, {sr(sDBG,4)}, 0 offen sc1", "", vPOLL),
                ("prepwait", "prepok", f"buffer_load_dwordx4 {vr(PV,4)}, v{vL16}, {WS}, s{gIT} offen sc1",
                 f"v_and_b32 v{PV}, v{PV}, v{PV+1}\nv_and_b32 v{PV+2}, v{PV+2}, v{PV+3}\nv_and_b32 v{PV}, v{PV}, v{PV+2}", PV)):
            a.label(f"L_{nm}{typ}")
            a(f"s_mov_b32 s{sT+4}, 0")
            a.label(f"L_{nm}2{typ}")
            a(f"""
            s_sleep 4
            {ldi}
            s_add_u32 s{sT+4}, s{sT+4}, 1
            s_waitcnt vmcnt(0)
            {red}
            v_cmp_ne_u32 vcc, s{sT+1}, v{reg}
            s_cmp_ge_u32 s{sT+4}, 0x10000
            s_cbranch_scc1 L_{ok}{typ}
            s_nop 2
            s_cbranch_vccnz L_{nm}2{typ}
            s_branch L_{ok}{typ}
            """)
    for (tag, voff, soff, lane0) in POLLS:
        a.label(f"L_pw_{tag}")
        a(f"s_mov_b32 s{sT+1}, 0")
        a.label(f"L_pw2_{tag}")
        a(f"""
        buffer_load_dword v{vPOLL}, v{voff}, {WS}, s{soff} offen sc1
        s_add_u32 s{sT+1}, s{sT+1}, 1
        s_waitcnt vmcnt(0)
        v_cmp_ne_u32 s[{sT+4}:{sT+5}], 1, v{vPOLL}
        s_cmp_ge_u32 s{sT+1}, 0x10000
        s_cbranch_scc1 L_po_{tag}
        s_sleep {OPT['psleep']}
        """)
        if lane0 is True: a(f"s_bitcmp1_b32 s{sT+4}, 0")
        else: a(f"s_cmp_lg_u64 s[{sT+4}:{sT+5}], 0")
        a(f"s_cbranch_scc1 L_pw2_{tag}")
        a(f"s_branch L_po_{tag}")
    for (lab, sub, back) in STUBS:
        a.label(lab)
        a(f"s_call_b64 s[{sRET}:{sRET+1}], {sub}")
        a(f"s_branch {back}")
    for b in range(2):
        a.label(f"L_mask{b}")
        a("s_nop 7")
        a(f"s_cmp_eq_u32 s{sN}, s{sND}")
        a(f"s_cbranch_scc0 L_maskall{b}")
        for r in range(4):
            a(f"v_cndmask_b32 v{S(b,0,0)+r}, v{S(b,0,0)+r}, v{vBIG}, s[{sMASK+2*r}:{sMASK+2*r+1}]")
            a(f"v_cndmask_b32 v{S(b,1,1)+r}, v{S(b,1,1)+r}, v{vBIG}, s[{sMASK+2*r}:{sMASK+2*r+1}]")
            a(f"v_mov_b32 v{S(b,1,0)+r}, v{vBIG}")
        a(f"s_setpc_b64 s[{sRET}:{sRET+1}]")
        a.label(f"L_maskall{b}")
        for i in range(16): a(f"v_mov_b32 v{S(b,0,0)+i}, v{vBIG}")
        a(f"s_setpc_b64 s[{sRET}:{sRET+1}]")
    a.label("L_fchk")
    hi, lo = f2u(2.0**OPT["thr"]), f2u(2.0**-OPT["thr"])
    a(f"s_add_u32 s{sT+1}, s{sND}, 1")
    a(f"s_cmp_gt_u32 s{sN}, s{sT+1}")
    a("s_cbranch_scc1 L_fret")
    for qt in range(2):
        a(f"v_mov_b32 v{vT+8+qt}, v{vSUM[qt][0]}")
        xlane(a, "v_add_f32", vT+8+qt, vT)
        a(f"v_subrev_u32 v{vT+8+qt}, {lo:#x}, v{vT+8+qt}")
    a(f"v_max_u32 v{vT+8}, v{vT+8}, v{vT+9}")
    a(f"v_cmp_lt_u32 vcc, {hi-lo:#x}, v{vT+8}")
    a("s_nop 4")
    a("s_cbranch_vccnz L_rare0")
    a.label("L_fret")
    a(f"s_setpc_b64 s[{sRET}:{sRET+1}]")
    for b in range(2):
        a.label(f"L_rare{b}")
        a("s_nop 7")
        D = [vT+8, vT+9]; F = [vT+10, vT+11]
        for qt in range(2):
            r0, r1 = S(b,0,qt), S(b,1,qt)
            a(f"v_max3_f32 v{D[qt]}, v{r0}, v{r0+1}, v{r0+2}")
            a(f"v_max3_f32 v{D[qt]}, v{D[qt]}, v{r0+3}, v{r1}")
            a(f"v_max3_f32 v{D[qt]}, v{D[qt]}, v{r1+1}, v{r1+2}")
            a(f"v_max_f32 v{D[qt]}, v{D[qt]}, v{r1+3}")
            xlane(a, "v_max_f32", D[qt], vT)
            a(f"v_max_f32 v{D[qt]}, s{sCLAMP}, v{D[qt]}")
            a(f"v_max_f32 v{F[qt]}, 0, v{D[qt]}")
            a(f"v_exp_f32 v{F[qt]}, -v{F[qt]}")
            for i in range(4): a(f"v_sub_f32 v{NEGM(qt)+i}, v{NEGM(qt)+i}, v{D[qt]}")
            for bb in range(2):
                for kt in range(2):
                    for i in range(4): a(f"v_sub_f32 v{S(bb,kt,qt)+i}, v{S(bb,kt,qt)+i}, v{D[qt]}")
            a(f"v_mul_f32 v{vL[qt]}, v{F[qt]}, v{vL[qt]}")
        for o in sm_ops(b): a(o)
        a(f"s_cmp_eq_u32 s{sFIRST}, 1")
        a(f"s_cbranch_scc1 L_rare_ret{b}")
        for dt in range(16):
            for qt in range(2):
                for i in range(4): a(f"v_mul_f32 v{O(dt,qt)+i}, v{F[qt]}, v{O(dt,qt)+i}")
        a.label(f"L_rare_ret{b}")
        a(f"s_cmp_lg_u32 s{sCNT}, s{sEV}")
        a("s_nop 0")
        a(f"s_setpc_b64 s[{sRET}:{sRET+1}]")
    a.label("L_slowcomb")
    a("s_nop 7")
    wA, wB = [vT+8, vT+9], [vT+10, vT+11]
    for qt in range(2):
        a(f"""
        v_min_f32 v{vT+6}, v{NEGM(qt)}, v{vSTB+qt}
        v_sub_f32 v{wA[qt]}, v{vT+6}, v{NEGM(qt)}
        v_sub_f32 v{wB[qt]}, v{vT+6}, v{vSTB+qt}
        v_exp_f32 v{wA[qt]}, v{wA[qt]}
        v_exp_f32 v{wB[qt]}, v{wB[qt]}
        s_nop 0
        v_mul_f32 v{vL[qt]}, v{wA[qt]}, v{vL[qt]}
        v_mul_f32 v{vSTB+2+qt}, v{wB[qt]}, v{vSTB+2+qt}
        """)
    for dt in range(16):
        for qt in range(2):
            for i in range(4): a(f"v_mul_f32 v{O(dt,qt)+i}, v{wA[qt]}, v{O(dt,qt)+i}")
    for i in range(64):
        qt = (i >> 2) & 1
        a(f"""
        v_accvgpr_read_b32 v{vT}, a{128+i}
        v_lshlrev_b32 v{vT+1}, 16, v{vT}
        v_and_b32 v{vT}, 0xffff0000, v{vT}
        v_mul_f32 v{vT+1}, v{wB[qt]}, v{vT+1}
        v_mul_f32 v{vT}, v{wB[qt]}, v{vT}
        v_cvt_pk_bf16_f32 v{vT}, v{vT+1}, v{vT}
        v_accvgpr_write_b32 a{128+i}, v{vT}
        """)
    a("s_nop 1")
    a("s_branch L_comb")
    a.label("L_codeend")
    lines = []
    for l in a.lines: lines += l.split("\n")
    ghost = [l.startswith("@ghost ") for l in lines]
    lines = [l[7:] if g else l for l, g in zip(lines, ghost)]
    lines = resolve_vm(lines)
    lines = [l.replace("@@buffer", "buffer") for l, g in zip(lines, ghost) if not g]
    errs = check_hazards(lines) + check_scc(lines)
    for e in errs[:30]: print("HAZARD", e, file=sys.stderr)
    lines = [re.sub(r"\s*; @\w+", "", l) for l in lines]
    lines = [l.strip() for l in lines if l.strip()]
    i, j = lines.index("L_gemmV:"), lines.index("L_P1A:")
    k = lines.index("L_zwaitV:"); k2 = lines.index("s_branch L_prepokV") + 1
    assert lines[i-1] == "s_branch L_P1A"
    lines = [".p2align 8"] + lines[i:j] + lines[k:k2] + lines[:i-1] + lines[j:k] + lines[k2:]
    lines = compact(lines)
    return "\n".join(lines) + "\n", kernel_desc(name, 512, 256)

if __name__ == "__main__":
    import ast
    for x in sys.argv[2:]:
        k, v = x.split("=")
        OPT[k] = ast.literal_eval(v)
    NAME = "recurrent_scan__compressed_kv_cla__dense_activation_squared_relu__prompt_kernel"
    body, desc = gen(NAME)
    ref = open("recurrent_scan__compressed_kv_cla__dense_activation_squared_relu__prompt.s.ref").read().split("\n")
    hdr = [l for l in ref if l.startswith(";") and "launch" not in l and "grid=" not in l]
    hdr += ["; @launch grid=(256,1,1) block=(256,1,1) lds=163840", '.amdgcn_target "amdgcn-amd-amdhsa--gfx950"', ".text"]
    txt = "\n".join(hdr) + "\n" + body + '.section .rodata,"a"\n.p2align 6\n' + desc
    open(sys.argv[1], "w").write(txt)
    print(len(txt), "bytes", file=sys.stderr)
```

```python
import sys
from fw import *
from layout2 import *

OPT = dict(ntA="", ntB="", ntS="", chq=1, chp=1, cyc=0, npro=6, gcap=[4, 4, 3], dg2=8, xpos=3, rotm=1, rot=0, sync=[6, 10, 12, 15, 20, 22], xstep=20, wbl2=0, pfk=0, pfd=4, pfo=[0], pfn=2, smin=0, voff=0, dbgside=0, tlb=0, tlbm=0, tlbs=16, flit=9, npeel=7, slt=[100, 260, 780], slstep=16, sld=180, map2=False, kvb0=256, kvstepb=16, psleep=4, prep=1, pst=False, cpf=True, fine=False, touch=False, sc1ld=" sc1", stamps=False, early=[5, 13, 21, 29], late=[37, 45, 53, 61], cap=7, capb=8, capq=9, capn=12, kvstep=9, a15=38, fsleep=2, fdelay=96, qstep=7, wideloop=False, thr=40, kvsc=" sc1", sidesc=" sc1")

vLANE, vDMA, vTE, vTO, vL16, vRD, vPOLL, vFLG, vONE, vL4, vKV = range(1, 12)
DA = [12, 13, 14, 15]; DB = [16, 17, 18, 19]; RA = [20, 21]; RB = [22, 23, 24, 25]
vSW, vSF, vSX, vG1 = 26, 27, 28, 29
GT = 30
vT = 12
BIAS = 12
O0 = 128
def O(dt, qt): return O0 + (dt*2+qt)*4
def S(b, kt, qt): return 64 + b*16 + (kt*2+qt)*4
def P(b, qt): return 96 + b*8 + qt*4
def NEGM(qt): return 112 + qt*4
vL = [120, 121]
vSUM = [[122, 123], [124, 125]]
vBIG = 126
vSTAT = 44
vSEL = 48
vRINV = [54, 55]
vSTB = 56
def accreg(pos): return vr(48+4*pos, 4) if pos < 52 else ar(208+4*(pos-52), 4)
NE = 6
def PK(c): return 48+4*c if c < 20 else (48+4*(c-20) if c < 20+NE else 48+4*(20+c))
def Q(qb, qt, u): return qb + (qt*8+u)*4
def FR(f): return 64 + (f % 16)*4
def X(qt, u): return 128 + (u*2+qt)*4
def FA(b, m): return (64 if b == 0 else 0) + m*4
def FB(b, n): return (64 if b == 0 else 0) + 32 + n*4
WOL = 192
SLD = 128

sWS, sSA, sSB, sG, sDBG = 4, 8, 12, 16, 20
_n = [24]
def sal(n=1, al=1):
    _n[0] = (_n[0] + al - 1)//al*al
    r = _n[0]; _n[0] += n; return r
sWAVE, sHEAD, sJ, sQI, sWHICH = [sal() for _ in range(5)]
gA0, gA1, gB0, gB1, gMA, gMB, gIT, gD, gCNT, gFL = [sal() for _ in range(10)]
sTAU, sM0, sOFFA, sOFFB, sRDD, sRDS, sXOFF, sXOF2, sN, sND = gA0, gA1, gB0, gB1, gD, gCNT, sal(), sal(), sal(), sal()
sCNT, sEV, sCLAMP, sFIRST = sal(), sal(), sal(), sal()
sRET = sal(2, 2)
sMASK = sal(8, 4)
sTYPE, sU1, sU2, sW0 = sal(), sal(), sal(), sal()
sKVB, sKVI = sal(), sal()
sQST, sPT, sPSG, sPSS = sal(), sal(), sal(), sal()
sFKV, sFKVP, sFQ, sFSG, sFSS = [sal() for _ in range(5)]
sT = sal(8, 4)
sLN = sal(2, 2)
sFS = sal(2, 2); sW4K = 3
sPF = sRET; sPD = sT+5; sEXP = gFL
sSTAMP = sal(0, 2)
NSTAMP = (102 - sSTAMP)//2
print("sgpr used", sSTAMP, "stamps", NSTAMP, file=sys.stderr)
WS = sr(sWS, 4)

STUBS = []
def ld(): return OPT["sc1ld"]
def FT(): return "s_memtime" if OPT["cyc"] else "s_memrealtime"

XG = [1, 9, 17, 25, 33, 41, 49, 57]
XG4 = list(range(1, 64, 4))
def common_fill(st, dma=True, nd=None, last=False, novm=False, rdl=False):
    if nd is None: nd = 16 + len(OPT["early"]) + sum(1 for g in OPT["late"] if g < 38)
    for G in range(8):
        g0 = G*8
        Gn = (G+3) % 8
        for i in range(4):
            f = Gn*4+i
            if not (last and G > 4): st.put(g0+2*i, f"ds_read_b128 {ar(FR(f),4)}, v{vRD} offset:{f*1024}")
        if last and G >= 4:
            if G < 7: st.put(g0+6, f"s_waitcnt lgkmcnt({(7, 4, 0)[G-4]})")
        elif G == 4:
            st.put(g0+6, "s_waitcnt lgkmcnt(7)" if novm else f"s_waitcnt vmcnt(@dma:{nd}) lgkmcnt(7)")
            st.put(g0+7, "s_barrier")
            st.put(g0+7, f"v_add_u32 v{vRD}, s{sRDD}, v{vRD}")
        else:
            st.put(g0+6, "s_waitcnt lgkmcnt(7)")
    for i, g in enumerate(OPT["early"] if dma else []):
        st.put(g, f"buffer_load_dwordx4 v{vDMA}, {WS}, s{sOFFB} offen offset:{i*1024}{ld()} lds")
    if dma: st.put(31, f"v_readlane_b32 s{sOFFA}, v{vTO}, s{sTAU}")
    st.put(31, f"s_add_u32 m0, s{sM0}, 16384")
    st.put(34, f"s_add_u32 s{sM0}, s{sM0}, s{sRDD}")
    st.put(36, f"s_cmp_ge_u32 s{sM0}, 131072")
    st.put(38, f"s_cselect_b32 s{sRDD}, s{gMA}, s{gMB}")
    st.put(44, f"s_add_u32 s{sTAU}, s{sTAU}, 1")
    for i, g in enumerate(OPT["late"] if dma else []):
        st.put(g, f"buffer_load_dwordx4 v{vDMA}, {WS}, s{sOFFA} offen offset:{i*1024}{ld()} lds")
    if dma or rdl: st.put(55, f"v_readlane_b32 s{sOFFB}, v{vTE}, s{sTAU}")
    st.put(63, f"s_mov_b32 m0, s{sM0}")
    st.scc_busy |= {36, 37}
    if OPT["fine"]:
        st.put(4, f"{FT()} s[{sFS}:{sFS+1}]")
        st.put(6, f"v_mov_b32_dpp v{vKV}, v{vKV} wave_shr:1 row_mask:0xf bank_mask:0xf")
        st.put(62, f"v_writelane_b32 v{vKV}, s{sFS}, 0")

class Jobs:
    def __init__(self): self.jobs = []; self.at = {}
    def add(self, key, pre, ins, early, late): self.jobs.append((late, len(self.jobs), early, pre, ins, key))
    def place(self, st, s, cap=6, grid=None):
        slots = [g for g in (grid or XG) if not st.hasD(g) and st.free(g) == 2 and st.nS(g) == 0]
        n = 0
        avail = len([j for j in self.jobs if j[2] <= s*64+63])
        k = min(cap, avail, len(slots))
        use = [slots[(i*len(slots))//k] for i in range(k)] if k else []
        for g in slots:
            t = s*64+g
            c = sorted(j for j in self.jobs if j[2] <= t)
            if not c: continue
            j = c[0]
            nxt = [x for x in slots if x > g]
            urgent = j[0] < (s*64+nxt[0] if nxt else (s+1)*64+1)
            if not (urgent or (n < cap and (g in use or len(nxt) < k-n))): continue
            assert t <= j[0] + (24 if j[5][0] == "x" else 0) or j[5] in ("qs", "kvf", "qf") or (j[5] == "kv" and j[2] >= 64), ("job late", j, t)
            if j[3]:
                assert g-1 not in st.scc_busy
                st.put(g-1, j[3])
            st.put(g, j[4]); self.jobs.remove(j); self.at[j[5]] = t; n += 1

def mf_pv(half, pb, czero=False):
    return [f"{MF} {vr(O(dt,qt),4)}, {ar(FR(half*16+dt),4)}, {vr(P(pb,qt),4)}, {'0' if czero else vr(O(dt,qt),4)}"
            for dt in range(16) for qt in range(2)]
def mf_qk(half, sb, qb, czero=False):
    out = []
    for kt in range(2):
        seq = [(u, qt) for u in range(8) for qt in range(2)]
        if OPT["chq"]: seq = [(g*4+u, qt) for g in range(2) for qt in ((0, 1), (1, 0))[g] for u in range(4)]
        for u, qt in seq:
            c = ('0' if czero else vr(NEGM(qt),4)) if u == 0 else vr(S(sb,kt,qt),4)
            out.append(f"{MF} {vr(S(sb,kt,qt),4)}, {ar(FR(half*16+kt*8+u),4)}, {ar(Q(qb,qt,u),4)}, {c}")
    return out
def mf_proj(s, init=None):
    out = []
    for nt in range(16):
        seq = [(0, 0, 1), (1, 0, 0), (1, 1, 1), (0, 1, 0)] if OPT["chp"] else [(0, 0, 1), (0, 1, 1), (1, 0, 0), (1, 1, 0)]
        for uu, qt, first in seq:
            c = vr(O(nt,qt),4)
            if first and init == "zero": c = "0"
            if first and init == "bias": c = vr(O(nt,1),4)
            out.append(f"{MF} {vr(O(nt,qt),4)}, {ar(FR(2*nt+uu),4)}, {ar(X(qt,2*s+uu),4)}, {c}")
    return out
def PA(b, nt, qt): return 64 + (nt*2+qt)*4 if b == 0 else O(2*nt+1, qt)
def mf_post(s):
    out = []
    for f in range(32):
        u, nt = f >> 2, f & 3
        for qt in range(2):
            d = vr(PA(s & 1, nt, qt), 4)
            out.append(f"{MF} {d}, {ar(FR(f),4)}, {vr(O(2*u,qt),4)}, {'0' if u == 0 else d}")
    return out

def sm_ops(b):
    ops = []
    seq = [(kt, qt, rp) for kt in range(2) for qt in range(2) for rp in range(2)]
    pend = []
    for i, (kt, qt, rp) in enumerate(seq):
        t0 = vT + (i % 4)*2
        s0 = S(b,kt,qt) + rp*2
        ops.append(f"v_exp_f32 v{t0}, v{s0}")
        ops += pend[:1]
        ops.append(f"v_exp_f32 v{t0+1}, v{s0+1}")
        ops += pend[1:]
        acc = vSUM[qt][rp]
        if kt == 0: pend = [f"v_add_f32 v{acc}, v{t0}, v{t0+1}"]
        else: pend = [f"v_add_f32 v{acc}, v{acc}, v{t0}", f"v_add_f32 v{acc}, v{acc}, v{t0+1}"]
        pend.append(f"v_cvt_pk_bf16_f32 v{P(b,qt)+kt*2+rp}, v{t0}, v{t0+1}")
    ops.append("s_nop 0")
    ops += pend
    ops += [f"v_add_f32 v{vSUM[0][0]}, v{vSUM[0][0]}, v{vSUM[0][1]}", f"v_add_f32 v{vSUM[1][0]}, v{vSUM[1][0]}, v{vSUM[1][1]}"]
    return ops

def place_sm(st, b, g0, g_end, tag, ladd=True, first=False):
    st.put(g0-1, f"s_cmp_ge_u32 s{sN}, s{sND}")
    st.put(g0, f"s_cbranch_scc1 L_domask_{tag}")
    st.put(g0, f"L_nomask_{tag}:")
    STUBS.append((f"L_domask_{tag}", f"L_mask{b}", f"L_nomask_{tag}"))
    st.put(g0+2 if g0 == 0 else 42, f"s_add_u32 s{sN}, s{sN}, 1")
    st.scc_busy |= {g0-1}
    def add(ins, deps=(), early=0): return st.add(ins, deps, max(early, g0), g_end)
    la = [add(f"v_add_f32 v{vL[q]}, v{vL[q]}, v{vSUM[q][0]}") for q in range(2)] if ladd else []
    seq = [(kt, qt, rp) for kt in range(2) for qt in range(2) for rp in range(2)]
    users = {}; lastacc = {}; NT = 6
    for i, (kt, qt, rp) in enumerate(seq):
        t0 = vT + (i % NT)*2
        s0 = S(b,kt,qt) + rp*2
        war = users.get(i - NT, [])
        e = g0 + (1 if kt == 0 else 3)
        e0 = add(f"v_exp_f32 v{t0}, v{s0}", war, e)
        e1 = add(f"v_exp_f32 v{t0+1}, v{s0+1}", war, e)
        acc = vSUM[qt][rp]
        if kt == 0:
            a0 = add(f"v_add_f32 v{acc}, v{t0}, v{t0+1}", [e0, e1] + la)
            u = [a0]; lastacc[(qt,rp)] = a0
        else:
            a0 = add(f"v_add_f32 v{acc}, v{acc}, v{t0}", [e0, lastacc[(qt,rp)]])
            a1 = add(f"v_add_f32 v{acc}, v{acc}, v{t0+1}", [e1, a0])
            u = [a0, a1]; lastacc[(qt,rp)] = a1
        c = st.add(f"v_cvt_pk_bf16_f32 v{P(b,qt)+kt*2+rp}, v{t0}, v{t0+1}", [e0, e1], g0, g_end-1)
        users[i] = u + [c]
    f0 = add(f"v_add_f32 v{vSUM[0][0]}, v{vSUM[0][0]}, v{vSUM[0][1]}", [lastacc[(0,0)], lastacc[(0,1)]])
    f1 = add(f"v_add_f32 v{vSUM[1][0]}, v{vSUM[1][0]}, v{vSUM[1][1]}", [lastacc[(1,0)], lastacc[(1,1)]])
    hi = f2u(2.0**OPT["thr"])
    if not first:
        mx = add(f"v_max_f32 v{vT+14}, v{vSUM[0][0]}, v{vSUM[1][0]}", [f0, f1])
        add(f"v_cmp_nge_f32 vcc, {hi:#x}, v{vT+14}", [mx])
    else:
        lo = f2u(2.0**-OPT["thr"])
        m0 = add(f"v_subrev_u32 v{vT+14}, {lo:#x}, v{vSUM[0][0]}", [f0])
        m1 = add(f"v_subrev_u32 v{vT+15}, {lo:#x}, v{vSUM[1][0]}", [f1])
        mx = add(f"v_max_u32 v{vT+14}, v{vT+14}, v{vT+15}", [m0, m1])
        add(f"v_cmp_lt_u32 vcc, {hi-lo:#x}, v{vT+14}", [mx])

def xlane_ops(op, v, t1):
    return [(f"v_mov_b32 v{t1}, v{v}", 0), (f"v_permlane16_swap_b32 v{v}, v{t1}", 2), (f"{op} v{v}, v{v}, v{t1}", 1),
            (f"v_mov_b32 v{t1}, v{v}", 0), (f"v_permlane32_swap_b32 v{v}, v{t1}", 2), (f"{op} v{v}, v{v}, v{t1}", 1)]
def xlane(a, op, v, t1):
    for ins, d in xlane_ops(op, v, t1):
        if d: a(f"s_nop {d-1}")
        a(ins)

class Chain:
    def __init__(self, items, grid=None): self.items = list(items); self.lastg = -10; self.grid = grid; self.base = 0; self.lastD = -999; self.minD = 0
    def fill(self, st, g0=0, g1=63):
        g = g0; lastg = -10
        while self.items and g <= g1:
            ins, dist = self.items[0][:2]
            early = self.items[0][2] if len(self.items[0]) > 2 else 0
            c = cls(ins)
            ok = g - lastg >= dist and g >= early and not st.hasD(g)
            if ok and g == lastg and not (c in "VE" and cls(self.last) in "VM"): ok = False
            if ok:
                if c == "S": ok = (st.nS(g) == 0 or st.free(g) >= 1) and not (g in st.scc_busy and not ins.startswith(("s_mov", "s_mul", "s_wait", "s_nop")))
                elif c == "D": ok = st.free(g) == 2 and st.nS(g) == 0 and (self.grid is None or g in self.grid) and self.base + g - self.lastD >= self.minD
                else: ok = st.free(g) >= COST[c]
            if ok:
                st.put(g, ins); self.items.pop(0); lastg = g; self.last = ins
                if c == "D": self.lastD = self.base + g
            else:
                g += 1
    def flush(self, a):
        for it in self.items:
            if it[1]: a(f"s_nop {it[1]-1}")
            a(it[0])
        self.items = []

def gen(name="mega_kernel"):
    a = Asm()
    STUBS.clear()
    stamps = OPT["stamps"]
    nst = [0]
    def stamp_ins():
        i = nst[0]; nst[0] += 1
        assert i < NSTAMP
        return f"s_memrealtime s[{sSTAMP+2*i}:{sSTAMP+2*i+1}]"
    def streg(i): return sSTAMP+2*i if i < NSTAMP else sMASK+2*(i-NSTAMP)
    def stamp(i, p=False):
        if OPT["pst"] and 2 <= i <= 6 and not p: return
        if p and not OPT["pst"]: return
        if stamps: a(f"s_memrealtime s[{streg(i)}:{streg(i)+1}]")
    def merge(lbl, align=False):
        if align: a.raw(".p2align 6")
        a.label(lbl); a.comment("@merge")
    strideA, strideB = 2048, 8192
    a.raw(kernel_header(name))
    a("s_cmp_ge_u32 s2, 256")
    a("s_cbranch_scc0 L_go")
    a("s_endpgm")
    a.label("L_go")
    stamp(0)
    sW12, sX = sMASK, sMASK+4
    gHEAD, gMT, gWM, gWN = sCNT, sEV, sCLAMP, sFIRST
    a(f"""
    s_load_dwordx2 s[{sSA}:{sSA+1}], s[0:1], 8
    s_load_dwordx4 s[{sT}:{sT+3}], s[0:1], 24
    s_load_dwordx2 s[{sWS}:{sWS+1}], s[0:1], 104
    s_load_dwordx2 s[{sX}:{sX+1}], s[0:1], 0
    s_load_dwordx2 s[{sDBG}:{sDBG+1}], s[0:1], 96
    s_load_dwordx2 s[{sW12}:{sW12+1}], s[0:1], 56
    s_load_dwordx2 s[{sRET}:{sRET+1}], s[0:1], 72
    s_load_dwordx2 s[{sT+6}:{sT+7}], s[0:1], 16
    v_and_b32 v{vLANE}, 63, v0
    v_lshrrev_b32 v{GT}, 6, v0
    v_lshlrev_b32 v{vL16}, 4, v{vLANE}
    v_readfirstlane_b32 s{sWAVE}, v{GT}
    s_and_b32 s3, s2, 7
    s_lshl_b32 s3, s3, 1
    s_lshr_b32 s{sJ}, s2, 4
    s_bfe_u32 s{sWHICH}, s2, 0x10003
    s_add_u32 s{sHEAD}, s3, s{sWHICH}
    s_and_b32 s{gHEAD}, s{sJ}, 1
    s_add_u32 s{gHEAD}, s{gHEAD}, s3
    s_bfe_u32 s{gMT}, s2, 0x10005
    s_lshl_b32 s{gMT}, s{gMT}, 2
    s_lshr_b32 s{gWM}, s2, 6
    s_xor_b32 s{gWM}, s{gWM}, 2
    s_or_b32 s{gMT}, s{gMT}, s{gWM}
    """)
    if OPT["map2"]:
        a(f"""
        s_bfe_u32 s{gHEAD}, s2, 0x10005
        s_add_u32 s{gHEAD}, s{gHEAD}, s3
        s_lshl_b32 s{gMT}, s{sWHICH}, 2
        s_bfe_u32 s{gWM}, s2, 0x10004
        s_or_b32 s{gMT}, s{gMT}, s{gWM}
        s_bfe_u32 s{gWM}, s2, 0x10007
        s_xor_b32 s{gWM}, s{gWM}, 1
        s_lshl_b32 s{gWM}, s{gWM}, 1
        s_or_b32 s{gMT}, s{gMT}, s{gWM}
        s_bfe_u32 s{sWHICH}, s2, 0x10006
        """)
    a(f"""
    s_and_b32 s{gWM}, s{sWAVE}, 1
    s_lshr_b32 s{gWN}, s{sWAVE}, 1
    """)
    t2, t3, t4, t5, t6 = GT, GT+1, GT+2, GT+3, GT+4
    a(f"""
    v_lshrrev_b32 v{t2}, 3, v{vLANE}
    s_lshl_b32 s{gA0}, s{gMT}, 8
    s_lshl_b32 s{gA1}, s{sWAVE}, 6
    s_add_u32 s{gA0}, s{gA0}, s{gA1}
    v_add_u32 v{t2}, s{gA0}, v{t2}
    v_lshlrev_b32 v{t2}, 11, v{t2}
    v_and_b32 v{t3}, 7, v{vLANE}
    v_lshrrev_b32 v{t4}, 4, v{vLANE}
    v_xor_b32 v{t5}, v{t3}, v{t4}
    v_lshl_add_u32 v{t5}, v{t5}, 4, v{t2}
    v_xor_b32 v{t6}, 4, v{t4}
    v_xor_b32 v{t6}, v{t3}, v{t6}
    v_lshl_add_u32 v{t6}, v{t6}, 4, v{t2}
    """)
    for jl in range(4):
        a(f"v_add_u32 v{DA[jl]}, {4096 + jl*8*strideA - jl*1024}, v{t5 if (jl & 1) == 0 else t6}")
    a(f"""
    v_bfe_u32 v{t2}, v{vLANE}, 3, 2
    v_lshlrev_b32 v{t3}, 13, v{t2}
    v_lshrrev_b32 v{t4}, 5, v{vLANE}
    v_lshl_add_u32 v{t3}, v{t4}, 7, v{t3}
    v_lshrrev_b32 v{t4}, 1, v{t2}
    v_lshlrev_b32 v{t4}, 2, v{t4}
    v_and_b32 v{t5}, 7, v{vLANE}
    v_xor_b32 v{t4}, v{t4}, v{t5}
    s_lshl_b32 s{gA0}, s{gWM}, 1
    v_xor_b32 v{t4}, s{gA0}, v{t4}
    v_lshl_add_u32 v{t3}, v{t4}, 4, v{t3}
    s_lshl_b32 s{gA0}, s{gHEAD}, 9
    s_lshl_b32 s{gA1}, s{sWAVE}, 16
    s_add_u32 s{gA0}, s{gA0}, s{gA1}
    v_add_u32 v{t3}, s{gA0}, v{t3}
    """)
    for jl in range(4):
        a(f"v_add_u32 v{DB[jl]}, {4096 + (jl>>1)*4*strideB + (jl&1)*256 - jl*1024}, v{t3}")
    a(f"""
    s_mul_i32 s{gA1}, s3, {OPT["rot"]*64}
    s_mul_i32 s{gA0}, s{gMT}, {OPT["rotm"]*128}
    s_add_u32 s{gA1}, s{gA1}, s{gA0}
    s_and_b32 s{gA1}, s{gA1}, 0x7ff
    s_lshl_b32 s{gMA}, s{sWAVE}, 13
    s_lshl_b32 s{gMB}, s{sWAVE}, 12
    s_mov_b32 s{sSA+2}, {4194304+4096}
    s_mov_b32 s{sSA+3}, 0x20000
    s_mov_b32 s{sSB+2}, {8388608+4096}
    s_mov_b32 s{sSB+3}, 0x20000
    @PST2
    s_waitcnt lgkmcnt(0)
    @PST3
    s_sub_u32 s{sSA}, s{sSA}, 4096
    s_subb_u32 s{sSA+1}, s{sSA+1}, 0
    s_cmp_eq_u32 s{sWHICH}, 0
    s_cselect_b32 s{sSB}, s{sT}, s{sT+2}
    s_cselect_b32 s{sSB+1}, s{sT+1}, s{sT+3}
    s_sub_u32 s{sSB}, s{sSB}, 4096
    s_subb_u32 s{sSB+1}, s{sSB+1}, 0
    """)
    for i in (2, 3):
        k = [n for n, l in enumerate(a.lines) if f"@PST{i}" in l][0]
        a.lines[k] = f"s_memrealtime s[{streg(i)}:{streg(i)+1}]" if OPT["pst"] else ""
    MA, MB = 0x107ff, 0x7fffff
    gRA, gRB, gTS = gA1, gCNT, (gA0, sT)
    a(f"s_lshl_b32 s{gRB}, s{gRA}, 12")
    def dma_group(kind, par):
        t = gTS[par & 1]
        if kind[0] == "A":
            _, it, h = kind
            m0 = f"s_add_u32 m0, s{gMA}, {(131072, 0, 65536)[it % 3] + h*4096}"; regs, srd = DA, sSA
            so = f"s_add_u32 s{t}, s{gRA}, {h*32*strideA + it*128}\ns_and_b32 s{t}, s{t}, {MA}"
        elif kind[0] == "B":
            _, it, h = kind
            m0 = f"s_add_u32 m0, s{gMB}, {32768 + (it & 1)*65536 + h*16384}"; regs, srd = DB, sSB
            so = f"s_add_u32 s{t}, s{gRB}, {(it*64 + h*32)*strideB}\ns_and_b32 s{t}, s{t}, {MB}"
        else:
            y = kind[1]
            return f"s_add_u32 m0, s{gMB}, {y*16384}", f"s_add_u32 s{t}, s{sW0}, {y*16384}", \
                   [f"buffer_load_dwordx4 v{vDMA}, {WS}, s{t} offen offset:{i*1024}{ld()} lds ; @gU{y}" for i in range(4)]
        return m0, so, [f"buffer_load_dwordx4 v{regs[jl]}, {sr(srd,4)}, s{t} offen offset:{jl*1024}{OPT['nt' + kind[0]]} lds ; @g{kind[0]}{it}_{h}" for jl in range(4)]
    todo = []
    for it in range(16):
        todo += [(2*it-1, 2*(it-3)+1, ("A", it, 0)), (2*it-1, 2*(it-2), ("B", it, 0)), (2*it-1, 2*(it-3)+1, ("A", it, 1)), (2*it, 2*(it-2)+1, ("B", it, 1))]
    todo += [(31+y, av, ("U", y)) for y, av in enumerate((27, 27, 28, 29, 29, 29, 30, 31))]
    GS = {}; order = []
    for n in range(-1, 32):
        cap = OPT["npro"] if n < 0 else OPT["gcap"][min(n, len(OPT["gcap"])-1)]
        c = sorted([x for x in todo if x[1] <= n], key=lambda x: x[0])[:cap]
        for x in c: todo.remove(x); assert x[0] > n or n < 0, (x, n)
        GS[n] = [x[2] for x in c]; order += GS[n]
    assert not todo
    print("GS", {n: len(v) for n, v in GS.items()}, file=sys.stderr)
    def gtag(k): return f"gU{k[1]}" if k[0] == "U" else f"g{k[0]}{k[1]}_{k[2]}"
    def gwait(n):
        it, kk = (n+1) >> 1, (n+1) & 1
        need = [("U", 0), ("U", 1)] if n == 31 else [("B", it, 1)] if kk else [("A", it, 0), ("A", it, 1), ("B", it, 0)]
        return f"vmcnt(@since:{gtag(max(need, key=order.index))})"
    main = a; a = Asm()
    sWID, u_, nb_, o_, o2_ = sXOFF, sT+1, sT+2, sT+3, sT+4
    sD = [sQST, sPT, sPSG]; sXS = sPSS; sHI = sFSG; sSTR = sFSS
    vWO, vW12 = vRD, vDMA
    G = sr(sG, 4)
    r_, g_, r8 = GT, GT+1, GT+2
    h_, i_ = GT+5, GT+6
    a(f"""
    s_lshl_b32 s{sWID}, s2, 2
    s_add_u32 s{sWID}, s{sWID}, s{sWAVE}
    s_mov_b32 s{sX+2}, {2048*896}
    s_mov_b32 s{sX+3}, 0x20000
    v_and_b32 v{h_}, 1, v{vLANE}
    v_lshrrev_b32 v{i_}, 1, v{vLANE}
    v_mul_u32_u24 v{GT+7}, 896, v{h_}
    v_lshl_add_u32 v{GT+7}, v{i_}, 4, v{GT+7}
    v_cmp_gt_u32 s[{sLN}:{sLN+1}], 28, v{i_}
    v_mov_b32 v{GT+8}, {OOB}
    s_mul_i32 s{gB1}, s{sWID}, 1792
    v_cndmask_b32 v{GT+11}, v{GT+8}, v{GT+7}, s[{sLN}:{sLN+1}]
    s_getpc_b64 s[{sG}:{sG+1}]
    L_pc:
    s_sub_u32 s{sG}, s{sG}, L_pc - L_gemmV
    s_subb_u32 s{sG+1}, s{sG+1}, 0
    s_mov_b32 s{sG+2}, L_codeend - L_gemmV
    s_mov_b32 s{sG+3}, 0x20000
    s_lshr_b32 s{gB0}, s2, 3
    s_lshl_b32 s{gB0}, s{gB0}, 2
    s_add_u32 s{gB0}, s{gB0}, s{sWAVE}
    s_lshl_b32 s{gB0}, s{gB0}, 10
    s_mov_b32 s{sWS+2}, {WS_SIZE}
    s_mov_b32 s{sWS+3}, 0x20000
    v_and_b32 v{r_}, 15, v{vLANE}
    v_lshrrev_b32 v{g_}, 4, v{vLANE}
    v_lshlrev_b32 v{r8}, 3, v{r_}
    """)
    def natdest(dst, base):
        a(f"""
        s_lshr_b32 s{o_}, s{nb_}, 2
        s_mul_i32 s{o_}, s{o_}, {7*32768}
        s_lshr_b32 s{o2_}, s{u_}, 1
        s_lshl_b32 s{o2_}, s{o2_}, 15
        s_add_u32 s{o_}, s{o_}, s{o2_}
        s_and_b32 s{o2_}, s{nb_}, 3
        s_lshl_b32 s{o2_}, s{o2_}, 13
        s_add_u32 s{o_}, s{o_}, s{o2_}
        s_and_b32 s{o2_}, s{u_}, 1
        s_lshl_b32 s{o2_}, s{o2_}, 10
        s_add_u32 s{o_}, s{o_}, s{o2_}
        s_add_u32 s{dst}, s{o_}, {base}
        """)
    def div7(idx):
        a(f"""
        s_mul_i32 s{u_}, s{idx}, 9363
        s_lshr_b32 s{u_}, s{u_}, 16
        s_mul_i32 s{nb_}, s{u_}, 7
        s_sub_u32 s{nb_}, s{idx}, s{nb_}
        """)
    def ffdest(dst, base, lim, idx=sWID):
        a(f"""
        s_mul_i32 s{o_}, s{nb_}, {184*4096}
        s_lshl_b32 s{o2_}, s{u_}, 12
        s_add_u32 s{o_}, s{o_}, s{o2_}
        s_add_u32 s{dst}, s{o_}, {base}
        s_cmp_lt_u32 s{idx}, {lim}
        s_cselect_b32 s{dst}, s{dst}, {OOB}
        """)
    a(f"""
    s_mov_b32 s{sDBG+2}, 16
    s_mov_b32 s{sDBG+3}, 0x20000
    v_mul_u32_u24 v{vWO}, {4*896}, v{g_}
    v_add_u32 v{vWO}, v{vWO}, v{r8}
    s_lshl_b32 s{gD}, s{gMT}, 1
    s_add_u32 s{gD}, s{gD}, s{sWHICH}
    s_lshl_b32 s{gD}, s{gD}, 2
    s_add_u32 s{gD}, s{gD}, s{sWAVE}
    """)
    div7(gD)
    a(f"""
    s_lshl_b32 s{o_}, s{gHEAD}, 3
    s_add_u32 s{u_}, s{u_}, s{o_}
    s_mul_i32 s{o_}, s{u_}, {32*896}
    s_lshl_b32 s{o2_}, s{nb_}, 7
    s_add_u32 s{o_}, s{o_}, s{o2_}
    s_cmp_lt_u32 s{gD}, 56
    s_cselect_b32 s{o_}, s{o_}, {OOB}
    v_add_u32 v{vWO}, s{o_}, v{vWO}
    """)
    ffdest(sD[1], WS_WFF + 56*4096, 56, gD)
    a(f"""
    s_lshr_b32 s{u_}, s{sWID}, 2
    s_mul_i32 s{u_}, s{u_}, 9363
    s_lshr_b32 s{u_}, s{u_}, 16
    s_mul_i32 s{nb_}, s{u_}, 28
    s_sub_u32 s{nb_}, s{sWID}, s{nb_}
    s_mul_i32 s{sHI}, s{u_}, {32*3584}
    s_lshl_b32 s{o2_}, s{nb_}, 7
    s_add_u32 s{sHI}, s{sHI}, s{o2_}
    """)
    natdest(sSTR, WS_W1F)
    a(f"s_sub_u32 s{sT+5}, s{sWID}, 392")
    a(f"s_and_b32 s{sT+5}, s{sT+5}, 1023")
    div7(sT+5)
    ffdest(sD[2], WS_WFF, 784)
    a(f"""
    s_lshr_b32 s{o_}, s{u_}, 1
    s_mul_i32 s{o_}, s{o_}, {64*896}
    s_and_b32 s{o2_}, s{u_}, 1
    s_mul_i32 s{o2_}, s{o2_}, {2*896}
    s_add_u32 s{o_}, s{o_}, s{o2_}
    s_lshl_b32 s{o2_}, s{nb_}, 7
    s_add_u32 s{o_}, s{o_}, s{o2_}
    s_mov_b32 s{sW12+2}, {448*3584}
    s_mov_b32 s{sW12+3}, 0x20000
    s_cmp_lt_u32 s{sWID}, 392
    s_cselect_b32 s{sW12}, s{sW12}, s{sRET}
    s_cselect_b32 s{sW12+1}, s{sW12+1}, s{sRET+1}
    s_cselect_b32 s{o_}, s{sHI}, s{o_}
    s_cselect_b32 s{sD[2]}, s{sSTR}, s{sD[2]}
    s_cselect_b32 s{sHI}, 16, 1
    s_cselect_b32 s{sSTR}, 2, 1
    s_mul_i32 s{sHI}, s{sHI}, 896
    s_mul_i32 s{o2_}, s{sSTR}, {16*896}
    s_lshl_b32 s{sSTR}, s{sSTR}, 10
    v_mul_u32_u24 v{vW12}, s{o2_}, v{g_}
    v_add3_u32 v{vW12}, v{vW12}, v{r8}, s{o_}
    v_lshrrev_b32 v{GT+9}, 2, v{i_}
    v_lshlrev_b32 v{GT+9}, 10, v{GT+9}
    v_and_b32 v{GT+10}, 3, v{i_}
    v_lshl_add_u32 v{GT+9}, v{GT+10}, 8, v{GT+9}
    v_lshl_add_u32 v{GT+9}, v{h_}, 4, v{GT+9}
    v_cndmask_b32 v{vSX}, v{GT+8}, v{GT+9}, s[{sLN}:{sLN+1}]
    s_lshr_b32 s{o_}, s{sWID}, 3
    s_mul_i32 s{o_}, s{o_}, 14336
    s_and_b32 s{o2_}, s{sWID}, 7
    s_lshl_b32 s{o2_}, s{o2_}, 5
    s_add_u32 s{sXS}, s{o_}, s{o2_}
    s_lshl_b32 s{sFQ}, s{sWID}, 10
    s_add_u32 s{sFQ}, s{sFQ}, {WS_FLG}
    s_cmp_lt_u32 s{sWID}, 32
    s_cselect_b32 s{sFQ}, s{sFQ}, {OOB}
    v_cmp_eq_u32 vcc, 0, v{vLANE}
    v_mov_b32 v{vONE}, 1
    v_and_b32 v{vL4}, 3, v{vLANE}
    v_lshlrev_b32 v{vL4}, 2, v{vL4}
    v_cndmask_b32 v{vFLG}, v{GT+8}, v{vLANE}, vcc
    s_mov_b32 s{sRET}, s{sT+6}
    s_mov_b32 s{sRET+1}, s{sT+7}
    s_lshr_b32 s{u_}, s{gD}, 2
    s_lshl_b32 s{nb_}, s{gHEAD}, 2
    s_add_u32 s{nb_}, s{nb_}, s{sWAVE}
    s_lshl_b32 s{o_}, s{u_}, 18
    s_lshl_b32 s{o2_}, s{nb_}, 7
    s_add_u32 s{o_}, s{o_}, s{o2_}
    v_and_b32 v{vSW}, 3, v{vLANE}
    v_lshlrev_b32 v{vSW}, 5, v{vSW}
    v_bfe_u32 v{GT+9}, v{vLANE}, 2, 2
    v_lshl_add_u32 v{vSW}, v{GT+9}, 3, v{vSW}
    v_lshl_add_u32 v{vSW}, v{g_}, 16, v{vSW}
    v_add_u32 v{vSW}, s{o_}, v{vSW}
    v_mov_b32 v{vSF}, v{vL16}
    """)
    natdest(sD[0], WS_WQF)
    a(f"s_cmp_lt_u32 s{gD}, 56")
    a(f"s_cselect_b32 s{sD[0]}, s{sD[0]}, {OOB}")
    assert WS_XF == 0
    a(f"""
    v_bfe_u32 v{t4}, v{vLANE}, 1, 3
    s_lshl_b32 s{o_}, s{gWM}, 14
    s_add_u32 s{o_}, s{o_}, 131072
    v_lshlrev_b32 v{r_}, 7, v{r_}
    v_add_u32 v{r_}, s{o_}, v{r_}
    """)
    for kk in range(2):
        a(f"v_or_b32 v{t5}, {4*kk}, v{g_}")
        a(f"v_xor_b32 v{t5}, v{t5}, v{t4}")
        a(f"v_lshl_add_u32 v{RA[kk]}, v{t5}, 4, v{r_}")
    a(f"""
    v_lshlrev_b32 v{t2}, 12, v{g_}
    v_bfe_u32 v{t4}, v{vLANE}, 2, 2
    v_lshl_add_u32 v{t2}, v{t4}, 7, v{t2}
    v_and_b32 v{t5}, 3, v{vLANE}
    v_lshl_add_u32 v{t2}, v{t5}, 3, v{t2}
    s_lshl_b32 s{o_}, s{gWN}, 10
    s_add_u32 s{o_}, s{o_}, 32768
    v_add_u32 v{t2}, s{o_}, v{t2}
    v_lshrrev_b32 v{t4}, 1, v{t4}
    v_lshlrev_b32 v{t4}, 6, v{t4}
    v_and_b32 v{t5}, 1, v{g_}
    v_lshlrev_b32 v{t5}, 5, v{t5}
    v_or_b32 v{t4}, v{t4}, v{t5}
    """)
    for q in range(4):
        a(f"v_xor_b32 v{t5}, {(q>>1)*64 + (q&1)*32}, v{t4}")
        a(f"v_add_u32 v{RB[q]}, v{t5}, v{t2}")
    a(f"""
    s_mul_i32 s{sKVB}, s{gHEAD}, {HS}
    s_mul_i32 s{o_}, s{gMT}, {8*US}
    s_add_u32 s{sKVB}, s{sKVB}, s{o_}
    s_mul_i32 s{o_}, s{gWM}, {4*US}
    s_add_u32 s{sKVB}, s{sKVB}, s{o_}
    s_add_u32 s{o2_}, s{sWHICH}, 12
    s_lshl_b32 s{o_}, s{gWN}, s{o2_}
    s_add_u32 s{sKVB}, s{sKVB}, s{o_}
    s_mul_i32 s{o_}, s{sWHICH}, {WS_VF - WS_KF}
    s_add_u32 s{sKVB}, s{sKVB}, s{o_}
    s_add_u32 s{sKVB}, s{sKVB}, {WS_KF}
    s_lshr_b32 s{sKVI}, 8192, s{sWHICH}
    s_add_u32 s{sKVI}, s{sKVI}, s{sKVB}
    s_lshl_b32 s{sFKV}, s{gHEAD}, 8
    s_lshr_b32 s{o_}, s{gMT}, 2
    s_and_b32 s{o2_}, s{gMT}, 3
    s_lshl_b32 s{o2_}, s{o2_}, 1
    s_or_b32 s{o_}, s{o_}, s{o2_}
    s_cmp_ge_u32 s{o_}, 2
    s_cselect_b32 s{o2_}, 112, 0
    s_add_u32 s{sFKV}, s{sFKV}, s{o2_}
    s_lshl_b32 s{o_}, s{o_}, 3
    s_add_u32 s{sFKV}, s{sFKV}, s{o_}
    s_lshl_b32 s{o_}, s{sWHICH}, 2
    s_add_u32 s{sFKV}, s{sFKV}, s{o_}
    s_add_u32 s{sFKV}, s{sFKV}, {WS_FLG + FL_KV}
    s_lshl_b32 s{sFKVP}, s{sHEAD}, 8
    s_add_u32 s{sFKVP}, s{sFKVP}, {WS_FLG + FL_KV}
    s_cmp_eq_u32 s{sWAVE}, 0
    s_cselect_b32 s{sFKV}, s{sFKV}, {OOB}
    s_cselect_b32 s{sFKVP}, s{sFKVP}, {OOB}
    s_cselect_b32 s{gFL}, s2, {OOB}
    s_cselect_b32 s{gIT}, 0, {OOB}
    """)
    WQ, B1, ST1, N0, STA2, XR1, XR2 = sT+1, sT+2, sT+3, sN, sT+4, sND, sXOF2
    a(f"""
    s_or_b32 s{sQI}, s{sJ}, 8
    s_mul_i32 s{WQ}, s{sHEAD}, {7*32768}
    s_add_u32 s{WQ}, s{WQ}, {WS_WQF}
    s_mov_b32 s{sW0}, s{WQ}
    s_mov_b32 s{XR1}, s{sQI}
    s_mov_b32 s{ST1}, 32768
    s_cmp_eq_u32 s{sQI}, 15
    s_cselect_b32 s{N0}, {OPT['a15']}, 34
    @atomic
    s_cmp_ge_u32 s{sJ}, 8
    s_cbranch_scc1 L_typeA
    s_mov_b32 s{sTYPE}, 2
    s_sub_u32 s{B1}, s{WQ}, {5*32768}
    s_sub_u32 s{XR2}, 15, s{sQI}
    s_lshl_b32 s{sU1}, s{sQI}, 2
    s_sub_u32 s{sU2}, 64, s{sU1}
    s_add_u32 s{sU1}, s{sU1}, 4
    s_sub_u32 s{sU1}, s{sU1}, s{N0}
    s_add_u32 s{STA2}, s{sU1}, 14
    s_add_u32 s{sT+7}, s{STA2}, s{sU2}
    s_branch L_typedone
    """)
    a.label("L_typeA")
    a(f"""
    s_mov_b32 s{sU1}, s{N0}
    s_add_u32 s{sT+7}, s{N0}, 14
    s_mov_b32 s{sU2}, 2
    s_mov_b32 s{N0}, 0
    s_mov_b32 s{STA2}, 100
    s_mov_b32 s{XR2}, 0x4000
    s_mov_b32 s{sTYPE}, 1
    s_mov_b32 s{B1}, {OOB}
    s_cmp_eq_u32 s{sJ}, 15
    s_cbranch_scc1 L_typedone
    s_mov_b32 s{sTYPE}, 0
    s_mul_i32 s{XR1}, s{sHEAD}, 7
    s_add_u32 s{XR1}, s{XR1}, s{sJ}
    s_sub_u32 s{XR1}, s{XR1}, 8
    s_lshr_b32 s{sT}, s{XR1}, 4
    s_and_b32 s{XR1}, s{XR1}, 15
    s_mul_i32 s{sW0}, s{sT}, {7*32768}
    s_add_u32 s{sW0}, s{sW0}, {WS_W1F}
    s_lshl_b32 s{B1}, s{sT}, 15
    s_add_u32 s{B1}, s{B1}, {WS_WFF}
    s_mov_b32 s{ST1}, {184*4096}
    """)
    a.label("L_typedone")
    a("@end")
    tA, tB, tC, tD = GT, GT+1, GT+2, GT+3
    KB, VB = sT+5, sT+6
    a(f"""
    s_mul_i32 s{KB}, s{sHEAD}, {HS}
    s_add_u32 s{VB}, s{KB}, {WS_VF}
    s_add_u32 s{KB}, s{KB}, {WS_KF}
    v_mov_b32 v{vTE}, {OOB}
    """)
    def seg_lin(start, base, stride):
        a(f"v_subrev_u32 v{tA}, {start}, v{vLANE}")
        a(f"v_cmp_gt_u32 vcc, 7, v{tA}")
        a(f"v_mul_u32_u24 v{tB}, {stride}, v{tA}")
        a(f"v_add_u32 v{tB}, s{base}, v{tB}")
        a(f"v_cndmask_b32 v{vTE}, v{vTE}, v{tB}, vcc")
    seg_lin(0, sW0, 32768)
    seg_lin(7, B1, f"s{ST1}")
    a(f"s_lshl_b32 s{sT}, s{sHEAD}, 15")
    a(f"s_add_u32 s{sT}, s{sT}, {WS_WFF + 56*4096}")
    seg_lin(f"s{sT+7}", sT, 184*4096)
    a(f"v_add_u32 v{vTO}, 16384, v{vTE}")
    def seg_att(start, n0, U):
        for tab in (vTO, vTE):
            a(f"v_subrev_u32 v{tA}, {start}, v{vLANE}")
            if n0 is not None: a(f"v_add_u32 v{tB}, s{n0}, v{tA}")
            else: a(f"v_mov_b32 v{tB}, v{tA}")
            a(f"v_mul_u32_u24 v{tB}, {US}, v{tB}")
            if tab == vTO:
                a(f"s_sub_u32 s{sT}, s{U}, 1")
                a(f"v_cmp_eq_u32 vcc, s{sT}, v{tA}")
                a(f"v_add_u32 v{tC}, s{KB}, v{tB}")
                a(f"v_add_u32 v{tC}, {US}, v{tC}")
                a(f"v_add_u32 v{tD}, s{VB}, v{tB}")
            else:
                a(f"v_cmp_eq_u32 vcc, 0, v{tA}")
                a(f"v_add_u32 v{tC}, s{VB}, v{tB}")
                a(f"v_subrev_u32 v{tC}, {US}, v{tC}")
                a(f"v_add_u32 v{tD}, s{KB}, v{tB}")
            a(f"v_cndmask_b32 v{tC}, v{tC}, v{tD}, vcc")
            a(f"v_cmp_gt_u32 vcc, s{U}, v{tA}")
            a("s_nop 1")
            a(f"v_cndmask_b32 v{tab}, v{tab}, v{tC}, vcc")
    seg_att(14, N0, sU1)
    seg_att(f"s{STA2}", None, sU2)
    XO1, XO2 = sXOFF, sXOF2
    a(f"""
    s_lshl_b32 s{sT}, s{sWAVE}, 1
    s_lshl_b32 s{XO1}, s{XR1}, 3
    s_add_u32 s{XO1}, s{XO1}, s{sT}
    s_mul_i32 s{XO1}, s{XO1}, 14336
    s_lshl_b32 s{XO2}, s{XR2}, 3
    s_add_u32 s{XO2}, s{XO2}, s{sT}
    s_mul_i32 s{XO2}, s{XO2}, 14336
    s_lshl_b32 s{sW4K}, s{sWAVE}, 12
    s_mov_b32 s{sCLAMP}, 0x05040100
    s_mov_b32 s{sFIRST}, 0x07060302
    """)
    setup_l = [l.strip() for l in a.lines if l.strip()]
    a = main
    seq = []
    for k, kind in enumerate(GS[-1]):
        m0, so, ins = dma_group(kind, 0)
        seq += [[m0, so, ins[0]]] + [[x] for x in ins[1:]]
        if k == OPT["xpos"]:
            seq += [[f"buffer_load_dwordx4 {ar(SLD+48,4)}, v{GT+11}, {sr(sX,4)}, s{gB1} offen"], [f"buffer_load_dwordx4 {ar(SLD+52,4)}, v{GT+11}, {sr(sX,4)}, s{gB1} offen offset:448 ; @sx"]]
    if OPT["cpf"]: seq += [[f"buffer_load_dwordx4 a[200:203], v{vL16}, {G}, s{gB0} offen"], [f"s_add_u32 s{gB0}, s{gB0}, 131072", f"buffer_load_dwordx4 a[204:207], v{vL16}, {G}, s{gB0} offen"]]
    nowr = ("s_mov", "s_mul_i32", "s_nop", "s_cselect", "s_getpc", "s_cbranch", "s_branch")
    def scc_live(k):
        for l in setup_l[k:]:
            if l.startswith(("s_cselect", "s_cbranch_scc", "s_subb")): return True
            if l.startswith("s_") and not l.startswith(nowr): return False
        return False
    step = len(setup_l) / (len(seq) - 0.5)
    atomic = False; nxt = 0.0
    for k, l in enumerate(setup_l):
        if seq and k >= nxt and not atomic and not scc_live(k) and not l.endswith(":"):
            for x in seq.pop(0): a(x)
            nxt += step
        if l == "@atomic": atomic = True
        elif l == "@end": atomic = False
        else: a(l)
    for g in seq:
        for x in g: a(x)
    print("setup instrs", len(setup_l), "left", len(seq), file=sys.stderr)
    a(f"""
    s_mov_b32 s{sG}, s{sRET}
    s_mov_b32 s{sG+1}, s{sRET+1}
    s_mov_b32 s{sG+2}, {448*8192}
    """)
    if OPT["dbgside"] & 1:
        for r in sD: a(f"s_mov_b32 s{r}, {OOB}")
    if OPT["dbgside"] & 2: a(f"s_mov_b32 s{sXS}, {OOB}")
    if OPT["dbgside"] & 4:
        for r in (vWO, vW12, vSW): a(f"v_mov_b32 v{r}, {OOB}")
    def side_chain():
        c = []
        z = GT+8
        c += [(f"v_mov_b64 {vr(z,2)}, 0", 0), (f"v_mov_b64 {vr(z+2,2)}, 0", 0), (f"buffer_store_dwordx4 {vr(z,4)}, v{vL16}, {WS}, s{sFQ} offen sc1 ; @zst", 1)]
        c.append(("s_waitcnt vmcnt(@since:sx)", 1))
        U = GT; m_, v_, t_, t2_ = GT+16, GT+17, vG1, vPOLL
        for i in range(8):
            c.append((f"v_accvgpr_read_b32 v{t_}, a{SLD+48+i}", 2 if i == 0 else 0))
            c.append((f"v_lshlrev_b32 v{U+2*i}, 16, v{t_}", 0))
            c.append((f"v_and_b32 v{U+2*i+1}, 0xffff0000, v{t_}", 0))
        def red(v):
            r = [(f"v_add_f32_dpp v{v}, v{v}, v{v} row_ror:{sh} row_mask:0xf bank_mask:0xf", 2) for sh in (8, 4, 2)]
            return r + xlane_ops("v_add_f32", v, t2_)
        c.append((f"v_add_f32 v{m_}, v{U}, v{U+1}", 0)); c.append((f"v_add_f32 v{v_}, v{U+2}, v{U+3}", 0))
        for i in range(4, 16, 2):
            c.append((f"v_add_f32 v{m_}, v{m_}, v{U+i}", 0)); c.append((f"v_add_f32 v{v_}, v{v_}, v{U+i+1}", 0))
        c.append((f"v_add_f32 v{m_}, v{m_}, v{v_}", 0))
        c += red(m_)
        c.append((f"v_mul_f32 v{m_}, {f2u(1.0/448):#x}, v{m_}", 0))
        for i in range(16):
            c.append((f"v_sub_f32 v{t_}, v{U+i}, v{m_}", 0))
            c.append((f"v_mul_f32 v{v_}, v{t_}, v{t_}" if i == 0 else f"v_fma_f32 v{v_}, v{t_}, v{t_}, v{v_}", 0))
        c.append((f"v_cndmask_b32 v{v_}, 0, v{v_}, s[{sLN}:{sLN+1}]", 0))
        c += red(v_)
        for x in (f"v_mul_f32 v{v_}, {f2u(1.0/448):#x}, v{v_}", f"v_cvt_pk_bf16_f32 v{t_}, v{m_}, v{v_}", f"v_lshlrev_b32 v{m_}, 16, v{t_}",
                  f"v_and_b32 v{v_}, 0xffff0000, v{t_}", f"v_add_f32 v{v_}, {f2u(1e-5):#x}, v{v_}", f"v_cvt_pk_bf16_f32 v{v_}, v{v_}, v{v_}",
                  f"v_lshlrev_b32 v{v_}, 16, v{v_}", f"v_sqrt_f32 v{v_}, v{v_}"):
            c.append((x, 0))
        c.append((f"v_cvt_pk_bf16_f32 v{v_}, v{v_}, v{v_}", 1))
        c.append((f"v_lshlrev_b32 v{v_}, 16, v{v_}", 0))
        c.append((f"v_rcp_f32 v{v_}, v{v_}", 0))
        for i in range(16): c.append((f"v_sub_f32 v{U+i}, v{U+i}, v{m_}", 1 if i == 0 else 0))
        for i in range(8):
            for x in (f"v_cvt_pk_bf16_f32 v{t_}, v{U+2*i}, v{U+2*i+1}", f"v_lshlrev_b32 v{U+2*i}, 16, v{t_}", f"v_and_b32 v{U+2*i+1}, 0xffff0000, v{t_}",
                      f"v_mul_f32 v{U+2*i}, v{U+2*i}, v{v_}", f"v_mul_f32 v{U+2*i+1}, v{U+2*i+1}, v{v_}", f"v_cvt_pk_bf16_f32 v{U+i}, v{U+2*i}, v{U+2*i+1}"):
                c.append((x, 0))
        c.append((f"buffer_store_dwordx4 {vr(U,4)}, v{vSX}, {WS}, s{sXS} offen sc1", 1))
        c.append((f"v_add_u32 v{vSX}, {7*1024}, v{vSX}", 1))
        c.append((f"buffer_store_dwordx4 {vr(U+4,4)}, v{vSX}, {WS}, s{sXS} offen sc1", 1))
        def relay(rnd, land):
            c.append((f"s_waitcnt vmcnt(@since:sl{rnd})", 1, 0, rnd))
            for h in range(2):
                for e in range(8):
                    c.append((f"v_accvgpr_read_b32 v{GT+e}, a{land+2*e+h}", 2 if e == 0 else 0))
                for jj in range(2):
                    o = GT+8+4*jj
                    for p in range(4):
                        c.append((f"v_perm_b32 v{o+p}, v{GT+2*p+1}, v{GT+2*p}, s{(sCLAMP, sFIRST)[jj]}", 0))
                    if rnd == 1: c.append((f"buffer_store_dwordx4 {vr(o,4)}, v{vL16}, {WS}, s{sD[rnd]} offen offset:{(2*h+jj)*1024} sc1", 1))
                    else:
                        c.append((f"buffer_store_dwordx4 {vr(o,4)}, v{vSF}, {WS}, s{sD[rnd]} offen sc1", 1))
                        c.append((f"v_add_u32 v{vSF}, s{sSTR}, v{vSF}", 1))
        relay(2, SLD+32)
        c.append((f"s_waitcnt vmcnt(@since:sl0)", 1, 0, 0))
        c.append((f"s_mov_b32 s{sHI}, {f2u(QSCALE):#x}", 1))
        for h in range(2):
            for p in range(4):
                t = GT + (p & 1)*4
                c += [(x, 0) for x in (f"v_accvgpr_read_b32 v{t}, a{SLD+4*p+h}", f"v_accvgpr_read_b32 v{t+1}, a{SLD+4*p+2+h}",
                      f"v_lshlrev_b32 v{t+2}, 16, v{t}", f"v_lshlrev_b32 v{t+3}, 16, v{t+1}", f"v_and_b32 v{t}, 0xffff0000, v{t}", f"v_and_b32 v{t+1}, 0xffff0000, v{t+1}")]
                c += [(f"v_mul_f32 v{t+i}, s{sHI}, v{t+i}", 0) for i in range(4)]
                c += [(f"v_cvt_pk_bf16_f32 v{GT+8+p}, v{t+2}, v{t+3}", 0), (f"v_cvt_pk_bf16_f32 v{GT+12+p}, v{t}, v{t+1}", 0)]
            if h == 1: c.append((f"s_add_u32 s{sD[0]}, s{sD[0]}, 4096", 1))
            for jj in range(2):
                c.append((f"buffer_store_dwordx4 {vr(GT+8+4*jj,4)}, v{vL16}, {WS}, s{sD[0]} offen offset:{jj*2048} sc1 ; @sst", 1))
        relay(1, WOL)
        c += [(x, 0) for x in (f"v_add_u32 v{vDMA}, s{sW4K}, v{vL16}", f"v_mov_b32 v{vRD}, v{vL16}",  f"v_lshrrev_b32 v{GT}, 4, v{vLANE}",
              f"v_lshlrev_b32 v{GT}, 2, v{GT}", f"v_and_b32 v{GT+1}, 15, v{vLANE}", f"v_sub_u32 v{GT}, v{GT+1}, v{GT}")]
        c += [(f"v_cmp_gt_i32 s[{sMASK+2*r}:{sMASK+2*r+1}], {r}, v{GT}", 0) for r in range(4)]
        c = [((x[0].replace(" sc1", OPT["sidesc"]),) + tuple(x[1:]) if x[0].startswith("buffer_store") else x) for x in c]
        if OPT["wbl2"]: c.append(("s_waitcnt vmcnt(4)", 30)); c.append(("buffer_wbl2 sc1", 1))
        return Chain(c, XG4)
    def reads(kk, buf):
        ra = [f"ds_read_b128 {ar(FA(buf,m),4)}, v{RA[kk]} offset:{m*2048}" for m in range(8)]
        rb = [f"ds_read_b64_tr_b16 {ar(FB(buf,n)+2*sec,2)}, v{RB[n&3]} offset:{kk*16384+sec*2048+(n>>2)*512}" for n in range(8) for sec in range(2)]
        out = []
        for i in range(8): out += [ra[i], rb[2*i], rb[2*i+1]]
        return out
    stamp(6, True)
    a(f"s_waitcnt {gwait(-1)}")
    a("s_barrier")
    for r in reads(0, 0): a(r)
    stamp(1)
    a(f"s_cmp_eq_u32 s{sWHICH}, 0")
    a("s_cbranch_scc0 L_gemmV")
    pre_lines = len(a.lines)
    sJT = sT+2
    def xjob(J, key, i, base, early, late, rot=0):
        u, qt = i >> 1, i & 1
        J.add(key, f"s_add_u32 s{sJT}, s{base}, {qt*14336+((u+rot)%14)*1024}", f"buffer_load_dwordx4 {ar(X(qt,u),4)}, v{vL16}, {WS}, s{sJT} offen{ld()} ; @{key}", early, late - (3 - (i & 3))*8)
    def kvjob(J, c, early, late):
        blk = c >> 2
        J.add("kv", f"s_add_u32 s{sJT}, s{sKVI if blk & 1 else sKVB}, {(blk>>1)*US+(c&3)*1024}",
              f"buffer_store_dwordx4 {vr(PK(c),4)}, v{vL16}, {WS}, s{sJT} offen{OPT['kvsc']} ; @kv", early, late)
    pw, t6, t7 = sEV, sCNT, sND
    setup = f"""
    s_lshl_b32 s{pw}, s{sHEAD}, 3
    s_and_b32 s{t6}, s{sJ}, 7
    s_add_u32 s{pw}, s{pw}, s{t6}
    s_lshl_b32 s{pw}, s{pw}, 2
    s_add_u32 s{pw}, s{pw}, s{sWAVE}
    s_mul_i32 s{sQST}, s{pw}, {Q_W}
    s_add_u32 s{sQST}, s{sQST}, {WS_QF}
    s_mul_i32 s{sPT}, s{pw}, {PT_W}
    s_add_u32 s{sPT}, s{sPT}, {WS_PT}
    s_lshl_b32 s{sFQ}, s{pw}, 5
    s_add_u32 s{sFQ}, s{sFQ}, {WS_FLG + FL_Q}
    s_mul_i32 s{t7}, s{sWAVE}, {28*1024}
    s_add_u32 s{t7}, s{t7}, {WS_PS}
    s_mul_i32 s{pw}, s{sHEAD}, 7
    s_add_u32 s{pw}, s{pw}, s{t6}
    s_lshr_b32 s{t6}, s{pw}, 4
    s_and_b32 s{sFSG}, s{pw}, 15
    s_lshl_b32 s{sT+3}, s{t6}, 9
    s_mul_i32 s{sPSG}, s{sFSG}, {PS_R}
    s_add_u32 s{sPSG}, s{sPSG}, s{t7}
    s_mul_i32 s{pw}, s{t6}, {PS_SRC}
    s_add_u32 s{sPSG}, s{sPSG}, s{pw}
    s_add_u32 s{sPSG}, s{sPSG}, {16*PS_SRC}
    s_lshl_b32 s{sFSG}, s{sFSG}, 9
    s_lshl_b32 s{pw}, s{t6}, 2
    s_add_u32 s{sFSG}, s{sFSG}, s{pw}
    s_lshl_b32 s{pw}, s{sWAVE}, 7
    s_add_u32 s{pw}, s{pw}, {WS_FLG + FL_S}
    s_add_u32 s{sFSG}, s{sFSG}, s{pw}
    s_add_u32 s{sFSG}, s{sFSG}, 64
    s_lshr_b32 s{t6}, s{sJ}, 3
    s_mul_i32 s{t6}, s{t6}, 7
    s_xor_b32 s{t6}, s{t6}, 7
    s_xor_b32 s{t6}, s{t6}, s{sJ}
    s_mul_i32 s{sPSS}, s{t6}, {PS_R}
    s_add_u32 s{sPSS}, s{sPSS}, s{t7}
    s_mul_i32 s{t7}, s{sHEAD}, {PS_SRC}
    s_add_u32 s{sPSS}, s{sPSS}, s{t7}
    s_lshl_b32 s{sFSS}, s{t6}, 9
    s_add_u32 s{sFSS}, s{sFSS}, s{pw}
    s_lshl_b32 s{t7}, s{sHEAD}, 2
    s_add_u32 s{sFSS}, s{sFSS}, s{t7}
    s_lshl_b32 s{sND}, s{sQI}, 2
    s_add_u32 s{sND}, s{sND}, s{sWAVE}
    s_lshr_b32 s{sCNT}, s{sU1}, 1
    s_sub_u32 s{sCNT}, s{sCNT}, 1
    s_lshr_b32 s{sEV}, s{sJ}, 3
    """.strip().split("\n")
    setup = [(x.strip(), 1) for x in setup]
    setup.append((f"s_cmp_eq_u32 s{sTYPE}, 1\ns_cselect_b32 s{sQST}, {OOB}, s{sQST}", 1))
    setup.append((f"s_cmp_eq_u32 s{sTYPE}, 0\ns_cselect_b32 s{sFSG}, s{sFSG}, {OOB}", 1))
    setup.append((f"s_cmp_eq_u32 s{sWAVE}, 0\ns_cselect_b32 s{sFQ}, s{sFQ}, {OOB}\ns_cselect_b32 s{sEXP}, 1, 0", 1))
    setup2 = [(x, 1) for x in (f"s_mov_b32 s{sTAU}, 4", f"s_add_u32 s{sM0}, s{sW4K}, {8*16384}", f"s_add_u32 s{sOFFB}, s{sW0}, {8*16384}",
              f"s_mov_b32 s{sRDD}, {-131072}", f"s_mov_b32 s{gMA}, {-131072}", f"s_mov_b32 s{gMB}, 32768", f"s_mov_b32 m0, s{sM0}")]
    for typ in ("K", "V"):
        if typ == "V":
            a.label("L_gemmV")
            for l in a.lines[:pre_lines]:
                if l.strip().startswith("buffer_") or "@merge" in l: a.raw("@ghost " + l.strip())
        def pos(m, n): return m*8+n if typ == "K" else (m >> 1)*16 + n*2 + (m & 1)
        def substep(it, kk):
            groups = GS[2*it+kk]
            buf = kk
            mf = []
            for m in range(8):
                for n in range(8):
                    acc = accreg(pos(m, n))
                    c = "0" if (it == 0 and kk == 0) else acc
                    x, y = ar(FB(buf,n),4), ar(FA(buf,m),4)
                    if typ == "V": x, y = y, x
                    mf.append(f"{MF} {acc}, {x}, {y}, {c}")
            st = Stage(mf)
            st.put(-1, f"s_waitcnt {gwait(2*it+kk)} lgkmcnt(0)")
            st.put(-1, "s_barrier")
            last = (it == 15 and kk == 1)
            g, dg = 1, (OPT["dg2"] if len(groups) == 2 else 4)
            for k, kind in enumerate(groups):
                m0, so, ins = dma_group(kind, k)
                st.put(g-1, m0)
                st.put(g-2, so)
                for i in ins:
                    st.put(g, i); g += dg
            rd = reads(kk ^ 1, buf ^ 1) if not last else [f"ds_read_b128 {ar(FR(f),4)}, v{vRD} offset:{f*1024}" for f in range(12)]
            for i, r in enumerate(rd): st.put(i*2, r)
            if kk == 0 and it < 15:
                d = -131072 if it % 3 == 0 else 65536
                for i, x in enumerate([f"v_add_u32 v{RA[0]}, {d}, v{RA[0]}", f"v_add_u32 v{RA[1]}, {d}, v{RA[1]}"] + [f"v_xor_b32 v{r}, 0x10000, v{r}" for r in RB]):
                    st.put(48 + 2*(i >> 1), x)
            if OPT["fine"]:
                st.put(2, f"{FT()} s[{sFS}:{sFS+1}]")
                st.put(4, f"v_mov_b32_dpp v0, v0 wave_shr:1 row_mask:0xf bank_mask:0xf")
                st.put(46, f"v_writelane_b32 v0, s{sFS}, 0")
            return st
        ch = side_chain()
        J = Jobs()
        for e in range(8):
            t = [x + e*OPT["slstep"] for x in OPT["slt"]]
            J.add("sl1", f"s_mov_b32 s{sJT}, {(e>>2)*16*896}", f"buffer_load_dwordx2 {ar(WOL+2*e,2)}, v{vWO}, {sr(sX,4)}, s{sJT} offen offset:{(e&3)*896}{OPT['ntS']} ; @sl1", t[2], t[2]+64)
            J.add("sl2", f"s_add_u32 s{sJT}, s{sHI}, {(e&3)*3584}" if e >> 2 else f"s_mov_b32 s{sJT}, {e*3584}",
                  f"buffer_load_dwordx2 {ar(SLD+32+2*e,2)}, v{vW12}, {sr(sW12,4)}, s{sJT} offen{OPT['ntS']} ; @sl2", t[0], t[0]+64)
            J.add("sl0", f"s_mov_b32 s{sJT}, {e*8192}", f"buffer_load_dwordx2 {ar(SLD+2*e,2)}, v{vSW}, {G}, s{sJT} offen{OPT['ntS']} ; @sl0", t[1], t[1]+64)
        NZ, NZP, NZC, NF, NP, NC = OPT["sync"]
        for i in range(20): xjob(J, "x1", i, XO1, (NC+1)*64 + i*OPT["xstep"], 31*64)
        for b in range(8):
            J.add("bias", None, f"buffer_load_dwordx4 {vr(BIAS+4*b,4)}, v{GT+16}, {G}, s{sT+3} offen offset:{(b>>1)*128+(b&1)*16} ; @bias", 31*64 if b in (2, 3) else 29*64, 31*64+24)
        su = Chain(setup)
        PV = GT+8
        for n in range(31):
            it, kk = n >> 1, n & 1
            st = substep(it, kk)
            if n == 0:
                st.put(62, f"s_load_dwordx2 s[{sX}:{sX+1}], s[0:1], 40")
                st.put(63, f"s_mov_b32 s{sX+2}, {4096*896}")
            if n == NZ-1: st.put(63, "s_waitcnt vmcnt(@since:zst)")
            if n == NZ: st.put(61, f"buffer_store_byte v{vONE}, v{vFLG}, {sr(sDBG,4)}, s{gFL} offen sc1")
            if n == NZP: st.put(61, f"buffer_load_dword v{vPOLL}, v{vL4}, {sr(sDBG,4)}, s{gIT} offen sc1 ; @zp")
            if n == NZC:
                st.put(54, "s_waitcnt vmcnt(@since:zp)")
                st.put(55, f"s_cmp_eq_u32 s{sWAVE}, 0\ns_cselect_b32 s{sT+1}, 0x01010101, 0")
                st.put(56, f"v_cmp_ne_u32 vcc, s{sT+1}, v{vPOLL}")
                st.put(60, f"s_cbranch_vccnz L_zwait{typ}")
                st.put(60, f"L_zok{typ}:")
            if n == NF-1:
                assert not any("@sst" in x[0] for x in ch.items) and NZC < NF
                st.put(63, "s_waitcnt vmcnt(@since:sst)")
                st.put(62, f"s_load_dwordx2 s[{sG}:{sG+1}], s[0:1], 64")
                st.put(59, f"s_mov_b32 s{sG+2}, 3584")
            if n == NF:
                st.put(55, f"s_add_u32 s{gIT}, s{gIT}, {WS_FLG+FL_PREP}")
                st.put(58, f"s_lshl2_add_u32 s{sT+1}, s2, s{gIT}")
                st.put(59+2*kk, f"buffer_store_dword v{vONE}, v{vFLG}, {WS}, s{sT+1} offen sc1")
            if n == NP:
                assert not ch.items
                st.put(61, f"buffer_load_dwordx4 {vr(PV,4)}, v{vL16}, {WS}, s{gIT} offen sc1 ; @prep")
            if n == NC:
                st.put(50, "s_waitcnt vmcnt(@since:prep)")
                st.put(51, f"s_cmp_eq_u32 s{sWAVE}, 0\ns_cselect_b32 s{sT+1}, 1, 0")
                st.put(54, f"v_and_b32 v{PV}, v{PV}, v{PV+1}")
                st.put(54, f"v_and_b32 v{PV+2}, v{PV+2}, v{PV+3}")
                st.put(55, f"v_and_b32 v{PV}, v{PV}, v{PV+2}")
                st.put(55, f"v_cmp_ne_u32 vcc, s{sT+1}, v{PV}")
                st.put(60, f"s_cbranch_vccnz L_prepwait{typ}")
                st.put(60, f"L_prepok{typ}:")
                st.put(56, f"v_lshrrev_b32 v{GT+16}, 4, v{vLANE}")
                st.put(56, f"v_lshlrev_b32 v{GT+16}, 5, v{GT+16}")
            J.place(st, n, 10, XG4)
            if n >= 1 and ch.items:
                full = ch.items
                for k, x in enumerate(full):
                    if len(x) > 3:
                        key = f"sl{x[3]}"
                        if any(j[5] == key for j in J.jobs) or J.at[key] + OPT["sld"] > n*64+63:
                            ch.items = full[:k]; break
                        full[k] = (x[0], x[1], max(0, J.at[key] + OPT["sld"] - n*64), x[3])
                rest = full[len(ch.items):] if ch.items is not full else []
                ch.base = n*64; ch.minD = OPT["smin"]
                ch.fill(st)
                ch.items = ch.items + rest
                if typ == "K": print("substep", n, "chain left", len(ch.items), file=sys.stderr)
            elif n > NC: su.fill(st)
            if n == 28: assert not su.items
            st.emit(a)
        st = substep(15, 1)
        J.place(st, 31, 2, [17, 21]); assert not J.jobs
        SG = [25, 33, 41, 49, 57, 61]
        for c in range(NE): kvjob(J, c, SG[c], SG[c])
        J.place(st, 0, 8, SG); assert not J.jobs
        su = Chain(setup2); su.fill(st, 30); assert not su.items
        slot_of = {pos(m, n): m*8+n for m in range(8) for n in range(8)}
        pk = []
        for c in range(32):
            e = max(slot_of[2*c], slot_of[2*c+1]) + 3
            if 20 <= c < 20+NE: e = max(e, SG[c-20]+2)
            src = []
            for h in range(2):
                p = 2*c+h
                if p < 52: src += [48+4*p+i for i in range(4)]
                else:
                    for i in range(4):
                        pk.append((f"v_accvgpr_read_b32 v{128+(p-52)*4+i}, a{208+4*(p-52)+i}", 0, e)); src.append(128+(p-52)*4+i)
            for i in range(4): pk.append((f"v_cvt_pk_bf16_f32 v{PK(c)+i}, v{src[2*i]}, v{src[2*i+1]}", 0, e))
        pk = Chain(pk); pk.fill(st)
        for c in range(NE):
            w = [g for g, v in st.fill.items() if any(x.startswith(f"v_cvt_pk_bf16_f32 v{PK(c)+3},") for x in v)]
            assert min(w) < SG[c], (c, w)
        st.emit(a)
        a("s_nop 3")
        print("pack tail", len(pk.items), file=sys.stderr)
        pk.flush(a)
        a("s_waitcnt vmcnt(@since:bias) lgkmcnt(8)")
        a(f"s_cmp_eq_u32 s{sTYPE}, 0")
        a("s_cbranch_scc0 L_P1B")
        a("s_branch L_P1A")
    def unpack(nt):
        o = []
        for r in range(4):
            x = 4*r + (nt & 3); src = BIAS + (nt >> 2)*8 + (x >> 1)
            o.append(f"v_and_b32 v{O(nt,1)+r}, 0xffff0000, v{src}" if x & 1 else f"v_lshlrev_b32 v{O(nt,1)+r}, 16, v{src}")
        return o
    def p1_jobs(t0, step, slack=8):
        J = Jobs()
        for c in range(20+NE, 32): kvjob(J, c, 0, XG[c-20-NE])
        for k, c in enumerate(range(NE, 20+NE)): kvjob(J, c, t0+k*step, t0+slack+k*step)
        for i in range(20, 28): xjob(J, f"x1{i>>2}", i, XO1, (i >> 2)*64 - 134, (i >> 2)*64 - 70)
        return J
    def xwait(st, key): st.put(62, f"s_waitcnt vmcnt(@since:{key})")
    def flagjob(J, key, after, soff, delay):
        if key in J.at or any(j[5] in (after, key) for j in J.jobs): return
        t = J.at[after] + delay
        J.add(key, f"s_waitcnt vmcnt(@since:{after})\ns_barrier", f"buffer_store_dword v{vONE}, v{vFLG}, {WS}, s{soff} offen sc1", t, t+8)
    def split_chain(items, st_prev, mk_next, late_of):
        ch = Chain(items); ch.fill(st_prev)
        rest = ch.items
        for k in range(len(rest)+1):
            st = mk_next()
            c2 = Chain([(x[0], x[1]) for x in rest[k:]])
            before = {gg: len(v) for gg, v in st.fill.items()}
            c2.fill(st)
            if c2.items: continue
            where = {}
            for gg, v in st.fill.items():
                for ins in v[before.get(gg, 0):]: where[ins] = gg
            if all(where[x[0]] <= late_of(x[3]) for x in rest[k:]):
                return rest[:k], st
        raise AssertionError
    def emit_mid(mid):
        if mid: a("s_nop 3")
        Chain(mid).flush(a)
        if mid: a("s_nop 1")
    def post_groups(s, scale):
        out = []
        for qt in range(2):
            for p in range(2):
                t = vT + 16 + (qt*2+p)*4
                regs = [PA(s & 1, nt, qt) + 2*p + rr for rr in range(2) for nt in range(4)]
                ops = [f"v_mul_f32 v{r}, v{vRINV[qt]}, v{r}" for r in regs] if scale else []
                ops += [f"v_cvt_pk_bf16_f32 v{t+i}, v{regs[2*i]}, v{regs[2*i+1]}" for i in range(4)]
                out.append((ops, t))
        return out
    def post_store(s, k, t, base):
        return f"s_add_u32 s{sJT}, s{base}, {s*4096+k*1024}", f"buffer_store_dwordx4 {vr(t,4)}, v{vL16}, {WS}, s{sJT} offen sc1 ; @ps"
    def post_place(st, s, scale, base, gaps):
        for k, (ops, t) in enumerate(post_groups(s, scale)):
            pre, ins = post_store(s, k, t, base)
            st.put(gaps[k]-1, pre); st.put(gaps[k], ins)
    def post_sched(st, s, scale, gaps):
        for k, (ops, t) in enumerate(post_groups(s, scale)):
            prev = None
            for x in ops: prev = st.add(x, [prev], 2, gaps[k]-1)
        st.schedule()
    def post_flush(s, scale, base):
        a("s_nop 5")
        for k, (ops, t) in enumerate(post_groups(s, scale)):
            for x in ops: a(x)
            for x in post_store(s, k, t, base): a(x)
    def mk_post(s):
        st = Stage(mf_post(s)); common_fill(st); return st
    def poll_issue(st, g, voff, soff, tag):
        st.put(g, f"buffer_load_dword v{vPOLL}, v{voff}, {WS}, s{soff} offen sc1 ; @{tag}")
    POLLS = []
    def poll_check(st, g, voff, soff, tag, lane0):
        st.put(g, f"s_waitcnt vmcnt(@since:{tag})")
        st.put(g, f"v_cmp_{'eq' if lane0 else 'ne'}_u32 s[{sT+4}:{sT+5}], s{sEXP}, v{vPOLL}")
        st.put(g+2, f"s_cmp_{'eq' if lane0 else 'lg'}_u64 s[{sT+4}:{sT+5}], 0\ns_cbranch_scc1 L_pw_{tag}")
        assert not ({g+1, g+2} & st.scc_busy)
        st.put(g+2, f"L_po_{tag}:")
        st.put(g+2, "s_barrier")
        POLLS.append((tag, voff, soff, lane0))
    def kv2addr(st):
        st.put(2, f"v_min_u32 v{vL4}, 11, v{vLANE}"); st.put(4, f"v_lshlrev_b32 v{vL4}, 2, v{vL4}"); st.put(8, f"v_add_u32 v{vL4}, 128, v{vL4}")
    XG2 = sorted(XG + [3, 11, 19, 27, 43, 51, 59])
    XG3 = sorted(XG + [5, 13, 21, 29, 45, 53, 61])
    merge("L_P1A")
    stamp(2)
    for x in unpack(0): a(x)
    a("s_nop 1")
    J = p1_jobs(64, OPT["kvstep"])
    for s in range(6):
        st = Stage(mf_proj(s, "bias" if s == 0 else None)); common_fill(st)
        flagjob(J, "kvf", "kv", sFKV, OPT["fdelay"])
        J.place(st, s, OPT["cap"])
        if s == 0:
            for nt in range(1, 16):
                e = XG[2*(nt-13)+1]+2 if nt >= 13 else 0
                for x in unpack(nt): st.add(x, [], e, 4*nt-3)
            st.schedule()
        if s >= 4: xwait(st, f"x1{s+1}")
        st.emit(a)
    st = Stage(mf_proj(6)); common_fill(st)
    flagjob(J, "kvf", "kv", sFKV, OPT["fdelay"]); J.place(st, 6, OPT["cap"])
    items = []
    for ud in range(8):
        for qt in range(2):
            regs = [O(2*ud,qt)+i for i in range(4)] + [O(2*ud+1,qt)+i for i in range(4)]
            e = 8*ud+7+3
            for r in regs: items.append((f"v_mul_f32 v{r}, |v{r}|, v{r}", 0, e, ud))
            for i in range(4): items.append((f"v_cvt_pk_bf16_f32 v{regs[i]}, v{regs[2*i]}, v{regs[2*i+1]}", 0, e, ud))
            for i in range(4): items.append((f"v_pk_max_i16 v{regs[i]}, v{regs[i]}, 0", 0, e, ud))
    import copy
    def mk0():
        st = mk_post(0); J2 = copy.deepcopy(J); J2.place(st, 7, OPT["cap"]); assert not J2.jobs; return st
    mid, st0 = split_chain(items, st, mk0, lambda ud: 8*ud-3)
    print("H mid", len(mid), "kv last", J.at["kv"], file=sys.stderr)
    st.emit(a); emit_mid(mid)
    stamp(3)
    J = Jobs()
    for i in range(16):
        J.add("ql", f"s_add_u32 s{sJT}, s{sQST}, {i*1024}", f"buffer_load_dwordx4 {ar(4*i,4)}, v{vL16}, {WS}, s{sJT} offen sc1 ; @ql", 4*64+46, 6*64+36-(15-i)*4)
    for s in range(7):
        st = st0 if s == 0 else mk_post(s)
        if s == 2: poll_issue(st, 3, vL4, sFKVP, "kva"); poll_check(st, 58, vL4, sFKVP, "kva", False)
        if s == 3: poll_issue(st, 51, vFLG, sFQ, "qa"); kv2addr(st)
        if s == 4: poll_check(st, 42, vFLG, sFQ, "qa", True)
        gaps = [9, 25, 41, 57] if s < 6 else [41, 49, 57, 59]
        if s >= 1: post_place(st, s-1, False, sPSG, gaps)
        J.place(st, s, 7, XG2)
        if s >= 1: post_sched(st, s-1, False, gaps)
        st.emit(a)
    assert not J.jobs
    def mk_F(qb, tag, pre=None):
        st = Stage(mf_qk(0, 0, qb, True) + mf_qk(1, 1, qb, True)); common_fill(st)
        if pre: pre(st)
        place_sm(st, 0, 35, 62, tag, ladd=False, first=True)
        st.schedule()
        return st
    def finit():
        return [(f"v_mov_b64 {vr(NEGM(0)+2*i,2)}, 0", 0) for i in range(4)] + [(f"v_mov_b64 {vr(vL[0],2)}, 0", 0),
                (f"v_mov_b32 v{vBIG}, {f2u(-1e30):#x}", 0), (f"s_mov_b32 s{sFIRST}, 1", 1), (f"s_mov_b32 s{sCLAMP}, {f2u(-3e38):#x}", 1)]
    def f_end(tag, nxt, endl):
        a(f"s_cbranch_vccnz L_fchk_{tag}")
        a.label(f"L_fok_{tag}")
        STUBS.append((f"L_fchk_{tag}", "L_fchk", f"L_fok_{tag}"))
        a(f"s_mov_b32 s{sFIRST}, 0")
        a(f"s_mov_b32 s{sCLAMP}, 0")
        a(f"s_cmp_eq_u32 s{sCNT}, 0")
        a(f"s_cbranch_scc1 {endl}")
        if nxt: a(f"s_branch {nxt}")
    a("s_nop 5")
    for ops, t in post_groups(6, False):
        for x in ops: a(x)
    a("s_waitcnt vmcnt(@since:ql)")
    stamp(4)
    def pre_fa1(st):
        post_place(st, 6, False, sPSG, [9, 17, 25, 33])
        poll_issue(st, 1, vL4, sFKVP, "kv2a"); poll_check(st, 58, vL4, sFKVP, "kv2a", False)
    st = mk_F(0, "fa1", pre_fa1)
    c = Chain(finit()); c.fill(st, 0, 30); assert not c.items
    st.emit(a)
    f_end("fa1", "L_s1z0", "L_u2")
    merge("L_P1B")
    stamp(2)
    J = p1_jobs(OPT["kvb0"], OPT["kvstepb"], 200)
    for i in range(28):
        p = i >> 2
        xjob(J, f"x2{p}", i, XO2, max(p+1, 3)*64, (7+p)*64 - 134, 4)
    for i in range(16):
        qt, ud = i & 1, i >> 1
        J.add("qs", f"s_add_u32 s{sJT}, s{sQST}, {(qt*8+ud)*1024}", f"buffer_store_dwordx4 {ar(Q(0,qt,ud),4)}, v{vL16}, {WS}, s{sJT} offen{OPT['kvsc']} ; @qs",
              7*64 if ud < 5 else 8*64, 7*64+20+i*OPT["qstep"])
    def bstage(gs):
        s = gs % 7
        st = Stage(mf_proj(s, "zero" if gs % 7 == 0 else None))
        nod = 3 <= gs <= 7
        common_fill(st, dma=not nod, nd={3: 16, 4: 8, 5: 0}.get(gs), novm=(6 <= gs <= 10), rdl=(gs == 7))
        if gs == 9: poll_issue(st, 3, vL4, sFKVP, "kvb"); poll_check(st, 58, vL4, sFKVP, "kvb", False)
        if gs == 10: kv2addr(st)
        flagjob(J, "kvf", "kv", sFKV, OPT["fdelay"]); flagjob(J, "qf", "qs", sFQ, 72)
        if nod: J.place(st, gs, OPT["capn"], XG3)
        elif gs == 8: J.place(st, gs, OPT["capq"], XG2)
        else: J.place(st, gs, OPT["capb"])
        if gs in (4, 5): xwait(st, f"x1{gs+1}")
        if 6 <= gs < 13: xwait(st, f"x2{gs-6}")
        return st
    for gs in range(6): bstage(gs).emit(a)
    def q_items(qb):
        items = []; cnt = 0
        for ud in range(8):
            blk = ud >> 1
            for qt in range(2):
                e = 16*blk+15+3
                t = vT + 16 + (cnt % 4)*4; cnt += 1
                for i in range(4):
                    jp = 2*(ud & 1) + (i >> 1); tl = 4*blk + 2*(i & 1)
                    items.append((f"v_cvt_pk_bf16_f32 v{t+i}, v{O(tl,qt)+jp}, v{O(tl+1,qt)+jp}", 0, e, 2*blk))
                for i in range(4): items.append((f"v_accvgpr_write_b32 a{Q(qb,qt,ud)+i}, v{t+i}", 0, e, 99 if ud >= 5 else -1))
        return items
    st = bstage(6); st7 = bstage(7)
    mid, st0 = split_chain(q_items(0), st, lambda: copy.deepcopy(st7), lambda ud: 8*ud-1)
    print("E1 mid", len(mid), file=sys.stderr)
    st.emit(a); emit_mid(mid)
    stamp(3)
    st0.emit(a)
    for gs in range(8, 13): bstage(gs).emit(a)
    st = bstage(13)
    assert not J.jobs
    print("B jobs", {k: (v >> 6, v & 63) for k, v in J.at.items()}, file=sys.stderr)
    def mk_fa2():
        STUBS[:] = [x for x in STUBS if "fa2" not in x[0]]
        POLLS[:] = [x for x in POLLS if x[0] != "kv2b"]
        def pre(st): poll_issue(st, 1, vL4, sFKVP, "kv2b"); poll_check(st, 58, vL4, sFKVP, "kv2b", False)
        st = mk_F(0, "fa2", pre); c = Chain(finit()); c.fill(st, 0, 30); return st
    mid, st0 = split_chain(q_items(128), st, mk_fa2, lambda ud: 60)
    print("E2 mid", len(mid), file=sys.stderr)
    st.emit(a); emit_mid(mid)
    stamp(4)
    st0.emit(a)
    f_end("fa2", None, "L_u2")
    def steady(b, qb, tag, czero=False):
        st = Stage(mf_pv(0, b^1, czero) + mf_qk(1, b^1, qb)); common_fill(st)
        if b == 0:
            st.put(56, f"s_sub_u32 s{sCNT}, s{sCNT}, 1")
            st.put(58, f"s_cmp_lg_u32 s{sCNT}, s{sEV}")
            st.scc_busy |= set(range(58, 64))
        if tag == "z0":
            st.put(56, "s_waitcnt vmcnt(11)")
            st.put(57, f"buffer_store_dword v{vONE}, v{vFLG}, {WS}, s{sFSG} offen sc1")
        place_sm(st, b, 0, 62, tag); st.schedule()
        st.emit(a)
        a(f"s_cbranch_vccnz L_dorare_{tag}")
        a.label(f"L_norare_{tag}")
        STUBS.append((f"L_dorare_{tag}", f"L_rare{b}", f"L_norare_{tag}"))
    def loop(qb, n):
        merge(f"L_s1z{n}")
        steady(1, qb, f"z{n}", True)
        a(f"s_branch L_mid{n}")
        merge(f"L_steady{n}", True)
        steady(1, qb, f"s1{n}")
        merge(f"L_mid{n}")
        steady(0, qb, f"s0{n}")
        a(f"s_cbranch_scc1 L_steady{n}")
    loop(0, 0)
    a(f"s_cmp_eq_u32 s{sCNT}, 0")
    a("s_cbranch_scc1 L_end0")
    a(f"""
    s_add_u32 s{sFQ}, s{sFQ}, {FL_P - FL_Q}
    s_nop 0
    buffer_load_dword v{vPOLL}, v{vFLG}, {WS}, s{sFQ} offen sc1
    s_mov_b32 s{sEV}, 0
    s_branch L_steady0
    """)
    a.label("L_u2")
    for i in range(64): a(f"v_mov_b64 {vr(O0+2*i,2)}, 0")
    merge("L_end0")
    a(f"s_cmp_eq_u32 s{sTYPE}, 2")
    a("s_cbranch_scc1 L_lpack")
    a(f"""
    s_waitcnt vmcnt(16)
    v_cmp_ne_u32 vcc, s{sEXP}, v{vPOLL}
    s_add_u32 s{sT+3}, s{sPT}, 16384
    s_nop 0
    s_bitcmp1_b32 vcc_lo, 0
    s_cbranch_scc1 L_pw_pt
    """)
    a.label("L_po_pt")
    a("s_barrier")
    POLLS.append(("pt", vFLG, sFQ, True))
    a(f"buffer_load_dwordx4 {vr(vSTB,4)}, v{vL16}, {WS}, s{sT+3} offen sc1")
    for i in range(16):
        if i % 4 == 0: a(f"s_add_u32 s{sT+3}, s{sPT}, {i*1024}")
        a(f"buffer_load_dwordx4 {ar(128+4*i,4)}, v{vL16}, {WS}, s{sT+3} offen offset:{(i&3)*1024} sc1 ; @ptl")
    def pack_items(e0, step):
        items = []
        for ud in range(8):
            for qt in range(2):
                regs = [O(2*ud,qt)+i for i in range(4)] + [O(2*ud+1,qt)+i for i in range(4)]
                for i in range(4): items.append((f"v_cvt_pk_bf16_f32 v{regs[i]}, v{regs[2*i]}, v{regs[2*i+1]}", 0, e0+step*ud, ud))
        return items
    def mk_L(tag):
        st = Stage(mf_pv(0, 0) + mf_pv(1, 1)); common_fill(st)
        place_sm(st, 1, 0, 30, tag); st.schedule()
        st.put_post(31, f"s_cbranch_vccnz L_dorare_{tag}")
        st.put_post(31, f"L_norare_{tag}:")
        STUBS.append((f"L_dorare_{tag}", "L_rare1", f"L_norare_{tag}"))
        st.put(32, f"v_add_f32 v{vL[0]}, v{vL[0]}, v{vSUM[0][0]}")
        st.put(34, f"v_add_f32 v{vL[1]}, v{vL[1]}, v{vSUM[1][0]}")
        return st
    st = mk_L("ln")
    c = [(f"v_bfe_u32 v{vT+20}, v{vLANE}, 2, 2", 0), (f"v_lshrrev_b32 v{vT+21}, 4, v{vLANE}", 0), (f"v_cmp_eq_u32 s[{sT+4}:{sT+5}], v{vT+20}, v{vT+21}", 0),
         (f"v_and_b32 v{vT+20}, 3, v{vLANE}", 0), (f"v_lshlrev_b32 v{vT+20}, 4, v{vT+20}", 0), (f"v_mov_b32 v{vT+22}, 0x3f80", 0), (f"v_mov_b32 v{vT+23}, 0", 0),
         (f"v_cndmask_b32 v{vT+22}, 0, v{vT+22}, s[{sT+4}:{sT+5}]", 1), (f"v_lshlrev_b64 {vr(vSEL+2,2)}, v{vT+20}, {vr(vT+22,2)}", 0),
         (f"v_mov_b64 {vr(vSEL,2)}, 0", 0), (f"v_mov_b64 {vr(vSEL+4,2)}, 0", 0),
         ("s_waitcnt vmcnt(@since:ptl)", 1, 55),
         (f"v_cmp_neq_f32 vcc, v{NEGM(0)}, v{vSTB}", 1), (f"v_cmp_neq_f32 s[{sT+4}:{sT+5}], v{NEGM(1)}, v{vSTB+1}", 0)]
    c = Chain(c); c.fill(st, 35); assert not c.items
    st.emit(a)
    a(f"s_or_b64 vcc, vcc, s[{sT+4}:{sT+5}]")
    a("s_cbranch_scc1 L_slowcomb")
    a.label("L_comb")
    stamp(5)
    mf = []
    for ud in range(8):
        for h in range(2):
            for qt in range(2):
                d = vr(O(2*ud+h,qt),4)
                mf.append(f"{MF} {d}, {vr(vSEL+2-2*h,4)}, {ar(128+(ud*2+qt)*4,4)}, {d}")
    st = Stage(mf)
    st.put(0, f"v_add_f32 v{vL[0]}, v{vL[0]}, v{vSTB+2}")
    st.put(0, f"v_add_f32 v{vL[1]}, v{vL[1]}, v{vSTB+3}")
    c = Chain(pack_items(6, 4)); c.fill(st, 0, 31)
    st.emit(a)
    a("s_nop 5")
    c.flush(a)
    a("s_branch L_post2")
    merge("L_lpack")
    st = mk_L("lp")
    c = Chain([(f"v_mov_b32 v{vSTAT}, v{NEGM(0)}", 0), (f"v_mov_b32 v{vSTAT+1}, v{NEGM(1)}", 0), (f"v_mov_b64 {vr(vSTAT+2,2)}, {vr(vL[0],2)}", 0)] + pack_items(38, 4))
    c.fill(st, 35)
    st.put(62, f"s_cmp_eq_u32 s{sTYPE}, 2")
    st.emit(a)
    a("s_nop 5")
    print("Lpack tail", len(c.items), file=sys.stderr)
    c.flush(a)
    a("s_cbranch_scc0 L_post2b")
    stamp(5)
    a(f"""
    s_mov_b32 s{sTYPE}, 3
    s_mov_b32 s{sN}, 0
    s_sub_u32 s{sND}, 15, s{sQI}
    s_lshl_b32 s{sND}, s{sND}, 2
    s_add_u32 s{sND}, s{sND}, s{sWAVE}
    s_lshr_b32 s{sCNT}, s{sU2}, 1
    s_sub_u32 s{sCNT}, s{sCNT}, 1
    s_sub_u32 s{sEV}, s{sCNT}, 1
    s_add_u32 s{sFQ}, s{sFQ}, {FL_P - FL_Q}
    s_add_u32 s{sT+3}, s{sPT}, 16384
    buffer_store_dwordx4 {vr(vSTAT,4)}, v{vL16}, {WS}, s{sT+3} offen sc1
    """)
    st = mk_F(128, "fb")
    c = []
    for i in range(16):
        if i % 4 == 0: c.append((f"s_add_u32 s{sT+3}, s{sPT}, {i*1024}", 1))
        c.append((f"buffer_store_dwordx4 {vr(O(2*(i>>1),i&1),4)}, v{vL16}, {WS}, s{sT+3} offen offset:{(i&3)*1024}{OPT['kvsc']}", 1))
    c = Chain(c); c.fill(st)
    c2 = Chain(finit()); c2.fill(st, 0, 30); assert not c2.items
    print("Fb leftover", len(c.items), file=sys.stderr)
    st.emit(a)
    c.flush(a)
    f_end("fb", None, "L_end")
    loop(128, 1)
    a(f"""
    s_cmp_eq_u32 s{sTYPE}, 3
    s_cbranch_scc0 L_lpack
    s_waitcnt vmcnt(16)
    s_barrier
    buffer_store_dword v{vONE}, v{vFLG}, {WS}, s{sFQ} offen sc1
    s_mov_b32 s{sTYPE}, 4
    s_mov_b32 s{sEV}, 0
    s_cmp_eq_u32 s{sCNT}, 0
    s_cbranch_scc1 L_lpack
    s_branch L_steady1
    """)
    a.label("L_post2b")
    merge("L_post2")
    stamp(6)
    a("s_nop 1")
    C0, CO, FP = sU1, sU2, sW0
    XO = [sCNT, sEV]; BO = [sN, sND]
    vXO, vBO, vC1, vFG, vFS = 44, 45, 46, 47, 48
    fs = f"""
    s_load_dwordx2 s[{sSA}:{sSA+1}], s[0:1], 0
    s_load_dwordx2 s[{sG}:{sG+1}], s[0:1], 80
    s_load_dwordx2 s[{sSB}:{sSB+1}], s[0:1], 88
    s_mov_b32 s{sSA+2}, {2048*896}
    s_mov_b32 s{sSB+2}, {2048*896}
    s_mov_b32 s{sG+2}, 896
    s_and_b32 s{C0}, s2, 3
    s_mul_i32 s{C0}, s{C0}, 7
    s_lshl_b32 s{sT}, s{sWAVE}, 1
    s_add_u32 s{C0}, s{C0}, s{sT}
    s_lshr_b32 s{sT}, s2, 4
    s_mul_i32 s{CO}, s{sT}, {PS_R}
    s_bfe_u32 s{sT+4}, s2, 0x20002
    s_mul_i32 s{sT+5}, s{sT+4}, {28*1024}
    s_add_u32 s{CO}, s{CO}, s{sT+5}
    s_lshl_b32 s{sT+5}, s{C0}, 10
    s_add_u32 s{CO}, s{CO}, s{sT+5}
    s_add_u32 s{CO}, s{CO}, {WS_PS}
    s_lshr_b32 s{FP}, s2, 2
    s_lshl_b32 s{FP}, s{FP}, 7
    s_add_u32 s{FP}, s{FP}, {WS_FLG + FL_S}
    v_min_u32 v{vFG}, 6, v{vLANE}
    v_lshl_add_u32 v{vFG}, v{vFG}, 2, 64
    v_and_b32 v{vXO}, 15, v{vLANE}
    v_lshlrev_b32 v{vFS}, 2, v{vXO}
    s_lshr_b32 s{sT+5}, s2, 2
    s_lshl_b32 s{sT+5}, s{sT+5}, 5
    v_add_u32 v{vXO}, s{sT+5}, v{vXO}
    v_mul_u32_u24 v{vXO}, 896, v{vXO}
    v_and_b32 v{vBO}, 48, v{vLANE}
    v_lshlrev_b32 v{vBO}, 1, v{vBO}
    v_add_u32 v{vXO}, v{vXO}, v{vBO}
    """
    for k in range(2):
        fs += f"""
        s_add_u32 s{sT}, s{C0}, {k}
        s_lshr_b32 s{sT+4}, s{sT}, 2
        s_lshl_b32 s{BO[k]}, s{sT+4}, 7
        s_and_b32 s{sT+4}, s{sT}, 1
        s_lshl_b32 s{sT+4}, s{sT+4}, 4
        s_add_u32 s{BO[k]}, s{BO[k]}, s{sT+4}
        s_bfe_u32 s{sT+4}, s{sT}, 0x10001
        s_mul_i32 s{XO[k]}, s{sT+4}, {16*896}
        s_add_u32 s{XO[k]}, s{XO[k]}, s{BO[k]}
        """
    fs = [(x.strip(), 1) for x in fs.split("\n") if x.strip()]
    fs.append((f"s_cmp_eq_u32 s{sWAVE}, 3\ns_cselect_b32 s{XO[1]}, {OOB}, s{XO[1]}\ns_cselect_b32 s{sT+4}, {OOB}, 0", 1))
    fs.append((f"v_add_u32 v{vC1}, s{sT+4}, v{vL16}", 1))
    fs.append((f"s_cmp_eq_u32 s{sWAVE}, 0\ns_cselect_b32 s{FP}, s{FP}, {OOB}", 1))
    fs = Chain(fs)
    J = Jobs()
    GL = 128
    for k in range(2):
        J.add("gl", None, f"buffer_load_dwordx4 {ar(GL+56+4*k,4)}, v{vXO}, {sr(sSA,4)}, s{XO[k]} offen", 3*64, 7*64)
        J.add("gl", None, f"buffer_load_dwordx4 {ar(GL+64+4*k,4)}, v{vBO}, {G}, s{BO[k]} offen", 3*64, 7*64)
    for n in range(7):
        for k in range(2):
            J.add("gl", f"s_add_u32 s{sJT}, s{CO}, {(16+n)*PS_SRC}", f"buffer_load_dwordx4 {ar(GL+n*8+4*k,4)}, v{(vL16, vC1)[k]}, {WS}, s{sJT} offen offset:{k*1024} sc1 ; @gl", 4*64, 7*64)
    for s in range(7):
        st = Stage(mf_post(s)); common_fill(st, dma=(s < 3), nd=(None, None, None, 16, 8, 0, 0)[s], last=(s == 6))
        if s == 0:
            c = xlane_ops("v_add_f32", vL[0], vT) + xlane_ops("v_add_f32", vL[1], vT) + [(f"v_rcp_f32 v{vRINV[0]}, v{vL[0]}", 0), (f"v_rcp_f32 v{vRINV[1]}, v{vL[1]}", 1)]
            c = Chain(c); c.fill(st); assert not c.items
            fs.fill(st)
        else:
            gaps = [17, 33, 49, 57]
            post_place(st, s-1, True, sPSS, gaps)
            if s == 2: st.put(60, "s_waitcnt lgkmcnt(0)")
            if s == 2: poll_issue(st, 41, vFG, FP, "gf")
            if s == 3: poll_check(st, 58, vFG, FP, "gf", False)
            J.place(st, s, 7, [1, 9, 13, 25, 29, 41, 45, 61])
            post_sched(st, s-1, True, gaps)
            fs.fill(st)
            if s == 1: assert not fs.items
        st.emit(a)
    assert not J.jobs
    post_flush(6, True, sPSS)
    stamp(7)
    a(f"s_mov_b32 s{sT+4}, 0x00003f80")
    a(f"s_mov_b32 s{sT+5}, 0x3f800000")
    a(f"s_mov_b32 s{sT+6}, 0xffff0000")
    a(f"s_mov_b32 s{sT+7}, {f2u(-1.4426950408889634):#x}")
    LB = 128; TB = 64
    XB, BB = TB+56, 52
    GA, SA_ = 12, 28
    a("s_waitcnt vmcnt(@since:gl)")
    for i in range(64): a(f"v_accvgpr_read_b32 v{TB+i}, a{GL+i}")
    for i in range(8): a(f"v_accvgpr_read_b32 v{BB+i}, a{GL+64+i}")
    def accum(base, acc, first):
        for i in range(8):
            r = base+i
            if first:
                a(f"v_lshlrev_b32 v{acc+2*i}, 16, v{r}"); a(f"v_and_b32 v{acc+2*i+1}, s{sT+6}, v{r}")
            else:
                a(f"v_dot2_f32_bf16 v{acc+2*i}, v{r}, s{sT+4}, v{acc+2*i}"); a(f"v_dot2_f32_bf16 v{acc+2*i+1}, v{r}, s{sT+5}, v{acc+2*i+1}")
    def rnd_pair(r0, r1, t):
        a(f"v_cvt_pk_bf16_f32 v{t}, v{r0}, v{r1}")
        a(f"v_lshlrev_b32 v{r0}, 16, v{t}")
        a(f"v_and_b32 v{r1}, s{sT+6}, v{t}")
    for n in range(7): accum(TB+n*8, GA, n == 0)
    a("s_waitcnt vmcnt(0)")
    a(f"buffer_store_dword v{vONE}, v{vFLG}, {WS}, s{sFSS} offen sc1")
    a("s_nop 0")
    T1, T2, T3 = 2, 3, 4
    for i in range(8):
        g0, g1 = GA+2*i, GA+2*i+1
        rnd_pair(g0, g1, T1)
        a(f"v_lshlrev_b32 v{T2}, 16, v{BB+i}")
        a(f"v_and_b32 v{T3}, s{sT+6}, v{BB+i}")
        a(f"v_add_f32 v{g0}, v{g0}, v{T2}")
        a(f"v_add_f32 v{g1}, v{g1}, v{T3}")
        rnd_pair(g0, g1, T1)
        a(f"v_mul_f32 v{T2}, s{sT+7}, v{g0}")
        a(f"v_mul_f32 v{T3}, s{sT+7}, v{g1}")
        a(f"v_exp_f32 v{T2}, v{T2}")
        a(f"v_exp_f32 v{T3}, v{T3}")
        a("s_nop 0")
        a(f"v_add_f32 v{T2}, 1.0, v{T2}")
        a(f"v_add_f32 v{T3}, 1.0, v{T3}")
        a(f"v_rcp_f32 v{T2}, v{T2}")
        a(f"v_rcp_f32 v{T3}, v{T3}")
        a("s_nop 0")
        a(f"v_mul_f32 v{g0}, v{g0}, v{T2}")
        a(f"v_mul_f32 v{g1}, v{g1}, v{T3}")
        rnd_pair(g0, g1, T1)
    a(f"s_mov_b32 s{sT+1}, 0")
    a(f"s_cmp_lg_u32 s{sWAVE}, 0")
    a("s_cbranch_scc1 L_fgo")
    a.label("L_fpoll")
    a(f"""
    buffer_load_dword v{vPOLL}, v{vFS}, {WS}, s{FP} offen sc1
    s_add_u32 s{sT+1}, s{sT+1}, 1
    s_waitcnt vmcnt(0)
    v_cmp_ne_u32 vcc, 1, v{vPOLL}
    s_cmp_lt_u32 s{sT+1}, 0x10000
    s_cbranch_vccz L_fgo
    s_sleep {OPT['fsleep']}
    s_cbranch_scc1 L_fpoll
    """)
    a.label("L_fgo")
    a("s_barrier")
    stamp(8)
    for n in range(16):
        a(f"s_add_u32 s{sT}, s{CO}, {n*PS_SRC}")
        a(f"buffer_load_dwordx4 {vr(LB+n*8,4)}, v{vL16}, {WS}, s{sT} offen sc1")
        a(f"buffer_load_dwordx4 {vr(LB+n*8+4,4)}, v{vC1}, {WS}, s{sT} offen offset:1024 sc1")
    for n in range(16):
        a(f"s_waitcnt vmcnt({2*(15-n)})")
        accum(LB+n*8, SA_, n == 0)
    a("s_nop 2")
    for i in range(8):
        g0, g1, s0, s1 = GA+2*i, GA+2*i+1, SA_+2*i, SA_+2*i+1
        rnd_pair(s0, s1, T1)
        a(f"v_mul_f32 v{g0}, v{g0}, v{s0}")
        a(f"v_mul_f32 v{g1}, v{g1}, v{s1}")
        rnd_pair(g0, g1, T1)
        a(f"v_lshlrev_b32 v{T2}, 16, v{XB+i}")
        a(f"v_and_b32 v{T3}, s{sT+6}, v{XB+i}")
        a(f"v_add_f32 v{g0}, v{g0}, v{T2}")
        a(f"v_add_f32 v{g1}, v{g1}, v{T3}")
        a(f"v_cvt_pk_bf16_f32 v{LB+i}, v{g0}, v{g1}")
        if i % 4 == 3: a(f"buffer_store_dwordx4 {vr(LB+i-3,4)}, v{vXO}, {sr(sSB,4)}, s{XO[i>>2]} offen")
    if stamps:
        a("s_waitcnt vmcnt(0)")
        stamp(9)
        a("s_waitcnt lgkmcnt(0)")
        for i in range(12): a(f"v_mov_b32 v{16+i}, s{streg(min(i,9))}")
        a(f"""
        s_lshl_b32 s{sT+1}, s2, 2
        s_add_u32 s{sT+1}, s{sT+1}, s{sWAVE}
        s_lshl_b32 s{sT+1}, s{sT+1}, 6
        s_add_u32 s{sT+1}, s{sT+1}, {WS_STAMP}
        buffer_store_dwordx4 v[16:19], v{vFLG}, {WS}, s{sT+1} offen
        buffer_store_dwordx4 v[20:23], v{vFLG}, {WS}, s{sT+1} offen offset:16
        buffer_store_dwordx4 v[24:27], v{vFLG}, {WS}, s{sT+1} offen offset:32
        s_sub_u32 s{sT+1}, s{sT+1}, {WS_STAMP}
        s_lshl_b32 s{sT+1}, s{sT+1}, 3
        s_add_u32 s{sT+1}, s{sT+1}, {WS_STAMP + 0x100000}
        v_lshlrev_b32 v2, 2, v{vLANE}
        buffer_store_dword v0, v2, {WS}, s{sT+1} offen
        buffer_store_dword v{vKV}, v2, {WS}, s{sT+1} offen offset:256
        """)
    a.label("L_end")
    a("s_endpgm")
    for typ in ("K", "V"):
        for nm, ok, ldi, red, reg in (("zwait", "zok", f"buffer_load_dword v{vPOLL}, v{vL4}, {sr(sDBG,4)}, 0 offen sc1", "", vPOLL),
                ("prepwait", "prepok", f"buffer_load_dwordx4 {vr(PV,4)}, v{vL16}, {WS}, s{gIT} offen sc1",
                 f"v_and_b32 v{PV}, v{PV}, v{PV+1}\nv_and_b32 v{PV+2}, v{PV+2}, v{PV+3}\nv_and_b32 v{PV}, v{PV}, v{PV+2}", PV)):
            a.label(f"L_{nm}{typ}")
            a(f"s_mov_b32 s{sT+4}, 0")
            a.label(f"L_{nm}2{typ}")
            a(f"""
            s_sleep 4
            {ldi}
            s_add_u32 s{sT+4}, s{sT+4}, 1
            s_waitcnt vmcnt(0)
            {red}
            v_cmp_ne_u32 vcc, s{sT+1}, v{reg}
            s_cmp_ge_u32 s{sT+4}, 0x10000
            s_cbranch_scc1 L_{ok}{typ}
            s_nop 2
            s_cbranch_vccnz L_{nm}2{typ}
            s_branch L_{ok}{typ}
            """)
    for (tag, voff, soff, lane0) in POLLS:
        a.label(f"L_pw_{tag}")
        a(f"s_mov_b32 s{sT+1}, 0")
        a.label(f"L_pw2_{tag}")
        a(f"""
        buffer_load_dword v{vPOLL}, v{voff}, {WS}, s{soff} offen sc1
        s_add_u32 s{sT+1}, s{sT+1}, 1
        s_waitcnt vmcnt(0)
        v_cmp_ne_u32 s[{sT+4}:{sT+5}], 1, v{vPOLL}
        s_cmp_ge_u32 s{sT+1}, 0x10000
        s_cbranch_scc1 L_po_{tag}
        s_sleep {OPT['psleep']}
        """)
        if lane0 is True: a(f"s_bitcmp1_b32 s{sT+4}, 0")
        else: a(f"s_cmp_lg_u64 s[{sT+4}:{sT+5}], 0")
        a(f"s_cbranch_scc1 L_pw2_{tag}")
        a(f"s_branch L_po_{tag}")
    for (lab, sub, back) in STUBS:
        a.label(lab)
        a(f"s_call_b64 s[{sRET}:{sRET+1}], {sub}")
        a(f"s_branch {back}")
    for b in range(2):
        a.label(f"L_mask{b}")
        a("s_nop 7")
        a(f"s_cmp_eq_u32 s{sN}, s{sND}")
        a(f"s_cbranch_scc0 L_maskall{b}")
        for r in range(4):
            a(f"v_cndmask_b32 v{S(b,0,0)+r}, v{S(b,0,0)+r}, v{vBIG}, s[{sMASK+2*r}:{sMASK+2*r+1}]")
            a(f"v_cndmask_b32 v{S(b,1,1)+r}, v{S(b,1,1)+r}, v{vBIG}, s[{sMASK+2*r}:{sMASK+2*r+1}]")
            a(f"v_mov_b32 v{S(b,1,0)+r}, v{vBIG}")
        a(f"s_setpc_b64 s[{sRET}:{sRET+1}]")
        a.label(f"L_maskall{b}")
        for i in range(16): a(f"v_mov_b32 v{S(b,0,0)+i}, v{vBIG}")
        a(f"s_setpc_b64 s[{sRET}:{sRET+1}]")
    a.label("L_fchk")
    hi, lo = f2u(2.0**OPT["thr"]), f2u(2.0**-OPT["thr"])
    a(f"s_add_u32 s{sT+1}, s{sND}, 1")
    a(f"s_cmp_gt_u32 s{sN}, s{sT+1}")
    a("s_cbranch_scc1 L_fret")
    for qt in range(2):
        a(f"v_mov_b32 v{vT+8+qt}, v{vSUM[qt][0]}")
        xlane(a, "v_add_f32", vT+8+qt, vT)
        a(f"v_subrev_u32 v{vT+8+qt}, {lo:#x}, v{vT+8+qt}")
    a(f"v_max_u32 v{vT+8}, v{vT+8}, v{vT+9}")
    a(f"v_cmp_lt_u32 vcc, {hi-lo:#x}, v{vT+8}")
    a("s_nop 4")
    a("s_cbranch_vccnz L_rare0")
    a.label("L_fret")
    a(f"s_setpc_b64 s[{sRET}:{sRET+1}]")
    for b in range(2):
        a.label(f"L_rare{b}")
        a("s_nop 7")
        D = [vT+8, vT+9]; F = [vT+10, vT+11]
        for qt in range(2):
            r0, r1 = S(b,0,qt), S(b,1,qt)
            a(f"v_max3_f32 v{D[qt]}, v{r0}, v{r0+1}, v{r0+2}")
            a(f"v_max3_f32 v{D[qt]}, v{D[qt]}, v{r0+3}, v{r1}")
            a(f"v_max3_f32 v{D[qt]}, v{D[qt]}, v{r1+1}, v{r1+2}")
            a(f"v_max_f32 v{D[qt]}, v{D[qt]}, v{r1+3}")
            xlane(a, "v_max_f32", D[qt], vT)
            a(f"v_max_f32 v{D[qt]}, s{sCLAMP}, v{D[qt]}")
            a(f"v_max_f32 v{F[qt]}, 0, v{D[qt]}")
            a(f"v_exp_f32 v{F[qt]}, -v{F[qt]}")
            for i in range(4): a(f"v_sub_f32 v{NEGM(qt)+i}, v{NEGM(qt)+i}, v{D[qt]}")
            for bb in range(2):
                for kt in range(2):
                    for i in range(4): a(f"v_sub_f32 v{S(bb,kt,qt)+i}, v{S(bb,kt,qt)+i}, v{D[qt]}")
            a(f"v_mul_f32 v{vL[qt]}, v{F[qt]}, v{vL[qt]}")
        for o in sm_ops(b): a(o)
        a(f"s_cmp_eq_u32 s{sFIRST}, 1")
        a(f"s_cbranch_scc1 L_rare_ret{b}")
        for dt in range(16):
            for qt in range(2):
                for i in range(4): a(f"v_mul_f32 v{O(dt,qt)+i}, v{F[qt]}, v{O(dt,qt)+i}")
        a.label(f"L_rare_ret{b}")
        a(f"s_cmp_lg_u32 s{sCNT}, s{sEV}")
        a("s_nop 0")
        a(f"s_setpc_b64 s[{sRET}:{sRET+1}]")
    a.label("L_slowcomb")
    a("s_nop 7")
    wA, wB = [vT+8, vT+9], [vT+10, vT+11]
    for qt in range(2):
        a(f"""
        v_min_f32 v{vT+6}, v{NEGM(qt)}, v{vSTB+qt}
        v_sub_f32 v{wA[qt]}, v{vT+6}, v{NEGM(qt)}
        v_sub_f32 v{wB[qt]}, v{vT+6}, v{vSTB+qt}
        v_exp_f32 v{wA[qt]}, v{wA[qt]}
        v_exp_f32 v{wB[qt]}, v{wB[qt]}
        s_nop 0
        v_mul_f32 v{vL[qt]}, v{wA[qt]}, v{vL[qt]}
        v_mul_f32 v{vSTB+2+qt}, v{wB[qt]}, v{vSTB+2+qt}
        """)
    for dt in range(16):
        for qt in range(2):
            for i in range(4): a(f"v_mul_f32 v{O(dt,qt)+i}, v{wA[qt]}, v{O(dt,qt)+i}")
    for i in range(64):
        qt = (i >> 2) & 1
        a(f"""
        v_accvgpr_read_b32 v{vT}, a{128+i}
        v_lshlrev_b32 v{vT+1}, 16, v{vT}
        v_and_b32 v{vT}, 0xffff0000, v{vT}
        v_mul_f32 v{vT+1}, v{wB[qt]}, v{vT+1}
        v_mul_f32 v{vT}, v{wB[qt]}, v{vT}
        v_cvt_pk_bf16_f32 v{vT}, v{vT+1}, v{vT}
        v_accvgpr_write_b32 a{128+i}, v{vT}
        """)
    a("s_nop 1")
    a("s_branch L_comb")
    a.label("L_codeend")
    lines = []
    for l in a.lines: lines += l.split("\n")
    ghost = [l.startswith("@ghost ") for l in lines]
    lines = [l[7:] if g else l for l, g in zip(lines, ghost)]
    lines = resolve_vm(lines)
    lines = [l.replace("@@buffer", "buffer") for l, g in zip(lines, ghost) if not g]
    errs = check_hazards(lines) + check_scc(lines)
    for e in errs[:30]: print("HAZARD", e, file=sys.stderr)
    lines = [re.sub(r"\s*; @\w+", "", l) for l in lines]
    lines = [l.strip() for l in lines if l.strip()]
    i, j = lines.index("L_gemmV:"), lines.index("L_P1A:")
    k = lines.index("L_zwaitV:"); k2 = lines.index("s_branch L_prepokV") + 1
    assert lines[i-1] == "s_branch L_P1A"
    lines = [".p2align 8"] + lines[i:j] + lines[k:k2] + lines[:i-1] + lines[j:k] + lines[k2:]
    lines = compact(lines)
    return "\n".join(lines) + "\n", kernel_desc(name, 512, 256)

if __name__ == "__main__":
    import ast
    for x in sys.argv[2:]:
        k, v = x.split("=")
        OPT[k] = ast.literal_eval(v)
    NAME = "recurrent_scan__compressed_kv_cla__dense_activation_squared_relu__prompt_kernel"
    body, desc = gen(NAME)
    ref = open("recurrent_scan__compressed_kv_cla__dense_activation_squared_relu__prompt.s.ref").read().split("\n")
    hdr = [l for l in ref if l.startswith(";") and "launch" not in l and "grid=" not in l]
    hdr += ["; @launch grid=(256,1,1) block=(256,1,1) lds=163840", '.amdgcn_target "amdgcn-amd-amdhsa--gfx950"', ".text"]
    txt = "\n".join(hdr) + "\n" + body + '.section .rodata,"a"\n.p2align 6\n' + desc
    open(sys.argv[1], "w").write(txt)
    print(len(txt), "bytes", file=sys.stderr)
```

```python
import sys
from fw import *
from layout2 import *

OPT = dict(ntA="", ntB=" nt", ntS=" nt", chq=1, chp=1, cyc=0, npro=6, gcap=[4, 4, 3], dg2=8, xpos=3, rotm=0, rot=1, sync=[6, 10, 12, 15, 20, 22], xstep=20, wbl2=0, pfk=0, pfd=4, pfo=[0], pfn=2, smin=0, voff=0, dbgside=0, tlb=0, tlbm=0, tlbs=16, flit=9, npeel=7, slt=[100, 260, 780], slstep=16, sld=180, map2=False, kvb0=256, kvstepb=16, psleep=4, prep=1, pst=False, cpf=True, fine=False, touch=False, sc1ld=" sc1", stamps=False, early=[5, 13, 21, 29], late=[37, 45, 53, 61], cap=7, capb=8, capq=9, capn=12, kvstep=9, a15=38, fsleep=2, fdelay=96, qstep=7, wideloop=False, thr=40, kvsc=" sc1", sidesc=" sc1")

vLANE, vDMA, vTE, vTO, vL16, vRD, vPOLL, vFLG, vONE, vL4, vKV = range(1, 12)
DA = [12, 13, 14, 15]; DB = [16, 17, 18, 19]; RA = [20, 21]; RB = [22, 23, 24, 25]
vSW, vSF, vSX, vG1 = 26, 27, 28, 29
GT = 30
vT = 12
BIAS = 12
O0 = 128
def O(dt, qt): return O0 + (dt*2+qt)*4
def S(b, kt, qt): return 64 + b*16 + (kt*2+qt)*4
def P(b, qt): return 96 + b*8 + qt*4
def NEGM(qt): return 112 + qt*4
vL = [120, 121]
vSUM = [[122, 123], [124, 125]]
vBIG = 126
vSTAT = 44
vSEL = 48
vRINV = [54, 55]
vSTB = 56
def accreg(pos): return vr(48+4*pos, 4) if pos < 52 else ar(208+4*(pos-52), 4)
NE = 6
def PK(c): return 48+4*c if c < 20 else (48+4*(c-20) if c < 20+NE else 48+4*(20+c))
def Q(qb, qt, u): return qb + (qt*8+u)*4
def FR(f): return 64 + (f % 16)*4
def X(qt, u): return 128 + (u*2+qt)*4
def FA(b, m): return (64 if b == 0 else 0) + m*4
def FB(b, n): return (64 if b == 0 else 0) + 32 + n*4
WOL = 192
SLD = 128

sWS, sSA, sSB, sG, sDBG = 4, 8, 12, 16, 20
_n = [24]
def sal(n=1, al=1):
    _n[0] = (_n[0] + al - 1)//al*al
    r = _n[0]; _n[0] += n; return r
sWAVE, sHEAD, sJ, sQI, sWHICH = [sal() for _ in range(5)]
gA0, gA1, gB0, gB1, gMA, gMB, gIT, gD, gCNT, gFL = [sal() for _ in range(10)]
sTAU, sM0, sOFFA, sOFFB, sRDD, sRDS, sXOFF, sXOF2, sN, sND = gA0, gA1, gB0, gB1, gD, gCNT, sal(), sal(), sal(), sal()
sCNT, sEV, sCLAMP, sFIRST = sal(), sal(), sal(), sal()
sRET = sal(2, 2)
sMASK = sal(8, 4)
sTYPE, sU1, sU2, sW0 = sal(), sal(), sal(), sal()
sKVB, sKVI = sal(), sal()
sQST, sPT, sPSG, sPSS = sal(), sal(), sal(), sal()
sFKV, sFKVP, sFQ, sFSG, sFSS = [sal() for _ in range(5)]
sT = sal(8, 4)
sLN = sal(2, 2)
sFS = sal(2, 2); sW4K = 3
sPF = sRET; sPD = sT+5; sEXP = gFL
sSTAMP = sal(0, 2)
NSTAMP = (102 - sSTAMP)//2
print("sgpr used", sSTAMP, "stamps", NSTAMP, file=sys.stderr)
WS = sr(sWS, 4)

STUBS = []
def ld(): return OPT["sc1ld"]
def FT(): return "s_memtime" if OPT["cyc"] else "s_memrealtime"

XG = [1, 9, 17, 25, 33, 41, 49, 57]
XG4 = list(range(1, 64, 4))
def common_fill(st, dma=True, nd=None, last=False, novm=False, rdl=False):
    if nd is None: nd = 16 + len(OPT["early"]) + sum(1 for g in OPT["late"] if g < 38)
    for G in range(8):
        g0 = G*8
        Gn = (G+3) % 8
        for i in range(4):
            f = Gn*4+i
            if not (last and G > 4): st.put(g0+2*i, f"ds_read_b128 {ar(FR(f),4)}, v{vRD} offset:{f*1024}")
        if last and G >= 4:
            if G < 7: st.put(g0+6, f"s_waitcnt lgkmcnt({(7, 4, 0)[G-4]})")
        elif G == 4:
            st.put(g0+6, "s_waitcnt lgkmcnt(7)" if novm else f"s_waitcnt vmcnt(@dma:{nd}) lgkmcnt(7)")
            st.put(g0+7, "s_barrier")
            st.put(g0+7, f"v_add_u32 v{vRD}, s{sRDD}, v{vRD}")
        else:
            st.put(g0+6, "s_waitcnt lgkmcnt(7)")
    for i, g in enumerate(OPT["early"] if dma else []):
        st.put(g, f"buffer_load_dwordx4 v{vDMA}, {WS}, s{sOFFB} offen offset:{i*1024}{ld()} lds")
    if dma: st.put(31, f"v_readlane_b32 s{sOFFA}, v{vTO}, s{sTAU}")
    st.put(31, f"s_add_u32 m0, s{sM0}, 16384")
    st.put(34, f"s_add_u32 s{sM0}, s{sM0}, s{sRDD}")
    st.put(36, f"s_cmp_ge_u32 s{sM0}, 131072")
    st.put(38, f"s_cselect_b32 s{sRDD}, s{gMA}, s{gMB}")
    st.put(44, f"s_add_u32 s{sTAU}, s{sTAU}, 1")
    for i, g in enumerate(OPT["late"] if dma else []):
        st.put(g, f"buffer_load_dwordx4 v{vDMA}, {WS}, s{sOFFA} offen offset:{i*1024}{ld()} lds")
    if dma or rdl: st.put(55, f"v_readlane_b32 s{sOFFB}, v{vTE}, s{sTAU}")
    st.put(63, f"s_mov_b32 m0, s{sM0}")
    st.scc_busy |= {36, 37}
    if OPT["fine"]:
        st.put(4, f"{FT()} s[{sFS}:{sFS+1}]")
        st.put(6, f"v_mov_b32_dpp v{vKV}, v{vKV} wave_shr:1 row_mask:0xf bank_mask:0xf")
        st.put(62, f"v_writelane_b32 v{vKV}, s{sFS}, 0")

class Jobs:
    def __init__(self): self.jobs = []; self.at = {}
    def add(self, key, pre, ins, early, late): self.jobs.append((late, len(self.jobs), early, pre, ins, key))
    def place(self, st, s, cap=6, grid=None):
        slots = [g for g in (grid or XG) if not st.hasD(g) and st.free(g) == 2 and st.nS(g) == 0]
        n = 0
        avail = len([j for j in self.jobs if j[2] <= s*64+63])
        k = min(cap, avail, len(slots))
        use = [slots[(i*len(slots))//k] for i in range(k)] if k else []
        for g in slots:
            t = s*64+g
            c = sorted(j for j in self.jobs if j[2] <= t)
            if not c: continue
            j = c[0]
            nxt = [x for x in slots if x > g]
            urgent = j[0] < (s*64+nxt[0] if nxt else (s+1)*64+1)
            if not (urgent or (n < cap and (g in use or len(nxt) < k-n))): continue
            assert t <= j[0] + (24 if j[5][0] == "x" else 0) or j[5] in ("qs", "kvf", "qf") or (j[5] == "kv" and j[2] >= 64), ("job late", j, t)
            if j[3]:
                assert g-1 not in st.scc_busy
                st.put(g-1, j[3])
            st.put(g, j[4]); self.jobs.remove(j); self.at[j[5]] = t; n += 1

def mf_pv(half, pb, czero=False):
    return [f"{MF} {vr(O(dt,qt),4)}, {ar(FR(half*16+dt),4)}, {vr(P(pb,qt),4)}, {'0' if czero else vr(O(dt,qt),4)}"
            for dt in range(16) for qt in range(2)]
def mf_qk(half, sb, qb, czero=False):
    out = []
    for kt in range(2):
        seq = [(u, qt) for u in range(8) for qt in range(2)]
        if OPT["chq"]: seq = [(g*4+u, qt) for g in range(2) for qt in ((0, 1), (1, 0))[g] for u in range(4)]
        for u, qt in seq:
            c = ('0' if czero else vr(NEGM(qt),4)) if u == 0 else vr(S(sb,kt,qt),4)
            out.append(f"{MF} {vr(S(sb,kt,qt),4)}, {ar(FR(half*16+kt*8+u),4)}, {ar(Q(qb,qt,u),4)}, {c}")
    return out
def mf_proj(s, init=None):
    out = []
    for nt in range(16):
        seq = [(0, 0, 1), (1, 0, 0), (1, 1, 1), (0, 1, 0)] if OPT["chp"] else [(0, 0, 1), (0, 1, 1), (1, 0, 0), (1, 1, 0)]
        for uu, qt, first in seq:
            c = vr(O(nt,qt),4)
            if first and init == "zero": c = "0"
            if first and init == "bias": c = vr(O(nt,1),4)
            out.append(f"{MF} {vr(O(nt,qt),4)}, {ar(FR(2*nt+uu),4)}, {ar(X(qt,2*s+uu),4)}, {c}")
    return out
def PA(b, nt, qt): return 64 + (nt*2+qt)*4 if b == 0 else O(2*nt+1, qt)
def mf_post(s):
    out = []
    for f in range(32):
        u, nt = f >> 2, f & 3
        for qt in range(2):
            d = vr(PA(s & 1, nt, qt), 4)
            out.append(f"{MF} {d}, {ar(FR(f),4)}, {vr(O(2*u,qt),4)}, {'0' if u == 0 else d}")
    return out

def sm_ops(b):
    ops = []
    seq = [(kt, qt, rp) for kt in range(2) for qt in range(2) for rp in range(2)]
    pend = []
    for i, (kt, qt, rp) in enumerate(seq):
        t0 = vT + (i % 4)*2
        s0 = S(b,kt,qt) + rp*2
        ops.append(f"v_exp_f32 v{t0}, v{s0}")
        ops += pend[:1]
        ops.append(f"v_exp_f32 v{t0+1}, v{s0+1}")
        ops += pend[1:]
        acc = vSUM[qt][rp]
        if kt == 0: pend = [f"v_add_f32 v{acc}, v{t0}, v{t0+1}"]
        else: pend = [f"v_add_f32 v{acc}, v{acc}, v{t0}", f"v_add_f32 v{acc}, v{acc}, v{t0+1}"]
        pend.append(f"v_cvt_pk_bf16_f32 v{P(b,qt)+kt*2+rp}, v{t0}, v{t0+1}")
    ops.append("s_nop 0")
    ops += pend
    ops += [f"v_add_f32 v{vSUM[0][0]}, v{vSUM[0][0]}, v{vSUM[0][1]}", f"v_add_f32 v{vSUM[1][0]}, v{vSUM[1][0]}, v{vSUM[1][1]}"]
    return ops

def place_sm(st, b, g0, g_end, tag, ladd=True, first=False):
    st.put(g0-1, f"s_cmp_ge_u32 s{sN}, s{sND}")
    st.put(g0, f"s_cbranch_scc1 L_domask_{tag}")
    st.put(g0, f"L_nomask_{tag}:")
    STUBS.append((f"L_domask_{tag}", f"L_mask{b}", f"L_nomask_{tag}"))
    st.put(g0+2 if g0 == 0 else 42, f"s_add_u32 s{sN}, s{sN}, 1")
    st.scc_busy |= {g0-1}
    def add(ins, deps=(), early=0): return st.add(ins, deps, max(early, g0), g_end)
    la = [add(f"v_add_f32 v{vL[q]}, v{vL[q]}, v{vSUM[q][0]}") for q in range(2)] if ladd else []
    seq = [(kt, qt, rp) for kt in range(2) for qt in range(2) for rp in range(2)]
    users = {}; lastacc = {}; NT = 6
    for i, (kt, qt, rp) in enumerate(seq):
        t0 = vT + (i % NT)*2
        s0 = S(b,kt,qt) + rp*2
        war = users.get(i - NT, [])
        e = g0 + (1 if kt == 0 else 3)
        e0 = add(f"v_exp_f32 v{t0}, v{s0}", war, e)
        e1 = add(f"v_exp_f32 v{t0+1}, v{s0+1}", war, e)
        acc = vSUM[qt][rp]
        if kt == 0:
            a0 = add(f"v_add_f32 v{acc}, v{t0}, v{t0+1}", [e0, e1] + la)
            u = [a0]; lastacc[(qt,rp)] = a0
        else:
            a0 = add(f"v_add_f32 v{acc}, v{acc}, v{t0}", [e0, lastacc[(qt,rp)]])
            a1 = add(f"v_add_f32 v{acc}, v{acc}, v{t0+1}", [e1, a0])
            u = [a0, a1]; lastacc[(qt,rp)] = a1
        c = st.add(f"v_cvt_pk_bf16_f32 v{P(b,qt)+kt*2+rp}, v{t0}, v{t0+1}", [e0, e1], g0, g_end-1)
        users[i] = u + [c]
    f0 = add(f"v_add_f32 v{vSUM[0][0]}, v{vSUM[0][0]}, v{vSUM[0][1]}", [lastacc[(0,0)], lastacc[(0,1)]])
    f1 = add(f"v_add_f32 v{vSUM[1][0]}, v{vSUM[1][0]}, v{vSUM[1][1]}", [lastacc[(1,0)], lastacc[(1,1)]])
    hi = f2u(2.0**OPT["thr"])
    if not first:
        mx = add(f"v_max_f32 v{vT+14}, v{vSUM[0][0]}, v{vSUM[1][0]}", [f0, f1])
        add(f"v_cmp_nge_f32 vcc, {hi:#x}, v{vT+14}", [mx])
    else:
        lo = f2u(2.0**-OPT["thr"])
        m0 = add(f"v_subrev_u32 v{vT+14}, {lo:#x}, v{vSUM[0][0]}", [f0])
        m1 = add(f"v_subrev_u32 v{vT+15}, {lo:#x}, v{vSUM[1][0]}", [f1])
        mx = add(f"v_max_u32 v{vT+14}, v{vT+14}, v{vT+15}", [m0, m1])
        add(f"v_cmp_lt_u32 vcc, {hi-lo:#x}, v{vT+14}", [mx])

def xlane_ops(op, v, t1):
    return [(f"v_mov_b32 v{t1}, v{v}", 0), (f"v_permlane16_swap_b32 v{v}, v{t1}", 2), (f"{op} v{v}, v{v}, v{t1}", 1),
            (f"v_mov_b32 v{t1}, v{v}", 0), (f"v_permlane32_swap_b32 v{v}, v{t1}", 2), (f"{op} v{v}, v{v}, v{t1}", 1)]
def xlane(a, op, v, t1):
    for ins, d in xlane_ops(op, v, t1):
        if d: a(f"s_nop {d-1}")
        a(ins)

class Chain:
    def __init__(self, items, grid=None): self.items = list(items); self.lastg = -10; self.grid = grid; self.base = 0; self.lastD = -999; self.minD = 0
    def fill(self, st, g0=0, g1=63):
        g = g0; lastg = -10
        while self.items and g <= g1:
            ins, dist = self.items[0][:2]
            early = self.items[0][2] if len(self.items[0]) > 2 else 0
            c = cls(ins)
            ok = g - lastg >= dist and g >= early and not st.hasD(g)
            if ok and g == lastg and not (c in "VE" and cls(self.last) in "VM"): ok = False
            if ok:
                if c == "S": ok = (st.nS(g) == 0 or st.free(g) >= 1) and not (g in st.scc_busy and not ins.startswith(("s_mov", "s_mul", "s_wait", "s_nop")))
                elif c == "D": ok = st.free(g) == 2 and st.nS(g) == 0 and (self.grid is None or g in self.grid) and self.base + g - self.lastD >= self.minD
                else: ok = st.free(g) >= COST[c]
            if ok:
                st.put(g, ins); self.items.pop(0); lastg = g; self.last = ins
                if c == "D": self.lastD = self.base + g
            else:
                g += 1
    def flush(self, a):
        for it in self.items:
            if it[1]: a(f"s_nop {it[1]-1}")
            a(it[0])
        self.items = []

def gen(name="mega_kernel"):
    a = Asm()
    STUBS.clear()
    stamps = OPT["stamps"]
    nst = [0]
    def stamp_ins():
        i = nst[0]; nst[0] += 1
        assert i < NSTAMP
        return f"s_memrealtime s[{sSTAMP+2*i}:{sSTAMP+2*i+1}]"
    def streg(i): return sSTAMP+2*i if i < NSTAMP else sMASK+2*(i-NSTAMP)
    def stamp(i, p=False):
        if OPT["pst"] and 2 <= i <= 6 and not p: return
        if p and not OPT["pst"]: return
        if stamps: a(f"s_memrealtime s[{streg(i)}:{streg(i)+1}]")
    def merge(lbl, align=False):
        if align: a.raw(".p2align 6")
        a.label(lbl); a.comment("@merge")
    strideA, strideB = 2048, 8192
    a.raw(kernel_header(name))
    a("s_cmp_ge_u32 s2, 256")
    a("s_cbranch_scc0 L_go")
    a("s_endpgm")
    a.label("L_go")
    stamp(0)
    sW12, sX = sMASK, sMASK+4
    gHEAD, gMT, gWM, gWN = sCNT, sEV, sCLAMP, sFIRST
    a(f"""
    s_load_dwordx2 s[{sSA}:{sSA+1}], s[0:1], 8
    s_load_dwordx4 s[{sT}:{sT+3}], s[0:1], 24
    s_load_dwordx2 s[{sWS}:{sWS+1}], s[0:1], 104
    s_load_dwordx2 s[{sX}:{sX+1}], s[0:1], 0
    s_load_dwordx2 s[{sDBG}:{sDBG+1}], s[0:1], 96
    s_load_dwordx2 s[{sW12}:{sW12+1}], s[0:1], 56
    s_load_dwordx2 s[{sRET}:{sRET+1}], s[0:1], 72
    s_load_dwordx2 s[{sT+6}:{sT+7}], s[0:1], 16
    v_and_b32 v{vLANE}, 63, v0
    v_lshrrev_b32 v{GT}, 6, v0
    v_lshlrev_b32 v{vL16}, 4, v{vLANE}
    v_readfirstlane_b32 s{sWAVE}, v{GT}
    s_and_b32 s3, s2, 7
    s_lshl_b32 s3, s3, 1
    s_lshr_b32 s{sJ}, s2, 4
    s_bfe_u32 s{sWHICH}, s2, 0x10003
    s_add_u32 s{sHEAD}, s3, s{sWHICH}
    s_and_b32 s{gHEAD}, s{sJ}, 1
    s_add_u32 s{gHEAD}, s{gHEAD}, s3
    s_bfe_u32 s{gMT}, s2, 0x10005
    s_lshl_b32 s{gMT}, s{gMT}, 2
    s_lshr_b32 s{gWM}, s2, 6
    s_xor_b32 s{gWM}, s{gWM}, 2
    s_or_b32 s{gMT}, s{gMT}, s{gWM}
    """)
    if OPT["map2"]:
        a(f"""
        s_bfe_u32 s{gHEAD}, s2, 0x10005
        s_add_u32 s{gHEAD}, s{gHEAD}, s3
        s_lshl_b32 s{gMT}, s{sWHICH}, 2
        s_bfe_u32 s{gWM}, s2, 0x10004
        s_or_b32 s{gMT}, s{gMT}, s{gWM}
        s_bfe_u32 s{gWM}, s2, 0x10007
        s_xor_b32 s{gWM}, s{gWM}, 1
        s_lshl_b32 s{gWM}, s{gWM}, 1
        s_or_b32 s{gMT}, s{gMT}, s{gWM}
        s_bfe_u32 s{sWHICH}, s2, 0x10006
        """)
    a(f"""
    s_and_b32 s{gWM}, s{sWAVE}, 1
    s_lshr_b32 s{gWN}, s{sWAVE}, 1
    """)
    t2, t3, t4, t5, t6 = GT, GT+1, GT+2, GT+3, GT+4
    a(f"""
    v_lshrrev_b32 v{t2}, 3, v{vLANE}
    s_lshl_b32 s{gA0}, s{gMT}, 8
    s_lshl_b32 s{gA1}, s{sWAVE}, 6
    s_add_u32 s{gA0}, s{gA0}, s{gA1}
    v_add_u32 v{t2}, s{gA0}, v{t2}
    v_lshlrev_b32 v{t2}, 11, v{t2}
    v_and_b32 v{t3}, 7, v{vLANE}
    v_lshrrev_b32 v{t4}, 4, v{vLANE}
    v_xor_b32 v{t5}, v{t3}, v{t4}
    v_lshl_add_u32 v{t5}, v{t5}, 4, v{t2}
    v_xor_b32 v{t6}, 4, v{t4}
    v_xor_b32 v{t6}, v{t3}, v{t6}
    v_lshl_add_u32 v{t6}, v{t6}, 4, v{t2}
    """)
    for jl in range(4):
        a(f"v_add_u32 v{DA[jl]}, {4096 + jl*8*strideA - jl*1024}, v{t5 if (jl & 1) == 0 else t6}")
    a(f"""
    v_bfe_u32 v{t2}, v{vLANE}, 3, 2
    v_lshlrev_b32 v{t3}, 13, v{t2}
    v_lshrrev_b32 v{t4}, 5, v{vLANE}
    v_lshl_add_u32 v{t3}, v{t4}, 7, v{t3}
    v_lshrrev_b32 v{t4}, 1, v{t2}
    v_lshlrev_b32 v{t4}, 2, v{t4}
    v_and_b32 v{t5}, 7, v{vLANE}
    v_xor_b32 v{t4}, v{t4}, v{t5}
    s_lshl_b32 s{gA0}, s{gWM}, 1
    v_xor_b32 v{t4}, s{gA0}, v{t4}
    v_lshl_add_u32 v{t3}, v{t4}, 4, v{t3}
    s_lshl_b32 s{gA0}, s{gHEAD}, 9
    s_lshl_b32 s{gA1}, s{sWAVE}, 16
    s_add_u32 s{gA0}, s{gA0}, s{gA1}
    v_add_u32 v{t3}, s{gA0}, v{t3}
    """)
    for jl in range(4):
        a(f"v_add_u32 v{DB[jl]}, {4096 + (jl>>1)*4*strideB + (jl&1)*256 - jl*1024}, v{t3}")
    a(f"""
    s_mul_i32 s{gA1}, s3, {OPT["rot"]*64}
    s_mul_i32 s{gA0}, s{gMT}, {OPT["rotm"]*128}
    s_add_u32 s{gA1}, s{gA1}, s{gA0}
    s_and_b32 s{gA1}, s{gA1}, 0x7ff
    s_lshl_b32 s{gMA}, s{sWAVE}, 13
    s_lshl_b32 s{gMB}, s{sWAVE}, 12
    s_mov_b32 s{sSA+2}, {4194304+4096}
    s_mov_b32 s{sSA+3}, 0x20000
    s_mov_b32 s{sSB+2}, {8388608+4096}
    s_mov_b32 s{sSB+3}, 0x20000
    @PST2
    s_waitcnt lgkmcnt(0)
    @PST3
    s_sub_u32 s{sSA}, s{sSA}, 4096
    s_subb_u32 s{sSA+1}, s{sSA+1}, 0
    s_cmp_eq_u32 s{sWHICH}, 0
    s_cselect_b32 s{sSB}, s{sT}, s{sT+2}
    s_cselect_b32 s{sSB+1}, s{sT+1}, s{sT+3}
    s_sub_u32 s{sSB}, s{sSB}, 4096
    s_subb_u32 s{sSB+1}, s{sSB+1}, 0
    """)
    for i in (2, 3):
        k = [n for n, l in enumerate(a.lines) if f"@PST{i}" in l][0]
        a.lines[k] = f"s_memrealtime s[{streg(i)}:{streg(i)+1}]" if OPT["pst"] else ""
    MA, MB = 0x107ff, 0x7fffff
    gRA, gRB, gTS = gA1, gCNT, (gA0, sT)
    a(f"s_lshl_b32 s{gRB}, s{gRA}, 12")
    def dma_group(kind, par):
        t = gTS[par & 1]
        if kind[0] == "A":
            _, it, h = kind
            m0 = f"s_add_u32 m0, s{gMA}, {(131072, 0, 65536)[it % 3] + h*4096}"; regs, srd = DA, sSA
            so = f"s_add_u32 s{t}, s{gRA}, {h*32*strideA + it*128}\ns_and_b32 s{t}, s{t}, {MA}"
        elif kind[0] == "B":
            _, it, h = kind
            m0 = f"s_add_u32 m0, s{gMB}, {32768 + (it & 1)*65536 + h*16384}"; regs, srd = DB, sSB
            so = f"s_add_u32 s{t}, s{gRB}, {(it*64 + h*32)*strideB}\ns_and_b32 s{t}, s{t}, {MB}"
        else:
            y = kind[1]
            return f"s_add_u32 m0, s{gMB}, {y*16384}", f"s_add_u32 s{t}, s{sW0}, {y*16384}", \
                   [f"buffer_load_dwordx4 v{vDMA}, {WS}, s{t} offen offset:{i*1024}{ld()} lds ; @gU{y}" for i in range(4)]
        return m0, so, [f"buffer_load_dwordx4 v{regs[jl]}, {sr(srd,4)}, s{t} offen offset:{jl*1024}{OPT['nt' + kind[0]]} lds ; @g{kind[0]}{it}_{h}" for jl in range(4)]
    todo = []
    for it in range(16):
        todo += [(2*it-1, 2*(it-3)+1, ("A", it, 0)), (2*it-1, 2*(it-2), ("B", it, 0)), (2*it-1, 2*(it-3)+1, ("A", it, 1)), (2*it, 2*(it-2)+1, ("B", it, 1))]
    todo += [(31+y, av, ("U", y)) for y, av in enumerate((27, 27, 28, 29, 29, 29, 30, 31))]
    GS = {}; order = []
    for n in range(-1, 32):
        cap = OPT["npro"] if n < 0 else OPT["gcap"][min(n, len(OPT["gcap"])-1)]
        c = sorted([x for x in todo if x[1] <= n], key=lambda x: x[0])[:cap]
        for x in c: todo.remove(x); assert x[0] > n or n < 0, (x, n)
        GS[n] = [x[2] for x in c]; order += GS[n]
    assert not todo
    print("GS", {n: len(v) for n, v in GS.items()}, file=sys.stderr)
    def gtag(k): return f"gU{k[1]}" if k[0] == "U" else f"g{k[0]}{k[1]}_{k[2]}"
    def gwait(n):
        it, kk = (n+1) >> 1, (n+1) & 1
        need = [("U", 0), ("U", 1)] if n == 31 else [("B", it, 1)] if kk else [("A", it, 0), ("A", it, 1), ("B", it, 0)]
        return f"vmcnt(@since:{gtag(max(need, key=order.index))})"
    main = a; a = Asm()
    sWID, u_, nb_, o_, o2_ = sXOFF, sT+1, sT+2, sT+3, sT+4
    sD = [sQST, sPT, sPSG]; sXS = sPSS; sHI = sFSG; sSTR = sFSS
    vWO, vW12 = vRD, vDMA
    G = sr(sG, 4)
    r_, g_, r8 = GT, GT+1, GT+2
    h_, i_ = GT+5, GT+6
    a(f"""
    s_lshl_b32 s{sWID}, s2, 2
    s_add_u32 s{sWID}, s{sWID}, s{sWAVE}
    s_mov_b32 s{sX+2}, {2048*896}
    s_mov_b32 s{sX+3}, 0x20000
    v_and_b32 v{h_}, 1, v{vLANE}
    v_lshrrev_b32 v{i_}, 1, v{vLANE}
    v_mul_u32_u24 v{GT+7}, 896, v{h_}
    v_lshl_add_u32 v{GT+7}, v{i_}, 4, v{GT+7}
    v_cmp_gt_u32 s[{sLN}:{sLN+1}], 28, v{i_}
    v_mov_b32 v{GT+8}, {OOB}
    s_mul_i32 s{gB1}, s{sWID}, 1792
    v_cndmask_b32 v{GT+11}, v{GT+8}, v{GT+7}, s[{sLN}:{sLN+1}]
    s_getpc_b64 s[{sG}:{sG+1}]
    L_pc:
    s_sub_u32 s{sG}, s{sG}, L_pc - L_gemmV
    s_subb_u32 s{sG+1}, s{sG+1}, 0
    s_mov_b32 s{sG+2}, L_codeend - L_gemmV
    s_mov_b32 s{sG+3}, 0x20000
    s_lshr_b32 s{gB0}, s2, 3
    s_lshl_b32 s{gB0}, s{gB0}, 2
    s_add_u32 s{gB0}, s{gB0}, s{sWAVE}
    s_lshl_b32 s{gB0}, s{gB0}, 10
    s_mov_b32 s{sWS+2}, {WS_SIZE}
    s_mov_b32 s{sWS+3}, 0x20000
    v_and_b32 v{r_}, 15, v{vLANE}
    v_lshrrev_b32 v{g_}, 4, v{vLANE}
    v_lshlrev_b32 v{r8}, 3, v{r_}
    """)
    def natdest(dst, base):
        a(f"""
        s_lshr_b32 s{o_}, s{nb_}, 2
        s_mul_i32 s{o_}, s{o_}, {7*32768}
        s_lshr_b32 s{o2_}, s{u_}, 1
        s_lshl_b32 s{o2_}, s{o2_}, 15
        s_add_u32 s{o_}, s{o_}, s{o2_}
        s_and_b32 s{o2_}, s{nb_}, 3
        s_lshl_b32 s{o2_}, s{o2_}, 13
        s_add_u32 s{o_}, s{o_}, s{o2_}
        s_and_b32 s{o2_}, s{u_}, 1
        s_lshl_b32 s{o2_}, s{o2_}, 10
        s_add_u32 s{o_}, s{o_}, s{o2_}
        s_add_u32 s{dst}, s{o_}, {base}
        """)
    def div7(idx):
        a(f"""
        s_mul_i32 s{u_}, s{idx}, 9363
        s_lshr_b32 s{u_}, s{u_}, 16
        s_mul_i32 s{nb_}, s{u_}, 7
        s_sub_u32 s{nb_}, s{idx}, s{nb_}
        """)
    def ffdest(dst, base, lim, idx=sWID):
        a(f"""
        s_mul_i32 s{o_}, s{nb_}, {184*4096}
        s_lshl_b32 s{o2_}, s{u_}, 12
        s_add_u32 s{o_}, s{o_}, s{o2_}
        s_add_u32 s{dst}, s{o_}, {base}
        s_cmp_lt_u32 s{idx}, {lim}
        s_cselect_b32 s{dst}, s{dst}, {OOB}
        """)
    a(f"""
    s_mov_b32 s{sDBG+2}, 16
    s_mov_b32 s{sDBG+3}, 0x20000
    v_mul_u32_u24 v{vWO}, {4*896}, v{g_}
    v_add_u32 v{vWO}, v{vWO}, v{r8}
    s_lshl_b32 s{gD}, s{gMT}, 1
    s_add_u32 s{gD}, s{gD}, s{sWHICH}
    s_lshl_b32 s{gD}, s{gD}, 2
    s_add_u32 s{gD}, s{gD}, s{sWAVE}
    """)
    div7(gD)
    a(f"""
    s_lshl_b32 s{o_}, s{gHEAD}, 3
    s_add_u32 s{u_}, s{u_}, s{o_}
    s_mul_i32 s{o_}, s{u_}, {32*896}
    s_lshl_b32 s{o2_}, s{nb_}, 7
    s_add_u32 s{o_}, s{o_}, s{o2_}
    s_cmp_lt_u32 s{gD}, 56
    s_cselect_b32 s{o_}, s{o_}, {OOB}
    v_add_u32 v{vWO}, s{o_}, v{vWO}
    """)
    ffdest(sD[1], WS_WFF + 56*4096, 56, gD)
    a(f"""
    s_lshr_b32 s{u_}, s{sWID}, 2
    s_mul_i32 s{u_}, s{u_}, 9363
    s_lshr_b32 s{u_}, s{u_}, 16
    s_mul_i32 s{nb_}, s{u_}, 28
    s_sub_u32 s{nb_}, s{sWID}, s{nb_}
    s_mul_i32 s{sHI}, s{u_}, {32*3584}
    s_lshl_b32 s{o2_}, s{nb_}, 7
    s_add_u32 s{sHI}, s{sHI}, s{o2_}
    """)
    natdest(sSTR, WS_W1F)
    a(f"s_sub_u32 s{sT+5}, s{sWID}, 392")
    a(f"s_and_b32 s{sT+5}, s{sT+5}, 1023")
    div7(sT+5)
    ffdest(sD[2], WS_WFF, 784)
    a(f"""
    s_lshr_b32 s{o_}, s{u_}, 1
    s_mul_i32 s{o_}, s{o_}, {64*896}
    s_and_b32 s{o2_}, s{u_}, 1
    s_mul_i32 s{o2_}, s{o2_}, {2*896}
    s_add_u32 s{o_}, s{o_}, s{o2_}
    s_lshl_b32 s{o2_}, s{nb_}, 7
    s_add_u32 s{o_}, s{o_}, s{o2_}
    s_mov_b32 s{sW12+2}, {448*3584}
    s_mov_b32 s{sW12+3}, 0x20000
    s_cmp_lt_u32 s{sWID}, 392
    s_cselect_b32 s{sW12}, s{sW12}, s{sRET}
    s_cselect_b32 s{sW12+1}, s{sW12+1}, s{sRET+1}
    s_cselect_b32 s{o_}, s{sHI}, s{o_}
    s_cselect_b32 s{sD[2]}, s{sSTR}, s{sD[2]}
    s_cselect_b32 s{sHI}, 16, 1
    s_cselect_b32 s{sSTR}, 2, 1
    s_mul_i32 s{sHI}, s{sHI}, 896
    s_mul_i32 s{o2_}, s{sSTR}, {16*896}
    s_lshl_b32 s{sSTR}, s{sSTR}, 10
    v_mul_u32_u24 v{vW12}, s{o2_}, v{g_}
    v_add3_u32 v{vW12}, v{vW12}, v{r8}, s{o_}
    v_lshrrev_b32 v{GT+9}, 2, v{i_}
    v_lshlrev_b32 v{GT+9}, 10, v{GT+9}
    v_and_b32 v{GT+10}, 3, v{i_}
    v_lshl_add_u32 v{GT+9}, v{GT+10}, 8, v{GT+9}
    v_lshl_add_u32 v{GT+9}, v{h_}, 4, v{GT+9}
    v_cndmask_b32 v{vSX}, v{GT+8}, v{GT+9}, s[{sLN}:{sLN+1}]
    s_lshr_b32 s{o_}, s{sWID}, 3
    s_mul_i32 s{o_}, s{o_}, 14336
    s_and_b32 s{o2_}, s{sWID}, 7
    s_lshl_b32 s{o2_}, s{o2_}, 5
    s_add_u32 s{sXS}, s{o_}, s{o2_}
    s_lshl_b32 s{sFQ}, s{sWID}, 10
    s_add_u32 s{sFQ}, s{sFQ}, {WS_FLG}
    s_cmp_lt_u32 s{sWID}, 32
    s_cselect_b32 s{sFQ}, s{sFQ}, {OOB}
    v_cmp_eq_u32 vcc, 0, v{vLANE}
    v_mov_b32 v{vONE}, 1
    v_and_b32 v{vL4}, 3, v{vLANE}
    v_lshlrev_b32 v{vL4}, 2, v{vL4}
    v_cndmask_b32 v{vFLG}, v{GT+8}, v{vLANE}, vcc
    s_mov_b32 s{sRET}, s{sT+6}
    s_mov_b32 s{sRET+1}, s{sT+7}
    s_lshr_b32 s{u_}, s{gD}, 2
    s_lshl_b32 s{nb_}, s{gHEAD}, 2
    s_add_u32 s{nb_}, s{nb_}, s{sWAVE}
    s_lshl_b32 s{o_}, s{u_}, 18
    s_lshl_b32 s{o2_}, s{nb_}, 7
    s_add_u32 s{o_}, s{o_}, s{o2_}
    v_and_b32 v{vSW}, 3, v{vLANE}
    v_lshlrev_b32 v{vSW}, 5, v{vSW}
    v_bfe_u32 v{GT+9}, v{vLANE}, 2, 2
    v_lshl_add_u32 v{vSW}, v{GT+9}, 3, v{vSW}
    v_lshl_add_u32 v{vSW}, v{g_}, 16, v{vSW}
    v_add_u32 v{vSW}, s{o_}, v{vSW}
    v_mov_b32 v{vSF}, v{vL16}
    """)
    natdest(sD[0], WS_WQF)
    a(f"s_cmp_lt_u32 s{gD}, 56")
    a(f"s_cselect_b32 s{sD[0]}, s{sD[0]}, {OOB}")
    assert WS_XF == 0
    a(f"""
    v_bfe_u32 v{t4}, v{vLANE}, 1, 3
    s_lshl_b32 s{o_}, s{gWM}, 14
    s_add_u32 s{o_}, s{o_}, 131072
    v_lshlrev_b32 v{r_}, 7, v{r_}
    v_add_u32 v{r_}, s{o_}, v{r_}
    """)
    for kk in range(2):
        a(f"v_or_b32 v{t5}, {4*kk}, v{g_}")
        a(f"v_xor_b32 v{t5}, v{t5}, v{t4}")
        a(f"v_lshl_add_u32 v{RA[kk]}, v{t5}, 4, v{r_}")
    a(f"""
    v_lshlrev_b32 v{t2}, 12, v{g_}
    v_bfe_u32 v{t4}, v{vLANE}, 2, 2
    v_lshl_add_u32 v{t2}, v{t4}, 7, v{t2}
    v_and_b32 v{t5}, 3, v{vLANE}
    v_lshl_add_u32 v{t2}, v{t5}, 3, v{t2}
    s_lshl_b32 s{o_}, s{gWN}, 10
    s_add_u32 s{o_}, s{o_}, 32768
    v_add_u32 v{t2}, s{o_}, v{t2}
    v_lshrrev_b32 v{t4}, 1, v{t4}
    v_lshlrev_b32 v{t4}, 6, v{t4}
    v_and_b32 v{t5}, 1, v{g_}
    v_lshlrev_b32 v{t5}, 5, v{t5}
    v_or_b32 v{t4}, v{t4}, v{t5}
    """)
    for q in range(4):
        a(f"v_xor_b32 v{t5}, {(q>>1)*64 + (q&1)*32}, v{t4}")
        a(f"v_add_u32 v{RB[q]}, v{t5}, v{t2}")
    a(f"""
    s_mul_i32 s{sKVB}, s{gHEAD}, {HS}
    s_mul_i32 s{o_}, s{gMT}, {8*US}
    s_add_u32 s{sKVB}, s{sKVB}, s{o_}
    s_mul_i32 s{o_}, s{gWM}, {4*US}
    s_add_u32 s{sKVB}, s{sKVB}, s{o_}
    s_add_u32 s{o2_}, s{sWHICH}, 12
    s_lshl_b32 s{o_}, s{gWN}, s{o2_}
    s_add_u32 s{sKVB}, s{sKVB}, s{o_}
    s_mul_i32 s{o_}, s{sWHICH}, {WS_VF - WS_KF}
    s_add_u32 s{sKVB}, s{sKVB}, s{o_}
    s_add_u32 s{sKVB}, s{sKVB}, {WS_KF}
    s_lshr_b32 s{sKVI}, 8192, s{sWHICH}
    s_add_u32 s{sKVI}, s{sKVI}, s{sKVB}
    s_lshl_b32 s{sFKV}, s{gHEAD}, 8
    s_lshr_b32 s{o_}, s{gMT}, 2
    s_and_b32 s{o2_}, s{gMT}, 3
    s_lshl_b32 s{o2_}, s{o2_}, 1
    s_or_b32 s{o_}, s{o_}, s{o2_}
    s_cmp_ge_u32 s{o_}, 2
    s_cselect_b32 s{o2_}, 112, 0
    s_add_u32 s{sFKV}, s{sFKV}, s{o2_}
    s_lshl_b32 s{o_}, s{o_}, 3
    s_add_u32 s{sFKV}, s{sFKV}, s{o_}
    s_lshl_b32 s{o_}, s{sWHICH}, 2
    s_add_u32 s{sFKV}, s{sFKV}, s{o_}
    s_add_u32 s{sFKV}, s{sFKV}, {WS_FLG + FL_KV}
    s_lshl_b32 s{sFKVP}, s{sHEAD}, 8
    s_add_u32 s{sFKVP}, s{sFKVP}, {WS_FLG + FL_KV}
    s_cmp_eq_u32 s{sWAVE}, 0
    s_cselect_b32 s{sFKV}, s{sFKV}, {OOB}
    s_cselect_b32 s{sFKVP}, s{sFKVP}, {OOB}
    s_cselect_b32 s{gFL}, s2, {OOB}
    s_cselect_b32 s{gIT}, 0, {OOB}
    """)
    WQ, B1, ST1, N0, STA2, XR1, XR2 = sT+1, sT+2, sT+3, sN, sT+4, sND, sXOF2
    a(f"""
    s_or_b32 s{sQI}, s{sJ}, 8
    s_mul_i32 s{WQ}, s{sHEAD}, {7*32768}
    s_add_u32 s{WQ}, s{WQ}, {WS_WQF}
    s_mov_b32 s{sW0}, s{WQ}
    s_mov_b32 s{XR1}, s{sQI}
    s_mov_b32 s{ST1}, 32768
    s_cmp_eq_u32 s{sQI}, 15
    s_cselect_b32 s{N0}, {OPT['a15']}, 34
    @atomic
    s_cmp_ge_u32 s{sJ}, 8
    s_cbranch_scc1 L_typeA
    s_mov_b32 s{sTYPE}, 2
    s_sub_u32 s{B1}, s{WQ}, {5*32768}
    s_sub_u32 s{XR2}, 15, s{sQI}
    s_lshl_b32 s{sU1}, s{sQI}, 2
    s_sub_u32 s{sU2}, 64, s{sU1}
    s_add_u32 s{sU1}, s{sU1}, 4
    s_sub_u32 s{sU1}, s{sU1}, s{N0}
    s_add_u32 s{STA2}, s{sU1}, 14
    s_add_u32 s{sT+7}, s{STA2}, s{sU2}
    s_branch L_typedone
    """)
    a.label("L_typeA")
    a(f"""
    s_mov_b32 s{sU1}, s{N0}
    s_add_u32 s{sT+7}, s{N0}, 14
    s_mov_b32 s{sU2}, 2
    s_mov_b32 s{N0}, 0
    s_mov_b32 s{STA2}, 100
    s_mov_b32 s{XR2}, 0x4000
    s_mov_b32 s{sTYPE}, 1
    s_mov_b32 s{B1}, {OOB}
    s_cmp_eq_u32 s{sJ}, 15
    s_cbranch_scc1 L_typedone
    s_mov_b32 s{sTYPE}, 0
    s_mul_i32 s{XR1}, s{sHEAD}, 7
    s_add_u32 s{XR1}, s{XR1}, s{sJ}
    s_sub_u32 s{XR1}, s{XR1}, 8
    s_lshr_b32 s{sT}, s{XR1}, 4
    s_and_b32 s{XR1}, s{XR1}, 15
    s_mul_i32 s{sW0}, s{sT}, {7*32768}
    s_add_u32 s{sW0}, s{sW0}, {WS_W1F}
    s_lshl_b32 s{B1}, s{sT}, 15
    s_add_u32 s{B1}, s{B1}, {WS_WFF}
    s_mov_b32 s{ST1}, {184*4096}
    """)
    a.label("L_typedone")
    a("@end")
    tA, tB, tC, tD = GT, GT+1, GT+2, GT+3
    KB, VB = sT+5, sT+6
    a(f"""
    s_mul_i32 s{KB}, s{sHEAD}, {HS}
    s_add_u32 s{VB}, s{KB}, {WS_VF}
    s_add_u32 s{KB}, s{KB}, {WS_KF}
    v_mov_b32 v{vTE}, {OOB}
    """)
    def seg_lin(start, base, stride):
        a(f"v_subrev_u32 v{tA}, {start}, v{vLANE}")
        a(f"v_cmp_gt_u32 vcc, 7, v{tA}")
        a(f"v_mul_u32_u24 v{tB}, {stride}, v{tA}")
        a(f"v_add_u32 v{tB}, s{base}, v{tB}")
        a(f"v_cndmask_b32 v{vTE}, v{vTE}, v{tB}, vcc")
    seg_lin(0, sW0, 32768)
    seg_lin(7, B1, f"s{ST1}")
    a(f"s_lshl_b32 s{sT}, s{sHEAD}, 15")
    a(f"s_add_u32 s{sT}, s{sT}, {WS_WFF + 56*4096}")
    seg_lin(f"s{sT+7}", sT, 184*4096)
    a(f"v_add_u32 v{vTO}, 16384, v{vTE}")
    def seg_att(start, n0, U):
        for tab in (vTO, vTE):
            a(f"v_subrev_u32 v{tA}, {start}, v{vLANE}")
            if n0 is not None: a(f"v_add_u32 v{tB}, s{n0}, v{tA}")
            else: a(f"v_mov_b32 v{tB}, v{tA}")
            a(f"v_mul_u32_u24 v{tB}, {US}, v{tB}")
            if tab == vTO:
                a(f"s_sub_u32 s{sT}, s{U}, 1")
                a(f"v_cmp_eq_u32 vcc, s{sT}, v{tA}")
                a(f"v_add_u32 v{tC}, s{KB}, v{tB}")
                a(f"v_add_u32 v{tC}, {US}, v{tC}")
                a(f"v_add_u32 v{tD}, s{VB}, v{tB}")
            else:
                a(f"v_cmp_eq_u32 vcc, 0, v{tA}")
                a(f"v_add_u32 v{tC}, s{VB}, v{tB}")
                a(f"v_subrev_u32 v{tC}, {US}, v{tC}")
                a(f"v_add_u32 v{tD}, s{KB}, v{tB}")
            a(f"v_cndmask_b32 v{tC}, v{tC}, v{tD}, vcc")
            a(f"v_cmp_gt_u32 vcc, s{U}, v{tA}")
            a("s_nop 1")
            a(f"v_cndmask_b32 v{tab}, v{tab}, v{tC}, vcc")
    seg_att(14, N0, sU1)
    seg_att(f"s{STA2}", None, sU2)
    XO1, XO2 = sXOFF, sXOF2
    a(f"""
    s_lshl_b32 s{sT}, s{sWAVE}, 1
    s_lshl_b32 s{XO1}, s{XR1}, 3
    s_add_u32 s{XO1}, s{XO1}, s{sT}
    s_mul_i32 s{XO1}, s{XO1}, 14336
    s_lshl_b32 s{XO2}, s{XR2}, 3
    s_add_u32 s{XO2}, s{XO2}, s{sT}
    s_mul_i32 s{XO2}, s{XO2}, 14336
    s_lshl_b32 s{sW4K}, s{sWAVE}, 12
    s_mov_b32 s{sCLAMP}, 0x05040100
    s_mov_b32 s{sFIRST}, 0x07060302
    """)
    setup_l = [l.strip() for l in a.lines if l.strip()]
    a = main
    seq = []
    for k, kind in enumerate(GS[-1]):
        m0, so, ins = dma_group(kind, 0)
        seq += [[m0, so, ins[0]]] + [[x] for x in ins[1:]]
        if k == OPT["xpos"]:
            seq += [[f"buffer_load_dwordx4 {ar(SLD+48,4)}, v{GT+11}, {sr(sX,4)}, s{gB1} offen"], [f"buffer_load_dwordx4 {ar(SLD+52,4)}, v{GT+11}, {sr(sX,4)}, s{gB1} offen offset:448 ; @sx"]]
    if OPT["cpf"]: seq += [[f"buffer_load_dwordx4 a[200:203], v{vL16}, {G}, s{gB0} offen"], [f"s_add_u32 s{gB0}, s{gB0}, 131072", f"buffer_load_dwordx4 a[204:207], v{vL16}, {G}, s{gB0} offen"]]
    nowr = ("s_mov", "s_mul_i32", "s_nop", "s_cselect", "s_getpc", "s_cbranch", "s_branch")
    def scc_live(k):
        for l in setup_l[k:]:
            if l.startswith(("s_cselect", "s_cbranch_scc", "s_subb")): return True
            if l.startswith("s_") and not l.startswith(nowr): return False
        return False
    step = len(setup_l) / (len(seq) - 0.5)
    atomic = False; nxt = 0.0
    for k, l in enumerate(setup_l):
        if seq and k >= nxt and not atomic and not scc_live(k) and not l.endswith(":"):
            for x in seq.pop(0): a(x)
            nxt += step
        if l == "@atomic": atomic = True
        elif l == "@end": atomic = False
        else: a(l)
    for g in seq:
        for x in g: a(x)
    print("setup instrs", len(setup_l), "left", len(seq), file=sys.stderr)
    a(f"""
    s_mov_b32 s{sG}, s{sRET}
    s_mov_b32 s{sG+1}, s{sRET+1}
    s_mov_b32 s{sG+2}, {448*8192}
    """)
    if OPT["dbgside"] & 1:
        for r in sD: a(f"s_mov_b32 s{r}, {OOB}")
    if OPT["dbgside"] & 2: a(f"s_mov_b32 s{sXS}, {OOB}")
    if OPT["dbgside"] & 4:
        for r in (vWO, vW12, vSW): a(f"v_mov_b32 v{r}, {OOB}")
    def side_chain():
        c = []
        z = GT+8
        c += [(f"v_mov_b64 {vr(z,2)}, 0", 0), (f"v_mov_b64 {vr(z+2,2)}, 0", 0), (f"buffer_store_dwordx4 {vr(z,4)}, v{vL16}, {WS}, s{sFQ} offen sc1 ; @zst", 1)]
        c.append(("s_waitcnt vmcnt(@since:sx)", 1))
        U = GT; m_, v_, t_, t2_ = GT+16, GT+17, vG1, vPOLL
        for i in range(8):
            c.append((f"v_accvgpr_read_b32 v{t_}, a{SLD+48+i}", 2 if i == 0 else 0))
            c.append((f"v_lshlrev_b32 v{U+2*i}, 16, v{t_}", 0))
            c.append((f"v_and_b32 v{U+2*i+1}, 0xffff0000, v{t_}", 0))
        def red(v):
            r = [(f"v_add_f32_dpp v{v}, v{v}, v{v} row_ror:{sh} row_mask:0xf bank_mask:0xf", 2) for sh in (8, 4, 2)]
            return r + xlane_ops("v_add_f32", v, t2_)
        c.append((f"v_add_f32 v{m_}, v{U}, v{U+1}", 0)); c.append((f"v_add_f32 v{v_}, v{U+2}, v{U+3}", 0))
        for i in range(4, 16, 2):
            c.append((f"v_add_f32 v{m_}, v{m_}, v{U+i}", 0)); c.append((f"v_add_f32 v{v_}, v{v_}, v{U+i+1}", 0))
        c.append((f"v_add_f32 v{m_}, v{m_}, v{v_}", 0))
        c += red(m_)
        c.append((f"v_mul_f32 v{m_}, {f2u(1.0/448):#x}, v{m_}", 0))
        for i in range(16):
            c.append((f"v_sub_f32 v{t_}, v{U+i}, v{m_}", 0))
            c.append((f"v_mul_f32 v{v_}, v{t_}, v{t_}" if i == 0 else f"v_fma_f32 v{v_}, v{t_}, v{t_}, v{v_}", 0))
        c.append((f"v_cndmask_b32 v{v_}, 0, v{v_}, s[{sLN}:{sLN+1}]", 0))
        c += red(v_)
        for x in (f"v_mul_f32 v{v_}, {f2u(1.0/448):#x}, v{v_}", f"v_cvt_pk_bf16_f32 v{t_}, v{m_}, v{v_}", f"v_lshlrev_b32 v{m_}, 16, v{t_}",
                  f"v_and_b32 v{v_}, 0xffff0000, v{t_}", f"v_add_f32 v{v_}, {f2u(1e-5):#x}, v{v_}", f"v_cvt_pk_bf16_f32 v{v_}, v{v_}, v{v_}",
                  f"v_lshlrev_b32 v{v_}, 16, v{v_}", f"v_sqrt_f32 v{v_}, v{v_}"):
            c.append((x, 0))
        c.append((f"v_cvt_pk_bf16_f32 v{v_}, v{v_}, v{v_}", 1))
        c.append((f"v_lshlrev_b32 v{v_}, 16, v{v_}", 0))
        c.append((f"v_rcp_f32 v{v_}, v{v_}", 0))
        for i in range(16): c.append((f"v_sub_f32 v{U+i}, v{U+i}, v{m_}", 1 if i == 0 else 0))
        for i in range(8):
            for x in (f"v_cvt_pk_bf16_f32 v{t_}, v{U+2*i}, v{U+2*i+1}", f"v_lshlrev_b32 v{U+2*i}, 16, v{t_}", f"v_and_b32 v{U+2*i+1}, 0xffff0000, v{t_}",
                      f"v_mul_f32 v{U+2*i}, v{U+2*i}, v{v_}", f"v_mul_f32 v{U+2*i+1}, v{U+2*i+1}, v{v_}", f"v_cvt_pk_bf16_f32 v{U+i}, v{U+2*i}, v{U+2*i+1}"):
                c.append((x, 0))
        c.append((f"buffer_store_dwordx4 {vr(U,4)}, v{vSX}, {WS}, s{sXS} offen sc1", 1))
        c.append((f"v_add_u32 v{vSX}, {7*1024}, v{vSX}", 1))
        c.append((f"buffer_store_dwordx4 {vr(U+4,4)}, v{vSX}, {WS}, s{sXS} offen sc1", 1))
        def relay(rnd, land):
            c.append((f"s_waitcnt vmcnt(@since:sl{rnd})", 1, 0, rnd))
            for h in range(2):
                for e in range(8):
                    c.append((f"v_accvgpr_read_b32 v{GT+e}, a{land+2*e+h}", 2 if e == 0 else 0))
                for jj in range(2):
                    o = GT+8+4*jj
                    for p in range(4):
                        c.append((f"v_perm_b32 v{o+p}, v{GT+2*p+1}, v{GT+2*p}, s{(sCLAMP, sFIRST)[jj]}", 0))
                    if rnd == 1: c.append((f"buffer_store_dwordx4 {vr(o,4)}, v{vL16}, {WS}, s{sD[rnd]} offen offset:{(2*h+jj)*1024} sc1", 1))
                    else:
                        c.append((f"buffer_store_dwordx4 {vr(o,4)}, v{vSF}, {WS}, s{sD[rnd]} offen sc1", 1))
                        c.append((f"v_add_u32 v{vSF}, s{sSTR}, v{vSF}", 1))
        relay(2, SLD+32)
        c.append((f"s_waitcnt vmcnt(@since:sl0)", 1, 0, 0))
        c.append((f"s_mov_b32 s{sHI}, {f2u(QSCALE):#x}", 1))
        for h in range(2):
            for p in range(4):
                t = GT + (p & 1)*4
                c += [(x, 0) for x in (f"v_accvgpr_read_b32 v{t}, a{SLD+4*p+h}", f"v_accvgpr_read_b32 v{t+1}, a{SLD+4*p+2+h}",
                      f"v_lshlrev_b32 v{t+2}, 16, v{t}", f"v_lshlrev_b32 v{t+3}, 16, v{t+1}", f"v_and_b32 v{t}, 0xffff0000, v{t}", f"v_and_b32 v{t+1}, 0xffff0000, v{t+1}")]
                c += [(f"v_mul_f32 v{t+i}, s{sHI}, v{t+i}", 0) for i in range(4)]
                c += [(f"v_cvt_pk_bf16_f32 v{GT+8+p}, v{t+2}, v{t+3}", 0), (f"v_cvt_pk_bf16_f32 v{GT+12+p}, v{t}, v{t+1}", 0)]
            if h == 1: c.append((f"s_add_u32 s{sD[0]}, s{sD[0]}, 4096", 1))
            for jj in range(2):
                c.append((f"buffer_store_dwordx4 {vr(GT+8+4*jj,4)}, v{vL16}, {WS}, s{sD[0]} offen offset:{jj*2048} sc1 ; @sst", 1))
        relay(1, WOL)
        c += [(x, 0) for x in (f"v_add_u32 v{vDMA}, s{sW4K}, v{vL16}", f"v_mov_b32 v{vRD}, v{vL16}",  f"v_lshrrev_b32 v{GT}, 4, v{vLANE}",
              f"v_lshlrev_b32 v{GT}, 2, v{GT}", f"v_and_b32 v{GT+1}, 15, v{vLANE}", f"v_sub_u32 v{GT}, v{GT+1}, v{GT}")]
        c += [(f"v_cmp_gt_i32 s[{sMASK+2*r}:{sMASK+2*r+1}], {r}, v{GT}", 0) for r in range(4)]
        c = [((x[0].replace(" sc1", OPT["sidesc"]),) + tuple(x[1:]) if x[0].startswith("buffer_store") else x) for x in c]
        if OPT["wbl2"]: c.append(("s_waitcnt vmcnt(4)", 30)); c.append(("buffer_wbl2 sc1", 1))
        return Chain(c, XG4)
    def reads(kk, buf):
        ra = [f"ds_read_b128 {ar(FA(buf,m),4)}, v{RA[kk]} offset:{m*2048}" for m in range(8)]
        rb = [f"ds_read_b64_tr_b16 {ar(FB(buf,n)+2*sec,2)}, v{RB[n&3]} offset:{kk*16384+sec*2048+(n>>2)*512}" for n in range(8) for sec in range(2)]
        out = []
        for i in range(8): out += [ra[i], rb[2*i], rb[2*i+1]]
        return out
    stamp(6, True)
    a(f"s_waitcnt {gwait(-1)}")
    a("s_barrier")
    for r in reads(0, 0): a(r)
    stamp(1)
    a(f"s_cmp_eq_u32 s{sWHICH}, 0")
    a("s_cbranch_scc0 L_gemmV")
    pre_lines = len(a.lines)
    sJT = sT+2
    def xjob(J, key, i, base, early, late, rot=0):
        u, qt = i >> 1, i & 1
        J.add(key, f"s_add_u32 s{sJT}, s{base}, {qt*14336+((u+rot)%14)*1024}", f"buffer_load_dwordx4 {ar(X(qt,u),4)}, v{vL16}, {WS}, s{sJT} offen{ld()} ; @{key}", early, late - (3 - (i & 3))*8)
    def kvjob(J, c, early, late):
        blk = c >> 2
        J.add("kv", f"s_add_u32 s{sJT}, s{sKVI if blk & 1 else sKVB}, {(blk>>1)*US+(c&3)*1024}",
              f"buffer_store_dwordx4 {vr(PK(c),4)}, v{vL16}, {WS}, s{sJT} offen{OPT['kvsc']} ; @kv", early, late)
    pw, t6, t7 = sEV, sCNT, sND
    setup = f"""
    s_lshl_b32 s{pw}, s{sHEAD}, 3
    s_and_b32 s{t6}, s{sJ}, 7
    s_add_u32 s{pw}, s{pw}, s{t6}
    s_lshl_b32 s{pw}, s{pw}, 2
    s_add_u32 s{pw}, s{pw}, s{sWAVE}
    s_mul_i32 s{sQST}, s{pw}, {Q_W}
    s_add_u32 s{sQST}, s{sQST}, {WS_QF}
    s_mul_i32 s{sPT}, s{pw}, {PT_W}
    s_add_u32 s{sPT}, s{sPT}, {WS_PT}
    s_lshl_b32 s{sFQ}, s{pw}, 5
    s_add_u32 s{sFQ}, s{sFQ}, {WS_FLG + FL_Q}
    s_mul_i32 s{t7}, s{sWAVE}, {28*1024}
    s_add_u32 s{t7}, s{t7}, {WS_PS}
    s_mul_i32 s{pw}, s{sHEAD}, 7
    s_add_u32 s{pw}, s{pw}, s{t6}
    s_lshr_b32 s{t6}, s{pw}, 4
    s_and_b32 s{sFSG}, s{pw}, 15
    s_lshl_b32 s{sT+3}, s{t6}, 9
    s_mul_i32 s{sPSG}, s{sFSG}, {PS_R}
    s_add_u32 s{sPSG}, s{sPSG}, s{t7}
    s_mul_i32 s{pw}, s{t6}, {PS_SRC}
    s_add_u32 s{sPSG}, s{sPSG}, s{pw}
    s_add_u32 s{sPSG}, s{sPSG}, {16*PS_SRC}
    s_lshl_b32 s{sFSG}, s{sFSG}, 9
    s_lshl_b32 s{pw}, s{t6}, 2
    s_add_u32 s{sFSG}, s{sFSG}, s{pw}
    s_lshl_b32 s{pw}, s{sWAVE}, 7
    s_add_u32 s{pw}, s{pw}, {WS_FLG + FL_S}
    s_add_u32 s{sFSG}, s{sFSG}, s{pw}
    s_add_u32 s{sFSG}, s{sFSG}, 64
    s_lshr_b32 s{t6}, s{sJ}, 3
    s_mul_i32 s{t6}, s{t6}, 7
    s_xor_b32 s{t6}, s{t6}, 7
    s_xor_b32 s{t6}, s{t6}, s{sJ}
    s_mul_i32 s{sPSS}, s{t6}, {PS_R}
    s_add_u32 s{sPSS}, s{sPSS}, s{t7}
    s_mul_i32 s{t7}, s{sHEAD}, {PS_SRC}
    s_add_u32 s{sPSS}, s{sPSS}, s{t7}
    s_lshl_b32 s{sFSS}, s{t6}, 9
    s_add_u32 s{sFSS}, s{sFSS}, s{pw}
    s_lshl_b32 s{t7}, s{sHEAD}, 2
    s_add_u32 s{sFSS}, s{sFSS}, s{t7}
    s_lshl_b32 s{sND}, s{sQI}, 2
    s_add_u32 s{sND}, s{sND}, s{sWAVE}
    s_lshr_b32 s{sCNT}, s{sU1}, 1
    s_sub_u32 s{sCNT}, s{sCNT}, 1
    s_lshr_b32 s{sEV}, s{sJ}, 3
    """.strip().split("\n")
    setup = [(x.strip(), 1) for x in setup]
    setup.append((f"s_cmp_eq_u32 s{sTYPE}, 1\ns_cselect_b32 s{sQST}, {OOB}, s{sQST}", 1))
    setup.append((f"s_cmp_eq_u32 s{sTYPE}, 0\ns_cselect_b32 s{sFSG}, s{sFSG}, {OOB}", 1))
    setup.append((f"s_cmp_eq_u32 s{sWAVE}, 0\ns_cselect_b32 s{sFQ}, s{sFQ}, {OOB}\ns_cselect_b32 s{sEXP}, 1, 0", 1))
    setup2 = [(x, 1) for x in (f"s_mov_b32 s{sTAU}, 4", f"s_add_u32 s{sM0}, s{sW4K}, {8*16384}", f"s_add_u32 s{sOFFB}, s{sW0}, {8*16384}",
              f"s_mov_b32 s{sRDD}, {-131072}", f"s_mov_b32 s{gMA}, {-131072}", f"s_mov_b32 s{gMB}, 32768", f"s_mov_b32 m0, s{sM0}")]
    for typ in ("K", "V"):
        if typ == "V":
            a.label("L_gemmV")
            for l in a.lines[:pre_lines]:
                if l.strip().startswith("buffer_") or "@merge" in l: a.raw("@ghost " + l.strip())
        def pos(m, n): return m*8+n if typ == "K" else (m >> 1)*16 + n*2 + (m & 1)
        def substep(it, kk):
            groups = GS[2*it+kk]
            buf = kk
            mf = []
            for m in range(8):
                for n in range(8):
                    acc = accreg(pos(m, n))
                    c = "0" if (it == 0 and kk == 0) else acc
                    x, y = ar(FB(buf,n),4), ar(FA(buf,m),4)
                    if typ == "V": x, y = y, x
                    mf.append(f"{MF} {acc}, {x}, {y}, {c}")
            st = Stage(mf)
            st.put(-1, f"s_waitcnt {gwait(2*it+kk)} lgkmcnt(0)")
            st.put(-1, "s_barrier")
            last = (it == 15 and kk == 1)
            g, dg = 1, (OPT["dg2"] if len(groups) == 2 else 4)
            for k, kind in enumerate(groups):
                m0, so, ins = dma_group(kind, k)
                st.put(g-1, m0)
                st.put(g-2, so)
                for i in ins:
                    st.put(g, i); g += dg
            rd = reads(kk ^ 1, buf ^ 1) if not last else [f"ds_read_b128 {ar(FR(f),4)}, v{vRD} offset:{f*1024}" for f in range(12)]
            for i, r in enumerate(rd): st.put(i*2, r)
            if kk == 0 and it < 15:
                d = -131072 if it % 3 == 0 else 65536
                for i, x in enumerate([f"v_add_u32 v{RA[0]}, {d}, v{RA[0]}", f"v_add_u32 v{RA[1]}, {d}, v{RA[1]}"] + [f"v_xor_b32 v{r}, 0x10000, v{r}" for r in RB]):
                    st.put(48 + 2*(i >> 1), x)
            if OPT["fine"]:
                st.put(2, f"{FT()} s[{sFS}:{sFS+1}]")
                st.put(4, f"v_mov_b32_dpp v0, v0 wave_shr:1 row_mask:0xf bank_mask:0xf")
                st.put(46, f"v_writelane_b32 v0, s{sFS}, 0")
            return st
        ch = side_chain()
        J = Jobs()
        for e in range(8):
            t = [x + e*OPT["slstep"] for x in OPT["slt"]]
            J.add("sl1", f"s_mov_b32 s{sJT}, {(e>>2)*16*896}", f"buffer_load_dwordx2 {ar(WOL+2*e,2)}, v{vWO}, {sr(sX,4)}, s{sJT} offen offset:{(e&3)*896}{OPT['ntS']} ; @sl1", t[2], t[2]+64)
            J.add("sl2", f"s_add_u32 s{sJT}, s{sHI}, {(e&3)*3584}" if e >> 2 else f"s_mov_b32 s{sJT}, {e*3584}",
                  f"buffer_load_dwordx2 {ar(SLD+32+2*e,2)}, v{vW12}, {sr(sW12,4)}, s{sJT} offen{OPT['ntS']} ; @sl2", t[0], t[0]+64)
            J.add("sl0", f"s_mov_b32 s{sJT}, {e*8192}", f"buffer_load_dwordx2 {ar(SLD+2*e,2)}, v{vSW}, {G}, s{sJT} offen{OPT['ntS']} ; @sl0", t[1], t[1]+64)
        NZ, NZP, NZC, NF, NP, NC = OPT["sync"]
        for i in range(20): xjob(J, "x1", i, XO1, (NC+1)*64 + i*OPT["xstep"], 31*64)
        for b in range(8):
            J.add("bias", None, f"buffer_load_dwordx4 {vr(BIAS+4*b,4)}, v{GT+16}, {G}, s{sT+3} offen offset:{(b>>1)*128+(b&1)*16} ; @bias", 31*64 if b in (2, 3) else 29*64, 31*64+24)
        su = Chain(setup)
        PV = GT+8
        for n in range(31):
            it, kk = n >> 1, n & 1
            st = substep(it, kk)
            if n == 0:
                st.put(62, f"s_load_dwordx2 s[{sX}:{sX+1}], s[0:1], 40")
                st.put(63, f"s_mov_b32 s{sX+2}, {4096*896}")
            if n == NZ-1: st.put(63, "s_waitcnt vmcnt(@since:zst)")
            if n == NZ: st.put(61, f"buffer_store_byte v{vONE}, v{vFLG}, {sr(sDBG,4)}, s{gFL} offen sc1")
            if n == NZP: st.put(61, f"buffer_load_dword v{vPOLL}, v{vL4}, {sr(sDBG,4)}, s{gIT} offen sc1 ; @zp")
            if n == NZC:
                st.put(54, "s_waitcnt vmcnt(@since:zp)")
                st.put(55, f"s_cmp_eq_u32 s{sWAVE}, 0\ns_cselect_b32 s{sT+1}, 0x01010101, 0")
                st.put(56, f"v_cmp_ne_u32 vcc, s{sT+1}, v{vPOLL}")
                st.put(60, f"s_cbranch_vccnz L_zwait{typ}")
                st.put(60, f"L_zok{typ}:")
            if n == NF-1:
                assert not any("@sst" in x[0] for x in ch.items) and NZC < NF
                st.put(63, "s_waitcnt vmcnt(@since:sst)")
                st.put(62, f"s_load_dwordx2 s[{sG}:{sG+1}], s[0:1], 64")
                st.put(59, f"s_mov_b32 s{sG+2}, 3584")
            if n == NF:
                st.put(55, f"s_add_u32 s{gIT}, s{gIT}, {WS_FLG+FL_PREP}")
                st.put(58, f"s_lshl2_add_u32 s{sT+1}, s2, s{gIT}")
                st.put(59+2*kk, f"buffer_store_dword v{vONE}, v{vFLG}, {WS}, s{sT+1} offen sc1")
            if n == NP:
                assert not ch.items
                st.put(61, f"buffer_load_dwordx4 {vr(PV,4)}, v{vL16}, {WS}, s{gIT} offen sc1 ; @prep")
            if n == NC:
                st.put(50, "s_waitcnt vmcnt(@since:prep)")
                st.put(51, f"s_cmp_eq_u32 s{sWAVE}, 0\ns_cselect_b32 s{sT+1}, 1, 0")
                st.put(54, f"v_and_b32 v{PV}, v{PV}, v{PV+1}")
                st.put(54, f"v_and_b32 v{PV+2}, v{PV+2}, v{PV+3}")
                st.put(55, f"v_and_b32 v{PV}, v{PV}, v{PV+2}")
                st.put(55, f"v_cmp_ne_u32 vcc, s{sT+1}, v{PV}")
                st.put(60, f"s_cbranch_vccnz L_prepwait{typ}")
                st.put(60, f"L_prepok{typ}:")
                st.put(56, f"v_lshrrev_b32 v{GT+16}, 4, v{vLANE}")
                st.put(56, f"v_lshlrev_b32 v{GT+16}, 5, v{GT+16}")
            J.place(st, n, 10, XG4)
            if n >= 1 and ch.items:
                full = ch.items
                for k, x in enumerate(full):
                    if len(x) > 3:
                        key = f"sl{x[3]}"
                        if any(j[5] == key for j in J.jobs) or J.at[key] + OPT["sld"] > n*64+63:
                            ch.items = full[:k]; break
                        full[k] = (x[0], x[1], max(0, J.at[key] + OPT["sld"] - n*64), x[3])
                rest = full[len(ch.items):] if ch.items is not full else []
                ch.base = n*64; ch.minD = OPT["smin"]
                ch.fill(st)
                ch.items = ch.items + rest
                if typ == "K": print("substep", n, "chain left", len(ch.items), file=sys.stderr)
            elif n > NC: su.fill(st)
            if n == 28: assert not su.items
            st.emit(a)
        st = substep(15, 1)
        J.place(st, 31, 2, [17, 21]); assert not J.jobs
        SG = [25, 33, 41, 49, 57, 61]
        for c in range(NE): kvjob(J, c, SG[c], SG[c])
        J.place(st, 0, 8, SG); assert not J.jobs
        su = Chain(setup2); su.fill(st, 30); assert not su.items
        slot_of = {pos(m, n): m*8+n for m in range(8) for n in range(8)}
        pk = []
        for c in range(32):
            e = max(slot_of[2*c], slot_of[2*c+1]) + 3
            if 20 <= c < 20+NE: e = max(e, SG[c-20]+2)
            src = []
            for h in range(2):
                p = 2*c+h
                if p < 52: src += [48+4*p+i for i in range(4)]
                else:
                    for i in range(4):
                        pk.append((f"v_accvgpr_read_b32 v{128+(p-52)*4+i}, a{208+4*(p-52)+i}", 0, e)); src.append(128+(p-52)*4+i)
            for i in range(4): pk.append((f"v_cvt_pk_bf16_f32 v{PK(c)+i}, v{src[2*i]}, v{src[2*i+1]}", 0, e))
        pk = Chain(pk); pk.fill(st)
        for c in range(NE):
            w = [g for g, v in st.fill.items() if any(x.startswith(f"v_cvt_pk_bf16_f32 v{PK(c)+3},") for x in v)]
            assert min(w) < SG[c], (c, w)
        st.emit(a)
        a("s_nop 3")
        print("pack tail", len(pk.items), file=sys.stderr)
        pk.flush(a)
        a("s_waitcnt vmcnt(@since:bias) lgkmcnt(8)")
        a(f"s_cmp_eq_u32 s{sTYPE}, 0")
        a("s_cbranch_scc0 L_P1B")
        a("s_branch L_P1A")
    def unpack(nt):
        o = []
        for r in range(4):
            x = 4*r + (nt & 3); src = BIAS + (nt >> 2)*8 + (x >> 1)
            o.append(f"v_and_b32 v{O(nt,1)+r}, 0xffff0000, v{src}" if x & 1 else f"v_lshlrev_b32 v{O(nt,1)+r}, 16, v{src}")
        return o
    def p1_jobs(t0, step, slack=8):
        J = Jobs()
        for c in range(20+NE, 32): kvjob(J, c, 0, XG[c-20-NE])
        for k, c in enumerate(range(NE, 20+NE)): kvjob(J, c, t0+k*step, t0+slack+k*step)
        for i in range(20, 28): xjob(J, f"x1{i>>2}", i, XO1, (i >> 2)*64 - 134, (i >> 2)*64 - 70)
        return J
    def xwait(st, key): st.put(62, f"s_waitcnt vmcnt(@since:{key})")
    def flagjob(J, key, after, soff, delay):
        if key in J.at or any(j[5] in (after, key) for j in J.jobs): return
        t = J.at[after] + delay
        J.add(key, f"s_waitcnt vmcnt(@since:{after})\ns_barrier", f"buffer_store_dword v{vONE}, v{vFLG}, {WS}, s{soff} offen sc1", t, t+8)
    def split_chain(items, st_prev, mk_next, late_of):
        ch = Chain(items); ch.fill(st_prev)
        rest = ch.items
        for k in range(len(rest)+1):
            st = mk_next()
            c2 = Chain([(x[0], x[1]) for x in rest[k:]])
            before = {gg: len(v) for gg, v in st.fill.items()}
            c2.fill(st)
            if c2.items: continue
            where = {}
            for gg, v in st.fill.items():
                for ins in v[before.get(gg, 0):]: where[ins] = gg
            if all(where[x[0]] <= late_of(x[3]) for x in rest[k:]):
                return rest[:k], st
        raise AssertionError
    def emit_mid(mid):
        if mid: a("s_nop 3")
        Chain(mid).flush(a)
        if mid: a("s_nop 1")
    def post_groups(s, scale):
        out = []
        for qt in range(2):
            for p in range(2):
                t = vT + 16 + (qt*2+p)*4
                regs = [PA(s & 1, nt, qt) + 2*p + rr for rr in range(2) for nt in range(4)]
                ops = [f"v_mul_f32 v{r}, v{vRINV[qt]}, v{r}" for r in regs] if scale else []
                ops += [f"v_cvt_pk_bf16_f32 v{t+i}, v{regs[2*i]}, v{regs[2*i+1]}" for i in range(4)]
                out.append((ops, t))
        return out
    def post_store(s, k, t, base):
        return f"s_add_u32 s{sJT}, s{base}, {s*4096+k*1024}", f"buffer_store_dwordx4 {vr(t,4)}, v{vL16}, {WS}, s{sJT} offen sc1 ; @ps"
    def post_place(st, s, scale, base, gaps):
        for k, (ops, t) in enumerate(post_groups(s, scale)):
            pre, ins = post_store(s, k, t, base)
            st.put(gaps[k]-1, pre); st.put(gaps[k], ins)
    def post_sched(st, s, scale, gaps):
        for k, (ops, t) in enumerate(post_groups(s, scale)):
            prev = None
            for x in ops: prev = st.add(x, [prev], 2, gaps[k]-1)
        st.schedule()
    def post_flush(s, scale, base):
        a("s_nop 5")
        for k, (ops, t) in enumerate(post_groups(s, scale)):
            for x in ops: a(x)
            for x in post_store(s, k, t, base): a(x)
    def mk_post(s):
        st = Stage(mf_post(s)); common_fill(st); return st
    def poll_issue(st, g, voff, soff, tag):
        st.put(g, f"buffer_load_dword v{vPOLL}, v{voff}, {WS}, s{soff} offen sc1 ; @{tag}")
    POLLS = []
    def poll_check(st, g, voff, soff, tag, lane0):
        st.put(g, f"s_waitcnt vmcnt(@since:{tag})")
        st.put(g, f"v_cmp_{'eq' if lane0 else 'ne'}_u32 s[{sT+4}:{sT+5}], s{sEXP}, v{vPOLL}")
        st.put(g+2, f"s_cmp_{'eq' if lane0 else 'lg'}_u64 s[{sT+4}:{sT+5}], 0\ns_cbranch_scc1 L_pw_{tag}")
        assert not ({g+1, g+2} & st.scc_busy)
        st.put(g+2, f"L_po_{tag}:")
        st.put(g+2, "s_barrier")
        POLLS.append((tag, voff, soff, lane0))
    def kv2addr(st):
        st.put(2, f"v_min_u32 v{vL4}, 11, v{vLANE}"); st.put(4, f"v_lshlrev_b32 v{vL4}, 2, v{vL4}"); st.put(8, f"v_add_u32 v{vL4}, 128, v{vL4}")
    XG2 = sorted(XG + [3, 11, 19, 27, 43, 51, 59])
    XG3 = sorted(XG + [5, 13, 21, 29, 45, 53, 61])
    merge("L_P1A")
    stamp(2)
    for x in unpack(0): a(x)
    a("s_nop 1")
    J = p1_jobs(64, OPT["kvstep"])
    for s in range(6):
        st = Stage(mf_proj(s, "bias" if s == 0 else None)); common_fill(st)
        flagjob(J, "kvf", "kv", sFKV, OPT["fdelay"])
        J.place(st, s, OPT["cap"])
        if s == 0:
            for nt in range(1, 16):
                e = XG[2*(nt-13)+1]+2 if nt >= 13 else 0
                for x in unpack(nt): st.add(x, [], e, 4*nt-3)
            st.schedule()
        if s >= 4: xwait(st, f"x1{s+1}")
        st.emit(a)
    st = Stage(mf_proj(6)); common_fill(st)
    flagjob(J, "kvf", "kv", sFKV, OPT["fdelay"]); J.place(st, 6, OPT["cap"])
    items = []
    for ud in range(8):
        for qt in range(2):
            regs = [O(2*ud,qt)+i for i in range(4)] + [O(2*ud+1,qt)+i for i in range(4)]
            e = 8*ud+7+3
            for r in regs: items.append((f"v_mul_f32 v{r}, |v{r}|, v{r}", 0, e, ud))
            for i in range(4): items.append((f"v_cvt_pk_bf16_f32 v{regs[i]}, v{regs[2*i]}, v{regs[2*i+1]}", 0, e, ud))
            for i in range(4): items.append((f"v_pk_max_i16 v{regs[i]}, v{regs[i]}, 0", 0, e, ud))
    import copy
    def mk0():
        st = mk_post(0); J2 = copy.deepcopy(J); J2.place(st, 7, OPT["cap"]); assert not J2.jobs; return st
    mid, st0 = split_chain(items, st, mk0, lambda ud: 8*ud-3)
    print("H mid", len(mid), "kv last", J.at["kv"], file=sys.stderr)
    st.emit(a); emit_mid(mid)
    stamp(3)
    J = Jobs()
    for i in range(16):
        J.add("ql", f"s_add_u32 s{sJT}, s{sQST}, {i*1024}", f"buffer_load_dwordx4 {ar(4*i,4)}, v{vL16}, {WS}, s{sJT} offen sc1 ; @ql", 4*64+46, 6*64+36-(15-i)*4)
    for s in range(7):
        st = st0 if s == 0 else mk_post(s)
        if s == 2: poll_issue(st, 3, vL4, sFKVP, "kva"); poll_check(st, 58, vL4, sFKVP, "kva", False)
        if s == 3: poll_issue(st, 51, vFLG, sFQ, "qa"); kv2addr(st)
        if s == 4: poll_check(st, 42, vFLG, sFQ, "qa", True)
        gaps = [9, 25, 41, 57] if s < 6 else [41, 49, 57, 59]
        if s >= 1: post_place(st, s-1, False, sPSG, gaps)
        J.place(st, s, 7, XG2)
        if s >= 1: post_sched(st, s-1, False, gaps)
        st.emit(a)
    assert not J.jobs
    def mk_F(qb, tag, pre=None):
        st = Stage(mf_qk(0, 0, qb, True) + mf_qk(1, 1, qb, True)); common_fill(st)
        if pre: pre(st)
        place_sm(st, 0, 35, 62, tag, ladd=False, first=True)
        st.schedule()
        return st
    def finit():
        return [(f"v_mov_b64 {vr(NEGM(0)+2*i,2)}, 0", 0) for i in range(4)] + [(f"v_mov_b64 {vr(vL[0],2)}, 0", 0),
                (f"v_mov_b32 v{vBIG}, {f2u(-1e30):#x}", 0), (f"s_mov_b32 s{sFIRST}, 1", 1), (f"s_mov_b32 s{sCLAMP}, {f2u(-3e38):#x}", 1)]
    def f_end(tag, nxt, endl):
        a(f"s_cbranch_vccnz L_fchk_{tag}")
        a.label(f"L_fok_{tag}")
        STUBS.append((f"L_fchk_{tag}", "L_fchk", f"L_fok_{tag}"))
        a(f"s_mov_b32 s{sFIRST}, 0")
        a(f"s_mov_b32 s{sCLAMP}, 0")
        a(f"s_cmp_eq_u32 s{sCNT}, 0")
        a(f"s_cbranch_scc1 {endl}")
        if nxt: a(f"s_branch {nxt}")
    a("s_nop 5")
    for ops, t in post_groups(6, False):
        for x in ops: a(x)
    a("s_waitcnt vmcnt(@since:ql)")
    stamp(4)
    def pre_fa1(st):
        post_place(st, 6, False, sPSG, [9, 17, 25, 33])
        poll_issue(st, 1, vL4, sFKVP, "kv2a"); poll_check(st, 58, vL4, sFKVP, "kv2a", False)
    st = mk_F(0, "fa1", pre_fa1)
    c = Chain(finit()); c.fill(st, 0, 30); assert not c.items
    st.emit(a)
    f_end("fa1", "L_s1z0", "L_u2")
    merge("L_P1B")
    stamp(2)
    J = p1_jobs(OPT["kvb0"], OPT["kvstepb"], 200)
    for i in range(28):
        p = i >> 2
        xjob(J, f"x2{p}", i, XO2, max(p+1, 3)*64, (7+p)*64 - 134, 4)
    for i in range(16):
        qt, ud = i & 1, i >> 1
        J.add("qs", f"s_add_u32 s{sJT}, s{sQST}, {(qt*8+ud)*1024}", f"buffer_store_dwordx4 {ar(Q(0,qt,ud),4)}, v{vL16}, {WS}, s{sJT} offen{OPT['kvsc']} ; @qs",
              7*64 if ud < 5 else 8*64, 7*64+20+i*OPT["qstep"])
    def bstage(gs):
        s = gs % 7
        st = Stage(mf_proj(s, "zero" if gs % 7 == 0 else None))
        nod = 3 <= gs <= 7
        common_fill(st, dma=not nod, nd={3: 16, 4: 8, 5: 0}.get(gs), novm=(6 <= gs <= 10), rdl=(gs == 7))
        if gs == 9: poll_issue(st, 3, vL4, sFKVP, "kvb"); poll_check(st, 58, vL4, sFKVP, "kvb", False)
        if gs == 10: kv2addr(st)
        if gs == 1:
            st.put(2, f"s_cmp_eq_u32 s{sJ}, 7\ns_cselect_b32 s{sT+1}, 34, 2")
            st.put(4, f"v_and_b32 v{vT}, 4, v{vLANE}"); st.put(8, f"v_mul_u32_u24 v{vT}, s{sT+1}, v{vT}"); st.put(10, f"v_or_b32 v{vL4}, v{vL4}, v{vT}")
        flagjob(J, "kvf", "kv", sFKV, OPT["fdelay"]); flagjob(J, "qf", "qs", sFQ, 72)
        if nod: J.place(st, gs, OPT["capn"], XG3)
        elif gs == 8: J.place(st, gs, OPT["capq"], XG2)
        else: J.place(st, gs, OPT["capb"])
        if gs in (4, 5): xwait(st, f"x1{gs+1}")
        if 6 <= gs < 13: xwait(st, f"x2{gs-6}")
        return st
    for gs in range(6): bstage(gs).emit(a)
    def q_items(qb):
        items = []; cnt = 0
        for ud in range(8):
            blk = ud >> 1
            for qt in range(2):
                e = 16*blk+15+3
                t = vT + 16 + (cnt % 4)*4; cnt += 1
                for i in range(4):
                    jp = 2*(ud & 1) + (i >> 1); tl = 4*blk + 2*(i & 1)
                    items.append((f"v_cvt_pk_bf16_f32 v{t+i}, v{O(tl,qt)+jp}, v{O(tl+1,qt)+jp}", 0, e, 2*blk))
                for i in range(4): items.append((f"v_accvgpr_write_b32 a{Q(qb,qt,ud)+i}, v{t+i}", 0, e, 99 if ud >= 5 else -1))
        return items
    st = bstage(6); st7 = bstage(7)
    mid, st0 = split_chain(q_items(0), st, lambda: copy.deepcopy(st7), lambda ud: 8*ud-1)
    print("E1 mid", len(mid), file=sys.stderr)
    st.emit(a); emit_mid(mid)
    stamp(3)
    st0.emit(a)
    for gs in range(8, 13): bstage(gs).emit(a)
    st = bstage(13)
    assert not J.jobs
    print("B jobs", {k: (v >> 6, v & 63) for k, v in J.at.items()}, file=sys.stderr)
    def mk_fa2():
        STUBS[:] = [x for x in STUBS if "fa2" not in x[0]]
        POLLS[:] = [x for x in POLLS if x[0] != "kv2b"]
        def pre(st): poll_issue(st, 1, vL4, sFKVP, "kv2b"); poll_check(st, 58, vL4, sFKVP, "kv2b", False)
        st = mk_F(0, "fa2", pre); c = Chain(finit()); c.fill(st, 0, 30); return st
    mid, st0 = split_chain(q_items(128), st, mk_fa2, lambda ud: 60)
    print("E2 mid", len(mid), file=sys.stderr)
    st.emit(a); emit_mid(mid)
    stamp(4)
    st0.emit(a)
    f_end("fa2", None, "L_u2")
    def steady(b, qb, tag, czero=False):
        st = Stage(mf_pv(0, b^1, czero) + mf_qk(1, b^1, qb)); common_fill(st)
        if b == 0:
            st.put(56, f"s_sub_u32 s{sCNT}, s{sCNT}, 1")
            st.put(58, f"s_cmp_lg_u32 s{sCNT}, s{sEV}")
            st.scc_busy |= set(range(58, 64))
        if tag == "z0":
            st.put(56, "s_waitcnt vmcnt(11)")
            st.put(57, f"buffer_store_dword v{vONE}, v{vFLG}, {WS}, s{sFSG} offen sc1")
        place_sm(st, b, 0, 62, tag); st.schedule()
        st.emit(a)
        a(f"s_cbranch_vccnz L_dorare_{tag}")
        a.label(f"L_norare_{tag}")
        STUBS.append((f"L_dorare_{tag}", f"L_rare{b}", f"L_norare_{tag}"))
    def loop(qb, n):
        merge(f"L_s1z{n}")
        steady(1, qb, f"z{n}", True)
        a(f"s_branch L_mid{n}")
        merge(f"L_steady{n}", True)
        steady(1, qb, f"s1{n}")
        merge(f"L_mid{n}")
        steady(0, qb, f"s0{n}")
        a(f"s_cbranch_scc1 L_steady{n}")
    loop(0, 0)
    a(f"s_cmp_eq_u32 s{sCNT}, 0")
    a("s_cbranch_scc1 L_end0")
    a(f"""
    s_add_u32 s{sFQ}, s{sFQ}, {FL_P - FL_Q}
    s_nop 0
    buffer_load_dword v{vPOLL}, v{vFLG}, {WS}, s{sFQ} offen sc1
    s_mov_b32 s{sEV}, 0
    s_branch L_steady0
    """)
    a.label("L_u2")
    for i in range(64): a(f"v_mov_b64 {vr(O0+2*i,2)}, 0")
    merge("L_end0")
    a(f"s_cmp_eq_u32 s{sTYPE}, 2")
    a("s_cbranch_scc1 L_lpack")
    a(f"""
    s_waitcnt vmcnt(16)
    v_cmp_ne_u32 vcc, s{sEXP}, v{vPOLL}
    s_add_u32 s{sT+3}, s{sPT}, 16384
    s_nop 0
    s_bitcmp1_b32 vcc_lo, 0
    s_cbranch_scc1 L_pw_pt
    """)
    a.label("L_po_pt")
    a("s_barrier")
    POLLS.append(("pt", vFLG, sFQ, True))
    a(f"buffer_load_dwordx4 {vr(vSTB,4)}, v{vL16}, {WS}, s{sT+3} offen sc1")
    for i in range(16):
        if i % 4 == 0: a(f"s_add_u32 s{sT+3}, s{sPT}, {i*1024}")
        a(f"buffer_load_dwordx4 {ar(128+4*i,4)}, v{vL16}, {WS}, s{sT+3} offen offset:{(i&3)*1024} sc1 ; @ptl")
    def pack_items(e0, step):
        items = []
        for ud in range(8):
            for qt in range(2):
                regs = [O(2*ud,qt)+i for i in range(4)] + [O(2*ud+1,qt)+i for i in range(4)]
                for i in range(4): items.append((f"v_cvt_pk_bf16_f32 v{regs[i]}, v{regs[2*i]}, v{regs[2*i+1]}", 0, e0+step*ud, ud))
        return items
    def mk_L(tag):
        st = Stage(mf_pv(0, 0) + mf_pv(1, 1)); common_fill(st)
        place_sm(st, 1, 0, 30, tag); st.schedule()
        st.put_post(31, f"s_cbranch_vccnz L_dorare_{tag}")
        st.put_post(31, f"L_norare_{tag}:")
        STUBS.append((f"L_dorare_{tag}", "L_rare1", f"L_norare_{tag}"))
        st.put(32, f"v_add_f32 v{vL[0]}, v{vL[0]}, v{vSUM[0][0]}")
        st.put(34, f"v_add_f32 v{vL[1]}, v{vL[1]}, v{vSUM[1][0]}")
        return st
    st = mk_L("ln")
    c = [(f"v_bfe_u32 v{vT+20}, v{vLANE}, 2, 2", 0), (f"v_lshrrev_b32 v{vT+21}, 4, v{vLANE}", 0), (f"v_cmp_eq_u32 s[{sT+4}:{sT+5}], v{vT+20}, v{vT+21}", 0),
         (f"v_and_b32 v{vT+20}, 3, v{vLANE}", 0), (f"v_lshlrev_b32 v{vT+20}, 4, v{vT+20}", 0), (f"v_mov_b32 v{vT+22}, 0x3f80", 0), (f"v_mov_b32 v{vT+23}, 0", 0),
         (f"v_cndmask_b32 v{vT+22}, 0, v{vT+22}, s[{sT+4}:{sT+5}]", 1), (f"v_lshlrev_b64 {vr(vSEL+2,2)}, v{vT+20}, {vr(vT+22,2)}", 0),
         (f"v_mov_b64 {vr(vSEL,2)}, 0", 0), (f"v_mov_b64 {vr(vSEL+4,2)}, 0", 0),
         ("s_waitcnt vmcnt(@since:ptl)", 1, 55),
         (f"v_cmp_neq_f32 vcc, v{NEGM(0)}, v{vSTB}", 1), (f"v_cmp_neq_f32 s[{sT+4}:{sT+5}], v{NEGM(1)}, v{vSTB+1}", 0)]
    c = Chain(c); c.fill(st, 35); assert not c.items
    st.emit(a)
    a(f"s_or_b64 vcc, vcc, s[{sT+4}:{sT+5}]")
    a("s_cbranch_scc1 L_slowcomb")
    a.label("L_comb")
    stamp(5)
    mf = []
    for ud in range(8):
        for h in range(2):
            for qt in range(2):
                d = vr(O(2*ud+h,qt),4)
                mf.append(f"{MF} {d}, {vr(vSEL+2-2*h,4)}, {ar(128+(ud*2+qt)*4,4)}, {d}")
    st = Stage(mf)
    st.put(0, f"v_add_f32 v{vL[0]}, v{vL[0]}, v{vSTB+2}")
    st.put(0, f"v_add_f32 v{vL[1]}, v{vL[1]}, v{vSTB+3}")
    c = Chain(pack_items(6, 4)); c.fill(st, 0, 31)
    st.emit(a)
    a("s_nop 5")
    c.flush(a)
    a("s_branch L_post2")
    merge("L_lpack")
    st = mk_L("lp")
    c = Chain([(f"v_mov_b32 v{vSTAT}, v{NEGM(0)}", 0), (f"v_mov_b32 v{vSTAT+1}, v{NEGM(1)}", 0), (f"v_mov_b64 {vr(vSTAT+2,2)}, {vr(vL[0],2)}", 0)] + pack_items(38, 4))
    c.fill(st, 35)
    st.put(62, f"s_cmp_eq_u32 s{sTYPE}, 2")
    st.emit(a)
    a("s_nop 5")
    print("Lpack tail", len(c.items), file=sys.stderr)
    c.flush(a)
    a("s_cbranch_scc0 L_post2b")
    stamp(5)
    a(f"""
    s_mov_b32 s{sTYPE}, 3
    s_mov_b32 s{sN}, 0
    s_sub_u32 s{sND}, 15, s{sQI}
    s_lshl_b32 s{sND}, s{sND}, 2
    s_add_u32 s{sND}, s{sND}, s{sWAVE}
    s_lshr_b32 s{sCNT}, s{sU2}, 1
    s_sub_u32 s{sCNT}, s{sCNT}, 1
    s_sub_u32 s{sEV}, s{sCNT}, 1
    s_add_u32 s{sFQ}, s{sFQ}, {FL_P - FL_Q}
    s_add_u32 s{sT+3}, s{sPT}, 16384
    buffer_store_dwordx4 {vr(vSTAT,4)}, v{vL16}, {WS}, s{sT+3} offen sc1
    """)
    st = mk_F(128, "fb")
    c = []
    for i in range(16):
        if i % 4 == 0: c.append((f"s_add_u32 s{sT+3}, s{sPT}, {i*1024}", 1))
        c.append((f"buffer_store_dwordx4 {vr(O(2*(i>>1),i&1),4)}, v{vL16}, {WS}, s{sT+3} offen offset:{(i&3)*1024}{OPT['kvsc']}", 1))
    c = Chain(c); c.fill(st)
    c2 = Chain(finit()); c2.fill(st, 0, 30); assert not c2.items
    print("Fb leftover", len(c.items), file=sys.stderr)
    st.emit(a)
    c.flush(a)
    f_end("fb", None, "L_end")
    loop(128, 1)
    a(f"""
    s_cmp_eq_u32 s{sTYPE}, 3
    s_cbranch_scc0 L_lpack
    s_waitcnt vmcnt(16)
    s_barrier
    buffer_store_dword v{vONE}, v{vFLG}, {WS}, s{sFQ} offen sc1
    s_mov_b32 s{sTYPE}, 4
    s_mov_b32 s{sEV}, 0
    s_cmp_eq_u32 s{sCNT}, 0
    s_cbranch_scc1 L_lpack
    s_branch L_steady1
    """)
    a.label("L_post2b")
    merge("L_post2")
    stamp(6)
    a("s_nop 1")
    C0, CO, FP = sU1, sU2, sW0
    XO = [sCNT, sEV]; BO = [sN, sND]
    vXO, vBO, vC1, vFG, vFS = 44, 45, 46, 47, 48
    fs = f"""
    s_load_dwordx2 s[{sSA}:{sSA+1}], s[0:1], 0
    s_load_dwordx2 s[{sG}:{sG+1}], s[0:1], 80
    s_load_dwordx2 s[{sSB}:{sSB+1}], s[0:1], 88
    s_mov_b32 s{sSA+2}, {2048*896}
    s_mov_b32 s{sSB+2}, {2048*896}
    s_mov_b32 s{sG+2}, 896
    s_and_b32 s{C0}, s2, 3
    s_mul_i32 s{C0}, s{C0}, 7
    s_lshl_b32 s{sT}, s{sWAVE}, 1
    s_add_u32 s{C0}, s{C0}, s{sT}
    s_lshr_b32 s{sT}, s2, 4
    s_mul_i32 s{CO}, s{sT}, {PS_R}
    s_bfe_u32 s{sT+4}, s2, 0x20002
    s_mul_i32 s{sT+5}, s{sT+4}, {28*1024}
    s_add_u32 s{CO}, s{CO}, s{sT+5}
    s_lshl_b32 s{sT+5}, s{C0}, 10
    s_add_u32 s{CO}, s{CO}, s{sT+5}
    s_add_u32 s{CO}, s{CO}, {WS_PS}
    s_lshr_b32 s{FP}, s2, 2
    s_lshl_b32 s{FP}, s{FP}, 7
    s_add_u32 s{FP}, s{FP}, {WS_FLG + FL_S}
    v_min_u32 v{vFG}, 6, v{vLANE}
    v_lshl_add_u32 v{vFG}, v{vFG}, 2, 64
    v_and_b32 v{vXO}, 15, v{vLANE}
    v_lshlrev_b32 v{vFS}, 2, v{vXO}
    s_lshr_b32 s{sT+5}, s2, 2
    s_lshl_b32 s{sT+5}, s{sT+5}, 5
    v_add_u32 v{vXO}, s{sT+5}, v{vXO}
    v_mul_u32_u24 v{vXO}, 896, v{vXO}
    v_and_b32 v{vBO}, 48, v{vLANE}
    v_lshlrev_b32 v{vBO}, 1, v{vBO}
    v_add_u32 v{vXO}, v{vXO}, v{vBO}
    """
    for k in range(2):
        fs += f"""
        s_add_u32 s{sT}, s{C0}, {k}
        s_lshr_b32 s{sT+4}, s{sT}, 2
        s_lshl_b32 s{BO[k]}, s{sT+4}, 7
        s_and_b32 s{sT+4}, s{sT}, 1
        s_lshl_b32 s{sT+4}, s{sT+4}, 4
        s_add_u32 s{BO[k]}, s{BO[k]}, s{sT+4}
        s_bfe_u32 s{sT+4}, s{sT}, 0x10001
        s_mul_i32 s{XO[k]}, s{sT+4}, {16*896}
        s_add_u32 s{XO[k]}, s{XO[k]}, s{BO[k]}
        """
    fs = [(x.strip(), 1) for x in fs.split("\n") if x.strip()]
    fs.append((f"s_cmp_eq_u32 s{sWAVE}, 3\ns_cselect_b32 s{XO[1]}, {OOB}, s{XO[1]}\ns_cselect_b32 s{sT+4}, {OOB}, 0", 1))
    fs.append((f"v_add_u32 v{vC1}, s{sT+4}, v{vL16}", 1))
    fs.append((f"s_cmp_eq_u32 s{sWAVE}, 0\ns_cselect_b32 s{FP}, s{FP}, {OOB}", 1))
    fs = Chain(fs)
    J = Jobs()
    GL = 128
    for k in range(2):
        J.add("gl", None, f"buffer_load_dwordx4 {ar(GL+56+4*k,4)}, v{vXO}, {sr(sSA,4)}, s{XO[k]} offen", 3*64, 7*64)
        J.add("gl", None, f"buffer_load_dwordx4 {ar(GL+64+4*k,4)}, v{vBO}, {G}, s{BO[k]} offen", 3*64, 7*64)
    for n in range(7):
        for k in range(2):
            J.add("gl", f"s_add_u32 s{sJT}, s{CO}, {(16+n)*PS_SRC}", f"buffer_load_dwordx4 {ar(GL+n*8+4*k,4)}, v{(vL16, vC1)[k]}, {WS}, s{sJT} offen offset:{k*1024} sc1 ; @gl", 4*64, 7*64)
    for s in range(7):
        st = Stage(mf_post(s)); common_fill(st, dma=(s < 3), nd=(None, None, None, 16, 8, 0, 0)[s], last=(s == 6))
        if s == 0:
            c = xlane_ops("v_add_f32", vL[0], vT) + xlane_ops("v_add_f32", vL[1], vT) + [(f"v_rcp_f32 v{vRINV[0]}, v{vL[0]}", 0), (f"v_rcp_f32 v{vRINV[1]}, v{vL[1]}", 1)]
            c = Chain(c); c.fill(st); assert not c.items
            fs.fill(st)
        else:
            gaps = [17, 33, 49, 57]
            post_place(st, s-1, True, sPSS, gaps)
            if s == 2: st.put(60, "s_waitcnt lgkmcnt(0)")
            if s == 2: poll_issue(st, 41, vFG, FP, "gf")
            if s == 3: poll_check(st, 58, vFG, FP, "gf", False)
            J.place(st, s, 7, [1, 9, 13, 25, 29, 41, 45, 61])
            post_sched(st, s-1, True, gaps)
            fs.fill(st)
            if s == 1: assert not fs.items
        st.emit(a)
    assert not J.jobs
    post_flush(6, True, sPSS)
    stamp(7)
    a(f"s_mov_b32 s{sT+4}, 0x00003f80")
    a(f"s_mov_b32 s{sT+5}, 0x3f800000")
    a(f"s_mov_b32 s{sT+6}, 0xffff0000")
    a(f"s_mov_b32 s{sT+7}, {f2u(-1.4426950408889634):#x}")
    LB = 128; TB = 64
    XB, BB = TB+56, 52
    GA, SA_ = 12, 28
    a("s_waitcnt vmcnt(@since:gl)")
    for i in range(64): a(f"v_accvgpr_read_b32 v{TB+i}, a{GL+i}")
    for i in range(8): a(f"v_accvgpr_read_b32 v{BB+i}, a{GL+64+i}")
    def accum(base, acc, first):
        for i in range(8):
            r = base+i
            if first:
                a(f"v_lshlrev_b32 v{acc+2*i}, 16, v{r}"); a(f"v_and_b32 v{acc+2*i+1}, s{sT+6}, v{r}")
            else:
                a(f"v_dot2_f32_bf16 v{acc+2*i}, v{r}, s{sT+4}, v{acc+2*i}"); a(f"v_dot2_f32_bf16 v{acc+2*i+1}, v{r}, s{sT+5}, v{acc+2*i+1}")
    def rnd_pair(r0, r1, t):
        a(f"v_cvt_pk_bf16_f32 v{t}, v{r0}, v{r1}")
        a(f"v_lshlrev_b32 v{r0}, 16, v{t}")
        a(f"v_and_b32 v{r1}, s{sT+6}, v{t}")
    for n in range(7): accum(TB+n*8, GA, n == 0)
    a("s_waitcnt vmcnt(0)")
    a(f"buffer_store_dword v{vONE}, v{vFLG}, {WS}, s{sFSS} offen sc1")
    a("s_nop 0")
    T1, T2, T3 = 2, 3, 4
    for i in range(8):
        g0, g1 = GA+2*i, GA+2*i+1
        rnd_pair(g0, g1, T1)
        a(f"v_lshlrev_b32 v{T2}, 16, v{BB+i}")
        a(f"v_and_b32 v{T3}, s{sT+6}, v{BB+i}")
        a(f"v_add_f32 v{g0}, v{g0}, v{T2}")
        a(f"v_add_f32 v{g1}, v{g1}, v{T3}")
        rnd_pair(g0, g1, T1)
        a(f"v_mul_f32 v{T2}, s{sT+7}, v{g0}")
        a(f"v_mul_f32 v{T3}, s{sT+7}, v{g1}")
        a(f"v_exp_f32 v{T2}, v{T2}")
        a(f"v_exp_f32 v{T3}, v{T3}")
        a("s_nop 0")
        a(f"v_add_f32 v{T2}, 1.0, v{T2}")
        a(f"v_add_f32 v{T3}, 1.0, v{T3}")
        a(f"v_rcp_f32 v{T2}, v{T2}")
        a(f"v_rcp_f32 v{T3}, v{T3}")
        a("s_nop 0")
        a(f"v_mul_f32 v{g0}, v{g0}, v{T2}")
        a(f"v_mul_f32 v{g1}, v{g1}, v{T3}")
        rnd_pair(g0, g1, T1)
    a(f"s_mov_b32 s{sT+1}, 0")
    a(f"s_cmp_lg_u32 s{sWAVE}, 0")
    a("s_cbranch_scc1 L_fgo")
    a.label("L_fpoll")
    a(f"""
    buffer_load_dword v{vPOLL}, v{vFS}, {WS}, s{FP} offen sc1
    s_add_u32 s{sT+1}, s{sT+1}, 1
    s_waitcnt vmcnt(0)
    v_cmp_ne_u32 vcc, 1, v{vPOLL}
    s_cmp_lt_u32 s{sT+1}, 0x10000
    s_cbranch_vccz L_fgo
    s_sleep {OPT['fsleep']}
    s_cbranch_scc1 L_fpoll
    """)
    a.label("L_fgo")
    a("s_barrier")
    stamp(8)
    for n in range(16):
        a(f"s_add_u32 s{sT}, s{CO}, {n*PS_SRC}")
        a(f"buffer_load_dwordx4 {vr(LB+n*8,4)}, v{vL16}, {WS}, s{sT} offen sc1")
        a(f"buffer_load_dwordx4 {vr(LB+n*8+4,4)}, v{vC1}, {WS}, s{sT} offen offset:1024 sc1")
    for n in range(16):
        a(f"s_waitcnt vmcnt({2*(15-n)})")
        accum(LB+n*8, SA_, n == 0)
    a("s_nop 2")
    for i in range(8):
        g0, g1, s0, s1 = GA+2*i, GA+2*i+1, SA_+2*i, SA_+2*i+1
        rnd_pair(s0, s1, T1)
        a(f"v_mul_f32 v{g0}, v{g0}, v{s0}")
        a(f"v_mul_f32 v{g1}, v{g1}, v{s1}")
        rnd_pair(g0, g1, T1)
        a(f"v_lshlrev_b32 v{T2}, 16, v{XB+i}")
        a(f"v_and_b32 v{T3}, s{sT+6}, v{XB+i}")
        a(f"v_add_f32 v{g0}, v{g0}, v{T2}")
        a(f"v_add_f32 v{g1}, v{g1}, v{T3}")
        a(f"v_cvt_pk_bf16_f32 v{LB+i}, v{g0}, v{g1}")
        if i % 4 == 3: a(f"buffer_store_dwordx4 {vr(LB+i-3,4)}, v{vXO}, {sr(sSB,4)}, s{XO[i>>2]} offen")
    if stamps:
        a("s_waitcnt vmcnt(0)")
        stamp(9)
        a("s_waitcnt lgkmcnt(0)")
        for i in range(12): a(f"v_mov_b32 v{16+i}, s{streg(min(i,9))}")
        a(f"""
        s_lshl_b32 s{sT+1}, s2, 2
        s_add_u32 s{sT+1}, s{sT+1}, s{sWAVE}
        s_lshl_b32 s{sT+1}, s{sT+1}, 6
        s_add_u32 s{sT+1}, s{sT+1}, {WS_STAMP}
        buffer_store_dwordx4 v[16:19], v{vFLG}, {WS}, s{sT+1} offen
        buffer_store_dwordx4 v[20:23], v{vFLG}, {WS}, s{sT+1} offen offset:16
        buffer_store_dwordx4 v[24:27], v{vFLG}, {WS}, s{sT+1} offen offset:32
        s_sub_u32 s{sT+1}, s{sT+1}, {WS_STAMP}
        s_lshl_b32 s{sT+1}, s{sT+1}, 3
        s_add_u32 s{sT+1}, s{sT+1}, {WS_STAMP + 0x100000}
        v_lshlrev_b32 v2, 2, v{vLANE}
        buffer_store_dword v0, v2, {WS}, s{sT+1} offen
        buffer_store_dword v{vKV}, v2, {WS}, s{sT+1} offen offset:256
        """)
    a.label("L_end")
    a("s_endpgm")
    for typ in ("K", "V"):
        for nm, ok, ldi, red, reg in (("zwait", "zok", f"buffer_load_dword v{vPOLL}, v{vL4}, {sr(sDBG,4)}, 0 offen sc1", "", vPOLL),
                ("prepwait", "prepok", f"buffer_load_dwordx4 {vr(PV,4)}, v{vL16}, {WS}, s{gIT} offen sc1",
                 f"v_and_b32 v{PV}, v{PV}, v{PV+1}\nv_and_b32 v{PV+2}, v{PV+2}, v{PV+3}\nv_and_b32 v{PV}, v{PV}, v{PV+2}", PV)):
            a.label(f"L_{nm}{typ}")
            a(f"s_mov_b32 s{sT+4}, 0")
            a.label(f"L_{nm}2{typ}")
            a(f"""
            s_sleep 4
            {ldi}
            s_add_u32 s{sT+4}, s{sT+4}, 1
            s_waitcnt vmcnt(0)
            {red}
            v_cmp_ne_u32 vcc, s{sT+1}, v{reg}
            s_cmp_ge_u32 s{sT+4}, 0x10000
            s_cbranch_scc1 L_{ok}{typ}
            s_nop 2
            s_cbranch_vccnz L_{nm}2{typ}
            s_branch L_{ok}{typ}
            """)
    for (tag, voff, soff, lane0) in POLLS:
        a.label(f"L_pw_{tag}")
        a(f"s_mov_b32 s{sT+1}, 0")
        a.label(f"L_pw2_{tag}")
        a(f"""
        buffer_load_dword v{vPOLL}, v{voff}, {WS}, s{soff} offen sc1
        s_add_u32 s{sT+1}, s{sT+1}, 1
        s_waitcnt vmcnt(0)
        v_cmp_ne_u32 s[{sT+4}:{sT+5}], 1, v{vPOLL}
        s_cmp_ge_u32 s{sT+1}, 0x10000
        s_cbranch_scc1 L_po_{tag}
        s_sleep {OPT['psleep']}
        """)
        if lane0 is True: a(f"s_bitcmp1_b32 s{sT+4}, 0")
        else: a(f"s_cmp_lg_u64 s[{sT+4}:{sT+5}], 0")
        a(f"s_cbranch_scc1 L_pw2_{tag}")
        a(f"s_branch L_po_{tag}")
    for (lab, sub, back) in STUBS:
        a.label(lab)
        a(f"s_call_b64 s[{sRET}:{sRET+1}], {sub}")
        a(f"s_branch {back}")
    for b in range(2):
        a.label(f"L_mask{b}")
        a("s_nop 7")
        a(f"s_cmp_eq_u32 s{sN}, s{sND}")
        a(f"s_cbranch_scc0 L_maskall{b}")
        for r in range(4):
            a(f"v_cndmask_b32 v{S(b,0,0)+r}, v{S(b,0,0)+r}, v{vBIG}, s[{sMASK+2*r}:{sMASK+2*r+1}]")
            a(f"v_cndmask_b32 v{S(b,1,1)+r}, v{S(b,1,1)+r}, v{vBIG}, s[{sMASK+2*r}:{sMASK+2*r+1}]")
            a(f"v_mov_b32 v{S(b,1,0)+r}, v{vBIG}")
        a(f"s_setpc_b64 s[{sRET}:{sRET+1}]")
        a.label(f"L_maskall{b}")
        for i in range(16): a(f"v_mov_b32 v{S(b,0,0)+i}, v{vBIG}")
        a(f"s_setpc_b64 s[{sRET}:{sRET+1}]")
    a.label("L_fchk")
    hi, lo = f2u(2.0**OPT["thr"]), f2u(2.0**-OPT["thr"])
    a(f"s_add_u32 s{sT+1}, s{sND}, 1")
    a(f"s_cmp_gt_u32 s{sN}, s{sT+1}")
    a("s_cbranch_scc1 L_fret")
    for qt in range(2):
        a(f"v_mov_b32 v{vT+8+qt}, v{vSUM[qt][0]}")
        xlane(a, "v_add_f32", vT+8+qt, vT)
        a(f"v_subrev_u32 v{vT+8+qt}, {lo:#x}, v{vT+8+qt}")
    a(f"v_max_u32 v{vT+8}, v{vT+8}, v{vT+9}")
    a(f"v_cmp_lt_u32 vcc, {hi-lo:#x}, v{vT+8}")
    a("s_nop 4")
    a("s_cbranch_vccnz L_rare0")
    a.label("L_fret")
    a(f"s_setpc_b64 s[{sRET}:{sRET+1}]")
    for b in range(2):
        a.label(f"L_rare{b}")
        a("s_nop 7")
        D = [vT+8, vT+9]; F = [vT+10, vT+11]
        for qt in range(2):
            r0, r1 = S(b,0,qt), S(b,1,qt)
            a(f"v_max3_f32 v{D[qt]}, v{r0}, v{r0+1}, v{r0+2}")
            a(f"v_max3_f32 v{D[qt]}, v{D[qt]}, v{r0+3}, v{r1}")
            a(f"v_max3_f32 v{D[qt]}, v{D[qt]}, v{r1+1}, v{r1+2}")
            a(f"v_max_f32 v{D[qt]}, v{D[qt]}, v{r1+3}")
            xlane(a, "v_max_f32", D[qt], vT)
            a(f"v_max_f32 v{D[qt]}, s{sCLAMP}, v{D[qt]}")
            a(f"v_max_f32 v{F[qt]}, 0, v{D[qt]}")
            a(f"v_exp_f32 v{F[qt]}, -v{F[qt]}")
            for i in range(4): a(f"v_sub_f32 v{NEGM(qt)+i}, v{NEGM(qt)+i}, v{D[qt]}")
            for bb in range(2):
                for kt in range(2):
                    for i in range(4): a(f"v_sub_f32 v{S(bb,kt,qt)+i}, v{S(bb,kt,qt)+i}, v{D[qt]}")
            a(f"v_mul_f32 v{vL[qt]}, v{F[qt]}, v{vL[qt]}")
        for o in sm_ops(b): a(o)
        a(f"s_cmp_eq_u32 s{sFIRST}, 1")
        a(f"s_cbranch_scc1 L_rare_ret{b}")
        for dt in range(16):
            for qt in range(2):
                for i in range(4): a(f"v_mul_f32 v{O(dt,qt)+i}, v{F[qt]}, v{O(dt,qt)+i}")
        a.label(f"L_rare_ret{b}")
        a(f"s_cmp_lg_u32 s{sCNT}, s{sEV}")
        a("s_nop 0")
        a(f"s_setpc_b64 s[{sRET}:{sRET+1}]")
    a.label("L_slowcomb")
    a("s_nop 7")
    wA, wB = [vT+8, vT+9], [vT+10, vT+11]
    for qt in range(2):
        a(f"""
        v_min_f32 v{vT+6}, v{NEGM(qt)}, v{vSTB+qt}
        v_sub_f32 v{wA[qt]}, v{vT+6}, v{NEGM(qt)}
        v_sub_f32 v{wB[qt]}, v{vT+6}, v{vSTB+qt}
        v_exp_f32 v{wA[qt]}, v{wA[qt]}
        v_exp_f32 v{wB[qt]}, v{wB[qt]}
        s_nop 0
        v_mul_f32 v{vL[qt]}, v{wA[qt]}, v{vL[qt]}
        v_mul_f32 v{vSTB+2+qt}, v{wB[qt]}, v{vSTB+2+qt}
        """)
    for dt in range(16):
        for qt in range(2):
            for i in range(4): a(f"v_mul_f32 v{O(dt,qt)+i}, v{wA[qt]}, v{O(dt,qt)+i}")
    for i in range(64):
        qt = (i >> 2) & 1
        a(f"""
        v_accvgpr_read_b32 v{vT}, a{128+i}
        v_lshlrev_b32 v{vT+1}, 16, v{vT}
        v_and_b32 v{vT}, 0xffff0000, v{vT}
        v_mul_f32 v{vT+1}, v{wB[qt]}, v{vT+1}
        v_mul_f32 v{vT}, v{wB[qt]}, v{vT}
        v_cvt_pk_bf16_f32 v{vT}, v{vT+1}, v{vT}
        v_accvgpr_write_b32 a{128+i}, v{vT}
        """)
    a("s_nop 1")
    a("s_branch L_comb")
    a.label("L_codeend")
    lines = []
    for l in a.lines: lines += l.split("\n")
    ghost = [l.startswith("@ghost ") for l in lines]
    lines = [l[7:] if g else l for l, g in zip(lines, ghost)]
    lines = resolve_vm(lines)
    lines = [l.replace("@@buffer", "buffer") for l, g in zip(lines, ghost) if not g]
    errs = check_hazards(lines) + check_scc(lines)
    for e in errs[:30]: print("HAZARD", e, file=sys.stderr)
    lines = [re.sub(r"\s*; @\w+", "", l) for l in lines]
    lines = [l.strip() for l in lines if l.strip()]
    i, j = lines.index("L_gemmV:"), lines.index("L_P1A:")
    k = lines.index("L_zwaitV:"); k2 = lines.index("s_branch L_prepokV") + 1
    assert lines[i-1] == "s_branch L_P1A"
    lines = [".p2align 8"] + lines[i:j] + lines[k:k2] + lines[:i-1] + lines[j:k] + lines[k2:]
    lines = compact(lines)
    return "\n".join(lines) + "\n", kernel_desc(name, 512, 256)

if __name__ == "__main__":
    import ast
    for x in sys.argv[2:]:
        k, v = x.split("=")
        OPT[k] = ast.literal_eval(v)
    NAME = "recurrent_scan__compressed_kv_cla__dense_activation_squared_relu__prompt_kernel"
    body, desc = gen(NAME)
    ref = open("recurrent_scan__compressed_kv_cla__dense_activation_squared_relu__prompt.s.ref").read().split("\n")
    hdr = [l for l in ref if l.startswith(";") and "launch" not in l and "grid=" not in l]
    hdr += ["; @launch grid=(256,1,1) block=(256,1,1) lds=163840", '.amdgcn_target "amdgcn-amd-amdhsa--gfx950"', ".text"]
    txt = "\n".join(hdr) + "\n" + body + '.section .rodata,"a"\n.p2align 6\n' + desc
    open(sys.argv[1], "w").write(txt)
    print(len(txt), "bytes", file=sys.stderr)
```

```python
import sys
from fw import *
from layout2 import *

OPT = dict(enc=-1, ntA="", ntB=" nt", ntS=" nt", chq=1, chp=1, cyc=0, npro=6, gcap=[4, 4, 3], dg2=8, xpos=3, rotm=0, rot=1, sync=[6, 10, 12, 15, 20, 22], xstep=20, wbl2=0, pfk=0, pfd=4, pfo=[0], pfn=2, smin=0, voff=0, dbgside=0, tlb=0, tlbm=0, tlbs=16, flit=9, npeel=7, slt=[100, 260, 780], slstep=16, sld=180, map2=False, kvb0=256, kvstepb=16, psleep=4, prep=1, pst=False, cpf=True, fine=False, touch=False, sc1ld=" sc1", stamps=False, early=[5, 13, 21, 29], late=[37, 45, 53, 61], cap=7, capb=8, capq=9, capn=12, kvstep=9, a15=38, fsleep=2, fdelay=96, qstep=7, wideloop=False, thr=40, kvsc=" sc1", sidesc=" sc1")

vLANE, vDMA, vTE, vTO, vL16, vRD, vPOLL, vFLG, vONE, vL4, vKV = range(1, 12)
DA = [12, 13, 14, 15]; DB = [16, 17, 18, 19]; RA = [20, 21]; RB = [22, 23, 24, 25]
vSW, vSF, vSX, vG1 = 26, 27, 28, 29
GT = 30
vT = 12
BIAS = 12
O0 = 128
def O(dt, qt): return O0 + (dt*2+qt)*4
def S(b, kt, qt): return 64 + b*16 + (kt*2+qt)*4
def P(b, qt): return 96 + b*8 + qt*4
def NEGM(qt): return 112 + qt*4
vL = [120, 121]
vSUM = [[122, 123], [124, 125]]
vBIG = 126
vSTAT = 44
vSEL = 48
vRINV = [54, 55]
vSTB = 56
def accreg(pos): return vr(48+4*pos, 4) if pos < 52 else ar(208+4*(pos-52), 4)
NE = 6
def PK(c): return 48+4*c if c < 20 else (48+4*(c-20) if c < 20+NE else 48+4*(20+c))
def Q(qb, qt, u): return qb + (qt*8+u)*4
def FR(f): return 64 + (f % 16)*4
def X(qt, u): return 128 + (u*2+qt)*4
def FA(b, m): return (64 if b == 0 else 0) + m*4
def FB(b, n): return (64 if b == 0 else 0) + 32 + n*4
WOL = 192
SLD = 128

sWS, sSA, sSB, sG, sDBG = 4, 8, 12, 16, 20
_n = [24]
def sal(n=1, al=1):
    _n[0] = (_n[0] + al - 1)//al*al
    r = _n[0]; _n[0] += n; return r
sWAVE, sHEAD, sJ, sQI, sWHICH = [sal() for _ in range(5)]
gA0, gA1, gB0, gB1, gMA, gMB, gIT, gD, gCNT, gFL = [sal() for _ in range(10)]
sTAU, sM0, sOFFA, sOFFB, sRDD, sRDS, sXOFF, sXOF2, sN, sND = gA0, gA1, gB0, gB1, gD, gCNT, sal(), sal(), sal(), sal()
sCNT, sEV, sCLAMP, sFIRST = sal(), sal(), sal(), sal()
sRET = sal(2, 2)
sMASK = sal(8, 4)
sTYPE, sU1, sU2, sW0 = sal(), sal(), sal(), sal()
sKVB, sKVI = sal(), sal()
sQST, sPT, sPSG, sPSS = sal(), sal(), sal(), sal()
sFKV, sFKVP, sFQ, sFSG, sFSS = [sal() for _ in range(5)]
sT = sal(8, 4)
sLN = sal(2, 2)
sFS = sal(2, 2); sW4K = 3
sPF = sRET; sPD = sT+5; sEXP = gFL
sSTAMP = sal(0, 2)
NSTAMP = (102 - sSTAMP)//2
print("sgpr used", sSTAMP, "stamps", NSTAMP, file=sys.stderr)
WS = sr(sWS, 4)

STUBS = []
def ld(): return OPT["sc1ld"]
def FT(): return "s_memtime" if OPT["cyc"] else "s_memrealtime"

XG = [1, 9, 17, 25, 33, 41, 49, 57]
XG4 = list(range(1, 64, 4))
def common_fill(st, dma=True, nd=None, last=False, novm=False, rdl=False):
    if nd is None: nd = 16 + len(OPT["early"]) + sum(1 for g in OPT["late"] if g < 38)
    for G in range(8):
        g0 = G*8
        Gn = (G+3) % 8
        for i in range(4):
            f = Gn*4+i
            if not (last and G > 4): st.put(g0+2*i, f"ds_read_b128 {ar(FR(f),4)}, v{vRD} offset:{f*1024}")
        if last and G >= 4:
            if G < 7: st.put(g0+6, f"s_waitcnt lgkmcnt({(7, 4, 0)[G-4]})")
        elif G == 4:
            st.put(g0+6, "s_waitcnt lgkmcnt(7)" if novm else f"s_waitcnt vmcnt(@dma:{nd}) lgkmcnt(7)")
            st.put(g0+7, "s_barrier")
            st.put(g0+7, f"v_add_u32 v{vRD}, s{sRDD}, v{vRD}")
        else:
            st.put(g0+6, "s_waitcnt lgkmcnt(7)")
    for i, g in enumerate(OPT["early"] if dma else []):
        st.put(g, f"buffer_load_dwordx4 v{vDMA}, {WS}, s{sOFFB} offen offset:{i*1024}{ld()} lds")
    if dma: st.put(31, f"v_readlane_b32 s{sOFFA}, v{vTO}, s{sTAU}")
    st.put(31, f"s_add_u32 m0, s{sM0}, 16384")
    st.put(34, f"s_add_u32 s{sM0}, s{sM0}, s{sRDD}")
    st.put(36, f"s_cmp_ge_u32 s{sM0}, 131072")
    st.put(38, f"s_cselect_b32 s{sRDD}, s{gMA}, s{gMB}")
    st.put(44, f"s_add_u32 s{sTAU}, s{sTAU}, 1")
    for i, g in enumerate(OPT["late"] if dma else []):
        st.put(g, f"buffer_load_dwordx4 v{vDMA}, {WS}, s{sOFFA} offen offset:{i*1024}{ld()} lds")
    if dma or rdl: st.put(55, f"v_readlane_b32 s{sOFFB}, v{vTE}, s{sTAU}")
    st.put(63, f"s_mov_b32 m0, s{sM0}")
    st.scc_busy |= {36, 37}
    if OPT["fine"]:
        st.put(4, f"{FT()} s[{sFS}:{sFS+1}]")
        st.put(6, f"v_mov_b32_dpp v{vKV}, v{vKV} wave_shr:1 row_mask:0xf bank_mask:0xf")
        st.put(62, f"v_writelane_b32 v{vKV}, s{sFS}, 0")

class Jobs:
    def __init__(self): self.jobs = []; self.at = {}
    def add(self, key, pre, ins, early, late): self.jobs.append((late, len(self.jobs), early, pre, ins, key))
    def place(self, st, s, cap=6, grid=None):
        slots = [g for g in (grid or XG) if not st.hasD(g) and st.free(g) == 2 and st.nS(g) == 0]
        n = 0
        avail = len([j for j in self.jobs if j[2] <= s*64+63])
        k = min(cap, avail, len(slots))
        use = [slots[(i*len(slots))//k] for i in range(k)] if k else []
        for g in slots:
            t = s*64+g
            c = sorted(j for j in self.jobs if j[2] <= t)
            if not c: continue
            j = c[0]
            nxt = [x for x in slots if x > g]
            urgent = j[0] < (s*64+nxt[0] if nxt else (s+1)*64+1)
            if not (urgent or (n < cap and (g in use or len(nxt) < k-n))): continue
            assert t <= j[0] + (24 if j[5][0] == "x" else 0) or j[5] in ("qs", "kvf", "qf") or (j[5] == "kv" and j[2] >= 64), ("job late", j, t)
            if j[3]:
                assert g-1 not in st.scc_busy
                st.put(g-1, j[3])
            st.put(g, j[4]); self.jobs.remove(j); self.at[j[5]] = t; n += 1

def mf_pv(half, pb, czero=False):
    return [f"{MF} {vr(O(dt,qt),4)}, {ar(FR(half*16+dt),4)}, {vr(P(pb,qt),4)}, {'0' if czero else vr(O(dt,qt),4)}"
            for dt in range(16) for qt in range(2)]
def mf_qk(half, sb, qb, czero=False):
    out = []
    for kt in range(2):
        seq = [(u, qt) for u in range(8) for qt in range(2)]
        if OPT["chq"]: seq = [(g*4+u, qt) for g in range(2) for qt in ((0, 1), (1, 0))[g] for u in range(4)]
        for u, qt in seq:
            c = ('0' if czero else vr(NEGM(qt),4)) if u == 0 else vr(S(sb,kt,qt),4)
            out.append(f"{MF} {vr(S(sb,kt,qt),4)}, {ar(FR(half*16+kt*8+u),4)}, {ar(Q(qb,qt,u),4)}, {c}")
    return out
def mf_proj(s, init=None):
    out = []
    for nt in range(16):
        seq = [(0, 0, 1), (1, 0, 0), (1, 1, 1), (0, 1, 0)] if OPT["chp"] else [(0, 0, 1), (0, 1, 1), (1, 0, 0), (1, 1, 0)]
        for uu, qt, first in seq:
            c = vr(O(nt,qt),4)
            if first and init == "zero": c = "0"
            if first and init == "bias": c = vr(O(nt,1),4)
            out.append(f"{MF} {vr(O(nt,qt),4)}, {ar(FR(2*nt+uu),4)}, {ar(X(qt,2*s+uu),4)}, {c}")
    return out
def PA(b, nt, qt): return 64 + (nt*2+qt)*4 if b == 0 else O(2*nt+1, qt)
def mf_post(s):
    out = []
    for f in range(32):
        u, nt = f >> 2, f & 3
        for qt in range(2):
            d = vr(PA(s & 1, nt, qt), 4)
            out.append(f"{MF} {d}, {ar(FR(f),4)}, {vr(O(2*u,qt),4)}, {'0' if u == 0 else d}")
    return out

def sm_ops(b):
    ops = []
    seq = [(kt, qt, rp) for kt in range(2) for qt in range(2) for rp in range(2)]
    pend = []
    for i, (kt, qt, rp) in enumerate(seq):
        t0 = vT + (i % 4)*2
        s0 = S(b,kt,qt) + rp*2
        ops.append(f"v_exp_f32 v{t0}, v{s0}")
        ops += pend[:1]
        ops.append(f"v_exp_f32 v{t0+1}, v{s0+1}")
        ops += pend[1:]
        acc = vSUM[qt][rp]
        if kt == 0: pend = [f"v_add_f32 v{acc}, v{t0}, v{t0+1}"]
        else: pend = [f"v_add_f32 v{acc}, v{acc}, v{t0}", f"v_add_f32 v{acc}, v{acc}, v{t0+1}"]
        pend.append(f"v_cvt_pk_bf16_f32 v{P(b,qt)+kt*2+rp}, v{t0}, v{t0+1}")
    ops.append("s_nop 0")
    ops += pend
    ops += [f"v_add_f32 v{vSUM[0][0]}, v{vSUM[0][0]}, v{vSUM[0][1]}", f"v_add_f32 v{vSUM[1][0]}, v{vSUM[1][0]}, v{vSUM[1][1]}"]
    return ops

def place_sm(st, b, g0, g_end, tag, ladd=True, first=False):
    st.put(g0-1, f"s_cmp_ge_u32 s{sN}, s{sND}")
    st.put(g0, f"s_cbranch_scc1 L_domask_{tag}")
    st.put(g0, f"L_nomask_{tag}:")
    STUBS.append((f"L_domask_{tag}", f"L_mask{b}", f"L_nomask_{tag}"))
    st.put(g0+2 if g0 == 0 else 42, f"s_add_u32 s{sN}, s{sN}, 1")
    st.scc_busy |= {g0-1}
    def add(ins, deps=(), early=0): return st.add(ins, deps, max(early, g0), g_end)
    la = [add(f"v_add_f32 v{vL[q]}, v{vL[q]}, v{vSUM[q][0]}") for q in range(2)] if ladd else []
    seq = [(kt, qt, rp) for kt in range(2) for qt in range(2) for rp in range(2)]
    users = {}; lastacc = {}; NT = 6
    for i, (kt, qt, rp) in enumerate(seq):
        t0 = vT + (i % NT)*2
        s0 = S(b,kt,qt) + rp*2
        war = users.get(i - NT, [])
        e = g0 + (1 if kt == 0 else 3)
        e0 = add(f"v_exp_f32 v{t0}, v{s0}", war, e)
        e1 = add(f"v_exp_f32 v{t0+1}, v{s0+1}", war, e)
        acc = vSUM[qt][rp]
        if kt == 0:
            a0 = add(f"v_add_f32 v{acc}, v{t0}, v{t0+1}", [e0, e1] + la)
            u = [a0]; lastacc[(qt,rp)] = a0
        else:
            a0 = add(f"v_add_f32 v{acc}, v{acc}, v{t0}", [e0, lastacc[(qt,rp)]])
            a1 = add(f"v_add_f32 v{acc}, v{acc}, v{t0+1}", [e1, a0])
            u = [a0, a1]; lastacc[(qt,rp)] = a1
        c = st.add(f"v_cvt_pk_bf16_f32 v{P(b,qt)+kt*2+rp}, v{t0}, v{t0+1}", [e0, e1], g0, g_end-1)
        users[i] = u + [c]
    f0 = add(f"v_add_f32 v{vSUM[0][0]}, v{vSUM[0][0]}, v{vSUM[0][1]}", [lastacc[(0,0)], lastacc[(0,1)]])
    f1 = add(f"v_add_f32 v{vSUM[1][0]}, v{vSUM[1][0]}, v{vSUM[1][1]}", [lastacc[(1,0)], lastacc[(1,1)]])
    hi = f2u(2.0**OPT["thr"])
    if not first:
        mx = add(f"v_max_f32 v{vT+14}, v{vSUM[0][0]}, v{vSUM[1][0]}", [f0, f1])
        add(f"v_cmp_nge_f32 vcc, {hi:#x}, v{vT+14}", [mx])
    else:
        lo = f2u(2.0**-OPT["thr"])
        m0 = add(f"v_subrev_u32 v{vT+14}, {lo:#x}, v{vSUM[0][0]}", [f0])
        m1 = add(f"v_subrev_u32 v{vT+15}, {lo:#x}, v{vSUM[1][0]}", [f1])
        mx = add(f"v_max_u32 v{vT+14}, v{vT+14}, v{vT+15}", [m0, m1])
        add(f"v_cmp_lt_u32 vcc, {hi-lo:#x}, v{vT+14}", [mx])

def xlane_ops(op, v, t1):
    return [(f"v_mov_b32 v{t1}, v{v}", 0), (f"v_permlane16_swap_b32 v{v}, v{t1}", 2), (f"{op} v{v}, v{v}, v{t1}", 1),
            (f"v_mov_b32 v{t1}, v{v}", 0), (f"v_permlane32_swap_b32 v{v}, v{t1}", 2), (f"{op} v{v}, v{v}, v{t1}", 1)]
def xlane(a, op, v, t1):
    for ins, d in xlane_ops(op, v, t1):
        if d: a(f"s_nop {d-1}")
        a(ins)

class Chain:
    def __init__(self, items, grid=None): self.items = list(items); self.lastg = -10; self.grid = grid; self.base = 0; self.lastD = -999; self.minD = 0
    def fill(self, st, g0=0, g1=63):
        g = g0; lastg = -10
        while self.items and g <= g1:
            ins, dist = self.items[0][:2]
            early = self.items[0][2] if len(self.items[0]) > 2 else 0
            c = cls(ins)
            ok = g - lastg >= dist and g >= early and not st.hasD(g)
            if ok and g == lastg and not (c in "VE" and cls(self.last) in "VM"): ok = False
            if ok:
                if c == "S": ok = (st.nS(g) == 0 or st.free(g) >= 1) and not (g in st.scc_busy and not ins.startswith(("s_mov", "s_mul", "s_wait", "s_nop")))
                elif c == "D": ok = st.free(g) == 2 and st.nS(g) == 0 and (self.grid is None or g in self.grid) and self.base + g - self.lastD >= self.minD
                else: ok = st.free(g) >= COST[c]
            if ok:
                st.put(g, ins); self.items.pop(0); lastg = g; self.last = ins
                if c == "D": self.lastD = self.base + g
            else:
                g += 1
    def flush(self, a):
        for it in self.items:
            if it[1]: a(f"s_nop {it[1]-1}")
            a(it[0])
        self.items = []

def gen(name="mega_kernel"):
    a = Asm()
    STUBS.clear()
    stamps = OPT["stamps"]
    nst = [0]
    def stamp_ins():
        i = nst[0]; nst[0] += 1
        assert i < NSTAMP
        return f"s_memrealtime s[{sSTAMP+2*i}:{sSTAMP+2*i+1}]"
    def streg(i): return sSTAMP+2*i if i < NSTAMP else sMASK+2*(i-NSTAMP)
    def stamp(i, p=False):
        if OPT["pst"] and 2 <= i <= 6 and not p: return
        if p and not OPT["pst"]: return
        if stamps: a(f"s_memrealtime s[{streg(i)}:{streg(i)+1}]")
    def merge(lbl, align=False):
        if align: a.raw(".p2align 6")
        a.label(lbl); a.comment("@merge")
    strideA, strideB = 2048, 8192
    a.raw(kernel_header(name))
    a("s_cmp_ge_u32 s2, 256")
    a("s_cbranch_scc0 L_go")
    a("s_endpgm")
    a.label("L_go")
    stamp(0)
    sW12, sX = sMASK, sMASK+4
    gHEAD, gMT, gWM, gWN = sCNT, sEV, sCLAMP, sFIRST
    a(f"""
    s_load_dwordx2 s[{sSA}:{sSA+1}], s[0:1], 8
    s_load_dwordx4 s[{sT}:{sT+3}], s[0:1], 24
    s_load_dwordx2 s[{sWS}:{sWS+1}], s[0:1], 104
    s_load_dwordx2 s[{sX}:{sX+1}], s[0:1], 0
    s_load_dwordx2 s[{sDBG}:{sDBG+1}], s[0:1], 96
    s_load_dwordx2 s[{sW12}:{sW12+1}], s[0:1], 56
    s_load_dwordx2 s[{sRET}:{sRET+1}], s[0:1], 72
    s_load_dwordx2 s[{sT+6}:{sT+7}], s[0:1], 16
    v_and_b32 v{vLANE}, 63, v0
    v_lshrrev_b32 v{GT}, 6, v0
    v_lshlrev_b32 v{vL16}, 4, v{vLANE}
    v_readfirstlane_b32 s{sWAVE}, v{GT}
    s_and_b32 s3, s2, 7
    s_lshl_b32 s3, s3, 1
    s_lshr_b32 s{sJ}, s2, 4
    s_bfe_u32 s{sWHICH}, s2, 0x10003
    s_add_u32 s{sHEAD}, s3, s{sWHICH}
    s_and_b32 s{gHEAD}, s{sJ}, 1
    s_add_u32 s{gHEAD}, s{gHEAD}, s3
    s_bfe_u32 s{gMT}, s2, 0x10005
    s_lshl_b32 s{gMT}, s{gMT}, 2
    s_lshr_b32 s{gWM}, s2, 6
    s_xor_b32 s{gWM}, s{gWM}, 2
    s_or_b32 s{gMT}, s{gMT}, s{gWM}
    """)
    if OPT["map2"]:
        a(f"""
        s_bfe_u32 s{gHEAD}, s2, 0x10005
        s_add_u32 s{gHEAD}, s{gHEAD}, s3
        s_lshl_b32 s{gMT}, s{sWHICH}, 2
        s_bfe_u32 s{gWM}, s2, 0x10004
        s_or_b32 s{gMT}, s{gMT}, s{gWM}
        s_bfe_u32 s{gWM}, s2, 0x10007
        s_xor_b32 s{gWM}, s{gWM}, 1
        s_lshl_b32 s{gWM}, s{gWM}, 1
        s_or_b32 s{gMT}, s{gMT}, s{gWM}
        s_bfe_u32 s{sWHICH}, s2, 0x10006
        """)
    a(f"""
    s_and_b32 s{gWM}, s{sWAVE}, 1
    s_lshr_b32 s{gWN}, s{sWAVE}, 1
    """)
    t2, t3, t4, t5, t6 = GT, GT+1, GT+2, GT+3, GT+4
    a(f"""
    v_lshrrev_b32 v{t2}, 3, v{vLANE}
    s_lshl_b32 s{gA0}, s{gMT}, 8
    s_lshl_b32 s{gA1}, s{sWAVE}, 6
    s_add_u32 s{gA0}, s{gA0}, s{gA1}
    v_add_u32 v{t2}, s{gA0}, v{t2}
    v_lshlrev_b32 v{t2}, 11, v{t2}
    v_and_b32 v{t3}, 7, v{vLANE}
    v_lshrrev_b32 v{t4}, 4, v{vLANE}
    v_xor_b32 v{t5}, v{t3}, v{t4}
    v_lshl_add_u32 v{t5}, v{t5}, 4, v{t2}
    v_xor_b32 v{t6}, 4, v{t4}
    v_xor_b32 v{t6}, v{t3}, v{t6}
    v_lshl_add_u32 v{t6}, v{t6}, 4, v{t2}
    """)
    for jl in range(4):
        a(f"v_add_u32 v{DA[jl]}, {4096 + jl*8*strideA - jl*1024}, v{t5 if (jl & 1) == 0 else t6}")
    a(f"""
    v_bfe_u32 v{t2}, v{vLANE}, 3, 2
    v_lshlrev_b32 v{t3}, 13, v{t2}
    v_lshrrev_b32 v{t4}, 5, v{vLANE}
    v_lshl_add_u32 v{t3}, v{t4}, 7, v{t3}
    v_lshrrev_b32 v{t4}, 1, v{t2}
    v_lshlrev_b32 v{t4}, 2, v{t4}
    v_and_b32 v{t5}, 7, v{vLANE}
    v_xor_b32 v{t4}, v{t4}, v{t5}
    s_lshl_b32 s{gA0}, s{gWM}, 1
    v_xor_b32 v{t4}, s{gA0}, v{t4}
    v_lshl_add_u32 v{t3}, v{t4}, 4, v{t3}
    s_lshl_b32 s{gA0}, s{gHEAD}, 9
    s_lshl_b32 s{gA1}, s{sWAVE}, 16
    s_add_u32 s{gA0}, s{gA0}, s{gA1}
    v_add_u32 v{t3}, s{gA0}, v{t3}
    """)
    for jl in range(4):
        a(f"v_add_u32 v{DB[jl]}, {4096 + (jl>>1)*4*strideB + (jl&1)*256 - jl*1024}, v{t3}")
    a(f"""
    s_mul_i32 s{gA1}, s3, {OPT["rot"]*64}
    s_mul_i32 s{gA0}, s{gMT}, {OPT["rotm"]*128}
    s_add_u32 s{gA1}, s{gA1}, s{gA0}
    s_and_b32 s{gA1}, s{gA1}, 0x7ff
    s_lshl_b32 s{gMA}, s{sWAVE}, 13
    s_lshl_b32 s{gMB}, s{sWAVE}, 12
    s_mov_b32 s{sSA+2}, {4194304+4096}
    s_mov_b32 s{sSA+3}, 0x20000
    s_mov_b32 s{sSB+2}, {8388608+4096}
    s_mov_b32 s{sSB+3}, 0x20000
    @PST2
    s_waitcnt lgkmcnt(0)
    @PST3
    s_sub_u32 s{sSA}, s{sSA}, 4096
    s_subb_u32 s{sSA+1}, s{sSA+1}, 0
    s_cmp_eq_u32 s{sWHICH}, 0
    s_cselect_b32 s{sSB}, s{sT}, s{sT+2}
    s_cselect_b32 s{sSB+1}, s{sT+1}, s{sT+3}
    s_sub_u32 s{sSB}, s{sSB}, 4096
    s_subb_u32 s{sSB+1}, s{sSB+1}, 0
    """)
    for i in (2, 3):
        k = [n for n, l in enumerate(a.lines) if f"@PST{i}" in l][0]
        a.lines[k] = f"s_memrealtime s[{streg(i)}:{streg(i)+1}]" if OPT["pst"] else ""
    MA, MB = 0x107ff, 0x7fffff
    gRA, gRB, gTS = gA1, gCNT, (gA0, sT)
    a(f"s_lshl_b32 s{gRB}, s{gRA}, 12")
    def dma_group(kind, par):
        t = gTS[par & 1]
        if kind[0] == "A":
            _, it, h = kind
            m0 = f"s_add_u32 m0, s{gMA}, {(131072, 0, 65536)[it % 3] + h*4096}"; regs, srd = DA, sSA
            so = f"s_add_u32 s{t}, s{gRA}, {h*32*strideA + it*128}\ns_and_b32 s{t}, s{t}, {MA}"
        elif kind[0] == "B":
            _, it, h = kind
            m0 = f"s_add_u32 m0, s{gMB}, {32768 + (it & 1)*65536 + h*16384}"; regs, srd = DB, sSB
            so = f"s_add_u32 s{t}, s{gRB}, {(it*64 + h*32)*strideB}\ns_and_b32 s{t}, s{t}, {MB}"
        else:
            y = kind[1]
            return f"s_add_u32 m0, s{gMB}, {y*16384}", f"s_add_u32 s{t}, s{sW0}, {y*16384}", \
                   [f"buffer_load_dwordx4 v{vDMA}, {WS}, s{t} offen offset:{i*1024}{ld()} lds ; @gU{y}" for i in range(4)]
        return m0, so, [f"buffer_load_dwordx4 v{regs[jl]}, {sr(srd,4)}, s{t} offen offset:{jl*1024}{OPT['nt' + kind[0]]} lds ; @g{kind[0]}{it}_{h}" for jl in range(4)]
    todo = []
    for it in range(16):
        todo += [(2*it-1, 2*(it-3)+1, ("A", it, 0)), (2*it-1, 2*(it-2), ("B", it, 0)), (2*it-1, 2*(it-3)+1, ("A", it, 1)), (2*it, 2*(it-2)+1, ("B", it, 1))]
    todo += [(31+y, av, ("U", y)) for y, av in enumerate((27, 27, 28, 29, 29, 29, 30, 31))]
    GS = {}; order = []
    for n in range(-1, 32):
        cap = OPT["npro"] if n < 0 else OPT["gcap"][min(n, len(OPT["gcap"])-1)]
        c = sorted([x for x in todo if x[1] <= n], key=lambda x: x[0])[:cap]
        for x in c: todo.remove(x); assert x[0] > n or n < 0, (x, n)
        GS[n] = [x[2] for x in c]; order += GS[n]
    assert not todo
    print("GS", {n: len(v) for n, v in GS.items()}, file=sys.stderr)
    def gtag(k): return f"gU{k[1]}" if k[0] == "U" else f"g{k[0]}{k[1]}_{k[2]}"
    def gwait(n):
        it, kk = (n+1) >> 1, (n+1) & 1
        need = [("U", 0), ("U", 1)] if n == 31 else [("B", it, 1)] if kk else [("A", it, 0), ("A", it, 1), ("B", it, 0)]
        return f"vmcnt(@since:{gtag(max(need, key=order.index))})"
    main = a; a = Asm()
    sWID, u_, nb_, o_, o2_ = sXOFF, sT+1, sT+2, sT+3, sT+4
    sD = [sQST, sPT, sPSG]; sXS = sPSS; sHI = sFSG; sSTR = sFSS
    vWO, vW12 = vRD, vDMA
    G = sr(sG, 4)
    r_, g_, r8 = GT, GT+1, GT+2
    h_, i_ = GT+5, GT+6
    a(f"""
    s_lshl_b32 s{sWID}, s2, 2
    s_add_u32 s{sWID}, s{sWID}, s{sWAVE}
    s_mov_b32 s{sX+2}, {2048*896}
    s_mov_b32 s{sX+3}, 0x20000
    v_and_b32 v{h_}, 1, v{vLANE}
    v_lshrrev_b32 v{i_}, 1, v{vLANE}
    v_mul_u32_u24 v{GT+7}, 896, v{h_}
    v_lshl_add_u32 v{GT+7}, v{i_}, 4, v{GT+7}
    v_cmp_gt_u32 s[{sLN}:{sLN+1}], 28, v{i_}
    v_mov_b32 v{GT+8}, {OOB}
    s_mul_i32 s{gB1}, s{sWID}, 1792
    v_cndmask_b32 v{GT+11}, v{GT+8}, v{GT+7}, s[{sLN}:{sLN+1}]
    s_getpc_b64 s[{sG}:{sG+1}]
    L_pc:
    s_sub_u32 s{sG}, s{sG}, L_pc - L_gemmV
    s_subb_u32 s{sG+1}, s{sG+1}, 0
    s_mov_b32 s{sG+2}, L_codeend - L_gemmV
    s_mov_b32 s{sG+3}, 0x20000
    s_lshr_b32 s{gB0}, s2, 3
    s_lshl_b32 s{gB0}, s{gB0}, 2
    s_add_u32 s{gB0}, s{gB0}, s{sWAVE}
    s_lshl_b32 s{gB0}, s{gB0}, 10
    s_mov_b32 s{sWS+2}, {WS_SIZE}
    s_mov_b32 s{sWS+3}, 0x20000
    v_and_b32 v{r_}, 15, v{vLANE}
    v_lshrrev_b32 v{g_}, 4, v{vLANE}
    v_lshlrev_b32 v{r8}, 3, v{r_}
    """)
    def natdest(dst, base):
        a(f"""
        s_lshr_b32 s{o_}, s{nb_}, 2
        s_mul_i32 s{o_}, s{o_}, {7*32768}
        s_lshr_b32 s{o2_}, s{u_}, 1
        s_lshl_b32 s{o2_}, s{o2_}, 15
        s_add_u32 s{o_}, s{o_}, s{o2_}
        s_and_b32 s{o2_}, s{nb_}, 3
        s_lshl_b32 s{o2_}, s{o2_}, 13
        s_add_u32 s{o_}, s{o_}, s{o2_}
        s_and_b32 s{o2_}, s{u_}, 1
        s_lshl_b32 s{o2_}, s{o2_}, 10
        s_add_u32 s{o_}, s{o_}, s{o2_}
        s_add_u32 s{dst}, s{o_}, {base}
        """)
    def div7(idx):
        a(f"""
        s_mul_i32 s{u_}, s{idx}, 9363
        s_lshr_b32 s{u_}, s{u_}, 16
        s_mul_i32 s{nb_}, s{u_}, 7
        s_sub_u32 s{nb_}, s{idx}, s{nb_}
        """)
    def ffdest(dst, base, lim, idx=sWID):
        a(f"""
        s_mul_i32 s{o_}, s{nb_}, {184*4096}
        s_lshl_b32 s{o2_}, s{u_}, 12
        s_add_u32 s{o_}, s{o_}, s{o2_}
        s_add_u32 s{dst}, s{o_}, {base}
        s_cmp_lt_u32 s{idx}, {lim}
        s_cselect_b32 s{dst}, s{dst}, {OOB}
        """)
    a(f"""
    s_mov_b32 s{sDBG+2}, 16
    s_mov_b32 s{sDBG+3}, 0x20000
    v_mul_u32_u24 v{vWO}, {4*896}, v{g_}
    v_add_u32 v{vWO}, v{vWO}, v{r8}
    s_lshl_b32 s{gD}, s{gMT}, 1
    s_add_u32 s{gD}, s{gD}, s{sWHICH}
    s_lshl_b32 s{gD}, s{gD}, 2
    s_add_u32 s{gD}, s{gD}, s{sWAVE}
    """)
    div7(gD)
    a(f"""
    s_lshl_b32 s{o_}, s{gHEAD}, 3
    s_add_u32 s{u_}, s{u_}, s{o_}
    s_mul_i32 s{o_}, s{u_}, {32*896}
    s_lshl_b32 s{o2_}, s{nb_}, 7
    s_add_u32 s{o_}, s{o_}, s{o2_}
    s_cmp_lt_u32 s{gD}, 56
    s_cselect_b32 s{o_}, s{o_}, {OOB}
    v_add_u32 v{vWO}, s{o_}, v{vWO}
    """)
    ffdest(sD[1], WS_WFF + 56*4096, 56, gD)
    a(f"""
    s_lshr_b32 s{u_}, s{sWID}, 2
    s_mul_i32 s{u_}, s{u_}, 9363
    s_lshr_b32 s{u_}, s{u_}, 16
    s_mul_i32 s{nb_}, s{u_}, 28
    s_sub_u32 s{nb_}, s{sWID}, s{nb_}
    s_mul_i32 s{sHI}, s{u_}, {32*3584}
    s_lshl_b32 s{o2_}, s{nb_}, 7
    s_add_u32 s{sHI}, s{sHI}, s{o2_}
    """)
    natdest(sSTR, WS_W1F)
    a(f"s_sub_u32 s{sT+5}, s{sWID}, 392")
    a(f"s_and_b32 s{sT+5}, s{sT+5}, 1023")
    div7(sT+5)
    ffdest(sD[2], WS_WFF, 784)
    a(f"""
    s_lshr_b32 s{o_}, s{u_}, 1
    s_mul_i32 s{o_}, s{o_}, {64*896}
    s_and_b32 s{o2_}, s{u_}, 1
    s_mul_i32 s{o2_}, s{o2_}, {2*896}
    s_add_u32 s{o_}, s{o_}, s{o2_}
    s_lshl_b32 s{o2_}, s{nb_}, 7
    s_add_u32 s{o_}, s{o_}, s{o2_}
    s_mov_b32 s{sW12+2}, {448*3584}
    s_mov_b32 s{sW12+3}, 0x20000
    s_cmp_lt_u32 s{sWID}, 392
    s_cselect_b32 s{sW12}, s{sW12}, s{sRET}
    s_cselect_b32 s{sW12+1}, s{sW12+1}, s{sRET+1}
    s_cselect_b32 s{o_}, s{sHI}, s{o_}
    s_cselect_b32 s{sD[2]}, s{sSTR}, s{sD[2]}
    s_cselect_b32 s{sHI}, 16, 1
    s_cselect_b32 s{sSTR}, 2, 1
    s_mul_i32 s{sHI}, s{sHI}, 896
    s_mul_i32 s{o2_}, s{sSTR}, {16*896}
    s_lshl_b32 s{sSTR}, s{sSTR}, 10
    v_mul_u32_u24 v{vW12}, s{o2_}, v{g_}
    v_add3_u32 v{vW12}, v{vW12}, v{r8}, s{o_}
    v_lshrrev_b32 v{GT+9}, 2, v{i_}
    v_lshlrev_b32 v{GT+9}, 10, v{GT+9}
    v_and_b32 v{GT+10}, 3, v{i_}
    v_lshl_add_u32 v{GT+9}, v{GT+10}, 8, v{GT+9}
    v_lshl_add_u32 v{GT+9}, v{h_}, 4, v{GT+9}
    v_cndmask_b32 v{vSX}, v{GT+8}, v{GT+9}, s[{sLN}:{sLN+1}]
    s_lshr_b32 s{o_}, s{sWID}, 3
    s_mul_i32 s{o_}, s{o_}, 14336
    s_and_b32 s{o2_}, s{sWID}, 7
    s_lshl_b32 s{o2_}, s{o2_}, 5
    s_add_u32 s{sXS}, s{o_}, s{o2_}
    s_lshl_b32 s{sFQ}, s{sWID}, 10
    s_add_u32 s{sFQ}, s{sFQ}, {WS_FLG}
    s_cmp_lt_u32 s{sWID}, 32
    s_cselect_b32 s{sFQ}, s{sFQ}, {OOB}
    v_cmp_eq_u32 vcc, 0, v{vLANE}
    v_mov_b32 v{vONE}, 1
    v_and_b32 v{vL4}, 3, v{vLANE}
    v_lshlrev_b32 v{vL4}, 2, v{vL4}
    v_cndmask_b32 v{vFLG}, v{GT+8}, v{vLANE}, vcc
    s_mov_b32 s{sRET}, s{sT+6}
    s_mov_b32 s{sRET+1}, s{sT+7}
    s_lshr_b32 s{u_}, s{gD}, 2
    s_lshl_b32 s{nb_}, s{gHEAD}, 2
    s_add_u32 s{nb_}, s{nb_}, s{sWAVE}
    s_lshl_b32 s{o_}, s{u_}, 18
    s_lshl_b32 s{o2_}, s{nb_}, 7
    s_add_u32 s{o_}, s{o_}, s{o2_}
    v_and_b32 v{vSW}, 3, v{vLANE}
    v_lshlrev_b32 v{vSW}, 5, v{vSW}
    v_bfe_u32 v{GT+9}, v{vLANE}, 2, 2
    v_lshl_add_u32 v{vSW}, v{GT+9}, 3, v{vSW}
    v_lshl_add_u32 v{vSW}, v{g_}, 16, v{vSW}
    v_add_u32 v{vSW}, s{o_}, v{vSW}
    v_mov_b32 v{vSF}, v{vL16}
    """)
    natdest(sD[0], WS_WQF)
    a(f"s_cmp_lt_u32 s{gD}, 56")
    a(f"s_cselect_b32 s{sD[0]}, s{sD[0]}, {OOB}")
    assert WS_XF == 0
    a(f"""
    v_bfe_u32 v{t4}, v{vLANE}, 1, 3
    s_lshl_b32 s{o_}, s{gWM}, 14
    s_add_u32 s{o_}, s{o_}, 131072
    v_lshlrev_b32 v{r_}, 7, v{r_}
    v_add_u32 v{r_}, s{o_}, v{r_}
    """)
    for kk in range(2):
        a(f"v_or_b32 v{t5}, {4*kk}, v{g_}")
        a(f"v_xor_b32 v{t5}, v{t5}, v{t4}")
        a(f"v_lshl_add_u32 v{RA[kk]}, v{t5}, 4, v{r_}")
    a(f"""
    v_lshlrev_b32 v{t2}, 12, v{g_}
    v_bfe_u32 v{t4}, v{vLANE}, 2, 2
    v_lshl_add_u32 v{t2}, v{t4}, 7, v{t2}
    v_and_b32 v{t5}, 3, v{vLANE}
    v_lshl_add_u32 v{t2}, v{t5}, 3, v{t2}
    s_lshl_b32 s{o_}, s{gWN}, 10
    s_add_u32 s{o_}, s{o_}, 32768
    v_add_u32 v{t2}, s{o_}, v{t2}
    v_lshrrev_b32 v{t4}, 1, v{t4}
    v_lshlrev_b32 v{t4}, 6, v{t4}
    v_and_b32 v{t5}, 1, v{g_}
    v_lshlrev_b32 v{t5}, 5, v{t5}
    v_or_b32 v{t4}, v{t4}, v{t5}
    """)
    for q in range(4):
        a(f"v_xor_b32 v{t5}, {(q>>1)*64 + (q&1)*32}, v{t4}")
        a(f"v_add_u32 v{RB[q]}, v{t5}, v{t2}")
    a(f"""
    s_mul_i32 s{sKVB}, s{gHEAD}, {HS}
    s_mul_i32 s{o_}, s{gMT}, {8*US}
    s_add_u32 s{sKVB}, s{sKVB}, s{o_}
    s_mul_i32 s{o_}, s{gWM}, {4*US}
    s_add_u32 s{sKVB}, s{sKVB}, s{o_}
    s_add_u32 s{o2_}, s{sWHICH}, 12
    s_lshl_b32 s{o_}, s{gWN}, s{o2_}
    s_add_u32 s{sKVB}, s{sKVB}, s{o_}
    s_mul_i32 s{o_}, s{sWHICH}, {WS_VF - WS_KF}
    s_add_u32 s{sKVB}, s{sKVB}, s{o_}
    s_add_u32 s{sKVB}, s{sKVB}, {WS_KF}
    s_lshr_b32 s{sKVI}, 8192, s{sWHICH}
    s_add_u32 s{sKVI}, s{sKVI}, s{sKVB}
    s_lshl_b32 s{sFKV}, s{gHEAD}, 8
    s_lshr_b32 s{o_}, s{gMT}, 2
    s_and_b32 s{o2_}, s{gMT}, 3
    s_lshl_b32 s{o2_}, s{o2_}, 1
    s_or_b32 s{o_}, s{o_}, s{o2_}
    s_cmp_ge_u32 s{o_}, 2
    s_cselect_b32 s{o2_}, 112, 0
    s_add_u32 s{sFKV}, s{sFKV}, s{o2_}
    s_lshl_b32 s{o_}, s{o_}, 3
    s_add_u32 s{sFKV}, s{sFKV}, s{o_}
    s_lshl_b32 s{o_}, s{sWHICH}, 2
    s_add_u32 s{sFKV}, s{sFKV}, s{o_}
    s_add_u32 s{sFKV}, s{sFKV}, {WS_FLG + FL_KV}
    s_lshl_b32 s{sFKVP}, s{sHEAD}, 8
    s_add_u32 s{sFKVP}, s{sFKVP}, {WS_FLG + FL_KV}
    s_cmp_eq_u32 s{sWAVE}, 0
    s_cselect_b32 s{sFKV}, s{sFKV}, {OOB}
    s_cselect_b32 s{sFKVP}, s{sFKVP}, {OOB}
    s_cselect_b32 s{gFL}, s2, {OOB}
    s_cselect_b32 s{gIT}, 0, {OOB}
    """)
    WQ, B1, ST1, N0, STA2, XR1, XR2 = sT+1, sT+2, sT+3, sN, sT+4, sND, sXOF2
    a(f"""
    s_or_b32 s{sQI}, s{sJ}, 8
    s_mul_i32 s{WQ}, s{sHEAD}, {7*32768}
    s_add_u32 s{WQ}, s{WQ}, {WS_WQF}
    s_mov_b32 s{sW0}, s{WQ}
    s_mov_b32 s{XR1}, s{sQI}
    s_mov_b32 s{ST1}, 32768
    s_cmp_eq_u32 s{sQI}, 15
    s_cselect_b32 s{N0}, {OPT['a15']}, 34
    @atomic
    s_cmp_ge_u32 s{sJ}, 8
    s_cbranch_scc1 L_typeA
    s_mov_b32 s{sTYPE}, 2
    s_sub_u32 s{B1}, s{WQ}, {5*32768}
    s_sub_u32 s{XR2}, 15, s{sQI}
    s_lshl_b32 s{sU1}, s{sQI}, 2
    s_sub_u32 s{sU2}, 64, s{sU1}
    s_add_u32 s{sU1}, s{sU1}, 4
    s_sub_u32 s{sU1}, s{sU1}, s{N0}
    s_add_u32 s{STA2}, s{sU1}, 14
    s_add_u32 s{sT+7}, s{STA2}, s{sU2}
    s_branch L_typedone
    """)
    a.label("L_typeA")
    a(f"""
    s_mov_b32 s{sU1}, s{N0}
    s_add_u32 s{sT+7}, s{N0}, 14
    s_mov_b32 s{sU2}, 2
    s_mov_b32 s{N0}, 0
    s_mov_b32 s{STA2}, 100
    s_mov_b32 s{XR2}, 0x4000
    s_mov_b32 s{sTYPE}, 1
    s_mov_b32 s{B1}, {OOB}
    s_cmp_eq_u32 s{sJ}, 15
    s_cbranch_scc1 L_typedone
    s_mov_b32 s{sTYPE}, 0
    s_mul_i32 s{XR1}, s{sHEAD}, 7
    s_add_u32 s{XR1}, s{XR1}, s{sJ}
    s_sub_u32 s{XR1}, s{XR1}, 8
    s_lshr_b32 s{sT}, s{XR1}, 4
    s_and_b32 s{XR1}, s{XR1}, 15
    s_mul_i32 s{sW0}, s{sT}, {7*32768}
    s_add_u32 s{sW0}, s{sW0}, {WS_W1F}
    s_lshl_b32 s{B1}, s{sT}, 15
    s_add_u32 s{B1}, s{B1}, {WS_WFF}
    s_mov_b32 s{ST1}, {184*4096}
    """)
    a.label("L_typedone")
    a("@end")
    tA, tB, tC, tD = GT, GT+1, GT+2, GT+3
    KB, VB = sT+5, sT+6
    a(f"""
    s_mul_i32 s{KB}, s{sHEAD}, {HS}
    s_add_u32 s{VB}, s{KB}, {WS_VF}
    s_add_u32 s{KB}, s{KB}, {WS_KF}
    v_mov_b32 v{vTE}, {OOB}
    """)
    def seg_lin(start, base, stride):
        a(f"v_subrev_u32 v{tA}, {start}, v{vLANE}")
        a(f"v_cmp_gt_u32 vcc, 7, v{tA}")
        a(f"v_mul_u32_u24 v{tB}, {stride}, v{tA}")
        a(f"v_add_u32 v{tB}, s{base}, v{tB}")
        a(f"v_cndmask_b32 v{vTE}, v{vTE}, v{tB}, vcc")
    seg_lin(0, sW0, 32768)
    seg_lin(7, B1, f"s{ST1}")
    a(f"s_lshl_b32 s{sT}, s{sHEAD}, 15")
    a(f"s_add_u32 s{sT}, s{sT}, {WS_WFF + 56*4096}")
    seg_lin(f"s{sT+7}", sT, 184*4096)
    a(f"v_add_u32 v{vTO}, 16384, v{vTE}")
    def seg_att(start, n0, U):
        for tab in (vTO, vTE):
            a(f"v_subrev_u32 v{tA}, {start}, v{vLANE}")
            if n0 is not None: a(f"v_add_u32 v{tB}, s{n0}, v{tA}")
            else: a(f"v_mov_b32 v{tB}, v{tA}")
            a(f"v_mul_u32_u24 v{tB}, {US}, v{tB}")
            if tab == vTO:
                a(f"s_sub_u32 s{sT}, s{U}, 1")
                a(f"v_cmp_eq_u32 vcc, s{sT}, v{tA}")
                a(f"v_add_u32 v{tC}, s{KB}, v{tB}")
                a(f"v_add_u32 v{tC}, {US}, v{tC}")
                a(f"v_add_u32 v{tD}, s{VB}, v{tB}")
            else:
                a(f"v_cmp_eq_u32 vcc, 0, v{tA}")
                a(f"v_add_u32 v{tC}, s{VB}, v{tB}")
                a(f"v_subrev_u32 v{tC}, {US}, v{tC}")
                a(f"v_add_u32 v{tD}, s{KB}, v{tB}")
            a(f"v_cndmask_b32 v{tC}, v{tC}, v{tD}, vcc")
            a(f"v_cmp_gt_u32 vcc, s{U}, v{tA}")
            a("s_nop 1")
            a(f"v_cndmask_b32 v{tab}, v{tab}, v{tC}, vcc")
    seg_att(14, N0, sU1)
    seg_att(f"s{STA2}", None, sU2)
    XO1, XO2 = sXOFF, sXOF2
    a(f"""
    s_lshl_b32 s{sT}, s{sWAVE}, 1
    s_lshl_b32 s{XO1}, s{XR1}, 3
    s_add_u32 s{XO1}, s{XO1}, s{sT}
    s_mul_i32 s{XO1}, s{XO1}, 14336
    s_lshl_b32 s{XO2}, s{XR2}, 3
    s_add_u32 s{XO2}, s{XO2}, s{sT}
    s_mul_i32 s{XO2}, s{XO2}, 14336
    s_lshl_b32 s{sW4K}, s{sWAVE}, 12
    s_mov_b32 s{sCLAMP}, 0x05040100
    s_mov_b32 s{sFIRST}, 0x07060302
    """)
    setup_l = [l.strip() for l in a.lines if l.strip()]
    a = main
    seq = []
    for k, kind in enumerate(GS[-1]):
        m0, so, ins = dma_group(kind, 0)
        seq += [[m0, so, ins[0]]] + [[x] for x in ins[1:]]
        if k == OPT["xpos"]:
            seq += [[f"buffer_load_dwordx4 {ar(SLD+48,4)}, v{GT+11}, {sr(sX,4)}, s{gB1} offen"], [f"buffer_load_dwordx4 {ar(SLD+52,4)}, v{GT+11}, {sr(sX,4)}, s{gB1} offen offset:448 ; @sx"]]
    if OPT["cpf"]: seq += [[f"buffer_load_dwordx4 a[200:203], v{vL16}, {G}, s{gB0} offen"], [f"s_add_u32 s{gB0}, s{gB0}, 131072", f"buffer_load_dwordx4 a[204:207], v{vL16}, {G}, s{gB0} offen"]]
    nowr = ("s_mov", "s_mul_i32", "s_nop", "s_cselect", "s_getpc", "s_cbranch", "s_branch")
    def scc_live(k):
        for l in setup_l[k:]:
            if l.startswith(("s_cselect", "s_cbranch_scc", "s_subb")): return True
            if l.startswith("s_") and not l.startswith(nowr): return False
        return False
    step = len(setup_l) / (len(seq) - 0.5)
    atomic = False; nxt = 0.0
    for k, l in enumerate(setup_l):
        if seq and k >= nxt and not atomic and not scc_live(k) and not l.endswith(":"):
            for x in seq.pop(0): a(x)
            nxt += step
        if l == "@atomic": atomic = True
        elif l == "@end": atomic = False
        else: a(l)
    for g in seq:
        for x in g: a(x)
    print("setup instrs", len(setup_l), "left", len(seq), file=sys.stderr)
    a(f"""
    s_mov_b32 s{sG}, s{sRET}
    s_mov_b32 s{sG+1}, s{sRET+1}
    s_mov_b32 s{sG+2}, {448*8192}
    """)
    if OPT["dbgside"] & 1:
        for r in sD: a(f"s_mov_b32 s{r}, {OOB}")
    if OPT["dbgside"] & 2: a(f"s_mov_b32 s{sXS}, {OOB}")
    if OPT["dbgside"] & 4:
        for r in (vWO, vW12, vSW): a(f"v_mov_b32 v{r}, {OOB}")
    def side_chain():
        c = []
        z = GT+8
        c += [(f"v_mov_b64 {vr(z,2)}, 0", 0), (f"v_mov_b64 {vr(z+2,2)}, 0", 0), (f"buffer_store_dwordx4 {vr(z,4)}, v{vL16}, {WS}, s{sFQ} offen sc1 ; @zst", 1)]
        c.append(("s_waitcnt vmcnt(@since:sx)", 1))
        U = GT; m_, v_, t_, t2_ = GT+16, GT+17, vG1, vPOLL
        for i in range(8):
            c.append((f"v_accvgpr_read_b32 v{t_}, a{SLD+48+i}", 2 if i == 0 else 0))
            c.append((f"v_lshlrev_b32 v{U+2*i}, 16, v{t_}", 0))
            c.append((f"v_and_b32 v{U+2*i+1}, 0xffff0000, v{t_}", 0))
        def red(v):
            r = [(f"v_add_f32_dpp v{v}, v{v}, v{v} row_ror:{sh} row_mask:0xf bank_mask:0xf", 2) for sh in (8, 4, 2)]
            return r + xlane_ops("v_add_f32", v, t2_)
        c.append((f"v_add_f32 v{m_}, v{U}, v{U+1}", 0)); c.append((f"v_add_f32 v{v_}, v{U+2}, v{U+3}", 0))
        for i in range(4, 16, 2):
            c.append((f"v_add_f32 v{m_}, v{m_}, v{U+i}", 0)); c.append((f"v_add_f32 v{v_}, v{v_}, v{U+i+1}", 0))
        c.append((f"v_add_f32 v{m_}, v{m_}, v{v_}", 0))
        c += red(m_)
        c.append((f"v_mul_f32 v{m_}, {f2u(1.0/448):#x}, v{m_}", 0))
        for i in range(16):
            c.append((f"v_sub_f32 v{t_}, v{U+i}, v{m_}", 0))
            c.append((f"v_mul_f32 v{v_}, v{t_}, v{t_}" if i == 0 else f"v_fma_f32 v{v_}, v{t_}, v{t_}, v{v_}", 0))
        c.append((f"v_cndmask_b32 v{v_}, 0, v{v_}, s[{sLN}:{sLN+1}]", 0))
        c += red(v_)
        for x in (f"v_mul_f32 v{v_}, {f2u(1.0/448):#x}, v{v_}", f"v_cvt_pk_bf16_f32 v{t_}, v{m_}, v{v_}", f"v_lshlrev_b32 v{m_}, 16, v{t_}",
                  f"v_and_b32 v{v_}, 0xffff0000, v{t_}", f"v_add_f32 v{v_}, {f2u(1e-5):#x}, v{v_}", f"v_cvt_pk_bf16_f32 v{v_}, v{v_}, v{v_}",
                  f"v_lshlrev_b32 v{v_}, 16, v{v_}", f"v_sqrt_f32 v{v_}, v{v_}"):
            c.append((x, 0))
        c.append((f"v_cvt_pk_bf16_f32 v{v_}, v{v_}, v{v_}", 1))
        c.append((f"v_lshlrev_b32 v{v_}, 16, v{v_}", 0))
        c.append((f"v_rcp_f32 v{v_}, v{v_}", 0))
        for i in range(16): c.append((f"v_sub_f32 v{U+i}, v{U+i}, v{m_}", 1 if i == 0 else 0))
        for i in range(8):
            for x in (f"v_cvt_pk_bf16_f32 v{t_}, v{U+2*i}, v{U+2*i+1}", f"v_lshlrev_b32 v{U+2*i}, 16, v{t_}", f"v_and_b32 v{U+2*i+1}, 0xffff0000, v{t_}",
                      f"v_mul_f32 v{U+2*i}, v{U+2*i}, v{v_}", f"v_mul_f32 v{U+2*i+1}, v{U+2*i+1}, v{v_}", f"v_cvt_pk_bf16_f32 v{U+i}, v{U+2*i}, v{U+2*i+1}"):
                c.append((x, 0))
        c.append((f"buffer_store_dwordx4 {vr(U,4)}, v{vSX}, {WS}, s{sXS} offen sc1", 1))
        c.append((f"v_add_u32 v{vSX}, {7*1024}, v{vSX}", 1))
        c.append((f"buffer_store_dwordx4 {vr(U+4,4)}, v{vSX}, {WS}, s{sXS} offen sc1", 1))
        def relay(rnd, land):
            c.append((f"s_waitcnt vmcnt(@since:sl{rnd})", 1, 0, rnd))
            for h in range(2):
                for e in range(8):
                    c.append((f"v_accvgpr_read_b32 v{GT+e}, a{land+2*e+h}", 2 if e == 0 else 0))
                for jj in range(2):
                    o = GT+8+4*jj
                    for p in range(4):
                        c.append((f"v_perm_b32 v{o+p}, v{GT+2*p+1}, v{GT+2*p}, s{(sCLAMP, sFIRST)[jj]}", 0))
                    if rnd == 1: c.append((f"buffer_store_dwordx4 {vr(o,4)}, v{vL16}, {WS}, s{sD[rnd]} offen offset:{(2*h+jj)*1024} sc1", 1))
                    else:
                        c.append((f"buffer_store_dwordx4 {vr(o,4)}, v{vSF}, {WS}, s{sD[rnd]} offen sc1", 1))
                        c.append((f"v_add_u32 v{vSF}, s{sSTR}, v{vSF}", 1))
        relay(2, SLD+32)
        c.append((f"s_waitcnt vmcnt(@since:sl0)", 1, 0, 0))
        c.append((f"s_mov_b32 s{sHI}, {f2u(QSCALE):#x}", 1))
        for h in range(2):
            for p in range(4):
                t = GT + (p & 1)*4
                c += [(x, 0) for x in (f"v_accvgpr_read_b32 v{t}, a{SLD+4*p+h}", f"v_accvgpr_read_b32 v{t+1}, a{SLD+4*p+2+h}",
                      f"v_lshlrev_b32 v{t+2}, 16, v{t}", f"v_lshlrev_b32 v{t+3}, 16, v{t+1}", f"v_and_b32 v{t}, 0xffff0000, v{t}", f"v_and_b32 v{t+1}, 0xffff0000, v{t+1}")]
                c += [(f"v_mul_f32 v{t+i}, s{sHI}, v{t+i}", 0) for i in range(4)]
                c += [(f"v_cvt_pk_bf16_f32 v{GT+8+p}, v{t+2}, v{t+3}", 0), (f"v_cvt_pk_bf16_f32 v{GT+12+p}, v{t}, v{t+1}", 0)]
            if h == 1: c.append((f"s_add_u32 s{sD[0]}, s{sD[0]}, 4096", 1))
            for jj in range(2):
                c.append((f"buffer_store_dwordx4 {vr(GT+8+4*jj,4)}, v{vL16}, {WS}, s{sD[0]} offen offset:{jj*2048} sc1 ; @sst", 1))
        relay(1, WOL)
        c += [(x, 0) for x in (f"v_add_u32 v{vDMA}, s{sW4K}, v{vL16}", f"v_mov_b32 v{vRD}, v{vL16}",  f"v_lshrrev_b32 v{GT}, 4, v{vLANE}",
              f"v_lshlrev_b32 v{GT}, 2, v{GT}", f"v_and_b32 v{GT+1}, 15, v{vLANE}", f"v_sub_u32 v{GT}, v{GT+1}, v{GT}")]
        c += [(f"v_cmp_gt_i32 s[{sMASK+2*r}:{sMASK+2*r+1}], {r}, v{GT}", 0) for r in range(4)]
        c = [((x[0].replace(" sc1", OPT["sidesc"]),) + tuple(x[1:]) if x[0].startswith("buffer_store") else x) for x in c]
        if OPT["wbl2"]: c.append(("s_waitcnt vmcnt(4)", 30)); c.append(("buffer_wbl2 sc1", 1))
        return Chain(c, XG4)
    def reads(kk, buf):
        ra = [f"ds_read_b128 {ar(FA(buf,m),4)}, v{RA[kk]} offset:{m*2048}" for m in range(8)]
        rb = [f"ds_read_b64_tr_b16 {ar(FB(buf,n)+2*sec,2)}, v{RB[n&3]} offset:{kk*16384+sec*2048+(n>>2)*512}" for n in range(8) for sec in range(2)]
        out = []
        for i in range(8): out += [ra[i], rb[2*i], rb[2*i+1]]
        return out
    stamp(6, True)
    a(f"s_waitcnt {gwait(-1)}")
    a("s_barrier")
    for r in reads(0, 0): a(r)
    stamp(1)
    a(f"s_cmp_eq_u32 s{sWHICH}, 0")
    a("s_cbranch_scc0 L_gemmV")
    pre_lines = len(a.lines)
    sJT = sT+2
    def xjob(J, key, i, base, early, late, rot=0):
        u, qt = i >> 1, i & 1
        J.add(key, f"s_add_u32 s{sJT}, s{base}, {qt*14336+((u+rot)%14)*1024}", f"buffer_load_dwordx4 {ar(X(qt,u),4)}, v{vL16}, {WS}, s{sJT} offen{ld()} ; @{key}", early, late - (3 - (i & 3))*8)
    def kvjob(J, c, early, late):
        blk = c >> 2
        J.add("kv", f"s_add_u32 s{sJT}, s{sKVI if blk & 1 else sKVB}, {(blk>>1)*US+(c&3)*1024}",
              f"buffer_store_dwordx4 {vr(PK(c),4)}, v{vL16}, {WS}, s{sJT} offen{OPT['kvsc']} ; @kv", early, late)
    pw, t6, t7 = sEV, sCNT, sND
    setup = f"""
    s_lshl_b32 s{pw}, s{sHEAD}, 3
    s_and_b32 s{t6}, s{sJ}, 7
    s_add_u32 s{pw}, s{pw}, s{t6}
    s_lshl_b32 s{pw}, s{pw}, 2
    s_add_u32 s{pw}, s{pw}, s{sWAVE}
    s_mul_i32 s{sQST}, s{pw}, {Q_W}
    s_add_u32 s{sQST}, s{sQST}, {WS_QF}
    s_mul_i32 s{sPT}, s{pw}, {PT_W}
    s_add_u32 s{sPT}, s{sPT}, {WS_PT}
    s_lshl_b32 s{sFQ}, s{pw}, 5
    s_add_u32 s{sFQ}, s{sFQ}, {WS_FLG + FL_Q}
    s_mul_i32 s{t7}, s{sWAVE}, {28*1024}
    s_add_u32 s{t7}, s{t7}, {WS_PS}
    s_mul_i32 s{pw}, s{sHEAD}, 7
    s_add_u32 s{pw}, s{pw}, s{t6}
    s_lshr_b32 s{t6}, s{pw}, 4
    s_and_b32 s{sFSG}, s{pw}, 15
    s_lshl_b32 s{sT+3}, s{t6}, 9
    s_mul_i32 s{sPSG}, s{sFSG}, {PS_R}
    s_add_u32 s{sPSG}, s{sPSG}, s{t7}
    s_mul_i32 s{pw}, s{t6}, {PS_SRC}
    s_add_u32 s{sPSG}, s{sPSG}, s{pw}
    s_add_u32 s{sPSG}, s{sPSG}, {16*PS_SRC}
    s_lshl_b32 s{sFSG}, s{sFSG}, 9
    s_lshl_b32 s{pw}, s{t6}, 2
    s_add_u32 s{sFSG}, s{sFSG}, s{pw}
    s_lshl_b32 s{pw}, s{sWAVE}, 7
    s_add_u32 s{pw}, s{pw}, {WS_FLG + FL_S}
    s_add_u32 s{sFSG}, s{sFSG}, s{pw}
    s_add_u32 s{sFSG}, s{sFSG}, 64
    s_lshr_b32 s{t6}, s{sJ}, 3
    s_mul_i32 s{t6}, s{t6}, 7
    s_xor_b32 s{t6}, s{t6}, 7
    s_xor_b32 s{t6}, s{t6}, s{sJ}
    s_mul_i32 s{sPSS}, s{t6}, {PS_R}
    s_add_u32 s{sPSS}, s{sPSS}, s{t7}
    s_mul_i32 s{t7}, s{sHEAD}, {PS_SRC}
    s_add_u32 s{sPSS}, s{sPSS}, s{t7}
    s_lshl_b32 s{sFSS}, s{t6}, 9
    s_add_u32 s{sFSS}, s{sFSS}, s{pw}
    s_lshl_b32 s{t7}, s{sHEAD}, 2
    s_add_u32 s{sFSS}, s{sFSS}, s{t7}
    s_lshl_b32 s{sND}, s{sQI}, 2
    s_add_u32 s{sND}, s{sND}, s{sWAVE}
    s_lshr_b32 s{sCNT}, s{sU1}, 1
    s_sub_u32 s{sCNT}, s{sCNT}, 1
    s_lshr_b32 s{sEV}, s{sJ}, 3
    """.strip().split("\n")
    setup = [(x.strip(), 1) for x in setup]
    setup.append((f"s_cmp_eq_u32 s{sTYPE}, 1\ns_cselect_b32 s{sQST}, {OOB}, s{sQST}", 1))
    setup.append((f"s_cmp_eq_u32 s{sTYPE}, 0\ns_cselect_b32 s{sFSG}, s{sFSG}, {OOB}", 1))
    setup.append((f"s_cmp_eq_u32 s{sWAVE}, 0\ns_cselect_b32 s{sFQ}, s{sFQ}, {OOB}\ns_cselect_b32 s{sEXP}, 1, 0", 1))
    setup2 = [(x, 1) for x in (f"s_mov_b32 s{sTAU}, 4", f"s_add_u32 s{sM0}, s{sW4K}, {8*16384}", f"s_add_u32 s{sOFFB}, s{sW0}, {8*16384}",
              f"s_mov_b32 s{sRDD}, {-131072}", f"s_mov_b32 s{gMA}, {-131072}", f"s_mov_b32 s{gMB}, 32768", f"s_mov_b32 m0, s{sM0}")]
    for typ in ("K", "V"):
        if typ == "V":
            a.label("L_gemmV")
            for l in a.lines[:pre_lines]:
                if l.strip().startswith("buffer_") or "@merge" in l: a.raw("@ghost " + l.strip())
        def pos(m, n): return m*8+n if typ == "K" else (m >> 1)*16 + n*2 + (m & 1)
        def substep(it, kk):
            groups = GS[2*it+kk]
            buf = kk
            mf = []
            for m in range(8):
                for n in range(8):
                    acc = accreg(pos(m, n))
                    c = "0" if (it == 0 and kk == 0) else acc
                    x, y = ar(FB(buf,n),4), ar(FA(buf,m),4)
                    if typ == "V": x, y = y, x
                    mf.append(f"{MF} {acc}, {x}, {y}, {c}")
            st = Stage(mf)
            st.put(-1, f"s_waitcnt {gwait(2*it+kk)} lgkmcnt(0)")
            st.put(-1, "s_barrier")
            last = (it == 15 and kk == 1)
            g, dg = 1, (OPT["dg2"] if len(groups) == 2 else 4)
            for k, kind in enumerate(groups):
                m0, so, ins = dma_group(kind, k)
                st.put(g-1, m0)
                st.put(g-2, so)
                for i in ins:
                    st.put(g, i); g += dg
            rd = reads(kk ^ 1, buf ^ 1) if not last else [f"ds_read_b128 {ar(FR(f),4)}, v{vRD} offset:{f*1024}" for f in range(12)]
            for i, r in enumerate(rd): st.put(i*2, r)
            if kk == 0 and it < 15:
                d = -131072 if it % 3 == 0 else 65536
                for i, x in enumerate([f"v_add_u32 v{RA[0]}, {d}, v{RA[0]}", f"v_add_u32 v{RA[1]}, {d}, v{RA[1]}"] + [f"v_xor_b32 v{r}, 0x10000, v{r}" for r in RB]):
                    st.put(48 + 2*(i >> 1), x)
            if OPT["fine"]:
                st.put(2, f"{FT()} s[{sFS}:{sFS+1}]")
                st.put(4, f"v_mov_b32_dpp v0, v0 wave_shr:1 row_mask:0xf bank_mask:0xf")
                st.put(46, f"v_writelane_b32 v0, s{sFS}, 0")
            return st
        ch = side_chain()
        J = Jobs()
        for e in range(8):
            t = [x + e*OPT["slstep"] for x in OPT["slt"]]
            J.add("sl1", f"s_mov_b32 s{sJT}, {(e>>2)*16*896}", f"buffer_load_dwordx2 {ar(WOL+2*e,2)}, v{vWO}, {sr(sX,4)}, s{sJT} offen offset:{(e&3)*896}{OPT['ntS']} ; @sl1", t[2], t[2]+64)
            J.add("sl2", f"s_add_u32 s{sJT}, s{sHI}, {(e&3)*3584}" if e >> 2 else f"s_mov_b32 s{sJT}, {e*3584}",
                  f"buffer_load_dwordx2 {ar(SLD+32+2*e,2)}, v{vW12}, {sr(sW12,4)}, s{sJT} offen{OPT['ntS']} ; @sl2", t[0], t[0]+64)
            J.add("sl0", f"s_mov_b32 s{sJT}, {e*8192}", f"buffer_load_dwordx2 {ar(SLD+2*e,2)}, v{vSW}, {G}, s{sJT} offen{OPT['ntS']} ; @sl0", t[1], t[1]+64)
        NZ, NZP, NZC, NF, NP, NC = OPT["sync"]
        for i in range(20): xjob(J, "x1", i, XO1, (NC+1)*64 + i*OPT["xstep"], 31*64)
        for b in range(8):
            J.add("bias", None, f"buffer_load_dwordx4 {vr(BIAS+4*b,4)}, v{GT+16}, {G}, s{sT+3} offen offset:{(b>>1)*128+(b&1)*16} ; @bias", 31*64 if b in (2, 3) else 29*64, 31*64+24)
        su = Chain(setup)
        PV = GT+8
        for n in range(31):
            it, kk = n >> 1, n & 1
            st = substep(it, kk)
            if n == 0:
                st.put(62, f"s_load_dwordx2 s[{sX}:{sX+1}], s[0:1], 40")
                st.put(63, f"s_mov_b32 s{sX+2}, {4096*896}")
            if n == NZ-1: st.put(63, "s_waitcnt vmcnt(@since:zst)")
            if n == NZ: st.put(61, f"buffer_store_byte v{vONE}, v{vFLG}, {sr(sDBG,4)}, s{gFL} offen sc1")
            if n == NZP: st.put(61, f"buffer_load_dword v{vPOLL}, v{vL4}, {sr(sDBG,4)}, s{gIT} offen sc1 ; @zp")
            if n == NZC:
                st.put(54, "s_waitcnt vmcnt(@since:zp)")
                st.put(55, f"s_cmp_eq_u32 s{sWAVE}, 0\ns_cselect_b32 s{sT+1}, 0x01010101, 0")
                st.put(56, f"v_cmp_ne_u32 vcc, s{sT+1}, v{vPOLL}")
                st.put(60, f"s_cbranch_vccnz L_zwait{typ}")
                st.put(60, f"L_zok{typ}:")
            if n == NF-1:
                assert not any("@sst" in x[0] for x in ch.items) and NZC < NF
                st.put(63, "s_waitcnt vmcnt(@since:sst)")
                st.put(62, f"s_load_dwordx2 s[{sG}:{sG+1}], s[0:1], 64")
                st.put(59, f"s_mov_b32 s{sG+2}, 3584")
            if n == NF:
                st.put(55, f"s_add_u32 s{gIT}, s{gIT}, {WS_FLG+FL_PREP}")
                st.put(58, f"s_lshl2_add_u32 s{sT+1}, s2, s{gIT}")
                st.put(59+2*kk, f"buffer_store_dword v{vONE}, v{vFLG}, {WS}, s{sT+1} offen sc1")
            if n == NP:
                assert not ch.items
                st.put(61, f"buffer_load_dwordx4 {vr(PV,4)}, v{vL16}, {WS}, s{gIT} offen sc1 ; @prep")
            if n == NC:
                st.put(50, "s_waitcnt vmcnt(@since:prep)")
                st.put(51, f"s_cmp_eq_u32 s{sWAVE}, 0\ns_cselect_b32 s{sT+1}, 1, 0")
                st.put(54, f"v_and_b32 v{PV}, v{PV}, v{PV+1}")
                st.put(54, f"v_and_b32 v{PV+2}, v{PV+2}, v{PV+3}")
                st.put(55, f"v_and_b32 v{PV}, v{PV}, v{PV+2}")
                st.put(55, f"v_cmp_ne_u32 vcc, s{sT+1}, v{PV}")
                st.put(60, f"s_cbranch_vccnz L_prepwait{typ}")
                st.put(60, f"L_prepok{typ}:")
                st.put(56, f"v_lshrrev_b32 v{GT+16}, 4, v{vLANE}")
                st.put(56, f"v_lshlrev_b32 v{GT+16}, 5, v{GT+16}")
            J.place(st, n, 10, XG4)
            if n >= 1 and ch.items:
                full = ch.items
                for k, x in enumerate(full):
                    if len(x) > 3:
                        key = f"sl{x[3]}"
                        if any(j[5] == key for j in J.jobs) or J.at[key] + OPT["sld"] > n*64+63:
                            ch.items = full[:k]; break
                        full[k] = (x[0], x[1], max(0, J.at[key] + OPT["sld"] - n*64), x[3])
                rest = full[len(ch.items):] if ch.items is not full else []
                ch.base = n*64; ch.minD = OPT["smin"]
                ch.fill(st)
                ch.items = ch.items + rest
                if typ == "K": print("substep", n, "chain left", len(ch.items), file=sys.stderr)
            elif n > NC: su.fill(st)
            if n == 28: assert not su.items
            st.emit(a)
        st = substep(15, 1)
        J.place(st, 31, 2, [17, 21]); assert not J.jobs
        SG = [25, 33, 41, 49, 57, 61]
        for c in range(NE): kvjob(J, c, SG[c], SG[c])
        J.place(st, 0, 8, SG); assert not J.jobs
        su = Chain(setup2); su.fill(st, 30); assert not su.items
        slot_of = {pos(m, n): m*8+n for m in range(8) for n in range(8)}
        pk = []
        for c in range(32):
            e = max(slot_of[2*c], slot_of[2*c+1]) + 3
            if 20 <= c < 20+NE: e = max(e, SG[c-20]+2)
            src = []
            for h in range(2):
                p = 2*c+h
                if p < 52: src += [48+4*p+i for i in range(4)]
                else:
                    for i in range(4):
                        pk.append((f"v_accvgpr_read_b32 v{128+(p-52)*4+i}, a{208+4*(p-52)+i}", 0, e)); src.append(128+(p-52)*4+i)
            for i in range(4): pk.append((f"v_cvt_pk_bf16_f32 v{PK(c)+i}, v{src[2*i]}, v{src[2*i+1]}", 0, e))
        pk = Chain(pk); pk.fill(st)
        for c in range(NE):
            w = [g for g, v in st.fill.items() if any(x.startswith(f"v_cvt_pk_bf16_f32 v{PK(c)+3},") for x in v)]
            assert min(w) < SG[c], (c, w)
        st.emit(a)
        a("s_nop 3")
        print("pack tail", len(pk.items), file=sys.stderr)
        pk.flush(a)
        a("s_waitcnt vmcnt(@since:bias) lgkmcnt(8)")
        a(f"s_cmp_eq_u32 s{sTYPE}, 0")
        a("s_cbranch_scc0 L_P1B")
        a("s_branch L_P1A")
    def unpack(nt):
        o = []
        for r in range(4):
            x = 4*r + (nt & 3); src = BIAS + (nt >> 2)*8 + (x >> 1)
            o.append(f"v_and_b32 v{O(nt,1)+r}, 0xffff0000, v{src}" if x & 1 else f"v_lshlrev_b32 v{O(nt,1)+r}, 16, v{src}")
        return o
    def p1_jobs(t0, step, slack=8):
        J = Jobs()
        for c in range(20+NE, 32): kvjob(J, c, 0, XG[c-20-NE])
        for k, c in enumerate(range(NE, 20+NE)): kvjob(J, c, t0+k*step, t0+slack+k*step)
        for i in range(20, 28): xjob(J, f"x1{i>>2}", i, XO1, (i >> 2)*64 - 134, (i >> 2)*64 - 70)
        return J
    def xwait(st, key): st.put(62, f"s_waitcnt vmcnt(@since:{key})")
    def flagjob(J, key, after, soff, delay):
        if key in J.at or any(j[5] in (after, key) for j in J.jobs): return
        t = J.at[after] + delay
        J.add(key, f"s_waitcnt vmcnt(@since:{after})\ns_barrier", f"buffer_store_dword v{vONE}, v{vFLG}, {WS}, s{soff} offen sc1", t, t+8)
    def split_chain(items, st_prev, mk_next, late_of):
        ch = Chain(items); ch.fill(st_prev)
        rest = ch.items
        for k in range(len(rest)+1):
            st = mk_next()
            c2 = Chain([(x[0], x[1]) for x in rest[k:]])
            before = {gg: len(v) for gg, v in st.fill.items()}
            c2.fill(st)
            if c2.items: continue
            where = {}
            for gg, v in st.fill.items():
                for ins in v[before.get(gg, 0):]: where[ins] = gg
            if all(where[x[0]] <= late_of(x[3]) for x in rest[k:]):
                return rest[:k], st
        raise AssertionError
    def emit_mid(mid):
        if mid: a("s_nop 3")
        Chain(mid).flush(a)
        if mid: a("s_nop 1")
    def post_groups(s, scale):
        out = []
        for qt in range(2):
            for p in range(2):
                t = vT + 16 + (qt*2+p)*4
                regs = [PA(s & 1, nt, qt) + 2*p + rr for rr in range(2) for nt in range(4)]
                ops = [f"v_mul_f32 v{r}, v{vRINV[qt]}, v{r}" for r in regs] if scale else []
                ops += [f"v_cvt_pk_bf16_f32 v{t+i}, v{regs[2*i]}, v{regs[2*i+1]}" for i in range(4)]
                out.append((ops, t))
        return out
    def post_store(s, k, t, base):
        return f"s_add_u32 s{sJT}, s{base}, {s*4096+k*1024}", f"buffer_store_dwordx4 {vr(t,4)}, v{vL16}, {WS}, s{sJT} offen sc1 ; @ps"
    def post_place(st, s, scale, base, gaps):
        for k, (ops, t) in enumerate(post_groups(s, scale)):
            pre, ins = post_store(s, k, t, base)
            st.put(gaps[k]-1, pre); st.put(gaps[k], ins)
    def post_sched(st, s, scale, gaps):
        for k, (ops, t) in enumerate(post_groups(s, scale)):
            prev = None
            for x in ops: prev = st.add(x, [prev], 2, gaps[k]-1)
        st.schedule()
    def post_flush(s, scale, base):
        a("s_nop 5")
        for k, (ops, t) in enumerate(post_groups(s, scale)):
            for x in ops: a(x)
            for x in post_store(s, k, t, base): a(x)
    def mk_post(s):
        st = Stage(mf_post(s)); common_fill(st); return st
    def poll_issue(st, g, voff, soff, tag):
        st.put(g, f"buffer_load_dword v{vPOLL}, v{voff}, {WS}, s{soff} offen sc1 ; @{tag}")
    POLLS = []
    def poll_check(st, g, voff, soff, tag, lane0):
        st.put(g, f"s_waitcnt vmcnt(@since:{tag})")
        st.put(g, f"v_cmp_{'eq' if lane0 else 'ne'}_u32 s[{sT+4}:{sT+5}], s{sEXP}, v{vPOLL}")
        st.put(g+2, f"s_cmp_{'eq' if lane0 else 'lg'}_u64 s[{sT+4}:{sT+5}], 0\ns_cbranch_scc1 L_pw_{tag}")
        assert not ({g+1, g+2} & st.scc_busy)
        st.put(g+2, f"L_po_{tag}:")
        st.put(g+2, "s_barrier")
        POLLS.append((tag, voff, soff, lane0))
    def kv2addr(st):
        st.put(2, f"v_min_u32 v{vL4}, 11, v{vLANE}"); st.put(4, f"v_lshlrev_b32 v{vL4}, 2, v{vL4}"); st.put(8, f"v_add_u32 v{vL4}, 128, v{vL4}")
    XG2 = sorted(XG + [3, 11, 19, 27, 43, 51, 59])
    XG3 = sorted(XG + [5, 13, 21, 29, 45, 53, 61])
    merge("L_P1A")
    stamp(2)
    for x in unpack(0): a(x)
    a("s_nop 1")
    J = p1_jobs(64, OPT["kvstep"])
    for s in range(6):
        st = Stage(mf_proj(s, "bias" if s == 0 else None)); common_fill(st)
        flagjob(J, "kvf", "kv", sFKV, OPT["fdelay"])
        J.place(st, s, OPT["cap"])
        if s == 0:
            for nt in range(1, 16):
                e = XG[2*(nt-13)+1]+2 if nt >= 13 else 0
                for x in unpack(nt): st.add(x, [], e, 4*nt-3)
            st.schedule()
        if s >= 4: xwait(st, f"x1{s+1}")
        st.emit(a)
    st = Stage(mf_proj(6)); common_fill(st)
    flagjob(J, "kvf", "kv", sFKV, OPT["fdelay"]); J.place(st, 6, OPT["cap"])
    items = []
    for ud in range(8):
        for qt in range(2):
            regs = [O(2*ud,qt)+i for i in range(4)] + [O(2*ud+1,qt)+i for i in range(4)]
            e = 8*ud+7+3
            for r in regs: items.append((f"v_mul_f32 v{r}, |v{r}|, v{r}", 0, e, ud))
            for i in range(4): items.append((f"v_cvt_pk_bf16_f32 v{regs[i]}, v{regs[2*i]}, v{regs[2*i+1]}", 0, e, ud))
            for i in range(4): items.append((f"v_pk_max_i16 v{regs[i]}, v{regs[i]}, 0", 0, e, ud))
    import copy
    def mk0():
        st = mk_post(0); J2 = copy.deepcopy(J); J2.place(st, 7, OPT["cap"]); assert not J2.jobs; return st
    mid, st0 = split_chain(items, st, mk0, lambda ud: 8*ud-3)
    print("H mid", len(mid), "kv last", J.at["kv"], file=sys.stderr)
    st.emit(a); emit_mid(mid)
    stamp(3)
    J = Jobs()
    for i in range(16):
        J.add("ql", f"s_add_u32 s{sJT}, s{sQST}, {i*1024}", f"buffer_load_dwordx4 {ar(4*i,4)}, v{vL16}, {WS}, s{sJT} offen sc1 ; @ql", 4*64+46, 6*64+36-(15-i)*4)
    for s in range(7):
        st = st0 if s == 0 else mk_post(s)
        if s == 2: poll_issue(st, 3, vL4, sFKVP, "kva"); poll_check(st, 58, vL4, sFKVP, "kva", False)
        if s == 3: poll_issue(st, 51, vFLG, sFQ, "qa"); kv2addr(st)
        if s == 4: poll_check(st, 42, vFLG, sFQ, "qa", True)
        gaps = [9, 25, 41, 57] if s < 6 else [41, 49, 57, 59]
        if s >= 1: post_place(st, s-1, False, sPSG, gaps)
        J.place(st, s, 7, XG2)
        if s >= 1: post_sched(st, s-1, False, gaps)
        st.emit(a)
    assert not J.jobs
    def mk_F(qb, tag, pre=None):
        st = Stage(mf_qk(0, 0, qb, True) + mf_qk(1, 1, qb, True)); common_fill(st)
        if pre: pre(st)
        place_sm(st, 0, 35, 62, tag, ladd=False, first=True)
        st.schedule()
        return st
    def finit():
        return [(f"v_mov_b64 {vr(NEGM(0)+2*i,2)}, 0", 0) for i in range(4)] + [(f"v_mov_b64 {vr(vL[0],2)}, 0", 0),
                (f"v_mov_b32 v{vBIG}, {f2u(-1e30):#x}", 0), (f"s_mov_b32 s{sFIRST}, 1", 1), (f"s_mov_b32 s{sCLAMP}, {f2u(-3e38):#x}", 1)]
    def f_end(tag, nxt, endl):
        a(f"s_cbranch_vccnz L_fchk_{tag}")
        a.label(f"L_fok_{tag}")
        STUBS.append((f"L_fchk_{tag}", "L_fchk", f"L_fok_{tag}"))
        a(f"s_mov_b32 s{sFIRST}, 0")
        a(f"s_mov_b32 s{sCLAMP}, 0")
        a(f"s_cmp_eq_u32 s{sCNT}, 0")
        a(f"s_cbranch_scc1 {endl}")
        if nxt: a(f"s_branch {nxt}")
    a("s_nop 5")
    for ops, t in post_groups(6, False):
        for x in ops: a(x)
    a("s_waitcnt vmcnt(@since:ql)")
    stamp(4)
    def pre_fa1(st):
        post_place(st, 6, False, sPSG, [9, 17, 25, 33])
        poll_issue(st, 1, vL4, sFKVP, "kv2a"); poll_check(st, 58, vL4, sFKVP, "kv2a", False)
    st = mk_F(0, "fa1", pre_fa1)
    c = Chain(finit()); c.fill(st, 0, 30); assert not c.items
    st.emit(a)
    f_end("fa1", "L_s1z0", "L_u2")
    merge("L_P1B")
    stamp(2)
    J = p1_jobs(OPT["kvb0"], OPT["kvstepb"], 200)
    for i in range(28):
        p = i >> 2
        xjob(J, f"x2{p}", i, XO2, max(p+1, 3)*64, (7+p)*64 - 134, 4)
    for i in range(16):
        qt, ud = i & 1, i >> 1
        J.add("qs", f"s_add_u32 s{sJT}, s{sQST}, {(qt*8+ud)*1024}", f"buffer_store_dwordx4 {ar(Q(0,qt,ud),4)}, v{vL16}, {WS}, s{sJT} offen{OPT['kvsc']} ; @qs",
              7*64 if ud < 5 else 8*64, 7*64+20+i*OPT["qstep"])
    def bstage(gs):
        s = gs % 7
        st = Stage(mf_proj(s, "zero" if gs % 7 == 0 else None))
        nod = 3 <= gs <= 7
        common_fill(st, dma=not nod, nd={3: 16, 4: 8, 5: 0}.get(gs), novm=(6 <= gs <= 10), rdl=(gs == 7))
        if gs == 9: poll_issue(st, 3, vL4, sFKVP, "kvb"); poll_check(st, 58, vL4, sFKVP, "kvb", False)
        if gs == 10: kv2addr(st)
        if gs == 1:
            st.put(2, f"s_cmp_eq_u32 s{sJ}, 7\ns_cselect_b32 s{sT+1}, 34, 2")
            st.put(4, f"v_and_b32 v{vT}, 4, v{vLANE}"); st.put(8, f"v_mul_u32_u24 v{vT}, s{sT+1}, v{vT}"); st.put(10, f"v_or_b32 v{vL4}, v{vL4}, v{vT}")
        flagjob(J, "kvf", "kv", sFKV, OPT["fdelay"]); flagjob(J, "qf", "qs", sFQ, 72)
        if nod: J.place(st, gs, OPT["capn"], XG3)
        elif gs == 8: J.place(st, gs, OPT["capq"], XG2)
        else: J.place(st, gs, OPT["capb"])
        if gs in (4, 5): xwait(st, f"x1{gs+1}")
        if 6 <= gs < 13: xwait(st, f"x2{gs-6}")
        return st
    for gs in range(6): bstage(gs).emit(a)
    def q_items(qb):
        items = []; cnt = 0
        for ud in range(8):
            blk = ud >> 1
            for qt in range(2):
                e = 16*blk+15+3
                t = vT + 16 + (cnt % 4)*4; cnt += 1
                for i in range(4):
                    jp = 2*(ud & 1) + (i >> 1); tl = 4*blk + 2*(i & 1)
                    items.append((f"v_cvt_pk_bf16_f32 v{t+i}, v{O(tl,qt)+jp}, v{O(tl+1,qt)+jp}", 0, e, 2*blk))
                for i in range(4): items.append((f"v_accvgpr_write_b32 a{Q(qb,qt,ud)+i}, v{t+i}", 0, e, 99 if ud >= 5 else -1))
        return items
    st = bstage(6); st7 = bstage(7)
    mid, st0 = split_chain(q_items(0), st, lambda: copy.deepcopy(st7), lambda ud: 8*ud-1)
    print("E1 mid", len(mid), file=sys.stderr)
    st.emit(a); emit_mid(mid)
    stamp(3)
    st0.emit(a)
    for gs in range(8, 13): bstage(gs).emit(a)
    st = bstage(13)
    assert not J.jobs
    print("B jobs", {k: (v >> 6, v & 63) for k, v in J.at.items()}, file=sys.stderr)
    def mk_fa2():
        STUBS[:] = [x for x in STUBS if "fa2" not in x[0]]
        POLLS[:] = [x for x in POLLS if x[0] != "kv2b"]
        def pre(st): poll_issue(st, 1, vL4, sFKVP, "kv2b"); poll_check(st, 58, vL4, sFKVP, "kv2b", False)
        st = mk_F(0, "fa2", pre); c = Chain(finit()); c.fill(st, 0, 30); return st
    mid, st0 = split_chain(q_items(128), st, mk_fa2, lambda ud: 60)
    print("E2 mid", len(mid), file=sys.stderr)
    st.emit(a); emit_mid(mid)
    stamp(4)
    st0.emit(a)
    f_end("fa2", None, "L_u2")
    def steady(b, qb, tag, czero=False):
        st = Stage(mf_pv(0, b^1, czero) + mf_qk(1, b^1, qb)); common_fill(st)
        if b == 0:
            st.put(56, f"s_sub_u32 s{sCNT}, s{sCNT}, 1")
            st.put(58, f"s_cmp_lg_u32 s{sCNT}, s{sEV}")
            st.scc_busy |= set(range(58, 64))
        if tag == "z0":
            st.put(56, "s_waitcnt vmcnt(11)")
            st.put(57, f"buffer_store_dword v{vONE}, v{vFLG}, {WS}, s{sFSG} offen sc1")
        place_sm(st, b, 0, 62, tag); st.schedule()
        st.emit(a)
        a(f"s_cbranch_vccnz L_dorare_{tag}")
        a.label(f"L_norare_{tag}")
        STUBS.append((f"L_dorare_{tag}", f"L_rare{b}", f"L_norare_{tag}"))
    def loop(qb, n):
        merge(f"L_s1z{n}")
        steady(1, qb, f"z{n}", True)
        a(f"s_branch L_mid{n}")
        merge(f"L_steady{n}", True)
        steady(1, qb, f"s1{n}")
        merge(f"L_mid{n}")
        steady(0, qb, f"s0{n}")
        a(f"s_cbranch_scc1 L_steady{n}")
    loop(0, 0)
    a(f"s_cmp_eq_u32 s{sCNT}, 0")
    a("s_cbranch_scc1 L_end0")
    a(f"""
    s_add_u32 s{sFQ}, s{sFQ}, {FL_P - FL_Q}
    s_nop 0
    buffer_load_dword v{vPOLL}, v{vFLG}, {WS}, s{sFQ} offen sc1
    s_mov_b32 s{sEV}, 0
    s_branch L_steady0
    """)
    a.label("L_u2")
    for i in range(64): a(f"v_mov_b64 {vr(O0+2*i,2)}, 0")
    merge("L_end0")
    a(f"s_cmp_eq_u32 s{sTYPE}, 2")
    a("s_cbranch_scc1 L_lpack")
    a(f"""
    s_waitcnt vmcnt(16)
    v_cmp_ne_u32 vcc, s{sEXP}, v{vPOLL}
    s_add_u32 s{sT+3}, s{sPT}, 16384
    s_nop 0
    s_bitcmp1_b32 vcc_lo, 0
    s_cbranch_scc1 L_pw_pt
    """)
    a.label("L_po_pt")
    a("s_barrier")
    POLLS.append(("pt", vFLG, sFQ, True))
    a(f"buffer_load_dwordx4 {vr(vSTB,4)}, v{vL16}, {WS}, s{sT+3} offen sc1")
    for i in range(16):
        if i % 4 == 0: a(f"s_add_u32 s{sT+3}, s{sPT}, {i*1024}")
        a(f"buffer_load_dwordx4 {ar(128+4*i,4)}, v{vL16}, {WS}, s{sT+3} offen offset:{(i&3)*1024} sc1 ; @ptl")
    def pack_items(e0, step):
        items = []
        for ud in range(8):
            for qt in range(2):
                regs = [O(2*ud,qt)+i for i in range(4)] + [O(2*ud+1,qt)+i for i in range(4)]
                for i in range(4): items.append((f"v_cvt_pk_bf16_f32 v{regs[i]}, v{regs[2*i]}, v{regs[2*i+1]}", 0, e0+step*ud, ud))
        return items
    def mk_L(tag):
        st = Stage(mf_pv(0, 0) + mf_pv(1, 1)); common_fill(st)
        place_sm(st, 1, 0, 30, tag); st.schedule()
        st.put_post(31, f"s_cbranch_vccnz L_dorare_{tag}")
        st.put_post(31, f"L_norare_{tag}:")
        STUBS.append((f"L_dorare_{tag}", "L_rare1", f"L_norare_{tag}"))
        st.put(32, f"v_add_f32 v{vL[0]}, v{vL[0]}, v{vSUM[0][0]}")
        st.put(34, f"v_add_f32 v{vL[1]}, v{vL[1]}, v{vSUM[1][0]}")
        return st
    st = mk_L("ln")
    c = [(f"v_bfe_u32 v{vT+20}, v{vLANE}, 2, 2", 0), (f"v_lshrrev_b32 v{vT+21}, 4, v{vLANE}", 0), (f"v_cmp_eq_u32 s[{sT+4}:{sT+5}], v{vT+20}, v{vT+21}", 0),
         (f"v_and_b32 v{vT+20}, 3, v{vLANE}", 0), (f"v_lshlrev_b32 v{vT+20}, 4, v{vT+20}", 0), (f"v_mov_b32 v{vT+22}, 0x3f80", 0), (f"v_mov_b32 v{vT+23}, 0", 0),
         (f"v_cndmask_b32 v{vT+22}, 0, v{vT+22}, s[{sT+4}:{sT+5}]", 1), (f"v_lshlrev_b64 {vr(vSEL+2,2)}, v{vT+20}, {vr(vT+22,2)}", 0),
         (f"v_mov_b64 {vr(vSEL,2)}, 0", 0), (f"v_mov_b64 {vr(vSEL+4,2)}, 0", 0),
         ("s_waitcnt vmcnt(@since:ptl)", 1, 55),
         (f"v_cmp_neq_f32 vcc, v{NEGM(0)}, v{vSTB}", 1), (f"v_cmp_neq_f32 s[{sT+4}:{sT+5}], v{NEGM(1)}, v{vSTB+1}", 0)]
    c = Chain(c); c.fill(st, 35); assert not c.items
    st.emit(a)
    a(f"s_or_b64 vcc, vcc, s[{sT+4}:{sT+5}]")
    a("s_cbranch_scc1 L_slowcomb")
    a.label("L_comb")
    stamp(5)
    mf = []
    for ud in range(8):
        for h in range(2):
            for qt in range(2):
                d = vr(O(2*ud+h,qt),4)
                mf.append(f"{MF} {d}, {vr(vSEL+2-2*h,4)}, {ar(128+(ud*2+qt)*4,4)}, {d}")
    st = Stage(mf)
    st.put(0, f"v_add_f32 v{vL[0]}, v{vL[0]}, v{vSTB+2}")
    st.put(0, f"v_add_f32 v{vL[1]}, v{vL[1]}, v{vSTB+3}")
    c = Chain(pack_items(6, 4)); c.fill(st, 0, 31)
    st.emit(a)
    a("s_nop 5")
    c.flush(a)
    a("s_branch L_post2")
    merge("L_lpack")
    st = mk_L("lp")
    c = Chain([(f"v_mov_b32 v{vSTAT}, v{NEGM(0)}", 0), (f"v_mov_b32 v{vSTAT+1}, v{NEGM(1)}", 0), (f"v_mov_b64 {vr(vSTAT+2,2)}, {vr(vL[0],2)}", 0)] + pack_items(38, 4))
    c.fill(st, 35)
    st.put(62, f"s_cmp_eq_u32 s{sTYPE}, 2")
    st.emit(a)
    a("s_nop 5")
    print("Lpack tail", len(c.items), file=sys.stderr)
    c.flush(a)
    a("s_cbranch_scc0 L_post2b")
    stamp(5)
    a(f"""
    s_mov_b32 s{sTYPE}, 3
    s_mov_b32 s{sN}, 0
    s_sub_u32 s{sND}, 15, s{sQI}
    s_lshl_b32 s{sND}, s{sND}, 2
    s_add_u32 s{sND}, s{sND}, s{sWAVE}
    s_lshr_b32 s{sCNT}, s{sU2}, 1
    s_sub_u32 s{sCNT}, s{sCNT}, 1
    s_sub_u32 s{sEV}, s{sCNT}, 1
    s_add_u32 s{sFQ}, s{sFQ}, {FL_P - FL_Q}
    s_add_u32 s{sT+3}, s{sPT}, 16384
    buffer_store_dwordx4 {vr(vSTAT,4)}, v{vL16}, {WS}, s{sT+3} offen sc1
    """)
    st = mk_F(128, "fb")
    c = []
    for i in range(16):
        if i % 4 == 0: c.append((f"s_add_u32 s{sT+3}, s{sPT}, {i*1024}", 1))
        c.append((f"buffer_store_dwordx4 {vr(O(2*(i>>1),i&1),4)}, v{vL16}, {WS}, s{sT+3} offen offset:{(i&3)*1024}{OPT['kvsc']}", 1))
    c = Chain(c); c.fill(st)
    c2 = Chain(finit()); c2.fill(st, 0, 30); assert not c2.items
    print("Fb leftover", len(c.items), file=sys.stderr)
    st.emit(a)
    c.flush(a)
    f_end("fb", None, "L_end")
    loop(128, 1)
    a(f"""
    s_cmp_eq_u32 s{sTYPE}, 3
    s_cbranch_scc0 L_lpack
    s_waitcnt vmcnt(16)
    s_barrier
    buffer_store_dword v{vONE}, v{vFLG}, {WS}, s{sFQ} offen sc1
    s_mov_b32 s{sTYPE}, 4
    s_mov_b32 s{sEV}, 0
    s_cmp_eq_u32 s{sCNT}, 0
    s_cbranch_scc1 L_lpack
    s_branch L_steady1
    """)
    a.label("L_post2b")
    merge("L_post2")
    stamp(6)
    a("s_nop 1")
    C0, CO, FP = sU1, sU2, sW0
    XO = [sCNT, sEV]; BO = [sN, sND]
    vXO, vBO, vC1, vFG, vFS = 44, 45, 46, 47, 48
    fs = f"""
    s_load_dwordx2 s[{sSA}:{sSA+1}], s[0:1], 0
    s_load_dwordx2 s[{sG}:{sG+1}], s[0:1], 80
    s_load_dwordx2 s[{sSB}:{sSB+1}], s[0:1], 88
    s_mov_b32 s{sSA+2}, {2048*896}
    s_mov_b32 s{sSB+2}, {2048*896}
    s_mov_b32 s{sG+2}, 896
    s_and_b32 s{C0}, s2, 3
    s_mul_i32 s{C0}, s{C0}, 7
    s_lshl_b32 s{sT}, s{sWAVE}, 1
    s_add_u32 s{C0}, s{C0}, s{sT}
    s_lshr_b32 s{sT}, s2, 4
    s_mul_i32 s{CO}, s{sT}, {PS_R}
    s_bfe_u32 s{sT+4}, s2, 0x20002
    s_mul_i32 s{sT+5}, s{sT+4}, {28*1024}
    s_add_u32 s{CO}, s{CO}, s{sT+5}
    s_lshl_b32 s{sT+5}, s{C0}, 10
    s_add_u32 s{CO}, s{CO}, s{sT+5}
    s_add_u32 s{CO}, s{CO}, {WS_PS}
    s_lshr_b32 s{FP}, s2, 2
    s_lshl_b32 s{FP}, s{FP}, 7
    s_add_u32 s{FP}, s{FP}, {WS_FLG + FL_S}
    v_min_u32 v{vFG}, 6, v{vLANE}
    v_lshl_add_u32 v{vFG}, v{vFG}, 2, 64
    v_and_b32 v{vXO}, 15, v{vLANE}
    v_lshlrev_b32 v{vFS}, 2, v{vXO}
    s_lshr_b32 s{sT+5}, s2, 2
    s_lshl_b32 s{sT+5}, s{sT+5}, 5
    v_add_u32 v{vXO}, s{sT+5}, v{vXO}
    v_mul_u32_u24 v{vXO}, 896, v{vXO}
    v_and_b32 v{vBO}, 48, v{vLANE}
    v_lshlrev_b32 v{vBO}, 1, v{vBO}
    v_add_u32 v{vXO}, v{vXO}, v{vBO}
    """
    for k in range(2):
        fs += f"""
        s_add_u32 s{sT}, s{C0}, {k}
        s_lshr_b32 s{sT+4}, s{sT}, 2
        s_lshl_b32 s{BO[k]}, s{sT+4}, 7
        s_and_b32 s{sT+4}, s{sT}, 1
        s_lshl_b32 s{sT+4}, s{sT+4}, 4
        s_add_u32 s{BO[k]}, s{BO[k]}, s{sT+4}
        s_bfe_u32 s{sT+4}, s{sT}, 0x10001
        s_mul_i32 s{XO[k]}, s{sT+4}, {16*896}
        s_add_u32 s{XO[k]}, s{XO[k]}, s{BO[k]}
        """
    fs = [(x.strip(), 1) for x in fs.split("\n") if x.strip()]
    fs.append((f"s_cmp_eq_u32 s{sWAVE}, 3\ns_cselect_b32 s{XO[1]}, {OOB}, s{XO[1]}\ns_cselect_b32 s{sT+4}, {OOB}, 0", 1))
    fs.append((f"v_add_u32 v{vC1}, s{sT+4}, v{vL16}", 1))
    fs.append((f"s_cmp_eq_u32 s{sWAVE}, 0\ns_cselect_b32 s{FP}, s{FP}, {OOB}", 1))
    fs = Chain(fs)
    J = Jobs()
    GL = 128
    for k in range(2):
        J.add("gl", None, f"buffer_load_dwordx4 {ar(GL+56+4*k,4)}, v{vXO}, {sr(sSA,4)}, s{XO[k]} offen", 3*64, 7*64)
        J.add("gl", None, f"buffer_load_dwordx4 {ar(GL+64+4*k,4)}, v{vBO}, {G}, s{BO[k]} offen", 3*64, 7*64)
    for n in range(7):
        for k in range(2):
            J.add("gl", f"s_add_u32 s{sJT}, s{CO}, {(16+n)*PS_SRC}", f"buffer_load_dwordx4 {ar(GL+n*8+4*k,4)}, v{(vL16, vC1)[k]}, {WS}, s{sJT} offen offset:{k*1024} sc1 ; @gl", 4*64, 7*64)
    for s in range(7):
        st = Stage(mf_post(s)); common_fill(st, dma=(s < 3), nd=(None, None, None, 16, 8, 0, 0)[s], last=(s == 6))
        if s == 0:
            c = xlane_ops("v_add_f32", vL[0], vT) + xlane_ops("v_add_f32", vL[1], vT) + [(f"v_rcp_f32 v{vRINV[0]}, v{vL[0]}", 0), (f"v_rcp_f32 v{vRINV[1]}, v{vL[1]}", 1)]
            c = Chain(c); c.fill(st); assert not c.items
            fs.fill(st)
        else:
            gaps = [17, 33, 49, 57]
            post_place(st, s-1, True, sPSS, gaps)
            if s == 2: st.put(60, "s_waitcnt lgkmcnt(0)")
            if s == 2: poll_issue(st, 41, vFG, FP, "gf")
            if s == 3: poll_check(st, 58, vFG, FP, "gf", False)
            J.place(st, s, 7, [1, 9, 13, 25, 29, 41, 45, 61])
            post_sched(st, s-1, True, gaps)
            fs.fill(st)
            if s == 1: assert not fs.items
        st.emit(a)
    assert not J.jobs
    post_flush(6, True, sPSS)
    stamp(7)
    a(f"s_mov_b32 s{sT+4}, 0x00003f80")
    a(f"s_mov_b32 s{sT+5}, 0x3f800000")
    a(f"s_mov_b32 s{sT+6}, 0xffff0000")
    a(f"s_mov_b32 s{sT+7}, {f2u(-1.4426950408889634):#x}")
    LB = 128; TB = 64
    XB, BB = TB+56, 52
    GA, SA_ = 12, 28
    a("s_waitcnt vmcnt(@since:gl)")
    for i in range(64): a(f"v_accvgpr_read_b32 v{TB+i}, a{GL+i}")
    for i in range(8): a(f"v_accvgpr_read_b32 v{BB+i}, a{GL+64+i}")
    def accum(base, acc, first):
        for i in range(8):
            r = base+i
            if first:
                a(f"v_lshlrev_b32 v{acc+2*i}, 16, v{r}"); a(f"v_and_b32 v{acc+2*i+1}, s{sT+6}, v{r}")
            else:
                a(f"v_dot2_f32_bf16 v{acc+2*i}, v{r}, s{sT+4}, v{acc+2*i}"); a(f"v_dot2_f32_bf16 v{acc+2*i+1}, v{r}, s{sT+5}, v{acc+2*i+1}")
    def rnd_pair(r0, r1, t):
        a(f"v_cvt_pk_bf16_f32 v{t}, v{r0}, v{r1}")
        a(f"v_lshlrev_b32 v{r0}, 16, v{t}")
        a(f"v_and_b32 v{r1}, s{sT+6}, v{t}")
    for n in range(7): accum(TB+n*8, GA, n == 0)
    a("s_waitcnt vmcnt(0)")
    a(f"buffer_store_dword v{vONE}, v{vFLG}, {WS}, s{sFSS} offen sc1")
    a("s_nop 0")
    T1, T2, T3 = 2, 3, 4
    for i in range(8):
        g0, g1 = GA+2*i, GA+2*i+1
        rnd_pair(g0, g1, T1)
        a(f"v_lshlrev_b32 v{T2}, 16, v{BB+i}")
        a(f"v_and_b32 v{T3}, s{sT+6}, v{BB+i}")
        a(f"v_add_f32 v{g0}, v{g0}, v{T2}")
        a(f"v_add_f32 v{g1}, v{g1}, v{T3}")
        rnd_pair(g0, g1, T1)
        a(f"v_mul_f32 v{T2}, s{sT+7}, v{g0}")
        a(f"v_mul_f32 v{T3}, s{sT+7}, v{g1}")
        a(f"v_exp_f32 v{T2}, v{T2}")
        a(f"v_exp_f32 v{T3}, v{T3}")
        a("s_nop 0")
        a(f"v_add_f32 v{T2}, 1.0, v{T2}")
        a(f"v_add_f32 v{T3}, 1.0, v{T3}")
        a(f"v_rcp_f32 v{T2}, v{T2}")
        a(f"v_rcp_f32 v{T3}, v{T3}")
        a("s_nop 0")
        a(f"v_mul_f32 v{g0}, v{g0}, v{T2}")
        a(f"v_mul_f32 v{g1}, v{g1}, v{T3}")
        rnd_pair(g0, g1, T1)
    a(f"s_mov_b32 s{sT+1}, 0")
    a(f"s_cmp_lg_u32 s{sWAVE}, 0")
    a("s_cbranch_scc1 L_fgo")
    a.label("L_fpoll")
    a(f"""
    buffer_load_dword v{vPOLL}, v{vFS}, {WS}, s{FP} offen sc1
    s_add_u32 s{sT+1}, s{sT+1}, 1
    s_waitcnt vmcnt(0)
    v_cmp_ne_u32 vcc, 1, v{vPOLL}
    s_cmp_lt_u32 s{sT+1}, 0x10000
    s_cbranch_vccz L_fgo
    s_sleep {OPT['fsleep']}
    s_cbranch_scc1 L_fpoll
    """)
    a.label("L_fgo")
    a("s_barrier")
    stamp(8)
    for n in range(16):
        a(f"s_add_u32 s{sT}, s{CO}, {n*PS_SRC}")
        a(f"buffer_load_dwordx4 {vr(LB+n*8,4)}, v{vL16}, {WS}, s{sT} offen sc1")
        a(f"buffer_load_dwordx4 {vr(LB+n*8+4,4)}, v{vC1}, {WS}, s{sT} offen offset:1024 sc1")
    for n in range(16):
        a(f"s_waitcnt vmcnt({2*(15-n)})")
        accum(LB+n*8, SA_, n == 0)
    a("s_nop 2")
    for i in range(8):
        g0, g1, s0, s1 = GA+2*i, GA+2*i+1, SA_+2*i, SA_+2*i+1
        rnd_pair(s0, s1, T1)
        a(f"v_mul_f32 v{g0}, v{g0}, v{s0}")
        a(f"v_mul_f32 v{g1}, v{g1}, v{s1}")
        rnd_pair(g0, g1, T1)
        a(f"v_lshlrev_b32 v{T2}, 16, v{XB+i}")
        a(f"v_and_b32 v{T3}, s{sT+6}, v{XB+i}")
        a(f"v_add_f32 v{g0}, v{g0}, v{T2}")
        a(f"v_add_f32 v{g1}, v{g1}, v{T3}")
        a(f"v_cvt_pk_bf16_f32 v{LB+i}, v{g0}, v{g1}")
        if i % 4 == 3: a(f"buffer_store_dwordx4 {vr(LB+i-3,4)}, v{vXO}, {sr(sSB,4)}, s{XO[i>>2]} offen")
    if stamps:
        a("s_waitcnt vmcnt(0)")
        stamp(9)
        a("s_waitcnt lgkmcnt(0)")
        if OPT["enc"] >= 0:
            a(f"""
            s_add_u32 s{sT+1}, s{streg(OPT["enc"])}, 10000
            s_mov_b32 s{sT+2}, 0
            L_enc:
            s_memrealtime s[{sT+4}:{sT+5}]
            s_add_u32 s{sT+2}, s{sT+2}, 1
            s_waitcnt lgkmcnt(0)
            s_cmp_gt_u32 s{sT+2}, 100000
            s_cbranch_scc1 L_end
            s_sub_u32 s{sT+4}, s{sT+4}, s{sT+1}
            s_cmp_lt_i32 s{sT+4}, 0
            s_cbranch_scc1 L_enc
            s_endpgm
            """)
        for i in range(12): a(f"v_mov_b32 v{16+i}, s{streg(min(i,9))}")
        a(f"""
        s_lshl_b32 s{sT+1}, s2, 2
        s_add_u32 s{sT+1}, s{sT+1}, s{sWAVE}
        s_lshl_b32 s{sT+1}, s{sT+1}, 6
        s_add_u32 s{sT+1}, s{sT+1}, {WS_STAMP}
        buffer_store_dwordx4 v[16:19], v{vFLG}, {WS}, s{sT+1} offen
        buffer_store_dwordx4 v[20:23], v{vFLG}, {WS}, s{sT+1} offen offset:16
        buffer_store_dwordx4 v[24:27], v{vFLG}, {WS}, s{sT+1} offen offset:32
        s_sub_u32 s{sT+1}, s{sT+1}, {WS_STAMP}
        s_lshl_b32 s{sT+1}, s{sT+1}, 3
        s_add_u32 s{sT+1}, s{sT+1}, {WS_STAMP + 0x100000}
        v_lshlrev_b32 v2, 2, v{vLANE}
        buffer_store_dword v0, v2, {WS}, s{sT+1} offen
        buffer_store_dword v{vKV}, v2, {WS}, s{sT+1} offen offset:256
        """)
    a.label("L_end")
    a("s_endpgm")
    for typ in ("K", "V"):
        for nm, ok, ldi, red, reg in (("zwait", "zok", f"buffer_load_dword v{vPOLL}, v{vL4}, {sr(sDBG,4)}, 0 offen sc1", "", vPOLL),
                ("prepwait", "prepok", f"buffer_load_dwordx4 {vr(PV,4)}, v{vL16}, {WS}, s{gIT} offen sc1",
                 f"v_and_b32 v{PV}, v{PV}, v{PV+1}\nv_and_b32 v{PV+2}, v{PV+2}, v{PV+3}\nv_and_b32 v{PV}, v{PV}, v{PV+2}", PV)):
            a.label(f"L_{nm}{typ}")
            a(f"s_mov_b32 s{sT+4}, 0")
            a.label(f"L_{nm}2{typ}")
            a(f"""
            s_sleep 4
            {ldi}
            s_add_u32 s{sT+4}, s{sT+4}, 1
            s_waitcnt vmcnt(0)
            {red}
            v_cmp_ne_u32 vcc, s{sT+1}, v{reg}
            s_cmp_ge_u32 s{sT+4}, 0x10000
            s_cbranch_scc1 L_{ok}{typ}
            s_nop 2
            s_cbranch_vccnz L_{nm}2{typ}
            s_branch L_{ok}{typ}
            """)
    for (tag, voff, soff, lane0) in POLLS:
        a.label(f"L_pw_{tag}")
        a(f"s_mov_b32 s{sT+1}, 0")
        a.label(f"L_pw2_{tag}")
        a(f"""
        buffer_load_dword v{vPOLL}, v{voff}, {WS}, s{soff} offen sc1
        s_add_u32 s{sT+1}, s{sT+1}, 1
        s_waitcnt vmcnt(0)
        v_cmp_ne_u32 s[{sT+4}:{sT+5}], 1, v{vPOLL}
        s_cmp_ge_u32 s{sT+1}, 0x10000
        s_cbranch_scc1 L_po_{tag}
        s_sleep {OPT['psleep']}
        """)
        if lane0 is True: a(f"s_bitcmp1_b32 s{sT+4}, 0")
        else: a(f"s_cmp_lg_u64 s[{sT+4}:{sT+5}], 0")
        a(f"s_cbranch_scc1 L_pw2_{tag}")
        a(f"s_branch L_po_{tag}")
    for (lab, sub, back) in STUBS:
        a.label(lab)
        a(f"s_call_b64 s[{sRET}:{sRET+1}], {sub}")
        a(f"s_branch {back}")
    for b in range(2):
        a.label(f"L_mask{b}")
        a("s_nop 7")
        a(f"s_cmp_eq_u32 s{sN}, s{sND}")
        a(f"s_cbranch_scc0 L_maskall{b}")
        for r in range(4):
            a(f"v_cndmask_b32 v{S(b,0,0)+r}, v{S(b,0,0)+r}, v{vBIG}, s[{sMASK+2*r}:{sMASK+2*r+1}]")
            a(f"v_cndmask_b32 v{S(b,1,1)+r}, v{S(b,1,1)+r}, v{vBIG}, s[{sMASK+2*r}:{sMASK+2*r+1}]")
            a(f"v_mov_b32 v{S(b,1,0)+r}, v{vBIG}")
        a(f"s_setpc_b64 s[{sRET}:{sRET+1}]")
        a.label(f"L_maskall{b}")
        for i in range(16): a(f"v_mov_b32 v{S(b,0,0)+i}, v{vBIG}")
        a(f"s_setpc_b64 s[{sRET}:{sRET+1}]")
    a.label("L_fchk")
    hi, lo = f2u(2.0**OPT["thr"]), f2u(2.0**-OPT["thr"])
    a(f"s_add_u32 s{sT+1}, s{sND}, 1")
    a(f"s_cmp_gt_u32 s{sN}, s{sT+1}")
    a("s_cbranch_scc1 L_fret")
    for qt in range(2):
        a(f"v_mov_b32 v{vT+8+qt}, v{vSUM[qt][0]}")
        xlane(a, "v_add_f32", vT+8+qt, vT)
        a(f"v_subrev_u32 v{vT+8+qt}, {lo:#x}, v{vT+8+qt}")
    a(f"v_max_u32 v{vT+8}, v{vT+8}, v{vT+9}")
    a(f"v_cmp_lt_u32 vcc, {hi-lo:#x}, v{vT+8}")
    a("s_nop 4")
    a("s_cbranch_vccnz L_rare0")
    a.label("L_fret")
    a(f"s_setpc_b64 s[{sRET}:{sRET+1}]")
    for b in range(2):
        a.label(f"L_rare{b}")
        a("s_nop 7")
        D = [vT+8, vT+9]; F = [vT+10, vT+11]
        for qt in range(2):
            r0, r1 = S(b,0,qt), S(b,1,qt)
            a(f"v_max3_f32 v{D[qt]}, v{r0}, v{r0+1}, v{r0+2}")
            a(f"v_max3_f32 v{D[qt]}, v{D[qt]}, v{r0+3}, v{r1}")
            a(f"v_max3_f32 v{D[qt]}, v{D[qt]}, v{r1+1}, v{r1+2}")
            a(f"v_max_f32 v{D[qt]}, v{D[qt]}, v{r1+3}")
            xlane(a, "v_max_f32", D[qt], vT)
            a(f"v_max_f32 v{D[qt]}, s{sCLAMP}, v{D[qt]}")
            a(f"v_max_f32 v{F[qt]}, 0, v{D[qt]}")
            a(f"v_exp_f32 v{F[qt]}, -v{F[qt]}")
            for i in range(4): a(f"v_sub_f32 v{NEGM(qt)+i}, v{NEGM(qt)+i}, v{D[qt]}")
            for bb in range(2):
                for kt in range(2):
                    for i in range(4): a(f"v_sub_f32 v{S(bb,kt,qt)+i}, v{S(bb,kt,qt)+i}, v{D[qt]}")
            a(f"v_mul_f32 v{vL[qt]}, v{F[qt]}, v{vL[qt]}")
        for o in sm_ops(b): a(o)
        a(f"s_cmp_eq_u32 s{sFIRST}, 1")
        a(f"s_cbranch_scc1 L_rare_ret{b}")
        for dt in range(16):
            for qt in range(2):
                for i in range(4): a(f"v_mul_f32 v{O(dt,qt)+i}, v{F[qt]}, v{O(dt,qt)+i}")
        a.label(f"L_rare_ret{b}")
        a(f"s_cmp_lg_u32 s{sCNT}, s{sEV}")
        a("s_nop 0")
        a(f"s_setpc_b64 s[{sRET}:{sRET+1}]")
    a.label("L_slowcomb")
    a("s_nop 7")
    wA, wB = [vT+8, vT+9], [vT+10, vT+11]
    for qt in range(2):
        a(f"""
        v_min_f32 v{vT+6}, v{NEGM(qt)}, v{vSTB+qt}
        v_sub_f32 v{wA[qt]}, v{vT+6}, v{NEGM(qt)}
        v_sub_f32 v{wB[qt]}, v{vT+6}, v{vSTB+qt}
        v_exp_f32 v{wA[qt]}, v{wA[qt]}
        v_exp_f32 v{wB[qt]}, v{wB[qt]}
        s_nop 0
        v_mul_f32 v{vL[qt]}, v{wA[qt]}, v{vL[qt]}
        v_mul_f32 v{vSTB+2+qt}, v{wB[qt]}, v{vSTB+2+qt}
        """)
    for dt in range(16):
        for qt in range(2):
            for i in range(4): a(f"v_mul_f32 v{O(dt,qt)+i}, v{wA[qt]}, v{O(dt,qt)+i}")
    for i in range(64):
        qt = (i >> 2) & 1
        a(f"""
        v_accvgpr_read_b32 v{vT}, a{128+i}
        v_lshlrev_b32 v{vT+1}, 16, v{vT}
        v_and_b32 v{vT}, 0xffff0000, v{vT}
        v_mul_f32 v{vT+1}, v{wB[qt]}, v{vT+1}
        v_mul_f32 v{vT}, v{wB[qt]}, v{vT}
        v_cvt_pk_bf16_f32 v{vT}, v{vT+1}, v{vT}
        v_accvgpr_write_b32 a{128+i}, v{vT}
        """)
    a("s_nop 1")
    a("s_branch L_comb")
    a.label("L_codeend")
    lines = []
    for l in a.lines: lines += l.split("\n")
    ghost = [l.startswith("@ghost ") for l in lines]
    lines = [l[7:] if g else l for l, g in zip(lines, ghost)]
    lines = resolve_vm(lines)
    lines = [l.replace("@@buffer", "buffer") for l, g in zip(lines, ghost) if not g]
    errs = check_hazards(lines) + check_scc(lines)
    for e in errs[:30]: print("HAZARD", e, file=sys.stderr)
    lines = [re.sub(r"\s*; @\w+", "", l) for l in lines]
    lines = [l.strip() for l in lines if l.strip()]
    i, j = lines.index("L_gemmV:"), lines.index("L_P1A:")
    k = lines.index("L_zwaitV:"); k2 = lines.index("s_branch L_prepokV") + 1
    assert lines[i-1] == "s_branch L_P1A"
    lines = [".p2align 8"] + lines[i:j] + lines[k:k2] + lines[:i-1] + lines[j:k] + lines[k2:]
    lines = compact(lines)
    return "\n".join(lines) + "\n", kernel_desc(name, 512, 256)

if __name__ == "__main__":
    import ast
    for x in sys.argv[2:]:
        k, v = x.split("=")
        OPT[k] = ast.literal_eval(v)
    NAME = "recurrent_scan__compressed_kv_cla__dense_activation_squared_relu__prompt_kernel"
    body, desc = gen(NAME)
    ref = open("recurrent_scan__compressed_kv_cla__dense_activation_squared_relu__prompt.s.ref").read().split("\n")
    hdr = [l for l in ref if l.startswith(";") and "launch" not in l and "grid=" not in l]
    hdr += ["; @launch grid=(256,1,1) block=(256,1,1) lds=163840", '.amdgcn_target "amdgcn-amd-amdhsa--gfx950"', ".text"]
    txt = "\n".join(hdr) + "\n" + body + '.section .rodata,"a"\n.p2align 6\n' + desc
    open(sys.argv[1], "w").write(txt)
    print(len(txt), "bytes", file=sys.stderr)
```

```python
import sys
from fw import *
from layout2 import *

OPT = dict(encw=[0, 0], enc=-1, ntA="", ntB=" nt", ntS=" nt", chq=1, chp=1, cyc=0, npro=6, gcap=[4, 4, 3], dg2=8, xpos=3, rotm=0, rot=1, sync=[6, 10, 12, 15, 20, 22], xstep=20, wbl2=0, pfk=0, pfd=4, pfo=[0], pfn=2, smin=0, voff=0, dbgside=0, tlb=0, tlbm=0, tlbs=16, flit=9, npeel=7, slt=[100, 260, 780], slstep=16, sld=180, map2=False, kvb0=256, kvstepb=16, psleep=4, prep=1, pst=False, cpf=True, fine=False, touch=False, sc1ld=" sc1", stamps=False, early=[5, 13, 21, 29], late=[37, 45, 53, 61], cap=7, capb=8, capq=9, capn=12, kvstep=9, a15=38, fsleep=2, fdelay=96, qstep=7, wideloop=False, thr=40, kvsc=" sc1", sidesc=" sc1")

vLANE, vDMA, vTE, vTO, vL16, vRD, vPOLL, vFLG, vONE, vL4, vKV = range(1, 12)
DA = [12, 13, 14, 15]; DB = [16, 17, 18, 19]; RA = [20, 21]; RB = [22, 23, 24, 25]
vSW, vSF, vSX, vG1 = 26, 27, 28, 29
GT = 30
vT = 12
BIAS = 12
O0 = 128
def O(dt, qt): return O0 + (dt*2+qt)*4
def S(b, kt, qt): return 64 + b*16 + (kt*2+qt)*4
def P(b, qt): return 96 + b*8 + qt*4
def NEGM(qt): return 112 + qt*4
vL = [120, 121]
vSUM = [[122, 123], [124, 125]]
vBIG = 126
vSTAT = 44
vSEL = 48
vRINV = [54, 55]
vSTB = 56
def accreg(pos): return vr(48+4*pos, 4) if pos < 52 else ar(208+4*(pos-52), 4)
NE = 6
def PK(c): return 48+4*c if c < 20 else (48+4*(c-20) if c < 20+NE else 48+4*(20+c))
def Q(qb, qt, u): return qb + (qt*8+u)*4
def FR(f): return 64 + (f % 16)*4
def X(qt, u): return 128 + (u*2+qt)*4
def FA(b, m): return (64 if b == 0 else 0) + m*4
def FB(b, n): return (64 if b == 0 else 0) + 32 + n*4
WOL = 192
SLD = 128

sWS, sSA, sSB, sG, sDBG = 4, 8, 12, 16, 20
_n = [24]
def sal(n=1, al=1):
    _n[0] = (_n[0] + al - 1)//al*al
    r = _n[0]; _n[0] += n; return r
sWAVE, sHEAD, sJ, sQI, sWHICH = [sal() for _ in range(5)]
gA0, gA1, gB0, gB1, gMA, gMB, gIT, gD, gCNT, gFL = [sal() for _ in range(10)]
sTAU, sM0, sOFFA, sOFFB, sRDD, sRDS, sXOFF, sXOF2, sN, sND = gA0, gA1, gB0, gB1, gD, gCNT, sal(), sal(), sal(), sal()
sCNT, sEV, sCLAMP, sFIRST = sal(), sal(), sal(), sal()
sRET = sal(2, 2)
sMASK = sal(8, 4)
sTYPE, sU1, sU2, sW0 = sal(), sal(), sal(), sal()
sKVB, sKVI = sal(), sal()
sQST, sPT, sPSG, sPSS = sal(), sal(), sal(), sal()
sFKV, sFKVP, sFQ, sFSG, sFSS = [sal() for _ in range(5)]
sT = sal(8, 4)
sLN = sal(2, 2)
sFS = sal(2, 2); sW4K = 3
sPF = sRET; sPD = sT+5; sEXP = gFL
sSTAMP = sal(0, 2)
NSTAMP = (102 - sSTAMP)//2
print("sgpr used", sSTAMP, "stamps", NSTAMP, file=sys.stderr)
WS = sr(sWS, 4)

STUBS = []
def ld(): return OPT["sc1ld"]
def FT(): return "s_memtime" if OPT["cyc"] else "s_memrealtime"

XG = [1, 9, 17, 25, 33, 41, 49, 57]
XG4 = list(range(1, 64, 4))
def common_fill(st, dma=True, nd=None, last=False, novm=False, rdl=False):
    if nd is None: nd = 16 + len(OPT["early"]) + sum(1 for g in OPT["late"] if g < 38)
    for G in range(8):
        g0 = G*8
        Gn = (G+3) % 8
        for i in range(4):
            f = Gn*4+i
            if not (last and G > 4): st.put(g0+2*i, f"ds_read_b128 {ar(FR(f),4)}, v{vRD} offset:{f*1024}")
        if last and G >= 4:
            if G < 7: st.put(g0+6, f"s_waitcnt lgkmcnt({(7, 4, 0)[G-4]})")
        elif G == 4:
            st.put(g0+6, "s_waitcnt lgkmcnt(7)" if novm else f"s_waitcnt vmcnt(@dma:{nd}) lgkmcnt(7)")
            st.put(g0+7, "s_barrier")
            st.put(g0+7, f"v_add_u32 v{vRD}, s{sRDD}, v{vRD}")
        else:
            st.put(g0+6, "s_waitcnt lgkmcnt(7)")
    for i, g in enumerate(OPT["early"] if dma else []):
        st.put(g, f"buffer_load_dwordx4 v{vDMA}, {WS}, s{sOFFB} offen offset:{i*1024}{ld()} lds")
    if dma: st.put(31, f"v_readlane_b32 s{sOFFA}, v{vTO}, s{sTAU}")
    st.put(31, f"s_add_u32 m0, s{sM0}, 16384")
    st.put(34, f"s_add_u32 s{sM0}, s{sM0}, s{sRDD}")
    st.put(36, f"s_cmp_ge_u32 s{sM0}, 131072")
    st.put(38, f"s_cselect_b32 s{sRDD}, s{gMA}, s{gMB}")
    st.put(44, f"s_add_u32 s{sTAU}, s{sTAU}, 1")
    for i, g in enumerate(OPT["late"] if dma else []):
        st.put(g, f"buffer_load_dwordx4 v{vDMA}, {WS}, s{sOFFA} offen offset:{i*1024}{ld()} lds")
    if dma or rdl: st.put(55, f"v_readlane_b32 s{sOFFB}, v{vTE}, s{sTAU}")
    st.put(63, f"s_mov_b32 m0, s{sM0}")
    st.scc_busy |= {36, 37}
    if OPT["fine"]:
        st.put(4, f"{FT()} s[{sFS}:{sFS+1}]")
        st.put(6, f"v_mov_b32_dpp v{vKV}, v{vKV} wave_shr:1 row_mask:0xf bank_mask:0xf")
        st.put(62, f"v_writelane_b32 v{vKV}, s{sFS}, 0")

class Jobs:
    def __init__(self): self.jobs = []; self.at = {}
    def add(self, key, pre, ins, early, late): self.jobs.append((late, len(self.jobs), early, pre, ins, key))
    def place(self, st, s, cap=6, grid=None):
        slots = [g for g in (grid or XG) if not st.hasD(g) and st.free(g) == 2 and st.nS(g) == 0]
        n = 0
        avail = len([j for j in self.jobs if j[2] <= s*64+63])
        k = min(cap, avail, len(slots))
        use = [slots[(i*len(slots))//k] for i in range(k)] if k else []
        for g in slots:
            t = s*64+g
            c = sorted(j for j in self.jobs if j[2] <= t)
            if not c: continue
            j = c[0]
            nxt = [x for x in slots if x > g]
            urgent = j[0] < (s*64+nxt[0] if nxt else (s+1)*64+1)
            if not (urgent or (n < cap and (g in use or len(nxt) < k-n))): continue
            assert t <= j[0] + (24 if j[5][0] == "x" else 0) or j[5] in ("qs", "kvf", "qf") or (j[5] == "kv" and j[2] >= 64), ("job late", j, t)
            if j[3]:
                assert g-1 not in st.scc_busy
                st.put(g-1, j[3])
            st.put(g, j[4]); self.jobs.remove(j); self.at[j[5]] = t; n += 1

def mf_pv(half, pb, czero=False):
    return [f"{MF} {vr(O(dt,qt),4)}, {ar(FR(half*16+dt),4)}, {vr(P(pb,qt),4)}, {'0' if czero else vr(O(dt,qt),4)}"
            for dt in range(16) for qt in range(2)]
def mf_qk(half, sb, qb, czero=False):
    out = []
    for kt in range(2):
        seq = [(u, qt) for u in range(8) for qt in range(2)]
        if OPT["chq"]: seq = [(g*4+u, qt) for g in range(2) for qt in ((0, 1), (1, 0))[g] for u in range(4)]
        for u, qt in seq:
            c = ('0' if czero else vr(NEGM(qt),4)) if u == 0 else vr(S(sb,kt,qt),4)
            out.append(f"{MF} {vr(S(sb,kt,qt),4)}, {ar(FR(half*16+kt*8+u),4)}, {ar(Q(qb,qt,u),4)}, {c}")
    return out
def mf_proj(s, init=None):
    out = []
    for nt in range(16):
        seq = [(0, 0, 1), (1, 0, 0), (1, 1, 1), (0, 1, 0)] if OPT["chp"] else [(0, 0, 1), (0, 1, 1), (1, 0, 0), (1, 1, 0)]
        for uu, qt, first in seq:
            c = vr(O(nt,qt),4)
            if first and init == "zero": c = "0"
            if first and init == "bias": c = vr(O(nt,1),4)
            out.append(f"{MF} {vr(O(nt,qt),4)}, {ar(FR(2*nt+uu),4)}, {ar(X(qt,2*s+uu),4)}, {c}")
    return out
def PA(b, nt, qt): return 64 + (nt*2+qt)*4 if b == 0 else O(2*nt+1, qt)
def mf_post(s):
    out = []
    for f in range(32):
        u, nt = f >> 2, f & 3
        for qt in range(2):
            d = vr(PA(s & 1, nt, qt), 4)
            out.append(f"{MF} {d}, {ar(FR(f),4)}, {vr(O(2*u,qt),4)}, {'0' if u == 0 else d}")
    return out

def sm_ops(b):
    ops = []
    seq = [(kt, qt, rp) for kt in range(2) for qt in range(2) for rp in range(2)]
    pend = []
    for i, (kt, qt, rp) in enumerate(seq):
        t0 = vT + (i % 4)*2
        s0 = S(b,kt,qt) + rp*2
        ops.append(f"v_exp_f32 v{t0}, v{s0}")
        ops += pend[:1]
        ops.append(f"v_exp_f32 v{t0+1}, v{s0+1}")
        ops += pend[1:]
        acc = vSUM[qt][rp]
        if kt == 0: pend = [f"v_add_f32 v{acc}, v{t0}, v{t0+1}"]
        else: pend = [f"v_add_f32 v{acc}, v{acc}, v{t0}", f"v_add_f32 v{acc}, v{acc}, v{t0+1}"]
        pend.append(f"v_cvt_pk_bf16_f32 v{P(b,qt)+kt*2+rp}, v{t0}, v{t0+1}")
    ops.append("s_nop 0")
    ops += pend
    ops += [f"v_add_f32 v{vSUM[0][0]}, v{vSUM[0][0]}, v{vSUM[0][1]}", f"v_add_f32 v{vSUM[1][0]}, v{vSUM[1][0]}, v{vSUM[1][1]}"]
    return ops

def place_sm(st, b, g0, g_end, tag, ladd=True, first=False):
    st.put(g0-1, f"s_cmp_ge_u32 s{sN}, s{sND}")
    st.put(g0, f"s_cbranch_scc1 L_domask_{tag}")
    st.put(g0, f"L_nomask_{tag}:")
    STUBS.append((f"L_domask_{tag}", f"L_mask{b}", f"L_nomask_{tag}"))
    st.put(g0+2 if g0 == 0 else 42, f"s_add_u32 s{sN}, s{sN}, 1")
    st.scc_busy |= {g0-1}
    def add(ins, deps=(), early=0): return st.add(ins, deps, max(early, g0), g_end)
    la = [add(f"v_add_f32 v{vL[q]}, v{vL[q]}, v{vSUM[q][0]}") for q in range(2)] if ladd else []
    seq = [(kt, qt, rp) for kt in range(2) for qt in range(2) for rp in range(2)]
    users = {}; lastacc = {}; NT = 6
    for i, (kt, qt, rp) in enumerate(seq):
        t0 = vT + (i % NT)*2
        s0 = S(b,kt,qt) + rp*2
        war = users.get(i - NT, [])
        e = g0 + (1 if kt == 0 else 3)
        e0 = add(f"v_exp_f32 v{t0}, v{s0}", war, e)
        e1 = add(f"v_exp_f32 v{t0+1}, v{s0+1}", war, e)
        acc = vSUM[qt][rp]
        if kt == 0:
            a0 = add(f"v_add_f32 v{acc}, v{t0}, v{t0+1}", [e0, e1] + la)
            u = [a0]; lastacc[(qt,rp)] = a0
        else:
            a0 = add(f"v_add_f32 v{acc}, v{acc}, v{t0}", [e0, lastacc[(qt,rp)]])
            a1 = add(f"v_add_f32 v{acc}, v{acc}, v{t0+1}", [e1, a0])
            u = [a0, a1]; lastacc[(qt,rp)] = a1
        c = st.add(f"v_cvt_pk_bf16_f32 v{P(b,qt)+kt*2+rp}, v{t0}, v{t0+1}", [e0, e1], g0, g_end-1)
        users[i] = u + [c]
    f0 = add(f"v_add_f32 v{vSUM[0][0]}, v{vSUM[0][0]}, v{vSUM[0][1]}", [lastacc[(0,0)], lastacc[(0,1)]])
    f1 = add(f"v_add_f32 v{vSUM[1][0]}, v{vSUM[1][0]}, v{vSUM[1][1]}", [lastacc[(1,0)], lastacc[(1,1)]])
    hi = f2u(2.0**OPT["thr"])
    if not first:
        mx = add(f"v_max_f32 v{vT+14}, v{vSUM[0][0]}, v{vSUM[1][0]}", [f0, f1])
        add(f"v_cmp_nge_f32 vcc, {hi:#x}, v{vT+14}", [mx])
    else:
        lo = f2u(2.0**-OPT["thr"])
        m0 = add(f"v_subrev_u32 v{vT+14}, {lo:#x}, v{vSUM[0][0]}", [f0])
        m1 = add(f"v_subrev_u32 v{vT+15}, {lo:#x}, v{vSUM[1][0]}", [f1])
        mx = add(f"v_max_u32 v{vT+14}, v{vT+14}, v{vT+15}", [m0, m1])
        add(f"v_cmp_lt_u32 vcc, {hi-lo:#x}, v{vT+14}", [mx])

def xlane_ops(op, v, t1):
    return [(f"v_mov_b32 v{t1}, v{v}", 0), (f"v_permlane16_swap_b32 v{v}, v{t1}", 2), (f"{op} v{v}, v{v}, v{t1}", 1),
            (f"v_mov_b32 v{t1}, v{v}", 0), (f"v_permlane32_swap_b32 v{v}, v{t1}", 2), (f"{op} v{v}, v{v}, v{t1}", 1)]
def xlane(a, op, v, t1):
    for ins, d in xlane_ops(op, v, t1):
        if d: a(f"s_nop {d-1}")
        a(ins)

class Chain:
    def __init__(self, items, grid=None): self.items = list(items); self.lastg = -10; self.grid = grid; self.base = 0; self.lastD = -999; self.minD = 0
    def fill(self, st, g0=0, g1=63):
        g = g0; lastg = -10
        while self.items and g <= g1:
            ins, dist = self.items[0][:2]
            early = self.items[0][2] if len(self.items[0]) > 2 else 0
            c = cls(ins)
            ok = g - lastg >= dist and g >= early and not st.hasD(g)
            if ok and g == lastg and not (c in "VE" and cls(self.last) in "VM"): ok = False
            if ok:
                if c == "S": ok = (st.nS(g) == 0 or st.free(g) >= 1) and not (g in st.scc_busy and not ins.startswith(("s_mov", "s_mul", "s_wait", "s_nop")))
                elif c == "D": ok = st.free(g) == 2 and st.nS(g) == 0 and (self.grid is None or g in self.grid) and self.base + g - self.lastD >= self.minD
                else: ok = st.free(g) >= COST[c]
            if ok:
                st.put(g, ins); self.items.pop(0); lastg = g; self.last = ins
                if c == "D": self.lastD = self.base + g
            else:
                g += 1
    def flush(self, a):
        for it in self.items:
            if it[1]: a(f"s_nop {it[1]-1}")
            a(it[0])
        self.items = []

def gen(name="mega_kernel"):
    a = Asm()
    STUBS.clear()
    stamps = OPT["stamps"]
    nst = [0]
    def stamp_ins():
        i = nst[0]; nst[0] += 1
        assert i < NSTAMP
        return f"s_memrealtime s[{sSTAMP+2*i}:{sSTAMP+2*i+1}]"
    def streg(i): return sSTAMP+2*i if i < NSTAMP else sMASK+2*(i-NSTAMP)
    def stamp(i, p=False):
        if OPT["pst"] and 2 <= i <= 6 and not p: return
        if p and not OPT["pst"]: return
        if stamps: a(f"s_memrealtime s[{streg(i)}:{streg(i)+1}]")
    def merge(lbl, align=False):
        if align: a.raw(".p2align 6")
        a.label(lbl); a.comment("@merge")
    strideA, strideB = 2048, 8192
    a.raw(kernel_header(name))
    a("s_cmp_ge_u32 s2, 256")
    a("s_cbranch_scc0 L_go")
    a("s_endpgm")
    a.label("L_go")
    stamp(0)
    sW12, sX = sMASK, sMASK+4
    gHEAD, gMT, gWM, gWN = sCNT, sEV, sCLAMP, sFIRST
    a(f"""
    s_load_dwordx2 s[{sSA}:{sSA+1}], s[0:1], 8
    s_load_dwordx4 s[{sT}:{sT+3}], s[0:1], 24
    s_load_dwordx2 s[{sWS}:{sWS+1}], s[0:1], 104
    s_load_dwordx2 s[{sX}:{sX+1}], s[0:1], 0
    s_load_dwordx2 s[{sDBG}:{sDBG+1}], s[0:1], 96
    s_load_dwordx2 s[{sW12}:{sW12+1}], s[0:1], 56
    s_load_dwordx2 s[{sRET}:{sRET+1}], s[0:1], 72
    s_load_dwordx2 s[{sT+6}:{sT+7}], s[0:1], 16
    v_and_b32 v{vLANE}, 63, v0
    v_lshrrev_b32 v{GT}, 6, v0
    v_lshlrev_b32 v{vL16}, 4, v{vLANE}
    v_readfirstlane_b32 s{sWAVE}, v{GT}
    s_and_b32 s3, s2, 7
    s_lshl_b32 s3, s3, 1
    s_lshr_b32 s{sJ}, s2, 4
    s_bfe_u32 s{sWHICH}, s2, 0x10003
    s_add_u32 s{sHEAD}, s3, s{sWHICH}
    s_and_b32 s{gHEAD}, s{sJ}, 1
    s_add_u32 s{gHEAD}, s{gHEAD}, s3
    s_bfe_u32 s{gMT}, s2, 0x10005
    s_lshl_b32 s{gMT}, s{gMT}, 2
    s_lshr_b32 s{gWM}, s2, 6
    s_xor_b32 s{gWM}, s{gWM}, 2
    s_or_b32 s{gMT}, s{gMT}, s{gWM}
    """)
    if OPT["map2"]:
        a(f"""
        s_bfe_u32 s{gHEAD}, s2, 0x10005
        s_add_u32 s{gHEAD}, s{gHEAD}, s3
        s_lshl_b32 s{gMT}, s{sWHICH}, 2
        s_bfe_u32 s{gWM}, s2, 0x10004
        s_or_b32 s{gMT}, s{gMT}, s{gWM}
        s_bfe_u32 s{gWM}, s2, 0x10007
        s_xor_b32 s{gWM}, s{gWM}, 1
        s_lshl_b32 s{gWM}, s{gWM}, 1
        s_or_b32 s{gMT}, s{gMT}, s{gWM}
        s_bfe_u32 s{sWHICH}, s2, 0x10006
        """)
    a(f"""
    s_and_b32 s{gWM}, s{sWAVE}, 1
    s_lshr_b32 s{gWN}, s{sWAVE}, 1
    """)
    t2, t3, t4, t5, t6 = GT, GT+1, GT+2, GT+3, GT+4
    a(f"""
    v_lshrrev_b32 v{t2}, 3, v{vLANE}
    s_lshl_b32 s{gA0}, s{gMT}, 8
    s_lshl_b32 s{gA1}, s{sWAVE}, 6
    s_add_u32 s{gA0}, s{gA0}, s{gA1}
    v_add_u32 v{t2}, s{gA0}, v{t2}
    v_lshlrev_b32 v{t2}, 11, v{t2}
    v_and_b32 v{t3}, 7, v{vLANE}
    v_lshrrev_b32 v{t4}, 4, v{vLANE}
    v_xor_b32 v{t5}, v{t3}, v{t4}
    v_lshl_add_u32 v{t5}, v{t5}, 4, v{t2}
    v_xor_b32 v{t6}, 4, v{t4}
    v_xor_b32 v{t6}, v{t3}, v{t6}
    v_lshl_add_u32 v{t6}, v{t6}, 4, v{t2}
    """)
    for jl in range(4):
        a(f"v_add_u32 v{DA[jl]}, {4096 + jl*8*strideA - jl*1024}, v{t5 if (jl & 1) == 0 else t6}")
    a(f"""
    v_bfe_u32 v{t2}, v{vLANE}, 3, 2
    v_lshlrev_b32 v{t3}, 13, v{t2}
    v_lshrrev_b32 v{t4}, 5, v{vLANE}
    v_lshl_add_u32 v{t3}, v{t4}, 7, v{t3}
    v_lshrrev_b32 v{t4}, 1, v{t2}
    v_lshlrev_b32 v{t4}, 2, v{t4}
    v_and_b32 v{t5}, 7, v{vLANE}
    v_xor_b32 v{t4}, v{t4}, v{t5}
    s_lshl_b32 s{gA0}, s{gWM}, 1
    v_xor_b32 v{t4}, s{gA0}, v{t4}
    v_lshl_add_u32 v{t3}, v{t4}, 4, v{t3}
    s_lshl_b32 s{gA0}, s{gHEAD}, 9
    s_lshl_b32 s{gA1}, s{sWAVE}, 16
    s_add_u32 s{gA0}, s{gA0}, s{gA1}
    v_add_u32 v{t3}, s{gA0}, v{t3}
    """)
    for jl in range(4):
        a(f"v_add_u32 v{DB[jl]}, {4096 + (jl>>1)*4*strideB + (jl&1)*256 - jl*1024}, v{t3}")
    a(f"""
    s_mul_i32 s{gA1}, s3, {OPT["rot"]*64}
    s_mul_i32 s{gA0}, s{gMT}, {OPT["rotm"]*128}
    s_add_u32 s{gA1}, s{gA1}, s{gA0}
    s_and_b32 s{gA1}, s{gA1}, 0x7ff
    s_lshl_b32 s{gMA}, s{sWAVE}, 13
    s_lshl_b32 s{gMB}, s{sWAVE}, 12
    s_mov_b32 s{sSA+2}, {4194304+4096}
    s_mov_b32 s{sSA+3}, 0x20000
    s_mov_b32 s{sSB+2}, {8388608+4096}
    s_mov_b32 s{sSB+3}, 0x20000
    @PST2
    s_waitcnt lgkmcnt(0)
    @PST3
    s_sub_u32 s{sSA}, s{sSA}, 4096
    s_subb_u32 s{sSA+1}, s{sSA+1}, 0
    s_cmp_eq_u32 s{sWHICH}, 0
    s_cselect_b32 s{sSB}, s{sT}, s{sT+2}
    s_cselect_b32 s{sSB+1}, s{sT+1}, s{sT+3}
    s_sub_u32 s{sSB}, s{sSB}, 4096
    s_subb_u32 s{sSB+1}, s{sSB+1}, 0
    """)
    for i in (2, 3):
        k = [n for n, l in enumerate(a.lines) if f"@PST{i}" in l][0]
        a.lines[k] = f"s_memrealtime s[{streg(i)}:{streg(i)+1}]" if OPT["pst"] else ""
    MA, MB = 0x107ff, 0x7fffff
    gRA, gRB, gTS = gA1, gCNT, (gA0, sT)
    a(f"s_lshl_b32 s{gRB}, s{gRA}, 12")
    def dma_group(kind, par):
        t = gTS[par & 1]
        if kind[0] == "A":
            _, it, h = kind
            m0 = f"s_add_u32 m0, s{gMA}, {(131072, 0, 65536)[it % 3] + h*4096}"; regs, srd = DA, sSA
            so = f"s_add_u32 s{t}, s{gRA}, {h*32*strideA + it*128}\ns_and_b32 s{t}, s{t}, {MA}"
        elif kind[0] == "B":
            _, it, h = kind
            m0 = f"s_add_u32 m0, s{gMB}, {32768 + (it & 1)*65536 + h*16384}"; regs, srd = DB, sSB
            so = f"s_add_u32 s{t}, s{gRB}, {(it*64 + h*32)*strideB}\ns_and_b32 s{t}, s{t}, {MB}"
        else:
            y = kind[1]
            return f"s_add_u32 m0, s{gMB}, {y*16384}", f"s_add_u32 s{t}, s{sW0}, {y*16384}", \
                   [f"buffer_load_dwordx4 v{vDMA}, {WS}, s{t} offen offset:{i*1024}{ld()} lds ; @gU{y}" for i in range(4)]
        return m0, so, [f"buffer_load_dwordx4 v{regs[jl]}, {sr(srd,4)}, s{t} offen offset:{jl*1024}{OPT['nt' + kind[0]]} lds ; @g{kind[0]}{it}_{h}" for jl in range(4)]
    todo = []
    for it in range(16):
        todo += [(2*it-1, 2*(it-3)+1, ("A", it, 0)), (2*it-1, 2*(it-2), ("B", it, 0)), (2*it-1, 2*(it-3)+1, ("A", it, 1)), (2*it, 2*(it-2)+1, ("B", it, 1))]
    todo += [(31+y, av, ("U", y)) for y, av in enumerate((27, 27, 28, 29, 29, 29, 30, 31))]
    GS = {}; order = []
    for n in range(-1, 32):
        cap = OPT["npro"] if n < 0 else OPT["gcap"][min(n, len(OPT["gcap"])-1)]
        c = sorted([x for x in todo if x[1] <= n], key=lambda x: x[0])[:cap]
        for x in c: todo.remove(x); assert x[0] > n or n < 0, (x, n)
        GS[n] = [x[2] for x in c]; order += GS[n]
    assert not todo
    print("GS", {n: len(v) for n, v in GS.items()}, file=sys.stderr)
    def gtag(k): return f"gU{k[1]}" if k[0] == "U" else f"g{k[0]}{k[1]}_{k[2]}"
    def gwait(n):
        it, kk = (n+1) >> 1, (n+1) & 1
        need = [("U", 0), ("U", 1)] if n == 31 else [("B", it, 1)] if kk else [("A", it, 0), ("A", it, 1), ("B", it, 0)]
        return f"vmcnt(@since:{gtag(max(need, key=order.index))})"
    main = a; a = Asm()
    sWID, u_, nb_, o_, o2_ = sXOFF, sT+1, sT+2, sT+3, sT+4
    sD = [sQST, sPT, sPSG]; sXS = sPSS; sHI = sFSG; sSTR = sFSS
    vWO, vW12 = vRD, vDMA
    G = sr(sG, 4)
    r_, g_, r8 = GT, GT+1, GT+2
    h_, i_ = GT+5, GT+6
    a(f"""
    s_lshl_b32 s{sWID}, s2, 2
    s_add_u32 s{sWID}, s{sWID}, s{sWAVE}
    s_mov_b32 s{sX+2}, {2048*896}
    s_mov_b32 s{sX+3}, 0x20000
    v_and_b32 v{h_}, 1, v{vLANE}
    v_lshrrev_b32 v{i_}, 1, v{vLANE}
    v_mul_u32_u24 v{GT+7}, 896, v{h_}
    v_lshl_add_u32 v{GT+7}, v{i_}, 4, v{GT+7}
    v_cmp_gt_u32 s[{sLN}:{sLN+1}], 28, v{i_}
    v_mov_b32 v{GT+8}, {OOB}
    s_mul_i32 s{gB1}, s{sWID}, 1792
    v_cndmask_b32 v{GT+11}, v{GT+8}, v{GT+7}, s[{sLN}:{sLN+1}]
    s_getpc_b64 s[{sG}:{sG+1}]
    L_pc:
    s_sub_u32 s{sG}, s{sG}, L_pc - L_gemmV
    s_subb_u32 s{sG+1}, s{sG+1}, 0
    s_mov_b32 s{sG+2}, L_codeend - L_gemmV
    s_mov_b32 s{sG+3}, 0x20000
    s_lshr_b32 s{gB0}, s2, 3
    s_lshl_b32 s{gB0}, s{gB0}, 2
    s_add_u32 s{gB0}, s{gB0}, s{sWAVE}
    s_lshl_b32 s{gB0}, s{gB0}, 10
    s_mov_b32 s{sWS+2}, {WS_SIZE}
    s_mov_b32 s{sWS+3}, 0x20000
    v_and_b32 v{r_}, 15, v{vLANE}
    v_lshrrev_b32 v{g_}, 4, v{vLANE}
    v_lshlrev_b32 v{r8}, 3, v{r_}
    """)
    def natdest(dst, base):
        a(f"""
        s_lshr_b32 s{o_}, s{nb_}, 2
        s_mul_i32 s{o_}, s{o_}, {7*32768}
        s_lshr_b32 s{o2_}, s{u_}, 1
        s_lshl_b32 s{o2_}, s{o2_}, 15
        s_add_u32 s{o_}, s{o_}, s{o2_}
        s_and_b32 s{o2_}, s{nb_}, 3
        s_lshl_b32 s{o2_}, s{o2_}, 13
        s_add_u32 s{o_}, s{o_}, s{o2_}
        s_and_b32 s{o2_}, s{u_}, 1
        s_lshl_b32 s{o2_}, s{o2_}, 10
        s_add_u32 s{o_}, s{o_}, s{o2_}
        s_add_u32 s{dst}, s{o_}, {base}
        """)
    def div7(idx):
        a(f"""
        s_mul_i32 s{u_}, s{idx}, 9363
        s_lshr_b32 s{u_}, s{u_}, 16
        s_mul_i32 s{nb_}, s{u_}, 7
        s_sub_u32 s{nb_}, s{idx}, s{nb_}
        """)
    def ffdest(dst, base, lim, idx=sWID):
        a(f"""
        s_mul_i32 s{o_}, s{nb_}, {184*4096}
        s_lshl_b32 s{o2_}, s{u_}, 12
        s_add_u32 s{o_}, s{o_}, s{o2_}
        s_add_u32 s{dst}, s{o_}, {base}
        s_cmp_lt_u32 s{idx}, {lim}
        s_cselect_b32 s{dst}, s{dst}, {OOB}
        """)
    a(f"""
    s_mov_b32 s{sDBG+2}, 16
    s_mov_b32 s{sDBG+3}, 0x20000
    v_mul_u32_u24 v{vWO}, {4*896}, v{g_}
    v_add_u32 v{vWO}, v{vWO}, v{r8}
    s_lshl_b32 s{gD}, s{gMT}, 1
    s_add_u32 s{gD}, s{gD}, s{sWHICH}
    s_lshl_b32 s{gD}, s{gD}, 2
    s_add_u32 s{gD}, s{gD}, s{sWAVE}
    """)
    div7(gD)
    a(f"""
    s_lshl_b32 s{o_}, s{gHEAD}, 3
    s_add_u32 s{u_}, s{u_}, s{o_}
    s_mul_i32 s{o_}, s{u_}, {32*896}
    s_lshl_b32 s{o2_}, s{nb_}, 7
    s_add_u32 s{o_}, s{o_}, s{o2_}
    s_cmp_lt_u32 s{gD}, 56
    s_cselect_b32 s{o_}, s{o_}, {OOB}
    v_add_u32 v{vWO}, s{o_}, v{vWO}
    """)
    ffdest(sD[1], WS_WFF + 56*4096, 56, gD)
    a(f"""
    s_lshr_b32 s{u_}, s{sWID}, 2
    s_mul_i32 s{u_}, s{u_}, 9363
    s_lshr_b32 s{u_}, s{u_}, 16
    s_mul_i32 s{nb_}, s{u_}, 28
    s_sub_u32 s{nb_}, s{sWID}, s{nb_}
    s_mul_i32 s{sHI}, s{u_}, {32*3584}
    s_lshl_b32 s{o2_}, s{nb_}, 7
    s_add_u32 s{sHI}, s{sHI}, s{o2_}
    """)
    natdest(sSTR, WS_W1F)
    a(f"s_sub_u32 s{sT+5}, s{sWID}, 392")
    a(f"s_and_b32 s{sT+5}, s{sT+5}, 1023")
    div7(sT+5)
    ffdest(sD[2], WS_WFF, 784)
    a(f"""
    s_lshr_b32 s{o_}, s{u_}, 1
    s_mul_i32 s{o_}, s{o_}, {64*896}
    s_and_b32 s{o2_}, s{u_}, 1
    s_mul_i32 s{o2_}, s{o2_}, {2*896}
    s_add_u32 s{o_}, s{o_}, s{o2_}
    s_lshl_b32 s{o2_}, s{nb_}, 7
    s_add_u32 s{o_}, s{o_}, s{o2_}
    s_mov_b32 s{sW12+2}, {448*3584}
    s_mov_b32 s{sW12+3}, 0x20000
    s_cmp_lt_u32 s{sWID}, 392
    s_cselect_b32 s{sW12}, s{sW12}, s{sRET}
    s_cselect_b32 s{sW12+1}, s{sW12+1}, s{sRET+1}
    s_cselect_b32 s{o_}, s{sHI}, s{o_}
    s_cselect_b32 s{sD[2]}, s{sSTR}, s{sD[2]}
    s_cselect_b32 s{sHI}, 16, 1
    s_cselect_b32 s{sSTR}, 2, 1
    s_mul_i32 s{sHI}, s{sHI}, 896
    s_mul_i32 s{o2_}, s{sSTR}, {16*896}
    s_lshl_b32 s{sSTR}, s{sSTR}, 10
    v_mul_u32_u24 v{vW12}, s{o2_}, v{g_}
    v_add3_u32 v{vW12}, v{vW12}, v{r8}, s{o_}
    v_lshrrev_b32 v{GT+9}, 2, v{i_}
    v_lshlrev_b32 v{GT+9}, 10, v{GT+9}
    v_and_b32 v{GT+10}, 3, v{i_}
    v_lshl_add_u32 v{GT+9}, v{GT+10}, 8, v{GT+9}
    v_lshl_add_u32 v{GT+9}, v{h_}, 4, v{GT+9}
    v_cndmask_b32 v{vSX}, v{GT+8}, v{GT+9}, s[{sLN}:{sLN+1}]
    s_lshr_b32 s{o_}, s{sWID}, 3
    s_mul_i32 s{o_}, s{o_}, 14336
    s_and_b32 s{o2_}, s{sWID}, 7
    s_lshl_b32 s{o2_}, s{o2_}, 5
    s_add_u32 s{sXS}, s{o_}, s{o2_}
    s_lshl_b32 s{sFQ}, s{sWID}, 10
    s_add_u32 s{sFQ}, s{sFQ}, {WS_FLG}
    s_cmp_lt_u32 s{sWID}, 32
    s_cselect_b32 s{sFQ}, s{sFQ}, {OOB}
    v_cmp_eq_u32 vcc, 0, v{vLANE}
    v_mov_b32 v{vONE}, 1
    v_and_b32 v{vL4}, 3, v{vLANE}
    v_lshlrev_b32 v{vL4}, 2, v{vL4}
    v_cndmask_b32 v{vFLG}, v{GT+8}, v{vLANE}, vcc
    s_mov_b32 s{sRET}, s{sT+6}
    s_mov_b32 s{sRET+1}, s{sT+7}
    s_lshr_b32 s{u_}, s{gD}, 2
    s_lshl_b32 s{nb_}, s{gHEAD}, 2
    s_add_u32 s{nb_}, s{nb_}, s{sWAVE}
    s_lshl_b32 s{o_}, s{u_}, 18
    s_lshl_b32 s{o2_}, s{nb_}, 7
    s_add_u32 s{o_}, s{o_}, s{o2_}
    v_and_b32 v{vSW}, 3, v{vLANE}
    v_lshlrev_b32 v{vSW}, 5, v{vSW}
    v_bfe_u32 v{GT+9}, v{vLANE}, 2, 2
    v_lshl_add_u32 v{vSW}, v{GT+9}, 3, v{vSW}
    v_lshl_add_u32 v{vSW}, v{g_}, 16, v{vSW}
    v_add_u32 v{vSW}, s{o_}, v{vSW}
    v_mov_b32 v{vSF}, v{vL16}
    """)
    natdest(sD[0], WS_WQF)
    a(f"s_cmp_lt_u32 s{gD}, 56")
    a(f"s_cselect_b32 s{sD[0]}, s{sD[0]}, {OOB}")
    assert WS_XF == 0
    a(f"""
    v_bfe_u32 v{t4}, v{vLANE}, 1, 3
    s_lshl_b32 s{o_}, s{gWM}, 14
    s_add_u32 s{o_}, s{o_}, 131072
    v_lshlrev_b32 v{r_}, 7, v{r_}
    v_add_u32 v{r_}, s{o_}, v{r_}
    """)
    for kk in range(2):
        a(f"v_or_b32 v{t5}, {4*kk}, v{g_}")
        a(f"v_xor_b32 v{t5}, v{t5}, v{t4}")
        a(f"v_lshl_add_u32 v{RA[kk]}, v{t5}, 4, v{r_}")
    a(f"""
    v_lshlrev_b32 v{t2}, 12, v{g_}
    v_bfe_u32 v{t4}, v{vLANE}, 2, 2
    v_lshl_add_u32 v{t2}, v{t4}, 7, v{t2}
    v_and_b32 v{t5}, 3, v{vLANE}
    v_lshl_add_u32 v{t2}, v{t5}, 3, v{t2}
    s_lshl_b32 s{o_}, s{gWN}, 10
    s_add_u32 s{o_}, s{o_}, 32768
    v_add_u32 v{t2}, s{o_}, v{t2}
    v_lshrrev_b32 v{t4}, 1, v{t4}
    v_lshlrev_b32 v{t4}, 6, v{t4}
    v_and_b32 v{t5}, 1, v{g_}
    v_lshlrev_b32 v{t5}, 5, v{t5}
    v_or_b32 v{t4}, v{t4}, v{t5}
    """)
    for q in range(4):
        a(f"v_xor_b32 v{t5}, {(q>>1)*64 + (q&1)*32}, v{t4}")
        a(f"v_add_u32 v{RB[q]}, v{t5}, v{t2}")
    a(f"""
    s_mul_i32 s{sKVB}, s{gHEAD}, {HS}
    s_mul_i32 s{o_}, s{gMT}, {8*US}
    s_add_u32 s{sKVB}, s{sKVB}, s{o_}
    s_mul_i32 s{o_}, s{gWM}, {4*US}
    s_add_u32 s{sKVB}, s{sKVB}, s{o_}
    s_add_u32 s{o2_}, s{sWHICH}, 12
    s_lshl_b32 s{o_}, s{gWN}, s{o2_}
    s_add_u32 s{sKVB}, s{sKVB}, s{o_}
    s_mul_i32 s{o_}, s{sWHICH}, {WS_VF - WS_KF}
    s_add_u32 s{sKVB}, s{sKVB}, s{o_}
    s_add_u32 s{sKVB}, s{sKVB}, {WS_KF}
    s_lshr_b32 s{sKVI}, 8192, s{sWHICH}
    s_add_u32 s{sKVI}, s{sKVI}, s{sKVB}
    s_lshl_b32 s{sFKV}, s{gHEAD}, 8
    s_lshr_b32 s{o_}, s{gMT}, 2
    s_and_b32 s{o2_}, s{gMT}, 3
    s_lshl_b32 s{o2_}, s{o2_}, 1
    s_or_b32 s{o_}, s{o_}, s{o2_}
    s_cmp_ge_u32 s{o_}, 2
    s_cselect_b32 s{o2_}, 112, 0
    s_add_u32 s{sFKV}, s{sFKV}, s{o2_}
    s_lshl_b32 s{o_}, s{o_}, 3
    s_add_u32 s{sFKV}, s{sFKV}, s{o_}
    s_lshl_b32 s{o_}, s{sWHICH}, 2
    s_add_u32 s{sFKV}, s{sFKV}, s{o_}
    s_add_u32 s{sFKV}, s{sFKV}, {WS_FLG + FL_KV}
    s_lshl_b32 s{sFKVP}, s{sHEAD}, 8
    s_add_u32 s{sFKVP}, s{sFKVP}, {WS_FLG + FL_KV}
    s_cmp_eq_u32 s{sWAVE}, 0
    s_cselect_b32 s{sFKV}, s{sFKV}, {OOB}
    s_cselect_b32 s{sFKVP}, s{sFKVP}, {OOB}
    s_cselect_b32 s{gFL}, s2, {OOB}
    s_cselect_b32 s{gIT}, 0, {OOB}
    """)
    WQ, B1, ST1, N0, STA2, XR1, XR2 = sT+1, sT+2, sT+3, sN, sT+4, sND, sXOF2
    a(f"""
    s_or_b32 s{sQI}, s{sJ}, 8
    s_mul_i32 s{WQ}, s{sHEAD}, {7*32768}
    s_add_u32 s{WQ}, s{WQ}, {WS_WQF}
    s_mov_b32 s{sW0}, s{WQ}
    s_mov_b32 s{XR1}, s{sQI}
    s_mov_b32 s{ST1}, 32768
    s_cmp_eq_u32 s{sQI}, 15
    s_cselect_b32 s{N0}, {OPT['a15']}, 34
    @atomic
    s_cmp_ge_u32 s{sJ}, 8
    s_cbranch_scc1 L_typeA
    s_mov_b32 s{sTYPE}, 2
    s_sub_u32 s{B1}, s{WQ}, {5*32768}
    s_sub_u32 s{XR2}, 15, s{sQI}
    s_lshl_b32 s{sU1}, s{sQI}, 2
    s_sub_u32 s{sU2}, 64, s{sU1}
    s_add_u32 s{sU1}, s{sU1}, 4
    s_sub_u32 s{sU1}, s{sU1}, s{N0}
    s_add_u32 s{STA2}, s{sU1}, 14
    s_add_u32 s{sT+7}, s{STA2}, s{sU2}
    s_branch L_typedone
    """)
    a.label("L_typeA")
    a(f"""
    s_mov_b32 s{sU1}, s{N0}
    s_add_u32 s{sT+7}, s{N0}, 14
    s_mov_b32 s{sU2}, 2
    s_mov_b32 s{N0}, 0
    s_mov_b32 s{STA2}, 100
    s_mov_b32 s{XR2}, 0x4000
    s_mov_b32 s{sTYPE}, 1
    s_mov_b32 s{B1}, {OOB}
    s_cmp_eq_u32 s{sJ}, 15
    s_cbranch_scc1 L_typedone
    s_mov_b32 s{sTYPE}, 0
    s_mul_i32 s{XR1}, s{sHEAD}, 7
    s_add_u32 s{XR1}, s{XR1}, s{sJ}
    s_sub_u32 s{XR1}, s{XR1}, 8
    s_lshr_b32 s{sT}, s{XR1}, 4
    s_and_b32 s{XR1}, s{XR1}, 15
    s_mul_i32 s{sW0}, s{sT}, {7*32768}
    s_add_u32 s{sW0}, s{sW0}, {WS_W1F}
    s_lshl_b32 s{B1}, s{sT}, 15
    s_add_u32 s{B1}, s{B1}, {WS_WFF}
    s_mov_b32 s{ST1}, {184*4096}
    """)
    a.label("L_typedone")
    a("@end")
    tA, tB, tC, tD = GT, GT+1, GT+2, GT+3
    KB, VB = sT+5, sT+6
    a(f"""
    s_mul_i32 s{KB}, s{sHEAD}, {HS}
    s_add_u32 s{VB}, s{KB}, {WS_VF}
    s_add_u32 s{KB}, s{KB}, {WS_KF}
    v_mov_b32 v{vTE}, {OOB}
    """)
    def seg_lin(start, base, stride):
        a(f"v_subrev_u32 v{tA}, {start}, v{vLANE}")
        a(f"v_cmp_gt_u32 vcc, 7, v{tA}")
        a(f"v_mul_u32_u24 v{tB}, {stride}, v{tA}")
        a(f"v_add_u32 v{tB}, s{base}, v{tB}")
        a(f"v_cndmask_b32 v{vTE}, v{vTE}, v{tB}, vcc")
    seg_lin(0, sW0, 32768)
    seg_lin(7, B1, f"s{ST1}")
    a(f"s_lshl_b32 s{sT}, s{sHEAD}, 15")
    a(f"s_add_u32 s{sT}, s{sT}, {WS_WFF + 56*4096}")
    seg_lin(f"s{sT+7}", sT, 184*4096)
    a(f"v_add_u32 v{vTO}, 16384, v{vTE}")
    def seg_att(start, n0, U):
        for tab in (vTO, vTE):
            a(f"v_subrev_u32 v{tA}, {start}, v{vLANE}")
            if n0 is not None: a(f"v_add_u32 v{tB}, s{n0}, v{tA}")
            else: a(f"v_mov_b32 v{tB}, v{tA}")
            a(f"v_mul_u32_u24 v{tB}, {US}, v{tB}")
            if tab == vTO:
                a(f"s_sub_u32 s{sT}, s{U}, 1")
                a(f"v_cmp_eq_u32 vcc, s{sT}, v{tA}")
                a(f"v_add_u32 v{tC}, s{KB}, v{tB}")
                a(f"v_add_u32 v{tC}, {US}, v{tC}")
                a(f"v_add_u32 v{tD}, s{VB}, v{tB}")
            else:
                a(f"v_cmp_eq_u32 vcc, 0, v{tA}")
                a(f"v_add_u32 v{tC}, s{VB}, v{tB}")
                a(f"v_subrev_u32 v{tC}, {US}, v{tC}")
                a(f"v_add_u32 v{tD}, s{KB}, v{tB}")
            a(f"v_cndmask_b32 v{tC}, v{tC}, v{tD}, vcc")
            a(f"v_cmp_gt_u32 vcc, s{U}, v{tA}")
            a("s_nop 1")
            a(f"v_cndmask_b32 v{tab}, v{tab}, v{tC}, vcc")
    seg_att(14, N0, sU1)
    seg_att(f"s{STA2}", None, sU2)
    XO1, XO2 = sXOFF, sXOF2
    a(f"""
    s_lshl_b32 s{sT}, s{sWAVE}, 1
    s_lshl_b32 s{XO1}, s{XR1}, 3
    s_add_u32 s{XO1}, s{XO1}, s{sT}
    s_mul_i32 s{XO1}, s{XO1}, 14336
    s_lshl_b32 s{XO2}, s{XR2}, 3
    s_add_u32 s{XO2}, s{XO2}, s{sT}
    s_mul_i32 s{XO2}, s{XO2}, 14336
    s_lshl_b32 s{sW4K}, s{sWAVE}, 12
    s_mov_b32 s{sCLAMP}, 0x05040100
    s_mov_b32 s{sFIRST}, 0x07060302
    """)
    setup_l = [l.strip() for l in a.lines if l.strip()]
    a = main
    seq = []
    for k, kind in enumerate(GS[-1]):
        m0, so, ins = dma_group(kind, 0)
        seq += [[m0, so, ins[0]]] + [[x] for x in ins[1:]]
        if k == OPT["xpos"]:
            seq += [[f"buffer_load_dwordx4 {ar(SLD+48,4)}, v{GT+11}, {sr(sX,4)}, s{gB1} offen"], [f"buffer_load_dwordx4 {ar(SLD+52,4)}, v{GT+11}, {sr(sX,4)}, s{gB1} offen offset:448 ; @sx"]]
    if OPT["cpf"]: seq += [[f"buffer_load_dwordx4 a[200:203], v{vL16}, {G}, s{gB0} offen"], [f"s_add_u32 s{gB0}, s{gB0}, 131072", f"buffer_load_dwordx4 a[204:207], v{vL16}, {G}, s{gB0} offen"]]
    nowr = ("s_mov", "s_mul_i32", "s_nop", "s_cselect", "s_getpc", "s_cbranch", "s_branch")
    def scc_live(k):
        for l in setup_l[k:]:
            if l.startswith(("s_cselect", "s_cbranch_scc", "s_subb")): return True
            if l.startswith("s_") and not l.startswith(nowr): return False
        return False
    step = len(setup_l) / (len(seq) - 0.5)
    atomic = False; nxt = 0.0
    for k, l in enumerate(setup_l):
        if seq and k >= nxt and not atomic and not scc_live(k) and not l.endswith(":"):
            for x in seq.pop(0): a(x)
            nxt += step
        if l == "@atomic": atomic = True
        elif l == "@end": atomic = False
        else: a(l)
    for g in seq:
        for x in g: a(x)
    print("setup instrs", len(setup_l), "left", len(seq), file=sys.stderr)
    a(f"""
    s_mov_b32 s{sG}, s{sRET}
    s_mov_b32 s{sG+1}, s{sRET+1}
    s_mov_b32 s{sG+2}, {448*8192}
    """)
    if OPT["dbgside"] & 1:
        for r in sD: a(f"s_mov_b32 s{r}, {OOB}")
    if OPT["dbgside"] & 2: a(f"s_mov_b32 s{sXS}, {OOB}")
    if OPT["dbgside"] & 4:
        for r in (vWO, vW12, vSW): a(f"v_mov_b32 v{r}, {OOB}")
    def side_chain():
        c = []
        z = GT+8
        c += [(f"v_mov_b64 {vr(z,2)}, 0", 0), (f"v_mov_b64 {vr(z+2,2)}, 0", 0), (f"buffer_store_dwordx4 {vr(z,4)}, v{vL16}, {WS}, s{sFQ} offen sc1 ; @zst", 1)]
        c.append(("s_waitcnt vmcnt(@since:sx)", 1))
        U = GT; m_, v_, t_, t2_ = GT+16, GT+17, vG1, vPOLL
        for i in range(8):
            c.append((f"v_accvgpr_read_b32 v{t_}, a{SLD+48+i}", 2 if i == 0 else 0))
            c.append((f"v_lshlrev_b32 v{U+2*i}, 16, v{t_}", 0))
            c.append((f"v_and_b32 v{U+2*i+1}, 0xffff0000, v{t_}", 0))
        def red(v):
            r = [(f"v_add_f32_dpp v{v}, v{v}, v{v} row_ror:{sh} row_mask:0xf bank_mask:0xf", 2) for sh in (8, 4, 2)]
            return r + xlane_ops("v_add_f32", v, t2_)
        c.append((f"v_add_f32 v{m_}, v{U}, v{U+1}", 0)); c.append((f"v_add_f32 v{v_}, v{U+2}, v{U+3}", 0))
        for i in range(4, 16, 2):
            c.append((f"v_add_f32 v{m_}, v{m_}, v{U+i}", 0)); c.append((f"v_add_f32 v{v_}, v{v_}, v{U+i+1}", 0))
        c.append((f"v_add_f32 v{m_}, v{m_}, v{v_}", 0))
        c += red(m_)
        c.append((f"v_mul_f32 v{m_}, {f2u(1.0/448):#x}, v{m_}", 0))
        for i in range(16):
            c.append((f"v_sub_f32 v{t_}, v{U+i}, v{m_}", 0))
            c.append((f"v_mul_f32 v{v_}, v{t_}, v{t_}" if i == 0 else f"v_fma_f32 v{v_}, v{t_}, v{t_}, v{v_}", 0))
        c.append((f"v_cndmask_b32 v{v_}, 0, v{v_}, s[{sLN}:{sLN+1}]", 0))
        c += red(v_)
        for x in (f"v_mul_f32 v{v_}, {f2u(1.0/448):#x}, v{v_}", f"v_cvt_pk_bf16_f32 v{t_}, v{m_}, v{v_}", f"v_lshlrev_b32 v{m_}, 16, v{t_}",
                  f"v_and_b32 v{v_}, 0xffff0000, v{t_}", f"v_add_f32 v{v_}, {f2u(1e-5):#x}, v{v_}", f"v_cvt_pk_bf16_f32 v{v_}, v{v_}, v{v_}",
                  f"v_lshlrev_b32 v{v_}, 16, v{v_}", f"v_sqrt_f32 v{v_}, v{v_}"):
            c.append((x, 0))
        c.append((f"v_cvt_pk_bf16_f32 v{v_}, v{v_}, v{v_}", 1))
        c.append((f"v_lshlrev_b32 v{v_}, 16, v{v_}", 0))
        c.append((f"v_rcp_f32 v{v_}, v{v_}", 0))
        for i in range(16): c.append((f"v_sub_f32 v{U+i}, v{U+i}, v{m_}", 1 if i == 0 else 0))
        for i in range(8):
            for x in (f"v_cvt_pk_bf16_f32 v{t_}, v{U+2*i}, v{U+2*i+1}", f"v_lshlrev_b32 v{U+2*i}, 16, v{t_}", f"v_and_b32 v{U+2*i+1}, 0xffff0000, v{t_}",
                      f"v_mul_f32 v{U+2*i}, v{U+2*i}, v{v_}", f"v_mul_f32 v{U+2*i+1}, v{U+2*i+1}, v{v_}", f"v_cvt_pk_bf16_f32 v{U+i}, v{U+2*i}, v{U+2*i+1}"):
                c.append((x, 0))
        c.append((f"buffer_store_dwordx4 {vr(U,4)}, v{vSX}, {WS}, s{sXS} offen sc1", 1))
        c.append((f"v_add_u32 v{vSX}, {7*1024}, v{vSX}", 1))
        c.append((f"buffer_store_dwordx4 {vr(U+4,4)}, v{vSX}, {WS}, s{sXS} offen sc1", 1))
        def relay(rnd, land):
            c.append((f"s_waitcnt vmcnt(@since:sl{rnd})", 1, 0, rnd))
            for h in range(2):
                for e in range(8):
                    c.append((f"v_accvgpr_read_b32 v{GT+e}, a{land+2*e+h}", 2 if e == 0 else 0))
                for jj in range(2):
                    o = GT+8+4*jj
                    for p in range(4):
                        c.append((f"v_perm_b32 v{o+p}, v{GT+2*p+1}, v{GT+2*p}, s{(sCLAMP, sFIRST)[jj]}", 0))
                    if rnd == 1: c.append((f"buffer_store_dwordx4 {vr(o,4)}, v{vL16}, {WS}, s{sD[rnd]} offen offset:{(2*h+jj)*1024} sc1", 1))
                    else:
                        c.append((f"buffer_store_dwordx4 {vr(o,4)}, v{vSF}, {WS}, s{sD[rnd]} offen sc1", 1))
                        c.append((f"v_add_u32 v{vSF}, s{sSTR}, v{vSF}", 1))
        relay(2, SLD+32)
        c.append((f"s_waitcnt vmcnt(@since:sl0)", 1, 0, 0))
        c.append((f"s_mov_b32 s{sHI}, {f2u(QSCALE):#x}", 1))
        for h in range(2):
            for p in range(4):
                t = GT + (p & 1)*4
                c += [(x, 0) for x in (f"v_accvgpr_read_b32 v{t}, a{SLD+4*p+h}", f"v_accvgpr_read_b32 v{t+1}, a{SLD+4*p+2+h}",
                      f"v_lshlrev_b32 v{t+2}, 16, v{t}", f"v_lshlrev_b32 v{t+3}, 16, v{t+1}", f"v_and_b32 v{t}, 0xffff0000, v{t}", f"v_and_b32 v{t+1}, 0xffff0000, v{t+1}")]
                c += [(f"v_mul_f32 v{t+i}, s{sHI}, v{t+i}", 0) for i in range(4)]
                c += [(f"v_cvt_pk_bf16_f32 v{GT+8+p}, v{t+2}, v{t+3}", 0), (f"v_cvt_pk_bf16_f32 v{GT+12+p}, v{t}, v{t+1}", 0)]
            if h == 1: c.append((f"s_add_u32 s{sD[0]}, s{sD[0]}, 4096", 1))
            for jj in range(2):
                c.append((f"buffer_store_dwordx4 {vr(GT+8+4*jj,4)}, v{vL16}, {WS}, s{sD[0]} offen offset:{jj*2048} sc1 ; @sst", 1))
        relay(1, WOL)
        c += [(x, 0) for x in (f"v_add_u32 v{vDMA}, s{sW4K}, v{vL16}", f"v_mov_b32 v{vRD}, v{vL16}",  f"v_lshrrev_b32 v{GT}, 4, v{vLANE}",
              f"v_lshlrev_b32 v{GT}, 2, v{GT}", f"v_and_b32 v{GT+1}, 15, v{vLANE}", f"v_sub_u32 v{GT}, v{GT+1}, v{GT}")]
        c += [(f"v_cmp_gt_i32 s[{sMASK+2*r}:{sMASK+2*r+1}], {r}, v{GT}", 0) for r in range(4)]
        c = [((x[0].replace(" sc1", OPT["sidesc"]),) + tuple(x[1:]) if x[0].startswith("buffer_store") else x) for x in c]
        if OPT["wbl2"]: c.append(("s_waitcnt vmcnt(4)", 30)); c.append(("buffer_wbl2 sc1", 1))
        return Chain(c, XG4)
    def reads(kk, buf):
        ra = [f"ds_read_b128 {ar(FA(buf,m),4)}, v{RA[kk]} offset:{m*2048}" for m in range(8)]
        rb = [f"ds_read_b64_tr_b16 {ar(FB(buf,n)+2*sec,2)}, v{RB[n&3]} offset:{kk*16384+sec*2048+(n>>2)*512}" for n in range(8) for sec in range(2)]
        out = []
        for i in range(8): out += [ra[i], rb[2*i], rb[2*i+1]]
        return out
    stamp(6, True)
    a(f"s_waitcnt {gwait(-1)}")
    a("s_barrier")
    for r in reads(0, 0): a(r)
    stamp(1)
    a(f"s_cmp_eq_u32 s{sWHICH}, 0")
    a("s_cbranch_scc0 L_gemmV")
    pre_lines = len(a.lines)
    sJT = sT+2
    def xjob(J, key, i, base, early, late, rot=0):
        u, qt = i >> 1, i & 1
        J.add(key, f"s_add_u32 s{sJT}, s{base}, {qt*14336+((u+rot)%14)*1024}", f"buffer_load_dwordx4 {ar(X(qt,u),4)}, v{vL16}, {WS}, s{sJT} offen{ld()} ; @{key}", early, late - (3 - (i & 3))*8)
    def kvjob(J, c, early, late):
        blk = c >> 2
        J.add("kv", f"s_add_u32 s{sJT}, s{sKVI if blk & 1 else sKVB}, {(blk>>1)*US+(c&3)*1024}",
              f"buffer_store_dwordx4 {vr(PK(c),4)}, v{vL16}, {WS}, s{sJT} offen{OPT['kvsc']} ; @kv", early, late)
    pw, t6, t7 = sEV, sCNT, sND
    setup = f"""
    s_lshl_b32 s{pw}, s{sHEAD}, 3
    s_and_b32 s{t6}, s{sJ}, 7
    s_add_u32 s{pw}, s{pw}, s{t6}
    s_lshl_b32 s{pw}, s{pw}, 2
    s_add_u32 s{pw}, s{pw}, s{sWAVE}
    s_mul_i32 s{sQST}, s{pw}, {Q_W}
    s_add_u32 s{sQST}, s{sQST}, {WS_QF}
    s_mul_i32 s{sPT}, s{pw}, {PT_W}
    s_add_u32 s{sPT}, s{sPT}, {WS_PT}
    s_lshl_b32 s{sFQ}, s{pw}, 5
    s_add_u32 s{sFQ}, s{sFQ}, {WS_FLG + FL_Q}
    s_mul_i32 s{t7}, s{sWAVE}, {28*1024}
    s_add_u32 s{t7}, s{t7}, {WS_PS}
    s_mul_i32 s{pw}, s{sHEAD}, 7
    s_add_u32 s{pw}, s{pw}, s{t6}
    s_lshr_b32 s{t6}, s{pw}, 4
    s_and_b32 s{sFSG}, s{pw}, 15
    s_lshl_b32 s{sT+3}, s{t6}, 9
    s_mul_i32 s{sPSG}, s{sFSG}, {PS_R}
    s_add_u32 s{sPSG}, s{sPSG}, s{t7}
    s_mul_i32 s{pw}, s{t6}, {PS_SRC}
    s_add_u32 s{sPSG}, s{sPSG}, s{pw}
    s_add_u32 s{sPSG}, s{sPSG}, {16*PS_SRC}
    s_lshl_b32 s{sFSG}, s{sFSG}, 9
    s_lshl_b32 s{pw}, s{t6}, 2
    s_add_u32 s{sFSG}, s{sFSG}, s{pw}
    s_lshl_b32 s{pw}, s{sWAVE}, 7
    s_add_u32 s{pw}, s{pw}, {WS_FLG + FL_S}
    s_add_u32 s{sFSG}, s{sFSG}, s{pw}
    s_add_u32 s{sFSG}, s{sFSG}, 64
    s_lshr_b32 s{t6}, s{sJ}, 3
    s_mul_i32 s{t6}, s{t6}, 7
    s_xor_b32 s{t6}, s{t6}, 7
    s_xor_b32 s{t6}, s{t6}, s{sJ}
    s_mul_i32 s{sPSS}, s{t6}, {PS_R}
    s_add_u32 s{sPSS}, s{sPSS}, s{t7}
    s_mul_i32 s{t7}, s{sHEAD}, {PS_SRC}
    s_add_u32 s{sPSS}, s{sPSS}, s{t7}
    s_lshl_b32 s{sFSS}, s{t6}, 9
    s_add_u32 s{sFSS}, s{sFSS}, s{pw}
    s_lshl_b32 s{t7}, s{sHEAD}, 2
    s_add_u32 s{sFSS}, s{sFSS}, s{t7}
    s_lshl_b32 s{sND}, s{sQI}, 2
    s_add_u32 s{sND}, s{sND}, s{sWAVE}
    s_lshr_b32 s{sCNT}, s{sU1}, 1
    s_sub_u32 s{sCNT}, s{sCNT}, 1
    s_lshr_b32 s{sEV}, s{sJ}, 3
    """.strip().split("\n")
    setup = [(x.strip(), 1) for x in setup]
    setup.append((f"s_cmp_eq_u32 s{sTYPE}, 1\ns_cselect_b32 s{sQST}, {OOB}, s{sQST}", 1))
    setup.append((f"s_cmp_eq_u32 s{sTYPE}, 0\ns_cselect_b32 s{sFSG}, s{sFSG}, {OOB}", 1))
    setup.append((f"s_cmp_eq_u32 s{sWAVE}, 0\ns_cselect_b32 s{sFQ}, s{sFQ}, {OOB}\ns_cselect_b32 s{sEXP}, 1, 0", 1))
    setup2 = [(x, 1) for x in (f"s_mov_b32 s{sTAU}, 4", f"s_add_u32 s{sM0}, s{sW4K}, {8*16384}", f"s_add_u32 s{sOFFB}, s{sW0}, {8*16384}",
              f"s_mov_b32 s{sRDD}, {-131072}", f"s_mov_b32 s{gMA}, {-131072}", f"s_mov_b32 s{gMB}, 32768", f"s_mov_b32 m0, s{sM0}")]
    for typ in ("K", "V"):
        if typ == "V":
            a.label("L_gemmV")
            for l in a.lines[:pre_lines]:
                if l.strip().startswith("buffer_") or "@merge" in l: a.raw("@ghost " + l.strip())
        def pos(m, n): return m*8+n if typ == "K" else (m >> 1)*16 + n*2 + (m & 1)
        def substep(it, kk):
            groups = GS[2*it+kk]
            buf = kk
            mf = []
            for m in range(8):
                for n in range(8):
                    acc = accreg(pos(m, n))
                    c = "0" if (it == 0 and kk == 0) else acc
                    x, y = ar(FB(buf,n),4), ar(FA(buf,m),4)
                    if typ == "V": x, y = y, x
                    mf.append(f"{MF} {acc}, {x}, {y}, {c}")
            st = Stage(mf)
            st.put(-1, f"s_waitcnt {gwait(2*it+kk)} lgkmcnt(0)")
            st.put(-1, "s_barrier")
            last = (it == 15 and kk == 1)
            g, dg = 1, (OPT["dg2"] if len(groups) == 2 else 4)
            for k, kind in enumerate(groups):
                m0, so, ins = dma_group(kind, k)
                st.put(g-1, m0)
                st.put(g-2, so)
                for i in ins:
                    st.put(g, i); g += dg
            rd = reads(kk ^ 1, buf ^ 1) if not last else [f"ds_read_b128 {ar(FR(f),4)}, v{vRD} offset:{f*1024}" for f in range(12)]
            for i, r in enumerate(rd): st.put(i*2, r)
            if kk == 0 and it < 15:
                d = -131072 if it % 3 == 0 else 65536
                for i, x in enumerate([f"v_add_u32 v{RA[0]}, {d}, v{RA[0]}", f"v_add_u32 v{RA[1]}, {d}, v{RA[1]}"] + [f"v_xor_b32 v{r}, 0x10000, v{r}" for r in RB]):
                    st.put(48 + 2*(i >> 1), x)
            if OPT["fine"]:
                st.put(2, f"{FT()} s[{sFS}:{sFS+1}]")
                st.put(4, f"v_mov_b32_dpp v0, v0 wave_shr:1 row_mask:0xf bank_mask:0xf")
                st.put(46, f"v_writelane_b32 v0, s{sFS}, 0")
            return st
        ch = side_chain()
        J = Jobs()
        for e in range(8):
            t = [x + e*OPT["slstep"] for x in OPT["slt"]]
            J.add("sl1", f"s_mov_b32 s{sJT}, {(e>>2)*16*896}", f"buffer_load_dwordx2 {ar(WOL+2*e,2)}, v{vWO}, {sr(sX,4)}, s{sJT} offen offset:{(e&3)*896}{OPT['ntS']} ; @sl1", t[2], t[2]+64)
            J.add("sl2", f"s_add_u32 s{sJT}, s{sHI}, {(e&3)*3584}" if e >> 2 else f"s_mov_b32 s{sJT}, {e*3584}",
                  f"buffer_load_dwordx2 {ar(SLD+32+2*e,2)}, v{vW12}, {sr(sW12,4)}, s{sJT} offen{OPT['ntS']} ; @sl2", t[0], t[0]+64)
            J.add("sl0", f"s_mov_b32 s{sJT}, {e*8192}", f"buffer_load_dwordx2 {ar(SLD+2*e,2)}, v{vSW}, {G}, s{sJT} offen{OPT['ntS']} ; @sl0", t[1], t[1]+64)
        NZ, NZP, NZC, NF, NP, NC = OPT["sync"]
        for i in range(20): xjob(J, "x1", i, XO1, (NC+1)*64 + i*OPT["xstep"], 31*64)
        for b in range(8):
            J.add("bias", None, f"buffer_load_dwordx4 {vr(BIAS+4*b,4)}, v{GT+16}, {G}, s{sT+3} offen offset:{(b>>1)*128+(b&1)*16} ; @bias", 31*64 if b in (2, 3) else 29*64, 31*64+24)
        su = Chain(setup)
        PV = GT+8
        for n in range(31):
            it, kk = n >> 1, n & 1
            st = substep(it, kk)
            if n == 0:
                st.put(62, f"s_load_dwordx2 s[{sX}:{sX+1}], s[0:1], 40")
                st.put(63, f"s_mov_b32 s{sX+2}, {4096*896}")
            if n == NZ-1: st.put(63, "s_waitcnt vmcnt(@since:zst)")
            if n == NZ: st.put(61, f"buffer_store_byte v{vONE}, v{vFLG}, {sr(sDBG,4)}, s{gFL} offen sc1")
            if n == NZP: st.put(61, f"buffer_load_dword v{vPOLL}, v{vL4}, {sr(sDBG,4)}, s{gIT} offen sc1 ; @zp")
            if n == NZC:
                st.put(54, "s_waitcnt vmcnt(@since:zp)")
                st.put(55, f"s_cmp_eq_u32 s{sWAVE}, 0\ns_cselect_b32 s{sT+1}, 0x01010101, 0")
                st.put(56, f"v_cmp_ne_u32 vcc, s{sT+1}, v{vPOLL}")
                st.put(60, f"s_cbranch_vccnz L_zwait{typ}")
                st.put(60, f"L_zok{typ}:")
            if n == NF-1:
                assert not any("@sst" in x[0] for x in ch.items) and NZC < NF
                st.put(63, "s_waitcnt vmcnt(@since:sst)")
                st.put(62, f"s_load_dwordx2 s[{sG}:{sG+1}], s[0:1], 64")
                st.put(59, f"s_mov_b32 s{sG+2}, 3584")
            if n == NF:
                st.put(55, f"s_add_u32 s{gIT}, s{gIT}, {WS_FLG+FL_PREP}")
                st.put(58, f"s_lshl2_add_u32 s{sT+1}, s2, s{gIT}")
                st.put(59+2*kk, f"buffer_store_dword v{vONE}, v{vFLG}, {WS}, s{sT+1} offen sc1")
            if n == NP:
                assert not ch.items
                st.put(61, f"buffer_load_dwordx4 {vr(PV,4)}, v{vL16}, {WS}, s{gIT} offen sc1 ; @prep")
            if n == NC:
                st.put(50, "s_waitcnt vmcnt(@since:prep)")
                st.put(51, f"s_cmp_eq_u32 s{sWAVE}, 0\ns_cselect_b32 s{sT+1}, 1, 0")
                st.put(54, f"v_and_b32 v{PV}, v{PV}, v{PV+1}")
                st.put(54, f"v_and_b32 v{PV+2}, v{PV+2}, v{PV+3}")
                st.put(55, f"v_and_b32 v{PV}, v{PV}, v{PV+2}")
                st.put(55, f"v_cmp_ne_u32 vcc, s{sT+1}, v{PV}")
                st.put(60, f"s_cbranch_vccnz L_prepwait{typ}")
                st.put(60, f"L_prepok{typ}:")
                st.put(56, f"v_lshrrev_b32 v{GT+16}, 4, v{vLANE}")
                st.put(56, f"v_lshlrev_b32 v{GT+16}, 5, v{GT+16}")
            J.place(st, n, 10, XG4)
            if n >= 1 and ch.items:
                full = ch.items
                for k, x in enumerate(full):
                    if len(x) > 3:
                        key = f"sl{x[3]}"
                        if any(j[5] == key for j in J.jobs) or J.at[key] + OPT["sld"] > n*64+63:
                            ch.items = full[:k]; break
                        full[k] = (x[0], x[1], max(0, J.at[key] + OPT["sld"] - n*64), x[3])
                rest = full[len(ch.items):] if ch.items is not full else []
                ch.base = n*64; ch.minD = OPT["smin"]
                ch.fill(st)
                ch.items = ch.items + rest
                if typ == "K": print("substep", n, "chain left", len(ch.items), file=sys.stderr)
            elif n > NC: su.fill(st)
            if n == 28: assert not su.items
            st.emit(a)
        st = substep(15, 1)
        J.place(st, 31, 2, [17, 21]); assert not J.jobs
        SG = [25, 33, 41, 49, 57, 61]
        for c in range(NE): kvjob(J, c, SG[c], SG[c])
        J.place(st, 0, 8, SG); assert not J.jobs
        su = Chain(setup2); su.fill(st, 30); assert not su.items
        slot_of = {pos(m, n): m*8+n for m in range(8) for n in range(8)}
        pk = []
        for c in range(32):
            e = max(slot_of[2*c], slot_of[2*c+1]) + 3
            if 20 <= c < 20+NE: e = max(e, SG[c-20]+2)
            src = []
            for h in range(2):
                p = 2*c+h
                if p < 52: src += [48+4*p+i for i in range(4)]
                else:
                    for i in range(4):
                        pk.append((f"v_accvgpr_read_b32 v{128+(p-52)*4+i}, a{208+4*(p-52)+i}", 0, e)); src.append(128+(p-52)*4+i)
            for i in range(4): pk.append((f"v_cvt_pk_bf16_f32 v{PK(c)+i}, v{src[2*i]}, v{src[2*i+1]}", 0, e))
        pk = Chain(pk); pk.fill(st)
        for c in range(NE):
            w = [g for g, v in st.fill.items() if any(x.startswith(f"v_cvt_pk_bf16_f32 v{PK(c)+3},") for x in v)]
            assert min(w) < SG[c], (c, w)
        st.emit(a)
        a("s_nop 3")
        print("pack tail", len(pk.items), file=sys.stderr)
        pk.flush(a)
        a("s_waitcnt vmcnt(@since:bias) lgkmcnt(8)")
        a(f"s_cmp_eq_u32 s{sTYPE}, 0")
        a("s_cbranch_scc0 L_P1B")
        a("s_branch L_P1A")
    def unpack(nt):
        o = []
        for r in range(4):
            x = 4*r + (nt & 3); src = BIAS + (nt >> 2)*8 + (x >> 1)
            o.append(f"v_and_b32 v{O(nt,1)+r}, 0xffff0000, v{src}" if x & 1 else f"v_lshlrev_b32 v{O(nt,1)+r}, 16, v{src}")
        return o
    def p1_jobs(t0, step, slack=8):
        J = Jobs()
        for c in range(20+NE, 32): kvjob(J, c, 0, XG[c-20-NE])
        for k, c in enumerate(range(NE, 20+NE)): kvjob(J, c, t0+k*step, t0+slack+k*step)
        for i in range(20, 28): xjob(J, f"x1{i>>2}", i, XO1, (i >> 2)*64 - 134, (i >> 2)*64 - 70)
        return J
    def xwait(st, key): st.put(62, f"s_waitcnt vmcnt(@since:{key})")
    def flagjob(J, key, after, soff, delay):
        if key in J.at or any(j[5] in (after, key) for j in J.jobs): return
        t = J.at[after] + delay
        J.add(key, f"s_waitcnt vmcnt(@since:{after})\ns_barrier", f"buffer_store_dword v{vONE}, v{vFLG}, {WS}, s{soff} offen sc1", t, t+8)
    def split_chain(items, st_prev, mk_next, late_of):
        ch = Chain(items); ch.fill(st_prev)
        rest = ch.items
        for k in range(len(rest)+1):
            st = mk_next()
            c2 = Chain([(x[0], x[1]) for x in rest[k:]])
            before = {gg: len(v) for gg, v in st.fill.items()}
            c2.fill(st)
            if c2.items: continue
            where = {}
            for gg, v in st.fill.items():
                for ins in v[before.get(gg, 0):]: where[ins] = gg
            if all(where[x[0]] <= late_of(x[3]) for x in rest[k:]):
                return rest[:k], st
        raise AssertionError
    def emit_mid(mid):
        if mid: a("s_nop 3")
        Chain(mid).flush(a)
        if mid: a("s_nop 1")
    def post_groups(s, scale):
        out = []
        for qt in range(2):
            for p in range(2):
                t = vT + 16 + (qt*2+p)*4
                regs = [PA(s & 1, nt, qt) + 2*p + rr for rr in range(2) for nt in range(4)]
                ops = [f"v_mul_f32 v{r}, v{vRINV[qt]}, v{r}" for r in regs] if scale else []
                ops += [f"v_cvt_pk_bf16_f32 v{t+i}, v{regs[2*i]}, v{regs[2*i+1]}" for i in range(4)]
                out.append((ops, t))
        return out
    def post_store(s, k, t, base):
        return f"s_add_u32 s{sJT}, s{base}, {s*4096+k*1024}", f"buffer_store_dwordx4 {vr(t,4)}, v{vL16}, {WS}, s{sJT} offen sc1 ; @ps"
    def post_place(st, s, scale, base, gaps):
        for k, (ops, t) in enumerate(post_groups(s, scale)):
            pre, ins = post_store(s, k, t, base)
            st.put(gaps[k]-1, pre); st.put(gaps[k], ins)
    def post_sched(st, s, scale, gaps):
        for k, (ops, t) in enumerate(post_groups(s, scale)):
            prev = None
            for x in ops: prev = st.add(x, [prev], 2, gaps[k]-1)
        st.schedule()
    def post_flush(s, scale, base):
        a("s_nop 5")
        for k, (ops, t) in enumerate(post_groups(s, scale)):
            for x in ops: a(x)
            for x in post_store(s, k, t, base): a(x)
    def mk_post(s):
        st = Stage(mf_post(s)); common_fill(st); return st
    def poll_issue(st, g, voff, soff, tag):
        st.put(g, f"buffer_load_dword v{vPOLL}, v{voff}, {WS}, s{soff} offen sc1 ; @{tag}")
    POLLS = []
    def poll_check(st, g, voff, soff, tag, lane0):
        st.put(g, f"s_waitcnt vmcnt(@since:{tag})")
        st.put(g, f"v_cmp_{'eq' if lane0 else 'ne'}_u32 s[{sT+4}:{sT+5}], s{sEXP}, v{vPOLL}")
        st.put(g+2, f"s_cmp_{'eq' if lane0 else 'lg'}_u64 s[{sT+4}:{sT+5}], 0\ns_cbranch_scc1 L_pw_{tag}")
        assert not ({g+1, g+2} & st.scc_busy)
        st.put(g+2, f"L_po_{tag}:")
        st.put(g+2, "s_barrier")
        POLLS.append((tag, voff, soff, lane0))
    def kv2addr(st):
        st.put(2, f"v_min_u32 v{vL4}, 11, v{vLANE}"); st.put(4, f"v_lshlrev_b32 v{vL4}, 2, v{vL4}"); st.put(8, f"v_add_u32 v{vL4}, 128, v{vL4}")
    XG2 = sorted(XG + [3, 11, 19, 27, 43, 51, 59])
    XG3 = sorted(XG + [5, 13, 21, 29, 45, 53, 61])
    merge("L_P1A")
    stamp(2)
    for x in unpack(0): a(x)
    a("s_nop 1")
    J = p1_jobs(64, OPT["kvstep"])
    for s in range(6):
        st = Stage(mf_proj(s, "bias" if s == 0 else None)); common_fill(st)
        flagjob(J, "kvf", "kv", sFKV, OPT["fdelay"])
        J.place(st, s, OPT["cap"])
        if s == 0:
            for nt in range(1, 16):
                e = XG[2*(nt-13)+1]+2 if nt >= 13 else 0
                for x in unpack(nt): st.add(x, [], e, 4*nt-3)
            st.schedule()
        if s >= 4: xwait(st, f"x1{s+1}")
        st.emit(a)
    st = Stage(mf_proj(6)); common_fill(st)
    flagjob(J, "kvf", "kv", sFKV, OPT["fdelay"]); J.place(st, 6, OPT["cap"])
    items = []
    for ud in range(8):
        for qt in range(2):
            regs = [O(2*ud,qt)+i for i in range(4)] + [O(2*ud+1,qt)+i for i in range(4)]
            e = 8*ud+7+3
            for r in regs: items.append((f"v_mul_f32 v{r}, |v{r}|, v{r}", 0, e, ud))
            for i in range(4): items.append((f"v_cvt_pk_bf16_f32 v{regs[i]}, v{regs[2*i]}, v{regs[2*i+1]}", 0, e, ud))
            for i in range(4): items.append((f"v_pk_max_i16 v{regs[i]}, v{regs[i]}, 0", 0, e, ud))
    import copy
    def mk0():
        st = mk_post(0); J2 = copy.deepcopy(J); J2.place(st, 7, OPT["cap"]); assert not J2.jobs; return st
    mid, st0 = split_chain(items, st, mk0, lambda ud: 8*ud-3)
    print("H mid", len(mid), "kv last", J.at["kv"], file=sys.stderr)
    st.emit(a); emit_mid(mid)
    stamp(3)
    J = Jobs()
    for i in range(16):
        J.add("ql", f"s_add_u32 s{sJT}, s{sQST}, {i*1024}", f"buffer_load_dwordx4 {ar(4*i,4)}, v{vL16}, {WS}, s{sJT} offen sc1 ; @ql", 4*64+46, 6*64+36-(15-i)*4)
    for s in range(7):
        st = st0 if s == 0 else mk_post(s)
        if s == 2: poll_issue(st, 3, vL4, sFKVP, "kva"); poll_check(st, 58, vL4, sFKVP, "kva", False)
        if s == 3: poll_issue(st, 51, vFLG, sFQ, "qa"); kv2addr(st)
        if s == 4: poll_check(st, 42, vFLG, sFQ, "qa", True)
        gaps = [9, 25, 41, 57] if s < 6 else [41, 49, 57, 59]
        if s >= 1: post_place(st, s-1, False, sPSG, gaps)
        J.place(st, s, 7, XG2)
        if s >= 1: post_sched(st, s-1, False, gaps)
        st.emit(a)
    assert not J.jobs
    def mk_F(qb, tag, pre=None):
        st = Stage(mf_qk(0, 0, qb, True) + mf_qk(1, 1, qb, True)); common_fill(st)
        if pre: pre(st)
        place_sm(st, 0, 35, 62, tag, ladd=False, first=True)
        st.schedule()
        return st
    def finit():
        return [(f"v_mov_b64 {vr(NEGM(0)+2*i,2)}, 0", 0) for i in range(4)] + [(f"v_mov_b64 {vr(vL[0],2)}, 0", 0),
                (f"v_mov_b32 v{vBIG}, {f2u(-1e30):#x}", 0), (f"s_mov_b32 s{sFIRST}, 1", 1), (f"s_mov_b32 s{sCLAMP}, {f2u(-3e38):#x}", 1)]
    def f_end(tag, nxt, endl):
        a(f"s_cbranch_vccnz L_fchk_{tag}")
        a.label(f"L_fok_{tag}")
        STUBS.append((f"L_fchk_{tag}", "L_fchk", f"L_fok_{tag}"))
        a(f"s_mov_b32 s{sFIRST}, 0")
        a(f"s_mov_b32 s{sCLAMP}, 0")
        a(f"s_cmp_eq_u32 s{sCNT}, 0")
        a(f"s_cbranch_scc1 {endl}")
        if nxt: a(f"s_branch {nxt}")
    a("s_nop 5")
    for ops, t in post_groups(6, False):
        for x in ops: a(x)
    a("s_waitcnt vmcnt(@since:ql)")
    stamp(4)
    def pre_fa1(st):
        post_place(st, 6, False, sPSG, [9, 17, 25, 33])
        poll_issue(st, 1, vL4, sFKVP, "kv2a"); poll_check(st, 58, vL4, sFKVP, "kv2a", False)
    st = mk_F(0, "fa1", pre_fa1)
    c = Chain(finit()); c.fill(st, 0, 30); assert not c.items
    st.emit(a)
    f_end("fa1", "L_s1z0", "L_u2")
    merge("L_P1B")
    stamp(2)
    J = p1_jobs(OPT["kvb0"], OPT["kvstepb"], 200)
    for i in range(28):
        p = i >> 2
        xjob(J, f"x2{p}", i, XO2, max(p+1, 3)*64, (7+p)*64 - 134, 4)
    for i in range(16):
        qt, ud = i & 1, i >> 1
        J.add("qs", f"s_add_u32 s{sJT}, s{sQST}, {(qt*8+ud)*1024}", f"buffer_store_dwordx4 {ar(Q(0,qt,ud),4)}, v{vL16}, {WS}, s{sJT} offen{OPT['kvsc']} ; @qs",
              7*64 if ud < 5 else 8*64, 7*64+20+i*OPT["qstep"])
    def bstage(gs):
        s = gs % 7
        st = Stage(mf_proj(s, "zero" if gs % 7 == 0 else None))
        nod = 3 <= gs <= 7
        common_fill(st, dma=not nod, nd={3: 16, 4: 8, 5: 0}.get(gs), novm=(6 <= gs <= 10), rdl=(gs == 7))
        if gs == 9: poll_issue(st, 3, vL4, sFKVP, "kvb"); poll_check(st, 58, vL4, sFKVP, "kvb", False)
        if gs == 10: kv2addr(st)
        if gs == 1:
            st.put(2, f"s_cmp_eq_u32 s{sJ}, 7\ns_cselect_b32 s{sT+1}, 34, 2")
            st.put(4, f"v_and_b32 v{vT}, 4, v{vLANE}"); st.put(8, f"v_mul_u32_u24 v{vT}, s{sT+1}, v{vT}"); st.put(10, f"v_or_b32 v{vL4}, v{vL4}, v{vT}")
        flagjob(J, "kvf", "kv", sFKV, OPT["fdelay"]); flagjob(J, "qf", "qs", sFQ, 72)
        if nod: J.place(st, gs, OPT["capn"], XG3)
        elif gs == 8: J.place(st, gs, OPT["capq"], XG2)
        else: J.place(st, gs, OPT["capb"])
        if gs in (4, 5): xwait(st, f"x1{gs+1}")
        if 6 <= gs < 13: xwait(st, f"x2{gs-6}")
        return st
    for gs in range(6): bstage(gs).emit(a)
    def q_items(qb):
        items = []; cnt = 0
        for ud in range(8):
            blk = ud >> 1
            for qt in range(2):
                e = 16*blk+15+3
                t = vT + 16 + (cnt % 4)*4; cnt += 1
                for i in range(4):
                    jp = 2*(ud & 1) + (i >> 1); tl = 4*blk + 2*(i & 1)
                    items.append((f"v_cvt_pk_bf16_f32 v{t+i}, v{O(tl,qt)+jp}, v{O(tl+1,qt)+jp}", 0, e, 2*blk))
                for i in range(4): items.append((f"v_accvgpr_write_b32 a{Q(qb,qt,ud)+i}, v{t+i}", 0, e, 99 if ud >= 5 else -1))
        return items
    st = bstage(6); st7 = bstage(7)
    mid, st0 = split_chain(q_items(0), st, lambda: copy.deepcopy(st7), lambda ud: 8*ud-1)
    print("E1 mid", len(mid), file=sys.stderr)
    st.emit(a); emit_mid(mid)
    stamp(3)
    st0.emit(a)
    for gs in range(8, 13): bstage(gs).emit(a)
    st = bstage(13)
    assert not J.jobs
    print("B jobs", {k: (v >> 6, v & 63) for k, v in J.at.items()}, file=sys.stderr)
    def mk_fa2():
        STUBS[:] = [x for x in STUBS if "fa2" not in x[0]]
        POLLS[:] = [x for x in POLLS if x[0] != "kv2b"]
        def pre(st): poll_issue(st, 1, vL4, sFKVP, "kv2b"); poll_check(st, 58, vL4, sFKVP, "kv2b", False)
        st = mk_F(0, "fa2", pre); c = Chain(finit()); c.fill(st, 0, 30); return st
    mid, st0 = split_chain(q_items(128), st, mk_fa2, lambda ud: 60)
    print("E2 mid", len(mid), file=sys.stderr)
    st.emit(a); emit_mid(mid)
    stamp(4)
    st0.emit(a)
    f_end("fa2", None, "L_u2")
    def steady(b, qb, tag, czero=False):
        st = Stage(mf_pv(0, b^1, czero) + mf_qk(1, b^1, qb)); common_fill(st)
        if b == 0:
            st.put(56, f"s_sub_u32 s{sCNT}, s{sCNT}, 1")
            st.put(58, f"s_cmp_lg_u32 s{sCNT}, s{sEV}")
            st.scc_busy |= set(range(58, 64))
        if tag == "z0":
            st.put(56, "s_waitcnt vmcnt(11)")
            st.put(57, f"buffer_store_dword v{vONE}, v{vFLG}, {WS}, s{sFSG} offen sc1")
        place_sm(st, b, 0, 62, tag); st.schedule()
        st.emit(a)
        a(f"s_cbranch_vccnz L_dorare_{tag}")
        a.label(f"L_norare_{tag}")
        STUBS.append((f"L_dorare_{tag}", f"L_rare{b}", f"L_norare_{tag}"))
    def loop(qb, n):
        merge(f"L_s1z{n}")
        steady(1, qb, f"z{n}", True)
        a(f"s_branch L_mid{n}")
        merge(f"L_steady{n}", True)
        steady(1, qb, f"s1{n}")
        merge(f"L_mid{n}")
        steady(0, qb, f"s0{n}")
        a(f"s_cbranch_scc1 L_steady{n}")
    loop(0, 0)
    a(f"s_cmp_eq_u32 s{sCNT}, 0")
    a("s_cbranch_scc1 L_end0")
    a(f"""
    s_add_u32 s{sFQ}, s{sFQ}, {FL_P - FL_Q}
    s_nop 0
    buffer_load_dword v{vPOLL}, v{vFLG}, {WS}, s{sFQ} offen sc1
    s_mov_b32 s{sEV}, 0
    s_branch L_steady0
    """)
    a.label("L_u2")
    for i in range(64): a(f"v_mov_b64 {vr(O0+2*i,2)}, 0")
    merge("L_end0")
    a(f"s_cmp_eq_u32 s{sTYPE}, 2")
    a("s_cbranch_scc1 L_lpack")
    a(f"""
    s_waitcnt vmcnt(16)
    v_cmp_ne_u32 vcc, s{sEXP}, v{vPOLL}
    s_add_u32 s{sT+3}, s{sPT}, 16384
    s_nop 0
    s_bitcmp1_b32 vcc_lo, 0
    s_cbranch_scc1 L_pw_pt
    """)
    a.label("L_po_pt")
    a("s_barrier")
    POLLS.append(("pt", vFLG, sFQ, True))
    a(f"buffer_load_dwordx4 {vr(vSTB,4)}, v{vL16}, {WS}, s{sT+3} offen sc1")
    for i in range(16):
        if i % 4 == 0: a(f"s_add_u32 s{sT+3}, s{sPT}, {i*1024}")
        a(f"buffer_load_dwordx4 {ar(128+4*i,4)}, v{vL16}, {WS}, s{sT+3} offen offset:{(i&3)*1024} sc1 ; @ptl")
    def pack_items(e0, step):
        items = []
        for ud in range(8):
            for qt in range(2):
                regs = [O(2*ud,qt)+i for i in range(4)] + [O(2*ud+1,qt)+i for i in range(4)]
                for i in range(4): items.append((f"v_cvt_pk_bf16_f32 v{regs[i]}, v{regs[2*i]}, v{regs[2*i+1]}", 0, e0+step*ud, ud))
        return items
    def mk_L(tag):
        st = Stage(mf_pv(0, 0) + mf_pv(1, 1)); common_fill(st)
        place_sm(st, 1, 0, 30, tag); st.schedule()
        st.put_post(31, f"s_cbranch_vccnz L_dorare_{tag}")
        st.put_post(31, f"L_norare_{tag}:")
        STUBS.append((f"L_dorare_{tag}", "L_rare1", f"L_norare_{tag}"))
        st.put(32, f"v_add_f32 v{vL[0]}, v{vL[0]}, v{vSUM[0][0]}")
        st.put(34, f"v_add_f32 v{vL[1]}, v{vL[1]}, v{vSUM[1][0]}")
        return st
    st = mk_L("ln")
    c = [(f"v_bfe_u32 v{vT+20}, v{vLANE}, 2, 2", 0), (f"v_lshrrev_b32 v{vT+21}, 4, v{vLANE}", 0), (f"v_cmp_eq_u32 s[{sT+4}:{sT+5}], v{vT+20}, v{vT+21}", 0),
         (f"v_and_b32 v{vT+20}, 3, v{vLANE}", 0), (f"v_lshlrev_b32 v{vT+20}, 4, v{vT+20}", 0), (f"v_mov_b32 v{vT+22}, 0x3f80", 0), (f"v_mov_b32 v{vT+23}, 0", 0),
         (f"v_cndmask_b32 v{vT+22}, 0, v{vT+22}, s[{sT+4}:{sT+5}]", 1), (f"v_lshlrev_b64 {vr(vSEL+2,2)}, v{vT+20}, {vr(vT+22,2)}", 0),
         (f"v_mov_b64 {vr(vSEL,2)}, 0", 0), (f"v_mov_b64 {vr(vSEL+4,2)}, 0", 0),
         ("s_waitcnt vmcnt(@since:ptl)", 1, 55),
         (f"v_cmp_neq_f32 vcc, v{NEGM(0)}, v{vSTB}", 1), (f"v_cmp_neq_f32 s[{sT+4}:{sT+5}], v{NEGM(1)}, v{vSTB+1}", 0)]
    c = Chain(c); c.fill(st, 35); assert not c.items
    st.emit(a)
    a(f"s_or_b64 vcc, vcc, s[{sT+4}:{sT+5}]")
    a("s_cbranch_scc1 L_slowcomb")
    a.label("L_comb")
    stamp(5)
    mf = []
    for ud in range(8):
        for h in range(2):
            for qt in range(2):
                d = vr(O(2*ud+h,qt),4)
                mf.append(f"{MF} {d}, {vr(vSEL+2-2*h,4)}, {ar(128+(ud*2+qt)*4,4)}, {d}")
    st = Stage(mf)
    st.put(0, f"v_add_f32 v{vL[0]}, v{vL[0]}, v{vSTB+2}")
    st.put(0, f"v_add_f32 v{vL[1]}, v{vL[1]}, v{vSTB+3}")
    c = Chain(pack_items(6, 4)); c.fill(st, 0, 31)
    st.emit(a)
    a("s_nop 5")
    c.flush(a)
    a("s_branch L_post2")
    merge("L_lpack")
    st = mk_L("lp")
    c = Chain([(f"v_mov_b32 v{vSTAT}, v{NEGM(0)}", 0), (f"v_mov_b32 v{vSTAT+1}, v{NEGM(1)}", 0), (f"v_mov_b64 {vr(vSTAT+2,2)}, {vr(vL[0],2)}", 0)] + pack_items(38, 4))
    c.fill(st, 35)
    st.put(62, f"s_cmp_eq_u32 s{sTYPE}, 2")
    st.emit(a)
    a("s_nop 5")
    print("Lpack tail", len(c.items), file=sys.stderr)
    c.flush(a)
    a("s_cbranch_scc0 L_post2b")
    stamp(5)
    a(f"""
    s_mov_b32 s{sTYPE}, 3
    s_mov_b32 s{sN}, 0
    s_sub_u32 s{sND}, 15, s{sQI}
    s_lshl_b32 s{sND}, s{sND}, 2
    s_add_u32 s{sND}, s{sND}, s{sWAVE}
    s_lshr_b32 s{sCNT}, s{sU2}, 1
    s_sub_u32 s{sCNT}, s{sCNT}, 1
    s_sub_u32 s{sEV}, s{sCNT}, 1
    s_add_u32 s{sFQ}, s{sFQ}, {FL_P - FL_Q}
    s_add_u32 s{sT+3}, s{sPT}, 16384
    buffer_store_dwordx4 {vr(vSTAT,4)}, v{vL16}, {WS}, s{sT+3} offen sc1
    """)
    st = mk_F(128, "fb")
    c = []
    for i in range(16):
        if i % 4 == 0: c.append((f"s_add_u32 s{sT+3}, s{sPT}, {i*1024}", 1))
        c.append((f"buffer_store_dwordx4 {vr(O(2*(i>>1),i&1),4)}, v{vL16}, {WS}, s{sT+3} offen offset:{(i&3)*1024}{OPT['kvsc']}", 1))
    c = Chain(c); c.fill(st)
    c2 = Chain(finit()); c2.fill(st, 0, 30); assert not c2.items
    print("Fb leftover", len(c.items), file=sys.stderr)
    st.emit(a)
    c.flush(a)
    f_end("fb", None, "L_end")
    loop(128, 1)
    a(f"""
    s_cmp_eq_u32 s{sTYPE}, 3
    s_cbranch_scc0 L_lpack
    s_waitcnt vmcnt(16)
    s_barrier
    buffer_store_dword v{vONE}, v{vFLG}, {WS}, s{sFQ} offen sc1
    s_mov_b32 s{sTYPE}, 4
    s_mov_b32 s{sEV}, 0
    s_cmp_eq_u32 s{sCNT}, 0
    s_cbranch_scc1 L_lpack
    s_branch L_steady1
    """)
    a.label("L_post2b")
    merge("L_post2")
    stamp(6)
    a("s_nop 1")
    C0, CO, FP = sU1, sU2, sW0
    XO = [sCNT, sEV]; BO = [sN, sND]
    vXO, vBO, vC1, vFG, vFS = 44, 45, 46, 47, 48
    fs = f"""
    s_load_dwordx2 s[{sSA}:{sSA+1}], s[0:1], 0
    s_load_dwordx2 s[{sG}:{sG+1}], s[0:1], 80
    s_load_dwordx2 s[{sSB}:{sSB+1}], s[0:1], 88
    s_mov_b32 s{sSA+2}, {2048*896}
    s_mov_b32 s{sSB+2}, {2048*896}
    s_mov_b32 s{sG+2}, 896
    s_and_b32 s{C0}, s2, 3
    s_mul_i32 s{C0}, s{C0}, 7
    s_lshl_b32 s{sT}, s{sWAVE}, 1
    s_add_u32 s{C0}, s{C0}, s{sT}
    s_lshr_b32 s{sT}, s2, 4
    s_mul_i32 s{CO}, s{sT}, {PS_R}
    s_bfe_u32 s{sT+4}, s2, 0x20002
    s_mul_i32 s{sT+5}, s{sT+4}, {28*1024}
    s_add_u32 s{CO}, s{CO}, s{sT+5}
    s_lshl_b32 s{sT+5}, s{C0}, 10
    s_add_u32 s{CO}, s{CO}, s{sT+5}
    s_add_u32 s{CO}, s{CO}, {WS_PS}
    s_lshr_b32 s{FP}, s2, 2
    s_lshl_b32 s{FP}, s{FP}, 7
    s_add_u32 s{FP}, s{FP}, {WS_FLG + FL_S}
    v_min_u32 v{vFG}, 6, v{vLANE}
    v_lshl_add_u32 v{vFG}, v{vFG}, 2, 64
    v_and_b32 v{vXO}, 15, v{vLANE}
    v_lshlrev_b32 v{vFS}, 2, v{vXO}
    s_lshr_b32 s{sT+5}, s2, 2
    s_lshl_b32 s{sT+5}, s{sT+5}, 5
    v_add_u32 v{vXO}, s{sT+5}, v{vXO}
    v_mul_u32_u24 v{vXO}, 896, v{vXO}
    v_and_b32 v{vBO}, 48, v{vLANE}
    v_lshlrev_b32 v{vBO}, 1, v{vBO}
    v_add_u32 v{vXO}, v{vXO}, v{vBO}
    """
    for k in range(2):
        fs += f"""
        s_add_u32 s{sT}, s{C0}, {k}
        s_lshr_b32 s{sT+4}, s{sT}, 2
        s_lshl_b32 s{BO[k]}, s{sT+4}, 7
        s_and_b32 s{sT+4}, s{sT}, 1
        s_lshl_b32 s{sT+4}, s{sT+4}, 4
        s_add_u32 s{BO[k]}, s{BO[k]}, s{sT+4}
        s_bfe_u32 s{sT+4}, s{sT}, 0x10001
        s_mul_i32 s{XO[k]}, s{sT+4}, {16*896}
        s_add_u32 s{XO[k]}, s{XO[k]}, s{BO[k]}
        """
    fs = [(x.strip(), 1) for x in fs.split("\n") if x.strip()]
    fs.append((f"s_cmp_eq_u32 s{sWAVE}, 3\ns_cselect_b32 s{XO[1]}, {OOB}, s{XO[1]}\ns_cselect_b32 s{sT+4}, {OOB}, 0", 1))
    fs.append((f"v_add_u32 v{vC1}, s{sT+4}, v{vL16}", 1))
    fs.append((f"s_cmp_eq_u32 s{sWAVE}, 0\ns_cselect_b32 s{FP}, s{FP}, {OOB}", 1))
    fs = Chain(fs)
    J = Jobs()
    GL = 128
    for k in range(2):
        J.add("gl", None, f"buffer_load_dwordx4 {ar(GL+56+4*k,4)}, v{vXO}, {sr(sSA,4)}, s{XO[k]} offen", 3*64, 7*64)
        J.add("gl", None, f"buffer_load_dwordx4 {ar(GL+64+4*k,4)}, v{vBO}, {G}, s{BO[k]} offen", 3*64, 7*64)
    for n in range(7):
        for k in range(2):
            J.add("gl", f"s_add_u32 s{sJT}, s{CO}, {(16+n)*PS_SRC}", f"buffer_load_dwordx4 {ar(GL+n*8+4*k,4)}, v{(vL16, vC1)[k]}, {WS}, s{sJT} offen offset:{k*1024} sc1 ; @gl", 4*64, 7*64)
    for s in range(7):
        st = Stage(mf_post(s)); common_fill(st, dma=(s < 3), nd=(None, None, None, 16, 8, 0, 0)[s], last=(s == 6))
        if s == 0:
            c = xlane_ops("v_add_f32", vL[0], vT) + xlane_ops("v_add_f32", vL[1], vT) + [(f"v_rcp_f32 v{vRINV[0]}, v{vL[0]}", 0), (f"v_rcp_f32 v{vRINV[1]}, v{vL[1]}", 1)]
            c = Chain(c); c.fill(st); assert not c.items
            fs.fill(st)
        else:
            gaps = [17, 33, 49, 57]
            post_place(st, s-1, True, sPSS, gaps)
            if s == 2: st.put(60, "s_waitcnt lgkmcnt(0)")
            if s == 2: poll_issue(st, 41, vFG, FP, "gf")
            if s == 3: poll_check(st, 58, vFG, FP, "gf", False)
            J.place(st, s, 7, [1, 9, 13, 25, 29, 41, 45, 61])
            post_sched(st, s-1, True, gaps)
            fs.fill(st)
            if s == 1: assert not fs.items
        st.emit(a)
    assert not J.jobs
    post_flush(6, True, sPSS)
    stamp(7)
    a(f"s_mov_b32 s{sT+4}, 0x00003f80")
    a(f"s_mov_b32 s{sT+5}, 0x3f800000")
    a(f"s_mov_b32 s{sT+6}, 0xffff0000")
    a(f"s_mov_b32 s{sT+7}, {f2u(-1.4426950408889634):#x}")
    LB = 128; TB = 64
    XB, BB = TB+56, 52
    GA, SA_ = 12, 28
    a("s_waitcnt vmcnt(@since:gl)")
    for i in range(64): a(f"v_accvgpr_read_b32 v{TB+i}, a{GL+i}")
    for i in range(8): a(f"v_accvgpr_read_b32 v{BB+i}, a{GL+64+i}")
    def accum(base, acc, first):
        for i in range(8):
            r = base+i
            if first:
                a(f"v_lshlrev_b32 v{acc+2*i}, 16, v{r}"); a(f"v_and_b32 v{acc+2*i+1}, s{sT+6}, v{r}")
            else:
                a(f"v_dot2_f32_bf16 v{acc+2*i}, v{r}, s{sT+4}, v{acc+2*i}"); a(f"v_dot2_f32_bf16 v{acc+2*i+1}, v{r}, s{sT+5}, v{acc+2*i+1}")
    def rnd_pair(r0, r1, t):
        a(f"v_cvt_pk_bf16_f32 v{t}, v{r0}, v{r1}")
        a(f"v_lshlrev_b32 v{r0}, 16, v{t}")
        a(f"v_and_b32 v{r1}, s{sT+6}, v{t}")
    for n in range(7): accum(TB+n*8, GA, n == 0)
    a("s_waitcnt vmcnt(0)")
    a(f"buffer_store_dword v{vONE}, v{vFLG}, {WS}, s{sFSS} offen sc1")
    a("s_nop 0")
    T1, T2, T3 = 2, 3, 4
    for i in range(8):
        g0, g1 = GA+2*i, GA+2*i+1
        rnd_pair(g0, g1, T1)
        a(f"v_lshlrev_b32 v{T2}, 16, v{BB+i}")
        a(f"v_and_b32 v{T3}, s{sT+6}, v{BB+i}")
        a(f"v_add_f32 v{g0}, v{g0}, v{T2}")
        a(f"v_add_f32 v{g1}, v{g1}, v{T3}")
        rnd_pair(g0, g1, T1)
        a(f"v_mul_f32 v{T2}, s{sT+7}, v{g0}")
        a(f"v_mul_f32 v{T3}, s{sT+7}, v{g1}")
        a(f"v_exp_f32 v{T2}, v{T2}")
        a(f"v_exp_f32 v{T3}, v{T3}")
        a("s_nop 0")
        a(f"v_add_f32 v{T2}, 1.0, v{T2}")
        a(f"v_add_f32 v{T3}, 1.0, v{T3}")
        a(f"v_rcp_f32 v{T2}, v{T2}")
        a(f"v_rcp_f32 v{T3}, v{T3}")
        a("s_nop 0")
        a(f"v_mul_f32 v{g0}, v{g0}, v{T2}")
        a(f"v_mul_f32 v{g1}, v{g1}, v{T3}")
        rnd_pair(g0, g1, T1)
    a(f"s_mov_b32 s{sT+1}, 0")
    a(f"s_cmp_lg_u32 s{sWAVE}, 0")
    a("s_cbranch_scc1 L_fgo")
    a.label("L_fpoll")
    a(f"""
    buffer_load_dword v{vPOLL}, v{vFS}, {WS}, s{FP} offen sc1
    s_add_u32 s{sT+1}, s{sT+1}, 1
    s_waitcnt vmcnt(0)
    v_cmp_ne_u32 vcc, 1, v{vPOLL}
    s_cmp_lt_u32 s{sT+1}, 0x10000
    s_cbranch_vccz L_fgo
    s_sleep {OPT['fsleep']}
    s_cbranch_scc1 L_fpoll
    """)
    a.label("L_fgo")
    a("s_barrier")
    stamp(8)
    for n in range(16):
        a(f"s_add_u32 s{sT}, s{CO}, {n*PS_SRC}")
        a(f"buffer_load_dwordx4 {vr(LB+n*8,4)}, v{vL16}, {WS}, s{sT} offen sc1")
        a(f"buffer_load_dwordx4 {vr(LB+n*8+4,4)}, v{vC1}, {WS}, s{sT} offen offset:1024 sc1")
    for n in range(16):
        a(f"s_waitcnt vmcnt({2*(15-n)})")
        accum(LB+n*8, SA_, n == 0)
    a("s_nop 2")
    for i in range(8):
        g0, g1, s0, s1 = GA+2*i, GA+2*i+1, SA_+2*i, SA_+2*i+1
        rnd_pair(s0, s1, T1)
        a(f"v_mul_f32 v{g0}, v{g0}, v{s0}")
        a(f"v_mul_f32 v{g1}, v{g1}, v{s1}")
        rnd_pair(g0, g1, T1)
        a(f"v_lshlrev_b32 v{T2}, 16, v{XB+i}")
        a(f"v_and_b32 v{T3}, s{sT+6}, v{XB+i}")
        a(f"v_add_f32 v{g0}, v{g0}, v{T2}")
        a(f"v_add_f32 v{g1}, v{g1}, v{T3}")
        a(f"v_cvt_pk_bf16_f32 v{LB+i}, v{g0}, v{g1}")
        if i % 4 == 3: a(f"buffer_store_dwordx4 {vr(LB+i-3,4)}, v{vXO}, {sr(sSB,4)}, s{XO[i>>2]} offen")
    if stamps:
        a("s_waitcnt vmcnt(0)")
        stamp(9)
        a("s_waitcnt lgkmcnt(0)")
        if OPT["enc"] >= 0:
            a(f"""
            s_and_b32 s{sT+1}, s2, {OPT["encw"][0]}
            s_cmp_eq_u32 s{sT+1}, {OPT["encw"][1]}
            s_cbranch_scc0 L_end
            s_add_u32 s{sT+1}, s{streg(OPT["enc"])}, 10000
            s_mov_b32 s{sT+2}, 0
            L_enc:
            s_memrealtime s[{sT+4}:{sT+5}]
            s_add_u32 s{sT+2}, s{sT+2}, 1
            s_waitcnt lgkmcnt(0)
            s_cmp_gt_u32 s{sT+2}, 100000
            s_cbranch_scc1 L_end
            s_sub_u32 s{sT+4}, s{sT+4}, s{sT+1}
            s_cmp_lt_i32 s{sT+4}, 0
            s_cbranch_scc1 L_enc
            s_endpgm
            """)
        for i in range(12): a(f"v_mov_b32 v{16+i}, s{streg(min(i,9))}")
        a(f"""
        s_lshl_b32 s{sT+1}, s2, 2
        s_add_u32 s{sT+1}, s{sT+1}, s{sWAVE}
        s_lshl_b32 s{sT+1}, s{sT+1}, 6
        s_add_u32 s{sT+1}, s{sT+1}, {WS_STAMP}
        buffer_store_dwordx4 v[16:19], v{vFLG}, {WS}, s{sT+1} offen
        buffer_store_dwordx4 v[20:23], v{vFLG}, {WS}, s{sT+1} offen offset:16
        buffer_store_dwordx4 v[24:27], v{vFLG}, {WS}, s{sT+1} offen offset:32
        s_sub_u32 s{sT+1}, s{sT+1}, {WS_STAMP}
        s_lshl_b32 s{sT+1}, s{sT+1}, 3
        s_add_u32 s{sT+1}, s{sT+1}, {WS_STAMP + 0x100000}
        v_lshlrev_b32 v2, 2, v{vLANE}
        buffer_store_dword v0, v2, {WS}, s{sT+1} offen
        buffer_store_dword v{vKV}, v2, {WS}, s{sT+1} offen offset:256
        """)
    a.label("L_end")
    a("s_endpgm")
    for typ in ("K", "V"):
        for nm, ok, ldi, red, reg in (("zwait", "zok", f"buffer_load_dword v{vPOLL}, v{vL4}, {sr(sDBG,4)}, 0 offen sc1", "", vPOLL),
                ("prepwait", "prepok", f"buffer_load_dwordx4 {vr(PV,4)}, v{vL16}, {WS}, s{gIT} offen sc1",
                 f"v_and_b32 v{PV}, v{PV}, v{PV+1}\nv_and_b32 v{PV+2}, v{PV+2}, v{PV+3}\nv_and_b32 v{PV}, v{PV}, v{PV+2}", PV)):
            a.label(f"L_{nm}{typ}")
            a(f"s_mov_b32 s{sT+4}, 0")
            a.label(f"L_{nm}2{typ}")
            a(f"""
            s_sleep 4
            {ldi}
            s_add_u32 s{sT+4}, s{sT+4}, 1
            s_waitcnt vmcnt(0)
            {red}
            v_cmp_ne_u32 vcc, s{sT+1}, v{reg}
            s_cmp_ge_u32 s{sT+4}, 0x10000
            s_cbranch_scc1 L_{ok}{typ}
            s_nop 2
            s_cbranch_vccnz L_{nm}2{typ}
            s_branch L_{ok}{typ}
            """)
    for (tag, voff, soff, lane0) in POLLS:
        a.label(f"L_pw_{tag}")
        a(f"s_mov_b32 s{sT+1}, 0")
        a.label(f"L_pw2_{tag}")
        a(f"""
        buffer_load_dword v{vPOLL}, v{voff}, {WS}, s{soff} offen sc1
        s_add_u32 s{sT+1}, s{sT+1}, 1
        s_waitcnt vmcnt(0)
        v_cmp_ne_u32 s[{sT+4}:{sT+5}], 1, v{vPOLL}
        s_cmp_ge_u32 s{sT+1}, 0x10000
        s_cbranch_scc1 L_po_{tag}
        s_sleep {OPT['psleep']}
        """)
        if lane0 is True: a(f"s_bitcmp1_b32 s{sT+4}, 0")
        else: a(f"s_cmp_lg_u64 s[{sT+4}:{sT+5}], 0")
        a(f"s_cbranch_scc1 L_pw2_{tag}")
        a(f"s_branch L_po_{tag}")
    for (lab, sub, back) in STUBS:
        a.label(lab)
        a(f"s_call_b64 s[{sRET}:{sRET+1}], {sub}")
        a(f"s_branch {back}")
    for b in range(2):
        a.label(f"L_mask{b}")
        a("s_nop 7")
        a(f"s_cmp_eq_u32 s{sN}, s{sND}")
        a(f"s_cbranch_scc0 L_maskall{b}")
        for r in range(4):
            a(f"v_cndmask_b32 v{S(b,0,0)+r}, v{S(b,0,0)+r}, v{vBIG}, s[{sMASK+2*r}:{sMASK+2*r+1}]")
            a(f"v_cndmask_b32 v{S(b,1,1)+r}, v{S(b,1,1)+r}, v{vBIG}, s[{sMASK+2*r}:{sMASK+2*r+1}]")
            a(f"v_mov_b32 v{S(b,1,0)+r}, v{vBIG}")
        a(f"s_setpc_b64 s[{sRET}:{sRET+1}]")
        a.label(f"L_maskall{b}")
        for i in range(16): a(f"v_mov_b32 v{S(b,0,0)+i}, v{vBIG}")
        a(f"s_setpc_b64 s[{sRET}:{sRET+1}]")
    a.label("L_fchk")
    hi, lo = f2u(2.0**OPT["thr"]), f2u(2.0**-OPT["thr"])
    a(f"s_add_u32 s{sT+1}, s{sND}, 1")
    a(f"s_cmp_gt_u32 s{sN}, s{sT+1}")
    a("s_cbranch_scc1 L_fret")
    for qt in range(2):
        a(f"v_mov_b32 v{vT+8+qt}, v{vSUM[qt][0]}")
        xlane(a, "v_add_f32", vT+8+qt, vT)
        a(f"v_subrev_u32 v{vT+8+qt}, {lo:#x}, v{vT+8+qt}")
    a(f"v_max_u32 v{vT+8}, v{vT+8}, v{vT+9}")
    a(f"v_cmp_lt_u32 vcc, {hi-lo:#x}, v{vT+8}")
    a("s_nop 4")
    a("s_cbranch_vccnz L_rare0")
    a.label("L_fret")
    a(f"s_setpc_b64 s[{sRET}:{sRET+1}]")
    for b in range(2):
        a.label(f"L_rare{b}")
        a("s_nop 7")
        D = [vT+8, vT+9]; F = [vT+10, vT+11]
        for qt in range(2):
            r0, r1 = S(b,0,qt), S(b,1,qt)
            a(f"v_max3_f32 v{D[qt]}, v{r0}, v{r0+1}, v{r0+2}")
            a(f"v_max3_f32 v{D[qt]}, v{D[qt]}, v{r0+3}, v{r1}")
            a(f"v_max3_f32 v{D[qt]}, v{D[qt]}, v{r1+1}, v{r1+2}")
            a(f"v_max_f32 v{D[qt]}, v{D[qt]}, v{r1+3}")
            xlane(a, "v_max_f32", D[qt], vT)
            a(f"v_max_f32 v{D[qt]}, s{sCLAMP}, v{D[qt]}")
            a(f"v_max_f32 v{F[qt]}, 0, v{D[qt]}")
            a(f"v_exp_f32 v{F[qt]}, -v{F[qt]}")
            for i in range(4): a(f"v_sub_f32 v{NEGM(qt)+i}, v{NEGM(qt)+i}, v{D[qt]}")
            for bb in range(2):
                for kt in range(2):
                    for i in range(4): a(f"v_sub_f32 v{S(bb,kt,qt)+i}, v{S(bb,kt,qt)+i}, v{D[qt]}")
            a(f"v_mul_f32 v{vL[qt]}, v{F[qt]}, v{vL[qt]}")
        for o in sm_ops(b): a(o)
        a(f"s_cmp_eq_u32 s{sFIRST}, 1")
        a(f"s_cbranch_scc1 L_rare_ret{b}")
        for dt in range(16):
            for qt in range(2):
                for i in range(4): a(f"v_mul_f32 v{O(dt,qt)+i}, v{F[qt]}, v{O(dt,qt)+i}")
        a.label(f"L_rare_ret{b}")
        a(f"s_cmp_lg_u32 s{sCNT}, s{sEV}")
        a("s_nop 0")
        a(f"s_setpc_b64 s[{sRET}:{sRET+1}]")
    a.label("L_slowcomb")
    a("s_nop 7")
    wA, wB = [vT+8, vT+9], [vT+10, vT+11]
    for qt in range(2):
        a(f"""
        v_min_f32 v{vT+6}, v{NEGM(qt)}, v{vSTB+qt}
        v_sub_f32 v{wA[qt]}, v{vT+6}, v{NEGM(qt)}
        v_sub_f32 v{wB[qt]}, v{vT+6}, v{vSTB+qt}
        v_exp_f32 v{wA[qt]}, v{wA[qt]}
        v_exp_f32 v{wB[qt]}, v{wB[qt]}
        s_nop 0
        v_mul_f32 v{vL[qt]}, v{wA[qt]}, v{vL[qt]}
        v_mul_f32 v{vSTB+2+qt}, v{wB[qt]}, v{vSTB+2+qt}
        """)
    for dt in range(16):
        for qt in range(2):
            for i in range(4): a(f"v_mul_f32 v{O(dt,qt)+i}, v{wA[qt]}, v{O(dt,qt)+i}")
    for i in range(64):
        qt = (i >> 2) & 1
        a(f"""
        v_accvgpr_read_b32 v{vT}, a{128+i}
        v_lshlrev_b32 v{vT+1}, 16, v{vT}
        v_and_b32 v{vT}, 0xffff0000, v{vT}
        v_mul_f32 v{vT+1}, v{wB[qt]}, v{vT+1}
        v_mul_f32 v{vT}, v{wB[qt]}, v{vT}
        v_cvt_pk_bf16_f32 v{vT}, v{vT+1}, v{vT}
        v_accvgpr_write_b32 a{128+i}, v{vT}
        """)
    a("s_nop 1")
    a("s_branch L_comb")
    a.label("L_codeend")
    lines = []
    for l in a.lines: lines += l.split("\n")
    ghost = [l.startswith("@ghost ") for l in lines]
    lines = [l[7:] if g else l for l, g in zip(lines, ghost)]
    lines = resolve_vm(lines)
    lines = [l.replace("@@buffer", "buffer") for l, g in zip(lines, ghost) if not g]
    errs = check_hazards(lines) + check_scc(lines)
    for e in errs[:30]: print("HAZARD", e, file=sys.stderr)
    lines = [re.sub(r"\s*; @\w+", "", l) for l in lines]
    lines = [l.strip() for l in lines if l.strip()]
    i, j = lines.index("L_gemmV:"), lines.index("L_P1A:")
    k = lines.index("L_zwaitV:"); k2 = lines.index("s_branch L_prepokV") + 1
    assert lines[i-1] == "s_branch L_P1A"
    lines = [".p2align 8"] + lines[i:j] + lines[k:k2] + lines[:i-1] + lines[j:k] + lines[k2:]
    lines = compact(lines)
    return "\n".join(lines) + "\n", kernel_desc(name, 512, 256)

if __name__ == "__main__":
    import ast
    for x in sys.argv[2:]:
        k, v = x.split("=")
        OPT[k] = ast.literal_eval(v)
    NAME = "recurrent_scan__compressed_kv_cla__dense_activation_squared_relu__prompt_kernel"
    body, desc = gen(NAME)
    ref = open("recurrent_scan__compressed_kv_cla__dense_activation_squared_relu__prompt.s.ref").read().split("\n")
    hdr = [l for l in ref if l.startswith(";") and "launch" not in l and "grid=" not in l]
    hdr += ["; @launch grid=(256,1,1) block=(256,1,1) lds=163840", '.amdgcn_target "amdgcn-amd-amdhsa--gfx950"', ".text"]
    txt = "\n".join(hdr) + "\n" + body + '.section .rodata,"a"\n.p2align 6\n' + desc
    open(sys.argv[1], "w").write(txt)
    print(len(txt), "bytes", file=sys.stderr)
```

```python
import sys
from fw import *
from layout2 import *

OPT = dict(enc0=0, enck=10, encw=[0, 0], enc=-1, ntA="", ntB=" nt", ntS=" nt", chq=1, chp=1, cyc=0, npro=6, gcap=[4, 4, 3], dg2=8, xpos=3, rotm=0, rot=1, sync=[6, 10, 12, 15, 20, 22], xstep=20, wbl2=0, pfk=0, pfd=4, pfo=[0], pfn=2, smin=0, voff=0, dbgside=0, tlb=0, tlbm=0, tlbs=16, flit=9, npeel=7, slt=[100, 260, 780], slstep=16, sld=180, map2=False, kvb0=256, kvstepb=16, psleep=4, prep=1, pst=False, cpf=True, fine=False, touch=False, sc1ld=" sc1", stamps=False, early=[5, 13, 21, 29], late=[37, 45, 53, 61], cap=7, capb=8, capq=9, capn=12, kvstep=9, a15=38, fsleep=2, fdelay=96, qstep=7, wideloop=False, thr=40, kvsc=" sc1", sidesc=" sc1")

vLANE, vDMA, vTE, vTO, vL16, vRD, vPOLL, vFLG, vONE, vL4, vKV = range(1, 12)
DA = [12, 13, 14, 15]; DB = [16, 17, 18, 19]; RA = [20, 21]; RB = [22, 23, 24, 25]
vSW, vSF, vSX, vG1 = 26, 27, 28, 29
GT = 30
vT = 12
BIAS = 12
O0 = 128
def O(dt, qt): return O0 + (dt*2+qt)*4
def S(b, kt, qt): return 64 + b*16 + (kt*2+qt)*4
def P(b, qt): return 96 + b*8 + qt*4
def NEGM(qt): return 112 + qt*4
vL = [120, 121]
vSUM = [[122, 123], [124, 125]]
vBIG = 126
vSTAT = 44
vSEL = 48
vRINV = [54, 55]
vSTB = 56
def accreg(pos): return vr(48+4*pos, 4) if pos < 52 else ar(208+4*(pos-52), 4)
NE = 6
def PK(c): return 48+4*c if c < 20 else (48+4*(c-20) if c < 20+NE else 48+4*(20+c))
def Q(qb, qt, u): return qb + (qt*8+u)*4
def FR(f): return 64 + (f % 16)*4
def X(qt, u): return 128 + (u*2+qt)*4
def FA(b, m): return (64 if b == 0 else 0) + m*4
def FB(b, n): return (64 if b == 0 else 0) + 32 + n*4
WOL = 192
SLD = 128

sWS, sSA, sSB, sG, sDBG = 4, 8, 12, 16, 20
_n = [24]
def sal(n=1, al=1):
    _n[0] = (_n[0] + al - 1)//al*al
    r = _n[0]; _n[0] += n; return r
sWAVE, sHEAD, sJ, sQI, sWHICH = [sal() for _ in range(5)]
gA0, gA1, gB0, gB1, gMA, gMB, gIT, gD, gCNT, gFL = [sal() for _ in range(10)]
sTAU, sM0, sOFFA, sOFFB, sRDD, sRDS, sXOFF, sXOF2, sN, sND = gA0, gA1, gB0, gB1, gD, gCNT, sal(), sal(), sal(), sal()
sCNT, sEV, sCLAMP, sFIRST = sal(), sal(), sal(), sal()
sRET = sal(2, 2)
sMASK = sal(8, 4)
sTYPE, sU1, sU2, sW0 = sal(), sal(), sal(), sal()
sKVB, sKVI = sal(), sal()
sQST, sPT, sPSG, sPSS = sal(), sal(), sal(), sal()
sFKV, sFKVP, sFQ, sFSG, sFSS = [sal() for _ in range(5)]
sT = sal(8, 4)
sLN = sal(2, 2)
sFS = sal(2, 2); sW4K = 3
sPF = sRET; sPD = sT+5; sEXP = gFL
sSTAMP = sal(0, 2)
NSTAMP = (102 - sSTAMP)//2
print("sgpr used", sSTAMP, "stamps", NSTAMP, file=sys.stderr)
WS = sr(sWS, 4)

STUBS = []
def ld(): return OPT["sc1ld"]
def FT(): return "s_memtime" if OPT["cyc"] else "s_memrealtime"

XG = [1, 9, 17, 25, 33, 41, 49, 57]
XG4 = list(range(1, 64, 4))
def common_fill(st, dma=True, nd=None, last=False, novm=False, rdl=False):
    if nd is None: nd = 16 + len(OPT["early"]) + sum(1 for g in OPT["late"] if g < 38)
    for G in range(8):
        g0 = G*8
        Gn = (G+3) % 8
        for i in range(4):
            f = Gn*4+i
            if not (last and G > 4): st.put(g0+2*i, f"ds_read_b128 {ar(FR(f),4)}, v{vRD} offset:{f*1024}")
        if last and G >= 4:
            if G < 7: st.put(g0+6, f"s_waitcnt lgkmcnt({(7, 4, 0)[G-4]})")
        elif G == 4:
            st.put(g0+6, "s_waitcnt lgkmcnt(7)" if novm else f"s_waitcnt vmcnt(@dma:{nd}) lgkmcnt(7)")
            st.put(g0+7, "s_barrier")
            st.put(g0+7, f"v_add_u32 v{vRD}, s{sRDD}, v{vRD}")
        else:
            st.put(g0+6, "s_waitcnt lgkmcnt(7)")
    for i, g in enumerate(OPT["early"] if dma else []):
        st.put(g, f"buffer_load_dwordx4 v{vDMA}, {WS}, s{sOFFB} offen offset:{i*1024}{ld()} lds")
    if dma: st.put(31, f"v_readlane_b32 s{sOFFA}, v{vTO}, s{sTAU}")
    st.put(31, f"s_add_u32 m0, s{sM0}, 16384")
    st.put(34, f"s_add_u32 s{sM0}, s{sM0}, s{sRDD}")
    st.put(36, f"s_cmp_ge_u32 s{sM0}, 131072")
    st.put(38, f"s_cselect_b32 s{sRDD}, s{gMA}, s{gMB}")
    st.put(44, f"s_add_u32 s{sTAU}, s{sTAU}, 1")
    for i, g in enumerate(OPT["late"] if dma else []):
        st.put(g, f"buffer_load_dwordx4 v{vDMA}, {WS}, s{sOFFA} offen offset:{i*1024}{ld()} lds")
    if dma or rdl: st.put(55, f"v_readlane_b32 s{sOFFB}, v{vTE}, s{sTAU}")
    st.put(63, f"s_mov_b32 m0, s{sM0}")
    st.scc_busy |= {36, 37}
    if OPT["fine"]:
        st.put(4, f"{FT()} s[{sFS}:{sFS+1}]")
        st.put(6, f"v_mov_b32_dpp v{vKV}, v{vKV} wave_shr:1 row_mask:0xf bank_mask:0xf")
        st.put(62, f"v_writelane_b32 v{vKV}, s{sFS}, 0")

class Jobs:
    def __init__(self): self.jobs = []; self.at = {}
    def add(self, key, pre, ins, early, late): self.jobs.append((late, len(self.jobs), early, pre, ins, key))
    def place(self, st, s, cap=6, grid=None):
        slots = [g for g in (grid or XG) if not st.hasD(g) and st.free(g) == 2 and st.nS(g) == 0]
        n = 0
        avail = len([j for j in self.jobs if j[2] <= s*64+63])
        k = min(cap, avail, len(slots))
        use = [slots[(i*len(slots))//k] for i in range(k)] if k else []
        for g in slots:
            t = s*64+g
            c = sorted(j for j in self.jobs if j[2] <= t)
            if not c: continue
            j = c[0]
            nxt = [x for x in slots if x > g]
            urgent = j[0] < (s*64+nxt[0] if nxt else (s+1)*64+1)
            if not (urgent or (n < cap and (g in use or len(nxt) < k-n))): continue
            assert t <= j[0] + (24 if j[5][0] == "x" else 0) or j[5] in ("qs", "kvf", "qf") or (j[5] == "kv" and j[2] >= 64), ("job late", j, t)
            if j[3]:
                assert g-1 not in st.scc_busy
                st.put(g-1, j[3])
            st.put(g, j[4]); self.jobs.remove(j); self.at[j[5]] = t; n += 1

def mf_pv(half, pb, czero=False):
    return [f"{MF} {vr(O(dt,qt),4)}, {ar(FR(half*16+dt),4)}, {vr(P(pb,qt),4)}, {'0' if czero else vr(O(dt,qt),4)}"
            for dt in range(16) for qt in range(2)]
def mf_qk(half, sb, qb, czero=False):
    out = []
    for kt in range(2):
        seq = [(u, qt) for u in range(8) for qt in range(2)]
        if OPT["chq"]: seq = [(g*4+u, qt) for g in range(2) for qt in ((0, 1), (1, 0))[g] for u in range(4)]
        for u, qt in seq:
            c = ('0' if czero else vr(NEGM(qt),4)) if u == 0 else vr(S(sb,kt,qt),4)
            out.append(f"{MF} {vr(S(sb,kt,qt),4)}, {ar(FR(half*16+kt*8+u),4)}, {ar(Q(qb,qt,u),4)}, {c}")
    return out
def mf_proj(s, init=None):
    out = []
    for nt in range(16):
        seq = [(0, 0, 1), (1, 0, 0), (1, 1, 1), (0, 1, 0)] if OPT["chp"] else [(0, 0, 1), (0, 1, 1), (1, 0, 0), (1, 1, 0)]
        for uu, qt, first in seq:
            c = vr(O(nt,qt),4)
            if first and init == "zero": c = "0"
            if first and init == "bias": c = vr(O(nt,1),4)
            out.append(f"{MF} {vr(O(nt,qt),4)}, {ar(FR(2*nt+uu),4)}, {ar(X(qt,2*s+uu),4)}, {c}")
    return out
def PA(b, nt, qt): return 64 + (nt*2+qt)*4 if b == 0 else O(2*nt+1, qt)
def mf_post(s):
    out = []
    for f in range(32):
        u, nt = f >> 2, f & 3
        for qt in range(2):
            d = vr(PA(s & 1, nt, qt), 4)
            out.append(f"{MF} {d}, {ar(FR(f),4)}, {vr(O(2*u,qt),4)}, {'0' if u == 0 else d}")
    return out

def sm_ops(b):
    ops = []
    seq = [(kt, qt, rp) for kt in range(2) for qt in range(2) for rp in range(2)]
    pend = []
    for i, (kt, qt, rp) in enumerate(seq):
        t0 = vT + (i % 4)*2
        s0 = S(b,kt,qt) + rp*2
        ops.append(f"v_exp_f32 v{t0}, v{s0}")
        ops += pend[:1]
        ops.append(f"v_exp_f32 v{t0+1}, v{s0+1}")
        ops += pend[1:]
        acc = vSUM[qt][rp]
        if kt == 0: pend = [f"v_add_f32 v{acc}, v{t0}, v{t0+1}"]
        else: pend = [f"v_add_f32 v{acc}, v{acc}, v{t0}", f"v_add_f32 v{acc}, v{acc}, v{t0+1}"]
        pend.append(f"v_cvt_pk_bf16_f32 v{P(b,qt)+kt*2+rp}, v{t0}, v{t0+1}")
    ops.append("s_nop 0")
    ops += pend
    ops += [f"v_add_f32 v{vSUM[0][0]}, v{vSUM[0][0]}, v{vSUM[0][1]}", f"v_add_f32 v{vSUM[1][0]}, v{vSUM[1][0]}, v{vSUM[1][1]}"]
    return ops

def place_sm(st, b, g0, g_end, tag, ladd=True, first=False):
    st.put(g0-1, f"s_cmp_ge_u32 s{sN}, s{sND}")
    st.put(g0, f"s_cbranch_scc1 L_domask_{tag}")
    st.put(g0, f"L_nomask_{tag}:")
    STUBS.append((f"L_domask_{tag}", f"L_mask{b}", f"L_nomask_{tag}"))
    st.put(g0+2 if g0 == 0 else 42, f"s_add_u32 s{sN}, s{sN}, 1")
    st.scc_busy |= {g0-1}
    def add(ins, deps=(), early=0): return st.add(ins, deps, max(early, g0), g_end)
    la = [add(f"v_add_f32 v{vL[q]}, v{vL[q]}, v{vSUM[q][0]}") for q in range(2)] if ladd else []
    seq = [(kt, qt, rp) for kt in range(2) for qt in range(2) for rp in range(2)]
    users = {}; lastacc = {}; NT = 6
    for i, (kt, qt, rp) in enumerate(seq):
        t0 = vT + (i % NT)*2
        s0 = S(b,kt,qt) + rp*2
        war = users.get(i - NT, [])
        e = g0 + (1 if kt == 0 else 3)
        e0 = add(f"v_exp_f32 v{t0}, v{s0}", war, e)
        e1 = add(f"v_exp_f32 v{t0+1}, v{s0+1}", war, e)
        acc = vSUM[qt][rp]
        if kt == 0:
            a0 = add(f"v_add_f32 v{acc}, v{t0}, v{t0+1}", [e0, e1] + la)
            u = [a0]; lastacc[(qt,rp)] = a0
        else:
            a0 = add(f"v_add_f32 v{acc}, v{acc}, v{t0}", [e0, lastacc[(qt,rp)]])
            a1 = add(f"v_add_f32 v{acc}, v{acc}, v{t0+1}", [e1, a0])
            u = [a0, a1]; lastacc[(qt,rp)] = a1
        c = st.add(f"v_cvt_pk_bf16_f32 v{P(b,qt)+kt*2+rp}, v{t0}, v{t0+1}", [e0, e1], g0, g_end-1)
        users[i] = u + [c]
    f0 = add(f"v_add_f32 v{vSUM[0][0]}, v{vSUM[0][0]}, v{vSUM[0][1]}", [lastacc[(0,0)], lastacc[(0,1)]])
    f1 = add(f"v_add_f32 v{vSUM[1][0]}, v{vSUM[1][0]}, v{vSUM[1][1]}", [lastacc[(1,0)], lastacc[(1,1)]])
    hi = f2u(2.0**OPT["thr"])
    if not first:
        mx = add(f"v_max_f32 v{vT+14}, v{vSUM[0][0]}, v{vSUM[1][0]}", [f0, f1])
        add(f"v_cmp_nge_f32 vcc, {hi:#x}, v{vT+14}", [mx])
    else:
        lo = f2u(2.0**-OPT["thr"])
        m0 = add(f"v_subrev_u32 v{vT+14}, {lo:#x}, v{vSUM[0][0]}", [f0])
        m1 = add(f"v_subrev_u32 v{vT+15}, {lo:#x}, v{vSUM[1][0]}", [f1])
        mx = add(f"v_max_u32 v{vT+14}, v{vT+14}, v{vT+15}", [m0, m1])
        add(f"v_cmp_lt_u32 vcc, {hi-lo:#x}, v{vT+14}", [mx])

def xlane_ops(op, v, t1):
    return [(f"v_mov_b32 v{t1}, v{v}", 0), (f"v_permlane16_swap_b32 v{v}, v{t1}", 2), (f"{op} v{v}, v{v}, v{t1}", 1),
            (f"v_mov_b32 v{t1}, v{v}", 0), (f"v_permlane32_swap_b32 v{v}, v{t1}", 2), (f"{op} v{v}, v{v}, v{t1}", 1)]
def xlane(a, op, v, t1):
    for ins, d in xlane_ops(op, v, t1):
        if d: a(f"s_nop {d-1}")
        a(ins)

class Chain:
    def __init__(self, items, grid=None): self.items = list(items); self.lastg = -10; self.grid = grid; self.base = 0; self.lastD = -999; self.minD = 0
    def fill(self, st, g0=0, g1=63):
        g = g0; lastg = -10
        while self.items and g <= g1:
            ins, dist = self.items[0][:2]
            early = self.items[0][2] if len(self.items[0]) > 2 else 0
            c = cls(ins)
            ok = g - lastg >= dist and g >= early and not st.hasD(g)
            if ok and g == lastg and not (c in "VE" and cls(self.last) in "VM"): ok = False
            if ok:
                if c == "S": ok = (st.nS(g) == 0 or st.free(g) >= 1) and not (g in st.scc_busy and not ins.startswith(("s_mov", "s_mul", "s_wait", "s_nop")))
                elif c == "D": ok = st.free(g) == 2 and st.nS(g) == 0 and (self.grid is None or g in self.grid) and self.base + g - self.lastD >= self.minD
                else: ok = st.free(g) >= COST[c]
            if ok:
                st.put(g, ins); self.items.pop(0); lastg = g; self.last = ins
                if c == "D": self.lastD = self.base + g
            else:
                g += 1
    def flush(self, a):
        for it in self.items:
            if it[1]: a(f"s_nop {it[1]-1}")
            a(it[0])
        self.items = []

def gen(name="mega_kernel"):
    a = Asm()
    STUBS.clear()
    stamps = OPT["stamps"]
    nst = [0]
    def stamp_ins():
        i = nst[0]; nst[0] += 1
        assert i < NSTAMP
        return f"s_memrealtime s[{sSTAMP+2*i}:{sSTAMP+2*i+1}]"
    def streg(i): return sSTAMP+2*i if i < NSTAMP else sMASK+2*(i-NSTAMP)
    def stamp(i, p=False):
        if OPT["pst"] and 2 <= i <= 6 and not p: return
        if p and not OPT["pst"]: return
        if stamps: a(f"s_memrealtime s[{streg(i)}:{streg(i)+1}]")
    def merge(lbl, align=False):
        if align: a.raw(".p2align 6")
        a.label(lbl); a.comment("@merge")
    strideA, strideB = 2048, 8192
    a.raw(kernel_header(name))
    a("s_cmp_ge_u32 s2, 256")
    a("s_cbranch_scc0 L_go")
    a("s_endpgm")
    a.label("L_go")
    stamp(0)
    sW12, sX = sMASK, sMASK+4
    gHEAD, gMT, gWM, gWN = sCNT, sEV, sCLAMP, sFIRST
    a(f"""
    s_load_dwordx2 s[{sSA}:{sSA+1}], s[0:1], 8
    s_load_dwordx4 s[{sT}:{sT+3}], s[0:1], 24
    s_load_dwordx2 s[{sWS}:{sWS+1}], s[0:1], 104
    s_load_dwordx2 s[{sX}:{sX+1}], s[0:1], 0
    s_load_dwordx2 s[{sDBG}:{sDBG+1}], s[0:1], 96
    s_load_dwordx2 s[{sW12}:{sW12+1}], s[0:1], 56
    s_load_dwordx2 s[{sRET}:{sRET+1}], s[0:1], 72
    s_load_dwordx2 s[{sT+6}:{sT+7}], s[0:1], 16
    v_and_b32 v{vLANE}, 63, v0
    v_lshrrev_b32 v{GT}, 6, v0
    v_lshlrev_b32 v{vL16}, 4, v{vLANE}
    v_readfirstlane_b32 s{sWAVE}, v{GT}
    s_and_b32 s3, s2, 7
    s_lshl_b32 s3, s3, 1
    s_lshr_b32 s{sJ}, s2, 4
    s_bfe_u32 s{sWHICH}, s2, 0x10003
    s_add_u32 s{sHEAD}, s3, s{sWHICH}
    s_and_b32 s{gHEAD}, s{sJ}, 1
    s_add_u32 s{gHEAD}, s{gHEAD}, s3
    s_bfe_u32 s{gMT}, s2, 0x10005
    s_lshl_b32 s{gMT}, s{gMT}, 2
    s_lshr_b32 s{gWM}, s2, 6
    s_xor_b32 s{gWM}, s{gWM}, 2
    s_or_b32 s{gMT}, s{gMT}, s{gWM}
    """)
    if OPT["map2"]:
        a(f"""
        s_bfe_u32 s{gHEAD}, s2, 0x10005
        s_add_u32 s{gHEAD}, s{gHEAD}, s3
        s_lshl_b32 s{gMT}, s{sWHICH}, 2
        s_bfe_u32 s{gWM}, s2, 0x10004
        s_or_b32 s{gMT}, s{gMT}, s{gWM}
        s_bfe_u32 s{gWM}, s2, 0x10007
        s_xor_b32 s{gWM}, s{gWM}, 1
        s_lshl_b32 s{gWM}, s{gWM}, 1
        s_or_b32 s{gMT}, s{gMT}, s{gWM}
        s_bfe_u32 s{sWHICH}, s2, 0x10006
        """)
    a(f"""
    s_and_b32 s{gWM}, s{sWAVE}, 1
    s_lshr_b32 s{gWN}, s{sWAVE}, 1
    """)
    t2, t3, t4, t5, t6 = GT, GT+1, GT+2, GT+3, GT+4
    a(f"""
    v_lshrrev_b32 v{t2}, 3, v{vLANE}
    s_lshl_b32 s{gA0}, s{gMT}, 8
    s_lshl_b32 s{gA1}, s{sWAVE}, 6
    s_add_u32 s{gA0}, s{gA0}, s{gA1}
    v_add_u32 v{t2}, s{gA0}, v{t2}
    v_lshlrev_b32 v{t2}, 11, v{t2}
    v_and_b32 v{t3}, 7, v{vLANE}
    v_lshrrev_b32 v{t4}, 4, v{vLANE}
    v_xor_b32 v{t5}, v{t3}, v{t4}
    v_lshl_add_u32 v{t5}, v{t5}, 4, v{t2}
    v_xor_b32 v{t6}, 4, v{t4}
    v_xor_b32 v{t6}, v{t3}, v{t6}
    v_lshl_add_u32 v{t6}, v{t6}, 4, v{t2}
    """)
    for jl in range(4):
        a(f"v_add_u32 v{DA[jl]}, {4096 + jl*8*strideA - jl*1024}, v{t5 if (jl & 1) == 0 else t6}")
    a(f"""
    v_bfe_u32 v{t2}, v{vLANE}, 3, 2
    v_lshlrev_b32 v{t3}, 13, v{t2}
    v_lshrrev_b32 v{t4}, 5, v{vLANE}
    v_lshl_add_u32 v{t3}, v{t4}, 7, v{t3}
    v_lshrrev_b32 v{t4}, 1, v{t2}
    v_lshlrev_b32 v{t4}, 2, v{t4}
    v_and_b32 v{t5}, 7, v{vLANE}
    v_xor_b32 v{t4}, v{t4}, v{t5}
    s_lshl_b32 s{gA0}, s{gWM}, 1
    v_xor_b32 v{t4}, s{gA0}, v{t4}
    v_lshl_add_u32 v{t3}, v{t4}, 4, v{t3}
    s_lshl_b32 s{gA0}, s{gHEAD}, 9
    s_lshl_b32 s{gA1}, s{sWAVE}, 16
    s_add_u32 s{gA0}, s{gA0}, s{gA1}
    v_add_u32 v{t3}, s{gA0}, v{t3}
    """)
    for jl in range(4):
        a(f"v_add_u32 v{DB[jl]}, {4096 + (jl>>1)*4*strideB + (jl&1)*256 - jl*1024}, v{t3}")
    a(f"""
    s_mul_i32 s{gA1}, s3, {OPT["rot"]*64}
    s_mul_i32 s{gA0}, s{gMT}, {OPT["rotm"]*128}
    s_add_u32 s{gA1}, s{gA1}, s{gA0}
    s_and_b32 s{gA1}, s{gA1}, 0x7ff
    s_lshl_b32 s{gMA}, s{sWAVE}, 13
    s_lshl_b32 s{gMB}, s{sWAVE}, 12
    s_mov_b32 s{sSA+2}, {4194304+4096}
    s_mov_b32 s{sSA+3}, 0x20000
    s_mov_b32 s{sSB+2}, {8388608+4096}
    s_mov_b32 s{sSB+3}, 0x20000
    @PST2
    s_waitcnt lgkmcnt(0)
    @PST3
    s_sub_u32 s{sSA}, s{sSA}, 4096
    s_subb_u32 s{sSA+1}, s{sSA+1}, 0
    s_cmp_eq_u32 s{sWHICH}, 0
    s_cselect_b32 s{sSB}, s{sT}, s{sT+2}
    s_cselect_b32 s{sSB+1}, s{sT+1}, s{sT+3}
    s_sub_u32 s{sSB}, s{sSB}, 4096
    s_subb_u32 s{sSB+1}, s{sSB+1}, 0
    """)
    for i in (2, 3):
        k = [n for n, l in enumerate(a.lines) if f"@PST{i}" in l][0]
        a.lines[k] = f"s_memrealtime s[{streg(i)}:{streg(i)+1}]" if OPT["pst"] else ""
    MA, MB = 0x107ff, 0x7fffff
    gRA, gRB, gTS = gA1, gCNT, (gA0, sT)
    a(f"s_lshl_b32 s{gRB}, s{gRA}, 12")
    def dma_group(kind, par):
        t = gTS[par & 1]
        if kind[0] == "A":
            _, it, h = kind
            m0 = f"s_add_u32 m0, s{gMA}, {(131072, 0, 65536)[it % 3] + h*4096}"; regs, srd = DA, sSA
            so = f"s_add_u32 s{t}, s{gRA}, {h*32*strideA + it*128}\ns_and_b32 s{t}, s{t}, {MA}"
        elif kind[0] == "B":
            _, it, h = kind
            m0 = f"s_add_u32 m0, s{gMB}, {32768 + (it & 1)*65536 + h*16384}"; regs, srd = DB, sSB
            so = f"s_add_u32 s{t}, s{gRB}, {(it*64 + h*32)*strideB}\ns_and_b32 s{t}, s{t}, {MB}"
        else:
            y = kind[1]
            return f"s_add_u32 m0, s{gMB}, {y*16384}", f"s_add_u32 s{t}, s{sW0}, {y*16384}", \
                   [f"buffer_load_dwordx4 v{vDMA}, {WS}, s{t} offen offset:{i*1024}{ld()} lds ; @gU{y}" for i in range(4)]
        return m0, so, [f"buffer_load_dwordx4 v{regs[jl]}, {sr(srd,4)}, s{t} offen offset:{jl*1024}{OPT['nt' + kind[0]]} lds ; @g{kind[0]}{it}_{h}" for jl in range(4)]
    todo = []
    for it in range(16):
        todo += [(2*it-1, 2*(it-3)+1, ("A", it, 0)), (2*it-1, 2*(it-2), ("B", it, 0)), (2*it-1, 2*(it-3)+1, ("A", it, 1)), (2*it, 2*(it-2)+1, ("B", it, 1))]
    todo += [(31+y, av, ("U", y)) for y, av in enumerate((27, 27, 28, 29, 29, 29, 30, 31))]
    GS = {}; order = []
    for n in range(-1, 32):
        cap = OPT["npro"] if n < 0 else OPT["gcap"][min(n, len(OPT["gcap"])-1)]
        c = sorted([x for x in todo if x[1] <= n], key=lambda x: x[0])[:cap]
        for x in c: todo.remove(x); assert x[0] > n or n < 0, (x, n)
        GS[n] = [x[2] for x in c]; order += GS[n]
    assert not todo
    print("GS", {n: len(v) for n, v in GS.items()}, file=sys.stderr)
    def gtag(k): return f"gU{k[1]}" if k[0] == "U" else f"g{k[0]}{k[1]}_{k[2]}"
    def gwait(n):
        it, kk = (n+1) >> 1, (n+1) & 1
        need = [("U", 0), ("U", 1)] if n == 31 else [("B", it, 1)] if kk else [("A", it, 0), ("A", it, 1), ("B", it, 0)]
        return f"vmcnt(@since:{gtag(max(need, key=order.index))})"
    main = a; a = Asm()
    sWID, u_, nb_, o_, o2_ = sXOFF, sT+1, sT+2, sT+3, sT+4
    sD = [sQST, sPT, sPSG]; sXS = sPSS; sHI = sFSG; sSTR = sFSS
    vWO, vW12 = vRD, vDMA
    G = sr(sG, 4)
    r_, g_, r8 = GT, GT+1, GT+2
    h_, i_ = GT+5, GT+6
    a(f"""
    s_lshl_b32 s{sWID}, s2, 2
    s_add_u32 s{sWID}, s{sWID}, s{sWAVE}
    s_mov_b32 s{sX+2}, {2048*896}
    s_mov_b32 s{sX+3}, 0x20000
    v_and_b32 v{h_}, 1, v{vLANE}
    v_lshrrev_b32 v{i_}, 1, v{vLANE}
    v_mul_u32_u24 v{GT+7}, 896, v{h_}
    v_lshl_add_u32 v{GT+7}, v{i_}, 4, v{GT+7}
    v_cmp_gt_u32 s[{sLN}:{sLN+1}], 28, v{i_}
    v_mov_b32 v{GT+8}, {OOB}
    s_mul_i32 s{gB1}, s{sWID}, 1792
    v_cndmask_b32 v{GT+11}, v{GT+8}, v{GT+7}, s[{sLN}:{sLN+1}]
    s_getpc_b64 s[{sG}:{sG+1}]
    L_pc:
    s_sub_u32 s{sG}, s{sG}, L_pc - L_gemmV
    s_subb_u32 s{sG+1}, s{sG+1}, 0
    s_mov_b32 s{sG+2}, L_codeend - L_gemmV
    s_mov_b32 s{sG+3}, 0x20000
    s_lshr_b32 s{gB0}, s2, 3
    s_lshl_b32 s{gB0}, s{gB0}, 2
    s_add_u32 s{gB0}, s{gB0}, s{sWAVE}
    s_lshl_b32 s{gB0}, s{gB0}, 10
    s_mov_b32 s{sWS+2}, {WS_SIZE}
    s_mov_b32 s{sWS+3}, 0x20000
    v_and_b32 v{r_}, 15, v{vLANE}
    v_lshrrev_b32 v{g_}, 4, v{vLANE}
    v_lshlrev_b32 v{r8}, 3, v{r_}
    """)
    def natdest(dst, base):
        a(f"""
        s_lshr_b32 s{o_}, s{nb_}, 2
        s_mul_i32 s{o_}, s{o_}, {7*32768}
        s_lshr_b32 s{o2_}, s{u_}, 1
        s_lshl_b32 s{o2_}, s{o2_}, 15
        s_add_u32 s{o_}, s{o_}, s{o2_}
        s_and_b32 s{o2_}, s{nb_}, 3
        s_lshl_b32 s{o2_}, s{o2_}, 13
        s_add_u32 s{o_}, s{o_}, s{o2_}
        s_and_b32 s{o2_}, s{u_}, 1
        s_lshl_b32 s{o2_}, s{o2_}, 10
        s_add_u32 s{o_}, s{o_}, s{o2_}
        s_add_u32 s{dst}, s{o_}, {base}
        """)
    def div7(idx):
        a(f"""
        s_mul_i32 s{u_}, s{idx}, 9363
        s_lshr_b32 s{u_}, s{u_}, 16
        s_mul_i32 s{nb_}, s{u_}, 7
        s_sub_u32 s{nb_}, s{idx}, s{nb_}
        """)
    def ffdest(dst, base, lim, idx=sWID):
        a(f"""
        s_mul_i32 s{o_}, s{nb_}, {184*4096}
        s_lshl_b32 s{o2_}, s{u_}, 12
        s_add_u32 s{o_}, s{o_}, s{o2_}
        s_add_u32 s{dst}, s{o_}, {base}
        s_cmp_lt_u32 s{idx}, {lim}
        s_cselect_b32 s{dst}, s{dst}, {OOB}
        """)
    a(f"""
    s_mov_b32 s{sDBG+2}, 16
    s_mov_b32 s{sDBG+3}, 0x20000
    v_mul_u32_u24 v{vWO}, {4*896}, v{g_}
    v_add_u32 v{vWO}, v{vWO}, v{r8}
    s_lshl_b32 s{gD}, s{gMT}, 1
    s_add_u32 s{gD}, s{gD}, s{sWHICH}
    s_lshl_b32 s{gD}, s{gD}, 2
    s_add_u32 s{gD}, s{gD}, s{sWAVE}
    """)
    div7(gD)
    a(f"""
    s_lshl_b32 s{o_}, s{gHEAD}, 3
    s_add_u32 s{u_}, s{u_}, s{o_}
    s_mul_i32 s{o_}, s{u_}, {32*896}
    s_lshl_b32 s{o2_}, s{nb_}, 7
    s_add_u32 s{o_}, s{o_}, s{o2_}
    s_cmp_lt_u32 s{gD}, 56
    s_cselect_b32 s{o_}, s{o_}, {OOB}
    v_add_u32 v{vWO}, s{o_}, v{vWO}
    """)
    ffdest(sD[1], WS_WFF + 56*4096, 56, gD)
    a(f"""
    s_lshr_b32 s{u_}, s{sWID}, 2
    s_mul_i32 s{u_}, s{u_}, 9363
    s_lshr_b32 s{u_}, s{u_}, 16
    s_mul_i32 s{nb_}, s{u_}, 28
    s_sub_u32 s{nb_}, s{sWID}, s{nb_}
    s_mul_i32 s{sHI}, s{u_}, {32*3584}
    s_lshl_b32 s{o2_}, s{nb_}, 7
    s_add_u32 s{sHI}, s{sHI}, s{o2_}
    """)
    natdest(sSTR, WS_W1F)
    a(f"s_sub_u32 s{sT+5}, s{sWID}, 392")
    a(f"s_and_b32 s{sT+5}, s{sT+5}, 1023")
    div7(sT+5)
    ffdest(sD[2], WS_WFF, 784)
    a(f"""
    s_lshr_b32 s{o_}, s{u_}, 1
    s_mul_i32 s{o_}, s{o_}, {64*896}
    s_and_b32 s{o2_}, s{u_}, 1
    s_mul_i32 s{o2_}, s{o2_}, {2*896}
    s_add_u32 s{o_}, s{o_}, s{o2_}
    s_lshl_b32 s{o2_}, s{nb_}, 7
    s_add_u32 s{o_}, s{o_}, s{o2_}
    s_mov_b32 s{sW12+2}, {448*3584}
    s_mov_b32 s{sW12+3}, 0x20000
    s_cmp_lt_u32 s{sWID}, 392
    s_cselect_b32 s{sW12}, s{sW12}, s{sRET}
    s_cselect_b32 s{sW12+1}, s{sW12+1}, s{sRET+1}
    s_cselect_b32 s{o_}, s{sHI}, s{o_}
    s_cselect_b32 s{sD[2]}, s{sSTR}, s{sD[2]}
    s_cselect_b32 s{sHI}, 16, 1
    s_cselect_b32 s{sSTR}, 2, 1
    s_mul_i32 s{sHI}, s{sHI}, 896
    s_mul_i32 s{o2_}, s{sSTR}, {16*896}
    s_lshl_b32 s{sSTR}, s{sSTR}, 10
    v_mul_u32_u24 v{vW12}, s{o2_}, v{g_}
    v_add3_u32 v{vW12}, v{vW12}, v{r8}, s{o_}
    v_lshrrev_b32 v{GT+9}, 2, v{i_}
    v_lshlrev_b32 v{GT+9}, 10, v{GT+9}
    v_and_b32 v{GT+10}, 3, v{i_}
    v_lshl_add_u32 v{GT+9}, v{GT+10}, 8, v{GT+9}
    v_lshl_add_u32 v{GT+9}, v{h_}, 4, v{GT+9}
    v_cndmask_b32 v{vSX}, v{GT+8}, v{GT+9}, s[{sLN}:{sLN+1}]
    s_lshr_b32 s{o_}, s{sWID}, 3
    s_mul_i32 s{o_}, s{o_}, 14336
    s_and_b32 s{o2_}, s{sWID}, 7
    s_lshl_b32 s{o2_}, s{o2_}, 5
    s_add_u32 s{sXS}, s{o_}, s{o2_}
    s_lshl_b32 s{sFQ}, s{sWID}, 10
    s_add_u32 s{sFQ}, s{sFQ}, {WS_FLG}
    s_cmp_lt_u32 s{sWID}, 32
    s_cselect_b32 s{sFQ}, s{sFQ}, {OOB}
    v_cmp_eq_u32 vcc, 0, v{vLANE}
    v_mov_b32 v{vONE}, 1
    v_and_b32 v{vL4}, 3, v{vLANE}
    v_lshlrev_b32 v{vL4}, 2, v{vL4}
    v_cndmask_b32 v{vFLG}, v{GT+8}, v{vLANE}, vcc
    s_mov_b32 s{sRET}, s{sT+6}
    s_mov_b32 s{sRET+1}, s{sT+7}
    s_lshr_b32 s{u_}, s{gD}, 2
    s_lshl_b32 s{nb_}, s{gHEAD}, 2
    s_add_u32 s{nb_}, s{nb_}, s{sWAVE}
    s_lshl_b32 s{o_}, s{u_}, 18
    s_lshl_b32 s{o2_}, s{nb_}, 7
    s_add_u32 s{o_}, s{o_}, s{o2_}
    v_and_b32 v{vSW}, 3, v{vLANE}
    v_lshlrev_b32 v{vSW}, 5, v{vSW}
    v_bfe_u32 v{GT+9}, v{vLANE}, 2, 2
    v_lshl_add_u32 v{vSW}, v{GT+9}, 3, v{vSW}
    v_lshl_add_u32 v{vSW}, v{g_}, 16, v{vSW}
    v_add_u32 v{vSW}, s{o_}, v{vSW}
    v_mov_b32 v{vSF}, v{vL16}
    """)
    natdest(sD[0], WS_WQF)
    a(f"s_cmp_lt_u32 s{gD}, 56")
    a(f"s_cselect_b32 s{sD[0]}, s{sD[0]}, {OOB}")
    assert WS_XF == 0
    a(f"""
    v_bfe_u32 v{t4}, v{vLANE}, 1, 3
    s_lshl_b32 s{o_}, s{gWM}, 14
    s_add_u32 s{o_}, s{o_}, 131072
    v_lshlrev_b32 v{r_}, 7, v{r_}
    v_add_u32 v{r_}, s{o_}, v{r_}
    """)
    for kk in range(2):
        a(f"v_or_b32 v{t5}, {4*kk}, v{g_}")
        a(f"v_xor_b32 v{t5}, v{t5}, v{t4}")
        a(f"v_lshl_add_u32 v{RA[kk]}, v{t5}, 4, v{r_}")
    a(f"""
    v_lshlrev_b32 v{t2}, 12, v{g_}
    v_bfe_u32 v{t4}, v{vLANE}, 2, 2
    v_lshl_add_u32 v{t2}, v{t4}, 7, v{t2}
    v_and_b32 v{t5}, 3, v{vLANE}
    v_lshl_add_u32 v{t2}, v{t5}, 3, v{t2}
    s_lshl_b32 s{o_}, s{gWN}, 10
    s_add_u32 s{o_}, s{o_}, 32768
    v_add_u32 v{t2}, s{o_}, v{t2}
    v_lshrrev_b32 v{t4}, 1, v{t4}
    v_lshlrev_b32 v{t4}, 6, v{t4}
    v_and_b32 v{t5}, 1, v{g_}
    v_lshlrev_b32 v{t5}, 5, v{t5}
    v_or_b32 v{t4}, v{t4}, v{t5}
    """)
    for q in range(4):
        a(f"v_xor_b32 v{t5}, {(q>>1)*64 + (q&1)*32}, v{t4}")
        a(f"v_add_u32 v{RB[q]}, v{t5}, v{t2}")
    a(f"""
    s_mul_i32 s{sKVB}, s{gHEAD}, {HS}
    s_mul_i32 s{o_}, s{gMT}, {8*US}
    s_add_u32 s{sKVB}, s{sKVB}, s{o_}
    s_mul_i32 s{o_}, s{gWM}, {4*US}
    s_add_u32 s{sKVB}, s{sKVB}, s{o_}
    s_add_u32 s{o2_}, s{sWHICH}, 12
    s_lshl_b32 s{o_}, s{gWN}, s{o2_}
    s_add_u32 s{sKVB}, s{sKVB}, s{o_}
    s_mul_i32 s{o_}, s{sWHICH}, {WS_VF - WS_KF}
    s_add_u32 s{sKVB}, s{sKVB}, s{o_}
    s_add_u32 s{sKVB}, s{sKVB}, {WS_KF}
    s_lshr_b32 s{sKVI}, 8192, s{sWHICH}
    s_add_u32 s{sKVI}, s{sKVI}, s{sKVB}
    s_lshl_b32 s{sFKV}, s{gHEAD}, 8
    s_lshr_b32 s{o_}, s{gMT}, 2
    s_and_b32 s{o2_}, s{gMT}, 3
    s_lshl_b32 s{o2_}, s{o2_}, 1
    s_or_b32 s{o_}, s{o_}, s{o2_}
    s_cmp_ge_u32 s{o_}, 2
    s_cselect_b32 s{o2_}, 112, 0
    s_add_u32 s{sFKV}, s{sFKV}, s{o2_}
    s_lshl_b32 s{o_}, s{o_}, 3
    s_add_u32 s{sFKV}, s{sFKV}, s{o_}
    s_lshl_b32 s{o_}, s{sWHICH}, 2
    s_add_u32 s{sFKV}, s{sFKV}, s{o_}
    s_add_u32 s{sFKV}, s{sFKV}, {WS_FLG + FL_KV}
    s_lshl_b32 s{sFKVP}, s{sHEAD}, 8
    s_add_u32 s{sFKVP}, s{sFKVP}, {WS_FLG + FL_KV}
    s_cmp_eq_u32 s{sWAVE}, 0
    s_cselect_b32 s{sFKV}, s{sFKV}, {OOB}
    s_cselect_b32 s{sFKVP}, s{sFKVP}, {OOB}
    s_cselect_b32 s{gFL}, s2, {OOB}
    s_cselect_b32 s{gIT}, 0, {OOB}
    """)
    WQ, B1, ST1, N0, STA2, XR1, XR2 = sT+1, sT+2, sT+3, sN, sT+4, sND, sXOF2
    a(f"""
    s_or_b32 s{sQI}, s{sJ}, 8
    s_mul_i32 s{WQ}, s{sHEAD}, {7*32768}
    s_add_u32 s{WQ}, s{WQ}, {WS_WQF}
    s_mov_b32 s{sW0}, s{WQ}
    s_mov_b32 s{XR1}, s{sQI}
    s_mov_b32 s{ST1}, 32768
    s_cmp_eq_u32 s{sQI}, 15
    s_cselect_b32 s{N0}, {OPT['a15']}, 34
    @atomic
    s_cmp_ge_u32 s{sJ}, 8
    s_cbranch_scc1 L_typeA
    s_mov_b32 s{sTYPE}, 2
    s_sub_u32 s{B1}, s{WQ}, {5*32768}
    s_sub_u32 s{XR2}, 15, s{sQI}
    s_lshl_b32 s{sU1}, s{sQI}, 2
    s_sub_u32 s{sU2}, 64, s{sU1}
    s_add_u32 s{sU1}, s{sU1}, 4
    s_sub_u32 s{sU1}, s{sU1}, s{N0}
    s_add_u32 s{STA2}, s{sU1}, 14
    s_add_u32 s{sT+7}, s{STA2}, s{sU2}
    s_branch L_typedone
    """)
    a.label("L_typeA")
    a(f"""
    s_mov_b32 s{sU1}, s{N0}
    s_add_u32 s{sT+7}, s{N0}, 14
    s_mov_b32 s{sU2}, 2
    s_mov_b32 s{N0}, 0
    s_mov_b32 s{STA2}, 100
    s_mov_b32 s{XR2}, 0x4000
    s_mov_b32 s{sTYPE}, 1
    s_mov_b32 s{B1}, {OOB}
    s_cmp_eq_u32 s{sJ}, 15
    s_cbranch_scc1 L_typedone
    s_mov_b32 s{sTYPE}, 0
    s_mul_i32 s{XR1}, s{sHEAD}, 7
    s_add_u32 s{XR1}, s{XR1}, s{sJ}
    s_sub_u32 s{XR1}, s{XR1}, 8
    s_lshr_b32 s{sT}, s{XR1}, 4
    s_and_b32 s{XR1}, s{XR1}, 15
    s_mul_i32 s{sW0}, s{sT}, {7*32768}
    s_add_u32 s{sW0}, s{sW0}, {WS_W1F}
    s_lshl_b32 s{B1}, s{sT}, 15
    s_add_u32 s{B1}, s{B1}, {WS_WFF}
    s_mov_b32 s{ST1}, {184*4096}
    """)
    a.label("L_typedone")
    a("@end")
    tA, tB, tC, tD = GT, GT+1, GT+2, GT+3
    KB, VB = sT+5, sT+6
    a(f"""
    s_mul_i32 s{KB}, s{sHEAD}, {HS}
    s_add_u32 s{VB}, s{KB}, {WS_VF}
    s_add_u32 s{KB}, s{KB}, {WS_KF}
    v_mov_b32 v{vTE}, {OOB}
    """)
    def seg_lin(start, base, stride):
        a(f"v_subrev_u32 v{tA}, {start}, v{vLANE}")
        a(f"v_cmp_gt_u32 vcc, 7, v{tA}")
        a(f"v_mul_u32_u24 v{tB}, {stride}, v{tA}")
        a(f"v_add_u32 v{tB}, s{base}, v{tB}")
        a(f"v_cndmask_b32 v{vTE}, v{vTE}, v{tB}, vcc")
    seg_lin(0, sW0, 32768)
    seg_lin(7, B1, f"s{ST1}")
    a(f"s_lshl_b32 s{sT}, s{sHEAD}, 15")
    a(f"s_add_u32 s{sT}, s{sT}, {WS_WFF + 56*4096}")
    seg_lin(f"s{sT+7}", sT, 184*4096)
    a(f"v_add_u32 v{vTO}, 16384, v{vTE}")
    def seg_att(start, n0, U):
        for tab in (vTO, vTE):
            a(f"v_subrev_u32 v{tA}, {start}, v{vLANE}")
            if n0 is not None: a(f"v_add_u32 v{tB}, s{n0}, v{tA}")
            else: a(f"v_mov_b32 v{tB}, v{tA}")
            a(f"v_mul_u32_u24 v{tB}, {US}, v{tB}")
            if tab == vTO:
                a(f"s_sub_u32 s{sT}, s{U}, 1")
                a(f"v_cmp_eq_u32 vcc, s{sT}, v{tA}")
                a(f"v_add_u32 v{tC}, s{KB}, v{tB}")
                a(f"v_add_u32 v{tC}, {US}, v{tC}")
                a(f"v_add_u32 v{tD}, s{VB}, v{tB}")
            else:
                a(f"v_cmp_eq_u32 vcc, 0, v{tA}")
                a(f"v_add_u32 v{tC}, s{VB}, v{tB}")
                a(f"v_subrev_u32 v{tC}, {US}, v{tC}")
                a(f"v_add_u32 v{tD}, s{KB}, v{tB}")
            a(f"v_cndmask_b32 v{tC}, v{tC}, v{tD}, vcc")
            a(f"v_cmp_gt_u32 vcc, s{U}, v{tA}")
            a("s_nop 1")
            a(f"v_cndmask_b32 v{tab}, v{tab}, v{tC}, vcc")
    seg_att(14, N0, sU1)
    seg_att(f"s{STA2}", None, sU2)
    XO1, XO2 = sXOFF, sXOF2
    a(f"""
    s_lshl_b32 s{sT}, s{sWAVE}, 1
    s_lshl_b32 s{XO1}, s{XR1}, 3
    s_add_u32 s{XO1}, s{XO1}, s{sT}
    s_mul_i32 s{XO1}, s{XO1}, 14336
    s_lshl_b32 s{XO2}, s{XR2}, 3
    s_add_u32 s{XO2}, s{XO2}, s{sT}
    s_mul_i32 s{XO2}, s{XO2}, 14336
    s_lshl_b32 s{sW4K}, s{sWAVE}, 12
    s_mov_b32 s{sCLAMP}, 0x05040100
    s_mov_b32 s{sFIRST}, 0x07060302
    """)
    setup_l = [l.strip() for l in a.lines if l.strip()]
    a = main
    seq = []
    for k, kind in enumerate(GS[-1]):
        m0, so, ins = dma_group(kind, 0)
        seq += [[m0, so, ins[0]]] + [[x] for x in ins[1:]]
        if k == OPT["xpos"]:
            seq += [[f"buffer_load_dwordx4 {ar(SLD+48,4)}, v{GT+11}, {sr(sX,4)}, s{gB1} offen"], [f"buffer_load_dwordx4 {ar(SLD+52,4)}, v{GT+11}, {sr(sX,4)}, s{gB1} offen offset:448 ; @sx"]]
    if OPT["cpf"]: seq += [[f"buffer_load_dwordx4 a[200:203], v{vL16}, {G}, s{gB0} offen"], [f"s_add_u32 s{gB0}, s{gB0}, 131072", f"buffer_load_dwordx4 a[204:207], v{vL16}, {G}, s{gB0} offen"]]
    nowr = ("s_mov", "s_mul_i32", "s_nop", "s_cselect", "s_getpc", "s_cbranch", "s_branch")
    def scc_live(k):
        for l in setup_l[k:]:
            if l.startswith(("s_cselect", "s_cbranch_scc", "s_subb")): return True
            if l.startswith("s_") and not l.startswith(nowr): return False
        return False
    step = len(setup_l) / (len(seq) - 0.5)
    atomic = False; nxt = 0.0
    for k, l in enumerate(setup_l):
        if seq and k >= nxt and not atomic and not scc_live(k) and not l.endswith(":"):
            for x in seq.pop(0): a(x)
            nxt += step
        if l == "@atomic": atomic = True
        elif l == "@end": atomic = False
        else: a(l)
    for g in seq:
        for x in g: a(x)
    print("setup instrs", len(setup_l), "left", len(seq), file=sys.stderr)
    a(f"""
    s_mov_b32 s{sG}, s{sRET}
    s_mov_b32 s{sG+1}, s{sRET+1}
    s_mov_b32 s{sG+2}, {448*8192}
    """)
    if OPT["dbgside"] & 1:
        for r in sD: a(f"s_mov_b32 s{r}, {OOB}")
    if OPT["dbgside"] & 2: a(f"s_mov_b32 s{sXS}, {OOB}")
    if OPT["dbgside"] & 4:
        for r in (vWO, vW12, vSW): a(f"v_mov_b32 v{r}, {OOB}")
    def side_chain():
        c = []
        z = GT+8
        c += [(f"v_mov_b64 {vr(z,2)}, 0", 0), (f"v_mov_b64 {vr(z+2,2)}, 0", 0), (f"buffer_store_dwordx4 {vr(z,4)}, v{vL16}, {WS}, s{sFQ} offen sc1 ; @zst", 1)]
        c.append(("s_waitcnt vmcnt(@since:sx)", 1))
        U = GT; m_, v_, t_, t2_ = GT+16, GT+17, vG1, vPOLL
        for i in range(8):
            c.append((f"v_accvgpr_read_b32 v{t_}, a{SLD+48+i}", 2 if i == 0 else 0))
            c.append((f"v_lshlrev_b32 v{U+2*i}, 16, v{t_}", 0))
            c.append((f"v_and_b32 v{U+2*i+1}, 0xffff0000, v{t_}", 0))
        def red(v):
            r = [(f"v_add_f32_dpp v{v}, v{v}, v{v} row_ror:{sh} row_mask:0xf bank_mask:0xf", 2) for sh in (8, 4, 2)]
            return r + xlane_ops("v_add_f32", v, t2_)
        c.append((f"v_add_f32 v{m_}, v{U}, v{U+1}", 0)); c.append((f"v_add_f32 v{v_}, v{U+2}, v{U+3}", 0))
        for i in range(4, 16, 2):
            c.append((f"v_add_f32 v{m_}, v{m_}, v{U+i}", 0)); c.append((f"v_add_f32 v{v_}, v{v_}, v{U+i+1}", 0))
        c.append((f"v_add_f32 v{m_}, v{m_}, v{v_}", 0))
        c += red(m_)
        c.append((f"v_mul_f32 v{m_}, {f2u(1.0/448):#x}, v{m_}", 0))
        for i in range(16):
            c.append((f"v_sub_f32 v{t_}, v{U+i}, v{m_}", 0))
            c.append((f"v_mul_f32 v{v_}, v{t_}, v{t_}" if i == 0 else f"v_fma_f32 v{v_}, v{t_}, v{t_}, v{v_}", 0))
        c.append((f"v_cndmask_b32 v{v_}, 0, v{v_}, s[{sLN}:{sLN+1}]", 0))
        c += red(v_)
        for x in (f"v_mul_f32 v{v_}, {f2u(1.0/448):#x}, v{v_}", f"v_cvt_pk_bf16_f32 v{t_}, v{m_}, v{v_}", f"v_lshlrev_b32 v{m_}, 16, v{t_}",
                  f"v_and_b32 v{v_}, 0xffff0000, v{t_}", f"v_add_f32 v{v_}, {f2u(1e-5):#x}, v{v_}", f"v_cvt_pk_bf16_f32 v{v_}, v{v_}, v{v_}",
                  f"v_lshlrev_b32 v{v_}, 16, v{v_}", f"v_sqrt_f32 v{v_}, v{v_}"):
            c.append((x, 0))
        c.append((f"v_cvt_pk_bf16_f32 v{v_}, v{v_}, v{v_}", 1))
        c.append((f"v_lshlrev_b32 v{v_}, 16, v{v_}", 0))
        c.append((f"v_rcp_f32 v{v_}, v{v_}", 0))
        for i in range(16): c.append((f"v_sub_f32 v{U+i}, v{U+i}, v{m_}", 1 if i == 0 else 0))
        for i in range(8):
            for x in (f"v_cvt_pk_bf16_f32 v{t_}, v{U+2*i}, v{U+2*i+1}", f"v_lshlrev_b32 v{U+2*i}, 16, v{t_}", f"v_and_b32 v{U+2*i+1}, 0xffff0000, v{t_}",
                      f"v_mul_f32 v{U+2*i}, v{U+2*i}, v{v_}", f"v_mul_f32 v{U+2*i+1}, v{U+2*i+1}, v{v_}", f"v_cvt_pk_bf16_f32 v{U+i}, v{U+2*i}, v{U+2*i+1}"):
                c.append((x, 0))
        c.append((f"buffer_store_dwordx4 {vr(U,4)}, v{vSX}, {WS}, s{sXS} offen sc1", 1))
        c.append((f"v_add_u32 v{vSX}, {7*1024}, v{vSX}", 1))
        c.append((f"buffer_store_dwordx4 {vr(U+4,4)}, v{vSX}, {WS}, s{sXS} offen sc1", 1))
        def relay(rnd, land):
            c.append((f"s_waitcnt vmcnt(@since:sl{rnd})", 1, 0, rnd))
            for h in range(2):
                for e in range(8):
                    c.append((f"v_accvgpr_read_b32 v{GT+e}, a{land+2*e+h}", 2 if e == 0 else 0))
                for jj in range(2):
                    o = GT+8+4*jj
                    for p in range(4):
                        c.append((f"v_perm_b32 v{o+p}, v{GT+2*p+1}, v{GT+2*p}, s{(sCLAMP, sFIRST)[jj]}", 0))
                    if rnd == 1: c.append((f"buffer_store_dwordx4 {vr(o,4)}, v{vL16}, {WS}, s{sD[rnd]} offen offset:{(2*h+jj)*1024} sc1", 1))
                    else:
                        c.append((f"buffer_store_dwordx4 {vr(o,4)}, v{vSF}, {WS}, s{sD[rnd]} offen sc1", 1))
                        c.append((f"v_add_u32 v{vSF}, s{sSTR}, v{vSF}", 1))
        relay(2, SLD+32)
        c.append((f"s_waitcnt vmcnt(@since:sl0)", 1, 0, 0))
        c.append((f"s_mov_b32 s{sHI}, {f2u(QSCALE):#x}", 1))
        for h in range(2):
            for p in range(4):
                t = GT + (p & 1)*4
                c += [(x, 0) for x in (f"v_accvgpr_read_b32 v{t}, a{SLD+4*p+h}", f"v_accvgpr_read_b32 v{t+1}, a{SLD+4*p+2+h}",
                      f"v_lshlrev_b32 v{t+2}, 16, v{t}", f"v_lshlrev_b32 v{t+3}, 16, v{t+1}", f"v_and_b32 v{t}, 0xffff0000, v{t}", f"v_and_b32 v{t+1}, 0xffff0000, v{t+1}")]
                c += [(f"v_mul_f32 v{t+i}, s{sHI}, v{t+i}", 0) for i in range(4)]
                c += [(f"v_cvt_pk_bf16_f32 v{GT+8+p}, v{t+2}, v{t+3}", 0), (f"v_cvt_pk_bf16_f32 v{GT+12+p}, v{t}, v{t+1}", 0)]
            if h == 1: c.append((f"s_add_u32 s{sD[0]}, s{sD[0]}, 4096", 1))
            for jj in range(2):
                c.append((f"buffer_store_dwordx4 {vr(GT+8+4*jj,4)}, v{vL16}, {WS}, s{sD[0]} offen offset:{jj*2048} sc1 ; @sst", 1))
        relay(1, WOL)
        c += [(x, 0) for x in (f"v_add_u32 v{vDMA}, s{sW4K}, v{vL16}", f"v_mov_b32 v{vRD}, v{vL16}",  f"v_lshrrev_b32 v{GT}, 4, v{vLANE}",
              f"v_lshlrev_b32 v{GT}, 2, v{GT}", f"v_and_b32 v{GT+1}, 15, v{vLANE}", f"v_sub_u32 v{GT}, v{GT+1}, v{GT}")]
        c += [(f"v_cmp_gt_i32 s[{sMASK+2*r}:{sMASK+2*r+1}], {r}, v{GT}", 0) for r in range(4)]
        c = [((x[0].replace(" sc1", OPT["sidesc"]),) + tuple(x[1:]) if x[0].startswith("buffer_store") else x) for x in c]
        if OPT["wbl2"]: c.append(("s_waitcnt vmcnt(4)", 30)); c.append(("buffer_wbl2 sc1", 1))
        return Chain(c, XG4)
    def reads(kk, buf):
        ra = [f"ds_read_b128 {ar(FA(buf,m),4)}, v{RA[kk]} offset:{m*2048}" for m in range(8)]
        rb = [f"ds_read_b64_tr_b16 {ar(FB(buf,n)+2*sec,2)}, v{RB[n&3]} offset:{kk*16384+sec*2048+(n>>2)*512}" for n in range(8) for sec in range(2)]
        out = []
        for i in range(8): out += [ra[i], rb[2*i], rb[2*i+1]]
        return out
    stamp(6, True)
    a(f"s_waitcnt {gwait(-1)}")
    a("s_barrier")
    for r in reads(0, 0): a(r)
    stamp(1)
    a(f"s_cmp_eq_u32 s{sWHICH}, 0")
    a("s_cbranch_scc0 L_gemmV")
    pre_lines = len(a.lines)
    sJT = sT+2
    def xjob(J, key, i, base, early, late, rot=0):
        u, qt = i >> 1, i & 1
        J.add(key, f"s_add_u32 s{sJT}, s{base}, {qt*14336+((u+rot)%14)*1024}", f"buffer_load_dwordx4 {ar(X(qt,u),4)}, v{vL16}, {WS}, s{sJT} offen{ld()} ; @{key}", early, late - (3 - (i & 3))*8)
    def kvjob(J, c, early, late):
        blk = c >> 2
        J.add("kv", f"s_add_u32 s{sJT}, s{sKVI if blk & 1 else sKVB}, {(blk>>1)*US+(c&3)*1024}",
              f"buffer_store_dwordx4 {vr(PK(c),4)}, v{vL16}, {WS}, s{sJT} offen{OPT['kvsc']} ; @kv", early, late)
    pw, t6, t7 = sEV, sCNT, sND
    setup = f"""
    s_lshl_b32 s{pw}, s{sHEAD}, 3
    s_and_b32 s{t6}, s{sJ}, 7
    s_add_u32 s{pw}, s{pw}, s{t6}
    s_lshl_b32 s{pw}, s{pw}, 2
    s_add_u32 s{pw}, s{pw}, s{sWAVE}
    s_mul_i32 s{sQST}, s{pw}, {Q_W}
    s_add_u32 s{sQST}, s{sQST}, {WS_QF}
    s_mul_i32 s{sPT}, s{pw}, {PT_W}
    s_add_u32 s{sPT}, s{sPT}, {WS_PT}
    s_lshl_b32 s{sFQ}, s{pw}, 5
    s_add_u32 s{sFQ}, s{sFQ}, {WS_FLG + FL_Q}
    s_mul_i32 s{t7}, s{sWAVE}, {28*1024}
    s_add_u32 s{t7}, s{t7}, {WS_PS}
    s_mul_i32 s{pw}, s{sHEAD}, 7
    s_add_u32 s{pw}, s{pw}, s{t6}
    s_lshr_b32 s{t6}, s{pw}, 4
    s_and_b32 s{sFSG}, s{pw}, 15
    s_lshl_b32 s{sT+3}, s{t6}, 9
    s_mul_i32 s{sPSG}, s{sFSG}, {PS_R}
    s_add_u32 s{sPSG}, s{sPSG}, s{t7}
    s_mul_i32 s{pw}, s{t6}, {PS_SRC}
    s_add_u32 s{sPSG}, s{sPSG}, s{pw}
    s_add_u32 s{sPSG}, s{sPSG}, {16*PS_SRC}
    s_lshl_b32 s{sFSG}, s{sFSG}, 9
    s_lshl_b32 s{pw}, s{t6}, 2
    s_add_u32 s{sFSG}, s{sFSG}, s{pw}
    s_lshl_b32 s{pw}, s{sWAVE}, 7
    s_add_u32 s{pw}, s{pw}, {WS_FLG + FL_S}
    s_add_u32 s{sFSG}, s{sFSG}, s{pw}
    s_add_u32 s{sFSG}, s{sFSG}, 64
    s_lshr_b32 s{t6}, s{sJ}, 3
    s_mul_i32 s{t6}, s{t6}, 7
    s_xor_b32 s{t6}, s{t6}, 7
    s_xor_b32 s{t6}, s{t6}, s{sJ}
    s_mul_i32 s{sPSS}, s{t6}, {PS_R}
    s_add_u32 s{sPSS}, s{sPSS}, s{t7}
    s_mul_i32 s{t7}, s{sHEAD}, {PS_SRC}
    s_add_u32 s{sPSS}, s{sPSS}, s{t7}
    s_lshl_b32 s{sFSS}, s{t6}, 9
    s_add_u32 s{sFSS}, s{sFSS}, s{pw}
    s_lshl_b32 s{t7}, s{sHEAD}, 2
    s_add_u32 s{sFSS}, s{sFSS}, s{t7}
    s_lshl_b32 s{sND}, s{sQI}, 2
    s_add_u32 s{sND}, s{sND}, s{sWAVE}
    s_lshr_b32 s{sCNT}, s{sU1}, 1
    s_sub_u32 s{sCNT}, s{sCNT}, 1
    s_lshr_b32 s{sEV}, s{sJ}, 3
    """.strip().split("\n")
    setup = [(x.strip(), 1) for x in setup]
    setup.append((f"s_cmp_eq_u32 s{sTYPE}, 1\ns_cselect_b32 s{sQST}, {OOB}, s{sQST}", 1))
    setup.append((f"s_cmp_eq_u32 s{sTYPE}, 0\ns_cselect_b32 s{sFSG}, s{sFSG}, {OOB}", 1))
    setup.append((f"s_cmp_eq_u32 s{sWAVE}, 0\ns_cselect_b32 s{sFQ}, s{sFQ}, {OOB}\ns_cselect_b32 s{sEXP}, 1, 0", 1))
    setup2 = [(x, 1) for x in (f"s_mov_b32 s{sTAU}, 4", f"s_add_u32 s{sM0}, s{sW4K}, {8*16384}", f"s_add_u32 s{sOFFB}, s{sW0}, {8*16384}",
              f"s_mov_b32 s{sRDD}, {-131072}", f"s_mov_b32 s{gMA}, {-131072}", f"s_mov_b32 s{gMB}, 32768", f"s_mov_b32 m0, s{sM0}")]
    for typ in ("K", "V"):
        if typ == "V":
            a.label("L_gemmV")
            for l in a.lines[:pre_lines]:
                if l.strip().startswith("buffer_") or "@merge" in l: a.raw("@ghost " + l.strip())
        def pos(m, n): return m*8+n if typ == "K" else (m >> 1)*16 + n*2 + (m & 1)
        def substep(it, kk):
            groups = GS[2*it+kk]
            buf = kk
            mf = []
            for m in range(8):
                for n in range(8):
                    acc = accreg(pos(m, n))
                    c = "0" if (it == 0 and kk == 0) else acc
                    x, y = ar(FB(buf,n),4), ar(FA(buf,m),4)
                    if typ == "V": x, y = y, x
                    mf.append(f"{MF} {acc}, {x}, {y}, {c}")
            st = Stage(mf)
            st.put(-1, f"s_waitcnt {gwait(2*it+kk)} lgkmcnt(0)")
            st.put(-1, "s_barrier")
            last = (it == 15 and kk == 1)
            g, dg = 1, (OPT["dg2"] if len(groups) == 2 else 4)
            for k, kind in enumerate(groups):
                m0, so, ins = dma_group(kind, k)
                st.put(g-1, m0)
                st.put(g-2, so)
                for i in ins:
                    st.put(g, i); g += dg
            rd = reads(kk ^ 1, buf ^ 1) if not last else [f"ds_read_b128 {ar(FR(f),4)}, v{vRD} offset:{f*1024}" for f in range(12)]
            for i, r in enumerate(rd): st.put(i*2, r)
            if kk == 0 and it < 15:
                d = -131072 if it % 3 == 0 else 65536
                for i, x in enumerate([f"v_add_u32 v{RA[0]}, {d}, v{RA[0]}", f"v_add_u32 v{RA[1]}, {d}, v{RA[1]}"] + [f"v_xor_b32 v{r}, 0x10000, v{r}" for r in RB]):
                    st.put(48 + 2*(i >> 1), x)
            if OPT["fine"]:
                st.put(2, f"{FT()} s[{sFS}:{sFS+1}]")
                st.put(4, f"v_mov_b32_dpp v0, v0 wave_shr:1 row_mask:0xf bank_mask:0xf")
                st.put(46, f"v_writelane_b32 v0, s{sFS}, 0")
            return st
        ch = side_chain()
        J = Jobs()
        for e in range(8):
            t = [x + e*OPT["slstep"] for x in OPT["slt"]]
            J.add("sl1", f"s_mov_b32 s{sJT}, {(e>>2)*16*896}", f"buffer_load_dwordx2 {ar(WOL+2*e,2)}, v{vWO}, {sr(sX,4)}, s{sJT} offen offset:{(e&3)*896}{OPT['ntS']} ; @sl1", t[2], t[2]+64)
            J.add("sl2", f"s_add_u32 s{sJT}, s{sHI}, {(e&3)*3584}" if e >> 2 else f"s_mov_b32 s{sJT}, {e*3584}",
                  f"buffer_load_dwordx2 {ar(SLD+32+2*e,2)}, v{vW12}, {sr(sW12,4)}, s{sJT} offen{OPT['ntS']} ; @sl2", t[0], t[0]+64)
            J.add("sl0", f"s_mov_b32 s{sJT}, {e*8192}", f"buffer_load_dwordx2 {ar(SLD+2*e,2)}, v{vSW}, {G}, s{sJT} offen{OPT['ntS']} ; @sl0", t[1], t[1]+64)
        NZ, NZP, NZC, NF, NP, NC = OPT["sync"]
        for i in range(20): xjob(J, "x1", i, XO1, (NC+1)*64 + i*OPT["xstep"], 31*64)
        for b in range(8):
            J.add("bias", None, f"buffer_load_dwordx4 {vr(BIAS+4*b,4)}, v{GT+16}, {G}, s{sT+3} offen offset:{(b>>1)*128+(b&1)*16} ; @bias", 31*64 if b in (2, 3) else 29*64, 31*64+24)
        su = Chain(setup)
        PV = GT+8
        for n in range(31):
            it, kk = n >> 1, n & 1
            st = substep(it, kk)
            if n == 0:
                st.put(62, f"s_load_dwordx2 s[{sX}:{sX+1}], s[0:1], 40")
                st.put(63, f"s_mov_b32 s{sX+2}, {4096*896}")
            if n == NZ-1: st.put(63, "s_waitcnt vmcnt(@since:zst)")
            if n == NZ: st.put(61, f"buffer_store_byte v{vONE}, v{vFLG}, {sr(sDBG,4)}, s{gFL} offen sc1")
            if n == NZP: st.put(61, f"buffer_load_dword v{vPOLL}, v{vL4}, {sr(sDBG,4)}, s{gIT} offen sc1 ; @zp")
            if n == NZC:
                st.put(54, "s_waitcnt vmcnt(@since:zp)")
                st.put(55, f"s_cmp_eq_u32 s{sWAVE}, 0\ns_cselect_b32 s{sT+1}, 0x01010101, 0")
                st.put(56, f"v_cmp_ne_u32 vcc, s{sT+1}, v{vPOLL}")
                st.put(60, f"s_cbranch_vccnz L_zwait{typ}")
                st.put(60, f"L_zok{typ}:")
            if n == NF-1:
                assert not any("@sst" in x[0] for x in ch.items) and NZC < NF
                st.put(63, "s_waitcnt vmcnt(@since:sst)")
                st.put(62, f"s_load_dwordx2 s[{sG}:{sG+1}], s[0:1], 64")
                st.put(59, f"s_mov_b32 s{sG+2}, 3584")
            if n == NF:
                st.put(55, f"s_add_u32 s{gIT}, s{gIT}, {WS_FLG+FL_PREP}")
                st.put(58, f"s_lshl2_add_u32 s{sT+1}, s2, s{gIT}")
                st.put(59+2*kk, f"buffer_store_dword v{vONE}, v{vFLG}, {WS}, s{sT+1} offen sc1")
            if n == NP:
                assert not ch.items
                st.put(61, f"buffer_load_dwordx4 {vr(PV,4)}, v{vL16}, {WS}, s{gIT} offen sc1 ; @prep")
            if n == NC:
                st.put(50, "s_waitcnt vmcnt(@since:prep)")
                st.put(51, f"s_cmp_eq_u32 s{sWAVE}, 0\ns_cselect_b32 s{sT+1}, 1, 0")
                st.put(54, f"v_and_b32 v{PV}, v{PV}, v{PV+1}")
                st.put(54, f"v_and_b32 v{PV+2}, v{PV+2}, v{PV+3}")
                st.put(55, f"v_and_b32 v{PV}, v{PV}, v{PV+2}")
                st.put(55, f"v_cmp_ne_u32 vcc, s{sT+1}, v{PV}")
                st.put(60, f"s_cbranch_vccnz L_prepwait{typ}")
                st.put(60, f"L_prepok{typ}:")
                st.put(56, f"v_lshrrev_b32 v{GT+16}, 4, v{vLANE}")
                st.put(56, f"v_lshlrev_b32 v{GT+16}, 5, v{GT+16}")
            J.place(st, n, 10, XG4)
            if n >= 1 and ch.items:
                full = ch.items
                for k, x in enumerate(full):
                    if len(x) > 3:
                        key = f"sl{x[3]}"
                        if any(j[5] == key for j in J.jobs) or J.at[key] + OPT["sld"] > n*64+63:
                            ch.items = full[:k]; break
                        full[k] = (x[0], x[1], max(0, J.at[key] + OPT["sld"] - n*64), x[3])
                rest = full[len(ch.items):] if ch.items is not full else []
                ch.base = n*64; ch.minD = OPT["smin"]
                ch.fill(st)
                ch.items = ch.items + rest
                if typ == "K": print("substep", n, "chain left", len(ch.items), file=sys.stderr)
            elif n > NC: su.fill(st)
            if n == 28: assert not su.items
            st.emit(a)
        st = substep(15, 1)
        J.place(st, 31, 2, [17, 21]); assert not J.jobs
        SG = [25, 33, 41, 49, 57, 61]
        for c in range(NE): kvjob(J, c, SG[c], SG[c])
        J.place(st, 0, 8, SG); assert not J.jobs
        su = Chain(setup2); su.fill(st, 30); assert not su.items
        slot_of = {pos(m, n): m*8+n for m in range(8) for n in range(8)}
        pk = []
        for c in range(32):
            e = max(slot_of[2*c], slot_of[2*c+1]) + 3
            if 20 <= c < 20+NE: e = max(e, SG[c-20]+2)
            src = []
            for h in range(2):
                p = 2*c+h
                if p < 52: src += [48+4*p+i for i in range(4)]
                else:
                    for i in range(4):
                        pk.append((f"v_accvgpr_read_b32 v{128+(p-52)*4+i}, a{208+4*(p-52)+i}", 0, e)); src.append(128+(p-52)*4+i)
            for i in range(4): pk.append((f"v_cvt_pk_bf16_f32 v{PK(c)+i}, v{src[2*i]}, v{src[2*i+1]}", 0, e))
        pk = Chain(pk); pk.fill(st)
        for c in range(NE):
            w = [g for g, v in st.fill.items() if any(x.startswith(f"v_cvt_pk_bf16_f32 v{PK(c)+3},") for x in v)]
            assert min(w) < SG[c], (c, w)
        st.emit(a)
        a("s_nop 3")
        print("pack tail", len(pk.items), file=sys.stderr)
        pk.flush(a)
        a("s_waitcnt vmcnt(@since:bias) lgkmcnt(8)")
        a(f"s_cmp_eq_u32 s{sTYPE}, 0")
        a("s_cbranch_scc0 L_P1B")
        a("s_branch L_P1A")
    def unpack(nt):
        o = []
        for r in range(4):
            x = 4*r + (nt & 3); src = BIAS + (nt >> 2)*8 + (x >> 1)
            o.append(f"v_and_b32 v{O(nt,1)+r}, 0xffff0000, v{src}" if x & 1 else f"v_lshlrev_b32 v{O(nt,1)+r}, 16, v{src}")
        return o
    def p1_jobs(t0, step, slack=8):
        J = Jobs()
        for c in range(20+NE, 32): kvjob(J, c, 0, XG[c-20-NE])
        for k, c in enumerate(range(NE, 20+NE)): kvjob(J, c, t0+k*step, t0+slack+k*step)
        for i in range(20, 28): xjob(J, f"x1{i>>2}", i, XO1, (i >> 2)*64 - 134, (i >> 2)*64 - 70)
        return J
    def xwait(st, key): st.put(62, f"s_waitcnt vmcnt(@since:{key})")
    def flagjob(J, key, after, soff, delay):
        if key in J.at or any(j[5] in (after, key) for j in J.jobs): return
        t = J.at[after] + delay
        J.add(key, f"s_waitcnt vmcnt(@since:{after})\ns_barrier", f"buffer_store_dword v{vONE}, v{vFLG}, {WS}, s{soff} offen sc1", t, t+8)
    def split_chain(items, st_prev, mk_next, late_of):
        ch = Chain(items); ch.fill(st_prev)
        rest = ch.items
        for k in range(len(rest)+1):
            st = mk_next()
            c2 = Chain([(x[0], x[1]) for x in rest[k:]])
            before = {gg: len(v) for gg, v in st.fill.items()}
            c2.fill(st)
            if c2.items: continue
            where = {}
            for gg, v in st.fill.items():
                for ins in v[before.get(gg, 0):]: where[ins] = gg
            if all(where[x[0]] <= late_of(x[3]) for x in rest[k:]):
                return rest[:k], st
        raise AssertionError
    def emit_mid(mid):
        if mid: a("s_nop 3")
        Chain(mid).flush(a)
        if mid: a("s_nop 1")
    def post_groups(s, scale):
        out = []
        for qt in range(2):
            for p in range(2):
                t = vT + 16 + (qt*2+p)*4
                regs = [PA(s & 1, nt, qt) + 2*p + rr for rr in range(2) for nt in range(4)]
                ops = [f"v_mul_f32 v{r}, v{vRINV[qt]}, v{r}" for r in regs] if scale else []
                ops += [f"v_cvt_pk_bf16_f32 v{t+i}, v{regs[2*i]}, v{regs[2*i+1]}" for i in range(4)]
                out.append((ops, t))
        return out
    def post_store(s, k, t, base):
        return f"s_add_u32 s{sJT}, s{base}, {s*4096+k*1024}", f"buffer_store_dwordx4 {vr(t,4)}, v{vL16}, {WS}, s{sJT} offen sc1 ; @ps"
    def post_place(st, s, scale, base, gaps):
        for k, (ops, t) in enumerate(post_groups(s, scale)):
            pre, ins = post_store(s, k, t, base)
            st.put(gaps[k]-1, pre); st.put(gaps[k], ins)
    def post_sched(st, s, scale, gaps):
        for k, (ops, t) in enumerate(post_groups(s, scale)):
            prev = None
            for x in ops: prev = st.add(x, [prev], 2, gaps[k]-1)
        st.schedule()
    def post_flush(s, scale, base):
        a("s_nop 5")
        for k, (ops, t) in enumerate(post_groups(s, scale)):
            for x in ops: a(x)
            for x in post_store(s, k, t, base): a(x)
    def mk_post(s):
        st = Stage(mf_post(s)); common_fill(st); return st
    def poll_issue(st, g, voff, soff, tag):
        st.put(g, f"buffer_load_dword v{vPOLL}, v{voff}, {WS}, s{soff} offen sc1 ; @{tag}")
    POLLS = []
    def poll_check(st, g, voff, soff, tag, lane0):
        st.put(g, f"s_waitcnt vmcnt(@since:{tag})")
        st.put(g, f"v_cmp_{'eq' if lane0 else 'ne'}_u32 s[{sT+4}:{sT+5}], s{sEXP}, v{vPOLL}")
        st.put(g+2, f"s_cmp_{'eq' if lane0 else 'lg'}_u64 s[{sT+4}:{sT+5}], 0\ns_cbranch_scc1 L_pw_{tag}")
        assert not ({g+1, g+2} & st.scc_busy)
        st.put(g+2, f"L_po_{tag}:")
        st.put(g+2, "s_barrier")
        POLLS.append((tag, voff, soff, lane0))
    def kv2addr(st):
        st.put(2, f"v_min_u32 v{vL4}, 11, v{vLANE}"); st.put(4, f"v_lshlrev_b32 v{vL4}, 2, v{vL4}"); st.put(8, f"v_add_u32 v{vL4}, 128, v{vL4}")
    XG2 = sorted(XG + [3, 11, 19, 27, 43, 51, 59])
    XG3 = sorted(XG + [5, 13, 21, 29, 45, 53, 61])
    merge("L_P1A")
    stamp(2)
    for x in unpack(0): a(x)
    a("s_nop 1")
    J = p1_jobs(64, OPT["kvstep"])
    for s in range(6):
        st = Stage(mf_proj(s, "bias" if s == 0 else None)); common_fill(st)
        flagjob(J, "kvf", "kv", sFKV, OPT["fdelay"])
        J.place(st, s, OPT["cap"])
        if s == 0:
            for nt in range(1, 16):
                e = XG[2*(nt-13)+1]+2 if nt >= 13 else 0
                for x in unpack(nt): st.add(x, [], e, 4*nt-3)
            st.schedule()
        if s >= 4: xwait(st, f"x1{s+1}")
        st.emit(a)
    st = Stage(mf_proj(6)); common_fill(st)
    flagjob(J, "kvf", "kv", sFKV, OPT["fdelay"]); J.place(st, 6, OPT["cap"])
    items = []
    for ud in range(8):
        for qt in range(2):
            regs = [O(2*ud,qt)+i for i in range(4)] + [O(2*ud+1,qt)+i for i in range(4)]
            e = 8*ud+7+3
            for r in regs: items.append((f"v_mul_f32 v{r}, |v{r}|, v{r}", 0, e, ud))
            for i in range(4): items.append((f"v_cvt_pk_bf16_f32 v{regs[i]}, v{regs[2*i]}, v{regs[2*i+1]}", 0, e, ud))
            for i in range(4): items.append((f"v_pk_max_i16 v{regs[i]}, v{regs[i]}, 0", 0, e, ud))
    import copy
    def mk0():
        st = mk_post(0); J2 = copy.deepcopy(J); J2.place(st, 7, OPT["cap"]); assert not J2.jobs; return st
    mid, st0 = split_chain(items, st, mk0, lambda ud: 8*ud-3)
    print("H mid", len(mid), "kv last", J.at["kv"], file=sys.stderr)
    st.emit(a); emit_mid(mid)
    stamp(3)
    J = Jobs()
    for i in range(16):
        J.add("ql", f"s_add_u32 s{sJT}, s{sQST}, {i*1024}", f"buffer_load_dwordx4 {ar(4*i,4)}, v{vL16}, {WS}, s{sJT} offen sc1 ; @ql", 4*64+46, 6*64+36-(15-i)*4)
    for s in range(7):
        st = st0 if s == 0 else mk_post(s)
        if s == 2: poll_issue(st, 3, vL4, sFKVP, "kva"); poll_check(st, 58, vL4, sFKVP, "kva", False)
        if s == 3: poll_issue(st, 51, vFLG, sFQ, "qa"); kv2addr(st)
        if s == 4: poll_check(st, 42, vFLG, sFQ, "qa", True)
        gaps = [9, 25, 41, 57] if s < 6 else [41, 49, 57, 59]
        if s >= 1: post_place(st, s-1, False, sPSG, gaps)
        J.place(st, s, 7, XG2)
        if s >= 1: post_sched(st, s-1, False, gaps)
        st.emit(a)
    assert not J.jobs
    def mk_F(qb, tag, pre=None):
        st = Stage(mf_qk(0, 0, qb, True) + mf_qk(1, 1, qb, True)); common_fill(st)
        if pre: pre(st)
        place_sm(st, 0, 35, 62, tag, ladd=False, first=True)
        st.schedule()
        return st
    def finit():
        return [(f"v_mov_b64 {vr(NEGM(0)+2*i,2)}, 0", 0) for i in range(4)] + [(f"v_mov_b64 {vr(vL[0],2)}, 0", 0),
                (f"v_mov_b32 v{vBIG}, {f2u(-1e30):#x}", 0), (f"s_mov_b32 s{sFIRST}, 1", 1), (f"s_mov_b32 s{sCLAMP}, {f2u(-3e38):#x}", 1)]
    def f_end(tag, nxt, endl):
        a(f"s_cbranch_vccnz L_fchk_{tag}")
        a.label(f"L_fok_{tag}")
        STUBS.append((f"L_fchk_{tag}", "L_fchk", f"L_fok_{tag}"))
        a(f"s_mov_b32 s{sFIRST}, 0")
        a(f"s_mov_b32 s{sCLAMP}, 0")
        a(f"s_cmp_eq_u32 s{sCNT}, 0")
        a(f"s_cbranch_scc1 {endl}")
        if nxt: a(f"s_branch {nxt}")
    a("s_nop 5")
    for ops, t in post_groups(6, False):
        for x in ops: a(x)
    a("s_waitcnt vmcnt(@since:ql)")
    stamp(4)
    def pre_fa1(st):
        post_place(st, 6, False, sPSG, [9, 17, 25, 33])
        poll_issue(st, 1, vL4, sFKVP, "kv2a"); poll_check(st, 58, vL4, sFKVP, "kv2a", False)
    st = mk_F(0, "fa1", pre_fa1)
    c = Chain(finit()); c.fill(st, 0, 30); assert not c.items
    st.emit(a)
    f_end("fa1", "L_s1z0", "L_u2")
    merge("L_P1B")
    stamp(2)
    J = p1_jobs(OPT["kvb0"], OPT["kvstepb"], 200)
    for i in range(28):
        p = i >> 2
        xjob(J, f"x2{p}", i, XO2, max(p+1, 3)*64, (7+p)*64 - 134, 4)
    for i in range(16):
        qt, ud = i & 1, i >> 1
        J.add("qs", f"s_add_u32 s{sJT}, s{sQST}, {(qt*8+ud)*1024}", f"buffer_store_dwordx4 {ar(Q(0,qt,ud),4)}, v{vL16}, {WS}, s{sJT} offen{OPT['kvsc']} ; @qs",
              7*64 if ud < 5 else 8*64, 7*64+20+i*OPT["qstep"])
    def bstage(gs):
        s = gs % 7
        st = Stage(mf_proj(s, "zero" if gs % 7 == 0 else None))
        nod = 3 <= gs <= 7
        common_fill(st, dma=not nod, nd={3: 16, 4: 8, 5: 0}.get(gs), novm=(6 <= gs <= 10), rdl=(gs == 7))
        if gs == 9: poll_issue(st, 3, vL4, sFKVP, "kvb"); poll_check(st, 58, vL4, sFKVP, "kvb", False)
        if gs == 10: kv2addr(st)
        if gs == 1:
            st.put(2, f"s_cmp_eq_u32 s{sJ}, 7\ns_cselect_b32 s{sT+1}, 34, 2")
            st.put(4, f"v_and_b32 v{vT}, 4, v{vLANE}"); st.put(8, f"v_mul_u32_u24 v{vT}, s{sT+1}, v{vT}"); st.put(10, f"v_or_b32 v{vL4}, v{vL4}, v{vT}")
        flagjob(J, "kvf", "kv", sFKV, OPT["fdelay"]); flagjob(J, "qf", "qs", sFQ, 72)
        if nod: J.place(st, gs, OPT["capn"], XG3)
        elif gs == 8: J.place(st, gs, OPT["capq"], XG2)
        else: J.place(st, gs, OPT["capb"])
        if gs in (4, 5): xwait(st, f"x1{gs+1}")
        if 6 <= gs < 13: xwait(st, f"x2{gs-6}")
        return st
    for gs in range(6): bstage(gs).emit(a)
    def q_items(qb):
        items = []; cnt = 0
        for ud in range(8):
            blk = ud >> 1
            for qt in range(2):
                e = 16*blk+15+3
                t = vT + 16 + (cnt % 4)*4; cnt += 1
                for i in range(4):
                    jp = 2*(ud & 1) + (i >> 1); tl = 4*blk + 2*(i & 1)
                    items.append((f"v_cvt_pk_bf16_f32 v{t+i}, v{O(tl,qt)+jp}, v{O(tl+1,qt)+jp}", 0, e, 2*blk))
                for i in range(4): items.append((f"v_accvgpr_write_b32 a{Q(qb,qt,ud)+i}, v{t+i}", 0, e, 99 if ud >= 5 else -1))
        return items
    st = bstage(6); st7 = bstage(7)
    mid, st0 = split_chain(q_items(0), st, lambda: copy.deepcopy(st7), lambda ud: 8*ud-1)
    print("E1 mid", len(mid), file=sys.stderr)
    st.emit(a); emit_mid(mid)
    stamp(3)
    st0.emit(a)
    for gs in range(8, 13): bstage(gs).emit(a)
    st = bstage(13)
    assert not J.jobs
    print("B jobs", {k: (v >> 6, v & 63) for k, v in J.at.items()}, file=sys.stderr)
    def mk_fa2():
        STUBS[:] = [x for x in STUBS if "fa2" not in x[0]]
        POLLS[:] = [x for x in POLLS if x[0] != "kv2b"]
        def pre(st): poll_issue(st, 1, vL4, sFKVP, "kv2b"); poll_check(st, 58, vL4, sFKVP, "kv2b", False)
        st = mk_F(0, "fa2", pre); c = Chain(finit()); c.fill(st, 0, 30); return st
    mid, st0 = split_chain(q_items(128), st, mk_fa2, lambda ud: 60)
    print("E2 mid", len(mid), file=sys.stderr)
    st.emit(a); emit_mid(mid)
    stamp(4)
    st0.emit(a)
    f_end("fa2", None, "L_u2")
    def steady(b, qb, tag, czero=False):
        st = Stage(mf_pv(0, b^1, czero) + mf_qk(1, b^1, qb)); common_fill(st)
        if b == 0:
            st.put(56, f"s_sub_u32 s{sCNT}, s{sCNT}, 1")
            st.put(58, f"s_cmp_lg_u32 s{sCNT}, s{sEV}")
            st.scc_busy |= set(range(58, 64))
        if tag == "z0":
            st.put(56, "s_waitcnt vmcnt(11)")
            st.put(57, f"buffer_store_dword v{vONE}, v{vFLG}, {WS}, s{sFSG} offen sc1")
        place_sm(st, b, 0, 62, tag); st.schedule()
        st.emit(a)
        a(f"s_cbranch_vccnz L_dorare_{tag}")
        a.label(f"L_norare_{tag}")
        STUBS.append((f"L_dorare_{tag}", f"L_rare{b}", f"L_norare_{tag}"))
    def loop(qb, n):
        merge(f"L_s1z{n}")
        steady(1, qb, f"z{n}", True)
        a(f"s_branch L_mid{n}")
        merge(f"L_steady{n}", True)
        steady(1, qb, f"s1{n}")
        merge(f"L_mid{n}")
        steady(0, qb, f"s0{n}")
        a(f"s_cbranch_scc1 L_steady{n}")
    loop(0, 0)
    a(f"s_cmp_eq_u32 s{sCNT}, 0")
    a("s_cbranch_scc1 L_end0")
    a(f"""
    s_add_u32 s{sFQ}, s{sFQ}, {FL_P - FL_Q}
    s_nop 0
    buffer_load_dword v{vPOLL}, v{vFLG}, {WS}, s{sFQ} offen sc1
    s_mov_b32 s{sEV}, 0
    s_branch L_steady0
    """)
    a.label("L_u2")
    for i in range(64): a(f"v_mov_b64 {vr(O0+2*i,2)}, 0")
    merge("L_end0")
    a(f"s_cmp_eq_u32 s{sTYPE}, 2")
    a("s_cbranch_scc1 L_lpack")
    a(f"""
    s_waitcnt vmcnt(16)
    v_cmp_ne_u32 vcc, s{sEXP}, v{vPOLL}
    s_add_u32 s{sT+3}, s{sPT}, 16384
    s_nop 0
    s_bitcmp1_b32 vcc_lo, 0
    s_cbranch_scc1 L_pw_pt
    """)
    a.label("L_po_pt")
    a("s_barrier")
    POLLS.append(("pt", vFLG, sFQ, True))
    a(f"buffer_load_dwordx4 {vr(vSTB,4)}, v{vL16}, {WS}, s{sT+3} offen sc1")
    for i in range(16):
        if i % 4 == 0: a(f"s_add_u32 s{sT+3}, s{sPT}, {i*1024}")
        a(f"buffer_load_dwordx4 {ar(128+4*i,4)}, v{vL16}, {WS}, s{sT+3} offen offset:{(i&3)*1024} sc1 ; @ptl")
    def pack_items(e0, step):
        items = []
        for ud in range(8):
            for qt in range(2):
                regs = [O(2*ud,qt)+i for i in range(4)] + [O(2*ud+1,qt)+i for i in range(4)]
                for i in range(4): items.append((f"v_cvt_pk_bf16_f32 v{regs[i]}, v{regs[2*i]}, v{regs[2*i+1]}", 0, e0+step*ud, ud))
        return items
    def mk_L(tag):
        st = Stage(mf_pv(0, 0) + mf_pv(1, 1)); common_fill(st)
        place_sm(st, 1, 0, 30, tag); st.schedule()
        st.put_post(31, f"s_cbranch_vccnz L_dorare_{tag}")
        st.put_post(31, f"L_norare_{tag}:")
        STUBS.append((f"L_dorare_{tag}", "L_rare1", f"L_norare_{tag}"))
        st.put(32, f"v_add_f32 v{vL[0]}, v{vL[0]}, v{vSUM[0][0]}")
        st.put(34, f"v_add_f32 v{vL[1]}, v{vL[1]}, v{vSUM[1][0]}")
        return st
    st = mk_L("ln")
    c = [(f"v_bfe_u32 v{vT+20}, v{vLANE}, 2, 2", 0), (f"v_lshrrev_b32 v{vT+21}, 4, v{vLANE}", 0), (f"v_cmp_eq_u32 s[{sT+4}:{sT+5}], v{vT+20}, v{vT+21}", 0),
         (f"v_and_b32 v{vT+20}, 3, v{vLANE}", 0), (f"v_lshlrev_b32 v{vT+20}, 4, v{vT+20}", 0), (f"v_mov_b32 v{vT+22}, 0x3f80", 0), (f"v_mov_b32 v{vT+23}, 0", 0),
         (f"v_cndmask_b32 v{vT+22}, 0, v{vT+22}, s[{sT+4}:{sT+5}]", 1), (f"v_lshlrev_b64 {vr(vSEL+2,2)}, v{vT+20}, {vr(vT+22,2)}", 0),
         (f"v_mov_b64 {vr(vSEL,2)}, 0", 0), (f"v_mov_b64 {vr(vSEL+4,2)}, 0", 0),
         ("s_waitcnt vmcnt(@since:ptl)", 1, 55),
         (f"v_cmp_neq_f32 vcc, v{NEGM(0)}, v{vSTB}", 1), (f"v_cmp_neq_f32 s[{sT+4}:{sT+5}], v{NEGM(1)}, v{vSTB+1}", 0)]
    c = Chain(c); c.fill(st, 35); assert not c.items
    st.emit(a)
    a(f"s_or_b64 vcc, vcc, s[{sT+4}:{sT+5}]")
    a("s_cbranch_scc1 L_slowcomb")
    a.label("L_comb")
    stamp(5)
    mf = []
    for ud in range(8):
        for h in range(2):
            for qt in range(2):
                d = vr(O(2*ud+h,qt),4)
                mf.append(f"{MF} {d}, {vr(vSEL+2-2*h,4)}, {ar(128+(ud*2+qt)*4,4)}, {d}")
    st = Stage(mf)
    st.put(0, f"v_add_f32 v{vL[0]}, v{vL[0]}, v{vSTB+2}")
    st.put(0, f"v_add_f32 v{vL[1]}, v{vL[1]}, v{vSTB+3}")
    c = Chain(pack_items(6, 4)); c.fill(st, 0, 31)
    st.emit(a)
    a("s_nop 5")
    c.flush(a)
    a("s_branch L_post2")
    merge("L_lpack")
    st = mk_L("lp")
    c = Chain([(f"v_mov_b32 v{vSTAT}, v{NEGM(0)}", 0), (f"v_mov_b32 v{vSTAT+1}, v{NEGM(1)}", 0), (f"v_mov_b64 {vr(vSTAT+2,2)}, {vr(vL[0],2)}", 0)] + pack_items(38, 4))
    c.fill(st, 35)
    st.put(62, f"s_cmp_eq_u32 s{sTYPE}, 2")
    st.emit(a)
    a("s_nop 5")
    print("Lpack tail", len(c.items), file=sys.stderr)
    c.flush(a)
    a("s_cbranch_scc0 L_post2b")
    stamp(5)
    a(f"""
    s_mov_b32 s{sTYPE}, 3
    s_mov_b32 s{sN}, 0
    s_sub_u32 s{sND}, 15, s{sQI}
    s_lshl_b32 s{sND}, s{sND}, 2
    s_add_u32 s{sND}, s{sND}, s{sWAVE}
    s_lshr_b32 s{sCNT}, s{sU2}, 1
    s_sub_u32 s{sCNT}, s{sCNT}, 1
    s_sub_u32 s{sEV}, s{sCNT}, 1
    s_add_u32 s{sFQ}, s{sFQ}, {FL_P - FL_Q}
    s_add_u32 s{sT+3}, s{sPT}, 16384
    buffer_store_dwordx4 {vr(vSTAT,4)}, v{vL16}, {WS}, s{sT+3} offen sc1
    """)
    st = mk_F(128, "fb")
    c = []
    for i in range(16):
        if i % 4 == 0: c.append((f"s_add_u32 s{sT+3}, s{sPT}, {i*1024}", 1))
        c.append((f"buffer_store_dwordx4 {vr(O(2*(i>>1),i&1),4)}, v{vL16}, {WS}, s{sT+3} offen offset:{(i&3)*1024}{OPT['kvsc']}", 1))
    c = Chain(c); c.fill(st)
    c2 = Chain(finit()); c2.fill(st, 0, 30); assert not c2.items
    print("Fb leftover", len(c.items), file=sys.stderr)
    st.emit(a)
    c.flush(a)
    f_end("fb", None, "L_end")
    loop(128, 1)
    a(f"""
    s_cmp_eq_u32 s{sTYPE}, 3
    s_cbranch_scc0 L_lpack
    s_waitcnt vmcnt(16)
    s_barrier
    buffer_store_dword v{vONE}, v{vFLG}, {WS}, s{sFQ} offen sc1
    s_mov_b32 s{sTYPE}, 4
    s_mov_b32 s{sEV}, 0
    s_cmp_eq_u32 s{sCNT}, 0
    s_cbranch_scc1 L_lpack
    s_branch L_steady1
    """)
    a.label("L_post2b")
    merge("L_post2")
    stamp(6)
    a("s_nop 1")
    C0, CO, FP = sU1, sU2, sW0
    XO = [sCNT, sEV]; BO = [sN, sND]
    vXO, vBO, vC1, vFG, vFS = 44, 45, 46, 47, 48
    fs = f"""
    s_load_dwordx2 s[{sSA}:{sSA+1}], s[0:1], 0
    s_load_dwordx2 s[{sG}:{sG+1}], s[0:1], 80
    s_load_dwordx2 s[{sSB}:{sSB+1}], s[0:1], 88
    s_mov_b32 s{sSA+2}, {2048*896}
    s_mov_b32 s{sSB+2}, {2048*896}
    s_mov_b32 s{sG+2}, 896
    s_and_b32 s{C0}, s2, 3
    s_mul_i32 s{C0}, s{C0}, 7
    s_lshl_b32 s{sT}, s{sWAVE}, 1
    s_add_u32 s{C0}, s{C0}, s{sT}
    s_lshr_b32 s{sT}, s2, 4
    s_mul_i32 s{CO}, s{sT}, {PS_R}
    s_bfe_u32 s{sT+4}, s2, 0x20002
    s_mul_i32 s{sT+5}, s{sT+4}, {28*1024}
    s_add_u32 s{CO}, s{CO}, s{sT+5}
    s_lshl_b32 s{sT+5}, s{C0}, 10
    s_add_u32 s{CO}, s{CO}, s{sT+5}
    s_add_u32 s{CO}, s{CO}, {WS_PS}
    s_lshr_b32 s{FP}, s2, 2
    s_lshl_b32 s{FP}, s{FP}, 7
    s_add_u32 s{FP}, s{FP}, {WS_FLG + FL_S}
    v_min_u32 v{vFG}, 6, v{vLANE}
    v_lshl_add_u32 v{vFG}, v{vFG}, 2, 64
    v_and_b32 v{vXO}, 15, v{vLANE}
    v_lshlrev_b32 v{vFS}, 2, v{vXO}
    s_lshr_b32 s{sT+5}, s2, 2
    s_lshl_b32 s{sT+5}, s{sT+5}, 5
    v_add_u32 v{vXO}, s{sT+5}, v{vXO}
    v_mul_u32_u24 v{vXO}, 896, v{vXO}
    v_and_b32 v{vBO}, 48, v{vLANE}
    v_lshlrev_b32 v{vBO}, 1, v{vBO}
    v_add_u32 v{vXO}, v{vXO}, v{vBO}
    """
    for k in range(2):
        fs += f"""
        s_add_u32 s{sT}, s{C0}, {k}
        s_lshr_b32 s{sT+4}, s{sT}, 2
        s_lshl_b32 s{BO[k]}, s{sT+4}, 7
        s_and_b32 s{sT+4}, s{sT}, 1
        s_lshl_b32 s{sT+4}, s{sT+4}, 4
        s_add_u32 s{BO[k]}, s{BO[k]}, s{sT+4}
        s_bfe_u32 s{sT+4}, s{sT}, 0x10001
        s_mul_i32 s{XO[k]}, s{sT+4}, {16*896}
        s_add_u32 s{XO[k]}, s{XO[k]}, s{BO[k]}
        """
    fs = [(x.strip(), 1) for x in fs.split("\n") if x.strip()]
    fs.append((f"s_cmp_eq_u32 s{sWAVE}, 3\ns_cselect_b32 s{XO[1]}, {OOB}, s{XO[1]}\ns_cselect_b32 s{sT+4}, {OOB}, 0", 1))
    fs.append((f"v_add_u32 v{vC1}, s{sT+4}, v{vL16}", 1))
    fs.append((f"s_cmp_eq_u32 s{sWAVE}, 0\ns_cselect_b32 s{FP}, s{FP}, {OOB}", 1))
    fs = Chain(fs)
    J = Jobs()
    GL = 128
    for k in range(2):
        J.add("gl", None, f"buffer_load_dwordx4 {ar(GL+56+4*k,4)}, v{vXO}, {sr(sSA,4)}, s{XO[k]} offen", 3*64, 7*64)
        J.add("gl", None, f"buffer_load_dwordx4 {ar(GL+64+4*k,4)}, v{vBO}, {G}, s{BO[k]} offen", 3*64, 7*64)
    for n in range(7):
        for k in range(2):
            J.add("gl", f"s_add_u32 s{sJT}, s{CO}, {(16+n)*PS_SRC}", f"buffer_load_dwordx4 {ar(GL+n*8+4*k,4)}, v{(vL16, vC1)[k]}, {WS}, s{sJT} offen offset:{k*1024} sc1 ; @gl", 4*64, 7*64)
    for s in range(7):
        st = Stage(mf_post(s)); common_fill(st, dma=(s < 3), nd=(None, None, None, 16, 8, 0, 0)[s], last=(s == 6))
        if s == 0:
            c = xlane_ops("v_add_f32", vL[0], vT) + xlane_ops("v_add_f32", vL[1], vT) + [(f"v_rcp_f32 v{vRINV[0]}, v{vL[0]}", 0), (f"v_rcp_f32 v{vRINV[1]}, v{vL[1]}", 1)]
            c = Chain(c); c.fill(st); assert not c.items
            fs.fill(st)
        else:
            gaps = [17, 33, 49, 57]
            post_place(st, s-1, True, sPSS, gaps)
            if s == 2: st.put(60, "s_waitcnt lgkmcnt(0)")
            if s == 2: poll_issue(st, 41, vFG, FP, "gf")
            if s == 3: poll_check(st, 58, vFG, FP, "gf", False)
            J.place(st, s, 7, [1, 9, 13, 25, 29, 41, 45, 61])
            post_sched(st, s-1, True, gaps)
            fs.fill(st)
            if s == 1: assert not fs.items
        st.emit(a)
    assert not J.jobs
    post_flush(6, True, sPSS)
    stamp(7)
    a(f"s_mov_b32 s{sT+4}, 0x00003f80")
    a(f"s_mov_b32 s{sT+5}, 0x3f800000")
    a(f"s_mov_b32 s{sT+6}, 0xffff0000")
    a(f"s_mov_b32 s{sT+7}, {f2u(-1.4426950408889634):#x}")
    LB = 128; TB = 64
    XB, BB = TB+56, 52
    GA, SA_ = 12, 28
    a("s_waitcnt vmcnt(@since:gl)")
    for i in range(64): a(f"v_accvgpr_read_b32 v{TB+i}, a{GL+i}")
    for i in range(8): a(f"v_accvgpr_read_b32 v{BB+i}, a{GL+64+i}")
    def accum(base, acc, first):
        for i in range(8):
            r = base+i
            if first:
                a(f"v_lshlrev_b32 v{acc+2*i}, 16, v{r}"); a(f"v_and_b32 v{acc+2*i+1}, s{sT+6}, v{r}")
            else:
                a(f"v_dot2_f32_bf16 v{acc+2*i}, v{r}, s{sT+4}, v{acc+2*i}"); a(f"v_dot2_f32_bf16 v{acc+2*i+1}, v{r}, s{sT+5}, v{acc+2*i+1}")
    def rnd_pair(r0, r1, t):
        a(f"v_cvt_pk_bf16_f32 v{t}, v{r0}, v{r1}")
        a(f"v_lshlrev_b32 v{r0}, 16, v{t}")
        a(f"v_and_b32 v{r1}, s{sT+6}, v{t}")
    for n in range(7): accum(TB+n*8, GA, n == 0)
    a("s_waitcnt vmcnt(0)")
    a(f"buffer_store_dword v{vONE}, v{vFLG}, {WS}, s{sFSS} offen sc1")
    a("s_nop 0")
    T1, T2, T3 = 2, 3, 4
    for i in range(8):
        g0, g1 = GA+2*i, GA+2*i+1
        rnd_pair(g0, g1, T1)
        a(f"v_lshlrev_b32 v{T2}, 16, v{BB+i}")
        a(f"v_and_b32 v{T3}, s{sT+6}, v{BB+i}")
        a(f"v_add_f32 v{g0}, v{g0}, v{T2}")
        a(f"v_add_f32 v{g1}, v{g1}, v{T3}")
        rnd_pair(g0, g1, T1)
        a(f"v_mul_f32 v{T2}, s{sT+7}, v{g0}")
        a(f"v_mul_f32 v{T3}, s{sT+7}, v{g1}")
        a(f"v_exp_f32 v{T2}, v{T2}")
        a(f"v_exp_f32 v{T3}, v{T3}")
        a("s_nop 0")
        a(f"v_add_f32 v{T2}, 1.0, v{T2}")
        a(f"v_add_f32 v{T3}, 1.0, v{T3}")
        a(f"v_rcp_f32 v{T2}, v{T2}")
        a(f"v_rcp_f32 v{T3}, v{T3}")
        a("s_nop 0")
        a(f"v_mul_f32 v{g0}, v{g0}, v{T2}")
        a(f"v_mul_f32 v{g1}, v{g1}, v{T3}")
        rnd_pair(g0, g1, T1)
    a(f"s_mov_b32 s{sT+1}, 0")
    a(f"s_cmp_lg_u32 s{sWAVE}, 0")
    a("s_cbranch_scc1 L_fgo")
    a.label("L_fpoll")
    a(f"""
    buffer_load_dword v{vPOLL}, v{vFS}, {WS}, s{FP} offen sc1
    s_add_u32 s{sT+1}, s{sT+1}, 1
    s_waitcnt vmcnt(0)
    v_cmp_ne_u32 vcc, 1, v{vPOLL}
    s_cmp_lt_u32 s{sT+1}, 0x10000
    s_cbranch_vccz L_fgo
    s_sleep {OPT['fsleep']}
    s_cbranch_scc1 L_fpoll
    """)
    a.label("L_fgo")
    a("s_barrier")
    stamp(8)
    for n in range(16):
        a(f"s_add_u32 s{sT}, s{CO}, {n*PS_SRC}")
        a(f"buffer_load_dwordx4 {vr(LB+n*8,4)}, v{vL16}, {WS}, s{sT} offen sc1")
        a(f"buffer_load_dwordx4 {vr(LB+n*8+4,4)}, v{vC1}, {WS}, s{sT} offen offset:1024 sc1")
    for n in range(16):
        a(f"s_waitcnt vmcnt({2*(15-n)})")
        accum(LB+n*8, SA_, n == 0)
    a("s_nop 2")
    for i in range(8):
        g0, g1, s0, s1 = GA+2*i, GA+2*i+1, SA_+2*i, SA_+2*i+1
        rnd_pair(s0, s1, T1)
        a(f"v_mul_f32 v{g0}, v{g0}, v{s0}")
        a(f"v_mul_f32 v{g1}, v{g1}, v{s1}")
        rnd_pair(g0, g1, T1)
        a(f"v_lshlrev_b32 v{T2}, 16, v{XB+i}")
        a(f"v_and_b32 v{T3}, s{sT+6}, v{XB+i}")
        a(f"v_add_f32 v{g0}, v{g0}, v{T2}")
        a(f"v_add_f32 v{g1}, v{g1}, v{T3}")
        a(f"v_cvt_pk_bf16_f32 v{LB+i}, v{g0}, v{g1}")
        if i % 4 == 3: a(f"buffer_store_dwordx4 {vr(LB+i-3,4)}, v{vXO}, {sr(sSB,4)}, s{XO[i>>2]} offen")
    if stamps:
        a("s_waitcnt vmcnt(0)")
        stamp(9)
        a("s_waitcnt lgkmcnt(0)")
        if OPT["enc"] >= 0:
            a(f"""
            s_and_b32 s{sT+1}, s2, {OPT["encw"][0]}
            s_cmp_eq_u32 s{sT+1}, {OPT["encw"][1]}
            s_cbranch_scc0 L_end
            s_sub_u32 s{sT+1}, s{streg(OPT["enc"])}, s{streg(OPT["enc0"])}
            s_mul_i32 s{sT+1}, s{sT+1}, {OPT["enck"]}
            s_add_u32 s{sT+1}, s{sT+1}, s{streg(0)}
            s_add_u32 s{sT+1}, s{sT+1}, 10000
            s_mov_b32 s{sT+2}, 0
            L_enc:
            s_memrealtime s[{sT+4}:{sT+5}]
            s_add_u32 s{sT+2}, s{sT+2}, 1
            s_waitcnt lgkmcnt(0)
            s_cmp_gt_u32 s{sT+2}, 1000000
            s_cbranch_scc1 L_end
            s_sub_u32 s{sT+4}, s{sT+4}, s{sT+1}
            s_cmp_lt_i32 s{sT+4}, 0
            s_cbranch_scc1 L_enc
            s_endpgm
            """)
        for i in range(12): a(f"v_mov_b32 v{16+i}, s{streg(min(i,9))}")
        a(f"""
        s_lshl_b32 s{sT+1}, s2, 2
        s_add_u32 s{sT+1}, s{sT+1}, s{sWAVE}
        s_lshl_b32 s{sT+1}, s{sT+1}, 6
        s_add_u32 s{sT+1}, s{sT+1}, {WS_STAMP}
        buffer_store_dwordx4 v[16:19], v{vFLG}, {WS}, s{sT+1} offen
        buffer_store_dwordx4 v[20:23], v{vFLG}, {WS}, s{sT+1} offen offset:16
        buffer_store_dwordx4 v[24:27], v{vFLG}, {WS}, s{sT+1} offen offset:32
        s_sub_u32 s{sT+1}, s{sT+1}, {WS_STAMP}
        s_lshl_b32 s{sT+1}, s{sT+1}, 3
        s_add_u32 s{sT+1}, s{sT+1}, {WS_STAMP + 0x100000}
        v_lshlrev_b32 v2, 2, v{vLANE}
        buffer_store_dword v0, v2, {WS}, s{sT+1} offen
        buffer_store_dword v{vKV}, v2, {WS}, s{sT+1} offen offset:256
        """)
    a.label("L_end")
    a("s_endpgm")
    for typ in ("K", "V"):
        for nm, ok, ldi, red, reg in (("zwait", "zok", f"buffer_load_dword v{vPOLL}, v{vL4}, {sr(sDBG,4)}, 0 offen sc1", "", vPOLL),
                ("prepwait", "prepok", f"buffer_load_dwordx4 {vr(PV,4)}, v{vL16}, {WS}, s{gIT} offen sc1",
                 f"v_and_b32 v{PV}, v{PV}, v{PV+1}\nv_and_b32 v{PV+2}, v{PV+2}, v{PV+3}\nv_and_b32 v{PV}, v{PV}, v{PV+2}", PV)):
            a.label(f"L_{nm}{typ}")
            a(f"s_mov_b32 s{sT+4}, 0")
            a.label(f"L_{nm}2{typ}")
            a(f"""
            s_sleep 4
            {ldi}
            s_add_u32 s{sT+4}, s{sT+4}, 1
            s_waitcnt vmcnt(0)
            {red}
            v_cmp_ne_u32 vcc, s{sT+1}, v{reg}
            s_cmp_ge_u32 s{sT+4}, 0x10000
            s_cbranch_scc1 L_{ok}{typ}
            s_nop 2
            s_cbranch_vccnz L_{nm}2{typ}
            s_branch L_{ok}{typ}
            """)
    for (tag, voff, soff, lane0) in POLLS:
        a.label(f"L_pw_{tag}")
        a(f"s_mov_b32 s{sT+1}, 0")
        a.label(f"L_pw2_{tag}")
        a(f"""
        buffer_load_dword v{vPOLL}, v{voff}, {WS}, s{soff} offen sc1
        s_add_u32 s{sT+1}, s{sT+1}, 1
        s_waitcnt vmcnt(0)
        v_cmp_ne_u32 s[{sT+4}:{sT+5}], 1, v{vPOLL}
        s_cmp_ge_u32 s{sT+1}, 0x10000
        s_cbranch_scc1 L_po_{tag}
        s_sleep {OPT['psleep']}
        """)
        if lane0 is True: a(f"s_bitcmp1_b32 s{sT+4}, 0")
        else: a(f"s_cmp_lg_u64 s[{sT+4}:{sT+5}], 0")
        a(f"s_cbranch_scc1 L_pw2_{tag}")
        a(f"s_branch L_po_{tag}")
    for (lab, sub, back) in STUBS:
        a.label(lab)
        a(f"s_call_b64 s[{sRET}:{sRET+1}], {sub}")
        a(f"s_branch {back}")
    for b in range(2):
        a.label(f"L_mask{b}")
        a("s_nop 7")
        a(f"s_cmp_eq_u32 s{sN}, s{sND}")
        a(f"s_cbranch_scc0 L_maskall{b}")
        for r in range(4):
            a(f"v_cndmask_b32 v{S(b,0,0)+r}, v{S(b,0,0)+r}, v{vBIG}, s[{sMASK+2*r}:{sMASK+2*r+1}]")
            a(f"v_cndmask_b32 v{S(b,1,1)+r}, v{S(b,1,1)+r}, v{vBIG}, s[{sMASK+2*r}:{sMASK+2*r+1}]")
            a(f"v_mov_b32 v{S(b,1,0)+r}, v{vBIG}")
        a(f"s_setpc_b64 s[{sRET}:{sRET+1}]")
        a.label(f"L_maskall{b}")
        for i in range(16): a(f"v_mov_b32 v{S(b,0,0)+i}, v{vBIG}")
        a(f"s_setpc_b64 s[{sRET}:{sRET+1}]")
    a.label("L_fchk")
    hi, lo = f2u(2.0**OPT["thr"]), f2u(2.0**-OPT["thr"])
    a(f"s_add_u32 s{sT+1}, s{sND}, 1")
    a(f"s_cmp_gt_u32 s{sN}, s{sT+1}")
    a("s_cbranch_scc1 L_fret")
    for qt in range(2):
        a(f"v_mov_b32 v{vT+8+qt}, v{vSUM[qt][0]}")
        xlane(a, "v_add_f32", vT+8+qt, vT)
        a(f"v_subrev_u32 v{vT+8+qt}, {lo:#x}, v{vT+8+qt}")
    a(f"v_max_u32 v{vT+8}, v{vT+8}, v{vT+9}")
    a(f"v_cmp_lt_u32 vcc, {hi-lo:#x}, v{vT+8}")
    a("s_nop 4")
    a("s_cbranch_vccnz L_rare0")
    a.label("L_fret")
    a(f"s_setpc_b64 s[{sRET}:{sRET+1}]")
    for b in range(2):
        a.label(f"L_rare{b}")
        a("s_nop 7")
        D = [vT+8, vT+9]; F = [vT+10, vT+11]
        for qt in range(2):
            r0, r1 = S(b,0,qt), S(b,1,qt)
            a(f"v_max3_f32 v{D[qt]}, v{r0}, v{r0+1}, v{r0+2}")
            a(f"v_max3_f32 v{D[qt]}, v{D[qt]}, v{r0+3}, v{r1}")
            a(f"v_max3_f32 v{D[qt]}, v{D[qt]}, v{r1+1}, v{r1+2}")
            a(f"v_max_f32 v{D[qt]}, v{D[qt]}, v{r1+3}")
            xlane(a, "v_max_f32", D[qt], vT)
            a(f"v_max_f32 v{D[qt]}, s{sCLAMP}, v{D[qt]}")
            a(f"v_max_f32 v{F[qt]}, 0, v{D[qt]}")
            a(f"v_exp_f32 v{F[qt]}, -v{F[qt]}")
            for i in range(4): a(f"v_sub_f32 v{NEGM(qt)+i}, v{NEGM(qt)+i}, v{D[qt]}")
            for bb in range(2):
                for kt in range(2):
                    for i in range(4): a(f"v_sub_f32 v{S(bb,kt,qt)+i}, v{S(bb,kt,qt)+i}, v{D[qt]}")
            a(f"v_mul_f32 v{vL[qt]}, v{F[qt]}, v{vL[qt]}")
        for o in sm_ops(b): a(o)
        a(f"s_cmp_eq_u32 s{sFIRST}, 1")
        a(f"s_cbranch_scc1 L_rare_ret{b}")
        for dt in range(16):
            for qt in range(2):
                for i in range(4): a(f"v_mul_f32 v{O(dt,qt)+i}, v{F[qt]}, v{O(dt,qt)+i}")
        a.label(f"L_rare_ret{b}")
        a(f"s_cmp_lg_u32 s{sCNT}, s{sEV}")
        a("s_nop 0")
        a(f"s_setpc_b64 s[{sRET}:{sRET+1}]")
    a.label("L_slowcomb")
    a("s_nop 7")
    wA, wB = [vT+8, vT+9], [vT+10, vT+11]
    for qt in range(2):
        a(f"""
        v_min_f32 v{vT+6}, v{NEGM(qt)}, v{vSTB+qt}
        v_sub_f32 v{wA[qt]}, v{vT+6}, v{NEGM(qt)}
        v_sub_f32 v{wB[qt]}, v{vT+6}, v{vSTB+qt}
        v_exp_f32 v{wA[qt]}, v{wA[qt]}
        v_exp_f32 v{wB[qt]}, v{wB[qt]}
        s_nop 0
        v_mul_f32 v{vL[qt]}, v{wA[qt]}, v{vL[qt]}
        v_mul_f32 v{vSTB+2+qt}, v{wB[qt]}, v{vSTB+2+qt}
        """)
    for dt in range(16):
        for qt in range(2):
            for i in range(4): a(f"v_mul_f32 v{O(dt,qt)+i}, v{wA[qt]}, v{O(dt,qt)+i}")
    for i in range(64):
        qt = (i >> 2) & 1
        a(f"""
        v_accvgpr_read_b32 v{vT}, a{128+i}
        v_lshlrev_b32 v{vT+1}, 16, v{vT}
        v_and_b32 v{vT}, 0xffff0000, v{vT}
        v_mul_f32 v{vT+1}, v{wB[qt]}, v{vT+1}
        v_mul_f32 v{vT}, v{wB[qt]}, v{vT}
        v_cvt_pk_bf16_f32 v{vT}, v{vT+1}, v{vT}
        v_accvgpr_write_b32 a{128+i}, v{vT}
        """)
    a("s_nop 1")
    a("s_branch L_comb")
    a.label("L_codeend")
    lines = []
    for l in a.lines: lines += l.split("\n")
    ghost = [l.startswith("@ghost ") for l in lines]
    lines = [l[7:] if g else l for l, g in zip(lines, ghost)]
    lines = resolve_vm(lines)
    lines = [l.replace("@@buffer", "buffer") for l, g in zip(lines, ghost) if not g]
    errs = check_hazards(lines) + check_scc(lines)
    for e in errs[:30]: print("HAZARD", e, file=sys.stderr)
    lines = [re.sub(r"\s*; @\w+", "", l) for l in lines]
    lines = [l.strip() for l in lines if l.strip()]
    i, j = lines.index("L_gemmV:"), lines.index("L_P1A:")
    k = lines.index("L_zwaitV:"); k2 = lines.index("s_branch L_prepokV") + 1
    assert lines[i-1] == "s_branch L_P1A"
    lines = [".p2align 8"] + lines[i:j] + lines[k:k2] + lines[:i-1] + lines[j:k] + lines[k2:]
    lines = compact(lines)
    return "\n".join(lines) + "\n", kernel_desc(name, 512, 256)

if __name__ == "__main__":
    import ast
    for x in sys.argv[2:]:
        k, v = x.split("=")
        OPT[k] = ast.literal_eval(v)
    NAME = "recurrent_scan__compressed_kv_cla__dense_activation_squared_relu__prompt_kernel"
    body, desc = gen(NAME)
    ref = open("recurrent_scan__compressed_kv_cla__dense_activation_squared_relu__prompt.s.ref").read().split("\n")
    hdr = [l for l in ref if l.startswith(";") and "launch" not in l and "grid=" not in l]
    hdr += ["; @launch grid=(256,1,1) block=(256,1,1) lds=163840", '.amdgcn_target "amdgcn-amd-amdhsa--gfx950"', ".text"]
    txt = "\n".join(hdr) + "\n" + body + '.section .rodata,"a"\n.p2align 6\n' + desc
    open(sys.argv[1], "w").write(txt)
    print(len(txt), "bytes", file=sys.stderr)
```

```python
import sys
from fw import *
from layout2 import *

OPT = dict(swap=0, n0=[34, 34], enc0=0, enck=10, encw=[0, 0], enc=-1, ntA="", ntB="", ntS=" nt", chq=1, chp=1, cyc=0, npro=6, gcap=[4, 4, 3], dg2=8, xpos=3, rotm=4, rot=4, sync=[6, 10, 12, 15, 20, 22], xstep=20, wbl2=0, pfk=0, pfd=4, pfo=[0], pfn=2, smin=0, voff=0, dbgside=0, tlb=0, tlbm=0, tlbs=16, flit=9, npeel=7, slt=[100, 260, 780], slstep=16, sld=180, map2=False, kvb0=256, kvstepb=16, psleep=4, prep=1, pst=False, cpf=True, fine=False, touch=False, sc1ld=" sc1", stamps=False, early=[5, 13, 21, 29], late=[37, 45, 53, 61], cap=7, capb=8, capq=9, capn=12, kvstep=9, a15=38, fsleep=2, fdelay=96, qstep=7, wideloop=False, thr=40, kvsc=" sc1", sidesc=" sc1")

vLANE, vDMA, vTE, vTO, vL16, vRD, vPOLL, vFLG, vONE, vL4, vKV = range(1, 12)
DA = [12, 13, 14, 15]; DB = [16, 17, 18, 19]; RA = [20, 21]; RB = [22, 23, 24, 25]
vSW, vSF, vSX, vG1 = 26, 27, 28, 29
GT = 30
vT = 12
BIAS = 12
O0 = 128
def O(dt, qt): return O0 + (dt*2+qt)*4
def S(b, kt, qt): return 64 + b*16 + (kt*2+qt)*4
def P(b, qt): return 96 + b*8 + qt*4
def NEGM(qt): return 112 + qt*4
vL = [120, 121]
vSUM = [[122, 123], [124, 125]]
vBIG = 126
vSTAT = 44
vSEL = 48
vRINV = [54, 55]
vSTB = 56
def accreg(pos): return vr(48+4*pos, 4) if pos < 52 else ar(208+4*(pos-52), 4)
NE = 6
def PK(c): return 48+4*c if c < 20 else (48+4*(c-20) if c < 20+NE else 48+4*(20+c))
def Q(qb, qt, u): return qb + (qt*8+u)*4
def FR(f): return 64 + (f % 16)*4
def X(qt, u): return 128 + (u*2+qt)*4
def FA(b, m): return (64 if b == 0 else 0) + m*4
def FB(b, n): return (64 if b == 0 else 0) + 32 + n*4
WOL = 192
SLD = 128

sWS, sSA, sSB, sG, sDBG = 4, 8, 12, 16, 20
_n = [24]
def sal(n=1, al=1):
    _n[0] = (_n[0] + al - 1)//al*al
    r = _n[0]; _n[0] += n; return r
sWAVE, sHEAD, sJ, sQI, sWHICH = [sal() for _ in range(5)]
gA0, gA1, gB0, gB1, gMA, gMB, gIT, gD, gCNT, gFL = [sal() for _ in range(10)]
sTAU, sM0, sOFFA, sOFFB, sRDD, sRDS, sXOFF, sXOF2, sN, sND = gA0, gA1, gB0, gB1, gD, gCNT, sal(), sal(), sal(), sal()
sCNT, sEV, sCLAMP, sFIRST = sal(), sal(), sal(), sal()
sRET = sal(2, 2)
sMASK = sal(8, 4)
sTYPE, sU1, sU2, sW0 = sal(), sal(), sal(), sal()
sKVB, sKVI = sal(), sal()
sQST, sPT, sPSG, sPSS = sal(), sal(), sal(), sal()
sFKV, sFKVP, sFQ, sFSG, sFSS = [sal() for _ in range(5)]
sT = sal(8, 4)
sLN = sal(2, 2)
sFS = sal(2, 2); sW4K = 3
sPF = sRET; sPD = sT+5; sEXP = gFL
sSTAMP = sal(0, 2)
NSTAMP = (102 - sSTAMP)//2
print("sgpr used", sSTAMP, "stamps", NSTAMP, file=sys.stderr)
WS = sr(sWS, 4)

STUBS = []
def ld(): return OPT["sc1ld"]
def FT(): return "s_memtime" if OPT["cyc"] else "s_memrealtime"

XG = [1, 9, 17, 25, 33, 41, 49, 57]
XG4 = list(range(1, 64, 4))
def common_fill(st, dma=True, nd=None, last=False, novm=False, rdl=False):
    if nd is None: nd = 16 + len(OPT["early"]) + sum(1 for g in OPT["late"] if g < 38)
    for G in range(8):
        g0 = G*8
        Gn = (G+3) % 8
        for i in range(4):
            f = Gn*4+i
            if not (last and G > 4): st.put(g0+2*i, f"ds_read_b128 {ar(FR(f),4)}, v{vRD} offset:{f*1024}")
        if last and G >= 4:
            if G < 7: st.put(g0+6, f"s_waitcnt lgkmcnt({(7, 4, 0)[G-4]})")
        elif G == 4:
            st.put(g0+6, "s_waitcnt lgkmcnt(7)" if novm else f"s_waitcnt vmcnt(@dma:{nd}) lgkmcnt(7)")
            st.put(g0+7, "s_barrier")
            st.put(g0+7, f"v_add_u32 v{vRD}, s{sRDD}, v{vRD}")
        else:
            st.put(g0+6, "s_waitcnt lgkmcnt(7)")
    for i, g in enumerate(OPT["early"] if dma else []):
        st.put(g, f"buffer_load_dwordx4 v{vDMA}, {WS}, s{sOFFB} offen offset:{i*1024}{ld()} lds")
    if dma: st.put(31, f"v_readlane_b32 s{sOFFA}, v{vTO}, s{sTAU}")
    st.put(31, f"s_add_u32 m0, s{sM0}, 16384")
    st.put(34, f"s_add_u32 s{sM0}, s{sM0}, s{sRDD}")
    st.put(36, f"s_cmp_ge_u32 s{sM0}, 131072")
    st.put(38, f"s_cselect_b32 s{sRDD}, s{gMA}, s{gMB}")
    st.put(44, f"s_add_u32 s{sTAU}, s{sTAU}, 1")
    for i, g in enumerate(OPT["late"] if dma else []):
        st.put(g, f"buffer_load_dwordx4 v{vDMA}, {WS}, s{sOFFA} offen offset:{i*1024}{ld()} lds")
    if dma or rdl: st.put(55, f"v_readlane_b32 s{sOFFB}, v{vTE}, s{sTAU}")
    st.put(63, f"s_mov_b32 m0, s{sM0}")
    st.scc_busy |= {36, 37}
    if OPT["fine"]:
        st.put(4, f"{FT()} s[{sFS}:{sFS+1}]")
        st.put(6, f"v_mov_b32_dpp v{vKV}, v{vKV} wave_shr:1 row_mask:0xf bank_mask:0xf")
        st.put(62, f"v_writelane_b32 v{vKV}, s{sFS}, 0")

class Jobs:
    def __init__(self): self.jobs = []; self.at = {}
    def add(self, key, pre, ins, early, late): self.jobs.append((late, len(self.jobs), early, pre, ins, key))
    def place(self, st, s, cap=6, grid=None):
        slots = [g for g in (grid or XG) if not st.hasD(g) and st.free(g) == 2 and st.nS(g) == 0]
        n = 0
        avail = len([j for j in self.jobs if j[2] <= s*64+63])
        k = min(cap, avail, len(slots))
        use = [slots[(i*len(slots))//k] for i in range(k)] if k else []
        for g in slots:
            t = s*64+g
            c = sorted(j for j in self.jobs if j[2] <= t)
            if not c: continue
            j = c[0]
            nxt = [x for x in slots if x > g]
            urgent = j[0] < (s*64+nxt[0] if nxt else (s+1)*64+1)
            if not (urgent or (n < cap and (g in use or len(nxt) < k-n))): continue
            assert t <= j[0] + (24 if j[5][0] == "x" else 0) or j[5] in ("qs", "kvf", "qf") or (j[5] == "kv" and j[2] >= 64), ("job late", j, t)
            if j[3]:
                assert g-1 not in st.scc_busy
                st.put(g-1, j[3])
            st.put(g, j[4]); self.jobs.remove(j); self.at[j[5]] = t; n += 1

def mf_pv(half, pb, czero=False):
    return [f"{MF} {vr(O(dt,qt),4)}, {ar(FR(half*16+dt),4)}, {vr(P(pb,qt),4)}, {'0' if czero else vr(O(dt,qt),4)}"
            for dt in range(16) for qt in range(2)]
def mf_qk(half, sb, qb, czero=False):
    out = []
    for kt in range(2):
        seq = [(u, qt) for u in range(8) for qt in range(2)]
        if OPT["chq"]: seq = [(g*4+u, qt) for g in range(2) for qt in ((0, 1), (1, 0))[g] for u in range(4)]
        for u, qt in seq:
            c = ('0' if czero else vr(NEGM(qt),4)) if u == 0 else vr(S(sb,kt,qt),4)
            out.append(f"{MF} {vr(S(sb,kt,qt),4)}, {ar(FR(half*16+kt*8+u),4)}, {ar(Q(qb,qt,u),4)}, {c}")
    return out
def mf_proj(s, init=None):
    out = []
    for nt in range(16):
        seq = [(0, 0, 1), (1, 0, 0), (1, 1, 1), (0, 1, 0)] if OPT["chp"] else [(0, 0, 1), (0, 1, 1), (1, 0, 0), (1, 1, 0)]
        for uu, qt, first in seq:
            c = vr(O(nt,qt),4)
            if first and init == "zero": c = "0"
            if first and init == "bias": c = vr(O(nt,1),4)
            out.append(f"{MF} {vr(O(nt,qt),4)}, {ar(FR(2*nt+uu),4)}, {ar(X(qt,2*s+uu),4)}, {c}")
    return out
def PA(b, nt, qt): return 64 + (nt*2+qt)*4 if b == 0 else O(2*nt+1, qt)
def mf_post(s):
    out = []
    for f in range(32):
        u, nt = f >> 2, f & 3
        for qt in range(2):
            d = vr(PA(s & 1, nt, qt), 4)
            out.append(f"{MF} {d}, {ar(FR(f),4)}, {vr(O(2*u,qt),4)}, {'0' if u == 0 else d}")
    return out

def sm_ops(b):
    ops = []
    seq = [(kt, qt, rp) for kt in range(2) for qt in range(2) for rp in range(2)]
    pend = []
    for i, (kt, qt, rp) in enumerate(seq):
        t0 = vT + (i % 4)*2
        s0 = S(b,kt,qt) + rp*2
        ops.append(f"v_exp_f32 v{t0}, v{s0}")
        ops += pend[:1]
        ops.append(f"v_exp_f32 v{t0+1}, v{s0+1}")
        ops += pend[1:]
        acc = vSUM[qt][rp]
        if kt == 0: pend = [f"v_add_f32 v{acc}, v{t0}, v{t0+1}"]
        else: pend = [f"v_add_f32 v{acc}, v{acc}, v{t0}", f"v_add_f32 v{acc}, v{acc}, v{t0+1}"]
        pend.append(f"v_cvt_pk_bf16_f32 v{P(b,qt)+kt*2+rp}, v{t0}, v{t0+1}")
    ops.append("s_nop 0")
    ops += pend
    ops += [f"v_add_f32 v{vSUM[0][0]}, v{vSUM[0][0]}, v{vSUM[0][1]}", f"v_add_f32 v{vSUM[1][0]}, v{vSUM[1][0]}, v{vSUM[1][1]}"]
    return ops

def place_sm(st, b, g0, g_end, tag, ladd=True, first=False):
    st.put(g0-1, f"s_cmp_ge_u32 s{sN}, s{sND}")
    st.put(g0, f"s_cbranch_scc1 L_domask_{tag}")
    st.put(g0, f"L_nomask_{tag}:")
    STUBS.append((f"L_domask_{tag}", f"L_mask{b}", f"L_nomask_{tag}"))
    st.put(g0+2 if g0 == 0 else 42, f"s_add_u32 s{sN}, s{sN}, 1")
    st.scc_busy |= {g0-1}
    def add(ins, deps=(), early=0): return st.add(ins, deps, max(early, g0), g_end)
    la = [add(f"v_add_f32 v{vL[q]}, v{vL[q]}, v{vSUM[q][0]}") for q in range(2)] if ladd else []
    seq = [(kt, qt, rp) for kt in range(2) for qt in range(2) for rp in range(2)]
    users = {}; lastacc = {}; NT = 6
    for i, (kt, qt, rp) in enumerate(seq):
        t0 = vT + (i % NT)*2
        s0 = S(b,kt,qt) + rp*2
        war = users.get(i - NT, [])
        e = g0 + (1 if kt == 0 else 3)
        e0 = add(f"v_exp_f32 v{t0}, v{s0}", war, e)
        e1 = add(f"v_exp_f32 v{t0+1}, v{s0+1}", war, e)
        acc = vSUM[qt][rp]
        if kt == 0:
            a0 = add(f"v_add_f32 v{acc}, v{t0}, v{t0+1}", [e0, e1] + la)
            u = [a0]; lastacc[(qt,rp)] = a0
        else:
            a0 = add(f"v_add_f32 v{acc}, v{acc}, v{t0}", [e0, lastacc[(qt,rp)]])
            a1 = add(f"v_add_f32 v{acc}, v{acc}, v{t0+1}", [e1, a0])
            u = [a0, a1]; lastacc[(qt,rp)] = a1
        c = st.add(f"v_cvt_pk_bf16_f32 v{P(b,qt)+kt*2+rp}, v{t0}, v{t0+1}", [e0, e1], g0, g_end-1)
        users[i] = u + [c]
    f0 = add(f"v_add_f32 v{vSUM[0][0]}, v{vSUM[0][0]}, v{vSUM[0][1]}", [lastacc[(0,0)], lastacc[(0,1)]])
    f1 = add(f"v_add_f32 v{vSUM[1][0]}, v{vSUM[1][0]}, v{vSUM[1][1]}", [lastacc[(1,0)], lastacc[(1,1)]])
    hi = f2u(2.0**OPT["thr"])
    if not first:
        mx = add(f"v_max_f32 v{vT+14}, v{vSUM[0][0]}, v{vSUM[1][0]}", [f0, f1])
        add(f"v_cmp_nge_f32 vcc, {hi:#x}, v{vT+14}", [mx])
    else:
        lo = f2u(2.0**-OPT["thr"])
        m0 = add(f"v_subrev_u32 v{vT+14}, {lo:#x}, v{vSUM[0][0]}", [f0])
        m1 = add(f"v_subrev_u32 v{vT+15}, {lo:#x}, v{vSUM[1][0]}", [f1])
        mx = add(f"v_max_u32 v{vT+14}, v{vT+14}, v{vT+15}", [m0, m1])
        add(f"v_cmp_lt_u32 vcc, {hi-lo:#x}, v{vT+14}", [mx])

def xlane_ops(op, v, t1):
    return [(f"v_mov_b32 v{t1}, v{v}", 0), (f"v_permlane16_swap_b32 v{v}, v{t1}", 2), (f"{op} v{v}, v{v}, v{t1}", 1),
            (f"v_mov_b32 v{t1}, v{v}", 0), (f"v_permlane32_swap_b32 v{v}, v{t1}", 2), (f"{op} v{v}, v{v}, v{t1}", 1)]
def xlane(a, op, v, t1):
    for ins, d in xlane_ops(op, v, t1):
        if d: a(f"s_nop {d-1}")
        a(ins)

class Chain:
    def __init__(self, items, grid=None): self.items = list(items); self.lastg = -10; self.grid = grid; self.base = 0; self.lastD = -999; self.minD = 0
    def fill(self, st, g0=0, g1=63):
        g = g0; lastg = -10
        while self.items and g <= g1:
            ins, dist = self.items[0][:2]
            early = self.items[0][2] if len(self.items[0]) > 2 else 0
            c = cls(ins)
            ok = g - lastg >= dist and g >= early and not st.hasD(g)
            if ok and g == lastg and not (c in "VE" and cls(self.last) in "VM"): ok = False
            if ok:
                if c == "S": ok = (st.nS(g) == 0 or st.free(g) >= 1) and not (g in st.scc_busy and not ins.startswith(("s_mov", "s_mul", "s_wait", "s_nop")))
                elif c == "D": ok = st.free(g) == 2 and st.nS(g) == 0 and (self.grid is None or g in self.grid) and self.base + g - self.lastD >= self.minD
                else: ok = st.free(g) >= COST[c]
            if ok:
                st.put(g, ins); self.items.pop(0); lastg = g; self.last = ins
                if c == "D": self.lastD = self.base + g
            else:
                g += 1
    def flush(self, a):
        for it in self.items:
            if it[1]: a(f"s_nop {it[1]-1}")
            a(it[0])
        self.items = []

def gen(name="mega_kernel"):
    a = Asm()
    STUBS.clear()
    stamps = OPT["stamps"]
    nst = [0]
    def stamp_ins():
        i = nst[0]; nst[0] += 1
        assert i < NSTAMP
        return f"s_memrealtime s[{sSTAMP+2*i}:{sSTAMP+2*i+1}]"
    def streg(i): return sSTAMP+2*i if i < NSTAMP else sMASK+2*(i-NSTAMP)
    def stamp(i, p=False):
        if OPT["pst"] and 2 <= i <= 6 and not p: return
        if p and not OPT["pst"]: return
        if stamps: a(f"s_memrealtime s[{streg(i)}:{streg(i)+1}]")
    def merge(lbl, align=False):
        if align: a.raw(".p2align 6")
        a.label(lbl); a.comment("@merge")
    strideA, strideB = 2048, 8192
    a.raw(kernel_header(name))
    a("s_cmp_ge_u32 s2, 256")
    a("s_cbranch_scc0 L_go")
    a("s_endpgm")
    a.label("L_go")
    stamp(0)
    sW12, sX = sMASK, sMASK+4
    gHEAD, gMT, gWM, gWN = sCNT, sEV, sCLAMP, sFIRST
    a(f"""
    s_load_dwordx2 s[{sSA}:{sSA+1}], s[0:1], 8
    s_load_dwordx4 s[{sT}:{sT+3}], s[0:1], 24
    s_load_dwordx2 s[{sWS}:{sWS+1}], s[0:1], 104
    s_load_dwordx2 s[{sX}:{sX+1}], s[0:1], 0
    s_load_dwordx2 s[{sDBG}:{sDBG+1}], s[0:1], 96
    s_load_dwordx2 s[{sW12}:{sW12+1}], s[0:1], 56
    s_load_dwordx2 s[{sRET}:{sRET+1}], s[0:1], 72
    s_load_dwordx2 s[{sT+6}:{sT+7}], s[0:1], 16
    v_and_b32 v{vLANE}, 63, v0
    v_lshrrev_b32 v{GT}, 6, v0
    v_lshlrev_b32 v{vL16}, 4, v{vLANE}
    v_readfirstlane_b32 s{sWAVE}, v{GT}
    s_and_b32 s3, s2, 7
    s_lshl_b32 s3, s3, 1
    s_lshr_b32 s{sJ}, s2, 4
    s_bfe_u32 s{sWHICH}, s2, 0x10003
    s_add_u32 s{sHEAD}, s3, s{sWHICH}
    s_and_b32 s{gHEAD}, s{sJ}, 1
    s_add_u32 s{gHEAD}, s{gHEAD}, s3
    s_lshr_b32 s{gWM}, s2, 1
    s_xor_b32 s{gMT}, s2, s{gWM}
    s_bfe_u32 s{gMT}, s{gMT}, 0x10005
    s_lshl_b32 s{gMT}, s{gMT}, 2
    s_lshr_b32 s{gWM}, s2, 6
    s_xor_b32 s{gWM}, s{gWM}, 2
    s_or_b32 s{gMT}, s{gMT}, s{gWM}
    """)
    if OPT["map2"]:
        a(f"""
        s_bfe_u32 s{gHEAD}, s2, 0x10005
        s_add_u32 s{gHEAD}, s{gHEAD}, s3
        s_lshl_b32 s{gMT}, s{sWHICH}, 2
        s_bfe_u32 s{gWM}, s2, 0x10004
        s_or_b32 s{gMT}, s{gMT}, s{gWM}
        s_bfe_u32 s{gWM}, s2, 0x10007
        s_xor_b32 s{gWM}, s{gWM}, 1
        s_lshl_b32 s{gWM}, s{gWM}, 1
        s_or_b32 s{gMT}, s{gMT}, s{gWM}
        s_bfe_u32 s{sWHICH}, s2, 0x10006
        """)
    if OPT["swap"]:
        a(f"""
        s_cmp_lt_u32 s{sJ}, 8
        s_cselect_b32 s{gWM}, {2*OPT["swap"]}, 0
        s_xor_b32 s{sHEAD}, s{sHEAD}, s{gWM}
        """)
    a(f"""
    s_and_b32 s{gWM}, s{sWAVE}, 1
    s_lshr_b32 s{gWN}, s{sWAVE}, 1
    """)
    t2, t3, t4, t5, t6 = GT, GT+1, GT+2, GT+3, GT+4
    a(f"""
    v_lshrrev_b32 v{t2}, 3, v{vLANE}
    s_lshl_b32 s{gA0}, s{gMT}, 8
    s_lshl_b32 s{gA1}, s{sWAVE}, 6
    s_add_u32 s{gA0}, s{gA0}, s{gA1}
    v_add_u32 v{t2}, s{gA0}, v{t2}
    v_lshlrev_b32 v{t2}, 11, v{t2}
    v_and_b32 v{t3}, 7, v{vLANE}
    v_lshrrev_b32 v{t4}, 4, v{vLANE}
    v_xor_b32 v{t5}, v{t3}, v{t4}
    v_lshl_add_u32 v{t5}, v{t5}, 4, v{t2}
    v_xor_b32 v{t6}, 4, v{t4}
    v_xor_b32 v{t6}, v{t3}, v{t6}
    v_lshl_add_u32 v{t6}, v{t6}, 4, v{t2}
    """)
    for jl in range(4):
        a(f"v_add_u32 v{DA[jl]}, {4096 + jl*8*strideA - jl*1024}, v{t5 if (jl & 1) == 0 else t6}")
    a(f"""
    v_bfe_u32 v{t2}, v{vLANE}, 3, 2
    v_lshlrev_b32 v{t3}, 13, v{t2}
    v_lshrrev_b32 v{t4}, 5, v{vLANE}
    v_lshl_add_u32 v{t3}, v{t4}, 7, v{t3}
    v_lshrrev_b32 v{t4}, 1, v{t2}
    v_lshlrev_b32 v{t4}, 2, v{t4}
    v_and_b32 v{t5}, 7, v{vLANE}
    v_xor_b32 v{t4}, v{t4}, v{t5}
    s_lshl_b32 s{gA0}, s{gWM}, 1
    v_xor_b32 v{t4}, s{gA0}, v{t4}
    v_lshl_add_u32 v{t3}, v{t4}, 4, v{t3}
    s_lshl_b32 s{gA0}, s{gHEAD}, 9
    s_lshl_b32 s{gA1}, s{sWAVE}, 16
    s_add_u32 s{gA0}, s{gA0}, s{gA1}
    v_add_u32 v{t3}, s{gA0}, v{t3}
    """)
    for jl in range(4):
        a(f"v_add_u32 v{DB[jl]}, {4096 + (jl>>1)*4*strideB + (jl&1)*256 - jl*1024}, v{t3}")
    a(f"""
    s_mul_i32 s{gA1}, s3, {OPT["rot"]*64}
    s_mul_i32 s{gA0}, s{gMT}, {OPT["rotm"]*128}
    s_add_u32 s{gA1}, s{gA1}, s{gA0}
    s_and_b32 s{gA1}, s{gA1}, 0x7ff
    s_lshl_b32 s{gMA}, s{sWAVE}, 13
    s_lshl_b32 s{gMB}, s{sWAVE}, 12
    s_mov_b32 s{sSA+2}, {4194304+4096}
    s_mov_b32 s{sSA+3}, 0x20000
    s_mov_b32 s{sSB+2}, {8388608+4096}
    s_mov_b32 s{sSB+3}, 0x20000
    @PST2
    s_waitcnt lgkmcnt(0)
    @PST3
    s_sub_u32 s{sSA}, s{sSA}, 4096
    s_subb_u32 s{sSA+1}, s{sSA+1}, 0
    s_cmp_eq_u32 s{sWHICH}, 0
    s_cselect_b32 s{sSB}, s{sT}, s{sT+2}
    s_cselect_b32 s{sSB+1}, s{sT+1}, s{sT+3}
    s_sub_u32 s{sSB}, s{sSB}, 4096
    s_subb_u32 s{sSB+1}, s{sSB+1}, 0
    """)
    for i in (2, 3):
        k = [n for n, l in enumerate(a.lines) if f"@PST{i}" in l][0]
        a.lines[k] = f"s_memrealtime s[{streg(i)}:{streg(i)+1}]" if OPT["pst"] else ""
    MA, MB = 0x107ff, 0x7fffff
    gRA, gRB, gTS = gA1, gCNT, (gA0, sT)
    a(f"s_lshl_b32 s{gRB}, s{gRA}, 12")
    def dma_group(kind, par):
        t = gTS[par & 1]
        if kind[0] == "A":
            _, it, h = kind
            m0 = f"s_add_u32 m0, s{gMA}, {(131072, 0, 65536)[it % 3] + h*4096}"; regs, srd = DA, sSA
            so = f"s_add_u32 s{t}, s{gRA}, {h*32*strideA + it*128}\ns_and_b32 s{t}, s{t}, {MA}"
        elif kind[0] == "B":
            _, it, h = kind
            m0 = f"s_add_u32 m0, s{gMB}, {32768 + (it & 1)*65536 + h*16384}"; regs, srd = DB, sSB
            so = f"s_add_u32 s{t}, s{gRB}, {(it*64 + h*32)*strideB}\ns_and_b32 s{t}, s{t}, {MB}"
        else:
            y = kind[1]
            return f"s_add_u32 m0, s{gMB}, {y*16384}", f"s_add_u32 s{t}, s{sW0}, {y*16384}", \
                   [f"buffer_load_dwordx4 v{vDMA}, {WS}, s{t} offen offset:{i*1024}{ld()} lds ; @gU{y}" for i in range(4)]
        return m0, so, [f"buffer_load_dwordx4 v{regs[jl]}, {sr(srd,4)}, s{t} offen offset:{jl*1024}{OPT['nt' + kind[0]]} lds ; @g{kind[0]}{it}_{h}" for jl in range(4)]
    todo = []
    for it in range(16):
        todo += [(2*it-1, 2*(it-3)+1, ("A", it, 0)), (2*it-1, 2*(it-2), ("B", it, 0)), (2*it-1, 2*(it-3)+1, ("A", it, 1)), (2*it, 2*(it-2)+1, ("B", it, 1))]
    todo += [(31+y, av, ("U", y)) for y, av in enumerate((27, 27, 28, 29, 29, 29, 30, 31))]
    GS = {}; order = []
    for n in range(-1, 32):
        cap = OPT["npro"] if n < 0 else OPT["gcap"][min(n, len(OPT["gcap"])-1)]
        c = sorted([x for x in todo if x[1] <= n], key=lambda x: x[0])[:cap]
        for x in c: todo.remove(x); assert x[0] > n or n < 0, (x, n)
        GS[n] = [x[2] for x in c]; order += GS[n]
    assert not todo
    print("GS", {n: len(v) for n, v in GS.items()}, file=sys.stderr)
    def gtag(k): return f"gU{k[1]}" if k[0] == "U" else f"g{k[0]}{k[1]}_{k[2]}"
    def gwait(n):
        it, kk = (n+1) >> 1, (n+1) & 1
        need = [("U", 0), ("U", 1)] if n == 31 else [("B", it, 1)] if kk else [("A", it, 0), ("A", it, 1), ("B", it, 0)]
        return f"vmcnt(@since:{gtag(max(need, key=order.index))})"
    main = a; a = Asm()
    sWID, u_, nb_, o_, o2_ = sXOFF, sT+1, sT+2, sT+3, sT+4
    sD = [sQST, sPT, sPSG]; sXS = sPSS; sHI = sFSG; sSTR = sFSS
    vWO, vW12 = vRD, vDMA
    G = sr(sG, 4)
    r_, g_, r8 = GT, GT+1, GT+2
    h_, i_ = GT+5, GT+6
    a(f"""
    s_lshl_b32 s{sWID}, s2, 2
    s_add_u32 s{sWID}, s{sWID}, s{sWAVE}
    s_mov_b32 s{sX+2}, {2048*896}
    s_mov_b32 s{sX+3}, 0x20000
    v_and_b32 v{h_}, 3, v{vLANE}
    v_lshrrev_b32 v{i_}, 2, v{vLANE}
    v_mul_u32_u24 v{GT+7}, 896, v{h_}
    v_lshl_add_u32 v{GT+7}, v{i_}, 4, v{GT+7}
    v_cmp_gt_u32 s[{sLN}:{sLN+1}], 14, v{i_}
    v_mov_b32 v{GT+8}, {OOB}
    s_lshr_b32 s{gB1}, s{sWID}, 1
    s_mul_i32 s{gB1}, s{gB1}, 3584
    s_mul_i32 s{gB0}, s{gWM}, 448
    s_add_u32 s{gB1}, s{gB1}, s{gB0}
    v_cndmask_b32 v{GT+11}, v{GT+8}, v{GT+7}, s[{sLN}:{sLN+1}]
    s_getpc_b64 s[{sG}:{sG+1}]
    L_pc:
    s_sub_u32 s{sG}, s{sG}, L_pc - L_gemmV
    s_subb_u32 s{sG+1}, s{sG+1}, 0
    s_mov_b32 s{sG+2}, L_codeend - L_gemmV
    s_mov_b32 s{sG+3}, 0x20000
    s_lshr_b32 s{gB0}, s2, 3
    s_lshl_b32 s{gB0}, s{gB0}, 2
    s_add_u32 s{gB0}, s{gB0}, s{sWAVE}
    s_lshl_b32 s{gB0}, s{gB0}, 10
    s_mov_b32 s{sWS+2}, {WS_SIZE}
    s_mov_b32 s{sWS+3}, 0x20000
    v_and_b32 v{r_}, 15, v{vLANE}
    v_lshrrev_b32 v{g_}, 4, v{vLANE}
    v_lshlrev_b32 v{r8}, 3, v{r_}
    """)
    def natdest(dst, base):
        a(f"""
        s_lshr_b32 s{o_}, s{nb_}, 2
        s_mul_i32 s{o_}, s{o_}, {7*32768}
        s_lshr_b32 s{o2_}, s{u_}, 1
        s_lshl_b32 s{o2_}, s{o2_}, 15
        s_add_u32 s{o_}, s{o_}, s{o2_}
        s_and_b32 s{o2_}, s{nb_}, 3
        s_lshl_b32 s{o2_}, s{o2_}, 13
        s_add_u32 s{o_}, s{o_}, s{o2_}
        s_and_b32 s{o2_}, s{u_}, 1
        s_lshl_b32 s{o2_}, s{o2_}, 10
        s_add_u32 s{o_}, s{o_}, s{o2_}
        s_add_u32 s{dst}, s{o_}, {base}
        """)
    def div7(idx):
        a(f"""
        s_mul_i32 s{u_}, s{idx}, 9363
        s_lshr_b32 s{u_}, s{u_}, 16
        s_mul_i32 s{nb_}, s{u_}, 7
        s_sub_u32 s{nb_}, s{idx}, s{nb_}
        """)
    def ffdest(dst, base, lim, idx=sWID):
        a(f"""
        s_mul_i32 s{o_}, s{nb_}, {184*4096}
        s_lshl_b32 s{o2_}, s{u_}, 12
        s_add_u32 s{o_}, s{o_}, s{o2_}
        s_add_u32 s{dst}, s{o_}, {base}
        s_cmp_lt_u32 s{idx}, {lim}
        s_cselect_b32 s{dst}, s{dst}, {OOB}
        """)
    a(f"""
    s_mov_b32 s{sDBG+2}, 16
    s_mov_b32 s{sDBG+3}, 0x20000
    v_mul_u32_u24 v{vWO}, {4*896}, v{g_}
    v_add_u32 v{vWO}, v{vWO}, v{r8}
    s_lshl_b32 s{gD}, s{gMT}, 1
    s_add_u32 s{gD}, s{gD}, s{sWHICH}
    s_lshl_b32 s{gD}, s{gD}, 2
    s_add_u32 s{gD}, s{gD}, s{sWAVE}
    """)
    div7(gD)
    a(f"""
    s_lshl_b32 s{o_}, s{gHEAD}, 3
    s_add_u32 s{u_}, s{u_}, s{o_}
    s_mul_i32 s{o_}, s{u_}, {32*896}
    s_lshl_b32 s{o2_}, s{nb_}, 7
    s_add_u32 s{o_}, s{o_}, s{o2_}
    s_cmp_lt_u32 s{gD}, 56
    s_cselect_b32 s{o_}, s{o_}, {OOB}
    v_add_u32 v{vWO}, s{o_}, v{vWO}
    """)
    ffdest(sD[1], WS_WFF + 56*4096, 56, gD)
    a(f"""
    s_lshr_b32 s{u_}, s{sWID}, 2
    s_mul_i32 s{u_}, s{u_}, 9363
    s_lshr_b32 s{u_}, s{u_}, 16
    s_mul_i32 s{nb_}, s{u_}, 28
    s_sub_u32 s{nb_}, s{sWID}, s{nb_}
    s_mul_i32 s{sHI}, s{u_}, {32*3584}
    s_lshl_b32 s{o2_}, s{nb_}, 7
    s_add_u32 s{sHI}, s{sHI}, s{o2_}
    """)
    natdest(sSTR, WS_W1F)
    a(f"s_sub_u32 s{sT+5}, s{sWID}, 392")
    a(f"s_and_b32 s{sT+5}, s{sT+5}, 1023")
    div7(sT+5)
    ffdest(sD[2], WS_WFF, 784)
    a(f"""
    s_lshr_b32 s{o_}, s{u_}, 1
    s_mul_i32 s{o_}, s{o_}, {64*896}
    s_and_b32 s{o2_}, s{u_}, 1
    s_mul_i32 s{o2_}, s{o2_}, {2*896}
    s_add_u32 s{o_}, s{o_}, s{o2_}
    s_lshl_b32 s{o2_}, s{nb_}, 7
    s_add_u32 s{o_}, s{o_}, s{o2_}
    s_mov_b32 s{sW12+2}, {448*3584}
    s_mov_b32 s{sW12+3}, 0x20000
    s_cmp_lt_u32 s{sWID}, 392
    s_cselect_b32 s{sW12}, s{sW12}, s{sRET}
    s_cselect_b32 s{sW12+1}, s{sW12+1}, s{sRET+1}
    s_cselect_b32 s{o_}, s{sHI}, s{o_}
    s_cselect_b32 s{sD[2]}, s{sSTR}, s{sD[2]}
    s_cselect_b32 s{sHI}, 16, 1
    s_cselect_b32 s{sSTR}, 2, 1
    s_mul_i32 s{sHI}, s{sHI}, 896
    s_mul_i32 s{o2_}, s{sSTR}, {16*896}
    s_lshl_b32 s{sSTR}, s{sSTR}, 10
    v_mul_u32_u24 v{vW12}, s{o2_}, v{g_}
    v_add3_u32 v{vW12}, v{vW12}, v{r8}, s{o_}
    v_lshlrev_b32 v{GT+9}, 8, v{i_}
    v_lshl_add_u32 v{GT+9}, v{h_}, 4, v{GT+9}
    v_cndmask_b32 v{vSX}, v{GT+8}, v{GT+9}, s[{sLN}:{sLN+1}]
    s_lshr_b32 s{o_}, s{sWID}, 3
    s_mul_i32 s{o_}, s{o_}, 14336
    s_and_b32 s{o2_}, s{sWID}, 6
    s_lshl_b32 s{o2_}, s{o2_}, 5
    s_add_u32 s{sXS}, s{o_}, s{o2_}
    s_mul_i32 s{o2_}, s{gWM}, 7168
    s_add_u32 s{sXS}, s{sXS}, s{o2_}
    s_lshl_b32 s{sFQ}, s{sWID}, 10
    s_add_u32 s{sFQ}, s{sFQ}, {WS_FLG}
    s_cmp_lt_u32 s{sWID}, 32
    s_cselect_b32 s{sFQ}, s{sFQ}, {OOB}
    v_cmp_eq_u32 vcc, 0, v{vLANE}
    v_mov_b32 v{vONE}, 1
    v_and_b32 v{vL4}, 3, v{vLANE}
    v_lshlrev_b32 v{vL4}, 2, v{vL4}
    v_cndmask_b32 v{vFLG}, v{GT+8}, v{vLANE}, vcc
    s_mov_b32 s{sRET}, s{sT+6}
    s_mov_b32 s{sRET+1}, s{sT+7}
    s_lshr_b32 s{u_}, s{gD}, 2
    s_lshl_b32 s{nb_}, s{gHEAD}, 2
    s_add_u32 s{nb_}, s{nb_}, s{sWAVE}
    s_lshl_b32 s{o_}, s{u_}, 18
    s_lshl_b32 s{o2_}, s{nb_}, 7
    s_add_u32 s{o_}, s{o_}, s{o2_}
    v_and_b32 v{vSW}, 3, v{vLANE}
    v_lshlrev_b32 v{vSW}, 5, v{vSW}
    v_bfe_u32 v{GT+9}, v{vLANE}, 2, 2
    v_lshl_add_u32 v{vSW}, v{GT+9}, 3, v{vSW}
    v_lshl_add_u32 v{vSW}, v{g_}, 16, v{vSW}
    v_add_u32 v{vSW}, s{o_}, v{vSW}
    v_mov_b32 v{vSF}, v{vL16}
    """)
    natdest(sD[0], WS_WQF)
    a(f"s_cmp_lt_u32 s{gD}, 56")
    a(f"s_cselect_b32 s{sD[0]}, s{sD[0]}, {OOB}")
    assert WS_XF == 0
    a(f"""
    v_bfe_u32 v{t4}, v{vLANE}, 1, 3
    s_lshl_b32 s{o_}, s{gWM}, 14
    s_add_u32 s{o_}, s{o_}, 131072
    v_lshlrev_b32 v{r_}, 7, v{r_}
    v_add_u32 v{r_}, s{o_}, v{r_}
    """)
    for kk in range(2):
        a(f"v_or_b32 v{t5}, {4*kk}, v{g_}")
        a(f"v_xor_b32 v{t5}, v{t5}, v{t4}")
        a(f"v_lshl_add_u32 v{RA[kk]}, v{t5}, 4, v{r_}")
    a(f"""
    v_lshlrev_b32 v{t2}, 12, v{g_}
    v_bfe_u32 v{t4}, v{vLANE}, 2, 2
    v_lshl_add_u32 v{t2}, v{t4}, 7, v{t2}
    v_and_b32 v{t5}, 3, v{vLANE}
    v_lshl_add_u32 v{t2}, v{t5}, 3, v{t2}
    s_lshl_b32 s{o_}, s{gWN}, 10
    s_add_u32 s{o_}, s{o_}, 32768
    v_add_u32 v{t2}, s{o_}, v{t2}
    v_lshrrev_b32 v{t4}, 1, v{t4}
    v_lshlrev_b32 v{t4}, 6, v{t4}
    v_and_b32 v{t5}, 1, v{g_}
    v_lshlrev_b32 v{t5}, 5, v{t5}
    v_or_b32 v{t4}, v{t4}, v{t5}
    """)
    for q in range(4):
        a(f"v_xor_b32 v{t5}, {(q>>1)*64 + (q&1)*32}, v{t4}")
        a(f"v_add_u32 v{RB[q]}, v{t5}, v{t2}")
    a(f"""
    s_mul_i32 s{sKVB}, s{gHEAD}, {HS}
    s_mul_i32 s{o_}, s{gMT}, {8*US}
    s_add_u32 s{sKVB}, s{sKVB}, s{o_}
    s_mul_i32 s{o_}, s{gWM}, {4*US}
    s_add_u32 s{sKVB}, s{sKVB}, s{o_}
    s_add_u32 s{o2_}, s{sWHICH}, 12
    s_lshl_b32 s{o_}, s{gWN}, s{o2_}
    s_add_u32 s{sKVB}, s{sKVB}, s{o_}
    s_mul_i32 s{o_}, s{sWHICH}, {WS_VF - WS_KF}
    s_add_u32 s{sKVB}, s{sKVB}, s{o_}
    s_add_u32 s{sKVB}, s{sKVB}, {WS_KF}
    s_lshr_b32 s{sKVI}, 8192, s{sWHICH}
    s_add_u32 s{sKVI}, s{sKVI}, s{sKVB}
    s_lshl_b32 s{sFKV}, s{gHEAD}, 8
    s_lshr_b32 s{o_}, s{gMT}, 2
    s_and_b32 s{o2_}, s{gMT}, 3
    s_lshl_b32 s{o2_}, s{o2_}, 1
    s_or_b32 s{o_}, s{o_}, s{o2_}
    s_cmp_ge_u32 s{o_}, 2
    s_cselect_b32 s{o2_}, 112, 0
    s_add_u32 s{sFKV}, s{sFKV}, s{o2_}
    s_lshl_b32 s{o_}, s{o_}, 3
    s_add_u32 s{sFKV}, s{sFKV}, s{o_}
    s_lshl_b32 s{o_}, s{sWHICH}, 2
    s_add_u32 s{sFKV}, s{sFKV}, s{o_}
    s_add_u32 s{sFKV}, s{sFKV}, {WS_FLG + FL_KV}
    s_lshl_b32 s{sFKVP}, s{sHEAD}, 8
    s_add_u32 s{sFKVP}, s{sFKVP}, {WS_FLG + FL_KV}
    s_cmp_eq_u32 s{sWAVE}, 0
    s_cselect_b32 s{sFKV}, s{sFKV}, {OOB}
    s_cselect_b32 s{sFKVP}, s{sFKVP}, {OOB}
    s_cselect_b32 s{gFL}, s2, {OOB}
    s_cselect_b32 s{gIT}, 0, {OOB}
    """)
    WQ, B1, ST1, N0, STA2, XR1, XR2 = sT+1, sT+2, sT+3, sN, sT+4, sND, sXOF2
    a(f"""
    s_or_b32 s{sQI}, s{sJ}, 8
    s_mul_i32 s{WQ}, s{sHEAD}, {7*32768}
    s_add_u32 s{WQ}, s{WQ}, {WS_WQF}
    s_mov_b32 s{sW0}, s{WQ}
    s_mov_b32 s{XR1}, s{sQI}
    s_mov_b32 s{ST1}, 32768
    s_bitcmp1_b32 s{sHEAD}, 1
    s_cselect_b32 s{N0}, {OPT['n0'][1]}, {OPT['n0'][0]}
    s_cmp_eq_u32 s{sQI}, 15
    s_cselect_b32 s{STA2}, {OPT['a15'] - 34}, 0
    s_add_u32 s{N0}, s{N0}, s{STA2}
    s_cmp_eq_u32 s{sQI}, 8
    s_cselect_b32 s{STA2}, 34, 64
    s_min_u32 s{N0}, s{N0}, s{STA2}
    @atomic
    s_cmp_ge_u32 s{sJ}, 8
    s_cbranch_scc1 L_typeA
    s_mov_b32 s{sTYPE}, 2
    s_sub_u32 s{B1}, s{WQ}, {5*32768}
    s_sub_u32 s{XR2}, 15, s{sQI}
    s_lshl_b32 s{sU1}, s{sQI}, 2
    s_sub_u32 s{sU2}, 64, s{sU1}
    s_add_u32 s{sU1}, s{sU1}, 4
    s_sub_u32 s{sU1}, s{sU1}, s{N0}
    s_add_u32 s{STA2}, s{sU1}, 14
    s_add_u32 s{sT+7}, s{STA2}, s{sU2}
    s_branch L_typedone
    """)
    a.label("L_typeA")
    a(f"""
    s_mov_b32 s{sU1}, s{N0}
    s_add_u32 s{sT+7}, s{N0}, 14
    s_mov_b32 s{sU2}, 2
    s_mov_b32 s{N0}, 0
    s_mov_b32 s{STA2}, 100
    s_mov_b32 s{XR2}, 0x4000
    s_mov_b32 s{sTYPE}, 1
    s_mov_b32 s{B1}, {OOB}
    s_cmp_eq_u32 s{sJ}, 15
    s_cbranch_scc1 L_typedone
    s_mov_b32 s{sTYPE}, 0
    s_mul_i32 s{XR1}, s{sHEAD}, 7
    s_add_u32 s{XR1}, s{XR1}, s{sJ}
    s_sub_u32 s{XR1}, s{XR1}, 8
    s_lshr_b32 s{sT}, s{XR1}, 4
    s_and_b32 s{XR1}, s{XR1}, 15
    s_mul_i32 s{sW0}, s{sT}, {7*32768}
    s_add_u32 s{sW0}, s{sW0}, {WS_W1F}
    s_lshl_b32 s{B1}, s{sT}, 15
    s_add_u32 s{B1}, s{B1}, {WS_WFF}
    s_mov_b32 s{ST1}, {184*4096}
    """)
    a.label("L_typedone")
    a("@end")
    tA, tB, tC, tD = GT, GT+1, GT+2, GT+3
    KB, VB = sT+5, sT+6
    a(f"""
    s_mul_i32 s{KB}, s{sHEAD}, {HS}
    s_add_u32 s{VB}, s{KB}, {WS_VF}
    s_add_u32 s{KB}, s{KB}, {WS_KF}
    v_mov_b32 v{vTE}, {OOB}
    """)
    def seg_lin(start, base, stride):
        a(f"v_subrev_u32 v{tA}, {start}, v{vLANE}")
        a(f"v_cmp_gt_u32 vcc, 7, v{tA}")
        a(f"v_mul_u32_u24 v{tB}, {stride}, v{tA}")
        a(f"v_add_u32 v{tB}, s{base}, v{tB}")
        a(f"v_cndmask_b32 v{vTE}, v{vTE}, v{tB}, vcc")
    seg_lin(0, sW0, 32768)
    seg_lin(7, B1, f"s{ST1}")
    a(f"s_lshl_b32 s{sT}, s{sHEAD}, 15")
    a(f"s_add_u32 s{sT}, s{sT}, {WS_WFF + 56*4096}")
    seg_lin(f"s{sT+7}", sT, 184*4096)
    a(f"v_add_u32 v{vTO}, 16384, v{vTE}")
    def seg_att(start, n0, U):
        for tab in (vTO, vTE):
            a(f"v_subrev_u32 v{tA}, {start}, v{vLANE}")
            if n0 is not None: a(f"v_add_u32 v{tB}, s{n0}, v{tA}")
            else: a(f"v_mov_b32 v{tB}, v{tA}")
            a(f"v_mul_u32_u24 v{tB}, {US}, v{tB}")
            if tab == vTO:
                a(f"s_sub_u32 s{sT}, s{U}, 1")
                a(f"v_cmp_eq_u32 vcc, s{sT}, v{tA}")
                a(f"v_add_u32 v{tC}, s{KB}, v{tB}")
                a(f"v_add_u32 v{tC}, {US}, v{tC}")
                a(f"v_add_u32 v{tD}, s{VB}, v{tB}")
            else:
                a(f"v_cmp_eq_u32 vcc, 0, v{tA}")
                a(f"v_add_u32 v{tC}, s{VB}, v{tB}")
                a(f"v_subrev_u32 v{tC}, {US}, v{tC}")
                a(f"v_add_u32 v{tD}, s{KB}, v{tB}")
            a(f"v_cndmask_b32 v{tC}, v{tC}, v{tD}, vcc")
            a(f"v_cmp_gt_u32 vcc, s{U}, v{tA}")
            a("s_nop 1")
            a(f"v_cndmask_b32 v{tab}, v{tab}, v{tC}, vcc")
    seg_att(14, N0, sU1)
    seg_att(f"s{STA2}", None, sU2)
    XO1, XO2 = sXOFF, sXOF2
    a(f"""
    s_lshl_b32 s{sT}, s{sWAVE}, 1
    s_lshl_b32 s{XO1}, s{XR1}, 3
    s_add_u32 s{XO1}, s{XO1}, s{sT}
    s_mul_i32 s{XO1}, s{XO1}, 14336
    s_lshl_b32 s{XO2}, s{XR2}, 3
    s_add_u32 s{XO2}, s{XO2}, s{sT}
    s_mul_i32 s{XO2}, s{XO2}, 14336
    s_lshl_b32 s{sW4K}, s{sWAVE}, 12
    s_mov_b32 s{sCLAMP}, 0x05040100
    s_mov_b32 s{sFIRST}, 0x07060302
    """)
    setup_l = [l.strip() for l in a.lines if l.strip()]
    a = main
    seq = []
    for k, kind in enumerate(GS[-1]):
        m0, so, ins = dma_group(kind, 0)
        seq += [[m0, so, ins[0]]] + [[x] for x in ins[1:]]
        if k == OPT["xpos"]:
            seq += [[f"buffer_load_dwordx4 {ar(SLD+48,4)}, v{GT+11}, {sr(sX,4)}, s{gB1} offen"], [f"buffer_load_dwordx4 {ar(SLD+52,4)}, v{GT+11}, {sr(sX,4)}, s{gB1} offen offset:224"],
                    [f"s_xor_b32 s{gB1}, s{gB1}, 448", f"buffer_load_dwordx4 {ar(SLD+56,4)}, v{GT+11}, {sr(sX,4)}, s{gB1} offen"], [f"buffer_load_dwordx4 {ar(SLD+60,4)}, v{GT+11}, {sr(sX,4)}, s{gB1} offen offset:224 ; @sx"]]
    if OPT["cpf"]: seq += [[f"buffer_load_dwordx4 a[200:203], v{vL16}, {G}, s{gB0} offen"], [f"s_add_u32 s{gB0}, s{gB0}, 131072", f"buffer_load_dwordx4 a[204:207], v{vL16}, {G}, s{gB0} offen"]]
    nowr = ("s_mov", "s_mul_i32", "s_nop", "s_cselect", "s_getpc", "s_cbranch", "s_branch")
    def scc_live(k):
        for l in setup_l[k:]:
            if l.startswith(("s_cselect", "s_cbranch_scc", "s_subb")): return True
            if l.startswith("s_") and not l.startswith(nowr): return False
        return False
    step = len(setup_l) / (len(seq) - 0.5)
    atomic = False; nxt = 0.0
    for k, l in enumerate(setup_l):
        if seq and k >= nxt and not atomic and not scc_live(k) and not l.endswith(":"):
            for x in seq.pop(0): a(x)
            nxt += step
        if l == "@atomic": atomic = True
        elif l == "@end": atomic = False
        else: a(l)
    for g in seq:
        for x in g: a(x)
    print("setup instrs", len(setup_l), "left", len(seq), file=sys.stderr)
    a(f"""
    s_mov_b32 s{sG}, s{sRET}
    s_mov_b32 s{sG+1}, s{sRET+1}
    s_mov_b32 s{sG+2}, {448*8192}
    """)
    if OPT["dbgside"] & 1:
        for r in sD: a(f"s_mov_b32 s{r}, {OOB}")
    if OPT["dbgside"] & 2: a(f"s_mov_b32 s{sXS}, {OOB}")
    if OPT["dbgside"] & 4:
        for r in (vWO, vW12, vSW): a(f"v_mov_b32 v{r}, {OOB}")
    def side_chain():
        c = []
        z = GT+8
        c += [(f"v_mov_b64 {vr(z,2)}, 0", 0), (f"v_mov_b64 {vr(z+2,2)}, 0", 0), (f"buffer_store_dwordx4 {vr(z,4)}, v{vL16}, {WS}, s{sFQ} offen sc1 ; @zst", 1)]
        c.append(("s_waitcnt vmcnt(@since:sx)", 1))
        U = GT; m_, v_, t_, t2_ = GT+16, GT+17, vG1, vPOLL
        for i in range(8):
            c.append((f"v_accvgpr_read_b32 v{t_}, a{SLD+48+i}", 2 if i == 0 else 0))
            c.append((f"v_lshlrev_b32 v{U+2*i}, 16, v{t_}", 0))
            c.append((f"v_and_b32 v{U+2*i+1}, 0xffff0000, v{t_}", 0))
        def red(v):
            r = [(f"v_add_f32_dpp v{v}, v{v}, v{v} row_ror:{sh} row_mask:0xf bank_mask:0xf", 2) for sh in (8, 4)]
            return r + xlane_ops("v_add_f32", v, t2_)
        c.append((f"v_add_f32 v{m_}, v{U}, v{U+1}", 0)); c.append((f"v_add_f32 v{v_}, v{U+2}, v{U+3}", 0))
        for i in range(4, 16, 2):
            c.append((f"v_add_f32 v{m_}, v{m_}, v{U+i}", 0)); c.append((f"v_add_f32 v{v_}, v{v_}, v{U+i+1}", 0))
        for i in range(8):
            c += [(x, 0) for x in (f"v_accvgpr_read_b32 v{t_}, a{SLD+56+i}", f"v_lshlrev_b32 v{t2_}, 16, v{t_}", f"v_and_b32 v{t_}, 0xffff0000, v{t_}",
                  f"v_add_f32 v{m_}, v{m_}, v{t2_}", f"v_add_f32 v{v_}, v{v_}, v{t_}")]
        c.append((f"v_add_f32 v{m_}, v{m_}, v{v_}", 0))
        c += red(m_)
        c.append((f"v_mul_f32 v{m_}, {f2u(1.0/448):#x}, v{m_}", 0))
        for i in range(16):
            c.append((f"v_sub_f32 v{t_}, v{U+i}, v{m_}", 0))
            c.append((f"v_mul_f32 v{v_}, v{t_}, v{t_}" if i == 0 else f"v_fma_f32 v{v_}, v{t_}, v{t_}, v{v_}", 0))
        for i in range(8):
            c += [(x, 0) for x in (f"v_accvgpr_read_b32 v{t_}, a{SLD+56+i}", f"v_lshlrev_b32 v{t2_}, 16, v{t_}", f"v_and_b32 v{t_}, 0xffff0000, v{t_}",
                  f"v_sub_f32 v{t2_}, v{t2_}, v{m_}", f"v_sub_f32 v{t_}, v{t_}, v{m_}", f"v_fma_f32 v{v_}, v{t2_}, v{t2_}, v{v_}", f"v_fma_f32 v{v_}, v{t_}, v{t_}, v{v_}")]
        c.append((f"v_cndmask_b32 v{v_}, 0, v{v_}, s[{sLN}:{sLN+1}]", 0))
        c += red(v_)
        for x in (f"v_mul_f32 v{v_}, {f2u(1.0/448):#x}, v{v_}", f"v_cvt_pk_bf16_f32 v{t_}, v{m_}, v{v_}", f"v_lshlrev_b32 v{m_}, 16, v{t_}",
                  f"v_and_b32 v{v_}, 0xffff0000, v{t_}", f"v_add_f32 v{v_}, {f2u(1e-5):#x}, v{v_}", f"v_cvt_pk_bf16_f32 v{v_}, v{v_}, v{v_}",
                  f"v_lshlrev_b32 v{v_}, 16, v{v_}", f"v_sqrt_f32 v{v_}, v{v_}"):
            c.append((x, 0))
        c.append((f"v_cvt_pk_bf16_f32 v{v_}, v{v_}, v{v_}", 1))
        c.append((f"v_lshlrev_b32 v{v_}, 16, v{v_}", 0))
        c.append((f"v_rcp_f32 v{v_}, v{v_}", 0))
        for i in range(16): c.append((f"v_sub_f32 v{U+i}, v{U+i}, v{m_}", 1 if i == 0 else 0))
        for i in range(8):
            for x in (f"v_cvt_pk_bf16_f32 v{t_}, v{U+2*i}, v{U+2*i+1}", f"v_lshlrev_b32 v{U+2*i}, 16, v{t_}", f"v_and_b32 v{U+2*i+1}, 0xffff0000, v{t_}",
                      f"v_mul_f32 v{U+2*i}, v{U+2*i}, v{v_}", f"v_mul_f32 v{U+2*i+1}, v{U+2*i+1}, v{v_}", f"v_cvt_pk_bf16_f32 v{U+i}, v{U+2*i}, v{U+2*i+1}"):
                c.append((x, 0))
        c.append((f"buffer_store_dwordx4 {vr(U,4)}, v{vSX}, {WS}, s{sXS} offen sc1", 1))
        c.append((f"buffer_store_dwordx4 {vr(U+4,4)}, v{vSX}, {WS}, s{sXS} offen offset:3584 sc1", 1))
        def relay(rnd, land):
            c.append((f"s_waitcnt vmcnt(@since:sl{rnd})", 1, 0, rnd))
            for h in range(2):
                for e in range(8):
                    c.append((f"v_accvgpr_read_b32 v{GT+e}, a{land+2*e+h}", 2 if e == 0 else 0))
                for jj in range(2):
                    o = GT+8+4*jj
                    for p in range(4):
                        c.append((f"v_perm_b32 v{o+p}, v{GT+2*p+1}, v{GT+2*p}, s{(sCLAMP, sFIRST)[jj]}", 0))
                    if rnd == 1: c.append((f"buffer_store_dwordx4 {vr(o,4)}, v{vL16}, {WS}, s{sD[rnd]} offen offset:{(2*h+jj)*1024} sc1", 1))
                    else:
                        c.append((f"buffer_store_dwordx4 {vr(o,4)}, v{vSF}, {WS}, s{sD[rnd]} offen sc1", 1))
                        c.append((f"v_add_u32 v{vSF}, s{sSTR}, v{vSF}", 1))
        relay(2, SLD+32)
        c.append((f"s_waitcnt vmcnt(@since:sl0)", 1, 0, 0))
        c.append((f"s_mov_b32 s{sHI}, {f2u(QSCALE):#x}", 1))
        for h in range(2):
            for p in range(4):
                t = GT + (p & 1)*4
                c += [(x, 0) for x in (f"v_accvgpr_read_b32 v{t}, a{SLD+4*p+h}", f"v_accvgpr_read_b32 v{t+1}, a{SLD+4*p+2+h}",
                      f"v_lshlrev_b32 v{t+2}, 16, v{t}", f"v_lshlrev_b32 v{t+3}, 16, v{t+1}", f"v_and_b32 v{t}, 0xffff0000, v{t}", f"v_and_b32 v{t+1}, 0xffff0000, v{t+1}")]
                c += [(f"v_mul_f32 v{t+i}, s{sHI}, v{t+i}", 0) for i in range(4)]
                c += [(f"v_cvt_pk_bf16_f32 v{GT+8+p}, v{t+2}, v{t+3}", 0), (f"v_cvt_pk_bf16_f32 v{GT+12+p}, v{t}, v{t+1}", 0)]
            if h == 1: c.append((f"s_add_u32 s{sD[0]}, s{sD[0]}, 4096", 1))
            for jj in range(2):
                c.append((f"buffer_store_dwordx4 {vr(GT+8+4*jj,4)}, v{vL16}, {WS}, s{sD[0]} offen offset:{jj*2048} sc1 ; @sst", 1))
        relay(1, WOL)
        c += [(x, 0) for x in (f"v_add_u32 v{vDMA}, s{sW4K}, v{vL16}", f"v_mov_b32 v{vRD}, v{vL16}",  f"v_lshrrev_b32 v{GT}, 4, v{vLANE}",
              f"v_lshlrev_b32 v{GT}, 2, v{GT}", f"v_and_b32 v{GT+1}, 15, v{vLANE}", f"v_sub_u32 v{GT}, v{GT+1}, v{GT}")]
        c += [(f"v_cmp_gt_i32 s[{sMASK+2*r}:{sMASK+2*r+1}], {r}, v{GT}", 0) for r in range(4)]
        c = [((x[0].replace(" sc1", OPT["sidesc"]),) + tuple(x[1:]) if x[0].startswith("buffer_store") else x) for x in c]
        if OPT["wbl2"]: c.append(("s_waitcnt vmcnt(4)", 30)); c.append(("buffer_wbl2 sc1", 1))
        return Chain(c, XG4)
    def reads(kk, buf):
        ra = [f"ds_read_b128 {ar(FA(buf,m),4)}, v{RA[kk]} offset:{m*2048}" for m in range(8)]
        rb = [f"ds_read_b64_tr_b16 {ar(FB(buf,n)+2*sec,2)}, v{RB[n&3]} offset:{kk*16384+sec*2048+(n>>2)*512}" for n in range(8) for sec in range(2)]
        out = []
        for i in range(8): out += [ra[i], rb[2*i], rb[2*i+1]]
        return out
    stamp(6, True)
    a(f"s_waitcnt {gwait(-1)}")
    a("s_barrier")
    for r in reads(0, 0): a(r)
    stamp(1)
    a(f"s_cmp_eq_u32 s{sWHICH}, 0")
    a("s_cbranch_scc0 L_gemmV")
    pre_lines = len(a.lines)
    sJT = sT+2
    def xjob(J, key, i, base, early, late, rot=0):
        u, qt = i >> 1, i & 1
        J.add(key, f"s_add_u32 s{sJT}, s{base}, {qt*14336+((u+rot)%14)*1024}", f"buffer_load_dwordx4 {ar(X(qt,u),4)}, v{vL16}, {WS}, s{sJT} offen{ld()} ; @{key}", early, late - (3 - (i & 3))*8)
    def kvjob(J, c, early, late):
        blk = c >> 2
        J.add("kv", f"s_add_u32 s{sJT}, s{sKVI if blk & 1 else sKVB}, {(blk>>1)*US+(c&3)*1024}",
              f"buffer_store_dwordx4 {vr(PK(c),4)}, v{vL16}, {WS}, s{sJT} offen{OPT['kvsc']} ; @kv", early, late)
    pw, t6, t7 = sEV, sCNT, sND
    setup = f"""
    s_lshl_b32 s{pw}, s{sHEAD}, 3
    s_and_b32 s{t6}, s{sJ}, 7
    s_add_u32 s{pw}, s{pw}, s{t6}
    s_lshl_b32 s{pw}, s{pw}, 2
    s_add_u32 s{pw}, s{pw}, s{sWAVE}
    s_mul_i32 s{sQST}, s{pw}, {Q_W}
    s_add_u32 s{sQST}, s{sQST}, {WS_QF}
    s_mul_i32 s{sPT}, s{pw}, {PT_W}
    s_add_u32 s{sPT}, s{sPT}, {WS_PT}
    s_lshl_b32 s{sFQ}, s{pw}, 5
    s_add_u32 s{sFQ}, s{sFQ}, {WS_FLG + FL_Q}
    s_mul_i32 s{t7}, s{sWAVE}, {28*1024}
    s_add_u32 s{t7}, s{t7}, {WS_PS}
    s_mul_i32 s{pw}, s{sHEAD}, 7
    s_add_u32 s{pw}, s{pw}, s{t6}
    s_lshr_b32 s{t6}, s{pw}, 4
    s_and_b32 s{sFSG}, s{pw}, 15
    s_lshl_b32 s{sT+3}, s{t6}, 9
    s_mul_i32 s{sPSG}, s{sFSG}, {PS_R}
    s_add_u32 s{sPSG}, s{sPSG}, s{t7}
    s_mul_i32 s{pw}, s{t6}, {PS_SRC}
    s_add_u32 s{sPSG}, s{sPSG}, s{pw}
    s_add_u32 s{sPSG}, s{sPSG}, {16*PS_SRC}
    s_lshl_b32 s{sFSG}, s{sFSG}, 9
    s_lshl_b32 s{pw}, s{t6}, 2
    s_add_u32 s{sFSG}, s{sFSG}, s{pw}
    s_lshl_b32 s{pw}, s{sWAVE}, 7
    s_add_u32 s{pw}, s{pw}, {WS_FLG + FL_S}
    s_add_u32 s{sFSG}, s{sFSG}, s{pw}
    s_add_u32 s{sFSG}, s{sFSG}, 64
    s_lshr_b32 s{t6}, s{sJ}, 3
    s_mul_i32 s{t6}, s{t6}, 7
    s_xor_b32 s{t6}, s{t6}, 7
    s_xor_b32 s{t6}, s{t6}, s{sJ}
    s_mul_i32 s{sPSS}, s{t6}, {PS_R}
    s_add_u32 s{sPSS}, s{sPSS}, s{t7}
    s_mul_i32 s{t7}, s{sHEAD}, {PS_SRC}
    s_add_u32 s{sPSS}, s{sPSS}, s{t7}
    s_lshl_b32 s{sFSS}, s{t6}, 9
    s_add_u32 s{sFSS}, s{sFSS}, s{pw}
    s_lshl_b32 s{t7}, s{sHEAD}, 2
    s_add_u32 s{sFSS}, s{sFSS}, s{t7}
    s_lshl_b32 s{sND}, s{sQI}, 2
    s_add_u32 s{sND}, s{sND}, s{sWAVE}
    s_lshr_b32 s{sCNT}, s{sU1}, 1
    s_sub_u32 s{sCNT}, s{sCNT}, 1
    s_lshr_b32 s{sEV}, s{sJ}, 3
    """.strip().split("\n")
    setup = [(x.strip(), 1) for x in setup]
    setup.append((f"s_cmp_eq_u32 s{sTYPE}, 1\ns_cselect_b32 s{sQST}, {OOB}, s{sQST}", 1))
    setup.append((f"s_cmp_eq_u32 s{sTYPE}, 0\ns_cselect_b32 s{sFSG}, s{sFSG}, {OOB}", 1))
    setup.append((f"s_cmp_eq_u32 s{sWAVE}, 0\ns_cselect_b32 s{sFQ}, s{sFQ}, {OOB}\ns_cselect_b32 s{sEXP}, 1, 0", 1))
    setup2 = [(x, 1) for x in (f"s_mov_b32 s{sTAU}, 4", f"s_add_u32 s{sM0}, s{sW4K}, {8*16384}", f"s_add_u32 s{sOFFB}, s{sW0}, {8*16384}",
              f"s_mov_b32 s{sRDD}, {-131072}", f"s_mov_b32 s{gMA}, {-131072}", f"s_mov_b32 s{gMB}, 32768", f"s_mov_b32 m0, s{sM0}")]
    for typ in ("K", "V"):
        if typ == "V":
            a.label("L_gemmV")
            for l in a.lines[:pre_lines]:
                if l.strip().startswith("buffer_") or "@merge" in l: a.raw("@ghost " + l.strip())
        def pos(m, n): return m*8+n if typ == "K" else (m >> 1)*16 + n*2 + (m & 1)
        def substep(it, kk):
            groups = GS[2*it+kk]
            buf = kk
            mf = []
            for m in range(8):
                for n in range(8):
                    acc = accreg(pos(m, n))
                    c = "0" if (it == 0 and kk == 0) else acc
                    x, y = ar(FB(buf,n),4), ar(FA(buf,m),4)
                    if typ == "V": x, y = y, x
                    mf.append(f"{MF} {acc}, {x}, {y}, {c}")
            st = Stage(mf)
            st.put(-1, f"s_waitcnt {gwait(2*it+kk)} lgkmcnt(0)")
            st.put(-1, "s_barrier")
            last = (it == 15 and kk == 1)
            g, dg = 1, (OPT["dg2"] if len(groups) == 2 else 4)
            for k, kind in enumerate(groups):
                m0, so, ins = dma_group(kind, k)
                st.put(g-1, m0)
                st.put(g-2, so)
                for i in ins:
                    st.put(g, i); g += dg
            rd = reads(kk ^ 1, buf ^ 1) if not last else [f"ds_read_b128 {ar(FR(f),4)}, v{vRD} offset:{f*1024}" for f in range(12)]
            for i, r in enumerate(rd): st.put(i*2, r)
            if kk == 0 and it < 15:
                d = -131072 if it % 3 == 0 else 65536
                for i, x in enumerate([f"v_add_u32 v{RA[0]}, {d}, v{RA[0]}", f"v_add_u32 v{RA[1]}, {d}, v{RA[1]}"] + [f"v_xor_b32 v{r}, 0x10000, v{r}" for r in RB]):
                    st.put(48 + 2*(i >> 1), x)
            if OPT["fine"]:
                st.put(2, f"{FT()} s[{sFS}:{sFS+1}]")
                st.put(4, f"v_mov_b32_dpp v0, v0 wave_shr:1 row_mask:0xf bank_mask:0xf")
                st.put(46, f"v_writelane_b32 v0, s{sFS}, 0")
            return st
        ch = side_chain()
        J = Jobs()
        for e in range(8):
            t = [x + e*OPT["slstep"] for x in OPT["slt"]]
            J.add("sl1", f"s_mov_b32 s{sJT}, {(e>>2)*16*896}", f"buffer_load_dwordx2 {ar(WOL+2*e,2)}, v{vWO}, {sr(sX,4)}, s{sJT} offen offset:{(e&3)*896}{OPT['ntS']} ; @sl1", t[2], t[2]+64)
            J.add("sl2", f"s_add_u32 s{sJT}, s{sHI}, {(e&3)*3584}" if e >> 2 else f"s_mov_b32 s{sJT}, {e*3584}",
                  f"buffer_load_dwordx2 {ar(SLD+32+2*e,2)}, v{vW12}, {sr(sW12,4)}, s{sJT} offen{OPT['ntS']} ; @sl2", t[0], t[0]+64)
            J.add("sl0", f"s_mov_b32 s{sJT}, {e*8192}", f"buffer_load_dwordx2 {ar(SLD+2*e,2)}, v{vSW}, {G}, s{sJT} offen{OPT['ntS']} ; @sl0", t[1], t[1]+64)
        NZ, NZP, NZC, NF, NP, NC = OPT["sync"]
        for i in range(20): xjob(J, "x1", i, XO1, (NC+1)*64 + i*OPT["xstep"], 31*64)
        for b in range(8):
            J.add("bias", None, f"buffer_load_dwordx4 {vr(BIAS+4*b,4)}, v{GT+16}, {G}, s{sT+3} offen offset:{(b>>1)*128+(b&1)*16} ; @bias", 31*64 if b in (2, 3) else 29*64, 31*64+24)
        su = Chain(setup)
        PV = GT+8
        for n in range(31):
            it, kk = n >> 1, n & 1
            st = substep(it, kk)
            if n == 0:
                st.put(62, f"s_load_dwordx2 s[{sX}:{sX+1}], s[0:1], 40")
                st.put(63, f"s_mov_b32 s{sX+2}, {4096*896}")
            if n == NZ-1: st.put(63, "s_waitcnt vmcnt(@since:zst)")
            if n == NZ: st.put(61, f"buffer_store_byte v{vONE}, v{vFLG}, {sr(sDBG,4)}, s{gFL} offen sc1")
            if n == NZP: st.put(61, f"buffer_load_dword v{vPOLL}, v{vL4}, {sr(sDBG,4)}, s{gIT} offen sc1 ; @zp")
            if n == NZC:
                st.put(54, "s_waitcnt vmcnt(@since:zp)")
                st.put(55, f"s_cmp_eq_u32 s{sWAVE}, 0\ns_cselect_b32 s{sT+1}, 0x01010101, 0")
                st.put(56, f"v_cmp_ne_u32 vcc, s{sT+1}, v{vPOLL}")
                st.put(60, f"s_cbranch_vccnz L_zwait{typ}")
                st.put(60, f"L_zok{typ}:")
            if n == NF-1:
                assert not any("@sst" in x[0] for x in ch.items) and NZC < NF
                st.put(63, "s_waitcnt vmcnt(@since:sst)")
                st.put(62, f"s_load_dwordx2 s[{sG}:{sG+1}], s[0:1], 64")
                st.put(59, f"s_mov_b32 s{sG+2}, 3584")
            if n == NF:
                st.put(55, f"s_add_u32 s{gIT}, s{gIT}, {WS_FLG+FL_PREP}")
                st.put(58, f"s_lshl2_add_u32 s{sT+1}, s2, s{gIT}")
                st.put(59+2*kk, f"buffer_store_dword v{vONE}, v{vFLG}, {WS}, s{sT+1} offen sc1")
            if n == NP:
                assert not ch.items
                st.put(61, f"buffer_load_dwordx4 {vr(PV,4)}, v{vL16}, {WS}, s{gIT} offen sc1 ; @prep")
            if n == NC:
                st.put(50, "s_waitcnt vmcnt(@since:prep)")
                st.put(51, f"s_cmp_eq_u32 s{sWAVE}, 0\ns_cselect_b32 s{sT+1}, 1, 0")
                st.put(54, f"v_and_b32 v{PV}, v{PV}, v{PV+1}")
                st.put(54, f"v_and_b32 v{PV+2}, v{PV+2}, v{PV+3}")
                st.put(55, f"v_and_b32 v{PV}, v{PV}, v{PV+2}")
                st.put(55, f"v_cmp_ne_u32 vcc, s{sT+1}, v{PV}")
                st.put(60, f"s_cbranch_vccnz L_prepwait{typ}")
                st.put(60, f"L_prepok{typ}:")
                st.put(56, f"v_lshrrev_b32 v{GT+16}, 4, v{vLANE}")
                st.put(56, f"v_lshlrev_b32 v{GT+16}, 5, v{GT+16}")
            J.place(st, n, 10, XG4)
            if n >= 1 and ch.items:
                full = ch.items
                for k, x in enumerate(full):
                    if len(x) > 3:
                        key = f"sl{x[3]}"
                        if any(j[5] == key for j in J.jobs) or J.at[key] + OPT["sld"] > n*64+63:
                            ch.items = full[:k]; break
                        full[k] = (x[0], x[1], max(0, J.at[key] + OPT["sld"] - n*64), x[3])
                rest = full[len(ch.items):] if ch.items is not full else []
                ch.base = n*64; ch.minD = OPT["smin"]
                ch.fill(st)
                ch.items = ch.items + rest
                if typ == "K": print("substep", n, "chain left", len(ch.items), file=sys.stderr)
            elif n > NC: su.fill(st)
            if n == 28: assert not su.items
            st.emit(a)
        st = substep(15, 1)
        J.place(st, 31, 2, [17, 21]); assert not J.jobs
        SG = [25, 33, 41, 49, 57, 61]
        for c in range(NE): kvjob(J, c, SG[c], SG[c])
        J.place(st, 0, 8, SG); assert not J.jobs
        su = Chain(setup2); su.fill(st, 30); assert not su.items
        slot_of = {pos(m, n): m*8+n for m in range(8) for n in range(8)}
        pk = []
        for c in range(32):
            e = max(slot_of[2*c], slot_of[2*c+1]) + 3
            if 20 <= c < 20+NE: e = max(e, SG[c-20]+2)
            src = []
            for h in range(2):
                p = 2*c+h
                if p < 52: src += [48+4*p+i for i in range(4)]
                else:
                    for i in range(4):
                        pk.append((f"v_accvgpr_read_b32 v{128+(p-52)*4+i}, a{208+4*(p-52)+i}", 0, e)); src.append(128+(p-52)*4+i)
            for i in range(4): pk.append((f"v_cvt_pk_bf16_f32 v{PK(c)+i}, v{src[2*i]}, v{src[2*i+1]}", 0, e))
        pk = Chain(pk); pk.fill(st)
        for c in range(NE):
            w = [g for g, v in st.fill.items() if any(x.startswith(f"v_cvt_pk_bf16_f32 v{PK(c)+3},") for x in v)]
            assert min(w) < SG[c], (c, w)
        st.emit(a)
        a("s_nop 3")
        print("pack tail", len(pk.items), file=sys.stderr)
        pk.flush(a)
        a("s_waitcnt vmcnt(@since:bias) lgkmcnt(8)")
        a(f"s_cmp_eq_u32 s{sTYPE}, 0")
        a("s_cbranch_scc0 L_P1B")
        a("s_branch L_P1A")
    def unpack(nt):
        o = []
        for r in range(4):
            x = 4*r + (nt & 3); src = BIAS + (nt >> 2)*8 + (x >> 1)
            o.append(f"v_and_b32 v{O(nt,1)+r}, 0xffff0000, v{src}" if x & 1 else f"v_lshlrev_b32 v{O(nt,1)+r}, 16, v{src}")
        return o
    def p1_jobs(t0, step, slack=8):
        J = Jobs()
        for c in range(20+NE, 32): kvjob(J, c, 0, XG[c-20-NE])
        for k, c in enumerate(range(NE, 20+NE)): kvjob(J, c, t0+k*step, t0+slack+k*step)
        for i in range(20, 28): xjob(J, f"x1{i>>2}", i, XO1, (i >> 2)*64 - 134, (i >> 2)*64 - 70)
        return J
    def xwait(st, key): st.put(62, f"s_waitcnt vmcnt(@since:{key})")
    def flagjob(J, key, after, soff, delay):
        if key in J.at or any(j[5] in (after, key) for j in J.jobs): return
        t = J.at[after] + delay
        J.add(key, f"s_waitcnt vmcnt(@since:{after})\ns_barrier", f"buffer_store_dword v{vONE}, v{vFLG}, {WS}, s{soff} offen sc1", t, t+8)
    def split_chain(items, st_prev, mk_next, late_of):
        ch = Chain(items); ch.fill(st_prev)
        rest = ch.items
        for k in range(len(rest)+1):
            st = mk_next()
            c2 = Chain([(x[0], x[1]) for x in rest[k:]])
            before = {gg: len(v) for gg, v in st.fill.items()}
            c2.fill(st)
            if c2.items: continue
            where = {}
            for gg, v in st.fill.items():
                for ins in v[before.get(gg, 0):]: where[ins] = gg
            if all(where[x[0]] <= late_of(x[3]) for x in rest[k:]):
                return rest[:k], st
        raise AssertionError
    def emit_mid(mid):
        if mid: a("s_nop 3")
        Chain(mid).flush(a)
        if mid: a("s_nop 1")
    def post_groups(s, scale):
        out = []
        for qt in range(2):
            for p in range(2):
                t = vT + 16 + (qt*2+p)*4
                regs = [PA(s & 1, nt, qt) + 2*p + rr for rr in range(2) for nt in range(4)]
                ops = [f"v_mul_f32 v{r}, v{vRINV[qt]}, v{r}" for r in regs] if scale else []
                ops += [f"v_cvt_pk_bf16_f32 v{t+i}, v{regs[2*i]}, v{regs[2*i+1]}" for i in range(4)]
                out.append((ops, t))
        return out
    def post_store(s, k, t, base):
        return f"s_add_u32 s{sJT}, s{base}, {s*4096+k*1024}", f"buffer_store_dwordx4 {vr(t,4)}, v{vL16}, {WS}, s{sJT} offen sc1 ; @ps"
    def post_place(st, s, scale, base, gaps):
        for k, (ops, t) in enumerate(post_groups(s, scale)):
            pre, ins = post_store(s, k, t, base)
            st.put(gaps[k]-1, pre); st.put(gaps[k], ins)
    def post_sched(st, s, scale, gaps):
        for k, (ops, t) in enumerate(post_groups(s, scale)):
            prev = None
            for x in ops: prev = st.add(x, [prev], 2, gaps[k]-1)
        st.schedule()
    def post_flush(s, scale, base):
        a("s_nop 5")
        for k, (ops, t) in enumerate(post_groups(s, scale)):
            for x in ops: a(x)
            for x in post_store(s, k, t, base): a(x)
    def mk_post(s):
        st = Stage(mf_post(s)); common_fill(st); return st
    def poll_issue(st, g, voff, soff, tag):
        st.put(g, f"buffer_load_dword v{vPOLL}, v{voff}, {WS}, s{soff} offen sc1 ; @{tag}")
    POLLS = []
    def poll_check(st, g, voff, soff, tag, lane0):
        st.put(g, f"s_waitcnt vmcnt(@since:{tag})")
        st.put(g, f"v_cmp_{'eq' if lane0 else 'ne'}_u32 s[{sT+4}:{sT+5}], s{sEXP}, v{vPOLL}")
        st.put(g+2, f"s_cmp_{'eq' if lane0 else 'lg'}_u64 s[{sT+4}:{sT+5}], 0\ns_cbranch_scc1 L_pw_{tag}")
        assert not ({g+1, g+2} & st.scc_busy)
        st.put(g+2, f"L_po_{tag}:")
        st.put(g+2, "s_barrier")
        POLLS.append((tag, voff, soff, lane0))
    def kv2addr(st):
        st.put(2, f"v_min_u32 v{vL4}, 11, v{vLANE}"); st.put(4, f"v_lshlrev_b32 v{vL4}, 2, v{vL4}"); st.put(8, f"v_add_u32 v{vL4}, 128, v{vL4}")
    XG2 = sorted(XG + [3, 11, 19, 27, 43, 51, 59])
    XG3 = sorted(XG + [5, 13, 21, 29, 45, 53, 61])
    merge("L_P1A")
    stamp(2)
    for x in unpack(0): a(x)
    a("s_nop 1")
    J = p1_jobs(64, OPT["kvstep"])
    for s in range(6):
        st = Stage(mf_proj(s, "bias" if s == 0 else None)); common_fill(st)
        flagjob(J, "kvf", "kv", sFKV, OPT["fdelay"])
        J.place(st, s, OPT["cap"])
        if s == 0:
            for nt in range(1, 16):
                e = XG[2*(nt-13)+1]+2 if nt >= 13 else 0
                for x in unpack(nt): st.add(x, [], e, 4*nt-3)
            st.schedule()
        if s >= 4: xwait(st, f"x1{s+1}")
        st.emit(a)
    st = Stage(mf_proj(6)); common_fill(st)
    flagjob(J, "kvf", "kv", sFKV, OPT["fdelay"]); J.place(st, 6, OPT["cap"])
    items = []
    for ud in range(8):
        for qt in range(2):
            regs = [O(2*ud,qt)+i for i in range(4)] + [O(2*ud+1,qt)+i for i in range(4)]
            e = 8*ud+7+3
            for r in regs: items.append((f"v_mul_f32 v{r}, |v{r}|, v{r}", 0, e, ud))
            for i in range(4): items.append((f"v_cvt_pk_bf16_f32 v{regs[i]}, v{regs[2*i]}, v{regs[2*i+1]}", 0, e, ud))
            for i in range(4): items.append((f"v_pk_max_i16 v{regs[i]}, v{regs[i]}, 0", 0, e, ud))
    import copy
    def mk0():
        st = mk_post(0); J2 = copy.deepcopy(J); J2.place(st, 7, OPT["cap"]); assert not J2.jobs; return st
    mid, st0 = split_chain(items, st, mk0, lambda ud: 8*ud-3)
    print("H mid", len(mid), "kv last", J.at["kv"], file=sys.stderr)
    st.emit(a); emit_mid(mid)
    stamp(3)
    J = Jobs()
    for i in range(16):
        J.add("ql", f"s_add_u32 s{sJT}, s{sQST}, {i*1024}", f"buffer_load_dwordx4 {ar(4*i,4)}, v{vL16}, {WS}, s{sJT} offen sc1 ; @ql", 4*64+46, 6*64+36-(15-i)*4)
    for s in range(7):
        st = st0 if s == 0 else mk_post(s)
        if s == 2: poll_issue(st, 3, vL4, sFKVP, "kva"); poll_check(st, 58, vL4, sFKVP, "kva", False)
        if s == 3: poll_issue(st, 51, vFLG, sFQ, "qa"); kv2addr(st)
        if s == 4: poll_check(st, 42, vFLG, sFQ, "qa", True)
        gaps = [9, 25, 41, 57] if s < 6 else [41, 49, 57, 59]
        if s >= 1: post_place(st, s-1, False, sPSG, gaps)
        J.place(st, s, 7, XG2)
        if s >= 1: post_sched(st, s-1, False, gaps)
        st.emit(a)
    assert not J.jobs
    def mk_F(qb, tag, pre=None):
        st = Stage(mf_qk(0, 0, qb, True) + mf_qk(1, 1, qb, True)); common_fill(st)
        if pre: pre(st)
        place_sm(st, 0, 35, 62, tag, ladd=False, first=True)
        st.schedule()
        return st
    def finit():
        return [(f"v_mov_b64 {vr(NEGM(0)+2*i,2)}, 0", 0) for i in range(4)] + [(f"v_mov_b64 {vr(vL[0],2)}, 0", 0),
                (f"v_mov_b32 v{vBIG}, {f2u(-1e30):#x}", 0), (f"s_mov_b32 s{sFIRST}, 1", 1), (f"s_mov_b32 s{sCLAMP}, {f2u(-3e38):#x}", 1)]
    def f_end(tag, nxt, endl):
        a(f"s_cbranch_vccnz L_fchk_{tag}")
        a.label(f"L_fok_{tag}")
        STUBS.append((f"L_fchk_{tag}", "L_fchk", f"L_fok_{tag}"))
        a(f"s_mov_b32 s{sFIRST}, 0")
        a(f"s_mov_b32 s{sCLAMP}, 0")
        a(f"s_cmp_eq_u32 s{sCNT}, 0")
        a(f"s_cbranch_scc1 {endl}")
        if nxt: a(f"s_branch {nxt}")
    a("s_nop 5")
    for ops, t in post_groups(6, False):
        for x in ops: a(x)
    a("s_waitcnt vmcnt(@since:ql)")
    stamp(4)
    def pre_fa1(st):
        post_place(st, 6, False, sPSG, [9, 17, 25, 33])
        poll_issue(st, 1, vL4, sFKVP, "kv2a"); poll_check(st, 58, vL4, sFKVP, "kv2a", False)
    st = mk_F(0, "fa1", pre_fa1)
    c = Chain(finit()); c.fill(st, 0, 30); assert not c.items
    st.emit(a)
    f_end("fa1", "L_s1z0", "L_u2")
    merge("L_P1B")
    stamp(2)
    J = p1_jobs(OPT["kvb0"], OPT["kvstepb"], 200)
    for i in range(28):
        p = i >> 2
        xjob(J, f"x2{p}", i, XO2, max(p+1, 3)*64, (7+p)*64 - 134, 4)
    for i in range(16):
        qt, ud = i & 1, i >> 1
        J.add("qs", f"s_add_u32 s{sJT}, s{sQST}, {(qt*8+ud)*1024}", f"buffer_store_dwordx4 {ar(Q(0,qt,ud),4)}, v{vL16}, {WS}, s{sJT} offen{OPT['kvsc']} ; @qs",
              7*64 if ud < 5 else 8*64, 7*64+20+i*OPT["qstep"])
    def bstage(gs):
        s = gs % 7
        st = Stage(mf_proj(s, "zero" if gs % 7 == 0 else None))
        nod = 3 <= gs <= 7
        common_fill(st, dma=not nod, nd={3: 16, 4: 8, 5: 0}.get(gs), novm=(6 <= gs <= 10), rdl=(gs == 7))
        if gs == 9: poll_issue(st, 3, vL4, sFKVP, "kvb"); poll_check(st, 58, vL4, sFKVP, "kvb", False)
        if gs == 10: kv2addr(st)
        if gs == 1:
            st.put(2, f"s_cmp_gt_u32 s{sN}, 34\ns_cselect_b32 s{sT+1}, 34, 2")
            st.put(4, f"v_and_b32 v{vT}, 4, v{vLANE}"); st.put(8, f"v_mul_u32_u24 v{vT}, s{sT+1}, v{vT}"); st.put(10, f"v_or_b32 v{vL4}, v{vL4}, v{vT}")
        flagjob(J, "kvf", "kv", sFKV, OPT["fdelay"]); flagjob(J, "qf", "qs", sFQ, 72)
        if nod: J.place(st, gs, OPT["capn"], XG3)
        elif gs == 8: J.place(st, gs, OPT["capq"], XG2)
        else: J.place(st, gs, OPT["capb"])
        if gs in (4, 5): xwait(st, f"x1{gs+1}")
        if 6 <= gs < 13: xwait(st, f"x2{gs-6}")
        return st
    for gs in range(6): bstage(gs).emit(a)
    def q_items(qb):
        items = []; cnt = 0
        for ud in range(8):
            blk = ud >> 1
            for qt in range(2):
                e = 16*blk+15+3
                t = vT + 16 + (cnt % 4)*4; cnt += 1
                for i in range(4):
                    jp = 2*(ud & 1) + (i >> 1); tl = 4*blk + 2*(i & 1)
                    items.append((f"v_cvt_pk_bf16_f32 v{t+i}, v{O(tl,qt)+jp}, v{O(tl+1,qt)+jp}", 0, e, 2*blk))
                for i in range(4): items.append((f"v_accvgpr_write_b32 a{Q(qb,qt,ud)+i}, v{t+i}", 0, e, 99 if ud >= 5 else -1))
        return items
    st = bstage(6); st7 = bstage(7)
    mid, st0 = split_chain(q_items(0), st, lambda: copy.deepcopy(st7), lambda ud: 8*ud-1)
    print("E1 mid", len(mid), file=sys.stderr)
    st.emit(a); emit_mid(mid)
    stamp(3)
    st0.emit(a)
    for gs in range(8, 13): bstage(gs).emit(a)
    st = bstage(13)
    assert not J.jobs
    print("B jobs", {k: (v >> 6, v & 63) for k, v in J.at.items()}, file=sys.stderr)
    def mk_fa2():
        STUBS[:] = [x for x in STUBS if "fa2" not in x[0]]
        POLLS[:] = [x for x in POLLS if x[0] != "kv2b"]
        def pre(st): poll_issue(st, 1, vL4, sFKVP, "kv2b"); poll_check(st, 58, vL4, sFKVP, "kv2b", False)
        st = mk_F(0, "fa2", pre); c = Chain(finit()); c.fill(st, 0, 30); return st
    mid, st0 = split_chain(q_items(128), st, mk_fa2, lambda ud: 60)
    print("E2 mid", len(mid), file=sys.stderr)
    st.emit(a); emit_mid(mid)
    stamp(4)
    st0.emit(a)
    f_end("fa2", None, "L_u2")
    def steady(b, qb, tag, czero=False):
        st = Stage(mf_pv(0, b^1, czero) + mf_qk(1, b^1, qb)); common_fill(st)
        if b == 0:
            st.put(56, f"s_sub_u32 s{sCNT}, s{sCNT}, 1")
            st.put(58, f"s_cmp_lg_u32 s{sCNT}, s{sEV}")
            st.scc_busy |= set(range(58, 64))
        if tag == "z0":
            st.put(56, "s_waitcnt vmcnt(11)")
            st.put(57, f"buffer_store_dword v{vONE}, v{vFLG}, {WS}, s{sFSG} offen sc1")
        place_sm(st, b, 0, 62, tag); st.schedule()
        st.emit(a)
        a(f"s_cbranch_vccnz L_dorare_{tag}")
        a.label(f"L_norare_{tag}")
        STUBS.append((f"L_dorare_{tag}", f"L_rare{b}", f"L_norare_{tag}"))
    def loop(qb, n):
        merge(f"L_s1z{n}")
        steady(1, qb, f"z{n}", True)
        a(f"s_branch L_mid{n}")
        merge(f"L_steady{n}", True)
        steady(1, qb, f"s1{n}")
        merge(f"L_mid{n}")
        steady(0, qb, f"s0{n}")
        a(f"s_cbranch_scc1 L_steady{n}")
    loop(0, 0)
    a(f"s_cmp_eq_u32 s{sCNT}, 0")
    a("s_cbranch_scc1 L_end0")
    a(f"""
    s_add_u32 s{sFQ}, s{sFQ}, {FL_P - FL_Q}
    s_nop 0
    buffer_load_dword v{vPOLL}, v{vFLG}, {WS}, s{sFQ} offen sc1
    s_mov_b32 s{sEV}, 0
    s_branch L_steady0
    """)
    a.label("L_u2")
    for i in range(64): a(f"v_mov_b64 {vr(O0+2*i,2)}, 0")
    merge("L_end0")
    a(f"s_cmp_eq_u32 s{sTYPE}, 2")
    a("s_cbranch_scc1 L_lpack")
    a(f"""
    s_waitcnt vmcnt(16)
    v_cmp_ne_u32 vcc, s{sEXP}, v{vPOLL}
    s_add_u32 s{sT+3}, s{sPT}, 16384
    s_nop 0
    s_bitcmp1_b32 vcc_lo, 0
    s_cbranch_scc1 L_pw_pt
    """)
    a.label("L_po_pt")
    a("s_barrier")
    POLLS.append(("pt", vFLG, sFQ, True))
    a(f"buffer_load_dwordx4 {vr(vSTB,4)}, v{vL16}, {WS}, s{sT+3} offen sc1")
    for i in range(16):
        if i % 4 == 0: a(f"s_add_u32 s{sT+3}, s{sPT}, {i*1024}")
        a(f"buffer_load_dwordx4 {ar(128+4*i,4)}, v{vL16}, {WS}, s{sT+3} offen offset:{(i&3)*1024} sc1 ; @ptl")
    def pack_items(e0, step):
        items = []
        for ud in range(8):
            for qt in range(2):
                regs = [O(2*ud,qt)+i for i in range(4)] + [O(2*ud+1,qt)+i for i in range(4)]
                for i in range(4): items.append((f"v_cvt_pk_bf16_f32 v{regs[i]}, v{regs[2*i]}, v{regs[2*i+1]}", 0, e0+step*ud, ud))
        return items
    def mk_L(tag):
        st = Stage(mf_pv(0, 0) + mf_pv(1, 1)); common_fill(st)
        place_sm(st, 1, 0, 30, tag); st.schedule()
        st.put_post(31, f"s_cbranch_vccnz L_dorare_{tag}")
        st.put_post(31, f"L_norare_{tag}:")
        STUBS.append((f"L_dorare_{tag}", "L_rare1", f"L_norare_{tag}"))
        st.put(32, f"v_add_f32 v{vL[0]}, v{vL[0]}, v{vSUM[0][0]}")
        st.put(34, f"v_add_f32 v{vL[1]}, v{vL[1]}, v{vSUM[1][0]}")
        return st
    st = mk_L("ln")
    c = [(f"v_bfe_u32 v{vT+20}, v{vLANE}, 2, 2", 0), (f"v_lshrrev_b32 v{vT+21}, 4, v{vLANE}", 0), (f"v_cmp_eq_u32 s[{sT+4}:{sT+5}], v{vT+20}, v{vT+21}", 0),
         (f"v_and_b32 v{vT+20}, 3, v{vLANE}", 0), (f"v_lshlrev_b32 v{vT+20}, 4, v{vT+20}", 0), (f"v_mov_b32 v{vT+22}, 0x3f80", 0), (f"v_mov_b32 v{vT+23}, 0", 0),
         (f"v_cndmask_b32 v{vT+22}, 0, v{vT+22}, s[{sT+4}:{sT+5}]", 1), (f"v_lshlrev_b64 {vr(vSEL+2,2)}, v{vT+20}, {vr(vT+22,2)}", 0),
         (f"v_mov_b64 {vr(vSEL,2)}, 0", 0), (f"v_mov_b64 {vr(vSEL+4,2)}, 0", 0),
         ("s_waitcnt vmcnt(@since:ptl)", 1, 55),
         (f"v_cmp_neq_f32 vcc, v{NEGM(0)}, v{vSTB}", 1), (f"v_cmp_neq_f32 s[{sT+4}:{sT+5}], v{NEGM(1)}, v{vSTB+1}", 0)]
    c = Chain(c); c.fill(st, 35); assert not c.items
    st.emit(a)
    a(f"s_or_b64 vcc, vcc, s[{sT+4}:{sT+5}]")
    a("s_cbranch_scc1 L_slowcomb")
    a.label("L_comb")
    stamp(5)
    mf = []
    for ud in range(8):
        for h in range(2):
            for qt in range(2):
                d = vr(O(2*ud+h,qt),4)
                mf.append(f"{MF} {d}, {vr(vSEL+2-2*h,4)}, {ar(128+(ud*2+qt)*4,4)}, {d}")
    st = Stage(mf)
    st.put(0, f"v_add_f32 v{vL[0]}, v{vL[0]}, v{vSTB+2}")
    st.put(0, f"v_add_f32 v{vL[1]}, v{vL[1]}, v{vSTB+3}")
    c = Chain(pack_items(6, 4)); c.fill(st, 0, 31)
    st.emit(a)
    a("s_nop 5")
    c.flush(a)
    a("s_branch L_post2")
    merge("L_lpack")
    st = mk_L("lp")
    c = Chain([(f"v_mov_b32 v{vSTAT}, v{NEGM(0)}", 0), (f"v_mov_b32 v{vSTAT+1}, v{NEGM(1)}", 0), (f"v_mov_b64 {vr(vSTAT+2,2)}, {vr(vL[0],2)}", 0)] + pack_items(38, 4))
    c.fill(st, 35)
    st.put(62, f"s_cmp_eq_u32 s{sTYPE}, 2")
    st.emit(a)
    a("s_nop 5")
    print("Lpack tail", len(c.items), file=sys.stderr)
    c.flush(a)
    a("s_cbranch_scc0 L_post2b")
    stamp(5)
    a(f"""
    s_mov_b32 s{sTYPE}, 3
    s_mov_b32 s{sN}, 0
    s_sub_u32 s{sND}, 15, s{sQI}
    s_lshl_b32 s{sND}, s{sND}, 2
    s_add_u32 s{sND}, s{sND}, s{sWAVE}
    s_lshr_b32 s{sCNT}, s{sU2}, 1
    s_sub_u32 s{sCNT}, s{sCNT}, 1
    s_sub_u32 s{sEV}, s{sCNT}, 1
    s_add_u32 s{sFQ}, s{sFQ}, {FL_P - FL_Q}
    s_add_u32 s{sT+3}, s{sPT}, 16384
    buffer_store_dwordx4 {vr(vSTAT,4)}, v{vL16}, {WS}, s{sT+3} offen sc1
    """)
    st = mk_F(128, "fb")
    c = []
    for i in range(16):
        if i % 4 == 0: c.append((f"s_add_u32 s{sT+3}, s{sPT}, {i*1024}", 1))
        c.append((f"buffer_store_dwordx4 {vr(O(2*(i>>1),i&1),4)}, v{vL16}, {WS}, s{sT+3} offen offset:{(i&3)*1024}{OPT['kvsc']}", 1))
    c = Chain(c); c.fill(st)
    c2 = Chain(finit()); c2.fill(st, 0, 30); assert not c2.items
    print("Fb leftover", len(c.items), file=sys.stderr)
    st.emit(a)
    c.flush(a)
    f_end("fb", None, "L_end")
    loop(128, 1)
    a(f"""
    s_cmp_eq_u32 s{sTYPE}, 3
    s_cbranch_scc0 L_lpack
    s_waitcnt vmcnt(16)
    s_barrier
    buffer_store_dword v{vONE}, v{vFLG}, {WS}, s{sFQ} offen sc1
    s_mov_b32 s{sTYPE}, 4
    s_mov_b32 s{sEV}, 0
    s_cmp_eq_u32 s{sCNT}, 0
    s_cbranch_scc1 L_lpack
    s_branch L_steady1
    """)
    a.label("L_post2b")
    merge("L_post2")
    stamp(6)
    a("s_nop 1")
    C0, CO, FP = sU1, sU2, sW0
    XO = [sCNT, sEV]; BO = [sN, sND]
    vXO, vBO, vC1, vFG, vFS = 44, 45, 46, 47, 48
    fs = f"""
    s_load_dwordx2 s[{sSA}:{sSA+1}], s[0:1], 0
    s_load_dwordx2 s[{sG}:{sG+1}], s[0:1], 80
    s_load_dwordx2 s[{sSB}:{sSB+1}], s[0:1], 88
    s_mov_b32 s{sSA+2}, {2048*896}
    s_mov_b32 s{sSB+2}, {2048*896}
    s_mov_b32 s{sG+2}, 896
    s_and_b32 s{C0}, s2, 3
    s_mul_i32 s{C0}, s{C0}, 7
    s_lshl_b32 s{sT}, s{sWAVE}, 1
    s_add_u32 s{C0}, s{C0}, s{sT}
    s_lshr_b32 s{sT}, s2, 4
    s_mul_i32 s{CO}, s{sT}, {PS_R}
    s_bfe_u32 s{sT+4}, s2, 0x20002
    s_mul_i32 s{sT+5}, s{sT+4}, {28*1024}
    s_add_u32 s{CO}, s{CO}, s{sT+5}
    s_lshl_b32 s{sT+5}, s{C0}, 10
    s_add_u32 s{CO}, s{CO}, s{sT+5}
    s_add_u32 s{CO}, s{CO}, {WS_PS}
    s_lshr_b32 s{FP}, s2, 2
    s_lshl_b32 s{FP}, s{FP}, 7
    s_add_u32 s{FP}, s{FP}, {WS_FLG + FL_S}
    v_min_u32 v{vFG}, 6, v{vLANE}
    v_lshl_add_u32 v{vFG}, v{vFG}, 2, 64
    v_and_b32 v{vXO}, 15, v{vLANE}
    v_lshlrev_b32 v{vFS}, 2, v{vXO}
    s_lshr_b32 s{sT+5}, s2, 2
    s_lshl_b32 s{sT+5}, s{sT+5}, 5
    v_add_u32 v{vXO}, s{sT+5}, v{vXO}
    v_mul_u32_u24 v{vXO}, 896, v{vXO}
    v_and_b32 v{vBO}, 48, v{vLANE}
    v_lshlrev_b32 v{vBO}, 1, v{vBO}
    v_add_u32 v{vXO}, v{vXO}, v{vBO}
    """
    for k in range(2):
        fs += f"""
        s_add_u32 s{sT}, s{C0}, {k}
        s_lshr_b32 s{sT+4}, s{sT}, 2
        s_lshl_b32 s{BO[k]}, s{sT+4}, 7
        s_and_b32 s{sT+4}, s{sT}, 1
        s_lshl_b32 s{sT+4}, s{sT+4}, 4
        s_add_u32 s{BO[k]}, s{BO[k]}, s{sT+4}
        s_bfe_u32 s{sT+4}, s{sT}, 0x10001
        s_mul_i32 s{XO[k]}, s{sT+4}, {16*896}
        s_add_u32 s{XO[k]}, s{XO[k]}, s{BO[k]}
        """
    fs = [(x.strip(), 1) for x in fs.split("\n") if x.strip()]
    fs.append((f"s_cmp_eq_u32 s{sWAVE}, 3\ns_cselect_b32 s{XO[1]}, {OOB}, s{XO[1]}\ns_cselect_b32 s{sT+4}, {OOB}, 0", 1))
    fs.append((f"v_add_u32 v{vC1}, s{sT+4}, v{vL16}", 1))
    fs.append((f"s_cmp_eq_u32 s{sWAVE}, 0\ns_cselect_b32 s{FP}, s{FP}, {OOB}", 1))
    fs = Chain(fs)
    J = Jobs()
    GL = 128
    for k in range(2):
        J.add("gl", None, f"buffer_load_dwordx4 {ar(GL+56+4*k,4)}, v{vXO}, {sr(sSA,4)}, s{XO[k]} offen", 3*64, 7*64)
        J.add("gl", None, f"buffer_load_dwordx4 {ar(GL+64+4*k,4)}, v{vBO}, {G}, s{BO[k]} offen", 3*64, 7*64)
    for n in range(7):
        for k in range(2):
            J.add("gl", f"s_add_u32 s{sJT}, s{CO}, {(16+n)*PS_SRC}", f"buffer_load_dwordx4 {ar(GL+n*8+4*k,4)}, v{(vL16, vC1)[k]}, {WS}, s{sJT} offen offset:{k*1024} sc1 ; @gl", 4*64, 7*64)
    for s in range(7):
        st = Stage(mf_post(s)); common_fill(st, dma=(s < 3), nd=(None, None, None, 16, 8, 0, 0)[s], last=(s == 6))
        if s == 0:
            c = xlane_ops("v_add_f32", vL[0], vT) + xlane_ops("v_add_f32", vL[1], vT) + [(f"v_rcp_f32 v{vRINV[0]}, v{vL[0]}", 0), (f"v_rcp_f32 v{vRINV[1]}, v{vL[1]}", 1)]
            c = Chain(c); c.fill(st); assert not c.items
            fs.fill(st)
        else:
            gaps = [17, 33, 49, 57]
            post_place(st, s-1, True, sPSS, gaps)
            if s == 2: st.put(60, "s_waitcnt lgkmcnt(0)")
            if s == 2: poll_issue(st, 41, vFG, FP, "gf")
            if s == 3: poll_check(st, 58, vFG, FP, "gf", False)
            J.place(st, s, 7, [1, 9, 13, 25, 29, 41, 45, 61])
            post_sched(st, s-1, True, gaps)
            fs.fill(st)
            if s == 1: assert not fs.items
        st.emit(a)
    assert not J.jobs
    post_flush(6, True, sPSS)
    stamp(7)
    a(f"s_mov_b32 s{sT+4}, 0x00003f80")
    a(f"s_mov_b32 s{sT+5}, 0x3f800000")
    a(f"s_mov_b32 s{sT+6}, 0xffff0000")
    a(f"s_mov_b32 s{sT+7}, {f2u(-1.4426950408889634):#x}")
    LB = 128; TB = 64
    XB, BB = TB+56, 52
    GA, SA_ = 12, 28
    a("s_waitcnt vmcnt(@since:gl)")
    for i in range(64): a(f"v_accvgpr_read_b32 v{TB+i}, a{GL+i}")
    for i in range(8): a(f"v_accvgpr_read_b32 v{BB+i}, a{GL+64+i}")
    def accum(base, acc, first):
        for i in range(8):
            r = base+i
            if first:
                a(f"v_lshlrev_b32 v{acc+2*i}, 16, v{r}"); a(f"v_and_b32 v{acc+2*i+1}, s{sT+6}, v{r}")
            else:
                a(f"v_dot2_f32_bf16 v{acc+2*i}, v{r}, s{sT+4}, v{acc+2*i}"); a(f"v_dot2_f32_bf16 v{acc+2*i+1}, v{r}, s{sT+5}, v{acc+2*i+1}")
    def rnd_pair(r0, r1, t):
        a(f"v_cvt_pk_bf16_f32 v{t}, v{r0}, v{r1}")
        a(f"v_lshlrev_b32 v{r0}, 16, v{t}")
        a(f"v_and_b32 v{r1}, s{sT+6}, v{t}")
    for n in range(7): accum(TB+n*8, GA, n == 0)
    a("s_waitcnt vmcnt(0)")
    a(f"buffer_store_dword v{vONE}, v{vFLG}, {WS}, s{sFSS} offen sc1")
    a("s_nop 0")
    T1, T2, T3 = 2, 3, 4
    for i in range(8):
        g0, g1 = GA+2*i, GA+2*i+1
        rnd_pair(g0, g1, T1)
        a(f"v_lshlrev_b32 v{T2}, 16, v{BB+i}")
        a(f"v_and_b32 v{T3}, s{sT+6}, v{BB+i}")
        a(f"v_add_f32 v{g0}, v{g0}, v{T2}")
        a(f"v_add_f32 v{g1}, v{g1}, v{T3}")
        rnd_pair(g0, g1, T1)
        a(f"v_mul_f32 v{T2}, s{sT+7}, v{g0}")
        a(f"v_mul_f32 v{T3}, s{sT+7}, v{g1}")
        a(f"v_exp_f32 v{T2}, v{T2}")
        a(f"v_exp_f32 v{T3}, v{T3}")
        a("s_nop 0")
        a(f"v_add_f32 v{T2}, 1.0, v{T2}")
        a(f"v_add_f32 v{T3}, 1.0, v{T3}")
        a(f"v_rcp_f32 v{T2}, v{T2}")
        a(f"v_rcp_f32 v{T3}, v{T3}")
        a("s_nop 0")
        a(f"v_mul_f32 v{g0}, v{g0}, v{T2}")
        a(f"v_mul_f32 v{g1}, v{g1}, v{T3}")
        rnd_pair(g0, g1, T1)
    a(f"s_mov_b32 s{sT+1}, 0")
    a(f"s_cmp_lg_u32 s{sWAVE}, 0")
    a("s_cbranch_scc1 L_fgo")
    a.label("L_fpoll")
    a(f"""
    buffer_load_dword v{vPOLL}, v{vFS}, {WS}, s{FP} offen sc1
    s_add_u32 s{sT+1}, s{sT+1}, 1
    s_waitcnt vmcnt(0)
    v_cmp_ne_u32 vcc, 1, v{vPOLL}
    s_cmp_lt_u32 s{sT+1}, 0x10000
    s_cbranch_vccz L_fgo
    s_sleep {OPT['fsleep']}
    s_cbranch_scc1 L_fpoll
    """)
    a.label("L_fgo")
    a("s_barrier")
    stamp(8)
    for n in range(16):
        a(f"s_add_u32 s{sT}, s{CO}, {n*PS_SRC}")
        a(f"buffer_load_dwordx4 {vr(LB+n*8,4)}, v{vL16}, {WS}, s{sT} offen sc1")
        a(f"buffer_load_dwordx4 {vr(LB+n*8+4,4)}, v{vC1}, {WS}, s{sT} offen offset:1024 sc1")
    for n in range(16):
        a(f"s_waitcnt vmcnt({2*(15-n)})")
        accum(LB+n*8, SA_, n == 0)
    a("s_nop 2")
    for i in range(8):
        g0, g1, s0, s1 = GA+2*i, GA+2*i+1, SA_+2*i, SA_+2*i+1
        rnd_pair(s0, s1, T1)
        a(f"v_mul_f32 v{g0}, v{g0}, v{s0}")
        a(f"v_mul_f32 v{g1}, v{g1}, v{s1}")
        rnd_pair(g0, g1, T1)
        a(f"v_lshlrev_b32 v{T2}, 16, v{XB+i}")
        a(f"v_and_b32 v{T3}, s{sT+6}, v{XB+i}")
        a(f"v_add_f32 v{g0}, v{g0}, v{T2}")
        a(f"v_add_f32 v{g1}, v{g1}, v{T3}")
        a(f"v_cvt_pk_bf16_f32 v{LB+i}, v{g0}, v{g1}")
        if i % 4 == 3: a(f"buffer_store_dwordx4 {vr(LB+i-3,4)}, v{vXO}, {sr(sSB,4)}, s{XO[i>>2]} offen")
    if stamps:
        a("s_waitcnt vmcnt(0)")
        stamp(9)
        a("s_waitcnt lgkmcnt(0)")
        if OPT["enc"] >= 0:
            a(f"""
            s_and_b32 s{sT+1}, s2, {OPT["encw"][0]}
            s_cmp_eq_u32 s{sT+1}, {OPT["encw"][1]}
            s_cbranch_scc0 L_end
            s_sub_u32 s{sT+1}, s{streg(OPT["enc"])}, s{streg(OPT["enc0"])}
            s_mul_i32 s{sT+1}, s{sT+1}, {OPT["enck"]}
            s_add_u32 s{sT+1}, s{sT+1}, s{streg(0)}
            s_add_u32 s{sT+1}, s{sT+1}, 10000
            s_mov_b32 s{sT+2}, 0
            L_enc:
            s_memrealtime s[{sT+4}:{sT+5}]
            s_add_u32 s{sT+2}, s{sT+2}, 1
            s_waitcnt lgkmcnt(0)
            s_cmp_gt_u32 s{sT+2}, 1000000
            s_cbranch_scc1 L_end
            s_sub_u32 s{sT+4}, s{sT+4}, s{sT+1}
            s_cmp_lt_i32 s{sT+4}, 0
            s_cbranch_scc1 L_enc
            s_endpgm
            """)
        for i in range(12): a(f"v_mov_b32 v{16+i}, s{streg(min(i,9))}")
        a(f"""
        s_lshl_b32 s{sT+1}, s2, 2
        s_add_u32 s{sT+1}, s{sT+1}, s{sWAVE}
        s_lshl_b32 s{sT+1}, s{sT+1}, 6
        s_add_u32 s{sT+1}, s{sT+1}, {WS_STAMP}
        buffer_store_dwordx4 v[16:19], v{vFLG}, {WS}, s{sT+1} offen
        buffer_store_dwordx4 v[20:23], v{vFLG}, {WS}, s{sT+1} offen offset:16
        buffer_store_dwordx4 v[24:27], v{vFLG}, {WS}, s{sT+1} offen offset:32
        s_sub_u32 s{sT+1}, s{sT+1}, {WS_STAMP}
        s_lshl_b32 s{sT+1}, s{sT+1}, 3
        s_add_u32 s{sT+1}, s{sT+1}, {WS_STAMP + 0x100000}
        v_lshlrev_b32 v2, 2, v{vLANE}
        buffer_store_dword v0, v2, {WS}, s{sT+1} offen
        buffer_store_dword v{vKV}, v2, {WS}, s{sT+1} offen offset:256
        """)
    a.label("L_end")
    a("s_endpgm")
    for typ in ("K", "V"):
        for nm, ok, ldi, red, reg in (("zwait", "zok", f"buffer_load_dword v{vPOLL}, v{vL4}, {sr(sDBG,4)}, 0 offen sc1", "", vPOLL),
                ("prepwait", "prepok", f"buffer_load_dwordx4 {vr(PV,4)}, v{vL16}, {WS}, s{gIT} offen sc1",
                 f"v_and_b32 v{PV}, v{PV}, v{PV+1}\nv_and_b32 v{PV+2}, v{PV+2}, v{PV+3}\nv_and_b32 v{PV}, v{PV}, v{PV+2}", PV)):
            a.label(f"L_{nm}{typ}")
            a(f"s_mov_b32 s{sT+4}, 0")
            a.label(f"L_{nm}2{typ}")
            a(f"""
            s_sleep 4
            {ldi}
            s_add_u32 s{sT+4}, s{sT+4}, 1
            s_waitcnt vmcnt(0)
            {red}
            v_cmp_ne_u32 vcc, s{sT+1}, v{reg}
            s_cmp_ge_u32 s{sT+4}, 0x10000
            s_cbranch_scc1 L_{ok}{typ}
            s_nop 2
            s_cbranch_vccnz L_{nm}2{typ}
            s_branch L_{ok}{typ}
            """)
    for (tag, voff, soff, lane0) in POLLS:
        a.label(f"L_pw_{tag}")
        a(f"s_mov_b32 s{sT+1}, 0")
        a.label(f"L_pw2_{tag}")
        a(f"""
        buffer_load_dword v{vPOLL}, v{voff}, {WS}, s{soff} offen sc1
        s_add_u32 s{sT+1}, s{sT+1}, 1
        s_waitcnt vmcnt(0)
        v_cmp_ne_u32 s[{sT+4}:{sT+5}], 1, v{vPOLL}
        s_cmp_ge_u32 s{sT+1}, 0x10000
        s_cbranch_scc1 L_po_{tag}
        s_sleep {OPT['psleep']}
        """)
        if lane0 is True: a(f"s_bitcmp1_b32 s{sT+4}, 0")
        else: a(f"s_cmp_lg_u64 s[{sT+4}:{sT+5}], 0")
        a(f"s_cbranch_scc1 L_pw2_{tag}")
        a(f"s_branch L_po_{tag}")
    for (lab, sub, back) in STUBS:
        a.label(lab)
        a(f"s_call_b64 s[{sRET}:{sRET+1}], {sub}")
        a(f"s_branch {back}")
    for b in range(2):
        a.label(f"L_mask{b}")
        a("s_nop 7")
        a(f"s_cmp_eq_u32 s{sN}, s{sND}")
        a(f"s_cbranch_scc0 L_maskall{b}")
        for r in range(4):
            a(f"v_cndmask_b32 v{S(b,0,0)+r}, v{S(b,0,0)+r}, v{vBIG}, s[{sMASK+2*r}:{sMASK+2*r+1}]")
            a(f"v_cndmask_b32 v{S(b,1,1)+r}, v{S(b,1,1)+r}, v{vBIG}, s[{sMASK+2*r}:{sMASK+2*r+1}]")
            a(f"v_mov_b32 v{S(b,1,0)+r}, v{vBIG}")
        a(f"s_setpc_b64 s[{sRET}:{sRET+1}]")
        a.label(f"L_maskall{b}")
        for i in range(16): a(f"v_mov_b32 v{S(b,0,0)+i}, v{vBIG}")
        a(f"s_setpc_b64 s[{sRET}:{sRET+1}]")
    a.label("L_fchk")
    hi, lo = f2u(2.0**OPT["thr"]), f2u(2.0**-OPT["thr"])
    a(f"s_add_u32 s{sT+1}, s{sND}, 1")
    a(f"s_cmp_gt_u32 s{sN}, s{sT+1}")
    a("s_cbranch_scc1 L_fret")
    for qt in range(2):
        a(f"v_mov_b32 v{vT+8+qt}, v{vSUM[qt][0]}")
        xlane(a, "v_add_f32", vT+8+qt, vT)
        a(f"v_subrev_u32 v{vT+8+qt}, {lo:#x}, v{vT+8+qt}")
    a(f"v_max_u32 v{vT+8}, v{vT+8}, v{vT+9}")
    a(f"v_cmp_lt_u32 vcc, {hi-lo:#x}, v{vT+8}")
    a("s_nop 4")
    a("s_cbranch_vccnz L_rare0")
    a.label("L_fret")
    a(f"s_setpc_b64 s[{sRET}:{sRET+1}]")
    for b in range(2):
        a.label(f"L_rare{b}")
        a("s_nop 7")
        D = [vT+8, vT+9]; F = [vT+10, vT+11]
        for qt in range(2):
            r0, r1 = S(b,0,qt), S(b,1,qt)
            a(f"v_max3_f32 v{D[qt]}, v{r0}, v{r0+1}, v{r0+2}")
            a(f"v_max3_f32 v{D[qt]}, v{D[qt]}, v{r0+3}, v{r1}")
            a(f"v_max3_f32 v{D[qt]}, v{D[qt]}, v{r1+1}, v{r1+2}")
            a(f"v_max_f32 v{D[qt]}, v{D[qt]}, v{r1+3}")
            xlane(a, "v_max_f32", D[qt], vT)
            a(f"v_max_f32 v{D[qt]}, s{sCLAMP}, v{D[qt]}")
            a(f"v_max_f32 v{F[qt]}, 0, v{D[qt]}")
            a(f"v_exp_f32 v{F[qt]}, -v{F[qt]}")
            for i in range(4): a(f"v_sub_f32 v{NEGM(qt)+i}, v{NEGM(qt)+i}, v{D[qt]}")
            for bb in range(2):
                for kt in range(2):
                    for i in range(4): a(f"v_sub_f32 v{S(bb,kt,qt)+i}, v{S(bb,kt,qt)+i}, v{D[qt]}")
            a(f"v_mul_f32 v{vL[qt]}, v{F[qt]}, v{vL[qt]}")
        for o in sm_ops(b): a(o)
        a(f"s_cmp_eq_u32 s{sFIRST}, 1")
        a(f"s_cbranch_scc1 L_rare_ret{b}")
        for dt in range(16):
            for qt in range(2):
                for i in range(4): a(f"v_mul_f32 v{O(dt,qt)+i}, v{F[qt]}, v{O(dt,qt)+i}")
        a.label(f"L_rare_ret{b}")
        a(f"s_cmp_lg_u32 s{sCNT}, s{sEV}")
        a("s_nop 0")
        a(f"s_setpc_b64 s[{sRET}:{sRET+1}]")
    a.label("L_slowcomb")
    a("s_nop 7")
    wA, wB = [vT+8, vT+9], [vT+10, vT+11]
    for qt in range(2):
        a(f"""
        v_min_f32 v{vT+6}, v{NEGM(qt)}, v{vSTB+qt}
        v_sub_f32 v{wA[qt]}, v{vT+6}, v{NEGM(qt)}
        v_sub_f32 v{wB[qt]}, v{vT+6}, v{vSTB+qt}
        v_exp_f32 v{wA[qt]}, v{wA[qt]}
        v_exp_f32 v{wB[qt]}, v{wB[qt]}
        s_nop 0
        v_mul_f32 v{vL[qt]}, v{wA[qt]}, v{vL[qt]}
        v_mul_f32 v{vSTB+2+qt}, v{wB[qt]}, v{vSTB+2+qt}
        """)
    for dt in range(16):
        for qt in range(2):
            for i in range(4): a(f"v_mul_f32 v{O(dt,qt)+i}, v{wA[qt]}, v{O(dt,qt)+i}")
    for i in range(64):
        qt = (i >> 2) & 1
        a(f"""
        v_accvgpr_read_b32 v{vT}, a{128+i}
        v_lshlrev_b32 v{vT+1}, 16, v{vT}
        v_and_b32 v{vT}, 0xffff0000, v{vT}
        v_mul_f32 v{vT+1}, v{wB[qt]}, v{vT+1}
        v_mul_f32 v{vT}, v{wB[qt]}, v{vT}
        v_cvt_pk_bf16_f32 v{vT}, v{vT+1}, v{vT}
        v_accvgpr_write_b32 a{128+i}, v{vT}
        """)
    a("s_nop 1")
    a("s_branch L_comb")
    a.label("L_codeend")
    lines = []
    for l in a.lines: lines += l.split("\n")
    ghost = [l.startswith("@ghost ") for l in lines]
    lines = [l[7:] if g else l for l, g in zip(lines, ghost)]
    lines = resolve_vm(lines)
    lines = [l.replace("@@buffer", "buffer") for l, g in zip(lines, ghost) if not g]
    errs = check_hazards(lines) + check_scc(lines)
    for e in errs[:30]: print("HAZARD", e, file=sys.stderr)
    lines = [re.sub(r"\s*; @\w+", "", l) for l in lines]
    lines = [l.strip() for l in lines if l.strip()]
    i, j = lines.index("L_gemmV:"), lines.index("L_P1A:")
    k = lines.index("L_zwaitV:"); k2 = lines.index("s_branch L_prepokV") + 1
    assert lines[i-1] == "s_branch L_P1A"
    lines = [".p2align 8"] + lines[i:j] + lines[k:k2] + lines[:i-1] + lines[j:k] + lines[k2:]
    lines = compact(lines)
    return "\n".join(lines) + "\n", kernel_desc(name, 512, 256)

if __name__ == "__main__":
    import ast
    for x in sys.argv[2:]:
        k, v = x.split("=")
        OPT[k] = ast.literal_eval(v)
    NAME = "recurrent_scan__compressed_kv_cla__dense_activation_squared_relu__prompt_kernel"
    body, desc = gen(NAME)
    ref = open("recurrent_scan__compressed_kv_cla__dense_activation_squared_relu__prompt.s.ref").read().split("\n")
    hdr = [l for l in ref if l.startswith(";") and "launch" not in l and "grid=" not in l]
    hdr += ["; @launch grid=(256,1,1) block=(256,1,1) lds=163840", '.amdgcn_target "amdgcn-amd-amdhsa--gfx950"', ".text"]
    txt = "\n".join(hdr) + "\n" + body + '.section .rodata,"a"\n.p2align 6\n' + desc
    open(sys.argv[1], "w").write(txt)
    print(len(txt), "bytes", file=sys.stderr)
```

```python
import re, struct
from asmlib import *
MF = "v_mfma_f32_16x16x32_bf16"
def f2u(x): return struct.unpack("<I", struct.pack("<f", x))[0]

def cls(ins):
    if ins.endswith(":"): return "L"
    if ins.startswith("s_"): return "S"
    if ins.startswith("ds_"): return "M"
    if ins.startswith("buffer_"): return "D"
    if ins.startswith(("v_exp", "v_rcp", "v_log", "v_rsq", "v_sqrt", "v_readlane", "v_readfirstlane")): return "E"
    return "V"
COST = {"S": 0, "L": 0, "M": 1, "V": 1, "E": 2, "D": 2}

class Stage:
    def __init__(self, mf=None):
        self.mf = mf or []
        self.fill = {}
        self.post = {}
        self.ops = []
        self.scc_busy = set()
        self.tail = []
    def put(self, g, ins):
        self.fill.setdefault(g, []).append(ins)
    def put_post(self, g, ins):
        self.post.setdefault(g, []).append(ins)
    def free(self, g):
        n = 2; ns = 0; nd = 0
        for i in self.fill.get(g, []) + self.post.get(g, []):
            c = cls(i)
            if c == "S": ns += 1
            elif c == "D": nd += 1; n -= 2
            else: n -= COST[c]
        if nd: n -= ns
        else: n -= max(0, ns - 1)
        return n
    def nS(self, g):
        return sum(1 for i in self.fill.get(g, []) + self.post.get(g, []) if cls(i) == "S")
    def hasD(self, g):
        return any(cls(i) == "D" for i in self.fill.get(g, []) + self.post.get(g, []))
    def add(self, ins, deps=(), early=0, late=None, dist=None):
        self.ops.append((ins, [d for d in deps if d is not None], early, late, dist)); return len(self.ops)-1
    def schedule(self, g_end=None, maxover=6, allow_tail=True):
        n = len(self.mf)
        g_end = n-1 if g_end is None else g_end
        ops = self.ops
        for over in range(0, maxover+1):
            placed = {}; used = {}
            for g in range(0, g_end+1):
                fr = self.free(g)
                cap = fr + (over if fr >= 0 and not self.hasD(g) else 0)
                ns = self.nS(g); hasd = self.hasD(g)
                while True:
                    cand = []
                    for i, (ins, deps, early, late, dist) in enumerate(ops):
                        if i in placed or g < early: continue
                        ok = True
                        for d in deps:
                            if d not in placed: ok = False; break
                            if dist is not None:
                                if g - placed[d] < dist: ok = False; break
                            elif placed[d] == g:
                                cd, ci = cls(ops[d][0]), cls(ins)
                                if not ((cd == "V" and ci in "VE") or (cd == "S" and ci != "D") or (cd == "M" and ci in "MVE")):
                                    ok = False; break
                        if ok: cand.append(i)
                    cand.sort(key=lambda i: (ops[i][3] if ops[i][3] is not None else 999, 0 if cls(ops[i][0]) in "ED" else 1, i))
                    got = None
                    for i in cand:
                        c = cls(ops[i][0])
                        must = ops[i][3] is not None
                        mycap = cap if must or not allow_tail else min(cap, fr)
                        if c == "S":
                            if hasd or g in self.scc_busy: continue
                            cost = 0 if ns == 0 else 1
                        elif c == "D":
                            if hasd or (fr < 2 or ns or used.get(g)) and not (must and over >= 2 and mycap >= 2): continue
                            cost = 2
                        else:
                            if hasd: continue
                            cost = COST[c]
                        if cost <= mycap:
                            got = i; break
                    if got is None: break
                    c = cls(ops[got][0])
                    placed[got] = g; cap -= cost; fr -= cost; used.setdefault(g, []).append(got)
                    if c == "S": ns += 1
                    if c == "D": hasd = True
            bad = [i for i, o in enumerate(ops) if (o[3] is not None and placed.get(i, 10**6) > o[3]) or (not allow_tail and i not in placed)]
            if not bad: break
        assert not bad, [ops[i] for i in bad[:5]]
        self.over = over
        for g in sorted(used):
            for i in used[g]: self.put(g, ops[i][0])
        self.tail += [o[0] for i, o in enumerate(ops) if i not in placed]
        self.ops = []
    def emit(self, a, tailpad=None):
        order = {"S": 0, "L": 0, "M": 1, "D": 1, "V": 2, "E": 2}
        f = {}
        for g in set(self.fill) | set(self.post):
            f[g] = sorted(self.fill.get(g, []), key=lambda i: order[cls(i)]) + self.post.get(g, [])
        for l in interleave(self.mf, f): a(l)
        if self.tail and tailpad: a(tailpad)
        for l in self.tail: a(l)

def resolve_vm(lines):
    out = list(lines)
    for i, l in enumerate(lines):
        m = re.search(r"vmcnt\(@(dma|since):(\w+)\)", l)
        if not m: continue
        kind, arg = m.groups()
        cnt = 0; nd = 0; val = None
        for j in range(i-1, -1, -1):
            s = lines[j].strip()
            if "@merge" in s:
                assert kind == "dma", ("tag not found before merge", l)
                val = cnt + (int(arg) - nd); break
            if s.startswith("buffer_"):
                isd = " lds" in s
                if kind == "dma":
                    if isd:
                        if nd == int(arg): val = cnt; break
                        nd += 1
                else:
                    if ("@" + arg) in s.split(): val = cnt; break
                cnt += 1
        assert val is not None, l
        out[i] = l.replace(m.group(0), f"vmcnt({min(val, 63)})")
    return out

def regs_of(tok):
    tok = tok.strip().lstrip("-").strip("|")
    m = re.fullmatch(r"([vas])\[(\d+):(\d+)\]", tok)
    if m: return {(m.group(1), r) for r in range(int(m.group(2)), int(m.group(3))+1)}
    m = re.fullmatch(r"([vas])(\d+)", tok)
    if m: return {(m.group(1), int(m.group(2)))}
    if tok in ("vcc", "m0", "exec"): return {(tok, 0)}
    return set()
def parse(ins):
    ins = ins.split(";")[0].strip()
    op, _, rest = ins.partition(" ")
    toks = [t.strip() for t in rest.split(",")] if rest else []
    if toks: toks[-1:] = toks[-1].split()
    return op, toks
def check_hazards(lines, margin=1):
    t = 0; lastmf = -100
    mfD = {}; mfC = {}; vw = {}; tw = {}; vsw = {}; m0w = -100; stw = {}; dlw = {}
    errs = []
    for ln, raw in enumerate(lines):
        s = raw.split(";")[0].strip()
        if not s or s.endswith(":") or s.startswith("."): continue
        op, toks = parse(s)
        if op == "s_nop":
            t += int(toks[0]) + 1; continue
        if op in ("s_branch", "s_setpc_b64", "s_endpgm"):
            t += 100; continue
        def need(tab, regs, n, what):
            for r in regs:
                if r in tab and t - tab[r] - 1 < n:
                    errs.append((ln, what, raw.strip(), r, t - tab[r] - 1)); return
        R = [regs_of(x) for x in toks]
        if op.startswith("v_mfma"):
            t = max(t, lastmf + 4); lastmf = t
            D, A, B, C = R[0], R[1], R[2], R[3]
            need(vw, A | B | C, 2, "valu->mfma")
            need(dlw, A | B | C, 3, "dot->mfma")
            need(mfD, A | B, 8 + margin, "mfmaD->AB")
            if C != D or True:
                for r in C:
                    if r in mfD and mfD[r][1] != frozenset(C) if False else False: pass
            for r in D: mfD[r] = t
            for r in C: mfC[r] = t
        elif op.startswith("v_"):
            if op.startswith("v_cmp"):
                dst = R[0]; src = set().union(*R[1:]); vd = set()
            elif op.startswith(("v_readlane", "v_readfirstlane")):
                dst = R[0]; src = set().union(*R[1:]); vd = set()
                need(vw, R[1], 1, "valu->readlane")
                if len(R) > 2: need(vsw, R[2], 4, "vsgpr->lanesel")
            else:
                dst = set(); vd = set(R[0]); src = set().union(*R[1:]) if len(R) > 1 else set()
                if op.startswith("v_permlane"): vd |= R[1]; src |= R[0]; need(vw, src, 2, "valu->permlane")
                if op.startswith(("v_fmac", "v_dot2c")): src |= R[0]
                if op.startswith("v_cndmask") and len(toks) == 3: src |= {("vcc", 0)}
                if "dpp" in op: need(vw, src, 2, "valu->dpp")
            need(mfD, src | vd, 8 + margin, "mfmaD->valu")
            need(mfC, vd, 3, "mfmaC->valuW")
            need(tw, src, 1, "trans->valu")
            need(vsw, {r for r in src if r[0] in ("s", "vcc")}, 2, "vsgpr->valu")
            need(stw, vd, 2, "store->valuW")
            if not op.startswith("v_dot"): need(dlw, src | vd, 3, "dot->other")
            for r in vd:
                vw[r] = t
                if cls(op) == "E": tw[r] = t
                if op.startswith("v_dot"): dlw[r] = t
            for r in dst: vsw[r] = t
        elif op.startswith(("buffer_", "ds_")):
            allr = set().union(*R) if R else set()
            need(mfD, allr, 8 + margin, "mfmaD->mem")
            need(vsw, {r for r in allr if r[0] == "s"}, 5, "vsgpr->vmem")
            need(dlw, allr, 3, "dot->mem")
            if "lds" in toks and t - m0w - 1 < 1: errs.append((ln, "m0->dma", raw.strip()))
            if op.startswith("buffer_store") and ("x4" in op or "x3" in op):
                for r in R[0]: stw[r] = t
            elif op.startswith(("buffer_load", "ds_read")) and "lds" not in toks:
                need(stw, R[0], 1, "store->loadW")
        elif op.startswith("s_"):
            if toks and toks[0] == "m0": m0w = t
        t += 1
    return errs

def check_scc(lines):
    errs = []; last = None
    nowr = ("s_mov", "s_mul_i32", "s_waitcnt", "s_nop", "s_barrier", "s_cbranch", "s_branch", "s_cselect", "s_load", "s_memrealtime", "s_memtime", "s_sleep", "s_call", "s_setpc", "s_endpgm", "s_setprio", "s_movk")
    for ln, raw in enumerate(lines):
        s = raw.split(";")[0].strip()
        if not s.startswith("s_"): continue
        op = s.split()[0]
        if op.startswith(("s_cbranch_scc", "s_cselect", "s_addc", "s_subb")):
            ok = last and (last.startswith(("s_cmp", "s_bitcmp", "s_or_b64", "s_and_b32")) or (op.startswith("s_subb") and last.startswith("s_sub_u32")) or (op.startswith("s_addc") and last.startswith("s_add_u32")))
            if not ok: errs.append((ln, "scc", s, last))
        if not op.startswith(nowr): last = op
    return errs

def compact(lines):
    macros = {}; out = []
    R = r"([va])\[(\d+):\d+\]"
    for l in lines:
        m = re.fullmatch(MF + rf" {R}, {R}, {R}, (0|{R})", l)
        if m:
            dt, d, at, a_, bt, b, c, ct, cn = m.groups()
            if c == "0": nm, args, cs = f"Z{dt}{at}{bt}", (d, a_, b), "0"
            elif (ct, cn) == (dt, d): nm, args, cs = f"M{dt}{at}{bt}", (d, a_, b), f"{dt}[\\d:\\d+3]"
            else: nm, args, cs = f"N{dt}{at}{bt}", (d, a_, b, cn), f"{ct}[\\c:\\c+3]"
            macros[nm] = f".macro {nm} d, a, b{', c' if len(args) == 4 else ''}\n{MF} {dt}[\\d:\\d+3], {at}[\\a:\\a+3], {bt}[\\b:\\b+3], {cs}\n.endm"
            out.append(f"{nm} {','.join(args)}"); continue
        m = re.fullmatch(r"ds_read_b128 a\[(\d+):\d+\], v(\d+) offset:(\d+)", l)
        if m:
            macros["RD"] = ".macro RD d, v, o\nds_read_b128 a[\\d:\\d+3], v\\v offset:\\o\n.endm"
            out.append("RD " + ",".join(m.groups())); continue
        m = re.fullmatch(r"ds_read_b64_tr_b16 a\[(\d+):\d+\], v(\d+) offset:(\d+)", l)
        if m:
            macros["RT"] = ".macro RT d, v, o\nds_read_b64_tr_b16 a[\\d:\\d+1], v\\v offset:\\o\n.endm"
            out.append("RT " + ",".join(m.groups())); continue
        out.append(l)
    return list(macros.values()) + out

import subprocess, os
def line_sizes(lines):
    isins = [not (l.endswith(":") or l.startswith(".") or l.startswith("@")) for l in lines]
    src = '.amdgcn_target "amdgcn-amd-amdhsa--gfx950"\n.text\n' + "\n".join(l for l in lines if not l.startswith((".p2align", "@"))) + "\ns_endpgm\n"
    open("sz.s", "w").write(src)
    r = subprocess.run(["clang", "-x", "assembler", "-target", "amdgcn-amd-amdhsa", "-mcpu=gfx950", "-c", "sz.s", "-o", "sz.o"], capture_output=True, text=True)
    assert r.returncode == 0, r.stderr[:2000]
    d = subprocess.run(["llvm-objdump", "-d", "sz.o"], capture_output=True, text=True).stdout
    ad = [int(m.group(1), 16) for m in re.finditer(r"// ([0-9A-F]{12}):", d)]
    assert len(ad) == sum(isins) + 1, (len(ad), sum(isins))
    out = []; k = 0
    for f in isins:
        if f: out.append(ad[k+1] - ad[k]); k += 1
        else: out.append(None)
    return out
def insert_stubs(lines, ranges, labels):
    sz = line_sizes(lines)
    out = []; adr = 0; cur = None; found = {}; page = 0; n = 0; lastl = -1
    starts = {a: (a, b) for a, b in ranges}
    for l, s in zip(lines, sz):
        if l.startswith(".p2align"):
            al = 1 << int(l.split()[1]); adr = (adr + al - 1)//al*al
        if l.endswith(":"):
            if cur and l[:-1] == cur[1]: cur = None
            if l[:-1] in starts: cur = starts[l[:-1]]
        if s is not None and adr >> 12 != page:
            page = adr >> 12
            if cur and lastl >> 6 != adr >> 6:
                out.append(f"@stub P{n}"); found.setdefault(cur[0], []).append(f"P{n}"); n += 1; adr += 4
        out.append(l)
        if s: adr += s
        if l.endswith(":") and l[:-1] in labels:
            out.append(f"@stub P{n}"); found.setdefault(cur[0] if cur else l[:-1], []).append(f"P{n}"); n += 1; lastl = adr; adr += 4
    return out, found
```

```python
import sys
from fw import *
from layout2 import *

OPT = dict(chg=1, tch=1, tg=[1, 2], tgs=3, ta=[0], tac=[1, 2, 3], tb=[5], tbc=[6, 7, 8], park=[0, 1, 2, 3, 4, 5], pst_n=3, swap=0, n0=[34, 34], enc0=0, enck=10, encw=[0, 0], enc=-1, ntA="", ntB="", ntS=" nt", chq=1, chp=1, cyc=0, npro=6, gcap=[4, 4, 3], dg2=8, xpos=3, rotm=4, rot=4, sync=[6, 10, 12, 15, 20, 22], xstep=20, wbl2=0, pfk=0, pfd=4, pfo=[0], pfn=2, smin=0, voff=0, dbgside=0, tlb=0, tlbm=0, tlbs=16, flit=9, npeel=7, slt=[100, 260, 780], slstep=16, sld=180, map2=False, kvb0=256, kvstepb=16, psleep=4, prep=1, pst=False, cpf=True, fine=False, touch=False, sc1ld=" sc1", stamps=False, early=[5, 13, 21, 29], late=[37, 45, 53, 61], cap=7, capb=8, capq=9, capn=12, kvstep=9, a15=38, fsleep=2, fdelay=96, qstep=7, wideloop=False, thr=40, kvsc=" sc1", sidesc=" sc1")

vLANE, vDMA, vTE, vTO, vL16, vRD, vPOLL, vFLG, vONE, vL4, vKV = range(1, 12)
DA = [12, 13, 14, 15]; DB = [16, 17, 18, 19]; RA = [20, 21]; RB = [22, 23, 24, 25]
vSW, vSF, vSX, vG1 = 26, 27, 28, 29
GT = 30
vT = 12
BIAS = 12
O0 = 128
def O(dt, qt): return O0 + (dt*2+qt)*4
def S(b, kt, qt): return 64 + b*16 + (kt*2+qt)*4
def P(b, qt): return 96 + b*8 + qt*4
def NEGM(qt): return 112 + qt*4
vL = [120, 121]
vSUM = [[122, 123], [124, 125]]
vBIG = 126
vSTAT = 44
vSEL = 48
vRINV = [54, 55]
vSTB = 56
def accreg(pos): return vr(48+4*pos, 4) if pos < 52 else ar(208+4*(pos-52), 4)
NE = 6
def PK(c): return 48+4*c if c < 20 else (48+4*(c-20) if c < 20+NE else 48+4*(20+c))
def Q(qb, qt, u): return qb + (qt*8+u)*4
def FR(f): return 64 + (f % 16)*4
def X(qt, u): return 128 + (u*2+qt)*4
def FA(b, m): return (64 if b == 0 else 0) + m*4
def FB(b, n): return (64 if b == 0 else 0) + 32 + n*4
def CA(m, kk): return (96 + m*8 + kk*4) % 128
def CB(n, kk): return (64 if n < 4 else 32) + (n & 3)*8 + kk*4
def QU(u): return ((u >> 1) & 1)*4 + (u >> 2)*2 + (u & 1) if OPT["chg"] == 2 else u
WOL = 192
SLD = 128

sWS, sSA, sSB, sG, sDBG = 4, 8, 12, 16, 20
_n = [24]
def sal(n=1, al=1):
    _n[0] = (_n[0] + al - 1)//al*al
    r = _n[0]; _n[0] += n; return r
sWAVE, sHEAD, sJ, sQI, sWHICH = [sal() for _ in range(5)]
gA0, gA1, gB0, gB1, gMA, gMB, gIT, gD, gCNT, gFL = [sal() for _ in range(10)]
sTAU, sM0, sOFFA, sOFFB, sRDD, sRDS, sXOFF, sXOF2, sN, sND = gA0, gA1, gB0, gB1, gD, gCNT, sal(), sal(), sal(), sal()
sCNT, sEV, sCLAMP, sFIRST = sal(), sal(), sal(), sal()
sRET = sal(2, 2)
sMASK = sal(8, 4)
sTYPE, sU1, sU2, sW0 = sal(), sal(), sal(), sal()
sKVB, sKVI = sal(), sal()
sQST, sPT, sPSG, sPSS = sal(), sal(), sal(), sal()
sFKV, sFKVP, sFQ, sFSG, sFSS = [sal() for _ in range(5)]
sT = sal(8, 4)
sLN = sal(2, 2)
sFS = sal(2, 2); sW4K = 3
sPF = sRET; sPD = sT+5; sEXP = gFL
sSTAMP = sal(0, 2)
NSTAMP = (102 - sSTAMP)//2
print("sgpr used", sSTAMP, "stamps", NSTAMP, file=sys.stderr)
WS = sr(sWS, 4)

STUBS = []
def ld(): return OPT["sc1ld"]
def FT(): return "s_memtime" if OPT["cyc"] else "s_memrealtime"

XG = [1, 9, 17, 25, 33, 41, 49, 57]
XG4 = list(range(1, 64, 4))
def common_fill(st, dma=True, nd=None, last=False, novm=False, rdl=False):
    if nd is None: nd = 16 + len(OPT["early"]) + sum(1 for g in OPT["late"] if g < 38)
    for G in range(8):
        g0 = G*8
        Gn = (G+3) % 8
        for i in range(4):
            f = Gn*4+i
            if not (last and G > 4): st.put(g0+2*i, f"ds_read_b128 {ar(FR(f),4)}, v{vRD} offset:{f*1024}")
        if last and G >= 4:
            if G < 7: st.put(g0+6, f"s_waitcnt lgkmcnt({(7, 4, 0)[G-4]})")
        elif G == 4:
            st.put(g0+6, "s_waitcnt lgkmcnt(7)" if novm else f"s_waitcnt vmcnt(@dma:{nd}) lgkmcnt(7)")
            st.put(g0+7, "s_barrier")
            st.put(g0+7, f"v_add_u32 v{vRD}, s{sRDD}, v{vRD}")
        else:
            st.put(g0+6, "s_waitcnt lgkmcnt(7)")
    for i, g in enumerate(OPT["early"] if dma else []):
        st.put(g, f"buffer_load_dwordx4 v{vDMA}, {WS}, s{sOFFB} offen offset:{i*1024}{ld()} lds")
    if dma: st.put(31, f"v_readlane_b32 s{sOFFA}, v{vTO}, s{sTAU}")
    st.put(31, f"s_add_u32 m0, s{sM0}, 16384")
    st.put(34, f"s_add_u32 s{sM0}, s{sM0}, s{sRDD}")
    st.put(36, f"s_cmp_ge_u32 s{sM0}, 131072")
    st.put(38, f"s_cselect_b32 s{sRDD}, s{gMA}, s{gMB}")
    st.put(44, f"s_add_u32 s{sTAU}, s{sTAU}, 1")
    for i, g in enumerate(OPT["late"] if dma else []):
        st.put(g, f"buffer_load_dwordx4 v{vDMA}, {WS}, s{sOFFA} offen offset:{i*1024}{ld()} lds")
    if dma or rdl: st.put(55, f"v_readlane_b32 s{sOFFB}, v{vTE}, s{sTAU}")
    st.put(63, f"s_mov_b32 m0, s{sM0}")
    st.scc_busy |= {36, 37}
    if OPT["fine"]:
        st.put(4, f"{FT()} s[{sFS}:{sFS+1}]")
        st.put(6, f"v_mov_b32_dpp v{vKV}, v{vKV} wave_shr:1 row_mask:0xf bank_mask:0xf")
        st.put(62, f"v_writelane_b32 v{vKV}, s{sFS}, 0")

class Jobs:
    def __init__(self): self.jobs = []; self.at = {}
    def add(self, key, pre, ins, early, late): self.jobs.append((late, len(self.jobs), early, pre, ins, key))
    def place(self, st, s, cap=6, grid=None):
        slots = [g for g in (grid or XG) if not st.hasD(g) and st.free(g) == 2 and st.nS(g) == 0]
        n = 0
        avail = len([j for j in self.jobs if j[2] <= s*64+63])
        k = min(cap, avail, len(slots))
        use = [slots[(i*len(slots))//k] for i in range(k)] if k else []
        for g in slots:
            t = s*64+g
            c = sorted(j for j in self.jobs if j[2] <= t)
            if not c: continue
            j = c[0]
            nxt = [x for x in slots if x > g]
            urgent = j[0] < (s*64+nxt[0] if nxt else (s+1)*64+1)
            if not (urgent or (n < cap and (g in use or len(nxt) < k-n))): continue
            assert t <= j[0] + (24 if j[5][0] == "x" else 0) or j[5] in ("qs", "kvf", "qf") or (j[5] == "kv" and j[2] >= 64), ("job late", j, t)
            if j[3]:
                assert g-1 not in st.scc_busy
                st.put(g-1, j[3])
            st.put(g, j[4]); self.jobs.remove(j); self.at[j[5]] = t; n += 1

def mf_pv(half, pb, czero=False):
    return [f"{MF} {vr(O(dt,qt),4)}, {ar(FR(half*16+dt),4)}, {vr(P(pb,qt),4)}, {'0' if czero else vr(O(dt,qt),4)}"
            for dt in range(16) for qt in range(2)]
def mf_qk(half, sb, qb, czero=False):
    out = []
    for kt in range(2):
        seq = [(u, qt) for u in range(8) for qt in range(2)]
        if OPT["chq"]: seq = [(g*4+u, qt) for g in range(2) for qt in ((0, 1), (1, 0))[g] for u in range(4)]
        for u, qt in seq:
            c = ('0' if czero else vr(NEGM(qt),4)) if u == 0 else vr(S(sb,kt,qt),4)
            out.append(f"{MF} {vr(S(sb,kt,qt),4)}, {ar(FR(half*16+kt*8+u),4)}, {ar(Q(qb,qt,QU(u)),4)}, {c}")
    return out
def mf_proj(s, init=None):
    out = []
    for nt in range(16):
        seq = [(0, 0, 1), (1, 0, 0), (1, 1, 1), (0, 1, 0)] if OPT["chp"] else [(0, 0, 1), (0, 1, 1), (1, 0, 0), (1, 1, 0)]
        for uu, qt, first in seq:
            c = vr(O(nt,qt),4)
            if first and init == "zero": c = "0"
            if first and init == "bias": c = vr(O(nt,1),4)
            out.append(f"{MF} {vr(O(nt,qt),4)}, {ar(FR(2*nt+uu),4)}, {ar(X(qt,2*s+uu),4)}, {c}")
    return out
def PA(b, nt, qt): return 64 + (nt*2+qt)*4 if b == 0 else O(2*nt+1, qt)
def mf_post(s):
    out = []
    for f in range(32):
        u, nt = f >> 2, f & 3
        for qt in range(2):
            d = vr(PA(s & 1, nt, qt), 4)
            out.append(f"{MF} {d}, {ar(FR(f),4)}, {vr(O(2*u,qt),4)}, {'0' if u == 0 else d}")
    return out

def sm_ops(b):
    ops = []
    seq = [(kt, qt, rp) for kt in range(2) for qt in range(2) for rp in range(2)]
    pend = []
    for i, (kt, qt, rp) in enumerate(seq):
        t0 = vT + (i % 4)*2
        s0 = S(b,kt,qt) + rp*2
        ops.append(f"v_exp_f32 v{t0}, v{s0}")
        ops += pend[:1]
        ops.append(f"v_exp_f32 v{t0+1}, v{s0+1}")
        ops += pend[1:]
        acc = vSUM[qt][rp]
        if kt == 0: pend = [f"v_add_f32 v{acc}, v{t0}, v{t0+1}"]
        else: pend = [f"v_add_f32 v{acc}, v{acc}, v{t0}", f"v_add_f32 v{acc}, v{acc}, v{t0+1}"]
        pend.append(f"v_cvt_pk_bf16_f32 v{P(b,qt)+kt*2+rp}, v{t0}, v{t0+1}")
    ops.append("s_nop 0")
    ops += pend
    ops += [f"v_add_f32 v{vSUM[0][0]}, v{vSUM[0][0]}, v{vSUM[0][1]}", f"v_add_f32 v{vSUM[1][0]}, v{vSUM[1][0]}, v{vSUM[1][1]}"]
    return ops

def place_sm(st, b, g0, g_end, tag, ladd=True, first=False, mask=True):
    if mask:
        st.put(g0-1, f"s_cmp_ge_u32 s{sN}, s{sND}")
        st.put(g0, f"s_cbranch_scc1 L_domask_{tag}")
        st.put(g0, f"L_nomask_{tag}:")
        STUBS.append((f"L_domask_{tag}", f"L_mask{b}", f"L_nomask_{tag}"))
        st.put(g0+2 if g0 == 0 else 42, f"s_add_u32 s{sN}, s{sN}, 1")
        st.scc_busy |= {g0-1}
    def add(ins, deps=(), early=0): return st.add(ins, deps, max(early, g0), g_end)
    la = [add(f"v_add_f32 v{vL[q]}, v{vL[q]}, v{vSUM[q][0]}") for q in range(2)] if ladd else []
    seq = [(kt, qt, rp) for kt in range(2) for qt in range(2) for rp in range(2)]
    users = {}; lastacc = {}; NT = 6
    for i, (kt, qt, rp) in enumerate(seq):
        t0 = vT + (i % NT)*2
        s0 = S(b,kt,qt) + rp*2
        war = users.get(i - NT, [])
        e = g0 + (1 if kt == 0 else 3)
        e0 = add(f"v_exp_f32 v{t0}, v{s0}", war, e)
        e1 = add(f"v_exp_f32 v{t0+1}, v{s0+1}", war, e)
        acc = vSUM[qt][rp]
        if kt == 0:
            a0 = add(f"v_add_f32 v{acc}, v{t0}, v{t0+1}", [e0, e1] + la)
            u = [a0]; lastacc[(qt,rp)] = a0
        else:
            a0 = add(f"v_add_f32 v{acc}, v{acc}, v{t0}", [e0, lastacc[(qt,rp)]])
            a1 = add(f"v_add_f32 v{acc}, v{acc}, v{t0+1}", [e1, a0])
            u = [a0, a1]; lastacc[(qt,rp)] = a1
        c = st.add(f"v_cvt_pk_bf16_f32 v{P(b,qt)+kt*2+rp}, v{t0}, v{t0+1}", [e0, e1], g0, g_end-1)
        users[i] = u + [c]
    f0 = add(f"v_add_f32 v{vSUM[0][0]}, v{vSUM[0][0]}, v{vSUM[0][1]}", [lastacc[(0,0)], lastacc[(0,1)]])
    f1 = add(f"v_add_f32 v{vSUM[1][0]}, v{vSUM[1][0]}, v{vSUM[1][1]}", [lastacc[(1,0)], lastacc[(1,1)]])
    hi = f2u(2.0**OPT["thr"])
    if not first:
        mx = add(f"v_max_f32 v{vT+14}, v{vSUM[0][0]}, v{vSUM[1][0]}", [f0, f1])
        add(f"v_cmp_nge_f32 vcc, {hi:#x}, v{vT+14}", [mx])
    else:
        lo = f2u(2.0**-OPT["thr"])
        m0 = add(f"v_subrev_u32 v{vT+14}, {lo:#x}, v{vSUM[0][0]}", [f0])
        m1 = add(f"v_subrev_u32 v{vT+15}, {lo:#x}, v{vSUM[1][0]}", [f1])
        mx = add(f"v_max_u32 v{vT+14}, v{vT+14}, v{vT+15}", [m0, m1])
        add(f"v_cmp_lt_u32 vcc, {hi-lo:#x}, v{vT+14}", [mx])

def xlane_ops(op, v, t1):
    return [(f"v_mov_b32 v{t1}, v{v}", 0), (f"v_permlane16_swap_b32 v{v}, v{t1}", 2), (f"{op} v{v}, v{v}, v{t1}", 1),
            (f"v_mov_b32 v{t1}, v{v}", 0), (f"v_permlane32_swap_b32 v{v}, v{t1}", 2), (f"{op} v{v}, v{v}, v{t1}", 1)]
def xlane(a, op, v, t1):
    for ins, d in xlane_ops(op, v, t1):
        if d: a(f"s_nop {d-1}")
        a(ins)

class Chain:
    def __init__(self, items, grid=None): self.items = list(items); self.lastg = -10; self.grid = grid; self.base = 0; self.lastD = -999; self.minD = 0
    def fill(self, st, g0=0, g1=63):
        g = g0; lastg = -10
        while self.items and g <= g1:
            ins, dist = self.items[0][:2]
            early = self.items[0][2] if len(self.items[0]) > 2 else 0
            c = cls(ins)
            ok = g - lastg >= dist and g >= early and not st.hasD(g)
            if ok and g == lastg and not (c in "VE" and cls(self.last) in "VM"): ok = False
            if ok:
                if c == "S": ok = (st.nS(g) == 0 or st.free(g) >= 1) and not (g in st.scc_busy and not ins.startswith(("s_mov", "s_mul", "s_wait", "s_nop")))
                elif c == "D": ok = st.free(g) == 2 and st.nS(g) == 0 and (self.grid is None or g in self.grid) and self.base + g - self.lastD >= self.minD
                else: ok = st.free(g) >= COST[c]
            if ok:
                st.put(g, ins); self.items.pop(0); lastg = g; self.last = ins
                if c == "D": self.lastD = self.base + g
            else:
                g += 1
    def flush(self, a):
        for it in self.items:
            if it[1]: a(f"s_nop {it[1]-1}")
            a(it[0])
        self.items = []

SITES = []
def touch(nm, key):
    SITES.append((nm, key))
    o = "s_mov_b64 exec, 0\n"
    for w in range(3): o += f"s_cmp_eq_u32 s{sWAVE}, {w}\ns_cbranch_scc1 LT_{nm}_{w}\n"
    return o + f"s_branch LT_{nm}_3\nLR_{nm}:\ns_mov_b64 exec, -1"
def tcall(k): return f"s_call_b64 s[{sRET}:{sRET+1}], L_tsub{k}"

def gen(name="mega_kernel"):
    a = Asm()
    STUBS.clear(); SITES.clear()
    stamps = OPT["stamps"]
    nst = [0]
    def stamp_ins():
        i = nst[0]; nst[0] += 1
        assert i < NSTAMP
        return f"s_memrealtime s[{sSTAMP+2*i}:{sSTAMP+2*i+1}]"
    def streg(i): return sSTAMP+2*i if i < NSTAMP else sMASK+2*(i-NSTAMP)
    def stamp(i, p=False):
        if OPT["pst"] and 2 <= i <= 6 and not p: return
        if p and not OPT["pst"]: return
        if stamps: a(f"s_memrealtime s[{streg(i)}:{streg(i)+1}]")
    def merge(lbl, align=False):
        if align: a.raw(".p2align 6")
        a.label(lbl); a.comment("@merge")
    strideA, strideB = 2048, 8192
    a.raw(kernel_header(name))
    a("s_cmp_ge_u32 s2, 256")
    a("s_cbranch_scc0 L_go")
    a("s_endpgm")
    a.label("L_go")
    stamp(0)
    sW12, sX = sMASK, sMASK+4
    gHEAD, gMT, gWM, gWN = sCNT, sEV, sCLAMP, sFIRST
    a(f"""
    s_load_dwordx2 s[{sSA}:{sSA+1}], s[0:1], 8
    s_load_dwordx4 s[{sT}:{sT+3}], s[0:1], 24
    s_load_dwordx2 s[{sWS}:{sWS+1}], s[0:1], 104
    s_load_dwordx2 s[{sX}:{sX+1}], s[0:1], 0
    s_load_dwordx2 s[{sDBG}:{sDBG+1}], s[0:1], 96
    s_load_dwordx2 s[{sW12}:{sW12+1}], s[0:1], 56
    s_load_dwordx2 s[{sRET}:{sRET+1}], s[0:1], 72
    s_load_dwordx2 s[{sT+6}:{sT+7}], s[0:1], 16
    v_and_b32 v{vLANE}, 63, v0
    v_lshrrev_b32 v{GT}, 6, v0
    v_lshlrev_b32 v{vL16}, 4, v{vLANE}
    v_readfirstlane_b32 s{sWAVE}, v{GT}
    s_and_b32 s3, s2, 7
    s_lshl_b32 s3, s3, 1
    s_lshr_b32 s{sJ}, s2, 4
    s_bfe_u32 s{sWHICH}, s2, 0x10003
    s_add_u32 s{sHEAD}, s3, s{sWHICH}
    s_and_b32 s{gHEAD}, s{sJ}, 1
    s_add_u32 s{gHEAD}, s{gHEAD}, s3
    s_lshr_b32 s{gWM}, s2, 1
    s_xor_b32 s{gMT}, s2, s{gWM}
    s_bfe_u32 s{gMT}, s{gMT}, 0x10005
    s_lshl_b32 s{gMT}, s{gMT}, 2
    s_lshr_b32 s{gWM}, s2, 6
    s_xor_b32 s{gWM}, s{gWM}, 2
    s_or_b32 s{gMT}, s{gMT}, s{gWM}
    """)
    if OPT["map2"]:
        a(f"""
        s_bfe_u32 s{gHEAD}, s2, 0x10005
        s_add_u32 s{gHEAD}, s{gHEAD}, s3
        s_lshl_b32 s{gMT}, s{sWHICH}, 2
        s_bfe_u32 s{gWM}, s2, 0x10004
        s_or_b32 s{gMT}, s{gMT}, s{gWM}
        s_bfe_u32 s{gWM}, s2, 0x10007
        s_xor_b32 s{gWM}, s{gWM}, 1
        s_lshl_b32 s{gWM}, s{gWM}, 1
        s_or_b32 s{gMT}, s{gMT}, s{gWM}
        s_bfe_u32 s{sWHICH}, s2, 0x10006
        """)
    if OPT["swap"]:
        a(f"""
        s_cmp_lt_u32 s{sJ}, 8
        s_cselect_b32 s{gWM}, {2*OPT["swap"]}, 0
        s_xor_b32 s{sHEAD}, s{sHEAD}, s{gWM}
        """)
    a(f"""
    s_and_b32 s{gWM}, s{sWAVE}, 1
    s_lshr_b32 s{gWN}, s{sWAVE}, 1
    """)
    t2, t3, t4, t5, t6 = GT, GT+1, GT+2, GT+3, GT+4
    a(f"""
    v_lshrrev_b32 v{t2}, 3, v{vLANE}
    s_lshl_b32 s{gA0}, s{gMT}, 8
    s_lshl_b32 s{gA1}, s{sWAVE}, 6
    {f"s_lshl_b32 s{gMA}, s{gWM}, 5" if OPT["chg"] else ""}
    {f"s_sub_u32 s{gA1}, s{gA1}, s{gMA}" if OPT["chg"] else ""}
    s_lshl_b32 s{gMA}, s{gA1}, 7
    s_add_u32 s{gA0}, s{gA0}, s{gA1}
    v_add_u32 v{t2}, s{gA0}, v{t2}
    v_lshlrev_b32 v{t2}, 11, v{t2}
    v_and_b32 v{t3}, 7, v{vLANE}
    v_lshrrev_b32 v{t4}, 4, v{vLANE}
    v_xor_b32 v{t5}, v{t3}, v{t4}
    v_lshl_add_u32 v{t5}, v{t5}, 4, v{t2}
    v_xor_b32 v{t6}, 4, v{t4}
    v_xor_b32 v{t6}, v{t3}, v{t6}
    v_lshl_add_u32 v{t6}, v{t6}, 4, v{t2}
    """)
    for jl in range(4):
        a(f"v_add_u32 v{DA[jl]}, {4096 + jl*8*strideA - jl*1024}, v{t5 if (jl & 1) == 0 else t6}")
    a(f"""
    v_bfe_u32 v{t2}, v{vLANE}, 3, 2
    v_lshlrev_b32 v{t3}, 13, v{t2}
    v_lshrrev_b32 v{t4}, 5, v{vLANE}
    v_lshl_add_u32 v{t3}, v{t4}, {18 if OPT["chg"] == 1 else 7}, v{t3}
    v_lshrrev_b32 v{t4}, 1, v{t2}
    v_lshlrev_b32 v{t4}, 2, v{t4}
    v_and_b32 v{t5}, 7, v{vLANE}
    v_xor_b32 v{t4}, v{t4}, v{t5}
    s_lshl_b32 s{gA0}, s{gWM}, 1
    v_xor_b32 v{t4}, s{gA0}, v{t4}
    v_lshl_add_u32 v{t3}, v{t4}, 4, v{t3}
    s_lshl_b32 s{gA0}, s{gHEAD}, 9
    s_lshl_b32 s{gA1}, s{sWAVE}, 16
    s_add_u32 s{gA0}, s{gA0}, s{gA1}
    v_add_u32 v{t3}, s{gA0}, v{t3}
    """)
    for jl in range(4):
        a(f"v_add_u32 v{DB[jl]}, {4096 + (jl>>1)*4*strideB + (jl&1)*(32*strideB if OPT['chg'] == 2 else 256) - jl*1024}, v{t3}")
    a(f"""
    s_mul_i32 s{gA1}, s3, {OPT["rot"]*64}
    s_mul_i32 s{gA0}, s{gMT}, {OPT["rotm"]*128}
    s_add_u32 s{gA1}, s{gA1}, s{gA0}
    s_and_b32 s{gA1}, s{gA1}, 0x7ff
    s_lshl_b32 s{gMB}, s{sWAVE}, 12
    s_mov_b32 s{sSA+2}, {4194304+4096}
    s_mov_b32 s{sSA+3}, 0x20000
    s_mov_b32 s{sSB+2}, {8388608+4096}
    s_mov_b32 s{sSB+3}, 0x20000
    @PST2
    s_waitcnt lgkmcnt(0)
    @PST3
    s_sub_u32 s{sSA}, s{sSA}, 4096
    s_subb_u32 s{sSA+1}, s{sSA+1}, 0
    s_cmp_eq_u32 s{sWHICH}, 0
    s_cselect_b32 s{sSB}, s{sT}, s{sT+2}
    s_cselect_b32 s{sSB+1}, s{sT+1}, s{sT+3}
    s_sub_u32 s{sSB}, s{sSB}, 4096
    s_subb_u32 s{sSB+1}, s{sSB+1}, 0
    """)
    for i in (2, 3):
        k = [n for n, l in enumerate(a.lines) if f"@PST{i}" in l][0]
        a.lines[k] = f"s_memrealtime s[{streg(i)}:{streg(i)+1}]" if OPT["pst"] else ""
    MA, MB = (0x207ff if OPT["chg"] else 0x107ff), 0x7fffff
    hA = 64 if OPT["chg"] else 32; hB = (32*strideB, 128, 256)[OPT["chg"]]
    gRA, gRB, gTS = gA1, gCNT, (gA0, sT)
    a(f"s_lshl_b32 s{gRB}, s{gRA}, 12")
    def dma_group(kind, par):
        t = gTS[par & 1]
        if kind[0] == "A":
            _, it, h = kind
            m0 = f"s_add_u32 m0, s{gMA}, {(131072, 0, 65536)[it % 3] + h*hA*128}"; regs, srd = DA, sSA
            so = f"s_add_u32 s{t}, s{gRA}, {h*hA*strideA + it*128}\ns_and_b32 s{t}, s{t}, {MA}"
        elif kind[0] == "B":
            _, it, h = kind
            m0 = f"s_add_u32 m0, s{gMB}, {32768 + (it & 1)*65536 + h*16384}"; regs, srd = DB, sSB
            so = f"s_add_u32 s{t}, s{gRB}, {it*64*strideB + h*hB}\ns_and_b32 s{t}, s{t}, {MB}"
        else:
            y = kind[1]
            return f"s_add_u32 m0, s{gMB}, {y*16384}", f"s_add_u32 s{t}, s{sW0}, {y*16384}", \
                   [f"buffer_load_dwordx4 v{vDMA}, {WS}, s{t} offen offset:{i*1024}{ld()} lds ; @gU{y}" for i in range(4)]
        return m0, so, [f"buffer_load_dwordx4 v{regs[jl]}, {sr(srd,4)}, s{t} offen offset:{jl*1024}{OPT['nt' + kind[0]]} lds ; @g{kind[0]}{it}_{h}" for jl in range(4)]
    todo = []
    for it in range(16):
        if OPT["chg"]: todo += [(2*it-1+h, 2*(it-d)+h, (k_, it, h)) for h in range(2) for k_, d in (("A", 3), ("B", 2))]
        else: todo += [(2*it-1, 2*(it-3)+1, ("A", it, 0)), (2*it-1, 2*(it-2), ("B", it, 0)), (2*it-1, 2*(it-3)+1, ("A", it, 1)), (2*it, 2*(it-2)+1, ("B", it, 1))]
    todo += [(31+y, av, ("U", y)) for y, av in enumerate((27, 27, 28, 29, 29, 29, 30, 31))]
    GS = {}; order = []
    for n in range(-1, 32):
        cap = OPT["npro"] if n < 0 else OPT["gcap"][min(n, len(OPT["gcap"])-1)]
        c = sorted([x for x in todo if x[1] <= n], key=lambda x: x[0])[:cap]
        for x in c: todo.remove(x); assert x[0] > n or n < 0, (x, n)
        GS[n] = [x[2] for x in c]; order += GS[n]
    assert not todo
    print("GS", {n: len(v) for n, v in GS.items()}, file=sys.stderr)
    def gtag(k): return f"gU{k[1]}" if k[0] == "U" else f"g{k[0]}{k[1]}_{k[2]}"
    def gwait(n):
        it, kk = (n+1) >> 1, (n+1) & 1
        need = [("U", 0), ("U", 1)] if n == 31 else [("B", it, 1)] if kk else [("A", it, 0), ("A", it, 1), ("B", it, 0)]
        if OPT["chg"] and n < 31: need = [("A", it, kk), ("B", it, kk)]
        return f"vmcnt(@since:{gtag(max(need, key=order.index))})"
    main = a; a = Asm()
    sWID, u_, nb_, o_, o2_ = sXOFF, sT+1, sT+2, sT+3, sT+4
    sD = [sQST, sPT, sPSG]; sXS = sPSS; sHI = sFSG; sSTR = sFSS
    vWO, vW12 = vRD, vDMA
    G = sr(sG, 4)
    r_, g_, r8 = GT, GT+1, GT+2
    h_, i_ = GT+5, GT+6
    a(f"""
    s_lshl_b32 s{sWID}, s2, 2
    s_add_u32 s{sWID}, s{sWID}, s{sWAVE}
    s_mov_b32 s{sX+2}, {2048*896}
    s_mov_b32 s{sX+3}, 0x20000
    v_and_b32 v{h_}, 3, v{vLANE}
    v_lshrrev_b32 v{i_}, 2, v{vLANE}
    v_mul_u32_u24 v{GT+7}, 896, v{h_}
    v_lshl_add_u32 v{GT+7}, v{i_}, 4, v{GT+7}
    v_cmp_gt_u32 s[{sLN}:{sLN+1}], 14, v{i_}
    v_mov_b32 v{GT+8}, {OOB}
    s_lshr_b32 s{gB1}, s{sWID}, 1
    s_mul_i32 s{gB1}, s{gB1}, 3584
    s_mul_i32 s{gB0}, s{gWM}, 448
    s_add_u32 s{gB1}, s{gB1}, s{gB0}
    v_cndmask_b32 v{GT+11}, v{GT+8}, v{GT+7}, s[{sLN}:{sLN+1}]
    s_getpc_b64 s[{sG}:{sG+1}]
    L_pc:
    s_sub_u32 s{sG}, s{sG}, L_pc - L_gemmV
    s_subb_u32 s{sG+1}, s{sG+1}, 0
    s_mov_b32 s{sG+2}, L_codeend - L_gemmV
    s_mov_b32 s{sG+3}, 0x20000
    s_lshr_b32 s{gB0}, s2, 3
    s_lshl_b32 s{gB0}, s{gB0}, 2
    s_add_u32 s{gB0}, s{gB0}, s{sWAVE}
    s_lshl_b32 s{gB0}, s{gB0}, 10
    s_mov_b32 s{sWS+2}, {WS_SIZE}
    s_mov_b32 s{sWS+3}, 0x20000
    v_and_b32 v{r_}, 15, v{vLANE}
    v_lshrrev_b32 v{g_}, 4, v{vLANE}
    v_lshlrev_b32 v{r8}, 3, v{r_}
    """)
    def natdest(dst, base):
        a(f"""
        s_lshr_b32 s{o_}, s{nb_}, 2
        s_mul_i32 s{o_}, s{o_}, {7*32768}
        s_lshr_b32 s{o2_}, s{u_}, 1
        s_lshl_b32 s{o2_}, s{o2_}, 15
        s_add_u32 s{o_}, s{o_}, s{o2_}
        s_and_b32 s{o2_}, s{nb_}, 3
        s_lshl_b32 s{o2_}, s{o2_}, 13
        s_add_u32 s{o_}, s{o_}, s{o2_}
        s_and_b32 s{o2_}, s{u_}, 1
        s_lshl_b32 s{o2_}, s{o2_}, 10
        s_add_u32 s{o_}, s{o_}, s{o2_}
        s_add_u32 s{dst}, s{o_}, {base}
        """)
    def div7(idx):
        a(f"""
        s_mul_i32 s{u_}, s{idx}, 9363
        s_lshr_b32 s{u_}, s{u_}, 16
        s_mul_i32 s{nb_}, s{u_}, 7
        s_sub_u32 s{nb_}, s{idx}, s{nb_}
        """)
    def ffdest(dst, base, lim, idx=sWID):
        a(f"""
        s_mul_i32 s{o_}, s{nb_}, {184*4096}
        s_lshl_b32 s{o2_}, s{u_}, 12
        s_add_u32 s{o_}, s{o_}, s{o2_}
        s_add_u32 s{dst}, s{o_}, {base}
        s_cmp_lt_u32 s{idx}, {lim}
        s_cselect_b32 s{dst}, s{dst}, {OOB}
        """)
    a(f"""
    s_mov_b32 s{sDBG+2}, 16
    s_mov_b32 s{sDBG+3}, 0x20000
    v_mul_u32_u24 v{vWO}, {4*896}, v{g_}
    v_add_u32 v{vWO}, v{vWO}, v{r8}
    s_lshl_b32 s{gD}, s{gMT}, 1
    s_add_u32 s{gD}, s{gD}, s{sWHICH}
    s_lshl_b32 s{gD}, s{gD}, 2
    s_add_u32 s{gD}, s{gD}, s{sWAVE}
    """)
    div7(gD)
    a(f"""
    s_lshl_b32 s{o_}, s{gHEAD}, 3
    s_add_u32 s{u_}, s{u_}, s{o_}
    s_mul_i32 s{o_}, s{u_}, {32*896}
    s_lshl_b32 s{o2_}, s{nb_}, 7
    s_add_u32 s{o_}, s{o_}, s{o2_}
    s_cmp_lt_u32 s{gD}, 56
    s_cselect_b32 s{o_}, s{o_}, {OOB}
    v_add_u32 v{vWO}, s{o_}, v{vWO}
    """)
    ffdest(sD[1], WS_WFF + 56*4096, 56, gD)
    a(f"""
    s_lshr_b32 s{u_}, s{sWID}, 2
    s_mul_i32 s{u_}, s{u_}, 9363
    s_lshr_b32 s{u_}, s{u_}, 16
    s_mul_i32 s{nb_}, s{u_}, 28
    s_sub_u32 s{nb_}, s{sWID}, s{nb_}
    s_mul_i32 s{sHI}, s{u_}, {32*3584}
    s_lshl_b32 s{o2_}, s{nb_}, 7
    s_add_u32 s{sHI}, s{sHI}, s{o2_}
    """)
    natdest(sSTR, WS_W1F)
    a(f"s_sub_u32 s{sT+5}, s{sWID}, 392")
    a(f"s_and_b32 s{sT+5}, s{sT+5}, 1023")
    div7(sT+5)
    ffdest(sD[2], WS_WFF, 784)
    a(f"""
    s_lshr_b32 s{o_}, s{u_}, 1
    s_mul_i32 s{o_}, s{o_}, {64*896}
    s_and_b32 s{o2_}, s{u_}, 1
    s_mul_i32 s{o2_}, s{o2_}, {2*896}
    s_add_u32 s{o_}, s{o_}, s{o2_}
    s_lshl_b32 s{o2_}, s{nb_}, 7
    s_add_u32 s{o_}, s{o_}, s{o2_}
    s_mov_b32 s{sW12+2}, {448*3584}
    s_mov_b32 s{sW12+3}, 0x20000
    s_cmp_lt_u32 s{sWID}, 392
    s_cselect_b32 s{sW12}, s{sW12}, s{sRET}
    s_cselect_b32 s{sW12+1}, s{sW12+1}, s{sRET+1}
    s_cselect_b32 s{o_}, s{sHI}, s{o_}
    s_cselect_b32 s{sD[2]}, s{sSTR}, s{sD[2]}
    s_cselect_b32 s{sHI}, 16, 1
    s_cselect_b32 s{sSTR}, 2, 1
    s_mul_i32 s{sHI}, s{sHI}, 896
    s_mul_i32 s{o2_}, s{sSTR}, {16*896}
    s_lshl_b32 s{sSTR}, s{sSTR}, 10
    v_mul_u32_u24 v{vW12}, s{o2_}, v{g_}
    v_add3_u32 v{vW12}, v{vW12}, v{r8}, s{o_}
    v_lshlrev_b32 v{GT+9}, 8, v{i_}
    v_lshl_add_u32 v{GT+9}, v{h_}, 4, v{GT+9}
    v_cndmask_b32 v{vSX}, v{GT+8}, v{GT+9}, s[{sLN}:{sLN+1}]
    s_lshr_b32 s{o_}, s{sWID}, 3
    s_mul_i32 s{o_}, s{o_}, 14336
    s_and_b32 s{o2_}, s{sWID}, 6
    s_lshl_b32 s{o2_}, s{o2_}, 5
    s_add_u32 s{sXS}, s{o_}, s{o2_}
    s_mul_i32 s{o2_}, s{gWM}, 7168
    s_add_u32 s{sXS}, s{sXS}, s{o2_}
    s_lshl_b32 s{sFQ}, s{sWID}, 10
    s_add_u32 s{sFQ}, s{sFQ}, {WS_FLG}
    s_cmp_lt_u32 s{sWID}, 32
    s_cselect_b32 s{sFQ}, s{sFQ}, {OOB}
    v_cmp_eq_u32 vcc, 0, v{vLANE}
    v_mov_b32 v{vONE}, 1
    v_and_b32 v{vL4}, 3, v{vLANE}
    v_lshlrev_b32 v{vL4}, 2, v{vL4}
    v_cndmask_b32 v{vFLG}, v{GT+8}, v{vLANE}, vcc
    s_mov_b32 s{sRET}, s{sT+6}
    s_mov_b32 s{sRET+1}, s{sT+7}
    s_lshr_b32 s{u_}, s{gD}, 2
    s_lshl_b32 s{nb_}, s{gHEAD}, 2
    s_add_u32 s{nb_}, s{nb_}, s{sWAVE}
    s_lshl_b32 s{o_}, s{u_}, 18
    s_lshl_b32 s{o2_}, s{nb_}, 7
    s_add_u32 s{o_}, s{o_}, s{o2_}
    v_and_b32 v{vSW}, 3, v{vLANE}
    v_lshlrev_b32 v{vSW}, 5, v{vSW}
    v_bfe_u32 v{GT+9}, v{vLANE}, 2, 2
    v_lshl_add_u32 v{vSW}, v{GT+9}, 3, v{vSW}
    v_lshl_add_u32 v{vSW}, v{g_}, 16, v{vSW}
    v_add_u32 v{vSW}, s{o_}, v{vSW}
    v_mov_b32 v{vSF}, v{vL16}
    """)
    natdest(sD[0], WS_WQF)
    a(f"s_cmp_lt_u32 s{gD}, 56")
    a(f"s_cselect_b32 s{sD[0]}, s{sD[0]}, {OOB}")
    assert WS_XF == 0
    a(f"""
    v_bfe_u32 v{t4}, v{vLANE}, 1, 3
    s_lshl_b32 s{o_}, s{gWM}, 14
    s_add_u32 s{o_}, s{o_}, 131072
    v_lshlrev_b32 v{r_}, 7, v{r_}
    v_add_u32 v{r_}, s{o_}, v{r_}
    """)
    for kk in range(2):
        a(f"v_or_b32 v{t5}, {4*kk}, v{g_}")
        a(f"v_xor_b32 v{t5}, v{t5}, v{t4}")
        a(f"v_lshl_add_u32 v{RA[kk]}, v{t5}, 4, v{r_}")
    a(f"""
    v_lshlrev_b32 v{t2}, 12, v{g_}
    v_bfe_u32 v{t4}, v{vLANE}, 2, 2
    v_lshl_add_u32 v{t2}, v{t4}, 7, v{t2}
    v_and_b32 v{t5}, 3, v{vLANE}
    v_lshl_add_u32 v{t2}, v{t5}, 3, v{t2}
    s_lshl_b32 s{o_}, s{gWN}, {9 if OPT["chg"] == 2 else 10}
    s_add_u32 s{o_}, s{o_}, 32768
    v_add_u32 v{t2}, s{o_}, v{t2}
    v_lshrrev_b32 v{t4}, 1, v{t4}
    v_lshlrev_b32 v{t4}, 6, v{t4}
    v_and_b32 v{t5}, 1, v{g_}
    v_lshlrev_b32 v{t5}, 5, v{t5}
    v_or_b32 v{t4}, v{t4}, v{t5}
    """)
    for q in range(4):
        a(f"v_xor_b32 v{t5}, {(q>>1)*64 + (q&1)*32}, v{t4}")
        a(f"v_add_u32 v{RB[q]}, v{t5}, v{t2}")
    a(f"""
    s_mul_i32 s{sKVB}, s{gHEAD}, {HS}
    s_mul_i32 s{o_}, s{gMT}, {8*US}
    s_add_u32 s{sKVB}, s{sKVB}, s{o_}
    s_mul_i32 s{o_}, s{gWM}, {4*US}
    s_add_u32 s{sKVB}, s{sKVB}, s{o_}
    s_add_u32 s{o2_}, s{sWHICH}, 12
    s_lshl_b32 s{o_}, s{gWN}, {12 if OPT["chg"] == 2 else f"s{o2_}"}
    s_add_u32 s{sKVB}, s{sKVB}, s{o_}
    s_mul_i32 s{o_}, s{sWHICH}, {WS_VF - WS_KF}
    s_add_u32 s{sKVB}, s{sKVB}, s{o_}
    s_add_u32 s{sKVB}, s{sKVB}, {WS_KF}
    s_lshr_b32 s{sKVI}, 8192, {0 if OPT["chg"] == 2 else f"s{sWHICH}"}
    s_add_u32 s{sKVI}, s{sKVI}, s{sKVB}
    s_lshl_b32 s{sFKV}, s{gHEAD}, 8
    s_lshr_b32 s{o_}, s{gMT}, 2
    s_and_b32 s{o2_}, s{gMT}, 3
    s_lshl_b32 s{o2_}, s{o2_}, 1
    s_or_b32 s{o_}, s{o_}, s{o2_}
    s_cmp_ge_u32 s{o_}, 2
    s_cselect_b32 s{o2_}, 112, 0
    s_add_u32 s{sFKV}, s{sFKV}, s{o2_}
    s_lshl_b32 s{o_}, s{o_}, 3
    s_add_u32 s{sFKV}, s{sFKV}, s{o_}
    s_lshl_b32 s{o_}, s{sWHICH}, 2
    s_add_u32 s{sFKV}, s{sFKV}, s{o_}
    s_add_u32 s{sFKV}, s{sFKV}, {WS_FLG + FL_KV}
    s_lshl_b32 s{sFKVP}, s{sHEAD}, 8
    s_add_u32 s{sFKVP}, s{sFKVP}, {WS_FLG + FL_KV}
    s_cmp_eq_u32 s{sWAVE}, 0
    s_cselect_b32 s{sFKV}, s{sFKV}, {OOB}
    s_cselect_b32 s{sFKVP}, s{sFKVP}, {OOB}
    s_cselect_b32 s{gFL}, s2, {OOB}
    s_cselect_b32 s{gIT}, 0, {OOB}
    """)
    WQ, B1, ST1, N0, STA2, XR1, XR2 = sT+1, sT+2, sT+3, sN, sT+4, sND, sXOF2
    a(f"""
    s_or_b32 s{sQI}, s{sJ}, 8
    s_mul_i32 s{WQ}, s{sHEAD}, {7*32768}
    s_add_u32 s{WQ}, s{WQ}, {WS_WQF}
    s_mov_b32 s{sW0}, s{WQ}
    s_mov_b32 s{XR1}, s{sQI}
    s_mov_b32 s{ST1}, 32768
    s_bitcmp1_b32 s{sHEAD}, 1
    s_cselect_b32 s{N0}, {OPT['n0'][1]}, {OPT['n0'][0]}
    s_cmp_eq_u32 s{sQI}, 15
    s_cselect_b32 s{STA2}, {OPT['a15'] - 34}, 0
    s_add_u32 s{N0}, s{N0}, s{STA2}
    s_cmp_eq_u32 s{sQI}, 8
    s_cselect_b32 s{STA2}, 34, 64
    s_min_u32 s{N0}, s{N0}, s{STA2}
    @atomic
    s_cmp_ge_u32 s{sJ}, 8
    s_cbranch_scc1 L_typeA
    s_mov_b32 s{sTYPE}, 2
    s_sub_u32 s{B1}, s{WQ}, {5*32768}
    s_sub_u32 s{XR2}, 15, s{sQI}
    s_lshl_b32 s{sU1}, s{sQI}, 2
    s_sub_u32 s{sU2}, 64, s{sU1}
    s_add_u32 s{sU1}, s{sU1}, 4
    s_sub_u32 s{sU1}, s{sU1}, s{N0}
    s_add_u32 s{STA2}, s{sU1}, 14
    s_add_u32 s{sT+7}, s{STA2}, s{sU2}
    s_branch L_typedone
    """)
    a.label("L_typeA")
    a(f"""
    s_mov_b32 s{sU1}, s{N0}
    s_add_u32 s{sT+7}, s{N0}, 14
    s_mov_b32 s{sU2}, 2
    s_mov_b32 s{N0}, 0
    s_mov_b32 s{STA2}, 100
    s_mov_b32 s{XR2}, 0x4000
    s_mov_b32 s{sTYPE}, 1
    s_mov_b32 s{B1}, {OOB}
    s_cmp_eq_u32 s{sJ}, 15
    s_cbranch_scc1 L_typedone
    s_mov_b32 s{sTYPE}, 0
    s_mul_i32 s{XR1}, s{sHEAD}, 7
    s_add_u32 s{XR1}, s{XR1}, s{sJ}
    s_sub_u32 s{XR1}, s{XR1}, 8
    s_lshr_b32 s{sT}, s{XR1}, 4
    s_and_b32 s{XR1}, s{XR1}, 15
    s_mul_i32 s{sW0}, s{sT}, {7*32768}
    s_add_u32 s{sW0}, s{sW0}, {WS_W1F}
    s_lshl_b32 s{B1}, s{sT}, 15
    s_add_u32 s{B1}, s{B1}, {WS_WFF}
    s_mov_b32 s{ST1}, {184*4096}
    """)
    a.label("L_typedone")
    a("@end")
    tA, tB, tC, tD = GT, GT+1, GT+2, GT+3
    KB, VB = sT+5, sT+6
    a(f"""
    s_mul_i32 s{KB}, s{sHEAD}, {HS}
    s_add_u32 s{VB}, s{KB}, {WS_VF}
    s_add_u32 s{KB}, s{KB}, {WS_KF}
    v_mov_b32 v{vTE}, {OOB}
    """)
    def seg_lin(start, base, stride):
        a(f"v_subrev_u32 v{tA}, {start}, v{vLANE}")
        a(f"v_cmp_gt_u32 vcc, 7, v{tA}")
        a(f"v_mul_u32_u24 v{tB}, {stride}, v{tA}")
        a(f"v_add_u32 v{tB}, s{base}, v{tB}")
        a(f"v_cndmask_b32 v{vTE}, v{vTE}, v{tB}, vcc")
    seg_lin(0, sW0, 32768)
    seg_lin(7, B1, f"s{ST1}")
    a(f"s_lshl_b32 s{sT}, s{sHEAD}, 15")
    a(f"s_add_u32 s{sT}, s{sT}, {WS_WFF + 56*4096}")
    seg_lin(f"s{sT+7}", sT, 184*4096)
    a(f"v_add_u32 v{vTO}, 16384, v{vTE}")
    def seg_att(start, n0, U):
        for tab in (vTO, vTE):
            a(f"v_subrev_u32 v{tA}, {start}, v{vLANE}")
            if n0 is not None: a(f"v_add_u32 v{tB}, s{n0}, v{tA}")
            else: a(f"v_mov_b32 v{tB}, v{tA}")
            a(f"v_mul_u32_u24 v{tB}, {US}, v{tB}")
            if tab == vTO:
                a(f"s_sub_u32 s{sT}, s{U}, 1")
                a(f"v_cmp_eq_u32 vcc, s{sT}, v{tA}")
                a(f"v_add_u32 v{tC}, s{KB}, v{tB}")
                a(f"v_add_u32 v{tC}, {US}, v{tC}")
                a(f"v_add_u32 v{tD}, s{VB}, v{tB}")
            else:
                a(f"v_cmp_eq_u32 vcc, 0, v{tA}")
                a(f"v_add_u32 v{tC}, s{VB}, v{tB}")
                a(f"v_subrev_u32 v{tC}, {US}, v{tC}")
                a(f"v_add_u32 v{tD}, s{KB}, v{tB}")
            a(f"v_cndmask_b32 v{tC}, v{tC}, v{tD}, vcc")
            a(f"v_cmp_gt_u32 vcc, s{U}, v{tA}")
            a("s_nop 1")
            a(f"v_cndmask_b32 v{tab}, v{tab}, v{tC}, vcc")
    seg_att(14, N0, sU1)
    seg_att(f"s{STA2}", None, sU2)
    XO1, XO2 = sXOFF, sXOF2
    a(f"""
    s_lshl_b32 s{sT}, s{sWAVE}, 1
    s_lshl_b32 s{XO1}, s{XR1}, 3
    s_add_u32 s{XO1}, s{XO1}, s{sT}
    s_mul_i32 s{XO1}, s{XO1}, 14336
    s_lshl_b32 s{XO2}, s{XR2}, 3
    s_add_u32 s{XO2}, s{XO2}, s{sT}
    s_mul_i32 s{XO2}, s{XO2}, 14336
    s_lshl_b32 s{sW4K}, s{sWAVE}, 12
    s_mov_b32 s{sCLAMP}, 0x05040100
    s_mov_b32 s{sFIRST}, 0x07060302
    """)
    setup_l = [l.strip() for l in a.lines if l.strip()]
    a = main
    seq = []
    for k, kind in enumerate(GS[-1]):
        m0, so, ins = dma_group(kind, 0)
        seq += [[m0, so, ins[0]]] + [[x] for x in ins[1:]]
        if k == OPT["xpos"]:
            seq += [[f"buffer_load_dwordx4 {ar(SLD+48,4)}, v{GT+11}, {sr(sX,4)}, s{gB1} offen"], [f"buffer_load_dwordx4 {ar(SLD+52,4)}, v{GT+11}, {sr(sX,4)}, s{gB1} offen offset:224"],
                    [f"s_xor_b32 s{gB1}, s{gB1}, 448", f"buffer_load_dwordx4 {ar(SLD+56,4)}, v{GT+11}, {sr(sX,4)}, s{gB1} offen"], [f"buffer_load_dwordx4 {ar(SLD+60,4)}, v{GT+11}, {sr(sX,4)}, s{gB1} offen offset:224 ; @sx"]]
    if OPT["cpf"]: seq += [[f"buffer_load_dwordx4 a[200:203], v{vL16}, {G}, s{gB0} offen"], [f"s_add_u32 s{gB0}, s{gB0}, 131072", f"buffer_load_dwordx4 a[204:207], v{vL16}, {G}, s{gB0} offen"]]
    nowr = ("s_mov", "s_mul_i32", "s_nop", "s_cselect", "s_getpc", "s_cbranch", "s_branch")
    def scc_live(k):
        for l in setup_l[k:]:
            if l.startswith(("s_cselect", "s_cbranch_scc", "s_subb")): return True
            if l.startswith("s_") and not l.startswith(nowr): return False
        return False
    step = len(setup_l) / (len(seq) - 0.5)
    atomic = False; nxt = 0.0
    for k, l in enumerate(setup_l):
        if seq and k >= nxt and not atomic and not scc_live(k) and not l.endswith(":"):
            for x in seq.pop(0): a(x)
            nxt += step
        if l == "@atomic": atomic = True
        elif l == "@end": atomic = False
        else: a(l)
    for g in seq:
        for x in g: a(x)
    print("setup instrs", len(setup_l), "left", len(seq), file=sys.stderr)
    a(f"""
    s_mov_b32 s{sG}, s{sRET}
    s_mov_b32 s{sG+1}, s{sRET+1}
    s_mov_b32 s{sG+2}, {448*8192}
    """)
    if OPT["dbgside"] & 1:
        for r in sD: a(f"s_mov_b32 s{r}, {OOB}")
    if OPT["dbgside"] & 2: a(f"s_mov_b32 s{sXS}, {OOB}")
    if OPT["dbgside"] & 4:
        for r in (vWO, vW12, vSW): a(f"v_mov_b32 v{r}, {OOB}")
    def side_chain():
        c = []
        z = GT+8
        c += [(f"v_mov_b64 {vr(z,2)}, 0", 0), (f"v_mov_b64 {vr(z+2,2)}, 0", 0), (f"buffer_store_dwordx4 {vr(z,4)}, v{vL16}, {WS}, s{sFQ} offen sc1 ; @zst", 1)]
        c.append(("s_waitcnt vmcnt(@since:sx)", 1))
        U = GT; m_, v_, t_, t2_ = GT+16, GT+17, vG1, vPOLL
        for i in range(8):
            c.append((f"v_accvgpr_read_b32 v{t_}, a{SLD+48+i}", 2 if i == 0 else 0))
            c.append((f"v_lshlrev_b32 v{U+2*i}, 16, v{t_}", 0))
            c.append((f"v_and_b32 v{U+2*i+1}, 0xffff0000, v{t_}", 0))
        def red(v):
            r = [(f"v_add_f32_dpp v{v}, v{v}, v{v} row_ror:{sh} row_mask:0xf bank_mask:0xf", 2) for sh in (8, 4)]
            return r + xlane_ops("v_add_f32", v, t2_)
        c.append((f"v_add_f32 v{m_}, v{U}, v{U+1}", 0)); c.append((f"v_add_f32 v{v_}, v{U+2}, v{U+3}", 0))
        for i in range(4, 16, 2):
            c.append((f"v_add_f32 v{m_}, v{m_}, v{U+i}", 0)); c.append((f"v_add_f32 v{v_}, v{v_}, v{U+i+1}", 0))
        for i in range(8):
            c += [(x, 0) for x in (f"v_accvgpr_read_b32 v{t_}, a{SLD+56+i}", f"v_lshlrev_b32 v{t2_}, 16, v{t_}", f"v_and_b32 v{t_}, 0xffff0000, v{t_}",
                  f"v_add_f32 v{m_}, v{m_}, v{t2_}", f"v_add_f32 v{v_}, v{v_}, v{t_}")]
        c.append((f"v_add_f32 v{m_}, v{m_}, v{v_}", 0))
        c += red(m_)
        c.append((f"v_mul_f32 v{m_}, {f2u(1.0/448):#x}, v{m_}", 0))
        for i in range(16):
            c.append((f"v_sub_f32 v{t_}, v{U+i}, v{m_}", 0))
            c.append((f"v_mul_f32 v{v_}, v{t_}, v{t_}" if i == 0 else f"v_fma_f32 v{v_}, v{t_}, v{t_}, v{v_}", 0))
        for i in range(8):
            c += [(x, 0) for x in (f"v_accvgpr_read_b32 v{t_}, a{SLD+56+i}", f"v_lshlrev_b32 v{t2_}, 16, v{t_}", f"v_and_b32 v{t_}, 0xffff0000, v{t_}",
                  f"v_sub_f32 v{t2_}, v{t2_}, v{m_}", f"v_sub_f32 v{t_}, v{t_}, v{m_}", f"v_fma_f32 v{v_}, v{t2_}, v{t2_}, v{v_}", f"v_fma_f32 v{v_}, v{t_}, v{t_}, v{v_}")]
        c.append((f"v_cndmask_b32 v{v_}, 0, v{v_}, s[{sLN}:{sLN+1}]", 0))
        c += red(v_)
        for x in (f"v_mul_f32 v{v_}, {f2u(1.0/448):#x}, v{v_}", f"v_cvt_pk_bf16_f32 v{t_}, v{m_}, v{v_}", f"v_lshlrev_b32 v{m_}, 16, v{t_}",
                  f"v_and_b32 v{v_}, 0xffff0000, v{t_}", f"v_add_f32 v{v_}, {f2u(1e-5):#x}, v{v_}", f"v_cvt_pk_bf16_f32 v{v_}, v{v_}, v{v_}",
                  f"v_lshlrev_b32 v{v_}, 16, v{v_}", f"v_sqrt_f32 v{v_}, v{v_}"):
            c.append((x, 0))
        c.append((f"v_cvt_pk_bf16_f32 v{v_}, v{v_}, v{v_}", 1))
        c.append((f"v_lshlrev_b32 v{v_}, 16, v{v_}", 0))
        c.append((f"v_rcp_f32 v{v_}, v{v_}", 0))
        for i in range(16): c.append((f"v_sub_f32 v{U+i}, v{U+i}, v{m_}", 1 if i == 0 else 0))
        for i in range(8):
            for x in (f"v_cvt_pk_bf16_f32 v{t_}, v{U+2*i}, v{U+2*i+1}", f"v_lshlrev_b32 v{U+2*i}, 16, v{t_}", f"v_and_b32 v{U+2*i+1}, 0xffff0000, v{t_}",
                      f"v_mul_f32 v{U+2*i}, v{U+2*i}, v{v_}", f"v_mul_f32 v{U+2*i+1}, v{U+2*i+1}, v{v_}", f"v_cvt_pk_bf16_f32 v{U+i}, v{U+2*i}, v{U+2*i+1}"):
                c.append((x, 0))
        c.append((f"buffer_store_dwordx4 {vr(U,4)}, v{vSX}, {WS}, s{sXS} offen sc1", 1))
        c.append((f"buffer_store_dwordx4 {vr(U+4,4)}, v{vSX}, {WS}, s{sXS} offen offset:3584 sc1", 1))
        def relay(rnd, land):
            c.append((f"s_waitcnt vmcnt(@since:sl{rnd})", 1, 0, rnd))
            for h in range(2):
                for e in range(8):
                    c.append((f"v_accvgpr_read_b32 v{GT+e}, a{land+2*e+h}", 2 if e == 0 else 0))
                for jj in range(2):
                    o = GT+8+4*jj
                    for p in range(4):
                        c.append((f"v_perm_b32 v{o+p}, v{GT+2*p+1}, v{GT+2*p}, s{(sCLAMP, sFIRST)[jj]}", 0))
                    if rnd == 1: c.append((f"buffer_store_dwordx4 {vr(o,4)}, v{vL16}, {WS}, s{sD[rnd]} offen offset:{(2*h+jj)*1024} sc1", 1))
                    else:
                        c.append((f"buffer_store_dwordx4 {vr(o,4)}, v{vSF}, {WS}, s{sD[rnd]} offen sc1", 1))
                        c.append((f"v_add_u32 v{vSF}, s{sSTR}, v{vSF}", 1))
        relay(2, SLD+32)
        c.append((f"s_waitcnt vmcnt(@since:sl0)", 1, 0, 0))
        c.append((f"s_mov_b32 s{sHI}, {f2u(QSCALE):#x}", 1))
        for h in range(2):
            for p in range(4):
                t = GT + (p & 1)*4
                c += [(x, 0) for x in (f"v_accvgpr_read_b32 v{t}, a{SLD+4*p+h}", f"v_accvgpr_read_b32 v{t+1}, a{SLD+4*p+2+h}",
                      f"v_lshlrev_b32 v{t+2}, 16, v{t}", f"v_lshlrev_b32 v{t+3}, 16, v{t+1}", f"v_and_b32 v{t}, 0xffff0000, v{t}", f"v_and_b32 v{t+1}, 0xffff0000, v{t+1}")]
                c += [(f"v_mul_f32 v{t+i}, s{sHI}, v{t+i}", 0) for i in range(4)]
                c += [(f"v_cvt_pk_bf16_f32 v{GT+8+p}, v{t+2}, v{t+3}", 0), (f"v_cvt_pk_bf16_f32 v{GT+12+p}, v{t}, v{t+1}", 0)]
            if h == 1: c.append((f"s_add_u32 s{sD[0]}, s{sD[0]}, 4096", 1))
            for jj in range(2):
                c.append((f"buffer_store_dwordx4 {vr(GT+8+4*jj,4)}, v{vL16}, {WS}, s{sD[0]} offen offset:{jj*2048} sc1 ; @sst", 1))
        relay(1, WOL)
        c += [(x, 0) for x in (f"v_add_u32 v{vDMA}, s{sW4K}, v{vL16}", f"v_mov_b32 v{vRD}, v{vL16}",  f"v_lshrrev_b32 v{GT}, 4, v{vLANE}",
              f"v_lshlrev_b32 v{GT}, 2, v{GT}", f"v_and_b32 v{GT+1}, 15, v{vLANE}", f"v_sub_u32 v{GT}, v{GT+1}, v{GT}")]
        c += [(f"v_cmp_gt_i32 s[{sMASK+2*r}:{sMASK+2*r+1}], {r}, v{GT}", 0) for r in range(4)]
        c = [((x[0].replace(" sc1", OPT["sidesc"]),) + tuple(x[1:]) if x[0].startswith("buffer_store") else x) for x in c]
        if OPT["wbl2"]: c.append(("s_waitcnt vmcnt(4)", 30)); c.append(("buffer_wbl2 sc1", 1))
        return Chain(c, XG4)
    def reads(kk, buf):
        if OPT["chg"]:
            ra = [f"ds_read_b128 {ar(CA(m,k),4)}, v{RA[k]} offset:{m*2048}" for m in range(4*kk, 4*kk+4) for k in range(2)]
            rb = [f"ds_read_b64_tr_b16 {ar(CB(n,k)+2*sec,2)}, v{RB[n&3]} offset:{kk*16384+sec*2048+k*512*OPT['chg']}" for n in range(4*kk, 4*kk+4) for k in range(2) for sec in range(2)]
            if kk: return ra + rb
            return rb[:4] + [x for m in range(4) for x in ra[2*m:2*m+2] + rb[4+2*m:6+2*m]] + rb[12:]
        ra = [f"ds_read_b128 {ar(FA(buf,m),4)}, v{RA[kk]} offset:{m*2048}" for m in range(8)]
        rb = [f"ds_read_b64_tr_b16 {ar(FB(buf,n)+2*sec,2)}, v{RB[n&3]} offset:{kk*16384+sec*2048+(n>>2)*512}" for n in range(8) for sec in range(2)]
        out = []
        for i in range(8): out += [ra[i], rb[2*i], rb[2*i+1]]
        return out
    stamp(6, True)
    a(f"s_waitcnt {gwait(-1)}")
    a("s_barrier")
    for r in reads(0, 0): a(r)
    stamp(1)
    a(f"s_cmp_eq_u32 s{sWHICH}, 0")
    a("s_cbranch_scc0 L_gemmV")
    if OPT["tch"]:
        a("s_branch L_gK")
        a.label("L_tsubP")
        a(f"s_cmp_eq_u32 s{sTYPE}, 0")
        a("s_cbranch_scc0 L_tsubPB")
        a(touch("pa", "L_P1A")); a(f"s_setpc_b64 s[{sRET}:{sRET+1}]")
        a.label("L_tsubPB")
        a(touch("pb", "L_P1B")); a(f"s_setpc_b64 s[{sRET}:{sRET+1}]")
        subs = [(f"g{t}{n}", f"g{t}{n}", k_) for t, k_ in (("K", "L_gK"), ("V", "L_gemmV")) for n in OPT["tg"]]
        subs += [(f"a{n}", f"a{n}", "L_P1A") for n in OPT["ta"]] + [(f"b{n}", f"b{n}", "L_P1B") for n in OPT["tb"]]
        subs += [(k, f"c{k}", "L_s1z0") for k in range(len(OPT["tac"]))]
        for l_, nm, key in subs:
            a.label(f"L_tsub{l_}")
            a(touch(nm, key)); a(f"s_setpc_b64 s[{sRET}:{sRET+1}]")
    a.label("L_gK")
    pre_lines = len(a.lines)
    sJT = sT+2
    def xjob(J, key, i, base, early, late, rot=0):
        u, qt = i >> 1, i & 1
        J.add(key, f"s_add_u32 s{sJT}, s{base}, {qt*14336+((u+rot)%14)*1024}", f"buffer_load_dwordx4 {ar(X(qt,u),4)}, v{vL16}, {WS}, s{sJT} offen{ld()} ; @{key}", early, late - (3 - (i & 3))*8)
    def kvjob(J, c, early, late):
        blk = c >> 2
        J.add("kv", f"s_add_u32 s{sJT}, s{sKVI if blk & 1 else sKVB}, {(blk>>1)*US+(c&3)*1024}",
              f"buffer_store_dwordx4 {vr(PK(c),4)}, v{vL16}, {WS}, s{sJT} offen{OPT['kvsc']} ; @kv", early, late)
    pw, t6, t7 = sEV, sCNT, sND
    setup = f"""
    s_lshl_b32 s{pw}, s{sHEAD}, 3
    s_and_b32 s{t6}, s{sJ}, 7
    s_add_u32 s{pw}, s{pw}, s{t6}
    s_lshl_b32 s{pw}, s{pw}, 2
    s_add_u32 s{pw}, s{pw}, s{sWAVE}
    s_mul_i32 s{sQST}, s{pw}, {Q_W}
    s_add_u32 s{sQST}, s{sQST}, {WS_QF}
    s_mul_i32 s{sPT}, s{pw}, {PT_W}
    s_add_u32 s{sPT}, s{sPT}, {WS_PT}
    s_lshl_b32 s{sFQ}, s{pw}, 5
    s_add_u32 s{sFQ}, s{sFQ}, {WS_FLG + FL_Q}
    s_mul_i32 s{t7}, s{sWAVE}, {28*1024}
    s_add_u32 s{t7}, s{t7}, {WS_PS}
    s_mul_i32 s{pw}, s{sHEAD}, 7
    s_add_u32 s{pw}, s{pw}, s{t6}
    s_lshr_b32 s{t6}, s{pw}, 4
    s_and_b32 s{sFSG}, s{pw}, 15
    s_lshl_b32 s{sT+3}, s{t6}, 9
    s_mul_i32 s{sPSG}, s{sFSG}, {PS_R}
    s_add_u32 s{sPSG}, s{sPSG}, s{t7}
    s_mul_i32 s{pw}, s{t6}, {PS_SRC}
    s_add_u32 s{sPSG}, s{sPSG}, s{pw}
    s_add_u32 s{sPSG}, s{sPSG}, {16*PS_SRC}
    s_lshl_b32 s{sFSG}, s{sFSG}, 9
    s_lshl_b32 s{pw}, s{t6}, 2
    s_add_u32 s{sFSG}, s{sFSG}, s{pw}
    s_lshl_b32 s{pw}, s{sWAVE}, 7
    s_add_u32 s{pw}, s{pw}, {WS_FLG + FL_S}
    s_add_u32 s{sFSG}, s{sFSG}, s{pw}
    s_add_u32 s{sFSG}, s{sFSG}, 64
    s_lshr_b32 s{t6}, s{sJ}, 3
    s_mul_i32 s{t6}, s{t6}, 7
    s_xor_b32 s{t6}, s{t6}, 7
    s_xor_b32 s{t6}, s{t6}, s{sJ}
    s_mul_i32 s{sPSS}, s{t6}, {PS_R}
    s_add_u32 s{sPSS}, s{sPSS}, s{t7}
    s_mul_i32 s{t7}, s{sHEAD}, {PS_SRC}
    s_add_u32 s{sPSS}, s{sPSS}, s{t7}
    s_lshl_b32 s{sFSS}, s{t6}, 9
    s_add_u32 s{sFSS}, s{sFSS}, s{pw}
    s_lshl_b32 s{t7}, s{sHEAD}, 2
    s_add_u32 s{sFSS}, s{sFSS}, s{t7}
    s_lshl_b32 s{sND}, s{sQI}, 2
    s_add_u32 s{sND}, s{sND}, s{sWAVE}
    s_lshr_b32 s{sCNT}, s{sU1}, 1
    s_sub_u32 s{sCNT}, s{sCNT}, 1
    s_lshr_b32 s{sEV}, s{sJ}, 3
    """.strip().split("\n")
    setup = [(x.strip(), 1) for x in setup]
    setup.append((f"s_cmp_eq_u32 s{sTYPE}, 1\ns_cselect_b32 s{sQST}, {OOB}, s{sQST}", 1))
    setup.append((f"s_cmp_eq_u32 s{sTYPE}, 0\ns_cselect_b32 s{sFSG}, s{sFSG}, {OOB}", 1))
    setup.append((f"s_cmp_eq_u32 s{sWAVE}, 0\ns_cselect_b32 s{sFQ}, s{sFQ}, {OOB}\ns_cselect_b32 s{sEXP}, 1, 0", 1))
    setup2 = [(x, 1) for x in (f"s_mov_b32 s{sTAU}, 4", f"s_add_u32 s{sM0}, s{sW4K}, {8*16384}", f"s_add_u32 s{sOFFB}, s{sW0}, {8*16384}",
              f"s_mov_b32 s{sRDD}, {-131072}", f"s_mov_b32 s{gMA}, {-131072}", f"s_mov_b32 s{gMB}, 32768", f"s_mov_b32 m0, s{sM0}")]
    for typ in ("K", "V"):
        if typ == "V":
            a.label("L_gemmV")
            for l in a.lines[:pre_lines]:
                if l.strip().startswith("buffer_") or "@merge" in l: a.raw("@ghost " + l.strip())
        def pos(m, n): return m*8+n if typ == "K" else (m >> 1)*16 + n*2 + (m & 1)
        def substep(it, kk):
            groups = GS[2*it+kk]
            buf = kk
            mf = []
            for m in range(8):
                for n in range(8):
                    acc = accreg(pos(m, n))
                    c = "0" if (it == 0 and kk == 0) else acc
                    x, y = ar(FB(buf,n),4), ar(FA(buf,m),4)
                    if OPT["chg"]:
                        n2 = 4*kk + (n >> 1); k = (n ^ (n >> 1)) & 1
                        acc = accreg(pos(m, n2)); c = "0" if (it == 0 and n & 1 == 0) else acc
                        x, y = ar(CB(n2,k),4), ar(CA(m,k),4)
                    if typ == "V": x, y = y, x
                    mf.append(f"{MF} {acc}, {x}, {y}, {c}")
            st = Stage(mf)
            st.put(-1, f"s_waitcnt {gwait(2*it+kk)} lgkmcnt(0)")
            st.put(-1, "s_barrier")
            last = (it == 15 and kk == 1)
            g, dg = 1, (OPT["dg2"] if len(groups) == 2 else 4)
            for k, kind in enumerate(groups):
                m0, so, ins = dma_group(kind, k)
                st.put(g-1, m0)
                st.put(g-2, so)
                for i in ins:
                    st.put(g, i); g += dg
            rd = reads(kk ^ 1, buf ^ 1) if not last else [f"ds_read_b128 {ar(FR(f),4)}, v{vRD} offset:{f*1024}" for f in range(12)]
            for i, r in enumerate(rd): st.put(i*2, r)
            if OPT["chg"] and kk == 0: st.put(31, "s_waitcnt lgkmcnt(8)")
            if kk == 0 and it < 15:
                d = -131072 if it % 3 == 0 else 65536
                for i, x in enumerate([f"v_add_u32 v{RA[0]}, {d}, v{RA[0]}", f"v_add_u32 v{RA[1]}, {d}, v{RA[1]}"] + [f"v_xor_b32 v{r}, 0x10000, v{r}" for r in RB]):
                    st.put(48 + 2*(i >> 1), x)
            if OPT["fine"]:
                st.put(2, f"{FT()} s[{sFS}:{sFS+1}]")
                st.put(4, f"v_mov_b32_dpp v0, v0 wave_shr:1 row_mask:0xf bank_mask:0xf")
                st.put(46, f"v_writelane_b32 v0, s{sFS}, 0")
            return st
        ch = side_chain()
        J = Jobs()
        for e in range(8):
            t = [x + e*OPT["slstep"] for x in OPT["slt"]]
            J.add("sl1", f"s_mov_b32 s{sJT}, {(e>>2)*16*896}", f"buffer_load_dwordx2 {ar(WOL+2*e,2)}, v{vWO}, {sr(sX,4)}, s{sJT} offen offset:{(e&3)*896}{OPT['ntS']} ; @sl1", t[2], t[2]+64)
            J.add("sl2", f"s_add_u32 s{sJT}, s{sHI}, {(e&3)*3584}" if e >> 2 else f"s_mov_b32 s{sJT}, {e*3584}",
                  f"buffer_load_dwordx2 {ar(SLD+32+2*e,2)}, v{vW12}, {sr(sW12,4)}, s{sJT} offen{OPT['ntS']} ; @sl2", t[0], t[0]+64)
            J.add("sl0", f"s_mov_b32 s{sJT}, {e*8192}", f"buffer_load_dwordx2 {ar(SLD+2*e,2)}, v{vSW}, {G}, s{sJT} offen{OPT['ntS']} ; @sl0", t[1], t[1]+64)
        NZ, NZP, NZC, NF, NP, NC = OPT["sync"]
        for i in range(20): xjob(J, "x1", i, XO1, (NC+1)*64 + i*OPT["xstep"], 31*64)
        for b in range(8):
            J.add("bias", None, f"buffer_load_dwordx4 {vr(BIAS+4*b,4)}, v{GT+16}, {G}, s{sT+3} offen offset:{(b>>1)*128+(b&1)*16} ; @bias", 31*64 if b in (2, 3) else 29*64, 31*64+24)
        su = Chain(setup)
        PV = GT+8
        for n in range(31):
            it, kk = n >> 1, n & 1
            st = substep(it, kk)
            if n == 0:
                st.put(62, f"s_load_dwordx2 s[{sX}:{sX+1}], s[0:1], 40")
                st.put(63, f"s_mov_b32 s{sX+2}, {4096*896}")
            if n == NZ-1: st.put(63, "s_waitcnt vmcnt(@since:zst)")
            if n == NZ: st.put(61, f"buffer_store_byte v{vONE}, v{vFLG}, {sr(sDBG,4)}, s{gFL} offen sc1")
            if n == NZP: st.put(61, f"buffer_load_dword v{vPOLL}, v{vL4}, {sr(sDBG,4)}, s{gIT} offen sc1 ; @zp")
            if n == NZC:
                st.put(54, "s_waitcnt vmcnt(@since:zp)")
                st.put(55, f"s_cmp_eq_u32 s{sWAVE}, 0\ns_cselect_b32 s{sT+1}, 0x01010101, 0")
                st.put(56, f"v_cmp_ne_u32 vcc, s{sT+1}, v{vPOLL}")
                st.put(60, f"s_cbranch_vccnz L_zwait{typ}")
                st.put(60, f"L_zok{typ}:")
            if n == NF-1:
                assert not any("@sst" in x[0] for x in ch.items) and NZC < NF
                st.put(63, "s_waitcnt vmcnt(@since:sst)")
                st.put(62, f"s_load_dwordx2 s[{sG}:{sG+1}], s[0:1], 64")
                st.put(59, f"s_mov_b32 s{sG+2}, 3584")
            if n == NF:
                st.put(55, f"s_add_u32 s{gIT}, s{gIT}, {WS_FLG+FL_PREP}")
                st.put(58, f"s_lshl2_add_u32 s{sT+1}, s2, s{gIT}")
                st.put(59+2*kk, f"buffer_store_dword v{vONE}, v{vFLG}, {WS}, s{sT+1} offen sc1")
            if n == NP:
                assert not ch.items
                st.put(61, f"buffer_load_dwordx4 {vr(PV,4)}, v{vL16}, {WS}, s{gIT} offen sc1 ; @prep")
            if n == NC:
                st.put(50, "s_waitcnt vmcnt(@since:prep)")
                st.put(51, f"s_cmp_eq_u32 s{sWAVE}, 0\ns_cselect_b32 s{sT+1}, 1, 0")
                st.put(54, f"v_and_b32 v{PV}, v{PV}, v{PV+1}")
                st.put(54, f"v_and_b32 v{PV+2}, v{PV+2}, v{PV+3}")
                st.put(55, f"v_and_b32 v{PV}, v{PV}, v{PV+2}")
                st.put(55, f"v_cmp_ne_u32 vcc, s{sT+1}, v{PV}")
                st.put(60, f"s_cbranch_vccnz L_prepwait{typ}")
                st.put(60, f"L_prepok{typ}:")
                st.put(56, f"v_lshrrev_b32 v{GT+16}, 4, v{vLANE}")
                st.put(56, f"v_lshlrev_b32 v{GT+16}, 5, v{GT+16}")
            J.place(st, n, 10, XG4)
            if n >= 1 and ch.items:
                full = ch.items
                for k, x in enumerate(full):
                    if len(x) > 3:
                        key = f"sl{x[3]}"
                        if any(j[5] == key for j in J.jobs) or J.at[key] + OPT["sld"] > n*64+63:
                            ch.items = full[:k]; break
                        full[k] = (x[0], x[1], max(0, J.at[key] + OPT["sld"] - n*64), x[3])
                rest = full[len(ch.items):] if ch.items is not full else []
                ch.base = n*64; ch.minD = OPT["smin"]
                ch.fill(st)
                ch.items = ch.items + rest
                if typ == "K": print("substep", n, "chain left", len(ch.items), file=sys.stderr)
            elif n > NC: su.fill(st)
            if n == 28: assert not su.items
            st.emit(a)
            if OPT["tch"] and n in OPT["tg"]: a(tcall(f"g{typ}{n}")); a.label(f"LS_g{typ}{n}")
            if OPT["tch"] and n == OPT["tgs"]: a(tcall("P"))
        st = substep(15, 1)
        J.place(st, 31, 2, [17, 21]); assert not J.jobs
        SG = [25, 33, 41, 49, 57, 61]
        for c in range(NE): kvjob(J, c, SG[c], SG[c])
        J.place(st, 0, 8, SG); assert not J.jobs
        su = Chain(setup2); su.fill(st, 30); assert not su.items
        slot_of = {pos(m, n): m*8+n for m in range(8) for n in range(8)}
        if OPT["chg"]: slot_of = {pos(m, n): (m*8+(n-4)*2+1 if n >= 4 else -1) for m in range(8) for n in range(8)}
        pk = []
        for c in range(32):
            e = max(slot_of[2*c], slot_of[2*c+1]) + 3
            if 20 <= c < 20+NE: e = max(e, SG[c-20]+2)
            src = []
            for h in range(2):
                p = 2*c+h
                if p < 52: src += [48+4*p+i for i in range(4)]
                else:
                    for i in range(4):
                        pk.append((f"v_accvgpr_read_b32 v{128+(p-52)*4+i}, a{208+4*(p-52)+i}", 0, e)); src.append(128+(p-52)*4+i)
            for i in range(4): pk.append((f"v_cvt_pk_bf16_f32 v{PK(c)+i}, v{src[2*i]}, v{src[2*i+1]}", 0, e))
        pk = Chain(pk); pk.fill(st)
        for c in range(NE):
            w = [g for g, v in st.fill.items() if any(x.startswith(f"v_cvt_pk_bf16_f32 v{PK(c)+3},") for x in v)]
            assert min(w) < SG[c], (c, w)
        st.emit(a)
        a("s_nop 3")
        print("pack tail", len(pk.items), file=sys.stderr)
        pk.flush(a)
        a("s_waitcnt vmcnt(@since:bias) lgkmcnt(8)")
        a(f"s_cmp_eq_u32 s{sTYPE}, 0")
        a("s_cbranch_scc0 L_P1B")
        a("s_branch L_P1A")
    def unpack(nt):
        o = []
        for r in range(4):
            x = 4*r + (nt & 3); src = BIAS + (nt >> 2)*8 + (x >> 1)
            o.append(f"v_and_b32 v{O(nt,1)+r}, 0xffff0000, v{src}" if x & 1 else f"v_lshlrev_b32 v{O(nt,1)+r}, 16, v{src}")
        return o
    def p1_jobs(t0, step, slack=8):
        J = Jobs()
        for c in range(20+NE, 32): kvjob(J, c, 0, XG[c-20-NE])
        for k, c in enumerate(range(NE, 20+NE)): kvjob(J, c, t0+k*step, t0+slack+k*step)
        for i in range(20, 28): xjob(J, f"x1{i>>2}", i, XO1, (i >> 2)*64 - 134, (i >> 2)*64 - 70)
        return J
    def xwait(st, key): st.put(62, f"s_waitcnt vmcnt(@since:{key})")
    def flagjob(J, key, after, soff, delay):
        if key in J.at or any(j[5] in (after, key) for j in J.jobs): return
        t = J.at[after] + delay
        J.add(key, f"s_waitcnt vmcnt(@since:{after})\ns_barrier", f"buffer_store_dword v{vONE}, v{vFLG}, {WS}, s{soff} offen sc1", t, t+8)
    def split_chain(items, st_prev, mk_next, late_of):
        ch = Chain(items); ch.fill(st_prev)
        rest = ch.items
        for k in range(len(rest)+1):
            st = mk_next()
            c2 = Chain([(x[0], x[1]) for x in rest[k:]])
            before = {gg: len(v) for gg, v in st.fill.items()}
            c2.fill(st)
            if c2.items: continue
            where = {}
            for gg, v in st.fill.items():
                for ins in v[before.get(gg, 0):]: where[ins] = gg
            if all(where[x[0]] <= late_of(x[3]) for x in rest[k:]):
                return rest[:k], st
        raise AssertionError
    def emit_mid(mid):
        if mid: a("s_nop 3")
        Chain(mid).flush(a)
        if mid: a("s_nop 1")
    def post_groups(s, scale):
        out = []
        for qt in range(2):
            for p in range(2):
                t = vT + 16 + (qt*2+p)*4
                regs = [PA(s & 1, nt, qt) + 2*p + rr for rr in range(2) for nt in range(4)]
                ops = [f"v_mul_f32 v{r}, v{vRINV[qt]}, v{r}" for r in regs] if scale else []
                ops += [f"v_cvt_pk_bf16_f32 v{t+i}, v{regs[2*i]}, v{regs[2*i+1]}" for i in range(4)]
                out.append((ops, t))
        return out
    def post_store(s, k, t, base):
        return f"s_add_u32 s{sJT}, s{base}, {s*4096+k*1024}", f"buffer_store_dwordx4 {vr(t,4)}, v{vL16}, {WS}, s{sJT} offen sc1 ; @ps"
    def post_place(st, s, scale, base, gaps):
        for k, (ops, t) in enumerate(post_groups(s, scale)):
            pre, ins = post_store(s, k, t, base)
            st.put(gaps[k]-1, pre); st.put(gaps[k], ins)
    def post_sched(st, s, scale, gaps):
        for k, (ops, t) in enumerate(post_groups(s, scale)):
            prev = None
            for x in ops: prev = st.add(x, [prev], 2, gaps[k]-1)
        st.schedule()
    def post_flush(s, scale, base):
        a("s_nop 5")
        for k, (ops, t) in enumerate(post_groups(s, scale)):
            for x in ops: a(x)
            for x in post_store(s, k, t, base): a(x)
    def mk_post(s):
        st = Stage(mf_post(s)); common_fill(st); return st
    def poll_issue(st, g, voff, soff, tag):
        st.put(g, f"buffer_load_dword v{vPOLL}, v{voff}, {WS}, s{soff} offen sc1 ; @{tag}")
    POLLS = []
    def poll_check(st, g, voff, soff, tag, lane0):
        st.put(g, f"s_waitcnt vmcnt(@since:{tag})")
        st.put(g, f"v_cmp_{'eq' if lane0 else 'ne'}_u32 s[{sT+4}:{sT+5}], s{sEXP}, v{vPOLL}")
        st.put(g+2, f"s_cmp_{'eq' if lane0 else 'lg'}_u64 s[{sT+4}:{sT+5}], 0\ns_cbranch_scc1 L_pw_{tag}")
        assert not ({g+1, g+2} & st.scc_busy)
        st.put(g+2, f"L_po_{tag}:")
        st.put(g+2, "s_barrier")
        POLLS.append((tag, voff, soff, lane0))
    def kv2addr(st):
        st.put(2, f"v_min_u32 v{vL4}, 11, v{vLANE}"); st.put(4, f"v_lshlrev_b32 v{vL4}, 2, v{vL4}"); st.put(8, f"v_add_u32 v{vL4}, 128, v{vL4}")
    XG2 = sorted(XG + [3, 11, 19, 27, 43, 51, 59])
    XG3 = sorted(XG + [5, 13, 21, 29, 45, 53, 61])
    merge("L_P1A")
    stamp(2)
    for x in unpack(0): a(x)
    a("s_nop 1")
    J = p1_jobs(64, OPT["kvstep"])
    for s in range(6):
        st = Stage(mf_proj(s, "bias" if s == 0 else None)); common_fill(st)
        flagjob(J, "kvf", "kv", sFKV, OPT["fdelay"])
        J.place(st, s, OPT["cap"])
        if s == 0:
            for nt in range(1, 16):
                e = XG[2*(nt-13)+1]+2 if nt >= 13 else 0
                for x in unpack(nt): st.add(x, [], e, 4*nt-3)
            st.schedule()
        if s >= 4: xwait(st, f"x1{s+1}")
        st.emit(a)
        if OPT["tch"] and s in OPT["ta"]: a(tcall(f"a{s}")); a.label(f"LS_a{s}")
        if OPT["tch"] and s in OPT["tac"]: a(tcall(OPT["tac"].index(s)))
    st = Stage(mf_proj(6)); common_fill(st)
    flagjob(J, "kvf", "kv", sFKV, OPT["fdelay"]); J.place(st, 6, OPT["cap"])
    items = []
    for ud in range(8):
        for qt in range(2):
            regs = [O(2*ud,qt)+i for i in range(4)] + [O(2*ud+1,qt)+i for i in range(4)]
            e = 8*ud+7+3
            for r in regs: items.append((f"v_mul_f32 v{r}, |v{r}|, v{r}", 0, e, ud))
            for i in range(4): items.append((f"v_cvt_pk_bf16_f32 v{regs[i]}, v{regs[2*i]}, v{regs[2*i+1]}", 0, e, ud))
            for i in range(4): items.append((f"v_pk_max_i16 v{regs[i]}, v{regs[i]}, 0", 0, e, ud))
    import copy
    def mk0():
        st = mk_post(0); J2 = copy.deepcopy(J); J2.place(st, 7, OPT["cap"]); assert not J2.jobs; return st
    mid, st0 = split_chain(items, st, mk0, lambda ud: 8*ud-3)
    print("H mid", len(mid), "kv last", J.at["kv"], file=sys.stderr)
    st.emit(a); emit_mid(mid)
    stamp(3)
    J = Jobs()
    for i in range(16):
        J.add("ql", f"s_add_u32 s{sJT}, s{sQST}, {i*1024}", f"buffer_load_dwordx4 {ar(4*i,4)}, v{vL16}, {WS}, s{sJT} offen sc1 ; @ql", 4*64+46, 6*64+36-(15-i)*4)
    for s in range(7):
        st = st0 if s == 0 else mk_post(s)
        if s == 2: poll_issue(st, 3, vL4, sFKVP, "kva"); poll_check(st, 58, vL4, sFKVP, "kva", False)
        if s == 3: poll_issue(st, 51, vFLG, sFQ, "qa"); kv2addr(st)
        if s == 4: poll_check(st, 42, vFLG, sFQ, "qa", True)
        gaps = [9, 25, 41, 57] if s < 6 else [41, 49, 57, 59]
        pk_ = s-1 in OPT["park"]
        if s >= 1 and not pk_: post_place(st, s-1, False, sPSG, gaps)
        J.place(st, s, 7, XG2)
        if pk_:
            for k, (ops, t) in enumerate(post_groups(s-1, False)):
                for i, x in enumerate(ops):
                    c_ = st.add(x, [], 2, 60)
                    st.add(f"v_accvgpr_write_b32 a{128+(s-1)*16+k*4+i}, v{t+i}", [c_], 2, 62)
            st.schedule()
        elif s >= 1: post_sched(st, s-1, False, gaps)
        st.emit(a)
    assert not J.jobs
    def mk_F(qb, tag, pre=None):
        st = Stage(mf_qk(0, 0, qb, True) + mf_qk(1, 1, qb, True)); common_fill(st)
        if pre: pre(st)
        place_sm(st, 0, 35, 62, tag, ladd=False, first=True)
        st.schedule()
        return st
    def finit():
        return [(f"v_mov_b64 {vr(NEGM(0)+2*i,2)}, 0", 0) for i in range(4)] + [(f"v_mov_b64 {vr(vL[0],2)}, 0", 0),
                (f"v_mov_b32 v{vBIG}, {f2u(-1e30):#x}", 0), (f"s_mov_b32 s{sFIRST}, 1", 1), (f"s_mov_b32 s{sCLAMP}, {f2u(-3e38):#x}", 1)]
    def f_end(tag, nxt, endl):
        a(f"s_cbranch_vccnz L_fchk_{tag}")
        a.label(f"L_fok_{tag}")
        STUBS.append((f"L_fchk_{tag}", "L_fchk", f"L_fok_{tag}"))
        a(f"s_mov_b32 s{sFIRST}, 0")
        a(f"s_mov_b32 s{sCLAMP}, 0")
        if endl:
            a(f"s_cmp_eq_u32 s{sCNT}, 0")
            a(f"s_cbranch_scc1 {endl}")
        if nxt == "L_peelA": peelA()
        elif nxt: a(f"s_branch {nxt}")
    def peelA():
        todo = [(s_, k) for s_ in OPT["park"] for k in range(4)]
        n = OPT["pst_n"]
        ns = (len(todo) + n - 1)//n + 2
        ns += ns & 1
        for i in range(ns):
            b = (i & 1) ^ 1
            st = Stage(mf_pv(0, b^1, i == 0) + mf_qk(1, b^1, 0)); common_fill(st)
            for g in {1: [25], 2: [17, 49], 3: [9, 25, 49], 4: [9, 25, 41, 57]}[n]:
                if not todo: break
                s_, k = todo.pop(0)
                st.put(g-1, f"s_add_u32 s{sJT}, s{sPSG}, {s_*4096+k*1024}")
                st.put(g, f"buffer_store_dwordx4 {ar(128+s_*16+k*4,4)}, v{vL16}, {WS}, s{sJT} offen sc1 ; @ps")
            if i == ns-1:
                st.put(56, "s_waitcnt vmcnt(@since:ps)")
                st.put(57, f"buffer_store_dword v{vONE}, v{vFLG}, {WS}, s{sFSG} offen sc1")
                st.put(2, f"s_add_u32 s{sN}, s{sN}, {ns}")
                st.put(4, f"s_sub_u32 s{sCNT}, s{sCNT}, {ns//2}")
            place_sm(st, b, 0, 62, f"pa{i}", mask=False); st.schedule()
            if st.over or st.tail: print("peelA over", i, st.over, len(st.tail), file=sys.stderr)
            st.emit(a)
            a(f"s_cbranch_vccnz L_dorare_pa{i}")
            a.label(f"L_norare_pa{i}")
            STUBS.append((f"L_dorare_pa{i}", f"L_rare{b}", f"L_norare_pa{i}"))
        a("s_branch L_steady0")
    a("s_nop 5")
    for ops, t in post_groups(6, False):
        for x in ops: a(x)
    a("s_waitcnt vmcnt(@since:ql)")
    stamp(4)
    def pre_fa1(st):
        post_place(st, 6, False, sPSG, [9, 17, 25, 33])
        poll_issue(st, 1, vL4, sFKVP, "kv2a"); poll_check(st, 58, vL4, sFKVP, "kv2a", False)
    st = mk_F(0, "fa1", pre_fa1)
    c = Chain(finit()); c.fill(st, 0, 30); assert not c.items
    st.emit(a)
    f_end("fa1", "L_peelA", None)
    merge("L_P1B")
    stamp(2)
    J = p1_jobs(OPT["kvb0"], OPT["kvstepb"], 200)
    for i in range(28):
        p = i >> 2
        xjob(J, f"x2{p}", i, XO2, max(p+1, 3)*64, (7+p)*64 - 134, 4)
    for i in range(16):
        qt, ud = i & 1, i >> 1
        J.add("qs", f"s_add_u32 s{sJT}, s{sQST}, {(qt*8+ud)*1024}", f"buffer_store_dwordx4 {ar(Q(0,qt,ud),4)}, v{vL16}, {WS}, s{sJT} offen{OPT['kvsc']} ; @qs",
              7*64 if ud < 5 else 8*64, 7*64+20+i*OPT["qstep"])
    def bstage(gs):
        s = gs % 7
        st = Stage(mf_proj(s, "zero" if gs % 7 == 0 else None))
        nod = 3 <= gs <= 7
        common_fill(st, dma=not nod, nd={3: 16, 4: 8, 5: 0}.get(gs), novm=(6 <= gs <= 10), rdl=(gs == 7))
        if gs == 9: poll_issue(st, 3, vL4, sFKVP, "kvb"); poll_check(st, 58, vL4, sFKVP, "kvb", False)
        if gs == 10: kv2addr(st)
        if gs == 1:
            st.put(2, f"s_cmp_gt_u32 s{sN}, 34\ns_cselect_b32 s{sT+1}, 34, 2")
            st.put(4, f"v_and_b32 v{vT}, 4, v{vLANE}"); st.put(8, f"v_mul_u32_u24 v{vT}, s{sT+1}, v{vT}"); st.put(10, f"v_or_b32 v{vL4}, v{vL4}, v{vT}")
        flagjob(J, "kvf", "kv", sFKV, OPT["fdelay"]); flagjob(J, "qf", "qs", sFQ, 72)
        if nod: J.place(st, gs, OPT["capn"], XG3)
        elif gs == 8: J.place(st, gs, OPT["capq"], XG2)
        else: J.place(st, gs, OPT["capb"])
        if gs in (4, 5): xwait(st, f"x1{gs+1}")
        if 6 <= gs < 13: xwait(st, f"x2{gs-6}")
        return st
    def btouch(gs):
        if OPT["tch"] and gs in OPT["tb"]: a(tcall(f"b{gs}")); a.label(f"LS_b{gs}")
        if OPT["tch"] and gs in OPT["tbc"]: a(tcall(OPT["tbc"].index(gs)))
    for gs in range(6): bstage(gs).emit(a); btouch(gs)
    def q_items(qb):
        items = []; cnt = 0
        for ud in range(8):
            blk = ud >> 1
            for qt in range(2):
                e = 16*blk+15+3
                t = vT + 16 + (cnt % 4)*4; cnt += 1
                for i in range(4):
                    jp = 2*(ud & 1) + (i >> 1); tl = 4*blk + 2*(i & 1)
                    items.append((f"v_cvt_pk_bf16_f32 v{t+i}, v{O(tl,qt)+jp}, v{O(tl+1,qt)+jp}", 0, e, 2*blk))
                for i in range(4): items.append((f"v_accvgpr_write_b32 a{Q(qb,qt,ud)+i}, v{t+i}", 0, e, 99 if ud >= 5 else -1))
        return items
    st = bstage(6); st7 = bstage(7)
    mid, st0 = split_chain(q_items(0), st, lambda: copy.deepcopy(st7), lambda ud: 8*ud-1)
    print("E1 mid", len(mid), file=sys.stderr)
    st.emit(a); btouch(6); emit_mid(mid)
    stamp(3)
    st0.emit(a); btouch(7)
    for gs in range(8, 13): bstage(gs).emit(a); btouch(gs)
    st = bstage(13)
    assert not J.jobs
    print("B jobs", {k: (v >> 6, v & 63) for k, v in J.at.items()}, file=sys.stderr)
    def mk_fa2():
        STUBS[:] = [x for x in STUBS if "fa2" not in x[0]]
        POLLS[:] = [x for x in POLLS if x[0] != "kv2b"]
        def pre(st): poll_issue(st, 1, vL4, sFKVP, "kv2b"); poll_check(st, 58, vL4, sFKVP, "kv2b", False)
        st = mk_F(0, "fa2", pre); c = Chain(finit()); c.fill(st, 0, 30); return st
    mid, st0 = split_chain(q_items(128), st, mk_fa2, lambda ud: 60)
    print("E2 mid", len(mid), file=sys.stderr)
    st.emit(a); emit_mid(mid)
    stamp(4)
    st0.emit(a)
    f_end("fa2", None, "L_u2")
    def steady(b, qb, tag, czero=False):
        st = Stage(mf_pv(0, b^1, czero) + mf_qk(1, b^1, qb)); common_fill(st)
        if b == 0:
            st.put(56, f"s_sub_u32 s{sCNT}, s{sCNT}, 1")
            st.put(58, f"s_cmp_lg_u32 s{sCNT}, s{sEV}")
            st.scc_busy |= set(range(58, 64))
        place_sm(st, b, 0, 62, tag); st.schedule()
        st.emit(a)
        a(f"s_cbranch_vccnz L_dorare_{tag}")
        a.label(f"L_norare_{tag}")
        STUBS.append((f"L_dorare_{tag}", f"L_rare{b}", f"L_norare_{tag}"))
    def loop(qb, n):
        merge(f"L_s1z{n}")
        steady(1, qb, f"z{n}", True)
        a(f"s_branch L_mid{n}")
        merge(f"L_steady{n}", True)
        steady(1, qb, f"s1{n}")
        merge(f"L_mid{n}")
        steady(0, qb, f"s0{n}")
        a(f"s_cbranch_scc1 L_steady{n}")
    loop(0, 0)
    a(f"s_cmp_eq_u32 s{sCNT}, 0")
    a("s_cbranch_scc1 L_end0")
    a(f"""
    s_add_u32 s{sFQ}, s{sFQ}, {FL_P - FL_Q}
    s_nop 0
    buffer_load_dword v{vPOLL}, v{vFLG}, {WS}, s{sFQ} offen sc1
    s_mov_b32 s{sEV}, 0
    s_branch L_steady0
    """)
    a.label("L_u2")
    for i in range(64): a(f"v_mov_b64 {vr(O0+2*i,2)}, 0")
    merge("L_end0")
    a(f"s_cmp_eq_u32 s{sTYPE}, 2")
    a("s_cbranch_scc1 L_lpack")
    a(f"""
    s_waitcnt vmcnt(16)
    v_cmp_ne_u32 vcc, s{sEXP}, v{vPOLL}
    s_add_u32 s{sT+3}, s{sPT}, 16384
    s_nop 0
    s_bitcmp1_b32 vcc_lo, 0
    s_cbranch_scc1 L_pw_pt
    """)
    a.label("L_po_pt")
    a("s_barrier")
    POLLS.append(("pt", vFLG, sFQ, True))
    a(f"buffer_load_dwordx4 {vr(vSTB,4)}, v{vL16}, {WS}, s{sT+3} offen sc1")
    for i in range(16):
        if i % 4 == 0: a(f"s_add_u32 s{sT+3}, s{sPT}, {i*1024}")
        a(f"buffer_load_dwordx4 {ar(128+4*i,4)}, v{vL16}, {WS}, s{sT+3} offen offset:{(i&3)*1024} sc1 ; @ptl")
    def pack_items(e0, step):
        items = []
        for ud in range(8):
            for qt in range(2):
                regs = [O(2*ud,qt)+i for i in range(4)] + [O(2*ud+1,qt)+i for i in range(4)]
                for i in range(4): items.append((f"v_cvt_pk_bf16_f32 v{regs[i]}, v{regs[2*i]}, v{regs[2*i+1]}", 0, e0+step*ud, ud))
        return items
    def mk_L(tag):
        st = Stage(mf_pv(0, 0) + mf_pv(1, 1)); common_fill(st)
        place_sm(st, 1, 0, 30, tag); st.schedule()
        st.put_post(31, f"s_cbranch_vccnz L_dorare_{tag}")
        st.put_post(31, f"L_norare_{tag}:")
        STUBS.append((f"L_dorare_{tag}", "L_rare1", f"L_norare_{tag}"))
        st.put(32, f"v_add_f32 v{vL[0]}, v{vL[0]}, v{vSUM[0][0]}")
        st.put(34, f"v_add_f32 v{vL[1]}, v{vL[1]}, v{vSUM[1][0]}")
        return st
    st = mk_L("ln")
    c = [(f"v_bfe_u32 v{vT+20}, v{vLANE}, 2, 2", 0), (f"v_lshrrev_b32 v{vT+21}, 4, v{vLANE}", 0), (f"v_cmp_eq_u32 s[{sT+4}:{sT+5}], v{vT+20}, v{vT+21}", 0),
         (f"v_and_b32 v{vT+20}, 3, v{vLANE}", 0), (f"v_lshlrev_b32 v{vT+20}, 4, v{vT+20}", 0), (f"v_mov_b32 v{vT+22}, 0x3f80", 0), (f"v_mov_b32 v{vT+23}, 0", 0),
         (f"v_cndmask_b32 v{vT+22}, 0, v{vT+22}, s[{sT+4}:{sT+5}]", 1), (f"v_lshlrev_b64 {vr(vSEL+2,2)}, v{vT+20}, {vr(vT+22,2)}", 0),
         (f"v_mov_b64 {vr(vSEL,2)}, 0", 0), (f"v_mov_b64 {vr(vSEL+4,2)}, 0", 0),
         ("s_waitcnt vmcnt(@since:ptl)", 1, 55),
         (f"v_cmp_neq_f32 vcc, v{NEGM(0)}, v{vSTB}", 1), (f"v_cmp_neq_f32 s[{sT+4}:{sT+5}], v{NEGM(1)}, v{vSTB+1}", 0)]
    c = Chain(c); c.fill(st, 35); assert not c.items
    st.emit(a)
    a(f"s_or_b64 vcc, vcc, s[{sT+4}:{sT+5}]")
    a("s_cbranch_scc1 L_slowcomb")
    a.label("L_comb")
    stamp(5)
    mf = []
    for ud in range(8):
        for h in range(2):
            for qt in range(2):
                d = vr(O(2*ud+h,qt),4)
                mf.append(f"{MF} {d}, {vr(vSEL+2-2*h,4)}, {ar(128+(ud*2+qt)*4,4)}, {d}")
    st = Stage(mf)
    st.put(0, f"v_add_f32 v{vL[0]}, v{vL[0]}, v{vSTB+2}")
    st.put(0, f"v_add_f32 v{vL[1]}, v{vL[1]}, v{vSTB+3}")
    c = Chain(pack_items(6, 4)); c.fill(st, 0, 31)
    st.emit(a)
    a("s_nop 5")
    c.flush(a)
    a("s_branch L_post2")
    merge("L_lpack")
    st = mk_L("lp")
    c = Chain([(f"v_mov_b32 v{vSTAT}, v{NEGM(0)}", 0), (f"v_mov_b32 v{vSTAT+1}, v{NEGM(1)}", 0), (f"v_mov_b64 {vr(vSTAT+2,2)}, {vr(vL[0],2)}", 0)] + pack_items(38, 4))
    c.fill(st, 35)
    st.put(62, f"s_cmp_eq_u32 s{sTYPE}, 2")
    st.emit(a)
    a("s_nop 5")
    print("Lpack tail", len(c.items), file=sys.stderr)
    c.flush(a)
    a("s_cbranch_scc0 L_post2b")
    stamp(5)
    a(f"""
    s_mov_b32 s{sTYPE}, 3
    s_mov_b32 s{sN}, 0
    s_sub_u32 s{sND}, 15, s{sQI}
    s_lshl_b32 s{sND}, s{sND}, 2
    s_add_u32 s{sND}, s{sND}, s{sWAVE}
    s_lshr_b32 s{sCNT}, s{sU2}, 1
    s_sub_u32 s{sCNT}, s{sCNT}, 1
    s_sub_u32 s{sEV}, s{sCNT}, 1
    s_add_u32 s{sFQ}, s{sFQ}, {FL_P - FL_Q}
    s_add_u32 s{sT+3}, s{sPT}, 16384
    buffer_store_dwordx4 {vr(vSTAT,4)}, v{vL16}, {WS}, s{sT+3} offen sc1
    """)
    st = mk_F(128, "fb")
    c = []
    for i in range(16):
        if i % 4 == 0: c.append((f"s_add_u32 s{sT+3}, s{sPT}, {i*1024}", 1))
        c.append((f"buffer_store_dwordx4 {vr(O(2*(i>>1),i&1),4)}, v{vL16}, {WS}, s{sT+3} offen offset:{(i&3)*1024}{OPT['kvsc']}", 1))
    c = Chain(c); c.fill(st)
    c2 = Chain(finit()); c2.fill(st, 0, 30); assert not c2.items
    print("Fb leftover", len(c.items), file=sys.stderr)
    st.emit(a)
    c.flush(a)
    f_end("fb", None, "L_end")
    loop(128, 1)
    a(f"""
    s_cmp_eq_u32 s{sTYPE}, 3
    s_cbranch_scc0 L_lpack
    s_waitcnt vmcnt(16)
    s_barrier
    buffer_store_dword v{vONE}, v{vFLG}, {WS}, s{sFQ} offen sc1
    s_mov_b32 s{sTYPE}, 4
    s_mov_b32 s{sEV}, 0
    s_cmp_eq_u32 s{sCNT}, 0
    s_cbranch_scc1 L_lpack
    s_branch L_steady1
    """)
    a.label("L_post2b")
    merge("L_post2")
    stamp(6)
    a("s_nop 1")
    C0, CO, FP = sU1, sU2, sW0
    XO = [sCNT, sEV]; BO = [sN, sND]
    vXO, vBO, vC1, vFG, vFS = 44, 45, 46, 47, 48
    fs = f"""
    s_load_dwordx2 s[{sSA}:{sSA+1}], s[0:1], 0
    s_load_dwordx2 s[{sG}:{sG+1}], s[0:1], 80
    s_load_dwordx2 s[{sSB}:{sSB+1}], s[0:1], 88
    s_mov_b32 s{sSA+2}, {2048*896}
    s_mov_b32 s{sSB+2}, {2048*896}
    s_mov_b32 s{sG+2}, 896
    s_and_b32 s{C0}, s2, 3
    s_mul_i32 s{C0}, s{C0}, 7
    s_lshl_b32 s{sT}, s{sWAVE}, 1
    s_add_u32 s{C0}, s{C0}, s{sT}
    s_lshr_b32 s{sT}, s2, 4
    s_mul_i32 s{CO}, s{sT}, {PS_R}
    s_bfe_u32 s{sT+4}, s2, 0x20002
    s_mul_i32 s{sT+5}, s{sT+4}, {28*1024}
    s_add_u32 s{CO}, s{CO}, s{sT+5}
    s_lshl_b32 s{sT+5}, s{C0}, 10
    s_add_u32 s{CO}, s{CO}, s{sT+5}
    s_add_u32 s{CO}, s{CO}, {WS_PS}
    s_lshr_b32 s{FP}, s2, 2
    s_lshl_b32 s{FP}, s{FP}, 7
    s_add_u32 s{FP}, s{FP}, {WS_FLG + FL_S}
    v_min_u32 v{vFG}, 6, v{vLANE}
    v_lshl_add_u32 v{vFG}, v{vFG}, 2, 64
    v_and_b32 v{vXO}, 15, v{vLANE}
    v_lshlrev_b32 v{vFS}, 2, v{vXO}
    s_lshr_b32 s{sT+5}, s2, 2
    s_lshl_b32 s{sT+5}, s{sT+5}, 5
    v_add_u32 v{vXO}, s{sT+5}, v{vXO}
    v_mul_u32_u24 v{vXO}, 896, v{vXO}
    v_and_b32 v{vBO}, 48, v{vLANE}
    v_lshlrev_b32 v{vBO}, 1, v{vBO}
    v_add_u32 v{vXO}, v{vXO}, v{vBO}
    """
    for k in range(2):
        fs += f"""
        s_add_u32 s{sT}, s{C0}, {k}
        s_lshr_b32 s{sT+4}, s{sT}, 2
        s_lshl_b32 s{BO[k]}, s{sT+4}, 7
        s_and_b32 s{sT+4}, s{sT}, 1
        s_lshl_b32 s{sT+4}, s{sT+4}, 4
        s_add_u32 s{BO[k]}, s{BO[k]}, s{sT+4}
        s_bfe_u32 s{sT+4}, s{sT}, 0x10001
        s_mul_i32 s{XO[k]}, s{sT+4}, {16*896}
        s_add_u32 s{XO[k]}, s{XO[k]}, s{BO[k]}
        """
    fs = [(x.strip(), 1) for x in fs.split("\n") if x.strip()]
    fs.append((f"s_cmp_eq_u32 s{sWAVE}, 3\ns_cselect_b32 s{XO[1]}, {OOB}, s{XO[1]}\ns_cselect_b32 s{sT+4}, {OOB}, 0", 1))
    fs.append((f"v_add_u32 v{vC1}, s{sT+4}, v{vL16}", 1))
    fs.append((f"s_cmp_eq_u32 s{sWAVE}, 0\ns_cselect_b32 s{FP}, s{FP}, {OOB}", 1))
    fs = Chain(fs)
    J = Jobs()
    GL = 128
    for k in range(2):
        J.add("gl", None, f"buffer_load_dwordx4 {ar(GL+56+4*k,4)}, v{vXO}, {sr(sSA,4)}, s{XO[k]} offen", 3*64, 7*64)
        J.add("gl", None, f"buffer_load_dwordx4 {ar(GL+64+4*k,4)}, v{vBO}, {G}, s{BO[k]} offen", 3*64, 7*64)
    for n in range(7):
        for k in range(2):
            J.add("gl", f"s_add_u32 s{sJT}, s{CO}, {(16+n)*PS_SRC}", f"buffer_load_dwordx4 {ar(GL+n*8+4*k,4)}, v{(vL16, vC1)[k]}, {WS}, s{sJT} offen offset:{k*1024} sc1 ; @gl", 4*64, 7*64)
    for s in range(7):
        st = Stage(mf_post(s)); common_fill(st, dma=(s < 3), nd=(None, None, None, 16, 8, 0, 0)[s], last=(s == 6))
        if s == 0:
            c = xlane_ops("v_add_f32", vL[0], vT) + xlane_ops("v_add_f32", vL[1], vT) + [(f"v_rcp_f32 v{vRINV[0]}, v{vL[0]}", 0), (f"v_rcp_f32 v{vRINV[1]}, v{vL[1]}", 1)]
            c = Chain(c); c.fill(st); assert not c.items
            fs.fill(st)
        else:
            gaps = [17, 33, 49, 57]
            post_place(st, s-1, True, sPSS, gaps)
            if s == 2: st.put(60, "s_waitcnt lgkmcnt(0)")
            if s == 2: poll_issue(st, 41, vFG, FP, "gf")
            if s == 3: poll_check(st, 58, vFG, FP, "gf", False)
            J.place(st, s, 7, [1, 9, 13, 25, 29, 41, 45, 61])
            post_sched(st, s-1, True, gaps)
            fs.fill(st)
            if s == 1: assert not fs.items
        st.emit(a)
    assert not J.jobs
    post_flush(6, True, sPSS)
    stamp(7)
    a(f"s_mov_b32 s{sT+4}, 0x00003f80")
    a(f"s_mov_b32 s{sT+5}, 0x3f800000")
    a(f"s_mov_b32 s{sT+6}, 0xffff0000")
    a(f"s_mov_b32 s{sT+7}, {f2u(-1.4426950408889634):#x}")
    LB = 128; TB = 64
    XB, BB = TB+56, 52
    GA, SA_ = 12, 28
    a("s_waitcnt vmcnt(@since:gl)")
    for i in range(64): a(f"v_accvgpr_read_b32 v{TB+i}, a{GL+i}")
    for i in range(8): a(f"v_accvgpr_read_b32 v{BB+i}, a{GL+64+i}")
    def accum(base, acc, first):
        for i in range(8):
            r = base+i
            if first:
                a(f"v_lshlrev_b32 v{acc+2*i}, 16, v{r}"); a(f"v_and_b32 v{acc+2*i+1}, s{sT+6}, v{r}")
            else:
                a(f"v_dot2_f32_bf16 v{acc+2*i}, v{r}, s{sT+4}, v{acc+2*i}"); a(f"v_dot2_f32_bf16 v{acc+2*i+1}, v{r}, s{sT+5}, v{acc+2*i+1}")
    def rnd_pair(r0, r1, t):
        a(f"v_cvt_pk_bf16_f32 v{t}, v{r0}, v{r1}")
        a(f"v_lshlrev_b32 v{r0}, 16, v{t}")
        a(f"v_and_b32 v{r1}, s{sT+6}, v{t}")
    for n in range(7): accum(TB+n*8, GA, n == 0)
    a("s_waitcnt vmcnt(0)")
    a(f"buffer_store_dword v{vONE}, v{vFLG}, {WS}, s{sFSS} offen sc1")
    a("s_nop 0")
    T1, T2, T3 = 2, 3, 4
    for i in range(8):
        g0, g1 = GA+2*i, GA+2*i+1
        rnd_pair(g0, g1, T1)
        a(f"v_lshlrev_b32 v{T2}, 16, v{BB+i}")
        a(f"v_and_b32 v{T3}, s{sT+6}, v{BB+i}")
        a(f"v_add_f32 v{g0}, v{g0}, v{T2}")
        a(f"v_add_f32 v{g1}, v{g1}, v{T3}")
        rnd_pair(g0, g1, T1)
        a(f"v_mul_f32 v{T2}, s{sT+7}, v{g0}")
        a(f"v_mul_f32 v{T3}, s{sT+7}, v{g1}")
        a(f"v_exp_f32 v{T2}, v{T2}")
        a(f"v_exp_f32 v{T3}, v{T3}")
        a("s_nop 0")
        a(f"v_add_f32 v{T2}, 1.0, v{T2}")
        a(f"v_add_f32 v{T3}, 1.0, v{T3}")
        a(f"v_rcp_f32 v{T2}, v{T2}")
        a(f"v_rcp_f32 v{T3}, v{T3}")
        a("s_nop 0")
        a(f"v_mul_f32 v{g0}, v{g0}, v{T2}")
        a(f"v_mul_f32 v{g1}, v{g1}, v{T3}")
        rnd_pair(g0, g1, T1)
    a(f"s_mov_b32 s{sT+1}, 0")
    a(f"s_cmp_lg_u32 s{sWAVE}, 0")
    a("s_cbranch_scc1 L_fgo")
    a.label("L_fpoll")
    a(f"""
    buffer_load_dword v{vPOLL}, v{vFS}, {WS}, s{FP} offen sc1
    s_add_u32 s{sT+1}, s{sT+1}, 1
    s_waitcnt vmcnt(0)
    v_cmp_ne_u32 vcc, 1, v{vPOLL}
    s_cmp_lt_u32 s{sT+1}, 0x10000
    s_cbranch_vccz L_fgo
    s_sleep {OPT['fsleep']}
    s_cbranch_scc1 L_fpoll
    """)
    a.label("L_fgo")
    a("s_barrier")
    stamp(8)
    for n in range(16):
        a(f"s_add_u32 s{sT}, s{CO}, {n*PS_SRC}")
        a(f"buffer_load_dwordx4 {vr(LB+n*8,4)}, v{vL16}, {WS}, s{sT} offen sc1")
        a(f"buffer_load_dwordx4 {vr(LB+n*8+4,4)}, v{vC1}, {WS}, s{sT} offen offset:1024 sc1")
    for n in range(16):
        a(f"s_waitcnt vmcnt({2*(15-n)})")
        accum(LB+n*8, SA_, n == 0)
    a("s_nop 2")
    for i in range(8):
        g0, g1, s0, s1 = GA+2*i, GA+2*i+1, SA_+2*i, SA_+2*i+1
        rnd_pair(s0, s1, T1)
        a(f"v_mul_f32 v{g0}, v{g0}, v{s0}")
        a(f"v_mul_f32 v{g1}, v{g1}, v{s1}")
        rnd_pair(g0, g1, T1)
        a(f"v_lshlrev_b32 v{T2}, 16, v{XB+i}")
        a(f"v_and_b32 v{T3}, s{sT+6}, v{XB+i}")
        a(f"v_add_f32 v{g0}, v{g0}, v{T2}")
        a(f"v_add_f32 v{g1}, v{g1}, v{T3}")
        a(f"v_cvt_pk_bf16_f32 v{LB+i}, v{g0}, v{g1}")
        if i % 4 == 3: a(f"buffer_store_dwordx4 {vr(LB+i-3,4)}, v{vXO}, {sr(sSB,4)}, s{XO[i>>2]} offen")
    if stamps:
        a("s_waitcnt vmcnt(0)")
        stamp(9)
        a("s_waitcnt lgkmcnt(0)")
        if OPT["enc"] >= 0:
            a(f"""
            s_and_b32 s{sT+1}, s2, {OPT["encw"][0]}
            s_cmp_eq_u32 s{sT+1}, {OPT["encw"][1]}
            s_cbranch_scc0 L_end
            s_sub_u32 s{sT+1}, s{streg(OPT["enc"])}, s{streg(OPT["enc0"])}
            s_mul_i32 s{sT+1}, s{sT+1}, {OPT["enck"]}
            s_add_u32 s{sT+1}, s{sT+1}, s{streg(0)}
            s_add_u32 s{sT+1}, s{sT+1}, 10000
            s_mov_b32 s{sT+2}, 0
            L_enc:
            s_memrealtime s[{sT+4}:{sT+5}]
            s_add_u32 s{sT+2}, s{sT+2}, 1
            s_waitcnt lgkmcnt(0)
            s_cmp_gt_u32 s{sT+2}, 1000000
            s_cbranch_scc1 L_end
            s_sub_u32 s{sT+4}, s{sT+4}, s{sT+1}
            s_cmp_lt_i32 s{sT+4}, 0
            s_cbranch_scc1 L_enc
            s_endpgm
            """)
        for i in range(12): a(f"v_mov_b32 v{16+i}, s{streg(min(i,9))}")
        a(f"""
        s_lshl_b32 s{sT+1}, s2, 2
        s_add_u32 s{sT+1}, s{sT+1}, s{sWAVE}
        s_lshl_b32 s{sT+1}, s{sT+1}, 6
        s_add_u32 s{sT+1}, s{sT+1}, {WS_STAMP}
        buffer_store_dwordx4 v[16:19], v{vFLG}, {WS}, s{sT+1} offen
        buffer_store_dwordx4 v[20:23], v{vFLG}, {WS}, s{sT+1} offen offset:16
        buffer_store_dwordx4 v[24:27], v{vFLG}, {WS}, s{sT+1} offen offset:32
        s_sub_u32 s{sT+1}, s{sT+1}, {WS_STAMP}
        s_lshl_b32 s{sT+1}, s{sT+1}, 3
        s_add_u32 s{sT+1}, s{sT+1}, {WS_STAMP + 0x100000}
        v_lshlrev_b32 v2, 2, v{vLANE}
        buffer_store_dword v0, v2, {WS}, s{sT+1} offen
        buffer_store_dword v{vKV}, v2, {WS}, s{sT+1} offen offset:256
        """)
    a.label("L_end")
    a("s_endpgm")
    for typ in ("K", "V"):
        for nm, ok, ldi, red, reg in (("zwait", "zok", f"buffer_load_dword v{vPOLL}, v{vL4}, {sr(sDBG,4)}, 0 offen sc1", "", vPOLL),
                ("prepwait", "prepok", f"buffer_load_dwordx4 {vr(PV,4)}, v{vL16}, {WS}, s{gIT} offen sc1",
                 f"v_and_b32 v{PV}, v{PV}, v{PV+1}\nv_and_b32 v{PV+2}, v{PV+2}, v{PV+3}\nv_and_b32 v{PV}, v{PV}, v{PV+2}", PV)):
            a.label(f"L_{nm}{typ}")
            a(f"s_mov_b32 s{sT+4}, 0")
            a.label(f"L_{nm}2{typ}")
            a(f"""
            s_sleep 4
            {ldi}
            s_add_u32 s{sT+4}, s{sT+4}, 1
            s_waitcnt vmcnt(0)
            {red}
            v_cmp_ne_u32 vcc, s{sT+1}, v{reg}
            s_cmp_ge_u32 s{sT+4}, 0x10000
            s_cbranch_scc1 L_{ok}{typ}
            s_nop 2
            s_cbranch_vccnz L_{nm}2{typ}
            s_branch L_{ok}{typ}
            """)
    for (tag, voff, soff, lane0) in POLLS:
        a.label(f"L_pw_{tag}")
        a(f"s_mov_b32 s{sT+1}, 0")
        a.label(f"L_pw2_{tag}")
        a(f"""
        buffer_load_dword v{vPOLL}, v{voff}, {WS}, s{soff} offen sc1
        s_add_u32 s{sT+1}, s{sT+1}, 1
        s_waitcnt vmcnt(0)
        v_cmp_ne_u32 s[{sT+4}:{sT+5}], 1, v{vPOLL}
        s_cmp_ge_u32 s{sT+1}, 0x10000
        s_cbranch_scc1 L_po_{tag}
        s_sleep {OPT['psleep']}
        """)
        if lane0 is True: a(f"s_bitcmp1_b32 s{sT+4}, 0")
        else: a(f"s_cmp_lg_u64 s[{sT+4}:{sT+5}], 0")
        a(f"s_cbranch_scc1 L_pw2_{tag}")
        a(f"s_branch L_po_{tag}")
    a.label("L_stubs")
    a("s_nop 0")
    for (lab, sub, back) in STUBS:
        a.label(lab)
        a(f"s_call_b64 s[{sRET}:{sRET+1}], {sub}")
        a(f"s_branch {back}")
    for b in range(2):
        a.label(f"L_mask{b}")
        a("s_nop 7")
        a(f"s_cmp_eq_u32 s{sN}, s{sND}")
        a(f"s_cbranch_scc0 L_maskall{b}")
        for r in range(4):
            a(f"v_cndmask_b32 v{S(b,0,0)+r}, v{S(b,0,0)+r}, v{vBIG}, s[{sMASK+2*r}:{sMASK+2*r+1}]")
            a(f"v_cndmask_b32 v{S(b,1,1)+r}, v{S(b,1,1)+r}, v{vBIG}, s[{sMASK+2*r}:{sMASK+2*r+1}]")
            a(f"v_mov_b32 v{S(b,1,0)+r}, v{vBIG}")
        a(f"s_setpc_b64 s[{sRET}:{sRET+1}]")
        a.label(f"L_maskall{b}")
        for i in range(16): a(f"v_mov_b32 v{S(b,0,0)+i}, v{vBIG}")
        a(f"s_setpc_b64 s[{sRET}:{sRET+1}]")
    a.label("L_fchk")
    hi, lo = f2u(2.0**OPT["thr"]), f2u(2.0**-OPT["thr"])
    a(f"s_add_u32 s{sT+1}, s{sND}, 1")
    a(f"s_cmp_gt_u32 s{sN}, s{sT+1}")
    a("s_cbranch_scc1 L_fret")
    for qt in range(2):
        a(f"v_mov_b32 v{vT+8+qt}, v{vSUM[qt][0]}")
        xlane(a, "v_add_f32", vT+8+qt, vT)
        a(f"v_subrev_u32 v{vT+8+qt}, {lo:#x}, v{vT+8+qt}")
    a(f"v_max_u32 v{vT+8}, v{vT+8}, v{vT+9}")
    a(f"v_cmp_lt_u32 vcc, {hi-lo:#x}, v{vT+8}")
    a("s_nop 4")
    a("s_cbranch_vccnz L_rare0")
    a.label("L_fret")
    a(f"s_setpc_b64 s[{sRET}:{sRET+1}]")
    for b in range(2):
        a.label(f"L_rare{b}")
        a("s_nop 7")
        D = [vT+8, vT+9]; F = [vT+10, vT+11]
        for qt in range(2):
            r0, r1 = S(b,0,qt), S(b,1,qt)
            a(f"v_max3_f32 v{D[qt]}, v{r0}, v{r0+1}, v{r0+2}")
            a(f"v_max3_f32 v{D[qt]}, v{D[qt]}, v{r0+3}, v{r1}")
            a(f"v_max3_f32 v{D[qt]}, v{D[qt]}, v{r1+1}, v{r1+2}")
            a(f"v_max_f32 v{D[qt]}, v{D[qt]}, v{r1+3}")
            xlane(a, "v_max_f32", D[qt], vT)
            a(f"v_max_f32 v{D[qt]}, s{sCLAMP}, v{D[qt]}")
            a(f"v_max_f32 v{F[qt]}, 0, v{D[qt]}")
            a(f"v_exp_f32 v{F[qt]}, -v{F[qt]}")
            for i in range(4): a(f"v_sub_f32 v{NEGM(qt)+i}, v{NEGM(qt)+i}, v{D[qt]}")
            for bb in range(2):
                for kt in range(2):
                    for i in range(4): a(f"v_sub_f32 v{S(bb,kt,qt)+i}, v{S(bb,kt,qt)+i}, v{D[qt]}")
            a(f"v_mul_f32 v{vL[qt]}, v{F[qt]}, v{vL[qt]}")
        for o in sm_ops(b): a(o)
        a(f"s_cmp_eq_u32 s{sFIRST}, 1")
        a(f"s_cbranch_scc1 L_rare_ret{b}")
        for dt in range(16):
            for qt in range(2):
                for i in range(4): a(f"v_mul_f32 v{O(dt,qt)+i}, v{F[qt]}, v{O(dt,qt)+i}")
        a.label(f"L_rare_ret{b}")
        a(f"s_cmp_lg_u32 s{sCNT}, s{sEV}")
        a("s_nop 0")
        a(f"s_setpc_b64 s[{sRET}:{sRET+1}]")
    a.label("L_slowcomb")
    a("s_nop 7")
    wA, wB = [vT+8, vT+9], [vT+10, vT+11]
    for qt in range(2):
        a(f"""
        v_min_f32 v{vT+6}, v{NEGM(qt)}, v{vSTB+qt}
        v_sub_f32 v{wA[qt]}, v{vT+6}, v{NEGM(qt)}
        v_sub_f32 v{wB[qt]}, v{vT+6}, v{vSTB+qt}
        v_exp_f32 v{wA[qt]}, v{wA[qt]}
        v_exp_f32 v{wB[qt]}, v{wB[qt]}
        s_nop 0
        v_mul_f32 v{vL[qt]}, v{wA[qt]}, v{vL[qt]}
        v_mul_f32 v{vSTB+2+qt}, v{wB[qt]}, v{vSTB+2+qt}
        """)
    for dt in range(16):
        for qt in range(2):
            for i in range(4): a(f"v_mul_f32 v{O(dt,qt)+i}, v{wA[qt]}, v{O(dt,qt)+i}")
    for i in range(64):
        qt = (i >> 2) & 1
        a(f"""
        v_accvgpr_read_b32 v{vT}, a{128+i}
        v_lshlrev_b32 v{vT+1}, 16, v{vT}
        v_and_b32 v{vT}, 0xffff0000, v{vT}
        v_mul_f32 v{vT+1}, v{wB[qt]}, v{vT+1}
        v_mul_f32 v{vT}, v{wB[qt]}, v{vT}
        v_cvt_pk_bf16_f32 v{vT}, v{vT+1}, v{vT}
        v_accvgpr_write_b32 a{128+i}, v{vT}
        """)
    a("s_nop 1")
    a("s_branch L_comb")
    a.label("L_codeend")
    lines = []
    for l in a.lines: lines += l.split("\n")
    ghost = [l.startswith("@ghost ") for l in lines]
    lines = [l[7:] if g else l for l, g in zip(lines, ghost)]
    lines = resolve_vm(lines)
    lines = [l.replace("@@buffer", "buffer") for l, g in zip(lines, ghost) if not g]
    errs = check_hazards(lines) + check_scc(lines)
    for e in errs[:30]: print("HAZARD", e, file=sys.stderr)
    lines = [re.sub(r"\s*; @\w+", "", l) for l in lines]
    lines = [l.strip() for l in lines if l.strip()]
    i, j = lines.index("L_gemmV:"), lines.index("L_P1A:")
    k = lines.index("L_zwaitV:"); k2 = lines.index("s_branch L_prepokV") + 1
    assert lines[i-1] == "s_branch L_P1A"
    lines = [".p2align 12"] + lines[i:j] + lines[k:k2] + lines[:i-1] + lines[j:k] + lines[k2:]
    if OPT["tch"]:
        tmp = [re.sub(r"LT_(\w+)_\d", r"LR_\1", l) for l in lines]
        tmp, found = insert_stubs(tmp, [("L_gemmV", "L_zwaitV"), ("L_gK", "L_P1A"), ("L_P1A", "L_P1B"), ("L_P1B", "L_s1z0"), ("L_s1z0", "L_end")],
                                  ["L_P1A", "L_P1B", "L_steady0", "L_lpack", "L_post2", "L_mask0"])
        found["L_s1z0"] += found.pop("L_mask0")
        pos = {l: n for n, l in enumerate(tmp)}
        it_ = iter(lines); lines = [l if l.startswith("@stub") else next(it_) for l in tmp]
        ret = {}; tgt = {}
        for nm, key in sorted(SITES, key=lambda x: x[0][0] != "p"):
            c = [p for p in found[key] if p not in ret and (nm[0] in "pc" or pos["@stub " + p] > pos[f"LS_{nm}:"])][:4]
            for w in range(4): tgt[f"LT_{nm}_{w}"] = "L" + c[w] if w < len(c) else f"LR_{nm}"
            for p in c: ret[p] = f"LR_{nm}"
        print("stubs", {k_: [(p, ret.get(p)) for p in v] for k_, v in found.items()}, file=sys.stderr)
        o = []
        for l in lines:
            if l.startswith("@stub"):
                p = l.split()[1]
                o += [f"L{p}:", f"s_cbranch_execz {ret[p]}"] if p in ret else ["s_nop 0"]
            else: o.append(re.sub(r"LT_\w+_\d", lambda m: tgt[m.group(0)], l))
        lines = o
    lines = compact(lines)
    return "\n".join(lines) + "\n", kernel_desc(name, 512, 256)

if __name__ == "__main__":
    import ast
    for x in sys.argv[2:]:
        k, v = x.split("=")
        OPT[k] = ast.literal_eval(v)
    NAME = "recurrent_scan__compressed_kv_cla__dense_activation_squared_relu__prompt_kernel"
    body, desc = gen(NAME)
    ref = open("recurrent_scan__compressed_kv_cla__dense_activation_squared_relu__prompt.s.ref").read().split("\n")
    hdr = [l for l in ref if l.startswith(";") and "launch" not in l and "grid=" not in l]
    hdr += ["; @launch grid=(256,1,1) block=(256,1,1) lds=163840", '.amdgcn_target "amdgcn-amd-amdhsa--gfx950"', ".text"]
    txt = "\n".join(hdr) + "\n" + body + '.section .rodata,"a"\n.p2align 6\n' + desc
    open(sys.argv[1], "w").write(txt)
    print(len(txt), "bytes", file=sys.stderr)
```

```python
import re, struct
from asmlib import *
MF = "v_mfma_f32_16x16x32_bf16"
def f2u(x): return struct.unpack("<I", struct.pack("<f", x))[0]

def cls(ins):
    if ins.endswith(":"): return "L"
    if ins.startswith("s_"): return "S"
    if ins.startswith("ds_"): return "M"
    if ins.startswith("buffer_"): return "D"
    if ins.startswith(("v_exp", "v_rcp", "v_log", "v_rsq", "v_sqrt", "v_readlane", "v_readfirstlane")): return "E"
    return "V"
COST = {"S": 0, "L": 0, "M": 1, "V": 1, "E": 2, "D": 2}

class Stage:
    def __init__(self, mf=None):
        self.mf = mf or []
        self.fill = {}
        self.post = {}
        self.ops = []
        self.scc_busy = set()
        self.tail = []
    def put(self, g, ins):
        self.fill.setdefault(g, []).append(ins)
    def put_post(self, g, ins):
        self.post.setdefault(g, []).append(ins)
    def free(self, g):
        n = 2; ns = 0; nd = 0
        for i in self.fill.get(g, []) + self.post.get(g, []):
            c = cls(i)
            if c == "S": ns += 1
            elif c == "D": nd += 1; n -= 2
            else: n -= COST[c]
        if nd: n -= ns
        else: n -= max(0, ns - 1)
        return n
    def nS(self, g):
        return sum(1 for i in self.fill.get(g, []) + self.post.get(g, []) if cls(i) == "S")
    def hasD(self, g):
        return any(cls(i) == "D" for i in self.fill.get(g, []) + self.post.get(g, []))
    def add(self, ins, deps=(), early=0, late=None, dist=None):
        self.ops.append((ins, [d for d in deps if d is not None], early, late, dist)); return len(self.ops)-1
    def schedule(self, g_end=None, maxover=6, allow_tail=True):
        n = len(self.mf)
        g_end = n-1 if g_end is None else g_end
        ops = self.ops
        for over in range(0, maxover+1):
            placed = {}; used = {}
            for g in range(0, g_end+1):
                fr = self.free(g)
                cap = fr + (over if fr >= 0 and not self.hasD(g) else 0)
                ns = self.nS(g); hasd = self.hasD(g)
                while True:
                    cand = []
                    for i, (ins, deps, early, late, dist) in enumerate(ops):
                        if i in placed or g < early: continue
                        ok = True
                        for d in deps:
                            if d not in placed: ok = False; break
                            if dist is not None:
                                if g - placed[d] < dist: ok = False; break
                            elif placed[d] == g:
                                cd, ci = cls(ops[d][0]), cls(ins)
                                if not ((cd == "V" and ci in "VE") or (cd == "S" and ci != "D") or (cd == "M" and ci in "MVE")):
                                    ok = False; break
                        if ok: cand.append(i)
                    cand.sort(key=lambda i: (ops[i][3] if ops[i][3] is not None else 999, 0 if cls(ops[i][0]) in "ED" else 1, i))
                    got = None
                    for i in cand:
                        c = cls(ops[i][0])
                        must = ops[i][3] is not None
                        mycap = cap if must or not allow_tail else min(cap, fr)
                        if c == "S":
                            if hasd or g in self.scc_busy: continue
                            cost = 0 if ns == 0 else 1
                        elif c == "D":
                            if hasd or (fr < 2 or ns or used.get(g)) and not (must and over >= 2 and mycap >= 2): continue
                            cost = 2
                        else:
                            if hasd: continue
                            cost = COST[c]
                        if cost <= mycap:
                            got = i; break
                    if got is None: break
                    c = cls(ops[got][0])
                    placed[got] = g; cap -= cost; fr -= cost; used.setdefault(g, []).append(got)
                    if c == "S": ns += 1
                    if c == "D": hasd = True
            bad = [i for i, o in enumerate(ops) if (o[3] is not None and placed.get(i, 10**6) > o[3]) or (not allow_tail and i not in placed)]
            if not bad: break
        assert not bad, [ops[i] for i in bad[:5]]
        self.over = over
        for g in sorted(used):
            for i in used[g]: self.put(g, ops[i][0])
        self.tail += [o[0] for i, o in enumerate(ops) if i not in placed]
        self.ops = []
    def emit(self, a, tailpad=None):
        order = {"S": 0, "L": 0, "M": 1, "D": 1, "V": 2, "E": 2}
        f = {}
        for g in set(self.fill) | set(self.post):
            f[g] = sorted(self.fill.get(g, []), key=lambda i: order[cls(i)]) + self.post.get(g, [])
        for l in interleave(self.mf, f): a(l)
        if self.tail and tailpad: a(tailpad)
        for l in self.tail: a(l)

def resolve_vm(lines):
    out = list(lines)
    for i, l in enumerate(lines):
        m = re.search(r"vmcnt\(@(dma|since|mrg):(\w+)\)", l)
        if not m: continue
        kind, arg = m.groups()
        cnt = 0; nd = 0; val = None
        for j in range(i-1, -1, -1):
            s = lines[j].strip()
            if "@merge" in s:
                assert kind in ("dma", "mrg"), ("tag not found before merge", l)
                val = cnt + (int(arg) - nd); break
            if s.startswith("buffer_"):
                isd = " lds" in s
                if kind == "dma":
                    if isd:
                        if nd == int(arg): val = cnt; break
                        nd += 1
                elif kind == "since":
                    if ("@" + arg) in s.split(): val = cnt; break
                cnt += 1
        assert val is not None, l
        out[i] = l.replace(m.group(0), f"vmcnt({min(val, 63)})")
    return out

def regs_of(tok):
    tok = tok.strip().lstrip("-").strip("|")
    m = re.fullmatch(r"([vas])\[(\d+):(\d+)\]", tok)
    if m: return {(m.group(1), r) for r in range(int(m.group(2)), int(m.group(3))+1)}
    m = re.fullmatch(r"([vas])(\d+)", tok)
    if m: return {(m.group(1), int(m.group(2)))}
    if tok in ("vcc", "m0", "exec"): return {(tok, 0)}
    return set()
def parse(ins):
    ins = ins.split(";")[0].strip()
    op, _, rest = ins.partition(" ")
    toks = [t.strip() for t in rest.split(",")] if rest else []
    if toks: toks[-1:] = toks[-1].split()
    return op, toks
def check_hazards(lines, margin=1):
    t = 0; lastmf = -100
    mfD = {}; mfC = {}; vw = {}; tw = {}; vsw = {}; m0w = -100; stw = {}; dlw = {}
    errs = []
    for ln, raw in enumerate(lines):
        s = raw.split(";")[0].strip()
        if not s or s.endswith(":") or s.startswith("."): continue
        op, toks = parse(s)
        if op == "s_nop":
            t += int(toks[0]) + 1; continue
        if op in ("s_branch", "s_setpc_b64", "s_endpgm"):
            t += 100; continue
        def need(tab, regs, n, what):
            for r in regs:
                if r in tab and t - tab[r] - 1 < n:
                    errs.append((ln, what, raw.strip(), r, t - tab[r] - 1)); return
        R = [regs_of(x) for x in toks]
        if op.startswith("v_mfma"):
            t = max(t, lastmf + 4); lastmf = t
            D, A, B, C = R[0], R[1], R[2], R[3]
            need(vw, A | B | C, 2, "valu->mfma")
            need(dlw, A | B | C, 3, "dot->mfma")
            need(mfD, A | B, 8 + margin, "mfmaD->AB")
            if C != D or True:
                for r in C:
                    if r in mfD and mfD[r][1] != frozenset(C) if False else False: pass
            for r in D: mfD[r] = t
            for r in C: mfC[r] = t
        elif op.startswith("v_"):
            if op.startswith("v_cmp"):
                dst = R[0]; src = set().union(*R[1:]); vd = set()
            elif op.startswith(("v_readlane", "v_readfirstlane")):
                dst = R[0]; src = set().union(*R[1:]); vd = set()
                need(vw, R[1], 1, "valu->readlane")
                if len(R) > 2: need(vsw, R[2], 4, "vsgpr->lanesel")
            else:
                dst = set(); vd = set(R[0]); src = set().union(*R[1:]) if len(R) > 1 else set()
                if op.startswith("v_permlane"): vd |= R[1]; src |= R[0]; need(vw, src, 2, "valu->permlane")
                if op.startswith(("v_fmac", "v_dot2c")): src |= R[0]
                if op.startswith("v_cndmask") and len(toks) == 3: src |= {("vcc", 0)}
                if "dpp" in op: need(vw, src, 2, "valu->dpp")
            need(mfD, src | vd, 8 + margin, "mfmaD->valu")
            need(mfC, vd, 3, "mfmaC->valuW")
            need(tw, src, 1, "trans->valu")
            need(vsw, {r for r in src if r[0] in ("s", "vcc")}, 2, "vsgpr->valu")
            need(stw, vd, 2, "store->valuW")
            if not op.startswith("v_dot"): need(dlw, src | vd, 3, "dot->other")
            for r in vd:
                vw[r] = t
                if cls(op) == "E": tw[r] = t
                if op.startswith("v_dot"): dlw[r] = t
            for r in dst: vsw[r] = t
        elif op.startswith(("buffer_", "ds_")):
            allr = set().union(*R) if R else set()
            need(mfD, allr, 8 + margin, "mfmaD->mem")
            need(vsw, {r for r in allr if r[0] == "s"}, 5, "vsgpr->vmem")
            need(dlw, allr, 3, "dot->mem")
            if "lds" in toks and t - m0w - 1 < 1: errs.append((ln, "m0->dma", raw.strip()))
            if op.startswith("buffer_store") and ("x4" in op or "x3" in op):
                for r in R[0]: stw[r] = t
            elif op.startswith(("buffer_load", "ds_read")) and "lds" not in toks:
                need(stw, R[0], 1, "store->loadW")
        elif op.startswith("s_"):
            if toks and toks[0] == "m0": m0w = t
        t += 1
    return errs

def check_scc(lines):
    errs = []; last = None
    nowr = ("s_mov", "s_mul_i32", "s_waitcnt", "s_nop", "s_barrier", "s_cbranch", "s_branch", "s_cselect", "s_load", "s_memrealtime", "s_memtime", "s_sleep", "s_call", "s_setpc", "s_endpgm", "s_setprio", "s_movk")
    for ln, raw in enumerate(lines):
        s = raw.split(";")[0].strip()
        if not s.startswith("s_"): continue
        op = s.split()[0]
        if op.startswith(("s_cbranch_scc", "s_cselect", "s_addc", "s_subb")):
            ok = last and (last.startswith(("s_cmp", "s_bitcmp", "s_or_b64", "s_and_b32")) or (op.startswith("s_subb") and last.startswith("s_sub_u32")) or (op.startswith("s_addc") and last.startswith("s_add_u32")))
            if not ok: errs.append((ln, "scc", s, last))
        if not op.startswith(nowr): last = op
    return errs

def compact(lines):
    macros = {}; out = []
    R = r"([va])\[(\d+):\d+\]"
    for l in lines:
        m = re.fullmatch(MF + rf" {R}, {R}, {R}, (0|{R})", l)
        if m:
            dt, d, at, a_, bt, b, c, ct, cn = m.groups()
            if c == "0": nm, args, cs = f"Z{dt}{at}{bt}", (d, a_, b), "0"
            elif (ct, cn) == (dt, d): nm, args, cs = f"M{dt}{at}{bt}", (d, a_, b), f"{dt}[\\d:\\d+3]"
            else: nm, args, cs = f"N{dt}{at}{bt}", (d, a_, b, cn), f"{ct}[\\c:\\c+3]"
            macros[nm] = f".macro {nm} d, a, b{', c' if len(args) == 4 else ''}\n{MF} {dt}[\\d:\\d+3], {at}[\\a:\\a+3], {bt}[\\b:\\b+3], {cs}\n.endm"
            out.append(f"{nm} {','.join(args)}"); continue
        m = re.fullmatch(r"ds_read_b128 a\[(\d+):\d+\], v(\d+) offset:(\d+)", l)
        if m:
            macros["RD"] = ".macro RD d, v, o\nds_read_b128 a[\\d:\\d+3], v\\v offset:\\o\n.endm"
            out.append("RD " + ",".join(m.groups())); continue
        m = re.fullmatch(r"ds_read_b64_tr_b16 a\[(\d+):\d+\], v(\d+) offset:(\d+)", l)
        if m:
            macros["RT"] = ".macro RT d, v, o\nds_read_b64_tr_b16 a[\\d:\\d+1], v\\v offset:\\o\n.endm"
            out.append("RT " + ",".join(m.groups())); continue
        out.append(l)
    return list(macros.values()) + out

import subprocess, os
def line_sizes(lines):
    isins = [not (l.endswith(":") or l.startswith(".") or l.startswith("@")) for l in lines]
    src = '.amdgcn_target "amdgcn-amd-amdhsa--gfx950"\n.text\n' + "\n".join(l for l in lines if not l.startswith((".p2align", "@"))) + "\ns_endpgm\n"
    open("sz.s", "w").write(src)
    r = subprocess.run(["clang", "-x", "assembler", "-target", "amdgcn-amd-amdhsa", "-mcpu=gfx950", "-c", "sz.s", "-o", "sz.o"], capture_output=True, text=True)
    assert r.returncode == 0, r.stderr[:2000]
    d = subprocess.run(["llvm-objdump", "-d", "sz.o"], capture_output=True, text=True).stdout
    ad = [int(m.group(1), 16) for m in re.finditer(r"// ([0-9A-F]{12}):", d)]
    assert len(ad) == sum(isins) + 1, (len(ad), sum(isins))
    out = []; k = 0
    for f in isins:
        if f: out.append(ad[k+1] - ad[k]); k += 1
        else: out.append(None)
    return out
def insert_stubs(lines, ranges, labels):
    sz = line_sizes(lines)
    out = []; adr = 0; cur = None; found = {}; page = 0; n = 0; lastl = -1; prev = ""
    starts = {a: (a, b) for a, b in ranges}
    for l, s in zip(lines, sz):
        if l.startswith(".p2align"):
            al = 1 << int(l.split()[1]); adr = (adr + al - 1)//al*al
        if l.endswith(":"):
            if cur and l[:-1] == cur[1]: cur = None
            if l[:-1] in starts: cur = starts[l[:-1]]
            if l[:-1] in labels:
                dead = prev.startswith(("s_branch", "s_setpc", "s_endpgm"))
                while (adr + (4 if dead else 8)) % 64 in (0, 60): out.append("@pad"); adr += 4
                out.append(f"@{'ret' if dead else 'stub'} P{n}"); found.setdefault(cur[0] if cur else l[:-1], []).append(f"P{n}"); n += 1
                adr += 4 if dead else 8; lastl = adr
        if s is not None and adr >> 12 != page:
            page = adr >> 12
            if cur and lastl >> 6 != adr >> 6:
                out.append(f"@stub P{n}"); found.setdefault(cur[0], []).append(f"P{n}"); n += 1; adr += 8
        out.append(l)
        if s: adr += s; prev = l
    return out, found
```

```python
import sys
from fw import *
from layout2 import *

OPT = dict(prog=0, cap8=36, fpos=3, dbgf=0, hold=0, zid=80, kva0=0, es=[(0, 25), (1, 33), (8, 41), (9, 49), (16, 57), (17, 61), (24, 89), (25, 97), (2, 105), (4, 113), (3, 121), (5, 125)], chg=2, tch=1, tg=[1, 2], tgs=[3], ta=[0, 1, 2], tb=[6, 7, 8], tlab=["L_P1A", "L_P1B", "L_steady0", "L_end0", "L_lpack", "L_post2b", "L_domask_s10", "L_mask0"], cpf2=0, park=[0, 1, 2, 3, 4, 5], pst_n=3, swap=1, n0=[36, 32], enc0=0, enck=10, encw=[0, 0], enc=-1, ntA="", ntB="", ntS=" nt", chq=1, chp=1, cyc=0, npro=6, gcap=[4, 4, 3], dg2=8, xpos=3, rotm=4, rot=4, sync=[6, 10, 12, 15, 20, 22], xstep=20, wbl2=0, pfk=0, pfd=4, pfo=[0], pfn=2, smin=0, voff=0, dbgside=0, tlb=0, tlbm=0, tlbs=16, flit=9, npeel=7, slt=[100, 260, 880], slstep=16, sld=140, map2=False, kvb0=256, kvstepb=16, psleep=4, prep=1, pst=False, cpf=True, fine=False, touch=False, sc1ld=" sc1", stamps=False, early=[5, 13, 21, 29], late=[37, 45, 53, 61], cap=7, capb=8, capq=9, capn=12, kvstep=12, a15=38, fsleep=2, fdelay=96, qstep=7, wideloop=False, thr=40, kvsc=" sc1", sidesc=" sc1")

vLANE, vDMA, vTE, vTO, vL16, vRD, vPOLL, vFLG, vONE, vL4, vKV = range(1, 12)
DA = [12, 13, 14, 15]; DB = [16, 17, 18, 19]; RA = [20, 21]; RB = [22, 23, 24, 25]
vSW, vSF, vSX, vG1 = 26, 27, 28, 29
GT = 30
vT = 12
BP = [0, 2, 3, 1]
BIAS = 12
O0 = 128
def O(dt, qt): return O0 + (dt*2+qt)*4
def S(b, kt, qt): return 64 + b*16 + (kt*2+qt)*4
def P(b, qt): return 96 + b*8 + qt*4
def NEGM(qt): return 112 + qt*4
vL = [120, 121]
vSUM = [[122, 123], [124, 125]]
vBIG = 126
vSTAT = 44
vSEL = 48
vRINV = [54, 55]
vSTB = 56
def accreg(pos): return vr(48+4*pos, 4) if pos < 52 else ar(208+4*(pos-52), 4)
NE = 6
def ENL(): return [c for c in range(32) if c not in dict(OPT["es"])]
def PK(c):
    if OPT["es"]:
        k = ENL().index(c) if c in ENL() else 20 + [x[0] for x in OPT["es"]].index(c)
        return 48+4*k
    return 48+4*c if c < 20 else (48+4*(c-20) if c < 20+NE else 48+4*(20+c))
def Q(qb, qt, u): return qb + (qt*8+u)*4
def FR(f): return 64 + (f % 16)*4
def X(qt, u): return 128 + (u*2+qt)*4
def FA(b, m): return (64 if b == 0 else 0) + m*4
def FB(b, n): return (64 if b == 0 else 0) + 32 + n*4
def CA(m, kk): return (96 + m*8 + kk*4) % 128
def CB(n, kk): return (64 if n < 4 else 32) + (n & 3)*8 + kk*4
def QU(u): return ((u >> 1) & 1)*4 + (u >> 2)*2 + (u & 1) if OPT["chg"] == 2 else u
WOL = 192
SLD = 128

sWS, sSA, sSB, sG, sDBG = 4, 8, 12, 16, 20
_n = [24]
def sal(n=1, al=1):
    _n[0] = (_n[0] + al - 1)//al*al
    r = _n[0]; _n[0] += n; return r
sWAVE, sHEAD, sJ, sQI, sWHICH = [sal() for _ in range(5)]
gA0, gA1, gB0, gB1, gMA, gMB, gIT, gD, gCNT, gFL = [sal() for _ in range(10)]
sTAU, sM0, sOFFA, sOFFB, sRDD, sRDS, sXOFF, sXOF2, sN, sND = gA0, gA1, gB0, gB1, gD, gCNT, sal(), sal(), sal(), sal()
sCNT, sEV, sCLAMP, sFIRST = sal(), sal(), sal(), sal()
sRET = sal(2, 2)
sMASK = sal(8, 4)
sTYPE, sU1, sU2, sW0 = sal(), sal(), sal(), sal()
sKVB, sKVI = sal(), sal()
sQST, sPT, sPSG, sPSS = sal(), sal(), sal(), sal()
sFKV, sFKVP, sFQ, sFSG, sFSS = [sal() for _ in range(5)]
sT = sal(8, 4)
sLN = sal(2, 2)
sFS = sal(2, 2); sW4K = 3
sPF = sRET; sPD = sT+5; sEXP = gFL
sSTAMP = sal(0, 2)
NSTAMP = (102 - sSTAMP)//2
print("sgpr used", sSTAMP, "stamps", NSTAMP, file=sys.stderr)
WS = sr(sWS, 4)

STUBS = []
def ld(): return OPT["sc1ld"]
def FT(): return "s_memtime" if OPT["cyc"] else "s_memrealtime"

XG = [1, 9, 17, 25, 33, 41, 49, 57]
XG4 = list(range(1, 64, 4))
def common_fill(st, dma=True, nd=None, last=False, novm=False, rdl=False):
    if nd is None: nd = 16 + len(OPT["early"]) + sum(1 for g in OPT["late"] if g < 38)
    for G in range(8):
        g0 = G*8
        Gn = (G+3) % 8
        for i in range(4):
            f = Gn*4+i
            if not (last and G > 4): st.put(g0+2*i, f"ds_read_b128 {ar(FR(f),4)}, v{vRD} offset:{f*1024}")
        if last and G >= 4:
            if G < 7: st.put(g0+6, f"s_waitcnt lgkmcnt({(7, 4, 0)[G-4]})")
        elif G == 4:
            st.put(g0+6, "s_waitcnt lgkmcnt(7)" if novm else f"s_waitcnt vmcnt(@dma:{nd}) lgkmcnt(7)")
            st.put(g0+7, "s_barrier")
            st.put(g0+7, f"v_add_u32 v{vRD}, s{sRDD}, v{vRD}")
        else:
            st.put(g0+6, "s_waitcnt lgkmcnt(7)")
    for i, g in enumerate(OPT["early"] if dma else []):
        st.put(g, f"buffer_load_dwordx4 v{vDMA}, {WS}, s{sOFFB} offen offset:{i*1024}{ld()} lds")
    if dma: st.put(31, f"v_readlane_b32 s{sOFFA}, v{vTO}, s{sTAU}")
    st.put(31, f"s_add_u32 m0, s{sM0}, 16384")
    st.put(34, f"s_add_u32 s{sM0}, s{sM0}, s{sRDD}")
    st.put(36, f"s_cmp_ge_u32 s{sM0}, 131072")
    st.put(38, f"s_cselect_b32 s{sRDD}, s{gMA}, s{gMB}")
    st.put(44, f"s_add_u32 s{sTAU}, s{sTAU}, 1")
    for i, g in enumerate(OPT["late"] if dma else []):
        st.put(g, f"buffer_load_dwordx4 v{vDMA}, {WS}, s{sOFFA} offen offset:{i*1024}{ld()} lds")
    if dma or rdl: st.put(55, f"v_readlane_b32 s{sOFFB}, v{vTE}, s{sTAU}")
    st.put(63, f"s_mov_b32 m0, s{sM0}")
    st.scc_busy |= {36, 37}
    if OPT["fine"]:
        st.put(4, f"{FT()} s[{sFS}:{sFS+1}]")
        st.put(6, f"v_mov_b32_dpp v{vKV}, v{vKV} wave_shr:1 row_mask:0xf bank_mask:0xf")
        st.put(62, f"v_writelane_b32 v{vKV}, s{sFS}, 0")

class Jobs:
    def __init__(self): self.jobs = []; self.at = {}
    def add(self, key, pre, ins, early, late): self.jobs.append((late, len(self.jobs), early, pre, ins, key))
    def place(self, st, s, cap=6, grid=None):
        slots = [g for g in (grid or XG) if not st.hasD(g) and st.free(g) == 2 and st.nS(g) == 0]
        n = 0
        avail = len([j for j in self.jobs if j[2] <= s*64+63])
        k = min(cap, avail, len(slots))
        use = [slots[(i*len(slots))//k] for i in range(k)] if k else []
        for g in slots:
            t = s*64+g
            c = sorted(j for j in self.jobs if j[2] <= t)
            if not c: continue
            j = c[0]
            nxt = [x for x in slots if x > g]
            urgent = j[0] < (s*64+nxt[0] if nxt else (s+1)*64+1)
            if not (urgent or (n < cap and (g in use or len(nxt) < k-n))): continue
            assert t <= j[0] + (24 if j[5][0] == "x" else 0) or j[5] in ("qs", "kvf", "qf") or (j[5] == "kv" and (j[2] >= 64 or j[0] > j[2])), ("job late", j, t)
            if j[3]:
                assert g-1 not in st.scc_busy
                st.put(g-1, j[3])
            st.put(g, j[4]); self.jobs.remove(j); self.at[j[5]] = t; n += 1

def mf_pv(half, pb, czero=False):
    return [f"{MF} {vr(O(dt,qt),4)}, {ar(FR(half*16+dt),4)}, {vr(P(pb,qt),4)}, {'0' if czero else vr(O(dt,qt),4)}"
            for dt in range(16) for qt in range(2)]
def mf_qk(half, sb, qb, czero=False):
    out = []
    for kt in range(2):
        seq = [(u, qt) for u in range(8) for qt in range(2)]
        if OPT["chq"]: seq = [(g*4+u, qt) for g in range(2) for qt in ((0, 1), (1, 0))[g] for u in range(4)]
        for u, qt in seq:
            c = ('0' if czero else vr(NEGM(qt),4)) if u == 0 else vr(S(sb,kt,qt),4)
            out.append(f"{MF} {vr(S(sb,kt,qt),4)}, {ar(FR(half*16+kt*8+u),4)}, {ar(Q(qb,qt,QU(u)),4)}, {c}")
    return out
def mf_proj(s, init=None):
    out = []
    for nt in range(16):
        seq = [(0, 0, 1), (1, 0, 0), (1, 1, 1), (0, 1, 0)] if OPT["chp"] else [(0, 0, 1), (0, 1, 1), (1, 0, 0), (1, 1, 0)]
        for uu, qt, first in seq:
            c = vr(O(nt,qt),4)
            if first and init == "zero": c = "0"
            if first and init == "bias": c = vr(O(nt,1),4)
            out.append(f"{MF} {vr(O(nt,qt),4)}, {ar(FR(2*nt+uu),4)}, {ar(X(qt,2*s+uu),4)}, {c}")
    return out
def PA(b, nt, qt): return 64 + (nt*2+qt)*4 if b == 0 else O(2*nt+1, qt)
def mf_post(s):
    out = []
    for f in range(32):
        u, nt = f >> 2, f & 3
        for qt in range(2):
            d = vr(PA(s & 1, nt, qt), 4)
            out.append(f"{MF} {d}, {ar(FR(f),4)}, {vr(O(2*u,qt),4)}, {'0' if u == 0 else d}")
    return out

def sm_ops(b):
    ops = []
    seq = [(kt, qt, rp) for kt in range(2) for qt in range(2) for rp in range(2)]
    pend = []
    for i, (kt, qt, rp) in enumerate(seq):
        t0 = vT + (i % 4)*2
        s0 = S(b,kt,qt) + rp*2
        ops.append(f"v_exp_f32 v{t0}, v{s0}")
        ops += pend[:1]
        ops.append(f"v_exp_f32 v{t0+1}, v{s0+1}")
        ops += pend[1:]
        acc = vSUM[qt][rp]
        if kt == 0: pend = [f"v_add_f32 v{acc}, v{t0}, v{t0+1}"]
        else: pend = [f"v_add_f32 v{acc}, v{acc}, v{t0}", f"v_add_f32 v{acc}, v{acc}, v{t0+1}"]
        pend.append(f"v_cvt_pk_bf16_f32 v{P(b,qt)+kt*2+rp}, v{t0}, v{t0+1}")
    ops.append("s_nop 0")
    ops += pend
    ops += [f"v_add_f32 v{vSUM[0][0]}, v{vSUM[0][0]}, v{vSUM[0][1]}", f"v_add_f32 v{vSUM[1][0]}, v{vSUM[1][0]}, v{vSUM[1][1]}"]
    return ops

def place_sm(st, b, g0, g_end, tag, ladd=True, first=False, mask=True):
    if mask:
        st.put(g0-1, f"s_cmp_ge_u32 s{sN}, s{sND}")
        st.put(g0, f"s_cbranch_scc1 L_domask_{tag}")
        st.put(g0, f"L_nomask_{tag}:")
        STUBS.append((f"L_domask_{tag}", f"L_mask{b}", f"L_nomask_{tag}"))
        st.put(g0+2 if g0 == 0 else 42, f"s_add_u32 s{sN}, s{sN}, 1")
        st.scc_busy |= {g0-1}
    def add(ins, deps=(), early=0): return st.add(ins, deps, max(early, g0), g_end)
    la = [add(f"v_add_f32 v{vL[q]}, v{vL[q]}, v{vSUM[q][0]}") for q in range(2)] if ladd else []
    seq = [(kt, qt, rp) for kt in range(2) for qt in range(2) for rp in range(2)]
    users = {}; lastacc = {}; NT = 6
    for i, (kt, qt, rp) in enumerate(seq):
        t0 = vT + (i % NT)*2
        s0 = S(b,kt,qt) + rp*2
        war = users.get(i - NT, [])
        e = g0 + (1 if kt == 0 else 3)
        e0 = add(f"v_exp_f32 v{t0}, v{s0}", war, e)
        e1 = add(f"v_exp_f32 v{t0+1}, v{s0+1}", war, e)
        acc = vSUM[qt][rp]
        if kt == 0:
            a0 = add(f"v_add_f32 v{acc}, v{t0}, v{t0+1}", [e0, e1] + la)
            u = [a0]; lastacc[(qt,rp)] = a0
        else:
            a0 = add(f"v_add_f32 v{acc}, v{acc}, v{t0}", [e0, lastacc[(qt,rp)]])
            a1 = add(f"v_add_f32 v{acc}, v{acc}, v{t0+1}", [e1, a0])
            u = [a0, a1]; lastacc[(qt,rp)] = a1
        c = st.add(f"v_cvt_pk_bf16_f32 v{P(b,qt)+kt*2+rp}, v{t0}, v{t0+1}", [e0, e1], g0, g_end-1)
        users[i] = u + [c]
    f0 = add(f"v_add_f32 v{vSUM[0][0]}, v{vSUM[0][0]}, v{vSUM[0][1]}", [lastacc[(0,0)], lastacc[(0,1)]])
    f1 = add(f"v_add_f32 v{vSUM[1][0]}, v{vSUM[1][0]}, v{vSUM[1][1]}", [lastacc[(1,0)], lastacc[(1,1)]])
    hi = f2u(2.0**OPT["thr"])
    if not first:
        mx = add(f"v_max_f32 v{vT+14}, v{vSUM[0][0]}, v{vSUM[1][0]}", [f0, f1])
        add(f"v_cmp_nge_f32 vcc, {hi:#x}, v{vT+14}", [mx])
    else:
        lo = f2u(2.0**-OPT["thr"])
        m0 = add(f"v_subrev_u32 v{vT+14}, {lo:#x}, v{vSUM[0][0]}", [f0])
        m1 = add(f"v_subrev_u32 v{vT+15}, {lo:#x}, v{vSUM[1][0]}", [f1])
        mx = add(f"v_max_u32 v{vT+14}, v{vT+14}, v{vT+15}", [m0, m1])
        add(f"v_cmp_lt_u32 vcc, {hi-lo:#x}, v{vT+14}", [mx])

def xlane_ops(op, v, t1):
    return [(f"v_mov_b32 v{t1}, v{v}", 0), (f"v_permlane16_swap_b32 v{v}, v{t1}", 2), (f"{op} v{v}, v{v}, v{t1}", 1),
            (f"v_mov_b32 v{t1}, v{v}", 0), (f"v_permlane32_swap_b32 v{v}, v{t1}", 2), (f"{op} v{v}, v{v}, v{t1}", 1)]
def xlane(a, op, v, t1):
    for ins, d in xlane_ops(op, v, t1):
        if d: a(f"s_nop {d-1}")
        a(ins)

class Chain:
    def __init__(self, items, grid=None): self.items = list(items); self.lastg = -10; self.grid = grid; self.base = 0; self.lastD = -999; self.minD = 0
    def fill(self, st, g0=0, g1=63):
        g = g0; lastg = -10
        while self.items and g <= g1:
            ins, dist = self.items[0][:2]
            early = self.items[0][2] if len(self.items[0]) > 2 else 0
            c = cls(ins)
            ok = g - lastg >= dist and g >= early and not st.hasD(g)
            if ok and g == lastg and not (c in "VE" and cls(self.last) in "VM"): ok = False
            if ok:
                if c == "S": ok = (st.nS(g) == 0 or st.free(g) >= 1) and not (g in st.scc_busy and not ins.startswith(("s_mov", "s_mul", "s_wait", "s_nop")))
                elif c == "D": ok = st.free(g) == 2 and st.nS(g) == 0 and (self.grid is None or g in self.grid) and self.base + g - self.lastD >= self.minD
                else: ok = st.free(g) >= COST[c]
            if ok:
                st.put(g, ins); self.items.pop(0); lastg = g; self.last = ins
                if c == "D": self.lastD = self.base + g
            else:
                g += 1
    def flush(self, a):
        for it in self.items:
            if it[1]: a(f"s_nop {it[1]-1}")
            a(it[0])
        self.items = []

SITES = []
def touch(path):
    nm = f"{path}{len(SITES)}"; SITES.append((nm, path))
    c = lambda w: f"s_call_b64 s[{sRET}:{sRET+1}], LT_{nm}_{w}"
    return (f"s_bitcmp1_b32 s{sWAVE}, 1\ns_cbranch_scc1 LH_{nm}\ns_bitcmp1_b32 s{sWAVE}, 0\ns_cbranch_scc1 LA_{nm}\n{c(0)}\ns_branch LR_{nm}\nLA_{nm}:\n{c(1)}\ns_branch LR_{nm}\n"
            f"LH_{nm}:\ns_bitcmp1_b32 s{sWAVE}, 0\ns_cbranch_scc1 LB_{nm}\n{c(2)}\ns_branch LR_{nm}\nLB_{nm}:\n{c(3)}\nLR_{nm}:")

def gen(name="mega_kernel"):
    a = Asm()
    STUBS.clear(); SITES.clear()
    stamps = OPT["stamps"]
    nst = [0]
    def stamp_ins():
        i = nst[0]; nst[0] += 1
        assert i < NSTAMP
        return f"s_memrealtime s[{sSTAMP+2*i}:{sSTAMP+2*i+1}]"
    def streg(i): return sSTAMP+2*i if i < NSTAMP else sMASK+2*(i-NSTAMP)
    def stamp(i, p=False):
        if OPT["pst"] and 2 <= i <= 6 and not p: return
        if p and not OPT["pst"]: return
        if stamps: a(f"s_memrealtime s[{streg(i)}:{streg(i)+1}]")
    def merge(lbl, align=False):
        if align: a.raw(".p2align 6")
        a.label(lbl); a.comment("@merge")
    strideA, strideB = 2048, 8192
    a.raw(kernel_header(name))
    a("s_cmp_ge_u32 s2, 256")
    a("s_cbranch_scc0 L_go")
    a("s_endpgm")
    a.label("L_go")
    stamp(0)
    sW12, sX = sMASK, sMASK+4
    gHEAD, gMT, gWM, gWN = sCNT, sEV, sCLAMP, sFIRST
    a(f"""
    s_load_dwordx2 s[{sSA}:{sSA+1}], s[0:1], 8
    s_load_dwordx4 s[{sT}:{sT+3}], s[0:1], 24
    s_load_dwordx2 s[{sWS}:{sWS+1}], s[0:1], 104
    s_load_dwordx2 s[{sX}:{sX+1}], s[0:1], 0
    s_load_dwordx2 s[{sDBG}:{sDBG+1}], s[0:1], 96
    s_load_dwordx2 s[{sW12}:{sW12+1}], s[0:1], 56
    s_load_dwordx2 s[{sRET}:{sRET+1}], s[0:1], 72
    s_load_dwordx2 s[{sT+6}:{sT+7}], s[0:1], 16
    v_and_b32 v{vLANE}, 63, v0
    v_lshrrev_b32 v{GT}, 6, v0
    v_lshlrev_b32 v{vL16}, 4, v{vLANE}
    v_readfirstlane_b32 s{sWAVE}, v{GT}
    s_and_b32 s3, s2, 7
    s_lshl_b32 s3, s3, 1
    s_lshr_b32 s{sJ}, s2, 4
    s_bfe_u32 s{sWHICH}, s2, 0x10003
    s_add_u32 s{sHEAD}, s3, s{sWHICH}
    s_and_b32 s{gHEAD}, s{sJ}, 1
    s_add_u32 s{gHEAD}, s{gHEAD}, s3
    s_lshr_b32 s{gWM}, s2, 1
    s_xor_b32 s{gMT}, s2, s{gWM}
    s_bfe_u32 s{gMT}, s{gMT}, 0x10005
    s_lshl_b32 s{gMT}, s{gMT}, 2
    s_lshr_b32 s{gWM}, s2, 6
    s_xor_b32 s{gWM}, s{gWM}, 2
    s_or_b32 s{gMT}, s{gMT}, s{gWM}
    """)
    if OPT["map2"]:
        a(f"""
        s_bfe_u32 s{gHEAD}, s2, 0x10005
        s_add_u32 s{gHEAD}, s{gHEAD}, s3
        s_lshl_b32 s{gMT}, s{sWHICH}, 2
        s_bfe_u32 s{gWM}, s2, 0x10004
        s_or_b32 s{gMT}, s{gMT}, s{gWM}
        s_bfe_u32 s{gWM}, s2, 0x10007
        s_xor_b32 s{gWM}, s{gWM}, 1
        s_lshl_b32 s{gWM}, s{gWM}, 1
        s_or_b32 s{gMT}, s{gMT}, s{gWM}
        s_bfe_u32 s{sWHICH}, s2, 0x10006
        """)
    if OPT["swap"]:
        a(f"""
        s_cmp_lt_u32 s{sJ}, 8
        s_cselect_b32 s{gWM}, {2*OPT["swap"]}, 0
        s_xor_b32 s{sHEAD}, s{sHEAD}, s{gWM}
        """)
    a(f"""
    s_and_b32 s{gWM}, s{sWAVE}, 1
    s_lshr_b32 s{gWN}, s{sWAVE}, 1
    """)
    t2, t3, t4, t5, t6 = GT, GT+1, GT+2, GT+3, GT+4
    a(f"""
    v_lshrrev_b32 v{t2}, 3, v{vLANE}
    s_lshl_b32 s{gA0}, s{gMT}, 8
    s_lshl_b32 s{gA1}, s{sWAVE}, 6
    {f"s_lshl_b32 s{gMA}, s{gWM}, 5" if OPT["chg"] else ""}
    {f"s_sub_u32 s{gA1}, s{gA1}, s{gMA}" if OPT["chg"] else ""}
    s_lshl_b32 s{gMA}, s{gA1}, 7
    s_add_u32 s{gA0}, s{gA0}, s{gA1}
    v_add_u32 v{t2}, s{gA0}, v{t2}
    v_lshlrev_b32 v{t2}, 11, v{t2}
    v_and_b32 v{t3}, 7, v{vLANE}
    v_lshrrev_b32 v{t4}, 4, v{vLANE}
    v_xor_b32 v{t5}, v{t3}, v{t4}
    v_lshl_add_u32 v{t5}, v{t5}, 4, v{t2}
    v_xor_b32 v{t6}, 4, v{t4}
    v_xor_b32 v{t6}, v{t3}, v{t6}
    v_lshl_add_u32 v{t6}, v{t6}, 4, v{t2}
    """)
    for jl in range(4):
        a(f"v_add_u32 v{DA[jl]}, {4096 + jl*8*strideA - jl*1024}, v{t5 if (jl & 1) == 0 else t6}")
    a(f"""
    v_bfe_u32 v{t2}, v{vLANE}, 3, 2
    v_lshlrev_b32 v{t3}, 13, v{t2}
    v_lshrrev_b32 v{t4}, 5, v{vLANE}
    v_lshl_add_u32 v{t3}, v{t4}, {18 if OPT["chg"] == 1 else 7}, v{t3}
    v_lshrrev_b32 v{t4}, 1, v{t2}
    v_lshlrev_b32 v{t4}, 2, v{t4}
    v_and_b32 v{t5}, 7, v{vLANE}
    v_xor_b32 v{t4}, v{t4}, v{t5}
    s_lshl_b32 s{gA0}, s{gWM}, 1
    v_xor_b32 v{t4}, s{gA0}, v{t4}
    v_lshl_add_u32 v{t3}, v{t4}, 4, v{t3}
    s_lshl_b32 s{gA0}, s{gHEAD}, 9
    s_lshl_b32 s{gA1}, s{sWAVE}, 16
    s_add_u32 s{gA0}, s{gA0}, s{gA1}
    v_add_u32 v{t3}, s{gA0}, v{t3}
    """)
    for jl in range(4):
        a(f"v_add_u32 v{DB[jl]}, {4096 + (jl>>1)*4*strideB + (jl&1)*(32*strideB if OPT['chg'] == 2 else 256) - jl*1024}, v{t3}")
    a(f"""
    s_mul_i32 s{gA1}, s3, {OPT["rot"]*64}
    s_mul_i32 s{gA0}, s{gMT}, {OPT["rotm"]*128}
    s_add_u32 s{gA1}, s{gA1}, s{gA0}
    s_and_b32 s{gA1}, s{gA1}, 0x7ff
    s_lshl_b32 s{gMB}, s{sWAVE}, 12
    s_mov_b32 s{sSA+2}, {4194304+4096}
    s_mov_b32 s{sSA+3}, 0x20000
    s_mov_b32 s{sSB+2}, {8388608+4096}
    s_mov_b32 s{sSB+3}, 0x20000
    @PST2
    s_waitcnt lgkmcnt(0)
    @PST3
    s_sub_u32 s{sSA}, s{sSA}, 4096
    s_subb_u32 s{sSA+1}, s{sSA+1}, 0
    s_cmp_eq_u32 s{sWHICH}, 0
    s_cselect_b32 s{sSB}, s{sT}, s{sT+2}
    s_cselect_b32 s{sSB+1}, s{sT+1}, s{sT+3}
    s_sub_u32 s{sSB}, s{sSB}, 4096
    s_subb_u32 s{sSB+1}, s{sSB+1}, 0
    """)
    for i in (2, 3):
        k = [n for n, l in enumerate(a.lines) if f"@PST{i}" in l][0]
        a.lines[k] = f"s_memrealtime s[{streg(i)}:{streg(i)+1}]" if OPT["pst"] else ""
    MA, MB = (0x207ff if OPT["chg"] else 0x107ff), 0x7fffff
    hA = 64 if OPT["chg"] else 32; hB = (32*strideB, 128, 256)[OPT["chg"]]
    gRA, gRB, gTS = gA1, gCNT, (gA0, sT)
    a(f"s_lshl_b32 s{gRB}, s{gRA}, 12")
    def dma_group(kind, par):
        t = gTS[par & 1]
        if kind[0] == "A":
            _, it, h = kind
            m0 = f"s_add_u32 m0, s{gMA}, {(131072, 0, 65536)[it % 3] + h*hA*128}"; regs, srd = DA, sSA
            so = f"s_add_u32 s{t}, s{gRA}, {h*hA*strideA + it*128}\ns_and_b32 s{t}, s{t}, {MA}"
        elif kind[0] == "B":
            _, it, h = kind
            m0 = f"s_add_u32 m0, s{gMB}, {32768 + (it & 1)*65536 + h*16384}"; regs, srd = DB, sSB
            so = f"s_add_u32 s{t}, s{gRB}, {it*64*strideB + h*hB}\ns_and_b32 s{t}, s{t}, {MB}"
        else:
            y = kind[1]
            return f"s_add_u32 m0, s{gMB}, {y*16384}", f"s_add_u32 s{t}, s{sW0}, {y*16384}", \
                   [f"buffer_load_dwordx4 v{vDMA}, {WS}, s{t} offen offset:{i*1024}{ld()} lds ; @gU{y}" for i in range(4)]
        return m0, so, [f"buffer_load_dwordx4 v{regs[jl]}, {sr(srd,4)}, s{t} offen offset:{jl*1024}{OPT['nt' + kind[0]]} lds ; @g{kind[0]}{it}_{h}" for jl in range(4)]
    todo = []
    for it in range(16):
        if OPT["chg"]: todo += [(2*it-1+h, 2*(it-d)+h, (k_, it, h)) for h in range(2) for k_, d in (("A", 3), ("B", 2))]
        else: todo += [(2*it-1, 2*(it-3)+1, ("A", it, 0)), (2*it-1, 2*(it-2), ("B", it, 0)), (2*it-1, 2*(it-3)+1, ("A", it, 1)), (2*it, 2*(it-2)+1, ("B", it, 1))]
    todo += [(31+y, av, ("U", y)) for y, av in enumerate((27, 27, 28, 29, 29, 29, 30, 31))]
    GS = {}; order = []
    for n in range(-1, 32):
        cap = OPT["npro"] if n < 0 else OPT["gcap"][min(n, len(OPT["gcap"])-1)]
        c = sorted([x for x in todo if x[1] <= n], key=lambda x: x[0])[:cap]
        for x in c: todo.remove(x); assert x[0] > n or n < 0, (x, n)
        GS[n] = [x[2] for x in c]; order += GS[n]
    assert not todo
    print("GS", {n: len(v) for n, v in GS.items()}, file=sys.stderr)
    def gtag(k): return f"gU{k[1]}" if k[0] == "U" else f"g{k[0]}{k[1]}_{k[2]}"
    def gwait(n):
        it, kk = (n+1) >> 1, (n+1) & 1
        need = [("U", 0), ("U", 1)] if n == 31 else [("B", it, 1)] if kk else [("A", it, 0), ("A", it, 1), ("B", it, 0)]
        if OPT["chg"] and n < 31: need = [("A", it, kk), ("B", it, kk)]
        return f"vmcnt(@since:{gtag(max(need, key=order.index))})"
    main = a; a = Asm()
    sWID, u_, nb_, o_, o2_ = sXOFF, sT+1, sT+2, sT+3, sT+4
    sD = [sQST, sPT, sPSG]; sXS = sPSS; sHI = sFSG; sSTR = sFSS
    vWO, vW12 = vRD, vDMA
    G = sr(sG, 4)
    r_, g_, r8 = GT, GT+1, GT+2
    h_, i_ = GT+5, GT+6
    a(f"""
    s_lshl_b32 s{sWID}, s2, 2
    s_add_u32 s{sWID}, s{sWID}, s{sWAVE}
    s_mov_b32 s{sX+2}, {2048*896}
    s_mov_b32 s{sX+3}, 0x20000
    v_and_b32 v{h_}, 3, v{vLANE}
    v_lshrrev_b32 v{i_}, 2, v{vLANE}
    v_mul_u32_u24 v{GT+7}, 896, v{h_}
    v_lshl_add_u32 v{GT+7}, v{i_}, 4, v{GT+7}
    v_cmp_gt_u32 s[{sLN}:{sLN+1}], 14, v{i_}
    v_mov_b32 v{GT+8}, {OOB}
    s_lshr_b32 s{gB1}, s{sWID}, 1
    s_mul_i32 s{gB1}, s{gB1}, 3584
    s_mul_i32 s{gB0}, s{gWM}, 448
    s_add_u32 s{gB1}, s{gB1}, s{gB0}
    v_cndmask_b32 v{GT+11}, v{GT+8}, v{GT+7}, s[{sLN}:{sLN+1}]
    s_getpc_b64 s[{sG}:{sG+1}]
    L_pc:
    s_sub_u32 s{sG}, s{sG}, L_pc - L_gemmV
    s_subb_u32 s{sG+1}, s{sG+1}, 0
    s_mov_b32 s{sG+2}, L_codeend - L_gemmV
    s_mov_b32 s{sG+3}, 0x20000
    s_lshr_b32 s{gB0}, s2, 3
    s_lshl_b32 s{gB0}, s{gB0}, 2
    s_add_u32 s{gB0}, s{gB0}, s{sWAVE}
    s_lshl_b32 s{gB0}, s{gB0}, 10
    s_mov_b32 s{sWS+2}, {WS_SIZE}
    s_mov_b32 s{sWS+3}, 0x20000
    v_and_b32 v{r_}, 15, v{vLANE}
    v_lshrrev_b32 v{g_}, 4, v{vLANE}
    v_lshlrev_b32 v{r8}, 3, v{r_}
    """)
    def natdest(dst, base):
        a(f"""
        s_lshr_b32 s{o_}, s{nb_}, 2
        s_mul_i32 s{o_}, s{o_}, {7*32768}
        s_lshr_b32 s{o2_}, s{u_}, 1
        s_lshl_b32 s{o2_}, s{o2_}, 15
        s_add_u32 s{o_}, s{o_}, s{o2_}
        s_and_b32 s{o2_}, s{nb_}, 3
        s_lshl_b32 s{o2_}, s{o2_}, 13
        s_add_u32 s{o_}, s{o_}, s{o2_}
        s_and_b32 s{o2_}, s{u_}, 1
        s_lshl_b32 s{o2_}, s{o2_}, 10
        s_add_u32 s{o_}, s{o_}, s{o2_}
        s_add_u32 s{dst}, s{o_}, {base}
        """)
    def div7(idx):
        a(f"""
        s_mul_i32 s{u_}, s{idx}, 9363
        s_lshr_b32 s{u_}, s{u_}, 16
        s_mul_i32 s{nb_}, s{u_}, 7
        s_sub_u32 s{nb_}, s{idx}, s{nb_}
        """)
    def ffdest(dst, base, lim, idx=sWID):
        a(f"""
        s_mul_i32 s{o_}, s{nb_}, {184*4096}
        s_lshl_b32 s{o2_}, s{u_}, 12
        s_add_u32 s{o_}, s{o_}, s{o2_}
        s_add_u32 s{dst}, s{o_}, {base}
        s_cmp_lt_u32 s{idx}, {lim}
        s_cselect_b32 s{dst}, s{dst}, {OOB}
        """)
    a(f"""
    s_mov_b32 s{sDBG+2}, 16
    s_mov_b32 s{sDBG+3}, 0x20000
    v_mul_u32_u24 v{vWO}, {4*896}, v{g_}
    v_add_u32 v{vWO}, v{vWO}, v{r8}
    s_lshl_b32 s{gD}, s{gMT}, 1
    s_add_u32 s{gD}, s{gD}, s{sWHICH}
    s_lshl_b32 s{gD}, s{gD}, 2
    s_add_u32 s{gD}, s{gD}, s{sWAVE}
    """)
    div7(gD)
    a(f"""
    s_lshl_b32 s{o_}, s{gHEAD}, 3
    s_add_u32 s{u_}, s{u_}, s{o_}
    s_mul_i32 s{o_}, s{u_}, {32*896}
    s_lshl_b32 s{o2_}, s{nb_}, 7
    s_add_u32 s{o_}, s{o_}, s{o2_}
    s_cmp_lt_u32 s{gD}, 56
    s_cselect_b32 s{o_}, s{o_}, {OOB}
    v_add_u32 v{vWO}, s{o_}, v{vWO}
    """)
    ffdest(sD[1], WS_WFF + 56*4096, 56, gD)
    a(f"""
    s_lshr_b32 s{u_}, s{sWID}, 2
    s_mul_i32 s{u_}, s{u_}, 9363
    s_lshr_b32 s{u_}, s{u_}, 16
    s_mul_i32 s{nb_}, s{u_}, 28
    s_sub_u32 s{nb_}, s{sWID}, s{nb_}
    s_mul_i32 s{sHI}, s{u_}, {32*3584}
    s_lshl_b32 s{o2_}, s{nb_}, 7
    s_add_u32 s{sHI}, s{sHI}, s{o2_}
    """)
    natdest(sSTR, WS_W1F)
    a(f"s_sub_u32 s{sT+5}, s{sWID}, 392")
    a(f"s_and_b32 s{sT+5}, s{sT+5}, 1023")
    div7(sT+5)
    ffdest(sD[2], WS_WFF, 784)
    a(f"""
    s_lshr_b32 s{o_}, s{u_}, 1
    s_mul_i32 s{o_}, s{o_}, {64*896}
    s_and_b32 s{o2_}, s{u_}, 1
    s_mul_i32 s{o2_}, s{o2_}, {2*896}
    s_add_u32 s{o_}, s{o_}, s{o2_}
    s_lshl_b32 s{o2_}, s{nb_}, 7
    s_add_u32 s{o_}, s{o_}, s{o2_}
    s_mov_b32 s{sW12+2}, {448*3584}
    s_mov_b32 s{sW12+3}, 0x20000
    s_cmp_lt_u32 s{sWID}, 392
    s_cselect_b32 s{sW12}, s{sW12}, s{sRET}
    s_cselect_b32 s{sW12+1}, s{sW12+1}, s{sRET+1}
    s_cselect_b32 s{o_}, s{sHI}, s{o_}
    s_cselect_b32 s{sD[2]}, s{sSTR}, s{sD[2]}
    s_cselect_b32 s{sHI}, 16, 1
    s_cselect_b32 s{sSTR}, 2, 1
    s_mul_i32 s{sHI}, s{sHI}, 896
    s_mul_i32 s{o2_}, s{sSTR}, {16*896}
    s_lshl_b32 s{sSTR}, s{sSTR}, 10
    v_mul_u32_u24 v{vW12}, s{o2_}, v{g_}
    v_add3_u32 v{vW12}, v{vW12}, v{r8}, s{o_}
    v_lshlrev_b32 v{GT+9}, 8, v{i_}
    v_lshl_add_u32 v{GT+9}, v{h_}, 4, v{GT+9}
    v_cndmask_b32 v{vSX}, v{GT+8}, v{GT+9}, s[{sLN}:{sLN+1}]
    s_lshr_b32 s{o_}, s{sWID}, 3
    s_mul_i32 s{o_}, s{o_}, 14336
    s_and_b32 s{o2_}, s{sWID}, 6
    s_lshl_b32 s{o2_}, s{o2_}, 5
    s_add_u32 s{sXS}, s{o_}, s{o2_}
    s_mul_i32 s{o2_}, s{gWM}, 7168
    s_add_u32 s{sXS}, s{sXS}, s{o2_}
    s_xor_b32 s{o2_}, s{sWID}, {OPT["zid"]*4}
    s_lshl_b32 s{sFQ}, s{o2_}, 10
    s_add_u32 s{sFQ}, s{sFQ}, {WS_FLG}
    s_cmp_lt_u32 s{o2_}, 32
    s_cselect_b32 s{sFQ}, s{sFQ}, {OOB}
    v_cmp_eq_u32 vcc, 0, v{vLANE}
    v_mov_b32 v{vONE}, 1
    v_and_b32 v{vL4}, 3, v{vLANE}
    v_lshlrev_b32 v{vL4}, 2, v{vL4}
    v_cndmask_b32 v{vFLG}, v{GT+8}, v{vLANE}, vcc
    s_mov_b32 s{sRET}, s{sT+6}
    s_mov_b32 s{sRET+1}, s{sT+7}
    s_lshr_b32 s{u_}, s{gD}, 2
    s_lshl_b32 s{nb_}, s{gHEAD}, 2
    s_add_u32 s{nb_}, s{nb_}, s{sWAVE}
    s_lshl_b32 s{o_}, s{u_}, 18
    s_lshl_b32 s{o2_}, s{nb_}, 7
    s_add_u32 s{o_}, s{o_}, s{o2_}
    v_and_b32 v{vSW}, 3, v{vLANE}
    v_lshlrev_b32 v{vSW}, 5, v{vSW}
    v_bfe_u32 v{GT+9}, v{vLANE}, 2, 2
    v_lshl_add_u32 v{vSW}, v{GT+9}, 3, v{vSW}
    v_lshl_add_u32 v{vSW}, v{g_}, 16, v{vSW}
    v_add_u32 v{vSW}, s{o_}, v{vSW}
    v_mov_b32 v{vSF}, v{vL16}
    """)
    natdest(sD[0], WS_WQF)
    a(f"s_cmp_lt_u32 s{gD}, 56")
    a(f"s_cselect_b32 s{sD[0]}, s{sD[0]}, {OOB}")
    assert WS_XF == 0
    a(f"""
    v_bfe_u32 v{t4}, v{vLANE}, 1, 3
    s_lshl_b32 s{o_}, s{gWM}, 14
    s_add_u32 s{o_}, s{o_}, 131072
    v_lshlrev_b32 v{r_}, 7, v{r_}
    v_add_u32 v{r_}, s{o_}, v{r_}
    """)
    for kk in range(2):
        a(f"v_or_b32 v{t5}, {4*kk}, v{g_}")
        a(f"v_xor_b32 v{t5}, v{t5}, v{t4}")
        a(f"v_lshl_add_u32 v{RA[kk]}, v{t5}, 4, v{r_}")
    a(f"""
    v_lshlrev_b32 v{t2}, 12, v{g_}
    v_bfe_u32 v{t4}, v{vLANE}, 2, 2
    v_lshl_add_u32 v{t2}, v{t4}, 7, v{t2}
    v_and_b32 v{t5}, 3, v{vLANE}
    v_lshl_add_u32 v{t2}, v{t5}, 3, v{t2}
    s_lshl_b32 s{o_}, s{gWN}, {9 if OPT["chg"] == 2 else 10}
    s_add_u32 s{o_}, s{o_}, 32768
    v_add_u32 v{t2}, s{o_}, v{t2}
    v_lshrrev_b32 v{t4}, 1, v{t4}
    v_lshlrev_b32 v{t4}, 6, v{t4}
    v_and_b32 v{t5}, 1, v{g_}
    v_lshlrev_b32 v{t5}, 5, v{t5}
    v_or_b32 v{t4}, v{t4}, v{t5}
    """)
    for q in range(4):
        a(f"v_xor_b32 v{t5}, {(q>>1)*64 + (q&1)*32}, v{t4}")
        a(f"v_add_u32 v{RB[q]}, v{t5}, v{t2}")
    a(f"""
    s_mul_i32 s{sKVB}, s{gHEAD}, {HS}
    s_mul_i32 s{o_}, s{gMT}, {8*US}
    s_add_u32 s{sKVB}, s{sKVB}, s{o_}
    s_mul_i32 s{o_}, s{gWM}, {4*US}
    s_add_u32 s{sKVB}, s{sKVB}, s{o_}
    s_add_u32 s{o2_}, s{sWHICH}, 12
    s_lshl_b32 s{o_}, s{gWN}, {12 if OPT["chg"] == 2 else f"s{o2_}"}
    s_add_u32 s{sKVB}, s{sKVB}, s{o_}
    s_mul_i32 s{o_}, s{sWHICH}, {WS_VF - WS_KF}
    s_add_u32 s{sKVB}, s{sKVB}, s{o_}
    s_add_u32 s{sKVB}, s{sKVB}, {WS_KF}
    s_lshr_b32 s{sKVI}, 8192, {0 if OPT["chg"] == 2 else f"s{sWHICH}"}
    s_add_u32 s{sKVI}, s{sKVI}, s{sKVB}
    s_lshl_b32 s{sFKV}, s{gHEAD}, 8
    s_lshr_b32 s{o_}, s{gMT}, 2
    s_and_b32 s{o2_}, s{gMT}, 3
    s_lshl_b32 s{o2_}, s{o2_}, 1
    s_or_b32 s{o_}, s{o_}, s{o2_}
    s_cmp_ge_u32 s{o_}, 2
    s_cselect_b32 s{o2_}, 112, 0
    s_add_u32 s{sFKV}, s{sFKV}, s{o2_}
    s_lshl_b32 s{o_}, s{o_}, 3
    s_add_u32 s{sFKV}, s{sFKV}, s{o_}
    s_lshl_b32 s{o_}, s{sWHICH}, 2
    s_add_u32 s{sFKV}, s{sFKV}, s{o_}
    s_add_u32 s{sFKV}, s{sFKV}, {WS_FLG + FL_KV}
    s_lshl_b32 s{sFKVP}, s{sHEAD}, 8
    s_add_u32 s{sFKVP}, s{sFKVP}, {WS_FLG + FL_KV}
    s_xor_b32 s{o_}, s2, {OPT["zid"]}
    s_cmp_eq_u32 s{sWAVE}, 0
    s_cselect_b32 s{sFKV}, s{sFKV}, {OOB}
    s_cselect_b32 s{sFKVP}, s{sFKVP}, {OOB}
    s_cselect_b32 s{gFL}, s{o_}, {OOB}
    s_cselect_b32 s{gIT}, 0, {OOB}
    """)
    WQ, B1, ST1, N0, STA2, XR1, XR2 = sT+1, sT+2, sT+3, sN, sT+4, sND, sXOF2
    a(f"""
    s_or_b32 s{sQI}, s{sJ}, 8
    s_mul_i32 s{WQ}, s{sHEAD}, {7*32768}
    s_add_u32 s{WQ}, s{WQ}, {WS_WQF}
    s_mov_b32 s{sW0}, s{WQ}
    s_mov_b32 s{XR1}, s{sQI}
    s_mov_b32 s{ST1}, 32768
    s_bitcmp1_b32 s{sHEAD}, 1
    s_cselect_b32 s{N0}, {OPT['n0'][1]}, {OPT['n0'][0]}
    s_cmp_eq_u32 s{sQI}, 15
    s_cselect_b32 s{STA2}, {OPT['a15'] - 34}, 0
    s_add_u32 s{N0}, s{N0}, s{STA2}
    s_cmp_eq_u32 s{sQI}, 8
    s_cselect_b32 s{STA2}, {OPT["cap8"]}, 64
    s_min_u32 s{N0}, s{N0}, s{STA2}
    @atomic
    s_cmp_ge_u32 s{sJ}, 8
    s_cbranch_scc1 L_typeA
    s_mov_b32 s{sTYPE}, 2
    s_sub_u32 s{B1}, s{WQ}, {5*32768}
    s_sub_u32 s{XR2}, 15, s{sQI}
    s_lshl_b32 s{sU1}, s{sQI}, 2
    s_sub_u32 s{sU2}, 64, s{sU1}
    s_add_u32 s{sU1}, s{sU1}, 4
    s_sub_u32 s{sU1}, s{sU1}, s{N0}
    s_add_u32 s{STA2}, s{sU1}, 14
    s_add_u32 s{sT+7}, s{STA2}, s{sU2}
    s_branch L_typedone
    """)
    a.label("L_typeA")
    a(f"""
    s_mov_b32 s{sU1}, s{N0}
    s_add_u32 s{sT+7}, s{N0}, 14
    s_mov_b32 s{sU2}, 2
    s_mov_b32 s{N0}, 0
    s_mov_b32 s{STA2}, 100
    s_mov_b32 s{XR2}, 0x4000
    s_mov_b32 s{sTYPE}, 1
    s_mov_b32 s{B1}, {OOB}
    s_cmp_eq_u32 s{sJ}, 15
    s_cbranch_scc1 L_typedone
    s_mov_b32 s{sTYPE}, 0
    s_mul_i32 s{XR1}, s{sHEAD}, 7
    s_add_u32 s{XR1}, s{XR1}, s{sJ}
    s_sub_u32 s{XR1}, s{XR1}, 8
    s_lshr_b32 s{sT}, s{XR1}, 4
    s_and_b32 s{XR1}, s{XR1}, 15
    s_mul_i32 s{sW0}, s{sT}, {7*32768}
    s_add_u32 s{sW0}, s{sW0}, {WS_W1F}
    s_lshl_b32 s{B1}, s{sT}, 15
    s_add_u32 s{B1}, s{B1}, {WS_WFF}
    s_mov_b32 s{ST1}, {184*4096}
    """)
    a.label("L_typedone")
    a("@end")
    tA, tB, tC, tD = GT, GT+1, GT+2, GT+3
    KB, VB = sT+5, sT+6
    a(f"""
    s_mul_i32 s{KB}, s{sHEAD}, {HS}
    s_add_u32 s{VB}, s{KB}, {WS_VF}
    s_add_u32 s{KB}, s{KB}, {WS_KF}
    v_mov_b32 v{vTE}, {OOB}
    """)
    def seg_lin(start, base, stride):
        a(f"v_subrev_u32 v{tA}, {start}, v{vLANE}")
        a(f"v_cmp_gt_u32 vcc, 7, v{tA}")
        a(f"v_mul_u32_u24 v{tB}, {stride}, v{tA}")
        a(f"v_add_u32 v{tB}, s{base}, v{tB}")
        a(f"v_cndmask_b32 v{vTE}, v{vTE}, v{tB}, vcc")
    seg_lin(0, sW0, 32768)
    seg_lin(7, B1, f"s{ST1}")
    a(f"s_lshl_b32 s{sT}, s{sHEAD}, 15")
    a(f"s_add_u32 s{sT}, s{sT}, {WS_WFF + 56*4096}")
    seg_lin(f"s{sT+7}", sT, 184*4096)
    a(f"v_add_u32 v{vTO}, 16384, v{vTE}")
    def seg_att(start, n0, U):
        for tab in (vTO, vTE):
            a(f"v_subrev_u32 v{tA}, {start}, v{vLANE}")
            if n0 is not None: a(f"v_add_u32 v{tB}, s{n0}, v{tA}")
            else: a(f"v_mov_b32 v{tB}, v{tA}")
            a(f"v_mul_u32_u24 v{tB}, {US}, v{tB}")
            if tab == vTO:
                a(f"s_sub_u32 s{sT}, s{U}, 1")
                a(f"v_cmp_eq_u32 vcc, s{sT}, v{tA}")
                a(f"v_add_u32 v{tC}, s{KB}, v{tB}")
                a(f"v_add_u32 v{tC}, {US}, v{tC}")
                a(f"v_add_u32 v{tD}, s{VB}, v{tB}")
            else:
                a(f"v_cmp_eq_u32 vcc, 0, v{tA}")
                a(f"v_add_u32 v{tC}, s{VB}, v{tB}")
                a(f"v_subrev_u32 v{tC}, {US}, v{tC}")
                a(f"v_add_u32 v{tD}, s{KB}, v{tB}")
            a(f"v_cndmask_b32 v{tC}, v{tC}, v{tD}, vcc")
            a(f"v_cmp_gt_u32 vcc, s{U}, v{tA}")
            a("s_nop 1")
            a(f"v_cndmask_b32 v{tab}, v{tab}, v{tC}, vcc")
    seg_att(14, N0, sU1)
    seg_att(f"s{STA2}", None, sU2)
    XO1, XO2 = sXOFF, sXOF2
    a(f"""
    s_lshl_b32 s{sT}, s{sWAVE}, 1
    s_lshl_b32 s{XO1}, s{XR1}, 3
    s_add_u32 s{XO1}, s{XO1}, s{sT}
    s_mul_i32 s{XO1}, s{XO1}, 14336
    s_lshl_b32 s{XO2}, s{XR2}, 3
    s_add_u32 s{XO2}, s{XO2}, s{sT}
    s_mul_i32 s{XO2}, s{XO2}, 14336
    s_lshl_b32 s{sW4K}, s{sWAVE}, 12
    s_mov_b32 s{sCLAMP}, 0x05040100
    s_mov_b32 s{sFIRST}, 0x07060302
    """)
    setup_l = [l.strip() for l in a.lines if l.strip()]
    a = main
    seq = []
    for k, kind in enumerate(GS[-1]):
        m0, so, ins = dma_group(kind, 0)
        seq += [[m0, so, ins[0]]] + [[x] for x in ins[1:]]
        if k == OPT["xpos"]:
            seq += [[f"buffer_load_dwordx4 {ar(SLD+48,4)}, v{GT+11}, {sr(sX,4)}, s{gB1} offen"], [f"buffer_load_dwordx4 {ar(SLD+52,4)}, v{GT+11}, {sr(sX,4)}, s{gB1} offen offset:224"],
                    [f"s_xor_b32 s{gB1}, s{gB1}, 448", f"buffer_load_dwordx4 {ar(SLD+56,4)}, v{GT+11}, {sr(sX,4)}, s{gB1} offen"], [f"buffer_load_dwordx4 {ar(SLD+60,4)}, v{GT+11}, {sr(sX,4)}, s{gB1} offen offset:224 ; @sx"]]
    if OPT["cpf"]: seq += [[f"buffer_load_dwordx4 a[200:203], v{vL16}, {G}, s{gB0} offen"], [f"s_add_u32 s{gB0}, s{gB0}, 131072", f"buffer_load_dwordx4 a[204:207], v{vL16}, {G}, s{gB0} offen"]]
    nowr = ("s_mov", "s_mul_i32", "s_nop", "s_cselect", "s_getpc", "s_cbranch", "s_branch")
    def scc_live(k):
        for l in setup_l[k:]:
            if l.startswith(("s_cselect", "s_cbranch_scc", "s_subb")): return True
            if l.startswith("s_") and not l.startswith(nowr): return False
        return False
    step = len(setup_l) / (len(seq) - 0.5)
    atomic = False; nxt = 0.0
    for k, l in enumerate(setup_l):
        if seq and k >= nxt and not atomic and not scc_live(k) and not l.endswith(":"):
            for x in seq.pop(0): a(x)
            nxt += step
        if l == "@atomic": atomic = True
        elif l == "@end": atomic = False
        else: a(l)
    for g in seq:
        for x in g: a(x)
    print("setup instrs", len(setup_l), "left", len(seq), file=sys.stderr)
    a(f"""
    s_mov_b32 s{sG}, s{sRET}
    s_mov_b32 s{sG+1}, s{sRET+1}
    s_mov_b32 s{sG+2}, {448*8192}
    """)
    if OPT["dbgside"] & 1:
        for r in sD: a(f"s_mov_b32 s{r}, {OOB}")
    if OPT["dbgside"] & 2: a(f"s_mov_b32 s{sXS}, {OOB}")
    if OPT["dbgside"] & 4:
        for r in (vWO, vW12, vSW): a(f"v_mov_b32 v{r}, {OOB}")
    def side_chain():
        c = []
        z = GT+8
        c += [(f"v_mov_b64 {vr(z,2)}, 0", 0), (f"v_mov_b64 {vr(z+2,2)}, 0", 0), (f"buffer_store_dwordx4 {vr(z,4)}, v{vL16}, {WS}, s{sFQ} offen sc1 ; @zst", 1)]
        c.append(("s_waitcnt vmcnt(@since:sx)", 1))
        U = GT; m_, v_, t_, t2_ = GT+16, GT+17, vG1, vPOLL
        for i in range(8):
            c.append((f"v_accvgpr_read_b32 v{t_}, a{SLD+48+i}", 2 if i == 0 else 0))
            c.append((f"v_lshlrev_b32 v{U+2*i}, 16, v{t_}", 0))
            c.append((f"v_and_b32 v{U+2*i+1}, 0xffff0000, v{t_}", 0))
        def red(v):
            r = [(f"v_add_f32_dpp v{v}, v{v}, v{v} row_ror:{sh} row_mask:0xf bank_mask:0xf", 2) for sh in (8, 4)]
            return r + xlane_ops("v_add_f32", v, t2_)
        c.append((f"v_add_f32 v{m_}, v{U}, v{U+1}", 0)); c.append((f"v_add_f32 v{v_}, v{U+2}, v{U+3}", 0))
        for i in range(4, 16, 2):
            c.append((f"v_add_f32 v{m_}, v{m_}, v{U+i}", 0)); c.append((f"v_add_f32 v{v_}, v{v_}, v{U+i+1}", 0))
        for i in range(8):
            c += [(x, 0) for x in (f"v_accvgpr_read_b32 v{t_}, a{SLD+56+i}", f"v_lshlrev_b32 v{t2_}, 16, v{t_}", f"v_and_b32 v{t_}, 0xffff0000, v{t_}",
                  f"v_add_f32 v{m_}, v{m_}, v{t2_}", f"v_add_f32 v{v_}, v{v_}, v{t_}")]
        c.append((f"v_add_f32 v{m_}, v{m_}, v{v_}", 0))
        c += red(m_)
        c.append((f"v_mul_f32 v{m_}, {f2u(1.0/448):#x}, v{m_}", 0))
        for i in range(16):
            c.append((f"v_sub_f32 v{t_}, v{U+i}, v{m_}", 0))
            c.append((f"v_mul_f32 v{v_}, v{t_}, v{t_}" if i == 0 else f"v_fma_f32 v{v_}, v{t_}, v{t_}, v{v_}", 0))
        for i in range(8):
            c += [(x, 0) for x in (f"v_accvgpr_read_b32 v{t_}, a{SLD+56+i}", f"v_lshlrev_b32 v{t2_}, 16, v{t_}", f"v_and_b32 v{t_}, 0xffff0000, v{t_}",
                  f"v_sub_f32 v{t2_}, v{t2_}, v{m_}", f"v_sub_f32 v{t_}, v{t_}, v{m_}", f"v_fma_f32 v{v_}, v{t2_}, v{t2_}, v{v_}", f"v_fma_f32 v{v_}, v{t_}, v{t_}, v{v_}")]
        c.append((f"v_cndmask_b32 v{v_}, 0, v{v_}, s[{sLN}:{sLN+1}]", 0))
        c += red(v_)
        for x in (f"v_mul_f32 v{v_}, {f2u(1.0/448):#x}, v{v_}", f"v_cvt_pk_bf16_f32 v{t_}, v{m_}, v{v_}", f"v_lshlrev_b32 v{m_}, 16, v{t_}",
                  f"v_and_b32 v{v_}, 0xffff0000, v{t_}", f"v_add_f32 v{v_}, {f2u(1e-5):#x}, v{v_}", f"v_cvt_pk_bf16_f32 v{v_}, v{v_}, v{v_}",
                  f"v_lshlrev_b32 v{v_}, 16, v{v_}", f"v_sqrt_f32 v{v_}, v{v_}"):
            c.append((x, 0))
        c.append((f"v_cvt_pk_bf16_f32 v{v_}, v{v_}, v{v_}", 1))
        c.append((f"v_lshlrev_b32 v{v_}, 16, v{v_}", 0))
        c.append((f"v_rcp_f32 v{v_}, v{v_}", 0))
        for i in range(16): c.append((f"v_sub_f32 v{U+i}, v{U+i}, v{m_}", 1 if i == 0 else 0))
        for i in range(8):
            for x in (f"v_cvt_pk_bf16_f32 v{t_}, v{U+2*i}, v{U+2*i+1}", f"v_lshlrev_b32 v{U+2*i}, 16, v{t_}", f"v_and_b32 v{U+2*i+1}, 0xffff0000, v{t_}",
                      f"v_mul_f32 v{U+2*i}, v{U+2*i}, v{v_}", f"v_mul_f32 v{U+2*i+1}, v{U+2*i+1}, v{v_}", f"v_cvt_pk_bf16_f32 v{U+i}, v{U+2*i}, v{U+2*i+1}"):
                c.append((x, 0))
        if OPT["hold"] is not None: c.append((f"s_waitcnt vmcnt(@since:sl{OPT['hold']})", 1, 0, OPT["hold"]))
        c.append((f"buffer_store_dwordx4 {vr(U,4)}, v{vSX}, {WS}, s{sXS} offen sc1", 1))
        c.append((f"buffer_store_dwordx4 {vr(U+4,4)}, v{vSX}, {WS}, s{sXS} offen offset:3584 sc1", 1))
        def relay(rnd, land):
            c.append((f"s_waitcnt vmcnt(@since:sl{rnd})", 1, 0, rnd))
            for h in range(2):
                for e in range(8):
                    c.append((f"v_accvgpr_read_b32 v{GT+e}, a{land+2*e+h}", 2 if e == 0 else 0))
                for jj in range(2):
                    o = GT+8+4*jj
                    for p in range(4):
                        c.append((f"v_perm_b32 v{o+p}, v{GT+2*p+1}, v{GT+2*p}, s{(sCLAMP, sFIRST)[jj]}", 0))
                    if rnd == 1: c.append((f"buffer_store_dwordx4 {vr(o,4)}, v{vL16}, {WS}, s{sD[rnd]} offen offset:{(2*h+jj)*1024} sc1", 1))
                    else:
                        c.append((f"buffer_store_dwordx4 {vr(o,4)}, v{vSF}, {WS}, s{sD[rnd]} offen sc1", 1))
                        c.append((f"v_add_u32 v{vSF}, s{sSTR}, v{vSF}", 1))
        relay(2, SLD+32)
        c.append((f"s_waitcnt vmcnt(@since:sl0)", 1, 0, 0))
        c.append((f"s_mov_b32 s{sHI}, {f2u(QSCALE):#x}", 1))
        for h in range(2):
            for p in range(4):
                t = GT + (p & 1)*4
                c += [(x, 0) for x in (f"v_accvgpr_read_b32 v{t}, a{SLD+4*p+h}", f"v_accvgpr_read_b32 v{t+1}, a{SLD+4*p+2+h}",
                      f"v_lshlrev_b32 v{t+2}, 16, v{t}", f"v_lshlrev_b32 v{t+3}, 16, v{t+1}", f"v_and_b32 v{t}, 0xffff0000, v{t}", f"v_and_b32 v{t+1}, 0xffff0000, v{t+1}")]
                c += [(f"v_mul_f32 v{t+i}, s{sHI}, v{t+i}", 0) for i in range(4)]
                c += [(f"v_cvt_pk_bf16_f32 v{GT+8+p}, v{t+2}, v{t+3}", 0), (f"v_cvt_pk_bf16_f32 v{GT+12+p}, v{t}, v{t+1}", 0)]
            if h == 1: c.append((f"s_add_u32 s{sD[0]}, s{sD[0]}, 4096", 1))
            for jj in range(2):
                c.append((f"buffer_store_dwordx4 {vr(GT+8+4*jj,4)}, v{vL16}, {WS}, s{sD[0]} offen offset:{jj*2048} sc1 ; @sst", 1))
        relay(1, WOL)
        c += [(x, 0) for x in (f"v_add_u32 v{vDMA}, s{sW4K}, v{vL16}", f"v_mov_b32 v{vRD}, v{vL16}",  f"v_lshrrev_b32 v{GT}, 4, v{vLANE}",
              f"v_lshlrev_b32 v{GT}, 2, v{GT}", f"v_and_b32 v{GT+1}, 15, v{vLANE}", f"v_sub_u32 v{GT}, v{GT+1}, v{GT}")]
        c += [(f"v_cmp_gt_i32 s[{sMASK+2*r}:{sMASK+2*r+1}], {r}, v{GT}", 0) for r in range(4)]
        c = [((x[0].replace(" sc1", OPT["sidesc"]),) + tuple(x[1:]) if x[0].startswith("buffer_store") else x) for x in c]
        if OPT["wbl2"]: c.append(("s_waitcnt vmcnt(4)", 30)); c.append(("buffer_wbl2 sc1", 1))
        return Chain(c, XG4)
    def reads(kk, buf):
        if OPT["chg"]:
            ra = [f"ds_read_b128 {ar(CA(m,k),4)}, v{RA[k]} offset:{m*2048}" for m in range(4*kk, 4*kk+4) for k in range(2)]
            rb = [f"ds_read_b64_tr_b16 {ar(CB(n,k)+2*sec,2)}, v{RB[n&3]} offset:{kk*16384+sec*2048+k*512*OPT['chg']}" for n in range(4*kk, 4*kk+4) for k in range(2) for sec in range(2)]
            if kk: return ra + rb
            return rb[:4] + [x for m in range(4) for x in ra[2*m:2*m+2] + rb[4+2*m:6+2*m]] + rb[12:]
        ra = [f"ds_read_b128 {ar(FA(buf,m),4)}, v{RA[kk]} offset:{m*2048}" for m in range(8)]
        rb = [f"ds_read_b64_tr_b16 {ar(FB(buf,n)+2*sec,2)}, v{RB[n&3]} offset:{kk*16384+sec*2048+(n>>2)*512}" for n in range(8) for sec in range(2)]
        out = []
        for i in range(8): out += [ra[i], rb[2*i], rb[2*i+1]]
        return out
    stamp(6, True)
    a(f"s_waitcnt {gwait(-1)}")
    a("s_barrier")
    for r in reads(0, 0): a(r)
    stamp(1)
    a(f"s_cmp_eq_u32 s{sWHICH}, 0")
    a("s_cbranch_scc0 L_gemmV")
    a.label("L_gK")
    pre_lines = len(a.lines)
    sJT = sT+2
    def xjob(J, key, i, base, early, late, rot=0):
        u, qt = i >> 1, i & 1
        J.add(key, f"s_add_u32 s{sJT}, s{base}, {qt*14336+((u+rot)%14)*1024}", f"buffer_load_dwordx4 {ar(X(qt,u),4)}, v{vL16}, {WS}, s{sJT} offen{ld()} ; @{key}", early, late - (3 - (i & 3))*8)
    def kvjob(J, c, early, late):
        blk = c >> 2
        J.add("kv", f"s_add_u32 s{sJT}, s{sKVI if blk & 1 else sKVB}, {(blk>>1)*US+(c&3)*1024}",
              f"buffer_store_dwordx4 {vr(PK(c),4)}, v{vL16}, {WS}, s{sJT} offen{OPT['kvsc']} ; @kv", early, late)
    pw, t6, t7 = sEV, sCNT, sND
    setup = f"""
    s_lshl_b32 s{pw}, s{sHEAD}, 3
    s_and_b32 s{t6}, s{sJ}, 7
    s_add_u32 s{pw}, s{pw}, s{t6}
    s_lshl_b32 s{pw}, s{pw}, 2
    s_add_u32 s{pw}, s{pw}, s{sWAVE}
    s_mul_i32 s{sQST}, s{pw}, {Q_W}
    s_add_u32 s{sQST}, s{sQST}, {WS_QF}
    s_mul_i32 s{sPT}, s{pw}, {PT_W}
    s_add_u32 s{sPT}, s{sPT}, {WS_PT}
    s_lshl_b32 s{sFQ}, s{pw}, 5
    s_add_u32 s{sFQ}, s{sFQ}, {WS_FLG + FL_Q}
    s_mul_i32 s{t7}, s{sWAVE}, {28*1024}
    s_add_u32 s{t7}, s{t7}, {WS_PS}
    s_mul_i32 s{pw}, s{sHEAD}, 7
    s_add_u32 s{pw}, s{pw}, s{t6}
    s_lshr_b32 s{t6}, s{pw}, 4
    s_and_b32 s{sFSG}, s{pw}, 15
    s_lshl_b32 s{sT+3}, s{t6}, 9
    s_mul_i32 s{sPSG}, s{sFSG}, {PS_R}
    s_add_u32 s{sPSG}, s{sPSG}, s{t7}
    s_mul_i32 s{pw}, s{t6}, {PS_SRC}
    s_add_u32 s{sPSG}, s{sPSG}, s{pw}
    s_add_u32 s{sPSG}, s{sPSG}, {16*PS_SRC}
    s_lshl_b32 s{sFSG}, s{sFSG}, 9
    s_lshl_b32 s{pw}, s{t6}, 2
    s_add_u32 s{sFSG}, s{sFSG}, s{pw}
    s_lshl_b32 s{pw}, s{sWAVE}, 7
    s_add_u32 s{pw}, s{pw}, {WS_FLG + FL_S}
    s_add_u32 s{sFSG}, s{sFSG}, s{pw}
    s_add_u32 s{sFSG}, s{sFSG}, 64
    s_lshr_b32 s{t6}, s{sJ}, 3
    s_mul_i32 s{t6}, s{t6}, 7
    s_xor_b32 s{t6}, s{t6}, 7
    s_xor_b32 s{t6}, s{t6}, s{sJ}
    s_mul_i32 s{sPSS}, s{t6}, {PS_R}
    s_add_u32 s{sPSS}, s{sPSS}, s{t7}
    s_mul_i32 s{t7}, s{sHEAD}, {PS_SRC}
    s_add_u32 s{sPSS}, s{sPSS}, s{t7}
    s_lshl_b32 s{sFSS}, s{t6}, 9
    s_add_u32 s{sFSS}, s{sFSS}, s{pw}
    s_lshl_b32 s{t7}, s{sHEAD}, 2
    s_add_u32 s{sFSS}, s{sFSS}, s{t7}
    s_lshl_b32 s{sND}, s{sQI}, 2
    s_add_u32 s{sND}, s{sND}, s{sWAVE}
    s_lshr_b32 s{sCNT}, s{sU1}, 1
    s_sub_u32 s{sCNT}, s{sCNT}, 1
    s_lshr_b32 s{sEV}, s{sJ}, 3
    """.strip().split("\n")
    setup = [(x.strip(), 1) for x in setup]
    setup.append((f"s_cmp_eq_u32 s{sTYPE}, 1\ns_cselect_b32 s{sQST}, {OOB}, s{sQST}", 1))
    setup.append((f"s_cmp_eq_u32 s{sTYPE}, 0\ns_cselect_b32 s{sFSG}, s{sFSG}, {OOB}", 1))
    setup.append((f"s_cmp_eq_u32 s{sWAVE}, 0\ns_cselect_b32 s{sFQ}, s{sFQ}, {OOB}\ns_cselect_b32 s{sEXP}, 1, 0", 1))
    setup2 = [(x, 1) for x in (f"s_mov_b32 s{sTAU}, 4", f"s_add_u32 s{sM0}, s{sW4K}, {8*16384}", f"s_add_u32 s{sOFFB}, s{sW0}, {8*16384}",
              f"s_mov_b32 s{sRDD}, {-131072}", f"s_mov_b32 s{gMA}, {-131072}", f"s_mov_b32 s{gMB}, 32768", f"s_mov_b32 m0, s{sM0}")]
    for typ in ("K", "V"):
        if typ == "V":
            a.label("L_gemmV")
            for l in a.lines[:pre_lines]:
                if l.strip().startswith("buffer_") or "@merge" in l: a.raw("@ghost " + l.strip())
        def pos0(m, n): return m*8+n if typ == "K" else (m >> 1)*16 + n*2 + (m & 1)
        done = {pos0(m, n): (n >> 2)*64 + m*8 + (n & 3)*2 + 1 for m in range(8) for n in range(8)}
        corder = sorted(range(32), key=lambda c: (max(done[2*c], done[2*c+1]) >> 3, c not in dict(OPT["es"]), c))
        slot = {p: p for p in range(64)}
        if OPT["es"]:
            assert len(ENL()) <= 20 and OPT["chg"]
            slot = {2*c: (PK(c)-48)//4 for c in range(32)}
            rest = [x for x in range(52) if x not in slot.values()]
            ag = [c for c in corder[:16] if c not in [x[0] for x in OPT["es"][:4]]][:12]
            for c in corder: slot[2*c+1] = 52 + ag.index(c) if c in ag else rest.pop()
        def pos(m, n): return slot[pos0(m, n)]
        def pack_chain():
            pk = []
            for x_ in sorted(range(64), key=lambda x: (done[x] >> 3, corder.index(x >> 1), x)):
                c = x_ >> 1; e = done[x_] + 3
                r = PK(c); p = slot[2*c+1]; q = 48+4*p; t = GT+17
                cv = lambda d, x, y: pk.append((f"v_cvt_pk_bf16_f32 v{d}, v{x}, v{y}", 0, e))
                rd = lambda d, i: pk.append((f"v_accvgpr_read_b32 v{d}, a{208+4*(p-52)+i}", 0, e))
                if x_ & 1 == 0: cv(r, r, r+1); cv(r+1, r+2, r+3)
                elif p < 52: cv(r+2, q, q+1); cv(r+3, q+2, q+3)
                else: rd(r+2, 0); rd(r+3, 1); rd(t, 3); cv(r+2, r+2, r+3); rd(r+3, 2); cv(r+3, r+3, t)
            return Chain(pk)
        def es_place(st, n, pk):
            J2 = Jobs(); sg = [(c, g - (n-30)*64) for c, g in OPT["es"] if g >> 6 == n-30]
            for c, g in sg: kvjob(J2, c, g, g)
            J2.place(st, 0, 16, [g for c, g in sg]); assert not J2.jobs
            return sg
        def es_fill(st, n, pk, sg):
            pk.fill(st)
            for c, g in sg:
                key = f"v_cvt_pk_bf16_f32 v{PK(c)+3},"
                assert not any(x[0].startswith(key) for x in pk.items) and all(w < g for w, v in st.fill.items() if any(x.startswith(key) for x in v)), (c, g)
            pk.items = [(x[0], x[1], x[2]-64) for x in pk.items]
        def substep(it, kk):
            groups = GS[2*it+kk]
            buf = kk
            mf = []
            for m in range(8):
                for n in range(8):
                    acc = accreg(pos(m, n))
                    c = "0" if (it == 0 and kk == 0) else acc
                    x, y = ar(FB(buf,n),4), ar(FA(buf,m),4)
                    if OPT["chg"]:
                        n2 = 4*kk + (n >> 1); k = (n ^ (n >> 1)) & 1
                        acc = accreg(pos(m, n2)); c = "0" if (it == 0 and n & 1 == 0) else acc
                        x, y = ar(CB(n2,k),4), ar(CA(m,k),4)
                    if typ == "V": x, y = y, x
                    mf.append(f"{MF} {acc}, {x}, {y}, {c}")
            st = Stage(mf)
            st.put(-1, f"s_waitcnt {gwait(2*it+kk)} lgkmcnt(0)")
            st.put(-1, "s_barrier")
            last = (it == 15 and kk == 1)
            g, dg = 1, (OPT["dg2"] if len(groups) == 2 else 4)
            for k, kind in enumerate(groups):
                m0, so, ins = dma_group(kind, k)
                st.put(g-1, m0)
                st.put(g-2, so)
                for i in ins:
                    st.put(g, i); g += dg
            rd = reads(kk ^ 1, buf ^ 1) if not last else [f"ds_read_b128 {ar(FR(f),4)}, v{vRD} offset:{f*1024}" for f in range(12)]
            for i, r in enumerate(rd): st.put(i*2, r)
            if OPT["chg"] and kk == 0: st.put(31, "s_waitcnt lgkmcnt(8)")
            if kk == 0 and it < 15:
                d = -131072 if it % 3 == 0 else 65536
                for i, x in enumerate([f"v_add_u32 v{RA[0]}, {d}, v{RA[0]}", f"v_add_u32 v{RA[1]}, {d}, v{RA[1]}"] + [f"v_xor_b32 v{r}, 0x10000, v{r}" for r in RB]):
                    st.put(48 + 2*(i >> 1), x)
            if OPT["fine"]:
                st.put(2, f"{FT()} s[{sFS}:{sFS+1}]")
                st.put(4, f"v_mov_b32_dpp v0, v0 wave_shr:1 row_mask:0xf bank_mask:0xf")
                st.put(46, f"v_writelane_b32 v0, s{sFS}, 0")
            return st
        ch = side_chain()
        J = Jobs()
        for e in range(8):
            t = [x + e*OPT["slstep"] for x in OPT["slt"]]
            J.add("sl1", f"s_mov_b32 s{sJT}, {(e>>2)*16*896}", f"buffer_load_dwordx2 {ar(WOL+2*e,2)}, v{vWO}, {sr(sX,4)}, s{sJT} offen offset:{(e&3)*896}{OPT['ntS']} ; @sl1", t[2], t[2]+64)
            J.add("sl2", f"s_add_u32 s{sJT}, s{sHI}, {(e&3)*3584}" if e >> 2 else f"s_mov_b32 s{sJT}, {e*3584}",
                  f"buffer_load_dwordx2 {ar(SLD+32+2*e,2)}, v{vW12}, {sr(sW12,4)}, s{sJT} offen{OPT['ntS']} ; @sl2", t[0], t[0]+64)
            J.add("sl0", f"s_mov_b32 s{sJT}, {e*8192}", f"buffer_load_dwordx2 {ar(SLD+2*e,2)}, v{vSW}, {G}, s{sJT} offen{OPT['ntS']} ; @sl0", t[1], t[1]+64)
        NZ, NZP, NZC, NF, NP, NC = OPT["sync"]
        for i in range(20): xjob(J, "x1", i, XO1, (NC+1)*64 + i*OPT["xstep"], 31*64)
        for b in range(8):
            J.add("bias", None, f"buffer_load_dwordx4 {vr(BIAS+BP[b>>1]*8+(b&1)*4,4)}, v{GT+16}, {G}, s{sT+3} offen offset:{(b>>1)*128+(b&1)*16} ; @bias{b//6}", 31*64 if b >= 6 else 29*64, 31*64+24 if b >= 6 else 30*64+22)
        su = Chain(setup)
        PV = GT+8
        for n in range(31):
            it, kk = n >> 1, n & 1
            st = substep(it, kk)
            if n == 0:
                st.put(62, f"s_load_dwordx2 s[{sX}:{sX+1}], s[0:1], 40")
                st.put(63, f"s_mov_b32 s{sX+2}, {4096*896}")
            if n == NZ-1: st.put(63, "s_waitcnt vmcnt(@since:zst)")
            if n == NZ: st.put(61, f"buffer_store_byte v{vONE}, v{vFLG}, {sr(sDBG,4)}, s{gFL} offen sc1")
            if n == NZP: st.put(61, f"buffer_load_dword v{vPOLL}, v{vL4}, {sr(sDBG,4)}, s{gIT} offen sc1 ; @zp")
            if n == NZC:
                st.put(54, "s_waitcnt vmcnt(@since:zp)")
                st.put(55, f"s_cmp_eq_u32 s{sWAVE}, 0\ns_cselect_b32 s{sT+1}, 0x01010101, 0")
                st.put(56, f"v_cmp_ne_u32 vcc, s{sT+1}, v{vPOLL}")
                st.put(60, f"s_cbranch_vccnz L_zwait{typ}")
                st.put(60, f"L_zok{typ}:")
            if n == NF-1:
                assert not any("@sst" in x[0] for x in ch.items) and NZC < NF
                st.put(63, "s_waitcnt vmcnt(@since:sst)")
                st.put(62, f"s_load_dwordx2 s[{sG}:{sG+1}], s[0:1], 64")
                st.put(59, f"s_mov_b32 s{sG+2}, 3584")
            if n == NF:
                st.put(55, f"s_add_u32 s{gIT}, s{gIT}, {WS_FLG+FL_PREP}")
                st.put(58, f"s_lshl2_add_u32 s{sT+1}, s2, s{gIT}")
                st.put(59+2*kk, f"buffer_store_dword v{vONE}, v{vFLG}, {WS}, s{sT+1} offen sc1")
            if n == NP:
                assert not ch.items
                st.put(61, f"buffer_load_dwordx4 {vr(PV,4)}, v{vL16}, {WS}, s{gIT} offen sc1 ; @prep")
            if n == NC:
                st.put(50, "s_waitcnt vmcnt(@since:prep)")
                st.put(51, f"s_cmp_eq_u32 s{sWAVE}, 0\ns_cselect_b32 s{sT+1}, 1, 0")
                st.put(54, f"v_and_b32 v{PV}, v{PV}, v{PV+1}")
                st.put(54, f"v_and_b32 v{PV+2}, v{PV+2}, v{PV+3}")
                st.put(55, f"v_and_b32 v{PV}, v{PV}, v{PV+2}")
                st.put(55, f"v_cmp_ne_u32 vcc, s{sT+1}, v{PV}")
                st.put(60, f"s_cbranch_vccnz L_prepwait{typ}")
                st.put(60, f"L_prepok{typ}:")
                st.put(56, f"v_lshrrev_b32 v{GT+16}, 4, v{vLANE}")
                st.put(56, f"v_lshlrev_b32 v{GT+16}, 5, v{GT+16}")
            if n == 30 and OPT["es"]: pk = pack_chain(); sg = es_place(st, n, pk)
            J.place(st, n, 10, XG4)
            if n == 30 and OPT["es"]: es_fill(st, n, pk, sg); print("pack left", len(pk.items), file=sys.stderr)
            if n >= 1 and ch.items:
                full = ch.items
                for k, x in enumerate(full):
                    if len(x) > 3:
                        key = f"sl{x[3]}"
                        if any(j[5] == key for j in J.jobs) or J.at[key] + OPT["sld"] > n*64+63:
                            ch.items = full[:k]; break
                        full[k] = (x[0], x[1], max(0, J.at[key] + OPT["sld"] - n*64), x[3])
                rest = full[len(ch.items):] if ch.items is not full else []
                ch.base = n*64; ch.minD = OPT["smin"]
                ch.fill(st)
                ch.items = ch.items + rest
                if typ == "K": print("substep", n, "chain left", len(ch.items), file=sys.stderr)
            elif n > NC: su.fill(st)
            if n == 28: assert not su.items
            st.emit(a)
            if OPT["tch"] and n in OPT["tg"]: a(touch(typ))
            if OPT["tch"] and n in OPT["tgs"]:
                a(f"s_cmp_eq_u32 s{sTYPE}, 0\ns_cbranch_scc0 L_tpb{typ}{n}")
                a(touch("a" + typ)); a(f"s_branch L_tpe{typ}{n}\nL_tpb{typ}{n}:"); a(touch("b" + typ)); a(f"L_tpe{typ}{n}:")
        st = substep(15, 1)
        J.place(st, 31, 2, [17, 21]); assert not J.jobs
        SG = [25, 33, 41, 49, 57, 61]
        if OPT["es"]: sg = es_place(st, 31, pk)
        else:
            for c in range(NE): kvjob(J, c, SG[c], SG[c])
        J.place(st, 0, 8, SG); assert not J.jobs
        su = Chain(setup2); su.fill(st, 30); assert not su.items
        slot_of = {pos(m, n): m*8+n for m in range(8) for n in range(8)}
        if OPT["chg"]: slot_of = {pos(m, n): (m*8+(n-4)*2+1 if n >= 4 else -1) for m in range(8) for n in range(8)}
        if OPT["es"]: es_fill(st, 31, pk, sg); pk_ = pk
        pk = []
        for c in range(0 if OPT["es"] else 32):
            e = max(slot_of[2*c], slot_of[2*c+1]) + 3
            if 20 <= c < 20+NE: e = max(e, SG[c-20]+2)
            src = []
            for h in range(2):
                p = 2*c+h
                if p < 52: src += [48+4*p+i for i in range(4)]
                else:
                    for i in range(4):
                        pk.append((f"v_accvgpr_read_b32 v{128+(p-52)*4+i}, a{208+4*(p-52)+i}", 0, e)); src.append(128+(p-52)*4+i)
            for i in range(4): pk.append((f"v_cvt_pk_bf16_f32 v{PK(c)+i}, v{src[2*i]}, v{src[2*i+1]}", 0, e))
        pk = Chain(pk); pk.fill(st)
        if OPT["es"]: pk = pk_
        for c in range(0 if OPT["es"] else NE):
            w = [g for g, v in st.fill.items() if any(x.startswith(f"v_cvt_pk_bf16_f32 v{PK(c)+3},") for x in v)]
            assert min(w) < SG[c], (c, w)
        st.emit(a)
        a("s_nop 7" if OPT["es"] else "s_nop 3")
        print("pack tail", len(pk.items), file=sys.stderr)
        pk.flush(a)
        a("s_waitcnt vmcnt(@since:bias0) lgkmcnt(8)")
        gt_ = [l.strip() for l in a.lines if l.strip().startswith("buffer_")][-80:]
        if typ == "V": assert [re.sub(r"v\[\d+:\d+\]", "", x) for x in gt_] == [re.sub(r"v\[\d+:\d+\]", "", x) for x in gtail]
        gtail = gt_
        a(f"s_cmp_eq_u32 s{sTYPE}, 0")
        a("s_cbranch_scc0 L_P1B")
        a("s_branch L_P1A")
    def unpack(nt):
        o = []
        for r in range(4):
            x = 4*r + (nt & 3); src = BIAS + BP[nt >> 2]*8 + (x >> 1)
            o.append(f"v_and_b32 v{O(nt,1)+r}, 0xffff0000, v{src}" if x & 1 else f"v_lshlrev_b32 v{O(nt,1)+r}, 16, v{src}")
        return o
    def p1_jobs(t0, step, slack=8):
        J = Jobs()
        if OPT["es"]:
            for k, c in enumerate(ENL()): kvjob(J, c, t0+k*step, t0+slack+k*step)
        else:
            for c in range(20+NE, 32): kvjob(J, c, 0, XG[c-20-NE])
            for k, c in enumerate(range(NE, 20+NE)): kvjob(J, c, t0+k*step, t0+slack+k*step)
        for i in range(20, 28): xjob(J, f"x1{i>>2}", i, XO1, (i >> 2)*64 - 134, (i >> 2)*64 - 70)
        return J
    def xwait(st, key): st.put(62, f"s_waitcnt vmcnt(@since:{key})")
    def flagjob(J, key, after, soff, delay):
        if key in J.at or any(j[5] in (after, key) for j in J.jobs): return
        t = J.at[after] + delay
        J.add(key, f"s_waitcnt vmcnt(@since:{after})\ns_barrier", f"buffer_store_dword v{vONE}, v{vFLG}, {WS}, s{soff} offen sc1", t, t+8)
    def split_chain(items, st_prev, mk_next, late_of):
        ch = Chain(items); ch.fill(st_prev)
        rest = ch.items
        for k in range(len(rest)+1):
            st = mk_next()
            c2 = Chain([(x[0], x[1]) for x in rest[k:]])
            before = {gg: len(v) for gg, v in st.fill.items()}
            c2.fill(st)
            if c2.items: continue
            where = {}
            for gg, v in st.fill.items():
                for ins in v[before.get(gg, 0):]: where[ins] = gg
            if all(where[x[0]] <= late_of(x[3]) for x in rest[k:]):
                return rest[:k], st
        raise AssertionError
    def emit_mid(mid):
        if mid: a("s_nop 3")
        Chain(mid).flush(a)
        if mid: a("s_nop 1")
    def post_groups(s, scale):
        out = []
        for qt in range(2):
            for p in range(2):
                t = vT + 16 + (qt*2+p)*4
                regs = [PA(s & 1, nt, qt) + 2*p + rr for rr in range(2) for nt in range(4)]
                ops = [f"v_mul_f32 v{r}, v{vRINV[qt]}, v{r}" for r in regs] if scale else []
                ops += [f"v_cvt_pk_bf16_f32 v{t+i}, v{regs[2*i]}, v{regs[2*i+1]}" for i in range(4)]
                out.append((ops, t))
        return out
    def post_store(s, k, t, base):
        return f"s_add_u32 s{sJT}, s{base}, {s*4096+k*1024}", f"buffer_store_dwordx4 {vr(t,4)}, v{vL16}, {WS}, s{sJT} offen sc1 ; @ps"
    def post_place(st, s, scale, base, gaps):
        for k, (ops, t) in enumerate(post_groups(s, scale)):
            pre, ins = post_store(s, k, t, base)
            st.put(gaps[k]-1, pre); st.put(gaps[k], ins)
    def post_sched(st, s, scale, gaps):
        for k, (ops, t) in enumerate(post_groups(s, scale)):
            prev = None
            for x in ops: prev = st.add(x, [prev], 2, gaps[k]-1)
        st.schedule()
    def post_flush(s, scale, base):
        a("s_nop 5")
        for k, (ops, t) in enumerate(post_groups(s, scale)):
            for x in ops: a(x)
            for x in post_store(s, k, t, base): a(x)
    def mk_post(s):
        st = Stage(mf_post(s)); common_fill(st); return st
    def poll_issue(st, g, voff, soff, tag):
        st.put(g, f"buffer_load_dword v{vPOLL}, v{voff}, {WS}, s{soff} offen sc1 ; @{tag}")
    POLLS = []
    def poll_check(st, g, voff, soff, tag, lane0):
        st.put(g, f"s_waitcnt vmcnt(@since:{tag})")
        st.put(g, f"v_cmp_{'eq' if lane0 else 'ne'}_u32 s[{sT+4}:{sT+5}], s{sEXP}, v{vPOLL}")
        st.put(g+2, f"s_cmp_{'eq' if lane0 else 'lg'}_u64 s[{sT+4}:{sT+5}], 0\ns_cbranch_scc1 L_pw_{tag}")
        assert not ({g+1, g+2} & st.scc_busy)
        st.put(g+2, f"L_po_{tag}:")
        st.put(g+2, "s_barrier")
        POLLS.append((tag, voff, soff, lane0))
    def kv2addr(st):
        st.put(2, f"v_min_u32 v{vL4}, 11, v{vLANE}"); st.put(4, f"v_lshlrev_b32 v{vL4}, 2, v{vL4}"); st.put(8, f"v_add_u32 v{vL4}, 128, v{vL4}")
    XG2 = sorted(XG + [3, 11, 19, 27, 43, 51, 59])
    XG3 = sorted(XG + [5, 13, 21, 29, 45, 53, 61])
    merge("L_P1A")
    for l in gtail: a.raw("@ghost " + l)
    stamp(2)
    if OPT["tch"] and -1 in OPT["ta"]: a(touch("A"))
    for x in unpack(0): a(x)
    a("s_nop 1")
    J = p1_jobs(OPT["kva0"], OPT["kvstep"])
    for s in range(6):
        st = Stage(mf_proj(s, "bias" if s == 0 else None)); common_fill(st)
        flagjob(J, "kvf", "kv", sFKV, OPT["fdelay"])
        J.place(st, s, OPT["cap"])
        if s == 0:
            st.put(40, f"s_waitcnt vmcnt(@since:bias1)")
            for nt in range(1, 16):
                e = XG[2*(nt-13)+1]+2 if nt >= 13 and not OPT["es"] else 0
                if nt >= 12: e = max(e, 40)
                for x in unpack(nt): st.add(x, [], e, 4*nt-3)
            st.schedule()
        if s >= 4: xwait(st, f"x1{s+1}")
        st.emit(a)
        if OPT["tch"] and s in OPT["ta"]: a(touch("A"))
    st = Stage(mf_proj(6)); common_fill(st)
    flagjob(J, "kvf", "kv", sFKV, OPT["fdelay"]); J.place(st, 6, OPT["cap"])
    items = []
    for ud in range(8):
        for qt in range(2):
            regs = [O(2*ud,qt)+i for i in range(4)] + [O(2*ud+1,qt)+i for i in range(4)]
            e = 8*ud+7+3
            for r in regs: items.append((f"v_mul_f32 v{r}, |v{r}|, v{r}", 0, e, ud))
            for i in range(4): items.append((f"v_cvt_pk_bf16_f32 v{regs[i]}, v{regs[2*i]}, v{regs[2*i+1]}", 0, e, ud))
            for i in range(4): items.append((f"v_pk_max_i16 v{regs[i]}, v{regs[i]}, 0", 0, e, ud))
    import copy
    def mk0():
        st = mk_post(0); J2 = copy.deepcopy(J); J2.place(st, 7, OPT["cap"]); assert not J2.jobs; return st
    mid, st0 = split_chain(items, st, mk0, lambda ud: 8*ud-3)
    print("H mid", len(mid), "kv last", J.at["kv"], file=sys.stderr)
    st.emit(a); emit_mid(mid)
    stamp(3)
    J = Jobs()
    for i in range(16):
        J.add("ql", f"s_add_u32 s{sJT}, s{sQST}, {i*1024}", f"buffer_load_dwordx4 {ar(4*i,4)}, v{vL16}, {WS}, s{sJT} offen sc1 ; @ql", 4*64+46, 6*64+36-(15-i)*4)
    for s in range(7):
        st = st0 if s == 0 else mk_post(s)
        if s == 2: poll_issue(st, 3, vL4, sFKVP, "kva"); poll_check(st, 58, vL4, sFKVP, "kva", False)
        if s == 3: poll_issue(st, 51, vFLG, sFQ, "qa"); kv2addr(st)
        if s == 4: poll_check(st, 42, vFLG, sFQ, "qa", True)
        if s == 1: st.put(2, f"s_lshl2_add_u32 s{sT+1}, s{sQI}, 4\ns_cmp_eq_u32 s{sU1}, s{sT+1}\ns_cselect_b32 s{sTYPE}, 4, 0\ns_cselect_b32 s{sEV}, 0, 1")
        gaps = [9, 25, 41, 57] if s < 6 else [41, 49, 57, 59]
        pk_ = s-1 in OPT["park"]
        if s >= 1 and not pk_: post_place(st, s-1, False, sPSG, gaps)
        J.place(st, s, 7, XG2)
        if pk_:
            for k, (ops, t) in enumerate(post_groups(s-1, False)):
                for i, x in enumerate(ops):
                    c_ = st.add(x, [], 2, 60)
                    st.add(f"v_accvgpr_write_b32 a{128+(s-1)*16+k*4+i}, v{t+i}", [c_], 2, 62)
            st.schedule()
        elif s >= 1: post_sched(st, s-1, False, gaps)
        st.emit(a)
    assert not J.jobs
    def mk_F(qb, tag, pre=None):
        st = Stage(mf_qk(0, 0, qb, True) + mf_qk(1, 1, qb, True)); common_fill(st)
        if pre: pre(st)
        place_sm(st, 0, 35, 62, tag, ladd=False, first=True)
        st.schedule()
        return st
    def finit():
        return [(f"v_mov_b64 {vr(NEGM(0)+2*i,2)}, 0", 0) for i in range(4)] + [(f"v_mov_b64 {vr(vL[0],2)}, 0", 0),
                (f"v_mov_b32 v{vBIG}, {f2u(-1e30):#x}", 0), (f"s_mov_b32 s{sFIRST}, 1", 1), (f"s_mov_b32 s{sCLAMP}, {f2u(-3e38):#x}", 1)]
    def f_end(tag, nxt, endl):
        a(f"s_cbranch_vccnz L_fchk_{tag}")
        a.label(f"L_fok_{tag}")
        STUBS.append((f"L_fchk_{tag}", "L_fchk", f"L_fok_{tag}"))
        a(f"s_mov_b32 s{sFIRST}, 0")
        a(f"s_mov_b32 s{sCLAMP}, 0")
        if endl:
            a(f"s_cmp_eq_u32 s{sCNT}, 0")
            a(f"s_cbranch_scc1 {endl}")
        if nxt == "L_peelA": peelA()
        elif nxt: a(f"s_branch {nxt}")
    def peelA():
        todo = [(s_, k) for s_ in OPT["park"] for k in range(4)]
        n = OPT["pst_n"]
        ns = (len(todo) + n - 1)//n + 2
        ns += ns & 1
        for i in range(ns):
            b = (i & 1) ^ 1
            st = Stage(mf_pv(0, b^1, i == 0) + mf_qk(1, b^1, 0)); common_fill(st)
            for g in {1: [25], 2: [17, 49], 3: [9, 25, 49], 4: [9, 25, 41, 57]}[n]:
                if not todo: break
                s_, k = todo.pop(0)
                st.put(g-1, f"s_add_u32 s{sJT}, s{sPSG}, {s_*4096+k*1024}")
                st.put(g, f"buffer_store_dwordx4 {ar(128+s_*16+k*4,4)}, v{vL16}, {WS}, s{sJT} offen sc1 ; @ps")
            if i == ns-1:
                st.put(56, "s_waitcnt vmcnt(@since:ps)")
                st.put(57, f"buffer_store_dword v{vONE}, v{vFLG}, {WS}, s{sFSG} offen sc1")
                st.put(2, f"s_add_u32 s{sN}, s{sN}, {ns}")
                st.put(4, f"s_sub_u32 s{sCNT}, s{sCNT}, {ns//2}")
            place_sm(st, b, 0, 62, f"pa{i}", mask=False); st.schedule()
            if st.over or st.tail: print("peelA over", i, st.over, len(st.tail), file=sys.stderr)
            st.emit(a)
            a(f"s_cbranch_vccnz L_dorare_pa{i}")
            a.label(f"L_norare_pa{i}")
            STUBS.append((f"L_dorare_pa{i}", f"L_rare{b}", f"L_norare_pa{i}"))
        a("s_branch L_steady0")
    a("s_nop 5")
    for ops, t in post_groups(6, False):
        for x in ops: a(x)
    a("s_waitcnt vmcnt(@since:ql)")
    stamp(4)
    def pre_fa1(st):
        post_place(st, 6, False, sPSG, [9, 17, 25, 33])
        poll_issue(st, 1, vL4, sFKVP, "kv2a"); poll_check(st, 58, vL4, sFKVP, "kv2a", False)
    st = mk_F(0, "fa1", pre_fa1)
    c = Chain(finit()); c.fill(st, 0, 30); assert not c.items
    st.emit(a)
    f_end("fa1", "L_peelA", None)
    merge("L_P1B")
    for l in gtail: a.raw("@ghost " + l)
    stamp(2)
    J = p1_jobs(OPT["kvb0"], OPT["kvstepb"], 200)
    for i in range(28):
        p = i >> 2
        xjob(J, f"x2{p}", i, XO2, max(p+1, 3)*64, (7+p)*64 - 134, 4)
    for i in range(16):
        qt, ud = i & 1, i >> 1
        J.add("qs", f"s_add_u32 s{sJT}, s{sQST}, {(qt*8+ud)*1024}", f"buffer_store_dwordx4 {ar(Q(0,qt,ud),4)}, v{vL16}, {WS}, s{sJT} offen{OPT['kvsc']} ; @qs",
              7*64 if ud < 5 else 8*64, 7*64+20+i*OPT["qstep"])
    def bstage(gs):
        s = gs % 7
        st = Stage(mf_proj(s, "zero" if gs % 7 == 0 else None))
        nod = 3 <= gs <= 7
        common_fill(st, dma=not nod, nd={3: 16, 4: 8, 5: 0}.get(gs), novm=(6 <= gs <= 10), rdl=(gs == 7))
        if gs == 9: poll_issue(st, 3, vL4, sFKVP, "kvb"); poll_check(st, 58, vL4, sFKVP, "kvb", False)
        if gs == 10: kv2addr(st)
        if gs == 1:
            st.put(2, f"s_cmp_gt_u32 s{sN}, 34\ns_cselect_b32 s{sT+1}, 34, 2")
            st.put(4, f"v_and_b32 v{vT}, 4, v{vLANE}"); st.put(8, f"v_mul_u32_u24 v{vT}, s{sT+1}, v{vT}"); st.put(10, f"v_or_b32 v{vL4}, v{vL4}, v{vT}")
        flagjob(J, "kvf", "kv", sFKV, OPT["fdelay"]); flagjob(J, "qf", "qs", sFQ, 72)
        if nod: J.place(st, gs, OPT["capn"], XG3)
        elif gs == 8: J.place(st, gs, OPT["capq"], XG2)
        else: J.place(st, gs, OPT["capb"])
        if gs in (4, 5): xwait(st, f"x1{gs+1}")
        if 6 <= gs < 13: xwait(st, f"x2{gs-6}")
        return st
    def btouch(gs):
        if OPT["tch"] and gs in OPT["tb"]: a(touch("B"))
    btouch(-1)
    for gs in range(6): bstage(gs).emit(a); btouch(gs)
    def q_items(qb):
        items = []; cnt = 0
        for ud in range(8):
            blk = ud >> 1
            for qt in range(2):
                e = 16*blk+15+3
                t = vT + 16 + (cnt % 4)*4; cnt += 1
                for i in range(4):
                    jp = 2*(ud & 1) + (i >> 1); tl = 4*blk + 2*(i & 1)
                    items.append((f"v_cvt_pk_bf16_f32 v{t+i}, v{O(tl,qt)+jp}, v{O(tl+1,qt)+jp}", 0, e, 2*blk))
                for i in range(4): items.append((f"v_accvgpr_write_b32 a{Q(qb,qt,ud)+i}, v{t+i}", 0, e, 99 if ud >= 5 else -1))
        return items
    st = bstage(6); st7 = bstage(7)
    mid, st0 = split_chain(q_items(0), st, lambda: copy.deepcopy(st7), lambda ud: 8*ud-1)
    print("E1 mid", len(mid), file=sys.stderr)
    st.emit(a); btouch(6); emit_mid(mid)
    stamp(3)
    st0.emit(a); btouch(7)
    for gs in range(8, 13): bstage(gs).emit(a); btouch(gs)
    st = bstage(13)
    assert not J.jobs
    print("B jobs", {k: (v >> 6, v & 63) for k, v in J.at.items()}, file=sys.stderr)
    def mk_fa2():
        STUBS[:] = [x for x in STUBS if "fa2" not in x[0]]
        POLLS[:] = [x for x in POLLS if x[0] != "kv2b"]
        def pre(st): poll_issue(st, 1, vL4, sFKVP, "kv2b"); poll_check(st, 58, vL4, sFKVP, "kv2b", False)
        st = mk_F(0, "fa2", pre); c = Chain(finit()); c.fill(st, 0, 30); return st
    mid, st0 = split_chain(q_items(128), st, mk_fa2, lambda ud: 60)
    print("E2 mid", len(mid), file=sys.stderr)
    st.emit(a); emit_mid(mid)
    qi_ = q_items(128); q_rest = qi_[qi_.index(mid[-1])+1:]
    stamp(4)
    a(f"s_cmp_eq_u32 s{sU1}, 0")
    a("s_cbranch_scc1 L_b0")
    st0.emit(a)
    f_end("fa2", None, "L_u2")
    def steady(b, qb, tag, czero=False):
        st = Stage(mf_pv(0, b^1, czero) + mf_qk(1, b^1, qb)); common_fill(st)
        if b == 0:
            st.put(56, f"s_sub_u32 s{sCNT}, s{sCNT}, 1")
            st.put(58, f"s_cmp_lg_u32 s{sCNT}, s{sEV}")
            st.scc_busy |= set(range(58, 64))
        place_sm(st, b, 0, 62, tag); st.schedule()
        st.emit(a)
        a(f"s_cbranch_vccnz L_dorare_{tag}")
        a.label(f"L_norare_{tag}")
        STUBS.append((f"L_dorare_{tag}", f"L_rare{b}", f"L_norare_{tag}"))
    def loop(qb, n):
        a.label(f"L_s1z{n}")
        steady(1, qb, f"z{n}", True)
        a(f"s_branch L_mid{n}")
        merge(f"L_steady{n}", True)
        steady(1, qb, f"s1{n}")
        merge(f"L_mid{n}")
        steady(0, qb, f"s0{n}")
        a(f"s_cbranch_scc1 L_steady{n}")
    loop(0, 0)
    a(f"s_cmp_eq_u32 s{sCNT}, 0")
    a("s_cbranch_scc1 L_end0")
    a(f"""
    s_add_u32 s{sFQ}, s{sFQ}, {FL_P - FL_Q}
    s_nop 0
    buffer_load_dword v{vPOLL}, v{vFLG}, {WS}, s{sFQ} offen sc1
    s_mov_b32 s{sEV}, 0
    s_branch L_steady0
    """)
    a.label("L_u2")
    for i in range(64): a(f"v_mov_b64 {vr(O0+2*i,2)}, 0")
    merge("L_end0")
    a(f"s_cmp_ge_u32 s{sTYPE}, 2")
    a("s_cbranch_scc1 L_lpack")
    a(f"""
    s_waitcnt vmcnt(16)
    v_cmp_ne_u32 vcc, s{sEXP}, v{vPOLL}
    s_add_u32 s{sT+3}, s{sPT}, 16384
    s_nop 0
    s_bitcmp1_b32 vcc_lo, 0
    s_cbranch_scc1 L_pw_pt
    """)
    a.label("L_po_pt")
    a("s_barrier")
    POLLS.append(("pt", vFLG, sFQ, True))
    a(f"buffer_load_dwordx4 {vr(vSTB,4)}, v{vL16}, {WS}, s{sT+3} offen sc1")
    for i in range(16):
        if i % 4 == 0: a(f"s_add_u32 s{sT+3}, s{sPT}, {i*1024}")
        a(f"buffer_load_dwordx4 {ar(128+4*i,4)}, v{vL16}, {WS}, s{sT+3} offen offset:{(i&3)*1024} sc1 ; @ptl")
    def pack_items(e0, step):
        items = []
        for ud in range(8):
            for qt in range(2):
                regs = [O(2*ud,qt)+i for i in range(4)] + [O(2*ud+1,qt)+i for i in range(4)]
                for i in range(4): items.append((f"v_cvt_pk_bf16_f32 v{regs[i]}, v{regs[2*i]}, v{regs[2*i+1]}", 0, e0+step*ud, ud))
        return items
    def mk_L(tag):
        st = Stage(mf_pv(0, 0) + mf_pv(1, 1)); common_fill(st)
        place_sm(st, 1, 0, 30, tag); st.schedule()
        st.put_post(31, f"s_cbranch_vccnz L_dorare_{tag}")
        st.put_post(31, f"L_norare_{tag}:")
        STUBS.append((f"L_dorare_{tag}", "L_rare1", f"L_norare_{tag}"))
        st.put(32, f"v_add_f32 v{vL[0]}, v{vL[0]}, v{vSUM[0][0]}")
        st.put(34, f"v_add_f32 v{vL[1]}, v{vL[1]}, v{vSUM[1][0]}")
        return st
    st = mk_L("ln")
    c = [(f"v_bfe_u32 v{vT+20}, v{vLANE}, 2, 2", 0), (f"v_lshrrev_b32 v{vT+21}, 4, v{vLANE}", 0), (f"v_cmp_eq_u32 s[{sT+4}:{sT+5}], v{vT+20}, v{vT+21}", 0),
         (f"v_and_b32 v{vT+20}, 3, v{vLANE}", 0), (f"v_lshlrev_b32 v{vT+20}, 4, v{vT+20}", 0), (f"v_mov_b32 v{vT+22}, 0x3f80", 0), (f"v_mov_b32 v{vT+23}, 0", 0),
         (f"v_cndmask_b32 v{vT+22}, 0, v{vT+22}, s[{sT+4}:{sT+5}]", 1), (f"v_lshlrev_b64 {vr(vSEL+2,2)}, v{vT+20}, {vr(vT+22,2)}", 0),
         (f"v_mov_b64 {vr(vSEL,2)}, 0", 0), (f"v_mov_b64 {vr(vSEL+4,2)}, 0", 0),
         ("s_waitcnt vmcnt(@since:ptl)", 1, 55),
         (f"v_cmp_neq_f32 vcc, v{NEGM(0)}, v{vSTB}", 1), (f"v_cmp_neq_f32 s[{sT+4}:{sT+5}], v{NEGM(1)}, v{vSTB+1}", 0)]
    c = Chain(c); c.fill(st, 35); assert not c.items
    st.emit(a)
    a(f"s_or_b64 vcc, vcc, s[{sT+4}:{sT+5}]")
    a("s_cbranch_scc1 L_slowcomb")
    a.label("L_comb")
    stamp(5)
    mf = []
    for ud in range(8):
        for h in range(2):
            for qt in range(2):
                d = vr(O(2*ud+h,qt),4)
                mf.append(f"{MF} {d}, {vr(vSEL+2-2*h,4)}, {ar(128+(ud*2+qt)*4,4)}, {d}")
    st = Stage(mf)
    st.put(0, f"v_add_f32 v{vL[0]}, v{vL[0]}, v{vSTB+2}")
    st.put(0, f"v_add_f32 v{vL[1]}, v{vL[1]}, v{vSTB+3}")
    c = Chain(pack_items(6, 4)); c.fill(st, 0, 31)
    st.emit(a)
    a("s_nop 5")
    c.flush(a)
    a("s_branch L_post2")
    merge("L_lpack")
    st = mk_L("lp")
    c = Chain([(f"v_mov_b32 v{vSTAT}, v{NEGM(0)}", 0), (f"v_mov_b32 v{vSTAT+1}, v{NEGM(1)}", 0), (f"v_mov_b64 {vr(vSTAT+2,2)}, {vr(vL[0],2)}", 0)] + pack_items(38, 4))
    c.fill(st, 35)
    st.put(62, f"s_cmp_eq_u32 s{sTYPE}, 2")
    st.emit(a)
    a("s_nop 5")
    print("Lpack tail", len(c.items), file=sys.stderr)
    c.flush(a)
    a("s_cbranch_scc0 L_post2b")
    a.label("L_seg2")
    stamp(5)
    a(f"""
    s_mov_b32 s{sTYPE}, 3
    s_mov_b32 s{sN}, 0
    s_sub_u32 s{sND}, 15, s{sQI}
    s_lshl_b32 s{sND}, s{sND}, 2
    s_add_u32 s{sND}, s{sND}, s{sWAVE}
    s_lshr_b32 s{sCNT}, s{sU2}, 1
    s_sub_u32 s{sCNT}, s{sCNT}, 1
    s_sub_u32 s{sEV}, s{sCNT}, 1
    s_add_u32 s{sFQ}, s{sFQ}, {FL_P - FL_Q}
    s_add_u32 s{sT+3}, s{sPT}, 16384
    buffer_store_dwordx4 {vr(vSTAT,4)}, v{vL16}, {WS}, s{sT+3} offen sc1
    """)
    def pre_fb(st): poll_issue(st, 1, vL4, sFKVP, "kv2c"); poll_check(st, 58, vL4, sFKVP, "kv2c", False)
    st = mk_F(128, "fb", pre_fb)
    c = []
    for i in range(16):
        if i % 4 == 0: c.append((f"s_add_u32 s{sT+3}, s{sPT}, {i*1024}", 1))
        c.append((f"buffer_store_dwordx4 {vr(O(2*(i>>1),i&1),4)}, v{vL16}, {WS}, s{sT+3} offen offset:{(i&3)*1024}{OPT['kvsc']}", 1))
    c = Chain(c); c.fill(st)
    c2 = Chain(finit()); c2.fill(st, 0, 30); assert not c2.items
    print("Fb leftover", len(c.items), file=sys.stderr)
    st.emit(a)
    c.flush(a)
    f_end("fb", None, "L_end")
    loop(128, 1)
    a(f"""
    s_cmp_eq_u32 s{sTYPE}, 3
    s_cbranch_scc0 L_lpack
    s_waitcnt vmcnt(16)
    s_barrier
    buffer_store_dword v{vONE}, v{vFLG}, {WS}, s{sFQ} offen sc1
    s_mov_b32 s{sTYPE}, 4
    s_mov_b32 s{sEV}, 0
    s_cmp_eq_u32 s{sCNT}, 0
    s_cbranch_scc1 L_lpack
    s_branch L_steady1
    """)
    a.label("L_post2b")
    merge("L_post2")
    stamp(6)
    a("s_nop 1")
    CO, FP, XO, BO = sU2, sW0, sCNT, sN
    CS = [sU1, sEV, sND, sPT]
    vXO, vBO, vS, vFG, vFS, vS2 = 44, 45, 46, 47, 48, 49
    XB, BB, SEL = 96, 104, 112
    fs = f"""
    s_load_dwordx2 s[{sSA}:{sSA+1}], s[0:1], 0
    s_load_dwordx2 s[{sG}:{sG+1}], s[0:1], 80
    s_load_dwordx2 s[{sSB}:{sSB+1}], s[0:1], 88
    s_mov_b32 s{sSA+2}, {2048*896}
    s_mov_b32 s{sSB+2}, {2048*896}
    s_mov_b32 s{sG+2}, 896
    s_and_b32 s{sT}, s2, 3
    s_lshl2_add_u32 s{sT}, s{sWAVE}, s{sT}
    s_lshr_b32 s{sT+4}, s2, 4
    s_mul_i32 s{CO}, s{sT+4}, {PS_R}
    s_bfe_u32 s{sT+4}, s2, 0x20002
    s_mul_i32 s{sT+5}, s{sT+4}, {28*1024}
    s_add_u32 s{CO}, s{CO}, s{sT+5}
    s_lshl_b32 s{sT+5}, s{sT}, 11
    s_add_u32 s{CO}, s{CO}, s{sT+5}
    s_add_u32 s{CO}, s{CO}, {WS_PS}
    s_lshr_b32 s{FP}, s2, 2
    s_mul_i32 s{XO}, s{FP}, {32*896}
    s_lshl_b32 s{FP}, s{FP}, 7
    s_add_u32 s{FP}, s{FP}, {WS_FLG + FL_S}
    s_lshr_b32 s{BO}, s{sT}, 1
    s_lshl_b32 s{BO}, s{BO}, 7
    s_add_u32 s{XO}, s{XO}, s{BO}
    s_and_b32 s{sT+4}, s{sT}, 1
    s_mul_i32 s{sT+4}, s{sT+4}, {16*896}
    s_add_u32 s{XO}, s{XO}, s{sT+4}
    v_min_u32 v{vFG}, 6, v{vLANE}
    v_lshl_add_u32 v{vFG}, v{vFG}, 2, 64
    v_and_b32 v{vXO}, 15, v{vLANE}
    v_lshlrev_b32 v{vFS}, 2, v{vXO}
    v_lshrrev_b32 v{vBO}, 4, v{vLANE}
    v_mul_u32_u24 v{vS}, {PS_SRC}, v{vBO}
    v_lshl_add_u32 v{vS}, v{vXO}, 4, v{vS}
    v_lshlrev_b32 v{vBO}, 3, v{vBO}
    v_and_b32 v{vS2}, 1, v{vLANE}
    v_mul_u32_u24 v{vS2}, 0xffff, v{vS2}
    v_add_u32 v{vS2}, 1, v{vS2}
    v_mul_u32_u24 v{vS2}, 0x3f80, v{vS2}
    v_lshrrev_b32 v{vXO}, 1, v{vXO}
    """
    fs = [(x.strip(), 1) for x in fs.split("\n") if x.strip()]
    fsS = [x for x in fs if x[0][0] == "s"]; fs = [(x[0], 0) for x in fs if x[0][0] == "v"]
    for k in range(8):
        fs += [(f"v_cmp_eq_u32 s[{sT+4}:{sT+5}], {k}, v{vXO}", 1), (f"v_cndmask_b32 v{SEL+k}, 0, v{vS2}, s[{sT+4}:{sT+5}]", 2)]
    fs += [(x, 1) for x in (f"v_and_b32 v{vXO}, 15, v{vLANE}", f"v_mul_u32_u24 v{vXO}, 896, v{vXO}", f"v_add_u32 v{vXO}, v{vXO}, v{vBO}",
           f"v_cmp_gt_u32 s[{sT+4}:{sT+5}], 48, v{vLANE}")]
    fs.append((f"v_cndmask_b32 v{vS2}, v{vFLG}, v{vS}, s[{sT+4}:{sT+5}]", 2))
    fs += fsS
    fs.append((f"s_cmp_lt_u32 s{sT}, 14\ns_cselect_b32 s{XO}, s{XO}, {OOB}\ns_cselect_b32 s{CO}, s{CO}, {OOB}", 1))
    fs.append((f"s_mov_b32 s{sQST}, s{FP}", 1))
    fs.append((f"s_cmp_eq_u32 s{sWAVE}, 0\ns_cselect_b32 s{FP}, s{FP}, {OOB}", 1))
    fs += [(f"s_add_u32 s{CS[k]}, s{CO}, {(16+4*k)*PS_SRC}", 1) for k in range(2)]
    fs = Chain(fs)
    J = Jobs()
    GL = 128
    for k in range(4):
        J.add("gl", None, f"buffer_load_dwordx2 {vr(XB+2*k,2)}, v{vXO}, {sr(sSA,4)}, s{XO} offen offset:{k*32}", 3*64, 7*64)
        J.add("gl", None, f"buffer_load_dwordx2 {vr(BB+2*k,2)}, v{vBO}, {G}, s{BO} offen offset:{k*32}", 3*64, 7*64)
    for n in range(16):
        og, p, sg = n >> 2, (n >> 1) & 1, n & 1
        J.add("gl", None, f"buffer_load_dwordx4 {ar(GL+n*4,4)}, v{(vS, vS2)[sg]}, {WS}, s{CS[sg]} offen offset:{p*1024+og*256} sc1 ; @gl", 4*64, 7*64)
    for s in range(7):
        st = Stage(mf_post(s)); common_fill(st, dma=(s < 3), nd=(None, None, None, 16, 8, 0, 0)[s], last=(s == 6))
        if s == 0:
            c = xlane_ops("v_add_f32", vL[0], vT) + xlane_ops("v_add_f32", vL[1], vT) + [(f"v_rcp_f32 v{vRINV[0]}, v{vL[0]}", 0), (f"v_rcp_f32 v{vRINV[1]}, v{vL[1]}", 1)]
            c = Chain(c); c.fill(st); assert not c.items
            fs.fill(st)
        else:
            gaps = [17, 33, 49, 57]
            post_place(st, s-1, True, sPSS, gaps)
            if s == 2: st.put(60, "s_waitcnt lgkmcnt(0)")
            if s == 2: poll_issue(st, 41, vFG, FP, "gf")
            if s == 3: poll_check(st, 58, vFG, FP, "gf", False)
            J.place(st, s, 8, [1, 9, 13, 25, 29, 41, 45, 61])
            post_sched(st, s-1, True, gaps)
            fs.fill(st, 0, 63 if s == 1 else 34)
            if s == 2: assert not fs.items, len(fs.items)
        st.emit(a)
    assert not J.jobs
    post_flush(6, True, sPSS)
    stamp(7)
    a(f"s_mov_b32 s{sT+6}, 0xffff0000")
    a(f"s_mov_b32 s{sT+7}, {f2u(-1.4426950408889634):#x}")
    LB = 128
    GA, SA_, XF = 12, 64, 80
    a("s_waitcnt vmcnt(@since:gl)")
    for n in range(16):
        d = vr(GA+(n >> 2)*4, 4)
        a(f"{MF} {d}, {vr(SEL+((n >> 1) & 1)*4,4)}, {ar(GL+n*4,4)}, {d if n & 3 else 0}")
    for k in range(4): a(f"s_add_u32 s{CS[k]}, s{CO}, {4*k*PS_SRC}")
    for i in range(8):
        a(f"v_lshlrev_b32 v{XF+2*i}, 16, v{XB+i}")
        a(f"v_and_b32 v{XF+2*i+1}, s{sT+6}, v{XB+i}")
    def rnd_pair(r0, r1, t):
        a(f"v_cvt_pk_bf16_f32 v{t}, v{r0}, v{r1}")
        a(f"v_lshlrev_b32 v{r0}, 16, v{t}")
        a(f"v_and_b32 v{r1}, s{sT+6}, v{t}")
    T1, T2, T3 = 2, 3, 4
    for i in range(8):
        g0, g1 = GA+2*i, GA+2*i+1
        if i == OPT["fpos"]:
            a("s_waitcnt vmcnt(0)")
            a(f"buffer_store_dword v{vONE}, v{vFLG}, {WS}, s{sFSS} offen sc1")
        rnd_pair(g0, g1, T1)
        a(f"v_lshlrev_b32 v{T2}, 16, v{BB+i}")
        a(f"v_and_b32 v{T3}, s{sT+6}, v{BB+i}")
        a(f"v_add_f32 v{g0}, v{g0}, v{T2}")
        a(f"v_add_f32 v{g1}, v{g1}, v{T3}")
        rnd_pair(g0, g1, T1)
        a(f"v_mul_f32 v{T2}, s{sT+7}, v{g0}")
        a(f"v_mul_f32 v{T3}, s{sT+7}, v{g1}")
        a(f"v_exp_f32 v{T2}, v{T2}")
        a(f"v_exp_f32 v{T3}, v{T3}")
        a("s_nop 0")
        a(f"v_add_f32 v{T2}, 1.0, v{T2}")
        a(f"v_add_f32 v{T3}, 1.0, v{T3}")
        a(f"v_rcp_f32 v{T2}, v{T2}")
        a(f"v_rcp_f32 v{T3}, v{T3}")
        a("s_nop 0")
        a(f"v_mul_f32 v{g0}, v{g0}, v{T2}")
        a(f"v_mul_f32 v{g1}, v{g1}, v{T3}")
        rnd_pair(g0, g1, T1)
    if OPT["fpos"] == 8:
        a("s_waitcnt vmcnt(0)")
        a(f"buffer_store_dword v{vONE}, v{vFLG}, {WS}, s{sFSS} offen sc1")
    if OPT["prog"]:
        DONE, NEW = sPSG, sFQ
        stamp(8)
        if stamps: a("s_waitcnt lgkmcnt(0)")
        a(f"""
        s_mov_b32 s{sT+1}, 0
        s_mov_b32 s{DONE}, 0
        s_cmp_eq_u32 s{CO}, {OOB}
        s_cbranch_scc1 {"L_fin" if stamps else "L_end"}
        s_branch L_fpoll
        L_fslp:
        s_sleep {OPT['fsleep']}
        L_fpoll:
        buffer_load_dword v{vPOLL}, v{vFS}, {WS}, s{sQST} offen sc1
        s_add_u32 s{sT+1}, s{sT+1}, 1
        s_cmp_ge_u32 s{sT+1}, 0x10000
        s_cselect_b32 s{sT}, -1, 0
        s_waitcnt vmcnt(0)
        v_cmp_eq_u32 vcc, 1, v{vPOLL}
        s_nop 3
        s_or_b32 s{sT}, s{sT}, vcc_lo
        s_lshr_b32 s{NEW}, s{sT}, 1
        s_and_b32 s{sT}, s{sT}, s{NEW}
        s_lshr_b32 s{NEW}, s{sT}, 2
        s_and_b32 s{sT}, s{sT}, s{NEW}
        s_andn2_b32 s{NEW}, s{sT}, s{DONE}
        s_and_b32 s{NEW}, s{NEW}, 0x1111
        s_cbranch_scc0 L_fslp
        """)
        stamp(8)
        for sg in range(4):
            a(f"s_bitcmp1_b32 s{NEW}, {4*sg}")
            a(f"s_cbranch_scc0 L_fl{sg}")
            for k in range(8): a(f"buffer_load_dwordx4 {vr(LB+(k*4+sg)*4,4)}, v{vS}, {WS}, s{CS[sg]} offen offset:{(k&1)*1024+(k>>1)*256} sc1" + (f" ; @f{k*4+1} @f{k*4+3}" if sg == 3 else ""))
            a.label(f"L_fl{sg}")
        a(f"""
        s_or_b32 s{DONE}, s{DONE}, s{NEW}
        s_cmp_eq_u32 s{DONE}, 0x1111
        s_cbranch_scc0 L_fpoll
        """)
        if stamps: a("s_waitcnt lgkmcnt(0)")
    else:
        a(f"s_mov_b32 s{sT+1}, 0")
        a(f"s_cmp_lg_u32 s{sWAVE}, 0")
        a("s_cbranch_scc1 L_fgo")
        a.label("L_fpoll")
        a(f"""
        buffer_load_dword v{vPOLL}, v{vFS}, {WS}, s{FP} offen sc1
        s_add_u32 s{sT+1}, s{sT+1}, 1
        s_waitcnt vmcnt(0)
        v_cmp_ne_u32 vcc, 1, v{vPOLL}
        s_cmp_lt_u32 s{sT+1}, 0x10000
        s_cbranch_vccz L_fgo
        s_sleep {OPT['fsleep']}
        s_cbranch_scc1 L_fpoll
        """)
        a.label("L_fgo")
        a("s_barrier")
        stamp(8)
        if stamps: a("s_waitcnt lgkmcnt(0)")
        if OPT["dbgf"]:
            for k in range(4): a(f"s_mov_b32 s{CS[k]}, {OOB}")
        for n in range(32):
            og, p, sg = n >> 3, (n >> 2) & 1, n & 3
            a(f"buffer_load_dwordx4 {vr(LB+n*4,4)}, v{vS}, {WS}, s{CS[sg]} offen offset:{p*1024+og*256} sc1 ; @f{n}")
    def fin(og):
        for i in (2*og, 2*og+1):
            g0, g1, s0, s1 = GA+2*i, GA+2*i+1, SA_+2*i, SA_+2*i+1
            rnd_pair(s0, s1, T1)
            a(f"v_mul_f32 v{g0}, v{g0}, v{s0}")
            a(f"v_mul_f32 v{g1}, v{g1}, v{s1}")
            rnd_pair(g0, g1, T1)
            a(f"v_add_f32 v{g0}, v{g0}, v{XF+2*i}")
            a(f"v_add_f32 v{g1}, v{g1}, v{XF+2*i+1}")
            a(f"v_cvt_pk_bf16_f32 v{XB+i}, v{g0}, v{g1}")
        a(f"buffer_store_dwordx2 {vr(XB+2*og,2)}, v{vXO}, {sr(sSB,4)}, s{XO} offen offset:{og*32}")
    for n in range(32):
        if n & 1 == 0: a(f"s_waitcnt vmcnt(@since:f{n+1})")
        d = vr(SA_+(n >> 3)*4, 4)
        a(f"{MF} {d}, {vr(SEL+((n >> 2) & 1)*4,4)}, {vr(LB+n*4,4)}, {d if n & 7 else 0}")
        if n & 7 == 3 and n > 8: fin((n >> 3) - 1)
    a("s_nop 7"); a("s_nop 0")
    fin(3)
    a.label("L_fin")
    if stamps:
        a("s_waitcnt vmcnt(0)")
        stamp(9)
        a("s_waitcnt lgkmcnt(0)")
        if OPT["enc"] >= 0:
            a(f"""
            s_and_b32 s{sT+1}, s2, {OPT["encw"][0]}
            s_cmp_eq_u32 s{sT+1}, {OPT["encw"][1]}
            s_cbranch_scc0 L_end
            s_sub_u32 s{sT+1}, s{streg(OPT["enc"])}, s{streg(OPT["enc0"])}
            s_mul_i32 s{sT+1}, s{sT+1}, {OPT["enck"]}
            s_add_u32 s{sT+1}, s{sT+1}, s{streg(0)}
            s_add_u32 s{sT+1}, s{sT+1}, 10000
            s_mov_b32 s{sT+2}, 0
            L_enc:
            s_memrealtime s[{sT+4}:{sT+5}]
            s_add_u32 s{sT+2}, s{sT+2}, 1
            s_waitcnt lgkmcnt(0)
            s_cmp_gt_u32 s{sT+2}, 1000000
            s_cbranch_scc1 L_end
            s_sub_u32 s{sT+4}, s{sT+4}, s{sT+1}
            s_cmp_lt_i32 s{sT+4}, 0
            s_cbranch_scc1 L_enc
            s_endpgm
            """)
        for i in range(12): a(f"v_mov_b32 v{16+i}, s{streg(min(i,9))}")
        a(f"""
        s_lshl_b32 s{sT+1}, s2, 2
        s_add_u32 s{sT+1}, s{sT+1}, s{sWAVE}
        s_lshl_b32 s{sT+1}, s{sT+1}, 6
        s_add_u32 s{sT+1}, s{sT+1}, {WS_STAMP}
        buffer_store_dwordx4 v[16:19], v{vFLG}, {WS}, s{sT+1} offen
        buffer_store_dwordx4 v[20:23], v{vFLG}, {WS}, s{sT+1} offen offset:16
        buffer_store_dwordx4 v[24:27], v{vFLG}, {WS}, s{sT+1} offen offset:32
        s_sub_u32 s{sT+1}, s{sT+1}, {WS_STAMP}
        s_lshl_b32 s{sT+1}, s{sT+1}, 3
        s_add_u32 s{sT+1}, s{sT+1}, {WS_STAMP + 0x100000}
        v_lshlrev_b32 v2, 2, v{vLANE}
        buffer_store_dword v0, v2, {WS}, s{sT+1} offen
        buffer_store_dword v{vKV}, v2, {WS}, s{sT+1} offen offset:256
        """)
    a.label("L_end")
    a("s_endpgm")
    for typ in ("K", "V"):
        for nm, ok, ldi, red, reg in (("zwait", "zok", f"buffer_load_dword v{vPOLL}, v{vL4}, {sr(sDBG,4)}, 0 offen sc1", "", vPOLL),
                ("prepwait", "prepok", f"buffer_load_dwordx4 {vr(PV,4)}, v{vL16}, {WS}, s{gIT} offen sc1",
                 f"v_and_b32 v{PV}, v{PV}, v{PV+1}\nv_and_b32 v{PV+2}, v{PV+2}, v{PV+3}\nv_and_b32 v{PV}, v{PV}, v{PV+2}", PV)):
            a.label(f"L_{nm}{typ}")
            a(f"s_mov_b32 s{sT+4}, 0")
            a.label(f"L_{nm}2{typ}")
            a(f"""
            s_sleep 4
            {ldi}
            s_add_u32 s{sT+4}, s{sT+4}, 1
            s_waitcnt vmcnt(0)
            {red}
            v_cmp_ne_u32 vcc, s{sT+1}, v{reg}
            s_cmp_ge_u32 s{sT+4}, 0x10000
            s_cbranch_scc1 L_{ok}{typ}
            s_nop 2
            s_cbranch_vccnz L_{nm}2{typ}
            s_branch L_{ok}{typ}
            """)
    for (tag, voff, soff, lane0) in POLLS:
        a.label(f"L_pw_{tag}")
        a(f"s_mov_b32 s{sT+1}, 0")
        a.label(f"L_pw2_{tag}")
        a(f"""
        buffer_load_dword v{vPOLL}, v{voff}, {WS}, s{soff} offen sc1
        s_add_u32 s{sT+1}, s{sT+1}, 1
        s_waitcnt vmcnt(0)
        v_cmp_ne_u32 s[{sT+4}:{sT+5}], 1, v{vPOLL}
        s_cmp_ge_u32 s{sT+1}, 0x10000
        s_cbranch_scc1 L_po_{tag}
        s_sleep {OPT['psleep']}
        """)
        if lane0 is True: a(f"s_bitcmp1_b32 s{sT+4}, 0")
        else: a(f"s_cmp_lg_u64 s[{sT+4}:{sT+5}], 0")
        a(f"s_cbranch_scc1 L_pw2_{tag}")
        a(f"s_branch L_po_{tag}")
    a.label("L_b0")
    Chain(q_rest).flush(a)
    a(f"s_mov_b32 s{sPT}, {OOB}")
    a(f"s_mov_b32 s{sFQ}, {OOB}")
    a("s_branch L_seg2")
    a.label("L_stubs")
    a("s_nop 0")
    for (lab, sub, back) in STUBS:
        a.label(lab)
        a(f"s_call_b64 s[{sRET}:{sRET+1}], {sub}")
        a(f"s_branch {back}")
    for b in range(2):
        a.label(f"L_mask{b}")
        a("s_nop 7")
        a(f"s_cmp_eq_u32 s{sN}, s{sND}")
        a(f"s_cbranch_scc0 L_maskall{b}")
        for r in range(4):
            a(f"v_cndmask_b32 v{S(b,0,0)+r}, v{S(b,0,0)+r}, v{vBIG}, s[{sMASK+2*r}:{sMASK+2*r+1}]")
            a(f"v_cndmask_b32 v{S(b,1,1)+r}, v{S(b,1,1)+r}, v{vBIG}, s[{sMASK+2*r}:{sMASK+2*r+1}]")
            a(f"v_mov_b32 v{S(b,1,0)+r}, v{vBIG}")
        a(f"s_setpc_b64 s[{sRET}:{sRET+1}]")
        a.label(f"L_maskall{b}")
        for i in range(16): a(f"v_mov_b32 v{S(b,0,0)+i}, v{vBIG}")
        a(f"s_setpc_b64 s[{sRET}:{sRET+1}]")
    a.label("L_fchk")
    hi, lo = f2u(2.0**OPT["thr"]), f2u(2.0**-OPT["thr"])
    a(f"s_add_u32 s{sT+1}, s{sND}, 1")
    a(f"s_cmp_gt_u32 s{sN}, s{sT+1}")
    a("s_cbranch_scc1 L_fret")
    for qt in range(2):
        a(f"v_mov_b32 v{vT+8+qt}, v{vSUM[qt][0]}")
        xlane(a, "v_add_f32", vT+8+qt, vT)
        a(f"v_subrev_u32 v{vT+8+qt}, {lo:#x}, v{vT+8+qt}")
    a(f"v_max_u32 v{vT+8}, v{vT+8}, v{vT+9}")
    a(f"v_cmp_lt_u32 vcc, {hi-lo:#x}, v{vT+8}")
    a("s_nop 4")
    a("s_cbranch_vccnz L_rare0")
    a.label("L_fret")
    a(f"s_setpc_b64 s[{sRET}:{sRET+1}]")
    for b in range(2):
        a.label(f"L_rare{b}")
        a("s_nop 7")
        D = [vT+8, vT+9]; F = [vT+10, vT+11]
        for qt in range(2):
            r0, r1 = S(b,0,qt), S(b,1,qt)
            a(f"v_max3_f32 v{D[qt]}, v{r0}, v{r0+1}, v{r0+2}")
            a(f"v_max3_f32 v{D[qt]}, v{D[qt]}, v{r0+3}, v{r1}")
            a(f"v_max3_f32 v{D[qt]}, v{D[qt]}, v{r1+1}, v{r1+2}")
            a(f"v_max_f32 v{D[qt]}, v{D[qt]}, v{r1+3}")
            xlane(a, "v_max_f32", D[qt], vT)
            a(f"v_max_f32 v{D[qt]}, s{sCLAMP}, v{D[qt]}")
            a(f"v_max_f32 v{F[qt]}, 0, v{D[qt]}")
            a(f"v_exp_f32 v{F[qt]}, -v{F[qt]}")
            for i in range(4): a(f"v_sub_f32 v{NEGM(qt)+i}, v{NEGM(qt)+i}, v{D[qt]}")
            for bb in range(2):
                for kt in range(2):
                    for i in range(4): a(f"v_sub_f32 v{S(bb,kt,qt)+i}, v{S(bb,kt,qt)+i}, v{D[qt]}")
            a(f"v_mul_f32 v{vL[qt]}, v{F[qt]}, v{vL[qt]}")
        for o in sm_ops(b): a(o)
        a(f"s_cmp_eq_u32 s{sFIRST}, 1")
        a(f"s_cbranch_scc1 L_rare_ret{b}")
        for dt in range(16):
            for qt in range(2):
                for i in range(4): a(f"v_mul_f32 v{O(dt,qt)+i}, v{F[qt]}, v{O(dt,qt)+i}")
        a.label(f"L_rare_ret{b}")
        a(f"s_cmp_lg_u32 s{sCNT}, s{sEV}")
        a("s_nop 0")
        a(f"s_setpc_b64 s[{sRET}:{sRET+1}]")
    a.label("L_slowcomb")
    a("s_nop 7")
    wA, wB = [vT+8, vT+9], [vT+10, vT+11]
    for qt in range(2):
        a(f"""
        v_min_f32 v{vT+6}, v{NEGM(qt)}, v{vSTB+qt}
        v_sub_f32 v{wA[qt]}, v{vT+6}, v{NEGM(qt)}
        v_sub_f32 v{wB[qt]}, v{vT+6}, v{vSTB+qt}
        v_exp_f32 v{wA[qt]}, v{wA[qt]}
        v_exp_f32 v{wB[qt]}, v{wB[qt]}
        s_nop 0
        v_mul_f32 v{vL[qt]}, v{wA[qt]}, v{vL[qt]}
        v_mul_f32 v{vSTB+2+qt}, v{wB[qt]}, v{vSTB+2+qt}
        """)
    for dt in range(16):
        for qt in range(2):
            for i in range(4): a(f"v_mul_f32 v{O(dt,qt)+i}, v{wA[qt]}, v{O(dt,qt)+i}")
    for i in range(64):
        qt = (i >> 2) & 1
        a(f"""
        v_accvgpr_read_b32 v{vT}, a{128+i}
        v_lshlrev_b32 v{vT+1}, 16, v{vT}
        v_and_b32 v{vT}, 0xffff0000, v{vT}
        v_mul_f32 v{vT+1}, v{wB[qt]}, v{vT+1}
        v_mul_f32 v{vT}, v{wB[qt]}, v{vT}
        v_cvt_pk_bf16_f32 v{vT}, v{vT+1}, v{vT}
        v_accvgpr_write_b32 a{128+i}, v{vT}
        """)
    a("s_nop 1")
    a("s_branch L_comb")
    a.label("L_codeend")
    lines = []
    for l in a.lines: lines += l.split("\n")
    ghost = [l.startswith("@ghost ") for l in lines]
    lines = [l[7:] if g else l for l, g in zip(lines, ghost)]
    lines = resolve_vm(lines)
    lines = [l.replace("@@buffer", "buffer") for l, g in zip(lines, ghost) if not g]
    errs = check_hazards(lines) + check_scc(lines)
    for e in errs[:30]: print("HAZARD", e, file=sys.stderr)
    lines = [re.sub(r"\s*; @.*", "", l) for l in lines]
    lines = [l.strip() for l in lines if l.strip()]
    i, j = lines.index("L_gemmV:"), lines.index("L_P1A:")
    k = lines.index("L_zwaitV:"); k2 = lines.index("s_branch L_prepokV") + 1
    assert lines[i-1] == "s_branch L_P1A"
    lines = [".p2align 12"] + lines[i:j] + lines[k:k2] + lines[:i-1] + lines[j:k] + lines[k2:]
    if OPT["tch"]:
        tmp = [re.sub(r"LT_(\w+)_\d", r"LR_\1", l) for l in lines]
        tmp, F = insert_stubs(tmp, [("L_gemmV", "L_zwaitV"), ("L_gK", "L_P1A"), ("L_P1A", "L_P1B"), ("L_P1B", "L_steady0"), ("L_steady0", "L_u2"), ("L_end0", "L_lpack"),
                                    ("L_lpack", "L_post2b"), ("L_post2b", "L_end")], OPT["tlab"])
        g = lambda *k: [p for x in k for p in F.get(x, [])]
        pa = g("L_P1A", "L_steady0", "L_end0", "L_post2b"); pb = g("L_P1B", "L_steady0", "L_domask_s10", "L_mask0") + g("L_end0")[:1] + g("L_lpack", "L_post2b")
        pos = {l.split()[-1]: n for n, l in enumerate(tmp)}
        it_ = iter(lines); lines = [l if l.startswith("@") else next(it_) for l in tmp]
        done_ = {}; tgt = {}
        for nm, path in SITES:
            q = dict(K=g("L_gK"), V=g("L_gemmV"), a=pa, b=pb, A=pa, B=pb)[path[0]]
            d = done_.setdefault(path, set(done_.get(path.lower() + "K", ())))
            c = [p for p in q if p not in d and pos[p] > pos[f"LR_{nm}:"]][:4]
            d |= set(c); c += c[-1:]*3
            for w in range(4): tgt[f"LT_{nm}_{w}"] = "L" + c[w]
        print("stubs", F, "\nuntouched A", [p for p in pa if p not in done_["A"]], "B", [p for p in pb if p not in done_["B"]], file=sys.stderr)
        o = []
        for l in lines:
            if l == "@pad": o.append("s_nop 0")
            elif l.startswith("@"):
                p = l.split()[1]; r_ = [f"L{p}:", f"s_setpc_b64 s[{sRET}:{sRET+1}]"]
                if "L" + p not in tgt.values(): o += ["s_nop 0"]*(2 if "stub" in l else 1)
                else: o += [f"s_branch LO{p}"] + r_ + [f"LO{p}:"] if "stub" in l else r_
            else: o.append(re.sub(r"LT_\w+_\d", lambda m: tgt[m.group(0)], l))
        lines = o
    lines = compact(lines)
    return "\n".join(lines) + "\n", kernel_desc(name, 512, 256)

if __name__ == "__main__":
    import ast
    for x in sys.argv[2:]:
        k, v = x.split("=")
        OPT[k] = ast.literal_eval(v)
    NAME = "recurrent_scan__compressed_kv_cla__dense_activation_squared_relu__prompt_kernel"
    body, desc = gen(NAME)
    ref = open("recurrent_scan__compressed_kv_cla__dense_activation_squared_relu__prompt.s.ref").read().split("\n")
    hdr = [l for l in ref if l.startswith(";") and "launch" not in l and "grid=" not in l]
    hdr += ["; @launch grid=(256,1,1) block=(256,1,1) lds=163840", '.amdgcn_target "amdgcn-amd-amdhsa--gfx950"', ".text"]
    txt = "\n".join(hdr) + "\n" + body + '.section .rodata,"a"\n.p2align 6\n' + desc
    open(sys.argv[1], "w").write(txt)
    print(len(txt), "bytes", file=sys.stderr)
```

```python
import re, struct
from asmlib import *
MF = "v_mfma_f32_16x16x32_bf16"
def f2u(x): return struct.unpack("<I", struct.pack("<f", x))[0]

def cls(ins):
    if ins.endswith(":"): return "L"
    if ins.startswith("s_"): return "S"
    if ins.startswith("ds_"): return "M"
    if ins.startswith("buffer_"): return "D"
    if ins.startswith(("v_exp", "v_rcp", "v_log", "v_rsq", "v_sqrt", "v_readlane", "v_readfirstlane")): return "E"
    return "V"
COST = {"S": 0, "L": 0, "M": 1, "V": 1, "E": 2, "D": 2}

class Stage:
    def __init__(self, mf=None):
        self.mf = mf or []
        self.fill = {}
        self.post = {}
        self.ops = []
        self.scc_busy = set()
        self.tail = []
    def put(self, g, ins):
        self.fill.setdefault(g, []).append(ins)
    def put_post(self, g, ins):
        self.post.setdefault(g, []).append(ins)
    def free(self, g):
        n = 2; ns = 0; nd = 0
        for i in self.fill.get(g, []) + self.post.get(g, []):
            c = cls(i)
            if c == "S": ns += 1
            elif c == "D": nd += 1; n -= 2
            else: n -= COST[c]
        if nd: n -= ns
        else: n -= max(0, ns - 1)
        return n
    def nS(self, g):
        return sum(1 for i in self.fill.get(g, []) + self.post.get(g, []) if cls(i) == "S")
    def hasD(self, g):
        return any(cls(i) == "D" for i in self.fill.get(g, []) + self.post.get(g, []))
    def add(self, ins, deps=(), early=0, late=None, dist=None):
        self.ops.append((ins, [d for d in deps if d is not None], early, late, dist)); return len(self.ops)-1
    def schedule(self, g_end=None, maxover=6, allow_tail=True):
        n = len(self.mf)
        g_end = n-1 if g_end is None else g_end
        ops = self.ops
        for over in range(0, maxover+1):
            placed = {}; used = {}
            for g in range(0, g_end+1):
                fr = self.free(g)
                cap = fr + (over if fr >= 0 and not self.hasD(g) else 0)
                ns = self.nS(g); hasd = self.hasD(g)
                while True:
                    cand = []
                    for i, (ins, deps, early, late, dist) in enumerate(ops):
                        if i in placed or g < early: continue
                        ok = True
                        for d in deps:
                            if d not in placed: ok = False; break
                            if dist is not None:
                                if g - placed[d] < dist: ok = False; break
                            elif placed[d] == g:
                                cd, ci = cls(ops[d][0]), cls(ins)
                                if not ((cd == "V" and ci in "VE") or (cd == "S" and ci != "D") or (cd == "M" and ci in "MVE")):
                                    ok = False; break
                        if ok: cand.append(i)
                    cand.sort(key=lambda i: (ops[i][3] if ops[i][3] is not None else 999, 0 if cls(ops[i][0]) in "ED" else 1, i))
                    got = None
                    for i in cand:
                        c = cls(ops[i][0])
                        must = ops[i][3] is not None
                        mycap = cap if must or not allow_tail else min(cap, fr)
                        if c == "S":
                            if hasd or g in self.scc_busy: continue
                            cost = 0 if ns == 0 else 1
                        elif c == "D":
                            if hasd or (fr < 2 or ns or used.get(g)) and not (must and over >= 2 and mycap >= 2): continue
                            cost = 2
                        else:
                            if hasd: continue
                            cost = COST[c]
                        if cost <= mycap:
                            got = i; break
                    if got is None: break
                    c = cls(ops[got][0])
                    placed[got] = g; cap -= cost; fr -= cost; used.setdefault(g, []).append(got)
                    if c == "S": ns += 1
                    if c == "D": hasd = True
            bad = [i for i, o in enumerate(ops) if (o[3] is not None and placed.get(i, 10**6) > o[3]) or (not allow_tail and i not in placed)]
            if not bad: break
        assert not bad, [ops[i] for i in bad[:5]]
        self.over = over
        for g in sorted(used):
            for i in used[g]: self.put(g, ops[i][0])
        self.tail += [o[0] for i, o in enumerate(ops) if i not in placed]
        self.ops = []
    def emit(self, a, tailpad=None):
        order = {"S": 0, "L": 0, "M": 1, "D": 1, "V": 2, "E": 2}
        f = {}
        for g in set(self.fill) | set(self.post):
            f[g] = sorted(self.fill.get(g, []), key=lambda i: order[cls(i)]) + self.post.get(g, [])
        for l in interleave(self.mf, f): a(l)
        if self.tail and tailpad: a(tailpad)
        for l in self.tail: a(l)

def resolve_vm(lines):
    out = list(lines)
    for i, l in enumerate(lines):
        m = re.search(r"vmcnt\(@(dma|since|mrg):(\w+)\)", l)
        if not m: continue
        kind, arg = m.groups()
        cnt = 0; nd = 0; val = None
        for j in range(i-1, -1, -1):
            s = lines[j].strip()
            if "@merge" in s:
                assert kind in ("dma", "mrg"), ("tag not found before merge", l)
                val = cnt + (int(arg) - nd); break
            if s.startswith("buffer_"):
                isd = " lds" in s
                if kind == "dma":
                    if isd:
                        if nd == int(arg): val = cnt; break
                        nd += 1
                elif kind == "since":
                    if ("@" + arg) in s.split(): val = cnt; break
                cnt += 1
        assert val is not None, l
        out[i] = l.replace(m.group(0), f"vmcnt({min(val, 63)})")
    return out

def regs_of(tok):
    tok = tok.strip().lstrip("-").strip("|")
    m = re.fullmatch(r"([vas])\[(\d+):(\d+)\]", tok)
    if m: return {(m.group(1), r) for r in range(int(m.group(2)), int(m.group(3))+1)}
    m = re.fullmatch(r"([vas])(\d+)", tok)
    if m: return {(m.group(1), int(m.group(2)))}
    if tok in ("vcc", "m0", "exec"): return {(tok, 0)}
    return set()
def parse(ins):
    ins = ins.split(";")[0].strip()
    op, _, rest = ins.partition(" ")
    toks = [t.strip() for t in rest.split(",")] if rest else []
    if toks: toks[-1:] = toks[-1].split()
    return op, toks
def check_hazards(lines, margin=1):
    t = 0; lastmf = -100
    mfD = {}; mfC = {}; vw = {}; tw = {}; vsw = {}; m0w = -100; stw = {}; dlw = {}
    errs = []
    for ln, raw in enumerate(lines):
        s = raw.split(";")[0].strip()
        if not s or s.endswith(":") or s.startswith("."): continue
        op, toks = parse(s)
        if op == "s_nop":
            t += int(toks[0]) + 1; continue
        if op in ("s_branch", "s_setpc_b64", "s_endpgm"):
            t += 100; continue
        def need(tab, regs, n, what):
            for r in regs:
                if r in tab and t - tab[r] - 1 < n:
                    errs.append((ln, what, raw.strip(), r, t - tab[r] - 1)); return
        R = [regs_of(x) for x in toks]
        if op.startswith("v_mfma"):
            t = max(t, lastmf + 4); lastmf = t
            D, A, B, C = R[0], R[1], R[2], R[3]
            need(vw, A | B | C, 2, "valu->mfma")
            need(dlw, A | B | C, 3, "dot->mfma")
            need(mfD, A | B, 8 + margin, "mfmaD->AB")
            if C != D or True:
                for r in C:
                    if r in mfD and mfD[r][1] != frozenset(C) if False else False: pass
            for r in D: mfD[r] = t
            for r in C: mfC[r] = t
        elif op.startswith("v_"):
            if op.startswith("v_cmp"):
                dst = R[0]; src = set().union(*R[1:]); vd = set()
            elif op.startswith(("v_readlane", "v_readfirstlane")):
                dst = R[0]; src = set().union(*R[1:]); vd = set()
                need(vw, R[1], 1, "valu->readlane")
                if len(R) > 2: need(vsw, R[2], 4, "vsgpr->lanesel")
            else:
                dst = set(); vd = set(R[0]); src = set().union(*R[1:]) if len(R) > 1 else set()
                if op.startswith("v_permlane"): vd |= R[1]; src |= R[0]; need(vw, src, 2, "valu->permlane")
                if op.startswith(("v_fmac", "v_dot2c")): src |= R[0]
                if op.startswith("v_cndmask") and len(toks) == 3: src |= {("vcc", 0)}
                if "dpp" in op: need(vw, src, 2, "valu->dpp")
            need(mfD, src | vd, 8 + margin, "mfmaD->valu")
            need(mfC, vd, 3, "mfmaC->valuW")
            need(tw, src, 1, "trans->valu")
            need(vsw, {r for r in src if r[0] in ("s", "vcc")}, 2, "vsgpr->valu")
            need(stw, vd, 2, "store->valuW")
            if not op.startswith("v_dot"): need(dlw, src | vd, 3, "dot->other")
            for r in vd:
                vw[r] = t
                if cls(op) == "E": tw[r] = t
                if op.startswith("v_dot"): dlw[r] = t
            for r in dst: vsw[r] = t
        elif op.startswith(("buffer_", "ds_")):
            allr = set().union(*R) if R else set()
            need(mfD, allr, 8 + margin, "mfmaD->mem")
            need(vsw, {r for r in allr if r[0] == "s"}, 5, "vsgpr->vmem")
            need(dlw, allr, 3, "dot->mem")
            if "lds" in toks and t - m0w - 1 < 1: errs.append((ln, "m0->dma", raw.strip()))
            if op.startswith("buffer_store") and ("x4" in op or "x3" in op):
                for r in R[0]: stw[r] = t
            elif op.startswith(("buffer_load", "ds_read")) and "lds" not in toks:
                need(stw, R[0], 1, "store->loadW")
        elif op.startswith("s_"):
            if toks and toks[0] == "m0": m0w = t
        t += 1
    return errs

def check_scc(lines):
    errs = []; last = None
    nowr = ("s_mov", "s_mul_i32", "s_waitcnt", "s_nop", "s_barrier", "s_cbranch", "s_branch", "s_cselect", "s_load", "s_memrealtime", "s_memtime", "s_sleep", "s_call", "s_setpc", "s_endpgm", "s_setprio", "s_movk")
    for ln, raw in enumerate(lines):
        s = raw.split(";")[0].strip()
        if not s.startswith("s_"): continue
        op = s.split()[0]
        if op.startswith(("s_cbranch_scc", "s_cselect", "s_addc", "s_subb")):
            ok = last and (last.startswith(("s_cmp", "s_bitcmp", "s_or_b64", "s_and_b32", "s_or_b32")) or (op.startswith("s_subb") and last.startswith("s_sub_u32")) or (op.startswith("s_addc") and last.startswith("s_add_u32")))
            if not ok: errs.append((ln, "scc", s, last))
        if not op.startswith(nowr): last = op
    return errs

def compact(lines):
    macros = {}; out = []
    R = r"([va])\[(\d+):\d+\]"
    for l in lines:
        m = re.fullmatch(MF + rf" {R}, {R}, {R}, (0|{R})", l)
        if m:
            dt, d, at, a_, bt, b, c, ct, cn = m.groups()
            if c == "0": nm, args, cs = f"Z{dt}{at}{bt}", (d, a_, b), "0"
            elif (ct, cn) == (dt, d): nm, args, cs = f"M{dt}{at}{bt}", (d, a_, b), f"{dt}[\\d:\\d+3]"
            else: nm, args, cs = f"N{dt}{at}{bt}", (d, a_, b, cn), f"{ct}[\\c:\\c+3]"
            macros[nm] = f".macro {nm} d, a, b{', c' if len(args) == 4 else ''}\n{MF} {dt}[\\d:\\d+3], {at}[\\a:\\a+3], {bt}[\\b:\\b+3], {cs}\n.endm"
            out.append(f"{nm} {','.join(args)}"); continue
        m = re.fullmatch(r"ds_read_b128 a\[(\d+):\d+\], v(\d+) offset:(\d+)", l)
        if m:
            macros["RD"] = ".macro RD d, v, o\nds_read_b128 a[\\d:\\d+3], v\\v offset:\\o\n.endm"
            out.append("RD " + ",".join(m.groups())); continue
        m = re.fullmatch(r"ds_read_b64_tr_b16 a\[(\d+):\d+\], v(\d+) offset:(\d+)", l)
        if m:
            macros["RT"] = ".macro RT d, v, o\nds_read_b64_tr_b16 a[\\d:\\d+1], v\\v offset:\\o\n.endm"
            out.append("RT " + ",".join(m.groups())); continue
        out.append(l)
    return list(macros.values()) + out

import subprocess, os
def line_sizes(lines):
    isins = [not (l.endswith(":") or l.startswith(".") or l.startswith("@")) for l in lines]
    src = '.amdgcn_target "amdgcn-amd-amdhsa--gfx950"\n.text\n' + "\n".join(l for l in lines if not l.startswith((".p2align", "@"))) + "\ns_endpgm\n"
    open("sz.s", "w").write(src)
    r = subprocess.run(["clang", "-x", "assembler", "-target", "amdgcn-amd-amdhsa", "-mcpu=gfx950", "-c", "sz.s", "-o", "sz.o"], capture_output=True, text=True)
    assert r.returncode == 0, r.stderr[:2000]
    d = subprocess.run(["llvm-objdump", "-d", "sz.o"], capture_output=True, text=True).stdout
    ad = [int(m.group(1), 16) for m in re.finditer(r"// ([0-9A-F]{12}):", d)]
    assert len(ad) == sum(isins) + 1, (len(ad), sum(isins))
    out = []; k = 0
    for f in isins:
        if f: out.append(ad[k+1] - ad[k]); k += 1
        else: out.append(None)
    return out
ADR = {}
def insert_stubs(lines, ranges, labels, nox={}):
    sz = line_sizes(lines)
    nox = {k: 16 + sum(x or 0 for x in sz[lines.index(k + ":"):lines.index(v + ":")]) for k, v in nox.items()}
    out = []; adr = 0; cur = None; found = {}; page = 0; n = 0; lastl = -1; prev = "s_branch"
    starts = {a: (a, b) for a, b in ranges}
    for l, s in zip(lines, sz):
        if l.startswith(".p2align"):
            al = 1 << int(l.split()[1]); adr = (adr + al - 1)//al*al
        if l.endswith(":"):
            if cur and l[:-1] == cur[1]: cur = None
            if l[:-1] in starts: cur = starts[l[:-1]]
            if l[:-1] in nox and (adr + nox[l[:-1]]) >> 12 != adr >> 12:
                out.append("@align"); adr = (adr + 4095) >> 12 << 12; page = adr >> 12
            if l[:-1] in labels:
                dead = prev.startswith(("s_branch", "s_setpc", "s_endpgm"))
                while (adr + (4 if dead else 8)) % 64 in (0, 60): out.append("@pad"); adr += 4
                out.append(f"@{'ret' if dead else 'stub'} P{n}"); found.setdefault(cur[0] if cur else l[:-1], []).append(f"P{n}"); ADR[f"P{n}"] = adr; n += 1
                adr += 4 if dead else 8; lastl = adr
        if s is not None and adr >> 12 != page:
            page = adr >> 12
            if cur and lastl >> 6 != adr >> 6:
                out.append(f"@stub P{n}"); found.setdefault(cur[0], []).append(f"P{n}"); ADR[f"P{n}"] = adr; n += 1; adr += 8
        out.append(l)
        if s: adr += s; prev = l
    return out, found
```

```python
import sys
from fw import *
from layout2 import *

OPT = dict(nox={"L_steady0": "L_exit0", "L_steady1": "L_exit1", "L_post2b": "L_end"}, gev=[0, 0, 0, 0, 0, 0, 0, 3, 2, 3, 4, 5, 6, 7, 2, 3], gin=16, glate=1, dbgg=0, pfg=57, ptg=[3, 9, 17, 25, 33, 41, 49, 57], pte=10, qa=298, qe=36, qcap=7, qfd=72, kz=1, im=1, prog=0, cap8=36, fpos=3, dbgf=0, hold=0, zid=80, kva0=0, es=[(0, 25), (1, 33), (8, 41), (9, 49), (16, 57), (17, 61), (24, 89), (25, 97), (2, 105), (4, 113), (3, 121), (5, 125)], chg=2, tch=1, tg=[1, 2], tgs=[3], ta=[0, 1, 2], tb=[6, 7, 8], tlab=["L_P1A", "L_P1B", "L_steady0", "L_end0", "L_lpack", "L_steady1", "L_post2b", "L_domask_s10"], cpf2=0, park=[0, 1, 2, 3, 4, 5], pst_n=3, swap=1, n0=[36, 32], enc0=0, enck=10, encw=[0, 0], enc=-1, ntA="", ntB="", ntS=" nt", chq=1, chp=1, cyc=0, npro=6, gcap=[4, 4, 3], dg2=8, xpos=3, rotm=4, rot=4, sync=[6, 10, 12, 15, 20, 22], xstep=20, wbl2=0, pfk=0, pfd=4, pfo=[0], pfn=2, smin=0, voff=0, dbgside=0, tlb=0, tlbm=0, tlbs=16, flit=9, npeel=7, slt=[100, 260, 880], slstep=16, sld=140, map2=False, kvb0=256, kvstepb=16, psleep=4, prep=1, pst=False, cpf=True, fine=False, touch=False, sc1ld=" sc1", stamps=False, early=[5, 13, 21, 29], late=[37, 45, 53, 61], cap=7, capb=8, capq=9, capn=12, kvstep=12, a15=[2, 2], fsleep=2, fdelay=96, qstep=7, wideloop=False, thr=40, kvsc=" sc1", sidesc=" sc1")

vLANE, vDMA, vTE, vTO, vL16, vRD, vPOLL, vFLG, vONE, vL4, vKV = range(1, 12)
DA = [12, 13, 14, 15]; DB = [16, 17, 18, 19]; RA = [20, 21]; RB = [22, 23, 24, 25]
vSW, vSF, vSX, vG1 = 26, 27, 28, 29
GT = 30
vT = 12
BP = [0, 2, 3, 1]
BIAS = 12
O0 = 128
def O(dt, qt): return O0 + (dt*2+qt)*4
def S(b, kt, qt): return 64 + b*16 + (kt*2+qt)*4
def P(b, qt): return 96 + b*8 + qt*4
def NEGM(qt): return 112 + qt*4
vL = [120, 121]
vSUM = [[122, 123], [124, 125]]
vBIG = 126
vRK = 60
vS, vS2, vPV = 61, 62, 63
GL = 192
vSTAT = 44
vSEL = 48
vRINV = [54, 55]
vSTB = 56
def accreg(pos): return vr(48+4*pos, 4) if pos < 52 else ar(208+4*(pos-52), 4)
NE = 6
def ENL(): return [c for c in range(32) if c not in dict(OPT["es"])]
def PK(c):
    if OPT["es"]:
        k = ENL().index(c) if c in ENL() else 20 + [x[0] for x in OPT["es"]].index(c)
        return 48+4*k
    return 48+4*c if c < 20 else (48+4*(c-20) if c < 20+NE else 48+4*(20+c))
def Q(qb, qt, u): return qb + (qt*8+u)*4
def FR(f): return 64 + (f % 16)*4
def X(qt, u): return 128 + (u*2+qt)*4
def FA(b, m): return (64 if b == 0 else 0) + m*4
def FB(b, n): return (64 if b == 0 else 0) + 32 + n*4
def CA(m, kk): return (96 + m*8 + kk*4) % 128
def CB(n, kk): return (64 if n < 4 else 32) + (n & 3)*8 + kk*4
def QU(u): return ((u >> 1) & 1)*4 + (u >> 2)*2 + (u & 1) if OPT["chg"] == 2 else u
WOL = 192
SLD = 128

sWS, sSA, sSB, sG, sDBG = 4, 8, 12, 16, 20
_n = [24]
def sal(n=1, al=1):
    _n[0] = (_n[0] + al - 1)//al*al
    r = _n[0]; _n[0] += n; return r
sWAVE, sHEAD, sJ, sQI, sWHICH = [sal() for _ in range(5)]
gA0, gA1, gB0, gB1, gMA, gMB, gIT, gD, gCNT, gFL = [sal() for _ in range(10)]
sTAU, sM0, sOFFA, sOFFB, sRDD, sRDS, sXOFF, sXOF2, sN, sND = gA0, gA1, gB0, gB1, gD, gCNT, sal(), sal(), sal(), sal()
sCNT, sEV, sCLAMP, sFIRST = sal(), sal(), sal(), sal()
sRET = sal(2, 2)
sMASK = sal(8, 4)
sTYPE, sU1, sU2, sW0 = sal(), sal(), sal(), sal()
sKVB, sKVI = sal(), sal()
sQST, sPT, sPSG, sPSS = sal(), sal(), sal(), sal()
sFKV, sFKVP, sFQ, sFSG, sFSS = [sal() for _ in range(5)]
sT = sal(8, 4)
sLN = sal(2, 2)
sFS = sal(2, 2); sW4K = 3
sGC, sPOLL, sEVN = sKVB, sKVI, sFKV
sPF = sRET; sPD = sT+5; sEXP = gFL
sSTAMP = sal(0, 2)
NSTAMP = (102 - sSTAMP)//2
print("sgpr used", sSTAMP, "stamps", NSTAMP, file=sys.stderr)
WS = sr(sWS, 4)

STUBS = []
def ld(): return OPT["sc1ld"]
def FT(): return "s_memtime" if OPT["cyc"] else "s_memrealtime"

XG = [1, 9, 17, 25, 33, 41, 49, 57]
XG4 = list(range(1, 64, 4))
def common_fill(st, dma=True, nd=None, last=False, novm=False, rdl=False, rk=False):
    if nd is None: nd = 16 + len(OPT["early"]) + sum(1 for g in OPT["late"] if g < 38)
    for G in range(8):
        g0 = G*8
        Gn = (G+3) % 8
        for i in range(4):
            f = Gn*4+i
            if not (last and G > 4): st.put(g0+2*i, f"ds_read_b128 {ar(FR(f),4)}, v{vRK if rk and f >= 16 else vRD} offset:{f*1024}")
        if last and G >= 4:
            if G < 7: st.put(g0+6, f"s_waitcnt lgkmcnt({(7, 4, 0)[G-4]})")
        elif G == 4:
            st.put(g0+6, "s_waitcnt lgkmcnt(7)" if novm else f"s_waitcnt vmcnt(@dma:{nd}) lgkmcnt(7)")
            st.put(g0+7, "s_barrier")
            st.put(g0+7, f"v_add_u32 v{vRD}, s{sRDD}, v{vRD}")
        else:
            st.put(g0+6, "s_waitcnt lgkmcnt(7)")
    for i, g in enumerate(OPT["early"] if dma else []):
        st.put(g, f"buffer_load_dwordx4 v{vDMA}, {WS}, s{sOFFB} offen offset:{i*1024}{ld()} lds")
    if dma: st.put(31, f"v_readlane_b32 s{sOFFA}, v{vTO}, s{sTAU}")
    st.put(31, f"s_add_u32 m0, s{sM0}, 16384")
    st.put(34, f"s_add_u32 s{sM0}, s{sM0}, s{sRDD}")
    st.put(36, f"s_cmp_ge_u32 s{sM0}, 131072")
    st.put(38, f"s_cselect_b32 s{sRDD}, s{gMA}, s{gMB}")
    st.put(44, f"s_add_u32 s{sTAU}, s{sTAU}, 1")
    for i, g in enumerate(OPT["late"] if dma else []):
        st.put(g, f"buffer_load_dwordx4 v{vDMA}, {WS}, s{sOFFA} offen offset:{i*1024}{ld()} lds")
    if dma or rdl: st.put(55, f"v_readlane_b32 s{sOFFB}, v{vTE}, s{sTAU}")
    st.put(63, f"s_mov_b32 m0, s{sM0}")
    st.scc_busy |= {36, 37}
    if rk: st.put(-1, f"v_mov_b32 v{vRK}, v{vRD}")
    if OPT["fine"]:
        st.put(4, f"{FT()} s[{sFS}:{sFS+1}]")
        st.put(6, f"v_mov_b32_dpp v{vKV}, v{vKV} wave_shr:1 row_mask:0xf bank_mask:0xf")
        st.put(62, f"v_writelane_b32 v{vKV}, s{sFS}, 0")

class Jobs:
    def __init__(self): self.jobs = []; self.at = {}
    def add(self, key, pre, ins, early, late): self.jobs.append((late, len(self.jobs), early, pre, ins, key))
    def place(self, st, s, cap=6, grid=None):
        slots = [g for g in (grid or XG) if not st.hasD(g) and st.free(g) == 2 and st.nS(g) == 0]
        n = 0
        avail = len([j for j in self.jobs if j[2] <= s*64+63])
        k = min(cap, avail, len(slots))
        use = [slots[(i*len(slots))//k] for i in range(k)] if k else []
        for g in slots:
            t = s*64+g
            c = sorted(j for j in self.jobs if j[2] <= t)
            if not c: continue
            j = c[0]
            nxt = [x for x in slots if x > g]
            urgent = j[0] < (s*64+nxt[0] if nxt else (s+1)*64+1)
            if not (urgent or (n < cap and (g in use or len(nxt) < k-n))): continue
            assert t <= j[0] + (24 if j[5][0] == "x" else 0) or j[5] in ("qs", "kvf", "qf") or (j[5] == "kv" and (j[2] >= 64 or j[0] > j[2])), ("job late", j, t)
            if j[3]:
                assert g-1 not in st.scc_busy
                st.put(g-1, j[3])
            st.put(g, j[4]); self.jobs.remove(j); self.at[j[5]] = t; n += 1

def mf_pv(half, pb, czero=False):
    return [f"{MF} {vr(O(dt,qt),4)}, {ar(FR(half*16+dt),4)}, {vr(P(pb,qt),4)}, {'0' if czero else vr(O(dt,qt),4)}"
            for dt in range(16) for qt in range(2)]
def mf_qk(half, sb, qb, czero=False):
    out = []
    for kt in range(2):
        seq = [(u, qt) for u in range(8) for qt in range(2)]
        if OPT["chq"]: seq = [(g*4+u, qt) for g in range(2) for qt in ((0, 1), (1, 0))[g] for u in range(4)]
        for u, qt in seq:
            c = ('0' if czero else vr(NEGM(qt),4)) if u == 0 else vr(S(sb,kt,qt),4)
            out.append(f"{MF} {vr(S(sb,kt,qt),4)}, {ar(FR(half*16+kt*8+u),4)}, {ar(Q(qb,qt,QU(u)),4)}, {c}")
    return out
def mf_proj(s, init=None):
    out = []
    for nt in range(16):
        seq = [(0, 0, 1), (1, 0, 0), (1, 1, 1), (0, 1, 0)] if OPT["chp"] else [(0, 0, 1), (0, 1, 1), (1, 0, 0), (1, 1, 0)]
        for uu, qt, first in seq:
            c = vr(O(nt,qt),4)
            if first and init == "zero": c = "0"
            if first and init == "bias": c = vr(O(nt,1),4)
            out.append(f"{MF} {vr(O(nt,qt),4)}, {ar(FR(2*nt+uu),4)}, {ar(X(qt,2*s+uu),4)}, {c}")
    return out
def PA(b, nt, qt): return 64 + (nt*2+qt)*4 if b == 0 else O(2*nt+1, qt)
def mf_post(s):
    out = []
    for f in range(32):
        u, nt = f >> 2, f & 3
        for qt in range(2):
            d = vr(PA(s & 1, nt, qt), 4)
            out.append(f"{MF} {d}, {ar(FR(f),4)}, {vr(O(2*u,qt),4)}, {'0' if u == 0 else d}")
    return out

def sm_ops(b):
    ops = []
    seq = [(kt, qt, rp) for kt in range(2) for qt in range(2) for rp in range(2)]
    pend = []
    for i, (kt, qt, rp) in enumerate(seq):
        t0 = vT + (i % 4)*2
        s0 = S(b,kt,qt) + rp*2
        ops.append(f"v_exp_f32 v{t0}, v{s0}")
        ops += pend[:1]
        ops.append(f"v_exp_f32 v{t0+1}, v{s0+1}")
        ops += pend[1:]
        acc = vSUM[qt][rp]
        if kt == 0: pend = [f"v_add_f32 v{acc}, v{t0}, v{t0+1}"]
        else: pend = [f"v_add_f32 v{acc}, v{acc}, v{t0}", f"v_add_f32 v{acc}, v{acc}, v{t0+1}"]
        pend.append(f"v_cvt_pk_bf16_f32 v{P(b,qt)+kt*2+rp}, v{t0}, v{t0+1}")
    ops.append("s_nop 0")
    ops += pend
    ops += [f"v_add_f32 v{vSUM[0][0]}, v{vSUM[0][0]}, v{vSUM[0][1]}", f"v_add_f32 v{vSUM[1][0]}, v{vSUM[1][0]}, v{vSUM[1][1]}"]
    return ops

def place_sm(st, b, g0, g_end, tag, ladd=True, first=False, mask=True):
    if mask:
        st.put(g0-1, f"s_cmp_ge_u32 s{sN}, s{sND}")
        st.put(g0, f"s_cbranch_scc1 L_domask_{tag}")
        st.put(g0, f"L_nomask_{tag}:")
        STUBS.append((f"L_domask_{tag}", f"L_mask{b}", f"L_nomask_{tag}"))
        st.put(g0+2 if g0 == 0 else 42, f"s_add_u32 s{sN}, s{sN}, 1")
        st.scc_busy |= {g0-1}
    def add(ins, deps=(), early=0): return st.add(ins, deps, max(early, g0), g_end)
    la = [add(f"v_add_f32 v{vL[q]}, v{vL[q]}, v{vSUM[q][0]}") for q in range(2)] if ladd else []
    seq = [(kt, qt, rp) for kt in range(2) for qt in range(2) for rp in range(2)]
    users = {}; lastacc = {}; NT = 6
    for i, (kt, qt, rp) in enumerate(seq):
        t0 = vT + (i % NT)*2
        s0 = S(b,kt,qt) + rp*2
        war = users.get(i - NT, [])
        e = g0 + (1 if kt == 0 else 3)
        e0 = add(f"v_exp_f32 v{t0}, v{s0}", war, e)
        e1 = add(f"v_exp_f32 v{t0+1}, v{s0+1}", war, e)
        acc = vSUM[qt][rp]
        if kt == 0:
            a0 = add(f"v_add_f32 v{acc}, v{t0}, v{t0+1}", [e0, e1] + la)
            u = [a0]; lastacc[(qt,rp)] = a0
        else:
            a0 = add(f"v_add_f32 v{acc}, v{acc}, v{t0}", [e0, lastacc[(qt,rp)]])
            a1 = add(f"v_add_f32 v{acc}, v{acc}, v{t0+1}", [e1, a0])
            u = [a0, a1]; lastacc[(qt,rp)] = a1
        c = st.add(f"v_cvt_pk_bf16_f32 v{P(b,qt)+kt*2+rp}, v{t0}, v{t0+1}", [e0, e1], g0, g_end-1)
        users[i] = u + [c]
    f0 = add(f"v_add_f32 v{vSUM[0][0]}, v{vSUM[0][0]}, v{vSUM[0][1]}", [lastacc[(0,0)], lastacc[(0,1)]])
    f1 = add(f"v_add_f32 v{vSUM[1][0]}, v{vSUM[1][0]}, v{vSUM[1][1]}", [lastacc[(1,0)], lastacc[(1,1)]])
    hi = f2u(2.0**OPT["thr"])
    if not first:
        mx = add(f"v_max_f32 v{vT+14}, v{vSUM[0][0]}, v{vSUM[1][0]}", [f0, f1])
        add(f"v_cmp_nge_f32 vcc, {hi:#x}, v{vT+14}", [mx])
    else:
        lo = f2u(2.0**-OPT["thr"])
        m0 = add(f"v_subrev_u32 v{vT+14}, {lo:#x}, v{vSUM[0][0]}", [f0])
        m1 = add(f"v_subrev_u32 v{vT+15}, {lo:#x}, v{vSUM[1][0]}", [f1])
        mx = add(f"v_max_u32 v{vT+14}, v{vT+14}, v{vT+15}", [m0, m1])
        add(f"v_cmp_lt_u32 vcc, {hi-lo:#x}, v{vT+14}", [mx])

def xlane_ops(op, v, t1):
    return [(f"v_mov_b32 v{t1}, v{v}", 0), (f"v_permlane16_swap_b32 v{v}, v{t1}", 2), (f"{op} v{v}, v{v}, v{t1}", 1),
            (f"v_mov_b32 v{t1}, v{v}", 0), (f"v_permlane32_swap_b32 v{v}, v{t1}", 2), (f"{op} v{v}, v{v}, v{t1}", 1)]
def xlane(a, op, v, t1):
    for ins, d in xlane_ops(op, v, t1):
        if d: a(f"s_nop {d-1}")
        a(ins)

class Chain:
    def __init__(self, items, grid=None): self.items = list(items); self.lastg = -10; self.grid = grid; self.base = 0; self.lastD = -999; self.minD = 0
    def fill(self, st, g0=0, g1=63):
        g = g0; lastg = -10
        while self.items and g <= g1:
            ins, dist = self.items[0][:2]
            early = self.items[0][2] if len(self.items[0]) > 2 else 0
            c = cls(ins)
            ok = g - lastg >= dist and g >= early and not st.hasD(g)
            if ok and g == lastg and not (c in "VE" and cls(self.last) in "VM"): ok = False
            if ok:
                if c == "S": ok = (st.nS(g) == 0 or st.free(g) >= 1) and not (g in st.scc_busy and not ins.startswith(("s_mov", "s_mul", "s_wait", "s_nop")))
                elif c == "D": ok = st.free(g) == 2 and st.nS(g) == 0 and (self.grid is None or g in self.grid) and self.base + g - self.lastD >= self.minD
                else: ok = st.free(g) >= COST[c]
            if ok:
                st.put(g, ins); self.items.pop(0); lastg = g; self.last = ins
                if c == "D": self.lastD = self.base + g
            else:
                g += 1
    def flush(self, a):
        for it in self.items:
            if it[1]: a(f"s_nop {it[1]-1}")
            a(it[0])
        self.items = []

SITES = []
def touch(path):
    nm = f"{path}{len(SITES)}"; SITES.append((nm, path))
    c = lambda w: f"s_call_b64 s[{sRET}:{sRET+1}], LT_{nm}_{w}"
    return (f"s_bitcmp1_b32 s{sWAVE}, 1\ns_cbranch_scc1 LH_{nm}\ns_bitcmp1_b32 s{sWAVE}, 0\ns_cbranch_scc1 LA_{nm}\n{c(0)}\ns_branch LR_{nm}\nLA_{nm}:\n{c(1)}\ns_branch LR_{nm}\n"
            f"LH_{nm}:\ns_bitcmp1_b32 s{sWAVE}, 0\ns_cbranch_scc1 LB_{nm}\n{c(2)}\ns_branch LR_{nm}\nLB_{nm}:\n{c(3)}\nLR_{nm}:")

def gen(name="mega_kernel"):
    a = Asm()
    STUBS.clear(); SITES.clear()
    stamps = OPT["stamps"]
    nst = [0]
    def stamp_ins():
        i = nst[0]; nst[0] += 1
        assert i < NSTAMP
        return f"s_memrealtime s[{sSTAMP+2*i}:{sSTAMP+2*i+1}]"
    def streg(i): return sSTAMP+2*i if i < NSTAMP else sMASK+2*(i-NSTAMP)
    def stamp(i, p=False):
        if OPT["pst"] and 2 <= i <= 6 and not p: return
        if p and not OPT["pst"]: return
        if stamps: a(f"s_memrealtime s[{streg(i)}:{streg(i)+1}]")
    def merge(lbl, align=False):
        if align: a.raw(".p2align 6")
        a.label(lbl); a.comment("@merge")
    strideA, strideB = 2048, 8192
    a.raw(kernel_header(name))
    a("s_cmp_ge_u32 s2, 256")
    a("s_cbranch_scc0 L_go")
    a("s_endpgm")
    a.label("L_go")
    stamp(0)
    sW12, sX = sMASK, sMASK+4
    gHEAD, gMT, gWM, gWN = sCNT, sEV, sCLAMP, sFIRST
    a(f"""
    s_load_dwordx2 s[{sSA}:{sSA+1}], s[0:1], 8
    s_load_dwordx4 s[{sT}:{sT+3}], s[0:1], 24
    s_load_dwordx2 s[{sWS}:{sWS+1}], s[0:1], 104
    s_load_dwordx2 s[{sX}:{sX+1}], s[0:1], 0
    s_load_dwordx2 s[{sDBG}:{sDBG+1}], s[0:1], 96
    s_load_dwordx2 s[{sW12}:{sW12+1}], s[0:1], 56
    s_load_dwordx2 s[{sRET}:{sRET+1}], s[0:1], 72
    s_load_dwordx2 s[{sT+6}:{sT+7}], s[0:1], 16
    v_and_b32 v{vLANE}, 63, v0
    v_lshrrev_b32 v{GT}, 6, v0
    v_lshlrev_b32 v{vL16}, 4, v{vLANE}
    v_readfirstlane_b32 s{sWAVE}, v{GT}
    s_and_b32 s3, s2, 7
    s_lshl_b32 s3, s3, 1
    s_lshr_b32 s{sJ}, s2, 4
    s_bfe_u32 s{sWHICH}, s2, 0x10003
    s_add_u32 s{sHEAD}, s3, s{sWHICH}
    s_and_b32 s{gHEAD}, s{sJ}, 1
    s_add_u32 s{gHEAD}, s{gHEAD}, s3
    s_lshr_b32 s{gWM}, s2, 1
    s_xor_b32 s{gMT}, s2, s{gWM}
    s_bfe_u32 s{gMT}, s{gMT}, 0x10005
    s_lshl_b32 s{gMT}, s{gMT}, 2
    s_lshr_b32 s{gWM}, s2, 6
    s_xor_b32 s{gWM}, s{gWM}, 2
    s_or_b32 s{gMT}, s{gMT}, s{gWM}
    """)
    if OPT["map2"]:
        a(f"""
        s_bfe_u32 s{gHEAD}, s2, 0x10005
        s_add_u32 s{gHEAD}, s{gHEAD}, s3
        s_lshl_b32 s{gMT}, s{sWHICH}, 2
        s_bfe_u32 s{gWM}, s2, 0x10004
        s_or_b32 s{gMT}, s{gMT}, s{gWM}
        s_bfe_u32 s{gWM}, s2, 0x10007
        s_xor_b32 s{gWM}, s{gWM}, 1
        s_lshl_b32 s{gWM}, s{gWM}, 1
        s_or_b32 s{gMT}, s{gMT}, s{gWM}
        s_bfe_u32 s{sWHICH}, s2, 0x10006
        """)
    if OPT["swap"]:
        a(f"""
        s_cmp_lt_u32 s{sJ}, 8
        s_cselect_b32 s{gWM}, {2*OPT["swap"]}, 0
        s_xor_b32 s{sHEAD}, s{sHEAD}, s{gWM}
        """)
    a(f"""
    s_and_b32 s{gWM}, s{sWAVE}, 1
    s_lshr_b32 s{gWN}, s{sWAVE}, 1
    """)
    t2, t3, t4, t5, t6 = GT, GT+1, GT+2, GT+3, GT+4
    a(f"""
    v_lshrrev_b32 v{t2}, 3, v{vLANE}
    s_lshl_b32 s{gA0}, s{gMT}, 8
    s_lshl_b32 s{gA1}, s{sWAVE}, 6
    {f"s_lshl_b32 s{gMA}, s{gWM}, 5" if OPT["chg"] else ""}
    {f"s_sub_u32 s{gA1}, s{gA1}, s{gMA}" if OPT["chg"] else ""}
    s_lshl_b32 s{gMA}, s{gA1}, 7
    s_add_u32 s{gA0}, s{gA0}, s{gA1}
    v_add_u32 v{t2}, s{gA0}, v{t2}
    v_lshlrev_b32 v{t2}, 11, v{t2}
    v_and_b32 v{t3}, 7, v{vLANE}
    v_lshrrev_b32 v{t4}, 4, v{vLANE}
    v_xor_b32 v{t5}, v{t3}, v{t4}
    v_lshl_add_u32 v{t5}, v{t5}, 4, v{t2}
    v_xor_b32 v{t6}, 4, v{t4}
    v_xor_b32 v{t6}, v{t3}, v{t6}
    v_lshl_add_u32 v{t6}, v{t6}, 4, v{t2}
    """)
    for jl in range(4):
        a(f"v_add_u32 v{DA[jl]}, {4096 + jl*8*strideA - jl*1024}, v{t5 if (jl & 1) == 0 else t6}")
    a(f"""
    v_bfe_u32 v{t2}, v{vLANE}, 3, 2
    v_lshlrev_b32 v{t3}, 13, v{t2}
    v_lshrrev_b32 v{t4}, 5, v{vLANE}
    v_lshl_add_u32 v{t3}, v{t4}, {18 if OPT["chg"] == 1 else 7}, v{t3}
    v_lshrrev_b32 v{t4}, 1, v{t2}
    v_lshlrev_b32 v{t4}, 2, v{t4}
    v_and_b32 v{t5}, 7, v{vLANE}
    v_xor_b32 v{t4}, v{t4}, v{t5}
    s_lshl_b32 s{gA0}, s{gWM}, 1
    v_xor_b32 v{t4}, s{gA0}, v{t4}
    v_lshl_add_u32 v{t3}, v{t4}, 4, v{t3}
    s_lshl_b32 s{gA0}, s{gHEAD}, 9
    s_lshl_b32 s{gA1}, s{sWAVE}, 16
    s_add_u32 s{gA0}, s{gA0}, s{gA1}
    v_add_u32 v{t3}, s{gA0}, v{t3}
    """)
    for jl in range(4):
        a(f"v_add_u32 v{DB[jl]}, {4096 + (jl>>1)*4*strideB + (jl&1)*(32*strideB if OPT['chg'] == 2 else 256) - jl*1024}, v{t3}")
    a(f"""
    s_mul_i32 s{gA1}, s3, {OPT["rot"]*64}
    s_mul_i32 s{gA0}, s{gMT}, {OPT["rotm"]*128}
    s_add_u32 s{gA1}, s{gA1}, s{gA0}
    s_and_b32 s{gA1}, s{gA1}, 0x7ff
    s_lshl_b32 s{gMB}, s{sWAVE}, 12
    s_mov_b32 s{sSA+2}, {4194304+4096}
    s_mov_b32 s{sSA+3}, 0x20000
    s_mov_b32 s{sSB+2}, {8388608+4096}
    s_mov_b32 s{sSB+3}, 0x20000
    @PST2
    s_waitcnt lgkmcnt(0)
    @PST3
    s_sub_u32 s{sSA}, s{sSA}, 4096
    s_subb_u32 s{sSA+1}, s{sSA+1}, 0
    s_cmp_eq_u32 s{sWHICH}, 0
    s_cselect_b32 s{sSB}, s{sT}, s{sT+2}
    s_cselect_b32 s{sSB+1}, s{sT+1}, s{sT+3}
    s_sub_u32 s{sSB}, s{sSB}, 4096
    s_subb_u32 s{sSB+1}, s{sSB+1}, 0
    """)
    for i in (2, 3):
        k = [n for n, l in enumerate(a.lines) if f"@PST{i}" in l][0]
        a.lines[k] = f"s_memrealtime s[{streg(i)}:{streg(i)+1}]" if OPT["pst"] else ""
    MA, MB = (0x207ff if OPT["chg"] else 0x107ff), 0x7fffff
    hA = 64 if OPT["chg"] else 32; hB = (32*strideB, 128, 256)[OPT["chg"]]
    gRA, gRB, gTS = gA1, gCNT, (gA0, sT)
    a(f"s_lshl_b32 s{gRB}, s{gRA}, 12")
    def dma_group(kind, par):
        t = gTS[par & 1]
        if kind[0] == "A":
            _, it, h = kind
            m0 = f"s_add_u32 m0, s{gMA}, {(131072, 0, 65536)[it % 3] + h*hA*128}"; regs, srd = DA, sSA
            so = f"s_add_u32 s{t}, s{gRA}, {h*hA*strideA + it*128}\ns_and_b32 s{t}, s{t}, {MA}"
        elif kind[0] == "B":
            _, it, h = kind
            m0 = f"s_add_u32 m0, s{gMB}, {32768 + (it & 1)*65536 + h*16384}"; regs, srd = DB, sSB
            so = f"s_add_u32 s{t}, s{gRB}, {it*64*strideB + h*hB}\ns_and_b32 s{t}, s{t}, {MB}"
        else:
            y = kind[1]
            return f"s_add_u32 m0, s{gMB}, {y*16384}", f"s_add_u32 s{t}, s{sW0}, {y*16384}", \
                   [f"buffer_load_dwordx4 v{vDMA}, {WS}, s{t} offen offset:{i*1024}{ld()} lds ; @gU{y}" for i in range(4)]
        return m0, so, [f"buffer_load_dwordx4 v{regs[jl]}, {sr(srd,4)}, s{t} offen offset:{jl*1024}{OPT['nt' + kind[0]]} lds ; @g{kind[0]}{it}_{h}" for jl in range(4)]
    todo = []
    for it in range(16):
        if OPT["chg"]: todo += [(2*it-1+h, 2*(it-d)+h, (k_, it, h)) for h in range(2) for k_, d in (("A", 3), ("B", 2))]
        else: todo += [(2*it-1, 2*(it-3)+1, ("A", it, 0)), (2*it-1, 2*(it-2), ("B", it, 0)), (2*it-1, 2*(it-3)+1, ("A", it, 1)), (2*it, 2*(it-2)+1, ("B", it, 1))]
    todo += [(31+y, av, ("U", y)) for y, av in enumerate((27, 27, 28, 29, 29, 29, 30, 31))]
    GS = {}; order = []
    for n in range(-1, 32):
        cap = OPT["npro"] if n < 0 else OPT["gcap"][min(n, len(OPT["gcap"])-1)]
        c = sorted([x for x in todo if x[1] <= n], key=lambda x: x[0])[:cap]
        for x in c: todo.remove(x); assert x[0] > n or n < 0, (x, n)
        GS[n] = [x[2] for x in c]; order += GS[n]
    assert not todo
    print("GS", {n: len(v) for n, v in GS.items()}, file=sys.stderr)
    def gtag(k): return f"gU{k[1]}" if k[0] == "U" else f"g{k[0]}{k[1]}_{k[2]}"
    def gwait(n):
        it, kk = (n+1) >> 1, (n+1) & 1
        need = [("U", 0), ("U", 1)] if n == 31 else [("B", it, 1)] if kk else [("A", it, 0), ("A", it, 1), ("B", it, 0)]
        if OPT["chg"] and n < 31: need = [("A", it, kk), ("B", it, kk)]
        return f"vmcnt(@since:{gtag(max(need, key=order.index))})"
    main = a; a = Asm()
    sWID, u_, nb_, o_, o2_ = sXOFF, sT+1, sT+2, sT+3, sT+4
    sD = [sQST, sPT, sPSG]; sXS = sPSS; sHI = sFSG; sSTR = sFSS
    vWO, vW12 = vRD, vDMA
    G = sr(sG, 4)
    r_, g_, r8 = GT, GT+1, GT+2
    h_, i_ = GT+5, GT+6
    a(f"""
    s_lshl_b32 s{sWID}, s2, 2
    s_add_u32 s{sWID}, s{sWID}, s{sWAVE}
    s_mov_b32 s{sX+2}, {2048*896}
    s_mov_b32 s{sX+3}, 0x20000
    v_and_b32 v{h_}, 3, v{vLANE}
    v_lshrrev_b32 v{i_}, 2, v{vLANE}
    v_mul_u32_u24 v{GT+7}, 896, v{h_}
    v_lshl_add_u32 v{GT+7}, v{i_}, 4, v{GT+7}
    v_cmp_gt_u32 s[{sLN}:{sLN+1}], 14, v{i_}
    v_mov_b32 v{GT+8}, {OOB}
    s_lshr_b32 s{gB1}, s{sWID}, 1
    s_mul_i32 s{gB1}, s{gB1}, 3584
    s_mul_i32 s{gB0}, s{gWM}, 448
    s_add_u32 s{gB1}, s{gB1}, s{gB0}
    v_cndmask_b32 v{GT+11}, v{GT+8}, v{GT+7}, s[{sLN}:{sLN+1}]
    s_getpc_b64 s[{sG}:{sG+1}]
    L_pc:
    s_sub_u32 s{sG}, s{sG}, L_pc - L_gemmV
    s_subb_u32 s{sG+1}, s{sG+1}, 0
    s_mov_b32 s{sG+2}, L_codeend - L_gemmV
    s_mov_b32 s{sG+3}, 0x20000
    s_lshr_b32 s{gB0}, s2, 3
    s_lshl_b32 s{gB0}, s{gB0}, 2
    s_add_u32 s{gB0}, s{gB0}, s{sWAVE}
    s_lshl_b32 s{gB0}, s{gB0}, 10
    s_mov_b32 s{sWS+2}, {WS_SIZE}
    s_mov_b32 s{sWS+3}, 0x20000
    v_and_b32 v{r_}, 15, v{vLANE}
    v_lshrrev_b32 v{g_}, 4, v{vLANE}
    v_lshlrev_b32 v{r8}, 3, v{r_}
    """)
    def natdest(dst, base):
        a(f"""
        s_lshr_b32 s{o_}, s{nb_}, 2
        s_mul_i32 s{o_}, s{o_}, {7*32768}
        s_lshr_b32 s{o2_}, s{u_}, 1
        s_lshl_b32 s{o2_}, s{o2_}, 15
        s_add_u32 s{o_}, s{o_}, s{o2_}
        s_and_b32 s{o2_}, s{nb_}, 3
        s_lshl_b32 s{o2_}, s{o2_}, 13
        s_add_u32 s{o_}, s{o_}, s{o2_}
        s_and_b32 s{o2_}, s{u_}, 1
        s_lshl_b32 s{o2_}, s{o2_}, 10
        s_add_u32 s{o_}, s{o_}, s{o2_}
        s_add_u32 s{dst}, s{o_}, {base}
        """)
    def div7(idx):
        a(f"""
        s_mul_i32 s{u_}, s{idx}, 9363
        s_lshr_b32 s{u_}, s{u_}, 16
        s_mul_i32 s{nb_}, s{u_}, 7
        s_sub_u32 s{nb_}, s{idx}, s{nb_}
        """)
    def ffdest(dst, base, lim, idx=sWID):
        a(f"""
        s_mul_i32 s{o_}, s{nb_}, {184*4096}
        s_lshl_b32 s{o2_}, s{u_}, 12
        s_add_u32 s{o_}, s{o_}, s{o2_}
        s_add_u32 s{dst}, s{o_}, {base}
        s_cmp_lt_u32 s{idx}, {lim}
        s_cselect_b32 s{dst}, s{dst}, {OOB}
        """)
    a(f"""
    s_mov_b32 s{sDBG+2}, 16
    s_mov_b32 s{sDBG+3}, 0x20000
    v_mul_u32_u24 v{vWO}, {4*896}, v{g_}
    v_add_u32 v{vWO}, v{vWO}, v{r8}
    s_lshl_b32 s{gD}, s{gMT}, 1
    s_add_u32 s{gD}, s{gD}, s{sWHICH}
    s_lshl_b32 s{gD}, s{gD}, 2
    s_add_u32 s{gD}, s{gD}, s{sWAVE}
    """)
    div7(gD)
    a(f"""
    s_lshl_b32 s{o_}, s{gHEAD}, 3
    s_add_u32 s{u_}, s{u_}, s{o_}
    s_mul_i32 s{o_}, s{u_}, {32*896}
    s_lshl_b32 s{o2_}, s{nb_}, 7
    s_add_u32 s{o_}, s{o_}, s{o2_}
    s_cmp_lt_u32 s{gD}, 56
    s_cselect_b32 s{o_}, s{o_}, {OOB}
    v_add_u32 v{vWO}, s{o_}, v{vWO}
    """)
    ffdest(sD[1], WS_WFF + 56*4096, 56, gD)
    a(f"""
    s_lshr_b32 s{u_}, s{sWID}, 2
    s_mul_i32 s{u_}, s{u_}, 9363
    s_lshr_b32 s{u_}, s{u_}, 16
    s_mul_i32 s{nb_}, s{u_}, 28
    s_sub_u32 s{nb_}, s{sWID}, s{nb_}
    s_mul_i32 s{sHI}, s{u_}, {32*3584}
    s_lshl_b32 s{o2_}, s{nb_}, 7
    s_add_u32 s{sHI}, s{sHI}, s{o2_}
    """)
    natdest(sSTR, WS_W1F)
    a(f"s_sub_u32 s{sT+5}, s{sWID}, 392")
    a(f"s_and_b32 s{sT+5}, s{sT+5}, 1023")
    div7(sT+5)
    ffdest(sD[2], WS_WFF, 784)
    a(f"""
    s_lshr_b32 s{o_}, s{u_}, 1
    s_mul_i32 s{o_}, s{o_}, {64*896}
    s_and_b32 s{o2_}, s{u_}, 1
    s_mul_i32 s{o2_}, s{o2_}, {2*896}
    s_add_u32 s{o_}, s{o_}, s{o2_}
    s_lshl_b32 s{o2_}, s{nb_}, 7
    s_add_u32 s{o_}, s{o_}, s{o2_}
    s_mov_b32 s{sW12+2}, {448*3584}
    s_mov_b32 s{sW12+3}, 0x20000
    s_cmp_lt_u32 s{sWID}, 392
    s_cselect_b32 s{sW12}, s{sW12}, s{sRET}
    s_cselect_b32 s{sW12+1}, s{sW12+1}, s{sRET+1}
    s_cselect_b32 s{o_}, s{sHI}, s{o_}
    s_cselect_b32 s{sD[2]}, s{sSTR}, s{sD[2]}
    s_cselect_b32 s{sHI}, 16, 1
    s_cselect_b32 s{sSTR}, 2, 1
    s_mul_i32 s{sHI}, s{sHI}, 896
    s_mul_i32 s{o2_}, s{sSTR}, {16*896}
    s_lshl_b32 s{sSTR}, s{sSTR}, 10
    v_mul_u32_u24 v{vW12}, s{o2_}, v{g_}
    v_add3_u32 v{vW12}, v{vW12}, v{r8}, s{o_}
    v_lshlrev_b32 v{GT+9}, 8, v{i_}
    v_lshl_add_u32 v{GT+9}, v{h_}, 4, v{GT+9}
    v_cndmask_b32 v{vSX}, v{GT+8}, v{GT+9}, s[{sLN}:{sLN+1}]
    s_lshr_b32 s{o_}, s{sWID}, 3
    s_mul_i32 s{o_}, s{o_}, 14336
    s_and_b32 s{o2_}, s{sWID}, 6
    s_lshl_b32 s{o2_}, s{o2_}, 5
    s_add_u32 s{sXS}, s{o_}, s{o2_}
    s_mul_i32 s{o2_}, s{gWM}, 7168
    s_add_u32 s{sXS}, s{sXS}, s{o2_}
    s_xor_b32 s{o2_}, s{sWID}, {OPT["zid"]*4}
    s_lshl_b32 s{sFQ}, s{o2_}, 10
    s_add_u32 s{sFQ}, s{sFQ}, {WS_FLG}
    s_cmp_lt_u32 s{o2_}, 32
    s_cselect_b32 s{sFQ}, s{sFQ}, {OOB}
    v_cmp_eq_u32 vcc, 0, v{vLANE}
    v_mov_b32 v{vONE}, 1
    v_and_b32 v{vL4}, 3, v{vLANE}
    v_lshlrev_b32 v{vL4}, 2, v{vL4}
    v_cndmask_b32 v{vFLG}, v{GT+8}, v{vLANE}, vcc
    s_mov_b32 s{sRET}, s{sT+6}
    s_mov_b32 s{sRET+1}, s{sT+7}
    s_lshr_b32 s{u_}, s{gD}, 2
    s_lshl_b32 s{nb_}, s{gHEAD}, 2
    s_add_u32 s{nb_}, s{nb_}, s{sWAVE}
    s_lshl_b32 s{o_}, s{u_}, 18
    s_lshl_b32 s{o2_}, s{nb_}, 7
    s_add_u32 s{o_}, s{o_}, s{o2_}
    v_and_b32 v{vSW}, 3, v{vLANE}
    v_lshlrev_b32 v{vSW}, 5, v{vSW}
    v_bfe_u32 v{GT+9}, v{vLANE}, 2, 2
    v_lshl_add_u32 v{vSW}, v{GT+9}, 3, v{vSW}
    v_lshl_add_u32 v{vSW}, v{g_}, 16, v{vSW}
    v_add_u32 v{vSW}, s{o_}, v{vSW}
    v_mov_b32 v{vSF}, v{vL16}
    """)
    natdest(sD[0], WS_WQF)
    a(f"s_cmp_lt_u32 s{gD}, 56")
    a(f"s_cselect_b32 s{sD[0]}, s{sD[0]}, {OOB}")
    assert WS_XF == 0
    a(f"""
    v_bfe_u32 v{t4}, v{vLANE}, 1, 3
    s_lshl_b32 s{o_}, s{gWM}, 14
    s_add_u32 s{o_}, s{o_}, 131072
    v_lshlrev_b32 v{r_}, 7, v{r_}
    v_add_u32 v{r_}, s{o_}, v{r_}
    """)
    for kk in range(2):
        a(f"v_or_b32 v{t5}, {4*kk}, v{g_}")
        a(f"v_xor_b32 v{t5}, v{t5}, v{t4}")
        a(f"v_lshl_add_u32 v{RA[kk]}, v{t5}, 4, v{r_}")
    a(f"""
    v_lshlrev_b32 v{t2}, 12, v{g_}
    v_bfe_u32 v{t4}, v{vLANE}, 2, 2
    v_lshl_add_u32 v{t2}, v{t4}, 7, v{t2}
    v_and_b32 v{t5}, 3, v{vLANE}
    v_lshl_add_u32 v{t2}, v{t5}, 3, v{t2}
    s_lshl_b32 s{o_}, s{gWN}, {9 if OPT["chg"] == 2 else 10}
    s_add_u32 s{o_}, s{o_}, 32768
    v_add_u32 v{t2}, s{o_}, v{t2}
    v_lshrrev_b32 v{t4}, 1, v{t4}
    v_lshlrev_b32 v{t4}, 6, v{t4}
    v_and_b32 v{t5}, 1, v{g_}
    v_lshlrev_b32 v{t5}, 5, v{t5}
    v_or_b32 v{t4}, v{t4}, v{t5}
    """)
    for q in range(4):
        a(f"v_xor_b32 v{t5}, {(q>>1)*64 + (q&1)*32}, v{t4}")
        a(f"v_add_u32 v{RB[q]}, v{t5}, v{t2}")
    a(f"""
    s_mul_i32 s{sKVB}, s{gHEAD}, {HS}
    s_mul_i32 s{o_}, s{gMT}, {8*US}
    s_add_u32 s{sKVB}, s{sKVB}, s{o_}
    s_mul_i32 s{o_}, s{gWM}, {4*US}
    s_add_u32 s{sKVB}, s{sKVB}, s{o_}
    s_add_u32 s{o2_}, s{sWHICH}, 12
    s_lshl_b32 s{o_}, s{gWN}, {12 if OPT["chg"] == 2 else f"s{o2_}"}
    s_add_u32 s{sKVB}, s{sKVB}, s{o_}
    s_mul_i32 s{o_}, s{sWHICH}, {WS_VF - WS_KF}
    s_add_u32 s{sKVB}, s{sKVB}, s{o_}
    s_add_u32 s{sKVB}, s{sKVB}, {WS_KF}
    s_lshr_b32 s{sKVI}, 8192, {0 if OPT["chg"] == 2 else f"s{sWHICH}"}
    s_add_u32 s{sKVI}, s{sKVI}, s{sKVB}
    s_lshl_b32 s{sFKV}, s{gHEAD}, 8
    s_lshr_b32 s{o_}, s{gMT}, 2
    s_and_b32 s{o2_}, s{gMT}, 3
    s_lshl_b32 s{o2_}, s{o2_}, 1
    s_or_b32 s{o_}, s{o_}, s{o2_}
    s_cmp_ge_u32 s{o_}, 2
    s_cselect_b32 s{o2_}, 112, 0
    s_add_u32 s{sFKV}, s{sFKV}, s{o2_}
    s_lshl_b32 s{o_}, s{o_}, 3
    s_add_u32 s{sFKV}, s{sFKV}, s{o_}
    s_lshl_b32 s{o_}, s{sWHICH}, 2
    s_add_u32 s{sFKV}, s{sFKV}, s{o_}
    s_add_u32 s{sFKV}, s{sFKV}, {WS_FLG + FL_KV}
    s_lshl_b32 s{sFKVP}, s{sHEAD}, 8
    s_add_u32 s{sFKVP}, s{sFKVP}, {WS_FLG + FL_KV}
    s_xor_b32 s{o_}, s2, {OPT["zid"]}
    s_cmp_eq_u32 s{sWAVE}, 0
    s_cselect_b32 s{sFKV}, s{sFKV}, {OOB}
    s_cselect_b32 s{sFKVP}, s{sFKVP}, {OOB}
    s_cselect_b32 s{gFL}, s{o_}, {OOB}
    s_cselect_b32 s{gIT}, 0, {OOB}
    """)
    WQ, B1, ST1, N0, STA2, XR1, XR2 = sT+1, sT+2, sT+3, sN, sT+4, sND, sXOF2
    a(f"""
    s_or_b32 s{sQI}, s{sJ}, 8
    s_mul_i32 s{WQ}, s{sHEAD}, {7*32768}
    s_add_u32 s{WQ}, s{WQ}, {WS_WQF}
    s_mov_b32 s{sW0}, s{WQ}
    s_mov_b32 s{XR1}, s{sQI}
    s_mov_b32 s{ST1}, 32768
    s_bitcmp1_b32 s{sHEAD}, 1
    s_cselect_b32 s{N0}, {OPT['n0'][1]}, {OPT['n0'][0]}
    s_cselect_b32 s{STA2}, {OPT['a15'][1]}, {OPT['a15'][0]}
    s_cmp_eq_u32 s{sQI}, 15
    s_cselect_b32 s{STA2}, s{STA2}, 0
    s_add_u32 s{N0}, s{N0}, s{STA2}
    s_cmp_eq_u32 s{sQI}, 8
    s_cselect_b32 s{STA2}, {OPT["cap8"]}, 64
    s_min_u32 s{N0}, s{N0}, s{STA2}
    @atomic
    s_cmp_ge_u32 s{sJ}, 8
    s_cbranch_scc1 L_typeA
    s_mov_b32 s{sTYPE}, 2
    s_sub_u32 s{B1}, s{WQ}, {5*32768}
    s_sub_u32 s{XR2}, 15, s{sQI}
    s_lshl_b32 s{sU1}, s{sQI}, 2
    s_sub_u32 s{sU2}, 64, s{sU1}
    s_add_u32 s{sU1}, s{sU1}, 4
    s_sub_u32 s{sU1}, s{sU1}, s{N0}
    s_add_u32 s{STA2}, s{sU1}, 14
    s_add_u32 s{sT+7}, s{STA2}, s{sU2}
    s_branch L_typedone
    """)
    a.label("L_typeA")
    a(f"""
    s_mov_b32 s{sU1}, s{N0}
    s_add_u32 s{sT+7}, s{N0}, 14
    s_mov_b32 s{sU2}, 2
    s_mov_b32 s{N0}, 0
    s_mov_b32 s{STA2}, 100
    s_mov_b32 s{XR2}, 0x4000
    s_mov_b32 s{sTYPE}, 1
    s_mov_b32 s{B1}, {OOB}
    s_cmp_eq_u32 s{sJ}, 15
    s_cbranch_scc1 L_typedone
    s_mov_b32 s{sTYPE}, 0
    s_mul_i32 s{XR1}, s{sHEAD}, 7
    s_add_u32 s{XR1}, s{XR1}, s{sJ}
    s_sub_u32 s{XR1}, s{XR1}, 8
    s_lshr_b32 s{sT}, s{XR1}, 4
    s_and_b32 s{XR1}, s{XR1}, 15
    s_mul_i32 s{sW0}, s{sT}, {7*32768}
    s_add_u32 s{sW0}, s{sW0}, {WS_W1F}
    s_lshl_b32 s{B1}, s{sT}, 15
    s_add_u32 s{B1}, s{B1}, {WS_WFF}
    s_mov_b32 s{ST1}, {184*4096}
    """)
    a.label("L_typedone")
    a("@end")
    tA, tB, tC, tD = GT, GT+1, GT+2, GT+3
    KB, VB = sT+5, sT+6
    a(f"""
    s_mul_i32 s{KB}, s{sHEAD}, {HS}
    s_add_u32 s{VB}, s{KB}, {WS_VF}
    s_add_u32 s{KB}, s{KB}, {WS_KF}
    v_mov_b32 v{vTE}, {OOB}
    """)
    def seg_lin(start, base, stride):
        a(f"v_subrev_u32 v{tA}, {start}, v{vLANE}")
        a(f"v_cmp_gt_u32 vcc, 7, v{tA}")
        a(f"v_mul_u32_u24 v{tB}, {stride}, v{tA}")
        a(f"v_add_u32 v{tB}, s{base}, v{tB}")
        a(f"v_cndmask_b32 v{vTE}, v{vTE}, v{tB}, vcc")
    seg_lin(0, sW0, 32768)
    seg_lin(7, B1, f"s{ST1}")
    a(f"s_lshl_b32 s{sT}, s{sHEAD}, 15")
    a(f"s_add_u32 s{sT}, s{sT}, {WS_WFF + 56*4096}")
    seg_lin(f"s{sT+7}", sT, 184*4096)
    a(f"v_add_u32 v{vTO}, 16384, v{vTE}")
    def seg_att(start, n0, U):
        for tab in (vTO, vTE):
            a(f"v_subrev_u32 v{tA}, {start}, v{vLANE}")
            if n0 is not None: a(f"v_add_u32 v{tB}, s{n0}, v{tA}")
            else: a(f"v_mov_b32 v{tB}, v{tA}")
            a(f"v_mul_u32_u24 v{tB}, {US}, v{tB}")
            if tab == vTO:
                a(f"s_sub_u32 s{sT}, s{U}, 1")
                a(f"v_cmp_eq_u32 vcc, s{sT}, v{tA}")
                a(f"v_add_u32 v{tC}, s{KB}, v{tB}")
                a(f"v_add_u32 v{tC}, {US}, v{tC}")
                a(f"v_add_u32 v{tD}, s{VB}, v{tB}")
            else:
                a(f"v_cmp_eq_u32 vcc, 0, v{tA}")
                a(f"v_add_u32 v{tC}, s{VB}, v{tB}")
                a(f"v_subrev_u32 v{tC}, {US}, v{tC}")
                a(f"v_add_u32 v{tD}, s{KB}, v{tB}")
            a(f"v_cndmask_b32 v{tC}, v{tC}, v{tD}, vcc")
            a(f"v_cmp_gt_u32 vcc, s{U}, v{tA}")
            a("s_nop 1")
            a(f"v_cndmask_b32 v{tab}, v{tab}, v{tC}, vcc")
    seg_att(14, N0, sU1)
    seg_att(f"s{STA2}", None, sU2)
    XO1, XO2 = sXOFF, sXOF2
    a(f"""
    s_lshl_b32 s{sT}, s{sWAVE}, 1
    s_lshl_b32 s{XO1}, s{XR1}, 3
    s_add_u32 s{XO1}, s{XO1}, s{sT}
    s_mul_i32 s{XO1}, s{XO1}, 14336
    s_lshl_b32 s{XO2}, s{XR2}, 3
    s_add_u32 s{XO2}, s{XO2}, s{sT}
    s_mul_i32 s{XO2}, s{XO2}, 14336
    s_lshl_b32 s{sW4K}, s{sWAVE}, 12
    s_mov_b32 s{sCLAMP}, 0x05040100
    s_mov_b32 s{sFIRST}, 0x07060302
    """)
    setup_l = [l.strip() for l in a.lines if l.strip()]
    a = main
    seq = []
    for k, kind in enumerate(GS[-1]):
        m0, so, ins = dma_group(kind, 0)
        seq += [[m0, so, ins[0]]] + [[x] for x in ins[1:]]
        if k == OPT["xpos"]:
            seq += [[f"buffer_load_dwordx4 {ar(SLD+48,4)}, v{GT+11}, {sr(sX,4)}, s{gB1} offen"], [f"buffer_load_dwordx4 {ar(SLD+52,4)}, v{GT+11}, {sr(sX,4)}, s{gB1} offen offset:224"],
                    [f"s_xor_b32 s{gB1}, s{gB1}, 448", f"buffer_load_dwordx4 {ar(SLD+56,4)}, v{GT+11}, {sr(sX,4)}, s{gB1} offen"], [f"buffer_load_dwordx4 {ar(SLD+60,4)}, v{GT+11}, {sr(sX,4)}, s{gB1} offen offset:224 ; @sx"]]
    if OPT["cpf"]: seq += [[f"buffer_load_dwordx4 a[200:203], v{vL16}, {G}, s{gB0} offen"], [f"s_add_u32 s{gB0}, s{gB0}, 131072", f"buffer_load_dwordx4 a[204:207], v{vL16}, {G}, s{gB0} offen"]]
    nowr = ("s_mov", "s_mul_i32", "s_nop", "s_cselect", "s_getpc", "s_cbranch", "s_branch")
    def scc_live(k):
        for l in setup_l[k:]:
            if l.startswith(("s_cselect", "s_cbranch_scc", "s_subb")): return True
            if l.startswith("s_") and not l.startswith(nowr): return False
        return False
    step = len(setup_l) / (len(seq) - 0.5)
    atomic = False; nxt = 0.0
    for k, l in enumerate(setup_l):
        if seq and k >= nxt and not atomic and not scc_live(k) and not l.endswith(":"):
            for x in seq.pop(0): a(x)
            nxt += step
        if l == "@atomic": atomic = True
        elif l == "@end": atomic = False
        else: a(l)
    for g in seq:
        for x in g: a(x)
    print("setup instrs", len(setup_l), "left", len(seq), file=sys.stderr)
    a(f"""
    s_mov_b32 s{sG}, s{sRET}
    s_mov_b32 s{sG+1}, s{sRET+1}
    s_mov_b32 s{sG+2}, {448*8192}
    """)
    if OPT["dbgside"] & 1:
        for r in sD: a(f"s_mov_b32 s{r}, {OOB}")
    if OPT["dbgside"] & 2: a(f"s_mov_b32 s{sXS}, {OOB}")
    if OPT["dbgside"] & 4:
        for r in (vWO, vW12, vSW): a(f"v_mov_b32 v{r}, {OOB}")
    def side_chain():
        c = []
        z = GT+8
        c += [(f"v_mov_b64 {vr(z,2)}, 0", 0), (f"v_mov_b64 {vr(z+2,2)}, 0", 0), (f"buffer_store_dwordx4 {vr(z,4)}, v{vL16}, {WS}, s{sFQ} offen sc1 ; @zst", 1)]
        c.append(("s_waitcnt vmcnt(@since:sx)", 1))
        U = GT; m_, v_, t_, t2_ = GT+16, GT+17, vG1, vPOLL
        for i in range(8):
            c.append((f"v_accvgpr_read_b32 v{t_}, a{SLD+48+i}", 2 if i == 0 else 0))
            c.append((f"v_lshlrev_b32 v{U+2*i}, 16, v{t_}", 0))
            c.append((f"v_and_b32 v{U+2*i+1}, 0xffff0000, v{t_}", 0))
        def red(v):
            r = [(f"v_add_f32_dpp v{v}, v{v}, v{v} row_ror:{sh} row_mask:0xf bank_mask:0xf", 2) for sh in (8, 4)]
            return r + xlane_ops("v_add_f32", v, t2_)
        c.append((f"v_add_f32 v{m_}, v{U}, v{U+1}", 0)); c.append((f"v_add_f32 v{v_}, v{U+2}, v{U+3}", 0))
        for i in range(4, 16, 2):
            c.append((f"v_add_f32 v{m_}, v{m_}, v{U+i}", 0)); c.append((f"v_add_f32 v{v_}, v{v_}, v{U+i+1}", 0))
        for i in range(8):
            c += [(x, 0) for x in (f"v_accvgpr_read_b32 v{t_}, a{SLD+56+i}", f"v_lshlrev_b32 v{t2_}, 16, v{t_}", f"v_and_b32 v{t_}, 0xffff0000, v{t_}",
                  f"v_add_f32 v{m_}, v{m_}, v{t2_}", f"v_add_f32 v{v_}, v{v_}, v{t_}")]
        c.append((f"v_add_f32 v{m_}, v{m_}, v{v_}", 0))
        c += red(m_)
        c.append((f"v_mul_f32 v{m_}, {f2u(1.0/448):#x}, v{m_}", 0))
        for i in range(16):
            c.append((f"v_sub_f32 v{t_}, v{U+i}, v{m_}", 0))
            c.append((f"v_mul_f32 v{v_}, v{t_}, v{t_}" if i == 0 else f"v_fma_f32 v{v_}, v{t_}, v{t_}, v{v_}", 0))
        for i in range(8):
            c += [(x, 0) for x in (f"v_accvgpr_read_b32 v{t_}, a{SLD+56+i}", f"v_lshlrev_b32 v{t2_}, 16, v{t_}", f"v_and_b32 v{t_}, 0xffff0000, v{t_}",
                  f"v_sub_f32 v{t2_}, v{t2_}, v{m_}", f"v_sub_f32 v{t_}, v{t_}, v{m_}", f"v_fma_f32 v{v_}, v{t2_}, v{t2_}, v{v_}", f"v_fma_f32 v{v_}, v{t_}, v{t_}, v{v_}")]
        c.append((f"v_cndmask_b32 v{v_}, 0, v{v_}, s[{sLN}:{sLN+1}]", 0))
        c += red(v_)
        for x in (f"v_mul_f32 v{v_}, {f2u(1.0/448):#x}, v{v_}", f"v_cvt_pk_bf16_f32 v{t_}, v{m_}, v{v_}", f"v_lshlrev_b32 v{m_}, 16, v{t_}",
                  f"v_and_b32 v{v_}, 0xffff0000, v{t_}", f"v_add_f32 v{v_}, {f2u(1e-5):#x}, v{v_}", f"v_cvt_pk_bf16_f32 v{v_}, v{v_}, v{v_}",
                  f"v_lshlrev_b32 v{v_}, 16, v{v_}", f"v_sqrt_f32 v{v_}, v{v_}"):
            c.append((x, 0))
        c.append((f"v_cvt_pk_bf16_f32 v{v_}, v{v_}, v{v_}", 1))
        c.append((f"v_lshlrev_b32 v{v_}, 16, v{v_}", 0))
        c.append((f"v_rcp_f32 v{v_}, v{v_}", 0))
        for i in range(16): c.append((f"v_sub_f32 v{U+i}, v{U+i}, v{m_}", 1 if i == 0 else 0))
        for i in range(8):
            for x in (f"v_cvt_pk_bf16_f32 v{t_}, v{U+2*i}, v{U+2*i+1}", f"v_lshlrev_b32 v{U+2*i}, 16, v{t_}", f"v_and_b32 v{U+2*i+1}, 0xffff0000, v{t_}",
                      f"v_mul_f32 v{U+2*i}, v{U+2*i}, v{v_}", f"v_mul_f32 v{U+2*i+1}, v{U+2*i+1}, v{v_}", f"v_cvt_pk_bf16_f32 v{U+i}, v{U+2*i}, v{U+2*i+1}"):
                c.append((x, 0))
        if OPT["hold"] is not None: c.append((f"s_waitcnt vmcnt(@since:sl{OPT['hold']})", 1, 0, OPT["hold"]))
        c.append((f"buffer_store_dwordx4 {vr(U,4)}, v{vSX}, {WS}, s{sXS} offen sc1", 1))
        c.append((f"buffer_store_dwordx4 {vr(U+4,4)}, v{vSX}, {WS}, s{sXS} offen offset:3584 sc1", 1))
        def relay(rnd, land):
            c.append((f"s_waitcnt vmcnt(@since:sl{rnd})", 1, 0, rnd))
            for h in range(2):
                for e in range(8):
                    c.append((f"v_accvgpr_read_b32 v{GT+e}, a{land+2*e+h}", 2 if e == 0 else 0))
                for jj in range(2):
                    o = GT+8+4*jj
                    for p in range(4):
                        c.append((f"v_perm_b32 v{o+p}, v{GT+2*p+1}, v{GT+2*p}, s{(sCLAMP, sFIRST)[jj]}", 0))
                    if rnd == 1: c.append((f"buffer_store_dwordx4 {vr(o,4)}, v{vL16}, {WS}, s{sD[rnd]} offen offset:{(2*h+jj)*1024} sc1", 1))
                    else:
                        c.append((f"buffer_store_dwordx4 {vr(o,4)}, v{vSF}, {WS}, s{sD[rnd]} offen sc1", 1))
                        c.append((f"v_add_u32 v{vSF}, s{sSTR}, v{vSF}", 1))
        relay(2, SLD+32)
        c.append((f"s_waitcnt vmcnt(@since:sl0)", 1, 0, 0))
        c.append((f"s_mov_b32 s{sHI}, {f2u(QSCALE):#x}", 1))
        for h in range(2):
            for p in range(4):
                t = GT + (p & 1)*4
                c += [(x, 0) for x in (f"v_accvgpr_read_b32 v{t}, a{SLD+4*p+h}", f"v_accvgpr_read_b32 v{t+1}, a{SLD+4*p+2+h}",
                      f"v_lshlrev_b32 v{t+2}, 16, v{t}", f"v_lshlrev_b32 v{t+3}, 16, v{t+1}", f"v_and_b32 v{t}, 0xffff0000, v{t}", f"v_and_b32 v{t+1}, 0xffff0000, v{t+1}")]
                c += [(f"v_mul_f32 v{t+i}, s{sHI}, v{t+i}", 0) for i in range(4)]
                c += [(f"v_cvt_pk_bf16_f32 v{GT+8+p}, v{t+2}, v{t+3}", 0), (f"v_cvt_pk_bf16_f32 v{GT+12+p}, v{t}, v{t+1}", 0)]
            if h == 1: c.append((f"s_add_u32 s{sD[0]}, s{sD[0]}, 4096", 1))
            for jj in range(2):
                c.append((f"buffer_store_dwordx4 {vr(GT+8+4*jj,4)}, v{vL16}, {WS}, s{sD[0]} offen offset:{jj*2048} sc1 ; @sst", 1))
        relay(1, WOL)
        c += [(x, 0) for x in (f"v_add_u32 v{vDMA}, s{sW4K}, v{vL16}", f"v_mov_b32 v{vRD}, v{vL16}",  f"v_lshrrev_b32 v{GT}, 4, v{vLANE}",
              f"v_lshlrev_b32 v{GT}, 2, v{GT}", f"v_and_b32 v{GT+1}, 15, v{vLANE}", f"v_sub_u32 v{GT}, v{GT+1}, v{GT}")]
        c += [(f"v_cmp_gt_i32 s[{sMASK+2*r}:{sMASK+2*r+1}], {r}, v{GT}", 0) for r in range(4)]
        c = [((x[0].replace(" sc1", OPT["sidesc"]),) + tuple(x[1:]) if x[0].startswith("buffer_store") else x) for x in c]
        if OPT["wbl2"]: c.append(("s_waitcnt vmcnt(4)", 30)); c.append(("buffer_wbl2 sc1", 1))
        return Chain(c, XG4)
    def reads(kk, buf):
        if OPT["chg"]:
            ra = [f"ds_read_b128 {ar(CA(m,k),4)}, v{RA[k]} offset:{m*2048}" for m in range(4*kk, 4*kk+4) for k in range(2)]
            rb = [f"ds_read_b64_tr_b16 {ar(CB(n,k)+2*sec,2)}, v{RB[n&3]} offset:{kk*16384+sec*2048+k*512*OPT['chg']}" for n in range(4*kk, 4*kk+4) for k in range(2) for sec in range(2)]
            if kk: return ra + rb
            return rb[:4] + [x for m in range(4) for x in ra[2*m:2*m+2] + rb[4+2*m:6+2*m]] + rb[12:]
        ra = [f"ds_read_b128 {ar(FA(buf,m),4)}, v{RA[kk]} offset:{m*2048}" for m in range(8)]
        rb = [f"ds_read_b64_tr_b16 {ar(FB(buf,n)+2*sec,2)}, v{RB[n&3]} offset:{kk*16384+sec*2048+(n>>2)*512}" for n in range(8) for sec in range(2)]
        out = []
        for i in range(8): out += [ra[i], rb[2*i], rb[2*i+1]]
        return out
    stamp(6, True)
    a(f"s_waitcnt {gwait(-1)}")
    a("s_barrier")
    for r in reads(0, 0): a(r)
    stamp(1)
    a(f"s_cmp_eq_u32 s{sWHICH}, 0")
    a("s_cbranch_scc0 L_gemmV")
    a.label("L_gK")
    pre_lines = len(a.lines)
    sJT = sT+2
    def xjob(J, key, i, base, early, late, rot=0):
        u, qt = i >> 1, i & 1
        J.add(key, f"s_add_u32 s{sJT}, s{base}, {qt*14336+((u+rot)%14)*1024}", f"buffer_load_dwordx4 {ar(X(qt,u),4)}, v{vL16}, {WS}, s{sJT} offen{ld()} ; @{key}", early, late - (3 - (i & 3))*8)
    def kvjob(J, c, early, late):
        blk = c >> 2
        J.add("kv", f"s_add_u32 s{sJT}, s{sKVI if blk & 1 else sKVB}, {(blk>>1)*US+(c&3)*1024}",
              f"buffer_store_dwordx4 {vr(PK(c),4)}, v{vL16}, {WS}, s{sJT} offen{OPT['kvsc']} ; @kv", early, late)
    pw, t6, t7 = sEV, sCNT, sND
    gtab = sum(g << (4*k) for k, g in enumerate(OPT["gev"]))
    setup = f"""
    s_mov_b32 s{sLN}, {gtab & 0xffffffff:#x}
    s_mov_b32 s{sLN+1}, {gtab >> 32:#x}
    s_lshl_b32 s{pw}, s{sHEAD}, 3
    s_and_b32 s{t6}, s{sJ}, 7
    s_add_u32 s{pw}, s{pw}, s{t6}
    s_lshl_b32 s{pw}, s{pw}, 2
    s_add_u32 s{pw}, s{pw}, s{sWAVE}
    s_mul_i32 s{sQST}, s{pw}, {Q_W}
    s_add_u32 s{sQST}, s{sQST}, {WS_QF}
    s_mul_i32 s{sPT}, s{pw}, {PT_W}
    s_add_u32 s{sPT}, s{sPT}, {WS_PT}
    s_lshl_b32 s{sFQ}, s{pw}, 5
    s_add_u32 s{sFQ}, s{sFQ}, {WS_FLG + FL_Q}
    s_mul_i32 s{t7}, s{sWAVE}, {28*1024}
    s_add_u32 s{t7}, s{t7}, {WS_PS}
    s_mul_i32 s{pw}, s{sHEAD}, 7
    s_add_u32 s{pw}, s{pw}, s{t6}
    s_lshr_b32 s{t6}, s{pw}, 4
    s_and_b32 s{sFSG}, s{pw}, 15
    s_lshl_b32 s{sT+3}, s{t6}, 9
    s_mul_i32 s{sPSG}, s{sFSG}, {PS_R}
    s_add_u32 s{sPSG}, s{sPSG}, s{t7}
    s_mul_i32 s{pw}, s{t6}, {PS_SRC}
    s_add_u32 s{sPSG}, s{sPSG}, s{pw}
    s_add_u32 s{sPSG}, s{sPSG}, {16*PS_SRC}
    s_lshl_b32 s{sFSG}, s{sFSG}, 9
    s_lshl_b32 s{pw}, s{t6}, 2
    s_add_u32 s{sFSG}, s{sFSG}, s{pw}
    s_lshl_b32 s{pw}, s{sWAVE}, 7
    s_add_u32 s{pw}, s{pw}, {WS_FLG + FL_S}
    s_add_u32 s{sFSG}, s{sFSG}, s{pw}
    s_add_u32 s{sFSG}, s{sFSG}, 64
    s_lshr_b32 s{t6}, s{sJ}, 3
    s_mul_i32 s{t6}, s{t6}, 7
    s_xor_b32 s{t6}, s{t6}, 7
    s_xor_b32 s{t6}, s{t6}, s{sJ}
    s_mul_i32 s{sPSS}, s{t6}, {PS_R}
    s_add_u32 s{sPSS}, s{sPSS}, s{t7}
    s_mul_i32 s{t7}, s{sHEAD}, {PS_SRC}
    s_add_u32 s{sPSS}, s{sPSS}, s{t7}
    s_lshl_b32 s{sFSS}, s{t6}, 9
    s_add_u32 s{sFSS}, s{sFSS}, s{pw}
    s_lshl_b32 s{t7}, s{sHEAD}, 2
    s_add_u32 s{sFSS}, s{sFSS}, s{t7}
    s_lshl_b32 s{sND}, s{sQI}, 2
    s_add_u32 s{sND}, s{sND}, s{sWAVE}
    s_lshr_b32 s{sCNT}, s{sU1}, 1
    s_sub_u32 s{sCNT}, s{sCNT}, 1
    s_lshl_b32 s{sEV}, s{sJ}, 2
    s_lshr_b64 s[{sT+4}:{sT+5}], s[{sLN}:{sLN+1}], s{sEV}
    s_and_b32 s{sEV}, s{sT+4}, 15
    """.strip().split("\n")
    setup = [(x.strip(), 1) for x in setup]
    setup.append((f"s_cmp_eq_u32 s{sTYPE}, 1\ns_cselect_b32 s{sQST}, {OOB}, s{sQST}", 1))
    setup.append((f"s_cmp_eq_u32 s{sTYPE}, 0\ns_cselect_b32 s{sFSG}, s{sFSG}, {OOB}", 1))
    setup.append((f"s_cmp_eq_u32 s{sWAVE}, 0\ns_cselect_b32 s{sT+1}, 0, 0x40000000\ns_cselect_b32 s{sEXP}, 1, 0\ns_or_b32 s{sFQ}, s{sFQ}, s{sT+1}", 1))
    setup2 = [(x, 1) for x in (f"s_mov_b32 s{sTAU}, 4", f"s_add_u32 s{sM0}, s{sW4K}, {8*16384}", f"s_add_u32 s{sOFFB}, s{sW0}, {8*16384}",
              f"s_mov_b32 s{sRDD}, {-131072}", f"s_mov_b32 s{gMA}, {-131072}", f"s_mov_b32 s{gMB}, 32768", f"s_mov_b32 m0, s{sM0}")]
    for typ in ("K", "V"):
        if typ == "V":
            a.label("L_gemmV")
            for l in a.lines[:pre_lines]:
                if l.strip().startswith("buffer_") or "@merge" in l: a.raw("@ghost " + l.strip())
        def pos0(m, n): return m*8+n if typ == "K" else (m >> 1)*16 + n*2 + (m & 1)
        done = {pos0(m, n): (n >> 2)*64 + m*8 + (n & 3)*2 + 1 for m in range(8) for n in range(8)}
        corder = sorted(range(32), key=lambda c: (max(done[2*c], done[2*c+1]) >> 3, c not in dict(OPT["es"]), c))
        slot = {p: p for p in range(64)}
        if OPT["es"]:
            assert len(ENL()) <= 20 and OPT["chg"]
            slot = {2*c: (PK(c)-48)//4 for c in range(32)}
            rest = [x for x in range(52) if x not in slot.values()]
            ag = [c for c in corder[:16] if c not in [x[0] for x in OPT["es"][:4]]][:12]
            for c in corder: slot[2*c+1] = 52 + ag.index(c) if c in ag else rest.pop()
        def pos(m, n): return slot[pos0(m, n)]
        def pack_chain():
            pk = []
            for x_ in sorted(range(64), key=lambda x: (done[x] >> 3, corder.index(x >> 1), x)):
                c = x_ >> 1; e = done[x_] + 3
                r = PK(c); p = slot[2*c+1]; q = 48+4*p; t = GT+17
                cv = lambda d, x, y: pk.append((f"v_cvt_pk_bf16_f32 v{d}, v{x}, v{y}", 0, e))
                rd = lambda d, i: pk.append((f"v_accvgpr_read_b32 v{d}, a{208+4*(p-52)+i}", 0, e))
                if x_ & 1 == 0: cv(r, r, r+1); cv(r+1, r+2, r+3)
                elif p < 52: cv(r+2, q, q+1); cv(r+3, q+2, q+3)
                else: rd(r+2, 0); rd(r+3, 1); rd(t, 3); cv(r+2, r+2, r+3); rd(r+3, 2); cv(r+3, r+3, t)
            return Chain(pk)
        def es_place(st, n, pk):
            J2 = Jobs(); sg = [(c, g - (n-30)*64) for c, g in OPT["es"] if g >> 6 == n-30]
            for c, g in sg: kvjob(J2, c, g, g)
            J2.place(st, 0, 16, [g for c, g in sg]); assert not J2.jobs
            return sg
        def es_fill(st, n, pk, sg):
            pk.fill(st)
            for c, g in sg:
                key = f"v_cvt_pk_bf16_f32 v{PK(c)+3},"
                assert not any(x[0].startswith(key) for x in pk.items) and all(w < g for w, v in st.fill.items() if any(x.startswith(key) for x in v)), (c, g)
            pk.items = [(x[0], x[1], x[2]-64) for x in pk.items]
        def substep(it, kk):
            groups = GS[2*it+kk]
            buf = kk
            mf = []
            for m in range(8):
                for n in range(8):
                    acc = accreg(pos(m, n))
                    c = "0" if (it == 0 and kk == 0) else acc
                    x, y = ar(FB(buf,n),4), ar(FA(buf,m),4)
                    if OPT["chg"]:
                        n2 = 4*kk + (n >> 1); k = (n ^ (n >> 1)) & 1
                        acc = accreg(pos(m, n2)); c = "0" if (it == 0 and n & 1 == 0) else acc
                        x, y = ar(CB(n2,k),4), ar(CA(m,k),4)
                    if typ == "V": x, y = y, x
                    mf.append(f"{MF} {acc}, {x}, {y}, {c}")
            st = Stage(mf)
            st.put(-1, f"s_waitcnt {gwait(2*it+kk)} lgkmcnt(0)")
            st.put(-1, "s_barrier")
            last = (it == 15 and kk == 1)
            g, dg = 1, (OPT["dg2"] if len(groups) == 2 else 4)
            for k, kind in enumerate(groups):
                m0, so, ins = dma_group(kind, k)
                st.put(g-1, m0)
                st.put(g-2, so)
                for i in ins:
                    st.put(g, i); g += dg
            rd = reads(kk ^ 1, buf ^ 1) if not last else [f"ds_read_b128 {ar(FR(f),4)}, v{vRD} offset:{f*1024}" for f in range(12)]
            for i, r in enumerate(rd): st.put(i*2, r)
            if OPT["chg"] and kk == 0: st.put(31, "s_waitcnt lgkmcnt(8)")
            if kk == 0 and it < 15:
                d = -131072 if it % 3 == 0 else 65536
                for i, x in enumerate([f"v_add_u32 v{RA[0]}, {d}, v{RA[0]}", f"v_add_u32 v{RA[1]}, {d}, v{RA[1]}"] + [f"v_xor_b32 v{r}, 0x10000, v{r}" for r in RB]):
                    st.put(48 + 2*(i >> 1), x)
            if OPT["fine"]:
                st.put(2, f"{FT()} s[{sFS}:{sFS+1}]")
                st.put(4, f"v_mov_b32_dpp v0, v0 wave_shr:1 row_mask:0xf bank_mask:0xf")
                st.put(46, f"v_writelane_b32 v0, s{sFS}, 0")
            return st
        ch = side_chain()
        J = Jobs()
        for e in range(8):
            t = [x + e*OPT["slstep"] for x in OPT["slt"]]
            J.add("sl1", f"s_mov_b32 s{sJT}, {(e>>2)*16*896}", f"buffer_load_dwordx2 {ar(WOL+2*e,2)}, v{vWO}, {sr(sX,4)}, s{sJT} offen offset:{(e&3)*896}{OPT['ntS']} ; @sl1", t[2], t[2]+64)
            J.add("sl2", f"s_add_u32 s{sJT}, s{sHI}, {(e&3)*3584}" if e >> 2 else f"s_mov_b32 s{sJT}, {e*3584}",
                  f"buffer_load_dwordx2 {ar(SLD+32+2*e,2)}, v{vW12}, {sr(sW12,4)}, s{sJT} offen{OPT['ntS']} ; @sl2", t[0], t[0]+64)
            J.add("sl0", f"s_mov_b32 s{sJT}, {e*8192}", f"buffer_load_dwordx2 {ar(SLD+2*e,2)}, v{vSW}, {G}, s{sJT} offen{OPT['ntS']} ; @sl0", t[1], t[1]+64)
        NZ, NZP, NZC, NF, NP, NC = OPT["sync"]
        for i in range(20): xjob(J, "x1", i, XO1, (NC+1)*64 + i*OPT["xstep"], 31*64)
        for b in range(8):
            J.add("bias", None, f"buffer_load_dwordx4 {vr(BIAS+BP[b>>1]*8+(b&1)*4,4)}, v{GT+16}, {G}, s{sT+3} offen offset:{(b>>1)*128+(b&1)*16} ; @bias{b//6}", 31*64 if b >= 6 else 29*64, 31*64+24 if b >= 6 else 30*64+22)
        su = Chain(setup)
        PV = GT+8
        for n in range(31):
            it, kk = n >> 1, n & 1
            st = substep(it, kk)
            if n == 0:
                st.put(62, f"s_load_dwordx2 s[{sX}:{sX+1}], s[0:1], 40")
                st.put(63, f"s_mov_b32 s{sX+2}, {4096*896}")
            if n == NZ-1: st.put(63, "s_waitcnt vmcnt(@since:zst)")
            if n == NZ: st.put(61, f"buffer_store_byte v{vONE}, v{vFLG}, {sr(sDBG,4)}, s{gFL} offen sc1")
            if n == NZP: st.put(61, f"buffer_load_dword v{vPOLL}, v{vL4}, {sr(sDBG,4)}, s{gIT} offen sc1 ; @zp")
            if n == NZC:
                st.put(54, "s_waitcnt vmcnt(@since:zp)")
                st.put(55, f"s_cmp_eq_u32 s{sWAVE}, 0\ns_cselect_b32 s{sT+1}, 0x01010101, 0")
                st.put(56, f"v_cmp_ne_u32 vcc, s{sT+1}, v{vPOLL}")
                st.put(60, f"s_cbranch_vccnz L_zwait{typ}")
                st.put(60, f"L_zok{typ}:")
            if n == NF-1:
                assert not any("@sst" in x[0] for x in ch.items) and NZC < NF
                st.put(63, "s_waitcnt vmcnt(@since:sst)")
                st.put(62, f"s_load_dwordx2 s[{sG}:{sG+1}], s[0:1], 64")
                st.put(59, f"s_mov_b32 s{sG+2}, 3584")
            if n == NF:
                st.put(55, f"s_add_u32 s{gIT}, s{gIT}, {WS_FLG+FL_PREP}")
                st.put(58, f"s_lshl2_add_u32 s{sT+1}, s2, s{gIT}")
                st.put(59+2*kk, f"buffer_store_dword v{vONE}, v{vFLG}, {WS}, s{sT+1} offen sc1")
            if n == NP:
                assert not ch.items
                st.put(61, f"buffer_load_dwordx4 {vr(PV,4)}, v{vL16}, {WS}, s{gIT} offen sc1 ; @prep")
            if n == NC:
                st.put(50, "s_waitcnt vmcnt(@since:prep)")
                st.put(51, f"s_cmp_eq_u32 s{sWAVE}, 0\ns_cselect_b32 s{sT+1}, 1, 0")
                st.put(54, f"v_and_b32 v{PV}, v{PV}, v{PV+1}")
                st.put(54, f"v_and_b32 v{PV+2}, v{PV+2}, v{PV+3}")
                st.put(55, f"v_and_b32 v{PV}, v{PV}, v{PV+2}")
                st.put(55, f"v_cmp_ne_u32 vcc, s{sT+1}, v{PV}")
                st.put(60, f"s_cbranch_vccnz L_prepwait{typ}")
                st.put(60, f"L_prepok{typ}:")
                st.put(56, f"v_lshrrev_b32 v{GT+16}, 4, v{vLANE}")
                st.put(56, f"v_lshlrev_b32 v{GT+16}, 5, v{GT+16}")
            if n == 30 and OPT["es"]: pk = pack_chain(); sg = es_place(st, n, pk)
            J.place(st, n, 10, XG4)
            if n == 30 and OPT["es"]: es_fill(st, n, pk, sg); print("pack left", len(pk.items), file=sys.stderr)
            if n >= 1 and ch.items:
                full = ch.items
                for k, x in enumerate(full):
                    if len(x) > 3:
                        key = f"sl{x[3]}"
                        if any(j[5] == key for j in J.jobs) or J.at[key] + OPT["sld"] > n*64+63:
                            ch.items = full[:k]; break
                        full[k] = (x[0], x[1], max(0, J.at[key] + OPT["sld"] - n*64), x[3])
                rest = full[len(ch.items):] if ch.items is not full else []
                ch.base = n*64; ch.minD = OPT["smin"]
                ch.fill(st)
                ch.items = ch.items + rest
                if typ == "K": print("substep", n, "chain left", len(ch.items), file=sys.stderr)
            elif n > NC: su.fill(st)
            if n == 28: assert not su.items
            st.emit(a)
            if OPT["tch"] and n in OPT["tg"]: a(touch(typ))
            if OPT["tch"] and n in OPT["tgs"]:
                a(f"s_cmp_eq_u32 s{sTYPE}, 0\ns_cbranch_scc0 L_tpb{typ}{n}")
                a(touch("a" + typ)); a(f"s_branch L_tpe{typ}{n}\nL_tpb{typ}{n}:"); a(touch("b" + typ)); a(f"L_tpe{typ}{n}:")
        st = substep(15, 1)
        J.place(st, 31, 2, [17, 21]); assert not J.jobs
        SG = [25, 33, 41, 49, 57, 61]
        if OPT["es"]: sg = es_place(st, 31, pk)
        else:
            for c in range(NE): kvjob(J, c, SG[c], SG[c])
        J.place(st, 0, 8, SG); assert not J.jobs
        su = Chain(setup2); su.fill(st, 30); assert not su.items
        slot_of = {pos(m, n): m*8+n for m in range(8) for n in range(8)}
        if OPT["chg"]: slot_of = {pos(m, n): (m*8+(n-4)*2+1 if n >= 4 else -1) for m in range(8) for n in range(8)}
        if OPT["es"]: es_fill(st, 31, pk, sg); pk_ = pk
        pk = []
        for c in range(0 if OPT["es"] else 32):
            e = max(slot_of[2*c], slot_of[2*c+1]) + 3
            if 20 <= c < 20+NE: e = max(e, SG[c-20]+2)
            src = []
            for h in range(2):
                p = 2*c+h
                if p < 52: src += [48+4*p+i for i in range(4)]
                else:
                    for i in range(4):
                        pk.append((f"v_accvgpr_read_b32 v{128+(p-52)*4+i}, a{208+4*(p-52)+i}", 0, e)); src.append(128+(p-52)*4+i)
            for i in range(4): pk.append((f"v_cvt_pk_bf16_f32 v{PK(c)+i}, v{src[2*i]}, v{src[2*i+1]}", 0, e))
        pk = Chain(pk); pk.fill(st)
        if OPT["es"]: pk = pk_
        for c in range(0 if OPT["es"] else NE):
            w = [g for g, v in st.fill.items() if any(x.startswith(f"v_cvt_pk_bf16_f32 v{PK(c)+3},") for x in v)]
            assert min(w) < SG[c], (c, w)
        st.emit(a)
        a("s_nop 7" if OPT["es"] else "s_nop 3")
        print("pack tail", len(pk.items), file=sys.stderr)
        pk.flush(a)
        a("s_waitcnt vmcnt(@since:bias0) lgkmcnt(8)")
        gt_ = [l.strip() for l in a.lines if l.strip().startswith("buffer_")][-80:]
        if typ == "V": assert [re.sub(r"v\[\d+:\d+\]", "", x) for x in gt_] == [re.sub(r"v\[\d+:\d+\]", "", x) for x in gtail]
        gtail = gt_
        a(f"s_cmp_eq_u32 s{sTYPE}, 0")
        a("s_cbranch_scc0 L_P1B")
        a("s_branch L_P1A")
    def unpack(nt):
        o = []
        for r in range(4):
            x = 4*r + (nt & 3); src = BIAS + BP[nt >> 2]*8 + (x >> 1)
            o.append(f"v_and_b32 v{O(nt,1)+r}, 0xffff0000, v{src}" if x & 1 else f"v_lshlrev_b32 v{O(nt,1)+r}, 16, v{src}")
        return o
    def p1_jobs(t0, step, slack=8):
        J = Jobs()
        if OPT["es"]:
            for k, c in enumerate(ENL()): kvjob(J, c, t0+k*step, t0+slack+k*step)
        else:
            for c in range(20+NE, 32): kvjob(J, c, 0, XG[c-20-NE])
            for k, c in enumerate(range(NE, 20+NE)): kvjob(J, c, t0+k*step, t0+slack+k*step)
        for i in range(20, 28): xjob(J, f"x1{i>>2}", i, XO1, (i >> 2)*64 - 134, (i >> 2)*64 - 70)
        return J
    def xwait(st, key): st.put(62, f"s_waitcnt vmcnt(@since:{key})")
    def flagjob(J, key, after, soff, delay):
        if key in J.at or any(j[5] in (after, key) for j in J.jobs): return
        t = J.at[after] + delay
        J.add(key, f"s_waitcnt vmcnt(@since:{after})\ns_barrier", f"buffer_store_dword v{vONE}, v{vFLG}, {WS}, s{soff} offen sc1", t, t+8)
    def split_chain(items, st_prev, mk_next, late_of):
        ch = Chain(items); ch.fill(st_prev)
        rest = ch.items
        for k in range(len(rest)+1):
            st = mk_next()
            c2 = Chain([(x[0], x[1]) for x in rest[k:]])
            before = {gg: len(v) for gg, v in st.fill.items()}
            c2.fill(st)
            if c2.items: continue
            where = {}
            for gg, v in st.fill.items():
                for ins in v[before.get(gg, 0):]: where[ins] = gg
            if all(where[x[0]] <= late_of(x[3]) for x in rest[k:]):
                return rest[:k], st
        raise AssertionError
    def emit_mid(mid):
        if mid: a("s_nop 3")
        Chain(mid).flush(a)
        if mid: a("s_nop 1")
    def post_groups(s, scale):
        out = []
        for qt in range(2):
            for p in range(2):
                t = vT + 16 + (qt*2+p)*4
                regs = [PA(s & 1, nt, qt) + 2*p + rr for rr in range(2) for nt in range(4)]
                ops = [f"v_mul_f32 v{r}, v{vRINV[qt]}, v{r}" for r in regs] if scale else []
                ops += [f"v_cvt_pk_bf16_f32 v{t+i}, v{regs[2*i]}, v{regs[2*i+1]}" for i in range(4)]
                out.append((ops, t))
        return out
    def post_store(s, k, t, base):
        return f"s_add_u32 s{sJT}, s{base}, {s*4096+k*1024}", f"buffer_store_dwordx4 {vr(t,4)}, v{vL16}, {WS}, s{sJT} offen sc1 ; @ps"
    def post_place(st, s, scale, base, gaps):
        for k, (ops, t) in enumerate(post_groups(s, scale)):
            pre, ins = post_store(s, k, t, base)
            st.put(gaps[k]-1, pre); st.put(gaps[k], ins)
    def post_sched(st, s, scale, gaps):
        for k, (ops, t) in enumerate(post_groups(s, scale)):
            prev = None
            for x in ops: prev = st.add(x, [prev], 2, gaps[k]-1)
        st.schedule()
    def post_flush(s, scale, base):
        a("s_nop 5")
        for k, (ops, t) in enumerate(post_groups(s, scale)):
            for x in ops: a(x)
            for x in post_store(s, k, t, base): a(x)
    def mk_post(s):
        st = Stage(mf_post(s)); common_fill(st); return st
    def poll_issue(st, g, voff, soff, tag):
        st.put(g, f"buffer_load_dword v{vPOLL}, v{voff}, {WS}, s{soff} offen sc1 ; @{tag}")
    POLLS = []
    def poll_check(st, g, voff, soff, tag, lane0):
        st.put(g, f"s_waitcnt vmcnt(@since:{tag})")
        st.put(g, f"v_cmp_{'eq' if lane0 else 'ne'}_u32 s[{sT+4}:{sT+5}], s{sEXP}, v{vPOLL}")
        st.put(g+2, f"s_cmp_{'eq' if lane0 else 'lg'}_u64 s[{sT+4}:{sT+5}], 0\ns_cbranch_scc1 L_pw_{tag}")
        assert not ({g+1, g+2} & st.scc_busy)
        st.put(g+2, f"L_po_{tag}:")
        st.put(g+2, "s_barrier")
        POLLS.append((tag, voff, soff, lane0))
    def gsetup(st):
        t, u = sT+4, sT+5
        c = f"""
        v_min_u32 v{vPV}, 6, v{vLANE}
        v_lshl_add_u32 v{vPV}, v{vPV}, 2, 64
        v_lshrrev_b32 v{vS}, 4, v{vLANE}
        v_mul_u32_u24 v{vS}, {PS_SRC - 256}, v{vS}
        v_add_u32 v{vS}, v{vS}, v{vL16}
        v_cmp_gt_u32 s[{t}:{u}], 48, v{vLANE}
        s_lshr_b32 s{sPOLL}, s2, 2
        v_cndmask_b32 v{vS2}, v{vFLG}, v{vS}, s[{t}:{u}]
        s_lshl_b32 s{sPOLL}, s{sPOLL}, 7
        s_add_u32 s{sPOLL}, s{sPOLL}, {WS_FLG + FL_S}
        s_lshr_b32 s{t}, s2, 4
        s_mul_i32 s{sGC}, s{t}, {PS_R}
        s_bfe_u32 s{t}, s2, 0x20002
        s_mul_i32 s{u}, s{t}, {28*1024}
        s_add_u32 s{sGC}, s{sGC}, s{u}
        s_and_b32 s{t}, s2, 3
        s_lshl2_add_u32 s{t}, s{sWAVE}, s{t}
        s_lshl_b32 s{u}, s{t}, 11
        s_add_u32 s{sGC}, s{sGC}, s{u}
        s_add_u32 s{sGC}, s{sGC}, {WS_PS + 16*PS_SRC}
        """
        c = [(x.strip(), 2 if "cndmask" in x else 1) for x in c.split("\n") if x.strip()]
        c.append((f"s_cmp_lt_u32 s{t}, 14\ns_cselect_b32 s{sGC}, s{sGC}, {OOB}", 1))
        c.append((f"s_cmp_lt_u32 s{sTYPE}, 2\ns_cselect_b32 s{sEVN}, 1, 0", 1))
        c = Chain(c); c.fill(st, 4); assert not c.items
    def pflag(st): st.put(62, f"s_and_b32 s{sFQ}, s{sFQ}, 0x3fffffff\ns_add_u32 s{sFQ}, s{sFQ}, 16")
    def kv2addr(st):
        st.put(2, f"v_min_u32 v{vL4}, 11, v{vLANE}"); st.put(4, f"v_lshlrev_b32 v{vL4}, 2, v{vL4}"); st.put(8, f"v_add_u32 v{vL4}, 128, v{vL4}")
    XG2 = sorted(XG + [3, 11, 19, 27, 43, 51, 59])
    XG3 = sorted(XG + [5, 13, 21, 29, 45, 53, 61])
    merge("L_P1A")
    for l in gtail: a.raw("@ghost " + l)
    stamp(2)
    if OPT["tch"] and -1 in OPT["ta"]: a(touch("A"))
    for x in unpack(0): a(x)
    a("s_nop 1")
    J = p1_jobs(OPT["kva0"], OPT["kvstep"])
    for s in range(6):
        st = Stage(mf_proj(s, "bias" if s == 0 else None)); common_fill(st)
        flagjob(J, "kvf", "kv", sFKV, OPT["fdelay"])
        J.place(st, s, OPT["cap"])
        if s == 0:
            st.put(40, f"s_waitcnt vmcnt(@since:bias1)")
            for nt in range(1, 16):
                e = XG[2*(nt-13)+1]+2 if nt >= 13 and not OPT["es"] else 0
                if nt >= 12: e = max(e, 40)
                for x in unpack(nt): st.add(x, [], e, 4*nt-3)
            st.schedule()
        if s >= 4: xwait(st, f"x1{s+1}")
        st.emit(a)
        if OPT["tch"] and s in OPT["ta"]: a(touch("A"))
    st = Stage(mf_proj(6)); common_fill(st)
    flagjob(J, "kvf", "kv", sFKV, OPT["fdelay"]); J.place(st, 6, OPT["cap"])
    items = []
    for ud in range(8):
        for qt in range(2):
            regs = [O(2*ud,qt)+i for i in range(4)] + [O(2*ud+1,qt)+i for i in range(4)]
            e = 8*ud+7+3
            for r in regs: items.append((f"v_mul_f32 v{r}, |v{r}|, v{r}", 0, e, ud))
            for i in range(4): items.append((f"v_cvt_pk_bf16_f32 v{regs[i]}, v{regs[2*i]}, v{regs[2*i+1]}", 0, e, ud))
            for i in range(4): items.append((f"v_pk_max_i16 v{regs[i]}, v{regs[i]}, 0", 0, e, ud))
    import copy
    def mk0():
        st = mk_post(0); J2 = copy.deepcopy(J); J2.place(st, 7, OPT["cap"]); assert not J2.jobs; return st
    mid, st0 = split_chain(items, st, mk0, lambda ud: 8*ud-3)
    print("H mid", len(mid), "kv last", J.at["kv"], file=sys.stderr)
    st.emit(a); emit_mid(mid)
    stamp(3)
    J = Jobs()
    for i in range(16):
        J.add("ql", f"s_add_u32 s{sJT}, s{sQST}, {i*1024}", f"buffer_load_dwordx4 {ar(4*i,4)}, v{vL16}, {WS}, s{sJT} offen sc1 ; @ql", OPT["qa"]+4, 6*64+OPT["qe"]-(15-i)*4)
    for s in range(7):
        st = st0 if s == 0 else mk_post(s)
        if s == 2: poll_issue(st, 3, vL4, sFKVP, "kva"); poll_check(st, 58, vL4, sFKVP, "kva", False)
        if s == 3: kv2addr(st)
        if s == (OPT["qa"]-55) >> 6: poll_issue(st, (OPT["qa"]-55) & 63, vFLG, sFQ, "qa")
        if s == OPT["qa"] >> 6: poll_check(st, OPT["qa"] & 63, vFLG, sFQ, "qa", True)
        if s == 1: st.put(2, f"s_lshl2_add_u32 s{sT+1}, s{sQI}, 4\ns_cmp_eq_u32 s{sU1}, s{sT+1}\ns_cselect_b32 s{sTYPE}, 4, 0")
        gaps = [9, 25, 41, 57] if s < 6 else [41, 49, 57, 59]
        pk_ = s-1 in OPT["park"]
        if s >= 1 and not pk_: post_place(st, s-1, False, sPSG, gaps)
        J.place(st, s, OPT["qcap"], XG2)
        if pk_:
            for k, (ops, t) in enumerate(post_groups(s-1, False)):
                for i, x in enumerate(ops):
                    c_ = st.add(x, [], 2, 60)
                    st.add(f"v_accvgpr_write_b32 a{128+(s-1)*16+k*4+i}, v{t+i}", [c_], 2, 62)
            st.schedule()
        elif s >= 1: post_sched(st, s-1, False, gaps)
        if s == 1: gsetup(st)
        if s == 5: pflag(st)
        st.emit(a)
    assert not J.jobs
    def mk_F(qb, tag, pre=None):
        st = Stage(mf_qk(0, 0, qb, True) + mf_qk(1, 1, qb, True)); common_fill(st)
        if pre: pre(st)
        place_sm(st, 0, 35, 62, tag, ladd=False, first=True)
        st.schedule()
        return st
    def finit():
        return [(f"v_mov_b64 {vr(NEGM(0)+2*i,2)}, 0", 0) for i in range(4)] + [(f"v_mov_b64 {vr(vL[0],2)}, 0", 0),
                (f"v_mov_b32 v{vBIG}, {f2u(-1e30):#x}", 0), (f"v_mov_b32 v{vBIG+1}, v{vBIG}", 0), (f"s_mov_b32 s{sFIRST}, 1", 1), (f"s_mov_b32 s{sCLAMP}, {f2u(-3e38):#x}", 1)]
    def f_end(tag, nxt, endl):
        a(f"s_cbranch_vccnz L_fchk_{tag}")
        a.label(f"L_fok_{tag}")
        STUBS.append((f"L_fchk_{tag}", "L_fchk", f"L_fok_{tag}"))
        a(f"s_mov_b32 s{sFIRST}, 0")
        a(f"s_mov_b32 s{sCLAMP}, 0")
        if endl:
            a(f"s_cmp_eq_u32 s{sCNT}, 0")
            a(f"s_cbranch_scc1 {endl}")
        if nxt == "L_peelA": peelA()
        elif nxt: a(f"s_branch {nxt}")
    def peelA():
        todo = [(s_, k) for s_ in OPT["park"] for k in range(4)]
        n = OPT["pst_n"]
        ns = (len(todo) + n - 1)//n + 2
        ns += ns & 1
        for i in range(ns):
            b = (i & 1) ^ 1
            st = Stage(mf_pv(0, b^1, i == 0) + mf_qk(1, b^1, 0)); common_fill(st)
            for g in {1: [25], 2: [17, 49], 3: [9, 25, 49], 4: [9, 25, 41, 57]}[n]:
                if not todo: break
                s_, k = todo.pop(0)
                st.put(g-1, f"s_add_u32 s{sJT}, s{sPSG}, {s_*4096+k*1024}")
                st.put(g, f"buffer_store_dwordx4 {ar(128+s_*16+k*4,4)}, v{vL16}, {WS}, s{sJT} offen sc1 ; @ps")
            if i == ns-1:
                st.put(56, "s_waitcnt vmcnt(@since:ps)")
                st.put(57, f"buffer_store_dword v{vONE}, v{vFLG}, {WS}, s{sFSG} offen sc1")
                st.put(2, f"s_add_u32 s{sN}, s{sN}, {ns}")
                st.put(4, f"s_sub_u32 s{sCNT}, s{sCNT}, {ns//2}")
            place_sm(st, b, 0, 62, f"pa{i}", mask=False); st.schedule()
            if st.over or st.tail: print("peelA over", i, st.over, len(st.tail), file=sys.stderr)
            st.emit(a)
            a(f"s_cbranch_vccnz L_dorare_pa{i}")
            a.label(f"L_norare_pa{i}")
            STUBS.append((f"L_dorare_pa{i}", f"L_rare{b}", f"L_norare_pa{i}"))
        a("s_branch L_steady0")
    a("s_nop 5")
    for ops, t in post_groups(6, False):
        for x in ops: a(x)
    a("s_waitcnt vmcnt(@since:ql)")
    stamp(4)
    def pre_fa1(st):
        post_place(st, 6, False, sPSG, [9, 17, 25, 33])
        poll_issue(st, 1, vL4, sFKVP, "kv2a"); poll_check(st, 58, vL4, sFKVP, "kv2a", False)
    st = mk_F(0, "fa1", pre_fa1)
    c = Chain(finit()); c.fill(st, 0, 30); assert not c.items
    st.emit(a)
    f_end("fa1", "L_peelA", None)
    merge("L_P1B")
    for l in gtail: a.raw("@ghost " + l)
    stamp(2)
    J = p1_jobs(OPT["kvb0"], OPT["kvstepb"], 200)
    for i in range(28):
        p = i >> 2
        xjob(J, f"x2{p}", i, XO2, max(p+1, 3)*64, (7+p)*64 - 134, 4)
    for i in range(16):
        qt, ud = i & 1, i >> 1
        J.add("qs", f"s_add_u32 s{sJT}, s{sQST}, {(qt*8+ud)*1024}", f"buffer_store_dwordx4 {ar(Q(0,qt,ud),4)}, v{vL16}, {WS}, s{sJT} offen{OPT['kvsc']} ; @qs",
              7*64 if ud < 5 else 8*64, 7*64+20+i*OPT["qstep"])
    def bstage(gs):
        s = gs % 7
        st = Stage(mf_proj(s, "zero" if gs % 7 == 0 else None))
        nod = 3 <= gs <= 7
        common_fill(st, dma=not nod, nd={3: 16, 4: 8, 5: 0}.get(gs), novm=(6 <= gs <= 10), rdl=(gs == 7))
        if gs == 9: poll_issue(st, 3, vL4, sFKVP, "kvb"); poll_check(st, 58, vL4, sFKVP, "kvb", False)
        if gs == 10: kv2addr(st)
        if gs == 1:
            st.put(2, f"s_cmp_gt_u32 s{sN}, 34\ns_cselect_b32 s{sT+1}, 34, 2")
            st.put(4, f"v_and_b32 v{vT}, 4, v{vLANE}"); st.put(8, f"v_mul_u32_u24 v{vT}, s{sT+1}, v{vT}"); st.put(10, f"v_or_b32 v{vL4}, v{vL4}, v{vT}")
        flagjob(J, "kvf", "kv", sFKV, OPT["fdelay"]); flagjob(J, "qf", "qs", sFQ, OPT["qfd"])
        if nod: J.place(st, gs, OPT["capn"], XG3)
        elif gs == 8: J.place(st, gs, OPT["capq"], XG2)
        else: J.place(st, gs, OPT["capb"])
        if gs == 12: assert not J.jobs and max(J.at.values()) < 12*64; gsetup(st); pflag(st)
        if gs in (4, 5): xwait(st, f"x1{gs+1}")
        if 6 <= gs < 13: xwait(st, f"x2{gs-6}")
        return st
    def btouch(gs):
        for _ in range(OPT["tb"].count(gs) if OPT["tch"] else 0): a(touch("B"))
    btouch(-1)
    for gs in range(6): bstage(gs).emit(a); btouch(gs)
    def q_items(qb):
        items = []; cnt = 0
        for ud in range(8):
            blk = ud >> 1
            for qt in range(2):
                e = 16*blk+15+3
                t = vT + 16 + (cnt % 4)*4; cnt += 1
                for i in range(4):
                    jp = 2*(ud & 1) + (i >> 1); tl = 4*blk + 2*(i & 1)
                    items.append((f"v_cvt_pk_bf16_f32 v{t+i}, v{O(tl,qt)+jp}, v{O(tl+1,qt)+jp}", 0, e, 2*blk))
                for i in range(4): items.append((f"v_accvgpr_write_b32 a{Q(qb,qt,ud)+i}, v{t+i}", 0, e, 99 if ud >= 5 else -1))
        return items
    st = bstage(6); st7 = bstage(7)
    mid, st0 = split_chain(q_items(0), st, lambda: copy.deepcopy(st7), lambda ud: 8*ud-1)
    print("E1 mid", len(mid), file=sys.stderr)
    st.emit(a); btouch(6); emit_mid(mid)
    stamp(3)
    st0.emit(a); btouch(7)
    for gs in range(8, 13): bstage(gs).emit(a); btouch(gs)
    st = bstage(13)
    assert not J.jobs
    print("B jobs", {k: (v >> 6, v & 63) for k, v in J.at.items()}, file=sys.stderr)
    def mk_fa2():
        STUBS[:] = [x for x in STUBS if "fa2" not in x[0]]
        POLLS[:] = [x for x in POLLS if x[0] != "kv2b"]
        def pre(st): poll_issue(st, 1, vL4, sFKVP, "kv2b"); poll_check(st, 58, vL4, sFKVP, "kv2b", False)
        st = mk_F(0, "fa2", pre); c = Chain(finit()); c.fill(st, 0, 30); return st
    mid, st0 = split_chain(q_items(128), st, mk_fa2, lambda ud: 60)
    print("E2 mid", len(mid), file=sys.stderr)
    st.emit(a); emit_mid(mid)
    qi_ = q_items(128); q_rest = qi_[qi_.index(mid[-1])+1:]
    btouch(13)
    stamp(4)
    a(f"s_cmp_eq_u32 s{sU1}, 0")
    a("s_cbranch_scc1 L_b0")
    st0.emit(a)
    f_end("fa2", None, "L_u2")
    def steady(b, qb, tag, czero=False, pre=None, last=False):
        st = Stage(mf_pv(0, b^1, czero) + mf_qk(1, b^1, qb)); common_fill(st, rk=OPT["kz"] and not pre)
        if b == 1 and not last: st.put(1, f"buffer_load_dword v{vPOLL}, v{vPV}, {WS}, s{sPOLL} offen sc1")
        if tag == "z1":
            st.put(OPT["pfg"]-1, "s_waitcnt vmcnt(@since:pts)")
            st.put(OPT["pfg"], f"buffer_store_dword v{vONE}, v{vFLG}, {WS}, s{sFQ} offen sc1")
        if pre: pre(st)
        if b == 0 and not last:
            st.put(56, f"s_sub_u32 s{sCNT}, s{sCNT}, 1")
            st.put(58, f"s_cmp_lg_u32 s{sCNT}, s{sEV}")
            st.scc_busy |= set(range(58, 64))
        place_sm(st, b, 0, 62, tag); st.schedule()
        if st.over or st.tail: print("steady over", tag, st.over, len(st.tail), file=sys.stderr)
        st.emit(a)
        a(f"s_cbranch_vccnz L_dorare_{tag}")
        a.label(f"L_norare_{tag}")
        STUBS.append((f"L_dorare_{tag}", f"L_rare{b}", f"L_norare_{tag}"))
    def loop(qb, n):
        a.label(f"L_s1z{n}")
        steady(1, qb, f"z{n}", True)
        a(f"s_branch L_mid{n}")
        merge(f"L_steady{n}", True)
        steady(1, qb, f"s1{n}")
        merge(f"L_mid{n}")
        steady(0, qb, f"s0{n}")
        a(f"s_cbranch_scc1 L_steady{n}")
        a.label(f"L_exit{n}")
    def gvar(qb, n):
        merge(f"L_gv{n}")
        a(f"""
        s_mov_b32 s{sEV}, s{sEVN}
        s_waitcnt vmcnt(16)
        v_cmp_ne_u32 vcc, 1, v{vPOLL}
        s_add_u32 s{sT+3}, s{sGC}, {4*PS_SRC}
        s_nop 3
        s_cbranch_vccnz L_pw_gv{n}
        L_po_gv{n}:
        s_cmp_eq_u32 s{sEV}, 0
        s_cselect_b32 s{sPOLL}, {OOB}, s{sFQ}
        v_mov_b32 v{vPV}, v{vFLG}
        """)
        POLLS.append((f"gv{n}", vPV, sPOLL, False))
        for b in (1, 0):
            def pre(st):
                for k, g in enumerate(OPT["ptg"]):
                    i = (1-b)*8+k; og, p, sg = i >> 2, (i >> 1) & 1, i & 1
                    st.put(g, f"buffer_load_dwordx4 {ar(GL+i*4,4)}, v{(vS, vS2)[sg]}, {WS}, s{(sGC, sT+3)[sg]} offen offset:{p*1024+og*256} sc1")
            steady(b, qb, f"gv{b}{n}", pre=pre)
        a(f"s_cbranch_scc1 L_steady{n}")
        a(f"s_branch L_exit{n}")
    loop(0, 0)
    a(f"s_cmp_eq_u32 s{sCNT}, 0")
    a("s_cbranch_scc1 L_end0")
    a(f"s_cmp_eq_u32 s{sEV}, 1")
    a(f"s_mov_b32 s{sEV}, 0")
    a("s_cbranch_scc1 L_ptl")
    gvar(0, 0)
    a.label("L_u2")
    for i in range(64): a(f"v_mov_b64 {vr(O0+2*i,2)}, 0")
    merge("L_end0")
    a(f"s_cmp_ge_u32 s{sTYPE}, 2")
    a("s_cbranch_scc1 L_lpack")
    a.label("L_ptl")
    a(f"""
    s_waitcnt vmcnt(16)
    v_cmp_ne_u32 vcc, 1, v{vPOLL}
    s_add_u32 s{sT+3}, s{sPT}, 16384
    s_cmp_eq_u32 s{sCNT}, 0
    s_cbranch_scc1 L_ptb
    s_bitcmp1_b32 vcc_lo, 0
    s_cbranch_scc1 L_steady0
    buffer_load_dwordx4 {vr(vSTB,4)}, v{vL16}, {WS}, s{sT+3} offen sc1
    """)
    for b in (1, 0):
        def pre(st):
            for k, g in enumerate(OPT["ptg"]):
                i = (1-b)*8+k
                if i % 4 == 0: st.put(g-1, f"s_add_u32 s{sT+3}, s{sPT}, {i*1024}")
                st.put(g, f"buffer_load_dwordx4 {ar(128+4*i,4)}, v{vL16}, {WS}, s{sT+3} offen offset:{(i&3)*1024} sc1")
        steady(b, 0, f"pt{b}", pre=pre, last=True)
    a("s_branch L_ln")
    merge("L_ptb")
    a("s_bitcmp1_b32 vcc_lo, 0")
    a("s_cbranch_scc1 L_pw_pt")
    a.label("L_po_pt")
    POLLS.append(("pt", vFLG, sFQ, True))
    a(f"@@buffer_load_dwordx4 {vr(vSTB,4)}, v{vL16}, {WS}, s{sT+3} offen sc1")
    for i in range(16):
        if i % 4 == 0: a(f"s_add_u32 s{sT+3}, s{sPT}, {i*1024}")
        a(f"buffer_load_dwordx4 {ar(128+4*i,4)}, v{vL16}, {WS}, s{sT+3} offen offset:{(i&3)*1024} sc1 ; @ptl")
    a.label("L_ln")
    def pack_items(e0, step):
        items = []
        for ud in range(8):
            for qt in range(2):
                regs = [O(2*ud,qt)+i for i in range(4)] + [O(2*ud+1,qt)+i for i in range(4)]
                for i in range(4): items.append((f"v_cvt_pk_bf16_f32 v{regs[i]}, v{regs[2*i]}, v{regs[2*i+1]}", 0, e0+step*ud, ud))
        return items
    def mk_L(tag):
        st = Stage(mf_pv(0, 0) + mf_pv(1, 1)); common_fill(st)
        place_sm(st, 1, 0, 30, tag); st.schedule()
        st.put_post(31, f"s_cbranch_vccnz L_dorare_{tag}")
        st.put_post(31, f"L_norare_{tag}:")
        STUBS.append((f"L_dorare_{tag}", "L_rare1", f"L_norare_{tag}"))
        st.put(32, f"v_add_f32 v{vL[0]}, v{vL[0]}, v{vSUM[0][0]}")
        st.put(34, f"v_add_f32 v{vL[1]}, v{vL[1]}, v{vSUM[1][0]}")
        return st
    st = mk_L("ln")
    c = [(f"v_bfe_u32 v{vT+20}, v{vLANE}, 2, 2", 0), (f"v_lshrrev_b32 v{vT+21}, 4, v{vLANE}", 0), (f"v_cmp_eq_u32 s[{sT+4}:{sT+5}], v{vT+20}, v{vT+21}", 0),
         (f"v_and_b32 v{vT+20}, 3, v{vLANE}", 0), (f"v_lshlrev_b32 v{vT+20}, 4, v{vT+20}", 0), (f"v_mov_b32 v{vT+22}, 0x3f80", 0), (f"v_mov_b32 v{vT+23}, 0", 0),
         (f"v_cndmask_b32 v{vT+22}, 0, v{vT+22}, s[{sT+4}:{sT+5}]", 1), (f"v_lshlrev_b64 {vr(vSEL+2,2)}, v{vT+20}, {vr(vT+22,2)}", 0),
         (f"v_mov_b64 {vr(vSEL,2)}, 0", 0), (f"v_mov_b64 {vr(vSEL+4,2)}, 0", 0),
         ("s_waitcnt vmcnt(@since:ptl)", 1, 55),
         (f"v_cmp_neq_f32 vcc, v{NEGM(0)}, v{vSTB}", 1), (f"v_cmp_neq_f32 s[{sT+4}:{sT+5}], v{NEGM(1)}, v{vSTB+1}", 0)]
    c = Chain(c); c.fill(st, 35); assert not c.items
    st.emit(a)
    a(f"s_or_b64 vcc, vcc, s[{sT+4}:{sT+5}]")
    a("s_cbranch_scc1 L_slowcomb")
    a.label("L_comb")
    stamp(5)
    mf = []
    for ud in range(8):
        for h in range(2):
            for qt in range(2):
                d = vr(O(2*ud+h,qt),4)
                mf.append(f"{MF} {d}, {vr(vSEL+2-2*h,4)}, {ar(128+(ud*2+qt)*4,4)}, {d}")
    st = Stage(mf)
    st.put(0, f"v_add_f32 v{vL[0]}, v{vL[0]}, v{vSTB+2}")
    st.put(0, f"v_add_f32 v{vL[1]}, v{vL[1]}, v{vSTB+3}")
    c = Chain(pack_items(6, 4)); c.fill(st, 0, 31)
    st.emit(a)
    a("s_nop 5")
    c.flush(a)
    a("s_branch L_post2")
    merge("L_lpack")
    st = mk_L("lp")
    c = Chain([(f"v_mov_b32 v{vSTAT}, v{NEGM(0)}", 0), (f"v_mov_b32 v{vSTAT+1}, v{NEGM(1)}", 0), (f"v_mov_b64 {vr(vSTAT+2,2)}, {vr(vL[0],2)}", 0)] + pack_items(38, 4))
    c.fill(st, 35)
    st.put(62, f"s_cmp_eq_u32 s{sTYPE}, 2")
    st.emit(a)
    a("s_nop 5")
    print("Lpack tail", len(c.items), file=sys.stderr)
    c.flush(a)
    a("s_cbranch_scc0 L_post2b")
    a.label("L_seg2")
    stamp(5)
    a(f"""
    s_mov_b32 s{sTYPE}, 3
    s_mov_b32 s{sN}, 0
    s_sub_u32 s{sND}, 15, s{sQI}
    s_lshl_b32 s{sND}, s{sND}, 2
    s_add_u32 s{sND}, s{sND}, s{sWAVE}
    s_lshr_b32 s{sCNT}, s{sU2}, 1
    s_sub_u32 s{sCNT}, s{sCNT}, 1
    s_sub_u32 s{sEV}, 7, s{sJ}
    s_add_u32 s{sT+3}, s{sPT}, 16384
    buffer_store_dwordx4 {vr(vSTAT,4)}, v{vL16}, {WS}, s{sT+3} offen sc1
    """)
    def pre_fb(st): poll_issue(st, 1, vL4, sFKVP, "kv2c"); poll_check(st, 58, vL4, sFKVP, "kv2c", False)
    st = mk_F(128, "fb", pre_fb)
    c = []
    for i in range(16):
        if i % 4 == 0: c.append((f"s_add_u32 s{sT+3}, s{sPT}, {i*1024}", 1))
        c.append((f"buffer_store_dwordx4 {vr(O(2*(i>>1),i&1),4)}, v{vL16}, {WS}, s{sT+3} offen offset:{(i&3)*1024}{OPT['kvsc']} ; @pts", 1))
    c = Chain(c); c.fill(st)
    c2 = Chain(finit()); c2.fill(st, 0, 30); assert not c2.items
    print("Fb leftover", len(c.items), file=sys.stderr)
    st.emit(a)
    c.flush(a)
    f_end("fb", None, "L_end")
    loop(128, 1)
    a(f"s_cmp_eq_u32 s{sCNT}, 0")
    a("s_cbranch_scc1 L_lpack")
    gvar(128, 1)
    a.label("L_post2b")
    merge("L_post2")
    stamp(6)
    a("s_nop 1")
    CO, FP, XO, BO = sU2, sW0, sCNT, sN
    CS = [sU1, sEV, sND, sPT]
    vXO, vBO, vFS = 44, 45, 48
    XB, BB, SEL = 96, 104, 112
    fs = f"""
    s_load_dwordx2 s[{sSA}:{sSA+1}], s[0:1], 0
    s_load_dwordx2 s[{sG}:{sG+1}], s[0:1], 80
    s_load_dwordx2 s[{sSB}:{sSB+1}], s[0:1], 88
    s_mov_b32 s{sSA+2}, {2048*896}
    s_mov_b32 s{sSB+2}, {2048*896}
    s_mov_b32 s{sG+2}, 896
    s_and_b32 s{sT}, s2, 3
    s_lshl2_add_u32 s{sT}, s{sWAVE}, s{sT}
    s_sub_u32 s{CO}, s{sGC}, {16*PS_SRC}
    s_lshr_b32 s{FP}, s2, 2
    s_mul_i32 s{XO}, s{FP}, {32*896}
    s_lshl_b32 s{FP}, s{FP}, 7
    s_add_u32 s{FP}, s{FP}, {WS_FLG + FL_S}
    s_lshr_b32 s{BO}, s{sT}, 1
    s_lshl_b32 s{BO}, s{BO}, 7
    s_add_u32 s{XO}, s{XO}, s{BO}
    s_and_b32 s{sT+4}, s{sT}, 1
    s_mul_i32 s{sT+4}, s{sT+4}, {16*896}
    s_add_u32 s{XO}, s{XO}, s{sT+4}
    v_and_b32 v{vXO}, 15, v{vLANE}
    v_lshlrev_b32 v{vFS}, 2, v{vXO}
    v_lshrrev_b32 v{vBO}, 4, v{vLANE}
    v_lshlrev_b32 v{vBO}, 3, v{vBO}
    v_and_b32 v{vS2}, 1, v{vLANE}
    v_mul_u32_u24 v{vS2}, 0xffff, v{vS2}
    v_add_u32 v{vS2}, 1, v{vS2}
    v_mul_u32_u24 v{vS2}, 0x3f80, v{vS2}
    v_lshrrev_b32 v{vXO}, 1, v{vXO}
    """
    fs = [(x.strip(), 1) for x in fs.split("\n") if x.strip()]
    fsS = [x for x in fs if x[0][0] == "s"]; fs = [(x[0], 0) for x in fs if x[0][0] == "v"]
    for k in range(8):
        fs += [(f"v_cmp_eq_u32 s[{sT+4}:{sT+5}], {k}, v{vXO}", 1), (f"v_cndmask_b32 v{SEL+k}, 0, v{vS2}, s[{sT+4}:{sT+5}]", 2)]
    fs += [(x, 1) for x in (f"v_and_b32 v{vXO}, 15, v{vLANE}", f"v_mul_u32_u24 v{vXO}, 896, v{vXO}", f"v_add_u32 v{vXO}, v{vXO}, v{vBO}")]
    fs += fsS
    fs.append((f"s_cmp_lt_u32 s{sT}, 14\ns_cselect_b32 s{XO}, s{XO}, {OOB}", 1))
    fs.append((f"s_cmp_eq_u32 s{sWAVE}, 0\ns_cselect_b32 s{FP}, s{FP}, {OOB}", 1))
    fs = Chain(fs)
    J = Jobs()
    glate = []
    for k in range(4):
        J.add("gl", None, f"buffer_load_dwordx2 {vr(XB+2*k,2)}, v{vXO}, {sr(sSA,4)}, s{XO} offen offset:{k*32}", 3*64, 7*64)
        J.add("gl", None, f"buffer_load_dwordx2 {vr(BB+2*k,2)}, v{vBO}, {G}, s{BO} offen offset:{k*32} ; @gl", 3*64, 7*64)
    for s in range(7):
        st = Stage(mf_post(s)); common_fill(st, dma=(s < 3), nd=(None, None, None, 16, 8, 0, 0)[s], last=(s == 6))
        if s == 0:
            c = xlane_ops("v_add_f32", vL[0], vT) + xlane_ops("v_add_f32", vL[1], vT) + [(f"v_rcp_f32 v{vRINV[0]}, v{vL[0]}", 0), (f"v_rcp_f32 v{vRINV[1]}, v{vL[1]}", 1)]
            c = Chain(c); c.fill(st); assert not c.items
            fs.fill(st)
        else:
            gaps = [17, 33, 49, 57]
            post_place(st, s-1, True, sPSS, gaps)
            if s == 2: st.put(60, "s_waitcnt lgkmcnt(0)")
            J.place(st, s, 3, [1, 9, 13, 25, 29, 41, 45, 61])
            post_sched(st, s-1, True, gaps)
            fs.fill(st, 0, 63 if s == 1 else 34)
            if s == 2: assert not fs.items, len(fs.items)
        st.emit(a)
    assert not J.jobs
    post_flush(6, True, sPSS)
    stamp(7)
    a(f"s_mov_b32 s{sT+6}, 0xffff0000")
    a(f"s_mov_b32 s{sT+7}, {f2u(-1.4426950408889634):#x}")
    LB = 128
    GA, SA_, XF = 12, 64, 80
    def rnd_pair(r0, r1, t):
        a(f"v_cvt_pk_bf16_f32 v{t}, v{r0}, v{r1}")
        a(f"v_lshlrev_b32 v{r0}, 16, v{t}")
        a(f"v_and_b32 v{r1}, s{sT+6}, v{t}")
    T1, T2, T3 = 2, 3, 4
    def flag():
        a("s_waitcnt vmcnt(@since:ps)")
        a(f"buffer_store_dword v{vONE}, v{vFLG}, {WS}, s{sFSS} offen sc1")
    def gmath(fpos):
        for n in range(16):
            d = vr(GA+(n >> 2)*4, 4)
            a(f"{MF} {d}, {vr(SEL+((n >> 1) & 1)*4,4)}, {ar(GL+n*4,4)}, {d if n & 3 else 0}")
        for i in range(8):
            a(f"v_lshlrev_b32 v{XF+2*i}, 16, v{XB+i}")
            a(f"v_and_b32 v{XF+2*i+1}, s{sT+6}, v{XB+i}")
        for i in range(8):
            g0, g1 = GA+2*i, GA+2*i+1
            if i == fpos: flag()
            rnd_pair(g0, g1, T1)
            a(f"v_lshlrev_b32 v{T2}, 16, v{BB+i}")
            a(f"v_and_b32 v{T3}, s{sT+6}, v{BB+i}")
            a(f"v_add_f32 v{g0}, v{g0}, v{T2}")
            a(f"v_add_f32 v{g1}, v{g1}, v{T3}")
            rnd_pair(g0, g1, T1)
            a(f"v_mul_f32 v{T2}, s{sT+7}, v{g0}")
            a(f"v_mul_f32 v{T3}, s{sT+7}, v{g1}")
            a(f"v_exp_f32 v{T2}, v{T2}")
            a(f"v_exp_f32 v{T3}, v{T3}")
            a("s_nop 0")
            a(f"v_add_f32 v{T2}, 1.0, v{T2}")
            a(f"v_add_f32 v{T3}, 1.0, v{T3}")
            a(f"v_rcp_f32 v{T2}, v{T2}")
            a(f"v_rcp_f32 v{T3}, v{T3}")
            a("s_nop 0")
            a(f"v_mul_f32 v{g0}, v{g0}, v{T2}")
            a(f"v_mul_f32 v{g1}, v{g1}, v{T3}")
            rnd_pair(g0, g1, T1)
    if not glate:
        a("s_waitcnt vmcnt(@since:gl)"); gmath(OPT["fpos"])
    else:
        if OPT["glate"] == 2: flag()
        for x in glate: a(x)
        if OPT["glate"] == 1: flag()
    for k in range(4): a(f"s_add_u32 s{CS[k]}, s{CO}, {4*k*PS_SRC}")
    a(f"s_mov_b32 s{sT+1}, 0")
    a(f"s_cmp_lg_u32 s{sWAVE}, 0")
    a("s_cbranch_scc1 L_fgo")
    a.label("L_fpoll")
    a(f"""
    buffer_load_dword v{vPOLL}, v{vFS}, {WS}, s{FP} offen sc1
    s_add_u32 s{sT+1}, s{sT+1}, 1
    s_waitcnt vmcnt(0)
    v_cmp_ne_u32 vcc, 1, v{vPOLL}
    s_cmp_lt_u32 s{sT+1}, 0x10000
    s_cbranch_vccz L_fgo
    s_sleep {OPT['fsleep']}
    s_cbranch_scc1 L_fpoll
    """)
    a.label("L_fgo")
    a("s_barrier")
    stamp(8)
    if stamps: a("s_waitcnt lgkmcnt(0)")
    for n in range(32):
        og, p, sg = n >> 3, (n >> 2) & 1, n & 3
        a(f"buffer_load_dwordx4 {vr(LB+n*4,4)}, v{vS}, {WS}, s{CS[sg]} offen offset:{p*1024+og*256} sc1 ; @f{n}")
    if glate:
        a("s_waitcnt vmcnt(32)"); gmath(-1)
    def fin(og):
        for i in (2*og, 2*og+1):
            g0, g1, s0, s1 = GA+2*i, GA+2*i+1, SA_+2*i, SA_+2*i+1
            rnd_pair(s0, s1, T1)
            a(f"v_mul_f32 v{g0}, v{g0}, v{s0}")
            a(f"v_mul_f32 v{g1}, v{g1}, v{s1}")
            rnd_pair(g0, g1, T1)
            a(f"v_add_f32 v{g0}, v{g0}, v{XF+2*i}")
            a(f"v_add_f32 v{g1}, v{g1}, v{XF+2*i+1}")
            a(f"v_cvt_pk_bf16_f32 v{XB+i}, v{g0}, v{g1}")
        a(f"buffer_store_dwordx2 {vr(XB+2*og,2)}, v{vXO}, {sr(sSB,4)}, s{XO} offen offset:{og*32}")
    for n in range(32):
        if n & 1 == 0: a(f"s_waitcnt vmcnt(@since:f{n+1})")
        d = vr(SA_+(n >> 3)*4, 4)
        a(f"{MF} {d}, {vr(SEL+((n >> 2) & 1)*4,4)}, {vr(LB+n*4,4)}, {d if n & 7 else 0}")
        if n & 7 == 3 and n > 8: fin((n >> 3) - 1)
    a("s_nop 7"); a("s_nop 0")
    fin(3)
    a.label("L_fin")
    if stamps:
        a("s_waitcnt vmcnt(0)")
        stamp(9)
        a("s_waitcnt lgkmcnt(0)")
        if OPT["enc"] >= 0:
            a(f"""
            s_and_b32 s{sT+1}, s2, {OPT["encw"][0]}
            s_cmp_eq_u32 s{sT+1}, {OPT["encw"][1]}
            s_cbranch_scc0 L_end
            s_sub_u32 s{sT+1}, s{streg(OPT["enc"])}, s{streg(OPT["enc0"])}
            s_mul_i32 s{sT+1}, s{sT+1}, {OPT["enck"]}
            s_add_u32 s{sT+1}, s{sT+1}, s{streg(0)}
            s_add_u32 s{sT+1}, s{sT+1}, 10000
            s_mov_b32 s{sT+2}, 0
            L_enc:
            s_memrealtime s[{sT+4}:{sT+5}]
            s_add_u32 s{sT+2}, s{sT+2}, 1
            s_waitcnt lgkmcnt(0)
            s_cmp_gt_u32 s{sT+2}, 1000000
            s_cbranch_scc1 L_end
            s_sub_u32 s{sT+4}, s{sT+4}, s{sT+1}
            s_cmp_lt_i32 s{sT+4}, 0
            s_cbranch_scc1 L_enc
            s_endpgm
            """)
        for i in range(12): a(f"v_mov_b32 v{16+i}, s{streg(min(i,9))}")
        a(f"""
        s_lshl_b32 s{sT+1}, s2, 2
        s_add_u32 s{sT+1}, s{sT+1}, s{sWAVE}
        s_lshl_b32 s{sT+1}, s{sT+1}, 6
        s_add_u32 s{sT+1}, s{sT+1}, {WS_STAMP}
        buffer_store_dwordx4 v[16:19], v{vFLG}, {WS}, s{sT+1} offen
        buffer_store_dwordx4 v[20:23], v{vFLG}, {WS}, s{sT+1} offen offset:16
        buffer_store_dwordx4 v[24:27], v{vFLG}, {WS}, s{sT+1} offen offset:32
        s_sub_u32 s{sT+1}, s{sT+1}, {WS_STAMP}
        s_lshl_b32 s{sT+1}, s{sT+1}, 3
        s_add_u32 s{sT+1}, s{sT+1}, {WS_STAMP + 0x100000}
        v_lshlrev_b32 v2, 2, v{vLANE}
        buffer_store_dword v0, v2, {WS}, s{sT+1} offen
        buffer_store_dword v{vKV}, v2, {WS}, s{sT+1} offen offset:256
        """)
    a.label("L_end")
    a("s_endpgm")
    for typ in ("K", "V"):
        for nm, ok, ldi, red, reg in (("zwait", "zok", f"buffer_load_dword v{vPOLL}, v{vL4}, {sr(sDBG,4)}, 0 offen sc1", "", vPOLL),
                ("prepwait", "prepok", f"buffer_load_dwordx4 {vr(PV,4)}, v{vL16}, {WS}, s{gIT} offen sc1",
                 f"v_and_b32 v{PV}, v{PV}, v{PV+1}\nv_and_b32 v{PV+2}, v{PV+2}, v{PV+3}\nv_and_b32 v{PV}, v{PV}, v{PV+2}", PV)):
            a.label(f"L_{nm}{typ}")
            a(f"s_mov_b32 s{sT+4}, 0")
            a.label(f"L_{nm}2{typ}")
            a(f"""
            s_sleep 4
            {ldi}
            s_add_u32 s{sT+4}, s{sT+4}, 1
            s_waitcnt vmcnt(0)
            {red}
            v_cmp_ne_u32 vcc, s{sT+1}, v{reg}
            s_cmp_ge_u32 s{sT+4}, 0x10000
            s_cbranch_scc1 L_{ok}{typ}
            s_nop 2
            s_cbranch_vccnz L_{nm}2{typ}
            s_branch L_{ok}{typ}
            """)
    for (tag, voff, soff, lane0) in POLLS:
        a.label(f"L_pw_{tag}")
        a(f"s_mov_b32 s{sT+1}, 0")
        a.label(f"L_pw2_{tag}")
        a(f"""
        buffer_load_dword v{vPOLL}, v{voff}, {WS}, s{soff} offen sc1
        s_add_u32 s{sT+1}, s{sT+1}, 1
        s_waitcnt vmcnt(0)
        v_cmp_ne_u32 s[{sT+4}:{sT+5}], 1, v{vPOLL}
        s_cmp_ge_u32 s{sT+1}, 0x10000
        s_cbranch_scc1 L_po_{tag}
        s_sleep {OPT['psleep']}
        """)
        if lane0 is True: a(f"s_bitcmp1_b32 s{sT+4}, 0")
        else: a(f"s_cmp_lg_u64 s[{sT+4}:{sT+5}], 0")
        a(f"s_cbranch_scc1 L_pw2_{tag}")
        a(f"s_branch L_po_{tag}")
    a.label("L_b0")
    Chain(q_rest).flush(a)
    a(f"s_mov_b32 s{sPT}, {OOB}")
    a("s_branch L_seg2")
    a.label("L_stubs")
    a("s_nop 0")
    for (lab, sub, back) in sorted(STUBS, key=lambda x: "mask" in x[1]):
        a.label(lab)
        if "mask" in sub and OPT["im"]:
            b = int(sub[-1]); big = vr(vBIG, 2)
            a(f"s_cmp_eq_u32 s{sN}, s{sND}")
            a(f"v_mov_b32 v{vRK}, 0x40000")
            a(f"s_cbranch_scc0 {lab}_all")
            for q in (S(b,0,0), S(b,1,1)):
                for r in range(4): a(f"v_cndmask_b32 v{q+r}, v{q+r}, v{vBIG}, s[{sMASK+2*r}:{sMASK+2*r+1}]")
            for r in (0, 2): a(f"v_mov_b64 {vr(S(b,1,0)+r,2)}, {big}")
            a(f"s_branch {back}")
            a.label(f"{lab}_all")
            for q in (S(b,0,0), S(b,0,1), S(b,1,1), S(b,1,0)):
                for r in (0, 2): a(f"v_mov_b64 {vr(q+r,2)}, {big}")
            a(f"s_branch {back}")
            continue
        a(f"s_call_b64 s[{sRET}:{sRET+1}], {sub}")
        a(f"s_branch {back}")
    for b in range(0 if OPT["im"] else 2):
        a.label(f"L_mask{b}")
        a("s_nop 7")
        a(f"s_cmp_eq_u32 s{sN}, s{sND}")
        a(f"s_cbranch_scc0 L_maskall{b}")
        for r in range(4):
            a(f"v_cndmask_b32 v{S(b,0,0)+r}, v{S(b,0,0)+r}, v{vBIG}, s[{sMASK+2*r}:{sMASK+2*r+1}]")
            a(f"v_cndmask_b32 v{S(b,1,1)+r}, v{S(b,1,1)+r}, v{vBIG}, s[{sMASK+2*r}:{sMASK+2*r+1}]")
            a(f"v_mov_b32 v{S(b,1,0)+r}, v{vBIG}")
        a(f"s_setpc_b64 s[{sRET}:{sRET+1}]")
        a.label(f"L_maskall{b}")
        for i in range(16): a(f"v_mov_b32 v{S(b,0,0)+i}, v{vBIG}")
        a(f"s_setpc_b64 s[{sRET}:{sRET+1}]")
    a.label("L_fchk")
    hi, lo = f2u(2.0**OPT["thr"]), f2u(2.0**-OPT["thr"])
    a(f"s_add_u32 s{sT+1}, s{sND}, 1")
    a(f"s_cmp_gt_u32 s{sN}, s{sT+1}")
    a("s_cbranch_scc1 L_fret")
    for qt in range(2):
        a(f"v_mov_b32 v{vT+8+qt}, v{vSUM[qt][0]}")
        xlane(a, "v_add_f32", vT+8+qt, vT)
        a(f"v_subrev_u32 v{vT+8+qt}, {lo:#x}, v{vT+8+qt}")
    a(f"v_max_u32 v{vT+8}, v{vT+8}, v{vT+9}")
    a(f"v_cmp_lt_u32 vcc, {hi-lo:#x}, v{vT+8}")
    a("s_nop 4")
    a("s_cbranch_vccnz L_rare0")
    a.label("L_fret")
    a(f"s_setpc_b64 s[{sRET}:{sRET+1}]")
    for b in range(2):
        a.label(f"L_rare{b}")
        a("s_nop 7")
        D = [vT+8, vT+9]; F = [vT+10, vT+11]
        for qt in range(2):
            r0, r1 = S(b,0,qt), S(b,1,qt)
            a(f"v_max3_f32 v{D[qt]}, v{r0}, v{r0+1}, v{r0+2}")
            a(f"v_max3_f32 v{D[qt]}, v{D[qt]}, v{r0+3}, v{r1}")
            a(f"v_max3_f32 v{D[qt]}, v{D[qt]}, v{r1+1}, v{r1+2}")
            a(f"v_max_f32 v{D[qt]}, v{D[qt]}, v{r1+3}")
            xlane(a, "v_max_f32", D[qt], vT)
            a(f"v_max_f32 v{D[qt]}, s{sCLAMP}, v{D[qt]}")
            a(f"v_max_f32 v{F[qt]}, 0, v{D[qt]}")
            a(f"v_exp_f32 v{F[qt]}, -v{F[qt]}")
            for i in range(4): a(f"v_sub_f32 v{NEGM(qt)+i}, v{NEGM(qt)+i}, v{D[qt]}")
            for bb in range(2):
                for kt in range(2):
                    for i in range(4): a(f"v_sub_f32 v{S(bb,kt,qt)+i}, v{S(bb,kt,qt)+i}, v{D[qt]}")
            a(f"v_mul_f32 v{vL[qt]}, v{F[qt]}, v{vL[qt]}")
        for o in sm_ops(b): a(o)
        a(f"s_cmp_eq_u32 s{sFIRST}, 1")
        a(f"s_cbranch_scc1 L_rare_ret{b}")
        for dt in range(16):
            for qt in range(2):
                for i in range(4): a(f"v_mul_f32 v{O(dt,qt)+i}, v{F[qt]}, v{O(dt,qt)+i}")
        a.label(f"L_rare_ret{b}")
        a(f"s_cmp_lg_u32 s{sCNT}, s{sEV}")
        a("s_nop 0")
        a(f"s_setpc_b64 s[{sRET}:{sRET+1}]")
    a.label("L_slowcomb")
    a("s_nop 7")
    wA, wB = [vT+8, vT+9], [vT+10, vT+11]
    for qt in range(2):
        a(f"""
        v_min_f32 v{vT+6}, v{NEGM(qt)}, v{vSTB+qt}
        v_sub_f32 v{wA[qt]}, v{vT+6}, v{NEGM(qt)}
        v_sub_f32 v{wB[qt]}, v{vT+6}, v{vSTB+qt}
        v_exp_f32 v{wA[qt]}, v{wA[qt]}
        v_exp_f32 v{wB[qt]}, v{wB[qt]}
        s_nop 0
        v_mul_f32 v{vL[qt]}, v{wA[qt]}, v{vL[qt]}
        v_mul_f32 v{vSTB+2+qt}, v{wB[qt]}, v{vSTB+2+qt}
        """)
    for dt in range(16):
        for qt in range(2):
            for i in range(4): a(f"v_mul_f32 v{O(dt,qt)+i}, v{wA[qt]}, v{O(dt,qt)+i}")
    for i in range(64):
        qt = (i >> 2) & 1
        a(f"""
        v_accvgpr_read_b32 v{vT}, a{128+i}
        v_lshlrev_b32 v{vT+1}, 16, v{vT}
        v_and_b32 v{vT}, 0xffff0000, v{vT}
        v_mul_f32 v{vT+1}, v{wB[qt]}, v{vT+1}
        v_mul_f32 v{vT}, v{wB[qt]}, v{vT}
        v_cvt_pk_bf16_f32 v{vT}, v{vT+1}, v{vT}
        v_accvgpr_write_b32 a{128+i}, v{vT}
        """)
    a("s_nop 1")
    a("s_branch L_comb")
    a.label("L_codeend")
    lines = []
    for l in a.lines: lines += l.split("\n")
    ghost = [l.startswith("@ghost ") for l in lines]
    lines = [l[7:] if g else l for l, g in zip(lines, ghost)]
    lines = resolve_vm(lines)
    lines = [l.replace("@@buffer", "buffer") for l, g in zip(lines, ghost) if not g]
    errs = check_hazards(lines) + check_scc(lines)
    for e in errs[:30]: print("HAZARD", e, file=sys.stderr)
    lines = [re.sub(r"\s*; @.*", "", l) for l in lines]
    lines = [l.strip() for l in lines if l.strip()]
    i, j = lines.index("L_gemmV:"), lines.index("L_P1A:")
    k = lines.index("L_zwaitV:"); k2 = lines.index("s_branch L_prepokV") + 1
    assert lines[i-1] == "s_branch L_P1A"
    r0, r1 = lines.index("L_slowcomb:"), lines.index("L_codeend:")
    u0, u1 = lines.index("L_u2:"), lines.index("L_end0:")
    lines = [".p2align 12"] + lines[i:j] + lines[k:k2] + lines[r0:r1] + [".p2align 12"] + lines[:i-1] + lines[j:u0] + lines[u1:k] + lines[k2:r0] + lines[u0:u1] + ["s_branch L_end0"] + lines[r1:]
    if OPT["tch"]:
        tmp = [re.sub(r"LT_(\w+)_\d", r"LR_\1", l) for l in lines]
        tmp, F = insert_stubs(tmp, [("L_gemmV", "L_zwaitV"), ("L_gK", "L_P1A"), ("L_P1A", "L_P1B"), ("L_P1B", "L_steady0"), ("L_steady0", "L_end0"), ("L_end0", "L_lpack"),
                                    ("L_lpack", "L_post2b"), ("L_post2b", "L_end")], OPT["tlab"], OPT["nox"])
        g = lambda *k: [p for x in k for p in F.get(x, [])]
        pa = g("L_P1A", "L_steady0", "L_end0", "L_post2b"); pb = g("L_P1B", "L_steady0", "L_domask_s10", "L_domask_s00", "L_mask0") + g("L_end0")[:1] + g("L_lpack", "L_domask_lp", "L_domask_s11", "L_domask_s01", "L_post2b")
        pos = {l.split()[-1]: n for n, l in enumerate(tmp)}
        it_ = iter(lines); lines = [l if l.startswith("@") else next(it_) for l in tmp]
        done_ = {}; tgt = {}
        for nm, path in SITES:
            q = dict(K=g("L_gK"), V=g("L_gemmV"), a=pa, b=pb, A=pa, B=pb)[path[0]]
            d = done_.setdefault(path, set(done_.get(path.lower() + "K", ())))
            c = [p for p in q if p not in d and pos[p] > pos[f"LR_{nm}:"]][:4]
            d |= set(c); c += q[-1:]*4
            for w in range(4): tgt[f"LT_{nm}_{w}"] = "L" + c[w]
        print("stubs", F, "\nuntouched A", [p for p in pa if p not in done_["A"]], "B", [p for p in pb if p not in done_["B"]], file=sys.stderr)
        o = []
        for l in lines:
            if l == "@pad": o.append("s_nop 0")
            elif l == "@align": o.append(".p2align 12")
            elif l.startswith("@"):
                p = l.split()[1]; r_ = [f"L{p}:", f"s_setpc_b64 s[{sRET}:{sRET+1}]"]
                if "L" + p not in tgt.values(): o += ["s_nop 0"]*(2 if "stub" in l else 1)
                else: o += [f"s_branch LO{p}"] + r_ + [f"LO{p}:"] if "stub" in l else r_
            else: o.append(re.sub(r"LT_\w+_\d", lambda m: tgt[m.group(0)], l))
        lines = o
    lines = compact(lines)
    return "\n".join(lines) + "\n", kernel_desc(name, 512, 256)

if __name__ == "__main__":
    import ast
    for x in sys.argv[2:]:
        k, v = x.split("=")
        OPT[k] = ast.literal_eval(v)
    NAME = "recurrent_scan__compressed_kv_cla__dense_activation_squared_relu__prompt_kernel"
    body, desc = gen(NAME)
    ref = open("recurrent_scan__compressed_kv_cla__dense_activation_squared_relu__prompt.s.ref").read().split("\n")
    hdr = [l for l in ref if l.startswith(";") and "launch" not in l and "grid=" not in l]
    hdr += ["; @launch grid=(256,1,1) block=(256,1,1) lds=163840", '.amdgcn_target "amdgcn-amd-amdhsa--gfx950"', ".text"]
    txt = "\n".join(hdr) + "\n" + body + '.section .rodata,"a"\n.p2align 6\n' + desc
    open(sys.argv[1], "w").write(txt)
    print(len(txt), "bytes", file=sys.stderr)
```

```python
import sys
from fw import *
from layout2 import *

OPT = dict(fcap=0, dp1=1, ep2=0, bal=1, fsep=0, pr=0, prsc="", prld="", dp=None, clr0=19*64+36, clrs=20, ep=33, inl=["fa2", "fb", "z0", "z1", "lp", "gv10", "gv00", "gv11", "gv01"], inf=["fa2", "fb"], lvl=[(381, 3)], lve=[], epoll=0, nox={"L_steady0": "L_exit0", "L_steady1": "L_exit1", "L_post2b": "L_end"}, gev=[0, 0, 0, 0, 0, 0, 0, 3, 2, 3, 4, 5, 6, 7, 2, 3], gin=16, glate=1, dbgg=0, pfg=57, ptg=[3, 9, 17, 25, 33, 41, 49, 57], pte=10, qa=298, qe=36, qcap=7, qfd=72, kz=0, im=1, prog=0, cap8=36, fpos=3, dbgf=0, hold=0, zid=80, kva0=0, es=[(0, 25), (1, 33), (8, 41), (9, 49), (16, 57), (17, 61), (24, 89), (25, 97), (2, 105), (4, 113), (3, 121), (5, 125)], chg=2, tch=1, tg=[1, 2], tgs=[3], ta=[0, 1, 2], tb=[6, 7, 8], tlab=["L_P1A", "L_P1B", "L_steady0", "L_end0", "L_lpack", "L_steady1", "L_post2b", "L_domask_s10"], cpf2=0, park=[0, 1, 2, 3, 4, 5], pst_n=3, swap=1, n0=[36, 32], enc0=0, enck=10, encw=[0, 0], enc=-1, ntA="", ntB="", ntS=" nt", chq=1, chp=1, cyc=0, npro=6, gcap=[4, 4, 3], dg2=8, xpos=3, rotm=4, rot=4, sync=[6, 10, 12, 15, 20, 22], xstep=20, wbl2=0, pfk=0, pfd=4, pfo=[0], pfn=2, smin=0, voff=0, dbgside=0, tlb=0, tlbm=0, tlbs=16, flit=9, npeel=7, slt=[100, 260, 880], slstep=16, sld=140, map2=False, kvb0=256, kvstepb=16, psleep=4, prep=1, pst=False, cpf=True, fine=False, touch=False, sc1ld=" sc1", stamps=False, early=[5, 13, 21, 29], late=[37, 45, 53, 61], cap=7, capb=8, capq=9, capn=12, kvstep=12, a15=[2, 2], fsleep=2, fdelay=96, qstep=7, wideloop=False, thr=40, kvsc=" sc1", sidesc=" sc1")

vLANE, vDMA, vTE, vTO, vL16, vRD, vPOLL, vFLG, vONE, vL4, vKV = range(1, 12)
DA = [12, 13, 14, 15]; DB = [16, 17, 18, 19]; RA = [20, 21]; RB = [22, 23, 24, 25]
vSW, vSF, vSX, vG1 = 26, 27, 28, 29
GT = 30
vT = 12
BP = [0, 2, 3, 1]
BIAS = 12
O0 = 128
def O(dt, qt): return O0 + (dt*2+qt)*4
def S(b, kt, qt): return 64 + b*16 + (kt*2+qt)*4
def P(b, qt): return 96 + b*8 + qt*4
def NEGM(qt): return 112 + qt*4
vL = [120, 121]
vSUM = [[122, 123], [124, 125]]
vBIG = 126
vRK = 60
vS, vS2, vPV = 61, 62, 63
GL = 192
vSTAT = 44
vSEL = 48
vRINV = [54, 55]
vSTB = 56
def accreg(pos): return vr(48+4*pos, 4) if pos < 52 else ar(208+4*(pos-52), 4)
NE = 6
def ENL(): return [c for c in range(32) if c not in dict(OPT["es"])]
def PK(c):
    if OPT["es"]:
        k = ENL().index(c) if c in ENL() else 20 + [x[0] for x in OPT["es"]].index(c)
        return 48+4*k
    return 48+4*c if c < 20 else (48+4*(c-20) if c < 20+NE else 48+4*(20+c))
def Q(qb, qt, u): return qb + (qt*8+u)*4
def FR(f): return 64 + (f % 16)*4
def X(qt, u): return 128 + (u*2+qt)*4
def FA(b, m): return (64 if b == 0 else 0) + m*4
def FB(b, n): return (64 if b == 0 else 0) + 32 + n*4
def CA(m, kk): return (96 + m*8 + kk*4) % 128
def CB(n, kk): return (64 if n < 4 else 32) + (n & 3)*8 + kk*4
def QU(u): return ((u >> 1) & 1)*4 + (u >> 2)*2 + (u & 1) if OPT["chg"] == 2 else u
WOL = 192
SLD = 128

sWS, sSA, sSB, sG, sDBG = 4, 8, 12, 16, 20
_n = [24]
def sal(n=1, al=1):
    _n[0] = (_n[0] + al - 1)//al*al
    r = _n[0]; _n[0] += n; return r
sWAVE, sHEAD, sJ, sQI, sWHICH = [sal() for _ in range(5)]
gA0, gA1, gB0, gB1, gMA, gMB, gIT, gD, gCNT, gFL = [sal() for _ in range(10)]
sTAU, sM0, sOFFA, sOFFB, sRDD, sRDS, sXOFF, sXOF2, sN, sND = gA0, gA1, gB0, gB1, gD, gCNT, sal(), sal(), sal(), sal()
sCNT, sEV, sCLAMP, sFIRST = sal(), sal(), sal(), sal()
sRET = sal(2, 2)
sMASK = sal(8, 4)
sTYPE, sU1, sU2, sW0 = sal(), sal(), sal(), sal()
sKVB, sKVI = sal(), sal()
sQST, sPT, sPSG, sPSS = sal(), sal(), sal(), sal()
sFKV, sFKVP, sFQ, sFSG, sFSS = [sal() for _ in range(5)]
sT = sal(8, 4)
sLN = sal(2, 2)
sFS = sal(2, 2); sW4K = 3
sGC, sPOLL, sEVN = sKVB, sKVI, sFKV
sPF = sRET; sPD = sT+5; sEXP = gFL
sSTAMP = sal(0, 2)
NSTAMP = (102 - sSTAMP)//2
print("sgpr used", sSTAMP, "stamps", NSTAMP, file=sys.stderr)
WS = sr(sWS, 4)

STUBS = []
def ld(): return OPT["sc1ld"]
def FT(): return "s_memtime" if OPT["cyc"] else "s_memrealtime"

XG = [1, 9, 17, 25, 33, 41, 49, 57]
XG4 = list(range(1, 64, 4))
def common_fill(st, dma=True, nd=None, last=False, novm=False, rdl=False, rk=False):
    if nd is None: nd = 16 + len(OPT["early"]) + sum(1 for g in OPT["late"] if g < 38)
    for G in range(8):
        g0 = G*8
        Gn = (G+3) % 8
        for i in range(4):
            f = Gn*4+i
            if not (last and G > 4): st.put(g0+2*i, f"ds_read_b128 {ar(FR(f),4)}, v{vRK if rk and f >= 16 else vRD} offset:{f*1024}")
        if last and G >= 4:
            if G < 7: st.put(g0+6, f"s_waitcnt lgkmcnt({(7, 4, 0)[G-4]})")
        elif G == 4:
            st.put(g0+6, "s_waitcnt lgkmcnt(7)" if novm else f"s_waitcnt vmcnt(@dma:{nd}) lgkmcnt(7)")
            st.put(g0+7, "s_barrier")
            st.put(g0+7, f"v_add_u32 v{vRD}, s{sRDD}, v{vRD}")
        else:
            st.put(g0+6, "s_waitcnt lgkmcnt(7)")
    for i, g in enumerate(OPT["early"] if dma else []):
        st.put(g, f"buffer_load_dwordx4 v{vDMA}, {WS}, s{sOFFB} offen offset:{i*1024}{ld()} lds")
    if dma: st.put(31, f"v_readlane_b32 s{sOFFA}, v{vTO}, s{sTAU}")
    st.put(31, f"s_add_u32 m0, s{sM0}, 16384")
    st.put(34, f"s_add_u32 s{sM0}, s{sM0}, s{sRDD}")
    st.put(36, f"s_cmp_ge_u32 s{sM0}, 131072")
    st.put(38, f"s_cselect_b32 s{sRDD}, s{gMA}, s{gMB}")
    st.put(44, f"s_add_u32 s{sTAU}, s{sTAU}, 1")
    for i, g in enumerate(OPT["late"] if dma else []):
        st.put(g, f"buffer_load_dwordx4 v{vDMA}, {WS}, s{sOFFA} offen offset:{i*1024}{ld()} lds")
    if dma or rdl: st.put(55, f"v_readlane_b32 s{sOFFB}, v{vTE}, s{sTAU}")
    st.put(63, f"s_mov_b32 m0, s{sM0}")
    st.scc_busy |= {36, 37}
    if rk: st.put(-1, f"v_mov_b32 v{vRK}, v{vRD}")
    if OPT["fine"]:
        st.put(4, f"{FT()} s[{sFS}:{sFS+1}]")
        st.put(6, f"v_mov_b32_dpp v{vKV}, v{vKV} wave_shr:1 row_mask:0xf bank_mask:0xf")
        st.put(62, f"v_writelane_b32 v{vKV}, s{sFS}, 0")

class Jobs:
    def __init__(self): self.jobs = []; self.at = {}
    def add(self, key, pre, ins, early, late): self.jobs.append((late, len(self.jobs), early, pre, ins, key))
    def place(self, st, s, cap=6, grid=None):
        slots = [g for g in (grid or XG) if not st.hasD(g) and st.free(g) == 2 and st.nS(g) == 0]
        n = 0
        avail = len([j for j in self.jobs if j[2] <= s*64+63])
        k = min(cap, avail, len(slots))
        use = [slots[(i*len(slots))//k] for i in range(k)] if k else []
        for g in slots:
            t = s*64+g
            c = sorted(j for j in self.jobs if j[2] <= t)
            if not c: continue
            j = c[0]
            nxt = [x for x in slots if x > g]
            urgent = j[0] < (s*64+nxt[0] if nxt else (s+1)*64+1)
            if not (urgent or (n < cap and (g in use or len(nxt) < k-n))): continue
            assert t <= j[0] + (24 if j[5][0] == "x" else 0) or j[5] in ("qs", "kvf", "qf") or (j[5] == "kv" and (j[2] >= 64 or j[0] > j[2])), ("job late", j, t)
            if j[3]:
                assert g-1 not in st.scc_busy
                st.put(g-1, j[3])
            st.put(g, j[4]); self.jobs.remove(j); self.at[j[5]] = t; n += 1

def mf_pv(half, pb, czero=False):
    return [f"{MF} {vr(O(dt,qt),4)}, {ar(FR(half*16+dt),4)}, {vr(P(pb,qt),4)}, {'0' if czero else vr(O(dt,qt),4)}"
            for dt in range(16) for qt in range(2)]
def mf_qk(half, sb, qb, czero=False):
    out = []
    for kt in range(2):
        seq = [(u, qt) for u in range(8) for qt in range(2)]
        if OPT["chq"]: seq = [(g*4+u, qt) for g in range(2) for qt in ((0, 1), (1, 0))[g] for u in range(4)]
        for u, qt in seq:
            c = ('0' if czero else vr(NEGM(qt),4)) if u == 0 else vr(S(sb,kt,qt),4)
            out.append(f"{MF} {vr(S(sb,kt,qt),4)}, {ar(FR(half*16+kt*8+u),4)}, {ar(Q(qb,qt,QU(u)),4)}, {c}")
    return out
def mf_proj(s, init=None):
    out = []
    for nt in range(16):
        seq = [(0, 0, 1), (1, 0, 0), (1, 1, 1), (0, 1, 0)] if OPT["chp"] else [(0, 0, 1), (0, 1, 1), (1, 0, 0), (1, 1, 0)]
        for uu, qt, first in seq:
            c = vr(O(nt,qt),4)
            if first and init == "zero": c = "0"
            if first and init == "bias": c = vr(O(nt,1),4)
            out.append(f"{MF} {vr(O(nt,qt),4)}, {ar(FR(2*nt+uu),4)}, {ar(X(qt,2*s+uu),4)}, {c}")
    return out
def PA(b, nt, qt): return 64 + (nt*2+qt)*4 if b == 0 else O(2*nt+1, qt)
def mf_post(s):
    out = []
    for f in range(32):
        u, nt = f >> 2, f & 3
        for qt in range(2):
            d = vr(PA(s & 1, nt, qt), 4)
            out.append(f"{MF} {d}, {ar(FR(f),4)}, {vr(O(2*u,qt),4)}, {'0' if u == 0 else d}")
    return out

def sm_ops(b):
    ops = []
    seq = [(kt, qt, rp) for kt in range(2) for qt in range(2) for rp in range(2)]
    pend = []
    for i, (kt, qt, rp) in enumerate(seq):
        t0 = vT + (i % 4)*2
        s0 = S(b,kt,qt) + rp*2
        ops.append(f"v_exp_f32 v{t0}, v{s0}")
        ops += pend[:1]
        ops.append(f"v_exp_f32 v{t0+1}, v{s0+1}")
        ops += pend[1:]
        acc = vSUM[qt][rp]
        if kt == 0: pend = [f"v_add_f32 v{acc}, v{t0}, v{t0+1}"]
        else: pend = [f"v_add_f32 v{acc}, v{acc}, v{t0}", f"v_add_f32 v{acc}, v{acc}, v{t0+1}"]
        pend.append(f"v_cvt_pk_bf16_f32 v{P(b,qt)+kt*2+rp}, v{t0}, v{t0+1}")
    ops.append("s_nop 0")
    ops += pend
    ops += [f"v_add_f32 v{vSUM[0][0]}, v{vSUM[0][0]}, v{vSUM[0][1]}", f"v_add_f32 v{vSUM[1][0]}, v{vSUM[1][0]}, v{vSUM[1][1]}"]
    return ops

def mask_code(b, lab, back):
    big = vr(vBIG, 2)
    o = [f"s_cmp_eq_u32 s{sN}, s{sND}", f"v_mov_b32 v{vRK}, 0x40000" if OPT["kz"] else "s_nop 0", f"s_cbranch_scc0 {lab}_all"]
    for q in (S(b,0,0), S(b,1,1)):
        for r in range(4): o.append(f"v_cndmask_b32 v{q+r}, v{q+r}, v{vBIG}, s[{sMASK+2*r}:{sMASK+2*r+1}]")
    for r in (0, 2): o.append(f"v_mov_b64 {vr(S(b,1,0)+r,2)}, {big}")
    o += [f"s_branch {back}", f"{lab}_all:"]
    for q in (S(b,0,0), S(b,0,1), S(b,1,1), S(b,1,0)):
        for r in (0, 2): o.append(f"v_mov_b64 {vr(q+r,2)}, {big}")
    o.append(f"s_branch {back}")
    return o

def place_sm(st, b, g0, g_end, tag, ladd=True, first=False, mask=True):
    if mask and tag not in ("fa1", "pt1", "pt0", "ln"):
        st.put(g0-1, f"s_cmp_ge_u32 s{sN}, s{sND}")
        if tag in OPT["inl"]: st.put(g0, f"s_cbranch_scc0 L_nomask_{tag}\n" + "\n".join(mask_code(b, f"L_domask_{tag}", f"L_nomask_{tag}")[:-1]))
        else:
            st.put(g0, f"s_cbranch_scc1 L_domask_{tag}")
            STUBS.append((f"L_domask_{tag}", f"L_mask{b}", f"L_nomask_{tag}"))
        st.put(g0, f"L_nomask_{tag}:")
        st.put(g0+2 if g0 == 0 else 42, f"s_add_u32 s{sN}, s{sN}, 1")
        st.scc_busy |= {g0-1}
    def add(ins, deps=(), early=0): return st.add(ins, deps, max(early, g0), g_end)
    la = [add(f"v_add_f32 v{vL[q]}, v{vL[q]}, v{vSUM[q][0]}") for q in range(2)] if ladd else []
    seq = [(kt, qt, rp) for kt in range(2) for qt in range(2) for rp in range(2)]
    users = {}; lastacc = {}; NT = 6
    for i, (kt, qt, rp) in enumerate(seq):
        t0 = vT + (i % NT)*2
        s0 = S(b,kt,qt) + rp*2
        war = users.get(i - NT, [])
        e = g0 + (1 if kt == 0 else 3)
        e0 = add(f"v_exp_f32 v{t0}, v{s0}", war, e)
        e1 = add(f"v_exp_f32 v{t0+1}, v{s0+1}", war, e)
        acc = vSUM[qt][rp]
        if kt == 0:
            a0 = add(f"v_add_f32 v{acc}, v{t0}, v{t0+1}", [e0, e1] + la)
            u = [a0]; lastacc[(qt,rp)] = a0
        else:
            a0 = add(f"v_add_f32 v{acc}, v{acc}, v{t0}", [e0, lastacc[(qt,rp)]])
            a1 = add(f"v_add_f32 v{acc}, v{acc}, v{t0+1}", [e1, a0])
            u = [a0, a1]; lastacc[(qt,rp)] = a1
        c = st.add(f"v_cvt_pk_bf16_f32 v{P(b,qt)+kt*2+rp}, v{t0}, v{t0+1}", [e0, e1], g0, g_end-1)
        users[i] = u + [c]
    f0 = add(f"v_add_f32 v{vSUM[0][0]}, v{vSUM[0][0]}, v{vSUM[0][1]}", [lastacc[(0,0)], lastacc[(0,1)]])
    f1 = add(f"v_add_f32 v{vSUM[1][0]}, v{vSUM[1][0]}, v{vSUM[1][1]}", [lastacc[(1,0)], lastacc[(1,1)]])
    hi = f2u(2.0**OPT["thr"])
    if not first:
        mx = add(f"v_max_f32 v{vT+14}, v{vSUM[0][0]}, v{vSUM[1][0]}", [f0, f1])
        add(f"v_cmp_nge_f32 vcc, {hi:#x}, v{vT+14}", [mx])
    else:
        lo = f2u(2.0**-OPT["thr"])
        m0 = add(f"v_subrev_u32 v{vT+14}, {lo:#x}, v{vSUM[0][0]}", [f0])
        m1 = add(f"v_subrev_u32 v{vT+15}, {lo:#x}, v{vSUM[1][0]}", [f1])
        mx = add(f"v_max_u32 v{vT+14}, v{vT+14}, v{vT+15}", [m0, m1])
        add(f"v_cmp_lt_u32 vcc, {hi-lo:#x}, v{vT+14}", [mx])

def xlane_ops(op, v, t1):
    return [(f"v_mov_b32 v{t1}, v{v}", 0), (f"v_permlane16_swap_b32 v{v}, v{t1}", 2), (f"{op} v{v}, v{v}, v{t1}", 1),
            (f"v_mov_b32 v{t1}, v{v}", 0), (f"v_permlane32_swap_b32 v{v}, v{t1}", 2), (f"{op} v{v}, v{v}, v{t1}", 1)]
def xlane(a, op, v, t1):
    for ins, d in xlane_ops(op, v, t1):
        if d: a(f"s_nop {d-1}")
        a(ins)

class Chain:
    def __init__(self, items, grid=None): self.items = list(items); self.lastg = -10; self.grid = grid; self.base = 0; self.lastD = -999; self.minD = 0
    def fill(self, st, g0=0, g1=63):
        g = g0; lastg = -10
        while self.items and g <= g1:
            ins, dist = self.items[0][:2]
            early = self.items[0][2] if len(self.items[0]) > 2 else 0
            c = cls(ins)
            ok = g - lastg >= dist and g >= early and not st.hasD(g)
            if ok and g == lastg and not (c in "VE" and cls(self.last) in "VM"): ok = False
            if ok:
                if c == "S": ok = (st.nS(g) == 0 or st.free(g) >= 1) and not (g in st.scc_busy and not ins.startswith(("s_mov", "s_mul", "s_wait", "s_nop")))
                elif c == "D": ok = st.free(g) == 2 and st.nS(g) == 0 and (self.grid is None or g in self.grid) and self.base + g - self.lastD >= self.minD
                else: ok = st.free(g) >= COST[c]
            if ok:
                st.put(g, ins); self.items.pop(0); lastg = g; self.last = ins
                if c == "D": self.lastD = self.base + g
            else:
                g += 1
    def flush(self, a):
        for it in self.items:
            if it[1]: a(f"s_nop {it[1]-1}")
            a(it[0])
        self.items = []

SITES = []
def touch(path):
    nm = f"{path}{len(SITES)}"; SITES.append((nm, path))
    c = lambda w: f"s_call_b64 s[{sRET}:{sRET+1}], LT_{nm}_{w}"
    return (f"s_bitcmp1_b32 s{sWAVE}, 1\ns_cbranch_scc1 LH_{nm}\ns_bitcmp1_b32 s{sWAVE}, 0\ns_cbranch_scc1 LA_{nm}\n{c(0)}\ns_branch LR_{nm}\nLA_{nm}:\n{c(1)}\ns_branch LR_{nm}\n"
            f"LH_{nm}:\ns_bitcmp1_b32 s{sWAVE}, 0\ns_cbranch_scc1 LB_{nm}\n{c(2)}\ns_branch LR_{nm}\nLB_{nm}:\n{c(3)}\nLR_{nm}:")

def gen(name="mega_kernel"):
    a = Asm()
    STUBS.clear(); SITES.clear()
    stamps = OPT["stamps"]
    nst = [0]
    def stamp_ins():
        i = nst[0]; nst[0] += 1
        assert i < NSTAMP
        return f"s_memrealtime s[{sSTAMP+2*i}:{sSTAMP+2*i+1}]"
    def streg(i): return sSTAMP+2*i if i < NSTAMP else sMASK+2*(i-NSTAMP)
    def stamp(i, p=False):
        if OPT["pst"] and 2 <= i <= 6 and not p: return
        if p and not OPT["pst"]: return
        if stamps: a(f"s_memrealtime s[{streg(i)}:{streg(i)+1}]")
    def merge(lbl, align=False):
        if align: a.raw(".p2align 6")
        a.label(lbl); a.comment("@merge")
    strideA, strideB = 2048, 8192
    a.raw(kernel_header(name))
    a("s_cmp_ge_u32 s2, 256")
    a("s_cbranch_scc0 L_go")
    a("s_endpgm")
    a.label("L_go")
    stamp(0)
    sW12, sX = sMASK, sMASK+4
    gHEAD, gMT, gWM, gWN = sCNT, sEV, sCLAMP, sFIRST
    a(f"""
    s_load_dwordx2 s[{sSA}:{sSA+1}], s[0:1], 8
    s_load_dwordx4 s[{sT}:{sT+3}], s[0:1], 24
    s_load_dwordx2 s[{sWS}:{sWS+1}], s[0:1], 104
    s_load_dwordx2 s[{sX}:{sX+1}], s[0:1], 0
    s_load_dwordx2 s[{sDBG}:{sDBG+1}], s[0:1], 96
    s_load_dwordx2 s[{sW12}:{sW12+1}], s[0:1], 56
    s_load_dwordx2 s[{sRET}:{sRET+1}], s[0:1], 72
    s_load_dwordx2 s[{sT+6}:{sT+7}], s[0:1], 16
    v_and_b32 v{vLANE}, 63, v0
    v_lshrrev_b32 v{GT}, 6, v0
    v_lshlrev_b32 v{vL16}, 4, v{vLANE}
    v_readfirstlane_b32 s{sWAVE}, v{GT}
    s_and_b32 s3, s2, 7
    s_lshl_b32 s3, s3, 1
    s_lshr_b32 s{sJ}, s2, 4
    s_bfe_u32 s{sWHICH}, s2, 0x10003
    s_add_u32 s{sHEAD}, s3, s{sWHICH}
    s_and_b32 s{gHEAD}, s{sJ}, 1
    s_add_u32 s{gHEAD}, s{gHEAD}, s3
    s_lshr_b32 s{gWM}, s2, 1
    s_xor_b32 s{gMT}, s2, s{gWM}
    s_bfe_u32 s{gMT}, s{gMT}, 0x10005
    s_lshl_b32 s{gMT}, s{gMT}, 2
    s_lshr_b32 s{gWM}, s2, 6
    s_xor_b32 s{gWM}, s{gWM}, 2
    s_or_b32 s{gMT}, s{gMT}, s{gWM}
    """)
    if OPT["map2"]:
        a(f"""
        s_bfe_u32 s{gHEAD}, s2, 0x10005
        s_add_u32 s{gHEAD}, s{gHEAD}, s3
        s_lshl_b32 s{gMT}, s{sWHICH}, 2
        s_bfe_u32 s{gWM}, s2, 0x10004
        s_or_b32 s{gMT}, s{gMT}, s{gWM}
        s_bfe_u32 s{gWM}, s2, 0x10007
        s_xor_b32 s{gWM}, s{gWM}, 1
        s_lshl_b32 s{gWM}, s{gWM}, 1
        s_or_b32 s{gMT}, s{gMT}, s{gWM}
        s_bfe_u32 s{sWHICH}, s2, 0x10006
        """)
    if OPT["swap"]:
        a(f"""
        s_cmp_lt_u32 s{sJ}, 8
        s_cselect_b32 s{gWM}, {2*OPT["swap"]}, 0
        s_xor_b32 s{sHEAD}, s{sHEAD}, s{gWM}
        """)
    a(f"""
    s_and_b32 s{gWM}, s{sWAVE}, 1
    s_lshr_b32 s{gWN}, s{sWAVE}, 1
    """)
    t2, t3, t4, t5, t6 = GT, GT+1, GT+2, GT+3, GT+4
    a(f"""
    v_lshrrev_b32 v{t2}, 3, v{vLANE}
    s_lshl_b32 s{gA0}, s{gMT}, 8
    s_lshl_b32 s{gA1}, s{sWAVE}, 6
    {f"s_lshl_b32 s{gMA}, s{gWM}, 5" if OPT["chg"] else ""}
    {f"s_sub_u32 s{gA1}, s{gA1}, s{gMA}" if OPT["chg"] else ""}
    s_lshl_b32 s{gMA}, s{gA1}, 7
    s_add_u32 s{gA0}, s{gA0}, s{gA1}
    v_add_u32 v{t2}, s{gA0}, v{t2}
    v_lshlrev_b32 v{t2}, 11, v{t2}
    v_and_b32 v{t3}, 7, v{vLANE}
    v_lshrrev_b32 v{t4}, 4, v{vLANE}
    v_xor_b32 v{t5}, v{t3}, v{t4}
    v_lshl_add_u32 v{t5}, v{t5}, 4, v{t2}
    v_xor_b32 v{t6}, 4, v{t4}
    v_xor_b32 v{t6}, v{t3}, v{t6}
    v_lshl_add_u32 v{t6}, v{t6}, 4, v{t2}
    """)
    for jl in range(4):
        a(f"v_add_u32 v{DA[jl]}, {4096 + jl*8*strideA - jl*1024}, v{t5 if (jl & 1) == 0 else t6}")
    a(f"""
    v_bfe_u32 v{t2}, v{vLANE}, 3, 2
    v_lshlrev_b32 v{t3}, 13, v{t2}
    v_lshrrev_b32 v{t4}, 5, v{vLANE}
    v_lshl_add_u32 v{t3}, v{t4}, {18 if OPT["chg"] == 1 else 7}, v{t3}
    v_lshrrev_b32 v{t4}, 1, v{t2}
    v_lshlrev_b32 v{t4}, 2, v{t4}
    v_and_b32 v{t5}, 7, v{vLANE}
    v_xor_b32 v{t4}, v{t4}, v{t5}
    s_lshl_b32 s{gA0}, s{gWM}, 1
    v_xor_b32 v{t4}, s{gA0}, v{t4}
    v_lshl_add_u32 v{t3}, v{t4}, 4, v{t3}
    s_lshl_b32 s{gA0}, s{gHEAD}, 9
    s_lshl_b32 s{gA1}, s{sWAVE}, 16
    s_add_u32 s{gA0}, s{gA0}, s{gA1}
    v_add_u32 v{t3}, s{gA0}, v{t3}
    """)
    for jl in range(4):
        a(f"v_add_u32 v{DB[jl]}, {4096 + (jl>>1)*4*strideB + (jl&1)*(32*strideB if OPT['chg'] == 2 else 256) - jl*1024}, v{t3}")
    a(f"""
    s_mul_i32 s{gA1}, s3, {OPT["rot"]*64}
    s_mul_i32 s{gA0}, s{gMT}, {OPT["rotm"]*128}
    s_add_u32 s{gA1}, s{gA1}, s{gA0}
    s_and_b32 s{gA1}, s{gA1}, 0x7ff
    s_lshl_b32 s{gMB}, s{sWAVE}, 12
    s_mov_b32 s{sSA+2}, {4194304+4096}
    s_mov_b32 s{sSA+3}, 0x20000
    s_mov_b32 s{sSB+2}, {8388608+4096}
    s_mov_b32 s{sSB+3}, 0x20000
    @PST2
    s_waitcnt lgkmcnt(0)
    @PST3
    s_sub_u32 s{sSA}, s{sSA}, 4096
    s_subb_u32 s{sSA+1}, s{sSA+1}, 0
    s_cmp_eq_u32 s{sWHICH}, 0
    s_cselect_b32 s{sSB}, s{sT}, s{sT+2}
    s_cselect_b32 s{sSB+1}, s{sT+1}, s{sT+3}
    s_sub_u32 s{sSB}, s{sSB}, 4096
    s_subb_u32 s{sSB+1}, s{sSB+1}, 0
    """)
    for i in (2, 3):
        k = [n for n, l in enumerate(a.lines) if f"@PST{i}" in l][0]
        a.lines[k] = f"s_memrealtime s[{streg(i)}:{streg(i)+1}]" if OPT["pst"] else ""
    MA, MB = (0x207ff if OPT["chg"] else 0x107ff), 0x7fffff
    hA = 64 if OPT["chg"] else 32; hB = (32*strideB, 128, 256)[OPT["chg"]]
    gRA, gRB, gTS = gA1, gCNT, (gA0, sT)
    a(f"s_lshl_b32 s{gRB}, s{gRA}, 12")
    def dma_group(kind, par):
        t = gTS[par & 1]
        if kind[0] == "A":
            _, it, h = kind
            m0 = f"s_add_u32 m0, s{gMA}, {(131072, 0, 65536)[it % 3] + h*hA*128}"; regs, srd = DA, sSA
            so = f"s_add_u32 s{t}, s{gRA}, {h*hA*strideA + it*128}\ns_and_b32 s{t}, s{t}, {MA}"
        elif kind[0] == "B":
            _, it, h = kind
            m0 = f"s_add_u32 m0, s{gMB}, {32768 + (it & 1)*65536 + h*16384}"; regs, srd = DB, sSB
            so = f"s_add_u32 s{t}, s{gRB}, {it*64*strideB + h*hB}\ns_and_b32 s{t}, s{t}, {MB}"
        else:
            y = kind[1]
            return f"s_add_u32 m0, s{gMB}, {y*16384}", f"s_add_u32 s{t}, s{sW0}, {y*16384}", \
                   [f"buffer_load_dwordx4 v{vDMA}, {WS}, s{t} offen offset:{i*1024}{ld()} lds ; @gU{y}" for i in range(4)]
        return m0, so, [f"buffer_load_dwordx4 v{regs[jl]}, {sr(srd,4)}, s{t} offen offset:{jl*1024}{OPT['nt' + kind[0]]} lds ; @g{kind[0]}{it}_{h}" for jl in range(4)]
    todo = []
    for it in range(16):
        if OPT["chg"]: todo += [(2*it-1+h, 2*(it-d)+h, (k_, it, h)) for h in range(2) for k_, d in (("A", 3), ("B", 2))]
        else: todo += [(2*it-1, 2*(it-3)+1, ("A", it, 0)), (2*it-1, 2*(it-2), ("B", it, 0)), (2*it-1, 2*(it-3)+1, ("A", it, 1)), (2*it, 2*(it-2)+1, ("B", it, 1))]
    todo += [(31+y, av, ("U", y)) for y, av in enumerate((27, 27, 28, 29, 29, 29, 30, 31))]
    GS = {}; order = []
    for n in range(-1, 32):
        cap = OPT["npro"] if n < 0 else OPT["gcap"][min(n, len(OPT["gcap"])-1)]
        c = sorted([x for x in todo if x[1] <= n], key=lambda x: x[0])[:cap]
        for x in c: todo.remove(x); assert x[0] > n or n < 0, (x, n)
        GS[n] = [x[2] for x in c]; order += GS[n]
    assert not todo
    print("GS", {n: len(v) for n, v in GS.items()}, file=sys.stderr)
    def gtag(k): return f"gU{k[1]}" if k[0] == "U" else f"g{k[0]}{k[1]}_{k[2]}"
    def gwait(n):
        it, kk = (n+1) >> 1, (n+1) & 1
        need = [("U", 0), ("U", 1)] if n == 31 else [("B", it, 1)] if kk else [("A", it, 0), ("A", it, 1), ("B", it, 0)]
        if OPT["chg"] and n < 31: need = [("A", it, kk), ("B", it, kk)]
        return f"vmcnt(@since:{gtag(max(need, key=order.index))})"
    main = a; a = Asm()
    sWID, u_, nb_, o_, o2_ = sXOFF, sT+1, sT+2, sT+3, sT+4
    sD = [sQST, sPT, sPSG]; sXS = sPSS; sHI = sFSG; sSTR = sFSS
    vWO, vW12 = vRD, vDMA
    G = sr(sG, 4)
    r_, g_, r8 = GT, GT+1, GT+2
    h_, i_ = GT+5, GT+6
    a(f"""
    s_lshl_b32 s{sWID}, s2, 2
    s_add_u32 s{sWID}, s{sWID}, s{sWAVE}
    s_mov_b32 s{sX+2}, {2048*896}
    s_mov_b32 s{sX+3}, 0x20000
    v_and_b32 v{h_}, 3, v{vLANE}
    v_lshrrev_b32 v{i_}, 2, v{vLANE}
    v_mul_u32_u24 v{GT+7}, 896, v{h_}
    v_lshl_add_u32 v{GT+7}, v{i_}, 4, v{GT+7}
    v_cmp_gt_u32 s[{sLN}:{sLN+1}], 14, v{i_}
    v_mov_b32 v{GT+8}, {OOB}
    s_lshr_b32 s{gB1}, s{sWID}, 1
    s_mul_i32 s{gB1}, s{gB1}, 3584
    s_mul_i32 s{gB0}, s{gWM}, 448
    s_add_u32 s{gB1}, s{gB1}, s{gB0}
    v_cndmask_b32 v{GT+11}, v{GT+8}, v{GT+7}, s[{sLN}:{sLN+1}]
    s_getpc_b64 s[{sG}:{sG+1}]
    L_pc:
    s_sub_u32 s{sG}, s{sG}, L_pc - L_gemmV
    s_subb_u32 s{sG+1}, s{sG+1}, 0
    s_mov_b32 s{sG+2}, L_codeend - L_gemmV
    s_mov_b32 s{sG+3}, 0x20000
    s_lshr_b32 s{gB0}, s2, 3
    s_lshl_b32 s{gB0}, s{gB0}, 2
    s_add_u32 s{gB0}, s{gB0}, s{sWAVE}
    s_lshl_b32 s{gB0}, s{gB0}, 10
    s_mov_b32 s{sWS+2}, {WS_SIZE}
    s_mov_b32 s{sWS+3}, 0x20000
    v_and_b32 v{r_}, 15, v{vLANE}
    v_lshrrev_b32 v{g_}, 4, v{vLANE}
    v_lshlrev_b32 v{r8}, 3, v{r_}
    """)
    def natdest(dst, base):
        a(f"""
        s_lshr_b32 s{o_}, s{nb_}, 2
        s_mul_i32 s{o_}, s{o_}, {7*32768}
        s_lshr_b32 s{o2_}, s{u_}, 1
        s_lshl_b32 s{o2_}, s{o2_}, 15
        s_add_u32 s{o_}, s{o_}, s{o2_}
        s_and_b32 s{o2_}, s{nb_}, 3
        s_lshl_b32 s{o2_}, s{o2_}, 13
        s_add_u32 s{o_}, s{o_}, s{o2_}
        s_and_b32 s{o2_}, s{u_}, 1
        s_lshl_b32 s{o2_}, s{o2_}, 10
        s_add_u32 s{o_}, s{o_}, s{o2_}
        s_add_u32 s{dst}, s{o_}, {base}
        """)
    def div7(idx):
        a(f"""
        s_mul_i32 s{u_}, s{idx}, 9363
        s_lshr_b32 s{u_}, s{u_}, 16
        s_mul_i32 s{nb_}, s{u_}, 7
        s_sub_u32 s{nb_}, s{idx}, s{nb_}
        """)
    def ffdest(dst, base, lim, idx=sWID):
        a(f"""
        s_mul_i32 s{o_}, s{nb_}, {184*4096}
        s_lshl_b32 s{o2_}, s{u_}, 12
        s_add_u32 s{o_}, s{o_}, s{o2_}
        s_add_u32 s{dst}, s{o_}, {base}
        s_cmp_lt_u32 s{idx}, {lim}
        s_cselect_b32 s{dst}, s{dst}, {OOB}
        """)
    a(f"""
    s_mov_b32 s{sDBG+2}, 16
    s_mov_b32 s{sDBG+3}, 0x20000
    v_mul_u32_u24 v{vWO}, {4*896}, v{g_}
    v_add_u32 v{vWO}, v{vWO}, v{r8}
    s_lshl_b32 s{gD}, s{gMT}, 1
    s_add_u32 s{gD}, s{gD}, s{sWHICH}
    s_lshl_b32 s{gD}, s{gD}, 2
    s_add_u32 s{gD}, s{gD}, s{sWAVE}
    """)
    div7(gD)
    a(f"""
    s_lshl_b32 s{o_}, s{gHEAD}, 3
    s_add_u32 s{u_}, s{u_}, s{o_}
    s_mul_i32 s{o_}, s{u_}, {32*896}
    s_lshl_b32 s{o2_}, s{nb_}, 7
    s_add_u32 s{o_}, s{o_}, s{o2_}
    s_cmp_lt_u32 s{gD}, 56
    s_cselect_b32 s{o_}, s{o_}, {OOB}
    v_add_u32 v{vWO}, s{o_}, v{vWO}
    """)
    ffdest(sD[1], WS_WFF + 56*4096, 56, gD)
    a(f"""
    s_lshr_b32 s{u_}, s{sWID}, 2
    s_mul_i32 s{u_}, s{u_}, 9363
    s_lshr_b32 s{u_}, s{u_}, 16
    s_mul_i32 s{nb_}, s{u_}, 28
    s_sub_u32 s{nb_}, s{sWID}, s{nb_}
    s_mul_i32 s{sHI}, s{u_}, {32*3584}
    s_lshl_b32 s{o2_}, s{nb_}, 7
    s_add_u32 s{sHI}, s{sHI}, s{o2_}
    """)
    natdest(sSTR, WS_W1F)
    a(f"s_sub_u32 s{sT+5}, s{sWID}, 392")
    a(f"s_and_b32 s{sT+5}, s{sT+5}, 1023")
    div7(sT+5)
    ffdest(sD[2], WS_WFF, 784)
    a(f"""
    s_lshr_b32 s{o_}, s{u_}, 1
    s_mul_i32 s{o_}, s{o_}, {64*896}
    s_and_b32 s{o2_}, s{u_}, 1
    s_mul_i32 s{o2_}, s{o2_}, {2*896}
    s_add_u32 s{o_}, s{o_}, s{o2_}
    s_lshl_b32 s{o2_}, s{nb_}, 7
    s_add_u32 s{o_}, s{o_}, s{o2_}
    s_mov_b32 s{sW12+2}, {448*3584}
    s_mov_b32 s{sW12+3}, 0x20000
    s_cmp_lt_u32 s{sWID}, 392
    s_cselect_b32 s{sW12}, s{sW12}, s{sRET}
    s_cselect_b32 s{sW12+1}, s{sW12+1}, s{sRET+1}
    s_cselect_b32 s{o_}, s{sHI}, s{o_}
    s_cselect_b32 s{sD[2]}, s{sSTR}, s{sD[2]}
    s_cselect_b32 s{sHI}, 16, 1
    s_cselect_b32 s{sSTR}, 2, 1
    s_mul_i32 s{sHI}, s{sHI}, 896
    s_mul_i32 s{o2_}, s{sSTR}, {16*896}
    s_lshl_b32 s{sSTR}, s{sSTR}, 10
    v_mul_u32_u24 v{vW12}, s{o2_}, v{g_}
    v_add3_u32 v{vW12}, v{vW12}, v{r8}, s{o_}
    v_lshlrev_b32 v{GT+9}, 8, v{i_}
    v_lshl_add_u32 v{GT+9}, v{h_}, 4, v{GT+9}
    v_cndmask_b32 v{vSX}, v{GT+8}, v{GT+9}, s[{sLN}:{sLN+1}]
    s_lshr_b32 s{o_}, s{sWID}, 3
    s_mul_i32 s{o_}, s{o_}, 14336
    s_and_b32 s{o2_}, s{sWID}, 6
    s_lshl_b32 s{o2_}, s{o2_}, 5
    s_add_u32 s{sXS}, s{o_}, s{o2_}
    s_mul_i32 s{o2_}, s{gWM}, 7168
    s_add_u32 s{sXS}, s{sXS}, s{o2_}
    s_xor_b32 s{o2_}, s{sWID}, {OPT["zid"]*4}
    s_lshl_b32 s{sFQ}, s{o2_}, 10
    s_add_u32 s{sFQ}, s{sFQ}, {WS_FLG}
    s_cmp_lt_u32 s{o2_}, 32
    s_cselect_b32 s{sFQ}, s{sFQ}, {OOB}
    v_cmp_eq_u32 vcc, 0, v{vLANE}
    v_mov_b32 v{vONE}, 1
    v_and_b32 v{vL4}, 3, v{vLANE}
    v_lshlrev_b32 v{vL4}, 2, v{vL4}
    v_cndmask_b32 v{vFLG}, v{GT+8}, v{vLANE}, vcc
    s_mov_b32 s{sRET}, s{sT+6}
    s_mov_b32 s{sRET+1}, s{sT+7}
    s_lshr_b32 s{u_}, s{gD}, 2
    s_lshl_b32 s{nb_}, s{gHEAD}, 2
    s_add_u32 s{nb_}, s{nb_}, s{sWAVE}
    s_lshl_b32 s{o_}, s{u_}, 18
    s_lshl_b32 s{o2_}, s{nb_}, 7
    s_add_u32 s{o_}, s{o_}, s{o2_}
    v_and_b32 v{vSW}, 3, v{vLANE}
    v_lshlrev_b32 v{vSW}, 5, v{vSW}
    v_bfe_u32 v{GT+9}, v{vLANE}, 2, 2
    v_lshl_add_u32 v{vSW}, v{GT+9}, 3, v{vSW}
    v_lshl_add_u32 v{vSW}, v{g_}, 16, v{vSW}
    v_add_u32 v{vSW}, s{o_}, v{vSW}
    v_mov_b32 v{vSF}, v{vL16}
    """)
    natdest(sD[0], WS_WQF)
    a(f"s_cmp_lt_u32 s{gD}, 56")
    a(f"s_cselect_b32 s{sD[0]}, s{sD[0]}, {OOB}")
    assert WS_XF == 0
    a(f"""
    v_bfe_u32 v{t4}, v{vLANE}, 1, 3
    s_lshl_b32 s{o_}, s{gWM}, 14
    s_add_u32 s{o_}, s{o_}, 131072
    v_lshlrev_b32 v{r_}, 7, v{r_}
    v_add_u32 v{r_}, s{o_}, v{r_}
    """)
    for kk in range(2):
        a(f"v_or_b32 v{t5}, {4*kk}, v{g_}")
        a(f"v_xor_b32 v{t5}, v{t5}, v{t4}")
        a(f"v_lshl_add_u32 v{RA[kk]}, v{t5}, 4, v{r_}")
    a(f"""
    v_lshlrev_b32 v{t2}, 12, v{g_}
    v_bfe_u32 v{t4}, v{vLANE}, 2, 2
    v_lshl_add_u32 v{t2}, v{t4}, 7, v{t2}
    v_and_b32 v{t5}, 3, v{vLANE}
    v_lshl_add_u32 v{t2}, v{t5}, 3, v{t2}
    s_lshl_b32 s{o_}, s{gWN}, {9 if OPT["chg"] == 2 else 10}
    s_add_u32 s{o_}, s{o_}, 32768
    v_add_u32 v{t2}, s{o_}, v{t2}
    v_lshrrev_b32 v{t4}, 1, v{t4}
    v_lshlrev_b32 v{t4}, 6, v{t4}
    v_and_b32 v{t5}, 1, v{g_}
    v_lshlrev_b32 v{t5}, 5, v{t5}
    v_or_b32 v{t4}, v{t4}, v{t5}
    """)
    for q in range(4):
        a(f"v_xor_b32 v{t5}, {(q>>1)*64 + (q&1)*32}, v{t4}")
        a(f"v_add_u32 v{RB[q]}, v{t5}, v{t2}")
    a(f"""
    s_mul_i32 s{sKVB}, s{gHEAD}, {HS}
    s_mul_i32 s{o_}, s{gMT}, {8*US}
    s_add_u32 s{sKVB}, s{sKVB}, s{o_}
    s_mul_i32 s{o_}, s{gWM}, {4*US}
    s_add_u32 s{sKVB}, s{sKVB}, s{o_}
    s_add_u32 s{o2_}, s{sWHICH}, 12
    s_lshl_b32 s{o_}, s{gWN}, {12 if OPT["chg"] == 2 else f"s{o2_}"}
    s_add_u32 s{sKVB}, s{sKVB}, s{o_}
    s_mul_i32 s{o_}, s{sWHICH}, {WS_VF - WS_KF}
    s_add_u32 s{sKVB}, s{sKVB}, s{o_}
    s_add_u32 s{sKVB}, s{sKVB}, {WS_KF}
    s_lshr_b32 s{sKVI}, 8192, {0 if OPT["chg"] == 2 else f"s{sWHICH}"}
    s_add_u32 s{sKVI}, s{sKVI}, s{sKVB}
    s_lshl_b32 s{sFKV}, s{gHEAD}, 8
    s_lshr_b32 s{o_}, s{gMT}, 2
    s_and_b32 s{o2_}, s{gMT}, 3
    s_lshl_b32 s{o2_}, s{o2_}, 1
    s_or_b32 s{o_}, s{o_}, s{o2_}
    s_cmp_ge_u32 s{o_}, 2
    s_cselect_b32 s{o2_}, 112, 0
    s_add_u32 s{sFKV}, s{sFKV}, s{o2_}
    s_lshl_b32 s{o_}, s{o_}, 3
    s_add_u32 s{sFKV}, s{sFKV}, s{o_}
    s_lshl_b32 s{o_}, s{sWHICH}, 2
    s_add_u32 s{sFKV}, s{sFKV}, s{o_}
    s_add_u32 s{sFKV}, s{sFKV}, {WS_FLG + FL_KV}
    s_lshl_b32 s{sFKVP}, s{sHEAD}, 8
    s_add_u32 s{sFKVP}, s{sFKVP}, {WS_FLG + FL_KV}
    s_xor_b32 s{o_}, s2, {OPT["zid"]}
    s_cmp_eq_u32 s{sWAVE}, 0
    s_cselect_b32 s{sFKV}, s{sFKV}, {OOB}
    s_cselect_b32 s{sFKVP}, s{sFKVP}, {OOB}
    s_cselect_b32 s{gFL}, s{o_}, {OOB}
    s_cselect_b32 s{gIT}, 0, {OOB}
    """)
    WQ, B1, ST1, N0, STA2, XR1, XR2 = sT+1, sT+2, sT+3, sN, sT+4, sND, sXOF2
    a(f"""
    s_or_b32 s{sQI}, s{sJ}, 8
    s_mul_i32 s{WQ}, s{sHEAD}, {7*32768}
    s_add_u32 s{WQ}, s{WQ}, {WS_WQF}
    s_mov_b32 s{sW0}, s{WQ}
    s_mov_b32 s{XR1}, s{sQI}
    s_mov_b32 s{ST1}, 32768
    s_bitcmp1_b32 s{sHEAD}, 1
    s_cselect_b32 s{N0}, {OPT['n0'][1]}, {OPT['n0'][0]}
    s_cselect_b32 s{STA2}, {OPT['a15'][1]}, {OPT['a15'][0]}
    s_cmp_eq_u32 s{sQI}, 15
    s_cselect_b32 s{STA2}, s{STA2}, 0
    s_add_u32 s{N0}, s{N0}, s{STA2}
    s_cmp_eq_u32 s{sQI}, 8
    s_cselect_b32 s{STA2}, {OPT["cap8"]}, 64
    s_min_u32 s{N0}, s{N0}, s{STA2}
    @atomic
    s_cmp_ge_u32 s{sJ}, 8
    s_cbranch_scc1 L_typeA
    s_mov_b32 s{sTYPE}, 2
    s_sub_u32 s{B1}, s{WQ}, {5*32768}
    s_sub_u32 s{XR2}, 15, s{sQI}
    s_lshl_b32 s{sU1}, s{sQI}, 2
    s_sub_u32 s{sU2}, 64, s{sU1}
    s_add_u32 s{sU1}, s{sU1}, 4
    s_sub_u32 s{sU1}, s{sU1}, s{N0}
    s_add_u32 s{STA2}, s{sU1}, 14
    s_add_u32 s{sT+7}, s{STA2}, s{sU2}
    s_branch L_typedone
    """)
    a.label("L_typeA")
    a(f"""
    s_mov_b32 s{sU1}, s{N0}
    s_add_u32 s{sT+7}, s{N0}, 14
    s_mov_b32 s{sU2}, 2
    s_mov_b32 s{N0}, 0
    s_mov_b32 s{STA2}, 100
    s_mov_b32 s{XR2}, 0x4000
    s_mov_b32 s{sTYPE}, 1
    s_mov_b32 s{B1}, {OOB}
    s_cmp_eq_u32 s{sJ}, 15
    s_cbranch_scc1 L_typedone
    s_mov_b32 s{sTYPE}, 0
    s_mul_i32 s{XR1}, s{sHEAD}, 7
    s_add_u32 s{XR1}, s{XR1}, s{sJ}
    s_sub_u32 s{XR1}, s{XR1}, 8
    s_lshr_b32 s{sT}, s{XR1}, 4
    s_and_b32 s{XR1}, s{XR1}, 15
    s_mul_i32 s{sW0}, s{sT}, {7*32768}
    s_add_u32 s{sW0}, s{sW0}, {WS_W1F}
    s_lshl_b32 s{B1}, s{sT}, 15
    s_add_u32 s{B1}, s{B1}, {WS_WFF}
    s_mov_b32 s{ST1}, {184*4096}
    """)
    a.label("L_typedone")
    a("@end")
    tA, tB, tC, tD = GT, GT+1, GT+2, GT+3
    KB, VB = sT+5, sT+6
    a(f"""
    s_mul_i32 s{KB}, s{sHEAD}, {HS}
    s_add_u32 s{VB}, s{KB}, {WS_VF}
    s_add_u32 s{KB}, s{KB}, {WS_KF}
    v_mov_b32 v{vTE}, {OOB}
    """)
    def seg_lin(start, base, stride):
        a(f"v_subrev_u32 v{tA}, {start}, v{vLANE}")
        a(f"v_cmp_gt_u32 vcc, 7, v{tA}")
        a(f"v_mul_u32_u24 v{tB}, {stride}, v{tA}")
        a(f"v_add_u32 v{tB}, s{base}, v{tB}")
        a(f"v_cndmask_b32 v{vTE}, v{vTE}, v{tB}, vcc")
    seg_lin(0, sW0, 32768)
    seg_lin(7, B1, f"s{ST1}")
    a(f"s_lshl_b32 s{sT}, s{sHEAD}, 15")
    a(f"s_add_u32 s{sT}, s{sT}, {WS_WFF + 56*4096}")
    seg_lin(f"s{sT+7}", sT, 184*4096)
    a(f"v_add_u32 v{vTO}, 16384, v{vTE}")
    def seg_att(start, n0, U):
        for tab in (vTO, vTE):
            a(f"v_subrev_u32 v{tA}, {start}, v{vLANE}")
            if n0 is not None: a(f"v_add_u32 v{tB}, s{n0}, v{tA}")
            else: a(f"v_mov_b32 v{tB}, v{tA}")
            a(f"v_mul_u32_u24 v{tB}, {US}, v{tB}")
            if tab == vTO:
                a(f"s_sub_u32 s{sT}, s{U}, 1")
                a(f"v_cmp_eq_u32 vcc, s{sT}, v{tA}")
                a(f"v_add_u32 v{tC}, s{KB}, v{tB}")
                a(f"v_add_u32 v{tC}, {US}, v{tC}")
                a(f"v_add_u32 v{tD}, s{VB}, v{tB}")
            else:
                a(f"v_cmp_eq_u32 vcc, 0, v{tA}")
                a(f"v_add_u32 v{tC}, s{VB}, v{tB}")
                a(f"v_subrev_u32 v{tC}, {US}, v{tC}")
                a(f"v_add_u32 v{tD}, s{KB}, v{tB}")
            a(f"v_cndmask_b32 v{tC}, v{tC}, v{tD}, vcc")
            a(f"v_cmp_gt_u32 vcc, s{U}, v{tA}")
            a("s_nop 1")
            a(f"v_cndmask_b32 v{tab}, v{tab}, v{tC}, vcc")
    seg_att(14, N0, sU1)
    seg_att(f"s{STA2}", None, sU2)
    XO1, XO2 = sXOFF, sXOF2
    a(f"""
    s_lshl_b32 s{sT}, s{sWAVE}, 1
    s_lshl_b32 s{XO1}, s{XR1}, 3
    s_add_u32 s{XO1}, s{XO1}, s{sT}
    s_mul_i32 s{XO1}, s{XO1}, 14336
    s_lshl_b32 s{XO2}, s{XR2}, 3
    s_add_u32 s{XO2}, s{XO2}, s{sT}
    s_mul_i32 s{XO2}, s{XO2}, 14336
    s_lshl_b32 s{sW4K}, s{sWAVE}, 12
    s_mov_b32 s{sCLAMP}, 0x05040100
    s_mov_b32 s{sFIRST}, 0x07060302
    """)
    setup_l = [l.strip() for l in a.lines if l.strip()]
    a = main
    seq = []
    for k, kind in enumerate(GS[-1]):
        m0, so, ins = dma_group(kind, 0)
        seq += [[m0, so, ins[0]]] + [[x] for x in ins[1:]]
        if k == OPT["xpos"]:
            seq += [[f"buffer_load_dwordx4 {ar(SLD+48,4)}, v{GT+11}, {sr(sX,4)}, s{gB1} offen"], [f"buffer_load_dwordx4 {ar(SLD+52,4)}, v{GT+11}, {sr(sX,4)}, s{gB1} offen offset:224"],
                    [f"s_xor_b32 s{gB1}, s{gB1}, 448", f"buffer_load_dwordx4 {ar(SLD+56,4)}, v{GT+11}, {sr(sX,4)}, s{gB1} offen"], [f"buffer_load_dwordx4 {ar(SLD+60,4)}, v{GT+11}, {sr(sX,4)}, s{gB1} offen offset:224 ; @sx"]]
    if OPT["cpf"]: seq += [[f"buffer_load_dwordx4 a[200:203], v{vL16}, {G}, s{gB0} offen"], [f"s_add_u32 s{gB0}, s{gB0}, 131072", f"buffer_load_dwordx4 a[204:207], v{vL16}, {G}, s{gB0} offen"]]
    nowr = ("s_mov", "s_mul_i32", "s_nop", "s_cselect", "s_getpc", "s_cbranch", "s_branch")
    def scc_live(k):
        for l in setup_l[k:]:
            if l.startswith(("s_cselect", "s_cbranch_scc", "s_subb")): return True
            if l.startswith("s_") and not l.startswith(nowr): return False
        return False
    step = len(setup_l) / (len(seq) - 0.5)
    atomic = False; nxt = 0.0
    for k, l in enumerate(setup_l):
        if seq and k >= nxt and not atomic and not scc_live(k) and not l.endswith(":"):
            for x in seq.pop(0): a(x)
            nxt += step
        if l == "@atomic": atomic = True
        elif l == "@end": atomic = False
        else: a(l)
    for g in seq:
        for x in g: a(x)
    print("setup instrs", len(setup_l), "left", len(seq), file=sys.stderr)
    a(f"""
    s_mov_b32 s{sG}, s{sRET}
    s_mov_b32 s{sG+1}, s{sRET+1}
    s_mov_b32 s{sG+2}, {448*8192}
    """)
    if OPT["dbgside"] & 1:
        for r in sD: a(f"s_mov_b32 s{r}, {OOB}")
    if OPT["dbgside"] & 2: a(f"s_mov_b32 s{sXS}, {OOB}")
    if OPT["dbgside"] & 4:
        for r in (vWO, vW12, vSW): a(f"v_mov_b32 v{r}, {OOB}")
    def side_chain():
        c = []
        z = GT+8
        c += [(f"v_mov_b64 {vr(z,2)}, 0", 0), (f"v_mov_b64 {vr(z+2,2)}, 0", 0), (f"buffer_store_dwordx4 {vr(z,4)}, v{vL16}, {WS}, s{sFQ} offen sc1 ; @zst", 1)]
        if OPT["fsep"]:
            c += [(f"s_lshl2_add_u32 s{sFQ}, s2, s{sWAVE}", 1), (f"s_mul_i32 s{sFQ}, s{sFQ}, {OPT['fsep']}", 1), (f"s_add_u32 s{sFQ}, s{sFQ}, {WS_FLG + FL_S3}", 1),
                  (f"buffer_store_dword v{z}, v{vFLG}, {WS}, s{sFQ} offen sc1", 1)]
        c.append(("s_waitcnt vmcnt(@since:sx)", 1))
        U = GT; m_, v_, t_, t2_ = GT+16, GT+17, vG1, vPOLL
        for i in range(8):
            c.append((f"v_accvgpr_read_b32 v{t_}, a{SLD+48+i}", 2 if i == 0 else 0))
            c.append((f"v_lshlrev_b32 v{U+2*i}, 16, v{t_}", 0))
            c.append((f"v_and_b32 v{U+2*i+1}, 0xffff0000, v{t_}", 0))
        def red(v):
            r = [(f"v_add_f32_dpp v{v}, v{v}, v{v} row_ror:{sh} row_mask:0xf bank_mask:0xf", 2) for sh in (8, 4)]
            return r + xlane_ops("v_add_f32", v, t2_)
        c.append((f"v_add_f32 v{m_}, v{U}, v{U+1}", 0)); c.append((f"v_add_f32 v{v_}, v{U+2}, v{U+3}", 0))
        for i in range(4, 16, 2):
            c.append((f"v_add_f32 v{m_}, v{m_}, v{U+i}", 0)); c.append((f"v_add_f32 v{v_}, v{v_}, v{U+i+1}", 0))
        for i in range(8):
            c += [(x, 0) for x in (f"v_accvgpr_read_b32 v{t_}, a{SLD+56+i}", f"v_lshlrev_b32 v{t2_}, 16, v{t_}", f"v_and_b32 v{t_}, 0xffff0000, v{t_}",
                  f"v_add_f32 v{m_}, v{m_}, v{t2_}", f"v_add_f32 v{v_}, v{v_}, v{t_}")]
        c.append((f"v_add_f32 v{m_}, v{m_}, v{v_}", 0))
        c += red(m_)
        c.append((f"v_mul_f32 v{m_}, {f2u(1.0/448):#x}, v{m_}", 0))
        for i in range(16):
            c.append((f"v_sub_f32 v{t_}, v{U+i}, v{m_}", 0))
            c.append((f"v_mul_f32 v{v_}, v{t_}, v{t_}" if i == 0 else f"v_fma_f32 v{v_}, v{t_}, v{t_}, v{v_}", 0))
        for i in range(8):
            c += [(x, 0) for x in (f"v_accvgpr_read_b32 v{t_}, a{SLD+56+i}", f"v_lshlrev_b32 v{t2_}, 16, v{t_}", f"v_and_b32 v{t_}, 0xffff0000, v{t_}",
                  f"v_sub_f32 v{t2_}, v{t2_}, v{m_}", f"v_sub_f32 v{t_}, v{t_}, v{m_}", f"v_fma_f32 v{v_}, v{t2_}, v{t2_}, v{v_}", f"v_fma_f32 v{v_}, v{t_}, v{t_}, v{v_}")]
        c.append((f"v_cndmask_b32 v{v_}, 0, v{v_}, s[{sLN}:{sLN+1}]", 0))
        c += red(v_)
        for x in (f"v_mul_f32 v{v_}, {f2u(1.0/448):#x}, v{v_}", f"v_cvt_pk_bf16_f32 v{t_}, v{m_}, v{v_}", f"v_lshlrev_b32 v{m_}, 16, v{t_}",
                  f"v_and_b32 v{v_}, 0xffff0000, v{t_}", f"v_add_f32 v{v_}, {f2u(1e-5):#x}, v{v_}", f"v_cvt_pk_bf16_f32 v{v_}, v{v_}, v{v_}",
                  f"v_lshlrev_b32 v{v_}, 16, v{v_}", f"v_sqrt_f32 v{v_}, v{v_}"):
            c.append((x, 0))
        c.append((f"v_cvt_pk_bf16_f32 v{v_}, v{v_}, v{v_}", 1))
        c.append((f"v_lshlrev_b32 v{v_}, 16, v{v_}", 0))
        c.append((f"v_rcp_f32 v{v_}, v{v_}", 0))
        for i in range(16): c.append((f"v_sub_f32 v{U+i}, v{U+i}, v{m_}", 1 if i == 0 else 0))
        for i in range(8):
            for x in (f"v_cvt_pk_bf16_f32 v{t_}, v{U+2*i}, v{U+2*i+1}", f"v_lshlrev_b32 v{U+2*i}, 16, v{t_}", f"v_and_b32 v{U+2*i+1}, 0xffff0000, v{t_}",
                      f"v_mul_f32 v{U+2*i}, v{U+2*i}, v{v_}", f"v_mul_f32 v{U+2*i+1}, v{U+2*i+1}, v{v_}", f"v_cvt_pk_bf16_f32 v{U+i}, v{U+2*i}, v{U+2*i+1}"):
                c.append((x, 0))
        if OPT["hold"] is not None: c.append((f"s_waitcnt vmcnt(@since:sl{OPT['hold']})", 1, 0, OPT["hold"]))
        c.append((f"buffer_store_dwordx4 {vr(U,4)}, v{vSX}, {WS}, s{sXS} offen sc1", 1))
        c.append((f"buffer_store_dwordx4 {vr(U+4,4)}, v{vSX}, {WS}, s{sXS} offen offset:3584 sc1", 1))
        def relay(rnd, land):
            c.append((f"s_waitcnt vmcnt(@since:sl{rnd})", 1, 0, rnd))
            for h in range(2):
                for e in range(8):
                    c.append((f"v_accvgpr_read_b32 v{GT+e}, a{land+2*e+h}", 2 if e == 0 else 0))
                for jj in range(2):
                    o = GT+8+4*jj
                    for p in range(4):
                        c.append((f"v_perm_b32 v{o+p}, v{GT+2*p+1}, v{GT+2*p}, s{(sCLAMP, sFIRST)[jj]}", 0))
                    if rnd == 1: c.append((f"buffer_store_dwordx4 {vr(o,4)}, v{vL16}, {WS}, s{sD[rnd]} offen offset:{(2*h+jj)*1024} sc1", 1))
                    else:
                        c.append((f"buffer_store_dwordx4 {vr(o,4)}, v{vSF}, {WS}, s{sD[rnd]} offen sc1", 1))
                        c.append((f"v_add_u32 v{vSF}, s{sSTR}, v{vSF}", 1))
        relay(2, SLD+32)
        c.append((f"s_waitcnt vmcnt(@since:sl0)", 1, 0, 0))
        c.append((f"s_mov_b32 s{sHI}, {f2u(QSCALE):#x}", 1))
        for h in range(2):
            for p in range(4):
                t = GT + (p & 1)*4
                c += [(x, 0) for x in (f"v_accvgpr_read_b32 v{t}, a{SLD+4*p+h}", f"v_accvgpr_read_b32 v{t+1}, a{SLD+4*p+2+h}",
                      f"v_lshlrev_b32 v{t+2}, 16, v{t}", f"v_lshlrev_b32 v{t+3}, 16, v{t+1}", f"v_and_b32 v{t}, 0xffff0000, v{t}", f"v_and_b32 v{t+1}, 0xffff0000, v{t+1}")]
                c += [(f"v_mul_f32 v{t+i}, s{sHI}, v{t+i}", 0) for i in range(4)]
                c += [(f"v_cvt_pk_bf16_f32 v{GT+8+p}, v{t+2}, v{t+3}", 0), (f"v_cvt_pk_bf16_f32 v{GT+12+p}, v{t}, v{t+1}", 0)]
            if h == 1: c.append((f"s_add_u32 s{sD[0]}, s{sD[0]}, 4096", 1))
            for jj in range(2):
                c.append((f"buffer_store_dwordx4 {vr(GT+8+4*jj,4)}, v{vL16}, {WS}, s{sD[0]} offen offset:{jj*2048} sc1 ; @sst", 1))
        relay(1, WOL)
        c += [(x, 0) for x in (f"v_add_u32 v{vDMA}, s{sW4K}, v{vL16}", f"v_mov_b32 v{vRD}, v{vL16}",  f"v_lshrrev_b32 v{GT}, 4, v{vLANE}",
              f"v_lshlrev_b32 v{GT}, 2, v{GT}", f"v_and_b32 v{GT+1}, 15, v{vLANE}", f"v_sub_u32 v{GT}, v{GT+1}, v{GT}")]
        c += [(f"v_cmp_gt_i32 s[{sMASK+2*r}:{sMASK+2*r+1}], {r}, v{GT}", 0) for r in range(4)]
        c = [((x[0].replace(" sc1", OPT["sidesc"]),) + tuple(x[1:]) if x[0].startswith("buffer_store") else x) for x in c]
        if OPT["wbl2"]: c.append(("s_waitcnt vmcnt(4)", 30)); c.append(("buffer_wbl2 sc1", 1))
        return Chain(c, XG4)
    def reads(kk, buf):
        if OPT["chg"]:
            ra = [f"ds_read_b128 {ar(CA(m,k),4)}, v{RA[k]} offset:{m*2048}" for m in range(4*kk, 4*kk+4) for k in range(2)]
            rb = [f"ds_read_b64_tr_b16 {ar(CB(n,k)+2*sec,2)}, v{RB[n&3]} offset:{kk*16384+sec*2048+k*512*OPT['chg']}" for n in range(4*kk, 4*kk+4) for k in range(2) for sec in range(2)]
            if kk: return ra + rb
            return rb[:4] + [x for m in range(4) for x in ra[2*m:2*m+2] + rb[4+2*m:6+2*m]] + rb[12:]
        ra = [f"ds_read_b128 {ar(FA(buf,m),4)}, v{RA[kk]} offset:{m*2048}" for m in range(8)]
        rb = [f"ds_read_b64_tr_b16 {ar(FB(buf,n)+2*sec,2)}, v{RB[n&3]} offset:{kk*16384+sec*2048+(n>>2)*512}" for n in range(8) for sec in range(2)]
        out = []
        for i in range(8): out += [ra[i], rb[2*i], rb[2*i+1]]
        return out
    stamp(6, True)
    for k_ in range(OPT["tg"].count(-1)):
        a(f"s_cmp_eq_u32 s{sWHICH}, 0\ns_cbranch_scc0 L_tv{k_}")
        a(touch("K")); a(f"s_branch L_tw{k_}\nL_tv{k_}:"); a(touch("V")); a(f"L_tw{k_}:")
    a(f"s_waitcnt {gwait(-1)}")
    a("s_barrier")
    for r in reads(0, 0): a(r)
    stamp(1)
    a(f"s_cmp_eq_u32 s{sWHICH}, 0")
    a("s_cbranch_scc0 L_gemmV")
    a.label("L_gK")
    pre_lines = len(a.lines)
    sJT = sT+2
    def xjob(J, key, i, base, early, late, rot=0):
        u, qt = i >> 1, i & 1
        J.add(key, f"s_add_u32 s{sJT}, s{base}, {qt*14336+((u+rot)%14)*1024}", f"buffer_load_dwordx4 {ar(X(qt,u),4)}, v{vL16}, {WS}, s{sJT} offen{ld()} ; @{key}", early, late - (3 - (i & 3))*8)
    def kvjob(J, c, early, late):
        blk = c >> 2
        J.add("kv", f"s_add_u32 s{sJT}, s{sKVI if blk & 1 else sKVB}, {(blk>>1)*US+(c&3)*1024}",
              f"buffer_store_dwordx4 {vr(PK(c),4)}, v{vL16}, {WS}, s{sJT} offen{OPT['kvsc']} ; @kv", early, late)
    pw, t6, t7 = sEV, sCNT, sND
    gtab = sum(g << (4*k) for k, g in enumerate(OPT["gev"]))
    fss = f"s_lshl_b32 s{sFSS}, s{t6}, 9\ns_add_u32 s{sFSS}, s{sFSS}, s{pw}\ns_lshl_b32 s{t7}, s{sHEAD}, 2\ns_add_u32 s{sFSS}, s{sFSS}, s{t7}"
    if OPT["fsep"]: fss = f"s_lshl2_add_u32 s{sFSS}, s2, s{sWAVE}\ns_mul_i32 s{sFSS}, s{sFSS}, {OPT['fsep']}\ns_add_u32 s{sFSS}, s{sFSS}, {WS_FLG + FL_S3}"
    setup = f"""
    s_mov_b32 s{sLN}, {gtab & 0xffffffff:#x}
    s_mov_b32 s{sLN+1}, {gtab >> 32:#x}
    s_lshl_b32 s{pw}, s{sHEAD}, 3
    s_and_b32 s{t6}, s{sJ}, 7
    s_add_u32 s{pw}, s{pw}, s{t6}
    s_lshl_b32 s{pw}, s{pw}, 2
    s_add_u32 s{pw}, s{pw}, s{sWAVE}
    s_mul_i32 s{sQST}, s{pw}, {Q_W}
    s_add_u32 s{sQST}, s{sQST}, {WS_QF}
    s_mul_i32 s{sPT}, s{pw}, {PT_W}
    s_add_u32 s{sPT}, s{sPT}, {WS_PT}
    s_lshl_b32 s{sFQ}, s{pw}, 5
    s_add_u32 s{sFQ}, s{sFQ}, {WS_FLG + FL_Q}
    s_mul_i32 s{t7}, s{sWAVE}, {28*1024}
    s_add_u32 s{t7}, s{t7}, {WS_PS}
    s_mul_i32 s{pw}, s{sHEAD}, 7
    s_add_u32 s{pw}, s{pw}, s{t6}
    s_lshr_b32 s{t6}, s{pw}, 4
    s_and_b32 s{sFSG}, s{pw}, 15
    s_lshl_b32 s{sT+3}, s{t6}, 9
    s_mul_i32 s{sPSG}, s{sFSG}, {PS_R}
    s_add_u32 s{sPSG}, s{sPSG}, s{t7}
    s_mul_i32 s{pw}, s{t6}, {PS_SRC}
    s_add_u32 s{sPSG}, s{sPSG}, s{pw}
    s_add_u32 s{sPSG}, s{sPSG}, {16*PS_SRC}
    s_lshl_b32 s{sFSG}, s{sFSG}, 9
    s_lshl_b32 s{pw}, s{t6}, 2
    s_add_u32 s{sFSG}, s{sFSG}, s{pw}
    s_lshl_b32 s{pw}, s{sWAVE}, 7
    s_add_u32 s{pw}, s{pw}, {WS_FLG + FL_S}
    s_add_u32 s{sFSG}, s{sFSG}, s{pw}
    s_add_u32 s{sFSG}, s{sFSG}, 64
    s_lshr_b32 s{t6}, s{sJ}, 3
    s_mul_i32 s{t6}, s{t6}, 7
    s_xor_b32 s{t6}, s{t6}, 7
    s_xor_b32 s{t6}, s{t6}, s{sJ}
    {fss}
    s_lshl_b32 s{sND}, s{sQI}, 2
    s_add_u32 s{sND}, s{sND}, s{sWAVE}
    s_lshr_b32 s{sCNT}, s{sU1}, 1
    s_sub_u32 s{sCNT}, s{sCNT}, 1
    s_lshl_b32 s{sEV}, s{sJ}, 2
    s_lshr_b64 s[{sT+4}:{sT+5}], s[{sLN}:{sLN+1}], s{sEV}
    s_and_b32 s{sEV}, s{sT+4}, 15
    """.strip().split("\n")
    setup = [(x.strip(), 1) for x in setup]
    CLR = GT+4
    setup0 = f"""
    v_mov_b64 {vr(CLR,2)}, -1
    v_mov_b64 {vr(CLR+2,2)}, -1
    s_mul_i32 s{t7}, s{sWAVE}, {28*1024}
    s_lshr_b32 s{t6}, s{sJ}, 3
    s_mul_i32 s{t6}, s{t6}, 7
    s_xor_b32 s{t6}, s{t6}, 7
    s_xor_b32 s{t6}, s{t6}, s{sJ}
    s_mul_i32 s{sPSS}, s{t6}, {PS_R}
    s_add_u32 s{sPSS}, s{sPSS}, s{t7}
    s_mul_i32 s{t7}, s{sHEAD}, {PS_SRC}
    s_add_u32 s{sPSS}, s{sPSS}, s{t7}
    s_add_u32 s{sPSS}, s{sPSS}, {WS_PS}
    """.strip().split("\n")
    setup0 = [(x.strip(), 1) for x in setup0]
    if OPT["dp"] in (None, 7):
        k = [x[0].startswith(f"s_xor_b32 s{t6}, s{t6}, s{sJ}") for x in setup].index(True)
        setup[k+1:k+1] = setup0[7:11]; setup0 = []
    setup.append((f"s_cmp_eq_u32 s{sTYPE}, 1\ns_cselect_b32 s{sQST}, {OOB}, s{sQST}", 1))
    setup.append((f"s_cmp_eq_u32 s{sTYPE}, 0\ns_cselect_b32 s{sFSG}, s{sFSG}, {OOB}", 1))
    setup.append((f"s_cmp_eq_u32 s{sWAVE}, 0\ns_cselect_b32 s{sT+1}, 0, 0x40000000\ns_cselect_b32 s{sEXP}, 1, 0\ns_or_b32 s{sFQ}, s{sFQ}, s{sT+1}", 1))
    setup2 = [(x, 1) for x in (f"s_mov_b32 s{sTAU}, 4", f"s_add_u32 s{sM0}, s{sW4K}, {8*16384}", f"s_add_u32 s{sOFFB}, s{sW0}, {8*16384}",
              f"s_mov_b32 s{sRDD}, {-131072}", f"s_mov_b32 s{gMA}, {-131072}", f"s_mov_b32 s{gMB}, 32768", f"s_mov_b32 m0, s{sM0}")]
    for typ in ("K", "V"):
        if typ == "V":
            a.label("L_gemmV")
            for l in a.lines[:pre_lines]:
                if l.strip().startswith("buffer_") or "@merge" in l: a.raw("@ghost " + l.strip())
        def pos0(m, n): return m*8+n if typ == "K" else (m >> 1)*16 + n*2 + (m & 1)
        done = {pos0(m, n): (n >> 2)*64 + m*8 + (n & 3)*2 + 1 for m in range(8) for n in range(8)}
        corder = sorted(range(32), key=lambda c: (max(done[2*c], done[2*c+1]) >> 3, c not in dict(OPT["es"]), c))
        slot = {p: p for p in range(64)}
        if OPT["es"]:
            assert len(ENL()) <= 20 and OPT["chg"]
            slot = {2*c: (PK(c)-48)//4 for c in range(32)}
            rest = [x for x in range(52) if x not in slot.values()]
            ag = [c for c in corder[:16] if c not in [x[0] for x in OPT["es"][:4]]][:12]
            for c in corder: slot[2*c+1] = 52 + ag.index(c) if c in ag else rest.pop()
        def pos(m, n): return slot[pos0(m, n)]
        def pack_chain():
            pk = []
            for x_ in sorted(range(64), key=lambda x: (done[x] >> 3, corder.index(x >> 1), x)):
                c = x_ >> 1; e = done[x_] + 3
                r = PK(c); p = slot[2*c+1]; q = 48+4*p; t = GT+17
                cv = lambda d, x, y: pk.append((f"v_cvt_pk_bf16_f32 v{d}, v{x}, v{y}", 0, e))
                rd = lambda d, i: pk.append((f"v_accvgpr_read_b32 v{d}, a{208+4*(p-52)+i}", 0, e))
                if x_ & 1 == 0: cv(r, r, r+1); cv(r+1, r+2, r+3)
                elif p < 52: cv(r+2, q, q+1); cv(r+3, q+2, q+3)
                else: rd(r+2, 0); rd(r+3, 1); rd(t, 3); cv(r+2, r+2, r+3); rd(r+3, 2); cv(r+3, r+3, t)
            return Chain(pk)
        def es_place(st, n, pk):
            J2 = Jobs(); sg = [(c, g - (n-30)*64) for c, g in OPT["es"] if g >> 6 == n-30]
            for c, g in sg: kvjob(J2, c, g, g)
            J2.place(st, 0, 16, [g for c, g in sg]); assert not J2.jobs
            return sg
        def es_fill(st, n, pk, sg):
            pk.fill(st)
            for c, g in sg:
                key = f"v_cvt_pk_bf16_f32 v{PK(c)+3},"
                assert not any(x[0].startswith(key) for x in pk.items) and all(w < g for w, v in st.fill.items() if any(x.startswith(key) for x in v)), (c, g)
            pk.items = [(x[0], x[1], x[2]-64) for x in pk.items]
        def substep(it, kk):
            groups = GS[2*it+kk]
            buf = kk
            mf = []
            for m in range(8):
                for n in range(8):
                    acc = accreg(pos(m, n))
                    c = "0" if (it == 0 and kk == 0) else acc
                    x, y = ar(FB(buf,n),4), ar(FA(buf,m),4)
                    if OPT["chg"]:
                        n2 = 4*kk + (n >> 1); k = (n ^ (n >> 1)) & 1
                        acc = accreg(pos(m, n2)); c = "0" if (it == 0 and n & 1 == 0) else acc
                        x, y = ar(CB(n2,k),4), ar(CA(m,k),4)
                    if typ == "V": x, y = y, x
                    mf.append(f"{MF} {acc}, {x}, {y}, {c}")
            st = Stage(mf)
            st.put(-1, f"s_waitcnt {gwait(2*it+kk)} lgkmcnt(0)")
            st.put(-1, "s_barrier")
            last = (it == 15 and kk == 1)
            g, dg = 1, (OPT["dg2"] if len(groups) == 2 else 4)
            for k, kind in enumerate(groups):
                m0, so, ins = dma_group(kind, k)
                st.put(g-1, m0)
                st.put(g-2, so)
                for i in ins:
                    st.put(g, i); g += dg
            rd = reads(kk ^ 1, buf ^ 1) if not last else [f"ds_read_b128 {ar(FR(f),4)}, v{vRD} offset:{f*1024}" for f in range(12)]
            for i, r in enumerate(rd): st.put(i*2, r)
            if OPT["chg"] and kk == 0: st.put(31, "s_waitcnt lgkmcnt(8)")
            if kk == 0 and it < 15:
                d = -131072 if it % 3 == 0 else 65536
                for i, x in enumerate([f"v_add_u32 v{RA[0]}, {d}, v{RA[0]}", f"v_add_u32 v{RA[1]}, {d}, v{RA[1]}"] + [f"v_xor_b32 v{r}, 0x10000, v{r}" for r in RB]):
                    st.put(48 + 2*(i >> 1), x)
            if OPT["fine"]:
                st.put(2, f"{FT()} s[{sFS}:{sFS+1}]")
                st.put(4, f"v_mov_b32_dpp v0, v0 wave_shr:1 row_mask:0xf bank_mask:0xf")
                st.put(46, f"v_writelane_b32 v0, s{sFS}, 0")
            return st
        ch = side_chain()
        J = Jobs()
        for e in range(8):
            t = [x + e*OPT["slstep"] for x in OPT["slt"]]
            J.add("sl1", f"s_mov_b32 s{sJT}, {(e>>2)*16*896}", f"buffer_load_dwordx2 {ar(WOL+2*e,2)}, v{vWO}, {sr(sX,4)}, s{sJT} offen offset:{(e&3)*896}{OPT['ntS']} ; @sl1", t[2], t[2]+64)
            J.add("sl2", f"s_add_u32 s{sJT}, s{sHI}, {(e&3)*3584}" if e >> 2 else f"s_mov_b32 s{sJT}, {e*3584}",
                  f"buffer_load_dwordx2 {ar(SLD+32+2*e,2)}, v{vW12}, {sr(sW12,4)}, s{sJT} offen{OPT['ntS']} ; @sl2", t[0], t[0]+64)
            J.add("sl0", f"s_mov_b32 s{sJT}, {e*8192}", f"buffer_load_dwordx2 {ar(SLD+2*e,2)}, v{vSW}, {G}, s{sJT} offen{OPT['ntS']} ; @sl0", t[1], t[1]+64)
        NZ, NZP, NZC, NF, NP, NC = OPT["sync"]
        for i in range(20): xjob(J, "x1", i, XO1, (NC+1)*64 + i*OPT["xstep"], 31*64)
        for b in range(8):
            J.add("bias", None, f"buffer_load_dwordx4 {vr(BIAS+BP[b>>1]*8+(b&1)*4,4)}, v{GT+16}, {G}, s{sT+3} offen offset:{(b>>1)*128+(b&1)*16} ; @bias{b//6}", 31*64 if b >= 6 else 29*64, 31*64+24 if b >= 6 else 30*64+22)
        for i in range(4*(7-OPT["dp"]) if OPT["dp"] is not None else 0):
            t = OPT["clr0"] + i*OPT["clrs"]
            J.add("clr", f"s_add_u32 s{sJT}, s{sPSS}, {OPT['dp']*4096+i*1024}", f"buffer_store_dwordx4 {vr(CLR,4)}, v{vL16}, {WS}, s{sJT} offen sc1", t, t+64)
        su = Chain(setup)
        PV = GT+8
        for n in range(31):
            it, kk = n >> 1, n & 1
            st = substep(it, kk)
            if n == 0:
                st.put(62, f"s_load_dwordx2 s[{sX}:{sX+1}], s[0:1], 40")
                st.put(63, f"s_mov_b32 s{sX+2}, {4096*896}")
            if n == NZ-1: st.put(63, "s_waitcnt vmcnt(@since:zst)")
            if n == NZ: st.put(61, f"buffer_store_byte v{vONE}, v{vFLG}, {sr(sDBG,4)}, s{gFL} offen sc1")
            if n == NZP: st.put(61, f"buffer_load_dword v{vPOLL}, v{vL4}, {sr(sDBG,4)}, s{gIT} offen sc1 ; @zp")
            if n == NZC:
                st.put(54, "s_waitcnt vmcnt(@since:zp)")
                st.put(55, f"s_cmp_eq_u32 s{sWAVE}, 0\ns_cselect_b32 s{sT+1}, 0x01010101, 0")
                st.put(56, f"v_cmp_ne_u32 vcc, s{sT+1}, v{vPOLL}")
                st.put(60, f"s_cbranch_vccnz L_zwait{typ}")
                st.put(60, f"L_zok{typ}:")
            if n == NF-1:
                assert not any("@sst" in x[0] for x in ch.items) and NZC < NF
                st.put(63, "s_waitcnt vmcnt(@since:sst)")
                st.put(62, f"s_load_dwordx2 s[{sG}:{sG+1}], s[0:1], 64")
                st.put(59, f"s_mov_b32 s{sG+2}, 3584")
            if n == NF:
                st.put(55, f"s_add_u32 s{gIT}, s{gIT}, {WS_FLG+FL_PREP}")
                st.put(58, f"s_lshl2_add_u32 s{sT+1}, s2, s{gIT}")
                st.put(59+2*kk, f"buffer_store_dword v{vONE}, v{vFLG}, {WS}, s{sT+1} offen sc1")
            if n == NP:
                assert not ch.items
                st.put(61, f"buffer_load_dwordx4 {vr(PV,4)}, v{vL16}, {WS}, s{gIT} offen sc1 ; @prep")
            if n == NC:
                st.put(50, "s_waitcnt vmcnt(@since:prep)")
                st.put(51, f"s_cmp_eq_u32 s{sWAVE}, 0\ns_cselect_b32 s{sT+1}, 1, 0")
                st.put(54, f"v_and_b32 v{PV}, v{PV}, v{PV+1}")
                st.put(54, f"v_and_b32 v{PV+2}, v{PV+2}, v{PV+3}")
                st.put(55, f"v_and_b32 v{PV}, v{PV}, v{PV+2}")
                st.put(55, f"v_cmp_ne_u32 vcc, s{sT+1}, v{PV}")
                st.put(60, f"s_cbranch_vccnz L_prepwait{typ}")
                st.put(60, f"L_prepok{typ}:")
                st.put(56, f"v_lshrrev_b32 v{GT+16}, 4, v{vLANE}")
                st.put(56, f"v_lshlrev_b32 v{GT+16}, 5, v{GT+16}")
            if n == 30 and OPT["es"]: pk = pack_chain(); sg = es_place(st, n, pk)
            J.place(st, n, 10, XG4)
            if n == 30 and OPT["es"]: es_fill(st, n, pk, sg); print("pack left", len(pk.items), file=sys.stderr)
            if n >= 1 and ch.items:
                full = ch.items
                for k, x in enumerate(full):
                    if len(x) > 3:
                        key = f"sl{x[3]}"
                        if any(j[5] == key for j in J.jobs) or J.at[key] + OPT["sld"] > n*64+63:
                            ch.items = full[:k]; break
                        full[k] = (x[0], x[1], max(0, J.at[key] + OPT["sld"] - n*64), x[3])
                rest = full[len(ch.items):] if ch.items is not full else []
                ch.base = n*64; ch.minD = OPT["smin"]
                ch.fill(st)
                ch.items = ch.items + rest
                if typ == "K": print("substep", n, "chain left", len(ch.items), file=sys.stderr)
            elif n > NC: su.fill(st)
            if n == 19:
                s0 = Chain(setup0); s0.fill(st, 0, 33); assert not s0.items and not ch.items
            if n == 28: assert not any(j[5] == "clr" for j in J.jobs)
            if n == 28: assert not su.items
            st.emit(a)
            if OPT["tch"] and n in OPT["tg"]: a(touch(typ))
            if OPT["tch"] and n in OPT["tgs"]:
                a(f"s_cmp_eq_u32 s{sTYPE}, 0\ns_cbranch_scc0 L_tpb{typ}{n}")
                a(touch("a" + typ)); a(f"s_branch L_tpe{typ}{n}\nL_tpb{typ}{n}:"); a(touch("b" + typ)); a(f"L_tpe{typ}{n}:")
        st = substep(15, 1)
        J.place(st, 31, 2, [17, 21]); assert not J.jobs
        SG = [25, 33, 41, 49, 57, 61]
        if OPT["es"]: sg = es_place(st, 31, pk)
        else:
            for c in range(NE): kvjob(J, c, SG[c], SG[c])
        J.place(st, 0, 8, SG); assert not J.jobs
        su = Chain(setup2); su.fill(st, 30); assert not su.items
        slot_of = {pos(m, n): m*8+n for m in range(8) for n in range(8)}
        if OPT["chg"]: slot_of = {pos(m, n): (m*8+(n-4)*2+1 if n >= 4 else -1) for m in range(8) for n in range(8)}
        if OPT["es"]: es_fill(st, 31, pk, sg); pk_ = pk
        pk = []
        for c in range(0 if OPT["es"] else 32):
            e = max(slot_of[2*c], slot_of[2*c+1]) + 3
            if 20 <= c < 20+NE: e = max(e, SG[c-20]+2)
            src = []
            for h in range(2):
                p = 2*c+h
                if p < 52: src += [48+4*p+i for i in range(4)]
                else:
                    for i in range(4):
                        pk.append((f"v_accvgpr_read_b32 v{128+(p-52)*4+i}, a{208+4*(p-52)+i}", 0, e)); src.append(128+(p-52)*4+i)
            for i in range(4): pk.append((f"v_cvt_pk_bf16_f32 v{PK(c)+i}, v{src[2*i]}, v{src[2*i+1]}", 0, e))
        pk = Chain(pk); pk.fill(st)
        if OPT["es"]: pk = pk_
        for c in range(0 if OPT["es"] else NE):
            w = [g for g, v in st.fill.items() if any(x.startswith(f"v_cvt_pk_bf16_f32 v{PK(c)+3},") for x in v)]
            assert min(w) < SG[c], (c, w)
        st.emit(a)
        a("s_nop 7" if OPT["es"] else "s_nop 3")
        print("pack tail", len(pk.items), file=sys.stderr)
        pk.flush(a)
        a("s_waitcnt vmcnt(@since:bias0) lgkmcnt(8)")
        gt_ = [l.strip() for l in a.lines if l.strip().startswith("buffer_")][-80:]
        if typ == "V": assert [re.sub(r"v\[\d+:\d+\]", "", x) for x in gt_] == [re.sub(r"v\[\d+:\d+\]", "", x) for x in gtail]
        gtail = gt_
        a(f"s_cmp_eq_u32 s{sTYPE}, 0")
        a("s_cbranch_scc0 L_P1B")
        a("s_branch L_P1A")
    def unpack(nt):
        o = []
        for r in range(4):
            x = 4*r + (nt & 3); src = BIAS + BP[nt >> 2]*8 + (x >> 1)
            o.append(f"v_and_b32 v{O(nt,1)+r}, 0xffff0000, v{src}" if x & 1 else f"v_lshlrev_b32 v{O(nt,1)+r}, 16, v{src}")
        return o
    def p1_jobs(t0, step, slack=8):
        J = Jobs()
        if OPT["es"]:
            for k, c in enumerate(ENL()): kvjob(J, c, t0+k*step, t0+slack+k*step)
        else:
            for c in range(20+NE, 32): kvjob(J, c, 0, XG[c-20-NE])
            for k, c in enumerate(range(NE, 20+NE)): kvjob(J, c, t0+k*step, t0+slack+k*step)
        for i in range(20, 28): xjob(J, f"x1{i>>2}", i, XO1, (i >> 2)*64 - 134, (i >> 2)*64 - 70)
        return J
    def xwait(st, key): st.put(62, f"s_waitcnt vmcnt(@since:{key})")
    def flagjob(J, key, after, soff, delay):
        if key in J.at or any(j[5] in (after, key) for j in J.jobs): return
        t = J.at[after] + delay
        J.add(key, f"s_waitcnt vmcnt(@since:{after})\ns_barrier", f"buffer_store_dword v{vONE}, v{vFLG}, {WS}, s{soff} offen sc1", t, t+8)
    def split_chain(items, st_prev, mk_next, late_of):
        ch = Chain(items); ch.fill(st_prev)
        rest = ch.items
        for k in range(len(rest)+1):
            st = mk_next()
            c2 = Chain([(x[0], x[1]) for x in rest[k:]])
            before = {gg: len(v) for gg, v in st.fill.items()}
            c2.fill(st)
            if c2.items: continue
            where = {}
            for gg, v in st.fill.items():
                for ins in v[before.get(gg, 0):]: where[ins] = gg
            if all(where[x[0]] <= late_of(x[3]) for x in rest[k:]):
                return rest[:k], st
        raise AssertionError
    def emit_mid(mid):
        if mid: a("s_nop 3")
        Chain(mid).flush(a)
        if mid: a("s_nop 1")
    def post_groups(s, scale):
        out = []
        for qt in range(2):
            for p in range(2):
                t = vT + 16 + (qt*2+p)*4
                regs = [PA(s & 1, nt, qt) + 2*p + rr for rr in range(2) for nt in range(4)]
                ops = [f"v_mul_f32 v{r}, v{vRINV[qt]}, v{r}" for r in regs] if scale else []
                ops += [f"v_cvt_pk_bf16_f32 v{t+i}, v{regs[2*i]}, v{regs[2*i+1]}" for i in range(4)]
                out.append((ops, t))
        return out
    def post_store(s, k, t, base):
        if OPT["pr"] and base == sPSS and s < 3:
            return f"s_add_u32 s{sJT}, s{sPSG}, {(s+4*(OPT['pr'] == 1))*4096+k*1024}", f"buffer_store_dwordx4 {vr(t,4)}, v{vL16}, {WS}, s{sJT} offen{OPT['prsc']}"
        return f"s_add_u32 s{sJT}, s{base}, {s*4096+k*1024}", f"buffer_store_dwordx4 {vr(t,4)}, v{vL16}, {WS}, s{sJT} offen sc1"
    def post_place(st, s, scale, base, gaps):
        for k, (ops, t) in enumerate(post_groups(s, scale)):
            pre, ins = post_store(s, k, t, base)
            st.put(gaps[k]-1, pre); st.put(gaps[k], ins)
    def post_sched(st, s, scale, gaps):
        for k, (ops, t) in enumerate(post_groups(s, scale)):
            prev = None
            for x in ops: prev = st.add(x, [prev], 2, gaps[k]-1)
        st.schedule()
    def post_flush(s, scale, base):
        a("s_nop 5")
        for k, (ops, t) in enumerate(post_groups(s, scale)):
            for x in ops: a(x)
            for x in post_store(s, k, t, base): a(x)
    def mk_post(s):
        st = Stage(mf_post(s)); common_fill(st); return st
    def poll_issue(st, g, voff, soff, tag):
        st.put(g, f"buffer_load_dword v{vPOLL}, v{voff}, {WS}, s{soff} offen sc1 ; @{tag}")
    POLLS = []
    def poll_check(st, g, voff, soff, tag, lane0):
        st.put(g, f"s_waitcnt vmcnt(@since:{tag})")
        st.put(g, f"v_cmp_{'eq' if lane0 else 'ne'}_u32 s[{sT+4}:{sT+5}], s{sEXP}, v{vPOLL}")
        st.put(g+2, f"s_cmp_{'eq' if lane0 else 'lg'}_u64 s[{sT+4}:{sT+5}], 0\ns_cbranch_scc1 L_pw_{tag}")
        assert not ({g+1, g+2} & st.scc_busy)
        st.put(g+2, f"L_po_{tag}:")
        st.put(g+2, "s_barrier")
        POLLS.append((tag, voff, soff, lane0))
    def gsetup(st):
        t, u = sT+4, sT+5
        c = f"""
        v_min_u32 v{vPV}, 6, v{vLANE}
        v_lshl_add_u32 v{vPV}, v{vPV}, 2, 64
        v_lshrrev_b32 v{vS}, 4, v{vLANE}
        v_mul_u32_u24 v{vS}, {PS_SRC - 256}, v{vS}
        v_add_u32 v{vS}, v{vS}, v{vL16}
        v_cmp_gt_u32 s[{t}:{u}], 48, v{vLANE}
        s_lshr_b32 s{sPOLL}, s2, 2
        v_cndmask_b32 v{vS2}, v{vFLG}, v{vS}, s[{t}:{u}]
        s_lshl_b32 s{sPOLL}, s{sPOLL}, 7
        s_add_u32 s{sPOLL}, s{sPOLL}, {WS_FLG + FL_S}
        s_lshr_b32 s{t}, s2, 4
        s_mul_i32 s{sGC}, s{t}, {PS_R}
        s_bfe_u32 s{t}, s2, 0x20002
        s_mul_i32 s{u}, s{t}, {28*1024}
        s_add_u32 s{sGC}, s{sGC}, s{u}
        s_and_b32 s{t}, s{t}, {2*OPT["bal"]}
        s_xor_b32 s{t}, s{t}, s2
        s_and_b32 s{t}, s{t}, 3
        s_lshl2_add_u32 s{t}, s{sWAVE}, s{t}
        s_lshl_b32 s{u}, s{t}, 11
        s_add_u32 s{sGC}, s{sGC}, s{u}
        s_add_u32 s{sGC}, s{sGC}, {WS_PS + 16*PS_SRC}
        """
        c = [(x.strip(), 2 if "cndmask" in x else 1) for x in c.split("\n") if x.strip()]
        c.append((f"s_cmp_lt_u32 s{t}, 14\ns_cselect_b32 s{sGC}, s{sGC}, {OOB}", 1))
        c.append((f"s_cmp_lt_u32 s{sTYPE}, 2\ns_cselect_b32 s{sEVN}, 1, 0", 1))
        c = Chain(c); c.fill(st, 4); assert not c.items
    def pflag(st): st.put(62, f"s_and_b32 s{sFQ}, s{sFQ}, 0x3fffffff\ns_add_u32 s{sFQ}, s{sFQ}, 16")
    def kv2addr(st):
        st.put(2, f"v_min_u32 v{vL4}, 11, v{vLANE}"); st.put(4, f"v_lshlrev_b32 v{vL4}, 2, v{vL4}"); st.put(8, f"v_add_u32 v{vL4}, 128, v{vL4}")
    XG2 = sorted(XG + [3, 11, 19, 27, 43, 51, 59])
    XG3 = sorted(XG + [5, 13, 21, 29, 45, 53, 61])
    merge("L_P1A")
    for l in gtail: a.raw("@ghost " + l)
    stamp(2)
    if OPT["tch"] and -1 in OPT["ta"]: a(touch("A"))
    for x in unpack(0): a(x)
    a("s_nop 1")
    J = p1_jobs(OPT["kva0"], OPT["kvstep"])
    for s in range(6):
        st = Stage(mf_proj(s, "bias" if s == 0 else None)); common_fill(st)
        flagjob(J, "kvf", "kv", sFKV, OPT["fdelay"])
        J.place(st, s, OPT["cap"])
        if s == 0:
            st.put(40, f"s_waitcnt vmcnt(@since:bias1)")
            for nt in range(1, 16):
                e = XG[2*(nt-13)+1]+2 if nt >= 13 and not OPT["es"] else 0
                if nt >= 12: e = max(e, 40)
                for x in unpack(nt): st.add(x, [], e, 4*nt-3)
            st.schedule()
        if s >= 4: xwait(st, f"x1{s+1}")
        st.emit(a)
        if OPT["tch"] and s in OPT["ta"]: a(touch("A"))
    st = Stage(mf_proj(6)); common_fill(st)
    flagjob(J, "kvf", "kv", sFKV, OPT["fdelay"]); J.place(st, 6, OPT["cap"])
    items = []
    for ud in range(8):
        for qt in range(2):
            regs = [O(2*ud,qt)+i for i in range(4)] + [O(2*ud+1,qt)+i for i in range(4)]
            e = 8*ud+7+3
            for r in regs: items.append((f"v_mul_f32 v{r}, |v{r}|, v{r}", 0, e, ud))
            for i in range(4): items.append((f"v_cvt_pk_bf16_f32 v{regs[i]}, v{regs[2*i]}, v{regs[2*i+1]}", 0, e, ud))
            for i in range(4): items.append((f"v_pk_max_i16 v{regs[i]}, v{regs[i]}, 0", 0, e, ud))
    import copy
    def mk0():
        st = mk_post(0); J2 = copy.deepcopy(J); J2.place(st, 7, OPT["cap"]); assert not J2.jobs; return st
    mid, st0 = split_chain(items, st, mk0, lambda ud: 8*ud-3)
    print("H mid", len(mid), "kv last", J.at["kv"], file=sys.stderr)
    st.emit(a); emit_mid(mid)
    stamp(3)
    J = Jobs()
    for i in range(16):
        J.add("ql", f"s_add_u32 s{sJT}, s{sQST}, {i*1024}", f"buffer_load_dwordx4 {ar(4*i,4)}, v{vL16}, {WS}, s{sJT} offen sc1 ; @ql", OPT["qa"]+4, 6*64+OPT["qe"]-(15-i)*4)
    for s in range(7):
        st = st0 if s == 0 else mk_post(s)
        if s == 2: poll_issue(st, 3, vL4, sFKVP, "kva"); poll_check(st, 58, vL4, sFKVP, "kva", False)
        if s == 3: kv2addr(st)
        if s == (OPT["qa"]-55) >> 6: poll_issue(st, (OPT["qa"]-55) & 63, vFLG, sFQ, "qa")
        if s == OPT["qa"] >> 6: poll_check(st, OPT["qa"] & 63, vFLG, sFQ, "qa", True)
        if s == 1: st.put(2, f"s_lshl2_add_u32 s{sT+1}, s{sQI}, 4\ns_cmp_eq_u32 s{sU1}, s{sT+1}\ns_cselect_b32 s{sTYPE}, 4, 0")
        gaps = [9, 25, 41, 57] if s < 6 else [41, 49, 57, 59]
        pk_ = s-1 in OPT["park"]
        if s >= 1 and not pk_: post_place(st, s-1, False, sPSG, gaps)
        J.place(st, s, OPT["qcap"], XG2)
        if pk_:
            for k, (ops, t) in enumerate(post_groups(s-1, False)):
                for i, x in enumerate(ops):
                    c_ = st.add(x, [], 2, 60)
                    st.add(f"v_accvgpr_write_b32 a{128+(s-1)*16+k*4+i}, v{t+i}", [c_], 2, 62)
            st.schedule()
        elif s >= 1: post_sched(st, s-1, False, gaps)
        if s == 1: gsetup(st)
        if s == 5: pflag(st)
        st.emit(a)
    assert not J.jobs
    def mk_F(qb, tag, pre=None):
        st = Stage(mf_qk(0, 0, qb, True) + mf_qk(1, 1, qb, True)); common_fill(st)
        if pre: pre(st)
        place_sm(st, 0, 35, 62, tag, ladd=False, first=True)
        st.schedule()
        return st
    def finit():
        return [(f"v_mov_b64 {vr(NEGM(0)+2*i,2)}, 0", 0) for i in range(4)] + [(f"v_mov_b64 {vr(vL[0],2)}, 0", 0),
                (f"v_mov_b32 v{vBIG}, {f2u(-1e30):#x}", 0), (f"v_mov_b32 v{vBIG+1}, v{vBIG}", 0), (f"s_mov_b32 s{sFIRST}, 1", 1), (f"s_mov_b32 s{sCLAMP}, {f2u(-3e38):#x}", 1)]
    def f_end(tag, nxt, endl):
        if tag in OPT["inf"]:
            hi, lo = f2u(2.0**OPT["thr"]), f2u(2.0**-OPT["thr"])
            a(f"""
            s_cbranch_vccz L_fok_{tag}
            s_add_u32 s{sT+1}, s{sND}, 1
            v_cndmask_b32 v{vT+14}, v{vSUM[0][0]}, 1.0, s[{sMASK}:{sMASK+1}]
            s_cmp_gt_u32 s{sN}, s{sT+1}
            s_cbranch_scc1 L_fok_{tag}
            v_subrev_u32 v{vT+14}, {lo:#x}, v{vT+14}
            v_max_u32 v{vT+14}, v{vT+14}, v{vT+15}
            v_cmp_lt_u32 vcc, {hi-lo:#x}, v{vT+14}
            s_cmp_lt_u32 s{sN}, s{sT+1}
            s_cbranch_scc1 L_fchk_{tag}
            s_nop 2
            """)
        a(f"s_cbranch_vccnz L_fchk_{tag}")
        a.label(f"L_fok_{tag}")
        STUBS.append((f"L_fchk_{tag}", "L_fchk", f"L_fok_{tag}"))
        a(f"s_mov_b32 s{sFIRST}, 0")
        a(f"s_mov_b32 s{sCLAMP}, 0")
        if endl:
            a(f"s_cmp_eq_u32 s{sCNT}, 0")
            a(f"s_cbranch_scc1 {endl}")
        if nxt == "L_peelA": peelA()
        elif nxt: a(f"s_branch {nxt}")
    def peelA():
        todo = [(s_, k) for s_ in OPT["park"] for k in range(4)]
        n = OPT["pst_n"]
        ns = (len(todo) + n - 1)//n + 2
        ns += ns & 1
        for i in range(ns):
            b = (i & 1) ^ 1
            st = Stage(mf_pv(0, b^1, i == 0) + mf_qk(1, b^1, 0)); common_fill(st)
            for g in {1: [25], 2: [17, 49], 3: [9, 25, 49], 4: [9, 25, 41, 57]}[n]:
                if not todo: break
                s_, k = todo.pop(0)
                st.put(g-1, f"s_add_u32 s{sJT}, s{sPSG}, {s_*4096+k*1024}")
                st.put(g, f"buffer_store_dwordx4 {ar(128+s_*16+k*4,4)}, v{vL16}, {WS}, s{sJT} offen sc1 ; @ps")
            if i == ns-1:
                st.put(56, "s_waitcnt vmcnt(@since:ps)")
                st.put(57, f"buffer_store_dword v{vONE}, v{vFLG}, {WS}, s{sFSG} offen sc1")
                st.put(2, f"s_add_u32 s{sN}, s{sN}, {ns+1}")
                st.put(4, f"s_sub_u32 s{sCNT}, s{sCNT}, {ns//2}")
            place_sm(st, b, 0, 62, f"pa{i}", mask=False); st.schedule()
            if st.over or st.tail: print("peelA over", i, st.over, len(st.tail), file=sys.stderr)
            st.emit(a)
            a(f"s_cbranch_vccnz L_dorare_pa{i}")
            a.label(f"L_norare_pa{i}")
            STUBS.append((f"L_dorare_pa{i}", f"L_rare{b}", f"L_norare_pa{i}"))
        a("s_branch L_steady0")
    a("s_nop 5")
    for ops, t in post_groups(6, False):
        for x in ops: a(x)
    a("s_waitcnt vmcnt(@since:ql)")
    stamp(4)
    def pre_fa1(st):
        post_place(st, 6, False, sPSG, [9, 17, 25, 33])
        poll_issue(st, 1, vL4, sFKVP, "kv2a"); poll_check(st, 58, vL4, sFKVP, "kv2a", False)
    st = mk_F(0, "fa1", pre_fa1)
    c = Chain(finit()); c.fill(st, 0, 30); assert not c.items
    st.emit(a)
    f_end("fa1", "L_peelA", None)
    merge("L_P1B")
    for l in gtail: a.raw("@ghost " + l)
    stamp(2)
    J = p1_jobs(OPT["kvb0"], OPT["kvstepb"], 200)
    for i in range(28):
        p = i >> 2
        xjob(J, f"x2{p}", i, XO2, max(p+1, 3)*64, (7+p)*64 - 134, 4)
    for i in range(16):
        qt, ud = i & 1, i >> 1
        J.add("qs", f"s_add_u32 s{sJT}, s{sQST}, {(qt*8+ud)*1024}", f"buffer_store_dwordx4 {ar(Q(0,qt,ud),4)}, v{vL16}, {WS}, s{sJT} offen{OPT['kvsc']} ; @qs",
              7*64 if ud < 5 else 8*64, 7*64+20+i*OPT["qstep"])
    def bstage(gs):
        s = gs % 7
        st = Stage(mf_proj(s, "zero" if gs % 7 == 0 else None))
        nod = 3 <= gs <= 7
        common_fill(st, dma=not nod, nd={3: 16, 4: 8, 5: 0}.get(gs), novm=(6 <= gs <= 10), rdl=(gs == 7))
        if gs == 9: poll_issue(st, 3, vL4, sFKVP, "kvb"); poll_check(st, 58, vL4, sFKVP, "kvb", False)
        if gs == 10: kv2addr(st)
        if gs == 1:
            st.put(2, f"s_cmp_gt_u32 s{sN}, 34\ns_cselect_b32 s{sT+1}, 34, 2")
            st.put(4, f"v_and_b32 v{vT}, 4, v{vLANE}"); st.put(8, f"v_mul_u32_u24 v{vT}, s{sT+1}, v{vT}"); st.put(10, f"v_or_b32 v{vL4}, v{vL4}, v{vT}")
        flagjob(J, "kvf", "kv", sFKV, OPT["fdelay"]); flagjob(J, "qf", "qs", sFQ, OPT["qfd"])
        if nod: J.place(st, gs, OPT["capn"], XG3)
        elif gs == 8: J.place(st, gs, OPT["capq"], XG2)
        else: J.place(st, gs, OPT["capb"])
        if gs == 12: assert not J.jobs and max(J.at.values()) < 12*64; gsetup(st); pflag(st)
        if gs in (4, 5): xwait(st, f"x1{gs+1}")
        if 6 <= gs < 13: xwait(st, f"x2{gs-6}")
        return st
    def btouch(gs):
        for _ in range(OPT["tb"].count(gs) if OPT["tch"] else 0): a(touch("B"))
    btouch(-1)
    for gs in range(6): bstage(gs).emit(a); btouch(gs)
    def q_items(qb):
        items = []; cnt = 0
        for ud in range(8):
            blk = ud >> 1
            for qt in range(2):
                e = 16*blk+15+3
                t = vT + 16 + (cnt % 4)*4; cnt += 1
                for i in range(4):
                    jp = 2*(ud & 1) + (i >> 1); tl = 4*blk + 2*(i & 1)
                    items.append((f"v_cvt_pk_bf16_f32 v{t+i}, v{O(tl,qt)+jp}, v{O(tl+1,qt)+jp}", 0, e, 2*blk))
                for i in range(4): items.append((f"v_accvgpr_write_b32 a{Q(qb,qt,ud)+i}, v{t+i}", 0, e, 99 if ud >= 5 else -1))
        return items
    st = bstage(6); st7 = bstage(7)
    mid, st0 = split_chain(q_items(0), st, lambda: copy.deepcopy(st7), lambda ud: 8*ud-1)
    print("E1 mid", len(mid), file=sys.stderr)
    st.emit(a); btouch(6); emit_mid(mid)
    stamp(3)
    st0.emit(a); btouch(7)
    for gs in range(8, 13): bstage(gs).emit(a); btouch(gs)
    st = bstage(13)
    assert not J.jobs
    print("B jobs", {k: (v >> 6, v & 63) for k, v in J.at.items()}, file=sys.stderr)
    def mk_fa2():
        STUBS[:] = [x for x in STUBS if "fa2" not in x[0]]
        POLLS[:] = [x for x in POLLS if x[0] != "kv2b"]
        def pre(st): poll_issue(st, 1, vL4, sFKVP, "kv2b"); poll_check(st, 58, vL4, sFKVP, "kv2b", False)
        st = mk_F(0, "fa2", pre); c = Chain(finit()); c.fill(st, 0, 30); return st
    mid, st0 = split_chain(q_items(128), st, mk_fa2, lambda ud: 60)
    print("E2 mid", len(mid), file=sys.stderr)
    st.emit(a); emit_mid(mid)
    qi_ = q_items(128); q_rest = qi_[qi_.index(mid[-1])+1:]
    btouch(13)
    stamp(4)
    a(f"s_cmp_eq_u32 s{sU1}, 0")
    a("s_cbranch_scc1 L_b0")
    st0.emit(a)
    f_end("fa2", None, "L_u2")
    def steady(b, qb, tag, czero=False, pre=None, last=False):
        st = Stage(mf_pv(0, b^1, czero) + mf_qk(1, b^1, qb)); common_fill(st, rk=OPT["kz"] and not pre)
        if b == 1 and not last: st.put(1, f"buffer_load_dword v{vPOLL}, v{vPV}, {WS}, s{sPOLL} offen sc1")
        if tag == "z1":
            st.put(OPT["pfg"]-1, "s_waitcnt vmcnt(@since:pts)")
            st.put(OPT["pfg"], f"buffer_store_dword v{vONE}, v{vFLG}, {WS}, s{sFQ} offen sc1")
        if pre: pre(st)
        if b == 0 and not last:
            st.put(56, f"s_sub_u32 s{sCNT}, s{sCNT}, 1")
            st.put(58, f"s_cmp_lg_u32 s{sCNT}, s{sEV}")
            st.scc_busy |= set(range(58, 64))
        place_sm(st, b, 0, 62, tag); st.schedule()
        if st.over or st.tail: print("steady over", tag, st.over, len(st.tail), file=sys.stderr)
        st.emit(a)
        a(f"s_cbranch_vccnz L_dorare_{tag}")
        a.label(f"L_norare_{tag}")
        STUBS.append((f"L_dorare_{tag}", f"L_rare{b}", f"L_norare_{tag}"))
    def loop(qb, n):
        a.label(f"L_s1z{n}")
        steady(1, qb, f"z{n}", True)
        a(f"s_branch L_mid{n}")
        merge(f"L_steady{n}", True)
        steady(1, qb, f"s1{n}")
        merge(f"L_mid{n}")
        steady(0, qb, f"s0{n}")
        a(f"s_cbranch_scc1 L_steady{n}")
        a.label(f"L_exit{n}")
    def gvar(qb, n):
        merge(f"L_gv{n}")
        a(f"""
        s_mov_b32 s{sEV}, s{sEVN}
        s_waitcnt vmcnt(16)
        v_cmp_ne_u32 vcc, 1, v{vPOLL}
        s_add_u32 s{sT+3}, s{sGC}, {4*PS_SRC}
        s_nop 3
        s_cbranch_vccnz L_pw_gv{n}
        L_po_gv{n}:
        s_cmp_eq_u32 s{sEV}, 0
        s_cselect_b32 s{sPOLL}, {OOB}, s{sFQ}
        v_mov_b32 v{vPV}, v{vFLG}
        """)
        POLLS.append((f"gv{n}", vPV, sPOLL, False))
        for b in (1, 0):
            def pre(st):
                for k, g in enumerate(OPT["ptg"]):
                    i = (1-b)*8+k; og, p, sg = i >> 2, (i >> 1) & 1, i & 1
                    st.put(g, f"buffer_load_dwordx4 {ar(GL+i*4,4)}, v{(vS, vS2)[sg]}, {WS}, s{(sGC, sT+3)[sg]} offen offset:{p*1024+og*256} sc1")
            steady(b, qb, f"gv{b}{n}", pre=pre)
        a(f"s_cbranch_scc1 L_steady{n}")
        a(f"s_branch L_exit{n}")
    loop(0, 0)
    a(f"s_cmp_eq_u32 s{sCNT}, 0")
    a("s_cbranch_scc1 L_end0")
    a(f"s_cmp_eq_u32 s{sEV}, 1")
    a(f"s_mov_b32 s{sEV}, 0")
    a("s_cbranch_scc1 L_ptl")
    gvar(0, 0)
    a.label("L_u2")
    for i in range(64): a(f"v_mov_b64 {vr(O0+2*i,2)}, 0")
    merge("L_end0")
    a(f"s_cmp_ge_u32 s{sTYPE}, 2")
    a("s_cbranch_scc1 L_lpack")
    a.label("L_ptl")
    a(f"""
    s_waitcnt vmcnt(16)
    v_cmp_ne_u32 vcc, 1, v{vPOLL}
    s_add_u32 s{sT+3}, s{sPT}, 16384
    s_cmp_eq_u32 s{sCNT}, 0
    s_cbranch_scc1 L_ptb
    s_bitcmp1_b32 vcc_lo, 0
    s_cbranch_scc1 L_steady0
    buffer_load_dwordx4 {vr(vSTB,4)}, v{vL16}, {WS}, s{sT+3} offen sc1
    """)
    for b in (1, 0):
        def pre(st):
            for k, g in enumerate(OPT["ptg"]):
                i = (1-b)*8+k
                if i % 4 == 0: st.put(g-1, f"s_add_u32 s{sT+3}, s{sPT}, {i*1024}")
                st.put(g, f"buffer_load_dwordx4 {ar(128+4*i,4)}, v{vL16}, {WS}, s{sT+3} offen offset:{(i&3)*1024} sc1")
        steady(b, 0, f"pt{b}", pre=pre, last=True)
    a("s_branch L_ln")
    merge("L_ptb")
    a("s_bitcmp1_b32 vcc_lo, 0")
    a("s_cbranch_scc1 L_pw_pt")
    a.label("L_po_pt")
    POLLS.append(("pt", vFLG, sFQ, True))
    a(f"@@buffer_load_dwordx4 {vr(vSTB,4)}, v{vL16}, {WS}, s{sT+3} offen sc1")
    for i in range(16):
        if i % 4 == 0: a(f"s_add_u32 s{sT+3}, s{sPT}, {i*1024}")
        a(f"buffer_load_dwordx4 {ar(128+4*i,4)}, v{vL16}, {WS}, s{sT+3} offen offset:{(i&3)*1024} sc1 ; @ptl")
    a.label("L_ln")
    def pack_items(e0, step):
        items = []
        for ud in range(8):
            for qt in range(2):
                regs = [O(2*ud,qt)+i for i in range(4)] + [O(2*ud+1,qt)+i for i in range(4)]
                for i in range(4): items.append((f"v_cvt_pk_bf16_f32 v{regs[i]}, v{regs[2*i]}, v{regs[2*i+1]}", 0, e0+step*ud, ud))
        return items
    def mk_L(tag):
        st = Stage(mf_pv(0, 0) + mf_pv(1, 1)); common_fill(st)
        place_sm(st, 1, 0, 30, tag); st.schedule()
        st.put_post(31, f"s_cbranch_vccnz L_dorare_{tag}")
        st.put_post(31, f"L_norare_{tag}:")
        STUBS.append((f"L_dorare_{tag}", "L_rare1", f"L_norare_{tag}"))
        st.put(32, f"v_add_f32 v{vL[0]}, v{vL[0]}, v{vSUM[0][0]}")
        st.put(34, f"v_add_f32 v{vL[1]}, v{vL[1]}, v{vSUM[1][0]}")
        return st
    st = mk_L("ln")
    c = [(f"v_bfe_u32 v{vT+20}, v{vLANE}, 2, 2", 0), (f"v_lshrrev_b32 v{vT+21}, 4, v{vLANE}", 0), (f"v_cmp_eq_u32 s[{sT+4}:{sT+5}], v{vT+20}, v{vT+21}", 0),
         (f"v_and_b32 v{vT+20}, 3, v{vLANE}", 0), (f"v_lshlrev_b32 v{vT+20}, 4, v{vT+20}", 0), (f"v_mov_b32 v{vT+22}, 0x3f80", 0), (f"v_mov_b32 v{vT+23}, 0", 0),
         (f"v_cndmask_b32 v{vT+22}, 0, v{vT+22}, s[{sT+4}:{sT+5}]", 1), (f"v_lshlrev_b64 {vr(vSEL+2,2)}, v{vT+20}, {vr(vT+22,2)}", 0),
         (f"v_mov_b64 {vr(vSEL,2)}, 0", 0), (f"v_mov_b64 {vr(vSEL+4,2)}, 0", 0),
         ("s_waitcnt vmcnt(@since:ptl)", 1, 55),
         (f"v_cmp_neq_f32 vcc, v{NEGM(0)}, v{vSTB}", 1), (f"v_cmp_neq_f32 s[{sT+4}:{sT+5}], v{NEGM(1)}, v{vSTB+1}", 0)]
    c = Chain(c); c.fill(st, 35); assert not c.items
    st.emit(a)
    a(f"s_or_b64 vcc, vcc, s[{sT+4}:{sT+5}]")
    a("s_cbranch_scc1 L_slowcomb")
    a.label("L_comb")
    stamp(5)
    mf = []
    for ud in range(8):
        for h in range(2):
            for qt in range(2):
                d = vr(O(2*ud+h,qt),4)
                mf.append(f"{MF} {d}, {vr(vSEL+2-2*h,4)}, {ar(128+(ud*2+qt)*4,4)}, {d}")
    st = Stage(mf)
    st.put(0, f"v_add_f32 v{vL[0]}, v{vL[0]}, v{vSTB+2}")
    st.put(0, f"v_add_f32 v{vL[1]}, v{vL[1]}, v{vSTB+3}")
    c = Chain(pack_items(6, 4)); c.fill(st, 0, 31)
    st.emit(a)
    a("s_nop 5")
    c.flush(a)
    a("s_branch L_post2")
    merge("L_lpack")
    st = mk_L("lp")
    c = Chain([(f"v_mov_b32 v{vSTAT}, v{NEGM(0)}", 0), (f"v_mov_b32 v{vSTAT+1}, v{NEGM(1)}", 0), (f"v_mov_b64 {vr(vSTAT+2,2)}, {vr(vL[0],2)}", 0)] + pack_items(38, 4))
    c.fill(st, 35)
    st.put(62, f"s_cmp_eq_u32 s{sTYPE}, 2")
    st.emit(a)
    a("s_nop 5")
    print("Lpack tail", len(c.items), file=sys.stderr)
    c.flush(a)
    a("s_cbranch_scc0 L_post2b")
    a.label("L_seg2")
    stamp(5)
    a(f"""
    s_mov_b32 s{sTYPE}, 3
    s_mov_b32 s{sN}, 0
    s_sub_u32 s{sND}, 15, s{sQI}
    s_lshl_b32 s{sND}, s{sND}, 2
    s_add_u32 s{sND}, s{sND}, s{sWAVE}
    s_lshr_b32 s{sCNT}, s{sU2}, 1
    s_sub_u32 s{sCNT}, s{sCNT}, 1
    s_sub_u32 s{sEV}, 7, s{sJ}
    s_add_u32 s{sT+3}, s{sPT}, 16384
    buffer_store_dwordx4 {vr(vSTAT,4)}, v{vL16}, {WS}, s{sT+3} offen sc1
    """)
    def pre_fb(st): poll_issue(st, 1, vL4, sFKVP, "kv2c"); poll_check(st, 58, vL4, sFKVP, "kv2c", False)
    st = mk_F(128, "fb", pre_fb)
    c = []
    for i in range(16):
        if i % 4 == 0: c.append((f"s_add_u32 s{sT+3}, s{sPT}, {i*1024}", 1))
        c.append((f"buffer_store_dwordx4 {vr(O(2*(i>>1),i&1),4)}, v{vL16}, {WS}, s{sT+3} offen offset:{(i&3)*1024}{OPT['kvsc']} ; @pts", 1))
    c = Chain(c); c.fill(st)
    c2 = Chain(finit()); c2.fill(st, 0, 30); assert not c2.items
    print("Fb leftover", len(c.items), file=sys.stderr)
    st.emit(a)
    c.flush(a)
    f_end("fb", None, "L_end")
    loop(128, 1)
    a(f"s_cmp_eq_u32 s{sCNT}, 0")
    a("s_cbranch_scc1 L_lpack")
    gvar(128, 1)
    a.label("L_post2b")
    merge("L_post2")
    stamp(6)
    if OPT["pr"]:
        a(f"s_bitcmp1_b32 s{sHEAD}, 0\ns_cselect_b32 s{sPSG}, {-PS_SRC}, s{sHEAD}\ns_cselect_b32 s{sPSG}, s{sPSG}, {PS_SRC}\ns_add_u32 s{sPSG}, s{sPSG}, s{sPSS}")
    a("s_nop 1")
    CO, FP, XO, BO = sU2, sW0, sCNT, sN
    CS = [sU1, sEV, sND, sPT]
    vXO, vBO, vFS = 44, 45, 48
    XB, BB, SEL = 96, 104, 112
    fpc = f"s_lshl_b32 s{FP}, s{FP}, 7\ns_add_u32 s{FP}, s{FP}, {WS_FLG + FL_S}"
    if OPT["fsep"]:
        fpc = f"""s_and_b32 s{FP}, s{FP}, 3
        s_lshr_b32 s{BO}, s{sJ}, 3
        s_mul_i32 s{BO}, s{BO}, 7
        s_xor_b32 s{BO}, s{BO}, 7
        s_xor_b32 s{BO}, s{BO}, s{sJ}
        s_lshl_b32 s{BO}, s{BO}, 6
        s_add_u32 s{FP}, s{FP}, s{BO}
        s_mul_i32 s{FP}, s{FP}, {OPT["fsep"]}
        s_add_u32 s{FP}, s{FP}, {WS_FLG + FL_S3}"""
    fs = f"""
    s_load_dwordx2 s[{sSA}:{sSA+1}], s[0:1], 0
    s_load_dwordx2 s[{sG}:{sG+1}], s[0:1], 80
    s_load_dwordx2 s[{sSB}:{sSB+1}], s[0:1], 88
    s_mov_b32 s{sSA+2}, {2048*896}
    s_mov_b32 s{sSB+2}, {2048*896}
    s_mov_b32 s{sG+2}, 896
    s_lshr_b32 s{FP}, s2, 2
    s_and_b32 s{sT}, s{FP}, {2*OPT["bal"]}
    s_xor_b32 s{sT}, s{sT}, s2
    s_and_b32 s{sT}, s{sT}, 3
    s_lshl2_add_u32 s{sT}, s{sWAVE}, s{sT}
    s_sub_u32 s{CO}, s{sGC}, {16*PS_SRC}
    s_mul_i32 s{XO}, s{FP}, {32*896}
    {fpc}
    s_lshr_b32 s{BO}, s{sT}, 1
    s_lshl_b32 s{BO}, s{BO}, 7
    s_add_u32 s{XO}, s{XO}, s{BO}
    s_and_b32 s{sT+4}, s{sT}, 1
    s_mul_i32 s{sT+4}, s{sT+4}, {16*896}
    s_add_u32 s{XO}, s{XO}, s{sT+4}
    v_and_b32 v{vXO}, 15, v{vLANE}
    v_mul_u32_u24 v{vFS}, {4*OPT["fsep"] or 4}, v{vXO}
    v_lshrrev_b32 v{vBO}, 4, v{vLANE}
    v_lshlrev_b32 v{vBO}, 3, v{vBO}
    v_and_b32 v{vS2}, 1, v{vLANE}
    v_mul_u32_u24 v{vS2}, 0xffff, v{vS2}
    v_add_u32 v{vS2}, 1, v{vS2}
    v_mul_u32_u24 v{vS2}, 0x3f80, v{vS2}
    v_lshrrev_b32 v{vXO}, 1, v{vXO}
    """
    fs = [(x.strip(), 1) for x in fs.split("\n") if x.strip()]
    fsS = [x for x in fs if x[0][0] == "s"]; fs = [(x[0], 0) for x in fs if x[0][0] == "v"]
    for k in range(8):
        fs += [(f"v_cmp_eq_u32 s[{sT+4}:{sT+5}], {k}, v{vXO}", 1), (f"v_cndmask_b32 v{SEL+k}, 0, v{vS2}, s[{sT+4}:{sT+5}]", 2)]
    fs += [(x, 1) for x in (f"v_and_b32 v{vXO}, 15, v{vLANE}", f"v_mul_u32_u24 v{vXO}, 896, v{vXO}", f"v_add_u32 v{vXO}, v{vXO}, v{vBO}")]
    fs += fsS
    fs.append((f"s_cmp_lt_u32 s{sT}, 14\ns_cselect_b32 s{XO}, s{XO}, {OOB}", 1))
    fs.append((f"s_lshr_b32 s{sEXP}, s{sT}, 1", 1))
    if OPT["pr"]:
        fs += [(f"s_cmp_lt_u32 s{sEXP}, 3\ns_cselect_b32 s{sT+4}, 16384, 0", 1), (f"s_add_u32 s{CO}, s{CO}, s{sT+4}", 1),
               (f"s_cmp_gt_u32 s{sEXP}, 3\ns_cselect_b32 s{sT+4}, {PS_SRC}, 0", 1), (f"s_add_u32 s{CO}, s{CO}, s{sT+4}", 1),
               (f"v_lshrrev_b32 v{vS}, 4, v{vLANE}", 1), (f"v_mul_u32_u24 v{vS}, {2*PS_SRC - 256}, v{vS}", 1), (f"v_add_u32 v{vS}, v{vS}, v{vL16}", 1),
               (f"s_mov_b32 s{CS[0]}, s{CO}", 1), (f"s_add_u32 s{CS[1]}, s{CO}, {8*PS_SRC}", 1), (f"s_add_u32 s{CS[2]}, s{CO}, {PS_SRC}", 1), (f"s_add_u32 s{CS[3]}, s{CO}, {9*PS_SRC}", 1),
               (f"s_cmp_eq_u32 s{sEXP}, 3\ns_cselect_b32 s{CS[2]}, s{CS[2]}, {OOB}\ns_cselect_b32 s{CS[3]}, s{CS[3]}, {OOB}", 1),
               (f"s_or_b32 s{sEXP}, s{sEXP}, 4", 1), (f"s_cmp_eq_u32 s{sEXP}, 7\ns_cselect_b32 s{sEXP}, 3, s{sEXP}", 1)]
    else: fs += [(f"s_add_u32 s{CS[k]}, s{CO}, {4*k*PS_SRC}", 1) for k in range(4)]
    fs = Chain(fs)
    J = Jobs()
    glate = []
    for k in range(4):
        J.add("gl", None, f"buffer_load_dwordx2 {vr(XB+2*k,2)}, v{vXO}, {sr(sSA,4)}, s{XO} offen offset:{k*32}", 3*64, 7*64)
        J.add("gl", None, f"buffer_load_dwordx2 {vr(BB+2*k,2)}, v{vBO}, {G}, s{BO} offen offset:{k*32} ; @gl", 3*64, 7*64)
    for s in range(7):
        st = Stage(mf_post(s)); common_fill(st, dma=(s < 3), nd=(None, None, None, 16, 8, 0, 0)[s], last=(s == 6))
        if s == 0:
            c = xlane_ops("v_add_f32", vL[0], vT) + xlane_ops("v_add_f32", vL[1], vT) + [(f"v_rcp_f32 v{vRINV[0]}, v{vL[0]}", 0), (f"v_rcp_f32 v{vRINV[1]}, v{vL[1]}", 1)]
            c = Chain(c); c.fill(st); assert not c.items
            fs.fill(st)
        else:
            gaps = [17, 33, 49, 57]
            post_place(st, s-1, True, sPSS, gaps)
            if s == 2: st.put(60, "s_waitcnt lgkmcnt(0)")
            for t_, b_ in OPT["lvl"]:
                if s != t_ >> 6: continue
                st.put((t_ & 63)-2, f"v_mov_b32 v{vPV}, {b_+1}")
                st.put((t_ & 63)-1, f"s_waitcnt vmcnt(@since:ps{b_})")
                st.put(t_ & 63, f"buffer_store_dword v{vPV}, v{vFLG}, {WS}, s{sFSS} offen sc1")
            if s == 6 and OPT["dp"] is not None: st.put(OPT["ep"], f"buffer_load_dword v{vPOLL}, v{vFS}, {WS}, s{FP} offen sc1 ; @ep")
            if s == 6 and OPT["epoll"]: st.put(OPT["epoll"], f"buffer_load_dword v{vPOLL}, v{vFS}, {WS}, s{FP} offen sc1 ; @ep")
            if OPT["pr"] and s >= 4:
                st.put(4, f"s_add_u32 s{sT+3}, s{sPSS}, {(s-4*(OPT['pr'] == 2))*4096}")
                for k, g in enumerate((5, 21, 37, 53)): st.put(g, f"buffer_load_dwordx4 {ar((s-4)*16+k*4,4)}, v{vL16}, {WS}, s{sT+3} offen offset:{k*1024}{OPT['prld']}")
            J.place(st, s, 4, [1, 9, 13, 25, 29, 41, 45, 61])
            post_sched(st, s-1, True, gaps)
            fs.fill(st, 0, 63 if s == 1 else 58)
            if s == 2: assert not fs.items, len(fs.items)
        st.emit(a)
    assert not J.jobs
    post_flush(6, True, sPSS)
    stamp(7)
    a(f"s_mov_b32 s{sT+6}, 0xffff0000")
    a(f"s_mov_b32 s{sT+7}, {f2u(-1.4426950408889634):#x}")
    LB = 128
    GA, SA_, XF = 12, 64, 80
    def rnd_pair(r0, r1, t):
        a(f"v_cvt_pk_bf16_f32 v{t}, v{r0}, v{r1}")
        a(f"v_lshlrev_b32 v{r0}, 16, v{t}")
        a(f"v_and_b32 v{r1}, s{sT+6}, v{t}")
    T1, T2, T3 = 2, 3, 4
    def flag():
        for b_ in OPT["lve"] + [6]:
            a(f"v_mov_b32 v{(vPV, vS2)[b_ & 1]}, {b_+1}")
            a(f"s_waitcnt vmcnt(@since:ps{b_})")
            a(f"buffer_store_dword v{(vPV, vS2)[b_ & 1]}, v{vFLG}, {WS}, s{sFSS} offen sc1 ; @ps6")
    def gmath(fpos, mid=None):
        for n in range(16):
            d = vr(GA+(n >> 2)*4, 4)
            a(f"{MF} {d}, {vr(SEL+((n >> 1) & 1)*4,4)}, {ar(GL+n*4,4)}, {d if n & 3 else 0}")
        for i in range(8):
            a(f"v_lshlrev_b32 v{XF+2*i}, 16, v{XB+i}")
            a(f"v_and_b32 v{XF+2*i+1}, s{sT+6}, v{XB+i}")
        for i in range(8):
            g0, g1 = GA+2*i, GA+2*i+1
            if i == fpos: flag()
            if i == 2 and mid: a(mid)
            rnd_pair(g0, g1, T1)
            a(f"v_lshlrev_b32 v{T2}, 16, v{BB+i}")
            a(f"v_and_b32 v{T3}, s{sT+6}, v{BB+i}")
            a(f"v_add_f32 v{g0}, v{g0}, v{T2}")
            a(f"v_add_f32 v{g1}, v{g1}, v{T3}")
            rnd_pair(g0, g1, T1)
            a(f"v_mul_f32 v{T2}, s{sT+7}, v{g0}")
            a(f"v_mul_f32 v{T3}, s{sT+7}, v{g1}")
            a(f"v_exp_f32 v{T2}, v{T2}")
            a(f"v_exp_f32 v{T3}, v{T3}")
            a("s_nop 0")
            a(f"v_add_f32 v{T2}, 1.0, v{T2}")
            a(f"v_add_f32 v{T3}, 1.0, v{T3}")
            a(f"v_rcp_f32 v{T2}, v{T2}")
            a(f"v_rcp_f32 v{T3}, v{T3}")
            a("s_nop 0")
            a(f"v_mul_f32 v{g0}, v{g0}, v{T2}")
            a(f"v_mul_f32 v{g1}, v{g1}, v{T3}")
            rnd_pair(g0, g1, T1)
    def floads():
        for n in range(32):
            og, p, sg = n >> 3, (n >> 2) & 1, n & 3
            if OPT["fcap"] and n >= OPT["fcap"]: a(f"s_waitcnt vmcnt({OPT['fcap']-1})")
            a(f"buffer_load_dwordx4 {vr(LB+n*4,4)}, v{vS}, {WS}, s{CS[sg]} offen offset:{p*1024+og*256} sc1 ; @f{n}")
    def fin(og):
        for i in (2*og, 2*og+1):
            g0, g1, s0, s1 = GA+2*i, GA+2*i+1, SA_+2*i, SA_+2*i+1
            rnd_pair(s0, s1, T1)
            a(f"v_mul_f32 v{g0}, v{g0}, v{s0}")
            a(f"v_mul_f32 v{g1}, v{g1}, v{s1}")
            rnd_pair(g0, g1, T1)
            a(f"v_add_f32 v{g0}, v{g0}, v{XF+2*i}")
            a(f"v_add_f32 v{g1}, v{g1}, v{XF+2*i+1}")
            a(f"v_cvt_pk_bf16_f32 v{XB+i}, v{g0}, v{g1}")
        a(f"buffer_store_dwordx2 {vr(XB+2*og,2)}, v{vXO}, {sr(sSB,4)}, s{XO} offen offset:{og*32}")
    if OPT["dp"] is not None:
        WAIT, FLY, NEW, NF, NFC, NA, CNT = sCLAMP, sFIRST, sTYPE, sXOFF, sXOF2, sT+3, sT+1
        lvl = OPT["lvl"][-1][1] if OPT["dp"] < 7 else 7
        assert lvl + 1 >= OPT["dp"]
        def gloads(sg):
            for k in range(8):
                og, p = k >> 1, k & 1
                if OPT["fcap"]: a(f"s_waitcnt vmcnt({OPT['fcap']-1})")
                a(f"buffer_load_dwordx4 {vr(LB+sg*32+k*4,4)}, v{vS}, {WS}, s{CS[sg]} offen offset:{p*1024+og*256} sc1")
        pl = f"buffer_load_dword v{vPOLL}, v{vFS}, {WS}, s{FP} offen sc1"
        def flags():
            a(f"""
            v_cmp_ge_u32 vcc, s{sLN}, v{vPOLL}
            v_cmp_ge_u32 s[{sT+4}:{sT+5}], s{sEXP}, v{vPOLL}
            s_mov_b32 s{NFC}, s{NF}
            s_mov_b32 s{NEW}, 0
            s_orn2_b32 s{NA}, vcc_lo, s{WAIT}
            s_mov_b32 s{NF}, s{sT+4}
            """)
        def pass_a(tag):
            for sg in range(4):
                a(f"s_and_b32 s{sT+2}, s{NA}, {15 << 4*sg}")
                a(f"s_cbranch_scc1 L_pa{tag}{sg}")
                gloads(sg)
                a(f"s_or_b32 s{NEW}, s{NEW}, {15 << 4*sg}")
                a.label(f"L_pa{tag}{sg}")
            a(pl)
            a(f"s_andn2_b32 s{WAIT}, s{WAIT}, s{NEW}")
        a(f"""
        s_min_u32 s{sLN}, s{sEXP}, {lvl}
        s_movk_i32 s{WAIT}, 0xffff
        s_and_b32 s{WAIT}, s{WAIT}, 0xffff
        s_cmp_eq_u32 s{XO}, {OOB}
        v_mov_b32 v{vPV}, 7
        s_waitcnt vmcnt(@since:ep)
        s_cbranch_scc1 L_fidle
        """)
        if OPT["dp1"] == 1: flags(); pass_a("x")
        else: a(f"s_mov_b32 s{NEW}, 0")
        if OPT["dp1"] == 2: a(pl)
        for i in range(8): a(f"v_mov_b64 {vr(SA_+2*i,2)}, 0")
        gmath(-1 if OPT["dp1"] else OPT["fpos"])
        a(f"s_mov_b32 s{FLY}, s{NEW}\ns_mov_b32 s{CNT}, 0")
        if OPT["dp1"]: a(f"s_waitcnt vmcnt(0)\nbuffer_store_dword v{vPV}, v{vFLG}, {WS}, s{sFSS} offen sc1\ns_branch L_fr1")
        else: a(pl + "\ns_branch L_fround")
        a(f"""
        L_fslp:
        s_sleep {OPT['fsleep']}
        L_fround:
        s_waitcnt vmcnt(0)
        L_fr1:
        """)
        stamp(8)
        flags()
        a(f"s_cmp_eq_u32 s{WAIT}, 0")
        a("s_cbranch_scc1 L_pb")
        pass_a("y")
        a.label("L_pb")
        for sg in range(4):
            nib = 15 << 4*sg; r = LB+sg*32
            a(f"""
            s_and_b32 s{sT+2}, s{FLY}, {nib}
            s_cbranch_scc0 L_pbx{sg}
            s_and_b32 s{sT+2}, s{NFC}, {nib}
            s_cbranch_scc0 L_pbo{sg}
            v_max3_u32 v{T1}, v{r}, v{r+1}, v{r+2}
            v_max3_u32 v{T2}, v{r+3}, v{r+4}, v{r+5}
            """)
            for i in range(13): a(f"v_max3_u32 v{(T1, T2)[i & 1]}, v{(T1, T2)[i & 1]}, v{r+6+2*i}, v{r+7+2*i}")
            a(f"""
            v_max_u32 v{T1}, v{T1}, v{T2}
            v_cmp_eq_u32 vcc, -1, v{T1}
            s_nop 3
            s_cbranch_vccnz L_pbb{sg}
            L_pbo{sg}:
            """)
            for k in range(8):
                d = vr(SA_+(k >> 1)*4, 4)
                a(f"{MF} {d}, {vr(SEL+(k & 1)*4,4)}, {vr(r+k*4,4)}, {d}")
            a.label(f"L_pbx{sg}")
        a(f"""
        s_or_b32 s{sT+2}, s{NEW}, s{WAIT}
        s_cbranch_scc0 L_fgo
        s_add_u32 s{CNT}, s{CNT}, 1
        s_mov_b32 s{FLY}, s{NEW}
        s_cmp_ge_u32 s{CNT}, 0x8000
        s_cbranch_scc1 L_fgo
        s_cmp_eq_u32 s{FLY}, 0
        s_cbranch_scc1 L_fslp
        s_branch L_fround
        """)
        for sg in range(4):
            a.label(f"L_pbb{sg}")
            gloads(sg); a(pl)
            a(f"s_or_b32 s{NEW}, s{NEW}, {15 << 4*sg}")
            a(f"s_branch L_pbx{sg}")
        a.label("L_fidle")
        a("s_waitcnt vmcnt(0)")
        a(f"buffer_store_dword v{vPV}, v{vFLG}, {WS}, s{sFSS} offen sc1")
        stamp(8)
        a("s_branch L_fin")
        a.label("L_fgo")
        a("s_nop 1")
        for og in range(4): fin(og)
    else:
        a("s_waitcnt vmcnt(@since:gl)")
        if OPT["epoll"]:
            tail_ = [l.strip() for l in a.lines if l.strip().startswith("buffer_")][-40:]
            a("s_waitcnt vmcnt(@since:ep)")
            a(f"v_cmp_ge_u32 vcc, s{sEXP}, v{vPOLL}")
            a("s_nop 4")
            a("s_cbranch_vccnz L_fslow")
            stamp(8)
            floads(); flag()
            a("s_branch L_fgm")
            merge("L_fslow")
            for l in tail_: a.raw("@ghost " + l)
            flag()
        elif OPT["ep2"]:
            pl_ = f"buffer_load_dword v{vPOLL}, v{vFS}, {WS}, s{FP} offen sc1"
            if OPT["ep2"] == 1: a(pl_)
            gmath(OPT["fpos"], pl_ if OPT["ep2"] == 2 else None)
            if OPT["fpos"] >= 8: flag()
            a(f"""
            s_mov_b32 s{sT+1}, 0
            s_cmp_eq_u32 s{XO}, {OOB}
            s_waitcnt vmcnt(1)
            v_cmp_ge_u32 vcc, s{sEXP}, v{vPOLL}
            s_cbranch_scc1 L_fidle
            s_nop 2
            s_cbranch_vccz L_fgo
            L_fidle:
            """)
        else: gmath(OPT["fpos"])
        a(f"s_mov_b32 s{sT+1}, 0")
        stamp(8)
        if stamps: a("s_waitcnt lgkmcnt(0)")
        a(f"s_cmp_eq_u32 s{XO}, {OOB}")
        a("s_cbranch_scc1 L_fin")
        a.label("L_fpoll")
        a(f"""
        buffer_load_dword v{vPOLL}, v{vFS}, {WS}, s{FP} offen sc1
        s_add_u32 s{sT+1}, s{sT+1}, 1
        s_waitcnt vmcnt(0)
        v_cmp_ge_u32 vcc, s{sEXP}, v{vPOLL}
        s_cmp_lt_u32 s{sT+1}, 0x10000
        s_cbranch_vccz L_fgo
        s_sleep {OPT['fsleep']}
        s_cbranch_scc1 L_fpoll
        """)
        a.label("L_fgo")
        stamp(8)
        floads()
        a.label("L_fgm")
        if stamps: a("s_waitcnt lgkmcnt(0)")
        if OPT["epoll"]: gmath(-1)
        for n in range(32):
            if n & 1 == 0: a(f"s_waitcnt vmcnt(@since:f{n+1})")
            d = vr(SA_+(n >> 3)*4, 4)
            a(f"{MF} {d}, {vr(SEL+((n >> 2) & 1)*4,4)}, {vr(LB+n*4,4)}, {d if n & 7 else 0}")
            if n & 7 == 3 and n > 8: fin((n >> 3) - 1)
        a("s_nop 7"); a("s_nop 0")
        fin(3)
    a.label("L_fin")
    if stamps:
        a("s_waitcnt vmcnt(0)")
        stamp(9)
        a("s_waitcnt lgkmcnt(0)")
        if OPT["enc"] >= 0:
            a(f"""
            s_and_b32 s{sT+1}, s2, {OPT["encw"][0]}
            s_cmp_eq_u32 s{sT+1}, {OPT["encw"][1]}
            s_cbranch_scc0 L_end
            s_sub_u32 s{sT+1}, s{streg(OPT["enc"])}, s{streg(OPT["enc0"])}
            s_mul_i32 s{sT+1}, s{sT+1}, {OPT["enck"]}
            s_add_u32 s{sT+1}, s{sT+1}, s{streg(0)}
            s_add_u32 s{sT+1}, s{sT+1}, 10000
            s_mov_b32 s{sT+2}, 0
            L_enc:
            s_memrealtime s[{sT+4}:{sT+5}]
            s_add_u32 s{sT+2}, s{sT+2}, 1
            s_waitcnt lgkmcnt(0)
            s_cmp_gt_u32 s{sT+2}, 1000000
            s_cbranch_scc1 L_end
            s_sub_u32 s{sT+4}, s{sT+4}, s{sT+1}
            s_cmp_lt_i32 s{sT+4}, 0
            s_cbranch_scc1 L_enc
            s_endpgm
            """)
        for i in range(12): a(f"v_mov_b32 v{16+i}, s{streg(i) if i < 10 else sT+1}")
        a(f"""
        s_lshl_b32 s{sT+1}, s2, 2
        s_add_u32 s{sT+1}, s{sT+1}, s{sWAVE}
        s_lshl_b32 s{sT+1}, s{sT+1}, 6
        s_add_u32 s{sT+1}, s{sT+1}, {WS_STAMP}
        buffer_store_dwordx4 v[16:19], v{vFLG}, {WS}, s{sT+1} offen
        buffer_store_dwordx4 v[20:23], v{vFLG}, {WS}, s{sT+1} offen offset:16
        buffer_store_dwordx4 v[24:27], v{vFLG}, {WS}, s{sT+1} offen offset:32
        s_sub_u32 s{sT+1}, s{sT+1}, {WS_STAMP}
        s_lshl_b32 s{sT+1}, s{sT+1}, 3
        s_add_u32 s{sT+1}, s{sT+1}, {WS_STAMP + 0x100000}
        v_lshlrev_b32 v2, 2, v{vLANE}
        buffer_store_dword v0, v2, {WS}, s{sT+1} offen
        buffer_store_dword v{vKV}, v2, {WS}, s{sT+1} offen offset:256
        """)
    a.label("L_end")
    a("s_endpgm")
    for typ in ("K", "V"):
        for nm, ok, ldi, red, reg in (("zwait", "zok", f"buffer_load_dword v{vPOLL}, v{vL4}, {sr(sDBG,4)}, 0 offen sc1", "", vPOLL),
                ("prepwait", "prepok", f"buffer_load_dwordx4 {vr(PV,4)}, v{vL16}, {WS}, s{gIT} offen sc1",
                 f"v_and_b32 v{PV}, v{PV}, v{PV+1}\nv_and_b32 v{PV+2}, v{PV+2}, v{PV+3}\nv_and_b32 v{PV}, v{PV}, v{PV+2}", PV)):
            a.label(f"L_{nm}{typ}")
            a(f"s_mov_b32 s{sT+4}, 0")
            a.label(f"L_{nm}2{typ}")
            a(f"""
            s_sleep 4
            {ldi}
            s_add_u32 s{sT+4}, s{sT+4}, 1
            s_waitcnt vmcnt(0)
            {red}
            v_cmp_ne_u32 vcc, s{sT+1}, v{reg}
            s_cmp_ge_u32 s{sT+4}, 0x10000
            s_cbranch_scc1 L_{ok}{typ}
            s_nop 2
            s_cbranch_vccnz L_{nm}2{typ}
            s_branch L_{ok}{typ}
            """)
    for (tag, voff, soff, lane0) in POLLS:
        a.label(f"L_pw_{tag}")
        a(f"s_mov_b32 s{sT+1}, 0")
        a.label(f"L_pw2_{tag}")
        a(f"""
        buffer_load_dword v{vPOLL}, v{voff}, {WS}, s{soff} offen sc1
        s_add_u32 s{sT+1}, s{sT+1}, 1
        s_waitcnt vmcnt(0)
        v_cmp_ne_u32 s[{sT+4}:{sT+5}], 1, v{vPOLL}
        s_cmp_ge_u32 s{sT+1}, 0x10000
        s_cbranch_scc1 L_po_{tag}
        s_sleep {OPT['psleep']}
        """)
        if lane0 is True: a(f"s_bitcmp1_b32 s{sT+4}, 0")
        else: a(f"s_cmp_lg_u64 s[{sT+4}:{sT+5}], 0")
        a(f"s_cbranch_scc1 L_pw2_{tag}")
        a(f"s_branch L_po_{tag}")
    a.label("L_b0")
    Chain(q_rest).flush(a)
    a(f"s_mov_b32 s{sPT}, {OOB}")
    a("s_branch L_seg2")
    a.label("L_stubs")
    a("s_nop 0")
    for (lab, sub, back) in sorted(STUBS, key=lambda x: "mask" in x[1]):
        a.label(lab)
        if "mask" in sub and OPT["im"]:
            for x in mask_code(int(sub[-1]), lab, back): a(x)
            continue
        a(f"s_call_b64 s[{sRET}:{sRET+1}], {sub}")
        a(f"s_branch {back}")
    for b in range(0 if OPT["im"] else 2):
        a.label(f"L_mask{b}")
        a("s_nop 7")
        a(f"s_cmp_eq_u32 s{sN}, s{sND}")
        a(f"s_cbranch_scc0 L_maskall{b}")
        for r in range(4):
            a(f"v_cndmask_b32 v{S(b,0,0)+r}, v{S(b,0,0)+r}, v{vBIG}, s[{sMASK+2*r}:{sMASK+2*r+1}]")
            a(f"v_cndmask_b32 v{S(b,1,1)+r}, v{S(b,1,1)+r}, v{vBIG}, s[{sMASK+2*r}:{sMASK+2*r+1}]")
            a(f"v_mov_b32 v{S(b,1,0)+r}, v{vBIG}")
        a(f"s_setpc_b64 s[{sRET}:{sRET+1}]")
        a.label(f"L_maskall{b}")
        for i in range(16): a(f"v_mov_b32 v{S(b,0,0)+i}, v{vBIG}")
        a(f"s_setpc_b64 s[{sRET}:{sRET+1}]")
    a.label("L_fchk")
    hi, lo = f2u(2.0**OPT["thr"]), f2u(2.0**-OPT["thr"])
    a(f"s_add_u32 s{sT+1}, s{sND}, 1")
    a(f"s_cmp_gt_u32 s{sN}, s{sT+1}")
    a("s_cbranch_scc1 L_fret")
    for qt in range(2):
        a(f"v_mov_b32 v{vT+8+qt}, v{vSUM[qt][0]}")
        xlane(a, "v_add_f32", vT+8+qt, vT)
        a(f"v_subrev_u32 v{vT+8+qt}, {lo:#x}, v{vT+8+qt}")
    a(f"v_max_u32 v{vT+8}, v{vT+8}, v{vT+9}")
    a(f"v_cmp_lt_u32 vcc, {hi-lo:#x}, v{vT+8}")
    a("s_nop 4")
    a("s_cbranch_vccnz L_rare0")
    a.label("L_fret")
    a(f"s_setpc_b64 s[{sRET}:{sRET+1}]")
    for b in range(2):
        a.label(f"L_rare{b}")
        a("s_nop 7")
        D = [vT+8, vT+9]; F = [vT+10, vT+11]
        for qt in range(2):
            r0, r1 = S(b,0,qt), S(b,1,qt)
            a(f"v_max3_f32 v{D[qt]}, v{r0}, v{r0+1}, v{r0+2}")
            a(f"v_max3_f32 v{D[qt]}, v{D[qt]}, v{r0+3}, v{r1}")
            a(f"v_max3_f32 v{D[qt]}, v{D[qt]}, v{r1+1}, v{r1+2}")
            a(f"v_max_f32 v{D[qt]}, v{D[qt]}, v{r1+3}")
            xlane(a, "v_max_f32", D[qt], vT)
            a(f"v_max_f32 v{D[qt]}, s{sCLAMP}, v{D[qt]}")
            a(f"v_max_f32 v{F[qt]}, 0, v{D[qt]}")
            a(f"v_exp_f32 v{F[qt]}, -v{F[qt]}")
            for i in range(4): a(f"v_sub_f32 v{NEGM(qt)+i}, v{NEGM(qt)+i}, v{D[qt]}")
            for bb in range(2):
                for kt in range(2):
                    for i in range(4): a(f"v_sub_f32 v{S(bb,kt,qt)+i}, v{S(bb,kt,qt)+i}, v{D[qt]}")
            a(f"v_mul_f32 v{vL[qt]}, v{F[qt]}, v{vL[qt]}")
        for o in sm_ops(b): a(o)
        a(f"s_cmp_eq_u32 s{sFIRST}, 1")
        a(f"s_cbranch_scc1 L_rare_ret{b}")
        for dt in range(16):
            for qt in range(2):
                for i in range(4): a(f"v_mul_f32 v{O(dt,qt)+i}, v{F[qt]}, v{O(dt,qt)+i}")
        a.label(f"L_rare_ret{b}")
        a(f"s_cmp_lg_u32 s{sCNT}, s{sEV}")
        a("s_nop 0")
        a(f"s_setpc_b64 s[{sRET}:{sRET+1}]")
    a.label("L_slowcomb")
    a("s_nop 7")
    wA, wB = [vT+8, vT+9], [vT+10, vT+11]
    for qt in range(2):
        a(f"""
        v_min_f32 v{vT+6}, v{NEGM(qt)}, v{vSTB+qt}
        v_sub_f32 v{wA[qt]}, v{vT+6}, v{NEGM(qt)}
        v_sub_f32 v{wB[qt]}, v{vT+6}, v{vSTB+qt}
        v_exp_f32 v{wA[qt]}, v{wA[qt]}
        v_exp_f32 v{wB[qt]}, v{wB[qt]}
        s_nop 0
        v_mul_f32 v{vL[qt]}, v{wA[qt]}, v{vL[qt]}
        v_mul_f32 v{vSTB+2+qt}, v{wB[qt]}, v{vSTB+2+qt}
        """)
    for dt in range(16):
        for qt in range(2):
            for i in range(4): a(f"v_mul_f32 v{O(dt,qt)+i}, v{wA[qt]}, v{O(dt,qt)+i}")
    for i in range(64):
        qt = (i >> 2) & 1
        a(f"""
        v_accvgpr_read_b32 v{vT}, a{128+i}
        v_lshlrev_b32 v{vT+1}, 16, v{vT}
        v_and_b32 v{vT}, 0xffff0000, v{vT}
        v_mul_f32 v{vT+1}, v{wB[qt]}, v{vT+1}
        v_mul_f32 v{vT}, v{wB[qt]}, v{vT}
        v_cvt_pk_bf16_f32 v{vT}, v{vT+1}, v{vT}
        v_accvgpr_write_b32 a{128+i}, v{vT}
        """)
    a("s_nop 1")
    a("s_branch L_comb")
    a.label("L_codeend")
    lines = []
    for l in a.lines: lines += l.split("\n")
    ghost = [l.startswith("@ghost ") for l in lines]
    lines = [l[7:] if g else l for l, g in zip(lines, ghost)]
    lines = resolve_vm(lines)
    lines = [l.replace("@@buffer", "buffer") for l, g in zip(lines, ghost) if not g]
    errs = check_hazards(lines) + check_scc(lines)
    for e in errs[:30]: print("HAZARD", e, file=sys.stderr)
    lines = [re.sub(r"\s*; @.*", "", l) for l in lines]
    lines = [l.strip() for l in lines if l.strip()]
    i, j = lines.index("L_gemmV:"), lines.index("L_P1A:")
    k = lines.index("L_zwaitV:"); k2 = lines.index("s_branch L_prepokV") + 1
    assert lines[i-1] == "s_branch L_P1A"
    r0, r1 = lines.index("L_slowcomb:"), lines.index("L_codeend:")
    u0, u1 = lines.index("L_u2:"), lines.index("L_end0:")
    lines = [".p2align 12"] + lines[i:j] + lines[k:k2] + lines[r0:r1] + [".p2align 12"] + lines[:i-1] + lines[j:u0] + lines[u1:k] + lines[k2:r0] + lines[u0:u1] + ["s_branch L_end0"] + lines[r1:]
    if OPT["tch"]:
        tmp = [re.sub(r"LT_(\w+)_\d", r"LR_\1", l) for l in lines]
        tmp, F = insert_stubs(tmp, [("L_gemmV", "L_zwaitV"), ("L_gK", "L_P1A"), ("L_P1A", "L_P1B"), ("L_P1B", "L_steady0"), ("L_steady0", "L_end0"), ("L_end0", "L_lpack"),
                                    ("L_lpack", "L_post2b"), ("L_post2b", "L_end")], OPT["tlab"], OPT["nox"])
        g = lambda *k: [p for x in k for p in F.get(x, [])]
        pa = g("L_P1A", "L_steady0", "L_end0", "L_post2b"); pb = g("L_P1B", "L_steady0", "L_domask_s10", "L_domask_s00", "L_mask0") + g("L_end0")[:1] + g("L_lpack", "L_domask_lp", "L_domask_s11", "L_domask_s01", "L_post2b")
        pos = {l.split()[-1]: n for n, l in enumerate(tmp)}
        it_ = iter(lines); lines = [l if l.startswith("@") else next(it_) for l in tmp]
        done_ = {}; tgt = {}
        for nm, path in SITES:
            q = dict(K=g("L_gK"), V=g("L_gemmV"), a=pa, b=pb, A=pa, B=pb)[path[0]]
            d = done_.setdefault(path, set(done_.get(path.lower() + "K", ())))
            c = [p for p in q if p not in d and (pos[p] > pos[f"LR_{nm}:"] or (path == "V" and pos[f"LR_{nm}:"] > pos["L_go:"]))][:4]
            d |= set(c); c += q[-1:]*4
            for w in range(4): tgt[f"LT_{nm}_{w}"] = "L" + c[w]
        print("stubs", F, "\nuntouched A", [p for p in pa if p not in done_["A"]], "B", [p for p in pb if p not in done_["B"]], file=sys.stderr)
        o = []
        for l in lines:
            if l == "@pad": o.append("s_nop 0")
            elif l == "@align": o.append(".p2align 12")
            elif l.startswith("@"):
                p = l.split()[1]; r_ = [f"L{p}:", f"s_setpc_b64 s[{sRET}:{sRET+1}]"]
                if "L" + p not in tgt.values(): o += ["s_nop 0"]*(2 if "stub" in l else 1)
                else: o += [f"s_branch LO{p}"] + r_ + [f"LO{p}:"] if "stub" in l else r_
            else: o.append(re.sub(r"LT_\w+_\d", lambda m: tgt[m.group(0)], l))
        lines = o
    lines = compact(lines)
    return "\n".join(lines) + "\n", kernel_desc(name, 512, 256)

if __name__ == "__main__":
    import ast
    for x in sys.argv[2:]:
        k, v = x.split("=")
        OPT[k] = ast.literal_eval(v)
    NAME = "recurrent_scan__compressed_kv_cla__dense_activation_squared_relu__prompt_kernel"
    body, desc = gen(NAME)
    ref = open("recurrent_scan__compressed_kv_cla__dense_activation_squared_relu__prompt.s.ref").read().split("\n")
    hdr = [l for l in ref if l.startswith(";") and "launch" not in l and "grid=" not in l]
    hdr += ["; @launch grid=(256,1,1) block=(256,1,1) lds=163840", '.amdgcn_target "amdgcn-amd-amdhsa--gfx950"', ".text"]
    txt = "\n".join(hdr) + "\n" + body + '.section .rodata,"a"\n.p2align 6\n' + desc
    open(sys.argv[1], "w").write(txt)
    print(len(txt), "bytes", file=sys.stderr)
```

```python
import sys
from fw import *
from layout2 import *

OPT = dict(o4=1, outsc="", fcap=0, dp1=1, ep2=0, bal=1, fsep=0, pr=0, prsc="", prld="", dp=None, clr0=19*64+36, clrs=20, ep=33, inl=["fa2", "fb", "z0", "z1", "lp", "gv10", "gv00", "gv11", "gv01"], inf=["fa2", "fb"], lvl=[(381, 3)], lve=[], epoll=0, nox={"L_steady0": "L_exit0", "L_steady1": "L_exit1", "L_post2b": "L_end"}, gev=[0, 0, 0, 0, 0, 0, 0, 3, 2, 3, 4, 5, 6, 7, 2, 3], gin=16, glate=1, dbgg=0, pfg=57, ptg=[3, 9, 17, 25, 33, 41, 49, 57], pte=10, qa=298, qe=36, qcap=7, qfd=72, kz=0, im=1, prog=0, cap8=36, fpos=3, dbgf=0, hold=0, zid=80, kva0=0, es=[(0, 25), (1, 33), (8, 41), (9, 49), (16, 57), (17, 61), (24, 89), (25, 97), (2, 105), (4, 113), (3, 121), (5, 125)], chg=2, tch=1, tg=[1, 2], tgs=[3], ta=[0, 1, 2], tb=[6, 7, 8], tlab=["L_P1A", "L_P1B", "L_steady0", "L_end0", "L_lpack", "L_steady1", "L_post2b", "L_domask_s10"], cpf2=0, park=[0, 1, 2, 3, 4, 5], pst_n=3, swap=1, n0=[36, 32], enc0=0, enck=10, encw=[0, 0], enc=-1, ntA="", ntB="", ntS=" nt", chq=1, chp=1, cyc=0, npro=6, gcap=[4, 4, 3], dg2=8, xpos=3, rotm=4, rot=4, sync=[6, 10, 12, 15, 20, 22], xstep=20, wbl2=0, pfk=0, pfd=4, pfo=[0], pfn=2, smin=0, voff=0, dbgside=0, tlb=0, tlbm=0, tlbs=16, flit=9, npeel=7, slt=[100, 260, 880], slstep=16, sld=140, map2=False, kvb0=256, kvstepb=16, psleep=4, prep=1, pst=False, cpf=True, fine=False, touch=False, sc1ld=" sc1", stamps=False, early=[5, 13, 21, 29], late=[37, 45, 53, 61], cap=7, capb=8, capq=9, capn=12, kvstep=12, a15=[2, 2], fsleep=2, fdelay=96, qstep=7, wideloop=False, thr=40, kvsc=" sc1", sidesc=" sc1")

vLANE, vDMA, vTE, vTO, vL16, vRD, vPOLL, vFLG, vONE, vL4, vKV = range(1, 12)
DA = [12, 13, 14, 15]; DB = [16, 17, 18, 19]; RA = [20, 21]; RB = [22, 23, 24, 25]
vSW, vSF, vSX, vG1 = 26, 27, 28, 29
GT = 30
vT = 12
BP = [0, 2, 3, 1]
BIAS = 12
O0 = 128
def O(dt, qt): return O0 + (dt*2+qt)*4
def S(b, kt, qt): return 64 + b*16 + (kt*2+qt)*4
def P(b, qt): return 96 + b*8 + qt*4
def NEGM(qt): return 112 + qt*4
vL = [120, 121]
vSUM = [[122, 123], [124, 125]]
vBIG = 126
vRK = 60
vS, vS2, vPV = 61, 62, 63
GL = 192
vSTAT = 44
vSEL = 48
vRINV = [54, 55]
vSTB = 56
def accreg(pos): return vr(48+4*pos, 4) if pos < 52 else ar(208+4*(pos-52), 4)
NE = 6
def ENL(): return [c for c in range(32) if c not in dict(OPT["es"])]
def PK(c):
    if OPT["es"]:
        k = ENL().index(c) if c in ENL() else 20 + [x[0] for x in OPT["es"]].index(c)
        return 48+4*k
    return 48+4*c if c < 20 else (48+4*(c-20) if c < 20+NE else 48+4*(20+c))
def Q(qb, qt, u): return qb + (qt*8+u)*4
def FR(f): return 64 + (f % 16)*4
def X(qt, u): return 128 + (u*2+qt)*4
def FA(b, m): return (64 if b == 0 else 0) + m*4
def FB(b, n): return (64 if b == 0 else 0) + 32 + n*4
def CA(m, kk): return (96 + m*8 + kk*4) % 128
def CB(n, kk): return (64 if n < 4 else 32) + (n & 3)*8 + kk*4
def QU(u): return ((u >> 1) & 1)*4 + (u >> 2)*2 + (u & 1) if OPT["chg"] == 2 else u
WOL = 192
SLD = 128

sWS, sSA, sSB, sG, sDBG = 4, 8, 12, 16, 20
_n = [24]
def sal(n=1, al=1):
    _n[0] = (_n[0] + al - 1)//al*al
    r = _n[0]; _n[0] += n; return r
sWAVE, sHEAD, sJ, sQI, sWHICH = [sal() for _ in range(5)]
gA0, gA1, gB0, gB1, gMA, gMB, gIT, gD, gCNT, gFL = [sal() for _ in range(10)]
sTAU, sM0, sOFFA, sOFFB, sRDD, sRDS, sXOFF, sXOF2, sN, sND = gA0, gA1, gB0, gB1, gD, gCNT, sal(), sal(), sal(), sal()
sCNT, sEV, sCLAMP, sFIRST = sal(), sal(), sal(), sal()
sRET = sal(2, 2)
sMASK = sal(8, 4)
sTYPE, sU1, sU2, sW0 = sal(), sal(), sal(), sal()
sKVB, sKVI = sal(), sal()
sQST, sPT, sPSG, sPSS = sal(), sal(), sal(), sal()
sFKV, sFKVP, sFQ, sFSG, sFSS = [sal() for _ in range(5)]
sT = sal(8, 4)
sLN = sal(2, 2)
sFS = sal(2, 2); sW4K = 3
sGC, sPOLL, sEVN = sKVB, sKVI, sFKV
sPF = sRET; sPD = sT+5; sEXP = gFL
sSTAMP = sal(0, 2)
NSTAMP = (102 - sSTAMP)//2
print("sgpr used", sSTAMP, "stamps", NSTAMP, file=sys.stderr)
WS = sr(sWS, 4)

STUBS = []
def ld(): return OPT["sc1ld"]
def FT(): return "s_memtime" if OPT["cyc"] else "s_memrealtime"

XG = [1, 9, 17, 25, 33, 41, 49, 57]
XG4 = list(range(1, 64, 4))
def common_fill(st, dma=True, nd=None, last=False, novm=False, rdl=False, rk=False):
    if nd is None: nd = 16 + len(OPT["early"]) + sum(1 for g in OPT["late"] if g < 38)
    for G in range(8):
        g0 = G*8
        Gn = (G+3) % 8
        for i in range(4):
            f = Gn*4+i
            if not (last and G > 4): st.put(g0+2*i, f"ds_read_b128 {ar(FR(f),4)}, v{vRK if rk and f >= 16 else vRD} offset:{f*1024}")
        if last and G >= 4:
            if G < 7: st.put(g0+6, f"s_waitcnt lgkmcnt({(7, 4, 0)[G-4]})")
        elif G == 4:
            st.put(g0+6, "s_waitcnt lgkmcnt(7)" if novm else f"s_waitcnt vmcnt(@dma:{nd}) lgkmcnt(7)")
            st.put(g0+7, "s_barrier")
            st.put(g0+7, f"v_add_u32 v{vRD}, s{sRDD}, v{vRD}")
        else:
            st.put(g0+6, "s_waitcnt lgkmcnt(7)")
    for i, g in enumerate(OPT["early"] if dma else []):
        st.put(g, f"buffer_load_dwordx4 v{vDMA}, {WS}, s{sOFFB} offen offset:{i*1024}{ld()} lds")
    if dma: st.put(31, f"v_readlane_b32 s{sOFFA}, v{vTO}, s{sTAU}")
    st.put(31, f"s_add_u32 m0, s{sM0}, 16384")
    st.put(34, f"s_add_u32 s{sM0}, s{sM0}, s{sRDD}")
    st.put(36, f"s_cmp_ge_u32 s{sM0}, 131072")
    st.put(38, f"s_cselect_b32 s{sRDD}, s{gMA}, s{gMB}")
    st.put(44, f"s_add_u32 s{sTAU}, s{sTAU}, 1")
    for i, g in enumerate(OPT["late"] if dma else []):
        st.put(g, f"buffer_load_dwordx4 v{vDMA}, {WS}, s{sOFFA} offen offset:{i*1024}{ld()} lds")
    if dma or rdl: st.put(55, f"v_readlane_b32 s{sOFFB}, v{vTE}, s{sTAU}")
    st.put(63, f"s_mov_b32 m0, s{sM0}")
    st.scc_busy |= {36, 37}
    if rk: st.put(-1, f"v_mov_b32 v{vRK}, v{vRD}")
    if OPT["fine"]:
        st.put(4, f"{FT()} s[{sFS}:{sFS+1}]")
        st.put(6, f"v_mov_b32_dpp v{vKV}, v{vKV} wave_shr:1 row_mask:0xf bank_mask:0xf")
        st.put(62, f"v_writelane_b32 v{vKV}, s{sFS}, 0")

class Jobs:
    def __init__(self): self.jobs = []; self.at = {}
    def add(self, key, pre, ins, early, late): self.jobs.append((late, len(self.jobs), early, pre, ins, key))
    def place(self, st, s, cap=6, grid=None):
        slots = [g for g in (grid or XG) if not st.hasD(g) and st.free(g) == 2 and st.nS(g) == 0]
        n = 0
        avail = len([j for j in self.jobs if j[2] <= s*64+63])
        k = min(cap, avail, len(slots))
        use = [slots[(i*len(slots))//k] for i in range(k)] if k else []
        for g in slots:
            t = s*64+g
            c = sorted(j for j in self.jobs if j[2] <= t)
            if not c: continue
            j = c[0]
            nxt = [x for x in slots if x > g]
            urgent = j[0] < (s*64+nxt[0] if nxt else (s+1)*64+1)
            if not (urgent or (n < cap and (g in use or len(nxt) < k-n))): continue
            assert t <= j[0] + (24 if j[5][0] == "x" else 0) or j[5] in ("qs", "kvf", "qf") or (j[5] == "kv" and (j[2] >= 64 or j[0] > j[2])), ("job late", j, t)
            if j[3]:
                assert g-1 not in st.scc_busy
                st.put(g-1, j[3])
            st.put(g, j[4]); self.jobs.remove(j); self.at[j[5]] = t; n += 1

def mf_pv(half, pb, czero=False):
    return [f"{MF} {vr(O(dt,qt),4)}, {ar(FR(half*16+dt),4)}, {vr(P(pb,qt),4)}, {'0' if czero else vr(O(dt,qt),4)}"
            for dt in range(16) for qt in range(2)]
def mf_qk(half, sb, qb, czero=False):
    out = []
    for kt in range(2):
        seq = [(u, qt) for u in range(8) for qt in range(2)]
        if OPT["chq"]: seq = [(g*4+u, qt) for g in range(2) for qt in ((0, 1), (1, 0))[g] for u in range(4)]
        for u, qt in seq:
            c = ('0' if czero else vr(NEGM(qt),4)) if u == 0 else vr(S(sb,kt,qt),4)
            out.append(f"{MF} {vr(S(sb,kt,qt),4)}, {ar(FR(half*16+kt*8+u),4)}, {ar(Q(qb,qt,QU(u)),4)}, {c}")
    return out
def mf_proj(s, init=None):
    out = []
    for nt in range(16):
        seq = [(0, 0, 1), (1, 0, 0), (1, 1, 1), (0, 1, 0)] if OPT["chp"] else [(0, 0, 1), (0, 1, 1), (1, 0, 0), (1, 1, 0)]
        for uu, qt, first in seq:
            c = vr(O(nt,qt),4)
            if first and init == "zero": c = "0"
            if first and init == "bias": c = vr(O(nt,1),4)
            out.append(f"{MF} {vr(O(nt,qt),4)}, {ar(FR(2*nt+uu),4)}, {ar(X(qt,2*s+uu),4)}, {c}")
    return out
def PA(b, nt, qt): return 64 + (nt*2+qt)*4 if b == 0 else O(2*nt+1, qt)
def mf_post(s):
    out = []
    for f in range(32):
        u, nt = f >> 2, f & 3
        for qt in range(2):
            d = vr(PA(s & 1, nt, qt), 4)
            out.append(f"{MF} {d}, {ar(FR(f),4)}, {vr(O(2*u,qt),4)}, {'0' if u == 0 else d}")
    return out

def sm_ops(b):
    ops = []
    seq = [(kt, qt, rp) for kt in range(2) for qt in range(2) for rp in range(2)]
    pend = []
    for i, (kt, qt, rp) in enumerate(seq):
        t0 = vT + (i % 4)*2
        s0 = S(b,kt,qt) + rp*2
        ops.append(f"v_exp_f32 v{t0}, v{s0}")
        ops += pend[:1]
        ops.append(f"v_exp_f32 v{t0+1}, v{s0+1}")
        ops += pend[1:]
        acc = vSUM[qt][rp]
        if kt == 0: pend = [f"v_add_f32 v{acc}, v{t0}, v{t0+1}"]
        else: pend = [f"v_add_f32 v{acc}, v{acc}, v{t0}", f"v_add_f32 v{acc}, v{acc}, v{t0+1}"]
        pend.append(f"v_cvt_pk_bf16_f32 v{P(b,qt)+kt*2+rp}, v{t0}, v{t0+1}")
    ops.append("s_nop 0")
    ops += pend
    ops += [f"v_add_f32 v{vSUM[0][0]}, v{vSUM[0][0]}, v{vSUM[0][1]}", f"v_add_f32 v{vSUM[1][0]}, v{vSUM[1][0]}, v{vSUM[1][1]}"]
    return ops

def mask_code(b, lab, back):
    big = vr(vBIG, 2)
    o = [f"s_cmp_eq_u32 s{sN}, s{sND}", f"v_mov_b32 v{vRK}, 0x40000" if OPT["kz"] else "s_nop 0", f"s_cbranch_scc0 {lab}_all"]
    for q in (S(b,0,0), S(b,1,1)):
        for r in range(4): o.append(f"v_cndmask_b32 v{q+r}, v{q+r}, v{vBIG}, s[{sMASK+2*r}:{sMASK+2*r+1}]")
    for r in (0, 2): o.append(f"v_mov_b64 {vr(S(b,1,0)+r,2)}, {big}")
    o += [f"s_branch {back}", f"{lab}_all:"]
    for q in (S(b,0,0), S(b,0,1), S(b,1,1), S(b,1,0)):
        for r in (0, 2): o.append(f"v_mov_b64 {vr(q+r,2)}, {big}")
    o.append(f"s_branch {back}")
    return o

def place_sm(st, b, g0, g_end, tag, ladd=True, first=False, mask=True):
    if mask and tag not in ("fa1", "pt1", "pt0", "ln"):
        st.put(g0-1, f"s_cmp_ge_u32 s{sN}, s{sND}")
        if tag in OPT["inl"]: st.put(g0, f"s_cbranch_scc0 L_nomask_{tag}\n" + "\n".join(mask_code(b, f"L_domask_{tag}", f"L_nomask_{tag}")[:-1]))
        else:
            st.put(g0, f"s_cbranch_scc1 L_domask_{tag}")
            STUBS.append((f"L_domask_{tag}", f"L_mask{b}", f"L_nomask_{tag}"))
        st.put(g0, f"L_nomask_{tag}:")
        st.put(g0+2 if g0 == 0 else 42, f"s_add_u32 s{sN}, s{sN}, 1")
        st.scc_busy |= {g0-1}
    def add(ins, deps=(), early=0): return st.add(ins, deps, max(early, g0), g_end)
    la = [add(f"v_add_f32 v{vL[q]}, v{vL[q]}, v{vSUM[q][0]}") for q in range(2)] if ladd else []
    seq = [(kt, qt, rp) for kt in range(2) for qt in range(2) for rp in range(2)]
    users = {}; lastacc = {}; NT = 6
    for i, (kt, qt, rp) in enumerate(seq):
        t0 = vT + (i % NT)*2
        s0 = S(b,kt,qt) + rp*2
        war = users.get(i - NT, [])
        e = g0 + (1 if kt == 0 else 3)
        e0 = add(f"v_exp_f32 v{t0}, v{s0}", war, e)
        e1 = add(f"v_exp_f32 v{t0+1}, v{s0+1}", war, e)
        acc = vSUM[qt][rp]
        if kt == 0:
            a0 = add(f"v_add_f32 v{acc}, v{t0}, v{t0+1}", [e0, e1] + la)
            u = [a0]; lastacc[(qt,rp)] = a0
        else:
            a0 = add(f"v_add_f32 v{acc}, v{acc}, v{t0}", [e0, lastacc[(qt,rp)]])
            a1 = add(f"v_add_f32 v{acc}, v{acc}, v{t0+1}", [e1, a0])
            u = [a0, a1]; lastacc[(qt,rp)] = a1
        c = st.add(f"v_cvt_pk_bf16_f32 v{P(b,qt)+kt*2+rp}, v{t0}, v{t0+1}", [e0, e1], g0, g_end-1)
        users[i] = u + [c]
    f0 = add(f"v_add_f32 v{vSUM[0][0]}, v{vSUM[0][0]}, v{vSUM[0][1]}", [lastacc[(0,0)], lastacc[(0,1)]])
    f1 = add(f"v_add_f32 v{vSUM[1][0]}, v{vSUM[1][0]}, v{vSUM[1][1]}", [lastacc[(1,0)], lastacc[(1,1)]])
    hi = f2u(2.0**OPT["thr"])
    if not first:
        mx = add(f"v_max_f32 v{vT+14}, v{vSUM[0][0]}, v{vSUM[1][0]}", [f0, f1])
        add(f"v_cmp_nge_f32 vcc, {hi:#x}, v{vT+14}", [mx])
    else:
        lo = f2u(2.0**-OPT["thr"])
        m0 = add(f"v_subrev_u32 v{vT+14}, {lo:#x}, v{vSUM[0][0]}", [f0])
        m1 = add(f"v_subrev_u32 v{vT+15}, {lo:#x}, v{vSUM[1][0]}", [f1])
        mx = add(f"v_max_u32 v{vT+14}, v{vT+14}, v{vT+15}", [m0, m1])
        add(f"v_cmp_lt_u32 vcc, {hi-lo:#x}, v{vT+14}", [mx])

def xlane_ops(op, v, t1):
    return [(f"v_mov_b32 v{t1}, v{v}", 0), (f"v_permlane16_swap_b32 v{v}, v{t1}", 2), (f"{op} v{v}, v{v}, v{t1}", 1),
            (f"v_mov_b32 v{t1}, v{v}", 0), (f"v_permlane32_swap_b32 v{v}, v{t1}", 2), (f"{op} v{v}, v{v}, v{t1}", 1)]
def xlane(a, op, v, t1):
    for ins, d in xlane_ops(op, v, t1):
        if d: a(f"s_nop {d-1}")
        a(ins)

class Chain:
    def __init__(self, items, grid=None): self.items = list(items); self.lastg = -10; self.grid = grid; self.base = 0; self.lastD = -999; self.minD = 0
    def fill(self, st, g0=0, g1=63):
        g = g0; lastg = -10
        while self.items and g <= g1:
            ins, dist = self.items[0][:2]
            early = self.items[0][2] if len(self.items[0]) > 2 else 0
            c = cls(ins)
            ok = g - lastg >= dist and g >= early and not st.hasD(g)
            if ok and g == lastg and not (c in "VE" and cls(self.last) in "VM"): ok = False
            if ok:
                if c == "S": ok = (st.nS(g) == 0 or st.free(g) >= 1) and not (g in st.scc_busy and not ins.startswith(("s_mov", "s_mul", "s_wait", "s_nop")))
                elif c == "D": ok = st.free(g) == 2 and st.nS(g) == 0 and (self.grid is None or g in self.grid) and self.base + g - self.lastD >= self.minD
                else: ok = st.free(g) >= COST[c]
            if ok:
                st.put(g, ins); self.items.pop(0); lastg = g; self.last = ins
                if c == "D": self.lastD = self.base + g
            else:
                g += 1
    def flush(self, a):
        for it in self.items:
            if it[1]: a(f"s_nop {it[1]-1}")
            a(it[0])
        self.items = []

SITES = []
def touch(path):
    nm = f"{path}{len(SITES)}"; SITES.append((nm, path))
    c = lambda w: f"s_call_b64 s[{sRET}:{sRET+1}], LT_{nm}_{w}"
    return (f"s_bitcmp1_b32 s{sWAVE}, 1\ns_cbranch_scc1 LH_{nm}\ns_bitcmp1_b32 s{sWAVE}, 0\ns_cbranch_scc1 LA_{nm}\n{c(0)}\ns_branch LR_{nm}\nLA_{nm}:\n{c(1)}\ns_branch LR_{nm}\n"
            f"LH_{nm}:\ns_bitcmp1_b32 s{sWAVE}, 0\ns_cbranch_scc1 LB_{nm}\n{c(2)}\ns_branch LR_{nm}\nLB_{nm}:\n{c(3)}\nLR_{nm}:")

def gen(name="mega_kernel"):
    a = Asm()
    STUBS.clear(); SITES.clear()
    stamps = OPT["stamps"]
    nst = [0]
    def stamp_ins():
        i = nst[0]; nst[0] += 1
        assert i < NSTAMP
        return f"s_memrealtime s[{sSTAMP+2*i}:{sSTAMP+2*i+1}]"
    def streg(i): return sSTAMP+2*i if i < NSTAMP else sMASK+2*(i-NSTAMP)
    def stamp(i, p=False):
        if OPT["pst"] and 2 <= i <= 6 and not p: return
        if p and not OPT["pst"]: return
        if stamps: a(f"s_memrealtime s[{streg(i)}:{streg(i)+1}]")
    def merge(lbl, align=False):
        if align: a.raw(".p2align 6")
        a.label(lbl); a.comment("@merge")
    strideA, strideB = 2048, 8192
    a.raw(kernel_header(name))
    a("s_cmp_ge_u32 s2, 256")
    a("s_cbranch_scc0 L_go")
    a("s_endpgm")
    a.label("L_go")
    stamp(0)
    sW12, sX = sMASK, sMASK+4
    gHEAD, gMT, gWM, gWN = sCNT, sEV, sCLAMP, sFIRST
    a(f"""
    s_load_dwordx2 s[{sSA}:{sSA+1}], s[0:1], 8
    s_load_dwordx4 s[{sT}:{sT+3}], s[0:1], 24
    s_load_dwordx2 s[{sWS}:{sWS+1}], s[0:1], 104
    s_load_dwordx2 s[{sX}:{sX+1}], s[0:1], 0
    s_load_dwordx2 s[{sDBG}:{sDBG+1}], s[0:1], 96
    s_load_dwordx2 s[{sW12}:{sW12+1}], s[0:1], 56
    s_load_dwordx2 s[{sRET}:{sRET+1}], s[0:1], 72
    s_load_dwordx2 s[{sT+6}:{sT+7}], s[0:1], 16
    v_and_b32 v{vLANE}, 63, v0
    v_lshrrev_b32 v{GT}, 6, v0
    v_lshlrev_b32 v{vL16}, 4, v{vLANE}
    v_readfirstlane_b32 s{sWAVE}, v{GT}
    s_and_b32 s3, s2, 7
    s_lshl_b32 s3, s3, 1
    s_lshr_b32 s{sJ}, s2, 4
    s_bfe_u32 s{sWHICH}, s2, 0x10003
    s_add_u32 s{sHEAD}, s3, s{sWHICH}
    s_and_b32 s{gHEAD}, s{sJ}, 1
    s_add_u32 s{gHEAD}, s{gHEAD}, s3
    s_lshr_b32 s{gWM}, s2, 1
    s_xor_b32 s{gMT}, s2, s{gWM}
    s_bfe_u32 s{gMT}, s{gMT}, 0x10005
    s_lshl_b32 s{gMT}, s{gMT}, 2
    s_lshr_b32 s{gWM}, s2, 6
    s_xor_b32 s{gWM}, s{gWM}, 2
    s_or_b32 s{gMT}, s{gMT}, s{gWM}
    """)
    if OPT["map2"]:
        a(f"""
        s_bfe_u32 s{gHEAD}, s2, 0x10005
        s_add_u32 s{gHEAD}, s{gHEAD}, s3
        s_lshl_b32 s{gMT}, s{sWHICH}, 2
        s_bfe_u32 s{gWM}, s2, 0x10004
        s_or_b32 s{gMT}, s{gMT}, s{gWM}
        s_bfe_u32 s{gWM}, s2, 0x10007
        s_xor_b32 s{gWM}, s{gWM}, 1
        s_lshl_b32 s{gWM}, s{gWM}, 1
        s_or_b32 s{gMT}, s{gMT}, s{gWM}
        s_bfe_u32 s{sWHICH}, s2, 0x10006
        """)
    if OPT["swap"]:
        a(f"""
        s_cmp_lt_u32 s{sJ}, 8
        s_cselect_b32 s{gWM}, {2*OPT["swap"]}, 0
        s_xor_b32 s{sHEAD}, s{sHEAD}, s{gWM}
        """)
    a(f"""
    s_and_b32 s{gWM}, s{sWAVE}, 1
    s_lshr_b32 s{gWN}, s{sWAVE}, 1
    """)
    t2, t3, t4, t5, t6 = GT, GT+1, GT+2, GT+3, GT+4
    a(f"""
    v_lshrrev_b32 v{t2}, 3, v{vLANE}
    s_lshl_b32 s{gA0}, s{gMT}, 8
    s_lshl_b32 s{gA1}, s{sWAVE}, 6
    {f"s_lshl_b32 s{gMA}, s{gWM}, 5" if OPT["chg"] else ""}
    {f"s_sub_u32 s{gA1}, s{gA1}, s{gMA}" if OPT["chg"] else ""}
    s_lshl_b32 s{gMA}, s{gA1}, 7
    s_add_u32 s{gA0}, s{gA0}, s{gA1}
    v_add_u32 v{t2}, s{gA0}, v{t2}
    v_lshlrev_b32 v{t2}, 11, v{t2}
    v_and_b32 v{t3}, 7, v{vLANE}
    v_lshrrev_b32 v{t4}, 4, v{vLANE}
    v_xor_b32 v{t5}, v{t3}, v{t4}
    v_lshl_add_u32 v{t5}, v{t5}, 4, v{t2}
    v_xor_b32 v{t6}, 4, v{t4}
    v_xor_b32 v{t6}, v{t3}, v{t6}
    v_lshl_add_u32 v{t6}, v{t6}, 4, v{t2}
    """)
    for jl in range(4):
        a(f"v_add_u32 v{DA[jl]}, {4096 + jl*8*strideA - jl*1024}, v{t5 if (jl & 1) == 0 else t6}")
    a(f"""
    v_bfe_u32 v{t2}, v{vLANE}, 3, 2
    v_lshlrev_b32 v{t3}, 13, v{t2}
    v_lshrrev_b32 v{t4}, 5, v{vLANE}
    v_lshl_add_u32 v{t3}, v{t4}, {18 if OPT["chg"] == 1 else 7}, v{t3}
    v_lshrrev_b32 v{t4}, 1, v{t2}
    v_lshlrev_b32 v{t4}, 2, v{t4}
    v_and_b32 v{t5}, 7, v{vLANE}
    v_xor_b32 v{t4}, v{t4}, v{t5}
    s_lshl_b32 s{gA0}, s{gWM}, 1
    v_xor_b32 v{t4}, s{gA0}, v{t4}
    v_lshl_add_u32 v{t3}, v{t4}, 4, v{t3}
    s_lshl_b32 s{gA0}, s{gHEAD}, 9
    s_lshl_b32 s{gA1}, s{sWAVE}, 16
    s_add_u32 s{gA0}, s{gA0}, s{gA1}
    v_add_u32 v{t3}, s{gA0}, v{t3}
    """)
    for jl in range(4):
        a(f"v_add_u32 v{DB[jl]}, {4096 + (jl>>1)*4*strideB + (jl&1)*(32*strideB if OPT['chg'] == 2 else 256) - jl*1024}, v{t3}")
    a(f"""
    s_mul_i32 s{gA1}, s3, {OPT["rot"]*64}
    s_mul_i32 s{gA0}, s{gMT}, {OPT["rotm"]*128}
    s_add_u32 s{gA1}, s{gA1}, s{gA0}
    s_and_b32 s{gA1}, s{gA1}, 0x7ff
    s_lshl_b32 s{gMB}, s{sWAVE}, 12
    s_mov_b32 s{sSA+2}, {4194304+4096}
    s_mov_b32 s{sSA+3}, 0x20000
    s_mov_b32 s{sSB+2}, {8388608+4096}
    s_mov_b32 s{sSB+3}, 0x20000
    @PST2
    s_waitcnt lgkmcnt(0)
    @PST3
    s_sub_u32 s{sSA}, s{sSA}, 4096
    s_subb_u32 s{sSA+1}, s{sSA+1}, 0
    s_cmp_eq_u32 s{sWHICH}, 0
    s_cselect_b32 s{sSB}, s{sT}, s{sT+2}
    s_cselect_b32 s{sSB+1}, s{sT+1}, s{sT+3}
    s_sub_u32 s{sSB}, s{sSB}, 4096
    s_subb_u32 s{sSB+1}, s{sSB+1}, 0
    """)
    for i in (2, 3):
        k = [n for n, l in enumerate(a.lines) if f"@PST{i}" in l][0]
        a.lines[k] = f"s_memrealtime s[{streg(i)}:{streg(i)+1}]" if OPT["pst"] else ""
    MA, MB = (0x207ff if OPT["chg"] else 0x107ff), 0x7fffff
    hA = 64 if OPT["chg"] else 32; hB = (32*strideB, 128, 256)[OPT["chg"]]
    gRA, gRB, gTS = gA1, gCNT, (gA0, sT)
    a(f"s_lshl_b32 s{gRB}, s{gRA}, 12")
    def dma_group(kind, par):
        t = gTS[par & 1]
        if kind[0] == "A":
            _, it, h = kind
            m0 = f"s_add_u32 m0, s{gMA}, {(131072, 0, 65536)[it % 3] + h*hA*128}"; regs, srd = DA, sSA
            so = f"s_add_u32 s{t}, s{gRA}, {h*hA*strideA + it*128}\ns_and_b32 s{t}, s{t}, {MA}"
        elif kind[0] == "B":
            _, it, h = kind
            m0 = f"s_add_u32 m0, s{gMB}, {32768 + (it & 1)*65536 + h*16384}"; regs, srd = DB, sSB
            so = f"s_add_u32 s{t}, s{gRB}, {it*64*strideB + h*hB}\ns_and_b32 s{t}, s{t}, {MB}"
        else:
            y = kind[1]
            return f"s_add_u32 m0, s{gMB}, {y*16384}", f"s_add_u32 s{t}, s{sW0}, {y*16384}", \
                   [f"buffer_load_dwordx4 v{vDMA}, {WS}, s{t} offen offset:{i*1024}{ld()} lds ; @gU{y}" for i in range(4)]
        return m0, so, [f"buffer_load_dwordx4 v{regs[jl]}, {sr(srd,4)}, s{t} offen offset:{jl*1024}{OPT['nt' + kind[0]]} lds ; @g{kind[0]}{it}_{h}" for jl in range(4)]
    todo = []
    for it in range(16):
        if OPT["chg"]: todo += [(2*it-1+h, 2*(it-d)+h, (k_, it, h)) for h in range(2) for k_, d in (("A", 3), ("B", 2))]
        else: todo += [(2*it-1, 2*(it-3)+1, ("A", it, 0)), (2*it-1, 2*(it-2), ("B", it, 0)), (2*it-1, 2*(it-3)+1, ("A", it, 1)), (2*it, 2*(it-2)+1, ("B", it, 1))]
    todo += [(31+y, av, ("U", y)) for y, av in enumerate((27, 27, 28, 29, 29, 29, 30, 31))]
    GS = {}; order = []
    for n in range(-1, 32):
        cap = OPT["npro"] if n < 0 else OPT["gcap"][min(n, len(OPT["gcap"])-1)]
        c = sorted([x for x in todo if x[1] <= n], key=lambda x: x[0])[:cap]
        for x in c: todo.remove(x); assert x[0] > n or n < 0, (x, n)
        GS[n] = [x[2] for x in c]; order += GS[n]
    assert not todo
    print("GS", {n: len(v) for n, v in GS.items()}, file=sys.stderr)
    def gtag(k): return f"gU{k[1]}" if k[0] == "U" else f"g{k[0]}{k[1]}_{k[2]}"
    def gwait(n):
        it, kk = (n+1) >> 1, (n+1) & 1
        need = [("U", 0), ("U", 1)] if n == 31 else [("B", it, 1)] if kk else [("A", it, 0), ("A", it, 1), ("B", it, 0)]
        if OPT["chg"] and n < 31: need = [("A", it, kk), ("B", it, kk)]
        return f"vmcnt(@since:{gtag(max(need, key=order.index))})"
    main = a; a = Asm()
    sWID, u_, nb_, o_, o2_ = sXOFF, sT+1, sT+2, sT+3, sT+4
    sD = [sQST, sPT, sPSG]; sXS = sPSS; sHI = sFSG; sSTR = sFSS
    vWO, vW12 = vRD, vDMA
    G = sr(sG, 4)
    r_, g_, r8 = GT, GT+1, GT+2
    h_, i_ = GT+5, GT+6
    a(f"""
    s_lshl_b32 s{sWID}, s2, 2
    s_add_u32 s{sWID}, s{sWID}, s{sWAVE}
    s_mov_b32 s{sX+2}, {2048*896}
    s_mov_b32 s{sX+3}, 0x20000
    v_and_b32 v{h_}, 3, v{vLANE}
    v_lshrrev_b32 v{i_}, 2, v{vLANE}
    v_mul_u32_u24 v{GT+7}, 896, v{h_}
    v_lshl_add_u32 v{GT+7}, v{i_}, 4, v{GT+7}
    v_cmp_gt_u32 s[{sLN}:{sLN+1}], 14, v{i_}
    v_mov_b32 v{GT+8}, {OOB}
    s_lshr_b32 s{gB1}, s{sWID}, 1
    s_mul_i32 s{gB1}, s{gB1}, 3584
    s_mul_i32 s{gB0}, s{gWM}, 448
    s_add_u32 s{gB1}, s{gB1}, s{gB0}
    v_cndmask_b32 v{GT+11}, v{GT+8}, v{GT+7}, s[{sLN}:{sLN+1}]
    s_getpc_b64 s[{sG}:{sG+1}]
    L_pc:
    s_sub_u32 s{sG}, s{sG}, L_pc - L_gemmV
    s_subb_u32 s{sG+1}, s{sG+1}, 0
    s_mov_b32 s{sG+2}, L_codeend - L_gemmV
    s_mov_b32 s{sG+3}, 0x20000
    s_lshr_b32 s{gB0}, s2, 3
    s_lshl_b32 s{gB0}, s{gB0}, 2
    s_add_u32 s{gB0}, s{gB0}, s{sWAVE}
    s_lshl_b32 s{gB0}, s{gB0}, 10
    s_mov_b32 s{sWS+2}, {WS_SIZE}
    s_mov_b32 s{sWS+3}, 0x20000
    v_and_b32 v{r_}, 15, v{vLANE}
    v_lshrrev_b32 v{g_}, 4, v{vLANE}
    v_lshlrev_b32 v{r8}, 3, v{r_}
    """)
    r8p = GT+3 if OPT["o4"] else r8
    if OPT["o4"]:
        a(f"""
        v_and_b32 v{r8p}, 64, v{r8}
        v_lshl_add_u32 v{r8p}, v{h_}, 4, v{r8p}
        v_and_b32 v{GT+4}, 4, v{vLANE}
        v_lshl_add_u32 v{r8p}, v{GT+4}, 1, v{r8p}
        """)
    def natdest(dst, base):
        a(f"""
        s_lshr_b32 s{o_}, s{nb_}, 2
        s_mul_i32 s{o_}, s{o_}, {7*32768}
        s_lshr_b32 s{o2_}, s{u_}, 1
        s_lshl_b32 s{o2_}, s{o2_}, 15
        s_add_u32 s{o_}, s{o_}, s{o2_}
        s_and_b32 s{o2_}, s{nb_}, 3
        s_lshl_b32 s{o2_}, s{o2_}, 13
        s_add_u32 s{o_}, s{o_}, s{o2_}
        s_and_b32 s{o2_}, s{u_}, 1
        s_lshl_b32 s{o2_}, s{o2_}, 10
        s_add_u32 s{o_}, s{o_}, s{o2_}
        s_add_u32 s{dst}, s{o_}, {base}
        """)
    def div7(idx):
        a(f"""
        s_mul_i32 s{u_}, s{idx}, 9363
        s_lshr_b32 s{u_}, s{u_}, 16
        s_mul_i32 s{nb_}, s{u_}, 7
        s_sub_u32 s{nb_}, s{idx}, s{nb_}
        """)
    def ffdest(dst, base, lim, idx=sWID):
        a(f"""
        s_mul_i32 s{o_}, s{nb_}, {184*4096}
        s_lshl_b32 s{o2_}, s{u_}, 12
        s_add_u32 s{o_}, s{o_}, s{o2_}
        s_add_u32 s{dst}, s{o_}, {base}
        s_cmp_lt_u32 s{idx}, {lim}
        s_cselect_b32 s{dst}, s{dst}, {OOB}
        """)
    a(f"""
    s_mov_b32 s{sDBG+2}, 16
    s_mov_b32 s{sDBG+3}, 0x20000
    v_mul_u32_u24 v{vWO}, {4*896}, v{g_}
    v_add_u32 v{vWO}, v{vWO}, v{r8p}
    s_lshl_b32 s{gD}, s{gMT}, 1
    s_add_u32 s{gD}, s{gD}, s{sWHICH}
    s_lshl_b32 s{gD}, s{gD}, 2
    s_add_u32 s{gD}, s{gD}, s{sWAVE}
    """)
    div7(gD)
    a(f"""
    s_lshl_b32 s{o_}, s{gHEAD}, 3
    s_add_u32 s{u_}, s{u_}, s{o_}
    s_mul_i32 s{o_}, s{u_}, {32*896}
    s_lshl_b32 s{o2_}, s{nb_}, 7
    s_add_u32 s{o_}, s{o_}, s{o2_}
    s_cmp_lt_u32 s{gD}, 56
    s_cselect_b32 s{o_}, s{o_}, {OOB}
    v_add_u32 v{vWO}, s{o_}, v{vWO}
    """)
    ffdest(sD[1], WS_WFF + 56*4096, 56, gD)
    a(f"""
    s_lshr_b32 s{u_}, s{sWID}, 2
    s_mul_i32 s{u_}, s{u_}, 9363
    s_lshr_b32 s{u_}, s{u_}, 16
    s_mul_i32 s{nb_}, s{u_}, 28
    s_sub_u32 s{nb_}, s{sWID}, s{nb_}
    s_mul_i32 s{sHI}, s{u_}, {32*3584}
    s_lshl_b32 s{o2_}, s{nb_}, 7
    s_add_u32 s{sHI}, s{sHI}, s{o2_}
    """)
    natdest(sSTR, WS_W1F)
    a(f"s_sub_u32 s{sT+5}, s{sWID}, 392")
    a(f"s_and_b32 s{sT+5}, s{sT+5}, 1023")
    div7(sT+5)
    ffdest(sD[2], WS_WFF, 784)
    a(f"""
    s_lshr_b32 s{o_}, s{u_}, 1
    s_mul_i32 s{o_}, s{o_}, {64*896}
    s_and_b32 s{o2_}, s{u_}, 1
    s_mul_i32 s{o2_}, s{o2_}, {2*896}
    s_add_u32 s{o_}, s{o_}, s{o2_}
    s_lshl_b32 s{o2_}, s{nb_}, 7
    s_add_u32 s{o_}, s{o_}, s{o2_}
    s_mov_b32 s{sW12+2}, {448*3584}
    s_mov_b32 s{sW12+3}, 0x20000
    s_cmp_lt_u32 s{sWID}, 392
    s_cselect_b32 s{sW12}, s{sW12}, s{sRET}
    s_cselect_b32 s{sW12+1}, s{sW12+1}, s{sRET+1}
    s_cselect_b32 s{o_}, s{sHI}, s{o_}
    s_cselect_b32 s{sD[2]}, s{sSTR}, s{sD[2]}
    s_cselect_b32 s{sHI}, 16, 1
    s_cselect_b32 s{sSTR}, 2, 1
    s_cselect_b64 vcc, -1, 0
    s_mul_i32 s{sHI}, s{sHI}, 896
    s_mul_i32 s{o2_}, s{sSTR}, {16*896}
    s_lshl_b32 s{sSTR}, s{sSTR}, 10
    v_mul_u32_u24 v{vW12}, s{o2_}, v{g_}
    v_cndmask_b32 v{r8}, v{r8p}, v{r8}, vcc
    v_add3_u32 v{vW12}, v{vW12}, v{r8}, s{o_}
    v_lshlrev_b32 v{GT+9}, 8, v{i_}
    v_lshl_add_u32 v{GT+9}, v{h_}, 4, v{GT+9}
    v_cndmask_b32 v{vSX}, v{GT+8}, v{GT+9}, s[{sLN}:{sLN+1}]
    s_lshr_b32 s{o_}, s{sWID}, 3
    s_mul_i32 s{o_}, s{o_}, 14336
    s_and_b32 s{o2_}, s{sWID}, 6
    s_lshl_b32 s{o2_}, s{o2_}, 5
    s_add_u32 s{sXS}, s{o_}, s{o2_}
    s_mul_i32 s{o2_}, s{gWM}, 7168
    s_add_u32 s{sXS}, s{sXS}, s{o2_}
    s_xor_b32 s{o2_}, s{sWID}, {OPT["zid"]*4}
    s_lshl_b32 s{sFQ}, s{o2_}, 10
    s_add_u32 s{sFQ}, s{sFQ}, {WS_FLG}
    s_cmp_lt_u32 s{o2_}, 32
    s_cselect_b32 s{sFQ}, s{sFQ}, {OOB}
    v_cmp_eq_u32 vcc, 0, v{vLANE}
    v_mov_b32 v{vONE}, 1
    v_and_b32 v{vL4}, 3, v{vLANE}
    v_lshlrev_b32 v{vL4}, 2, v{vL4}
    v_cndmask_b32 v{vFLG}, v{GT+8}, v{vLANE}, vcc
    s_mov_b32 s{sRET}, s{sT+6}
    s_mov_b32 s{sRET+1}, s{sT+7}
    s_lshr_b32 s{u_}, s{gD}, 2
    s_lshl_b32 s{nb_}, s{gHEAD}, 2
    s_add_u32 s{nb_}, s{nb_}, s{sWAVE}
    s_lshl_b32 s{o_}, s{u_}, 18
    s_lshl_b32 s{o2_}, s{nb_}, 7
    s_add_u32 s{o_}, s{o_}, s{o2_}
    v_and_b32 v{vSW}, 3, v{vLANE}
    v_lshlrev_b32 v{vSW}, 5, v{vSW}
    v_bfe_u32 v{GT+9}, v{vLANE}, 2, 2
    v_lshl_add_u32 v{vSW}, v{GT+9}, 3, v{vSW}
    v_lshl_add_u32 v{vSW}, v{g_}, 16, v{vSW}
    v_add_u32 v{vSW}, s{o_}, v{vSW}
    v_mov_b32 v{vSF}, v{vL16}
    """)
    natdest(sD[0], WS_WQF)
    a(f"s_cmp_lt_u32 s{gD}, 56")
    a(f"s_cselect_b32 s{sD[0]}, s{sD[0]}, {OOB}")
    assert WS_XF == 0
    a(f"""
    v_bfe_u32 v{t4}, v{vLANE}, 1, 3
    s_lshl_b32 s{o_}, s{gWM}, 14
    s_add_u32 s{o_}, s{o_}, 131072
    v_lshlrev_b32 v{r_}, 7, v{r_}
    v_add_u32 v{r_}, s{o_}, v{r_}
    """)
    for kk in range(2):
        a(f"v_or_b32 v{t5}, {4*kk}, v{g_}")
        a(f"v_xor_b32 v{t5}, v{t5}, v{t4}")
        a(f"v_lshl_add_u32 v{RA[kk]}, v{t5}, 4, v{r_}")
    a(f"""
    v_lshlrev_b32 v{t2}, 12, v{g_}
    v_bfe_u32 v{t4}, v{vLANE}, 2, 2
    v_lshl_add_u32 v{t2}, v{t4}, 7, v{t2}
    v_and_b32 v{t5}, 3, v{vLANE}
    v_lshl_add_u32 v{t2}, v{t5}, 3, v{t2}
    s_lshl_b32 s{o_}, s{gWN}, {9 if OPT["chg"] == 2 else 10}
    s_add_u32 s{o_}, s{o_}, 32768
    v_add_u32 v{t2}, s{o_}, v{t2}
    v_lshrrev_b32 v{t4}, 1, v{t4}
    v_lshlrev_b32 v{t4}, 6, v{t4}
    v_and_b32 v{t5}, 1, v{g_}
    v_lshlrev_b32 v{t5}, 5, v{t5}
    v_or_b32 v{t4}, v{t4}, v{t5}
    """)
    for q in range(4):
        a(f"v_xor_b32 v{t5}, {(q>>1)*64 + (q&1)*32}, v{t4}")
        a(f"v_add_u32 v{RB[q]}, v{t5}, v{t2}")
    a(f"""
    s_mul_i32 s{sKVB}, s{gHEAD}, {HS}
    s_mul_i32 s{o_}, s{gMT}, {8*US}
    s_add_u32 s{sKVB}, s{sKVB}, s{o_}
    s_mul_i32 s{o_}, s{gWM}, {4*US}
    s_add_u32 s{sKVB}, s{sKVB}, s{o_}
    s_add_u32 s{o2_}, s{sWHICH}, 12
    s_lshl_b32 s{o_}, s{gWN}, {12 if OPT["chg"] == 2 else f"s{o2_}"}
    s_add_u32 s{sKVB}, s{sKVB}, s{o_}
    s_mul_i32 s{o_}, s{sWHICH}, {WS_VF - WS_KF}
    s_add_u32 s{sKVB}, s{sKVB}, s{o_}
    s_add_u32 s{sKVB}, s{sKVB}, {WS_KF}
    s_lshr_b32 s{sKVI}, 8192, {0 if OPT["chg"] == 2 else f"s{sWHICH}"}
    s_add_u32 s{sKVI}, s{sKVI}, s{sKVB}
    s_lshl_b32 s{sFKV}, s{gHEAD}, 8
    s_lshr_b32 s{o_}, s{gMT}, 2
    s_and_b32 s{o2_}, s{gMT}, 3
    s_lshl_b32 s{o2_}, s{o2_}, 1
    s_or_b32 s{o_}, s{o_}, s{o2_}
    s_cmp_ge_u32 s{o_}, 2
    s_cselect_b32 s{o2_}, 112, 0
    s_add_u32 s{sFKV}, s{sFKV}, s{o2_}
    s_lshl_b32 s{o_}, s{o_}, 3
    s_add_u32 s{sFKV}, s{sFKV}, s{o_}
    s_lshl_b32 s{o_}, s{sWHICH}, 2
    s_add_u32 s{sFKV}, s{sFKV}, s{o_}
    s_add_u32 s{sFKV}, s{sFKV}, {WS_FLG + FL_KV}
    s_lshl_b32 s{sFKVP}, s{sHEAD}, 8
    s_add_u32 s{sFKVP}, s{sFKVP}, {WS_FLG + FL_KV}
    s_xor_b32 s{o_}, s2, {OPT["zid"]}
    s_cmp_eq_u32 s{sWAVE}, 0
    s_cselect_b32 s{sFKV}, s{sFKV}, {OOB}
    s_cselect_b32 s{sFKVP}, s{sFKVP}, {OOB}
    s_cselect_b32 s{gFL}, s{o_}, {OOB}
    s_cselect_b32 s{gIT}, 0, {OOB}
    """)
    WQ, B1, ST1, N0, STA2, XR1, XR2 = sT+1, sT+2, sT+3, sN, sT+4, sND, sXOF2
    a(f"""
    s_or_b32 s{sQI}, s{sJ}, 8
    s_mul_i32 s{WQ}, s{sHEAD}, {7*32768}
    s_add_u32 s{WQ}, s{WQ}, {WS_WQF}
    s_mov_b32 s{sW0}, s{WQ}
    s_mov_b32 s{XR1}, s{sQI}
    s_mov_b32 s{ST1}, 32768
    s_bitcmp1_b32 s{sHEAD}, 1
    s_cselect_b32 s{N0}, {OPT['n0'][1]}, {OPT['n0'][0]}
    s_cselect_b32 s{STA2}, {OPT['a15'][1]}, {OPT['a15'][0]}
    s_cmp_eq_u32 s{sQI}, 15
    s_cselect_b32 s{STA2}, s{STA2}, 0
    s_add_u32 s{N0}, s{N0}, s{STA2}
    s_cmp_eq_u32 s{sQI}, 8
    s_cselect_b32 s{STA2}, {OPT["cap8"]}, 64
    s_min_u32 s{N0}, s{N0}, s{STA2}
    @atomic
    s_cmp_ge_u32 s{sJ}, 8
    s_cbranch_scc1 L_typeA
    s_mov_b32 s{sTYPE}, 2
    s_sub_u32 s{B1}, s{WQ}, {5*32768}
    s_sub_u32 s{XR2}, 15, s{sQI}
    s_lshl_b32 s{sU1}, s{sQI}, 2
    s_sub_u32 s{sU2}, 64, s{sU1}
    s_add_u32 s{sU1}, s{sU1}, 4
    s_sub_u32 s{sU1}, s{sU1}, s{N0}
    s_add_u32 s{STA2}, s{sU1}, 14
    s_add_u32 s{sT+7}, s{STA2}, s{sU2}
    s_branch L_typedone
    """)
    a.label("L_typeA")
    a(f"""
    s_mov_b32 s{sU1}, s{N0}
    s_add_u32 s{sT+7}, s{N0}, 14
    s_mov_b32 s{sU2}, 2
    s_mov_b32 s{N0}, 0
    s_mov_b32 s{STA2}, 100
    s_mov_b32 s{XR2}, 0x4000
    s_mov_b32 s{sTYPE}, 1
    s_mov_b32 s{B1}, {OOB}
    s_cmp_eq_u32 s{sJ}, 15
    s_cbranch_scc1 L_typedone
    s_mov_b32 s{sTYPE}, 0
    s_mul_i32 s{XR1}, s{sHEAD}, 7
    s_add_u32 s{XR1}, s{XR1}, s{sJ}
    s_sub_u32 s{XR1}, s{XR1}, 8
    s_lshr_b32 s{sT}, s{XR1}, 4
    s_and_b32 s{XR1}, s{XR1}, 15
    s_mul_i32 s{sW0}, s{sT}, {7*32768}
    s_add_u32 s{sW0}, s{sW0}, {WS_W1F}
    s_lshl_b32 s{B1}, s{sT}, 15
    s_add_u32 s{B1}, s{B1}, {WS_WFF}
    s_mov_b32 s{ST1}, {184*4096}
    """)
    a.label("L_typedone")
    a("@end")
    tA, tB, tC, tD = GT, GT+1, GT+2, GT+3
    KB, VB = sT+5, sT+6
    a(f"""
    s_mul_i32 s{KB}, s{sHEAD}, {HS}
    s_add_u32 s{VB}, s{KB}, {WS_VF}
    s_add_u32 s{KB}, s{KB}, {WS_KF}
    v_mov_b32 v{vTE}, {OOB}
    """)
    def seg_lin(start, base, stride):
        a(f"v_subrev_u32 v{tA}, {start}, v{vLANE}")
        a(f"v_cmp_gt_u32 vcc, 7, v{tA}")
        a(f"v_mul_u32_u24 v{tB}, {stride}, v{tA}")
        a(f"v_add_u32 v{tB}, s{base}, v{tB}")
        a(f"v_cndmask_b32 v{vTE}, v{vTE}, v{tB}, vcc")
    seg_lin(0, sW0, 32768)
    seg_lin(7, B1, f"s{ST1}")
    a(f"s_lshl_b32 s{sT}, s{sHEAD}, 15")
    a(f"s_add_u32 s{sT}, s{sT}, {WS_WFF + 56*4096}")
    seg_lin(f"s{sT+7}", sT, 184*4096)
    a(f"v_add_u32 v{vTO}, 16384, v{vTE}")
    def seg_att(start, n0, U):
        for tab in (vTO, vTE):
            a(f"v_subrev_u32 v{tA}, {start}, v{vLANE}")
            if n0 is not None: a(f"v_add_u32 v{tB}, s{n0}, v{tA}")
            else: a(f"v_mov_b32 v{tB}, v{tA}")
            a(f"v_mul_u32_u24 v{tB}, {US}, v{tB}")
            if tab == vTO:
                a(f"s_sub_u32 s{sT}, s{U}, 1")
                a(f"v_cmp_eq_u32 vcc, s{sT}, v{tA}")
                a(f"v_add_u32 v{tC}, s{KB}, v{tB}")
                a(f"v_add_u32 v{tC}, {US}, v{tC}")
                a(f"v_add_u32 v{tD}, s{VB}, v{tB}")
            else:
                a(f"v_cmp_eq_u32 vcc, 0, v{tA}")
                a(f"v_add_u32 v{tC}, s{VB}, v{tB}")
                a(f"v_subrev_u32 v{tC}, {US}, v{tC}")
                a(f"v_add_u32 v{tD}, s{KB}, v{tB}")
            a(f"v_cndmask_b32 v{tC}, v{tC}, v{tD}, vcc")
            a(f"v_cmp_gt_u32 vcc, s{U}, v{tA}")
            a("s_nop 1")
            a(f"v_cndmask_b32 v{tab}, v{tab}, v{tC}, vcc")
    seg_att(14, N0, sU1)
    seg_att(f"s{STA2}", None, sU2)
    XO1, XO2 = sXOFF, sXOF2
    a(f"""
    s_lshl_b32 s{sT}, s{sWAVE}, 1
    s_lshl_b32 s{XO1}, s{XR1}, 3
    s_add_u32 s{XO1}, s{XO1}, s{sT}
    s_mul_i32 s{XO1}, s{XO1}, 14336
    s_lshl_b32 s{XO2}, s{XR2}, 3
    s_add_u32 s{XO2}, s{XO2}, s{sT}
    s_mul_i32 s{XO2}, s{XO2}, 14336
    s_lshl_b32 s{sW4K}, s{sWAVE}, 12
    s_mov_b32 s{sCLAMP}, 0x05040100
    s_mov_b32 s{sFIRST}, 0x07060302
    """)
    setup_l = [l.strip() for l in a.lines if l.strip()]
    a = main
    seq = []
    for k, kind in enumerate(GS[-1]):
        m0, so, ins = dma_group(kind, 0)
        seq += [[m0, so, ins[0]]] + [[x] for x in ins[1:]]
        if k == OPT["xpos"]:
            seq += [[f"buffer_load_dwordx4 {ar(SLD+48,4)}, v{GT+11}, {sr(sX,4)}, s{gB1} offen"], [f"buffer_load_dwordx4 {ar(SLD+52,4)}, v{GT+11}, {sr(sX,4)}, s{gB1} offen offset:224"],
                    [f"s_xor_b32 s{gB1}, s{gB1}, 448", f"buffer_load_dwordx4 {ar(SLD+56,4)}, v{GT+11}, {sr(sX,4)}, s{gB1} offen"], [f"buffer_load_dwordx4 {ar(SLD+60,4)}, v{GT+11}, {sr(sX,4)}, s{gB1} offen offset:224 ; @sx"]]
    if OPT["cpf"]: seq += [[f"buffer_load_dwordx4 a[200:203], v{vL16}, {G}, s{gB0} offen"], [f"s_add_u32 s{gB0}, s{gB0}, 131072", f"buffer_load_dwordx4 a[204:207], v{vL16}, {G}, s{gB0} offen"]]
    nowr = ("s_mov", "s_mul_i32", "s_nop", "s_cselect", "s_getpc", "s_cbranch", "s_branch")
    def scc_live(k):
        for l in setup_l[k:]:
            if l.startswith(("s_cselect", "s_cbranch_scc", "s_subb")): return True
            if l.startswith("s_") and not l.startswith(nowr): return False
        return False
    step = len(setup_l) / (len(seq) - 0.5)
    atomic = False; nxt = 0.0
    for k, l in enumerate(setup_l):
        if seq and k >= nxt and not atomic and not scc_live(k) and not l.endswith(":"):
            for x in seq.pop(0): a(x)
            nxt += step
        if l == "@atomic": atomic = True
        elif l == "@end": atomic = False
        else: a(l)
    for g in seq:
        for x in g: a(x)
    print("setup instrs", len(setup_l), "left", len(seq), file=sys.stderr)
    a(f"""
    s_mov_b32 s{sG}, s{sRET}
    s_mov_b32 s{sG+1}, s{sRET+1}
    s_mov_b32 s{sG+2}, {448*8192}
    """)
    if OPT["dbgside"] & 1:
        for r in sD: a(f"s_mov_b32 s{r}, {OOB}")
    if OPT["dbgside"] & 2: a(f"s_mov_b32 s{sXS}, {OOB}")
    if OPT["dbgside"] & 4:
        for r in (vWO, vW12, vSW): a(f"v_mov_b32 v{r}, {OOB}")
    def side_chain():
        c = []
        z = GT+8
        c += [(f"v_mov_b64 {vr(z,2)}, 0", 0), (f"v_mov_b64 {vr(z+2,2)}, 0", 0), (f"buffer_store_dwordx4 {vr(z,4)}, v{vL16}, {WS}, s{sFQ} offen sc1 ; @zst", 1)]
        if OPT["fsep"]:
            c += [(f"s_lshl2_add_u32 s{sFQ}, s2, s{sWAVE}", 1), (f"s_mul_i32 s{sFQ}, s{sFQ}, {OPT['fsep']}", 1), (f"s_add_u32 s{sFQ}, s{sFQ}, {WS_FLG + FL_S3}", 1),
                  (f"buffer_store_dword v{z}, v{vFLG}, {WS}, s{sFQ} offen sc1", 1)]
        c.append(("s_waitcnt vmcnt(@since:sx)", 1))
        U = GT; m_, v_, t_, t2_ = GT+16, GT+17, vG1, vPOLL
        for i in range(8):
            c.append((f"v_accvgpr_read_b32 v{t_}, a{SLD+48+i}", 2 if i == 0 else 0))
            c.append((f"v_lshlrev_b32 v{U+2*i}, 16, v{t_}", 0))
            c.append((f"v_and_b32 v{U+2*i+1}, 0xffff0000, v{t_}", 0))
        def red(v):
            r = [(f"v_add_f32_dpp v{v}, v{v}, v{v} row_ror:{sh} row_mask:0xf bank_mask:0xf", 2) for sh in (8, 4)]
            return r + xlane_ops("v_add_f32", v, t2_)
        c.append((f"v_add_f32 v{m_}, v{U}, v{U+1}", 0)); c.append((f"v_add_f32 v{v_}, v{U+2}, v{U+3}", 0))
        for i in range(4, 16, 2):
            c.append((f"v_add_f32 v{m_}, v{m_}, v{U+i}", 0)); c.append((f"v_add_f32 v{v_}, v{v_}, v{U+i+1}", 0))
        for i in range(8):
            c += [(x, 0) for x in (f"v_accvgpr_read_b32 v{t_}, a{SLD+56+i}", f"v_lshlrev_b32 v{t2_}, 16, v{t_}", f"v_and_b32 v{t_}, 0xffff0000, v{t_}",
                  f"v_add_f32 v{m_}, v{m_}, v{t2_}", f"v_add_f32 v{v_}, v{v_}, v{t_}")]
        c.append((f"v_add_f32 v{m_}, v{m_}, v{v_}", 0))
        c += red(m_)
        c.append((f"v_mul_f32 v{m_}, {f2u(1.0/448):#x}, v{m_}", 0))
        for i in range(16):
            c.append((f"v_sub_f32 v{t_}, v{U+i}, v{m_}", 0))
            c.append((f"v_mul_f32 v{v_}, v{t_}, v{t_}" if i == 0 else f"v_fma_f32 v{v_}, v{t_}, v{t_}, v{v_}", 0))
        for i in range(8):
            c += [(x, 0) for x in (f"v_accvgpr_read_b32 v{t_}, a{SLD+56+i}", f"v_lshlrev_b32 v{t2_}, 16, v{t_}", f"v_and_b32 v{t_}, 0xffff0000, v{t_}",
                  f"v_sub_f32 v{t2_}, v{t2_}, v{m_}", f"v_sub_f32 v{t_}, v{t_}, v{m_}", f"v_fma_f32 v{v_}, v{t2_}, v{t2_}, v{v_}", f"v_fma_f32 v{v_}, v{t_}, v{t_}, v{v_}")]
        c.append((f"v_cndmask_b32 v{v_}, 0, v{v_}, s[{sLN}:{sLN+1}]", 0))
        c += red(v_)
        for x in (f"v_mul_f32 v{v_}, {f2u(1.0/448):#x}, v{v_}", f"v_cvt_pk_bf16_f32 v{t_}, v{m_}, v{v_}", f"v_lshlrev_b32 v{m_}, 16, v{t_}",
                  f"v_and_b32 v{v_}, 0xffff0000, v{t_}", f"v_add_f32 v{v_}, {f2u(1e-5):#x}, v{v_}", f"v_cvt_pk_bf16_f32 v{v_}, v{v_}, v{v_}",
                  f"v_lshlrev_b32 v{v_}, 16, v{v_}", f"v_sqrt_f32 v{v_}, v{v_}"):
            c.append((x, 0))
        c.append((f"v_cvt_pk_bf16_f32 v{v_}, v{v_}, v{v_}", 1))
        c.append((f"v_lshlrev_b32 v{v_}, 16, v{v_}", 0))
        c.append((f"v_rcp_f32 v{v_}, v{v_}", 0))
        for i in range(16): c.append((f"v_sub_f32 v{U+i}, v{U+i}, v{m_}", 1 if i == 0 else 0))
        for i in range(8):
            for x in (f"v_cvt_pk_bf16_f32 v{t_}, v{U+2*i}, v{U+2*i+1}", f"v_lshlrev_b32 v{U+2*i}, 16, v{t_}", f"v_and_b32 v{U+2*i+1}, 0xffff0000, v{t_}",
                      f"v_mul_f32 v{U+2*i}, v{U+2*i}, v{v_}", f"v_mul_f32 v{U+2*i+1}, v{U+2*i+1}, v{v_}", f"v_cvt_pk_bf16_f32 v{U+i}, v{U+2*i}, v{U+2*i+1}"):
                c.append((x, 0))
        if OPT["hold"] is not None: c.append((f"s_waitcnt vmcnt(@since:sl{OPT['hold']})", 1, 0, OPT["hold"]))
        c.append((f"buffer_store_dwordx4 {vr(U,4)}, v{vSX}, {WS}, s{sXS} offen sc1", 1))
        c.append((f"buffer_store_dwordx4 {vr(U+4,4)}, v{vSX}, {WS}, s{sXS} offen offset:3584 sc1", 1))
        def relay(rnd, land):
            c.append((f"s_waitcnt vmcnt(@since:sl{rnd})", 1, 0, rnd))
            for h in range(2):
                for e in range(8):
                    c.append((f"v_accvgpr_read_b32 v{GT+e}, a{land+2*e+h}", 2 if e == 0 else 0))
                for jj in range(2):
                    o = GT+8+4*jj
                    for p in range(4):
                        c.append((f"v_perm_b32 v{o+p}, v{GT+2*p+1}, v{GT+2*p}, s{(sCLAMP, sFIRST)[jj]}", 0))
                    if rnd == 1: c.append((f"buffer_store_dwordx4 {vr(o,4)}, v{vL16}, {WS}, s{sD[rnd]} offen offset:{(2*h+jj)*1024} sc1", 1))
                    else:
                        c.append((f"buffer_store_dwordx4 {vr(o,4)}, v{vSF}, {WS}, s{sD[rnd]} offen sc1", 1))
                        c.append((f"v_add_u32 v{vSF}, s{sSTR}, v{vSF}", 1))
        relay(2, SLD+32)
        c.append((f"s_waitcnt vmcnt(@since:sl0)", 1, 0, 0))
        c.append((f"s_mov_b32 s{sHI}, {f2u(QSCALE):#x}", 1))
        for h in range(2):
            for p in range(4):
                t = GT + (p & 1)*4
                c += [(x, 0) for x in (f"v_accvgpr_read_b32 v{t}, a{SLD+4*p+h}", f"v_accvgpr_read_b32 v{t+1}, a{SLD+4*p+2+h}",
                      f"v_lshlrev_b32 v{t+2}, 16, v{t}", f"v_lshlrev_b32 v{t+3}, 16, v{t+1}", f"v_and_b32 v{t}, 0xffff0000, v{t}", f"v_and_b32 v{t+1}, 0xffff0000, v{t+1}")]
                c += [(f"v_mul_f32 v{t+i}, s{sHI}, v{t+i}", 0) for i in range(4)]
                c += [(f"v_cvt_pk_bf16_f32 v{GT+8+p}, v{t+2}, v{t+3}", 0), (f"v_cvt_pk_bf16_f32 v{GT+12+p}, v{t}, v{t+1}", 0)]
            if h == 1: c.append((f"s_add_u32 s{sD[0]}, s{sD[0]}, 4096", 1))
            for jj in range(2):
                c.append((f"buffer_store_dwordx4 {vr(GT+8+4*jj,4)}, v{vL16}, {WS}, s{sD[0]} offen offset:{jj*2048} sc1 ; @sst", 1))
        relay(1, WOL)
        c += [(x, 0) for x in (f"v_add_u32 v{vDMA}, s{sW4K}, v{vL16}", f"v_mov_b32 v{vRD}, v{vL16}",  f"v_lshrrev_b32 v{GT}, 4, v{vLANE}",
              f"v_lshlrev_b32 v{GT}, 2, v{GT}", f"v_and_b32 v{GT+1}, 15, v{vLANE}", f"v_sub_u32 v{GT}, v{GT+1}, v{GT}")]
        c += [(f"v_cmp_gt_i32 s[{sMASK+2*r}:{sMASK+2*r+1}], {r}, v{GT}", 0) for r in range(4)]
        c = [((x[0].replace(" sc1", OPT["sidesc"]),) + tuple(x[1:]) if x[0].startswith("buffer_store") else x) for x in c]
        if OPT["wbl2"]: c.append(("s_waitcnt vmcnt(4)", 30)); c.append(("buffer_wbl2 sc1", 1))
        return Chain(c, XG4)
    def reads(kk, buf):
        if OPT["chg"]:
            ra = [f"ds_read_b128 {ar(CA(m,k),4)}, v{RA[k]} offset:{m*2048}" for m in range(4*kk, 4*kk+4) for k in range(2)]
            rb = [f"ds_read_b64_tr_b16 {ar(CB(n,k)+2*sec,2)}, v{RB[n&3]} offset:{kk*16384+sec*2048+k*512*OPT['chg']}" for n in range(4*kk, 4*kk+4) for k in range(2) for sec in range(2)]
            if kk: return ra + rb
            return rb[:4] + [x for m in range(4) for x in ra[2*m:2*m+2] + rb[4+2*m:6+2*m]] + rb[12:]
        ra = [f"ds_read_b128 {ar(FA(buf,m),4)}, v{RA[kk]} offset:{m*2048}" for m in range(8)]
        rb = [f"ds_read_b64_tr_b16 {ar(FB(buf,n)+2*sec,2)}, v{RB[n&3]} offset:{kk*16384+sec*2048+(n>>2)*512}" for n in range(8) for sec in range(2)]
        out = []
        for i in range(8): out += [ra[i], rb[2*i], rb[2*i+1]]
        return out
    stamp(6, True)
    for k_ in range(OPT["tg"].count(-1)):
        a(f"s_cmp_eq_u32 s{sWHICH}, 0\ns_cbranch_scc0 L_tv{k_}")
        a(touch("K")); a(f"s_branch L_tw{k_}\nL_tv{k_}:"); a(touch("V")); a(f"L_tw{k_}:")
    a(f"s_waitcnt {gwait(-1)}")
    a("s_barrier")
    for r in reads(0, 0): a(r)
    stamp(1)
    a(f"s_cmp_eq_u32 s{sWHICH}, 0")
    a("s_cbranch_scc0 L_gemmV")
    a.label("L_gK")
    pre_lines = len(a.lines)
    sJT = sT+2
    def xjob(J, key, i, base, early, late, rot=0):
        u, qt = i >> 1, i & 1
        J.add(key, f"s_add_u32 s{sJT}, s{base}, {qt*14336+((u+rot)%14)*1024}", f"buffer_load_dwordx4 {ar(X(qt,u),4)}, v{vL16}, {WS}, s{sJT} offen{ld()} ; @{key}", early, late - (3 - (i & 3))*8)
    def kvjob(J, c, early, late):
        blk = c >> 2
        J.add("kv", f"s_add_u32 s{sJT}, s{sKVI if blk & 1 else sKVB}, {(blk>>1)*US+(c&3)*1024}",
              f"buffer_store_dwordx4 {vr(PK(c),4)}, v{vL16}, {WS}, s{sJT} offen{OPT['kvsc']} ; @kv", early, late)
    pw, t6, t7 = sEV, sCNT, sND
    gtab = sum(g << (4*k) for k, g in enumerate(OPT["gev"]))
    fss = f"s_lshl_b32 s{sFSS}, s{t6}, 9\ns_add_u32 s{sFSS}, s{sFSS}, s{pw}\ns_lshl_b32 s{t7}, s{sHEAD}, 2\ns_add_u32 s{sFSS}, s{sFSS}, s{t7}"
    if OPT["fsep"]: fss = f"s_lshl2_add_u32 s{sFSS}, s2, s{sWAVE}\ns_mul_i32 s{sFSS}, s{sFSS}, {OPT['fsep']}\ns_add_u32 s{sFSS}, s{sFSS}, {WS_FLG + FL_S3}"
    setup = f"""
    s_mov_b32 s{sLN}, {gtab & 0xffffffff:#x}
    s_mov_b32 s{sLN+1}, {gtab >> 32:#x}
    s_lshl_b32 s{pw}, s{sHEAD}, 3
    s_and_b32 s{t6}, s{sJ}, 7
    s_add_u32 s{pw}, s{pw}, s{t6}
    s_lshl_b32 s{pw}, s{pw}, 2
    s_add_u32 s{pw}, s{pw}, s{sWAVE}
    s_mul_i32 s{sQST}, s{pw}, {Q_W}
    s_add_u32 s{sQST}, s{sQST}, {WS_QF}
    s_mul_i32 s{sPT}, s{pw}, {PT_W}
    s_add_u32 s{sPT}, s{sPT}, {WS_PT}
    s_lshl_b32 s{sFQ}, s{pw}, 5
    s_add_u32 s{sFQ}, s{sFQ}, {WS_FLG + FL_Q}
    s_mul_i32 s{t7}, s{sWAVE}, {28*1024}
    s_add_u32 s{t7}, s{t7}, {WS_PS}
    s_mul_i32 s{pw}, s{sHEAD}, 7
    s_add_u32 s{pw}, s{pw}, s{t6}
    s_lshr_b32 s{t6}, s{pw}, 4
    s_and_b32 s{sFSG}, s{pw}, 15
    s_lshl_b32 s{sT+3}, s{t6}, 9
    s_mul_i32 s{sPSG}, s{sFSG}, {PS_R}
    s_add_u32 s{sPSG}, s{sPSG}, s{t7}
    s_mul_i32 s{pw}, s{t6}, {PS_SRC}
    s_add_u32 s{sPSG}, s{sPSG}, s{pw}
    s_add_u32 s{sPSG}, s{sPSG}, {16*PS_SRC}
    s_lshl_b32 s{sFSG}, s{sFSG}, 9
    s_lshl_b32 s{pw}, s{t6}, 2
    s_add_u32 s{sFSG}, s{sFSG}, s{pw}
    s_lshl_b32 s{pw}, s{sWAVE}, 7
    s_add_u32 s{pw}, s{pw}, {WS_FLG + FL_S}
    s_add_u32 s{sFSG}, s{sFSG}, s{pw}
    s_add_u32 s{sFSG}, s{sFSG}, 64
    s_lshr_b32 s{t6}, s{sJ}, 3
    s_mul_i32 s{t6}, s{t6}, 7
    s_xor_b32 s{t6}, s{t6}, 7
    s_xor_b32 s{t6}, s{t6}, s{sJ}
    {fss}
    s_lshl_b32 s{sND}, s{sQI}, 2
    s_add_u32 s{sND}, s{sND}, s{sWAVE}
    s_lshr_b32 s{sCNT}, s{sU1}, 1
    s_sub_u32 s{sCNT}, s{sCNT}, 1
    s_lshl_b32 s{sEV}, s{sJ}, 2
    s_lshr_b64 s[{sT+4}:{sT+5}], s[{sLN}:{sLN+1}], s{sEV}
    s_and_b32 s{sEV}, s{sT+4}, 15
    """.strip().split("\n")
    setup = [(x.strip(), 1) for x in setup]
    CLR = GT+4
    setup0 = f"""
    v_mov_b64 {vr(CLR,2)}, -1
    v_mov_b64 {vr(CLR+2,2)}, -1
    s_mul_i32 s{t7}, s{sWAVE}, {28*1024}
    s_lshr_b32 s{t6}, s{sJ}, 3
    s_mul_i32 s{t6}, s{t6}, 7
    s_xor_b32 s{t6}, s{t6}, 7
    s_xor_b32 s{t6}, s{t6}, s{sJ}
    s_mul_i32 s{sPSS}, s{t6}, {PS_R}
    s_add_u32 s{sPSS}, s{sPSS}, s{t7}
    s_mul_i32 s{t7}, s{sHEAD}, {PS_SRC}
    s_add_u32 s{sPSS}, s{sPSS}, s{t7}
    s_add_u32 s{sPSS}, s{sPSS}, {WS_PS}
    """.strip().split("\n")
    setup0 = [(x.strip(), 1) for x in setup0]
    if OPT["dp"] in (None, 7):
        k = [x[0].startswith(f"s_xor_b32 s{t6}, s{t6}, s{sJ}") for x in setup].index(True)
        setup[k+1:k+1] = setup0[7:11]; setup0 = []
    setup.append((f"s_cmp_eq_u32 s{sTYPE}, 1\ns_cselect_b32 s{sQST}, {OOB}, s{sQST}", 1))
    setup.append((f"s_cmp_eq_u32 s{sTYPE}, 0\ns_cselect_b32 s{sFSG}, s{sFSG}, {OOB}", 1))
    setup.append((f"s_cmp_eq_u32 s{sWAVE}, 0\ns_cselect_b32 s{sT+1}, 0, 0x40000000\ns_cselect_b32 s{sEXP}, 1, 0\ns_or_b32 s{sFQ}, s{sFQ}, s{sT+1}", 1))
    setup2 = [(x, 1) for x in (f"s_mov_b32 s{sTAU}, 4", f"s_add_u32 s{sM0}, s{sW4K}, {8*16384}", f"s_add_u32 s{sOFFB}, s{sW0}, {8*16384}",
              f"s_mov_b32 s{sRDD}, {-131072}", f"s_mov_b32 s{gMA}, {-131072}", f"s_mov_b32 s{gMB}, 32768", f"s_mov_b32 m0, s{sM0}")]
    for typ in ("K", "V"):
        if typ == "V":
            a.label("L_gemmV")
            for l in a.lines[:pre_lines]:
                if l.strip().startswith("buffer_") or "@merge" in l: a.raw("@ghost " + l.strip())
        def pos0(m, n): return m*8+n if typ == "K" else (m >> 1)*16 + n*2 + (m & 1)
        done = {pos0(m, n): (n >> 2)*64 + m*8 + (n & 3)*2 + 1 for m in range(8) for n in range(8)}
        corder = sorted(range(32), key=lambda c: (max(done[2*c], done[2*c+1]) >> 3, c not in dict(OPT["es"]), c))
        slot = {p: p for p in range(64)}
        if OPT["es"]:
            assert len(ENL()) <= 20 and OPT["chg"]
            slot = {2*c: (PK(c)-48)//4 for c in range(32)}
            rest = [x for x in range(52) if x not in slot.values()]
            ag = [c for c in corder[:16] if c not in [x[0] for x in OPT["es"][:4]]][:12]
            for c in corder: slot[2*c+1] = 52 + ag.index(c) if c in ag else rest.pop()
        def pos(m, n): return slot[pos0(m, n)]
        def pack_chain():
            pk = []
            for x_ in sorted(range(64), key=lambda x: (done[x] >> 3, corder.index(x >> 1), x)):
                c = x_ >> 1; e = done[x_] + 3
                r = PK(c); p = slot[2*c+1]; q = 48+4*p; t = GT+17
                cv = lambda d, x, y: pk.append((f"v_cvt_pk_bf16_f32 v{d}, v{x}, v{y}", 0, e))
                rd = lambda d, i: pk.append((f"v_accvgpr_read_b32 v{d}, a{208+4*(p-52)+i}", 0, e))
                if x_ & 1 == 0: cv(r, r, r+1); cv(r+1, r+2, r+3)
                elif p < 52: cv(r+2, q, q+1); cv(r+3, q+2, q+3)
                else: rd(r+2, 0); rd(r+3, 1); rd(t, 3); cv(r+2, r+2, r+3); rd(r+3, 2); cv(r+3, r+3, t)
            return Chain(pk)
        def es_place(st, n, pk):
            J2 = Jobs(); sg = [(c, g - (n-30)*64) for c, g in OPT["es"] if g >> 6 == n-30]
            for c, g in sg: kvjob(J2, c, g, g)
            J2.place(st, 0, 16, [g for c, g in sg]); assert not J2.jobs
            return sg
        def es_fill(st, n, pk, sg):
            pk.fill(st)
            for c, g in sg:
                key = f"v_cvt_pk_bf16_f32 v{PK(c)+3},"
                assert not any(x[0].startswith(key) for x in pk.items) and all(w < g for w, v in st.fill.items() if any(x.startswith(key) for x in v)), (c, g)
            pk.items = [(x[0], x[1], x[2]-64) for x in pk.items]
        def substep(it, kk):
            groups = GS[2*it+kk]
            buf = kk
            mf = []
            for m in range(8):
                for n in range(8):
                    acc = accreg(pos(m, n))
                    c = "0" if (it == 0 and kk == 0) else acc
                    x, y = ar(FB(buf,n),4), ar(FA(buf,m),4)
                    if OPT["chg"]:
                        n2 = 4*kk + (n >> 1); k = (n ^ (n >> 1)) & 1
                        acc = accreg(pos(m, n2)); c = "0" if (it == 0 and n & 1 == 0) else acc
                        x, y = ar(CB(n2,k),4), ar(CA(m,k),4)
                    if typ == "V": x, y = y, x
                    mf.append(f"{MF} {acc}, {x}, {y}, {c}")
            st = Stage(mf)
            st.put(-1, f"s_waitcnt {gwait(2*it+kk)} lgkmcnt(0)")
            st.put(-1, "s_barrier")
            last = (it == 15 and kk == 1)
            g, dg = 1, (OPT["dg2"] if len(groups) == 2 else 4)
            for k, kind in enumerate(groups):
                m0, so, ins = dma_group(kind, k)
                st.put(g-1, m0)
                st.put(g-2, so)
                for i in ins:
                    st.put(g, i); g += dg
            rd = reads(kk ^ 1, buf ^ 1) if not last else [f"ds_read_b128 {ar(FR(f),4)}, v{vRD} offset:{f*1024}" for f in range(12)]
            for i, r in enumerate(rd): st.put(i*2, r)
            if OPT["chg"] and kk == 0: st.put(31, "s_waitcnt lgkmcnt(8)")
            if kk == 0 and it < 15:
                d = -131072 if it % 3 == 0 else 65536
                for i, x in enumerate([f"v_add_u32 v{RA[0]}, {d}, v{RA[0]}", f"v_add_u32 v{RA[1]}, {d}, v{RA[1]}"] + [f"v_xor_b32 v{r}, 0x10000, v{r}" for r in RB]):
                    st.put(48 + 2*(i >> 1), x)
            if OPT["fine"]:
                st.put(2, f"{FT()} s[{sFS}:{sFS+1}]")
                st.put(4, f"v_mov_b32_dpp v0, v0 wave_shr:1 row_mask:0xf bank_mask:0xf")
                st.put(46, f"v_writelane_b32 v0, s{sFS}, 0")
            return st
        ch = side_chain()
        J = Jobs()
        for e in range(8):
            t = [x + e*OPT["slstep"] for x in OPT["slt"]]
            J.add("sl1", f"s_mov_b32 s{sJT}, {(e>>2)*16*896}", f"buffer_load_dwordx2 {ar(WOL+2*e,2)}, v{vWO}, {sr(sX,4)}, s{sJT} offen offset:{(e&3)*896}{OPT['ntS']} ; @sl1", t[2], t[2]+64)
            J.add("sl2", f"s_add_u32 s{sJT}, s{sHI}, {(e&3)*3584}" if e >> 2 else f"s_mov_b32 s{sJT}, {e*3584}",
                  f"buffer_load_dwordx2 {ar(SLD+32+2*e,2)}, v{vW12}, {sr(sW12,4)}, s{sJT} offen{OPT['ntS']} ; @sl2", t[0], t[0]+64)
            J.add("sl0", f"s_mov_b32 s{sJT}, {e*8192}", f"buffer_load_dwordx2 {ar(SLD+2*e,2)}, v{vSW}, {G}, s{sJT} offen{OPT['ntS']} ; @sl0", t[1], t[1]+64)
        NZ, NZP, NZC, NF, NP, NC = OPT["sync"]
        for i in range(20): xjob(J, "x1", i, XO1, (NC+1)*64 + i*OPT["xstep"], 31*64)
        for b in range(8):
            J.add("bias", None, f"buffer_load_dwordx4 {vr(BIAS+BP[b>>1]*8+(b&1)*4,4)}, v{GT+16}, {G}, s{sT+3} offen offset:{(b>>1)*128+(b&1)*16} ; @bias{b//6}", 31*64 if b >= 6 else 29*64, 31*64+24 if b >= 6 else 30*64+22)
        for i in range(4*(7-OPT["dp"]) if OPT["dp"] is not None else 0):
            t = OPT["clr0"] + i*OPT["clrs"]
            J.add("clr", f"s_add_u32 s{sJT}, s{sPSS}, {OPT['dp']*4096+i*1024}", f"buffer_store_dwordx4 {vr(CLR,4)}, v{vL16}, {WS}, s{sJT} offen sc1", t, t+64)
        su = Chain(setup)
        PV = GT+8
        for n in range(31):
            it, kk = n >> 1, n & 1
            st = substep(it, kk)
            if n == 0:
                st.put(62, f"s_load_dwordx2 s[{sX}:{sX+1}], s[0:1], 40")
                st.put(63, f"s_mov_b32 s{sX+2}, {4096*896}")
            if n == NZ-1: st.put(63, "s_waitcnt vmcnt(@since:zst)")
            if n == NZ: st.put(61, f"buffer_store_byte v{vONE}, v{vFLG}, {sr(sDBG,4)}, s{gFL} offen sc1")
            if n == NZP: st.put(61, f"buffer_load_dword v{vPOLL}, v{vL4}, {sr(sDBG,4)}, s{gIT} offen sc1 ; @zp")
            if n == NZC:
                st.put(54, "s_waitcnt vmcnt(@since:zp)")
                st.put(55, f"s_cmp_eq_u32 s{sWAVE}, 0\ns_cselect_b32 s{sT+1}, 0x01010101, 0")
                st.put(56, f"v_cmp_ne_u32 vcc, s{sT+1}, v{vPOLL}")
                st.put(60, f"s_cbranch_vccnz L_zwait{typ}")
                st.put(60, f"L_zok{typ}:")
            if n == NF-1:
                assert not any("@sst" in x[0] for x in ch.items) and NZC < NF
                st.put(63, "s_waitcnt vmcnt(@since:sst)")
                st.put(62, f"s_load_dwordx2 s[{sG}:{sG+1}], s[0:1], 64")
                st.put(59, f"s_mov_b32 s{sG+2}, 3584")
            if n == NF:
                st.put(55, f"s_add_u32 s{gIT}, s{gIT}, {WS_FLG+FL_PREP}")
                st.put(58, f"s_lshl2_add_u32 s{sT+1}, s2, s{gIT}")
                st.put(59+2*kk, f"buffer_store_dword v{vONE}, v{vFLG}, {WS}, s{sT+1} offen sc1")
            if n == NP:
                assert not ch.items
                st.put(61, f"buffer_load_dwordx4 {vr(PV,4)}, v{vL16}, {WS}, s{gIT} offen sc1 ; @prep")
            if n == NC:
                st.put(50, "s_waitcnt vmcnt(@since:prep)")
                st.put(51, f"s_cmp_eq_u32 s{sWAVE}, 0\ns_cselect_b32 s{sT+1}, 1, 0")
                st.put(54, f"v_and_b32 v{PV}, v{PV}, v{PV+1}")
                st.put(54, f"v_and_b32 v{PV+2}, v{PV+2}, v{PV+3}")
                st.put(55, f"v_and_b32 v{PV}, v{PV}, v{PV+2}")
                st.put(55, f"v_cmp_ne_u32 vcc, s{sT+1}, v{PV}")
                st.put(60, f"s_cbranch_vccnz L_prepwait{typ}")
                st.put(60, f"L_prepok{typ}:")
                st.put(56, f"v_lshrrev_b32 v{GT+16}, 4, v{vLANE}")
                st.put(56, f"v_lshlrev_b32 v{GT+16}, 5, v{GT+16}")
            if n == 30 and OPT["es"]: pk = pack_chain(); sg = es_place(st, n, pk)
            J.place(st, n, 10, XG4)
            if n == 30 and OPT["es"]: es_fill(st, n, pk, sg); print("pack left", len(pk.items), file=sys.stderr)
            if n >= 1 and ch.items:
                full = ch.items
                for k, x in enumerate(full):
                    if len(x) > 3:
                        key = f"sl{x[3]}"
                        if any(j[5] == key for j in J.jobs) or J.at[key] + OPT["sld"] > n*64+63:
                            ch.items = full[:k]; break
                        full[k] = (x[0], x[1], max(0, J.at[key] + OPT["sld"] - n*64), x[3])
                rest = full[len(ch.items):] if ch.items is not full else []
                ch.base = n*64; ch.minD = OPT["smin"]
                ch.fill(st)
                ch.items = ch.items + rest
                if typ == "K": print("substep", n, "chain left", len(ch.items), file=sys.stderr)
            elif n > NC: su.fill(st)
            if n == 19:
                s0 = Chain(setup0); s0.fill(st, 0, 33); assert not s0.items and not ch.items
            if n == 28: assert not any(j[5] == "clr" for j in J.jobs)
            if n == 28: assert not su.items
            st.emit(a)
            if OPT["tch"] and n in OPT["tg"]: a(touch(typ))
            if OPT["tch"] and n in OPT["tgs"]:
                a(f"s_cmp_eq_u32 s{sTYPE}, 0\ns_cbranch_scc0 L_tpb{typ}{n}")
                a(touch("a" + typ)); a(f"s_branch L_tpe{typ}{n}\nL_tpb{typ}{n}:"); a(touch("b" + typ)); a(f"L_tpe{typ}{n}:")
        st = substep(15, 1)
        J.place(st, 31, 2, [17, 21]); assert not J.jobs
        SG = [25, 33, 41, 49, 57, 61]
        if OPT["es"]: sg = es_place(st, 31, pk)
        else:
            for c in range(NE): kvjob(J, c, SG[c], SG[c])
        J.place(st, 0, 8, SG); assert not J.jobs
        su = Chain(setup2); su.fill(st, 30); assert not su.items
        slot_of = {pos(m, n): m*8+n for m in range(8) for n in range(8)}
        if OPT["chg"]: slot_of = {pos(m, n): (m*8+(n-4)*2+1 if n >= 4 else -1) for m in range(8) for n in range(8)}
        if OPT["es"]: es_fill(st, 31, pk, sg); pk_ = pk
        pk = []
        for c in range(0 if OPT["es"] else 32):
            e = max(slot_of[2*c], slot_of[2*c+1]) + 3
            if 20 <= c < 20+NE: e = max(e, SG[c-20]+2)
            src = []
            for h in range(2):
                p = 2*c+h
                if p < 52: src += [48+4*p+i for i in range(4)]
                else:
                    for i in range(4):
                        pk.append((f"v_accvgpr_read_b32 v{128+(p-52)*4+i}, a{208+4*(p-52)+i}", 0, e)); src.append(128+(p-52)*4+i)
            for i in range(4): pk.append((f"v_cvt_pk_bf16_f32 v{PK(c)+i}, v{src[2*i]}, v{src[2*i+1]}", 0, e))
        pk = Chain(pk); pk.fill(st)
        if OPT["es"]: pk = pk_
        for c in range(0 if OPT["es"] else NE):
            w = [g for g, v in st.fill.items() if any(x.startswith(f"v_cvt_pk_bf16_f32 v{PK(c)+3},") for x in v)]
            assert min(w) < SG[c], (c, w)
        st.emit(a)
        a("s_nop 7" if OPT["es"] else "s_nop 3")
        print("pack tail", len(pk.items), file=sys.stderr)
        pk.flush(a)
        a("s_waitcnt vmcnt(@since:bias0) lgkmcnt(8)")
        gt_ = [l.strip() for l in a.lines if l.strip().startswith("buffer_")][-80:]
        if typ == "V": assert [re.sub(r"v\[\d+:\d+\]", "", x) for x in gt_] == [re.sub(r"v\[\d+:\d+\]", "", x) for x in gtail]
        gtail = gt_
        a(f"s_cmp_eq_u32 s{sTYPE}, 0")
        a("s_cbranch_scc0 L_P1B")
        a("s_branch L_P1A")
    def unpack(nt):
        o = []
        for r in range(4):
            x = 4*r + (nt & 3); src = BIAS + BP[nt >> 2]*8 + (x >> 1)
            o.append(f"v_and_b32 v{O(nt,1)+r}, 0xffff0000, v{src}" if x & 1 else f"v_lshlrev_b32 v{O(nt,1)+r}, 16, v{src}")
        return o
    def p1_jobs(t0, step, slack=8):
        J = Jobs()
        if OPT["es"]:
            for k, c in enumerate(ENL()): kvjob(J, c, t0+k*step, t0+slack+k*step)
        else:
            for c in range(20+NE, 32): kvjob(J, c, 0, XG[c-20-NE])
            for k, c in enumerate(range(NE, 20+NE)): kvjob(J, c, t0+k*step, t0+slack+k*step)
        for i in range(20, 28): xjob(J, f"x1{i>>2}", i, XO1, (i >> 2)*64 - 134, (i >> 2)*64 - 70)
        return J
    def xwait(st, key): st.put(62, f"s_waitcnt vmcnt(@since:{key})")
    def flagjob(J, key, after, soff, delay):
        if key in J.at or any(j[5] in (after, key) for j in J.jobs): return
        t = J.at[after] + delay
        J.add(key, f"s_waitcnt vmcnt(@since:{after})\ns_barrier", f"buffer_store_dword v{vONE}, v{vFLG}, {WS}, s{soff} offen sc1", t, t+8)
    def split_chain(items, st_prev, mk_next, late_of):
        ch = Chain(items); ch.fill(st_prev)
        rest = ch.items
        for k in range(len(rest)+1):
            st = mk_next()
            c2 = Chain([(x[0], x[1]) for x in rest[k:]])
            before = {gg: len(v) for gg, v in st.fill.items()}
            c2.fill(st)
            if c2.items: continue
            where = {}
            for gg, v in st.fill.items():
                for ins in v[before.get(gg, 0):]: where[ins] = gg
            if all(where[x[0]] <= late_of(x[3]) for x in rest[k:]):
                return rest[:k], st
        raise AssertionError
    def emit_mid(mid):
        if mid: a("s_nop 3")
        Chain(mid).flush(a)
        if mid: a("s_nop 1")
    def post_groups(s, scale):
        out = []
        for qt in range(2):
            for p in range(2):
                t = vT + 16 + (qt*2+p)*4
                regs = [PA(s & 1, nt, qt) + 2*p + rr for rr in range(2) for nt in range(4)]
                ops = [f"v_mul_f32 v{r}, v{vRINV[qt]}, v{r}" for r in regs] if scale else []
                ops += [f"v_cvt_pk_bf16_f32 v{t+i}, v{regs[2*i]}, v{regs[2*i+1]}" for i in range(4)]
                out.append((ops, t))
        return out
    def post_store(s, k, t, base):
        if OPT["pr"] and base == sPSS and s < 3:
            return f"s_add_u32 s{sJT}, s{sPSG}, {(s+4*(OPT['pr'] == 1))*4096+k*1024}", f"buffer_store_dwordx4 {vr(t,4)}, v{vL16}, {WS}, s{sJT} offen{OPT['prsc']}"
        return f"s_add_u32 s{sJT}, s{base}, {s*4096+k*1024}", f"buffer_store_dwordx4 {vr(t,4)}, v{vL16}, {WS}, s{sJT} offen sc1"
    def post_place(st, s, scale, base, gaps):
        for k, (ops, t) in enumerate(post_groups(s, scale)):
            pre, ins = post_store(s, k, t, base)
            st.put(gaps[k]-1, pre); st.put(gaps[k], ins)
    def post_sched(st, s, scale, gaps):
        for k, (ops, t) in enumerate(post_groups(s, scale)):
            prev = None
            for x in ops: prev = st.add(x, [prev], 2, gaps[k]-1)
        st.schedule()
    def post_flush(s, scale, base):
        a("s_nop 5")
        for k, (ops, t) in enumerate(post_groups(s, scale)):
            for x in ops: a(x)
            for x in post_store(s, k, t, base): a(x)
    def mk_post(s):
        st = Stage(mf_post(s)); common_fill(st); return st
    def poll_issue(st, g, voff, soff, tag):
        st.put(g, f"buffer_load_dword v{vPOLL}, v{voff}, {WS}, s{soff} offen sc1 ; @{tag}")
    POLLS = []
    def poll_check(st, g, voff, soff, tag, lane0):
        st.put(g, f"s_waitcnt vmcnt(@since:{tag})")
        st.put(g, f"v_cmp_{'eq' if lane0 else 'ne'}_u32 s[{sT+4}:{sT+5}], s{sEXP}, v{vPOLL}")
        st.put(g+2, f"s_cmp_{'eq' if lane0 else 'lg'}_u64 s[{sT+4}:{sT+5}], 0\ns_cbranch_scc1 L_pw_{tag}")
        assert not ({g+1, g+2} & st.scc_busy)
        st.put(g+2, f"L_po_{tag}:")
        st.put(g+2, "s_barrier")
        POLLS.append((tag, voff, soff, lane0))
    def gsetup(st):
        t, u = sT+4, sT+5
        c = f"""
        v_min_u32 v{vPV}, 6, v{vLANE}
        v_lshl_add_u32 v{vPV}, v{vPV}, 2, 64
        v_lshrrev_b32 v{vS}, 4, v{vLANE}
        v_mul_u32_u24 v{vS}, {PS_SRC - 256}, v{vS}
        v_add_u32 v{vS}, v{vS}, v{vL16}
        v_cmp_gt_u32 s[{t}:{u}], 48, v{vLANE}
        s_lshr_b32 s{sPOLL}, s2, 2
        v_cndmask_b32 v{vS2}, v{vFLG}, v{vS}, s[{t}:{u}]
        s_lshl_b32 s{sPOLL}, s{sPOLL}, 7
        s_add_u32 s{sPOLL}, s{sPOLL}, {WS_FLG + FL_S}
        s_lshr_b32 s{t}, s2, 4
        s_mul_i32 s{sGC}, s{t}, {PS_R}
        s_bfe_u32 s{t}, s2, 0x20002
        s_mul_i32 s{u}, s{t}, {28*1024}
        s_add_u32 s{sGC}, s{sGC}, s{u}
        s_and_b32 s{t}, s{t}, {2*OPT["bal"]}
        s_xor_b32 s{t}, s{t}, s2
        s_and_b32 s{t}, s{t}, 3
        s_lshl2_add_u32 s{t}, s{sWAVE}, s{t}
        s_lshl_b32 s{u}, s{t}, 11
        s_add_u32 s{sGC}, s{sGC}, s{u}
        s_add_u32 s{sGC}, s{sGC}, {WS_PS + 16*PS_SRC}
        """
        c = [(x.strip(), 2 if "cndmask" in x else 1) for x in c.split("\n") if x.strip()]
        c.append((f"s_cmp_lt_u32 s{t}, 14\ns_cselect_b32 s{sGC}, s{sGC}, {OOB}", 1))
        c.append((f"s_cmp_lt_u32 s{sTYPE}, 2\ns_cselect_b32 s{sEVN}, 1, 0", 1))
        c = Chain(c); c.fill(st, 4); assert not c.items
    def pflag(st): st.put(62, f"s_and_b32 s{sFQ}, s{sFQ}, 0x3fffffff\ns_add_u32 s{sFQ}, s{sFQ}, 16")
    def kv2addr(st):
        st.put(2, f"v_min_u32 v{vL4}, 11, v{vLANE}"); st.put(4, f"v_lshlrev_b32 v{vL4}, 2, v{vL4}"); st.put(8, f"v_add_u32 v{vL4}, 128, v{vL4}")
    XG2 = sorted(XG + [3, 11, 19, 27, 43, 51, 59])
    XG3 = sorted(XG + [5, 13, 21, 29, 45, 53, 61])
    merge("L_P1A")
    for l in gtail: a.raw("@ghost " + l)
    stamp(2)
    if OPT["tch"] and -1 in OPT["ta"]: a(touch("A"))
    for x in unpack(0): a(x)
    a("s_nop 1")
    J = p1_jobs(OPT["kva0"], OPT["kvstep"])
    for s in range(6):
        st = Stage(mf_proj(s, "bias" if s == 0 else None)); common_fill(st)
        flagjob(J, "kvf", "kv", sFKV, OPT["fdelay"])
        J.place(st, s, OPT["cap"])
        if s == 0:
            st.put(40, f"s_waitcnt vmcnt(@since:bias1)")
            for nt in range(1, 16):
                e = XG[2*(nt-13)+1]+2 if nt >= 13 and not OPT["es"] else 0
                if nt >= 12: e = max(e, 40)
                for x in unpack(nt): st.add(x, [], e, 4*nt-3)
            st.schedule()
        if s >= 4: xwait(st, f"x1{s+1}")
        st.emit(a)
        if OPT["tch"] and s in OPT["ta"]: a(touch("A"))
    st = Stage(mf_proj(6)); common_fill(st)
    flagjob(J, "kvf", "kv", sFKV, OPT["fdelay"]); J.place(st, 6, OPT["cap"])
    items = []
    for ud in range(8):
        for qt in range(2):
            regs = [O(2*ud,qt)+i for i in range(4)] + [O(2*ud+1,qt)+i for i in range(4)]
            e = 8*ud+7+3
            for r in regs: items.append((f"v_mul_f32 v{r}, |v{r}|, v{r}", 0, e, ud))
            for i in range(4): items.append((f"v_cvt_pk_bf16_f32 v{regs[i]}, v{regs[2*i]}, v{regs[2*i+1]}", 0, e, ud))
            for i in range(4): items.append((f"v_pk_max_i16 v{regs[i]}, v{regs[i]}, 0", 0, e, ud))
    import copy
    def mk0():
        st = mk_post(0); J2 = copy.deepcopy(J); J2.place(st, 7, OPT["cap"]); assert not J2.jobs; return st
    mid, st0 = split_chain(items, st, mk0, lambda ud: 8*ud-3)
    print("H mid", len(mid), "kv last", J.at["kv"], file=sys.stderr)
    st.emit(a); emit_mid(mid)
    stamp(3)
    J = Jobs()
    for i in range(16):
        J.add("ql", f"s_add_u32 s{sJT}, s{sQST}, {i*1024}", f"buffer_load_dwordx4 {ar(4*i,4)}, v{vL16}, {WS}, s{sJT} offen sc1 ; @ql", OPT["qa"]+4, 6*64+OPT["qe"]-(15-i)*4)
    for s in range(7):
        st = st0 if s == 0 else mk_post(s)
        if s == 2: poll_issue(st, 3, vL4, sFKVP, "kva"); poll_check(st, 58, vL4, sFKVP, "kva", False)
        if s == 3: kv2addr(st)
        if s == (OPT["qa"]-55) >> 6: poll_issue(st, (OPT["qa"]-55) & 63, vFLG, sFQ, "qa")
        if s == OPT["qa"] >> 6: poll_check(st, OPT["qa"] & 63, vFLG, sFQ, "qa", True)
        if s == 1: st.put(2, f"s_lshl2_add_u32 s{sT+1}, s{sQI}, 4\ns_cmp_eq_u32 s{sU1}, s{sT+1}\ns_cselect_b32 s{sTYPE}, 4, 0")
        gaps = [9, 25, 41, 57] if s < 6 else [41, 49, 57, 59]
        pk_ = s-1 in OPT["park"]
        if s >= 1 and not pk_: post_place(st, s-1, False, sPSG, gaps)
        J.place(st, s, OPT["qcap"], XG2)
        if pk_:
            for k, (ops, t) in enumerate(post_groups(s-1, False)):
                for i, x in enumerate(ops):
                    c_ = st.add(x, [], 2, 60)
                    st.add(f"v_accvgpr_write_b32 a{128+(s-1)*16+k*4+i}, v{t+i}", [c_], 2, 62)
            st.schedule()
        elif s >= 1: post_sched(st, s-1, False, gaps)
        if s == 1: gsetup(st)
        if s == 5: pflag(st)
        st.emit(a)
    assert not J.jobs
    def mk_F(qb, tag, pre=None):
        st = Stage(mf_qk(0, 0, qb, True) + mf_qk(1, 1, qb, True)); common_fill(st)
        if pre: pre(st)
        place_sm(st, 0, 35, 62, tag, ladd=False, first=True)
        st.schedule()
        return st
    def finit():
        return [(f"v_mov_b64 {vr(NEGM(0)+2*i,2)}, 0", 0) for i in range(4)] + [(f"v_mov_b64 {vr(vL[0],2)}, 0", 0),
                (f"v_mov_b32 v{vBIG}, {f2u(-1e30):#x}", 0), (f"v_mov_b32 v{vBIG+1}, v{vBIG}", 0), (f"s_mov_b32 s{sFIRST}, 1", 1), (f"s_mov_b32 s{sCLAMP}, {f2u(-3e38):#x}", 1)]
    def f_end(tag, nxt, endl):
        if tag in OPT["inf"]:
            hi, lo = f2u(2.0**OPT["thr"]), f2u(2.0**-OPT["thr"])
            a(f"""
            s_cbranch_vccz L_fok_{tag}
            s_add_u32 s{sT+1}, s{sND}, 1
            v_cndmask_b32 v{vT+14}, v{vSUM[0][0]}, 1.0, s[{sMASK}:{sMASK+1}]
            s_cmp_gt_u32 s{sN}, s{sT+1}
            s_cbranch_scc1 L_fok_{tag}
            v_subrev_u32 v{vT+14}, {lo:#x}, v{vT+14}
            v_max_u32 v{vT+14}, v{vT+14}, v{vT+15}
            v_cmp_lt_u32 vcc, {hi-lo:#x}, v{vT+14}
            s_cmp_lt_u32 s{sN}, s{sT+1}
            s_cbranch_scc1 L_fchk_{tag}
            s_nop 2
            """)
        a(f"s_cbranch_vccnz L_fchk_{tag}")
        a.label(f"L_fok_{tag}")
        STUBS.append((f"L_fchk_{tag}", "L_fchk", f"L_fok_{tag}"))
        a(f"s_mov_b32 s{sFIRST}, 0")
        a(f"s_mov_b32 s{sCLAMP}, 0")
        if endl:
            a(f"s_cmp_eq_u32 s{sCNT}, 0")
            a(f"s_cbranch_scc1 {endl}")
        if nxt == "L_peelA": peelA()
        elif nxt: a(f"s_branch {nxt}")
    def peelA():
        todo = [(s_, k) for s_ in OPT["park"] for k in range(4)]
        n = OPT["pst_n"]
        ns = (len(todo) + n - 1)//n + 2
        ns += ns & 1
        for i in range(ns):
            b = (i & 1) ^ 1
            st = Stage(mf_pv(0, b^1, i == 0) + mf_qk(1, b^1, 0)); common_fill(st)
            for g in {1: [25], 2: [17, 49], 3: [9, 25, 49], 4: [9, 25, 41, 57]}[n]:
                if not todo: break
                s_, k = todo.pop(0)
                st.put(g-1, f"s_add_u32 s{sJT}, s{sPSG}, {s_*4096+k*1024}")
                st.put(g, f"buffer_store_dwordx4 {ar(128+s_*16+k*4,4)}, v{vL16}, {WS}, s{sJT} offen sc1 ; @ps")
            if i == ns-1:
                st.put(56, "s_waitcnt vmcnt(@since:ps)")
                st.put(57, f"buffer_store_dword v{vONE}, v{vFLG}, {WS}, s{sFSG} offen sc1")
                st.put(2, f"s_add_u32 s{sN}, s{sN}, {ns+1}")
                st.put(4, f"s_sub_u32 s{sCNT}, s{sCNT}, {ns//2}")
            place_sm(st, b, 0, 62, f"pa{i}", mask=False); st.schedule()
            if st.over or st.tail: print("peelA over", i, st.over, len(st.tail), file=sys.stderr)
            st.emit(a)
            a(f"s_cbranch_vccnz L_dorare_pa{i}")
            a.label(f"L_norare_pa{i}")
            STUBS.append((f"L_dorare_pa{i}", f"L_rare{b}", f"L_norare_pa{i}"))
        a("s_branch L_steady0")
    a("s_nop 5")
    for ops, t in post_groups(6, False):
        for x in ops: a(x)
    a("s_waitcnt vmcnt(@since:ql)")
    stamp(4)
    def pre_fa1(st):
        post_place(st, 6, False, sPSG, [9, 17, 25, 33])
        poll_issue(st, 1, vL4, sFKVP, "kv2a"); poll_check(st, 58, vL4, sFKVP, "kv2a", False)
    st = mk_F(0, "fa1", pre_fa1)
    c = Chain(finit()); c.fill(st, 0, 30); assert not c.items
    st.emit(a)
    f_end("fa1", "L_peelA", None)
    merge("L_P1B")
    for l in gtail: a.raw("@ghost " + l)
    stamp(2)
    J = p1_jobs(OPT["kvb0"], OPT["kvstepb"], 200)
    for i in range(28):
        p = i >> 2
        xjob(J, f"x2{p}", i, XO2, max(p+1, 3)*64, (7+p)*64 - 134, 4)
    for i in range(16):
        qt, ud = i & 1, i >> 1
        J.add("qs", f"s_add_u32 s{sJT}, s{sQST}, {(qt*8+ud)*1024}", f"buffer_store_dwordx4 {ar(Q(0,qt,ud),4)}, v{vL16}, {WS}, s{sJT} offen{OPT['kvsc']} ; @qs",
              7*64 if ud < 5 else 8*64, 7*64+20+i*OPT["qstep"])
    def bstage(gs):
        s = gs % 7
        st = Stage(mf_proj(s, "zero" if gs % 7 == 0 else None))
        nod = 3 <= gs <= 7
        common_fill(st, dma=not nod, nd={3: 16, 4: 8, 5: 0}.get(gs), novm=(6 <= gs <= 10), rdl=(gs == 7))
        if gs == 9: poll_issue(st, 3, vL4, sFKVP, "kvb"); poll_check(st, 58, vL4, sFKVP, "kvb", False)
        if gs == 10: kv2addr(st)
        if gs == 1:
            st.put(2, f"s_cmp_gt_u32 s{sN}, 34\ns_cselect_b32 s{sT+1}, 34, 2")
            st.put(4, f"v_and_b32 v{vT}, 4, v{vLANE}"); st.put(8, f"v_mul_u32_u24 v{vT}, s{sT+1}, v{vT}"); st.put(10, f"v_or_b32 v{vL4}, v{vL4}, v{vT}")
        flagjob(J, "kvf", "kv", sFKV, OPT["fdelay"]); flagjob(J, "qf", "qs", sFQ, OPT["qfd"])
        if nod: J.place(st, gs, OPT["capn"], XG3)
        elif gs == 8: J.place(st, gs, OPT["capq"], XG2)
        else: J.place(st, gs, OPT["capb"])
        if gs == 12: assert not J.jobs and max(J.at.values()) < 12*64; gsetup(st); pflag(st)
        if gs in (4, 5): xwait(st, f"x1{gs+1}")
        if 6 <= gs < 13: xwait(st, f"x2{gs-6}")
        return st
    def btouch(gs):
        for _ in range(OPT["tb"].count(gs) if OPT["tch"] else 0): a(touch("B"))
    btouch(-1)
    for gs in range(6): bstage(gs).emit(a); btouch(gs)
    def q_items(qb):
        items = []; cnt = 0
        for ud in range(8):
            blk = ud >> 1
            for qt in range(2):
                e = 16*blk+15+3
                t = vT + 16 + (cnt % 4)*4; cnt += 1
                for i in range(4):
                    jp = 2*(ud & 1) + (i >> 1); tl = 4*blk + 2*(i & 1)
                    items.append((f"v_cvt_pk_bf16_f32 v{t+i}, v{O(tl,qt)+jp}, v{O(tl+1,qt)+jp}", 0, e, 2*blk))
                for i in range(4): items.append((f"v_accvgpr_write_b32 a{Q(qb,qt,ud)+i}, v{t+i}", 0, e, 99 if ud >= 5 else -1))
        return items
    st = bstage(6); st7 = bstage(7)
    mid, st0 = split_chain(q_items(0), st, lambda: copy.deepcopy(st7), lambda ud: 8*ud-1)
    print("E1 mid", len(mid), file=sys.stderr)
    st.emit(a); btouch(6); emit_mid(mid)
    stamp(3)
    st0.emit(a); btouch(7)
    for gs in range(8, 13): bstage(gs).emit(a); btouch(gs)
    st = bstage(13)
    assert not J.jobs
    print("B jobs", {k: (v >> 6, v & 63) for k, v in J.at.items()}, file=sys.stderr)
    def mk_fa2():
        STUBS[:] = [x for x in STUBS if "fa2" not in x[0]]
        POLLS[:] = [x for x in POLLS if x[0] != "kv2b"]
        def pre(st): poll_issue(st, 1, vL4, sFKVP, "kv2b"); poll_check(st, 58, vL4, sFKVP, "kv2b", False)
        st = mk_F(0, "fa2", pre); c = Chain(finit()); c.fill(st, 0, 30); return st
    mid, st0 = split_chain(q_items(128), st, mk_fa2, lambda ud: 60)
    print("E2 mid", len(mid), file=sys.stderr)
    st.emit(a); emit_mid(mid)
    qi_ = q_items(128); q_rest = qi_[qi_.index(mid[-1])+1:]
    btouch(13)
    stamp(4)
    a(f"s_cmp_eq_u32 s{sU1}, 0")
    a("s_cbranch_scc1 L_b0")
    st0.emit(a)
    f_end("fa2", None, "L_u2")
    def steady(b, qb, tag, czero=False, pre=None, last=False):
        st = Stage(mf_pv(0, b^1, czero) + mf_qk(1, b^1, qb)); common_fill(st, rk=OPT["kz"] and not pre)
        if b == 1 and not last: st.put(1, f"buffer_load_dword v{vPOLL}, v{vPV}, {WS}, s{sPOLL} offen sc1")
        if tag == "z1":
            st.put(OPT["pfg"]-1, "s_waitcnt vmcnt(@since:pts)")
            st.put(OPT["pfg"], f"buffer_store_dword v{vONE}, v{vFLG}, {WS}, s{sFQ} offen sc1")
        if pre: pre(st)
        if b == 0 and not last:
            st.put(56, f"s_sub_u32 s{sCNT}, s{sCNT}, 1")
            st.put(58, f"s_cmp_lg_u32 s{sCNT}, s{sEV}")
            st.scc_busy |= set(range(58, 64))
        place_sm(st, b, 0, 62, tag); st.schedule()
        if st.over or st.tail: print("steady over", tag, st.over, len(st.tail), file=sys.stderr)
        st.emit(a)
        a(f"s_cbranch_vccnz L_dorare_{tag}")
        a.label(f"L_norare_{tag}")
        STUBS.append((f"L_dorare_{tag}", f"L_rare{b}", f"L_norare_{tag}"))
    def loop(qb, n):
        a.label(f"L_s1z{n}")
        steady(1, qb, f"z{n}", True)
        a(f"s_branch L_mid{n}")
        merge(f"L_steady{n}", True)
        steady(1, qb, f"s1{n}")
        merge(f"L_mid{n}")
        steady(0, qb, f"s0{n}")
        a(f"s_cbranch_scc1 L_steady{n}")
        a.label(f"L_exit{n}")
    def gvar(qb, n):
        merge(f"L_gv{n}")
        a(f"""
        s_mov_b32 s{sEV}, s{sEVN}
        s_waitcnt vmcnt(16)
        v_cmp_ne_u32 vcc, 1, v{vPOLL}
        s_add_u32 s{sT+3}, s{sGC}, {4*PS_SRC}
        s_nop 3
        s_cbranch_vccnz L_pw_gv{n}
        L_po_gv{n}:
        s_cmp_eq_u32 s{sEV}, 0
        s_cselect_b32 s{sPOLL}, {OOB}, s{sFQ}
        v_mov_b32 v{vPV}, v{vFLG}
        """)
        POLLS.append((f"gv{n}", vPV, sPOLL, False))
        for b in (1, 0):
            def pre(st):
                for k, g in enumerate(OPT["ptg"]):
                    i = (1-b)*8+k; og, p, sg = i >> 2, (i >> 1) & 1, i & 1
                    st.put(g, f"buffer_load_dwordx4 {ar(GL+i*4,4)}, v{(vS, vS2)[sg]}, {WS}, s{(sGC, sT+3)[sg]} offen offset:{p*1024+og*256} sc1")
            steady(b, qb, f"gv{b}{n}", pre=pre)
        a(f"s_cbranch_scc1 L_steady{n}")
        a(f"s_branch L_exit{n}")
    loop(0, 0)
    a(f"s_cmp_eq_u32 s{sCNT}, 0")
    a("s_cbranch_scc1 L_end0")
    a(f"s_cmp_eq_u32 s{sEV}, 1")
    a(f"s_mov_b32 s{sEV}, 0")
    a("s_cbranch_scc1 L_ptl")
    gvar(0, 0)
    a.label("L_u2")
    for i in range(64): a(f"v_mov_b64 {vr(O0+2*i,2)}, 0")
    merge("L_end0")
    a(f"s_cmp_ge_u32 s{sTYPE}, 2")
    a("s_cbranch_scc1 L_lpack")
    a.label("L_ptl")
    a(f"""
    s_waitcnt vmcnt(16)
    v_cmp_ne_u32 vcc, 1, v{vPOLL}
    s_add_u32 s{sT+3}, s{sPT}, 16384
    s_cmp_eq_u32 s{sCNT}, 0
    s_cbranch_scc1 L_ptb
    s_bitcmp1_b32 vcc_lo, 0
    s_cbranch_scc1 L_steady0
    buffer_load_dwordx4 {vr(vSTB,4)}, v{vL16}, {WS}, s{sT+3} offen sc1
    """)
    for b in (1, 0):
        def pre(st):
            for k, g in enumerate(OPT["ptg"]):
                i = (1-b)*8+k
                if i % 4 == 0: st.put(g-1, f"s_add_u32 s{sT+3}, s{sPT}, {i*1024}")
                st.put(g, f"buffer_load_dwordx4 {ar(128+4*i,4)}, v{vL16}, {WS}, s{sT+3} offen offset:{(i&3)*1024} sc1")
        steady(b, 0, f"pt{b}", pre=pre, last=True)
    a("s_branch L_ln")
    merge("L_ptb")
    a("s_bitcmp1_b32 vcc_lo, 0")
    a("s_cbranch_scc1 L_pw_pt")
    a.label("L_po_pt")
    POLLS.append(("pt", vFLG, sFQ, True))
    a(f"@@buffer_load_dwordx4 {vr(vSTB,4)}, v{vL16}, {WS}, s{sT+3} offen sc1")
    for i in range(16):
        if i % 4 == 0: a(f"s_add_u32 s{sT+3}, s{sPT}, {i*1024}")
        a(f"buffer_load_dwordx4 {ar(128+4*i,4)}, v{vL16}, {WS}, s{sT+3} offen offset:{(i&3)*1024} sc1 ; @ptl")
    a.label("L_ln")
    def pack_items(e0, step):
        items = []
        for ud in range(8):
            for qt in range(2):
                regs = [O(2*ud,qt)+i for i in range(4)] + [O(2*ud+1,qt)+i for i in range(4)]
                for i in range(4): items.append((f"v_cvt_pk_bf16_f32 v{regs[i]}, v{regs[2*i]}, v{regs[2*i+1]}", 0, e0+step*ud, ud))
        return items
    def mk_L(tag):
        st = Stage(mf_pv(0, 0) + mf_pv(1, 1)); common_fill(st)
        place_sm(st, 1, 0, 30, tag); st.schedule()
        st.put_post(31, f"s_cbranch_vccnz L_dorare_{tag}")
        st.put_post(31, f"L_norare_{tag}:")
        STUBS.append((f"L_dorare_{tag}", "L_rare1", f"L_norare_{tag}"))
        st.put(32, f"v_add_f32 v{vL[0]}, v{vL[0]}, v{vSUM[0][0]}")
        st.put(34, f"v_add_f32 v{vL[1]}, v{vL[1]}, v{vSUM[1][0]}")
        return st
    st = mk_L("ln")
    c = [(f"v_bfe_u32 v{vT+20}, v{vLANE}, 2, 2", 0), (f"v_lshrrev_b32 v{vT+21}, 4, v{vLANE}", 0), (f"v_cmp_eq_u32 s[{sT+4}:{sT+5}], v{vT+20}, v{vT+21}", 0),
         (f"v_and_b32 v{vT+20}, 3, v{vLANE}", 0), (f"v_lshlrev_b32 v{vT+20}, 4, v{vT+20}", 0), (f"v_mov_b32 v{vT+22}, 0x3f80", 0), (f"v_mov_b32 v{vT+23}, 0", 0),
         (f"v_cndmask_b32 v{vT+22}, 0, v{vT+22}, s[{sT+4}:{sT+5}]", 1), (f"v_lshlrev_b64 {vr(vSEL+2,2)}, v{vT+20}, {vr(vT+22,2)}", 0),
         (f"v_mov_b64 {vr(vSEL,2)}, 0", 0), (f"v_mov_b64 {vr(vSEL+4,2)}, 0", 0),
         ("s_waitcnt vmcnt(@since:ptl)", 1, 55),
         (f"v_cmp_neq_f32 vcc, v{NEGM(0)}, v{vSTB}", 1), (f"v_cmp_neq_f32 s[{sT+4}:{sT+5}], v{NEGM(1)}, v{vSTB+1}", 0)]
    c = Chain(c); c.fill(st, 35); assert not c.items
    st.emit(a)
    a(f"s_or_b64 vcc, vcc, s[{sT+4}:{sT+5}]")
    a("s_cbranch_scc1 L_slowcomb")
    a.label("L_comb")
    stamp(5)
    mf = []
    for ud in range(8):
        for h in range(2):
            for qt in range(2):
                d = vr(O(2*ud+h,qt),4)
                mf.append(f"{MF} {d}, {vr(vSEL+2-2*h,4)}, {ar(128+(ud*2+qt)*4,4)}, {d}")
    st = Stage(mf)
    st.put(0, f"v_add_f32 v{vL[0]}, v{vL[0]}, v{vSTB+2}")
    st.put(0, f"v_add_f32 v{vL[1]}, v{vL[1]}, v{vSTB+3}")
    c = Chain(pack_items(6, 4)); c.fill(st, 0, 31)
    st.emit(a)
    a("s_nop 5")
    c.flush(a)
    a("s_branch L_post2")
    merge("L_lpack")
    st = mk_L("lp")
    c = Chain([(f"v_mov_b32 v{vSTAT}, v{NEGM(0)}", 0), (f"v_mov_b32 v{vSTAT+1}, v{NEGM(1)}", 0), (f"v_mov_b64 {vr(vSTAT+2,2)}, {vr(vL[0],2)}", 0)] + pack_items(38, 4))
    c.fill(st, 35)
    st.put(62, f"s_cmp_eq_u32 s{sTYPE}, 2")
    st.emit(a)
    a("s_nop 5")
    print("Lpack tail", len(c.items), file=sys.stderr)
    c.flush(a)
    a("s_cbranch_scc0 L_post2b")
    a.label("L_seg2")
    stamp(5)
    a(f"""
    s_mov_b32 s{sTYPE}, 3
    s_mov_b32 s{sN}, 0
    s_sub_u32 s{sND}, 15, s{sQI}
    s_lshl_b32 s{sND}, s{sND}, 2
    s_add_u32 s{sND}, s{sND}, s{sWAVE}
    s_lshr_b32 s{sCNT}, s{sU2}, 1
    s_sub_u32 s{sCNT}, s{sCNT}, 1
    s_sub_u32 s{sEV}, 7, s{sJ}
    s_add_u32 s{sT+3}, s{sPT}, 16384
    buffer_store_dwordx4 {vr(vSTAT,4)}, v{vL16}, {WS}, s{sT+3} offen sc1
    """)
    def pre_fb(st): poll_issue(st, 1, vL4, sFKVP, "kv2c"); poll_check(st, 58, vL4, sFKVP, "kv2c", False)
    st = mk_F(128, "fb", pre_fb)
    c = []
    for i in range(16):
        if i % 4 == 0: c.append((f"s_add_u32 s{sT+3}, s{sPT}, {i*1024}", 1))
        c.append((f"buffer_store_dwordx4 {vr(O(2*(i>>1),i&1),4)}, v{vL16}, {WS}, s{sT+3} offen offset:{(i&3)*1024}{OPT['kvsc']} ; @pts", 1))
    c = Chain(c); c.fill(st)
    c2 = Chain(finit()); c2.fill(st, 0, 30); assert not c2.items
    print("Fb leftover", len(c.items), file=sys.stderr)
    st.emit(a)
    c.flush(a)
    f_end("fb", None, "L_end")
    loop(128, 1)
    a(f"s_cmp_eq_u32 s{sCNT}, 0")
    a("s_cbranch_scc1 L_lpack")
    gvar(128, 1)
    a.label("L_post2b")
    merge("L_post2")
    stamp(6)
    if OPT["pr"]:
        a(f"s_bitcmp1_b32 s{sHEAD}, 0\ns_cselect_b32 s{sPSG}, {-PS_SRC}, s{sHEAD}\ns_cselect_b32 s{sPSG}, s{sPSG}, {PS_SRC}\ns_add_u32 s{sPSG}, s{sPSG}, s{sPSS}")
    a("s_nop 1")
    CO, FP, XO, BO = sU2, sW0, sCNT, sN
    CS = [sU1, sEV, sND, sPT]
    vXO, vBO, vFS = 44, 45, 48
    XB, BB, SEL = 96, 104, 112
    fpc = f"s_lshl_b32 s{FP}, s{FP}, 7\ns_add_u32 s{FP}, s{FP}, {WS_FLG + FL_S}"
    if OPT["fsep"]:
        fpc = f"""s_and_b32 s{FP}, s{FP}, 3
        s_lshr_b32 s{BO}, s{sJ}, 3
        s_mul_i32 s{BO}, s{BO}, 7
        s_xor_b32 s{BO}, s{BO}, 7
        s_xor_b32 s{BO}, s{BO}, s{sJ}
        s_lshl_b32 s{BO}, s{BO}, 6
        s_add_u32 s{FP}, s{FP}, s{BO}
        s_mul_i32 s{FP}, s{FP}, {OPT["fsep"]}
        s_add_u32 s{FP}, s{FP}, {WS_FLG + FL_S3}"""
    fs = f"""
    s_load_dwordx2 s[{sSA}:{sSA+1}], s[0:1], 0
    s_load_dwordx2 s[{sG}:{sG+1}], s[0:1], 80
    s_load_dwordx2 s[{sSB}:{sSB+1}], s[0:1], 88
    s_mov_b32 s{sSA+2}, {2048*896}
    s_mov_b32 s{sSB+2}, {2048*896}
    s_mov_b32 s{sG+2}, 896
    s_lshr_b32 s{FP}, s2, 2
    s_and_b32 s{sT}, s{FP}, {2*OPT["bal"]}
    s_xor_b32 s{sT}, s{sT}, s2
    s_and_b32 s{sT}, s{sT}, 3
    s_lshl2_add_u32 s{sT}, s{sWAVE}, s{sT}
    s_sub_u32 s{CO}, s{sGC}, {16*PS_SRC}
    s_mul_i32 s{XO}, s{FP}, {32*896}
    {fpc}
    s_lshr_b32 s{BO}, s{sT}, 1
    s_lshl_b32 s{BO}, s{BO}, 7
    s_add_u32 s{XO}, s{XO}, s{BO}
    s_and_b32 s{sT+4}, s{sT}, 1
    s_mul_i32 s{sT+4}, s{sT+4}, {16*896}
    s_add_u32 s{XO}, s{XO}, s{sT+4}
    v_and_b32 v{vXO}, 15, v{vLANE}
    v_mul_u32_u24 v{vFS}, {4*OPT["fsep"] or 4}, v{vXO}
    v_lshrrev_b32 v{vBO}, 4, v{vLANE}
    v_lshlrev_b32 v{vBO}, {3+OPT["o4"]}, v{vBO}
    v_and_b32 v{vS2}, 1, v{vLANE}
    v_mul_u32_u24 v{vS2}, 0xffff, v{vS2}
    v_add_u32 v{vS2}, 1, v{vS2}
    v_mul_u32_u24 v{vS2}, 0x3f80, v{vS2}
    v_lshrrev_b32 v{vXO}, 1, v{vXO}
    """
    fs = [(x.strip(), 1) for x in fs.split("\n") if x.strip()]
    fsS = [x for x in fs if x[0][0] == "s"]; fs = [(x[0], 0) for x in fs if x[0][0] == "v"]
    for k in range(8):
        fs += [(f"v_cmp_eq_u32 s[{sT+4}:{sT+5}], {k}, v{vXO}", 1), (f"v_cndmask_b32 v{SEL+k}, 0, v{vS2}, s[{sT+4}:{sT+5}]", 2)]
    fs += [(x, 1) for x in (f"v_and_b32 v{vXO}, 15, v{vLANE}", f"v_mul_u32_u24 v{vXO}, 896, v{vXO}", f"v_add_u32 v{vXO}, v{vXO}, v{vBO}")]
    fs += fsS
    fs.append((f"s_cmp_lt_u32 s{sT}, 14\ns_cselect_b32 s{XO}, s{XO}, {OOB}", 1))
    fs.append((f"s_lshr_b32 s{sEXP}, s{sT}, 1", 1))
    if OPT["pr"]:
        fs += [(f"s_cmp_lt_u32 s{sEXP}, 3\ns_cselect_b32 s{sT+4}, 16384, 0", 1), (f"s_add_u32 s{CO}, s{CO}, s{sT+4}", 1),
               (f"s_cmp_gt_u32 s{sEXP}, 3\ns_cselect_b32 s{sT+4}, {PS_SRC}, 0", 1), (f"s_add_u32 s{CO}, s{CO}, s{sT+4}", 1),
               (f"v_lshrrev_b32 v{vS}, 4, v{vLANE}", 1), (f"v_mul_u32_u24 v{vS}, {2*PS_SRC - 256}, v{vS}", 1), (f"v_add_u32 v{vS}, v{vS}, v{vL16}", 1),
               (f"s_mov_b32 s{CS[0]}, s{CO}", 1), (f"s_add_u32 s{CS[1]}, s{CO}, {8*PS_SRC}", 1), (f"s_add_u32 s{CS[2]}, s{CO}, {PS_SRC}", 1), (f"s_add_u32 s{CS[3]}, s{CO}, {9*PS_SRC}", 1),
               (f"s_cmp_eq_u32 s{sEXP}, 3\ns_cselect_b32 s{CS[2]}, s{CS[2]}, {OOB}\ns_cselect_b32 s{CS[3]}, s{CS[3]}, {OOB}", 1),
               (f"s_or_b32 s{sEXP}, s{sEXP}, 4", 1), (f"s_cmp_eq_u32 s{sEXP}, 7\ns_cselect_b32 s{sEXP}, 3, s{sEXP}", 1)]
    else: fs += [(f"s_add_u32 s{CS[k]}, s{CO}, {4*k*PS_SRC}", 1) for k in range(4)]
    fs = Chain(fs)
    J = Jobs()
    glate = []
    for k in range(2*OPT["o4"]):
        J.add("gl", None, f"buffer_load_dwordx4 {vr(XB+4*k,4)}, v{vXO}, {sr(sSA,4)}, s{XO} offen offset:{k*64}", 3*64, 7*64)
        J.add("gl", None, f"buffer_load_dwordx4 {vr(BB+4*k,4)}, v{vBO}, {G}, s{BO} offen offset:{k*64} ; @gl", 3*64, 7*64)
    for k in range(4-4*OPT["o4"]):
        J.add("gl", None, f"buffer_load_dwordx2 {vr(XB+2*k,2)}, v{vXO}, {sr(sSA,4)}, s{XO} offen offset:{k*32}", 3*64, 7*64)
        J.add("gl", None, f"buffer_load_dwordx2 {vr(BB+2*k,2)}, v{vBO}, {G}, s{BO} offen offset:{k*32} ; @gl", 3*64, 7*64)
    for s in range(7):
        st = Stage(mf_post(s)); common_fill(st, dma=(s < 3), nd=(None, None, None, 16, 8, 0, 0)[s], last=(s == 6))
        if s == 0:
            c = xlane_ops("v_add_f32", vL[0], vT) + xlane_ops("v_add_f32", vL[1], vT) + [(f"v_rcp_f32 v{vRINV[0]}, v{vL[0]}", 0), (f"v_rcp_f32 v{vRINV[1]}, v{vL[1]}", 1)]
            c = Chain(c); c.fill(st); assert not c.items
            fs.fill(st)
        else:
            gaps = [17, 33, 49, 57]
            post_place(st, s-1, True, sPSS, gaps)
            if s == 2: st.put(60, "s_waitcnt lgkmcnt(0)")
            for t_, b_ in OPT["lvl"]:
                if s != t_ >> 6: continue
                st.put((t_ & 63)-2, f"v_mov_b32 v{vPV}, {b_+1}")
                st.put((t_ & 63)-1, f"s_waitcnt vmcnt(@since:ps{b_})")
                st.put(t_ & 63, f"buffer_store_dword v{vPV}, v{vFLG}, {WS}, s{sFSS} offen sc1")
            if s == 6 and OPT["dp"] is not None: st.put(OPT["ep"], f"buffer_load_dword v{vPOLL}, v{vFS}, {WS}, s{FP} offen sc1 ; @ep")
            if s == 6 and OPT["epoll"]: st.put(OPT["epoll"], f"buffer_load_dword v{vPOLL}, v{vFS}, {WS}, s{FP} offen sc1 ; @ep")
            if OPT["pr"] and s >= 4:
                st.put(4, f"s_add_u32 s{sT+3}, s{sPSS}, {(s-4*(OPT['pr'] == 2))*4096}")
                for k, g in enumerate((5, 21, 37, 53)): st.put(g, f"buffer_load_dwordx4 {ar((s-4)*16+k*4,4)}, v{vL16}, {WS}, s{sT+3} offen offset:{k*1024}{OPT['prld']}")
            J.place(st, s, 4, [1, 9, 13, 25, 29, 41, 45, 61])
            post_sched(st, s-1, True, gaps)
            fs.fill(st, 0, 63 if s == 1 else 58)
            if s == 2: assert not fs.items, len(fs.items)
        st.emit(a)
    assert not J.jobs
    post_flush(6, True, sPSS)
    stamp(7)
    a(f"s_mov_b32 s{sT+6}, 0xffff0000")
    a(f"s_mov_b32 s{sT+7}, {f2u(-1.4426950408889634):#x}")
    LB = 128
    GA, SA_, XF = 12, 64, 80
    def rnd_pair(r0, r1, t):
        a(f"v_cvt_pk_bf16_f32 v{t}, v{r0}, v{r1}")
        a(f"v_lshlrev_b32 v{r0}, 16, v{t}")
        a(f"v_and_b32 v{r1}, s{sT+6}, v{t}")
    T1, T2, T3 = 2, 3, 4
    def flag():
        for b_ in OPT["lve"] + [6]:
            a(f"v_mov_b32 v{(vPV, vS2)[b_ & 1]}, {b_+1}")
            a(f"s_waitcnt vmcnt(@since:ps{b_})")
            a(f"buffer_store_dword v{(vPV, vS2)[b_ & 1]}, v{vFLG}, {WS}, s{sFSS} offen sc1 ; @ps6")
    def gmath(fpos, mid=None):
        for n in range(16):
            d = vr(GA+(n >> 2)*4, 4)
            a(f"{MF} {d}, {vr(SEL+((n >> 1) & 1)*4,4)}, {ar(GL+n*4,4)}, {d if n & 3 else 0}")
        for i in range(8):
            a(f"v_lshlrev_b32 v{XF+2*i}, 16, v{XB+i}")
            a(f"v_and_b32 v{XF+2*i+1}, s{sT+6}, v{XB+i}")
        for i in range(8):
            g0, g1 = GA+2*i, GA+2*i+1
            if i == fpos: flag()
            if i == 2 and mid: a(mid)
            rnd_pair(g0, g1, T1)
            a(f"v_lshlrev_b32 v{T2}, 16, v{BB+i}")
            a(f"v_and_b32 v{T3}, s{sT+6}, v{BB+i}")
            a(f"v_add_f32 v{g0}, v{g0}, v{T2}")
            a(f"v_add_f32 v{g1}, v{g1}, v{T3}")
            rnd_pair(g0, g1, T1)
            a(f"v_mul_f32 v{T2}, s{sT+7}, v{g0}")
            a(f"v_mul_f32 v{T3}, s{sT+7}, v{g1}")
            a(f"v_exp_f32 v{T2}, v{T2}")
            a(f"v_exp_f32 v{T3}, v{T3}")
            a("s_nop 0")
            a(f"v_add_f32 v{T2}, 1.0, v{T2}")
            a(f"v_add_f32 v{T3}, 1.0, v{T3}")
            a(f"v_rcp_f32 v{T2}, v{T2}")
            a(f"v_rcp_f32 v{T3}, v{T3}")
            a("s_nop 0")
            a(f"v_mul_f32 v{g0}, v{g0}, v{T2}")
            a(f"v_mul_f32 v{g1}, v{g1}, v{T3}")
            rnd_pair(g0, g1, T1)
    def floads():
        for n in range(32):
            og, p, sg = n >> 3, (n >> 2) & 1, n & 3
            if OPT["fcap"] and n >= OPT["fcap"]: a(f"s_waitcnt vmcnt({OPT['fcap']-1})")
            a(f"buffer_load_dwordx4 {vr(LB+n*4,4)}, v{vS}, {WS}, s{CS[sg]} offen offset:{p*1024+og*256} sc1 ; @f{n}")
    def fin(og):
        for i in (2*og, 2*og+1):
            g0, g1, s0, s1 = GA+2*i, GA+2*i+1, SA_+2*i, SA_+2*i+1
            rnd_pair(s0, s1, T1)
            a(f"v_mul_f32 v{g0}, v{g0}, v{s0}")
            a(f"v_mul_f32 v{g1}, v{g1}, v{s1}")
            rnd_pair(g0, g1, T1)
            a(f"v_add_f32 v{g0}, v{g0}, v{XF+2*i}")
            a(f"v_add_f32 v{g1}, v{g1}, v{XF+2*i+1}")
            a(f"v_cvt_pk_bf16_f32 v{XB+i}, v{g0}, v{g1}")
        if OPT["o4"]:
            if og & 1: a(f"buffer_store_dwordx4 {vr(XB+2*og-2,4)}, v{vXO}, {sr(sSB,4)}, s{XO} offen offset:{og*32-32}{OPT['outsc']}")
            return
        a(f"buffer_store_dwordx2 {vr(XB+2*og,2)}, v{vXO}, {sr(sSB,4)}, s{XO} offen offset:{og*32}{OPT['outsc']}")
    if OPT["dp"] is not None:
        WAIT, FLY, NEW, NF, NFC, NA, CNT = sCLAMP, sFIRST, sTYPE, sXOFF, sXOF2, sT+3, sT+1
        lvl = OPT["lvl"][-1][1] if OPT["dp"] < 7 else 7
        assert lvl + 1 >= OPT["dp"]
        def gloads(sg):
            for k in range(8):
                og, p = k >> 1, k & 1
                if OPT["fcap"]: a(f"s_waitcnt vmcnt({OPT['fcap']-1})")
                a(f"buffer_load_dwordx4 {vr(LB+sg*32+k*4,4)}, v{vS}, {WS}, s{CS[sg]} offen offset:{p*1024+og*256} sc1")
        pl = f"buffer_load_dword v{vPOLL}, v{vFS}, {WS}, s{FP} offen sc1"
        def flags():
            a(f"""
            v_cmp_ge_u32 vcc, s{sLN}, v{vPOLL}
            v_cmp_ge_u32 s[{sT+4}:{sT+5}], s{sEXP}, v{vPOLL}
            s_mov_b32 s{NFC}, s{NF}
            s_mov_b32 s{NEW}, 0
            s_orn2_b32 s{NA}, vcc_lo, s{WAIT}
            s_mov_b32 s{NF}, s{sT+4}
            """)
        def pass_a(tag):
            for sg in range(4):
                a(f"s_and_b32 s{sT+2}, s{NA}, {15 << 4*sg}")
                a(f"s_cbranch_scc1 L_pa{tag}{sg}")
                gloads(sg)
                a(f"s_or_b32 s{NEW}, s{NEW}, {15 << 4*sg}")
                a.label(f"L_pa{tag}{sg}")
            a(pl)
            a(f"s_andn2_b32 s{WAIT}, s{WAIT}, s{NEW}")
        a(f"""
        s_min_u32 s{sLN}, s{sEXP}, {lvl}
        s_movk_i32 s{WAIT}, 0xffff
        s_and_b32 s{WAIT}, s{WAIT}, 0xffff
        s_cmp_eq_u32 s{XO}, {OOB}
        v_mov_b32 v{vPV}, 7
        s_waitcnt vmcnt(@since:ep)
        s_cbranch_scc1 L_fidle
        """)
        if OPT["dp1"] == 1: flags(); pass_a("x")
        else: a(f"s_mov_b32 s{NEW}, 0")
        if OPT["dp1"] == 2: a(pl)
        for i in range(8): a(f"v_mov_b64 {vr(SA_+2*i,2)}, 0")
        gmath(-1 if OPT["dp1"] else OPT["fpos"])
        a(f"s_mov_b32 s{FLY}, s{NEW}\ns_mov_b32 s{CNT}, 0")
        if OPT["dp1"]: a(f"s_waitcnt vmcnt(0)\nbuffer_store_dword v{vPV}, v{vFLG}, {WS}, s{sFSS} offen sc1\ns_branch L_fr1")
        else: a(pl + "\ns_branch L_fround")
        a(f"""
        L_fslp:
        s_sleep {OPT['fsleep']}
        L_fround:
        s_waitcnt vmcnt(0)
        L_fr1:
        """)
        stamp(8)
        flags()
        a(f"s_cmp_eq_u32 s{WAIT}, 0")
        a("s_cbranch_scc1 L_pb")
        pass_a("y")
        a.label("L_pb")
        for sg in range(4):
            nib = 15 << 4*sg; r = LB+sg*32
            a(f"""
            s_and_b32 s{sT+2}, s{FLY}, {nib}
            s_cbranch_scc0 L_pbx{sg}
            s_and_b32 s{sT+2}, s{NFC}, {nib}
            s_cbranch_scc0 L_pbo{sg}
            v_max3_u32 v{T1}, v{r}, v{r+1}, v{r+2}
            v_max3_u32 v{T2}, v{r+3}, v{r+4}, v{r+5}
            """)
            for i in range(13): a(f"v_max3_u32 v{(T1, T2)[i & 1]}, v{(T1, T2)[i & 1]}, v{r+6+2*i}, v{r+7+2*i}")
            a(f"""
            v_max_u32 v{T1}, v{T1}, v{T2}
            v_cmp_eq_u32 vcc, -1, v{T1}
            s_nop 3
            s_cbranch_vccnz L_pbb{sg}
            L_pbo{sg}:
            """)
            for k in range(8):
                d = vr(SA_+(k >> 1)*4, 4)
                a(f"{MF} {d}, {vr(SEL+(k & 1)*4,4)}, {vr(r+k*4,4)}, {d}")
            a.label(f"L_pbx{sg}")
        a(f"""
        s_or_b32 s{sT+2}, s{NEW}, s{WAIT}
        s_cbranch_scc0 L_fgo
        s_add_u32 s{CNT}, s{CNT}, 1
        s_mov_b32 s{FLY}, s{NEW}
        s_cmp_ge_u32 s{CNT}, 0x8000
        s_cbranch_scc1 L_fgo
        s_cmp_eq_u32 s{FLY}, 0
        s_cbranch_scc1 L_fslp
        s_branch L_fround
        """)
        for sg in range(4):
            a.label(f"L_pbb{sg}")
            gloads(sg); a(pl)
            a(f"s_or_b32 s{NEW}, s{NEW}, {15 << 4*sg}")
            a(f"s_branch L_pbx{sg}")
        a.label("L_fidle")
        a("s_waitcnt vmcnt(0)")
        a(f"buffer_store_dword v{vPV}, v{vFLG}, {WS}, s{sFSS} offen sc1")
        stamp(8)
        a("s_branch L_fin")
        a.label("L_fgo")
        a("s_nop 1")
        for og in range(4): fin(og)
    else:
        a("s_waitcnt vmcnt(@since:gl)")
        if OPT["epoll"]:
            tail_ = [l.strip() for l in a.lines if l.strip().startswith("buffer_")][-40:]
            a("s_waitcnt vmcnt(@since:ep)")
            a(f"v_cmp_ge_u32 vcc, s{sEXP}, v{vPOLL}")
            a("s_nop 4")
            a("s_cbranch_vccnz L_fslow")
            stamp(8)
            floads(); flag()
            a("s_branch L_fgm")
            merge("L_fslow")
            for l in tail_: a.raw("@ghost " + l)
            flag()
        elif OPT["ep2"]:
            pl_ = f"buffer_load_dword v{vPOLL}, v{vFS}, {WS}, s{FP} offen sc1"
            if OPT["ep2"] == 1: a(pl_)
            gmath(OPT["fpos"], pl_ if OPT["ep2"] == 2 else None)
            if OPT["fpos"] >= 8: flag()
            a(f"""
            s_mov_b32 s{sT+1}, 0
            s_cmp_eq_u32 s{XO}, {OOB}
            s_waitcnt vmcnt(1)
            v_cmp_ge_u32 vcc, s{sEXP}, v{vPOLL}
            s_cbranch_scc1 L_fidle
            s_nop 2
            s_cbranch_vccz L_fgo
            L_fidle:
            """)
        else: gmath(OPT["fpos"])
        a(f"s_mov_b32 s{sT+1}, 0")
        stamp(8)
        if stamps: a("s_waitcnt lgkmcnt(0)")
        a(f"s_cmp_eq_u32 s{XO}, {OOB}")
        a("s_cbranch_scc1 L_fin")
        a.label("L_fpoll")
        a(f"""
        buffer_load_dword v{vPOLL}, v{vFS}, {WS}, s{FP} offen sc1
        s_add_u32 s{sT+1}, s{sT+1}, 1
        s_waitcnt vmcnt(0)
        v_cmp_ge_u32 vcc, s{sEXP}, v{vPOLL}
        s_cmp_lt_u32 s{sT+1}, 0x10000
        s_cbranch_vccz L_fgo
        s_sleep {OPT['fsleep']}
        s_cbranch_scc1 L_fpoll
        """)
        a.label("L_fgo")
        stamp(8)
        floads()
        a.label("L_fgm")
        if stamps: a("s_waitcnt lgkmcnt(0)")
        if OPT["epoll"]: gmath(-1)
        for n in range(32):
            if n & 1 == 0: a(f"s_waitcnt vmcnt(@since:f{n+1})")
            d = vr(SA_+(n >> 3)*4, 4)
            a(f"{MF} {d}, {vr(SEL+((n >> 2) & 1)*4,4)}, {vr(LB+n*4,4)}, {d if n & 7 else 0}")
            if n & 7 == 3 and n > 8: fin((n >> 3) - 1)
        a("s_nop 7"); a("s_nop 0")
        fin(3)
    a.label("L_fin")
    if stamps:
        a("s_waitcnt vmcnt(0)")
        stamp(9)
        a("s_waitcnt lgkmcnt(0)")
        if OPT["enc"] >= 0:
            a(f"""
            s_and_b32 s{sT+1}, s2, {OPT["encw"][0]}
            s_cmp_eq_u32 s{sT+1}, {OPT["encw"][1]}
            s_cbranch_scc0 L_end
            s_sub_u32 s{sT+1}, s{streg(OPT["enc"])}, s{streg(OPT["enc0"])}
            s_mul_i32 s{sT+1}, s{sT+1}, {OPT["enck"]}
            s_add_u32 s{sT+1}, s{sT+1}, s{streg(0)}
            s_add_u32 s{sT+1}, s{sT+1}, 10000
            s_mov_b32 s{sT+2}, 0
            L_enc:
            s_memrealtime s[{sT+4}:{sT+5}]
            s_add_u32 s{sT+2}, s{sT+2}, 1
            s_waitcnt lgkmcnt(0)
            s_cmp_gt_u32 s{sT+2}, 1000000
            s_cbranch_scc1 L_end
            s_sub_u32 s{sT+4}, s{sT+4}, s{sT+1}
            s_cmp_lt_i32 s{sT+4}, 0
            s_cbranch_scc1 L_enc
            s_endpgm
            """)
        for i in range(12): a(f"v_mov_b32 v{16+i}, s{streg(i) if i < 10 else sT+1}")
        a(f"""
        s_lshl_b32 s{sT+1}, s2, 2
        s_add_u32 s{sT+1}, s{sT+1}, s{sWAVE}
        s_lshl_b32 s{sT+1}, s{sT+1}, 6
        s_add_u32 s{sT+1}, s{sT+1}, {WS_STAMP}
        buffer_store_dwordx4 v[16:19], v{vFLG}, {WS}, s{sT+1} offen
        buffer_store_dwordx4 v[20:23], v{vFLG}, {WS}, s{sT+1} offen offset:16
        buffer_store_dwordx4 v[24:27], v{vFLG}, {WS}, s{sT+1} offen offset:32
        s_sub_u32 s{sT+1}, s{sT+1}, {WS_STAMP}
        s_lshl_b32 s{sT+1}, s{sT+1}, 3
        s_add_u32 s{sT+1}, s{sT+1}, {WS_STAMP + 0x100000}
        v_lshlrev_b32 v2, 2, v{vLANE}
        buffer_store_dword v0, v2, {WS}, s{sT+1} offen
        buffer_store_dword v{vKV}, v2, {WS}, s{sT+1} offen offset:256
        """)
    a.label("L_end")
    a("s_endpgm")
    for typ in ("K", "V"):
        for nm, ok, ldi, red, reg in (("zwait", "zok", f"buffer_load_dword v{vPOLL}, v{vL4}, {sr(sDBG,4)}, 0 offen sc1", "", vPOLL),
                ("prepwait", "prepok", f"buffer_load_dwordx4 {vr(PV,4)}, v{vL16}, {WS}, s{gIT} offen sc1",
                 f"v_and_b32 v{PV}, v{PV}, v{PV+1}\nv_and_b32 v{PV+2}, v{PV+2}, v{PV+3}\nv_and_b32 v{PV}, v{PV}, v{PV+2}", PV)):
            a.label(f"L_{nm}{typ}")
            a(f"s_mov_b32 s{sT+4}, 0")
            a.label(f"L_{nm}2{typ}")
            a(f"""
            s_sleep 4
            {ldi}
            s_add_u32 s{sT+4}, s{sT+4}, 1
            s_waitcnt vmcnt(0)
            {red}
            v_cmp_ne_u32 vcc, s{sT+1}, v{reg}
            s_cmp_ge_u32 s{sT+4}, 0x10000
            s_cbranch_scc1 L_{ok}{typ}
            s_nop 2
            s_cbranch_vccnz L_{nm}2{typ}
            s_branch L_{ok}{typ}
            """)
    for (tag, voff, soff, lane0) in POLLS:
        a.label(f"L_pw_{tag}")
        a(f"s_mov_b32 s{sT+1}, 0")
        a.label(f"L_pw2_{tag}")
        a(f"""
        buffer_load_dword v{vPOLL}, v{voff}, {WS}, s{soff} offen sc1
        s_add_u32 s{sT+1}, s{sT+1}, 1
        s_waitcnt vmcnt(0)
        v_cmp_ne_u32 s[{sT+4}:{sT+5}], 1, v{vPOLL}
        s_cmp_ge_u32 s{sT+1}, 0x10000
        s_cbranch_scc1 L_po_{tag}
        s_sleep {OPT['psleep']}
        """)
        if lane0 is True: a(f"s_bitcmp1_b32 s{sT+4}, 0")
        else: a(f"s_cmp_lg_u64 s[{sT+4}:{sT+5}], 0")
        a(f"s_cbranch_scc1 L_pw2_{tag}")
        a(f"s_branch L_po_{tag}")
    a.label("L_b0")
    Chain(q_rest).flush(a)
    a(f"s_mov_b32 s{sPT}, {OOB}")
    a("s_branch L_seg2")
    a.label("L_stubs")
    a("s_nop 0")
    for (lab, sub, back) in sorted(STUBS, key=lambda x: "mask" in x[1]):
        a.label(lab)
        if "mask" in sub and OPT["im"]:
            for x in mask_code(int(sub[-1]), lab, back): a(x)
            continue
        a(f"s_call_b64 s[{sRET}:{sRET+1}], {sub}")
        a(f"s_branch {back}")
    for b in range(0 if OPT["im"] else 2):
        a.label(f"L_mask{b}")
        a("s_nop 7")
        a(f"s_cmp_eq_u32 s{sN}, s{sND}")
        a(f"s_cbranch_scc0 L_maskall{b}")
        for r in range(4):
            a(f"v_cndmask_b32 v{S(b,0,0)+r}, v{S(b,0,0)+r}, v{vBIG}, s[{sMASK+2*r}:{sMASK+2*r+1}]")
            a(f"v_cndmask_b32 v{S(b,1,1)+r}, v{S(b,1,1)+r}, v{vBIG}, s[{sMASK+2*r}:{sMASK+2*r+1}]")
            a(f"v_mov_b32 v{S(b,1,0)+r}, v{vBIG}")
        a(f"s_setpc_b64 s[{sRET}:{sRET+1}]")
        a.label(f"L_maskall{b}")
        for i in range(16): a(f"v_mov_b32 v{S(b,0,0)+i}, v{vBIG}")
        a(f"s_setpc_b64 s[{sRET}:{sRET+1}]")
    a.label("L_fchk")
    hi, lo = f2u(2.0**OPT["thr"]), f2u(2.0**-OPT["thr"])
    a(f"s_add_u32 s{sT+1}, s{sND}, 1")
    a(f"s_cmp_gt_u32 s{sN}, s{sT+1}")
    a("s_cbranch_scc1 L_fret")
    for qt in range(2):
        a(f"v_mov_b32 v{vT+8+qt}, v{vSUM[qt][0]}")
        xlane(a, "v_add_f32", vT+8+qt, vT)
        a(f"v_subrev_u32 v{vT+8+qt}, {lo:#x}, v{vT+8+qt}")
    a(f"v_max_u32 v{vT+8}, v{vT+8}, v{vT+9}")
    a(f"v_cmp_lt_u32 vcc, {hi-lo:#x}, v{vT+8}")
    a("s_nop 4")
    a("s_cbranch_vccnz L_rare0")
    a.label("L_fret")
    a(f"s_setpc_b64 s[{sRET}:{sRET+1}]")
    for b in range(2):
        a.label(f"L_rare{b}")
        a("s_nop 7")
        D = [vT+8, vT+9]; F = [vT+10, vT+11]
        for qt in range(2):
            r0, r1 = S(b,0,qt), S(b,1,qt)
            a(f"v_max3_f32 v{D[qt]}, v{r0}, v{r0+1}, v{r0+2}")
            a(f"v_max3_f32 v{D[qt]}, v{D[qt]}, v{r0+3}, v{r1}")
            a(f"v_max3_f32 v{D[qt]}, v{D[qt]}, v{r1+1}, v{r1+2}")
            a(f"v_max_f32 v{D[qt]}, v{D[qt]}, v{r1+3}")
            xlane(a, "v_max_f32", D[qt], vT)
            a(f"v_max_f32 v{D[qt]}, s{sCLAMP}, v{D[qt]}")
            a(f"v_max_f32 v{F[qt]}, 0, v{D[qt]}")
            a(f"v_exp_f32 v{F[qt]}, -v{F[qt]}")
            for i in range(4): a(f"v_sub_f32 v{NEGM(qt)+i}, v{NEGM(qt)+i}, v{D[qt]}")
            for bb in range(2):
                for kt in range(2):
                    for i in range(4): a(f"v_sub_f32 v{S(bb,kt,qt)+i}, v{S(bb,kt,qt)+i}, v{D[qt]}")
            a(f"v_mul_f32 v{vL[qt]}, v{F[qt]}, v{vL[qt]}")
        for o in sm_ops(b): a(o)
        a(f"s_cmp_eq_u32 s{sFIRST}, 1")
        a(f"s_cbranch_scc1 L_rare_ret{b}")
        for dt in range(16):
            for qt in range(2):
                for i in range(4): a(f"v_mul_f32 v{O(dt,qt)+i}, v{F[qt]}, v{O(dt,qt)+i}")
        a.label(f"L_rare_ret{b}")
        a(f"s_cmp_lg_u32 s{sCNT}, s{sEV}")
        a("s_nop 0")
        a(f"s_setpc_b64 s[{sRET}:{sRET+1}]")
    a.label("L_slowcomb")
    a("s_nop 7")
    wA, wB = [vT+8, vT+9], [vT+10, vT+11]
    for qt in range(2):
        a(f"""
        v_min_f32 v{vT+6}, v{NEGM(qt)}, v{vSTB+qt}
        v_sub_f32 v{wA[qt]}, v{vT+6}, v{NEGM(qt)}
        v_sub_f32 v{wB[qt]}, v{vT+6}, v{vSTB+qt}
        v_exp_f32 v{wA[qt]}, v{wA[qt]}
        v_exp_f32 v{wB[qt]}, v{wB[qt]}
        s_nop 0
        v_mul_f32 v{vL[qt]}, v{wA[qt]}, v{vL[qt]}
        v_mul_f32 v{vSTB+2+qt}, v{wB[qt]}, v{vSTB+2+qt}
        """)
    for dt in range(16):
        for qt in range(2):
            for i in range(4): a(f"v_mul_f32 v{O(dt,qt)+i}, v{wA[qt]}, v{O(dt,qt)+i}")
    for i in range(64):
        qt = (i >> 2) & 1
        a(f"""
        v_accvgpr_read_b32 v{vT}, a{128+i}
        v_lshlrev_b32 v{vT+1}, 16, v{vT}
        v_and_b32 v{vT}, 0xffff0000, v{vT}
        v_mul_f32 v{vT+1}, v{wB[qt]}, v{vT+1}
        v_mul_f32 v{vT}, v{wB[qt]}, v{vT}
        v_cvt_pk_bf16_f32 v{vT}, v{vT+1}, v{vT}
        v_accvgpr_write_b32 a{128+i}, v{vT}
        """)
    a("s_nop 1")
    a("s_branch L_comb")
    a.label("L_codeend")
    lines = []
    for l in a.lines: lines += l.split("\n")
    ghost = [l.startswith("@ghost ") for l in lines]
    lines = [l[7:] if g else l for l, g in zip(lines, ghost)]
    lines = resolve_vm(lines)
    lines = [l.replace("@@buffer", "buffer") for l, g in zip(lines, ghost) if not g]
    errs = check_hazards(lines) + check_scc(lines)
    for e in errs[:30]: print("HAZARD", e, file=sys.stderr)
    lines = [re.sub(r"\s*; @.*", "", l) for l in lines]
    lines = [l.strip() for l in lines if l.strip()]
    i, j = lines.index("L_gemmV:"), lines.index("L_P1A:")
    k = lines.index("L_zwaitV:"); k2 = lines.index("s_branch L_prepokV") + 1
    assert lines[i-1] == "s_branch L_P1A"
    r0, r1 = lines.index("L_slowcomb:"), lines.index("L_codeend:")
    u0, u1 = lines.index("L_u2:"), lines.index("L_end0:")
    lines = [".p2align 12"] + lines[i:j] + lines[k:k2] + lines[r0:r1] + [".p2align 12"] + lines[:i-1] + lines[j:u0] + lines[u1:k] + lines[k2:r0] + lines[u0:u1] + ["s_branch L_end0"] + lines[r1:]
    if OPT["tch"]:
        tmp = [re.sub(r"LT_(\w+)_\d", r"LR_\1", l) for l in lines]
        tmp, F = insert_stubs(tmp, [("L_gemmV", "L_zwaitV"), ("L_gK", "L_P1A"), ("L_P1A", "L_P1B"), ("L_P1B", "L_steady0"), ("L_steady0", "L_end0"), ("L_end0", "L_lpack"),
                                    ("L_lpack", "L_post2b"), ("L_post2b", "L_end")], OPT["tlab"], OPT["nox"])
        g = lambda *k: [p for x in k for p in F.get(x, [])]
        pa = g("L_P1A", "L_steady0", "L_end0", "L_post2b"); pb = g("L_P1B", "L_steady0", "L_domask_s10", "L_domask_s00", "L_mask0") + g("L_end0")[:1] + g("L_lpack", "L_domask_lp", "L_domask_s11", "L_domask_s01", "L_post2b")
        pb = [p for k, p in enumerate(pb) if k == 0 or not 0 < ADR[p] - ADR[pb[k-1]] <= 128]
        pos = {l.split()[-1]: n for n, l in enumerate(tmp)}
        it_ = iter(lines); lines = [l if l.startswith("@") else next(it_) for l in tmp]
        done_ = {}; tgt = {}
        for nm, path in SITES:
            q = dict(K=g("L_gK"), V=g("L_gemmV"), a=pa, b=pb, A=pa, B=pb)[path[0]]
            d = done_.setdefault(path, set(done_.get(path.lower() + "K", ())))
            c = [p for p in q if p not in d and (pos[p] > pos[f"LR_{nm}:"] or (path == "V" and pos[f"LR_{nm}:"] > pos["L_go:"]))][:4]
            d |= set(c); c += q[-1:]*4
            for w in range(4): tgt[f"LT_{nm}_{w}"] = "L" + c[w]
        print("stubs", F, "\nuntouched A", [p for p in pa if p not in done_["A"]], "B", [p for p in pb if p not in done_["B"]], file=sys.stderr)
        o = []
        for l in lines:
            if l == "@pad": o.append("s_nop 0")
            elif l == "@align": o.append(".p2align 12")
            elif l.startswith("@"):
                p = l.split()[1]; r_ = [f"L{p}:", f"s_setpc_b64 s[{sRET}:{sRET+1}]"]
                if "L" + p not in tgt.values(): o += ["s_nop 0"]*(2 if "stub" in l else 1)
                else: o += [f"s_branch LO{p}"] + r_ + [f"LO{p}:"] if "stub" in l else r_
            else: o.append(re.sub(r"LT_\w+_\d", lambda m: tgt[m.group(0)], l))
        lines = o
    lines = compact(lines)
    return "\n".join(lines) + "\n", kernel_desc(name, 512, 256)

if __name__ == "__main__":
    import ast
    for x in sys.argv[2:]:
        k, v = x.split("=")
        OPT[k] = ast.literal_eval(v)
    NAME = "recurrent_scan__compressed_kv_cla__dense_activation_squared_relu__prompt_kernel"
    body, desc = gen(NAME)
    ref = open("recurrent_scan__compressed_kv_cla__dense_activation_squared_relu__prompt.s.ref").read().split("\n")
    hdr = [l for l in ref if l.startswith(";") and "launch" not in l and "grid=" not in l]
    hdr += ["; @launch grid=(256,1,1) block=(256,1,1) lds=163840", '.amdgcn_target "amdgcn-amd-amdhsa--gfx950"', ".text"]
    txt = "\n".join(hdr) + "\n" + body + '.section .rodata,"a"\n.p2align 6\n' + desc
    open(sys.argv[1], "w").write(txt)
    print(len(txt), "bytes", file=sys.stderr)
```

```python
import re, struct
from asmlib import *
MF = "v_mfma_f32_16x16x32_bf16"
def f2u(x): return struct.unpack("<I", struct.pack("<f", x))[0]

def cls(ins):
    if ins.endswith(":"): return "L"
    if ins.startswith("s_"): return "S"
    if ins.startswith("ds_"): return "M"
    if ins.startswith("buffer_"): return "D"
    if ins.startswith(("v_exp", "v_rcp", "v_log", "v_rsq", "v_sqrt", "v_readlane", "v_readfirstlane")): return "E"
    return "V"
COST = {"S": 0, "L": 0, "M": 1, "V": 1, "E": 2, "D": 2}

SOFT = [1, 100]
class Stage:
    def __init__(self, mf=None):
        self.mf = mf or []
        self.fill = {}
        self.post = {}
        self.ops = []
        self.scc_busy = set()
        self.hzx = set(); self.hov = True
        self.tail = []
    def put(self, g, ins):
        self.fill.setdefault(g, []).append(ins)
    def put_post(self, g, ins):
        self.post.setdefault(g, []).append(ins)
    def hz(self, g):
        return g+1 < len(self.mf) and self.mf[g+1] is None or g in self.hzx
    def free(self, g):
        if self.hz(g): return -1
        n = 2; ns = 0; nd = 0
        prev = self.fill.get(g-1, []) + self.post.get(g-1, []) if 0 < g < len(self.mf) and self.mf[g] is None else []
        for i in self.fill.get(g, []) + self.post.get(g, []) + prev:
            c = cls(i)
            if c == "S": ns += 1
            elif c == "D": nd += 1; n -= 2
            else: n -= COST[c]
        if nd: n -= ns
        else: n -= max(0, ns - 1)
        return n
    def nS(self, g):
        return sum(1 for i in self.fill.get(g, []) + self.post.get(g, []) if cls(i) == "S")
    def hasD(self, g):
        return any(cls(i) == "D" for i in self.fill.get(g, []) + self.post.get(g, []))
    def add(self, ins, deps=(), early=0, late=None, dist=None):
        self.ops.append((ins, [d for d in deps if d is not None], early, late, dist)); return len(self.ops)-1
    def schedule(self, g_end=None, maxover=6, allow_tail=True):
        n = len(self.mf)
        g_end = n-1 if g_end is None else g_end
        ops = self.ops
        lo = min([o[2] for o in ops] + [g_end]); hi = max([o[3] for o in ops if o[3] is not None] + [lo+1])
        trials = [(0, 0, 100, 0)] + ([(o, N, r, e) for N in range(1, 60) for o in (1, 2, 3) for e in (1, 0) for r in (100, 130, 200, 400)] if SOFT[0] else []) + [(o, 10**6, 100, 0) for o in range(1, maxover+1)]
        for over, N, rate, eonly in trials:
            placed = {}; used = {}; spent = 0
            for g in range(0, g_end+1):
                fr = fr0 = self.free(g)
                tok = min(over, min(N, -(-N*(g-lo+1)*rate//((hi-lo)*100))) - spent)
                cap = fr + (tok if fr >= 0 and not self.hasD(g) and (self.mf[g] is not None or self.hov) else 0)
                ns = self.nS(g); hasd = self.hasD(g)
                while True:
                    cand = []
                    for i, (ins, deps, early, late, dist) in enumerate(ops):
                        if i in placed or g < early: continue
                        ok = True
                        for d in deps:
                            if d not in placed: ok = False; break
                            if dist is not None:
                                if g - placed[d] < dist: ok = False; break
                            elif placed[d] == g:
                                cd, ci = cls(ops[d][0]), cls(ins)
                                if not ((cd == "V" and ci in "VE") or (cd == "S" and ci != "D") or (cd == "M" and ci in "MVE")):
                                    ok = False; break
                        if ok: cand.append(i)
                    cand.sort(key=lambda i: (ops[i][3] if ops[i][3] is not None else 999, 0 if cls(ops[i][0]) in "ED" else 1, i))
                    got = None
                    for i in cand:
                        c = cls(ops[i][0])
                        must = ops[i][3] is not None
                        mycap = cap if must or not allow_tail else min(cap, fr)
                        if eonly and c != "E" and any(cls(o[0]) == "E" and k not in placed for k, o in enumerate(ops)): mycap = min(mycap, fr)
                        if c == "S":
                            if hasd or g in self.scc_busy: continue
                            cost = 0 if ns == 0 else 1
                        elif c == "D":
                            if hasd or (fr < 2 or ns or used.get(g)) and not (must and over >= 2 and mycap >= 2): continue
                            cost = 2
                        else:
                            if hasd: continue
                            cost = COST[c]
                        if cost <= mycap:
                            got = i; break
                    if got is None: break
                    c = cls(ops[got][0])
                    placed[got] = g; cap -= cost; fr -= cost; used.setdefault(g, []).append(got)
                    if c == "S": ns += 1
                    if c == "D": hasd = True
                if fr0 >= 0 and fr < 0: spent -= fr
            bad = [i for i, o in enumerate(ops) if (o[3] is not None and placed.get(i, 10**6) > o[3]) or (not allow_tail and i not in placed)]
            if not bad: break
        assert not bad, [ops[i] for i in bad[:5]]
        self.over = spent
        for g in sorted(used):
            for i in used[g]: self.put(g, ops[i][0])
        self.tail += [o[0] for i, o in enumerate(ops) if i not in placed]
        self.ops = []
    def emit(self, a, tailpad=None):
        order = {"S": 0, "L": 0, "M": 1, "D": 1, "V": 2, "E": 2}
        f = {}
        for g in set(self.fill) | set(self.post):
            f[g] = sorted(self.fill.get(g, []), key=lambda i: order[cls(i)]) + self.post.get(g, [])
        for l in interleave(self.mf, f): a(l)
        if self.tail and tailpad: a(tailpad)
        for l in self.tail: a(l)

def resolve_vm(lines):
    out = list(lines)
    for i, l in enumerate(lines):
        m = re.search(r"vmcnt\(@(dma|since|mrg):(\w+)\)", l)
        if not m: continue
        kind, arg = m.groups()
        cnt = 0; nd = 0; val = None
        for j in range(i-1, -1, -1):
            s = lines[j].strip()
            if "@merge" in s:
                assert kind in ("dma", "mrg"), ("tag not found before merge", l)
                val = cnt + (int(arg) - nd); break
            if s.startswith("buffer_"):
                isd = " lds" in s
                if kind == "dma":
                    if isd:
                        if nd == int(arg): val = cnt; break
                        nd += 1
                elif kind == "since":
                    if ("@" + arg) in s.split(): val = cnt; break
                cnt += 1
        assert val is not None, l
        out[i] = l.replace(m.group(0), f"vmcnt({min(val, 63)})")
    return out

def regs_of(tok):
    tok = tok.strip().lstrip("-").strip("|")
    m = re.fullmatch(r"([vas])\[(\d+):(\d+)\]", tok)
    if m: return {(m.group(1), r) for r in range(int(m.group(2)), int(m.group(3))+1)}
    m = re.fullmatch(r"([vas])(\d+)", tok)
    if m: return {(m.group(1), int(m.group(2)))}
    if tok in ("vcc", "m0", "exec"): return {(tok, 0)}
    return set()
def parse(ins):
    ins = ins.split(";")[0].strip()
    op, _, rest = ins.partition(" ")
    toks = [t.strip() for t in rest.split(",")] if rest else []
    if toks: toks[-1:] = toks[-1].split()
    return op, toks
def check_hazards(lines, margin=1):
    t = 0; lastmf = -100
    mfD = {}; mfC = {}; vw = {}; tw = {}; vsw = {}; m0w = -100; stw = {}; dlw = {}
    errs = []
    for ln, raw in enumerate(lines):
        s = raw.split(";")[0].strip()
        if not s or s.endswith(":") or s.startswith("."): continue
        op, toks = parse(s)
        if op == "s_nop":
            t += int(toks[0]) + 1; continue
        if op in ("s_branch", "s_setpc_b64", "s_endpgm"):
            t += 100; continue
        def need(tab, regs, n, what):
            for r in regs:
                if r in tab and t - tab[r] - 1 < n:
                    errs.append((ln, what, raw.strip(), r, t - tab[r] - 1)); return
        R = [regs_of(x) for x in toks]
        if op.startswith("v_mfma"):
            t = max(t, lastmf + 4); lastmf = t
            D, A, B, C = R[0], R[1], R[2], R[3]
            need(vw, A | B | C, 2, "valu->mfma")
            need(dlw, A | B | C, 3, "dot->mfma")
            need(mfD, A | B, 8 + margin, "mfmaD->AB")
            if C != D or True:
                for r in C:
                    if r in mfD and mfD[r][1] != frozenset(C) if False else False: pass
            for r in D: mfD[r] = t
            for r in C: mfC[r] = t
        elif op.startswith("v_"):
            if op.startswith("v_cmp"):
                dst = R[0]; src = set().union(*R[1:]); vd = set()
            elif op.startswith(("v_readlane", "v_readfirstlane")):
                dst = R[0]; src = set().union(*R[1:]); vd = set()
                need(vw, R[1], 1, "valu->readlane")
                if len(R) > 2: need(vsw, R[2], 4, "vsgpr->lanesel")
            else:
                dst = set(); vd = set(R[0]); src = set().union(*R[1:]) if len(R) > 1 else set()
                if op.startswith("v_permlane"): vd |= R[1]; src |= R[0]; need(vw, src, 2, "valu->permlane")
                if op.startswith(("v_fmac", "v_dot2c")): src |= R[0]
                if op.startswith("v_cndmask") and len(toks) == 3: src |= {("vcc", 0)}
                if "dpp" in op: need(vw, src, 2, "valu->dpp")
            need(mfD, src | vd, 8 + margin, "mfmaD->valu")
            need(mfC, vd, 3, "mfmaC->valuW")
            need(tw, src, 1, "trans->valu")
            need(vsw, {r for r in src if r[0] in ("s", "vcc")}, 2, "vsgpr->valu")
            need(stw, vd, 2, "store->valuW")
            if not op.startswith("v_dot"): need(dlw, src | vd, 3, "dot->other")
            for r in vd:
                vw[r] = t
                if cls(op) == "E": tw[r] = t
                if op.startswith("v_dot"): dlw[r] = t
            for r in dst: vsw[r] = t
        elif op.startswith(("buffer_", "ds_")):
            allr = set().union(*R) if R else set()
            need(mfD, allr, 8 + margin, "mfmaD->mem")
            need(vsw, {r for r in allr if r[0] == "s"}, 5, "vsgpr->vmem")
            need(dlw, allr, 3, "dot->mem")
            if "lds" in toks and t - m0w - 1 < 1: errs.append((ln, "m0->dma", raw.strip()))
            if op.startswith("buffer_store") and ("x4" in op or "x3" in op):
                for r in R[0]: stw[r] = t
            elif op.startswith(("buffer_load", "ds_read")) and "lds" not in toks:
                need(stw, R[0], 1, "store->loadW")
        elif op.startswith("s_"):
            if toks and toks[0] == "m0": m0w = t
        t += 1
    return errs

def check_scc(lines):
    errs = []; last = None
    nowr = ("s_mov", "s_mul_i32", "s_waitcnt", "s_nop", "s_barrier", "s_cbranch", "s_branch", "s_cselect", "s_load", "s_memrealtime", "s_memtime", "s_sleep", "s_call", "s_setpc", "s_endpgm", "s_setprio", "s_movk")
    for ln, raw in enumerate(lines):
        s = raw.split(";")[0].strip()
        if not s.startswith("s_"): continue
        op = s.split()[0]
        if op.startswith(("s_cbranch_scc", "s_cselect", "s_addc", "s_subb")):
            ok = last and (last.startswith(("s_cmp", "s_bitcmp", "s_or_b64", "s_and_b32", "s_or_b32")) or (op.startswith("s_subb") and last.startswith("s_sub_u32")) or (op.startswith("s_addc") and last.startswith("s_add_u32")))
            if not ok: errs.append((ln, "scc", s, last))
        if not op.startswith(nowr): last = op
    return errs

def compact(lines):
    macros = {}; out = []
    R = r"([va])\[(\d+):\d+\]"
    for l in lines:
        m = re.fullmatch(MF + rf" {R}, {R}, {R}, (0|{R})", l)
        if m:
            dt, d, at, a_, bt, b, c, ct, cn = m.groups()
            if c == "0": nm, args, cs = f"Z{dt}{at}{bt}", (d, a_, b), "0"
            elif (ct, cn) == (dt, d): nm, args, cs = f"M{dt}{at}{bt}", (d, a_, b), f"{dt}[\\d:\\d+3]"
            else: nm, args, cs = f"N{dt}{at}{bt}", (d, a_, b, cn), f"{ct}[\\c:\\c+3]"
            macros[nm] = f".macro {nm} d, a, b{', c' if len(args) == 4 else ''}\n{MF} {dt}[\\d:\\d+3], {at}[\\a:\\a+3], {bt}[\\b:\\b+3], {cs}\n.endm"
            out.append(f"{nm} {','.join(args)}"); continue
        m = re.fullmatch(r"ds_read_b128 a\[(\d+):\d+\], v(\d+) offset:(\d+)", l)
        if m:
            macros["RD"] = ".macro RD d, v, o\nds_read_b128 a[\\d:\\d+3], v\\v offset:\\o\n.endm"
            out.append("RD " + ",".join(m.groups())); continue
        m = re.fullmatch(r"ds_read_b64_tr_b16 a\[(\d+):\d+\], v(\d+) offset:(\d+)", l)
        if m:
            macros["RT"] = ".macro RT d, v, o\nds_read_b64_tr_b16 a[\\d:\\d+1], v\\v offset:\\o\n.endm"
            out.append("RT " + ",".join(m.groups())); continue
        out.append(l)
    return list(macros.values()) + out

import subprocess, os
def line_sizes(lines):
    isins = [not (l.endswith(":") or l.startswith(".") or l.startswith("@")) for l in lines]
    src = '.amdgcn_target "amdgcn-amd-amdhsa--gfx950"\n.text\n' + "\n".join(l for l in lines if not l.startswith((".p2align", "@"))) + "\ns_endpgm\n"
    open("sz.s", "w").write(src)
    r = subprocess.run(["clang", "-x", "assembler", "-target", "amdgcn-amd-amdhsa", "-mcpu=gfx950", "-c", "sz.s", "-o", "sz.o"], capture_output=True, text=True)
    assert r.returncode == 0, r.stderr[:2000]
    d = subprocess.run(["llvm-objdump", "-d", "sz.o"], capture_output=True, text=True).stdout
    ad = [int(m.group(1), 16) for m in re.finditer(r"// ([0-9A-F]{12}):", d)]
    assert len(ad) == sum(isins) + 1, (len(ad), sum(isins))
    out = []; k = 0
    for f in isins:
        if f: out.append(ad[k+1] - ad[k]); k += 1
        else: out.append(None)
    return out
ADR = {}
def insert_stubs(lines, ranges, labels, nox={}, endal={}):
    sz = line_sizes(lines)
    nox = {k: 16 + sum(x or 0 for x in sz[lines.index(k + ":"):lines.index(v + ":")]) for k, v in nox.items()}
    endal = {k: 8 + sum(x or 0 for x in sz[lines.index(k + ":"):lines.index(v + ":")]) for k, v in endal.items()}
    out = []; adr = 0; cur = None; found = {}; page = 0; n = 0; lastl = -1; prev = "s_branch"
    starts = {a: (a, b) for a, b in ranges}
    for l, s in zip(lines, sz):
        if l.startswith(".p2align"):
            al = 1 << int(l.split()[1]); adr = (adr + al - 1)//al*al
        if l.endswith(":"):
            if cur and l[:-1] == cur[1]: cur = None
            if l[:-1] in starts: cur = starts[l[:-1]]
            if l[:-1] in nox and (adr + nox[l[:-1]]) >> 12 != adr >> 12:
                out.append("@align"); adr = (adr + 4095) >> 12 << 12; page = adr >> 12
            if l[:-1] in endal:
                pad = -(adr + endal[l[:-1]]) % 4096
                out.append(f"@skip {pad}"); adr += pad; page = adr >> 12
            if l[:-1] in labels:
                dead = prev.startswith(("s_branch", "s_setpc", "s_endpgm"))
                while (adr + (4 if dead else 8)) % 64 in (0, 60): out.append("@pad"); adr += 4
                out.append(f"@{'ret' if dead else 'stub'} P{n}"); found.setdefault(cur[0] if cur and "mask" not in l else l[:-1], []).append(f"P{n}"); ADR[f"P{n}"] = adr; n += 1
                adr += 4 if dead else 8; lastl = adr
        if s is not None and adr >> 12 != page:
            page = adr >> 12
            if cur and lastl >> 6 != adr >> 6:
                out.append(f"@stub P{n}"); found.setdefault(cur[0], []).append(f"P{n}"); ADR[f"P{n}"] = adr; n += 1; adr += 8
        out.append(l)
        if s: adr += s; prev = l
    return out, found
```

```python
import sys
from fw import *
from layout2 import *

OPT = dict(rt=0, g7=0, tc=5, td=3, fe=19, soft=[1, 100], dfr=1, fbg=[3, 9, 15, 19, 25, 33, 41, 43, 49, 51, 57], fw=0, hov=0, kvs2=" sc1", o4=1, outsc="", fcap=0, dp1=1, ep2=0, bal=1, fsep=0, pr=0, prsc="", prld="", dp=None, clr0=19*64+36, clrs=20, ep=33, inl=["fa2", "fb", "gv00", "gv01"], psg=[25, 41, 57, 97, 113], inf=["fa2", "fb"], lvl=[(381, 3)], lve=[], epoll=0, nox={"L_steady0": "L_exit0", "L_steady1": "L_exit1"}, gev=[1, 1, 1, 1, 1, 1, 1, 3, 2, 3, 4, 5, 6, 7, 2, 3], gin=16, glate=1, dbgg=0, pfg=57, ptg=[3, 9, 17, 25, 33, 41, 49, 57], pte=10, qa=298, qe=36, qcap=7, qfd=72, kz=0, im=1, prog=0, cap8=36, fpos=3, dbgf=0, hold=0, zid=80, kva0=0, es=[(0, 25), (1, 33), (8, 41), (9, 49), (16, 57), (17, 61), (24, 89), (25, 97), (2, 105), (4, 113), (3, 121), (5, 125)], chg=2, tch=1, tg=[1, 2], tgs=[3], ta=[0, 1, 2], tb=[6, 7, 8], tlab=["L_P1A", "L_P1B", "L_steady0", "L_end0", "L_lpack", "L_steady1", "L_tail1", "L_post2b", "L_domask_s00"], cpf2=0, park=[0, 1, 2, 3, 4, 5], pst_n=3, swap=1, n0=[36, 32], enc0=0, enck=10, encw=[0, 0], enc=-1, ntA="", ntB="", ntS=" nt", chq=1, chp=1, cyc=0, npro=6, gcap=[4, 4, 3], dg2=8, xpos=3, rotm=4, rot=4, sync=[6, 10, 12, 15, 20, 22], xstep=20, wbl2=0, pfk=0, pfd=4, pfo=[0], pfn=2, smin=0, voff=0, dbgside=0, tlb=0, tlbm=0, tlbs=16, flit=9, npeel=7, slt=[100, 260, 880], slstep=16, sld=140, map2=False, kvb0=256, kvstepb=16, psleep=4, prep=1, pst=False, cpf=True, fine=False, touch=False, sc1ld=" sc1", stamps=False, early=[5, 13, 21, 29], late=[37, 45, 53, 61], cap=7, capb=8, capq=9, capn=12, kvstep=12, a15=[2, 2], fsleep=2, fdelay=96, qstep=7, wideloop=False, thr=40, kvsc=" sc1", sidesc=" sc1")

vLANE, vDMA, vTE, vTO, vL16, vRD, vPOLL, vFLG, vONE, vL4, vKV = range(1, 12)
DA = [12, 13, 14, 15]; DB = [16, 17, 18, 19]; RA = [20, 21]; RB = [22, 23, 24, 25]
vSW, vSF, vSX, vG1 = 26, 27, 28, 29
GT = 30
vT = 12
BP = [0, 2, 3, 1]
BIAS = 12
O0 = 128
def O(dt, qt): return O0 + (dt*2+qt)*4
def S(b, kt, qt): return 64 + b*16 + (kt*2+qt)*4
def P(b, qt): return 96 + b*8 + qt*4
def NEGM(qt): return 112 + qt*4
vL = [120, 121]
vSUM = [[122, 123], [124, 125]]
vBIG = 126
vRK = 60
vS, vS2, vPV = 61, 62, 63
GL = 192
vSTAT = 44
vSEL = 48
vRINV = [54, 55]
vSTB = 56
def accreg(pos): return vr(48+4*pos, 4) if pos < 52 else ar(208+4*(pos-52), 4)
NE = 6
def ENL(): return [c for c in range(32) if c not in dict(OPT["es"])]
def PK(c):
    if OPT["es"]:
        k = ENL().index(c) if c in ENL() else 20 + [x[0] for x in OPT["es"]].index(c)
        return 48+4*k
    return 48+4*c if c < 20 else (48+4*(c-20) if c < 20+NE else 48+4*(20+c))
def Q(qb, qt, u): return qb + (qt*8+u)*4
def FR(f): return 64 + (f % 16)*4
def X(qt, u): return 128 + (u*2+qt)*4
def FA(b, m): return (64 if b == 0 else 0) + m*4
def FB(b, n): return (64 if b == 0 else 0) + 32 + n*4
def CA(m, kk): return (96 + m*8 + kk*4) % 128
def CB(n, kk): return (64 if n < 4 else 32) + (n & 3)*8 + kk*4
def QU(u): return ((u >> 1) & 1)*4 + (u >> 2)*2 + (u & 1) if OPT["chg"] == 2 else u
WOL = 192
SLD = 128

sWS, sSA, sSB, sG, sDBG = 4, 8, 12, 16, 20
_n = [24]
def sal(n=1, al=1):
    _n[0] = (_n[0] + al - 1)//al*al
    r = _n[0]; _n[0] += n; return r
sWAVE, sHEAD, sJ, sQI, sWHICH = [sal() for _ in range(5)]
gA0, gA1, gB0, gB1, gMA, gMB, gIT, gD, gCNT, gFL = [sal() for _ in range(10)]
sTAU, sM0, sOFFA, sOFFB, sRDD, sRDS, sXOFF, sXOF2, sN, sND = gA0, gA1, gB0, gB1, gD, gCNT, sal(), sal(), sal(), sal()
sCNT, sEV, sCLAMP, sFIRST = sal(), sal(), sal(), sal()
sRET = sal(2, 2)
sMASK = sal(8, 4)
sTYPE, sU1, sU2, sW0 = sal(), sal(), sal(), sal()
sKVB, sKVI = sal(), sal()
sQST, sPT, sPSG, sPSS = sal(), sal(), sal(), sal()
sFKV, sFKVP, sFQ, sFSG, sFSS = [sal() for _ in range(5)]
sT = sal(8, 4)
sLN = sal(2, 2)
sFS = sal(2, 2); sW4K = 3
sGC, sPOLL, sEVN = sKVB, sKVI, sFKV
sPF = sRET; sPD = sT+5; sEXP = gFL
sSTAMP = sal(0, 2)
NSTAMP = (102 - sSTAMP)//2
print("sgpr used", sSTAMP, "stamps", NSTAMP, file=sys.stderr)
WS = sr(sWS, 4)

STUBS = []
def ld(): return OPT["sc1ld"]
def FT(): return "s_memtime" if OPT["cyc"] else "s_memrealtime"

XG = [1, 9, 17, 25, 33, 41, 49, 57]
XG4 = list(range(1, 64, 4))
def common_fill(st, dma=True, nd=None, last=False, novm=False, rdl=False, rk=False):
    if nd is None: nd = 16 + len(OPT["early"]) + sum(1 for g in OPT["late"] if g < 38)
    for G in range(8):
        g0 = G*8
        Gn = (G+3) % 8
        for i in range(4):
            f = Gn*4+i
            if not (last and G > 4): st.put(g0+2*i, f"ds_read_b128 {ar(FR(f),4)}, v{vRK if rk and f >= 16 else vRD} offset:{f*1024}")
            if OPT["fw"] and st.mf[g0] is None: st.put_post(g0+2*i, "s_waitcnt lgkmcnt(12)")
        nh = OPT["fw"] and (st.mf[g0+8] is None if G < 7 else 63 in st.hzx)
        if last and G >= 4:
            if G < 7: st.put(g0+6, f"s_waitcnt lgkmcnt({(7, 4, 0)[G-4]})")
        elif G == 4:
            st.put(g0+6, "s_waitcnt lgkmcnt(7)" if novm else f"s_waitcnt vmcnt(@dma:{nd})" + ("" if nh else " lgkmcnt(7)"))
            st.put(g0+7, "s_barrier")
            st.put(g0+7, f"v_add_u32 v{vRD}, s{sRDD}, v{vRD}")
        elif not nh:
            st.put(g0+6, "s_waitcnt lgkmcnt(7)")
    for i, g in enumerate(OPT["early"] if dma else []):
        st.put(g, f"buffer_load_dwordx4 v{vDMA}, {WS}, s{sOFFB} offen offset:{i*1024}{ld()} lds")
    if dma: st.put(31, f"v_readlane_b32 s{sOFFA}, v{vTO}, s{sTAU}")
    st.put(31, f"s_add_u32 m0, s{sM0}, 16384")
    st.put(34, f"s_add_u32 s{sM0}, s{sM0}, s{sRDD}")
    st.put(36, f"s_cmp_ge_u32 s{sM0}, 131072")
    st.put(38, f"s_cselect_b32 s{sRDD}, s{gMA}, s{gMB}")
    st.put(44, f"s_add_u32 s{sTAU}, s{sTAU}, 1")
    for i, g in enumerate(OPT["late"] if dma else []):
        st.put(g, f"buffer_load_dwordx4 v{vDMA}, {WS}, s{sOFFA} offen offset:{i*1024}{ld()} lds")
    if dma or rdl: st.put(55, f"v_readlane_b32 s{sOFFB}, v{vTE}, s{sTAU}")
    st.put(63, f"s_mov_b32 m0, s{sM0}")
    st.scc_busy |= {36, 37}
    if rk: st.put(-1, f"v_mov_b32 v{vRK}, v{vRD}")
    if OPT["fine"]:
        st.put(4, f"{FT()} s[{sFS}:{sFS+1}]")
        st.put(6, f"v_mov_b32_dpp v{vKV}, v{vKV} wave_shr:1 row_mask:0xf bank_mask:0xf")
        st.put(62, f"v_writelane_b32 v{vKV}, s{sFS}, 0")

class Jobs:
    def __init__(self): self.jobs = []; self.at = {}
    def add(self, key, pre, ins, early, late): self.jobs.append((late, len(self.jobs), early, pre, ins, key))
    def place(self, st, s, cap=6, grid=None):
        slots = [g for g in (grid or XG) if not st.hasD(g) and st.free(g) == 2 and st.nS(g) == 0]
        n = 0
        avail = len([j for j in self.jobs if j[2] <= s*64+63])
        k = min(cap, avail, len(slots))
        use = [slots[(i*len(slots))//k] for i in range(k)] if k else []
        for g in slots:
            t = s*64+g
            c = sorted(j for j in self.jobs if j[2] <= t)
            if not c: continue
            j = c[0]
            nxt = [x for x in slots if x > g]
            urgent = j[0] < (s*64+nxt[0] if nxt else (s+1)*64+1)
            if not (urgent or (n < cap and (g in use or len(nxt) < k-n))): continue
            assert t <= j[0] + (24 if j[5][0] == "x" else 0) or j[5] in ("qs", "kvf", "qf") or (j[5] == "kv" and (j[2] >= 64 or j[0] > j[2])), ("job late", j, t)
            if j[3]:
                assert g-1 not in st.scc_busy
                st.put(g-1, j[3])
            st.put(g, j[4]); self.jobs.remove(j); self.at[j[5]] = t; n += 1

def mf_pv(half, pb, czero=False):
    return [f"{MF} {vr(O(dt,qt),4)}, {ar(FR(half*16+dt),4)}, {vr(P(pb,qt),4)}, {'0' if czero else vr(O(dt,qt),4)}"
            for dt in range(16) for qt in range(2)]
def mf_qk(half, sb, qb, czero=False):
    out = []
    for kt in range(2):
        seq = [(u, qt) for u in range(8) for qt in range(2)]
        if OPT["chq"]: seq = [(g*4+u, qt) for g in range(2) for qt in ((0, 1), (1, 0))[g] for u in range(4)]
        for u, qt in seq:
            c = ('0' if czero else vr(NEGM(qt),4)) if u == 0 else vr(S(sb,kt,qt),4)
            out.append(f"{MF} {vr(S(sb,kt,qt),4)}, {ar(FR(half*16+kt*8+u),4)}, {ar(Q(qb,qt,QU(u)),4)}, {c}")
    return out
def mf_pvh(half, pb):
    return [x if i & 1 else None for i, x in enumerate(mf_pv(half, pb))]
def mf_qkh(half, sb, qb):
    out = []
    for kt in range(2):
        for u in range(8):
            c = vr(NEGM(1),4) if u == 0 else vr(S(sb,kt,1),4)
            out += [None, f"{MF} {vr(S(sb,kt,1),4)}, {ar(FR(half*16+kt*8+u),4)}, {ar(Q(qb,1,QU(u)),4)}, {c}"]
    return out
def mf_proj(s, init=None):
    out = []
    for nt in range(16):
        seq = [(0, 0, 1), (1, 0, 0), (1, 1, 1), (0, 1, 0)] if OPT["chp"] else [(0, 0, 1), (0, 1, 1), (1, 0, 0), (1, 1, 0)]
        for uu, qt, first in seq:
            c = vr(O(nt,qt),4)
            if first and init == "zero": c = "0"
            if first and init == "bias": c = vr(O(nt,1),4)
            out.append(f"{MF} {vr(O(nt,qt),4)}, {ar(FR(2*nt+uu),4)}, {ar(X(qt,2*s+uu),4)}, {c}")
    return out
def PA(b, nt, qt): return 64 + (nt*2+qt)*4 if b == 0 else O(2*nt+1, qt)
def mf_post(s):
    out = []
    for f in range(32):
        u, nt = f >> 2, f & 3
        for qt in range(2):
            d = vr(PA(s & 1, nt, qt), 4)
            out.append(f"{MF} {d}, {ar(FR(f),4)}, {vr(O(2*u,qt),4)}, {'0' if u == 0 else d}")
    return out

def sm_ops(b, qts=(0, 1)):
    ops = []
    seq = [(kt, qt, rp) for kt in range(2) for qt in qts for rp in range(2)]
    pend = []
    for i, (kt, qt, rp) in enumerate(seq):
        t0 = vT + (i % 4)*2
        s0 = S(b,kt,qt) + rp*2
        ops.append(f"v_exp_f32 v{t0}, v{s0}")
        ops += pend[:1]
        ops.append(f"v_exp_f32 v{t0+1}, v{s0+1}")
        ops += pend[1:]
        acc = vSUM[qt][rp]
        if kt == 0: pend = [f"v_add_f32 v{acc}, v{t0}, v{t0+1}"]
        else: pend = [f"v_add_f32 v{acc}, v{acc}, v{t0}", f"v_add_f32 v{acc}, v{acc}, v{t0+1}"]
        pend.append(f"v_cvt_pk_bf16_f32 v{P(b,qt)+kt*2+rp}, v{t0}, v{t0+1}")
    ops.append("s_nop 0")
    ops += pend
    ops += [f"v_add_f32 v{vSUM[q][0]}, v{vSUM[q][0]}, v{vSUM[q][1]}" for q in qts]
    return ops

def mask_code(b, qt, lab, back):
    big = vr(vBIG, 2)
    cm = lambda q: [f"v_cndmask_b32 v{q+r}, v{q+r}, v{vBIG}, s[{sMASK+2*r}:{sMASK+2*r+1}]" for r in range(4)]
    o = [f"s_bitcmp1_b32 s{sWAVE}, 0", f"s_cbranch_scc1 {lab}_odd"] + cm(S(b,0,qt))
    o += [f"{lab}_all:"] + [f"v_mov_b64 {vr(S(b,1,qt)+r,2)}, {big}" for r in (0, 2)]
    o += [f"s_branch {back}", f"{lab}_odd:", "s_nop 3"] + cm(S(b,1,qt)) + [f"s_branch {back}"]
    return o

def place_sm(st, b, g0, g_end, tag, ladd=(0, 1), first=False, mask=True, qts=(0, 1), d=None):
    lab, back = f"L_domask_{tag}", f"L_nomask_{tag}"
    if d is not None:
        st.put(g0-1, f"s_bitcmp1_b32 s{sWAVE}, 1")
        o = mask_code(b, d >> 1, lab, back)
        if d & 1: o = [f"s_cbranch_scc0 {lab}_a0"] + o + [f"{lab}_a0:", "s_nop 1"] + [f"v_mov_b64 {vr(S(b,kt,d>>1)+r,2)}, {vr(vBIG,2)}" for kt in range(2) for r in (0, 2)]
        else: o = [f"s_cbranch_scc1 {back}"] + o[:-1]
        st.put(g0, "\n".join(o)); st.put(g0, back + ":")
        st.scc_busy |= {g0-1}
    elif mask and b == 0 and tag not in ("fa1", "pt0"):
        st.put(g0-1, f"s_cmp_eq_u32 s{sCNT}, s{sN if first else sND}")
        if tag in OPT["inl"]: st.put(g0, f"s_cbranch_scc0 {back}\n" + "\n".join(mask_code(b, 0, lab, back)[:-1]))
        else:
            assert tag in ("s00", "s01")
            st.put(g0, "s_cbranch_scc1 L_domask_s00")
        st.put(g0, back + ":")
        st.scc_busy |= {g0-1}
    ge = OPT["fe"] if first else g0
    def add(ins, deps=(), early=0): return st.add(ins, deps, max(early, ge), g_end)
    la = [add(f"v_add_f32 v{vL[q]}, v{vL[q]}, v{vSUM[q][0]}") for q in ladd or ()]
    seq = [(kt, qt, rp) for kt in range(2) for qt in (qts[::-1] if first else qts) for rp in range(2)]
    users = {}; lastacc = {}; NT = 6
    for i, (kt, qt, rp) in enumerate(seq):
        t0 = vT + (i % NT)*2
        s0 = S(b,kt,qt) + rp*2
        war = users.get(i - NT, [])
        e = g0 + (1 if kt == 0 else 3)
        if st.mf[0] is None: e = g0 + 4*kt
        if first: e = ge if kt == 0 and (qt == 1 or tag == "fa1") else g0
        e0 = add(f"v_exp_f32 v{t0}, v{s0}", war, e)
        e1 = add(f"v_exp_f32 v{t0+1}, v{s0+1}", war, e)
        acc = vSUM[qt][rp]
        if kt == 0:
            a0 = add(f"v_add_f32 v{acc}, v{t0}, v{t0+1}", [e0, e1] + la)
            u = [a0]; lastacc[(qt,rp)] = a0
        else:
            a0 = add(f"v_add_f32 v{acc}, v{acc}, v{t0}", [e0, lastacc[(qt,rp)]])
            a1 = add(f"v_add_f32 v{acc}, v{acc}, v{t0+1}", [e1, a0])
            u = [a0, a1]; lastacc[(qt,rp)] = a1
        c = st.add(f"v_cvt_pk_bf16_f32 v{P(b,qt)+kt*2+rp}, v{t0}, v{t0+1}", [e0, e1], ge, g_end-1)
        users[i] = u + [c]
    if 0 in qts: f0 = add(f"v_add_f32 v{vSUM[0][0]}, v{vSUM[0][0]}, v{vSUM[0][1]}", [lastacc[(0,0)], lastacc[(0,1)]])
    f1 = add(f"v_add_f32 v{vSUM[1][0]}, v{vSUM[1][0]}, v{vSUM[1][1]}", [lastacc[(1,0)], lastacc[(1,1)]])
    hi = f2u(2.0**OPT["thr"])
    if 0 not in qts: add(f"v_cmp_nge_f32 vcc, {hi:#x}, v{vSUM[1][0]}", [f1])
    elif not first:
        mx = add(f"v_max_f32 v{vT+14}, v{vSUM[0][0]}, v{vSUM[1][0]}", [f0, f1])
        add(f"v_cmp_nge_f32 vcc, {hi:#x}, v{vT+14}", [mx])
    else:
        lo = f2u(2.0**-OPT["thr"])
        m0 = add(f"v_subrev_u32 v{vT+14}, {lo:#x}, v{vSUM[0][0]}", [f0])
        m1 = add(f"v_subrev_u32 v{vT+15}, {lo:#x}, v{vSUM[1][0]}", [f1])
        mx = add(f"v_max_u32 v{vT+14}, v{vT+14}, v{vT+15}", [m0, m1])
        add(f"v_cmp_lt_u32 vcc, {hi-lo:#x}, v{vT+14}", [mx])

def xlane_ops(op, v, t1):
    return [(f"v_mov_b32 v{t1}, v{v}", 0), (f"v_permlane16_swap_b32 v{v}, v{t1}", 2), (f"{op} v{v}, v{v}, v{t1}", 1),
            (f"v_mov_b32 v{t1}, v{v}", 0), (f"v_permlane32_swap_b32 v{v}, v{t1}", 2), (f"{op} v{v}, v{v}, v{t1}", 1)]
def xlane(a, op, v, t1):
    for ins, d in xlane_ops(op, v, t1):
        if d: a(f"s_nop {d-1}")
        a(ins)

class Chain:
    def __init__(self, items, grid=None): self.items = list(items); self.lastg = -10; self.grid = grid; self.base = 0; self.lastD = -999; self.minD = 0
    def fill(self, st, g0=0, g1=63):
        g = g0; lastg = -10
        while self.items and g <= g1:
            ins, dist = self.items[0][:2]
            early = self.items[0][2] if len(self.items[0]) > 2 else 0
            c = cls(ins)
            ok = g - lastg >= dist and g >= early and not st.hasD(g)
            if ok and g == lastg and not (c in "VE" and cls(self.last) in "VM"): ok = False
            if ok:
                if c == "S": ok = (st.nS(g) == 0 or st.free(g) >= 1) and not (g in st.scc_busy and not ins.startswith(("s_mov", "s_mul", "s_wait", "s_nop")))
                elif c == "D": ok = st.free(g) == 2 and st.nS(g) == 0 and (self.grid is None or g in self.grid) and self.base + g - self.lastD >= self.minD
                else: ok = st.free(g) >= COST[c]
            if ok:
                st.put(g, ins); self.items.pop(0); lastg = g; self.last = ins
                if c == "D": self.lastD = self.base + g
            else:
                g += 1
    def flush(self, a):
        for it in self.items:
            if it[1]: a(f"s_nop {it[1]-1}")
            a(it[0])
        self.items = []

SITES = []
def touch(path):
    nm = f"{path}{len(SITES)}"; SITES.append((nm, path))
    c = lambda w: f"s_call_b64 s[{sRET}:{sRET+1}], LT_{nm}_{w}"
    return (f"s_bitcmp1_b32 s{sWAVE}, 1\ns_cbranch_scc1 LH_{nm}\ns_bitcmp1_b32 s{sWAVE}, 0\ns_cbranch_scc1 LA_{nm}\n{c(0)}\ns_branch LR_{nm}\nLA_{nm}:\n{c(1)}\ns_branch LR_{nm}\n"
            f"LH_{nm}:\ns_bitcmp1_b32 s{sWAVE}, 0\ns_cbranch_scc1 LB_{nm}\n{c(2)}\ns_branch LR_{nm}\nLB_{nm}:\n{c(3)}\nLR_{nm}:")

def gen(name="mega_kernel"):
    a = Asm()
    STUBS.clear(); SITES.clear(); SOFT[:] = OPT["soft"]
    stamps = OPT["stamps"]
    nst = [0]
    def stamp_ins():
        i = nst[0]; nst[0] += 1
        assert i < NSTAMP
        return f"s_memrealtime s[{sSTAMP+2*i}:{sSTAMP+2*i+1}]"
    def streg(i): return sSTAMP+2*i if i < NSTAMP else sMASK+2*(i-NSTAMP)
    def stamp(i, p=False):
        if OPT["pst"] and 2 <= i <= 6 and not p: return
        if p and not OPT["pst"]: return
        if stamps: a(f"s_memrealtime s[{streg(i)}:{streg(i)+1}]")
    def merge(lbl, align=False):
        if align: a.raw(".p2align 6")
        a.label(lbl); a.comment("@merge")
    strideA, strideB = 2048, 8192
    a.raw(kernel_header(name))
    a("s_cmp_ge_u32 s2, 256")
    a("s_cbranch_scc0 L_go")
    a("s_endpgm")
    a.label("L_go")
    stamp(0)
    sW12, sX = sMASK, sMASK+4
    gHEAD, gMT, gWM, gWN = sCNT, sEV, sCLAMP, sFIRST
    a(f"""
    s_load_dwordx2 s[{sSA}:{sSA+1}], s[0:1], 8
    s_load_dwordx4 s[{sT}:{sT+3}], s[0:1], 24
    s_load_dwordx2 s[{sWS}:{sWS+1}], s[0:1], 104
    s_load_dwordx2 s[{sX}:{sX+1}], s[0:1], 0
    s_load_dwordx2 s[{sDBG}:{sDBG+1}], s[0:1], 96
    s_load_dwordx2 s[{sW12}:{sW12+1}], s[0:1], 56
    s_load_dwordx2 s[{sRET}:{sRET+1}], s[0:1], 72
    s_load_dwordx2 s[{sT+6}:{sT+7}], s[0:1], 16
    v_and_b32 v{vLANE}, 63, v0
    v_lshrrev_b32 v{GT}, 6, v0
    v_lshlrev_b32 v{vL16}, 4, v{vLANE}
    v_readfirstlane_b32 s{sWAVE}, v{GT}
    s_and_b32 s3, s2, 7
    s_lshl_b32 s3, s3, 1
    s_lshr_b32 s{sJ}, s2, 4
    s_bfe_u32 s{sWHICH}, s2, 0x10003
    s_add_u32 s{sHEAD}, s3, s{sWHICH}
    s_and_b32 s{gHEAD}, s{sJ}, 1
    s_add_u32 s{gHEAD}, s{gHEAD}, s3
    s_lshr_b32 s{gWM}, s2, 1
    s_xor_b32 s{gMT}, s2, s{gWM}
    s_bfe_u32 s{gMT}, s{gMT}, 0x10005
    s_lshl_b32 s{gMT}, s{gMT}, 2
    s_lshr_b32 s{gWM}, s2, 6
    s_xor_b32 s{gWM}, s{gWM}, 2
    s_or_b32 s{gMT}, s{gMT}, s{gWM}
    """)
    if OPT["map2"]:
        a(f"""
        s_bfe_u32 s{gHEAD}, s2, 0x10005
        s_add_u32 s{gHEAD}, s{gHEAD}, s3
        s_lshl_b32 s{gMT}, s{sWHICH}, 2
        s_bfe_u32 s{gWM}, s2, 0x10004
        s_or_b32 s{gMT}, s{gMT}, s{gWM}
        s_bfe_u32 s{gWM}, s2, 0x10007
        s_xor_b32 s{gWM}, s{gWM}, 1
        s_lshl_b32 s{gWM}, s{gWM}, 1
        s_or_b32 s{gMT}, s{gMT}, s{gWM}
        s_bfe_u32 s{sWHICH}, s2, 0x10006
        """)
    if OPT["swap"]:
        a(f"""
        s_cmp_lt_u32 s{sJ}, 8
        s_cselect_b32 s{gWM}, {2*OPT["swap"]}, 0
        s_xor_b32 s{sHEAD}, s{sHEAD}, s{gWM}
        """)
    a(f"""
    s_and_b32 s{gWM}, s{sWAVE}, 1
    s_lshr_b32 s{gWN}, s{sWAVE}, 1
    """)
    t2, t3, t4, t5, t6 = GT, GT+1, GT+2, GT+3, GT+4
    a(f"""
    v_lshrrev_b32 v{t2}, 3, v{vLANE}
    s_lshl_b32 s{gA0}, s{gMT}, 8
    s_lshl_b32 s{gA1}, s{sWAVE}, 6
    {f"s_lshl_b32 s{gMA}, s{gWM}, 5" if OPT["chg"] else ""}
    {f"s_sub_u32 s{gA1}, s{gA1}, s{gMA}" if OPT["chg"] else ""}
    s_lshl_b32 s{gMA}, s{gA1}, 7
    s_add_u32 s{gA0}, s{gA0}, s{gA1}
    v_add_u32 v{t2}, s{gA0}, v{t2}
    v_lshlrev_b32 v{t2}, 11, v{t2}
    v_and_b32 v{t3}, 7, v{vLANE}
    v_lshrrev_b32 v{t4}, 4, v{vLANE}
    v_xor_b32 v{t5}, v{t3}, v{t4}
    v_lshl_add_u32 v{t5}, v{t5}, 4, v{t2}
    v_xor_b32 v{t6}, 4, v{t4}
    v_xor_b32 v{t6}, v{t3}, v{t6}
    v_lshl_add_u32 v{t6}, v{t6}, 4, v{t2}
    """)
    for jl in range(4):
        a(f"v_add_u32 v{DA[jl]}, {4096 + jl*8*strideA - jl*1024}, v{t5 if (jl & 1) == 0 else t6}")
    a(f"""
    v_bfe_u32 v{t2}, v{vLANE}, 3, 2
    v_lshlrev_b32 v{t3}, 13, v{t2}
    v_lshrrev_b32 v{t4}, 5, v{vLANE}
    v_lshl_add_u32 v{t3}, v{t4}, {18 if OPT["chg"] == 1 else 7}, v{t3}
    v_lshrrev_b32 v{t4}, 1, v{t2}
    v_lshlrev_b32 v{t4}, 2, v{t4}
    v_and_b32 v{t5}, 7, v{vLANE}
    v_xor_b32 v{t4}, v{t4}, v{t5}
    s_lshl_b32 s{gA0}, s{gWM}, 1
    v_xor_b32 v{t4}, s{gA0}, v{t4}
    v_lshl_add_u32 v{t3}, v{t4}, 4, v{t3}
    s_lshl_b32 s{gA0}, s{gHEAD}, 9
    s_lshl_b32 s{gA1}, s{sWAVE}, 16
    s_add_u32 s{gA0}, s{gA0}, s{gA1}
    v_add_u32 v{t3}, s{gA0}, v{t3}
    """)
    for jl in range(4):
        a(f"v_add_u32 v{DB[jl]}, {4096 + (jl>>1)*4*strideB + (jl&1)*(32*strideB if OPT['chg'] == 2 else 256) - jl*1024}, v{t3}")
    a(f"""
    s_mul_i32 s{gA1}, s3, {OPT["rot"]*64}
    s_mul_i32 s{gA0}, s{gMT}, {OPT["rotm"]*128}
    s_add_u32 s{gA1}, s{gA1}, s{gA0}
    s_and_b32 s{gA1}, s{gA1}, 0x7ff
    s_lshl_b32 s{gMB}, s{sWAVE}, 12
    s_mov_b32 s{sSA+2}, {4194304+4096}
    s_mov_b32 s{sSA+3}, 0x20000
    s_mov_b32 s{sSB+2}, {8388608+4096}
    s_mov_b32 s{sSB+3}, 0x20000
    @PST2
    s_waitcnt lgkmcnt(0)
    @PST3
    s_sub_u32 s{sSA}, s{sSA}, 4096
    s_subb_u32 s{sSA+1}, s{sSA+1}, 0
    s_cmp_eq_u32 s{sWHICH}, 0
    s_cselect_b32 s{sSB}, s{sT}, s{sT+2}
    s_cselect_b32 s{sSB+1}, s{sT+1}, s{sT+3}
    s_sub_u32 s{sSB}, s{sSB}, 4096
    s_subb_u32 s{sSB+1}, s{sSB+1}, 0
    """)
    for i in (2, 3):
        k = [n for n, l in enumerate(a.lines) if f"@PST{i}" in l][0]
        a.lines[k] = f"s_memrealtime s[{streg(i)}:{streg(i)+1}]" if OPT["pst"] else ""
    MA, MB = (0x207ff if OPT["chg"] else 0x107ff), 0x7fffff
    hA = 64 if OPT["chg"] else 32; hB = (32*strideB, 128, 256)[OPT["chg"]]
    gRA, gRB, gTS = gA1, gCNT, (gA0, sT)
    a(f"s_lshl_b32 s{gRB}, s{gRA}, 12")
    def dma_group(kind, par):
        t = gTS[par & 1]
        if kind[0] == "A":
            _, it, h = kind
            m0 = f"s_add_u32 m0, s{gMA}, {(131072, 0, 65536)[it % 3] + h*hA*128}"; regs, srd = DA, sSA
            so = f"s_add_u32 s{t}, s{gRA}, {h*hA*strideA + it*128}\ns_and_b32 s{t}, s{t}, {MA}"
        elif kind[0] == "B":
            _, it, h = kind
            m0 = f"s_add_u32 m0, s{gMB}, {32768 + (it & 1)*65536 + h*16384}"; regs, srd = DB, sSB
            so = f"s_add_u32 s{t}, s{gRB}, {it*64*strideB + h*hB}\ns_and_b32 s{t}, s{t}, {MB}"
        else:
            y = kind[1]
            return f"s_add_u32 m0, s{gMB}, {y*16384}", f"s_add_u32 s{t}, s{sW0}, {y*16384}", \
                   [f"buffer_load_dwordx4 v{vDMA}, {WS}, s{t} offen offset:{i*1024}{ld()} lds ; @gU{y}" for i in range(4)]
        return m0, so, [f"buffer_load_dwordx4 v{regs[jl]}, {sr(srd,4)}, s{t} offen offset:{jl*1024}{OPT['nt' + kind[0]]} lds ; @g{kind[0]}{it}_{h}" for jl in range(4)]
    todo = []
    for it in range(16):
        if OPT["chg"]: todo += [(2*it-1+h, 2*(it-d)+h, (k_, it, h)) for h in range(2) for k_, d in (("A", 3), ("B", 2))]
        else: todo += [(2*it-1, 2*(it-3)+1, ("A", it, 0)), (2*it-1, 2*(it-2), ("B", it, 0)), (2*it-1, 2*(it-3)+1, ("A", it, 1)), (2*it, 2*(it-2)+1, ("B", it, 1))]
    todo += [(31+y, av, ("U", y)) for y, av in enumerate((27, 27, 28, 29, 29, 29, 30, 31))]
    GS = {}; order = []
    for n in range(-1, 32):
        cap = OPT["npro"] if n < 0 else OPT["gcap"][min(n, len(OPT["gcap"])-1)]
        c = sorted([x for x in todo if x[1] <= n], key=lambda x: x[0])[:cap]
        for x in c: todo.remove(x); assert x[0] > n or n < 0, (x, n)
        GS[n] = [x[2] for x in c]; order += GS[n]
    assert not todo
    print("GS", {n: len(v) for n, v in GS.items()}, file=sys.stderr)
    def gtag(k): return f"gU{k[1]}" if k[0] == "U" else f"g{k[0]}{k[1]}_{k[2]}"
    def gwait(n):
        it, kk = (n+1) >> 1, (n+1) & 1
        need = [("U", 0), ("U", 1)] if n == 31 else [("B", it, 1)] if kk else [("A", it, 0), ("A", it, 1), ("B", it, 0)]
        if OPT["chg"] and n < 31: need = [("A", it, kk), ("B", it, kk)]
        return f"vmcnt(@since:{gtag(max(need, key=order.index))})"
    main = a; a = Asm()
    sWID, u_, nb_, o_, o2_ = sXOFF, sT+1, sT+2, sT+3, sT+4
    sD = [sQST, sPT, sPSG]; sXS = sPSS; sHI = sFSG; sSTR = sFSS
    vWO, vW12 = vRD, vDMA
    G = sr(sG, 4)
    r_, g_, r8 = GT, GT+1, GT+2
    h_, i_ = GT+5, GT+6
    a(f"""
    s_lshl_b32 s{sWID}, s2, 2
    s_add_u32 s{sWID}, s{sWID}, s{sWAVE}
    s_mov_b32 s{sX+2}, {2048*896}
    s_mov_b32 s{sX+3}, 0x20000
    v_and_b32 v{h_}, 3, v{vLANE}
    v_lshrrev_b32 v{i_}, 2, v{vLANE}
    v_mul_u32_u24 v{GT+7}, 896, v{h_}
    v_lshl_add_u32 v{GT+7}, v{i_}, 4, v{GT+7}
    v_cmp_gt_u32 s[{sLN}:{sLN+1}], 14, v{i_}
    v_mov_b32 v{GT+8}, {OOB}
    s_lshr_b32 s{gB1}, s{sWID}, 1
    s_mul_i32 s{gB1}, s{gB1}, 3584
    s_mul_i32 s{gB0}, s{gWM}, 448
    s_add_u32 s{gB1}, s{gB1}, s{gB0}
    v_cndmask_b32 v{GT+11}, v{GT+8}, v{GT+7}, s[{sLN}:{sLN+1}]
    s_getpc_b64 s[{sG}:{sG+1}]
    L_pc:
    s_sub_u32 s{sG}, s{sG}, L_pc - L_gemmV
    s_subb_u32 s{sG+1}, s{sG+1}, 0
    s_mov_b32 s{sG+2}, L_codeend - L_gemmV
    s_mov_b32 s{sG+3}, 0x20000
    s_lshr_b32 s{gB0}, s2, 3
    s_lshl_b32 s{gB0}, s{gB0}, 2
    s_add_u32 s{gB0}, s{gB0}, s{sWAVE}
    s_lshl_b32 s{gB0}, s{gB0}, 10
    s_mov_b32 s{sWS+2}, {WS_SIZE}
    s_mov_b32 s{sWS+3}, 0x20000
    v_and_b32 v{r_}, 15, v{vLANE}
    v_lshrrev_b32 v{g_}, 4, v{vLANE}
    v_lshlrev_b32 v{r8}, 3, v{r_}
    """)
    r8p = GT+3 if OPT["o4"] else r8
    if OPT["o4"]:
        a(f"""
        v_and_b32 v{r8p}, 64, v{r8}
        v_lshl_add_u32 v{r8p}, v{h_}, 4, v{r8p}
        v_and_b32 v{GT+4}, 4, v{vLANE}
        v_lshl_add_u32 v{r8p}, v{GT+4}, 1, v{r8p}
        """)
    def natdest(dst, base):
        a(f"""
        s_lshr_b32 s{o_}, s{nb_}, 2
        s_mul_i32 s{o_}, s{o_}, {7*32768}
        s_lshr_b32 s{o2_}, s{u_}, 1
        s_lshl_b32 s{o2_}, s{o2_}, 15
        s_add_u32 s{o_}, s{o_}, s{o2_}
        s_and_b32 s{o2_}, s{nb_}, 3
        s_lshl_b32 s{o2_}, s{o2_}, 13
        s_add_u32 s{o_}, s{o_}, s{o2_}
        s_and_b32 s{o2_}, s{u_}, 1
        s_lshl_b32 s{o2_}, s{o2_}, 10
        s_add_u32 s{o_}, s{o_}, s{o2_}
        s_add_u32 s{dst}, s{o_}, {base}
        """)
    def div7(idx):
        a(f"""
        s_mul_i32 s{u_}, s{idx}, 9363
        s_lshr_b32 s{u_}, s{u_}, 16
        s_mul_i32 s{nb_}, s{u_}, 7
        s_sub_u32 s{nb_}, s{idx}, s{nb_}
        """)
    def ffdest(dst, base, lim, idx=sWID):
        a(f"""
        s_mul_i32 s{o_}, s{nb_}, {184*4096}
        s_lshl_b32 s{o2_}, s{u_}, 12
        s_add_u32 s{o_}, s{o_}, s{o2_}
        s_add_u32 s{dst}, s{o_}, {base}
        s_cmp_lt_u32 s{idx}, {lim}
        s_cselect_b32 s{dst}, s{dst}, {OOB}
        """)
    a(f"""
    s_mov_b32 s{sDBG+2}, 16
    s_mov_b32 s{sDBG+3}, 0x20000
    v_mul_u32_u24 v{vWO}, {4*896}, v{g_}
    v_add_u32 v{vWO}, v{vWO}, v{r8p}
    s_lshl_b32 s{gD}, s{gMT}, 1
    s_add_u32 s{gD}, s{gD}, s{sWHICH}
    s_lshl_b32 s{gD}, s{gD}, 2
    s_add_u32 s{gD}, s{gD}, s{sWAVE}
    """)
    div7(gD)
    a(f"""
    s_lshl_b32 s{o_}, s{gHEAD}, 3
    s_add_u32 s{u_}, s{u_}, s{o_}
    s_mul_i32 s{o_}, s{u_}, {32*896}
    s_lshl_b32 s{o2_}, s{nb_}, 7
    s_add_u32 s{o_}, s{o_}, s{o2_}
    s_cmp_lt_u32 s{gD}, 56
    s_cselect_b32 s{o_}, s{o_}, {OOB}
    v_add_u32 v{vWO}, s{o_}, v{vWO}
    """)
    ffdest(sD[1], WS_WFF + 56*4096, 56, gD)
    a(f"""
    s_lshr_b32 s{u_}, s{sWID}, 2
    s_mul_i32 s{u_}, s{u_}, 9363
    s_lshr_b32 s{u_}, s{u_}, 16
    s_mul_i32 s{nb_}, s{u_}, 28
    s_sub_u32 s{nb_}, s{sWID}, s{nb_}
    s_mul_i32 s{sHI}, s{u_}, {32*3584}
    s_lshl_b32 s{o2_}, s{nb_}, 7
    s_add_u32 s{sHI}, s{sHI}, s{o2_}
    """)
    natdest(sSTR, WS_W1F)
    a(f"s_sub_u32 s{sT+5}, s{sWID}, 392")
    a(f"s_and_b32 s{sT+5}, s{sT+5}, 1023")
    div7(sT+5)
    ffdest(sD[2], WS_WFF, 784)
    a(f"""
    s_lshr_b32 s{o_}, s{u_}, 1
    s_mul_i32 s{o_}, s{o_}, {64*896}
    s_and_b32 s{o2_}, s{u_}, 1
    s_mul_i32 s{o2_}, s{o2_}, {2*896}
    s_add_u32 s{o_}, s{o_}, s{o2_}
    s_lshl_b32 s{o2_}, s{nb_}, 7
    s_add_u32 s{o_}, s{o_}, s{o2_}
    s_mov_b32 s{sW12+2}, {448*3584}
    s_mov_b32 s{sW12+3}, 0x20000
    s_cmp_lt_u32 s{sWID}, 392
    s_cselect_b32 s{sW12}, s{sW12}, s{sRET}
    s_cselect_b32 s{sW12+1}, s{sW12+1}, s{sRET+1}
    s_cselect_b32 s{o_}, s{sHI}, s{o_}
    s_cselect_b32 s{sD[2]}, s{sSTR}, s{sD[2]}
    s_cselect_b32 s{sHI}, 16, 1
    s_cselect_b32 s{sSTR}, 2, 1
    s_cselect_b64 vcc, -1, 0
    s_mul_i32 s{sHI}, s{sHI}, 896
    s_mul_i32 s{o2_}, s{sSTR}, {16*896}
    s_lshl_b32 s{sSTR}, s{sSTR}, 10
    v_mul_u32_u24 v{vW12}, s{o2_}, v{g_}
    v_cndmask_b32 v{r8}, v{r8p}, v{r8}, vcc
    v_add3_u32 v{vW12}, v{vW12}, v{r8}, s{o_}
    v_lshlrev_b32 v{GT+9}, 8, v{i_}
    v_lshl_add_u32 v{GT+9}, v{h_}, 4, v{GT+9}
    v_cndmask_b32 v{vSX}, v{GT+8}, v{GT+9}, s[{sLN}:{sLN+1}]
    s_lshr_b32 s{o_}, s{sWID}, 3
    s_mul_i32 s{o_}, s{o_}, 14336
    s_and_b32 s{o2_}, s{sWID}, 6
    s_lshl_b32 s{o2_}, s{o2_}, 5
    s_add_u32 s{sXS}, s{o_}, s{o2_}
    s_mul_i32 s{o2_}, s{gWM}, 7168
    s_add_u32 s{sXS}, s{sXS}, s{o2_}
    s_xor_b32 s{o2_}, s{sWID}, {OPT["zid"]*4}
    s_lshl_b32 s{sFQ}, s{o2_}, 10
    s_add_u32 s{sFQ}, s{sFQ}, {WS_FLG}
    s_cmp_lt_u32 s{o2_}, 32
    s_cselect_b32 s{sFQ}, s{sFQ}, {OOB}
    v_cmp_eq_u32 vcc, 0, v{vLANE}
    v_mov_b32 v{vONE}, 1
    v_and_b32 v{vL4}, 3, v{vLANE}
    v_lshlrev_b32 v{vL4}, 2, v{vL4}
    v_cndmask_b32 v{vFLG}, v{GT+8}, v{vLANE}, vcc
    s_mov_b32 s{sRET}, s{sT+6}
    s_mov_b32 s{sRET+1}, s{sT+7}
    s_lshr_b32 s{u_}, s{gD}, 2
    s_lshl_b32 s{nb_}, s{gHEAD}, 2
    s_add_u32 s{nb_}, s{nb_}, s{sWAVE}
    s_lshl_b32 s{o_}, s{u_}, 18
    s_lshl_b32 s{o2_}, s{nb_}, 7
    s_add_u32 s{o_}, s{o_}, s{o2_}
    v_and_b32 v{vSW}, 3, v{vLANE}
    v_lshlrev_b32 v{vSW}, 5, v{vSW}
    v_bfe_u32 v{GT+9}, v{vLANE}, 2, 2
    v_lshl_add_u32 v{vSW}, v{GT+9}, 3, v{vSW}
    v_lshl_add_u32 v{vSW}, v{g_}, 16, v{vSW}
    v_add_u32 v{vSW}, s{o_}, v{vSW}
    v_mov_b32 v{vSF}, v{vL16}
    """)
    natdest(sD[0], WS_WQF)
    a(f"s_cmp_lt_u32 s{gD}, 56")
    a(f"s_cselect_b32 s{sD[0]}, s{sD[0]}, {OOB}")
    assert WS_XF == 0
    a(f"""
    v_bfe_u32 v{t4}, v{vLANE}, 1, 3
    s_lshl_b32 s{o_}, s{gWM}, 14
    s_add_u32 s{o_}, s{o_}, 131072
    v_lshlrev_b32 v{r_}, 7, v{r_}
    v_add_u32 v{r_}, s{o_}, v{r_}
    """)
    for kk in range(2):
        a(f"v_or_b32 v{t5}, {4*kk}, v{g_}")
        a(f"v_xor_b32 v{t5}, v{t5}, v{t4}")
        a(f"v_lshl_add_u32 v{RA[kk]}, v{t5}, 4, v{r_}")
    a(f"""
    v_lshlrev_b32 v{t2}, 12, v{g_}
    v_bfe_u32 v{t4}, v{vLANE}, 2, 2
    v_lshl_add_u32 v{t2}, v{t4}, 7, v{t2}
    v_and_b32 v{t5}, 3, v{vLANE}
    v_lshl_add_u32 v{t2}, v{t5}, 3, v{t2}
    s_lshl_b32 s{o_}, s{gWN}, {9 if OPT["chg"] == 2 else 10}
    s_add_u32 s{o_}, s{o_}, 32768
    v_add_u32 v{t2}, s{o_}, v{t2}
    v_lshrrev_b32 v{t4}, 1, v{t4}
    v_lshlrev_b32 v{t4}, 6, v{t4}
    v_and_b32 v{t5}, 1, v{g_}
    v_lshlrev_b32 v{t5}, 5, v{t5}
    v_or_b32 v{t4}, v{t4}, v{t5}
    """)
    for q in range(4):
        a(f"v_xor_b32 v{t5}, {(q>>1)*64 + (q&1)*32}, v{t4}")
        a(f"v_add_u32 v{RB[q]}, v{t5}, v{t2}")
    a(f"""
    s_mul_i32 s{sKVB}, s{gHEAD}, {HS}
    s_mul_i32 s{o_}, s{gMT}, {8*US}
    s_add_u32 s{sKVB}, s{sKVB}, s{o_}
    s_mul_i32 s{o_}, s{gWM}, {4*US}
    s_add_u32 s{sKVB}, s{sKVB}, s{o_}
    s_add_u32 s{o2_}, s{sWHICH}, 12
    s_lshl_b32 s{o_}, s{gWN}, {12 if OPT["chg"] == 2 else f"s{o2_}"}
    s_add_u32 s{sKVB}, s{sKVB}, s{o_}
    s_mul_i32 s{o_}, s{sWHICH}, {WS_VF - WS_KF}
    s_add_u32 s{sKVB}, s{sKVB}, s{o_}
    s_add_u32 s{sKVB}, s{sKVB}, {WS_KF}
    s_lshr_b32 s{sKVI}, 8192, {0 if OPT["chg"] == 2 else f"s{sWHICH}"}
    s_add_u32 s{sKVI}, s{sKVI}, s{sKVB}
    s_lshl_b32 s{sFKV}, s{gHEAD}, 8
    s_lshr_b32 s{o_}, s{gMT}, 2
    s_and_b32 s{o2_}, s{gMT}, 3
    s_lshl_b32 s{o2_}, s{o2_}, 1
    s_or_b32 s{o_}, s{o_}, s{o2_}
    s_cmp_ge_u32 s{o_}, 2
    s_cselect_b32 s{o2_}, 112, 0
    s_add_u32 s{sFKV}, s{sFKV}, s{o2_}
    s_lshl_b32 s{o_}, s{o_}, 3
    s_add_u32 s{sFKV}, s{sFKV}, s{o_}
    s_lshl_b32 s{o_}, s{sWHICH}, 2
    s_add_u32 s{sFKV}, s{sFKV}, s{o_}
    s_add_u32 s{sFKV}, s{sFKV}, {WS_FLG + FL_KV}
    s_lshl_b32 s{sFKVP}, s{sHEAD}, 8
    s_add_u32 s{sFKVP}, s{sFKVP}, {WS_FLG + FL_KV}
    s_xor_b32 s{o_}, s2, {OPT["zid"]}
    s_cmp_eq_u32 s{sWAVE}, 0
    s_cselect_b32 s{sFKV}, s{sFKV}, {OOB}
    s_cselect_b32 s{sFKVP}, s{sFKVP}, {OOB}
    s_cselect_b32 s{gFL}, s{o_}, {OOB}
    s_cselect_b32 s{gIT}, 0, {OOB}
    """)
    WQ, B1, ST1, N0, STA2, XR1, XR2 = sT+1, sT+2, sT+3, sN, sT+4, sND, sXOF2
    a(f"""
    s_or_b32 s{sQI}, s{sJ}, 8
    s_mul_i32 s{WQ}, s{sHEAD}, {7*32768}
    s_add_u32 s{WQ}, s{WQ}, {WS_WQF}
    s_mov_b32 s{sW0}, s{WQ}
    s_mov_b32 s{XR1}, s{sQI}
    s_mov_b32 s{ST1}, 32768
    s_bitcmp1_b32 s{sHEAD}, 1
    s_cselect_b32 s{N0}, {OPT['n0'][1]}, {OPT['n0'][0]}
    s_cselect_b32 s{STA2}, {OPT['a15'][1]}, {OPT['a15'][0]}
    s_cmp_eq_u32 s{sQI}, 15
    s_cselect_b32 s{STA2}, s{STA2}, 0
    s_add_u32 s{N0}, s{N0}, s{STA2}
    s_cmp_eq_u32 s{sQI}, 8
    s_cselect_b32 s{STA2}, {OPT["cap8"]}, 64
    s_min_u32 s{N0}, s{N0}, s{STA2}
    @atomic
    s_cmp_ge_u32 s{sJ}, 8
    s_cbranch_scc1 L_typeA
    s_mov_b32 s{sTYPE}, 2
    s_sub_u32 s{B1}, s{WQ}, {5*32768}
    s_sub_u32 s{XR2}, 15, s{sQI}
    s_lshl_b32 s{sU1}, s{sQI}, 2
    s_sub_u32 s{sU2}, 64, s{sU1}
    s_add_u32 s{sU1}, s{sU1}, 4
    s_sub_u32 s{sU1}, s{sU1}, s{N0}
    s_add_u32 s{STA2}, s{sU1}, 14
    s_add_u32 s{sT+7}, s{STA2}, s{sU2}
    s_branch L_typedone
    """)
    a.label("L_typeA")
    a(f"""
    s_mov_b32 s{sU1}, s{N0}
    s_add_u32 s{sT+7}, s{N0}, 14
    s_mov_b32 s{sU2}, 2
    s_mov_b32 s{N0}, 0
    s_mov_b32 s{STA2}, 100
    s_mov_b32 s{XR2}, 0x4000
    s_mov_b32 s{sTYPE}, 1
    s_mov_b32 s{B1}, {OOB}
    s_cmp_eq_u32 s{sJ}, 15
    s_cbranch_scc1 L_typedone
    s_mov_b32 s{sTYPE}, 0
    s_mul_i32 s{XR1}, s{sHEAD}, 7
    s_add_u32 s{XR1}, s{XR1}, s{sJ}
    s_sub_u32 s{XR1}, s{XR1}, 8
    s_lshr_b32 s{sT}, s{XR1}, 4
    s_and_b32 s{XR1}, s{XR1}, 15
    s_mul_i32 s{sW0}, s{sT}, {7*32768}
    s_add_u32 s{sW0}, s{sW0}, {WS_W1F}
    s_lshl_b32 s{B1}, s{sT}, 15
    s_add_u32 s{B1}, s{B1}, {WS_WFF}
    s_mov_b32 s{ST1}, {184*4096}
    """)
    a.label("L_typedone")
    a("@end")
    tA, tB, tC, tD = GT, GT+1, GT+2, GT+3
    KB, VB = sT+5, sT+6
    a(f"""
    s_mul_i32 s{KB}, s{sHEAD}, {HS}
    s_add_u32 s{VB}, s{KB}, {WS_VF}
    s_add_u32 s{KB}, s{KB}, {WS_KF}
    v_mov_b32 v{vTE}, {OOB}
    """)
    def seg_lin(start, base, stride):
        a(f"v_subrev_u32 v{tA}, {start}, v{vLANE}")
        a(f"v_cmp_gt_u32 vcc, 7, v{tA}")
        a(f"v_mul_u32_u24 v{tB}, {stride}, v{tA}")
        a(f"v_add_u32 v{tB}, s{base}, v{tB}")
        a(f"v_cndmask_b32 v{vTE}, v{vTE}, v{tB}, vcc")
    seg_lin(0, sW0, 32768)
    seg_lin(7, B1, f"s{ST1}")
    a(f"s_lshl_b32 s{sT}, s{sHEAD}, 15")
    a(f"s_add_u32 s{sT}, s{sT}, {WS_WFF + 56*4096}")
    seg_lin(f"s{sT+7}", sT, 184*4096)
    a(f"v_add_u32 v{vTO}, 16384, v{vTE}")
    def seg_att(start, n0, U):
        for tab in (vTO, vTE):
            a(f"v_subrev_u32 v{tA}, {start}, v{vLANE}")
            if n0 is not None: a(f"v_add_u32 v{tB}, s{n0}, v{tA}")
            else: a(f"v_mov_b32 v{tB}, v{tA}")
            a(f"v_mul_u32_u24 v{tB}, {US}, v{tB}")
            if tab == vTO:
                a(f"s_sub_u32 s{sT}, s{U}, 1")
                a(f"v_cmp_eq_u32 vcc, s{sT}, v{tA}")
                a(f"v_add_u32 v{tC}, s{KB}, v{tB}")
                a(f"v_add_u32 v{tC}, {US}, v{tC}")
                a(f"v_add_u32 v{tD}, s{VB}, v{tB}")
            else:
                a(f"v_cmp_eq_u32 vcc, 0, v{tA}")
                a(f"v_add_u32 v{tC}, s{VB}, v{tB}")
                a(f"v_subrev_u32 v{tC}, {US}, v{tC}")
                a(f"v_add_u32 v{tD}, s{KB}, v{tB}")
            a(f"v_cndmask_b32 v{tC}, v{tC}, v{tD}, vcc")
            a(f"v_cmp_gt_u32 vcc, s{U}, v{tA}")
            a("s_nop 1")
            a(f"v_cndmask_b32 v{tab}, v{tab}, v{tC}, vcc")
    seg_att(14, N0, sU1)
    seg_att(f"s{STA2}", None, sU2)
    XO1, XO2 = sXOFF, sXOF2
    a(f"""
    s_lshl3_add_u32 s{XO1}, s{XR1}, s{sWAVE}
    s_mul_i32 s{XO1}, s{XO1}, 14336
    s_lshl3_add_u32 s{XO2}, s{XR2}, s{sWAVE}
    s_mul_i32 s{XO2}, s{XO2}, 14336
    s_lshl_b32 s{sW4K}, s{sWAVE}, 12
    s_mov_b32 s{sCLAMP}, 0x05040100
    s_mov_b32 s{sFIRST}, 0x07060302
    """)
    setup_l = [l.strip() for l in a.lines if l.strip()]
    a = main
    seq = []
    for k, kind in enumerate(GS[-1]):
        m0, so, ins = dma_group(kind, 0)
        seq += [[m0, so, ins[0]]] + [[x] for x in ins[1:]]
        if k == OPT["xpos"]:
            seq += [[f"buffer_load_dwordx4 {ar(SLD+48,4)}, v{GT+11}, {sr(sX,4)}, s{gB1} offen"], [f"buffer_load_dwordx4 {ar(SLD+52,4)}, v{GT+11}, {sr(sX,4)}, s{gB1} offen offset:224"],
                    [f"s_xor_b32 s{gB1}, s{gB1}, 448", f"buffer_load_dwordx4 {ar(SLD+56,4)}, v{GT+11}, {sr(sX,4)}, s{gB1} offen"], [f"buffer_load_dwordx4 {ar(SLD+60,4)}, v{GT+11}, {sr(sX,4)}, s{gB1} offen offset:224 ; @sx"]]
    if OPT["cpf"]: seq += [[f"buffer_load_dwordx4 a[200:203], v{vL16}, {G}, s{gB0} offen"], [f"s_add_u32 s{gB0}, s{gB0}, 131072", f"buffer_load_dwordx4 a[204:207], v{vL16}, {G}, s{gB0} offen"]]
    nowr = ("s_mov", "s_mul_i32", "s_nop", "s_cselect", "s_getpc", "s_cbranch", "s_branch")
    def scc_live(k):
        for l in setup_l[k:]:
            if l.startswith(("s_cselect", "s_cbranch_scc", "s_subb")): return True
            if l.startswith("s_") and not l.startswith(nowr): return False
        return False
    step = len(setup_l) / (len(seq) - 0.5)
    atomic = False; nxt = 0.0
    for k, l in enumerate(setup_l):
        if seq and k >= nxt and not atomic and not scc_live(k) and not l.endswith(":"):
            for x in seq.pop(0): a(x)
            nxt += step
        if l == "@atomic": atomic = True
        elif l == "@end": atomic = False
        else: a(l)
    for g in seq:
        for x in g: a(x)
    print("setup instrs", len(setup_l), "left", len(seq), file=sys.stderr)
    a(f"""
    s_mov_b32 s{sG}, s{sRET}
    s_mov_b32 s{sG+1}, s{sRET+1}
    s_mov_b32 s{sG+2}, {448*8192}
    """)
    if OPT["dbgside"] & 1:
        for r in sD: a(f"s_mov_b32 s{r}, {OOB}")
    if OPT["dbgside"] & 2: a(f"s_mov_b32 s{sXS}, {OOB}")
    if OPT["dbgside"] & 4:
        for r in (vWO, vW12, vSW): a(f"v_mov_b32 v{r}, {OOB}")
    def side_chain():
        c = []
        z = GT+8
        c += [(f"v_mov_b64 {vr(z,2)}, 0", 0), (f"v_mov_b64 {vr(z+2,2)}, 0", 0), (f"buffer_store_dwordx4 {vr(z,4)}, v{vL16}, {WS}, s{sFQ} offen sc1 ; @zst", 1)]
        if OPT["fsep"]:
            c += [(f"s_lshl2_add_u32 s{sFQ}, s2, s{sWAVE}", 1), (f"s_mul_i32 s{sFQ}, s{sFQ}, {OPT['fsep']}", 1), (f"s_add_u32 s{sFQ}, s{sFQ}, {WS_FLG + FL_S3}", 1),
                  (f"buffer_store_dword v{z}, v{vFLG}, {WS}, s{sFQ} offen sc1", 1)]
        c.append(("s_waitcnt vmcnt(@since:sx)", 1))
        U = GT; m_, v_, t_, t2_ = GT+16, GT+17, vG1, vPOLL
        for i in range(8):
            c.append((f"v_accvgpr_read_b32 v{t_}, a{SLD+48+i}", 2 if i == 0 else 0))
            c.append((f"v_lshlrev_b32 v{U+2*i}, 16, v{t_}", 0))
            c.append((f"v_and_b32 v{U+2*i+1}, 0xffff0000, v{t_}", 0))
        def red(v):
            r = [(f"v_add_f32_dpp v{v}, v{v}, v{v} row_ror:{sh} row_mask:0xf bank_mask:0xf", 2) for sh in (8, 4)]
            return r + xlane_ops("v_add_f32", v, t2_)
        c.append((f"v_add_f32 v{m_}, v{U}, v{U+1}", 0)); c.append((f"v_add_f32 v{v_}, v{U+2}, v{U+3}", 0))
        for i in range(4, 16, 2):
            c.append((f"v_add_f32 v{m_}, v{m_}, v{U+i}", 0)); c.append((f"v_add_f32 v{v_}, v{v_}, v{U+i+1}", 0))
        for i in range(8):
            c += [(x, 0) for x in (f"v_accvgpr_read_b32 v{t_}, a{SLD+56+i}", f"v_lshlrev_b32 v{t2_}, 16, v{t_}", f"v_and_b32 v{t_}, 0xffff0000, v{t_}",
                  f"v_add_f32 v{m_}, v{m_}, v{t2_}", f"v_add_f32 v{v_}, v{v_}, v{t_}")]
        c.append((f"v_add_f32 v{m_}, v{m_}, v{v_}", 0))
        c += red(m_)
        c.append((f"v_mul_f32 v{m_}, {f2u(1.0/448):#x}, v{m_}", 0))
        for i in range(16):
            c.append((f"v_sub_f32 v{t_}, v{U+i}, v{m_}", 0))
            c.append((f"v_mul_f32 v{v_}, v{t_}, v{t_}" if i == 0 else f"v_fma_f32 v{v_}, v{t_}, v{t_}, v{v_}", 0))
        for i in range(8):
            c += [(x, 0) for x in (f"v_accvgpr_read_b32 v{t_}, a{SLD+56+i}", f"v_lshlrev_b32 v{t2_}, 16, v{t_}", f"v_and_b32 v{t_}, 0xffff0000, v{t_}",
                  f"v_sub_f32 v{t2_}, v{t2_}, v{m_}", f"v_sub_f32 v{t_}, v{t_}, v{m_}", f"v_fma_f32 v{v_}, v{t2_}, v{t2_}, v{v_}", f"v_fma_f32 v{v_}, v{t_}, v{t_}, v{v_}")]
        c.append((f"v_cndmask_b32 v{v_}, 0, v{v_}, s[{sLN}:{sLN+1}]", 0))
        c += red(v_)
        for x in (f"v_mul_f32 v{v_}, {f2u(1.0/448):#x}, v{v_}", f"v_cvt_pk_bf16_f32 v{t_}, v{m_}, v{v_}", f"v_lshlrev_b32 v{m_}, 16, v{t_}",
                  f"v_and_b32 v{v_}, 0xffff0000, v{t_}", f"v_add_f32 v{v_}, {f2u(1e-5):#x}, v{v_}", f"v_cvt_pk_bf16_f32 v{v_}, v{v_}, v{v_}",
                  f"v_lshlrev_b32 v{v_}, 16, v{v_}", f"v_sqrt_f32 v{v_}, v{v_}"):
            c.append((x, 0))
        c.append((f"v_cvt_pk_bf16_f32 v{v_}, v{v_}, v{v_}", 1))
        c.append((f"v_lshlrev_b32 v{v_}, 16, v{v_}", 0))
        c.append((f"v_rcp_f32 v{v_}, v{v_}", 0))
        for i in range(16): c.append((f"v_sub_f32 v{U+i}, v{U+i}, v{m_}", 1 if i == 0 else 0))
        for i in range(8):
            for x in (f"v_cvt_pk_bf16_f32 v{t_}, v{U+2*i}, v{U+2*i+1}", f"v_lshlrev_b32 v{U+2*i}, 16, v{t_}", f"v_and_b32 v{U+2*i+1}, 0xffff0000, v{t_}",
                      f"v_mul_f32 v{U+2*i}, v{U+2*i}, v{v_}", f"v_mul_f32 v{U+2*i+1}, v{U+2*i+1}, v{v_}", f"v_cvt_pk_bf16_f32 v{U+i}, v{U+2*i}, v{U+2*i+1}"):
                c.append((x, 0))
        if OPT["hold"] is not None: c.append((f"s_waitcnt vmcnt(@since:sl{OPT['hold']})", 1, 0, OPT["hold"]))
        c.append((f"buffer_store_dwordx4 {vr(U,4)}, v{vSX}, {WS}, s{sXS} offen sc1", 1))
        c.append((f"buffer_store_dwordx4 {vr(U+4,4)}, v{vSX}, {WS}, s{sXS} offen offset:3584 sc1", 1))
        def relay(rnd, land):
            c.append((f"s_waitcnt vmcnt(@since:sl{rnd})", 1, 0, rnd))
            for h in range(2):
                for e in range(8):
                    c.append((f"v_accvgpr_read_b32 v{GT+e}, a{land+2*e+h}", 2 if e == 0 else 0))
                for jj in range(2):
                    o = GT+8+4*jj
                    for p in range(4):
                        c.append((f"v_perm_b32 v{o+p}, v{GT+2*p+1}, v{GT+2*p}, s{(sCLAMP, sFIRST)[jj]}", 0))
                    if rnd == 1: c.append((f"buffer_store_dwordx4 {vr(o,4)}, v{vL16}, {WS}, s{sD[rnd]} offen offset:{(2*h+jj)*1024} sc1", 1))
                    else:
                        c.append((f"buffer_store_dwordx4 {vr(o,4)}, v{vSF}, {WS}, s{sD[rnd]} offen sc1", 1))
                        c.append((f"v_add_u32 v{vSF}, s{sSTR}, v{vSF}", 1))
        relay(2, SLD+32)
        c.append((f"s_waitcnt vmcnt(@since:sl0)", 1, 0, 0))
        c.append((f"s_mov_b32 s{sHI}, {f2u(QSCALE):#x}", 1))
        for h in range(2):
            for p in range(4):
                t = GT + (p & 1)*4
                c += [(x, 0) for x in (f"v_accvgpr_read_b32 v{t}, a{SLD+4*p+h}", f"v_accvgpr_read_b32 v{t+1}, a{SLD+4*p+2+h}",
                      f"v_lshlrev_b32 v{t+2}, 16, v{t}", f"v_lshlrev_b32 v{t+3}, 16, v{t+1}", f"v_and_b32 v{t}, 0xffff0000, v{t}", f"v_and_b32 v{t+1}, 0xffff0000, v{t+1}")]
                c += [(f"v_mul_f32 v{t+i}, s{sHI}, v{t+i}", 0) for i in range(4)]
                c += [(f"v_cvt_pk_bf16_f32 v{GT+8+p}, v{t+2}, v{t+3}", 0), (f"v_cvt_pk_bf16_f32 v{GT+12+p}, v{t}, v{t+1}", 0)]
            if h == 1: c.append((f"s_add_u32 s{sD[0]}, s{sD[0]}, 4096", 1))
            for jj in range(2):
                c.append((f"buffer_store_dwordx4 {vr(GT+8+4*jj,4)}, v{vL16}, {WS}, s{sD[0]} offen offset:{jj*2048} sc1 ; @sst", 1))
        relay(1, WOL)
        c += [(x, 0) for x in (f"v_add_u32 v{vDMA}, s{sW4K}, v{vL16}", f"v_mov_b32 v{vRD}, v{vL16}",  f"v_lshrrev_b32 v{GT}, 4, v{vLANE}",
              f"v_lshlrev_b32 v{GT}, 2, v{GT}", f"v_and_b32 v{GT+1}, 15, v{vLANE}", f"v_sub_u32 v{GT}, v{GT+1}, v{GT}")]
        c += [(f"v_cmp_gt_i32 s[{sMASK+2*r}:{sMASK+2*r+1}], {r}, v{GT}", 0) for r in range(4)]
        c = [((x[0].replace(" sc1", OPT["sidesc"]),) + tuple(x[1:]) if x[0].startswith("buffer_store") else x) for x in c]
        if OPT["wbl2"]: c.append(("s_waitcnt vmcnt(4)", 30)); c.append(("buffer_wbl2 sc1", 1))
        return Chain(c, XG4)
    def reads(kk, buf):
        if OPT["chg"]:
            ra = [f"ds_read_b128 {ar(CA(m,k),4)}, v{RA[k]} offset:{m*2048}" for m in range(4*kk, 4*kk+4) for k in range(2)]
            rb = [f"ds_read_b64_tr_b16 {ar(CB(n,k)+2*sec,2)}, v{RB[n&3]} offset:{kk*16384+sec*2048+k*512*OPT['chg']}" for n in range(4*kk, 4*kk+4) for k in range(2) for sec in range(2)]
            if kk: return ra + rb
            return rb[:4] + [x for m in range(4) for x in ra[2*m:2*m+2] + rb[4+2*m:6+2*m]] + rb[12:]
        ra = [f"ds_read_b128 {ar(FA(buf,m),4)}, v{RA[kk]} offset:{m*2048}" for m in range(8)]
        rb = [f"ds_read_b64_tr_b16 {ar(FB(buf,n)+2*sec,2)}, v{RB[n&3]} offset:{kk*16384+sec*2048+(n>>2)*512}" for n in range(8) for sec in range(2)]
        out = []
        for i in range(8): out += [ra[i], rb[2*i], rb[2*i+1]]
        return out
    stamp(6, True)
    for k_ in range(OPT["tg"].count(-1)):
        a(f"s_cmp_eq_u32 s{sWHICH}, 0\ns_cbranch_scc0 L_tv{k_}")
        a(touch("K")); a(f"s_branch L_tw{k_}\nL_tv{k_}:"); a(touch("V")); a(f"L_tw{k_}:")
    a(f"s_waitcnt {gwait(-1)}")
    a("s_barrier")
    for r in reads(0, 0): a(r)
    stamp(1)
    a(f"s_cmp_eq_u32 s{sWHICH}, 0")
    a("s_cbranch_scc0 L_gemmV")
    a.label("L_gK")
    pre_lines = len(a.lines)
    sJT = sT+2
    def xjob(J, key, i, base, early, late, rot=0):
        u, qt = i >> 1, i & 1
        J.add(key, f"s_add_u32 s{sJT}, s{base}, {qt*4*14336+((u+rot)%14)*1024}", f"buffer_load_dwordx4 {ar(X(qt,u),4)}, v{vL16}, {WS}, s{sJT} offen{ld()} ; @{key}", early, late - (3 - (i & 3))*8)
    def kvjob(J, c, early, late):
        blk = c >> 2
        J.add("kv", f"s_add_u32 s{sJT}, s{sKVI if blk & 1 else sKVB}, {(blk>>1)*US+(c&3)*1024}",
              f"buffer_store_dwordx4 {vr(PK(c),4)}, v{vL16}, {WS}, s{sJT} offen{OPT['kvs2']} ; @kv", early, late)
    pw, t6, t7 = sEV, sCNT, sND
    gtab = sum(g << (4*k) for k, g in enumerate(OPT["gev"]))
    fss = f"s_lshl_b32 s{sFSS}, s{t6}, 9\ns_add_u32 s{sFSS}, s{sFSS}, s{pw}\ns_lshl_b32 s{t7}, s{sHEAD}, 2\ns_add_u32 s{sFSS}, s{sFSS}, s{t7}"
    if OPT["fsep"]: fss = f"s_lshl2_add_u32 s{sFSS}, s2, s{sWAVE}\ns_mul_i32 s{sFSS}, s{sFSS}, {OPT['fsep']}\ns_add_u32 s{sFSS}, s{sFSS}, {WS_FLG + FL_S3}"
    setup = f"""
    s_mov_b32 s{sLN}, {gtab & 0xffffffff:#x}
    s_mov_b32 s{sLN+1}, {gtab >> 32:#x}
    s_lshl_b32 s{pw}, s{sHEAD}, 3
    s_and_b32 s{t6}, s{sJ}, 7
    s_add_u32 s{pw}, s{pw}, s{t6}
    s_lshl_b32 s{pw}, s{pw}, 2
    s_add_u32 s{pw}, s{pw}, s{sWAVE}
    s_mul_i32 s{sQST}, s{pw}, {Q_W}
    s_add_u32 s{sQST}, s{sQST}, {WS_QF}
    s_mul_i32 s{sPT}, s{pw}, {PT_W}
    s_add_u32 s{sPT}, s{sPT}, {WS_PT}
    s_lshl_b32 s{sFQ}, s{pw}, 5
    s_add_u32 s{sFQ}, s{sFQ}, {WS_FLG + FL_Q}
    s_mul_i32 s{t7}, s{sWAVE}, {28*1024}
    s_add_u32 s{t7}, s{t7}, {WS_PS}
    s_mul_i32 s{pw}, s{sHEAD}, 7
    s_add_u32 s{pw}, s{pw}, s{t6}
    s_lshr_b32 s{t6}, s{pw}, 4
    s_and_b32 s{sFSG}, s{pw}, 15
    s_lshl_b32 s{sT+3}, s{t6}, 9
    s_mul_i32 s{sPSG}, s{sFSG}, {PS_R}
    s_add_u32 s{sPSG}, s{sPSG}, s{t7}
    s_mul_i32 s{pw}, s{t6}, {PS_SRC}
    s_add_u32 s{sPSG}, s{sPSG}, s{pw}
    s_add_u32 s{sPSG}, s{sPSG}, {16*PS_SRC}
    s_lshl_b32 s{sFSG}, s{sFSG}, 9
    s_lshl_b32 s{pw}, s{t6}, 2
    s_add_u32 s{sFSG}, s{sFSG}, s{pw}
    s_lshl_b32 s{pw}, s{sWAVE}, 7
    s_add_u32 s{pw}, s{pw}, {WS_FLG + FL_S}
    s_add_u32 s{sFSG}, s{sFSG}, s{pw}
    s_add_u32 s{sFSG}, s{sFSG}, 64
    s_lshr_b32 s{t6}, s{sJ}, 3
    s_mul_i32 s{t6}, s{t6}, 7
    s_xor_b32 s{t6}, s{t6}, 7
    s_xor_b32 s{t6}, s{t6}, s{sJ}
    {fss}
    s_lshr_b32 s{sCNT}, s{sU1}, 1
    s_sub_u32 s{sCNT}, s{sCNT}, 1
    s_lshl_b32 s{sEV}, s{sJ}, 2
    s_lshr_b64 s[{sT+4}:{sT+5}], s[{sLN}:{sLN+1}], s{sEV}
    s_and_b32 s{sEV}, s{sT+4}, 15
    """.strip().split("\n")
    setup = [(x.strip(), 1) for x in setup]
    CLR = GT+4
    setup0 = f"""
    v_mov_b64 {vr(CLR,2)}, -1
    v_mov_b64 {vr(CLR+2,2)}, -1
    s_mul_i32 s{t7}, s{sWAVE}, {28*1024}
    s_lshr_b32 s{t6}, s{sJ}, 3
    s_mul_i32 s{t6}, s{t6}, 7
    s_xor_b32 s{t6}, s{t6}, 7
    s_xor_b32 s{t6}, s{t6}, s{sJ}
    s_mul_i32 s{sPSS}, s{t6}, {PS_R}
    s_add_u32 s{sPSS}, s{sPSS}, s{t7}
    s_mul_i32 s{t7}, s{sHEAD}, {PS_SRC}
    s_add_u32 s{sPSS}, s{sPSS}, s{t7}
    s_add_u32 s{sPSS}, s{sPSS}, {WS_PS}
    """.strip().split("\n")
    setup0 = [(x.strip(), 1) for x in setup0]
    if OPT["dp"] in (None, 7):
        k = [x[0].startswith(f"s_xor_b32 s{t6}, s{t6}, s{sJ}") for x in setup].index(True)
        setup[k+1:k+1] = setup0[7:11]; setup0 = []
    setup.append((f"s_cmp_eq_u32 s{sTYPE}, 1\ns_cselect_b32 s{sQST}, {OOB}, s{sQST}", 1))
    setup.append((f"s_cmp_eq_u32 s{sTYPE}, 0\ns_cselect_b32 s{sFSG}, s{sFSG}, {OOB}", 1))
    setup.append((f"s_cmp_eq_u32 s{sWAVE}, 0\ns_cselect_b32 s{sT+1}, 0, 0x40000000\ns_cselect_b32 s{sEXP}, 1, 0\ns_or_b32 s{sFQ}, s{sFQ}, s{sT+1}", 1))
    setup2 = [(x, 1) for x in (f"s_mov_b32 s{sTAU}, 4", f"s_add_u32 s{sM0}, s{sW4K}, {8*16384}", f"s_add_u32 s{sOFFB}, s{sW0}, {8*16384}",
              f"s_mov_b32 s{sRDD}, {-131072}", f"s_mov_b32 s{gMA}, {-131072}", f"s_mov_b32 s{gMB}, 32768", f"s_mov_b32 m0, s{sM0}")]
    for typ in ("K", "V"):
        if typ == "V":
            a.label("L_gemmV")
            for l in a.lines[:pre_lines]:
                if l.strip().startswith("buffer_") or "@merge" in l: a.raw("@ghost " + l.strip())
        def pos0(m, n): return m*8+n if typ == "K" else (m >> 1)*16 + n*2 + (m & 1)
        done = {pos0(m, n): (n >> 2)*64 + m*8 + (n & 3)*2 + 1 for m in range(8) for n in range(8)}
        corder = sorted(range(32), key=lambda c: (max(done[2*c], done[2*c+1]) >> 3, c not in dict(OPT["es"]), c))
        slot = {p: p for p in range(64)}
        if OPT["es"]:
            assert len(ENL()) <= 20 and OPT["chg"]
            slot = {2*c: (PK(c)-48)//4 for c in range(32)}
            rest = [x for x in range(52) if x not in slot.values()]
            ag = [c for c in corder[:16] if c not in [x[0] for x in OPT["es"][:4]]][:12]
            for c in corder: slot[2*c+1] = 52 + ag.index(c) if c in ag else rest.pop()
        def pos(m, n): return slot[pos0(m, n)]
        def pack_chain():
            pk = []
            for x_ in sorted(range(64), key=lambda x: (done[x] >> 3, corder.index(x >> 1), x)):
                c = x_ >> 1; e = done[x_] + 3
                r = PK(c); p = slot[2*c+1]; q = 48+4*p; t = GT+17
                cv = lambda d, x, y: pk.append((f"v_cvt_pk_bf16_f32 v{d}, v{x}, v{y}", 0, e))
                rd = lambda d, i: pk.append((f"v_accvgpr_read_b32 v{d}, a{208+4*(p-52)+i}", 0, e))
                if x_ & 1 == 0: cv(r, r, r+1); cv(r+1, r+2, r+3)
                elif p < 52: cv(r+2, q, q+1); cv(r+3, q+2, q+3)
                else: rd(r+2, 0); rd(r+3, 1); rd(t, 3); cv(r+2, r+2, r+3); rd(r+3, 2); cv(r+3, r+3, t)
            return Chain(pk)
        def es_place(st, n, pk):
            J2 = Jobs(); sg = [(c, g - (n-30)*64) for c, g in OPT["es"] if g >> 6 == n-30]
            for c, g in sg: kvjob(J2, c, g, g)
            J2.place(st, 0, 16, [g for c, g in sg]); assert not J2.jobs
            return sg
        def es_fill(st, n, pk, sg):
            pk.fill(st)
            for c, g in sg:
                key = f"v_cvt_pk_bf16_f32 v{PK(c)+3},"
                assert not any(x[0].startswith(key) for x in pk.items) and all(w < g for w, v in st.fill.items() if any(x.startswith(key) for x in v)), (c, g)
            pk.items = [(x[0], x[1], x[2]-64) for x in pk.items]
        def substep(it, kk):
            groups = GS[2*it+kk]
            buf = kk
            mf = []
            for m in range(8):
                for n in range(8):
                    acc = accreg(pos(m, n))
                    c = "0" if (it == 0 and kk == 0) else acc
                    x, y = ar(FB(buf,n),4), ar(FA(buf,m),4)
                    if OPT["chg"]:
                        n2 = 4*kk + (n >> 1); k = (n ^ (n >> 1)) & 1
                        acc = accreg(pos(m, n2)); c = "0" if (it == 0 and n & 1 == 0) else acc
                        x, y = ar(CB(n2,k),4), ar(CA(m,k),4)
                    if typ == "V": x, y = y, x
                    mf.append(f"{MF} {acc}, {x}, {y}, {c}")
            st = Stage(mf)
            st.put(-1, f"s_waitcnt {gwait(2*it+kk)} lgkmcnt(0)")
            st.put(-1, "s_barrier")
            last = (it == 15 and kk == 1)
            g, dg = 1, (OPT["dg2"] if len(groups) == 2 else 4)
            for k, kind in enumerate(groups):
                m0, so, ins = dma_group(kind, k)
                st.put(g-1, m0)
                st.put(g-2, so)
                for i in ins:
                    st.put(g, i); g += dg
            rd = reads(kk ^ 1, buf ^ 1) if not last else [f"ds_read_b128 {ar(FR(f),4)}, v{vRD} offset:{f*1024}" for f in range(12)]
            for i, r in enumerate(rd): st.put(i*2, r)
            if OPT["chg"] and kk == 0: st.put(31, "s_waitcnt lgkmcnt(8)")
            if kk == 0 and it < 15:
                d = -131072 if it % 3 == 0 else 65536
                for i, x in enumerate([f"v_add_u32 v{RA[0]}, {d}, v{RA[0]}", f"v_add_u32 v{RA[1]}, {d}, v{RA[1]}"] + [f"v_xor_b32 v{r}, 0x10000, v{r}" for r in RB]):
                    st.put(48 + 2*(i >> 1), x)
            if OPT["fine"]:
                st.put(2, f"{FT()} s[{sFS}:{sFS+1}]")
                st.put(4, f"v_mov_b32_dpp v0, v0 wave_shr:1 row_mask:0xf bank_mask:0xf")
                st.put(46, f"v_writelane_b32 v0, s{sFS}, 0")
            return st
        ch = side_chain()
        J = Jobs()
        for e in range(8):
            t = [x + e*OPT["slstep"] for x in OPT["slt"]]
            J.add("sl1", f"s_mov_b32 s{sJT}, {(e>>2)*16*896}", f"buffer_load_dwordx2 {ar(WOL+2*e,2)}, v{vWO}, {sr(sX,4)}, s{sJT} offen offset:{(e&3)*896}{OPT['ntS']} ; @sl1", t[2], t[2]+64)
            J.add("sl2", f"s_add_u32 s{sJT}, s{sHI}, {(e&3)*3584}" if e >> 2 else f"s_mov_b32 s{sJT}, {e*3584}",
                  f"buffer_load_dwordx2 {ar(SLD+32+2*e,2)}, v{vW12}, {sr(sW12,4)}, s{sJT} offen{OPT['ntS']} ; @sl2", t[0], t[0]+64)
            J.add("sl0", f"s_mov_b32 s{sJT}, {e*8192}", f"buffer_load_dwordx2 {ar(SLD+2*e,2)}, v{vSW}, {G}, s{sJT} offen{OPT['ntS']} ; @sl0", t[1], t[1]+64)
        NZ, NZP, NZC, NF, NP, NC = OPT["sync"]
        for i in range(20): xjob(J, "x1", i, XO1, (NC+1)*64 + i*OPT["xstep"], 31*64)
        for b in range(8):
            J.add("bias", None, f"buffer_load_dwordx4 {vr(BIAS+BP[b>>1]*8+(b&1)*4,4)}, v{GT+16}, {G}, s{sT+3} offen offset:{(b>>1)*128+(b&1)*16} ; @bias{b//6}", 31*64 if b >= 6 else 29*64, 31*64+24 if b >= 6 else 30*64+22)
        for i in range(4*(7-OPT["dp"]) if OPT["dp"] is not None else 0):
            t = OPT["clr0"] + i*OPT["clrs"]
            J.add("clr", f"s_add_u32 s{sJT}, s{sPSS}, {OPT['dp']*4096+i*1024}", f"buffer_store_dwordx4 {vr(CLR,4)}, v{vL16}, {WS}, s{sJT} offen sc1", t, t+64)
        su = Chain(setup)
        PV = GT+8
        for n in range(31):
            it, kk = n >> 1, n & 1
            st = substep(it, kk)
            if n == 0:
                st.put(62, f"s_load_dwordx2 s[{sX}:{sX+1}], s[0:1], 40")
                st.put(63, f"s_mov_b32 s{sX+2}, {4096*896}")
            if n == NZ-1: st.put(63, "s_waitcnt vmcnt(@since:zst)")
            if n == NZ: st.put(61, f"buffer_store_byte v{vONE}, v{vFLG}, {sr(sDBG,4)}, s{gFL} offen sc1")
            if n == NZP: st.put(61, f"buffer_load_dword v{vPOLL}, v{vL4}, {sr(sDBG,4)}, s{gIT} offen sc1 ; @zp")
            if n == NZC:
                st.put(54, "s_waitcnt vmcnt(@since:zp)")
                st.put(55, f"s_cmp_eq_u32 s{sWAVE}, 0\ns_cselect_b32 s{sT+1}, 0x01010101, 0")
                st.put(56, f"v_cmp_ne_u32 vcc, s{sT+1}, v{vPOLL}")
                st.put(60, f"s_cbranch_vccnz L_zwait{typ}")
                st.put(60, f"L_zok{typ}:")
            if n == NF-1:
                assert not any("@sst" in x[0] for x in ch.items) and NZC < NF
                st.put(63, "s_waitcnt vmcnt(@since:sst)")
                st.put(62, f"s_load_dwordx2 s[{sG}:{sG+1}], s[0:1], 64")
                st.put(59, f"s_mov_b32 s{sG+2}, 3584")
            if n == NF:
                st.put(55, f"s_add_u32 s{gIT}, s{gIT}, {WS_FLG+FL_PREP}")
                st.put(58, f"s_lshl2_add_u32 s{sT+1}, s2, s{gIT}")
                st.put(59+2*kk, f"buffer_store_dword v{vONE}, v{vFLG}, {WS}, s{sT+1} offen sc1")
            if n == NP:
                assert not ch.items
                st.put(61, f"buffer_load_dwordx4 {vr(PV,4)}, v{vL16}, {WS}, s{gIT} offen sc1 ; @prep")
            if n == NC:
                st.put(50, "s_waitcnt vmcnt(@since:prep)")
                st.put(51, f"s_cmp_eq_u32 s{sWAVE}, 0\ns_cselect_b32 s{sT+1}, 1, 0")
                st.put(54, f"v_and_b32 v{PV}, v{PV}, v{PV+1}")
                st.put(54, f"v_and_b32 v{PV+2}, v{PV+2}, v{PV+3}")
                st.put(55, f"v_and_b32 v{PV}, v{PV}, v{PV+2}")
                st.put(55, f"v_cmp_ne_u32 vcc, s{sT+1}, v{PV}")
                st.put(60, f"s_cbranch_vccnz L_prepwait{typ}")
                st.put(60, f"L_prepok{typ}:")
                st.put(56, f"v_lshrrev_b32 v{GT+16}, 4, v{vLANE}")
                st.put(56, f"v_lshlrev_b32 v{GT+16}, 5, v{GT+16}")
            if n == 30 and OPT["es"]: pk = pack_chain(); sg = es_place(st, n, pk)
            J.place(st, n, 10, XG4)
            if n == 30 and OPT["es"]: es_fill(st, n, pk, sg); print("pack left", len(pk.items), file=sys.stderr)
            if n >= 1 and ch.items:
                full = ch.items
                for k, x in enumerate(full):
                    if len(x) > 3:
                        key = f"sl{x[3]}"
                        if any(j[5] == key for j in J.jobs) or J.at[key] + OPT["sld"] > n*64+63:
                            ch.items = full[:k]; break
                        full[k] = (x[0], x[1], max(0, J.at[key] + OPT["sld"] - n*64), x[3])
                rest = full[len(ch.items):] if ch.items is not full else []
                ch.base = n*64; ch.minD = OPT["smin"]
                ch.fill(st)
                ch.items = ch.items + rest
                if typ == "K": print("substep", n, "chain left", len(ch.items), file=sys.stderr)
            elif n > NC: su.fill(st)
            if n == 19:
                s0 = Chain(setup0); s0.fill(st, 0, 33); assert not s0.items and not ch.items
            if n == 28: assert not any(j[5] == "clr" for j in J.jobs)
            if n == 28: assert not su.items
            st.emit(a)
            if OPT["tch"] and n in OPT["tg"]: a(touch(typ))
            if OPT["tch"] and n in OPT["tgs"]:
                a(f"s_cmp_eq_u32 s{sTYPE}, 0\ns_cbranch_scc0 L_tpb{typ}{n}")
                a(touch("a" + typ)); a(f"s_branch L_tpe{typ}{n}\nL_tpb{typ}{n}:"); a(touch("b" + typ)); a(f"L_tpe{typ}{n}:")
        st = substep(15, 1)
        J.place(st, 31, 2, [17, 21]); assert not J.jobs
        SG = [25, 33, 41, 49, 57, 61]
        if OPT["es"]: sg = es_place(st, 31, pk)
        else:
            for c in range(NE): kvjob(J, c, SG[c], SG[c])
        J.place(st, 0, 8, SG); assert not J.jobs
        su = Chain(setup2); su.fill(st, 30); assert not su.items
        slot_of = {pos(m, n): m*8+n for m in range(8) for n in range(8)}
        if OPT["chg"]: slot_of = {pos(m, n): (m*8+(n-4)*2+1 if n >= 4 else -1) for m in range(8) for n in range(8)}
        if OPT["es"]: es_fill(st, 31, pk, sg); pk_ = pk
        pk = []
        for c in range(0 if OPT["es"] else 32):
            e = max(slot_of[2*c], slot_of[2*c+1]) + 3
            if 20 <= c < 20+NE: e = max(e, SG[c-20]+2)
            src = []
            for h in range(2):
                p = 2*c+h
                if p < 52: src += [48+4*p+i for i in range(4)]
                else:
                    for i in range(4):
                        pk.append((f"v_accvgpr_read_b32 v{128+(p-52)*4+i}, a{208+4*(p-52)+i}", 0, e)); src.append(128+(p-52)*4+i)
            for i in range(4): pk.append((f"v_cvt_pk_bf16_f32 v{PK(c)+i}, v{src[2*i]}, v{src[2*i+1]}", 0, e))
        pk = Chain(pk); pk.fill(st)
        if OPT["es"]: pk = pk_
        for c in range(0 if OPT["es"] else NE):
            w = [g for g, v in st.fill.items() if any(x.startswith(f"v_cvt_pk_bf16_f32 v{PK(c)+3},") for x in v)]
            assert min(w) < SG[c], (c, w)
        st.emit(a)
        a("s_nop 7" if OPT["es"] else "s_nop 3")
        print("pack tail", len(pk.items), file=sys.stderr)
        pk.flush(a)
        a("s_waitcnt vmcnt(@since:bias0) lgkmcnt(8)")
        gt_ = [l.strip() for l in a.lines if l.strip().startswith("buffer_")][-80:]
        if typ == "V": assert [re.sub(r"v\[\d+:\d+\]", "", x) for x in gt_] == [re.sub(r"v\[\d+:\d+\]", "", x) for x in gtail]
        gtail = gt_
        a(f"s_cmp_eq_u32 s{sTYPE}, 0")
        a("s_cbranch_scc0 L_P1B")
        a("s_branch L_P1A")
    def unpack(nt):
        o = []
        for r in range(4):
            x = 4*r + (nt & 3); src = BIAS + BP[nt >> 2]*8 + (x >> 1)
            o.append(f"v_and_b32 v{O(nt,1)+r}, 0xffff0000, v{src}" if x & 1 else f"v_lshlrev_b32 v{O(nt,1)+r}, 16, v{src}")
        return o
    def p1_jobs(t0, step, slack=8):
        J = Jobs()
        if OPT["es"]:
            for k, c in enumerate(ENL()): kvjob(J, c, t0+k*step, t0+slack+k*step)
        else:
            for c in range(20+NE, 32): kvjob(J, c, 0, XG[c-20-NE])
            for k, c in enumerate(range(NE, 20+NE)): kvjob(J, c, t0+k*step, t0+slack+k*step)
        for i in range(20, 28): xjob(J, f"x1{i>>2}", i, XO1, (i >> 2)*64 - 134, (i >> 2)*64 - 70)
        return J
    def xwait(st, key): st.put(62, f"s_waitcnt vmcnt(@since:{key})")
    def flagjob(J, key, after, soff, delay):
        if key in J.at or any(j[5] in (after, key) for j in J.jobs): return
        t = J.at[after] + delay
        J.add(key, f"s_waitcnt vmcnt(@since:{after})\ns_barrier", f"buffer_store_dword v{vONE}, v{vFLG}, {WS}, s{soff} offen sc1", t, t+8)
    def split_chain(items, st_prev, mk_next, late_of):
        ch = Chain(items); ch.fill(st_prev)
        rest = ch.items
        for k in range(len(rest)+1):
            st = mk_next()
            c2 = Chain([(x[0], x[1]) for x in rest[k:]])
            before = {gg: len(v) for gg, v in st.fill.items()}
            c2.fill(st)
            if c2.items: continue
            where = {}
            for gg, v in st.fill.items():
                for ins in v[before.get(gg, 0):]: where[ins] = gg
            if all(where[x[0]] <= late_of(x[3]) for x in rest[k:]):
                return rest[:k], st
        raise AssertionError
    def emit_mid(mid):
        if mid: a("s_nop 3")
        Chain(mid).flush(a)
        if mid: a("s_nop 1")
    def post_groups(s, scale):
        out = []
        for qt in range(2):
            for p in range(2):
                t = vT + 16 + (qt*2+p)*4
                regs = [PA(s & 1, nt, qt) + 2*p + rr for rr in range(2) for nt in range(4)]
                ops = [f"v_mul_f32 v{r}, v{vRINV[qt]}, v{r}" for r in regs] if scale else []
                ops += [f"v_cvt_pk_bf16_f32 v{t+i}, v{regs[2*i]}, v{regs[2*i+1]}" for i in range(4)]
                out.append((ops, t))
        return out
    def post_store(s, k, t, base):
        if OPT["pr"] and base == sPSS and s < 3:
            return f"s_add_u32 s{sJT}, s{sPSG}, {(s+4*(OPT['pr'] == 1))*4096+k*1024}", f"buffer_store_dwordx4 {vr(t,4)}, v{vL16}, {WS}, s{sJT} offen{OPT['prsc']}"
        return f"s_add_u32 s{sJT}, s{base}, {s*4096+k*1024}", f"buffer_store_dwordx4 {vr(t,4)}, v{vL16}, {WS}, s{sJT} offen sc1"
    def post_place(st, s, scale, base, gaps):
        for k, (ops, t) in enumerate(post_groups(s, scale)):
            pre, ins = post_store(s, k, t, base)
            st.put(gaps[k]-1, pre); st.put(gaps[k], ins)
    def post_sched(st, s, scale, gaps):
        for k, (ops, t) in enumerate(post_groups(s, scale)):
            prev = None
            for x in ops: prev = st.add(x, [prev], 2, gaps[k]-1)
        st.schedule()
    def post_flush(s, scale, base):
        a("s_nop 5")
        for k, (ops, t) in enumerate(post_groups(s, scale)):
            for x in ops: a(x)
            for x in post_store(s, k, t, base): a(x)
    def mk_post(s):
        st = Stage(mf_post(s)); common_fill(st); return st
    def poll_issue(st, g, voff, soff, tag):
        st.put(g, f"buffer_load_dword v{vPOLL}, v{voff}, {WS}, s{soff} offen sc1 ; @{tag}")
    POLLS = []
    def poll_check(st, g, voff, soff, tag, lane0):
        st.put(g, f"s_waitcnt vmcnt(@since:{tag})")
        st.put(g, f"v_cmp_{'eq' if lane0 else 'ne'}_u32 s[{sT+4}:{sT+5}], s{sEXP}, v{vPOLL}")
        st.put(g+2, f"s_cmp_{'eq' if lane0 else 'lg'}_u64 s[{sT+4}:{sT+5}], 0\ns_cbranch_scc1 L_pw_{tag}")
        assert not ({g+1, g+2} & st.scc_busy)
        st.put(g+2, f"L_po_{tag}:")
        st.put(g+2, "s_barrier")
        POLLS.append((tag, voff, soff, lane0))
    def gsetup(st):
        t, u = sT+4, sT+5
        c = f"""
        v_min_u32 v{vPV}, 6, v{vLANE}
        v_lshl_add_u32 v{vPV}, v{vPV}, 2, 64
        v_lshrrev_b32 v{vS}, 4, v{vLANE}
        v_mul_u32_u24 v{vS}, {PS_SRC - 256}, v{vS}
        v_add_u32 v{vS}, v{vS}, v{vL16}
        v_cmp_gt_u32 s[{t}:{u}], 48, v{vLANE}
        s_lshr_b32 s{sPOLL}, s2, 2
        v_cndmask_b32 v{vS2}, v{vFLG}, v{vS}, s[{t}:{u}]
        s_lshl_b32 s{sPOLL}, s{sPOLL}, 7
        s_add_u32 s{sPOLL}, s{sPOLL}, {WS_FLG + FL_S}
        s_lshr_b32 s{t}, s2, 4
        s_mul_i32 s{sGC}, s{t}, {PS_R}
        s_bfe_u32 s{t}, s2, 0x20002
        s_mul_i32 s{u}, s{t}, {28*1024}
        s_add_u32 s{sGC}, s{sGC}, s{u}
        s_and_b32 s{t}, s{t}, {2*OPT["bal"]}
        s_xor_b32 s{t}, s{t}, s2
        s_and_b32 s{t}, s{t}, 3
        s_lshl2_add_u32 s{t}, s{sWAVE}, s{t}
        s_lshl_b32 s{u}, s{t}, 11
        s_add_u32 s{sGC}, s{sGC}, s{u}
        s_add_u32 s{sGC}, s{sGC}, {WS_PS + 16*PS_SRC}
        """
        c = [(x.strip(), 2 if "cndmask" in x else 1) for x in c.split("\n") if x.strip()]
        c.append((f"s_cmp_lt_u32 s{t}, 14\ns_cselect_b32 s{sGC}, s{sGC}, {OOB}", 1))
        c.append((f"s_cmp_lt_u32 s{sTYPE}, 2\ns_cselect_b32 s{sND}, 2, s{sWAVE}", 1))
        c.append((f"s_cmp_lt_u32 s{sND}, 2\ns_cselect_b32 s{sND}, 2, 64", 1))
        c.append((f"s_sub_u32 s{sN}, s{sND}, 1", 1))
        c = Chain(c); c.fill(st, 4); assert not c.items
    def pflag(st): st.put(62, f"s_and_b32 s{sFQ}, s{sFQ}, 0x3fffffff\ns_add_u32 s{sFQ}, s{sFQ}, 16")
    def kv2addr(st):
        st.put(2, f"v_min_u32 v{vL4}, 11, v{vLANE}"); st.put(4, f"v_lshlrev_b32 v{vL4}, 2, v{vL4}"); st.put(8, f"v_add_u32 v{vL4}, 128, v{vL4}")
    XG2 = sorted(XG + [3, 11, 19, 27, 43, 51, 59])
    XG3 = sorted(XG + [5, 13, 21, 29, 45, 53, 61])
    merge("L_P1A")
    for l in gtail: a.raw("@ghost " + l)
    stamp(2)
    if OPT["tch"] and -1 in OPT["ta"]: a(touch("A"))
    for x in unpack(0): a(x)
    a("s_nop 1")
    J = p1_jobs(OPT["kva0"], OPT["kvstep"])
    for s in range(6):
        st = Stage(mf_proj(s, "bias" if s == 0 else None)); common_fill(st)
        flagjob(J, "kvf", "kv", sFKV, OPT["fdelay"])
        J.place(st, s, OPT["cap"])
        if s == 0:
            st.put(40, f"s_waitcnt vmcnt(@since:bias1)")
            for nt in range(1, 16):
                e = XG[2*(nt-13)+1]+2 if nt >= 13 and not OPT["es"] else 0
                if nt >= 12: e = max(e, 40)
                for x in unpack(nt): st.add(x, [], e, 4*nt-3)
            st.schedule()
        if s >= 4: xwait(st, f"x1{s+1}")
        st.emit(a)
        if OPT["tch"] and s in OPT["ta"]: a(touch("A"))
    st = Stage(mf_proj(6)); common_fill(st)
    flagjob(J, "kvf", "kv", sFKV, OPT["fdelay"]); J.place(st, 6, OPT["cap"])
    items = []
    for ud in range(8):
        for qt in range(2):
            regs = [O(2*ud,qt)+i for i in range(4)] + [O(2*ud+1,qt)+i for i in range(4)]
            e = 8*ud+7+3
            for r in regs: items.append((f"v_mul_f32 v{r}, |v{r}|, v{r}", 0, e, ud))
            for i in range(4): items.append((f"v_cvt_pk_bf16_f32 v{regs[i]}, v{regs[2*i]}, v{regs[2*i+1]}", 0, e, ud))
            for i in range(4): items.append((f"v_pk_max_i16 v{regs[i]}, v{regs[i]}, 0", 0, e, ud))
    import copy
    def mk0():
        st = mk_post(0); J2 = copy.deepcopy(J); J2.place(st, 7, OPT["cap"]); assert not J2.jobs; return st
    mid, st0 = split_chain(items, st, mk0, lambda ud: 8*ud-3)
    print("H mid", len(mid), "kv last", J.at["kv"], file=sys.stderr)
    st.emit(a); emit_mid(mid)
    stamp(3)
    J = Jobs()
    for i in range(16):
        J.add("ql", f"s_add_u32 s{sJT}, s{sQST}, {i*1024}", f"buffer_load_dwordx4 {ar(4*i,4)}, v{vL16}, {WS}, s{sJT} offen sc1 ; @ql", OPT["qa"]+4, 6*64+OPT["qe"]-(15-i)*4)
    for s in range(7):
        st = st0 if s == 0 else mk_post(s)
        if s == 2: poll_issue(st, 3, vL4, sFKVP, "kva"); poll_check(st, 58, vL4, sFKVP, "kva", False)
        if s == 3: kv2addr(st)
        if s == (OPT["qa"]-55) >> 6: poll_issue(st, (OPT["qa"]-55) & 63, vFLG, sFQ, "qa")
        if s == OPT["qa"] >> 6: poll_check(st, OPT["qa"] & 63, vFLG, sFQ, "qa", True)
        if s == 1: st.put(2, f"s_lshl2_add_u32 s{sT+1}, s{sQI}, 4\ns_cmp_eq_u32 s{sU1}, s{sT+1}\ns_cselect_b32 s{sTYPE}, 4, 0\ns_cselect_b32 s{sPT}, {OOB}, s{sPT}")
        gaps = [9, 25, 41, 57] if s < 6 else [41, 49, 57, 59]
        pk_ = s-1 in OPT["park"]
        if s >= 1 and not pk_: post_place(st, s-1, False, sPSG, gaps)
        J.place(st, s, OPT["qcap"], XG2)
        if pk_:
            for k, (ops, t) in enumerate(post_groups(s-1, False)):
                for i, x in enumerate(ops):
                    c_ = st.add(x, [], 2, 60)
                    st.add(f"v_accvgpr_write_b32 a{128+(s-1)*16+k*4+i}, v{t+i}", [c_], 2, 62)
            st.schedule()
        elif s >= 1: post_sched(st, s-1, False, gaps)
        if s == 1: gsetup(st)
        if s == 5: pflag(st)
        st.emit(a)
        if s == OPT["td"]: a(f"s_cmp_eq_u32 s{sTYPE}, 4\ns_cbranch_scc0 L_td\n" + touch("D") + "\nL_td:")
    assert not J.jobs
    def mk_F(qb, tag, pre=None):
        st = Stage(mf_qk(0, 0, qb, True) + mf_qk(1, 1, qb, True)); common_fill(st)
        if pre: pre(st)
        place_sm(st, 0, 35, 62, tag, ladd=False, first=True)
        st.schedule()
        print("F over", tag, st.over, file=sys.stderr)
        return st
    def finit():
        return [(f"v_mov_b64 {vr(NEGM(0)+2*i,2)}, 0", 0) for i in range(4)] + [(f"v_mov_b64 {vr(vL[0],2)}, 0", 0),
                (f"v_mov_b32 v{vBIG}, {f2u(-1e30):#x}", 0), (f"v_mov_b32 v{vBIG+1}, v{vBIG}", 0), (f"s_mov_b32 s{sFIRST}, 1", 1), (f"s_mov_b32 s{sCLAMP}, {f2u(-3e38):#x}", 1)]
    def f_end(tag, nxt, endl):
        if tag in OPT["inf"]:
            hi, lo = f2u(2.0**OPT["thr"]), f2u(2.0**-OPT["thr"])
            a(f"""
            s_cbranch_vccz L_fok_{tag}
            s_sub_u32 s{sT+1}, s{sN}, s{sCNT}
            v_cndmask_b32 v{vT+14}, v{vSUM[0][0]}, 1.0, s[{sMASK}:{sMASK+1}]
            v_subrev_u32 v{vT+14}, {lo:#x}, v{vT+14}
            v_max_u32 v{vT+14}, v{vT+14}, v{vT+15}
            v_cmp_lt_u32 vcc, {hi-lo:#x}, v{vT+14}
            s_or_b32 s{sT+1}, s{sT+1}, s{sWAVE}
            s_cbranch_scc1 L_fchk_{tag}
            s_nop 2
            """)
        a(f"s_cbranch_vccnz L_fchk_{tag}")
        a.label(f"L_fok_{tag}")
        STUBS.append((f"L_fchk_{tag}", "L_fchk", f"L_fok_{tag}"))
        a(f"s_mov_b32 s{sFIRST}, 0")
        a(f"s_mov_b32 s{sCLAMP}, 0")
        if endl:
            a(f"s_cmp_eq_u32 s{sCNT}, 1")
            a(f"s_cbranch_scc1 {endl}")
        if nxt == "L_peelA": peelA()
        elif nxt: a(f"s_branch {nxt}")
    def peelA():
        todo = [(s_, k) for s_ in OPT["park"] for k in range(4)]
        n = OPT["pst_n"]
        ns = (len(todo) + n - 1)//n + 2
        ns += ns & 1
        for i in range(ns):
            b = (i & 1) ^ 1
            st = Stage(mf_pv(0, b^1, i == 0) + mf_qk(1, b^1, 0)); common_fill(st)
            for g in {1: [25], 2: [17, 49], 3: [9, 25, 49], 4: [9, 25, 41, 57]}[n]:
                if not todo: break
                s_, k = todo.pop(0)
                st.put(g-1, f"s_add_u32 s{sJT}, s{sPSG}, {s_*4096+k*1024}")
                st.put(g, f"buffer_store_dwordx4 {ar(128+s_*16+k*4,4)}, v{vL16}, {WS}, s{sJT} offen sc1 ; @ps")
            if i == ns-1:
                st.put(56, "s_waitcnt vmcnt(@since:ps)")
                st.put(57, f"buffer_store_dword v{vONE}, v{vFLG}, {WS}, s{sFSG} offen sc1")
                st.put(4, f"s_sub_u32 s{sCNT}, s{sCNT}, {ns//2}")
            place_sm(st, b, 0, 62, f"pa{i}", mask=False); st.schedule()
            if st.over or st.tail: print("peelA over", i, st.over, len(st.tail), file=sys.stderr)
            st.emit(a)
            a(f"s_cbranch_vccnz L_dorare_pa{i}")
            a.label(f"L_norare_pa{i}")
            STUBS.append((f"L_dorare_pa{i}", f"L_rare{b}", f"L_norare_pa{i}"))
        a("s_branch L_steady0")
    a("s_nop 5")
    for ops, t in post_groups(6, False):
        for x in ops: a(x)
    a("s_waitcnt vmcnt(@since:ql)")
    stamp(4)
    def pre_fa1(st):
        post_place(st, 6, False, sPSG, [9, 17, 25, 33])
        poll_issue(st, 1, vL4, sFKVP, "kv2a"); poll_check(st, 58, vL4, sFKVP, "kv2a", False)
    st = mk_F(0, "fa1", pre_fa1)
    c = Chain(finit()); c.fill(st, 0, 30); assert not c.items
    st.emit(a)
    f_end("fa1", "L_peelA", None)
    merge("L_P1B")
    for l in gtail: a.raw("@ghost " + l)
    stamp(2)
    J = p1_jobs(OPT["kvb0"], OPT["kvstepb"], 200)
    for i in range(28):
        p = i >> 2
        xjob(J, f"x2{p}", i, XO2, max(p+1, 3)*64, (7+p)*64 - 134, 4)
    for i in range(16):
        qt, ud = i & 1, i >> 1
        J.add("qs", f"s_add_u32 s{sJT}, s{sQST}, {(qt*8+ud)*1024}", f"buffer_store_dwordx4 {ar(Q(0,qt,ud),4)}, v{vL16}, {WS}, s{sJT} offen{OPT['kvsc']} ; @qs",
              7*64 if ud < 5 else 8*64, 7*64+20+i*OPT["qstep"])
    def bstage(gs):
        s = gs % 7
        st = Stage(mf_proj(s, "zero" if gs % 7 == 0 else None))
        nod = 3 <= gs <= 7
        common_fill(st, dma=not nod, nd={3: 16, 4: 8, 5: 0}.get(gs), novm=(6 <= gs <= 10), rdl=(gs == 7))
        if gs == 9: poll_issue(st, 3, vL4, sFKVP, "kvb"); poll_check(st, 58, vL4, sFKVP, "kvb", False)
        if gs == 10: kv2addr(st)
        if gs == 1:
            st.put(2, f"s_cmp_gt_u32 s{sN}, 34\ns_cselect_b32 s{sT+1}, 34, 2")
            st.put(4, f"v_and_b32 v{vT}, 4, v{vLANE}"); st.put(8, f"v_mul_u32_u24 v{vT}, s{sT+1}, v{vT}"); st.put(10, f"v_or_b32 v{vL4}, v{vL4}, v{vT}")
        flagjob(J, "kvf", "kv", sFKV, OPT["fdelay"]); flagjob(J, "qf", "qs", sFQ, OPT["qfd"])
        if nod: J.place(st, gs, OPT["capn"], XG3)
        elif gs == 8: J.place(st, gs, OPT["capq"], XG2)
        else: J.place(st, gs, OPT["capb"])
        if gs == 12: assert not J.jobs and max(J.at.values()) < 12*64; gsetup(st); pflag(st)
        if gs in (4, 5): xwait(st, f"x1{gs+1}")
        if 6 <= gs < 13: xwait(st, f"x2{gs-6}")
        return st
    def btouch(gs):
        for _ in range(OPT["tb"].count(gs) if OPT["tch"] else 0): a(touch("B"))
        if gs == OPT["tc"]: a(f"s_cmp_eq_u32 s{sTYPE}, 1\ns_cbranch_scc0 L_tc\n" + touch("C") + "\nL_tc:")
    btouch(-1)
    for gs in range(6): bstage(gs).emit(a); btouch(gs)
    def q_items(qb):
        items = []; cnt = 0
        for ud in range(8):
            blk = ud >> 1
            for qt in range(2):
                e = 16*blk+15+3
                t = vT + 16 + (cnt % 4)*4; cnt += 1
                for i in range(4):
                    jp = 2*(ud & 1) + (i >> 1); tl = 4*blk + 2*(i & 1)
                    items.append((f"v_cvt_pk_bf16_f32 v{t+i}, v{O(tl,qt)+jp}, v{O(tl+1,qt)+jp}", 0, e, 2*blk))
                for i in range(4): items.append((f"v_accvgpr_write_b32 a{Q(qb,qt,ud)+i}, v{t+i}", 0, e, 99 if ud >= 5 else -1))
        return items
    st = bstage(6); st7 = bstage(7)
    mid, st0 = split_chain(q_items(0), st, lambda: copy.deepcopy(st7), lambda ud: 8*ud-1)
    print("E1 mid", len(mid), file=sys.stderr)
    st.emit(a); btouch(6); emit_mid(mid)
    stamp(3)
    st0.emit(a); btouch(7)
    for gs in range(8, 13): bstage(gs).emit(a); btouch(gs)
    st = bstage(13)
    assert not J.jobs
    print("B jobs", {k: (v >> 6, v & 63) for k, v in J.at.items()}, file=sys.stderr)
    def mk_fa2():
        STUBS[:] = [x for x in STUBS if "fa2" not in x[0]]
        POLLS[:] = [x for x in POLLS if x[0] != "kv2b"]
        def pre(st): poll_issue(st, 1, vL4, sFKVP, "kv2b"); poll_check(st, 58, vL4, sFKVP, "kv2b", False)
        st = mk_F(0, "fa2", pre); c = Chain(finit()); c.fill(st, 0, 30); return st
    fa2_ = mk_fa2()
    mid, st0 = split_chain(q_items(128), st, lambda: copy.deepcopy(fa2_), lambda ud: 60)
    print("E2 mid", len(mid), file=sys.stderr)
    st.emit(a); emit_mid(mid)
    qi_ = q_items(128); q_rest = qi_[qi_.index(mid[-1])+1:]
    btouch(13)
    stamp(4)
    a(f"s_cmp_eq_u32 s{sU1}, 0")
    a("s_cbranch_scc1 L_b0")
    st0.emit(a)
    f_end("fa2", None, "L_u40")
    def steady(b, qb, tag, czero=False, pre=None, last=False):
        st = Stage(mf_pv(0, b^1, czero) + mf_qk(1, b^1, qb)); common_fill(st, rk=OPT["kz"] and not pre)
        if b == 1 and not last: st.put(1, f"buffer_load_dword v{vPOLL}, v{vPV}, {WS}, s{sPOLL} offen sc1")
        if tag == "z1":
            st.put(OPT["pfg"]-1, "s_waitcnt vmcnt(@since:pts)")
            st.put(OPT["pfg"], f"buffer_store_dword v{vONE}, v{vFLG}, {WS}, s{sFQ} offen sc1")
        if pre: pre(st)
        if b == 0 and not last:
            st.put(56, f"s_sub_u32 s{sCNT}, s{sCNT}, 1")
            st.put(58, f"s_cmp_lg_u32 s{sCNT}, s{sEV}")
            st.scc_busy |= set(range(58, 64))
        place_sm(st, b, 0, 62, tag); st.schedule()
        if st.over or st.tail: print("steady over", tag, st.over, len(st.tail), file=sys.stderr)
        st.emit(a)
        a(f"s_cbranch_vccnz L_dorare_{tag}")
        a.label(f"L_norare_{tag}")
        STUBS.append((f"L_dorare_{tag}", f"L_rare{b}", f"L_norare_{tag}"))
    def loop(qb, n):
        a.label(f"L_s1z{n}")
        steady(1, qb, f"z{n}", True)
        a(f"s_branch L_mid{n}")
        merge(f"L_steady{n}", True)
        steady(1, qb, f"s1{n}")
        merge(f"L_mid{n}")
        steady(0, qb, f"s0{n}")
        a(f"s_cbranch_scc1 L_steady{n}")
        a.label(f"L_exit{n}")
    def gvar(qb, n):
        merge(f"L_gv{n}")
        if OPT["rt"] & 1: a(touch("EF"[n]))
        a(f"""
        s_mov_b32 s{sEV}, 1
        s_waitcnt vmcnt(16)
        v_cmp_ne_u32 vcc, 1, v{vPOLL}
        s_add_u32 s{sT+3}, s{sGC}, {4*PS_SRC}
        s_nop 3
        s_cbranch_vccnz L_pw_gv{n}
        L_po_gv{n}:
        s_cmp_ge_u32 s{sTYPE}, 2
        s_cselect_b32 s{sPOLL}, {OOB}, s{sFQ}
        v_mov_b32 v{vPV}, v{vFLG}
        """)
        POLLS.append((f"gv{n}", vPV, sPOLL, False))
        for b in (1, 0):
            def pre(st):
                for k, g in enumerate(OPT["ptg"]):
                    i = (1-b)*8+k; og, p, sg = i >> 2, (i >> 1) & 1, i & 1
                    st.put(g, f"buffer_load_dwordx4 {ar(GL+i*4,4)}, v{(vS, vS2)[sg]}, {WS}, s{(sGC, sT+3)[sg]} offen offset:{p*1024+og*256} sc1")
            steady(b, qb, f"gv{b}{n}", pre=pre)
        a(f"s_cbranch_scc1 L_steady{n}")
        a(f"s_branch L_exit{n}")
    loop(0, 0)
    a(f"s_cmp_gt_u32 s{sEV}, 1")
    a("s_cbranch_scc1 L_gv0")
    a(f"s_cmp_ge_u32 s{sTYPE}, 2")
    a(f"s_mov_b32 s{sEV}, 0")
    a("s_cbranch_scc1 L_lpack")
    a("s_branch L_end0")
    gvar(0, 0)
    a.raw(".p2align 7")
    a.label("L_domask_s00")
    for x in mask_code(0, 0, "L_domask_s00", "L_nomask_s00"):
        if x.startswith("s_branch"): a("s_cbranch_scc1 L_nomask_s01")
        a(x)
        if x.startswith(("s_cbranch", "s_nop")): a(f"s_cmp_eq_u32 s{sTYPE}, 3")
    merge("L_end0")
    a(f"""
    s_waitcnt vmcnt(16)
    v_cmp_ne_u32 vcc, 1, v{vPOLL}
    s_add_u32 s{sT+3}, s{sPT}, 16384
    s_cmp_eq_u32 s{sCNT}, 0
    s_cbranch_scc1 L_ptb
    s_bitcmp1_b32 vcc_lo, 0
    s_cbranch_scc1 L_steady0
    buffer_load_dwordx4 {vr(vSTB,4)}, v{vL16}, {WS}, s{sT+3} offen sc1
    """)
    for b in (1, 0):
        def pre(st):
            for k, g in enumerate(OPT["ptg"]):
                i = (1-b)*8+k
                if i % 4 == 0: st.put(g-1, f"s_add_u32 s{sT+3}, s{sPT}, {i*1024}")
                st.put(g, f"buffer_load_dwordx4 {ar(128+4*i,4)}, v{vL16}, {WS}, s{sT+3} offen offset:{(i&3)*1024} sc1")
        steady(b, 0, f"pt{b}", pre=pre, last=True)
    a("s_branch L_ln")
    merge("L_ptb")
    a("s_bitcmp1_b32 vcc_lo, 0")
    a("s_cbranch_scc1 L_pw_pt")
    a.label("L_po_pt")
    POLLS.append(("pt", vFLG, sFQ, True))
    a(f"@@buffer_load_dwordx4 {vr(vSTB,4)}, v{vL16}, {WS}, s{sT+3} offen sc1")
    for i in range(16):
        if i % 4 == 0: a(f"s_add_u32 s{sT+3}, s{sPT}, {i*1024}")
        a(f"buffer_load_dwordx4 {ar(128+4*i,4)}, v{vL16}, {WS}, s{sT+3} offen offset:{(i&3)*1024} sc1 ; @ptl")
    a.label("L_ln")
    def pack_items(e0, step):
        items = []
        for ud in range(8):
            for qt in range(2):
                regs = [O(2*ud,qt)+i for i in range(4)] + [O(2*ud+1,qt)+i for i in range(4)]
                for i in range(4): items.append((f"v_cvt_pk_bf16_f32 v{regs[i]}, v{regs[2*i]}, v{regs[2*i+1]}", 0, e0+step*ud, ud))
        return items
    def mk_L(tag):
        st = Stage(mf_pv(0, 0) + mf_pv(1, 1)); common_fill(st)
        place_sm(st, 1, 0, 30, tag); st.schedule()
        print("L over", tag, st.over, file=sys.stderr)
        st.put_post(31, f"s_cbranch_vccnz L_dorare_{tag}")
        st.put_post(31, f"L_norare_{tag}:")
        STUBS.append((f"L_dorare_{tag}", "L_rare1", f"L_norare_{tag}"))
        st.put(32, f"v_add_f32 v{vL[0]}, v{vL[0]}, v{vSUM[0][0]}")
        st.put(34, f"v_add_f32 v{vL[1]}, v{vL[1]}, v{vSUM[1][0]}")
        return st
    st = mk_L("ln")
    c = [(f"v_bfe_u32 v{vT+20}, v{vLANE}, 2, 2", 0), (f"v_lshrrev_b32 v{vT+21}, 4, v{vLANE}", 0), (f"v_cmp_eq_u32 s[{sT+4}:{sT+5}], v{vT+20}, v{vT+21}", 0),
         (f"v_and_b32 v{vT+20}, 3, v{vLANE}", 0), (f"v_lshlrev_b32 v{vT+20}, 4, v{vT+20}", 0), (f"v_mov_b32 v{vT+22}, 0x3f80", 0), (f"v_mov_b32 v{vT+23}, 0", 0),
         (f"v_cndmask_b32 v{vT+22}, 0, v{vT+22}, s[{sT+4}:{sT+5}]", 1), (f"v_lshlrev_b64 {vr(vSEL+2,2)}, v{vT+20}, {vr(vT+22,2)}", 0),
         (f"v_mov_b64 {vr(vSEL,2)}, 0", 0), (f"v_mov_b64 {vr(vSEL+4,2)}, 0", 0),
         ("s_waitcnt vmcnt(@since:ptl)", 1, 55),
         (f"v_cmp_neq_f32 vcc, v{NEGM(0)}, v{vSTB}", 1), (f"v_cmp_neq_f32 s[{sT+4}:{sT+5}], v{NEGM(1)}, v{vSTB+1}", 0)]
    c = Chain(c); c.fill(st, 35); assert not c.items
    st.emit(a)
    a(f"s_or_b64 vcc, vcc, s[{sT+4}:{sT+5}]")
    a("s_cbranch_scc1 L_slowcomb")
    a.label("L_comb")
    stamp(5)
    mf = []
    DF = OPT["dfr"]
    def pack1(ud, qt, e=0): return [(x[0], 0, e) for x in pack_items(0, 0)[(ud*2+qt)*4:(ud*2+qt)*4+4]]
    cord = sorted([(ud, qt) for ud in range(8) for qt in range(2)], key=lambda x: x[1] == 1 and x[0] >= DF)
    for ud, qt in cord:
        for h in range(2):
            d = vr(O(2*ud+h,qt),4)
            mf.append(f"{MF} {d}, {vr(vSEL+2-2*h,4)}, {ar(128+(ud*2+qt)*4,4)}, {d}")
    st = Stage(mf)
    st.put(0, f"v_add_f32 v{vL[0]}, v{vL[0]}, v{vSTB+2}")
    st.put(0, f"v_add_f32 v{vL[1]}, v{vL[1]}, v{vSTB+3}")
    c = Chain([x for k, (ud, qt) in enumerate(cord[:8+DF]) for x in pack1(ud, qt, 2*k+4)]); c.fill(st, 0, 31)
    st.emit(a)
    if c.items: a("s_nop 5")
    print("comb left", len(c.items), file=sys.stderr)
    c.flush(a)
    a("s_branch L_post2")
    def pts(i): return f"buffer_store_dwordx4 {vr(O(2*(i>>1),i&1),4)}, v{vL16}, {WS}, s{sT+3} offen offset:{(i&3)*1024}{OPT['kvsc']} ; @pts"
    def rarechk(tag, sub, st=None, g=None):
        for x in (f"s_cbranch_vccnz L_dorare_{tag}", f"L_norare_{tag}:"):
            if st: st.put_post(g, x)
            else: a(x)
        STUBS.append((f"L_dorare_{tag}", sub, f"L_norare_{tag}"))
    def tail(qb, n):
        st = Stage(mf_pv(0, 0) + mf_qkh(1, 0, qb)); common_fill(st)
        st.hov = OPT["hov"]; place_sm(st, 1, 0, 61, f"h1{n}", d=1); st.schedule()
        print("h1 over", st.over, len(st.tail), file=sys.stderr)
        st.emit(a); rarechk(f"h1{n}", "L_rare1")
        it = pack_items(0, 4)
        pk = Chain([(x[0], 0, x[2]+6) for k, x in enumerate(it) if not (k >> 2) & 1])
        sg = list(OPT["psg"]) if n == 0 else []
        def stores(st, base):
            for k, g in enumerate(sg):
                if base <= g < base+64:
                    if k % 2 == 0: st.put(g-base-1, f"s_add_u32 s{sT+3}, s{sPT}, {k*2048}")
                    st.put(g-base, pts(2*k))
        def chk(st, base):
            for k, g in enumerate(sg):
                key = f"v_cvt_pk_bf16_f32 v{O(2*k,0)+3},"
                if base <= g < base+64: assert not any(x[0].startswith(key) for x in pk.items) and all(w < g-base for w, v in st.fill.items() if any(x.startswith(key) for x in v)), (k, g)
        st = Stage(mf_pv(0, 1) + mf_qkh(1, 1, qb)); st.hzx = {63}; common_fill(st)
        stores(st, 0); st.hov = OPT["hov"]
        place_sm(st, 0, 0, 61, f"h0{n}", qts=(1,), d=2)
        prev = None
        for k in range(4*len(sg)):
            x = pk.items.pop(0); prev = st.add(x[0], [prev if k & 3 else None], x[2], min(sg[k >> 2]-1, 63))
        st.schedule()
        pk.fill(st); chk(st, 0)
        print("h0 over", st.over, len(st.tail), "pack left", len(pk.items), file=sys.stderr)
        st.emit(a); rarechk(f"h0{n}", "L_rareh0")
        st = Stage(mf_pvh(0, 0) + mf_pvh(1, 1)); common_fill(st)
        stores(st, 64)
        place_sm(st, 1, 1, 30, f"lh{n}", ladd=(1,), qts=(1,), d=3); st.schedule()
        rarechk(f"lh{n}", "L_rareh1", st, 31)
        st.put(34, f"v_add_f32 v{vL[1]}, v{vL[1]}, v{vSUM[1][0]}")
        pk.items = [(x[0], 0) for x in pk.items]
        if n == 0: pk.items += [(f"v_mov_b32 v{vSTAT}, v{NEGM(0)}", 0, 35), (f"v_mov_b32 v{vSTAT+1}, v{NEGM(1)}", 0), (f"v_mov_b64 {vr(vSTAT+2,2)}, {vr(vL[0],2)}", 0)]
        pk.items += [(x[0], 0, x[2]+41) for k, x in enumerate(it) if (k >> 2) & 1 and k >> 3 < DF]
        pk.fill(st); chk(st, 64)
        if n == 0: st.put(62, f"s_cmp_eq_u32 s{sTYPE}, 2")
        print("lh over", st.over, len(st.tail), "pack left", len(pk.items), file=sys.stderr)
        st.emit(a)
        if len(pk.items) < 14 and DF > 6: a("s_nop 5")
        pk.flush(a)
    a.label("L_u40")
    for i in range(64): a(f"v_mov_b64 {vr(O0+2*i,2)}, 0")
    merge("L_lpack")
    tail(0, 0)
    a("s_cbranch_scc0 L_post2b")
    a.label("L_seg2")
    stamp(5)
    a(f"""
    s_mov_b32 s{sTYPE}, 3
    s_lshr_b32 s{sCNT}, s{sU2}, 1
    s_sub_u32 s{sCNT}, s{sCNT}, 1
    s_sub_u32 s{sEV}, 8, s{sJ}
    s_add_u32 s{sT+3}, s{sPT}, 16384
    buffer_store_dwordx4 {vr(vSTAT,4)}, v{vL16}, {WS}, s{sT+3} offen sc1
    """)
    def pre_fb(st):
        poll_issue(st, 1, vL4, sFKVP, "kv2c"); poll_check(st, 58, vL4, sFKVP, "kv2c", False)
        todo = [i for i in range(16) if i & 1 or i >> 1 >= len(OPT["psg"])]
        assert len(todo) == len(OPT["fbg"])
        for k, (i, g) in enumerate(zip(todo, OPT["fbg"])):
            if k == 0 or todo[k-1] >> 2 != i >> 2: st.put(g-1, f"s_add_u32 s{sT+3}, s{sPT}, {(i>>2)*4096}")
            st.put(g, pts(i))
            prev = None
            for x in (pack1(i >> 1, 1) if i & 1 and i >> 1 >= DF else []): prev = st.add(x[0], [prev], 0, g-1)
        for x in finit():
            if f"v{vBIG}" not in x[0]: st.add(x[0], [], 0, 62)
    st = mk_F(128, "fb", pre_fb)
    st.emit(a)
    f_end("fb", None, "L_u41")
    loop(128, 1)
    a(f"s_cmp_eq_u32 s{sEV}, 1")
    a("s_cbranch_scc1 L_tail1")
    gvar(128, 1)
    a.label("L_u41")
    for i in range(64): a(f"v_mov_b64 {vr(O0+2*i,2)}, 0")
    a("s_waitcnt vmcnt(0)")
    a(f"buffer_store_dword v{vONE}, v{vFLG}, {WS}, s{sFQ} offen sc1")
    if OPT["g7"]:
        a(f"s_add_u32 s{sT+3}, s{sGC}, {4*PS_SRC}\ns_branch L_pw_g7\nL_po_g7:")
        POLLS.append(("g7", vPV, sPOLL, False))
        for i in range(16):
            og, p, sg = i >> 2, (i >> 1) & 1, i & 1
            a(f"buffer_load_dwordx4 {ar(GL+i*4,4)}, v{(vS, vS2)[sg]}, {WS}, s{(sGC, sT+3)[sg]} offen offset:{p*1024+og*256} sc1")
    merge("L_tail1")
    tail(128, 1)
    a.label("L_post2b")
    merge("L_post2")
    if OPT["rt"] & 2: a(touch("G"))
    stamp(6)
    if OPT["pr"]:
        a(f"s_bitcmp1_b32 s{sHEAD}, 0\ns_cselect_b32 s{sPSG}, {-PS_SRC}, s{sHEAD}\ns_cselect_b32 s{sPSG}, s{sPSG}, {PS_SRC}\ns_add_u32 s{sPSG}, s{sPSG}, s{sPSS}")
    a("s_nop 1")
    CO, FP, XO, BO = sU2, sW0, sCNT, sN
    CS = [sU1, sEV, sND, sPT]
    vXO, vBO, vFS = 44, 45, 48
    XB, BB, SEL = 96, 104, 112
    fpc = f"s_lshl_b32 s{FP}, s{FP}, 7\ns_add_u32 s{FP}, s{FP}, {WS_FLG + FL_S}"
    if OPT["fsep"]:
        fpc = f"""s_and_b32 s{FP}, s{FP}, 3
        s_lshr_b32 s{BO}, s{sJ}, 3
        s_mul_i32 s{BO}, s{BO}, 7
        s_xor_b32 s{BO}, s{BO}, 7
        s_xor_b32 s{BO}, s{BO}, s{sJ}
        s_lshl_b32 s{BO}, s{BO}, 6
        s_add_u32 s{FP}, s{FP}, s{BO}
        s_mul_i32 s{FP}, s{FP}, {OPT["fsep"]}
        s_add_u32 s{FP}, s{FP}, {WS_FLG + FL_S3}"""
    fs = f"""
    s_load_dwordx2 s[{sSA}:{sSA+1}], s[0:1], 0
    s_load_dwordx2 s[{sG}:{sG+1}], s[0:1], 80
    s_load_dwordx2 s[{sSB}:{sSB+1}], s[0:1], 88
    s_mov_b32 s{sSA+2}, {2048*896}
    s_mov_b32 s{sSB+2}, {2048*896}
    s_mov_b32 s{sG+2}, 896
    s_lshr_b32 s{FP}, s2, 2
    s_and_b32 s{sT}, s{FP}, {2*OPT["bal"]}
    s_xor_b32 s{sT}, s{sT}, s2
    s_and_b32 s{sT}, s{sT}, 3
    s_lshl2_add_u32 s{sT}, s{sWAVE}, s{sT}
    s_sub_u32 s{CO}, s{sGC}, {16*PS_SRC}
    s_lshl2_add_u32 s{XO}, s{sJ}, s{FP}
    s_mul_i32 s{XO}, s{XO}, {16*896}
    {fpc}
    s_lshr_b32 s{BO}, s{sT}, 1
    s_lshl_b32 s{BO}, s{BO}, 7
    s_add_u32 s{XO}, s{XO}, s{BO}
    s_and_b32 s{sT+4}, s{sT}, 1
    s_mul_i32 s{sT+4}, s{sT+4}, {64*896}
    s_add_u32 s{XO}, s{XO}, s{sT+4}
    v_and_b32 v{vXO}, 15, v{vLANE}
    v_mul_u32_u24 v{vFS}, {4*OPT["fsep"] or 4}, v{vXO}
    v_lshrrev_b32 v{vBO}, 4, v{vLANE}
    v_lshlrev_b32 v{vBO}, {3+OPT["o4"]}, v{vBO}
    v_and_b32 v{vS2}, 1, v{vLANE}
    v_mul_u32_u24 v{vS2}, 0xffff, v{vS2}
    v_add_u32 v{vS2}, 1, v{vS2}
    v_mul_u32_u24 v{vS2}, 0x3f80, v{vS2}
    v_lshrrev_b32 v{vXO}, 1, v{vXO}
    """
    fs = [(x.strip(), 1) for x in fs.split("\n") if x.strip()]
    fsS = [x for x in fs if x[0][0] == "s"]; fs = [(x[0], 0) for x in fs if x[0][0] == "v"]
    for k in range(8):
        fs += [(f"v_cmp_eq_u32 s[{sT+4}:{sT+5}], {k}, v{vXO}", 1), (f"v_cndmask_b32 v{SEL+k}, 0, v{vS2}, s[{sT+4}:{sT+5}]", 2)]
    fs += [(x, 1) for x in (f"v_and_b32 v{vXO}, 15, v{vLANE}", f"v_mul_u32_u24 v{vXO}, 896, v{vXO}", f"v_add_u32 v{vXO}, v{vXO}, v{vBO}")]
    fs += fsS
    fs.append((f"s_cmp_lt_u32 s{sT}, 14\ns_cselect_b32 s{XO}, s{XO}, {OOB}", 1))
    fs.append((f"s_lshr_b32 s{sEXP}, s{sT}, 1", 1))
    if OPT["pr"]:
        fs += [(f"s_cmp_lt_u32 s{sEXP}, 3\ns_cselect_b32 s{sT+4}, 16384, 0", 1), (f"s_add_u32 s{CO}, s{CO}, s{sT+4}", 1),
               (f"s_cmp_gt_u32 s{sEXP}, 3\ns_cselect_b32 s{sT+4}, {PS_SRC}, 0", 1), (f"s_add_u32 s{CO}, s{CO}, s{sT+4}", 1),
               (f"v_lshrrev_b32 v{vS}, 4, v{vLANE}", 1), (f"v_mul_u32_u24 v{vS}, {2*PS_SRC - 256}, v{vS}", 1), (f"v_add_u32 v{vS}, v{vS}, v{vL16}", 1),
               (f"s_mov_b32 s{CS[0]}, s{CO}", 1), (f"s_add_u32 s{CS[1]}, s{CO}, {8*PS_SRC}", 1), (f"s_add_u32 s{CS[2]}, s{CO}, {PS_SRC}", 1), (f"s_add_u32 s{CS[3]}, s{CO}, {9*PS_SRC}", 1),
               (f"s_cmp_eq_u32 s{sEXP}, 3\ns_cselect_b32 s{CS[2]}, s{CS[2]}, {OOB}\ns_cselect_b32 s{CS[3]}, s{CS[3]}, {OOB}", 1),
               (f"s_or_b32 s{sEXP}, s{sEXP}, 4", 1), (f"s_cmp_eq_u32 s{sEXP}, 7\ns_cselect_b32 s{sEXP}, 3, s{sEXP}", 1)]
    else: fs += [(f"s_add_u32 s{CS[k]}, s{CO}, {4*k*PS_SRC}", 1) for k in range(4)]
    fs = Chain(fs)
    J = Jobs()
    glate = []
    for k in range(2*OPT["o4"]):
        J.add("gl", None, f"buffer_load_dwordx4 {vr(XB+4*k,4)}, v{vXO}, {sr(sSA,4)}, s{XO} offen offset:{k*64}", 3*64, 7*64)
        J.add("gl", None, f"buffer_load_dwordx4 {vr(BB+4*k,4)}, v{vBO}, {G}, s{BO} offen offset:{k*64} ; @gl", 3*64, 7*64)
    for k in range(4-4*OPT["o4"]):
        J.add("gl", None, f"buffer_load_dwordx2 {vr(XB+2*k,2)}, v{vXO}, {sr(sSA,4)}, s{XO} offen offset:{k*32}", 3*64, 7*64)
        J.add("gl", None, f"buffer_load_dwordx2 {vr(BB+2*k,2)}, v{vBO}, {G}, s{BO} offen offset:{k*32} ; @gl", 3*64, 7*64)
    for s in range(7):
        st = Stage(mf_post(s)); common_fill(st, dma=(s < 3), nd=(None, None, None, 16, 8, 0, 0)[s], last=(s == 6))
        if s == 0:
            for ud in range(DF, 8):
                prev = None
                for x in pack1(ud, 1): prev = st.add(x[0], [prev], max(0, 8*ud-16), 8*ud-2)
            st.schedule(); print("post0 over", st.over, file=sys.stderr)
            c = xlane_ops("v_add_f32", vL[0], vT) + xlane_ops("v_add_f32", vL[1], vT) + [(f"v_rcp_f32 v{vRINV[0]}, v{vL[0]}", 0), (f"v_rcp_f32 v{vRINV[1]}, v{vL[1]}", 1)]
            c = Chain(c); c.fill(st); assert not c.items
            fs.fill(st)
        else:
            gaps = [17, 33, 49, 57]
            post_place(st, s-1, True, sPSS, gaps)
            if s == 2: st.put(60, "s_waitcnt lgkmcnt(0)")
            for t_, b_ in OPT["lvl"]:
                if s != t_ >> 6: continue
                st.put((t_ & 63)-2, f"v_mov_b32 v{vPV}, {b_+1}")
                st.put((t_ & 63)-1, f"s_waitcnt vmcnt(@since:ps{b_})")
                st.put(t_ & 63, f"buffer_store_dword v{vPV}, v{vFLG}, {WS}, s{sFSS} offen sc1")
            if s == 6 and OPT["dp"] is not None: st.put(OPT["ep"], f"buffer_load_dword v{vPOLL}, v{vFS}, {WS}, s{FP} offen sc1 ; @ep")
            if s == 6 and OPT["epoll"]: st.put(OPT["epoll"], f"buffer_load_dword v{vPOLL}, v{vFS}, {WS}, s{FP} offen sc1 ; @ep")
            if OPT["pr"] and s >= 4:
                st.put(4, f"s_add_u32 s{sT+3}, s{sPSS}, {(s-4*(OPT['pr'] == 2))*4096}")
                for k, g in enumerate((5, 21, 37, 53)): st.put(g, f"buffer_load_dwordx4 {ar((s-4)*16+k*4,4)}, v{vL16}, {WS}, s{sT+3} offen offset:{k*1024}{OPT['prld']}")
            J.place(st, s, 4, [1, 9, 13, 25, 29, 41, 45, 61])
            post_sched(st, s-1, True, gaps)
            fs.fill(st, 0, 63 if s == 1 else 58)
            if s == 2: assert not fs.items, len(fs.items)
        st.emit(a)
    assert not J.jobs
    post_flush(6, True, sPSS)
    stamp(7)
    a(f"s_mov_b32 s{sT+6}, 0xffff0000")
    a(f"s_mov_b32 s{sT+7}, {f2u(-1.4426950408889634):#x}")
    LB = 128
    GA, SA_, XF = 12, 64, 80
    def rnd_pair(r0, r1, t):
        a(f"v_cvt_pk_bf16_f32 v{t}, v{r0}, v{r1}")
        a(f"v_lshlrev_b32 v{r0}, 16, v{t}")
        a(f"v_and_b32 v{r1}, s{sT+6}, v{t}")
    T1, T2, T3 = 2, 3, 4
    def flag():
        for b_ in OPT["lve"] + [6]:
            a(f"v_mov_b32 v{(vPV, vS2)[b_ & 1]}, {b_+1}")
            a(f"s_waitcnt vmcnt(@since:ps{b_})")
            a(f"buffer_store_dword v{(vPV, vS2)[b_ & 1]}, v{vFLG}, {WS}, s{sFSS} offen sc1 ; @ps6")
    def gmath(fpos, mid=None):
        for n in range(16):
            d = vr(GA+(n >> 2)*4, 4)
            a(f"{MF} {d}, {vr(SEL+((n >> 1) & 1)*4,4)}, {ar(GL+n*4,4)}, {d if n & 3 else 0}")
        for i in range(8):
            a(f"v_lshlrev_b32 v{XF+2*i}, 16, v{XB+i}")
            a(f"v_and_b32 v{XF+2*i+1}, s{sT+6}, v{XB+i}")
        for i in range(8):
            g0, g1 = GA+2*i, GA+2*i+1
            if i == fpos: flag()
            if i == 2 and mid: a(mid)
            rnd_pair(g0, g1, T1)
            a(f"v_lshlrev_b32 v{T2}, 16, v{BB+i}")
            a(f"v_and_b32 v{T3}, s{sT+6}, v{BB+i}")
            a(f"v_add_f32 v{g0}, v{g0}, v{T2}")
            a(f"v_add_f32 v{g1}, v{g1}, v{T3}")
            rnd_pair(g0, g1, T1)
            a(f"v_mul_f32 v{T2}, s{sT+7}, v{g0}")
            a(f"v_mul_f32 v{T3}, s{sT+7}, v{g1}")
            a(f"v_exp_f32 v{T2}, v{T2}")
            a(f"v_exp_f32 v{T3}, v{T3}")
            a("s_nop 0")
            a(f"v_add_f32 v{T2}, 1.0, v{T2}")
            a(f"v_add_f32 v{T3}, 1.0, v{T3}")
            a(f"v_rcp_f32 v{T2}, v{T2}")
            a(f"v_rcp_f32 v{T3}, v{T3}")
            a("s_nop 0")
            a(f"v_mul_f32 v{g0}, v{g0}, v{T2}")
            a(f"v_mul_f32 v{g1}, v{g1}, v{T3}")
            rnd_pair(g0, g1, T1)
    def floads():
        for n in range(32):
            og, p, sg = n >> 3, (n >> 2) & 1, n & 3
            if OPT["fcap"] and n >= OPT["fcap"]: a(f"s_waitcnt vmcnt({OPT['fcap']-1})")
            a(f"buffer_load_dwordx4 {vr(LB+n*4,4)}, v{vS}, {WS}, s{CS[sg]} offen offset:{p*1024+og*256} sc1 ; @f{n}")
    def fin(og):
        for i in (2*og, 2*og+1):
            g0, g1, s0, s1 = GA+2*i, GA+2*i+1, SA_+2*i, SA_+2*i+1
            rnd_pair(s0, s1, T1)
            a(f"v_mul_f32 v{g0}, v{g0}, v{s0}")
            a(f"v_mul_f32 v{g1}, v{g1}, v{s1}")
            rnd_pair(g0, g1, T1)
            a(f"v_add_f32 v{g0}, v{g0}, v{XF+2*i}")
            a(f"v_add_f32 v{g1}, v{g1}, v{XF+2*i+1}")
            a(f"v_cvt_pk_bf16_f32 v{XB+i}, v{g0}, v{g1}")
        if OPT["o4"]:
            if og & 1: a(f"buffer_store_dwordx4 {vr(XB+2*og-2,4)}, v{vXO}, {sr(sSB,4)}, s{XO} offen offset:{og*32-32}{OPT['outsc']}")
            return
        a(f"buffer_store_dwordx2 {vr(XB+2*og,2)}, v{vXO}, {sr(sSB,4)}, s{XO} offen offset:{og*32}{OPT['outsc']}")
    if OPT["dp"] is not None:
        WAIT, FLY, NEW, NF, NFC, NA, CNT = sCLAMP, sFIRST, sTYPE, sXOFF, sXOF2, sT+3, sT+1
        lvl = OPT["lvl"][-1][1] if OPT["dp"] < 7 else 7
        assert lvl + 1 >= OPT["dp"]
        def gloads(sg):
            for k in range(8):
                og, p = k >> 1, k & 1
                if OPT["fcap"]: a(f"s_waitcnt vmcnt({OPT['fcap']-1})")
                a(f"buffer_load_dwordx4 {vr(LB+sg*32+k*4,4)}, v{vS}, {WS}, s{CS[sg]} offen offset:{p*1024+og*256} sc1")
        pl = f"buffer_load_dword v{vPOLL}, v{vFS}, {WS}, s{FP} offen sc1"
        def flags():
            a(f"""
            v_cmp_ge_u32 vcc, s{sLN}, v{vPOLL}
            v_cmp_ge_u32 s[{sT+4}:{sT+5}], s{sEXP}, v{vPOLL}
            s_mov_b32 s{NFC}, s{NF}
            s_mov_b32 s{NEW}, 0
            s_orn2_b32 s{NA}, vcc_lo, s{WAIT}
            s_mov_b32 s{NF}, s{sT+4}
            """)
        def pass_a(tag):
            for sg in range(4):
                a(f"s_and_b32 s{sT+2}, s{NA}, {15 << 4*sg}")
                a(f"s_cbranch_scc1 L_pa{tag}{sg}")
                gloads(sg)
                a(f"s_or_b32 s{NEW}, s{NEW}, {15 << 4*sg}")
                a.label(f"L_pa{tag}{sg}")
            a(pl)
            a(f"s_andn2_b32 s{WAIT}, s{WAIT}, s{NEW}")
        a(f"""
        s_min_u32 s{sLN}, s{sEXP}, {lvl}
        s_movk_i32 s{WAIT}, 0xffff
        s_and_b32 s{WAIT}, s{WAIT}, 0xffff
        s_cmp_eq_u32 s{XO}, {OOB}
        v_mov_b32 v{vPV}, 7
        s_waitcnt vmcnt(@since:ep)
        s_cbranch_scc1 L_fidle
        """)
        if OPT["dp1"] == 1: flags(); pass_a("x")
        else: a(f"s_mov_b32 s{NEW}, 0")
        if OPT["dp1"] == 2: a(pl)
        for i in range(8): a(f"v_mov_b64 {vr(SA_+2*i,2)}, 0")
        gmath(-1 if OPT["dp1"] else OPT["fpos"])
        a(f"s_mov_b32 s{FLY}, s{NEW}\ns_mov_b32 s{CNT}, 0")
        if OPT["dp1"]: a(f"s_waitcnt vmcnt(0)\nbuffer_store_dword v{vPV}, v{vFLG}, {WS}, s{sFSS} offen sc1\ns_branch L_fr1")
        else: a(pl + "\ns_branch L_fround")
        a(f"""
        L_fslp:
        s_sleep {OPT['fsleep']}
        L_fround:
        s_waitcnt vmcnt(0)
        L_fr1:
        """)
        stamp(8)
        flags()
        a(f"s_cmp_eq_u32 s{WAIT}, 0")
        a("s_cbranch_scc1 L_pb")
        pass_a("y")
        a.label("L_pb")
        for sg in range(4):
            nib = 15 << 4*sg; r = LB+sg*32
            a(f"""
            s_and_b32 s{sT+2}, s{FLY}, {nib}
            s_cbranch_scc0 L_pbx{sg}
            s_and_b32 s{sT+2}, s{NFC}, {nib}
            s_cbranch_scc0 L_pbo{sg}
            v_max3_u32 v{T1}, v{r}, v{r+1}, v{r+2}
            v_max3_u32 v{T2}, v{r+3}, v{r+4}, v{r+5}
            """)
            for i in range(13): a(f"v_max3_u32 v{(T1, T2)[i & 1]}, v{(T1, T2)[i & 1]}, v{r+6+2*i}, v{r+7+2*i}")
            a(f"""
            v_max_u32 v{T1}, v{T1}, v{T2}
            v_cmp_eq_u32 vcc, -1, v{T1}
            s_nop 3
            s_cbranch_vccnz L_pbb{sg}
            L_pbo{sg}:
            """)
            for k in range(8):
                d = vr(SA_+(k >> 1)*4, 4)
                a(f"{MF} {d}, {vr(SEL+(k & 1)*4,4)}, {vr(r+k*4,4)}, {d}")
            a.label(f"L_pbx{sg}")
        a(f"""
        s_or_b32 s{sT+2}, s{NEW}, s{WAIT}
        s_cbranch_scc0 L_fgo
        s_add_u32 s{CNT}, s{CNT}, 1
        s_mov_b32 s{FLY}, s{NEW}
        s_cmp_ge_u32 s{CNT}, 0x8000
        s_cbranch_scc1 L_fgo
        s_cmp_eq_u32 s{FLY}, 0
        s_cbranch_scc1 L_fslp
        s_branch L_fround
        """)
        for sg in range(4):
            a.label(f"L_pbb{sg}")
            gloads(sg); a(pl)
            a(f"s_or_b32 s{NEW}, s{NEW}, {15 << 4*sg}")
            a(f"s_branch L_pbx{sg}")
        a.label("L_fidle")
        a("s_waitcnt vmcnt(0)")
        a(f"buffer_store_dword v{vPV}, v{vFLG}, {WS}, s{sFSS} offen sc1")
        stamp(8)
        a("s_branch L_fin")
        a.label("L_fgo")
        a("s_nop 1")
        for og in range(4): fin(og)
    else:
        a("s_waitcnt vmcnt(@since:gl)")
        if OPT["epoll"]:
            tail_ = [l.strip() for l in a.lines if l.strip().startswith("buffer_")][-40:]
            a("s_waitcnt vmcnt(@since:ep)")
            a(f"v_cmp_ge_u32 vcc, s{sEXP}, v{vPOLL}")
            a("s_nop 4")
            a("s_cbranch_vccnz L_fslow")
            stamp(8)
            floads(); flag()
            a("s_branch L_fgm")
            merge("L_fslow")
            for l in tail_: a.raw("@ghost " + l)
            flag()
        elif OPT["ep2"]:
            pl_ = f"buffer_load_dword v{vPOLL}, v{vFS}, {WS}, s{FP} offen sc1"
            if OPT["ep2"] == 1: a(pl_)
            gmath(OPT["fpos"], pl_ if OPT["ep2"] == 2 else None)
            if OPT["fpos"] >= 8: flag()
            a(f"""
            s_mov_b32 s{sT+1}, 0
            s_cmp_eq_u32 s{XO}, {OOB}
            s_waitcnt vmcnt(1)
            v_cmp_ge_u32 vcc, s{sEXP}, v{vPOLL}
            s_cbranch_scc1 L_fidle
            s_nop 2
            s_cbranch_vccz L_fgo
            L_fidle:
            """)
        else: gmath(OPT["fpos"])
        a(f"s_mov_b32 s{sT+1}, 0")
        stamp(8)
        if stamps: a("s_waitcnt lgkmcnt(0)")
        a(f"s_cmp_eq_u32 s{XO}, {OOB}")
        a("s_cbranch_scc1 L_fin")
        a.label("L_fpoll")
        a(f"""
        buffer_load_dword v{vPOLL}, v{vFS}, {WS}, s{FP} offen sc1
        s_add_u32 s{sT+1}, s{sT+1}, 1
        s_waitcnt vmcnt(0)
        v_cmp_ge_u32 vcc, s{sEXP}, v{vPOLL}
        s_cmp_lt_u32 s{sT+1}, 0x10000
        s_cbranch_vccz L_fgo
        s_sleep {OPT['fsleep']}
        s_cbranch_scc1 L_fpoll
        """)
        a.label("L_fgo")
        stamp(8)
        floads()
        a.label("L_fgm")
        if stamps: a("s_waitcnt lgkmcnt(0)")
        if OPT["epoll"]: gmath(-1)
        for n in range(32):
            if n & 1 == 0: a(f"s_waitcnt vmcnt(@since:f{n+1})")
            d = vr(SA_+(n >> 3)*4, 4)
            a(f"{MF} {d}, {vr(SEL+((n >> 2) & 1)*4,4)}, {vr(LB+n*4,4)}, {d if n & 7 else 0}")
            if n & 7 == 3 and n > 8: fin((n >> 3) - 1)
        a("s_nop 7"); a("s_nop 0")
        fin(3)
    a.label("L_fin")
    if stamps:
        a("s_waitcnt vmcnt(0)")
        stamp(9)
        a("s_waitcnt lgkmcnt(0)")
        if OPT["enc"] >= 0:
            a(f"""
            s_and_b32 s{sT+1}, s2, {OPT["encw"][0]}
            s_cmp_eq_u32 s{sT+1}, {OPT["encw"][1]}
            s_cbranch_scc0 L_end
            s_sub_u32 s{sT+1}, s{streg(OPT["enc"])}, s{streg(OPT["enc0"])}
            s_mul_i32 s{sT+1}, s{sT+1}, {OPT["enck"]}
            s_add_u32 s{sT+1}, s{sT+1}, s{streg(0)}
            s_add_u32 s{sT+1}, s{sT+1}, 10000
            s_mov_b32 s{sT+2}, 0
            L_enc:
            s_memrealtime s[{sT+4}:{sT+5}]
            s_add_u32 s{sT+2}, s{sT+2}, 1
            s_waitcnt lgkmcnt(0)
            s_cmp_gt_u32 s{sT+2}, 1000000
            s_cbranch_scc1 L_end
            s_sub_u32 s{sT+4}, s{sT+4}, s{sT+1}
            s_cmp_lt_i32 s{sT+4}, 0
            s_cbranch_scc1 L_enc
            s_endpgm
            """)
        for i in range(12): a(f"v_mov_b32 v{16+i}, s{streg(i) if i < 10 else sT+1}")
        a(f"""
        s_lshl_b32 s{sT+1}, s2, 2
        s_add_u32 s{sT+1}, s{sT+1}, s{sWAVE}
        s_lshl_b32 s{sT+1}, s{sT+1}, 6
        s_add_u32 s{sT+1}, s{sT+1}, {WS_STAMP}
        buffer_store_dwordx4 v[16:19], v{vFLG}, {WS}, s{sT+1} offen
        buffer_store_dwordx4 v[20:23], v{vFLG}, {WS}, s{sT+1} offen offset:16
        buffer_store_dwordx4 v[24:27], v{vFLG}, {WS}, s{sT+1} offen offset:32
        s_sub_u32 s{sT+1}, s{sT+1}, {WS_STAMP}
        s_lshl_b32 s{sT+1}, s{sT+1}, 3
        s_add_u32 s{sT+1}, s{sT+1}, {WS_STAMP + 0x100000}
        v_lshlrev_b32 v2, 2, v{vLANE}
        buffer_store_dword v0, v2, {WS}, s{sT+1} offen
        buffer_store_dword v{vKV}, v2, {WS}, s{sT+1} offen offset:256
        """)
    a.label("L_end")
    a("s_endpgm")
    for typ in ("K", "V"):
        for nm, ok, ldi, red, reg in (("zwait", "zok", f"buffer_load_dword v{vPOLL}, v{vL4}, {sr(sDBG,4)}, 0 offen sc1", "", vPOLL),
                ("prepwait", "prepok", f"buffer_load_dwordx4 {vr(PV,4)}, v{vL16}, {WS}, s{gIT} offen sc1",
                 f"v_and_b32 v{PV}, v{PV}, v{PV+1}\nv_and_b32 v{PV+2}, v{PV+2}, v{PV+3}\nv_and_b32 v{PV}, v{PV}, v{PV+2}", PV)):
            a.label(f"L_{nm}{typ}")
            a(f"s_mov_b32 s{sT+4}, 0")
            a.label(f"L_{nm}2{typ}")
            a(f"""
            s_sleep 4
            {ldi}
            s_add_u32 s{sT+4}, s{sT+4}, 1
            s_waitcnt vmcnt(0)
            {red}
            v_cmp_ne_u32 vcc, s{sT+1}, v{reg}
            s_cmp_ge_u32 s{sT+4}, 0x10000
            s_cbranch_scc1 L_{ok}{typ}
            s_nop 2
            s_cbranch_vccnz L_{nm}2{typ}
            s_branch L_{ok}{typ}
            """)
    for (tag, voff, soff, lane0) in POLLS:
        a.label(f"L_pw_{tag}")
        a(f"s_mov_b32 s{sT+1}, 0")
        a.label(f"L_pw2_{tag}")
        a(f"""
        buffer_load_dword v{vPOLL}, v{voff}, {WS}, s{soff} offen sc1
        s_add_u32 s{sT+1}, s{sT+1}, 1
        s_waitcnt vmcnt(0)
        v_cmp_ne_u32 s[{sT+4}:{sT+5}], 1, v{vPOLL}
        s_cmp_ge_u32 s{sT+1}, 0x10000
        s_cbranch_scc1 L_po_{tag}
        s_sleep {OPT['psleep']}
        """)
        if lane0 is True: a(f"s_bitcmp1_b32 s{sT+4}, 0")
        else: a(f"s_cmp_lg_u64 s[{sT+4}:{sT+5}], 0")
        a(f"s_cbranch_scc1 L_pw2_{tag}")
        a(f"s_branch L_po_{tag}")
    a.label("L_b0")
    Chain(q_rest + [x for x in finit() if f"v{vBIG}" in x[0]]).flush(a)
    a(f"s_mov_b32 s{sPT}, {OOB}")
    for _ in OPT["psg"]: a(f"buffer_store_dword v{vONE}, v{vFLG}, {WS}, s{sPT} offen")
    a("s_branch L_seg2")
    cold = False
    for (lab, sub, back) in sorted(STUBS, key=lambda x: "mask" not in x[1]):
        if "mask" not in sub and not cold: a.label("L_cold"); cold = True
        a.label(lab)
        if "mask" in sub and OPT["im"]:
            for x in mask_code(int(sub[-1]), 0, lab, back): a(x)
            continue
        a(f"s_call_b64 s[{sRET}:{sRET+1}], {sub}")
        a(f"s_branch {back}")
    for b in range(0 if OPT["im"] else 2):
        a.label(f"L_mask{b}")
        a("s_nop 7")
        a(f"s_cmp_eq_u32 s{sN}, s{sND}")
        a(f"s_cbranch_scc0 L_maskall{b}")
        for r in range(4):
            a(f"v_cndmask_b32 v{S(b,0,0)+r}, v{S(b,0,0)+r}, v{vBIG}, s[{sMASK+2*r}:{sMASK+2*r+1}]")
            a(f"v_cndmask_b32 v{S(b,1,1)+r}, v{S(b,1,1)+r}, v{vBIG}, s[{sMASK+2*r}:{sMASK+2*r+1}]")
            a(f"v_mov_b32 v{S(b,1,0)+r}, v{vBIG}")
        a(f"s_setpc_b64 s[{sRET}:{sRET+1}]")
        a.label(f"L_maskall{b}")
        for i in range(16): a(f"v_mov_b32 v{S(b,0,0)+i}, v{vBIG}")
        a(f"s_setpc_b64 s[{sRET}:{sRET+1}]")
    a.label("L_fchk")
    hi, lo = f2u(2.0**OPT["thr"]), f2u(2.0**-OPT["thr"])
    for qt in range(2):
        a(f"v_mov_b32 v{vT+8+qt}, v{vSUM[qt][0]}")
        xlane(a, "v_add_f32", vT+8+qt, vT)
        a(f"v_subrev_u32 v{vT+8+qt}, {lo:#x}, v{vT+8+qt}")
    a(f"v_max_u32 v{vT+8}, v{vT+8}, v{vT+9}")
    a(f"v_cmp_lt_u32 vcc, {hi-lo:#x}, v{vT+8}")
    a("s_nop 4")
    a("s_cbranch_vccnz L_rare0")
    a.label("L_fret")
    a(f"s_setpc_b64 s[{sRET}:{sRET+1}]")
    for b, qts, h in ((0, (0, 1), ""), (1, (0, 1), ""), (0, (1,), "h"), (1, (1,), "h")):
        a.label(f"L_rare{h}{b}")
        a("s_nop 7")
        D = [vT+8, vT+9]; F = [vT+10, vT+11]
        for qt in qts:
            r0, r1 = S(b,0,qt), S(b,1,qt)
            a(f"v_max3_f32 v{D[qt]}, v{r0}, v{r0+1}, v{r0+2}")
            a(f"v_max3_f32 v{D[qt]}, v{D[qt]}, v{r0+3}, v{r1}")
            a(f"v_max3_f32 v{D[qt]}, v{D[qt]}, v{r1+1}, v{r1+2}")
            a(f"v_max_f32 v{D[qt]}, v{D[qt]}, v{r1+3}")
            xlane(a, "v_max_f32", D[qt], vT)
            a(f"v_max_f32 v{D[qt]}, s{sCLAMP}, v{D[qt]}")
            a(f"v_max_f32 v{F[qt]}, 0, v{D[qt]}")
            a(f"v_exp_f32 v{F[qt]}, -v{F[qt]}")
            for i in range(4): a(f"v_sub_f32 v{NEGM(qt)+i}, v{NEGM(qt)+i}, v{D[qt]}")
            for bb in range(2):
                for kt in range(2):
                    for i in range(4): a(f"v_sub_f32 v{S(bb,kt,qt)+i}, v{S(bb,kt,qt)+i}, v{D[qt]}")
            a(f"v_mul_f32 v{vL[qt]}, v{F[qt]}, v{vL[qt]}")
        for o in sm_ops(b, qts): a(o)
        a(f"s_cmp_eq_u32 s{sFIRST}, 1")
        a(f"s_cbranch_scc1 L_rare_ret{h}{b}")
        for dt in range(16):
            for qt in qts:
                for i in range(4): a(f"v_mul_f32 v{O(dt,qt)+i}, v{F[qt]}, v{O(dt,qt)+i}")
        a.label(f"L_rare_ret{h}{b}")
        a(f"s_cmp_lg_u32 s{sCNT}, s{sEV}")
        a("s_nop 0")
        a(f"s_setpc_b64 s[{sRET}:{sRET+1}]")
    a.label("L_slowcomb")
    a("s_nop 7")
    wA, wB = [vT+8, vT+9], [vT+10, vT+11]
    for qt in range(2):
        a(f"""
        v_min_f32 v{vT+6}, v{NEGM(qt)}, v{vSTB+qt}
        v_sub_f32 v{wA[qt]}, v{vT+6}, v{NEGM(qt)}
        v_sub_f32 v{wB[qt]}, v{vT+6}, v{vSTB+qt}
        v_exp_f32 v{wA[qt]}, v{wA[qt]}
        v_exp_f32 v{wB[qt]}, v{wB[qt]}
        s_nop 0
        v_mul_f32 v{vL[qt]}, v{wA[qt]}, v{vL[qt]}
        v_mul_f32 v{vSTB+2+qt}, v{wB[qt]}, v{vSTB+2+qt}
        """)
    for dt in range(16):
        for qt in range(2):
            for i in range(4): a(f"v_mul_f32 v{O(dt,qt)+i}, v{wA[qt]}, v{O(dt,qt)+i}")
    for i in range(64):
        qt = (i >> 2) & 1
        a(f"""
        v_accvgpr_read_b32 v{vT}, a{128+i}
        v_lshlrev_b32 v{vT+1}, 16, v{vT}
        v_and_b32 v{vT}, 0xffff0000, v{vT}
        v_mul_f32 v{vT+1}, v{wB[qt]}, v{vT+1}
        v_mul_f32 v{vT}, v{wB[qt]}, v{vT}
        v_cvt_pk_bf16_f32 v{vT}, v{vT+1}, v{vT}
        v_accvgpr_write_b32 a{128+i}, v{vT}
        """)
    a("s_nop 1")
    a("s_branch L_comb")
    a.label("L_codeend")
    lines = []
    for l in a.lines: lines += l.split("\n")
    ghost = [l.startswith("@ghost ") for l in lines]
    lines = [l[7:] if g else l for l, g in zip(lines, ghost)]
    lines = resolve_vm(lines)
    lines = [l.replace("@@buffer", "buffer") for l, g in zip(lines, ghost) if not g]
    errs = check_hazards(lines) + check_scc(lines)
    for e in errs[:30]: print("HAZARD", e, file=sys.stderr)
    lines = [re.sub(r"\s*; @.*", "", l) for l in lines]
    lines = [l.strip() for l in lines if l.strip()]
    i, j = lines.index("L_gemmV:"), lines.index("L_P1A:")
    k = lines.index("L_zwaitV:"); k2 = lines.index("s_branch L_prepokV") + 1
    assert lines[i-1] == "s_branch L_P1A"
    r0, r1 = lines.index("L_cold:"), lines.index("L_codeend:")
    lines = [".p2align 12"] + lines[i:j] + lines[k:k2] + lines[r0:r1] + [".p2align 12"] + lines[:i-1] + lines[j:k] + lines[k2:r0] + lines[r1:]
    if OPT["tch"]:
        tmp = [re.sub(r"LT_(\w+)_\d", r"LR_\1", l) for l in lines]
        tmp, F = insert_stubs(tmp, [("L_gemmV", "L_zwaitV"), ("L_gK", "L_P1A"), ("L_P1A", "L_P1B"), ("L_P1B", "L_steady0"), ("L_steady0", "L_end0"), ("L_end0", "L_lpack"),
                                    ("L_lpack", "L_post2b"), ("L_post2b", "L_end")], OPT["tlab"], OPT["nox"], {"L_u41": "L_post2b"})
        g = lambda *k: [p for x in k for p in F.get(x, [])]
        pa = g("L_P1A", "L_steady0", "L_end0", "L_post2b"); pb = g("L_P1B", "L_steady0", "L_domask_s00", "L_lpack", "L_post2b")
        pb = [p for k, p in enumerate(pb) if k == 0 or not 0 < ADR[p] - ADR[pb[k-1]] <= 128]
        pos = {l.split()[-1]: n for n, l in enumerate(tmp)}
        it_ = iter(lines); lines = [l if l.startswith("@") else next(it_) for l in tmp]
        done_ = {}; tgt = {}
        for nm, path in SITES:
            q = dict(K=g("L_gK"), V=g("L_gemmV"), a=pa, b=pb, A=pa, B=pb, E=pa, F=pb, G=pa, C=g("L_end0"), D=g("L_lpack")[:2])[path[0]]
            d = done_.setdefault(path, set(done_.get(path.lower() + "K", ())))
            c = [p for p in q if p not in d and (pos[p] > pos[f"LR_{nm}:"] or (path == "V" and pos[f"LR_{nm}:"] > pos["L_go:"]))][:4]
            d |= set(c); c += q[-1:]*4
            for w in range(4): tgt[f"LT_{nm}_{w}"] = "L" + c[w]
        print("stubs", F, "\nuntouched A", [p for p in pa if p not in done_["A"]], "B", [p for p in pb if p not in done_["B"]], file=sys.stderr)
        o = []
        for l in lines:
            if l == "@pad": o.append("s_nop 0")
            elif l == "@align": o.append(".p2align 12")
            elif l.startswith("@skip"): o.append(f".fill {int(l.split()[1])//4}, 4, 0xbf800000")
            elif l.startswith("@"):
                p = l.split()[1]; r_ = [f"L{p}:", f"s_setpc_b64 s[{sRET}:{sRET+1}]"]
                if "L" + p not in tgt.values(): o += ["s_nop 0"]*(2 if "stub" in l else 1)
                else: o += [f"s_branch LO{p}"] + r_ + [f"LO{p}:"] if "stub" in l else r_
            else: o.append(re.sub(r"LT_\w+_\d", lambda m: tgt[m.group(0)], l))
        lines = o
    lines = compact(lines)
    return "\n".join(lines) + "\n", kernel_desc(name, 512, 256)

if __name__ == "__main__":
    import ast
    for x in sys.argv[2:]:
        k, v = x.split("=")
        OPT[k] = ast.literal_eval(v)
    NAME = "recurrent_scan__compressed_kv_cla__dense_activation_squared_relu__prompt_kernel"
    body, desc = gen(NAME)
    ref = open("recurrent_scan__compressed_kv_cla__dense_activation_squared_relu__prompt.s.ref").read().split("\n")
    hdr = [l for l in ref if l.startswith(";") and "launch" not in l and "grid=" not in l]
    hdr += ["; @launch grid=(256,1,1) block=(256,1,1) lds=163840", '.amdgcn_target "amdgcn-amd-amdhsa--gfx950"', ".text"]
    txt = "\n".join(hdr) + "\n" + body + '.section .rodata,"a"\n.p2align 6\n' + desc
    open(sys.argv[1], "w").write(txt)
    print(len(txt), "bytes", file=sys.stderr)
```

```python
import sys
from fw import *
from layout2 import *

OPT = dict(sw=3, qsg=[1, 5, 13, 21, 27, 35, 43, 49, 64, 68, 77, 85, 93, 101, 109, 115], qsl=12, esb=[], kp=[64, 20], wpf=0, rt=0, g7=1, tc=5, td=3, fe=19, soft=[1, 100], dfr=1, fbg=[3, 9, 15, 19, 25, 33, 41, 43, 49, 51, 57], fw=0, hov=0, kvs2=" sc1", o4=1, outsc="", fcap=0, dp1=1, ep2=0, bal=1, fsep=0, pr=0, prsc="", prld="", dp=None, clr0=19*64+36, clrs=20, ep=33, inl=["fa2", "fb", "gv00", "gv01"], psg=[25, 41, 57, 97, 113], inf=["fa2", "fb"], lvl=[(381, 3)], lve=[], epoll=0, nox={"L_steady0": "L_exit0", "L_steady1": "L_exit1"}, gev=[1, 1, 1, 1, 1, 1, 1, 1, 2, 3, 4, 5, 6, 7, 2, 3], gin=16, glate=1, dbgg=0, pfg=57, ptg=[3, 9, 17, 25, 33, 41, 49, 57], pte=10, qa=298, qe=36, qcap=7, qfd=72, kz=0, im=1, prog=0, cap8=36, fpos=3, dbgf=0, hold=0, zid=80, kva0=0, es=[(0, 25), (1, 33), (8, 41), (9, 49), (16, 57), (17, 61), (24, 89), (25, 97), (2, 105), (4, 113), (3, 121), (5, 125)], chg=2, tch=1, tg=[1, 2], tgs=[3], ta=[0, 1, 2], tb=[6, 7, 8], tlab=["L_P1A", "L_P1B", "L_steady0", "L_end0", "L_lpack", "L_steady1", "L_tail1", "L_post2b", "L_domask_s00"], cpf2=0, park=[0, 1, 2, 3, 4, 5], pst_n=3, swap=1, n0=[36, 32], enc0=0, enck=10, encw=[0, 0], enc=-1, ntA="", ntB="", ntS=" nt", chq=1, chp=1, cyc=0, npro=6, gcap=[4, 4, 3], dg2=8, xpos=3, rotm=4, rot=4, sync=[6, 10, 12, 15, 20, 22], xstep=20, wbl2=0, pfk=0, pfd=4, pfo=[0], pfn=2, smin=0, voff=0, dbgside=0, tlb=0, tlbm=0, tlbs=16, flit=9, npeel=7, slt=[100, 260, 880], slstep=16, sld=140, map2=False, kvb0=256, kvstepb=16, psleep=4, prep=1, pst=False, cpf=True, fine=False, touch=False, sc1ld=" sc1", stamps=False, early=[5, 13, 21, 29], late=[37, 45, 53, 61], cap=7, capb=8, capq=9, capn=12, kvstep=12, a15=[0, 2], fsleep=2, fdelay=96, qstep=7, wideloop=False, thr=40, kvsc=" sc1", sidesc=" sc1")

vLANE, vDMA, vTE, vTO, vL16, vRD, vPOLL, vFLG, vONE, vL4, vKV = range(1, 12)
DA = [12, 13, 14, 15]; DB = [16, 17, 18, 19]; RA = [20, 21]; RB = [22, 23, 24, 25]
vSW, vSF, vSX, vG1 = 26, 27, 28, 29
GT = 30
vT = 12
BP = [0, 2, 3, 1]
BIAS = 12
O0 = 128
def O(dt, qt): return O0 + (dt*2+qt)*4
def S(b, kt, qt): return 64 + b*16 + (kt*2+qt)*4
def P(b, qt): return 96 + b*8 + qt*4
def NEGM(qt): return 112 + qt*4
vL = [120, 121]
vSUM = [[122, 123], [124, 125]]
vBIG = 126
vRK = 60
vS, vS2, vPV = 61, 62, 63
GL = 192
vSTAT = 44
vSEL = 48
vRINV = [54, 55]
vSTB = 56
def accreg(pos): return vr(48+4*pos, 4) if pos < 52 else ar(208+4*(pos-52), 4)
NE = 6
def ENL(): return [c for c in range(32) if c not in dict(OPT["es"])]
def PARK(): return [OPT["es"][k][0] for k in OPT["esb"]]
def PK(c):
    if OPT["es"]:
        k = ENL().index(c) if c in ENL() else (40 if OPT["esb"] else 20) + [x[0] for x in OPT["es"]].index(c)
        return 48+4*k
    return 48+4*c if c < 20 else (48+4*(c-20) if c < 20+NE else 48+4*(20+c))
def Q(qb, qt, u): return qb + (qt*8+u)*4
def FR(f): return 64 + (f % 16)*4
def X(qt, u): return 128 + (u*2+qt)*4
def FA(b, m): return (64 if b == 0 else 0) + m*4
def FB(b, n): return (64 if b == 0 else 0) + 32 + n*4
def CA(m, kk): return (96 + m*8 + kk*4) % 128
def CB(n, kk): return (64 if n < 4 else 32) + (n & 3)*8 + kk*4
def QU(u): return ((u >> 1) & 1)*4 + (u >> 2)*2 + (u & 1) if OPT["chg"] == 2 else u
WOL = 192
SLD = 128

sWS, sSA, sSB, sG, sDBG = 4, 8, 12, 16, 20
_n = [24]
def sal(n=1, al=1):
    _n[0] = (_n[0] + al - 1)//al*al
    r = _n[0]; _n[0] += n; return r
sWAVE, sHEAD, sJ, sQI, sWHICH = [sal() for _ in range(5)]
gA0, gA1, gB0, gB1, gMA, gMB, gIT, gD, gCNT, gFL = [sal() for _ in range(10)]
sTAU, sM0, sOFFA, sOFFB, sRDD, sRDS, sXOFF, sXOF2, sN, sND = gA0, gA1, gB0, gB1, gD, gCNT, sal(), sal(), sal(), sal()
sCNT, sEV, sCLAMP, sFIRST = sal(), sal(), sal(), sal()
sRET = sal(2, 2)
sMASK = sal(8, 4)
sTYPE, sU1, sU2, sW0 = sal(), sal(), sal(), sal()
sKVB, sKVI = sal(), sal()
sQST, sPT, sPSG, sPSS = sal(), sal(), sal(), sal()
sFKV, sFKVP, sFQ, sFSG, sFSS = [sal() for _ in range(5)]
sT = sal(8, 4)
sLN = sal(2, 2)
sFS = sal(2, 2); sW4K = 3
sGC, sPOLL, sEVN = sKVB, sKVI, sFKV
sPF = sRET; sPD = sT+5; sEXP = gFL
sSTAMP = sal(0, 2)
NSTAMP = (102 - sSTAMP)//2
print("sgpr used", sSTAMP, "stamps", NSTAMP, file=sys.stderr)
WS = sr(sWS, 4)

STUBS = []
def ld(): return OPT["sc1ld"]
def FT(): return "s_memtime" if OPT["cyc"] else "s_memrealtime"

XG = [1, 9, 17, 25, 33, 41, 49, 57]
XG4 = list(range(1, 64, 4))
def common_fill(st, dma=True, nd=None, last=False, novm=False, rdl=False, rk=False):
    if nd is None: nd = 16 + len(OPT["early"]) + sum(1 for g in OPT["late"] if g < 38)
    for G in range(8):
        g0 = G*8
        Gn = (G+3) % 8
        for i in range(4):
            f = Gn*4+i
            if not (last and G > 4): st.put(g0+2*i, f"ds_read_b128 {ar(FR(f),4)}, v{vRK if rk and f >= 16 else vRD} offset:{f*1024}")
            if OPT["fw"] and st.mf[g0] is None: st.put_post(g0+2*i, "s_waitcnt lgkmcnt(12)")
        nh = OPT["fw"] and (st.mf[g0+8] is None if G < 7 else 63 in st.hzx)
        if last and G >= 4:
            if G < 7: st.put(g0+6, f"s_waitcnt lgkmcnt({(7, 4, 0)[G-4]})")
        elif G == 4:
            st.put(g0+6, "s_waitcnt lgkmcnt(7)" if novm else f"s_waitcnt vmcnt(@dma:{nd})" + ("" if nh else " lgkmcnt(7)"))
            st.put(g0+7, "s_barrier")
            st.put(g0+7, f"v_add_u32 v{vRD}, s{sRDD}, v{vRD}")
        elif not nh:
            st.put(g0+6, "s_waitcnt lgkmcnt(7)")
    for i, g in enumerate(OPT["early"] if dma else []):
        st.put(g, f"buffer_load_dwordx4 v{vDMA}, {WS}, s{sOFFB} offen offset:{i*1024}{ld()} lds")
    if dma: st.put(31, f"v_readlane_b32 s{sOFFA}, v{vTO}, s{sTAU}")
    st.put(31, f"s_add_u32 m0, s{sM0}, 16384")
    st.put(34, f"s_add_u32 s{sM0}, s{sM0}, s{sRDD}")
    st.put(36, f"s_cmp_ge_u32 s{sM0}, 131072")
    st.put(38, f"s_cselect_b32 s{sRDD}, s{gMA}, s{gMB}")
    st.put(44, f"s_add_u32 s{sTAU}, s{sTAU}, 1")
    for i, g in enumerate(OPT["late"] if dma else []):
        st.put(g, f"buffer_load_dwordx4 v{vDMA}, {WS}, s{sOFFA} offen offset:{i*1024}{ld()} lds")
    if dma or rdl: st.put(55, f"v_readlane_b32 s{sOFFB}, v{vTE}, s{sTAU}")
    st.put(63, f"s_mov_b32 m0, s{sM0}")
    st.scc_busy |= {36, 37}
    if rk: st.put(-1, f"v_mov_b32 v{vRK}, v{vRD}")
    if OPT["fine"]:
        st.put(4, f"{FT()} s[{sFS}:{sFS+1}]")
        st.put(6, f"v_mov_b32_dpp v{vKV}, v{vKV} wave_shr:1 row_mask:0xf bank_mask:0xf")
        st.put(62, f"v_writelane_b32 v{vKV}, s{sFS}, 0")

class Jobs:
    def __init__(self): self.jobs = []; self.at = {}
    def add(self, key, pre, ins, early, late): self.jobs.append((late, len(self.jobs), early, pre, ins, key))
    def place(self, st, s, cap=6, grid=None):
        slots = [g for g in (grid or XG) if not st.hasD(g) and st.free(g) == 2 and st.nS(g) == 0]
        n = 0
        avail = len([j for j in self.jobs if j[2] <= s*64+63])
        k = min(cap, avail, len(slots))
        use = [slots[(i*len(slots))//k] for i in range(k)] if k else []
        for g in slots:
            t = s*64+g
            c = sorted(j for j in self.jobs if j[2] <= t)
            if not c: continue
            j = c[0]
            nxt = [x for x in slots if x > g]
            urgent = j[0] < (s*64+nxt[0] if nxt else (s+1)*64+1)
            if not (urgent or (n < cap and (g in use or len(nxt) < k-n))): continue
            assert t <= j[0] + (24 if j[5][0] == "x" else 0) or j[5] in ("qs", "kvf", "qf") or (j[5] == "kv" and (j[2] >= 64 or j[0] > j[2])), ("job late", j, t)
            if j[3]:
                assert g-1 not in st.scc_busy
                st.put(g-1, j[3])
            st.put(g, j[4]); self.jobs.remove(j); self.at[j[5]] = t; n += 1

def mf_pv(half, pb, czero=False):
    return [f"{MF} {vr(O(dt,qt),4)}, {ar(FR(half*16+dt),4)}, {vr(P(pb,qt),4)}, {'0' if czero else vr(O(dt,qt),4)}"
            for dt in range(16) for qt in range(2)]
def mf_qk(half, sb, qb, czero=False):
    out = []
    for kt in range(2):
        seq = [(u, qt) for u in range(8) for qt in range(2)]
        if OPT["chq"]: seq = [(g*4+u, qt) for g in range(2) for qt in ((0, 1), (1, 0))[g] for u in range(4)]
        for u, qt in seq:
            c = ('0' if czero else vr(NEGM(qt),4)) if u == 0 else vr(S(sb,kt,qt),4)
            out.append(f"{MF} {vr(S(sb,kt,qt),4)}, {ar(FR(half*16+kt*8+u),4)}, {ar(Q(qb,qt,QU(u)),4)}, {c}")
    return out
def mf_pvh(half, pb):
    return [x if i & 1 else None for i, x in enumerate(mf_pv(half, pb))]
def mf_qkh(half, sb, qb):
    out = []
    for kt in range(2):
        for u in range(8):
            c = vr(NEGM(1),4) if u == 0 else vr(S(sb,kt,1),4)
            out += [None, f"{MF} {vr(S(sb,kt,1),4)}, {ar(FR(half*16+kt*8+u),4)}, {ar(Q(qb,1,QU(u)),4)}, {c}"]
    return out
def mf_proj(s, init=None):
    out = []
    for nt in range(16):
        seq = [(0, 0, 1), (1, 0, 0), (1, 1, 1), (0, 1, 0)] if OPT["chp"] else [(0, 0, 1), (0, 1, 1), (1, 0, 0), (1, 1, 0)]
        for uu, qt, first in seq:
            c = vr(O(nt,qt),4)
            if first and init == "zero": c = "0"
            if first and init == "bias": c = vr(O(nt,1),4)
            out.append(f"{MF} {vr(O(nt,qt),4)}, {ar(FR(2*nt+uu),4)}, {ar(X(qt,2*s+uu),4)}, {c}")
    return out
def mf_proj2(s, h):
    return [re.sub(r", a\[\d+:\d+\], a", f", {ar(FR((i >> 2)*2 + (1, 2).count(i & 3)),4)}, a", x) for k in (s, s+1) for i, x in enumerate(mf_proj(k)[32*h:32*h+32])]
def PA(b, nt, qt): return 64 + (nt*2+qt)*4 if b == 0 else O(2*nt+1, qt)
def mf_post(s):
    out = []
    for f in range(32):
        u, nt = f >> 2, f & 3
        for qt in range(2):
            d = vr(PA(s & 1, nt, qt), 4)
            out.append(f"{MF} {d}, {ar(FR(f),4)}, {vr(O(2*u,qt),4)}, {'0' if u == 0 else d}")
    return out

def sm_ops(b, qts=(0, 1)):
    ops = []
    seq = [(kt, qt, rp) for kt in range(2) for qt in qts for rp in range(2)]
    pend = []
    for i, (kt, qt, rp) in enumerate(seq):
        t0 = vT + (i % 4)*2
        s0 = S(b,kt,qt) + rp*2
        ops.append(f"v_exp_f32 v{t0}, v{s0}")
        ops += pend[:1]
        ops.append(f"v_exp_f32 v{t0+1}, v{s0+1}")
        ops += pend[1:]
        acc = vSUM[qt][rp]
        if kt == 0: pend = [f"v_add_f32 v{acc}, v{t0}, v{t0+1}"]
        else: pend = [f"v_add_f32 v{acc}, v{acc}, v{t0}", f"v_add_f32 v{acc}, v{acc}, v{t0+1}"]
        pend.append(f"v_cvt_pk_bf16_f32 v{P(b,qt)+kt*2+rp}, v{t0}, v{t0+1}")
    ops.append("s_nop 0")
    ops += pend
    ops += [f"v_add_f32 v{vSUM[q][0]}, v{vSUM[q][0]}, v{vSUM[q][1]}" for q in qts]
    return ops

def mask_code(b, qt, lab, back):
    big = vr(vBIG, 2)
    cm = lambda q: [f"v_cndmask_b32 v{q+r}, v{q+r}, v{vBIG}, s[{sMASK+2*r}:{sMASK+2*r+1}]" for r in range(4)]
    o = [f"s_bitcmp1_b32 s{sWAVE}, 0", f"s_cbranch_scc1 {lab}_odd"] + cm(S(b,0,qt))
    o += [f"{lab}_all:"] + [f"v_mov_b64 {vr(S(b,1,qt)+r,2)}, {big}" for r in (0, 2)]
    o += [f"s_branch {back}", f"{lab}_odd:", "s_nop 3"] + cm(S(b,1,qt)) + [f"s_branch {back}"]
    return o

def place_sm(st, b, g0, g_end, tag, ladd=(0, 1), first=False, mask=True, qts=(0, 1), d=None):
    lab, back = f"L_domask_{tag}", f"L_nomask_{tag}"
    if d is not None:
        st.put(g0-1, f"s_bitcmp1_b32 s{sWAVE}, 1")
        o = mask_code(b, d >> 1, lab, back)
        if d & 1: o = [f"s_cbranch_scc0 {lab}_a0"] + o + [f"{lab}_a0:", "s_nop 1"] + [f"v_mov_b64 {vr(S(b,kt,d>>1)+r,2)}, {vr(vBIG,2)}" for kt in range(2) for r in (0, 2)]
        else: o = [f"s_cbranch_scc1 {back}"] + o[:-1]
        st.put(g0, "\n".join(o)); st.put(g0, back + ":")
        st.scc_busy |= {g0-1}
    elif mask and b == 0 and tag not in ("fa1", "pt0"):
        st.put(g0-1, f"s_cmp_eq_u32 s{sCNT}, s{sN if first else sND}")
        if tag in OPT["inl"]: st.put(g0, f"s_cbranch_scc0 {back}\n" + "\n".join(mask_code(b, 0, lab, back)[:-1]))
        else:
            assert tag in ("s00", "s01")
            st.put(g0, "s_cbranch_scc1 L_domask_s00")
        st.put(g0, back + ":")
        st.scc_busy |= {g0-1}
    ge = OPT["fe"] if first else g0
    def add(ins, deps=(), early=0): return st.add(ins, deps, max(early, ge), g_end)
    la = [add(f"v_add_f32 v{vL[q]}, v{vL[q]}, v{vSUM[q][0]}") for q in ladd or ()]
    seq = [(kt, qt, rp) for kt in range(2) for qt in (qts[::-1] if first else qts) for rp in range(2)]
    users = {}; lastacc = {}; NT = 6
    for i, (kt, qt, rp) in enumerate(seq):
        t0 = vT + (i % NT)*2
        s0 = S(b,kt,qt) + rp*2
        war = users.get(i - NT, [])
        e = g0 + (1 if kt == 0 else 3)
        if st.mf[0] is None: e = g0 + 4*kt
        if first: e = ge if kt == 0 and (qt == 1 or tag == "fa1") else g0
        e0 = add(f"v_exp_f32 v{t0}, v{s0}", war, e)
        e1 = add(f"v_exp_f32 v{t0+1}, v{s0+1}", war, e)
        acc = vSUM[qt][rp]
        if kt == 0:
            a0 = add(f"v_add_f32 v{acc}, v{t0}, v{t0+1}", [e0, e1] + la)
            u = [a0]; lastacc[(qt,rp)] = a0
        else:
            a0 = add(f"v_add_f32 v{acc}, v{acc}, v{t0}", [e0, lastacc[(qt,rp)]])
            a1 = add(f"v_add_f32 v{acc}, v{acc}, v{t0+1}", [e1, a0])
            u = [a0, a1]; lastacc[(qt,rp)] = a1
        c = st.add(f"v_cvt_pk_bf16_f32 v{P(b,qt)+kt*2+rp}, v{t0}, v{t0+1}", [e0, e1], ge, g_end-1)
        users[i] = u + [c]
    if 0 in qts: f0 = add(f"v_add_f32 v{vSUM[0][0]}, v{vSUM[0][0]}, v{vSUM[0][1]}", [lastacc[(0,0)], lastacc[(0,1)]])
    f1 = add(f"v_add_f32 v{vSUM[1][0]}, v{vSUM[1][0]}, v{vSUM[1][1]}", [lastacc[(1,0)], lastacc[(1,1)]])
    hi = f2u(2.0**OPT["thr"])
    if 0 not in qts: add(f"v_cmp_nge_f32 vcc, {hi:#x}, v{vSUM[1][0]}", [f1])
    elif not first:
        mx = add(f"v_max_f32 v{vT+14}, v{vSUM[0][0]}, v{vSUM[1][0]}", [f0, f1])
        add(f"v_cmp_nge_f32 vcc, {hi:#x}, v{vT+14}", [mx])
    else:
        lo = f2u(2.0**-OPT["thr"])
        m0 = add(f"v_subrev_u32 v{vT+14}, {lo:#x}, v{vSUM[0][0]}", [f0])
        m1 = add(f"v_subrev_u32 v{vT+15}, {lo:#x}, v{vSUM[1][0]}", [f1])
        mx = add(f"v_max_u32 v{vT+14}, v{vT+14}, v{vT+15}", [m0, m1])
        add(f"v_cmp_lt_u32 vcc, {hi-lo:#x}, v{vT+14}", [mx])

def xlane_ops(op, v, t1):
    return [(f"v_mov_b32 v{t1}, v{v}", 0), (f"v_permlane16_swap_b32 v{v}, v{t1}", 2), (f"{op} v{v}, v{v}, v{t1}", 1),
            (f"v_mov_b32 v{t1}, v{v}", 0), (f"v_permlane32_swap_b32 v{v}, v{t1}", 2), (f"{op} v{v}, v{v}, v{t1}", 1)]
def xlane(a, op, v, t1):
    for ins, d in xlane_ops(op, v, t1):
        if d: a(f"s_nop {d-1}")
        a(ins)

class Chain:
    def __init__(self, items, grid=None): self.items = list(items); self.lastg = -10; self.grid = grid; self.base = 0; self.lastD = -999; self.minD = 0
    def fill(self, st, g0=0, g1=63):
        g = g0; lastg = -10
        while self.items and g <= g1:
            ins, dist = self.items[0][:2]
            early = self.items[0][2] if len(self.items[0]) > 2 else 0
            c = cls(ins)
            ok = g - lastg >= dist and g >= early and not st.hasD(g)
            if ok and g == lastg and not (c in "VE" and cls(self.last) in "VM"): ok = False
            if ok:
                if c == "S": ok = (st.nS(g) == 0 or st.free(g) >= 1) and not (g in st.scc_busy and not ins.startswith(("s_mov", "s_mul", "s_wait", "s_nop")))
                elif c == "D": ok = st.free(g) == 2 and st.nS(g) == 0 and (self.grid is None or g in self.grid) and self.base + g - self.lastD >= self.minD
                else: ok = st.free(g) >= COST[c]
            if ok:
                st.put(g, ins); self.items.pop(0); lastg = g; self.last = ins
                if c == "D": self.lastD = self.base + g
            else:
                g += 1
    def flush(self, a):
        for it in self.items:
            if it[1]: a(f"s_nop {it[1]-1}")
            a(it[0])
        self.items = []

SITES = []
def touch(path):
    nm = f"{path}{len(SITES)}"; SITES.append((nm, path))
    c = lambda w: f"s_call_b64 s[{sRET}:{sRET+1}], LT_{nm}_{w}"
    return (f"s_bitcmp1_b32 s{sWAVE}, 1\ns_cbranch_scc1 LH_{nm}\ns_bitcmp1_b32 s{sWAVE}, 0\ns_cbranch_scc1 LA_{nm}\n{c(0)}\ns_branch LR_{nm}\nLA_{nm}:\n{c(1)}\ns_branch LR_{nm}\n"
            f"LH_{nm}:\ns_bitcmp1_b32 s{sWAVE}, 0\ns_cbranch_scc1 LB_{nm}\n{c(2)}\ns_branch LR_{nm}\nLB_{nm}:\n{c(3)}\nLR_{nm}:")

def gen(name="mega_kernel"):
    a = Asm()
    STUBS.clear(); SITES.clear(); SOFT[:] = OPT["soft"]
    stamps = OPT["stamps"]
    nst = [0]
    def stamp_ins():
        i = nst[0]; nst[0] += 1
        assert i < NSTAMP
        return f"s_memrealtime s[{sSTAMP+2*i}:{sSTAMP+2*i+1}]"
    def streg(i): return sSTAMP+2*i if i < NSTAMP else sMASK+2*(i-NSTAMP)
    def stamp(i, p=False):
        if OPT["pst"] and 2 <= i <= 6 and not p: return
        if p and not OPT["pst"]: return
        if stamps: a(f"s_memrealtime s[{streg(i)}:{streg(i)+1}]")
    def merge(lbl, align=False):
        if align: a.raw(".p2align 6")
        a.label(lbl); a.comment("@merge")
    strideA, strideB = 2048, 8192
    a.raw(kernel_header(name))
    a("s_cmp_ge_u32 s2, 256")
    a("s_cbranch_scc0 L_go")
    a("s_endpgm")
    a.label("L_go")
    stamp(0)
    sW12, sX = sMASK, sMASK+4
    gHEAD, gMT, gWM, gWN = sCNT, sEV, sCLAMP, sFIRST
    a(f"""
    s_load_dwordx2 s[{sSA}:{sSA+1}], s[0:1], 8
    s_load_dwordx4 s[{sT}:{sT+3}], s[0:1], 24
    s_load_dwordx2 s[{sWS}:{sWS+1}], s[0:1], 104
    s_load_dwordx2 s[{sX}:{sX+1}], s[0:1], 0
    s_load_dwordx2 s[{sDBG}:{sDBG+1}], s[0:1], 96
    s_load_dwordx2 s[{sW12}:{sW12+1}], s[0:1], 56
    s_load_dwordx2 s[{sRET}:{sRET+1}], s[0:1], 72
    s_load_dwordx2 s[{sT+6}:{sT+7}], s[0:1], 16
    v_and_b32 v{vLANE}, 63, v0
    v_lshrrev_b32 v{GT}, 6, v0
    v_lshlrev_b32 v{vL16}, 4, v{vLANE}
    v_readfirstlane_b32 s{sWAVE}, v{GT}
    s_and_b32 s3, s2, 7
    s_lshl_b32 s3, s3, 1
    s_lshr_b32 s{sJ}, s2, 4
    s_bfe_u32 s{sWHICH}, s2, 0x10003
    s_add_u32 s{sHEAD}, s3, s{sWHICH}
    s_and_b32 s{gHEAD}, s{sJ}, 1
    s_add_u32 s{gHEAD}, s{gHEAD}, s3
    s_lshr_b32 s{gWM}, s2, 1
    s_xor_b32 s{gMT}, s2, s{gWM}
    s_bfe_u32 s{gMT}, s{gMT}, 0x10005
    s_lshl_b32 s{gMT}, s{gMT}, 2
    s_lshr_b32 s{gWM}, s2, 6
    s_xor_b32 s{gWM}, s{gWM}, 2
    s_or_b32 s{gMT}, s{gMT}, s{gWM}
    """)
    if OPT["map2"]:
        a(f"""
        s_bfe_u32 s{gHEAD}, s2, 0x10005
        s_add_u32 s{gHEAD}, s{gHEAD}, s3
        s_lshl_b32 s{gMT}, s{sWHICH}, 2
        s_bfe_u32 s{gWM}, s2, 0x10004
        s_or_b32 s{gMT}, s{gMT}, s{gWM}
        s_bfe_u32 s{gWM}, s2, 0x10007
        s_xor_b32 s{gWM}, s{gWM}, 1
        s_lshl_b32 s{gWM}, s{gWM}, 1
        s_or_b32 s{gMT}, s{gMT}, s{gWM}
        s_bfe_u32 s{sWHICH}, s2, 0x10006
        """)
    if OPT["swap"]:
        a(f"""
        s_cmp_lt_u32 s{sJ}, 8
        s_cselect_b32 s{gWM}, {2*OPT["swap"]}, 0
        s_xor_b32 s{sHEAD}, s{sHEAD}, s{gWM}
        """)
    a(f"""
    s_and_b32 s{gWM}, s{sWAVE}, 1
    s_lshr_b32 s{gWN}, s{sWAVE}, 1
    """)
    t2, t3, t4, t5, t6 = GT, GT+1, GT+2, GT+3, GT+4
    a(f"""
    v_lshrrev_b32 v{t2}, 3, v{vLANE}
    s_lshl_b32 s{gA0}, s{gMT}, 8
    s_lshl_b32 s{gA1}, s{sWAVE}, 6
    {f"s_lshl_b32 s{gMA}, s{gWM}, 5" if OPT["chg"] else ""}
    {f"s_sub_u32 s{gA1}, s{gA1}, s{gMA}" if OPT["chg"] else ""}
    s_lshl_b32 s{gMA}, s{gA1}, 7
    s_add_u32 s{gA0}, s{gA0}, s{gA1}
    v_add_u32 v{t2}, s{gA0}, v{t2}
    v_lshlrev_b32 v{t2}, 11, v{t2}
    v_and_b32 v{t3}, 7, v{vLANE}
    v_lshrrev_b32 v{t4}, 4, v{vLANE}
    v_xor_b32 v{t5}, v{t3}, v{t4}
    v_lshl_add_u32 v{t5}, v{t5}, 4, v{t2}
    v_xor_b32 v{t6}, 4, v{t4}
    v_xor_b32 v{t6}, v{t3}, v{t6}
    v_lshl_add_u32 v{t6}, v{t6}, 4, v{t2}
    """)
    for jl in range(4):
        a(f"v_add_u32 v{DA[jl]}, {4096 + jl*8*strideA - jl*1024}, v{t5 if (jl & 1) == 0 else t6}")
    a(f"""
    v_bfe_u32 v{t2}, v{vLANE}, 3, 2
    v_lshlrev_b32 v{t3}, 13, v{t2}
    v_lshrrev_b32 v{t4}, 5, v{vLANE}
    v_lshl_add_u32 v{t3}, v{t4}, {18 if OPT["chg"] == 1 else 7}, v{t3}
    v_lshrrev_b32 v{t4}, 1, v{t2}
    v_lshlrev_b32 v{t4}, 2, v{t4}
    v_and_b32 v{t5}, 7, v{vLANE}
    v_xor_b32 v{t4}, v{t4}, v{t5}
    s_lshl_b32 s{gA0}, s{gWM}, 1
    v_xor_b32 v{t4}, s{gA0}, v{t4}
    v_lshl_add_u32 v{t3}, v{t4}, 4, v{t3}
    s_lshl_b32 s{gA0}, s{gHEAD}, 9
    s_lshl_b32 s{gA1}, s{sWAVE}, 16
    s_add_u32 s{gA0}, s{gA0}, s{gA1}
    v_add_u32 v{t3}, s{gA0}, v{t3}
    """)
    for jl in range(4):
        a(f"v_add_u32 v{DB[jl]}, {4096 + (jl>>1)*4*strideB + (jl&1)*(32*strideB if OPT['chg'] == 2 else 256) - jl*1024}, v{t3}")
    a(f"""
    s_mul_i32 s{gA1}, s3, {OPT["rot"]*64}
    s_mul_i32 s{gA0}, s{gMT}, {OPT["rotm"]*128}
    s_add_u32 s{gA1}, s{gA1}, s{gA0}
    s_and_b32 s{gA1}, s{gA1}, 0x7ff
    s_lshl_b32 s{gMB}, s{sWAVE}, 12
    s_mov_b32 s{sSA+2}, {4194304+4096}
    s_mov_b32 s{sSA+3}, 0x20000
    s_mov_b32 s{sSB+2}, {8388608+4096}
    s_mov_b32 s{sSB+3}, 0x20000
    @PST2
    s_waitcnt lgkmcnt(0)
    @PST3
    s_sub_u32 s{sSA}, s{sSA}, 4096
    s_subb_u32 s{sSA+1}, s{sSA+1}, 0
    s_cmp_eq_u32 s{sWHICH}, 0
    s_cselect_b32 s{sSB}, s{sT}, s{sT+2}
    s_cselect_b32 s{sSB+1}, s{sT+1}, s{sT+3}
    s_sub_u32 s{sSB}, s{sSB}, 4096
    s_subb_u32 s{sSB+1}, s{sSB+1}, 0
    """)
    for i in (2, 3):
        k = [n for n, l in enumerate(a.lines) if f"@PST{i}" in l][0]
        a.lines[k] = f"s_memrealtime s[{streg(i)}:{streg(i)+1}]" if OPT["pst"] else ""
    MA, MB = (0x207ff if OPT["chg"] else 0x107ff), 0x7fffff
    hA = 64 if OPT["chg"] else 32; hB = (32*strideB, 128, 256)[OPT["chg"]]
    gRA, gRB, gTS = gA1, gCNT, (gA0, sT)
    a(f"s_lshl_b32 s{gRB}, s{gRA}, 12")
    def dma_group(kind, par):
        t = gTS[par & 1]
        if kind[0] == "A":
            _, it, h = kind
            m0 = f"s_add_u32 m0, s{gMA}, {(131072, 0, 65536)[it % 3] + h*hA*128}"; regs, srd = DA, sSA
            so = f"s_add_u32 s{t}, s{gRA}, {h*hA*strideA + it*128}\ns_and_b32 s{t}, s{t}, {MA}"
        elif kind[0] == "B":
            _, it, h = kind
            m0 = f"s_add_u32 m0, s{gMB}, {32768 + (it & 1)*65536 + h*16384}"; regs, srd = DB, sSB
            so = f"s_add_u32 s{t}, s{gRB}, {it*64*strideB + h*hB}\ns_and_b32 s{t}, s{t}, {MB}"
        else:
            y = kind[1]
            return f"s_add_u32 m0, s{gMB}, {y*16384}", f"s_add_u32 s{t}, s{sW0}, {y*16384}", \
                   [f"buffer_load_dwordx4 v{vDMA}, {WS}, s{t} offen offset:{i*1024}{ld()} lds ; @gU{y}" for i in range(4)]
        return m0, so, [f"buffer_load_dwordx4 v{regs[jl]}, {sr(srd,4)}, s{t} offen offset:{jl*1024}{OPT['nt' + kind[0]]} lds ; @g{kind[0]}{it}_{h}" for jl in range(4)]
    todo = []
    for it in range(16):
        if OPT["chg"]: todo += [(2*it-1+h, 2*(it-d)+h, (k_, it, h)) for h in range(2) for k_, d in (("A", 3), ("B", 2))]
        else: todo += [(2*it-1, 2*(it-3)+1, ("A", it, 0)), (2*it-1, 2*(it-2), ("B", it, 0)), (2*it-1, 2*(it-3)+1, ("A", it, 1)), (2*it, 2*(it-2)+1, ("B", it, 1))]
    todo += [(31+y, av, ("U", y)) for y, av in enumerate((27, 27, 28, 29, 29, 29, 30, 31))]
    GS = {}; order = []
    for n in range(-1, 32):
        cap = OPT["npro"] if n < 0 else OPT["gcap"][min(n, len(OPT["gcap"])-1)]
        c = sorted([x for x in todo if x[1] <= n], key=lambda x: x[0])[:cap]
        for x in c: todo.remove(x); assert x[0] > n or n < 0, (x, n)
        GS[n] = [x[2] for x in c]; order += GS[n]
    assert not todo
    print("GS", {n: len(v) for n, v in GS.items()}, file=sys.stderr)
    def gtag(k): return f"gU{k[1]}" if k[0] == "U" else f"g{k[0]}{k[1]}_{k[2]}"
    def gwait(n):
        it, kk = (n+1) >> 1, (n+1) & 1
        need = [("U", 0), ("U", 1)] if n == 31 else [("B", it, 1)] if kk else [("A", it, 0), ("A", it, 1), ("B", it, 0)]
        if OPT["chg"] and n < 31: need = [("A", it, kk), ("B", it, kk)]
        return f"vmcnt(@since:{gtag(max(need, key=order.index))})"
    main = a; a = Asm()
    sWID, u_, nb_, o_, o2_ = sXOFF, sT+1, sT+2, sT+3, sT+4
    sD = [sQST, sPT, sPSG]; sXS = sPSS; sHI = sFSG; sSTR = sFSS
    vWO, vW12 = vRD, vDMA
    G = sr(sG, 4)
    r_, g_, r8 = GT, GT+1, GT+2
    h_, i_ = GT+5, GT+6
    a(f"""
    s_lshl_b32 s{sWID}, s2, 2
    s_add_u32 s{sWID}, s{sWID}, s{sWAVE}
    s_mov_b32 s{sX+2}, {2048*896}
    s_mov_b32 s{sX+3}, 0x20000
    v_and_b32 v{h_}, 3, v{vLANE}
    v_lshrrev_b32 v{i_}, 2, v{vLANE}
    v_mul_u32_u24 v{GT+7}, 896, v{h_}
    v_lshl_add_u32 v{GT+7}, v{i_}, 4, v{GT+7}
    v_cmp_gt_u32 s[{sLN}:{sLN+1}], 14, v{i_}
    v_mov_b32 v{GT+8}, {OOB}
    s_lshr_b32 s{gB1}, s{sWID}, 1
    s_mul_i32 s{gB1}, s{gB1}, 3584
    s_mul_i32 s{gB0}, s{gWM}, 448
    s_add_u32 s{gB1}, s{gB1}, s{gB0}
    v_cndmask_b32 v{GT+11}, v{GT+8}, v{GT+7}, s[{sLN}:{sLN+1}]
    s_getpc_b64 s[{sG}:{sG+1}]
    L_pc:
    s_sub_u32 s{sG}, s{sG}, L_pc - L_gemmV
    s_subb_u32 s{sG+1}, s{sG+1}, 0
    s_mov_b32 s{sG+2}, L_codeend - L_gemmV
    s_mov_b32 s{sG+3}, 0x20000
    s_lshr_b32 s{gB0}, s2, 3
    s_lshl_b32 s{gB0}, s{gB0}, 2
    s_add_u32 s{gB0}, s{gB0}, s{sWAVE}
    s_lshl_b32 s{gB0}, s{gB0}, 10
    s_mov_b32 s{sWS+2}, {WS_SIZE}
    s_mov_b32 s{sWS+3}, 0x20000
    v_and_b32 v{r_}, 15, v{vLANE}
    v_lshrrev_b32 v{g_}, 4, v{vLANE}
    v_lshlrev_b32 v{r8}, 3, v{r_}
    """)
    r8p = GT+3 if OPT["o4"] else r8
    if OPT["o4"]:
        a(f"""
        v_and_b32 v{r8p}, 64, v{r8}
        v_lshl_add_u32 v{r8p}, v{h_}, 4, v{r8p}
        v_and_b32 v{GT+4}, 4, v{vLANE}
        v_lshl_add_u32 v{r8p}, v{GT+4}, 1, v{r8p}
        """)
    def natdest(dst, base):
        a(f"""
        s_lshr_b32 s{o_}, s{nb_}, 2
        s_mul_i32 s{o_}, s{o_}, {7*32768}
        s_lshr_b32 s{o2_}, s{u_}, 1
        s_lshl_b32 s{o2_}, s{o2_}, 15
        s_add_u32 s{o_}, s{o_}, s{o2_}
        s_and_b32 s{o2_}, s{nb_}, 3
        s_lshl_b32 s{o2_}, s{o2_}, 13
        s_add_u32 s{o_}, s{o_}, s{o2_}
        s_and_b32 s{o2_}, s{u_}, 1
        s_lshl_b32 s{o2_}, s{o2_}, 10
        s_add_u32 s{o_}, s{o_}, s{o2_}
        s_add_u32 s{dst}, s{o_}, {base}
        """)
    def div7(idx):
        a(f"""
        s_mul_i32 s{u_}, s{idx}, 9363
        s_lshr_b32 s{u_}, s{u_}, 16
        s_mul_i32 s{nb_}, s{u_}, 7
        s_sub_u32 s{nb_}, s{idx}, s{nb_}
        """)
    def ffdest(dst, base, lim, idx=sWID):
        a(f"""
        s_mul_i32 s{o_}, s{nb_}, {184*4096}
        s_lshl_b32 s{o2_}, s{u_}, 12
        s_add_u32 s{o_}, s{o_}, s{o2_}
        s_add_u32 s{dst}, s{o_}, {base}
        s_cmp_lt_u32 s{idx}, {lim}
        s_cselect_b32 s{dst}, s{dst}, {OOB}
        """)
    a(f"""
    s_mov_b32 s{sDBG+2}, 16
    s_mov_b32 s{sDBG+3}, 0x20000
    v_mul_u32_u24 v{vWO}, {4*896}, v{g_}
    v_add_u32 v{vWO}, v{vWO}, v{r8p}
    s_lshl_b32 s{gD}, s{gMT}, 1
    s_add_u32 s{gD}, s{gD}, s{sWHICH}
    s_lshl_b32 s{gD}, s{gD}, 2
    s_add_u32 s{gD}, s{gD}, s{sWAVE}
    """)
    div7(gD)
    a(f"""
    s_lshl_b32 s{o_}, s{gHEAD}, 3
    s_add_u32 s{u_}, s{u_}, s{o_}
    s_mul_i32 s{o_}, s{u_}, {32*896}
    s_lshl_b32 s{o2_}, s{nb_}, 7
    s_add_u32 s{o_}, s{o_}, s{o2_}
    s_cmp_lt_u32 s{gD}, 56
    s_cselect_b32 s{o_}, s{o_}, {OOB}
    v_add_u32 v{vWO}, s{o_}, v{vWO}
    """)
    ffdest(sD[1], WS_WFF + 56*4096, 56, gD)
    a(f"""
    s_lshr_b32 s{u_}, s{sWID}, 2
    s_mul_i32 s{u_}, s{u_}, 9363
    s_lshr_b32 s{u_}, s{u_}, 16
    s_mul_i32 s{nb_}, s{u_}, 28
    s_sub_u32 s{nb_}, s{sWID}, s{nb_}
    s_mul_i32 s{sHI}, s{u_}, {32*3584}
    s_lshl_b32 s{o2_}, s{nb_}, 7
    s_add_u32 s{sHI}, s{sHI}, s{o2_}
    """)
    natdest(sSTR, WS_W1F)
    a(f"s_sub_u32 s{sT+5}, s{sWID}, 392")
    a(f"s_and_b32 s{sT+5}, s{sT+5}, 1023")
    div7(sT+5)
    ffdest(sD[2], WS_WFF, 784)
    a(f"""
    s_lshr_b32 s{o_}, s{u_}, 1
    s_mul_i32 s{o_}, s{o_}, {64*896}
    s_and_b32 s{o2_}, s{u_}, 1
    s_mul_i32 s{o2_}, s{o2_}, {2*896}
    s_add_u32 s{o_}, s{o_}, s{o2_}
    s_lshl_b32 s{o2_}, s{nb_}, 7
    s_add_u32 s{o_}, s{o_}, s{o2_}
    s_mov_b32 s{sW12+2}, {448*3584}
    s_mov_b32 s{sW12+3}, 0x20000
    s_cmp_lt_u32 s{sWID}, 392
    s_cselect_b32 s{sW12}, s{sW12}, s{sRET}
    s_cselect_b32 s{sW12+1}, s{sW12+1}, s{sRET+1}
    s_cselect_b32 s{o_}, s{sHI}, s{o_}
    s_cselect_b32 s{sD[2]}, s{sSTR}, s{sD[2]}
    s_cselect_b32 s{sHI}, 16, 1
    s_cselect_b32 s{sSTR}, 2, 1
    s_cselect_b64 vcc, -1, 0
    s_mul_i32 s{sHI}, s{sHI}, 896
    s_mul_i32 s{o2_}, s{sSTR}, {16*896}
    s_lshl_b32 s{sSTR}, s{sSTR}, 10
    v_mul_u32_u24 v{vW12}, s{o2_}, v{g_}
    v_cndmask_b32 v{r8}, v{r8p}, v{r8}, vcc
    v_add3_u32 v{vW12}, v{vW12}, v{r8}, s{o_}
    v_lshlrev_b32 v{GT+9}, 8, v{i_}
    v_lshl_add_u32 v{GT+9}, v{h_}, 4, v{GT+9}
    v_cndmask_b32 v{vSX}, v{GT+8}, v{GT+9}, s[{sLN}:{sLN+1}]
    s_lshr_b32 s{o_}, s{sWID}, 3
    s_mul_i32 s{o_}, s{o_}, 14336
    s_and_b32 s{o2_}, s{sWID}, 6
    s_lshl_b32 s{o2_}, s{o2_}, 5
    s_add_u32 s{sXS}, s{o_}, s{o2_}
    s_mul_i32 s{o2_}, s{gWM}, 7168
    s_add_u32 s{sXS}, s{sXS}, s{o2_}
    s_xor_b32 s{o2_}, s{sWID}, {OPT["zid"]*4}
    s_lshl_b32 s{sFQ}, s{o2_}, 10
    s_add_u32 s{sFQ}, s{sFQ}, {WS_FLG}
    s_cmp_lt_u32 s{o2_}, 32
    s_cselect_b32 s{sFQ}, s{sFQ}, {OOB}
    v_cmp_eq_u32 vcc, 0, v{vLANE}
    v_mov_b32 v{vONE}, 1
    v_and_b32 v{vL4}, 3, v{vLANE}
    v_lshlrev_b32 v{vL4}, 2, v{vL4}
    v_cndmask_b32 v{vFLG}, v{GT+8}, v{vLANE}, vcc
    s_mov_b32 s{sRET}, s{sT+6}
    s_mov_b32 s{sRET+1}, s{sT+7}
    s_lshr_b32 s{u_}, s{gD}, 2
    s_lshl_b32 s{nb_}, s{gHEAD}, 2
    s_add_u32 s{nb_}, s{nb_}, s{sWAVE}
    s_lshl_b32 s{o_}, s{u_}, 18
    s_lshl_b32 s{o2_}, s{nb_}, 7
    s_add_u32 s{o_}, s{o_}, s{o2_}
    v_and_b32 v{vSW}, 3, v{vLANE}
    v_lshlrev_b32 v{vSW}, 5, v{vSW}
    v_bfe_u32 v{GT+9}, v{vLANE}, 2, 2
    v_lshl_add_u32 v{vSW}, v{GT+9}, 3, v{vSW}
    v_lshl_add_u32 v{vSW}, v{g_}, 16, v{vSW}
    v_add_u32 v{vSW}, s{o_}, v{vSW}
    v_mov_b32 v{vSF}, v{vL16}
    """)
    natdest(sD[0], WS_WQF)
    a(f"s_cmp_lt_u32 s{gD}, 56")
    a(f"s_cselect_b32 s{sD[0]}, s{sD[0]}, {OOB}")
    assert WS_XF == 0
    a(f"""
    v_bfe_u32 v{t4}, v{vLANE}, 1, 3
    s_lshl_b32 s{o_}, s{gWM}, 14
    s_add_u32 s{o_}, s{o_}, 131072
    v_lshlrev_b32 v{r_}, 7, v{r_}
    v_add_u32 v{r_}, s{o_}, v{r_}
    """)
    for kk in range(2):
        a(f"v_or_b32 v{t5}, {4*kk}, v{g_}")
        a(f"v_xor_b32 v{t5}, v{t5}, v{t4}")
        a(f"v_lshl_add_u32 v{RA[kk]}, v{t5}, 4, v{r_}")
    a(f"""
    v_lshlrev_b32 v{t2}, 12, v{g_}
    v_bfe_u32 v{t4}, v{vLANE}, 2, 2
    v_lshl_add_u32 v{t2}, v{t4}, 7, v{t2}
    v_and_b32 v{t5}, 3, v{vLANE}
    v_lshl_add_u32 v{t2}, v{t5}, 3, v{t2}
    s_lshl_b32 s{o_}, s{gWN}, {9 if OPT["chg"] == 2 else 10}
    s_add_u32 s{o_}, s{o_}, 32768
    v_add_u32 v{t2}, s{o_}, v{t2}
    v_lshrrev_b32 v{t4}, 1, v{t4}
    v_lshlrev_b32 v{t4}, 6, v{t4}
    v_and_b32 v{t5}, 1, v{g_}
    v_lshlrev_b32 v{t5}, 5, v{t5}
    v_or_b32 v{t4}, v{t4}, v{t5}
    """)
    for q in range(4):
        a(f"v_xor_b32 v{t5}, {(q>>1)*64 + (q&1)*32}, v{t4}")
        a(f"v_add_u32 v{RB[q]}, v{t5}, v{t2}")
    a(f"""
    s_mul_i32 s{sKVB}, s{gHEAD}, {HS}
    s_mul_i32 s{o_}, s{gMT}, {8*US}
    s_add_u32 s{sKVB}, s{sKVB}, s{o_}
    s_mul_i32 s{o_}, s{gWM}, {4*US}
    s_add_u32 s{sKVB}, s{sKVB}, s{o_}
    s_add_u32 s{o2_}, s{sWHICH}, 12
    s_lshl_b32 s{o_}, s{gWN}, {12 if OPT["chg"] == 2 else f"s{o2_}"}
    s_add_u32 s{sKVB}, s{sKVB}, s{o_}
    s_mul_i32 s{o_}, s{sWHICH}, {WS_VF - WS_KF}
    s_add_u32 s{sKVB}, s{sKVB}, s{o_}
    s_add_u32 s{sKVB}, s{sKVB}, {WS_KF}
    s_lshr_b32 s{sKVI}, 8192, {0 if OPT["chg"] == 2 else f"s{sWHICH}"}
    s_add_u32 s{sKVI}, s{sKVI}, s{sKVB}
    s_lshl_b32 s{sFKV}, s{gHEAD}, 8
    s_lshr_b32 s{o_}, s{gMT}, 2
    s_and_b32 s{o2_}, s{gMT}, 3
    s_lshl_b32 s{o2_}, s{o2_}, 1
    s_or_b32 s{o_}, s{o_}, s{o2_}
    s_cmp_ge_u32 s{o_}, 2
    s_cselect_b32 s{o2_}, 112, 0
    s_add_u32 s{sFKV}, s{sFKV}, s{o2_}
    s_lshl_b32 s{o_}, s{o_}, 3
    s_add_u32 s{sFKV}, s{sFKV}, s{o_}
    s_lshl_b32 s{o_}, s{sWHICH}, 2
    s_add_u32 s{sFKV}, s{sFKV}, s{o_}
    s_add_u32 s{sFKV}, s{sFKV}, {WS_FLG + FL_KV}
    s_lshl_b32 s{sFKVP}, s{sHEAD}, 8
    s_add_u32 s{sFKVP}, s{sFKVP}, {WS_FLG + FL_KV}
    s_xor_b32 s{o_}, s2, {OPT["zid"]}
    s_cmp_eq_u32 s{sWAVE}, 0
    s_cselect_b32 s{sFKV}, s{sFKV}, {OOB}
    s_cselect_b32 s{sFKVP}, s{sFKVP}, {OOB}
    s_cselect_b32 s{gFL}, s{o_}, {OOB}
    s_cselect_b32 s{gIT}, 0, {OOB}
    """)
    WQ, B1, ST1, N0, STA2, XR1, XR2 = sT+1, sT+2, sT+3, sN, sT+4, sND, sXOF2
    a(f"""
    s_or_b32 s{sQI}, s{sJ}, 8
    s_mul_i32 s{WQ}, s{sHEAD}, {7*32768}
    s_add_u32 s{WQ}, s{WQ}, {WS_WQF}
    s_mov_b32 s{sW0}, s{WQ}
    s_mov_b32 s{XR1}, s{sQI}
    s_mov_b32 s{ST1}, 32768
    s_bitcmp1_b32 s{sHEAD}, 1
    s_cselect_b32 s{N0}, {OPT['n0'][1]}, {OPT['n0'][0]}
    s_cselect_b32 s{STA2}, {OPT['a15'][1]}, {OPT['a15'][0]}
    s_cmp_eq_u32 s{sQI}, 15
    s_cselect_b32 s{STA2}, s{STA2}, 0
    s_add_u32 s{N0}, s{N0}, s{STA2}
    s_cmp_eq_u32 s{sQI}, 8
    s_cselect_b32 s{STA2}, {OPT["cap8"]}, 64
    s_min_u32 s{N0}, s{N0}, s{STA2}
    @atomic
    s_cmp_ge_u32 s{sJ}, 8
    s_cbranch_scc1 L_typeA
    s_mov_b32 s{sTYPE}, 2
    s_sub_u32 s{B1}, s{WQ}, {5*32768}
    s_sub_u32 s{XR2}, 15, s{sQI}
    s_lshl_b32 s{sU1}, s{sQI}, 2
    s_sub_u32 s{sU2}, 64, s{sU1}
    s_add_u32 s{sU1}, s{sU1}, 4
    s_sub_u32 s{sU1}, s{sU1}, s{N0}
    s_add_u32 s{STA2}, s{sU1}, 14
    s_add_u32 s{sT+7}, s{STA2}, s{sU2}
    s_branch L_typedone
    """)
    a.label("L_typeA")
    a(f"""
    s_mov_b32 s{sU1}, s{N0}
    s_add_u32 s{sT+7}, s{N0}, 14
    s_mov_b32 s{sU2}, 2
    s_mov_b32 s{N0}, 0
    s_mov_b32 s{STA2}, 100
    s_mov_b32 s{XR2}, 0x4000
    s_mov_b32 s{sTYPE}, 1
    s_mov_b32 s{B1}, {OOB}
    s_cmp_eq_u32 s{sJ}, 15
    s_cbranch_scc1 L_typedone
    s_mov_b32 s{sTYPE}, 0
    s_mul_i32 s{XR1}, s{sHEAD}, 7
    s_add_u32 s{XR1}, s{XR1}, s{sJ}
    s_sub_u32 s{XR1}, s{XR1}, 8
    s_lshr_b32 s{sT}, s{XR1}, 4
    s_and_b32 s{XR1}, s{XR1}, 15
    s_mul_i32 s{sW0}, s{sT}, {7*32768}
    s_add_u32 s{sW0}, s{sW0}, {WS_W1F}
    s_lshl_b32 s{B1}, s{sT}, 15
    s_add_u32 s{B1}, s{B1}, {WS_WFF}
    s_mov_b32 s{ST1}, {184*4096}
    """)
    a.label("L_typedone")
    a("@end")
    tA, tB, tC, tD = GT, GT+1, GT+2, GT+3
    KB, VB = sT+5, sT+6
    a(f"""
    s_mul_i32 s{KB}, s{sHEAD}, {HS}
    s_add_u32 s{VB}, s{KB}, {WS_VF}
    s_add_u32 s{KB}, s{KB}, {WS_KF}
    v_mov_b32 v{vTE}, {OOB}
    """)
    def seg_lin(start, base, stride):
        a(f"v_subrev_u32 v{tA}, {start}, v{vLANE}")
        a(f"v_cmp_gt_u32 vcc, 7, v{tA}")
        a(f"v_mul_u32_u24 v{tB}, {stride}, v{tA}")
        a(f"v_add_u32 v{tB}, s{base}, v{tB}")
        a(f"v_cndmask_b32 v{vTE}, v{vTE}, v{tB}, vcc")
    seg_lin(0, sW0, 32768)
    seg_lin(7, B1, f"s{ST1}")
    a(f"s_lshl_b32 s{sT}, s{sHEAD}, 15")
    a(f"s_add_u32 s{sT}, s{sT}, {WS_WFF + 56*4096}")
    seg_lin(f"s{sT+7}", sT, 184*4096)
    a(f"v_add_u32 v{vTO}, 16384, v{vTE}")
    if OPT["sw"]:
        a(f"""
        s_cmp_eq_u32 s{sTYPE}, 0
        s_cselect_b32 s{sT}, 32, {(1 << 5) | (OPT["sw"] >> 1 << 12)}
        v_lshrrev_b32 v{tA}, v{vLANE}, s{sT}
        s_lshl_b32 s{sT}, s{sT}, 1
        v_lshrrev_b32 v{tB}, v{vLANE}, s{sT}
        v_cmp_gt_u32 vcc, 14, v{vLANE}
        v_and_b32 v{tA}, 1, v{tA}
        v_and_b32 v{tB}, 1, v{tB}
        v_cndmask_b32 v{tA}, 0, v{tA}, vcc
        v_cndmask_b32 v{tB}, 0, v{tB}, vcc
        v_lshl_add_u32 v{vTO}, v{tA}, 14, v{vTO}
        v_lshlrev_b32 v{tB}, 14, v{tB}
        v_sub_u32 v{vTE}, v{vTE}, v{tB}
        """)
    def seg_att(start, n0, U):
        for tab in (vTO, vTE):
            a(f"v_subrev_u32 v{tA}, {start}, v{vLANE}")
            if n0 is not None: a(f"v_add_u32 v{tB}, s{n0}, v{tA}")
            else: a(f"v_mov_b32 v{tB}, v{tA}")
            a(f"v_mul_u32_u24 v{tB}, {US}, v{tB}")
            if tab == vTO:
                a(f"s_sub_u32 s{sT}, s{U}, 1")
                a(f"v_cmp_eq_u32 vcc, s{sT}, v{tA}")
                a(f"v_add_u32 v{tC}, s{KB}, v{tB}")
                a(f"v_add_u32 v{tC}, {US}, v{tC}")
                a(f"v_add_u32 v{tD}, s{VB}, v{tB}")
            else:
                a(f"v_cmp_eq_u32 vcc, 0, v{tA}")
                a(f"v_add_u32 v{tC}, s{VB}, v{tB}")
                a(f"v_subrev_u32 v{tC}, {US}, v{tC}")
                a(f"v_add_u32 v{tD}, s{KB}, v{tB}")
            a(f"v_cndmask_b32 v{tC}, v{tC}, v{tD}, vcc")
            a(f"v_cmp_gt_u32 vcc, s{U}, v{tA}")
            a("s_nop 1")
            a(f"v_cndmask_b32 v{tab}, v{tab}, v{tC}, vcc")
    seg_att(14, N0, sU1)
    seg_att(f"s{STA2}", None, sU2)
    XO1, XO2 = sXOFF, sXOF2
    a(f"""
    s_lshl3_add_u32 s{XO1}, s{XR1}, s{sWAVE}
    s_mul_i32 s{XO1}, s{XO1}, 14336
    s_lshl3_add_u32 s{XO2}, s{XR2}, s{sWAVE}
    s_mul_i32 s{XO2}, s{XO2}, 14336
    s_lshl_b32 s{sW4K}, s{sWAVE}, 12
    s_mov_b32 s{sCLAMP}, 0x05040100
    s_mov_b32 s{sFIRST}, 0x07060302
    """)
    setup_l = [l.strip() for l in a.lines if l.strip()]
    a = main
    seq = []
    for k, kind in enumerate(GS[-1]):
        m0, so, ins = dma_group(kind, 0)
        seq += [[m0, so, ins[0]]] + [[x] for x in ins[1:]]
        if k == OPT["xpos"]:
            seq += [[f"buffer_load_dwordx4 {ar(SLD+48,4)}, v{GT+11}, {sr(sX,4)}, s{gB1} offen"], [f"buffer_load_dwordx4 {ar(SLD+52,4)}, v{GT+11}, {sr(sX,4)}, s{gB1} offen offset:224"],
                    [f"s_xor_b32 s{gB1}, s{gB1}, 448", f"buffer_load_dwordx4 {ar(SLD+56,4)}, v{GT+11}, {sr(sX,4)}, s{gB1} offen"], [f"buffer_load_dwordx4 {ar(SLD+60,4)}, v{GT+11}, {sr(sX,4)}, s{gB1} offen offset:224 ; @sx"]]
    if OPT["cpf"]: seq += [[f"buffer_load_dwordx4 a[200:203], v{vL16}, {G}, s{gB0} offen"], [f"s_add_u32 s{gB0}, s{gB0}, 131072", f"buffer_load_dwordx4 a[204:207], v{vL16}, {G}, s{gB0} offen"]]
    nowr = ("s_mov", "s_mul_i32", "s_nop", "s_cselect", "s_getpc", "s_cbranch", "s_branch")
    def scc_live(k):
        for l in setup_l[k:]:
            if l.startswith(("s_cselect", "s_cbranch_scc", "s_subb")): return True
            if l.startswith("s_") and not l.startswith(nowr): return False
        return False
    step = len(setup_l) / (len(seq) - 0.5)
    atomic = False; nxt = 0.0
    for k, l in enumerate(setup_l):
        if seq and k >= nxt and not atomic and not scc_live(k) and not l.endswith(":"):
            for x in seq.pop(0): a(x)
            nxt += step
        if l == "@atomic": atomic = True
        elif l == "@end": atomic = False
        else: a(l)
    for g in seq:
        for x in g: a(x)
    print("setup instrs", len(setup_l), "left", len(seq), file=sys.stderr)
    a(f"""
    s_mov_b32 s{sG}, s{sRET}
    s_mov_b32 s{sG+1}, s{sRET+1}
    s_mov_b32 s{sG+2}, {448*8192}
    """)
    if OPT["dbgside"] & 1:
        for r in sD: a(f"s_mov_b32 s{r}, {OOB}")
    if OPT["dbgside"] & 2: a(f"s_mov_b32 s{sXS}, {OOB}")
    if OPT["dbgside"] & 4:
        for r in (vWO, vW12, vSW): a(f"v_mov_b32 v{r}, {OOB}")
    def side_chain():
        c = []
        z = GT+8
        c += [(f"v_mov_b64 {vr(z,2)}, 0", 0), (f"v_mov_b64 {vr(z+2,2)}, 0", 0), (f"buffer_store_dwordx4 {vr(z,4)}, v{vL16}, {WS}, s{sFQ} offen sc1 ; @zst", 1)]
        if OPT["fsep"]:
            c += [(f"s_lshl2_add_u32 s{sFQ}, s2, s{sWAVE}", 1), (f"s_mul_i32 s{sFQ}, s{sFQ}, {OPT['fsep']}", 1), (f"s_add_u32 s{sFQ}, s{sFQ}, {WS_FLG + FL_S3}", 1),
                  (f"buffer_store_dword v{z}, v{vFLG}, {WS}, s{sFQ} offen sc1", 1)]
        c.append(("s_waitcnt vmcnt(@since:sx)", 1))
        U = GT; m_, v_, t_, t2_ = GT+16, GT+17, vG1, vPOLL
        for i in range(8):
            c.append((f"v_accvgpr_read_b32 v{t_}, a{SLD+48+i}", 2 if i == 0 else 0))
            c.append((f"v_lshlrev_b32 v{U+2*i}, 16, v{t_}", 0))
            c.append((f"v_and_b32 v{U+2*i+1}, 0xffff0000, v{t_}", 0))
        def red(v):
            r = [(f"v_add_f32_dpp v{v}, v{v}, v{v} row_ror:{sh} row_mask:0xf bank_mask:0xf", 2) for sh in (8, 4)]
            return r + xlane_ops("v_add_f32", v, t2_)
        c.append((f"v_add_f32 v{m_}, v{U}, v{U+1}", 0)); c.append((f"v_add_f32 v{v_}, v{U+2}, v{U+3}", 0))
        for i in range(4, 16, 2):
            c.append((f"v_add_f32 v{m_}, v{m_}, v{U+i}", 0)); c.append((f"v_add_f32 v{v_}, v{v_}, v{U+i+1}", 0))
        for i in range(8):
            c += [(x, 0) for x in (f"v_accvgpr_read_b32 v{t_}, a{SLD+56+i}", f"v_lshlrev_b32 v{t2_}, 16, v{t_}", f"v_and_b32 v{t_}, 0xffff0000, v{t_}",
                  f"v_add_f32 v{m_}, v{m_}, v{t2_}", f"v_add_f32 v{v_}, v{v_}, v{t_}")]
        c.append((f"v_add_f32 v{m_}, v{m_}, v{v_}", 0))
        c += red(m_)
        c.append((f"v_mul_f32 v{m_}, {f2u(1.0/448):#x}, v{m_}", 0))
        for i in range(16):
            c.append((f"v_sub_f32 v{t_}, v{U+i}, v{m_}", 0))
            c.append((f"v_mul_f32 v{v_}, v{t_}, v{t_}" if i == 0 else f"v_fma_f32 v{v_}, v{t_}, v{t_}, v{v_}", 0))
        for i in range(8):
            c += [(x, 0) for x in (f"v_accvgpr_read_b32 v{t_}, a{SLD+56+i}", f"v_lshlrev_b32 v{t2_}, 16, v{t_}", f"v_and_b32 v{t_}, 0xffff0000, v{t_}",
                  f"v_sub_f32 v{t2_}, v{t2_}, v{m_}", f"v_sub_f32 v{t_}, v{t_}, v{m_}", f"v_fma_f32 v{v_}, v{t2_}, v{t2_}, v{v_}", f"v_fma_f32 v{v_}, v{t_}, v{t_}, v{v_}")]
        c.append((f"v_cndmask_b32 v{v_}, 0, v{v_}, s[{sLN}:{sLN+1}]", 0))
        c += red(v_)
        for x in (f"v_mul_f32 v{v_}, {f2u(1.0/448):#x}, v{v_}", f"v_cvt_pk_bf16_f32 v{t_}, v{m_}, v{v_}", f"v_lshlrev_b32 v{m_}, 16, v{t_}",
                  f"v_and_b32 v{v_}, 0xffff0000, v{t_}", f"v_add_f32 v{v_}, {f2u(1e-5):#x}, v{v_}", f"v_cvt_pk_bf16_f32 v{v_}, v{v_}, v{v_}",
                  f"v_lshlrev_b32 v{v_}, 16, v{v_}", f"v_sqrt_f32 v{v_}, v{v_}"):
            c.append((x, 0))
        c.append((f"v_cvt_pk_bf16_f32 v{v_}, v{v_}, v{v_}", 1))
        c.append((f"v_lshlrev_b32 v{v_}, 16, v{v_}", 0))
        c.append((f"v_rcp_f32 v{v_}, v{v_}", 0))
        for i in range(16): c.append((f"v_sub_f32 v{U+i}, v{U+i}, v{m_}", 1 if i == 0 else 0))
        for i in range(8):
            for x in (f"v_cvt_pk_bf16_f32 v{t_}, v{U+2*i}, v{U+2*i+1}", f"v_lshlrev_b32 v{U+2*i}, 16, v{t_}", f"v_and_b32 v{U+2*i+1}, 0xffff0000, v{t_}",
                      f"v_mul_f32 v{U+2*i}, v{U+2*i}, v{v_}", f"v_mul_f32 v{U+2*i+1}, v{U+2*i+1}, v{v_}", f"v_cvt_pk_bf16_f32 v{U+i}, v{U+2*i}, v{U+2*i+1}"):
                c.append((x, 0))
        if OPT["hold"] is not None: c.append((f"s_waitcnt vmcnt(@since:sl{OPT['hold']})", 1, 0, OPT["hold"]))
        c.append((f"buffer_store_dwordx4 {vr(U,4)}, v{vSX}, {WS}, s{sXS} offen sc1", 1))
        c.append((f"buffer_store_dwordx4 {vr(U+4,4)}, v{vSX}, {WS}, s{sXS} offen offset:3584 sc1", 1))
        def relay(rnd, land):
            c.append((f"s_waitcnt vmcnt(@since:sl{rnd})", 1, 0, rnd))
            for h in range(2):
                for e in range(8):
                    c.append((f"v_accvgpr_read_b32 v{GT+e}, a{land+2*e+h}", 2 if e == 0 else 0))
                for jj in range(2):
                    o = GT+8+4*jj
                    for p in range(4):
                        c.append((f"v_perm_b32 v{o+p}, v{GT+2*p+1}, v{GT+2*p}, s{(sCLAMP, sFIRST)[jj]}", 0))
                    if rnd == 1: c.append((f"buffer_store_dwordx4 {vr(o,4)}, v{vL16}, {WS}, s{sD[rnd]} offen offset:{(2*h+jj)*1024} sc1", 1))
                    else:
                        c.append((f"buffer_store_dwordx4 {vr(o,4)}, v{vSF}, {WS}, s{sD[rnd]} offen sc1", 1))
                        c.append((f"v_add_u32 v{vSF}, s{sSTR}, v{vSF}", 1))
        relay(2, SLD+32)
        c.append((f"s_waitcnt vmcnt(@since:sl0)", 1, 0, 0))
        c.append((f"s_mov_b32 s{sHI}, {f2u(QSCALE):#x}", 1))
        for h in range(2):
            for p in range(4):
                t = GT + (p & 1)*4
                c += [(x, 0) for x in (f"v_accvgpr_read_b32 v{t}, a{SLD+4*p+h}", f"v_accvgpr_read_b32 v{t+1}, a{SLD+4*p+2+h}",
                      f"v_lshlrev_b32 v{t+2}, 16, v{t}", f"v_lshlrev_b32 v{t+3}, 16, v{t+1}", f"v_and_b32 v{t}, 0xffff0000, v{t}", f"v_and_b32 v{t+1}, 0xffff0000, v{t+1}")]
                c += [(f"v_mul_f32 v{t+i}, s{sHI}, v{t+i}", 0) for i in range(4)]
                c += [(f"v_cvt_pk_bf16_f32 v{GT+8+p}, v{t+2}, v{t+3}", 0), (f"v_cvt_pk_bf16_f32 v{GT+12+p}, v{t}, v{t+1}", 0)]
            if h == 1: c.append((f"s_add_u32 s{sD[0]}, s{sD[0]}, 4096", 1))
            for jj in range(2):
                c.append((f"buffer_store_dwordx4 {vr(GT+8+4*jj,4)}, v{vL16}, {WS}, s{sD[0]} offen offset:{jj*2048} sc1 ; @sst", 1))
        relay(1, WOL)
        c += [(x, 0) for x in (f"v_add_u32 v{vDMA}, s{sW4K}, v{vL16}", f"v_mov_b32 v{vRD}, v{vL16}",  f"v_lshrrev_b32 v{GT}, 4, v{vLANE}",
              f"v_lshlrev_b32 v{GT}, 2, v{GT}", f"v_and_b32 v{GT+1}, 15, v{vLANE}", f"v_sub_u32 v{GT}, v{GT+1}, v{GT}")]
        c += [(f"v_cmp_gt_i32 s[{sMASK+2*r}:{sMASK+2*r+1}], {r}, v{GT}", 0) for r in range(4)]
        c = [((x[0].replace(" sc1", OPT["sidesc"]),) + tuple(x[1:]) if x[0].startswith("buffer_store") else x) for x in c]
        if OPT["wbl2"]: c.append(("s_waitcnt vmcnt(4)", 30)); c.append(("buffer_wbl2 sc1", 1))
        return Chain(c, XG4)
    def reads(kk, buf):
        if OPT["chg"]:
            ra = [f"ds_read_b128 {ar(CA(m,k),4)}, v{RA[k]} offset:{m*2048}" for m in range(4*kk, 4*kk+4) for k in range(2)]
            rb = [f"ds_read_b64_tr_b16 {ar(CB(n,k)+2*sec,2)}, v{RB[n&3]} offset:{kk*16384+sec*2048+k*512*OPT['chg']}" for n in range(4*kk, 4*kk+4) for k in range(2) for sec in range(2)]
            if kk: return ra + rb
            return rb[:4] + [x for m in range(4) for x in ra[2*m:2*m+2] + rb[4+2*m:6+2*m]] + rb[12:]
        ra = [f"ds_read_b128 {ar(FA(buf,m),4)}, v{RA[kk]} offset:{m*2048}" for m in range(8)]
        rb = [f"ds_read_b64_tr_b16 {ar(FB(buf,n)+2*sec,2)}, v{RB[n&3]} offset:{kk*16384+sec*2048+(n>>2)*512}" for n in range(8) for sec in range(2)]
        out = []
        for i in range(8): out += [ra[i], rb[2*i], rb[2*i+1]]
        return out
    stamp(6, True)
    for k_ in range(OPT["tg"].count(-1)):
        a(f"s_cmp_eq_u32 s{sWHICH}, 0\ns_cbranch_scc0 L_tv{k_}")
        a(touch("K")); a(f"s_branch L_tw{k_}\nL_tv{k_}:"); a(touch("V")); a(f"L_tw{k_}:")
    a(f"s_waitcnt {gwait(-1)}")
    a("s_barrier")
    for r in reads(0, 0): a(r)
    stamp(1)
    a(f"s_cmp_eq_u32 s{sWHICH}, 0")
    a("s_cbranch_scc0 L_gemmV")
    a.label("L_gK")
    pre_lines = len(a.lines)
    sJT = sT+2
    def xjob(J, key, i, base, early, late, rot=0):
        u, qt = i >> 1, i & 1
        J.add(key, f"s_add_u32 s{sJT}, s{base}, {qt*4*14336+((u+rot)%14)*1024}", f"buffer_load_dwordx4 {ar(X(qt,u),4)}, v{vL16}, {WS}, s{sJT} offen{ld()} ; @{key}", early, late - (3 - (i & 3))*8)
    def kvjob(J, c, early, late, alt=False, park=False):
        blk = c >> 2
        if park: return J.add("kp", f"s_add_u32 s{sJT}, s{sKVI if blk & 1 else sKVB}, {(blk>>1)*US+(c&3)*1024}",
                              f"buffer_store_dwordx4 {ar(PK(c)-208,4)}, v{vL16}, {WS}, s{sJT} offen{OPT['kvs2']} ; @kv", early, late)
        J.add("kv", f"s_add_u32 s{sJT}, s{(sT+6+(blk & 1)) if alt else sKVI if blk & 1 else sKVB}, {(blk>>1)*US+(c&3)*1024}",
              f"buffer_store_dwordx4 {vr(PK(c),4)}, v{vL16}, {WS}, s{sJT} offen{OPT['kvs2']} ; @kv", early, late)
    pw, t6, t7 = sEV, sCNT, sND
    gtab = sum(g << (4*k) for k, g in enumerate(OPT["gev"]))
    fss = f"s_lshl_b32 s{sFSS}, s{t6}, 9\ns_add_u32 s{sFSS}, s{sFSS}, s{pw}\ns_lshl_b32 s{t7}, s{sHEAD}, 2\ns_add_u32 s{sFSS}, s{sFSS}, s{t7}"
    if OPT["fsep"]: fss = f"s_lshl2_add_u32 s{sFSS}, s2, s{sWAVE}\ns_mul_i32 s{sFSS}, s{sFSS}, {OPT['fsep']}\ns_add_u32 s{sFSS}, s{sFSS}, {WS_FLG + FL_S3}"
    setup = f"""
    s_mov_b32 s{sLN}, {gtab & 0xffffffff:#x}
    s_mov_b32 s{sLN+1}, {gtab >> 32:#x}
    s_lshl_b32 s{pw}, s{sHEAD}, 3
    s_and_b32 s{t6}, s{sJ}, 7
    s_add_u32 s{pw}, s{pw}, s{t6}
    s_lshl_b32 s{pw}, s{pw}, 2
    s_add_u32 s{pw}, s{pw}, s{sWAVE}
    s_mul_i32 s{sQST}, s{pw}, {Q_W}
    s_add_u32 s{sQST}, s{sQST}, {WS_QF}
    s_mul_i32 s{sPT}, s{pw}, {PT_W}
    s_add_u32 s{sPT}, s{sPT}, {WS_PT}
    s_lshl_b32 s{sFQ}, s{pw}, 5
    s_add_u32 s{sFQ}, s{sFQ}, {WS_FLG + FL_Q}
    s_mul_i32 s{t7}, s{sWAVE}, {28*1024}
    s_add_u32 s{t7}, s{t7}, {WS_PS}
    s_mul_i32 s{pw}, s{sHEAD}, 7
    s_add_u32 s{pw}, s{pw}, s{t6}
    s_lshr_b32 s{t6}, s{pw}, 4
    s_and_b32 s{sFSG}, s{pw}, 15
    s_lshl_b32 s{sT+3}, s{t6}, 9
    s_mul_i32 s{sPSG}, s{sFSG}, {PS_R}
    s_add_u32 s{sPSG}, s{sPSG}, s{t7}
    s_mul_i32 s{pw}, s{t6}, {PS_SRC}
    s_add_u32 s{sPSG}, s{sPSG}, s{pw}
    s_add_u32 s{sPSG}, s{sPSG}, {16*PS_SRC}
    s_lshl_b32 s{sFSG}, s{sFSG}, 9
    s_lshl_b32 s{pw}, s{t6}, 2
    s_add_u32 s{sFSG}, s{sFSG}, s{pw}
    s_lshl_b32 s{pw}, s{sWAVE}, 7
    s_add_u32 s{pw}, s{pw}, {WS_FLG + FL_S}
    s_add_u32 s{sFSG}, s{sFSG}, s{pw}
    s_add_u32 s{sFSG}, s{sFSG}, 64
    s_lshr_b32 s{t6}, s{sJ}, 3
    s_mul_i32 s{t6}, s{t6}, 7
    s_xor_b32 s{t6}, s{t6}, 7
    s_xor_b32 s{t6}, s{t6}, s{sJ}
    {fss}
    s_lshr_b32 s{sCNT}, s{sU1}, 1
    s_sub_u32 s{sCNT}, s{sCNT}, 1
    s_lshl_b32 s{sEV}, s{sJ}, 2
    s_lshr_b64 s[{sT+4}:{sT+5}], s[{sLN}:{sLN+1}], s{sEV}
    s_and_b32 s{sEV}, s{sT+4}, 15
    """.strip().split("\n")
    setup = [(x.strip(), 1) for x in setup]
    CLR = GT+4
    setup0 = f"""
    v_mov_b64 {vr(CLR,2)}, -1
    v_mov_b64 {vr(CLR+2,2)}, -1
    s_mul_i32 s{t7}, s{sWAVE}, {28*1024}
    s_lshr_b32 s{t6}, s{sJ}, 3
    s_mul_i32 s{t6}, s{t6}, 7
    s_xor_b32 s{t6}, s{t6}, 7
    s_xor_b32 s{t6}, s{t6}, s{sJ}
    s_mul_i32 s{sPSS}, s{t6}, {PS_R}
    s_add_u32 s{sPSS}, s{sPSS}, s{t7}
    s_mul_i32 s{t7}, s{sHEAD}, {PS_SRC}
    s_add_u32 s{sPSS}, s{sPSS}, s{t7}
    s_add_u32 s{sPSS}, s{sPSS}, {WS_PS}
    """.strip().split("\n")
    setup0 = [(x.strip(), 1) for x in setup0]
    if OPT["dp"] in (None, 7):
        k = [x[0].startswith(f"s_xor_b32 s{t6}, s{t6}, s{sJ}") for x in setup].index(True)
        setup[k+1:k+1] = setup0[7:11]; setup0 = []
    setup.append((f"s_cmp_eq_u32 s{sTYPE}, 1\ns_cselect_b32 s{sQST}, {OOB}, s{sQST}", 1))
    setup.append((f"s_cmp_eq_u32 s{sTYPE}, 0\ns_cselect_b32 s{sFSG}, s{sFSG}, {OOB}", 1))
    setup.append((f"s_cmp_eq_u32 s{sWAVE}, 0\ns_cselect_b32 s{sT+1}, 0, 0x40000000\ns_cselect_b32 s{sEXP}, 1, 0\ns_or_b32 s{sFQ}, s{sFQ}, s{sT+1}", 1))
    if OPT["esb"]: setup.append((f"s_cmp_eq_u32 s{sTYPE}, 0\ns_cselect_b32 s{sT+6}, s{sKVB}, {OOB}\ns_cselect_b32 s{sT+7}, s{sKVI}, {OOB}", 1))
    setup2 = [(x, 1) for x in (f"s_mov_b32 s{sTAU}, 4", f"s_add_u32 s{sM0}, s{sW4K}, {8*16384}", f"s_add_u32 s{sOFFB}, s{sW0}, {8*16384}",
              f"s_mov_b32 s{sRDD}, {-131072}", f"s_mov_b32 s{gMA}, {-131072}", f"s_mov_b32 s{gMB}, 32768", f"s_mov_b32 m0, s{sM0}")]
    for typ in ("K", "V"):
        if typ == "V":
            a.label("L_gemmV")
            for l in a.lines[:pre_lines]:
                if l.strip().startswith("buffer_") or "@merge" in l: a.raw("@ghost " + l.strip())
        def pos0(m, n): return m*8+n if typ == "K" else (m >> 1)*16 + n*2 + (m & 1)
        done = {pos0(m, n): (n >> 2)*64 + m*8 + (n & 3)*2 + 1 for m in range(8) for n in range(8)}
        corder = sorted(range(32), key=lambda c: (max(done[2*c], done[2*c+1]) >> 3, c not in dict(OPT["es"]), c))
        slot = {p: p for p in range(64)}
        if OPT["es"]:
            assert len(ENL()) <= 20 and OPT["chg"]
            slot = {2*c: (PK(c)-48)//4 for c in range(32)}
            rest = [x for x in range(52) if x not in slot.values()]
            ag = [c for c in corder[:16] if c not in [x[0] for x in OPT["es"][:4]]][:12]
            for c in corder: slot[2*c+1] = 52 + ag.index(c) if c in ag else rest.pop()
        def pos(m, n): return slot[pos0(m, n)]
        def pack_chain():
            pk = []
            for x_ in sorted(range(64), key=lambda x: (done[x] >> 3, corder.index(x >> 1), x)):
                c = x_ >> 1; e = done[x_] + 3
                r = PK(c); p = slot[2*c+1]; q = 48+4*p; t = GT+17
                cv = lambda d, x, y: pk.append((f"v_cvt_pk_bf16_f32 v{d}, v{x}, v{y}", 0, e))
                rd = lambda d, i: pk.append((f"v_accvgpr_read_b32 v{d}, a{208+4*(p-52)+i}", 0, e))
                if x_ & 1 == 0: cv(r, r, r+1); cv(r+1, r+2, r+3)
                elif p < 52: cv(r+2, q, q+1); cv(r+3, q+2, q+3)
                else: rd(r+2, 0); rd(r+3, 1); rd(t, 3); cv(r+2, r+2, r+3); rd(r+3, 2); cv(r+3, r+3, t)
            return Chain(pk)
        def es_place(st, n, pk):
            J2 = Jobs(); sg = [(c, g - (n-30)*64) for c, g in OPT["es"] if g >> 6 == n-30]
            for c, g in sg: kvjob(J2, c, g, g, c in PARK())
            J2.place(st, 0, 16, [g for c, g in sg]); assert not J2.jobs
            return sg
        def es_fill(st, n, pk, sg):
            pk.fill(st)
            for c, g in sg:
                key = f"v_cvt_pk_bf16_f32 v{PK(c)+3},"
                assert not any(x[0].startswith(key) for x in pk.items) and all(w < g for w, v in st.fill.items() if any(x.startswith(key) for x in v)), (c, g)
            pk.items = [(x[0], x[1], x[2]-64) for x in pk.items]
        def substep(it, kk):
            groups = GS[2*it+kk]
            buf = kk
            mf = []
            for m in range(8):
                for n in range(8):
                    acc = accreg(pos(m, n))
                    c = "0" if (it == 0 and kk == 0) else acc
                    x, y = ar(FB(buf,n),4), ar(FA(buf,m),4)
                    if OPT["chg"]:
                        n2 = 4*kk + (n >> 1); k = (n ^ (n >> 1)) & 1
                        acc = accreg(pos(m, n2)); c = "0" if (it == 0 and n & 1 == 0) else acc
                        x, y = ar(CB(n2,k),4), ar(CA(m,k),4)
                    if typ == "V": x, y = y, x
                    mf.append(f"{MF} {acc}, {x}, {y}, {c}")
            st = Stage(mf)
            st.put(-1, f"s_waitcnt {gwait(2*it+kk)} lgkmcnt(0)")
            st.put(-1, "s_barrier")
            last = (it == 15 and kk == 1)
            g, dg = 1, (OPT["dg2"] if len(groups) == 2 else 4)
            for k, kind in enumerate(groups):
                m0, so, ins = dma_group(kind, k)
                st.put(g-1, m0)
                st.put(g-2, so)
                for i in ins:
                    st.put(g, i); g += dg
            rd = reads(kk ^ 1, buf ^ 1) if not last else [f"ds_read_b128 {ar(FR(f),4)}, v{vRD} offset:{f*1024}" for f in range(12)]
            for i, r in enumerate(rd): st.put(i*2, r)
            if OPT["chg"] and kk == 0: st.put(31, "s_waitcnt lgkmcnt(8)")
            if kk == 0 and it < 15:
                d = -131072 if it % 3 == 0 else 65536
                for i, x in enumerate([f"v_add_u32 v{RA[0]}, {d}, v{RA[0]}", f"v_add_u32 v{RA[1]}, {d}, v{RA[1]}"] + [f"v_xor_b32 v{r}, 0x10000, v{r}" for r in RB]):
                    st.put(48 + 2*(i >> 1), x)
            if OPT["fine"]:
                st.put(2, f"{FT()} s[{sFS}:{sFS+1}]")
                st.put(4, f"v_mov_b32_dpp v0, v0 wave_shr:1 row_mask:0xf bank_mask:0xf")
                st.put(46, f"v_writelane_b32 v0, s{sFS}, 0")
            return st
        ch = side_chain()
        J = Jobs()
        for e in range(8):
            t = [x + e*OPT["slstep"] for x in OPT["slt"]]
            J.add("sl1", f"s_mov_b32 s{sJT}, {(e>>2)*16*896}", f"buffer_load_dwordx2 {ar(WOL+2*e,2)}, v{vWO}, {sr(sX,4)}, s{sJT} offen offset:{(e&3)*896}{OPT['ntS']} ; @sl1", t[2], t[2]+64)
            J.add("sl2", f"s_add_u32 s{sJT}, s{sHI}, {(e&3)*3584}" if e >> 2 else f"s_mov_b32 s{sJT}, {e*3584}",
                  f"buffer_load_dwordx2 {ar(SLD+32+2*e,2)}, v{vW12}, {sr(sW12,4)}, s{sJT} offen{OPT['ntS']} ; @sl2", t[0], t[0]+64)
            J.add("sl0", f"s_mov_b32 s{sJT}, {e*8192}", f"buffer_load_dwordx2 {ar(SLD+2*e,2)}, v{vSW}, {G}, s{sJT} offen{OPT['ntS']} ; @sl0", t[1], t[1]+64)
        NZ, NZP, NZC, NF, NP, NC = OPT["sync"]
        for i in range(20): xjob(J, "x1", i, XO1, (NC+1)*64 + i*OPT["xstep"], 31*64)
        for b in range(8):
            J.add("bias", None, f"buffer_load_dwordx4 {vr(BIAS+BP[b>>1]*8+(b&1)*4,4)}, v{GT+16}, {G}, s{sT+3} offen offset:{(b>>1)*128+(b&1)*16} ; @bias{b//6}", 31*64 if b >= 6 else 29*64, 31*64+24 if b >= 6 else 30*64+22)
        for i in range(4*(7-OPT["dp"]) if OPT["dp"] is not None else 0):
            t = OPT["clr0"] + i*OPT["clrs"]
            J.add("clr", f"s_add_u32 s{sJT}, s{sPSS}, {OPT['dp']*4096+i*1024}", f"buffer_store_dwordx4 {vr(CLR,4)}, v{vL16}, {WS}, s{sJT} offen sc1", t, t+64)
        for k, r in enumerate((sT+7, sRET, sRET+1) if OPT["wpf"] else ()):
            J.add("wpf", None, f"buffer_load_dword v{GT+4+k}, v{GT+3}, {WS}, s{r} offen sc1", OPT["wpf"]+k*32, OPT["wpf"]+k*32+64)
        su = Chain(setup)
        PV = GT+8
        for n in range(31):
            it, kk = n >> 1, n & 1
            st = substep(it, kk)
            if n == 0:
                st.put(62, f"s_load_dwordx2 s[{sX}:{sX+1}], s[0:1], 40")
                st.put(63, f"s_mov_b32 s{sX+2}, {4096*896}")
            if n == NZ-1: st.put(63, "s_waitcnt vmcnt(@since:zst)")
            if n == NZ: st.put(61, f"buffer_store_byte v{vONE}, v{vFLG}, {sr(sDBG,4)}, s{gFL} offen sc1")
            if n == NZP: st.put(61, f"buffer_load_dword v{vPOLL}, v{vL4}, {sr(sDBG,4)}, s{gIT} offen sc1 ; @zp")
            if n == NZC:
                st.put(54, "s_waitcnt vmcnt(@since:zp)")
                st.put(55, f"s_cmp_eq_u32 s{sWAVE}, 0\ns_cselect_b32 s{sT+1}, 0x01010101, 0")
                st.put(56, f"v_cmp_ne_u32 vcc, s{sT+1}, v{vPOLL}")
                st.put(60, f"s_cbranch_vccnz L_zwait{typ}")
                st.put(60, f"L_zok{typ}:")
            if n == NF-1:
                assert not any("@sst" in x[0] for x in ch.items) and NZC < NF
                st.put(63, "s_waitcnt vmcnt(@since:sst)")
                st.put(62, f"s_load_dwordx2 s[{sG}:{sG+1}], s[0:1], 64")
                st.put(59, f"s_mov_b32 s{sG+2}, 3584")
            if n == NF:
                st.put(55, f"s_add_u32 s{gIT}, s{gIT}, {WS_FLG+FL_PREP}")
                st.put(58, f"s_lshl2_add_u32 s{sT+1}, s2, s{gIT}")
                st.put(59+2*kk, f"buffer_store_dword v{vONE}, v{vFLG}, {WS}, s{sT+1} offen sc1")
            if n == NP:
                assert not ch.items
                st.put(61, f"buffer_load_dwordx4 {vr(PV,4)}, v{vL16}, {WS}, s{gIT} offen sc1 ; @prep")
            if n == NC:
                st.put(50, "s_waitcnt vmcnt(@since:prep)")
                st.put(51, f"s_cmp_eq_u32 s{sWAVE}, 0\ns_cselect_b32 s{sT+1}, 1, 0")
                st.put(54, f"v_and_b32 v{PV}, v{PV}, v{PV+1}")
                st.put(54, f"v_and_b32 v{PV+2}, v{PV+2}, v{PV+3}")
                st.put(55, f"v_and_b32 v{PV}, v{PV}, v{PV+2}")
                st.put(55, f"v_cmp_ne_u32 vcc, s{sT+1}, v{PV}")
                st.put(60, f"s_cbranch_vccnz L_prepwait{typ}")
                st.put(60, f"L_prepok{typ}:")
                st.put(56, f"v_lshrrev_b32 v{GT+16}, 4, v{vLANE}")
                st.put(56, f"v_lshlrev_b32 v{GT+16}, 5, v{GT+16}")
            if n == 30 and OPT["es"]: pk = pack_chain(); sg = es_place(st, n, pk)
            J.place(st, n, 10, XG4)
            if n == 30 and OPT["es"]: es_fill(st, n, pk, sg); print("pack left", len(pk.items), file=sys.stderr)
            if n >= 1 and ch.items:
                full = ch.items
                for k, x in enumerate(full):
                    if len(x) > 3:
                        key = f"sl{x[3]}"
                        if any(j[5] == key for j in J.jobs) or J.at[key] + OPT["sld"] > n*64+63:
                            ch.items = full[:k]; break
                        full[k] = (x[0], x[1], max(0, J.at[key] + OPT["sld"] - n*64), x[3])
                rest = full[len(ch.items):] if ch.items is not full else []
                ch.base = n*64; ch.minD = OPT["smin"]
                ch.fill(st)
                ch.items = ch.items + rest
                if typ == "K": print("substep", n, "chain left", len(ch.items), file=sys.stderr)
            elif n > NC: su.fill(st)
            if n == 21 and OPT["wpf"]:
                pf = [(f"s_mul_i32 s{sT+6}, s{sWHICH}, 3", 1), (f"s_add_u32 s{sT+6}, s{sT+6}, s{sJ}", 1), (f"s_and_b32 s{sT+6}, s{sT+6}, 7", 1), (f"s_lshl_b32 s{sT+6}, s{sT+6}, 12", 1),
                      (f"v_lshl_add_u32 v{GT+3}, v{vLANE}, 6, s{sT+6}", 1)]
                for k, r in enumerate((sT+7, sRET, sRET+1)):
                    pf += [(f"s_add_u32 s{sT+6}, s{sWAVE}, {4+4*k}", 1), (f"v_readlane_b32 s{r}, v{vTE}, s{sT+6}", 1),
                           (f"s_cmp_eq_u32 s{sTYPE}, 0\ns_cselect_b32 s{sT+3}, 14, 7\ns_cmp_lt_u32 s{sT+6}, s{sT+3}\ns_cselect_b32 s{r}, s{r}, {OOB}", 2)]
                pf = Chain(pf); pf.fill(st); assert not pf.items
            if n == 19:
                s0 = Chain(setup0); s0.fill(st, 0, 33); assert not s0.items and not ch.items
            if n == 28: assert not any(j[5] == "clr" for j in J.jobs)
            if n == 28: assert not su.items
            st.emit(a)
            if OPT["tch"] and n in OPT["tg"]: a(touch(typ))
            if OPT["tch"] and n in OPT["tgs"]:
                a(f"s_cmp_eq_u32 s{sTYPE}, 0\ns_cbranch_scc0 L_tpb{typ}{n}")
                a(touch("a" + typ)); a(f"s_branch L_tpe{typ}{n}\nL_tpb{typ}{n}:"); a(touch("b" + typ)); a(f"L_tpe{typ}{n}:")
        st = substep(15, 1)
        J.place(st, 31, 2, [17, 21]); assert not J.jobs
        SG = [25, 33, 41, 49, 57, 61]
        if OPT["es"]: sg = es_place(st, 31, pk)
        else:
            for c in range(NE): kvjob(J, c, SG[c], SG[c])
        J.place(st, 0, 8, SG); assert not J.jobs
        su = Chain(setup2); su.fill(st, 30); assert not su.items
        slot_of = {pos(m, n): m*8+n for m in range(8) for n in range(8)}
        if OPT["chg"]: slot_of = {pos(m, n): (m*8+(n-4)*2+1 if n >= 4 else -1) for m in range(8) for n in range(8)}
        if OPT["es"]: es_fill(st, 31, pk, sg); pk_ = pk
        pk = []
        for c in range(0 if OPT["es"] else 32):
            e = max(slot_of[2*c], slot_of[2*c+1]) + 3
            if 20 <= c < 20+NE: e = max(e, SG[c-20]+2)
            src = []
            for h in range(2):
                p = 2*c+h
                if p < 52: src += [48+4*p+i for i in range(4)]
                else:
                    for i in range(4):
                        pk.append((f"v_accvgpr_read_b32 v{128+(p-52)*4+i}, a{208+4*(p-52)+i}", 0, e)); src.append(128+(p-52)*4+i)
            for i in range(4): pk.append((f"v_cvt_pk_bf16_f32 v{PK(c)+i}, v{src[2*i]}, v{src[2*i+1]}", 0, e))
        pk = Chain(pk); pk.fill(st)
        if OPT["es"]: pk = pk_
        for c in range(0 if OPT["es"] else NE):
            w = [g for g, v in st.fill.items() if any(x.startswith(f"v_cvt_pk_bf16_f32 v{PK(c)+3},") for x in v)]
            assert min(w) < SG[c], (c, w)
        st.emit(a)
        a("s_nop 7" if OPT["es"] else "s_nop 3")
        print("pack tail", len(pk.items), file=sys.stderr)
        pk.flush(a)
        a("s_waitcnt vmcnt(@since:bias0) lgkmcnt(8)")
        gt_ = [l.strip() for l in a.lines if l.strip().startswith("buffer_")][-80:]
        if typ == "V": assert [re.sub(r"v\[\d+:\d+\]", "", x) for x in gt_] == [re.sub(r"v\[\d+:\d+\]", "", x) for x in gtail]
        gtail = gt_
        a(f"s_cmp_eq_u32 s{sTYPE}, 0")
        a("s_cbranch_scc0 L_P1B")
        a("s_branch L_P1A")
    def unpack(nt):
        o = []
        for r in range(4):
            x = 4*r + (nt & 3); src = BIAS + BP[nt >> 2]*8 + (x >> 1)
            o.append(f"v_and_b32 v{O(nt,1)+r}, 0xffff0000, v{src}" if x & 1 else f"v_lshlrev_b32 v{O(nt,1)+r}, 16, v{src}")
        return o
    def p1_jobs(t0, step, slack=8):
        J = Jobs()
        if OPT["es"]:
            for k, c in enumerate(ENL()): kvjob(J, c, t0+k*step, t0+slack+k*step)
        else:
            for c in range(20+NE, 32): kvjob(J, c, 0, XG[c-20-NE])
            for k, c in enumerate(range(NE, 20+NE)): kvjob(J, c, t0+k*step, t0+slack+k*step)
        for i in range(20, 28):
            t = (i >> 2)*64 - (32 if OPT["sw"] and i >= 24 else 0)
            xjob(J, f"x1{i>>2}", i, XO1, t - 134, t - 70)
        return J
    def xwait(st, key, g=62): st.put(g, f"s_waitcnt vmcnt(@since:{key})")
    def flagjob(J, key, after, soff, delay):
        if key in J.at or any(j[5] in (after, key) for j in J.jobs): return
        t = J.at[after] + delay
        J.add(key, f"s_waitcnt vmcnt(@since:{after})\ns_barrier", f"buffer_store_dword v{vONE}, v{vFLG}, {WS}, s{soff} offen sc1", t, t+8)
    def split_chain(items, st_prev, mk_next, late_of):
        ch = Chain(items); ch.fill(st_prev)
        rest = ch.items
        for k in range(len(rest)+1):
            st = mk_next()
            c2 = Chain([(x[0], x[1]) for x in rest[k:]])
            before = {gg: len(v) for gg, v in st.fill.items()}
            c2.fill(st)
            if c2.items: continue
            where = {}
            for gg, v in st.fill.items():
                for ins in v[before.get(gg, 0):]: where[ins] = gg
            if all(where[x[0]] <= late_of(x[3]) for x in rest[k:]):
                return rest[:k], st
        raise AssertionError
    def emit_mid(mid):
        if mid: a("s_nop 3")
        Chain(mid).flush(a)
        if mid: a("s_nop 1")
    def post_groups(s, scale):
        out = []
        for qt in range(2):
            for p in range(2):
                t = vT + 16 + (qt*2+p)*4
                regs = [PA(s & 1, nt, qt) + 2*p + rr for rr in range(2) for nt in range(4)]
                ops = [f"v_mul_f32 v{r}, v{vRINV[qt]}, v{r}" for r in regs] if scale else []
                ops += [f"v_cvt_pk_bf16_f32 v{t+i}, v{regs[2*i]}, v{regs[2*i+1]}" for i in range(4)]
                out.append((ops, t))
        return out
    def post_store(s, k, t, base):
        if OPT["pr"] and base == sPSS and s < 3:
            return f"s_add_u32 s{sJT}, s{sPSG}, {(s+4*(OPT['pr'] == 1))*4096+k*1024}", f"buffer_store_dwordx4 {vr(t,4)}, v{vL16}, {WS}, s{sJT} offen{OPT['prsc']}"
        return f"s_add_u32 s{sJT}, s{base}, {s*4096+k*1024}", f"buffer_store_dwordx4 {vr(t,4)}, v{vL16}, {WS}, s{sJT} offen sc1"
    def post_place(st, s, scale, base, gaps):
        for k, (ops, t) in enumerate(post_groups(s, scale)):
            pre, ins = post_store(s, k, t, base)
            st.put(gaps[k]-1, pre); st.put(gaps[k], ins)
    def post_sched(st, s, scale, gaps):
        for k, (ops, t) in enumerate(post_groups(s, scale)):
            prev = None
            for x in ops: prev = st.add(x, [prev], 2, gaps[k]-1)
        st.schedule()
    def post_flush(s, scale, base):
        a("s_nop 5")
        for k, (ops, t) in enumerate(post_groups(s, scale)):
            for x in ops: a(x)
            for x in post_store(s, k, t, base): a(x)
    def mk_post(s):
        st = Stage(mf_post(s)); common_fill(st); return st
    def poll_issue(st, g, voff, soff, tag):
        st.put(g, f"buffer_load_dword v{vPOLL}, v{voff}, {WS}, s{soff} offen sc1 ; @{tag}")
    POLLS = []
    def poll_check(st, g, voff, soff, tag, lane0):
        st.put(g, f"s_waitcnt vmcnt(@since:{tag})")
        st.put(g, f"v_cmp_{'eq' if lane0 else 'ne'}_u32 s[{sT+4}:{sT+5}], s{sEXP}, v{vPOLL}")
        st.put(g+2, f"s_cmp_{'eq' if lane0 else 'lg'}_u64 s[{sT+4}:{sT+5}], 0\ns_cbranch_scc1 L_pw_{tag}")
        assert not ({g+1, g+2} & st.scc_busy)
        st.put(g+2, f"L_po_{tag}:")
        st.put(g+2, "s_barrier")
        POLLS.append((tag, voff, soff, lane0))
    def gsetup(st):
        t, u = sT+4, sT+5
        c = f"""
        v_min_u32 v{vPV}, 6, v{vLANE}
        v_lshl_add_u32 v{vPV}, v{vPV}, 2, 64
        v_lshrrev_b32 v{vS}, 4, v{vLANE}
        v_mul_u32_u24 v{vS}, {PS_SRC - 256}, v{vS}
        v_add_u32 v{vS}, v{vS}, v{vL16}
        v_cmp_gt_u32 s[{t}:{u}], 48, v{vLANE}
        s_lshr_b32 s{sPOLL}, s2, 2
        v_cndmask_b32 v{vS2}, v{vFLG}, v{vS}, s[{t}:{u}]
        s_lshl_b32 s{sPOLL}, s{sPOLL}, 7
        s_add_u32 s{sPOLL}, s{sPOLL}, {WS_FLG + FL_S}
        s_lshr_b32 s{t}, s2, 4
        s_mul_i32 s{sGC}, s{t}, {PS_R}
        s_bfe_u32 s{t}, s2, 0x20002
        s_mul_i32 s{u}, s{t}, {28*1024}
        s_add_u32 s{sGC}, s{sGC}, s{u}
        s_and_b32 s{t}, s{t}, {2*OPT["bal"]}
        s_xor_b32 s{t}, s{t}, s2
        s_and_b32 s{t}, s{t}, 3
        s_lshl2_add_u32 s{t}, s{sWAVE}, s{t}
        s_lshl_b32 s{u}, s{t}, 11
        s_add_u32 s{sGC}, s{sGC}, s{u}
        s_add_u32 s{sGC}, s{sGC}, {WS_PS + 16*PS_SRC}
        """
        c = [(x.strip(), 2 if "cndmask" in x else 1) for x in c.split("\n") if x.strip()]
        c.append((f"s_cmp_lt_u32 s{t}, 14\ns_cselect_b32 s{sGC}, s{sGC}, {OOB}", 1))
        c.append((f"s_cmp_lt_u32 s{sTYPE}, 2\ns_cselect_b32 s{sND}, 2, s{sWAVE}", 1))
        c.append((f"s_cmp_lt_u32 s{sND}, 2\ns_cselect_b32 s{sND}, 2, 64", 1))
        c.append((f"s_sub_u32 s{sN}, s{sND}, 1", 1))
        c = Chain(c); c.fill(st, 4); assert not c.items
    def pflag(st): st.put(62, f"s_and_b32 s{sFQ}, s{sFQ}, 0x3fffffff\ns_add_u32 s{sFQ}, s{sFQ}, 16")
    def kv2addr(st):
        st.put(2, f"v_min_u32 v{vL4}, 11, v{vLANE}"); st.put(4, f"v_lshlrev_b32 v{vL4}, 2, v{vL4}"); st.put(8, f"v_add_u32 v{vL4}, 128, v{vL4}")
    XG2 = sorted(XG + [3, 11, 19, 27, 43, 51, 59])
    XG3 = sorted(XG + [5, 13, 21, 29, 45, 53, 61])
    merge("L_P1A")
    for l in gtail: a.raw("@ghost " + l)
    stamp(2)
    if OPT["tch"] and -1 in OPT["ta"]: a(touch("A"))
    for x in unpack(0): a(x)
    a("s_nop 1")
    J = p1_jobs(OPT["kva0"], OPT["kvstep"])
    items = []
    for ud in range(8):
        for qt in range(2):
            regs = [O(2*ud,qt)+i for i in range(4)] + [O(2*ud+1,qt)+i for i in range(4)]
            e = 8*ud+7+3 + (64 if not OPT["sw"] or ud >= 4 else 32)
            for r in regs: items.append((f"v_mul_f32 v{r}, |v{r}|, v{r}", 0, e, ud))
            for i in range(4): items.append((f"v_cvt_pk_bf16_f32 v{regs[i]}, v{regs[2*i]}, v{regs[2*i+1]}", 0, e, ud))
            for i in range(4): items.append((f"v_pk_max_i16 v{regs[i]}, v{regs[i]}, 0", 0, e, ud))
    def prefill(items, st):
        ch = Chain(items); ch.fill(st)
        return [(x[0], x[1], x[2]-64) + tuple(x[3:]) for x in ch.items]
    for s in range(6):
        st = Stage(mf_proj2(5, 0) if s == 5 and OPT["sw"] else mf_proj(s, "bias" if s == 0 else None)); common_fill(st)
        flagjob(J, "kvf", "kv", sFKV, OPT["fdelay"])
        J.place(st, s, OPT["cap"])
        if s == 0:
            st.put(40, f"s_waitcnt vmcnt(@since:bias1)")
            for nt in range(1, 16):
                e = XG[2*(nt-13)+1]+2 if nt >= 13 and not OPT["es"] else 0
                if nt >= 12: e = max(e, 40)
                for x in unpack(nt): st.add(x, [], e, 4*nt-3)
            st.schedule()
        if s >= 4: xwait(st, f"x1{s+1}", 30 if s == 5 and OPT["sw"] else 62)
        if s == 5: items = prefill(items, st)
        st.emit(a)
        if OPT["tch"] and s in OPT["ta"]: a(touch("A"))
    st = Stage(mf_proj2(5, 1) if OPT["sw"] else mf_proj(6)); common_fill(st)
    flagjob(J, "kvf", "kv", sFKV, OPT["fdelay"]); J.place(st, 6, OPT["cap"])
    import copy
    def mk0():
        st = mk_post(0); J2 = copy.deepcopy(J); J2.place(st, 7, OPT["cap"]); assert not J2.jobs; return st
    mid, st0 = split_chain(items, st, mk0, lambda ud: 8*ud-3)
    print("H mid", len(mid), "kv last", J.at["kv"], file=sys.stderr)
    st.emit(a); emit_mid(mid)
    stamp(3)
    J = Jobs()
    for i in range(16):
        J.add("ql", f"s_add_u32 s{sJT}, s{sQST}, {i*1024}", f"buffer_load_dwordx4 {ar(4*i,4)}, v{vL16}, {WS}, s{sJT} offen sc1 ; @ql", OPT["qa"]+4, 6*64+OPT["qe"]-(15-i)*4)
    for s in range(7):
        st = st0 if s == 0 else mk_post(s)
        if s == 2: poll_issue(st, 3, vL4, sFKVP, "kva"); poll_check(st, 58, vL4, sFKVP, "kva", False)
        if s == 3: kv2addr(st)
        if s == (OPT["qa"]-55) >> 6: poll_issue(st, (OPT["qa"]-55) & 63, vFLG, sFQ, "qa")
        if s == OPT["qa"] >> 6: poll_check(st, OPT["qa"] & 63, vFLG, sFQ, "qa", True)
        if s == 1: st.put(2, f"s_lshl2_add_u32 s{sT+1}, s{sQI}, 4\ns_cmp_eq_u32 s{sU1}, s{sT+1}\ns_cselect_b32 s{sTYPE}, 4, 0\ns_cselect_b32 s{sPT}, {OOB}, s{sPT}")
        gaps = [9, 25, 41, 57] if s < 6 else [41, 49, 57, 59]
        pk_ = s-1 in OPT["park"]
        if s >= 1 and not pk_: post_place(st, s-1, False, sPSG, gaps)
        J.place(st, s, OPT["qcap"], XG2)
        if pk_:
            for k, (ops, t) in enumerate(post_groups(s-1, False)):
                for i, x in enumerate(ops):
                    c_ = st.add(x, [], 2, 60)
                    st.add(f"v_accvgpr_write_b32 a{128+(s-1)*16+k*4+i}, v{t+i}", [c_], 2, 62)
            st.schedule()
        elif s >= 1: post_sched(st, s-1, False, gaps)
        if s == 1: gsetup(st)
        if s == 5: pflag(st)
        st.emit(a)
        if s == OPT["td"]: a(f"s_cmp_eq_u32 s{sTYPE}, 4\ns_cbranch_scc0 L_td\n" + touch("D") + "\nL_td:")
    assert not J.jobs
    def mk_F(qb, tag, pre=None):
        st = Stage(mf_qk(0, 0, qb, True) + mf_qk(1, 1, qb, True)); common_fill(st)
        if pre: pre(st)
        place_sm(st, 0, 35, 62, tag, ladd=False, first=True)
        st.schedule()
        print("F over", tag, st.over, file=sys.stderr)
        return st
    def finit():
        return [(f"v_mov_b64 {vr(NEGM(0)+2*i,2)}, 0", 0) for i in range(4)] + [(f"v_mov_b64 {vr(vL[0],2)}, 0", 0),
                (f"v_mov_b32 v{vBIG}, {f2u(-1e30):#x}", 0), (f"v_mov_b32 v{vBIG+1}, v{vBIG}", 0), (f"s_mov_b32 s{sFIRST}, 1", 1), (f"s_mov_b32 s{sCLAMP}, {f2u(-3e38):#x}", 1)]
    def f_end(tag, nxt, endl):
        if tag in OPT["inf"]:
            hi, lo = f2u(2.0**OPT["thr"]), f2u(2.0**-OPT["thr"])
            a(f"""
            s_cbranch_vccz L_fok_{tag}
            s_sub_u32 s{sT+1}, s{sN}, s{sCNT}
            v_cndmask_b32 v{vT+14}, v{vSUM[0][0]}, 1.0, s[{sMASK}:{sMASK+1}]
            v_subrev_u32 v{vT+14}, {lo:#x}, v{vT+14}
            v_max_u32 v{vT+14}, v{vT+14}, v{vT+15}
            v_cmp_lt_u32 vcc, {hi-lo:#x}, v{vT+14}
            s_or_b32 s{sT+1}, s{sT+1}, s{sWAVE}
            s_cbranch_scc1 L_fchk_{tag}
            s_nop 2
            """)
        a(f"s_cbranch_vccnz L_fchk_{tag}")
        a.label(f"L_fok_{tag}")
        STUBS.append((f"L_fchk_{tag}", "L_fchk", f"L_fok_{tag}"))
        a(f"s_mov_b32 s{sFIRST}, 0")
        a(f"s_mov_b32 s{sCLAMP}, 0")
        if endl:
            a(f"s_cmp_eq_u32 s{sCNT}, 1")
            a(f"s_cbranch_scc1 {endl}")
        if nxt == "L_peelA": peelA()
        elif nxt: a(f"s_branch {nxt}")
    def peelA():
        todo = [(s_, k) for s_ in OPT["park"] for k in range(4)]
        n = OPT["pst_n"]
        ns = (len(todo) + n - 1)//n + 2
        ns += ns & 1
        for i in range(ns):
            b = (i & 1) ^ 1
            st = Stage(mf_pv(0, b^1, i == 0) + mf_qk(1, b^1, 0)); common_fill(st)
            for g in {1: [25], 2: [17, 49], 3: [9, 25, 49], 4: [9, 25, 41, 57]}[n]:
                if not todo: break
                s_, k = todo.pop(0)
                st.put(g-1, f"s_add_u32 s{sJT}, s{sPSG}, {s_*4096+k*1024}")
                st.put(g, f"buffer_store_dwordx4 {ar(128+s_*16+k*4,4)}, v{vL16}, {WS}, s{sJT} offen sc1 ; @ps")
            if i == ns-1:
                st.put(56, "s_waitcnt vmcnt(@since:ps)")
                st.put(57, f"buffer_store_dword v{vONE}, v{vFLG}, {WS}, s{sFSG} offen sc1")
                st.put(4, f"s_sub_u32 s{sCNT}, s{sCNT}, {ns//2}")
            place_sm(st, b, 0, 62, f"pa{i}", mask=False); st.schedule()
            if st.over or st.tail: print("peelA over", i, st.over, len(st.tail), file=sys.stderr)
            st.emit(a)
            a(f"s_cbranch_vccnz L_dorare_pa{i}")
            a.label(f"L_norare_pa{i}")
            STUBS.append((f"L_dorare_pa{i}", f"L_rare{b}", f"L_norare_pa{i}"))
        a("s_branch L_steady0")
    a("s_nop 5")
    for ops, t in post_groups(6, False):
        for x in ops: a(x)
    a("s_waitcnt vmcnt(@since:ql)")
    stamp(4)
    def pre_fa1(st):
        post_place(st, 6, False, sPSG, [9, 17, 25, 33])
        poll_issue(st, 1, vL4, sFKVP, "kv2a"); poll_check(st, 58, vL4, sFKVP, "kv2a", False)
    st = mk_F(0, "fa1", pre_fa1)
    c = Chain(finit()); c.fill(st, 0, 30); assert not c.items
    st.emit(a)
    f_end("fa1", "L_peelA", None)
    merge("L_P1B")
    for l in gtail: a.raw("@ghost " + l)
    stamp(2)
    J = p1_jobs(OPT["kvb0"], OPT["kvstepb"], 200)
    for k, c in enumerate(PARK()): kvjob(J, c, OPT["kp"][0]+k*OPT["kp"][1], min(OPT["kp"][0]+k*OPT["kp"][1]+24, 6*64), park=True)
    for i in range(28):
        p = i >> 2
        sw_ = 32 if (p == 4 and OPT["sw"]) or (p == 6 and OPT["sw"] & 2) else 0
        xjob(J, f"x2{p}", i, XO2, max(p+1, 3)*64 + (40 if p == 5 and OPT["sw"] else 0), (7+p)*64 - 134 - sw_, 4)
    for i in range(16):
        qt, ud = i & 1, i >> 1
        J.add("qs", f"s_add_u32 s{sJT}, s{sQST}, {(qt*8+ud)*1024}", f"buffer_store_dwordx4 {ar(Q(0,qt,ud),4)}, v{vL16}, {WS}, s{sJT} offen{OPT['kvsc']} ; @qs",
              *((7*64 if ud < 5 else 8*64, 7*64+20+i*OPT["qstep"]) if not OPT["qsg"] else
                (6*64+OPT["qsg"][i] , 6*64+OPT["qsg"][i] + OPT["qsl"])))
    def bstage(gs):
        s = gs % 7
        SWG = ({5: 5, 10: 3, 12: 5} if OPT["sw"] & 2 else {5: 5, 10: 3}) if OPT["sw"] else {}
        st = Stage(mf_proj2(SWG[gs], 0) if gs in SWG else mf_proj2(SWG[gs-1], 1) if gs-1 in SWG else mf_proj(s, "zero" if gs % 7 == 0 else None))
        nod = 3 <= gs <= 7
        common_fill(st, dma=not nod, nd={3: 16, 4: 8, 5: 0}.get(gs), novm=(6 <= gs <= 10), rdl=(gs == 7))
        if gs == 9: poll_issue(st, 3, vL4, sFKVP, "kvb"); poll_check(st, 58, vL4, sFKVP, "kvb", False)
        if gs == 10: kv2addr(st)
        if gs == 1:
            st.put(2, f"s_cmp_gt_u32 s{sN}, 34\ns_cselect_b32 s{sT+1}, 34, 2")
            st.put(4, f"v_and_b32 v{vT}, 4, v{vLANE}"); st.put(8, f"v_mul_u32_u24 v{vT}, s{sT+1}, v{vT}"); st.put(10, f"v_or_b32 v{vL4}, v{vL4}, v{vT}")
        flagjob(J, "kvf", "kv", sFKV, OPT["fdelay"]); flagjob(J, "qf", "qs", sFQ, OPT["qfd"])
        if nod: J.place(st, gs, OPT["capn"], XG3)
        elif gs == 8: J.place(st, gs, OPT["capq"], XG2)
        else: J.place(st, gs, OPT["capb"])
        if gs == 0 and OPT["esb"]:
            for i in [4*k+r for k in OPT["esb"] for r in range(4)]: st.add(f"v_accvgpr_write_b32 a{i}, v{208+i}", [], 0, 38 + (i >> 3)*4 + ((i >> 2) & 1)*2)
            st.schedule(); assert not st.over
        if gs == 12: assert not J.jobs and max(J.at.values()) < 12*64; gsetup(st); pflag(st)
        if gs in (4, 5): xwait(st, f"x1{gs+1}", 30 if gs in SWG else 62)
        if 6 <= gs < 13: xwait(st, f"x2{gs-6}", 30 if gs in SWG else 62)
        return st
    def btouch(gs):
        for _ in range(OPT["tb"].count(gs) if OPT["tch"] else 0): a(touch("B"))
        if gs == OPT["tc"]: a(f"s_cmp_eq_u32 s{sTYPE}, 1\ns_cbranch_scc0 L_tc\n" + touch("C") + "\nL_tc:")
    btouch(-1)
    def q_items(qb, sw=False):
        items = []; cnt = 0
        for ud in range(8):
            blk = ud >> 1
            for qt in range(2):
                e = 16*blk+15+3 + (0 if not sw else 32 if blk < 2 else 64)
                t = vT + 16 + (cnt % 4)*4; cnt += 1
                for i in range(4):
                    jp = 2*(ud & 1) + (i >> 1); tl = 4*blk + 2*(i & 1)
                    items.append((f"v_cvt_pk_bf16_f32 v{t+i}, v{O(tl,qt)+jp}, v{O(tl+1,qt)+jp}", 0, e, 2*blk))
                for i in range(4): items.append((f"v_accvgpr_write_b32 a{Q(qb,qt,ud)+i}, v{t+i}", 0, e, 99 if ud >= 5 else -1))
        return items
    def qs_check(sts):
        seq = [x for st in sts for g in sorted(st.fill) for y in st.fill[g] for x in y.split("\n")] if True else []
        return seq
    qi0 = q_items(0, OPT["sw"])
    for gs in range(6):
        st = bstage(gs)
        if gs == 5 and OPT["sw"]: qi0 = prefill(qi0, st)
        st.emit(a); btouch(gs)
    st = bstage(6); st7 = bstage(7)
    mid, st0 = split_chain(qi0, st, lambda: copy.deepcopy(st7), lambda ud: 8*ud-1)
    print("E1 mid", len(mid), file=sys.stderr)
    st.emit(a); btouch(6); emit_mid(mid)
    stamp(3)
    st0.emit(a); btouch(7)
    qi1 = q_items(128, OPT["sw"] & 2)
    for gs in range(8, 13):
        st = bstage(gs)
        if gs == 12 and OPT["sw"] & 2: qi1 = prefill(qi1, st)
        st.emit(a); btouch(gs)
    st = bstage(13)
    assert not J.jobs
    print("B jobs", {k: (v >> 6, v & 63) for k, v in J.at.items()}, file=sys.stderr)
    def mk_fa2():
        STUBS[:] = [x for x in STUBS if "fa2" not in x[0]]
        POLLS[:] = [x for x in POLLS if x[0] != "kv2b"]
        def pre(st): poll_issue(st, 1, vL4, sFKVP, "kv2b"); poll_check(st, 58, vL4, sFKVP, "kv2b", False)
        st = mk_F(0, "fa2", pre); c = Chain(finit()); c.fill(st, 0, 30); return st
    fa2_ = mk_fa2()
    mid, st0 = split_chain(qi1, st, lambda: copy.deepcopy(fa2_), lambda ud: 60)
    print("E2 mid", len(mid), file=sys.stderr)
    st.emit(a); emit_mid(mid)
    done_ = {y for v in st.fill.values() for y in v} | {x[0] for x in mid}
    q_rest = [x for x in qi1 if x[0] not in done_]
    assert q_rest == qi1[len(qi1)-len(q_rest):]
    btouch(13)
    stamp(4)
    a(f"s_cmp_eq_u32 s{sU1}, 0")
    a("s_cbranch_scc1 L_b0")
    st0.emit(a)
    f_end("fa2", None, "L_u40")
    def steady(b, qb, tag, czero=False, pre=None, last=False):
        st = Stage(mf_pv(0, b^1, czero) + mf_qk(1, b^1, qb)); common_fill(st, rk=OPT["kz"] and not pre)
        if b == 1 and not last: st.put(1, f"buffer_load_dword v{vPOLL}, v{vPV}, {WS}, s{sPOLL} offen sc1")
        if tag == "z1":
            st.put(OPT["pfg"]-1, "s_waitcnt vmcnt(@since:pts)")
            st.put(OPT["pfg"], f"buffer_store_dword v{vONE}, v{vFLG}, {WS}, s{sFQ} offen sc1")
        if pre: pre(st)
        if b == 0 and not last:
            st.put(56, f"s_sub_u32 s{sCNT}, s{sCNT}, 1")
            st.put(58, f"s_cmp_lg_u32 s{sCNT}, s{sEV}")
            st.scc_busy |= set(range(58, 64))
        place_sm(st, b, 0, 62, tag); st.schedule()
        if st.over or st.tail: print("steady over", tag, st.over, len(st.tail), file=sys.stderr)
        st.emit(a)
        a(f"s_cbranch_vccnz L_dorare_{tag}")
        a.label(f"L_norare_{tag}")
        STUBS.append((f"L_dorare_{tag}", f"L_rare{b}", f"L_norare_{tag}"))
    def loop(qb, n):
        a.label(f"L_s1z{n}")
        steady(1, qb, f"z{n}", True)
        a(f"s_branch L_mid{n}")
        merge(f"L_steady{n}", True)
        steady(1, qb, f"s1{n}")
        merge(f"L_mid{n}")
        steady(0, qb, f"s0{n}")
        a(f"s_cbranch_scc1 L_steady{n}")
        a.label(f"L_exit{n}")
    def gvar(qb, n):
        merge(f"L_gv{n}")
        if OPT["rt"] & 1: a(touch("EF"[n]))
        a(f"""
        s_mov_b32 s{sEV}, 1
        s_waitcnt vmcnt(16)
        v_cmp_ne_u32 vcc, 1, v{vPOLL}
        s_add_u32 s{sT+3}, s{sGC}, {4*PS_SRC}
        s_nop 3
        s_cbranch_vccnz L_pw_gv{n}
        L_po_gv{n}:
        s_cmp_ge_u32 s{sTYPE}, 2
        s_cselect_b32 s{sPOLL}, {OOB}, s{sFQ}
        v_mov_b32 v{vPV}, v{vFLG}
        """)
        POLLS.append((f"gv{n}", vPV, sPOLL, False))
        for b in (1, 0):
            def pre(st):
                for k, g in enumerate(OPT["ptg"]):
                    i = (1-b)*8+k; og, p, sg = i >> 2, (i >> 1) & 1, i & 1
                    st.put(g, f"buffer_load_dwordx4 {ar(GL+i*4,4)}, v{(vS, vS2)[sg]}, {WS}, s{(sGC, sT+3)[sg]} offen offset:{p*1024+og*256} sc1")
            steady(b, qb, f"gv{b}{n}", pre=pre)
        a(f"s_cbranch_scc1 L_steady{n}")
        a(f"s_branch L_exit{n}")
    loop(0, 0)
    a(f"s_cmp_gt_u32 s{sEV}, 1")
    a("s_cbranch_scc1 L_gv0")
    a(f"s_cmp_ge_u32 s{sTYPE}, 2")
    a(f"s_mov_b32 s{sEV}, 0")
    a("s_cbranch_scc1 L_lpack")
    a("s_branch L_end0")
    gvar(0, 0)
    a.raw(".p2align 7")
    a.label("L_domask_s00")
    for x in mask_code(0, 0, "L_domask_s00", "L_nomask_s00"):
        if x.startswith("s_branch"): a("s_cbranch_scc1 L_nomask_s01")
        a(x)
        if x.startswith(("s_cbranch", "s_nop")): a(f"s_cmp_eq_u32 s{sTYPE}, 3")
    merge("L_end0")
    a(f"""
    s_waitcnt vmcnt(16)
    v_cmp_ne_u32 vcc, 1, v{vPOLL}
    s_add_u32 s{sT+3}, s{sPT}, 16384
    s_cmp_eq_u32 s{sCNT}, 0
    s_cbranch_scc1 L_ptb
    s_bitcmp1_b32 vcc_lo, 0
    s_cbranch_scc1 L_steady0
    buffer_load_dwordx4 {vr(vSTB,4)}, v{vL16}, {WS}, s{sT+3} offen sc1
    """)
    for b in (1, 0):
        def pre(st):
            for k, g in enumerate(OPT["ptg"]):
                i = (1-b)*8+k
                if i % 4 == 0: st.put(g-1, f"s_add_u32 s{sT+3}, s{sPT}, {i*1024}")
                st.put(g, f"buffer_load_dwordx4 {ar(128+4*i,4)}, v{vL16}, {WS}, s{sT+3} offen offset:{(i&3)*1024} sc1")
        steady(b, 0, f"pt{b}", pre=pre, last=True)
    a("s_branch L_ln")
    merge("L_ptb")
    a("s_bitcmp1_b32 vcc_lo, 0")
    a("s_cbranch_scc1 L_pw_pt")
    a.label("L_po_pt")
    POLLS.append(("pt", vFLG, sFQ, True))
    a(f"@@buffer_load_dwordx4 {vr(vSTB,4)}, v{vL16}, {WS}, s{sT+3} offen sc1")
    for i in range(16):
        if i % 4 == 0: a(f"s_add_u32 s{sT+3}, s{sPT}, {i*1024}")
        a(f"buffer_load_dwordx4 {ar(128+4*i,4)}, v{vL16}, {WS}, s{sT+3} offen offset:{(i&3)*1024} sc1 ; @ptl")
    a.label("L_ln")
    def pack_items(e0, step):
        items = []
        for ud in range(8):
            for qt in range(2):
                regs = [O(2*ud,qt)+i for i in range(4)] + [O(2*ud+1,qt)+i for i in range(4)]
                for i in range(4): items.append((f"v_cvt_pk_bf16_f32 v{regs[i]}, v{regs[2*i]}, v{regs[2*i+1]}", 0, e0+step*ud, ud))
        return items
    def mk_L(tag):
        st = Stage(mf_pv(0, 0) + mf_pv(1, 1)); common_fill(st)
        place_sm(st, 1, 0, 30, tag); st.schedule()
        print("L over", tag, st.over, file=sys.stderr)
        st.put_post(31, f"s_cbranch_vccnz L_dorare_{tag}")
        st.put_post(31, f"L_norare_{tag}:")
        STUBS.append((f"L_dorare_{tag}", "L_rare1", f"L_norare_{tag}"))
        st.put(32, f"v_add_f32 v{vL[0]}, v{vL[0]}, v{vSUM[0][0]}")
        st.put(34, f"v_add_f32 v{vL[1]}, v{vL[1]}, v{vSUM[1][0]}")
        return st
    st = mk_L("ln")
    c = [(f"v_bfe_u32 v{vT+20}, v{vLANE}, 2, 2", 0), (f"v_lshrrev_b32 v{vT+21}, 4, v{vLANE}", 0), (f"v_cmp_eq_u32 s[{sT+4}:{sT+5}], v{vT+20}, v{vT+21}", 0),
         (f"v_and_b32 v{vT+20}, 3, v{vLANE}", 0), (f"v_lshlrev_b32 v{vT+20}, 4, v{vT+20}", 0), (f"v_mov_b32 v{vT+22}, 0x3f80", 0), (f"v_mov_b32 v{vT+23}, 0", 0),
         (f"v_cndmask_b32 v{vT+22}, 0, v{vT+22}, s[{sT+4}:{sT+5}]", 1), (f"v_lshlrev_b64 {vr(vSEL+2,2)}, v{vT+20}, {vr(vT+22,2)}", 0),
         (f"v_mov_b64 {vr(vSEL,2)}, 0", 0), (f"v_mov_b64 {vr(vSEL+4,2)}, 0", 0),
         ("s_waitcnt vmcnt(@since:ptl)", 1, 55),
         (f"v_cmp_neq_f32 vcc, v{NEGM(0)}, v{vSTB}", 1), (f"v_cmp_neq_f32 s[{sT+4}:{sT+5}], v{NEGM(1)}, v{vSTB+1}", 0)]
    c = Chain(c); c.fill(st, 35); assert not c.items
    st.emit(a)
    a(f"s_or_b64 vcc, vcc, s[{sT+4}:{sT+5}]")
    a("s_cbranch_scc1 L_slowcomb")
    a.label("L_comb")
    stamp(5)
    mf = []
    DF = OPT["dfr"]
    def pack1(ud, qt, e=0): return [(x[0], 0, e) for x in pack_items(0, 0)[(ud*2+qt)*4:(ud*2+qt)*4+4]]
    cord = sorted([(ud, qt) for ud in range(8) for qt in range(2)], key=lambda x: x[1] == 1 and x[0] >= DF)
    for ud, qt in cord:
        for h in range(2):
            d = vr(O(2*ud+h,qt),4)
            mf.append(f"{MF} {d}, {vr(vSEL+2-2*h,4)}, {ar(128+(ud*2+qt)*4,4)}, {d}")
    st = Stage(mf)
    st.put(0, f"v_add_f32 v{vL[0]}, v{vL[0]}, v{vSTB+2}")
    st.put(0, f"v_add_f32 v{vL[1]}, v{vL[1]}, v{vSTB+3}")
    c = Chain([x for k, (ud, qt) in enumerate(cord[:8+DF]) for x in pack1(ud, qt, 2*k+4)]); c.fill(st, 0, 31)
    st.emit(a)
    if c.items: a("s_nop 5")
    print("comb left", len(c.items), file=sys.stderr)
    c.flush(a)
    a("s_branch L_post2")
    def pts(i): return f"buffer_store_dwordx4 {vr(O(2*(i>>1),i&1),4)}, v{vL16}, {WS}, s{sT+3} offen offset:{(i&3)*1024}{OPT['kvsc']} ; @pts"
    def rarechk(tag, sub, st=None, g=None):
        for x in (f"s_cbranch_vccnz L_dorare_{tag}", f"L_norare_{tag}:"):
            if st: st.put_post(g, x)
            else: a(x)
        STUBS.append((f"L_dorare_{tag}", sub, f"L_norare_{tag}"))
    def tail(qb, n):
        st = Stage(mf_pv(0, 0) + mf_qkh(1, 0, qb)); common_fill(st)
        st.hov = OPT["hov"]; place_sm(st, 1, 0, 61, f"h1{n}", d=1); st.schedule()
        print("h1 over", st.over, len(st.tail), file=sys.stderr)
        st.emit(a); rarechk(f"h1{n}", "L_rare1")
        it = pack_items(0, 4)
        pk = Chain([(x[0], 0, x[2]+6) for k, x in enumerate(it) if not (k >> 2) & 1])
        sg = list(OPT["psg"]) if n == 0 else []
        def stores(st, base):
            for k, g in enumerate(sg):
                if base <= g < base+64:
                    if k % 2 == 0: st.put(g-base-1, f"s_add_u32 s{sT+3}, s{sPT}, {k*2048}")
                    st.put(g-base, pts(2*k))
        def chk(st, base):
            for k, g in enumerate(sg):
                key = f"v_cvt_pk_bf16_f32 v{O(2*k,0)+3},"
                if base <= g < base+64: assert not any(x[0].startswith(key) for x in pk.items) and all(w < g-base for w, v in st.fill.items() if any(x.startswith(key) for x in v)), (k, g)
        st = Stage(mf_pv(0, 1) + mf_qkh(1, 1, qb)); st.hzx = {63}; common_fill(st)
        stores(st, 0); st.hov = OPT["hov"]
        place_sm(st, 0, 0, 61, f"h0{n}", qts=(1,), d=2)
        prev = None
        for k in range(4*len(sg)):
            x = pk.items.pop(0); prev = st.add(x[0], [prev if k & 3 else None], x[2], min(sg[k >> 2]-1, 63))
        st.schedule()
        pk.fill(st); chk(st, 0)
        print("h0 over", st.over, len(st.tail), "pack left", len(pk.items), file=sys.stderr)
        st.emit(a); rarechk(f"h0{n}", "L_rareh0")
        st = Stage(mf_pvh(0, 0) + mf_pvh(1, 1)); common_fill(st)
        stores(st, 64)
        place_sm(st, 1, 1, 30, f"lh{n}", ladd=(1,), qts=(1,), d=3); st.schedule()
        rarechk(f"lh{n}", "L_rareh1", st, 31)
        st.put(34, f"v_add_f32 v{vL[1]}, v{vL[1]}, v{vSUM[1][0]}")
        pk.items = [(x[0], 0) for x in pk.items]
        if n == 0: pk.items += [(f"v_mov_b32 v{vSTAT}, v{NEGM(0)}", 0, 35), (f"v_mov_b32 v{vSTAT+1}, v{NEGM(1)}", 0), (f"v_mov_b64 {vr(vSTAT+2,2)}, {vr(vL[0],2)}", 0)]
        pk.items += [(x[0], 0, x[2]+41) for k, x in enumerate(it) if (k >> 2) & 1 and k >> 3 < DF]
        pk.fill(st); chk(st, 64)
        if n == 0: st.put(62, f"s_cmp_eq_u32 s{sTYPE}, 2")
        print("lh over", st.over, len(st.tail), "pack left", len(pk.items), file=sys.stderr)
        st.emit(a)
        if len(pk.items) < 14 and DF > 6: a("s_nop 5")
        pk.flush(a)
    a.label("L_u40")
    for i in range(64): a(f"v_mov_b64 {vr(O0+2*i,2)}, 0")
    merge("L_lpack")
    tail(0, 0)
    a("s_cbranch_scc0 L_post2b")
    a.label("L_seg2")
    stamp(5)
    a(f"""
    s_mov_b32 s{sTYPE}, 3
    s_lshr_b32 s{sCNT}, s{sU2}, 1
    s_sub_u32 s{sCNT}, s{sCNT}, 1
    s_sub_u32 s{sEV}, 8, s{sJ}
    s_add_u32 s{sT+3}, s{sPT}, 16384
    buffer_store_dwordx4 {vr(vSTAT,4)}, v{vL16}, {WS}, s{sT+3} offen sc1
    """)
    def pre_fb(st):
        poll_issue(st, 1, vL4, sFKVP, "kv2c"); poll_check(st, 58, vL4, sFKVP, "kv2c", False)
        todo = [i for i in range(16) if i & 1 or i >> 1 >= len(OPT["psg"])]
        assert len(todo) == len(OPT["fbg"])
        for k, (i, g) in enumerate(zip(todo, OPT["fbg"])):
            if k == 0 or todo[k-1] >> 2 != i >> 2: st.put(g-1, f"s_add_u32 s{sT+3}, s{sPT}, {(i>>2)*4096}")
            st.put(g, pts(i))
            prev = None
            for x in (pack1(i >> 1, 1) if i & 1 and i >> 1 >= DF else []): prev = st.add(x[0], [prev], 0, g-1)
        for x in finit():
            if f"v{vBIG}" not in x[0]: st.add(x[0], [], 0, 62)
    st = mk_F(128, "fb", pre_fb)
    st.emit(a)
    f_end("fb", None, "L_u41")
    loop(128, 1)
    a(f"s_cmp_eq_u32 s{sEV}, 1")
    a("s_cbranch_scc1 L_tail1")
    gvar(128, 1)
    a.label("L_u41")
    for i in range(64): a(f"v_mov_b64 {vr(O0+2*i,2)}, 0")
    a("s_waitcnt vmcnt(0)")
    a(f"buffer_store_dword v{vONE}, v{vFLG}, {WS}, s{sFQ} offen sc1")
    if OPT["g7"]:
        a(f"s_add_u32 s{sT+3}, s{sGC}, {4*PS_SRC}\ns_branch L_pw_g7\nL_po_g7:")
        POLLS.append(("g7", vPV, sPOLL, False))
        for i in range(16):
            og, p, sg = i >> 2, (i >> 1) & 1, i & 1
            a(f"buffer_load_dwordx4 {ar(GL+i*4,4)}, v{(vS, vS2)[sg]}, {WS}, s{(sGC, sT+3)[sg]} offen offset:{p*1024+og*256} sc1")
    merge("L_tail1")
    tail(128, 1)
    a.label("L_post2b")
    merge("L_post2")
    if OPT["rt"] & 2: a(touch("G"))
    stamp(6)
    if OPT["pr"]:
        a(f"s_bitcmp1_b32 s{sHEAD}, 0\ns_cselect_b32 s{sPSG}, {-PS_SRC}, s{sHEAD}\ns_cselect_b32 s{sPSG}, s{sPSG}, {PS_SRC}\ns_add_u32 s{sPSG}, s{sPSG}, s{sPSS}")
    a("s_nop 1")
    CO, FP, XO, BO = sU2, sW0, sCNT, sN
    CS = [sU1, sEV, sND, sPT]
    vXO, vBO, vFS = 44, 45, 48
    XB, BB, SEL = 96, 104, 112
    fpc = f"s_lshl_b32 s{FP}, s{FP}, 7\ns_add_u32 s{FP}, s{FP}, {WS_FLG + FL_S}"
    if OPT["fsep"]:
        fpc = f"""s_and_b32 s{FP}, s{FP}, 3
        s_lshr_b32 s{BO}, s{sJ}, 3
        s_mul_i32 s{BO}, s{BO}, 7
        s_xor_b32 s{BO}, s{BO}, 7
        s_xor_b32 s{BO}, s{BO}, s{sJ}
        s_lshl_b32 s{BO}, s{BO}, 6
        s_add_u32 s{FP}, s{FP}, s{BO}
        s_mul_i32 s{FP}, s{FP}, {OPT["fsep"]}
        s_add_u32 s{FP}, s{FP}, {WS_FLG + FL_S3}"""
    fs = f"""
    s_load_dwordx2 s[{sSA}:{sSA+1}], s[0:1], 0
    s_load_dwordx2 s[{sG}:{sG+1}], s[0:1], 80
    s_load_dwordx2 s[{sSB}:{sSB+1}], s[0:1], 88
    s_mov_b32 s{sSA+2}, {2048*896}
    s_mov_b32 s{sSB+2}, {2048*896}
    s_mov_b32 s{sG+2}, 896
    s_lshr_b32 s{FP}, s2, 2
    s_and_b32 s{sT}, s{FP}, {2*OPT["bal"]}
    s_xor_b32 s{sT}, s{sT}, s2
    s_and_b32 s{sT}, s{sT}, 3
    s_lshl2_add_u32 s{sT}, s{sWAVE}, s{sT}
    s_sub_u32 s{CO}, s{sGC}, {16*PS_SRC}
    s_lshl2_add_u32 s{XO}, s{sJ}, s{FP}
    s_mul_i32 s{XO}, s{XO}, {16*896}
    {fpc}
    s_lshr_b32 s{BO}, s{sT}, 1
    s_lshl_b32 s{BO}, s{BO}, 7
    s_add_u32 s{XO}, s{XO}, s{BO}
    s_and_b32 s{sT+4}, s{sT}, 1
    s_mul_i32 s{sT+4}, s{sT+4}, {64*896}
    s_add_u32 s{XO}, s{XO}, s{sT+4}
    v_and_b32 v{vXO}, 15, v{vLANE}
    v_mul_u32_u24 v{vFS}, {4*OPT["fsep"] or 4}, v{vXO}
    v_lshrrev_b32 v{vBO}, 4, v{vLANE}
    v_lshlrev_b32 v{vBO}, {3+OPT["o4"]}, v{vBO}
    v_and_b32 v{vS2}, 1, v{vLANE}
    v_mul_u32_u24 v{vS2}, 0xffff, v{vS2}
    v_add_u32 v{vS2}, 1, v{vS2}
    v_mul_u32_u24 v{vS2}, 0x3f80, v{vS2}
    v_lshrrev_b32 v{vXO}, 1, v{vXO}
    """
    fs = [(x.strip(), 1) for x in fs.split("\n") if x.strip()]
    fsS = [x for x in fs if x[0][0] == "s"]; fs = [(x[0], 0) for x in fs if x[0][0] == "v"]
    for k in range(8):
        fs += [(f"v_cmp_eq_u32 s[{sT+4}:{sT+5}], {k}, v{vXO}", 1), (f"v_cndmask_b32 v{SEL+k}, 0, v{vS2}, s[{sT+4}:{sT+5}]", 2)]
    fs += [(x, 1) for x in (f"v_and_b32 v{vXO}, 15, v{vLANE}", f"v_mul_u32_u24 v{vXO}, 896, v{vXO}", f"v_add_u32 v{vXO}, v{vXO}, v{vBO}")]
    fs += fsS
    fs.append((f"s_cmp_lt_u32 s{sT}, 14\ns_cselect_b32 s{XO}, s{XO}, {OOB}", 1))
    fs.append((f"s_lshr_b32 s{sEXP}, s{sT}, 1", 1))
    if OPT["pr"]:
        fs += [(f"s_cmp_lt_u32 s{sEXP}, 3\ns_cselect_b32 s{sT+4}, 16384, 0", 1), (f"s_add_u32 s{CO}, s{CO}, s{sT+4}", 1),
               (f"s_cmp_gt_u32 s{sEXP}, 3\ns_cselect_b32 s{sT+4}, {PS_SRC}, 0", 1), (f"s_add_u32 s{CO}, s{CO}, s{sT+4}", 1),
               (f"v_lshrrev_b32 v{vS}, 4, v{vLANE}", 1), (f"v_mul_u32_u24 v{vS}, {2*PS_SRC - 256}, v{vS}", 1), (f"v_add_u32 v{vS}, v{vS}, v{vL16}", 1),
               (f"s_mov_b32 s{CS[0]}, s{CO}", 1), (f"s_add_u32 s{CS[1]}, s{CO}, {8*PS_SRC}", 1), (f"s_add_u32 s{CS[2]}, s{CO}, {PS_SRC}", 1), (f"s_add_u32 s{CS[3]}, s{CO}, {9*PS_SRC}", 1),
               (f"s_cmp_eq_u32 s{sEXP}, 3\ns_cselect_b32 s{CS[2]}, s{CS[2]}, {OOB}\ns_cselect_b32 s{CS[3]}, s{CS[3]}, {OOB}", 1),
               (f"s_or_b32 s{sEXP}, s{sEXP}, 4", 1), (f"s_cmp_eq_u32 s{sEXP}, 7\ns_cselect_b32 s{sEXP}, 3, s{sEXP}", 1)]
    else: fs += [(f"s_add_u32 s{CS[k]}, s{CO}, {4*k*PS_SRC}", 1) for k in range(4)]
    fs = Chain(fs)
    J = Jobs()
    glate = []
    for k in range(2*OPT["o4"]):
        J.add("gl", None, f"buffer_load_dwordx4 {vr(XB+4*k,4)}, v{vXO}, {sr(sSA,4)}, s{XO} offen offset:{k*64}", 3*64, 7*64)
        J.add("gl", None, f"buffer_load_dwordx4 {vr(BB+4*k,4)}, v{vBO}, {G}, s{BO} offen offset:{k*64} ; @gl", 3*64, 7*64)
    for k in range(4-4*OPT["o4"]):
        J.add("gl", None, f"buffer_load_dwordx2 {vr(XB+2*k,2)}, v{vXO}, {sr(sSA,4)}, s{XO} offen offset:{k*32}", 3*64, 7*64)
        J.add("gl", None, f"buffer_load_dwordx2 {vr(BB+2*k,2)}, v{vBO}, {G}, s{BO} offen offset:{k*32} ; @gl", 3*64, 7*64)
    for s in range(7):
        st = Stage(mf_post(s)); common_fill(st, dma=(s < 3), nd=(None, None, None, 16, 8, 0, 0)[s], last=(s == 6))
        if s == 0:
            for ud in range(DF, 8):
                prev = None
                for x in pack1(ud, 1): prev = st.add(x[0], [prev], max(0, 8*ud-16), 8*ud-2)
            st.schedule(); print("post0 over", st.over, file=sys.stderr)
            c = xlane_ops("v_add_f32", vL[0], vT) + xlane_ops("v_add_f32", vL[1], vT) + [(f"v_rcp_f32 v{vRINV[0]}, v{vL[0]}", 0), (f"v_rcp_f32 v{vRINV[1]}, v{vL[1]}", 1)]
            c = Chain(c); c.fill(st); assert not c.items
            fs.fill(st)
        else:
            gaps = [17, 33, 49, 57]
            post_place(st, s-1, True, sPSS, gaps)
            if s == 2: st.put(60, "s_waitcnt lgkmcnt(0)")
            for t_, b_ in OPT["lvl"]:
                if s != t_ >> 6: continue
                st.put((t_ & 63)-2, f"v_mov_b32 v{vPV}, {b_+1}")
                st.put((t_ & 63)-1, f"s_waitcnt vmcnt(@since:ps{b_})")
                st.put(t_ & 63, f"buffer_store_dword v{vPV}, v{vFLG}, {WS}, s{sFSS} offen sc1")
            if s == 6 and OPT["dp"] is not None: st.put(OPT["ep"], f"buffer_load_dword v{vPOLL}, v{vFS}, {WS}, s{FP} offen sc1 ; @ep")
            if s == 6 and OPT["epoll"]: st.put(OPT["epoll"], f"buffer_load_dword v{vPOLL}, v{vFS}, {WS}, s{FP} offen sc1 ; @ep")
            if OPT["pr"] and s >= 4:
                st.put(4, f"s_add_u32 s{sT+3}, s{sPSS}, {(s-4*(OPT['pr'] == 2))*4096}")
                for k, g in enumerate((5, 21, 37, 53)): st.put(g, f"buffer_load_dwordx4 {ar((s-4)*16+k*4,4)}, v{vL16}, {WS}, s{sT+3} offen offset:{k*1024}{OPT['prld']}")
            J.place(st, s, 4, [1, 9, 13, 25, 29, 41, 45, 61])
            post_sched(st, s-1, True, gaps)
            fs.fill(st, 0, 63 if s == 1 else 58)
            if s == 2: assert not fs.items, len(fs.items)
        st.emit(a)
    assert not J.jobs
    post_flush(6, True, sPSS)
    stamp(7)
    a(f"s_mov_b32 s{sT+6}, 0xffff0000")
    a(f"s_mov_b32 s{sT+7}, {f2u(-1.4426950408889634):#x}")
    LB = 128
    GA, SA_, XF = 12, 64, 80
    def rnd_pair(r0, r1, t):
        a(f"v_cvt_pk_bf16_f32 v{t}, v{r0}, v{r1}")
        a(f"v_lshlrev_b32 v{r0}, 16, v{t}")
        a(f"v_and_b32 v{r1}, s{sT+6}, v{t}")
    T1, T2, T3 = 2, 3, 4
    def flag():
        for b_ in OPT["lve"] + [6]:
            a(f"v_mov_b32 v{(vPV, vS2)[b_ & 1]}, {b_+1}")
            a(f"s_waitcnt vmcnt(@since:ps{b_})")
            a(f"buffer_store_dword v{(vPV, vS2)[b_ & 1]}, v{vFLG}, {WS}, s{sFSS} offen sc1 ; @ps6")
    def gmath(fpos, mid=None):
        for n in range(16):
            d = vr(GA+(n >> 2)*4, 4)
            a(f"{MF} {d}, {vr(SEL+((n >> 1) & 1)*4,4)}, {ar(GL+n*4,4)}, {d if n & 3 else 0}")
        for i in range(8):
            a(f"v_lshlrev_b32 v{XF+2*i}, 16, v{XB+i}")
            a(f"v_and_b32 v{XF+2*i+1}, s{sT+6}, v{XB+i}")
        for i in range(8):
            g0, g1 = GA+2*i, GA+2*i+1
            if i == fpos: flag()
            if i == 2 and mid: a(mid)
            rnd_pair(g0, g1, T1)
            a(f"v_lshlrev_b32 v{T2}, 16, v{BB+i}")
            a(f"v_and_b32 v{T3}, s{sT+6}, v{BB+i}")
            a(f"v_add_f32 v{g0}, v{g0}, v{T2}")
            a(f"v_add_f32 v{g1}, v{g1}, v{T3}")
            rnd_pair(g0, g1, T1)
            a(f"v_mul_f32 v{T2}, s{sT+7}, v{g0}")
            a(f"v_mul_f32 v{T3}, s{sT+7}, v{g1}")
            a(f"v_exp_f32 v{T2}, v{T2}")
            a(f"v_exp_f32 v{T3}, v{T3}")
            a("s_nop 0")
            a(f"v_add_f32 v{T2}, 1.0, v{T2}")
            a(f"v_add_f32 v{T3}, 1.0, v{T3}")
            a(f"v_rcp_f32 v{T2}, v{T2}")
            a(f"v_rcp_f32 v{T3}, v{T3}")
            a("s_nop 0")
            a(f"v_mul_f32 v{g0}, v{g0}, v{T2}")
            a(f"v_mul_f32 v{g1}, v{g1}, v{T3}")
            rnd_pair(g0, g1, T1)
    def floads():
        for n in range(32):
            og, p, sg = n >> 3, (n >> 2) & 1, n & 3
            if OPT["fcap"] and n >= OPT["fcap"]: a(f"s_waitcnt vmcnt({OPT['fcap']-1})")
            a(f"buffer_load_dwordx4 {vr(LB+n*4,4)}, v{vS}, {WS}, s{CS[sg]} offen offset:{p*1024+og*256} sc1 ; @f{n}")
    def fin(og):
        for i in (2*og, 2*og+1):
            g0, g1, s0, s1 = GA+2*i, GA+2*i+1, SA_+2*i, SA_+2*i+1
            rnd_pair(s0, s1, T1)
            a(f"v_mul_f32 v{g0}, v{g0}, v{s0}")
            a(f"v_mul_f32 v{g1}, v{g1}, v{s1}")
            rnd_pair(g0, g1, T1)
            a(f"v_add_f32 v{g0}, v{g0}, v{XF+2*i}")
            a(f"v_add_f32 v{g1}, v{g1}, v{XF+2*i+1}")
            a(f"v_cvt_pk_bf16_f32 v{XB+i}, v{g0}, v{g1}")
        if OPT["o4"]:
            if og & 1: a(f"buffer_store_dwordx4 {vr(XB+2*og-2,4)}, v{vXO}, {sr(sSB,4)}, s{XO} offen offset:{og*32-32}{OPT['outsc']}")
            return
        a(f"buffer_store_dwordx2 {vr(XB+2*og,2)}, v{vXO}, {sr(sSB,4)}, s{XO} offen offset:{og*32}{OPT['outsc']}")
    if OPT["dp"] is not None:
        WAIT, FLY, NEW, NF, NFC, NA, CNT = sCLAMP, sFIRST, sTYPE, sXOFF, sXOF2, sT+3, sT+1
        lvl = OPT["lvl"][-1][1] if OPT["dp"] < 7 else 7
        assert lvl + 1 >= OPT["dp"]
        def gloads(sg):
            for k in range(8):
                og, p = k >> 1, k & 1
                if OPT["fcap"]: a(f"s_waitcnt vmcnt({OPT['fcap']-1})")
                a(f"buffer_load_dwordx4 {vr(LB+sg*32+k*4,4)}, v{vS}, {WS}, s{CS[sg]} offen offset:{p*1024+og*256} sc1")
        pl = f"buffer_load_dword v{vPOLL}, v{vFS}, {WS}, s{FP} offen sc1"
        def flags():
            a(f"""
            v_cmp_ge_u32 vcc, s{sLN}, v{vPOLL}
            v_cmp_ge_u32 s[{sT+4}:{sT+5}], s{sEXP}, v{vPOLL}
            s_mov_b32 s{NFC}, s{NF}
            s_mov_b32 s{NEW}, 0
            s_orn2_b32 s{NA}, vcc_lo, s{WAIT}
            s_mov_b32 s{NF}, s{sT+4}
            """)
        def pass_a(tag):
            for sg in range(4):
                a(f"s_and_b32 s{sT+2}, s{NA}, {15 << 4*sg}")
                a(f"s_cbranch_scc1 L_pa{tag}{sg}")
                gloads(sg)
                a(f"s_or_b32 s{NEW}, s{NEW}, {15 << 4*sg}")
                a.label(f"L_pa{tag}{sg}")
            a(pl)
            a(f"s_andn2_b32 s{WAIT}, s{WAIT}, s{NEW}")
        a(f"""
        s_min_u32 s{sLN}, s{sEXP}, {lvl}
        s_movk_i32 s{WAIT}, 0xffff
        s_and_b32 s{WAIT}, s{WAIT}, 0xffff
        s_cmp_eq_u32 s{XO}, {OOB}
        v_mov_b32 v{vPV}, 7
        s_waitcnt vmcnt(@since:ep)
        s_cbranch_scc1 L_fidle
        """)
        if OPT["dp1"] == 1: flags(); pass_a("x")
        else: a(f"s_mov_b32 s{NEW}, 0")
        if OPT["dp1"] == 2: a(pl)
        for i in range(8): a(f"v_mov_b64 {vr(SA_+2*i,2)}, 0")
        gmath(-1 if OPT["dp1"] else OPT["fpos"])
        a(f"s_mov_b32 s{FLY}, s{NEW}\ns_mov_b32 s{CNT}, 0")
        if OPT["dp1"]: a(f"s_waitcnt vmcnt(0)\nbuffer_store_dword v{vPV}, v{vFLG}, {WS}, s{sFSS} offen sc1\ns_branch L_fr1")
        else: a(pl + "\ns_branch L_fround")
        a(f"""
        L_fslp:
        s_sleep {OPT['fsleep']}
        L_fround:
        s_waitcnt vmcnt(0)
        L_fr1:
        """)
        stamp(8)
        flags()
        a(f"s_cmp_eq_u32 s{WAIT}, 0")
        a("s_cbranch_scc1 L_pb")
        pass_a("y")
        a.label("L_pb")
        for sg in range(4):
            nib = 15 << 4*sg; r = LB+sg*32
            a(f"""
            s_and_b32 s{sT+2}, s{FLY}, {nib}
            s_cbranch_scc0 L_pbx{sg}
            s_and_b32 s{sT+2}, s{NFC}, {nib}
            s_cbranch_scc0 L_pbo{sg}
            v_max3_u32 v{T1}, v{r}, v{r+1}, v{r+2}
            v_max3_u32 v{T2}, v{r+3}, v{r+4}, v{r+5}
            """)
            for i in range(13): a(f"v_max3_u32 v{(T1, T2)[i & 1]}, v{(T1, T2)[i & 1]}, v{r+6+2*i}, v{r+7+2*i}")
            a(f"""
            v_max_u32 v{T1}, v{T1}, v{T2}
            v_cmp_eq_u32 vcc, -1, v{T1}
            s_nop 3
            s_cbranch_vccnz L_pbb{sg}
            L_pbo{sg}:
            """)
            for k in range(8):
                d = vr(SA_+(k >> 1)*4, 4)
                a(f"{MF} {d}, {vr(SEL+(k & 1)*4,4)}, {vr(r+k*4,4)}, {d}")
            a.label(f"L_pbx{sg}")
        a(f"""
        s_or_b32 s{sT+2}, s{NEW}, s{WAIT}
        s_cbranch_scc0 L_fgo
        s_add_u32 s{CNT}, s{CNT}, 1
        s_mov_b32 s{FLY}, s{NEW}
        s_cmp_ge_u32 s{CNT}, 0x8000
        s_cbranch_scc1 L_fgo
        s_cmp_eq_u32 s{FLY}, 0
        s_cbranch_scc1 L_fslp
        s_branch L_fround
        """)
        for sg in range(4):
            a.label(f"L_pbb{sg}")
            gloads(sg); a(pl)
            a(f"s_or_b32 s{NEW}, s{NEW}, {15 << 4*sg}")
            a(f"s_branch L_pbx{sg}")
        a.label("L_fidle")
        a("s_waitcnt vmcnt(0)")
        a(f"buffer_store_dword v{vPV}, v{vFLG}, {WS}, s{sFSS} offen sc1")
        stamp(8)
        a("s_branch L_fin")
        a.label("L_fgo")
        a("s_nop 1")
        for og in range(4): fin(og)
    else:
        a("s_waitcnt vmcnt(@since:gl)")
        if OPT["epoll"]:
            tail_ = [l.strip() for l in a.lines if l.strip().startswith("buffer_")][-40:]
            a("s_waitcnt vmcnt(@since:ep)")
            a(f"v_cmp_ge_u32 vcc, s{sEXP}, v{vPOLL}")
            a("s_nop 4")
            a("s_cbranch_vccnz L_fslow")
            stamp(8)
            floads(); flag()
            a("s_branch L_fgm")
            merge("L_fslow")
            for l in tail_: a.raw("@ghost " + l)
            flag()
        elif OPT["ep2"]:
            pl_ = f"buffer_load_dword v{vPOLL}, v{vFS}, {WS}, s{FP} offen sc1"
            if OPT["ep2"] == 1: a(pl_)
            gmath(OPT["fpos"], pl_ if OPT["ep2"] == 2 else None)
            if OPT["fpos"] >= 8: flag()
            a(f"""
            s_mov_b32 s{sT+1}, 0
            s_cmp_eq_u32 s{XO}, {OOB}
            s_waitcnt vmcnt(1)
            v_cmp_ge_u32 vcc, s{sEXP}, v{vPOLL}
            s_cbranch_scc1 L_fidle
            s_nop 2
            s_cbranch_vccz L_fgo
            L_fidle:
            """)
        else: gmath(OPT["fpos"])
        a(f"s_mov_b32 s{sT+1}, 0")
        stamp(8)
        if stamps: a("s_waitcnt lgkmcnt(0)")
        a(f"s_cmp_eq_u32 s{XO}, {OOB}")
        a("s_cbranch_scc1 L_fin")
        a.label("L_fpoll")
        a(f"""
        buffer_load_dword v{vPOLL}, v{vFS}, {WS}, s{FP} offen sc1
        s_add_u32 s{sT+1}, s{sT+1}, 1
        s_waitcnt vmcnt(0)
        v_cmp_ge_u32 vcc, s{sEXP}, v{vPOLL}
        s_cmp_lt_u32 s{sT+1}, 0x10000
        s_cbranch_vccz L_fgo
        s_sleep {OPT['fsleep']}
        s_cbranch_scc1 L_fpoll
        """)
        a.label("L_fgo")
        stamp(8)
        floads()
        a.label("L_fgm")
        if stamps: a("s_waitcnt lgkmcnt(0)")
        if OPT["epoll"]: gmath(-1)
        for n in range(32):
            if n & 1 == 0: a(f"s_waitcnt vmcnt(@since:f{n+1})")
            d = vr(SA_+(n >> 3)*4, 4)
            a(f"{MF} {d}, {vr(SEL+((n >> 2) & 1)*4,4)}, {vr(LB+n*4,4)}, {d if n & 7 else 0}")
            if n & 7 == 3 and n > 8: fin((n >> 3) - 1)
        a("s_nop 7"); a("s_nop 0")
        fin(3)
    a.label("L_fin")
    if stamps:
        a("s_waitcnt vmcnt(0)")
        stamp(9)
        a("s_waitcnt lgkmcnt(0)")
        if OPT["enc"] >= 0:
            a(f"""
            s_and_b32 s{sT+1}, s2, {OPT["encw"][0]}
            s_cmp_eq_u32 s{sT+1}, {OPT["encw"][1]}
            s_cbranch_scc0 L_end
            s_sub_u32 s{sT+1}, s{streg(OPT["enc"])}, s{streg(OPT["enc0"])}
            s_mul_i32 s{sT+1}, s{sT+1}, {OPT["enck"]}
            s_add_u32 s{sT+1}, s{sT+1}, s{streg(0)}
            s_add_u32 s{sT+1}, s{sT+1}, 10000
            s_mov_b32 s{sT+2}, 0
            L_enc:
            s_memrealtime s[{sT+4}:{sT+5}]
            s_add_u32 s{sT+2}, s{sT+2}, 1
            s_waitcnt lgkmcnt(0)
            s_cmp_gt_u32 s{sT+2}, 1000000
            s_cbranch_scc1 L_end
            s_sub_u32 s{sT+4}, s{sT+4}, s{sT+1}
            s_cmp_lt_i32 s{sT+4}, 0
            s_cbranch_scc1 L_enc
            s_endpgm
            """)
        for i in range(12): a(f"v_mov_b32 v{16+i}, s{streg(i) if i < 10 else sT+1}")
        a(f"""
        s_lshl_b32 s{sT+1}, s2, 2
        s_add_u32 s{sT+1}, s{sT+1}, s{sWAVE}
        s_lshl_b32 s{sT+1}, s{sT+1}, 6
        s_add_u32 s{sT+1}, s{sT+1}, {WS_STAMP}
        buffer_store_dwordx4 v[16:19], v{vFLG}, {WS}, s{sT+1} offen
        buffer_store_dwordx4 v[20:23], v{vFLG}, {WS}, s{sT+1} offen offset:16
        buffer_store_dwordx4 v[24:27], v{vFLG}, {WS}, s{sT+1} offen offset:32
        s_sub_u32 s{sT+1}, s{sT+1}, {WS_STAMP}
        s_lshl_b32 s{sT+1}, s{sT+1}, 3
        s_add_u32 s{sT+1}, s{sT+1}, {WS_STAMP + 0x100000}
        v_lshlrev_b32 v2, 2, v{vLANE}
        buffer_store_dword v0, v2, {WS}, s{sT+1} offen
        buffer_store_dword v{vKV}, v2, {WS}, s{sT+1} offen offset:256
        """)
    a.label("L_end")
    a("s_endpgm")
    for typ in ("K", "V"):
        for nm, ok, ldi, red, reg in (("zwait", "zok", f"buffer_load_dword v{vPOLL}, v{vL4}, {sr(sDBG,4)}, 0 offen sc1", "", vPOLL),
                ("prepwait", "prepok", f"buffer_load_dwordx4 {vr(PV,4)}, v{vL16}, {WS}, s{gIT} offen sc1",
                 f"v_and_b32 v{PV}, v{PV}, v{PV+1}\nv_and_b32 v{PV+2}, v{PV+2}, v{PV+3}\nv_and_b32 v{PV}, v{PV}, v{PV+2}", PV)):
            a.label(f"L_{nm}{typ}")
            a(f"s_mov_b32 s{sT+4}, 0")
            a.label(f"L_{nm}2{typ}")
            a(f"""
            s_sleep 4
            {ldi}
            s_add_u32 s{sT+4}, s{sT+4}, 1
            s_waitcnt vmcnt(0)
            {red}
            v_cmp_ne_u32 vcc, s{sT+1}, v{reg}
            s_cmp_ge_u32 s{sT+4}, 0x10000
            s_cbranch_scc1 L_{ok}{typ}
            s_nop 2
            s_cbranch_vccnz L_{nm}2{typ}
            s_branch L_{ok}{typ}
            """)
    for (tag, voff, soff, lane0) in POLLS:
        a.label(f"L_pw_{tag}")
        a(f"s_mov_b32 s{sT+1}, 0")
        a.label(f"L_pw2_{tag}")
        a(f"""
        buffer_load_dword v{vPOLL}, v{voff}, {WS}, s{soff} offen sc1
        s_add_u32 s{sT+1}, s{sT+1}, 1
        s_waitcnt vmcnt(0)
        v_cmp_ne_u32 s[{sT+4}:{sT+5}], 1, v{vPOLL}
        s_cmp_ge_u32 s{sT+1}, 0x10000
        s_cbranch_scc1 L_po_{tag}
        s_sleep {OPT['psleep']}
        """)
        if lane0 is True: a(f"s_bitcmp1_b32 s{sT+4}, 0")
        else: a(f"s_cmp_lg_u64 s[{sT+4}:{sT+5}], 0")
        a(f"s_cbranch_scc1 L_pw2_{tag}")
        a(f"s_branch L_po_{tag}")
    a.label("L_b0")
    Chain(q_rest + [x for x in finit() if f"v{vBIG}" in x[0]]).flush(a)
    a(f"s_mov_b32 s{sPT}, {OOB}")
    for _ in OPT["psg"]: a(f"buffer_store_dword v{vONE}, v{vFLG}, {WS}, s{sPT} offen")
    a("s_branch L_seg2")
    cold = False
    for (lab, sub, back) in sorted(STUBS, key=lambda x: "mask" not in x[1]):
        if "mask" not in sub and not cold: a.label("L_cold"); cold = True
        a.label(lab)
        if "mask" in sub and OPT["im"]:
            for x in mask_code(int(sub[-1]), 0, lab, back): a(x)
            continue
        a(f"s_call_b64 s[{sRET}:{sRET+1}], {sub}")
        a(f"s_branch {back}")
    for b in range(0 if OPT["im"] else 2):
        a.label(f"L_mask{b}")
        a("s_nop 7")
        a(f"s_cmp_eq_u32 s{sN}, s{sND}")
        a(f"s_cbranch_scc0 L_maskall{b}")
        for r in range(4):
            a(f"v_cndmask_b32 v{S(b,0,0)+r}, v{S(b,0,0)+r}, v{vBIG}, s[{sMASK+2*r}:{sMASK+2*r+1}]")
            a(f"v_cndmask_b32 v{S(b,1,1)+r}, v{S(b,1,1)+r}, v{vBIG}, s[{sMASK+2*r}:{sMASK+2*r+1}]")
            a(f"v_mov_b32 v{S(b,1,0)+r}, v{vBIG}")
        a(f"s_setpc_b64 s[{sRET}:{sRET+1}]")
        a.label(f"L_maskall{b}")
        for i in range(16): a(f"v_mov_b32 v{S(b,0,0)+i}, v{vBIG}")
        a(f"s_setpc_b64 s[{sRET}:{sRET+1}]")
    a.label("L_fchk")
    hi, lo = f2u(2.0**OPT["thr"]), f2u(2.0**-OPT["thr"])
    for qt in range(2):
        a(f"v_mov_b32 v{vT+8+qt}, v{vSUM[qt][0]}")
        xlane(a, "v_add_f32", vT+8+qt, vT)
        a(f"v_subrev_u32 v{vT+8+qt}, {lo:#x}, v{vT+8+qt}")
    a(f"v_max_u32 v{vT+8}, v{vT+8}, v{vT+9}")
    a(f"v_cmp_lt_u32 vcc, {hi-lo:#x}, v{vT+8}")
    a("s_nop 4")
    a("s_cbranch_vccnz L_rare0")
    a.label("L_fret")
    a(f"s_setpc_b64 s[{sRET}:{sRET+1}]")
    for b, qts, h in ((0, (0, 1), ""), (1, (0, 1), ""), (0, (1,), "h"), (1, (1,), "h")):
        a.label(f"L_rare{h}{b}")
        a("s_nop 7")
        D = [vT+8, vT+9]; F = [vT+10, vT+11]
        for qt in qts:
            r0, r1 = S(b,0,qt), S(b,1,qt)
            a(f"v_max3_f32 v{D[qt]}, v{r0}, v{r0+1}, v{r0+2}")
            a(f"v_max3_f32 v{D[qt]}, v{D[qt]}, v{r0+3}, v{r1}")
            a(f"v_max3_f32 v{D[qt]}, v{D[qt]}, v{r1+1}, v{r1+2}")
            a(f"v_max_f32 v{D[qt]}, v{D[qt]}, v{r1+3}")
            xlane(a, "v_max_f32", D[qt], vT)
            a(f"v_max_f32 v{D[qt]}, s{sCLAMP}, v{D[qt]}")
            a(f"v_max_f32 v{F[qt]}, 0, v{D[qt]}")
            a(f"v_exp_f32 v{F[qt]}, -v{F[qt]}")
            for i in range(4): a(f"v_sub_f32 v{NEGM(qt)+i}, v{NEGM(qt)+i}, v{D[qt]}")
            for bb in range(2):
                for kt in range(2):
                    for i in range(4): a(f"v_sub_f32 v{S(bb,kt,qt)+i}, v{S(bb,kt,qt)+i}, v{D[qt]}")
            a(f"v_mul_f32 v{vL[qt]}, v{F[qt]}, v{vL[qt]}")
        for o in sm_ops(b, qts): a(o)
        a(f"s_cmp_eq_u32 s{sFIRST}, 1")
        a(f"s_cbranch_scc1 L_rare_ret{h}{b}")
        for dt in range(16):
            for qt in qts:
                for i in range(4): a(f"v_mul_f32 v{O(dt,qt)+i}, v{F[qt]}, v{O(dt,qt)+i}")
        a.label(f"L_rare_ret{h}{b}")
        a(f"s_cmp_lg_u32 s{sCNT}, s{sEV}")
        a("s_nop 0")
        a(f"s_setpc_b64 s[{sRET}:{sRET+1}]")
    a.label("L_slowcomb")
    a("s_nop 7")
    wA, wB = [vT+8, vT+9], [vT+10, vT+11]
    for qt in range(2):
        a(f"""
        v_min_f32 v{vT+6}, v{NEGM(qt)}, v{vSTB+qt}
        v_sub_f32 v{wA[qt]}, v{vT+6}, v{NEGM(qt)}
        v_sub_f32 v{wB[qt]}, v{vT+6}, v{vSTB+qt}
        v_exp_f32 v{wA[qt]}, v{wA[qt]}
        v_exp_f32 v{wB[qt]}, v{wB[qt]}
        s_nop 0
        v_mul_f32 v{vL[qt]}, v{wA[qt]}, v{vL[qt]}
        v_mul_f32 v{vSTB+2+qt}, v{wB[qt]}, v{vSTB+2+qt}
        """)
    for dt in range(16):
        for qt in range(2):
            for i in range(4): a(f"v_mul_f32 v{O(dt,qt)+i}, v{wA[qt]}, v{O(dt,qt)+i}")
    for i in range(64):
        qt = (i >> 2) & 1
        a(f"""
        v_accvgpr_read_b32 v{vT}, a{128+i}
        v_lshlrev_b32 v{vT+1}, 16, v{vT}
        v_and_b32 v{vT}, 0xffff0000, v{vT}
        v_mul_f32 v{vT+1}, v{wB[qt]}, v{vT+1}
        v_mul_f32 v{vT}, v{wB[qt]}, v{vT}
        v_cvt_pk_bf16_f32 v{vT}, v{vT+1}, v{vT}
        v_accvgpr_write_b32 a{128+i}, v{vT}
        """)
    a("s_nop 1")
    a("s_branch L_comb")
    a.label("L_codeend")
    lines = []
    for l in a.lines: lines += l.split("\n")
    ghost = [l.startswith("@ghost ") for l in lines]
    lines = [l[7:] if g else l for l, g in zip(lines, ghost)]
    lines = resolve_vm(lines)
    lines = [l.replace("@@buffer", "buffer") for l, g in zip(lines, ghost) if not g]
    errs = check_hazards(lines) + check_scc(lines)
    for e in errs[:30]: print("HAZARD", e, file=sys.stderr)
    lines = [re.sub(r"\s*; @.*", "", l) for l in lines]
    lines = [l.strip() for l in lines if l.strip()]
    i, j = lines.index("L_gemmV:"), lines.index("L_P1A:")
    k = lines.index("L_zwaitV:"); k2 = lines.index("s_branch L_prepokV") + 1
    assert lines[i-1] == "s_branch L_P1A"
    r0, r1 = lines.index("L_cold:"), lines.index("L_codeend:")
    lines = [".p2align 12"] + lines[i:j] + lines[k:k2] + lines[r0:r1] + [".p2align 12"] + lines[:i-1] + lines[j:k] + lines[k2:r0] + lines[r1:]
    if OPT["tch"]:
        tmp = [re.sub(r"LT_(\w+)_\d", r"LR_\1", l) for l in lines]
        tmp, F = insert_stubs(tmp, [("L_gemmV", "L_zwaitV"), ("L_gK", "L_P1A"), ("L_P1A", "L_P1B"), ("L_P1B", "L_steady0"), ("L_steady0", "L_end0"), ("L_end0", "L_lpack"),
                                    ("L_lpack", "L_post2b"), ("L_post2b", "L_end")], OPT["tlab"], OPT["nox"], {"L_u41": "L_post2b"})
        g = lambda *k: [p for x in k for p in F.get(x, [])]
        pa = g("L_P1A", "L_steady0", "L_end0", "L_post2b"); pb = g("L_P1B", "L_steady0", "L_domask_s00", "L_lpack", "L_post2b")
        pb = [p for k, p in enumerate(pb) if k == 0 or not 0 < ADR[p] - ADR[pb[k-1]] <= 128]
        pos = {l.split()[-1]: n for n, l in enumerate(tmp)}
        it_ = iter(lines); lines = [l if l.startswith("@") else next(it_) for l in tmp]
        done_ = {}; tgt = {}
        for nm, path in SITES:
            q = dict(K=g("L_gK"), V=g("L_gemmV"), a=pa, b=pb, A=pa, B=pb, E=pa, F=pb, G=pa, C=g("L_end0"), D=g("L_lpack")[:2])[path[0]]
            d = done_.setdefault(path, set(done_.get(path.lower() + "K", ())))
            c = [p for p in q if p not in d and (pos[p] > pos[f"LR_{nm}:"] or (path == "V" and pos[f"LR_{nm}:"] > pos["L_go:"]))][:4]
            d |= set(c); c += q[-1:]*4
            for w in range(4): tgt[f"LT_{nm}_{w}"] = "L" + c[w]
        print("stubs", F, "\nuntouched A", [p for p in pa if p not in done_["A"]], "B", [p for p in pb if p not in done_["B"]], file=sys.stderr)
        o = []
        for l in lines:
            if l == "@pad": o.append("s_nop 0")
            elif l == "@align": o.append(".p2align 12")
            elif l.startswith("@skip"): o.append(f".fill {int(l.split()[1])//4}, 4, 0xbf800000")
            elif l.startswith("@"):
                p = l.split()[1]; r_ = [f"L{p}:", f"s_setpc_b64 s[{sRET}:{sRET+1}]"]
                if "L" + p not in tgt.values(): o += ["s_nop 0"]*(2 if "stub" in l else 1)
                else: o += [f"s_branch LO{p}"] + r_ + [f"LO{p}:"] if "stub" in l else r_
            else: o.append(re.sub(r"LT_\w+_\d", lambda m: tgt[m.group(0)], l))
        lines = o
    lines = compact(lines)
    return "\n".join(lines) + "\n", kernel_desc(name, 512, 256)

if __name__ == "__main__":
    import ast
    for x in sys.argv[2:]:
        k, v = x.split("=")
        OPT[k] = ast.literal_eval(v)
    NAME = "recurrent_scan__compressed_kv_cla__dense_activation_squared_relu__prompt_kernel"
    body, desc = gen(NAME)
    ref = open("recurrent_scan__compressed_kv_cla__dense_activation_squared_relu__prompt.s.ref").read().split("\n")
    hdr = [l for l in ref if l.startswith(";") and "launch" not in l and "grid=" not in l]
    hdr += ["; @launch grid=(256,1,1) block=(256,1,1) lds=163840", '.amdgcn_target "amdgcn-amd-amdhsa--gfx950"', ".text"]
    txt = "\n".join(hdr) + "\n" + body + '.section .rodata,"a"\n.p2align 6\n' + desc
    open(sys.argv[1], "w").write(txt)
    print(len(txt), "bytes", file=sys.stderr)
```
